```python
import torch

def _softmax(x, axis=-1):
    return torch.softmax(x, dim=axis)
def _gelu(x):
    return torch.nn.functional.gelu(x, approximate="tanh")
def _silu(x):
    return torch.nn.functional.silu(x)
def _sigmoid(x):
    return torch.sigmoid(x)
def _layernorm(x, axis=-1, eps=1e-5):
    m = x.mean(dim=axis, keepdim=True)
    v = x.var(dim=axis, keepdim=True, unbiased=False)
    return (x - m) / torch.sqrt(v + eps)
def _scatter_add(tgt, idx, src, axis=0):
    return tgt.clone().index_add_(axis, idx, src)
def _segment_sum(src, seg, n):
    out = torch.zeros((n,) + src.shape[1:], dtype=src.dtype)
    return out.index_add_(0, seg, src)
def _pad(x, pw):
    flat = tuple(v for pair in reversed(pw) for v in pair)
    return torch.nn.functional.pad(x, flat)

kernel_name = 'interleave_layers__linear_attn_block__mixer_s_mlp__prompt'

def setup_inputs():

    _w = (lambda a: (lambda t: t.to(torch.bfloat16) if t.is_floating_point() else t)(torch.as_tensor(a)))
    def _A_setup():
        B, S, D = 1, 2048, 512
        return {
            "x": _w((lambda *s: torch.randn(*s, dtype=torch.bfloat16) * 0.05)(B, S, D)),
            "wqkv": _w((lambda *s: torch.randn(*s, dtype=torch.bfloat16) * 0.1)(D, 3 * D)),
            "wo": _w((lambda *s: torch.randn(*s, dtype=torch.bfloat16) * 0.1)(D, D)),
        }
    _A_in = _A_setup()

    def _B_setup():
        B, S, D, F = 1, 2048, 512, 1792
        return {
            "x":  _w((lambda *s: torch.randn(*s, dtype=torch.bfloat16) * 0.05)(B, S, D)),
            "w1": _w((lambda *s: torch.randn(*s, dtype=torch.bfloat16) * 3.2)(D, D) * (D ** -0.5)),
            "w2": _w((lambda *s: torch.randn(*s, dtype=torch.bfloat16) * 3.2)(D, D) * (D ** -0.5)),
            "w3": _w((lambda *s: torch.randn(*s, dtype=torch.bfloat16) * 3.2)(D, F) * (D ** -0.5)),
            "w4": _w((lambda *s: torch.randn(*s, dtype=torch.bfloat16) * 3.2)(F, D) * (F ** -0.5)),
        }
    _B_in = _B_setup()

    return {
        "A_x": _A_in["x"],
        "A_wqkv": _A_in["wqkv"],
        "A_wo": _A_in["wo"],
        "B_x": _B_in["x"],
        "B_w1": _B_in["w1"],
        "B_w2": _B_in["w2"],
        "B_w3": _B_in["w3"],
        "B_w4": _B_in["w4"],
    }

def reference(A_x, A_wqkv, A_wo, B_x, B_w1, B_w2, B_w3, B_w4):
    def _A_ref(x, wqkv, wo):
        B, S, D = x.shape
        H = 32; Dh = D // H
        qkv = (lambda x, *d: x.permute(*d))((x @ wqkv).reshape(B, S, 3, H, Dh), 2, 0, 3, 1, 4)
        q, k, v = qkv[0], qkv[1], qkv[2]
        phi = lambda t: torch.where(t > 0, t + 1, torch.exp(t)) + 1e-6
        pq, pk = phi(q), phi(k)
        kv = torch.einsum("bhsd,bhse->bhde", pk, v)
        z = torch.einsum("bhsd->bhd", pk)
        num = torch.einsum("bhqd,bhde->bhqe", pq, kv)
        den = torch.einsum("bhqd,bhd->bhq", pq, z)[..., None] + 1e-6
        o = num / den
        return (lambda x, *d: x.permute(*d))(o, 0, 2, 1, 3).reshape(B, S, D) @ wo

    def _B_ref(x, w1, w2, w3, w4):
        B, S, D = x.shape
        h = _gelu(_layernorm(x, axis=-1) @ w1)
        c = D // 4
        g0 = _pad(h[:, :, 0*c:1*c], ((0, 0), (1, 0), (0, 0)))[:, :S, :]
        g1 = _pad(h[:, :, 1*c:2*c], ((0, 0), (0, 1), (0, 0)))[:, 1:, :]
        g2 = _pad(h[:, :, 2*c:3*c], ((0, 0), (2, 0), (0, 0)))[:, :S, :]
        g3 = _pad(h[:, :, 3*c:   ], ((0, 0), (0, 2), (0, 0)))[:, 2:, :]
        hs = torch.concatenate([g0, g1, g2, g3], axis=-1) @ w2
        x1 = x + hs
        h2 = _gelu(_layernorm(x1, axis=-1) @ w3) @ w4
        return x1 + h2

    x = A_x
    x = x + _A_ref(_layernorm(x, axis=-1), A_wqkv, A_wo)
    x = x + _B_ref(_layernorm(x, axis=-1), B_w1, B_w2, B_w3, B_w4)
    x = x + _A_ref(_layernorm(x, axis=-1), A_wqkv, A_wo)
    x = x + _B_ref(_layernorm(x, axis=-1), B_w1, B_w2, B_w3, B_w4)
    return x
```

```python
import sys, os, struct

KNAME = 'interleave_layers__linear_attn_block__mixer_s_mlp__prompt_kernel'

class Opt:
    stop = None
    timing = False
    fine = None
    force_safe = False
    window = 20
    window0 = 56
    cap_E = 64
    cap_B0 = 8
    cap_B = 16
    spin = 1 << 17
    prefetch_code = True
    D_kv = 4
    D_p6 = 4

MB = 1 << 20
XF_OFF = 0
O_OFF = 2 * MB
XP_OFF = 4 * MB
X1_OFF = 6 * MB
H_OFF = 8 * MB
G_OFF = 0xA80000
ST_OFF = 0x1180000
ST_SZ = 2048 * 128
KVP_OFF = 0x1240000
LSTRIDE = 0x1300000
FL_OFF = 2 * LSTRIDE
LF_OFF = FL_OFF
KVF_OFF = FL_OFF + 4096
HF_OFF = FL_OFF + 8192
CS_OFF = FL_OFF + 12288
CSF_OFF = FL_OFF + 28672
XID_OFF = FL_OFF + 29696
NONCE_OFF = FL_OFF + 30720
TM_OFF = FL_OFF + 32768
WS_USED = FL_OFF + 32768 + 256 * 256
KVREC = 2176

LDS_TOTAL = 163840
AREG = 0
SCR = 32768
CSL = 16384
WRING = 65536
RING = 93952
PHI = 53248

EPS = 1e-5

def f2u(x):
    return struct.unpack('<I', struct.pack('<f', x))[0]

class Asm:
    def __init__(self):
        self.lines = []; self.nlabel = 0; self.vm = []
        self.fstamp = lambda p: None
    def e(self, s): self.lines.append('  ' + s)
    def c(self, s): self.lines.append('  ; ' + s)
    def label(self, name): self.lines.append(name + ':')
    def newlabel(self, base='L'):
        self.nlabel += 1
        return f'{base}_{self.nlabel}'
    def vmem(self, s, tag=None):
        self.e(s); self.vm.append(tag)
    def count_vm(self, tag):
        if tag not in self.vm: return None
        idx = max(i for i, t in enumerate(self.vm) if t == tag)
        n = len(self.vm) - 1 - idx
        assert n <= 63, n
        self.vm = self.vm[idx + 1:]
        return n
    def wait_vm(self, tag):
        n = self.count_vm(tag)
        if n is not None: self.e(f's_waitcnt vmcnt({n})')
    def wait_vm_all(self):
        self.e('s_waitcnt vmcnt(0)'); self.vm = []
    def text(self): return '\n'.join(self.lines)

def set_exec(a, lo, hi=None):
    a.e(f's_mov_b32 exec_lo, {hex(lo)}')
    a.e(f's_mov_b32 exec_hi, {hex(lo if hi is None else hi)}')

S_V = 3
S_WS = 4; S_X = 8; S_OUT = 12; S_PA = 16
S_G, S_R, S_W, S_RB, S_CB, S_RB2, S_CB2 = 20, 21, 22, 23, 24, 25, 26
S_MODE, S_L, S_LOFF, S_EP, S_B, S_XCC = 27, 28, 29, 30, 31, 32
S_T0, S_T1, S_T2, S_T3, S_T4, S_T5 = 33, 34, 35, 36, 37, 38
S_SPIN, S_THR = 39, 40
S_AOFF, S_AOFF2, S_ASTR = 41, 42, 43
S_C1, S_C2, S_ONE2 = 44, 46, 48
S_LOG2E, S_EPS6 = 50, 51
S_W4K = 52
S_RH, S_CH = 53, 54
S_U0, S_U1, S_U2, S_U3, S_U4 = 55, 56, 57, 58, 59
S_PTR = 64
S_WQKV, S_WO, S_W1, S_W2, S_W3, S_W4 = 40, 44, 48, 52, 56, 60
S_CSRD = 88

V_LANE = 0
V_AS, V_AB, V_AG, V_P1 = 1, 2, 3, 4
V_AH = 5
V_STS, V_STB, V_STST, V_XRM, V_TST = 9, 10, 11, 12, 13
V_FSB, V_FBS, V_FSS, V_FH, V_FOWN, V_FKV = 14, 15, 16, 17, 18, 19
V_T128, V_T64, V_T224, V_TN, V_TA = 20, 21, 22, 23, 24
V_T0, V_T1, V_T2 = 25, 26, 27
V_TB = 28
V_RES = 32
V_MEAN, V_RS = 48, 49
V_X = 50
V_PQ = 56
V_ACC = 64
V_A = 128

PHASES = ['P1KV', 'P1Q', 'P3', 'P4', 'P5', 'P6', 'P7']
NCH = {'P1KV': 4, 'P1Q': 2, 'P3': 4, 'P4': 4, 'P5': 4, 'P6': 4, 'P7': 14}

class Slab:
    def __init__(self, layer, phase, chunk, kind, size, srow, npieces, srow2=None):
        self.layer, self.phase, self.chunk, self.kind = layer, phase, chunk, kind
        self.size, self.srow, self.npieces, self.srow2 = size, srow, npieces, srow2
        self.addr = None

def w4_tile_seq():
    seq = []
    for c in range(8):
        for i in [0, 1, 2, 3, 4, 5, 7, 8, 9, 10, 11, 12, 6, 13]:
            seq.append(14 * c + i)
    return seq

def build_slabs(layer):
    ph = {}
    def simple(phase, kind, nchunk, per, size, rows, np_):
        ph[phase] = [[Slab(layer, phase, c, kind, size, (c * per + j) * rows, np_) for j in range(per)] for c in range(nchunk)]
    simple('P1KV', 'KV', 4, 4, 4096, 32, 4)
    simple('P1Q', 'Q', 2, 4, 4096, 64, 4)
    simple('P3', 'WO', 4, 4, 4096, 32, 4)
    simple('P4', 'W1', 4, 4, 4096, 32, 4)
    simple('P5', 'W2', 4, 4, 4096, 32, 4)
    simple('P6', 'W3', 4, 4, 7168, 32, 7)
    seq = w4_tile_seq()
    ph['P7'] = [[Slab(layer, 'P7', c, 'W4', 4096, seq[2 * (c * 4 + j)] * 16, 4, srow2=seq[2 * (c * 4 + j) + 1] * 16)
                 for j in range(4)] for c in range(14)]
    pos = PHI
    for p in PHASES:
        for ch in ph[p]:
            for s in ch:
                if pos + s.size > RING: pos = 0
                s.addr = WRING + pos
                pos += s.size
    assert pos == PHI, pos
    return ph

def build_events(stop):
    ev = []
    for L in range(2):
        for p in PHASES:
            for c in range(NCH[p]): ev.append((L, 'B', p, c))
            ev.append((L, 'E', p, None))
            if p == 'P1KV': ev.append((L, 'X', 'X1', None))
            if p == 'P1Q': ev.append((L, 'X', 'X2', None))
            if stop == (L, p): return ev
    return ev

WS = f's[{S_WS}:{S_WS+3}]'

def thr_value(a, dst, epoch, xcc=False):
    if isinstance(epoch, int):
        a.e(f's_add_u32 s{dst}, s{S_B}, {8*epoch}')
    else:
        a.e(f's_lshl_b32 s{dst}, {epoch}, 3')
        a.e(f's_add_u32 s{dst}, s{dst}, s{S_B}')
    if xcc: a.e(f's_add_u32 s{dst}, s{dst}, s{S_XCC}')

def emit_poll(a, vaddr, epoch, soff='0', opt=Opt, x4=False, tbase=None):
    L = a.newlabel('POLL'); D = a.newlabel('POLLD')
    thr_value(a, S_THR, epoch)
    a.e(f's_mov_b32 s{S_SPIN}, {opt.spin}')
    a.label(L)
    if x4:
        T = tbase
        a.e(f'buffer_load_dwordx4 v[{T}:{T+3}], v{vaddr}, {WS}, {soff} offen sc1')
        a.e('s_waitcnt vmcnt(0)')
        for i in range(4): a.e(f'v_subrev_u32 v{T+i}, s{S_THR}, v{T+i}')
        a.e(f'v_max_u32 v{T}, v{T}, v{T+1}')
        a.e(f'v_max_u32 v{T+2}, v{T+2}, v{T+3}')
        a.e(f'v_max_u32 v{V_T0}, v{T}, v{T+2}')
    else:
        a.e(f'buffer_load_dword v{V_T2}, v{vaddr}, {WS}, {soff} offen sc1')
        a.e('s_waitcnt vmcnt(0)')
        a.e(f'v_subrev_u32 v{V_T0}, s{S_THR}, v{V_T2}')
    a.vm = []
    a.e(f'v_cmp_gt_u32 vcc, 0x80, v{V_T0}')
    a.e(f's_sub_u32 s{S_SPIN}, s{S_SPIN}, 1')
    a.e(f's_cbranch_scc1 {D}')
    a.e('s_cmp_eq_u64 vcc, -1')
    a.e(f's_cbranch_scc0 {L}')
    a.label(D)

def emit_mode_stores(a, stores):
    F = a.newlabel('STF'); D = a.newlabel('STD')
    a.e(f's_cmp_eq_u32 s{S_MODE}, 0')
    a.e(f's_cbranch_scc1 {F}')
    for s in stores: a.e(s + ' sc1')
    a.e(f's_branch {D}')
    a.label(F)
    for s in stores: a.e(s)
    a.label(D)
    for s in stores: a.vm.append('st')

def emit_signal(a, epoch):
    thr_value(a, S_THR, epoch, xcc=True)
    a.e(f'v_mov_b32 v{V_T0}, s{S_THR}')
    a.wait_vm_all()
    a.e('s_mov_b64 exec, 1')
    emit_mode_stores(a, [f'buffer_store_dword v{V_T0}, v{V_FOWN}, {WS}, 0 offen'])
    a.e('s_mov_b64 exec, -1')

def emit_xreduce(a, regs, tmp, over16=True):
    for r, t in zip(regs, tmp): a.e(f'v_mov_b32 v{t}, v{r}')
    a.e('s_nop 1')
    for r, t in zip(regs, tmp): a.e(f'v_permlane32_swap_b32 v{r}, v{t}')
    a.e('s_nop 0')
    for r, t in zip(regs, tmp): a.e(f'v_add_f32 v{r}, v{r}, v{t}')
    if over16:
        for r, t in zip(regs, tmp): a.e(f'v_mov_b32 v{t}, v{r}')
        a.e('s_nop 1')
        for r, t in zip(regs, tmp): a.e(f'v_permlane16_swap_b32 v{r}, v{t}')
        a.e('s_nop 0')
        for r, t in zip(regs, tmp): a.e(f'v_add_f32 v{r}, v{r}, v{t}')

def pk(op, d, x, y, z=None, mods=''):
    s = f'v_pk_{op}_f32 v[{d}:{d+1}], {x}, {y}'
    if z is not None: s += f', {z}'
    return s + mods
def vp(r): return f'v[{r}:{r+1}]'

def emit_stats_partial32(a, vals, t0, st_soff):
    s, q = t0, t0 + 2
    a.e(pk('add', s, vp(vals), vp(vals + 2)))
    a.e(pk('mul', q, vp(vals), vp(vals)))
    a.e(pk('fma', q, vp(vals + 2), vp(vals + 2), vp(q)))
    for i in range(4, 16, 2):
        a.e(pk('add', s, vp(s), vp(vals + i)))
        a.e(pk('fma', q, vp(vals + i), vp(vals + i), vp(q)))
    a.e(f'v_add_f32 v{t0}, v{s}, v{s+1}')
    a.e(f'v_add_f32 v{t0+1}, v{q}, v{q+1}')
    emit_xreduce(a, [t0, t0 + 1], [t0 + 4, t0 + 5], over16=False)
    set_exec(a, 0xffffffff, 0)
    emit_mode_stores(a, [f'buffer_store_dwordx2 v[{t0}:{t0+1}], v{V_STST}, {WS}, {st_soff} offen'])
    a.e('s_mov_b64 exec, -1')

def emit_stats_from_sums(a, s, ss, out_a, out_b, tmp, double=False, keep=None):
    mean, var = s, ss
    a.e(f'v_mul_f32 v{mean}, {hex(f2u(1.0/512))}, v{s}')
    a.e(f'v_mul_f32 v{var}, {hex(f2u(1.0/512))}, v{ss}')
    a.e(f'v_fma_f32 v{var}, -v{mean}, v{mean}, v{var}')
    a.e(f'v_max_f32 v{var}, 0, v{var}')
    a.e(f'v_add_f32 v{tmp}, {hex(f2u(EPS))}, v{var}')
    a.e(f'v_rsq_f32 v{tmp}, v{tmp}')
    a.e('s_nop 0')
    if double:
        a.e(f'v_mul_f32 v{tmp+1}, v{tmp}, v{tmp}')
        a.e(f'v_mul_f32 v{tmp+1}, v{tmp+1}, v{var}')
        a.e(f'v_add_f32 v{tmp+1}, {hex(f2u(EPS))}, v{tmp+1}')
        a.e(f'v_rsq_f32 v{tmp+1}, v{tmp+1}')
        a.e('s_nop 0')
        a.e(f'v_mul_f32 v{out_a}, v{tmp}, v{tmp+1}')
    else:
        a.e(f'v_mov_b32 v{out_a}, v{tmp}')
    if keep:
        a.e(f'v_mov_b32 v{keep[0]}, v{mean}')
        a.e(f'v_mov_b32 v{keep[1]}, v{tmp}')
    a.e(f'v_mul_f32 v{out_b}, v{out_a}, v{mean}')
    a.e(f'v_sub_f32 v{out_b}, 0, v{out_b}')

def emit_sum_partials(a, raw, n):
    k = n
    step = 2
    regs = [raw + i for i in range(0, n, 2)]
    while len(regs) > 1:
        nxt = []
        for i in range(0, len(regs), 2):
            a.e(pk('add', regs[i], vp(regs[i]), vp(regs[i + 1])))
            nxt.append(regs[i])
        regs = nxt

def emit_lnfold(a, acc, cs, av, bv, n):
    for i in range(0, n, 2):
        a.e(pk('mul', acc + i, vp(acc + i), vp(av), mods=' op_sel_hi:[1,0]'))
    for i in range(0, n, 2):
        a.e(pk('fma', acc + i, vp(cs + i), vp(bv), vp(acc + i), mods=' op_sel_hi:[1,0,1]'))

def emit_gelu(a, x, n, tmp, c1reg):
    blk = 16
    a.e(f'v_mov_b32 v{c1reg}, s{S_C1}')
    for b0 in range(0, n, blk):
        m = min(blk, n - b0); t = tmp
        for i in range(0, m, 2): a.e(pk('mul', t + i, vp(x + b0 + i), vp(x + b0 + i)))
        for i in range(0, m, 2): a.e(pk('fma', t + i, vp(t + i), f's[{S_C2}:{S_C2+1}]', vp(c1reg), mods=' op_sel_hi:[1,1,0]'))
        for i in range(0, m, 2): a.e(pk('mul', t + i, vp(t + i), vp(x + b0 + i)))
        for i in range(m): a.e(f'v_exp_f32 v{t+i}, v{t+i}')
        for i in range(0, m, 2): a.e(pk('add', t + i, vp(t + i), f's[{S_ONE2}:{S_ONE2+1}]'))
        for i in range(m): a.e(f'v_rcp_f32 v{t+i}, v{t+i}')
        for i in range(0, m, 2): a.e(pk('mul', x + b0 + i, vp(x + b0 + i), vp(t + i)))

def emit_phi(a, regs, tmp):
    for i, r in enumerate(regs): a.e(f'v_min_f32 v{tmp+i}, 0, v{r}')
    for i, r in enumerate(regs): a.e(f'v_mul_f32 v{tmp+i}, s{S_LOG2E}, v{tmp+i}')
    for i, r in enumerate(regs): a.e(f'v_exp_f32 v{tmp+i}, v{tmp+i}')
    for i, r in enumerate(regs): a.e(f'v_max_f32 v{r}, 0, v{r}')
    for i, r in enumerate(regs): a.e(f'v_add_f32 v{r}, v{r}, v{tmp+i}')
    for i, r in enumerate(regs): a.e(f'v_add_f32 v{r}, s{S_EPS6}, v{r}')

def emit_pack(a, dst, src, n):
    for i in range(0, n, 2): a.e(f'v_cvt_pk_bf16_f32 v{dst+i//2}, v{src+i}, v{src+i+1}')

def emit_pack32(a, dst, src):
    for k, j in enumerate([0, 2, 1, 3]):
        a.e(f'v_cvt_pk_bf16_f32 v{dst+2*k}, v{src+4*j}, v{src+4*j+1}')
        a.e(f'v_cvt_pk_bf16_f32 v{dst+2*k+1}, v{src+4*j+2}, v{src+4*j+3}')

class TrBase:
    def __init__(self, a, lane_reg, nt):
        self.a, self.lane_reg, self.nt, self.cur = a, lane_reg, nt, None
    def off(self, addr, span):
        if self.cur is None or addr < self.cur or addr + span - self.cur > 65535:
            self.cur = addr
            for t in range(self.nt):
                if t == 0:
                    self.a.e(f'v_add_u32 v{V_TB}, {hex(addr)}, v{self.lane_reg}')
                else:
                    self.a.e(f'v_xor_b32 v{V_TB+t}, {t << 5}, v{self.lane_reg}')
                    self.a.e(f'v_add_u32 v{V_TB+t}, {hex(addr)}, v{V_TB+t}')
        return addr - self.cur

def emit_gemm16(a, bar, phase, chunks, CT, kind, acc_of, a_of, a_wait, a_issue, wr, S, normal=False, extra=None):
    R, LA = 2, 4
    ks = []
    for ci, ch in enumerate(chunks):
        first = True
        for s in ch:
            ks.append((ci, s.addr, first)); first = False
            if kind == '64': ks.append((ci, s.addr + 2048, False))
    KS = len(ks)
    if kind == '128':
        trb = TrBase(a, V_T128, 4); second = 2048; span = 4096; tb = lambda t: V_TB + t; timm = lambda t: 0
    elif kind == '64':
        trb = TrBase(a, V_T64, 2); second = 1024; span = 2048; tb = lambda t: V_TB + t; timm = lambda t: 0
    else:
        trb = TrBase(a, V_T224, 1); second = 3584; span = 7168; tb = lambda t: V_TB; timm = lambda t: 32 * t
    total = KS * CT
    def slot(n): return wr + 4 * (n % S)
    def pre_issue(n):
        j, t = divmod(n, CT)
        ci, addr, first = ks[j]
        if t == 0 and first:
            a.fstamp(phase); bar(('B', phase, ci)); a.fstamp(phase)
        imm = trb.off(addr, span) if t == 0 else addr - trb.cur
        return imm + timm(t), t
    def rd(n, half, info):
        imm, t = info
        a.e(f'ds_read_b64_tr_b16 v[{slot(n)+2*half}:{slot(n)+2*half+1}], v{tb(t)} offset:{imm + (second if half else 0)}')
    def mfma(m, r):
        j, t = divmod(m, CT)
        d = acc_of(r, t); c = '0' if j == 0 else f'v[{d}:{d+3}]'
        w = f'v[{slot(m)}:{slot(m)+3}]'; x = f'v[{a_of(r,j)}:{a_of(r,j)+3}]'
        a.e(f'v_mfma_f32_16x16x32_bf16 v[{d}:{d+3}], ' + (f'{x}, {w}' if normal else f'{w}, {x}') + f', {c}')
    for n in range(min(LA, total)):
        info = pre_issue(n); rd(n, 0, info); rd(n, 1, info)
    for n in range(total):
        j, t = divmod(n, CT)
        lg = 2 * (min(n - 1 + LA, total - 1) - n)
        vmn = a_wait(j) if t == 0 else None
        if t == 0 and j in (0, 1): a.fstamp(phase)
        a.e((f's_waitcnt vmcnt({vmn}) lgkmcnt({lg})') if vmn is not None else f's_waitcnt lgkmcnt({lg})')
        nx = n + LA; info = None
        mfma(n, 0)
        if nx < total:
            info = pre_issue(nx); rd(nx, 0, info)
        mfma(n, 1)
        if nx < total: rd(nx, 1, info)
        a_issue(j, t)
        if extra and t == CT - 1: extra(j)
    a.fstamp(phase); bar(('E', phase, None)); a.fstamp(phase)
    a.e('s_nop 7')

def emit_gemm32(a, bar, phase, chunks, a_dma, acc, wr, tail=None):
    LA, S = 4, 5
    nch = len(chunks)
    total = nch * 8
    trb = TrBase(a, V_TN, 1)
    def slot(n): return wr + 8 * (n % S)
    def reads(n):
        c, rem = divmod(n, 8); ksl, s = divmod(rem, 2)
        out = []
        if rem == 0:
            a.wait_vm(('A', c)); a.fstamp(phase); bar(('B', phase, c)); a.fstamp(phase)
        sl = chunks[c][ksl]
        imm = trb.off(sl.addr, 4096)
        out.append(f'ds_read_b128 v[{slot(n)}:{slot(n)+3}], v{V_TA} offset:{(c % 4) * 16384 + ksl * 1024 + s * 512}')
        out.append(f'ds_read_b64_tr_b16 v[{slot(n)+4}:{slot(n)+5}], v{V_TB} offset:{imm + s * 1024}')
        out.append(f'ds_read_b64_tr_b16 v[{slot(n)+6}:{slot(n)+7}], v{V_TB} offset:{imm + s * 1024 + 2048}')
        return out
    a_dma(0); a_dma(1)
    pend = []
    nxt_dma = 2
    for n in range(LA):
        for s in reads(n): a.e(s)
    for n in range(total):
        lg = 3 * (min(n - 1 + LA, total - 1) - n)
        a.e(f's_waitcnt lgkmcnt({lg})')
        c = '0' if n == 0 else f'v[{acc}:{acc+15}]'
        a.e(f'v_mfma_f32_32x32x16_bf16 v[{acc}:{acc+15}], v[{slot(n)+4}:{slot(n)+7}], v[{slot(n)}:{slot(n)+3}], {c}')
        nx = n + LA
        if nx < total:
            for s in reads(nx): a.e(s)
        if nx < total and nx % 8 == 1:
            cc = nx // 8 + 2
            if cc < nch and cc >= nxt_dma:
                a_dma(cc); nxt_dma = cc + 1
        if n == 1 and nxt_dma == 2 and nch > 2:
            a_dma(2); nxt_dma = 3
        if tail and n == total - 10: tail()
    a.fstamp(phase); bar(('E', phase, None)); a.fstamp(phase)
    a.e('s_nop 7'); a.e('s_nop 3')


def gen_compute(a, opt, events):
    evq = list(events)
    tm = [0]
    def tmreg(i):
        assert i < 22 + 11
        return 64 + i if i < 22 else 91 + (i - 22)
    def dump(regs):
        sk = a.newlabel('TMS')
        a.e('s_waitcnt lgkmcnt(0)')
        a.e(f's_cmp_eq_u32 s{S_W}, 0')
        a.e(f's_cbranch_scc0 {sk}')
        a.e(f's_lshl_b32 s{S_T0}, s2, 8')
        a.e(f's_lshl_b32 s{S_T1}, s{S_L}, 7')
        if opt.timing: a.e(f's_add_u32 s{S_T0}, s{S_T0}, s{S_T1}')
        a.e(f's_add_u32 s{S_T0}, s{S_T0}, {hex(TM_OFF)}')
        for i, r in enumerate(regs):
            a.e(f'v_mov_b32 v{V_T0}, s{r}')
            a.e(f'v_mov_b32 v{V_T1}, {4*i}')
            a.e(f'buffer_store_dword v{V_T0}, v{V_T1}, {WS}, s{S_T0} offen')
        a.label(sk)
        a.e('s_waitcnt vmcnt(0)')
    fs = [0]
    def freg(i): return 64 + 2 * i if i < 11 else 92 + 2 * (i - 11)
    def fstamp(phase):
        if opt.fine == phase and fs[0] < 16:
            a.e(f's_memtime s[{freg(fs[0])}:{freg(fs[0])+1}]'); fs[0] += 1
    a.fstamp = fstamp
    def stamp():
        if opt.timing:
            a.e('s_memtime s[60:61]')
            a.e('s_waitcnt lgkmcnt(0)')
            a.e(f's_mov_b32 s{tmreg(tm[0])}, s60'); tm[0] += 1

    T0, T1, T2, TB = V_T0, V_T1, V_T2, V_TB
    a.c('--- compute: early address setup')
    stamp()
    a.e(f's_lshr_b32 s{S_RH}, s{S_W}, 1')
    a.e(f's_and_b32 s{S_CH}, s{S_W}, 1')
    a.e(f's_lshl_b32 s{S_W4K}, s{S_W}, 12')
    a.e(f's_lshl_b32 s{S_U0}, s{S_G}, 4')
    a.e(f's_lshl_b32 s{S_T1}, s{S_RB}, 2')
    a.e(f's_add_u32 s{S_U0}, s{S_U0}, s{S_T1}')
    a.e(f's_lshl_b32 s{S_T1}, s{S_RH}, 1')
    a.e(f's_add_u32 s{S_U2}, s{S_U0}, s{S_T1}')
    a.e(f's_add_u32 s{S_U0}, s{S_U0}, s{S_W}')
    a.e(f's_lshl_b32 s{S_U1}, s{S_G}, 4')
    a.e(f's_lshl_b32 s{S_T2}, s{S_RB2}, 3')
    a.e(f's_add_u32 s{S_U1}, s{S_U1}, s{S_T2}')
    a.e(f's_lshl_b32 s{S_T2}, s{S_W}, 1')
    a.e(f's_add_u32 s{S_U1}, s{S_U1}, s{S_T2}')
    a.e(f'v_and_b32 v{T0}, 15, v{V_LANE}')
    a.e(f'v_and_b32 v{T1}, 0x30, v{V_LANE}')
    a.e(f'v_lshl_add_u32 v{V_P1}, v{T0}, 10, v{T1}')
    a.e(f's_lshl_b32 s{S_T2}, s{S_U1}, 14')
    a.e(f'v_add_u32 v{V_P1}, s{S_T2}, v{V_P1}')
    for i in range(4): a.e(f's_mov_b32 s{S_PA+i}, s{S_X+i}')
    a.e(f's_mov_b32 s{S_PA+3}, 0x20000')
    a.e(f's_mov_b32 s{S_AOFF}, 0')
    a.e(f's_mov_b32 s{S_AOFF2}, 0x4000')
    a.e(f's_mov_b32 s{S_ASTR}, 64')
    a.e(f'v_and_b32 v{T2}, 31, v{V_LANE}')
    a.e(f'v_lshrrev_b32 v{TB}, 5, v{V_LANE}')
    a.e(f'v_lshlrev_b32 v{V_XRM}, 10, v{T2}')
    a.e(f'v_lshl_add_u32 v{V_XRM}, v{TB}, 3, v{V_XRM}')
    a.e(f's_lshl_b32 s{S_T2}, s{S_U2}, 14')
    a.e(f's_lshl_b32 s{S_T3}, s{S_CB}, 7')
    a.e(f's_add_u32 s{S_T2}, s{S_T2}, s{S_T3}')
    a.e(f's_lshl_b32 s{S_T3}, s{S_CH}, 6')
    a.e(f's_add_u32 s{S_T2}, s{S_T2}, s{S_T3}')
    a.e(f'v_add_u32 v{V_XRM}, s{S_T2}, v{V_XRM}')
    PA = f's[{S_PA}:{S_PA+3}]'
    def p1_load(j):
        for r in range(2):
            a.vmem(f'buffer_load_dwordx4 v[{V_A+(r*16+j)*4}:{V_A+(r*16+j)*4+3}], v{V_P1}, {PA}, s{S_AOFF if r == 0 else S_AOFF2} offen sc1', ('A', j))
        a.e(f's_add_u32 s{S_AOFF}, s{S_AOFF}, s{S_ASTR}')
        a.e(f's_add_u32 s{S_AOFF2}, s{S_AOFF2}, s{S_ASTR}')
    XS = f's[{S_X}:{S_X+3}]'
    for j in range(4):
        a.vmem(f'buffer_load_dwordx2 v[{V_RES+4*j}:{V_RES+4*j+1}], v{V_XRM}, {XS}, 0 offen offset:{16*j}', 'x')
    for j in range(opt.D_kv): p1_load(j)

    a.c('--- compute: address setup')
    a.e(f'v_lshlrev_b32 v{V_X}, 4, v{V_LANE}')
    a.e(f's_lshl_b32 s{S_T2}, s{S_U0}, 14')
    a.e(f'v_add_u32 v{V_AS}, s{S_T2}, v{V_X}')
    a.e(f's_lshl_b32 s{S_T2}, s{S_U1}, 14')
    a.e(f'v_add_u32 v{V_AB}, s{S_T2}, v{V_X}')
    a.e(f's_mul_i32 s{S_T2}, s{S_U0}, 57344')
    a.e(f'v_add_u32 v{V_AG}, s{S_T2}, v{V_X}')
    a.e(f'v_lshlrev_b32 v{V_STS}, 7, v{T2}')
    a.e(f'v_lshl_add_u32 v{V_STS}, v{TB}, 6, v{V_STS}')
    a.e(f's_lshl_b32 s{S_T2}, s{S_U2}, 11')
    a.e(f'v_add_u32 v{V_STS}, s{S_T2}, v{V_STS}')
    a.e(f'v_lshlrev_b32 v{V_STST}, 7, v{T2}')
    a.e(f's_lshl_b32 s{S_T3}, s{S_CB}, 1')
    a.e(f's_add_u32 s{S_T3}, s{S_T3}, s{S_CH}')
    a.e(f's_lshl_b32 s{S_T4}, s{S_T3}, 3')
    a.e(f's_add_u32 s{S_T2}, s{S_T2}, s{S_T4}')
    a.e(f'v_add_u32 v{V_STST}, s{S_T2}, v{V_STST}')
    a.e(f'v_lshlrev_b32 v{V_STB}, 7, v{T0}')
    a.e(f'v_lshl_add_u32 v{V_STB}, v{T1}, 1, v{V_STB}')
    a.e(f's_lshl_b32 s{S_T2}, s{S_U1}, 11')
    a.e(f'v_add_u32 v{V_STB}, s{S_T2}, v{V_STB}')
    a.e(f'v_lshrrev_b32 v{V_TST}, 4, v{T2}')
    a.e(f'v_lshlrev_b32 v{V_TST}, 14, v{V_TST}')
    a.e(f'v_lshl_add_u32 v{V_TST}, v{TB}, 8, v{V_TST}')
    a.e(f'v_lshl_add_u32 v{V_TST}, v{T0}, 4, v{V_TST}')
    a.e(f's_lshl_b32 s{S_T2}, s{S_U2}, 14')
    a.e(f's_lshl_b32 s{S_T4}, s{S_T3}, 10')
    a.e(f's_add_u32 s{S_T2}, s{S_T2}, s{S_T4}')
    a.e(f'v_add_u32 v{V_TST}, s{S_T2}, v{V_TST}')
    a.e(f's_lshl_b32 s{S_T2}, s{S_RB}, 6')
    a.e(f's_lshl_b32 s{S_T3}, s{S_W}, 4')
    a.e(f's_add_u32 s{S_T2}, s{S_T2}, s{S_T3}')
    a.e(f's_mul_i32 s{S_T3}, s{S_G}, 18')
    a.e(f's_lshl_b32 s{S_T4}, s{S_G}, 8')
    for kg, d in enumerate([-1, 1, -2, 2]):
        r = V_AH + kg
        a.e(f's_add_u32 s{S_T5}, s{S_T2}, {16 + d}')
        a.e(f'v_add_u32 v{r}, s{S_T5}, v{T0}')
        a.e(f'v_lshrrev_b32 v{V_X+1}, 4, v{r}')
        a.e(f'v_add_u32 v{V_X+1}, s{S_T3}, v{V_X+1}')
        a.e(f'v_lshlrev_b32 v{V_X+1}, 14, v{V_X+1}')
        a.e(f'v_and_b32 v{V_X+2}, 15, v{r}')
        a.e(f'v_add_u32 v{V_X+2}, v{T1}, v{V_X+2}')
        a.e(f'v_lshl_add_u32 v{V_X+1}, v{V_X+2}, 4, v{V_X+1}')
        a.e(f'v_add_u32 v{V_X+2}, s{S_T4}, v{r}')
        a.e(f'v_subrev_u32 v{V_X+2}, 16, v{V_X+2}')
        a.e(f'v_cmp_gt_u32 vcc, 0x800, v{V_X+2}')
        a.e(f'v_mov_b32 v{r}, 0x80000000')
        a.e('s_nop 0')
        a.e(f'v_cndmask_b32 v{r}, v{r}, v{V_X+1}, vcc')
    a.e(f's_lshl_b32 s{S_T2}, s{S_G}, 9')
    a.e(f's_add_u32 s{S_T2}, s{S_T2}, {hex(LF_OFF)}')
    a.e(f's_lshl_b32 s{S_T3}, s{S_W}, 7')
    a.e(f's_add_u32 s{S_T3}, s{S_T3}, s{S_T2}')
    a.e(f's_lshl_b32 s{S_T4}, s{S_R}, 2')
    a.e(f's_add_u32 s{S_T4}, s{S_T4}, s{S_T3}')
    a.e(f'v_mov_b32 v{V_FOWN}, s{S_T4}')
    a.e(f'v_and_b32 v{V_X+1}, 7, v{V_LANE}')
    a.e(f'v_lshlrev_b32 v{V_X+1}, 2, v{V_X+1}')
    a.e(f'v_bfe_u32 v{V_X+2}, v{V_LANE}, 3, 1')
    a.e(f'v_lshl_add_u32 v{V_X+1}, v{V_X+2}, 7, v{V_X+1}')
    a.e(f's_lshl_b32 s{S_T4}, s{S_RH}, 8')
    a.e(f's_lshl_b32 s{S_T5}, s{S_RB}, 5')
    a.e(f's_add_u32 s{S_T4}, s{S_T4}, s{S_T5}')
    a.e(f's_add_u32 s{S_T4}, s{S_T4}, s{S_T2}')
    a.e(f'v_add_u32 v{V_FSS}, s{S_T4}, v{V_X+1}')
    a.e(f's_lshl_b32 s{S_T4}, s{S_RB2}, 1')
    a.e(f's_add_u32 s{S_T4}, s{S_T4}, s{S_RH}')
    a.e(f's_lshl_b32 s{S_T4}, s{S_T4}, 5')
    a.e(f's_lshl_b32 s{S_T5}, s{S_CH}, 8')
    a.e(f's_add_u32 s{S_T4}, s{S_T4}, s{S_T5}')
    a.e(f's_add_u32 s{S_T4}, s{S_T4}, s{S_T2}')
    a.e(f'v_add_u32 v{V_FSB}, s{S_T4}, v{V_X+1}')
    a.e(f's_and_b32 s{S_T4}, s{S_RB}, 1')
    a.e(f's_lshl_b32 s{S_T4}, s{S_T4}, 1')
    a.e(f's_add_u32 s{S_T4}, s{S_T4}, s{S_RH}')
    a.e(f's_lshl_b32 s{S_T4}, s{S_T4}, 7')
    a.e(f's_add_u32 s{S_T4}, s{S_T4}, s{S_T2}')
    a.e(f's_lshr_b32 s{S_T5}, s{S_RB}, 1')
    a.e(f's_lshl_b32 s{S_T5}, s{S_T5}, 6')
    a.e(f's_add_u32 s{S_T4}, s{S_T4}, s{S_T5}')
    a.e(f'v_lshlrev_b32 v{V_FBS}, 2, v{T0}')
    a.e(f'v_add_u32 v{V_FBS}, s{S_T4}, v{V_FBS}')
    a.e(f's_lshl_b32 s{S_T4}, s{S_CB2}, 7')
    a.e(f's_add_u32 s{S_T4}, s{S_T4}, {hex(KVF_OFF)}')
    a.e(f'v_lshlrev_b32 v{V_FKV}, 2, v{T2}')
    a.e(f'v_add_u32 v{V_FKV}, s{S_T4}, v{V_FKV}')
    a.e(f'v_bfe_u32 v{V_X+1}, v{V_LANE}, 2, 2')
    a.e(f'v_lshrrev_b32 v{V_X+2}, 4, v{V_LANE}')
    a.e(f'v_lshl_add_u32 v{V_X+3}, v{V_X+2}, 2, v{V_X+1}')
    a.e(f'v_and_b32 v{V_X+4}, 3, v{V_LANE}')
    a.e(f'v_lshlrev_b32 v{V_X+4}, 3, v{V_X+4}')
    a.e(f'v_bfe_u32 v{V_X+5}, v{V_X+3}, 1, 2')
    a.e(f'v_lshl_add_u32 v{V_T128}, v{V_X+5}, 5, v{V_X+4}')
    a.e(f'v_lshl_add_u32 v{V_T128}, v{V_X+3}, 7, v{V_T128}')
    a.e(f'v_bfe_u32 v{V_X+5}, v{V_X+3}, 2, 1')
    a.e(f'v_lshl_add_u32 v{V_T64}, v{V_X+5}, 5, v{V_X+4}')
    a.e(f'v_lshl_add_u32 v{V_T64}, v{V_X+3}, 6, v{V_T64}')
    a.e(f'v_mul_u32_u24 v{V_T224}, 224, v{V_X+3}')
    a.e(f'v_add_u32 v{V_T224}, v{V_T224}, v{V_X+4}')
    a.e(f'v_lshrrev_b32 v{V_X+3}, 1, v{V_X+2}')
    a.e(f'v_lshl_add_u32 v{V_X+3}, v{V_X+3}, 2, v{V_X+1}')
    a.e(f'v_and_b32 v{V_X+5}, 1, v{V_X+2}')
    a.e(f's_lshl_b32 s{S_T4}, s{S_CH}, 1')
    a.e(f'v_add_u32 v{V_X+5}, s{S_T4}, v{V_X+5}')
    a.e(f'v_and_b32 v{V_X+1}, 2, v{V_X+1}')
    a.e(f'v_xor_b32 v{V_X+5}, v{V_X+5}, v{V_X+1}')
    a.e(f'v_lshl_add_u32 v{V_TN}, v{V_X+5}, 5, v{V_X+4}')
    a.e(f'v_lshl_add_u32 v{V_TN}, v{V_X+3}, 7, v{V_TN}')
    a.e(f'v_bfe_u32 v{V_TA}, v{V_LANE}, 4, 1')
    a.e(f's_lshl_b32 s{S_T4}, s{S_RH}, 1')
    a.e(f'v_add_u32 v{V_TA}, s{S_T4}, v{V_TA}')
    a.e(f'v_lshlrev_b32 v{V_TA}, 12, v{V_TA}')
    a.e(f'v_lshl_add_u32 v{V_TA}, v{TB}, 8, v{V_TA}')
    a.e(f'v_lshl_add_u32 v{V_TA}, v{T0}, 4, v{V_TA}')
    if AREG: a.e(f'v_add_u32 v{V_TA}, {hex(AREG)}, v{V_TA}')
    c1 = -2.0 * 0.7978845608028654 * 1.4426950408889634
    c2 = c1 * 0.044715
    for s, v in [(S_C1, c1), (S_C2, c2), (S_C2 + 1, c2), (S_ONE2, 1.0), (S_ONE2 + 1, 1.0),
                 (S_LOG2E, 1.4426950408889634), (S_EPS6, 1e-6)]:
        a.e(f's_mov_b32 s{s}, {hex(f2u(v))}')
    a.e(f's_mov_b32 s{S_L}, 0')
    a.e(f's_mov_b32 s{S_LOFF}, 0')
    a.e(f's_mov_b32 s{S_EP}, 1')
    a.e(f's_mov_b32 s{S_MODE}, 1')

    def emit_fh():
        a.c('build FH')
        a.e(f's_lshl_b32 s{S_T0}, s{S_RB}, 2')
        a.e(f's_add_u32 s{S_T0}, s{S_T0}, s{S_W}')
        a.e(f's_lshl_b32 s{S_T1}, s{S_G}, 9')
        a.e(f's_add_u32 s{S_T1}, s{S_T1}, {hex(LF_OFF)}')
        def local_addr(dst, d):
            a.e(f's_add_i32 s{S_T2}, s{S_T0}, {d}')
            a.e(f's_and_b32 s{S_T3}, s{S_T2}, 2')
            a.e(f's_lshl_b32 s{S_T3}, s{S_T3}, 7')
            a.e(f's_lshr_b32 s{S_T2}, s{S_T2}, 2')
            a.e(f's_lshl_b32 s{S_T2}, s{S_T2}, 5')
            a.e(f's_add_u32 s{S_T2}, s{S_T2}, s{S_T3}')
            a.e(f's_add_u32 s{dst}, s{S_T2}, s{S_T1}')
        local_addr(S_U0, 0); local_addr(S_U1, -1); local_addr(S_U2, 1)
        a.e(f's_mov_b32 s{S_U3}, 128'); a.e(f's_mov_b32 s{S_U4}, 128')
        a.e(f's_lshl_b32 s{S_T2}, s{S_L}, 11')
        a.e(f's_lshl_b32 s{S_T3}, s{S_G}, 8')
        a.e(f's_add_u32 s{S_T2}, s{S_T2}, s{S_T3}')
        a.e(f's_add_u32 s{S_T2}, s{S_T2}, {hex(HF_OFF)}')
        la = a.newlabel('FH'); lb = a.newlabel('FH')
        a.e(f's_cmp_eq_u32 s{S_T0}, 0')
        a.e(f's_cbranch_scc0 {la}')
        a.e(f's_mov_b32 s{S_U1}, s{S_U0}')
        a.e(f's_cmp_eq_u32 s{S_G}, 0')
        a.e(f's_cbranch_scc1 {la}')
        a.e(f's_mov_b32 s{S_U1}, s{S_T2}')
        a.e(f's_mov_b32 s{S_U3}, 0')
        a.label(la)
        a.e(f's_cmp_eq_u32 s{S_T0}, 15')
        a.e(f's_cbranch_scc0 {lb}')
        a.e(f's_mov_b32 s{S_U2}, s{S_U0}')
        a.e(f's_cmp_eq_u32 s{S_G}, 7')
        a.e(f's_cbranch_scc1 {lb}')
        a.e(f's_add_u32 s{S_U2}, s{S_T2}, 128')
        a.e(f's_mov_b32 s{S_U4}, 0')
        a.label(lb)
        a.e(f'v_lshrrev_b32 v{T1}, 4, v{V_LANE}')
        a.e(f'v_mov_b32 v{V_FH}, s{S_U0}')
        a.e(f'v_mov_b32 v{T2}, 128')
        a.e(f'v_cmp_eq_u32 vcc, 1, v{T1}')
        a.e(f'v_mov_b32 v{T0}, s{S_U1}')
        a.e(f'v_mov_b32 v{TB}, s{S_U3}')
        a.e('s_nop 0')
        a.e(f'v_cndmask_b32 v{V_FH}, v{V_FH}, v{T0}, vcc')
        a.e(f'v_cndmask_b32 v{T2}, v{T2}, v{TB}, vcc')
        a.e(f'v_cmp_eq_u32 vcc, 2, v{T1}')
        a.e(f'v_mov_b32 v{T0}, s{S_U2}')
        a.e(f'v_mov_b32 v{TB}, s{S_U4}')
        a.e('s_nop 0')
        a.e(f'v_cndmask_b32 v{V_FH}, v{V_FH}, v{T0}, vcc')
        a.e(f'v_cndmask_b32 v{T2}, v{T2}, v{TB}, vcc')
        a.e(f'v_bfe_u32 v{T1}, v{V_LANE}, 3, 1')
        a.e(f'v_mul_u32_u24 v{T1}, v{T1}, v{T2}')
        a.e(f'v_add_u32 v{V_FH}, v{V_FH}, v{T1}')
        a.e(f'v_and_b32 v{T1}, 7, v{V_LANE}')
        a.e(f'v_lshl_add_u32 v{V_FH}, v{T1}, 2, v{V_FH}')

    emit_fh()
    stamp()
    LOOP = 'LAYER_LOOP'
    a.label(LOOP)
    slabs = build_slabs(0)

    def run_layer():
        def bar(ev):
            exp = evq.pop(0)
            assert exp[1:] == ev or (exp[1] == 'X' and ev[0] == 'X' and exp[2] == ev[1]), (exp, ev)
            a.e('s_barrier')
        def soff(reg, base, extra=0):
            a.e(f's_add_u32 s{reg}, s{S_LOFF}, {hex(base + extra)}')
        def done(p):
            if opt.stop == (1, p):
                a.e(f's_cmp_eq_u32 s{S_L}, 1')
                a.e('s_cbranch_scc1 L_END_COMPUTE')
            return opt.stop == (0, p)
        def ep(k):
            a.e(f's_add_u32 s{S_T5}, s{S_EP}, {k}')
            return f's{S_T5}'

        a.c('=== P1KV')
        l0 = a.newlabel('L0')
        a.e(f's_cmp_eq_u32 s{S_L}, 0')
        a.e(f's_cbranch_scc1 {l0}')
        emit_poll(a, V_FSB, f's{S_EP}', opt=opt)
        for j in range(opt.D_kv): p1_load(j)
        a.label(l0)
        a.vm = [('A', j) for j in range(opt.D_kv) for _ in range(2)]
        stamp()
        a.fstamp('P1KV')
        WR1 = 96; D1 = 116; ONES = 124; D2 = V_PQ
        for i in range(4): a.e(f'v_mov_b32 v{ONES+i}, 0x3f803f80')
        def kv_issue(j, t):
            if t == 1:
                if j + opt.D_kv < 16:
                    p1_load(j + opt.D_kv)
                elif j + opt.D_kv == 16:
                    ld = a.newlabel('STD'); le = a.newlabel('STE')
                    a.e(f's_cmp_eq_u32 s{S_L}, 0')
                    a.e(f's_cbranch_scc1 {ld}')
                    soff(S_T0, ST_OFF)
                    a.e(f'buffer_load_dwordx4 v[{D1}:{D1+3}], v{V_STB}, {WS}, s{S_T0} offen sc1')
                    a.e(f'buffer_load_dwordx4 v[{D1+4}:{D1+7}], v{V_STB}, {WS}, s{S_T0} offen offset:16 sc1')
                    a.e(f'buffer_load_dwordx4 v[{D2}:{D2+3}], v{V_STB}, {WS}, s{S_T0} offen offset:2048 sc1')
                    a.e(f'buffer_load_dwordx4 v[{D2+4}:{D2+7}], v{V_STB}, {WS}, s{S_T0} offen offset:2064 sc1')
                    a.e(f's_branch {le}')
                    a.label(ld)
                    for i in range(4):
                        a.e(f'buffer_load_dword v{V_X+i}, v{V_FOWN}, {WS}, 0 offen')
                    a.label(le)
                    a.vm += ['st'] * 4
        def kv_extra(j):
            sk = a.newlabel('MS')
            a.e(f's_cmp_eq_u32 s{S_L}, 0')
            a.e(f's_cbranch_scc0 {sk}')
            for r in range(2):
                x = f'v[{V_A+(r*16+j)*4}:{V_A+(r*16+j)*4+3}]'
                c1_ = '0' if j == 0 else f'v[{D1+4*r}:{D1+4*r+3}]'
                c2_ = '0' if j == 0 else f'v[{D2+4*r}:{D2+4*r+3}]'
                a.e(f'v_mfma_f32_16x16x32_bf16 v[{D1+4*r}:{D1+4*r+3}], v[{ONES}:{ONES+3}], {x}, {c1_}')
                a.e(f'v_mfma_f32_16x16x32_bf16 v[{D2+4*r}:{D2+4*r+3}], {x}, {x}, {c2_}')
            a.label(sk)
        emit_gemm16(a, bar, 'P1KV', slabs['P1KV'], 4, '128',
                    acc_of=lambda r, t: V_ACC + (r * 4 + t) * 4, a_of=lambda r, j: V_A + (r * 16 + j) * 4,
                    a_wait=lambda j: a.count_vm(('A', j)), a_issue=kv_issue, wr=WR1, S=5, normal=True, extra=kv_extra)
        stamp()
        a.wait_vm_all()
        SUM = [(V_X, V_X + 1), (V_X + 2, V_X + 3)]
        l1 = a.newlabel('S1'); le = a.newlabel('SE')
        a.e(f's_cmp_eq_u32 s{S_L}, 0')
        a.e(f's_cbranch_scc0 {l1}')
        for j in range(4):
            b = V_RES + 4 * j
            a.e(f'v_and_b32 v{b+3}, 0xffff0000, v{b+1}')
            a.e(f'v_lshlrev_b32 v{b+2}, 16, v{b+1}')
            a.e(f'v_and_b32 v{b+1}, 0xffff0000, v{b}')
            a.e(f'v_lshlrev_b32 v{b}, 16, v{b}')
        a.e(f'v_min_u32 v{T1}, 59, v{V_LANE}')
        a.e(f'v_lshlrev_b32 v{T1}, 4, v{T1}')
        a.e(f's_mov_b32 s{S_T0}, {hex(CSF_OFF)}')
        emit_poll(a, T1, 1, soff=f's{S_T0}', opt=opt, x4=True, tbase=WR1)
        a.e(f'v_and_b32 v{T0}, 3, v{V_LANE}')
        a.e(f'v_bfe_u32 v{T1}, v{V_LANE}, 2, 2')
        a.e(f'v_lshrrev_b32 v{T2}, 4, v{V_LANE}')
        for r in range(2):
            s_, ss_ = SUM[r]
            a.e(f'v_mov_b32 v{s_}, v{D1+4*r}')
            a.e(f'v_mov_b32 v{ss_}, v{D2+4*r}')
            for i in range(1, 4):
                a.e(f'v_cmp_eq_u32 vcc, {i}, v{T0}')
                a.e('s_nop 1')
                a.e(f'v_cndmask_b32 v{ss_}, v{ss_}, v{D2+4*r+i}, vcc')
            a.e(f'v_cmp_eq_u32 vcc, v{T1}, v{T2}')
            a.e('s_nop 1')
            a.e(f'v_cndmask_b32 v{ss_}, 0, v{ss_}, vcc')
        emit_xreduce(a, [SUM[0][1], SUM[1][1]], [T0, T1])
        a.e(f's_branch {le}')
        a.label(l1)
        for r, raw in enumerate([D1, D2]):
            emit_sum_partials(a, raw, 8)
            a.e(f'v_mov_b32 v{SUM[r][0]}, v{raw}')
            a.e(f'v_mov_b32 v{SUM[r][1]}, v{raw+1}')
        emit_xreduce(a, [SUM[0][0], SUM[0][1], SUM[1][0], SUM[1][1]], [WR1, WR1 + 1, WR1 + 2, WR1 + 3])
        a.label(le)
        CSR = 120
        a.e(f'v_and_b32 v{T0}, 15, v{V_LANE}')
        a.e(f'v_lshlrev_b32 v{T0}, 2, v{T0}')
        a.e(f'v_and_b32 v{T1}, 0x30, v{V_LANE}')
        a.e(f's_lshl_b32 s{S_T0}, s{S_CB2}, 7')
        a.e(f's_add_u32 s{S_T0}, s{S_T0}, {hex(CS_OFF + 32*64)}')
        a.e(f's_add_u32 s{S_T1}, s{S_T0}, {32*64}')
        a.vmem(f'buffer_load_dword v{CSR}, v{T0}, {WS}, s{S_T0} offen sc1', 'cs')
        a.vmem(f'buffer_load_dword v{CSR+1}, v{T0}, {WS}, s{S_T0} offen offset:64 sc1', 'cs')
        a.vmem(f'buffer_load_dword v{CSR+2}, v{T0}, {WS}, s{S_T1} offen sc1', 'cs')
        a.vmem(f'buffer_load_dword v{CSR+3}, v{T0}, {WS}, s{S_T1} offen offset:64 sc1', 'cs')
        KEEP = [(V_PQ + 0, V_PQ + 2), (V_PQ + 4, V_PQ + 6)]
        for r in range(2):
            emit_stats_from_sums(a, SUM[r][0], SUM[r][1], KEEP[r][0], KEEP[r][1], WR1)
        AI = [WR1, WR1 + 8]; BI = [WR1 + 4, WR1 + 12]
        for r in range(2):
            for i in range(4):
                a.e(f'ds_bpermute_b32 v{AI[r]+i}, v{T1}, v{KEEP[r][0]} offset:{4*i}')
                a.e(f'ds_bpermute_b32 v{BI[r]+i}, v{T1}, v{KEEP[r][1]} offset:{4*i}')
        a.e('s_waitcnt vmcnt(0) lgkmcnt(0)'); a.vm = []
        for r in range(2):
            for t in range(4):
                for i in range(4):
                    d = V_ACC + (r * 4 + t) * 4 + i
                    a.e(f'v_mul_f32 v{d}, v{d}, v{AI[r]+i}')
            for t in range(4):
                for i in range(4):
                    d = V_ACC + (r * 4 + t) * 4 + i
                    a.e(f'v_fmac_f32 v{d}, v{BI[r]+i}, v{CSR+t}')
        regs = [V_ACC + (r * 4 + t) * 4 + i for r in range(2) for t in range(2) for i in range(4)]
        emit_phi(a, regs, WR1)
        for t in range(4):
            b0 = V_ACC + t * 4; b1 = V_ACC + (4 + t) * 4
            a.e(f'v_cvt_pk_bf16_f32 v{b0}, v{b0}, v{b0+1}')
            a.e(f'v_cvt_pk_bf16_f32 v{b0+1}, v{b0+2}, v{b0+3}')
            a.e(f'v_cvt_pk_bf16_f32 v{b0+2}, v{b1}, v{b1+1}')
            a.e(f'v_cvt_pk_bf16_f32 v{b0+3}, v{b1+2}, v{b1+3}')
        a.e('s_nop 1')
        KVD = V_ACC + 16
        for h in range(2):
            a.e(f'v_mfma_f32_16x16x32_bf16 v[{KVD+4*h}:{KVD+4*h+3}], v[{V_ACC+4*h}:{V_ACC+4*h+3}], v[{V_ACC+8+4*h}:{V_ACC+8+4*h+3}], 0')
            a.e(f'v_mfma_f32_16x16x32_bf16 v[{KVD+8+4*h}:{KVD+8+4*h+3}], v[{V_ACC+4*h}:{V_ACC+4*h+3}], v[{ONES}:{ONES+3}], 0')
        a.e(f's_lshl_b32 s{S_T0}, s{S_W}, 11')
        a.e(f's_add_u32 s{S_T0}, s{S_T0}, {hex(SCR)}')
        a.e(f'v_lshlrev_b32 v{T0}, 4, v{V_LANE}')
        a.e(f'v_add_u32 v{T0}, s{S_T0}, v{T0}')
        a.e(f's_lshl_b32 s{S_T0}, s{S_W}, 7')
        a.e(f's_add_u32 s{S_T0}, s{S_T0}, {hex(SCR + 8192)}')
        a.e(f'v_add_u32 v{T2}, s{S_T0}, v{T1}')
        a.e('s_nop 4')
        a.e(f'ds_write_b128 v{T0}, v[{KVD}:{KVD+3}]')
        a.e(f'ds_write_b128 v{T0}, v[{KVD+4}:{KVD+7}] offset:1024')
        set_exec(a, 0x00010001)
        a.e(f'ds_write_b128 v{T2}, v[{KVD+8}:{KVD+11}]')
        a.e(f'ds_write_b128 v{T2}, v[{KVD+12}:{KVD+15}] offset:64')
        a.e('s_mov_b64 exec, -1')
        a.e('s_waitcnt lgkmcnt(0)')
        bar(('X', 'X1'))
        sk = a.newlabel('KVST')
        a.e(f's_cmp_lt_u32 s{S_W}, 2')
        a.e(f's_cbranch_scc0 {sk}')
        a.e(f's_lshl_b32 s{S_T0}, s{S_W}, 10')
        a.e(f's_add_u32 s{S_T0}, s{S_T0}, {hex(SCR)}')
        a.e(f'v_lshlrev_b32 v{T0}, 4, v{V_LANE}')
        a.e(f'v_add_u32 v{T2}, s{S_T0}, v{T0}')
        a.e(f's_lshl_b32 s{S_T0}, s{S_W}, 6')
        a.e(f's_add_u32 s{S_T0}, s{S_T0}, {hex(SCR + 8192)}')
        a.e(f'v_add_u32 v{V_X}, s{S_T0}, v{T1}')
        KB = V_ACC
        for ww in range(4):
            a.e(f'ds_read_b128 v[{KB+4*ww}:{KB+4*ww+3}], v{T2} offset:{ww*2048}')
            a.e(f'ds_read_b128 v[{KB+16+4*ww}:{KB+16+4*ww+3}], v{V_X} offset:{ww*128}')
        a.e(f's_lshl_b32 s{S_T0}, s{S_CB2}, 4')
        a.e(f's_lshl_b32 s{S_T1}, s{S_G}, 1')
        a.e(f's_add_u32 s{S_T0}, s{S_T0}, s{S_T1}')
        a.e(f's_add_u32 s{S_T0}, s{S_T0}, s{S_RB2}')
        a.e(f's_mul_i32 s{S_T0}, s{S_T0}, {KVREC}')
        a.e(f's_add_u32 s{S_T0}, s{S_T0}, s{S_LOFF}')
        a.e(f's_add_u32 s{S_T0}, s{S_T0}, {hex(KVP_OFF)}')
        a.e(f's_lshl_b32 s{S_T1}, s{S_W}, 10')
        a.e(f's_add_u32 s{S_T1}, s{S_T1}, s{S_T0}')
        a.e(f's_lshl_b32 s{S_T2}, s{S_W}, 6')
        a.e(f's_add_u32 s{S_T2}, s{S_T2}, s{S_T0}')
        a.e(f's_add_u32 s{S_T2}, s{S_T2}, 2048')
        a.e('s_waitcnt lgkmcnt(0)')
        for base in (KB, KB + 16):
            for i in range(0, 4, 2):
                a.e(pk('add', base + i, vp(base + i), vp(base + 4 + i)))
                a.e(pk('add', base + 8 + i, vp(base + 8 + i), vp(base + 12 + i)))
                a.e(pk('add', base + i, vp(base + i), vp(base + 8 + i)))
        a.e(f'buffer_store_dwordx4 v[{KB}:{KB+3}], v{T0}, {WS}, s{S_T1} offen sc1')
        set_exec(a, 0x00010001)
        a.e(f'buffer_store_dwordx4 v[{KB+16}:{KB+19}], v{T1}, {WS}, s{S_T2} offen sc1')
        a.e('s_mov_b64 exec, -1')
        a.e(f's_lshl_b32 s{S_T0}, s{S_L}, 11')
        a.e(f's_lshl_b32 s{S_T1}, s{S_CB2}, 7')
        a.e(f's_add_u32 s{S_T0}, s{S_T0}, s{S_T1}')
        a.e(f's_lshl_b32 s{S_T1}, s{S_W}, 6')
        a.e(f's_add_u32 s{S_T0}, s{S_T0}, s{S_T1}')
        a.e(f's_lshl_b32 s{S_T1}, s{S_G}, 3')
        a.e(f's_add_u32 s{S_T0}, s{S_T0}, s{S_T1}')
        a.e(f's_lshl_b32 s{S_T1}, s{S_RB2}, 2')
        a.e(f's_add_u32 s{S_T0}, s{S_T0}, s{S_T1}')
        a.e(f's_add_u32 s{S_T0}, s{S_T0}, {hex(KVF_OFF)}')
        a.e(f'v_mov_b32 v{T0}, s{S_T0}')
        thr_value(a, S_THR, 1, xcc=True)
        a.e(f'v_mov_b32 v{T2}, s{S_THR}')
        a.e('s_waitcnt vmcnt(0)')
        a.e('s_mov_b64 exec, 1')
        a.e(f'buffer_store_dword v{T2}, v{T0}, {WS}, 0 offen sc1')
        a.e('s_mov_b64 exec, -1')
        a.label(sk)
        a.vm = ['kvflag']
        stamp()
        if done('P1KV'): return True

        a.c('=== P1Q')
        QCS = V_ACC + 16
        a.e(f'v_and_b32 v{T1}, 0x30, v{V_LANE}')
        a.e(f's_lshl_b32 s{S_T0}, s{S_CB2}, 7')
        a.e(f's_add_u32 s{S_T0}, s{S_T0}, {hex(CS_OFF)}')
        a.vmem(f'buffer_load_dwordx4 v[{QCS}:{QCS+3}], v{T1}, {WS}, s{S_T0} offen sc1', 'cs')
        a.vmem(f'buffer_load_dwordx4 v[{QCS+4}:{QCS+7}], v{T1}, {WS}, s{S_T0} offen offset:64 sc1', 'cs')
        QAB = [(V_ACC + 24, V_ACC + 26), (V_ACC + 28, V_ACC + 30)]
        for r in range(2):
            a.e(f'v_mov_b32 v{QAB[r][0]}, v{KEEP[r][0]}')
            a.e(f'v_mov_b32 v{QAB[r][1]}, v{KEEP[r][1]}')
        emit_gemm16(a, bar, 'P1Q', slabs['P1Q'], 2, '64',
                    acc_of=lambda r, t: V_ACC + (r * 2 + t) * 4, a_of=lambda r, j: V_A + (r * 16 + j) * 4,
                    a_wait=lambda j: None, a_issue=lambda j, t: None, wr=96, S=8)
        a.wait_vm('cs')
        for r in range(2):
            for t in range(2):
                emit_lnfold(a, V_ACC + (r * 2 + t) * 4, QCS + 4 * t, QAB[r][0], QAB[r][1], 4)
        emit_phi(a, [V_ACC + i for i in range(16)], 96)
        for r in range(2):
            for h in range(2):
                emit_pack(a, V_PQ + (r * 2 + h) * 2, V_ACC + (r * 2 + h) * 4, 4)
        stamp()
        sk = a.newlabel('MODE')
        a.e(f's_cmp_eq_u32 s{S_L}, 0')
        a.e(f's_cbranch_scc0 {sk}')
        a.e(f'v_and_b32 v{T1}, 31, v{V_LANE}')
        a.e(f'v_lshlrev_b32 v{T1}, 2, v{T1}')
        a.e(f's_lshl_b32 s{S_T0}, s{S_G}, 7')
        a.e(f's_add_u32 s{S_T0}, s{S_T0}, {hex(XID_OFF)}')
        emit_poll(a, T1, 0, soff=f's{S_T0}', opt=opt)
        a.e(f'v_and_b32 v{T2}, 7, v{T2}')
        a.e(f'v_cmp_eq_u32 vcc, s{S_XCC}, v{T2}')
        a.e('s_nop 1')
        a.e('s_cmp_eq_u64 vcc, -1')
        a.e(f's_cselect_b32 s{S_MODE}, 0, 1')
        if opt.force_safe: a.e(f's_mov_b32 s{S_MODE}, 1')
        a.label(sk)
        a.e(f's_lshl_b32 s{S_T0}, s{S_L}, 11')
        emit_poll(a, V_FKV, 1, soff=f's{S_T0}', opt=opt)
        stamp()
        a.e(f's_lshl_b32 s{S_T0}, s{S_CB2}, 4')
        a.e(f's_lshl_b32 s{S_T1}, s{S_W}, 2')
        a.e(f's_add_u32 s{S_T0}, s{S_T0}, s{S_T1}')
        a.e(f's_mul_i32 s{S_T0}, s{S_T0}, {KVREC}')
        a.e(f's_add_u32 s{S_T0}, s{S_T0}, s{S_LOFF}')
        a.e(f's_add_u32 s{S_T0}, s{S_T0}, {hex(KVP_OFF)}')
        a.e(f'v_lshlrev_b32 v{T0}, 4, v{V_LANE}')
        a.e(f'v_and_b32 v{T1}, 0x30, v{V_LANE}')
        PB = V_A
        for s4 in range(4):
            b = PB + 16 * s4
            a.vmem(f'buffer_load_dwordx4 v[{b}:{b+3}], v{T0}, {WS}, s{S_T0} offen sc1', 'kp')
            a.vmem(f'buffer_load_dwordx4 v[{b+4}:{b+7}], v{T0}, {WS}, s{S_T0} offen offset:1024 sc1', 'kp')
            a.vmem(f'buffer_load_dwordx4 v[{b+8}:{b+11}], v{T1}, {WS}, s{S_T0} offen offset:2048 sc1', 'kp')
            a.vmem(f'buffer_load_dwordx4 v[{b+12}:{b+15}], v{T1}, {WS}, s{S_T0} offen offset:2112 sc1', 'kp')
            if s4 < 3: a.e(f's_add_u32 s{S_T0}, s{S_T0}, {KVREC}')
        a.e(f's_lshl_b32 s{S_T0}, s{S_W}, 11')
        a.e(f's_add_u32 s{S_T0}, s{S_T0}, {hex(SCR)}')
        a.e(f'v_add_u32 v{T0}, s{S_T0}, v{T0}')
        a.e(f's_lshl_b32 s{S_T0}, s{S_W}, 7')
        a.e(f's_add_u32 s{S_T0}, s{S_T0}, {hex(SCR + 8192)}')
        a.e(f'v_add_u32 v{T2}, s{S_T0}, v{T1}')
        a.wait_vm_all()
        for i in range(0, 16, 2):
            a.e(pk('add', PB + i, vp(PB + i), vp(PB + 16 + i)))
            a.e(pk('add', PB + 32 + i, vp(PB + 32 + i), vp(PB + 48 + i)))
        for i in range(0, 16, 2):
            a.e(pk('add', PB + i, vp(PB + i), vp(PB + 32 + i)))
        a.e(f'ds_write_b128 v{T0}, v[{PB}:{PB+3}]')
        a.e(f'ds_write_b128 v{T0}, v[{PB+4}:{PB+7}] offset:1024')
        set_exec(a, 0x00010001)
        a.e(f'ds_write_b128 v{T2}, v[{PB+8}:{PB+11}]')
        a.e(f'ds_write_b128 v{T2}, v[{PB+12}:{PB+15}] offset:64')
        a.e('s_mov_b64 exec, -1')
        a.e(f'v_lshlrev_b32 v{T0}, 4, v{V_LANE}')
        a.e(f'v_add_u32 v{T0}, {hex(SCR)}, v{T0}')
        a.e(f'v_add_u32 v{T2}, {hex(SCR + 8192)}, v{T1}')
        a.e('s_waitcnt lgkmcnt(0)')
        bar(('X', 'X2'))
        RB = V_A + 64
        for ww in range(4):
            b = RB + 16 * ww
            a.e(f'ds_read_b128 v[{b}:{b+3}], v{T0} offset:{ww*2048}')
            a.e(f'ds_read_b128 v[{b+4}:{b+7}], v{T0} offset:{ww*2048+1024}')
            a.e(f'ds_read_b128 v[{b+8}:{b+11}], v{T2} offset:{ww*128}')
            a.e(f'ds_read_b128 v[{b+12}:{b+15}], v{T2} offset:{ww*128+64}')
            if ww == 2: a.e('s_waitcnt lgkmcnt(8)')
        a.e('s_waitcnt lgkmcnt(0)')
        for i in range(0, 16, 2):
            a.e(pk('add', RB + i, vp(RB + i), vp(RB + 16 + i)))
            a.e(pk('add', RB + 32 + i, vp(RB + 32 + i), vp(RB + 48 + i)))
        for i in range(0, 16, 2):
            a.e(pk('add', RB + i, vp(RB + i), vp(RB + 32 + i)))
        OPB = V_ACC + 16
        emit_pack(a, OPB, RB, 16)
        a.e('s_nop 1')
        NUM = V_A; DEN = V_A + 16
        for r in range(2):
            for h in range(2):
                pq = V_PQ + (r * 2 + h) * 2
                n_ = NUM + (r * 2 + h) * 4; d_ = DEN + (r * 2 + h) * 4
                a.e(f'v_mfma_f32_16x16x16_bf16 v[{n_}:{n_+3}], v[{OPB+2*h}:{OPB+2*h+1}], v[{pq}:{pq+1}], 0')
                a.e(f'v_mfma_f32_16x16x16_bf16 v[{d_}:{d_+3}], v[{OPB+4+2*h}:{OPB+4+2*h+1}], v[{pq}:{pq+1}], 0')
        a.e(f's_lshl_b32 s{S_T0}, s{S_CB2}, 10')
        a.e(f's_add_u32 s{S_T0}, s{S_T0}, s{S_LOFF}')
        a.e(f's_add_u32 s{S_T0}, s{S_T0}, {hex(O_OFF)}')
        a.e(f's_add_u32 s{S_T1}, s{S_T0}, 0x4000')
        a.e('s_nop 4')
        for k in range(4): a.e(f'v_add_f32 v{DEN+4*k}, s{S_EPS6}, v{DEN+4*k}')
        for k in range(4): a.e(f'v_rcp_f32 v{DEN+4*k}, v{DEN+4*k}')
        a.e('s_nop 0')
        for k in range(4):
            for i in range(4): a.e(f'v_mul_f32 v{NUM+4*k+i}, v{NUM+4*k+i}, v{DEN+4*k}')
        OPK = V_A + 32
        emit_pack(a, OPK, NUM, 16)
        emit_mode_stores(a, [f'buffer_store_dwordx4 v[{OPK}:{OPK+3}], v{V_AB}, {WS}, s{S_T0} offen',
                             f'buffer_store_dwordx4 v[{OPK+4}:{OPK+7}], v{V_AB}, {WS}, s{S_T1} offen'])
        emit_signal(a, ep(1))
        stamp()
        if done('P1Q'): return True

        ACC = V_ACC; WR = 80; TMP = V_A
        def small_gemm(phase, vaddr, base, tail=None):
            def dma(c):
                va = vaddr[c] if isinstance(vaddr, list) else vaddr
                a.e(f's_add_u32 m0, s{S_W4K}, {hex(AREG + (c % 4) * 16384)}')
                soff(S_T0, base, c * 4096)
                for k in range(4):
                    a.vmem(f'buffer_load_dwordx4 v{va}, {WS}, s{S_T0} offen offset:{k*1024} sc1 lds', ('A', c))
            a.fstamp(phase)
            emit_gemm32(a, bar, phase, slabs[phase], dma, ACC, WR, tail=tail)
        def tile_store(pkb, base, extra=None):
            soff(S_T0, base)
            if extra is not None: a.e(f's_add_u32 s{S_T0}, s{S_T0}, s{extra}')
            emit_mode_stores(a, [f'buffer_store_dwordx4 v[{pkb}:{pkb+3}], v{V_TST}, {WS}, s{S_T0} offen',
                                 f'buffer_store_dwordx4 v[{pkb+4}:{pkb+7}], v{V_TST}, {WS}, s{S_T0} offen offset:512'])

        a.c('=== P3')
        emit_poll(a, V_FBS, ep(1), opt=opt)
        stamp()
        small_gemm('P3', V_AS, O_OFF)
        stamp()
        for i in range(0, 16, 2): a.e(pk('add', V_RES + i, vp(V_RES + i), vp(ACC + i)))
        emit_pack32(a, TMP, V_RES)
        tile_store(TMP, XP_OFF)
        soff(S_T1, ST_OFF, ST_SZ)
        emit_stats_partial32(a, V_RES, TMP + 8, f's{S_T1}')
        emit_signal(a, ep(2))
        stamp()
        if done('P3'): return True

        a.c('=== P4')
        CS4 = TMP + 16; RAW = TMP + 32
        a.e(f'v_lshrrev_b32 v{T1}, 5, v{V_LANE}')
        a.e(f'v_lshlrev_b32 v{T1}, 4, v{T1}')
        a.e(f's_lshl_b32 s{S_T0}, s{S_CB}, 8')
        a.e(f's_lshl_b32 s{S_T1}, s{S_CH}, 7')
        a.e(f's_add_u32 s{S_T0}, s{S_T0}, s{S_T1}')
        a.e(f's_add_u32 s{S_T0}, s{S_T0}, {hex(CS_OFF + 96*64)}')
        for j in range(4):
            a.vmem(f'buffer_load_dwordx4 v[{CS4+4*j}:{CS4+4*j+3}], v{T1}, {WS}, s{S_T0} offen offset:{32*j} sc1', 'cs')
        emit_poll(a, V_FSS, ep(2), opt=opt)
        stamp()
        def p4_tail():
            soff(S_T0, ST_OFF, ST_SZ)
            for k in range(4):
                a.vmem(f'buffer_load_dwordx4 v[{RAW+4*k}:{RAW+4*k+3}], v{V_STS}, {WS}, s{S_T0} offen offset:{16*k} sc1', 'st')
        small_gemm('P4', V_AS, XP_OFF, tail=p4_tail)
        stamp()
        a.wait_vm_all()
        emit_sum_partials(a, RAW, 16)
        emit_xreduce(a, [RAW, RAW + 1], [RAW + 2, RAW + 3], over16=False)
        emit_stats_from_sums(a, RAW, RAW + 1, RAW + 4, RAW + 6, RAW + 8, double=True, keep=(V_MEAN, V_RS))
        emit_lnfold(a, ACC, CS4, RAW + 4, RAW + 6, 16)
        emit_gelu(a, ACC, 16, TMP + 48, V_PQ)
        emit_pack32(a, TMP, ACC)
        a.e(f's_lshl_b32 s{S_T1}, s{S_G}, 1')
        a.e(f's_add_u32 s{S_T1}, s{S_T1}, 1')
        a.e(f's_lshl_b32 s{S_T1}, s{S_T1}, 14')
        tile_store(TMP, H_OFF, extra=S_T1)
        gl = a.newlabel('GH'); gu = a.newlabel('GH'); gd = a.newlabel('GH')
        a.e(f's_cmp_eq_u32 s{S_RB}, 3')
        a.e(f's_cbranch_scc0 {gu}')
        a.e(f's_cmp_eq_u32 s{S_RH}, 1')
        a.e(f's_cbranch_scc0 {gd}')
        a.e(f's_bitcmp1_b32 s{S_CB}, 1')
        a.e(f's_cbranch_scc1 {gd}')
        a.e(f's_cmp_eq_u32 s{S_G}, 7')
        a.e(f's_cbranch_scc1 {gd}')
        a.e(f's_add_u32 s{S_T1}, s{S_G}, 1')
        a.e(f's_mul_i32 s{S_T2}, s{S_T1}, {18*16384}')
        a.e(f's_lshl_b32 s{S_T3}, s{S_T1}, 8')
        set_exec(a, 0xc0000000)
        a.e(f's_branch {gl}')
        a.label(gu)
        a.e(f's_cmp_eq_u32 s{S_RB}, 0')
        a.e(f's_cbranch_scc0 {gd}')
        a.e(f's_cmp_eq_u32 s{S_RH}, 0')
        a.e(f's_cbranch_scc0 {gd}')
        a.e(f's_bitcmp1_b32 s{S_CB}, 1')
        a.e(f's_cbranch_scc0 {gd}')
        a.e(f's_cmp_eq_u32 s{S_G}, 0')
        a.e(f's_cbranch_scc1 {gd}')
        a.e(f's_sub_u32 s{S_T1}, s{S_G}, 1')
        a.e(f's_mul_i32 s{S_T2}, s{S_T1}, {18*16384}')
        a.e(f's_add_u32 s{S_T2}, s{S_T2}, {17*16384}')
        a.e(f's_lshl_b32 s{S_T3}, s{S_T1}, 8')
        a.e(f's_add_u32 s{S_T3}, s{S_T3}, 128')
        set_exec(a, 0x00000003)
        a.label(gl)
        a.e(f's_lshl_b32 s{S_T0}, s{S_CB}, 1')
        a.e(f's_add_u32 s{S_T0}, s{S_T0}, s{S_CH}')
        a.e(f's_lshl_b32 s{S_T0}, s{S_T0}, 10')
        a.e(f's_add_u32 s{S_T2}, s{S_T2}, s{S_T0}')
        a.e(f's_add_u32 s{S_T2}, s{S_T2}, s{S_LOFF}')
        a.e(f's_add_u32 s{S_T2}, s{S_T2}, {hex(H_OFF)}')
        a.e(f'v_and_b32 v{T0}, 0x3fff, v{V_TST}')
        a.e(f'v_and_b32 v{T0}, 0x3ff, v{T0}')
        a.e(f'buffer_store_dwordx4 v[{TMP}:{TMP+3}], v{T0}, {WS}, s{S_T2} offen sc1')
        a.e(f'buffer_store_dwordx4 v[{TMP+4}:{TMP+7}], v{T0}, {WS}, s{S_T2} offen offset:512 sc1')
        a.e('s_mov_b64 exec, -1')
        a.e(f's_and_b32 s{S_T0}, s{S_CB}, 1')
        a.e(f's_lshr_b32 s{S_T1}, s{S_CB}, 2')
        a.e(f's_lshl_b32 s{S_T1}, s{S_T1}, 1')
        a.e(f's_add_u32 s{S_T0}, s{S_T0}, s{S_T1}')
        a.e(f's_lshl_b32 s{S_T0}, s{S_T0}, 1')
        a.e(f's_add_u32 s{S_T0}, s{S_T0}, s{S_CH}')
        a.e(f's_lshl_b32 s{S_T0}, s{S_T0}, 2')
        a.e(f's_add_u32 s{S_T3}, s{S_T3}, s{S_T0}')
        a.e(f's_lshl_b32 s{S_T0}, s{S_L}, 11')
        a.e(f's_add_u32 s{S_T3}, s{S_T3}, s{S_T0}')
        a.e(f's_add_u32 s{S_T3}, s{S_T3}, {hex(HF_OFF)}')
        thr_value(a, S_THR, ep(3), xcc=True)
        a.e(f'v_mov_b32 v{T0}, s{S_T3}')
        a.e(f'v_mov_b32 v{T1}, s{S_THR}')
        a.e('s_waitcnt vmcnt(0)')
        a.e('s_mov_b64 exec, 1')
        a.e(f'buffer_store_dword v{T1}, v{T0}, {WS}, 0 offen sc1')
        a.e('s_mov_b64 exec, -1')
        a.label(gd)
        emit_signal(a, ep(3))
        stamp()
        if done('P4'): return True

        a.c('=== P5')
        emit_poll(a, V_FH, ep(3), opt=opt)
        stamp()
        small_gemm('P5', [V_AH + k for k in range(4)], H_OFF)
        stamp()
        a.e(f'v_mul_f32 v{TMP+10}, v{V_MEAN}, v{V_RS}')
        a.e(f'v_sub_f32 v{TMP+10}, 0, v{TMP+10}')
        a.e(f'v_mov_b32 v{TMP+8}, v{V_RS}')
        for i in range(0, 16, 2):
            a.e(pk('fma', ACC + i, vp(V_RES + i), vp(TMP + 8), vp(ACC + i), mods=' op_sel_hi:[1,0,1]'))
        for i in range(0, 16, 2):
            a.e(pk('add', ACC + i, vp(ACC + i), vp(TMP + 10), mods=' op_sel_hi:[1,0]'))
        emit_pack32(a, TMP, ACC)
        tile_store(TMP, X1_OFF)
        soff(S_T1, ST_OFF, 2 * ST_SZ)
        emit_stats_partial32(a, ACC, TMP + 12, f's{S_T1}')
        for i in range(0, 16, 2): a.e(pk('add', V_RES + i, vp(V_RES + i), vp(ACC + i)))
        emit_signal(a, ep(4))
        stamp()
        if done('P5'): return True

        a.c('=== P6')
        CS6 = V_ACC; ACC6 = 192; WR6 = 96
        a.e(f'v_and_b32 v{T1}, 0x30, v{V_LANE}')
        a.e(f's_mul_i32 s{S_T0}, s{S_CB2}, {7*64}')
        a.e(f's_add_u32 s{S_T0}, s{S_T0}, {hex(CS_OFF + 128*64)}')
        for t in range(7):
            a.vmem(f'buffer_load_dwordx4 v[{CS6+4*t}:{CS6+4*t+3}], v{T1}, {WS}, s{S_T0} offen offset:{64*t} sc1', 'cs')
        emit_poll(a, V_FSB, ep(4), opt=opt)
        stamp()
        def p6_load(j):
            soff(S_T0, X1_OFF, (j // 4) * 4096)
            a.e(f's_add_u32 s{S_T1}, s{S_T0}, 0x4000')
            for r in range(2):
                d = V_A + ((j % 8) * 2 + r) * 4
                a.vmem(f'buffer_load_dwordx4 v[{d}:{d+3}], v{V_AB}, {WS}, s{S_T0 if r == 0 else S_T1} offen offset:{(j%4)*1024} sc1', ('A', j))
        RAW6 = [V_PQ, 248]
        def p6_issue(j, t):
            if t == 1:
                if j + opt.D_p6 < 16:
                    p6_load(j + opt.D_p6)
                elif j + opt.D_p6 == 16:
                    soff(S_T0, ST_OFF, 2 * ST_SZ)
                    for r in range(2):
                        a.vmem(f'buffer_load_dwordx4 v[{RAW6[r]}:{RAW6[r]+3}], v{V_STB}, {WS}, s{S_T0} offen offset:{2048*r} sc1', 'st')
                        a.vmem(f'buffer_load_dwordx4 v[{RAW6[r]+4}:{RAW6[r]+7}], v{V_STB}, {WS}, s{S_T0} offen offset:{2048*r+16} sc1', 'st')
        a.fstamp('P6')
        for j in range(opt.D_p6): p6_load(j)
        emit_gemm16(a, bar, 'P6', slabs['P6'], 7, '224',
                    acc_of=lambda r, t: ACC6 + (r * 7 + t) * 4, a_of=lambda r, j: V_A + ((j % 8) * 2 + r) * 4,
                    a_wait=lambda j: a.count_vm(('A', j)), a_issue=p6_issue, wr=WR6, S=8)
        stamp()
        a.wait_vm_all()
        for r in range(2): emit_sum_partials(a, RAW6[r], 8)
        emit_xreduce(a, [RAW6[0], RAW6[0] + 1, RAW6[1], RAW6[1] + 1], [V_X, V_X + 1, V_X + 2, V_X + 3])
        AB6 = [(92, 94), (RAW6[1] + 4, RAW6[1] + 6)]
        for r in range(2):
            emit_stats_from_sums(a, RAW6[r], RAW6[r] + 1, AB6[r][0], AB6[r][1], V_X)
        a.e(f's_lshl_b32 s{S_T0}, s{S_G}, 4')
        a.e(f's_lshl_b32 s{S_T1}, s{S_RB2}, 3')
        a.e(f's_add_u32 s{S_T0}, s{S_T0}, s{S_T1}')
        a.e(f's_lshl_b32 s{S_T1}, s{S_W}, 1')
        a.e(f's_add_u32 s{S_T0}, s{S_T0}, s{S_T1}')
        a.e(f's_mul_i32 s{S_T0}, s{S_T0}, 57344')
        a.e(f's_lshr_b32 s{S_T1}, s{S_CB2}, 1')
        a.e(f's_mul_i32 s{S_T1}, s{S_T1}, 7168')
        a.e(f's_add_u32 s{S_T0}, s{S_T0}, s{S_T1}')
        a.e(f's_add_u32 s{S_T0}, s{S_T0}, s{S_LOFF}')
        a.e(f's_add_u32 s{S_T0}, s{S_T0}, {hex(G_OFF)}')
        a.e(f's_and_b32 s{S_T1}, s{S_CB2}, 1')
        a.e(f's_mul_i32 s{S_U0}, s{S_T1}, 3072')
        a.e(f's_add_u32 s{S_U0}, s{S_U0}, s{S_T0}')
        a.e(f's_add_u32 s{S_U1}, s{S_U0}, 57344')
        a.e(f's_lshl_b32 s{S_T1}, s{S_T1}, 3')
        a.e(f's_add_u32 s{S_U2}, s{S_T0}, s{S_T1}')
        a.e(f's_add_u32 s{S_U2}, s{S_U2}, 6144')
        a.e(f's_add_u32 s{S_U3}, s{S_U2}, 57344')
        a.e(f'v_lshlrev_b32 v{V_X+4}, 4, v{V_LANE}')
        for r in range(2):
            emit_lnfold(a, ACC6 + r * 28, CS6, AB6[r][0], AB6[r][1], 28)
            emit_gelu(a, ACC6 + r * 28, 28, V_A, V_PQ + 4)
            pkb = V_A + 16 + r * 16
            emit_pack(a, pkb, ACC6 + r * 28, 28)
            st = [f'buffer_store_dwordx4 v[{pkb+4*j}:{pkb+4*j+3}], v{V_X+4}, {WS}, s{S_U0+r} offen offset:{1024*j}' for j in range(3)]
            st.append(f'buffer_store_dwordx2 v[{pkb+12}:{pkb+13}], v{V_X+4}, {WS}, s{S_U2+r} offen')
            emit_mode_stores(a, st)
        emit_signal(a, ep(5))
        stamp()
        if done('P6'): return True

        a.c('=== P7')
        emit_poll(a, V_FBS, ep(5), opt=opt)
        stamp()
        small_gemm('P7', V_AG, G_OFF)
        stamp()
        for i in range(0, 16, 2): a.e(pk('add', V_RES + i, vp(V_RES + i), vp(ACC + i)))
        emit_pack32(a, TMP, V_RES)
        return False

    stopped = run_layer()
    if not stopped:
        fin = a.newlabel('FIN'); TMP = V_A
        a.e(f's_cmp_eq_u32 s{S_L}, 1')
        a.e(f's_cbranch_scc1 {fin}')
        a.e(f's_mov_b32 s{S_T0}, {hex(LSTRIDE + XF_OFF)}')
        emit_mode_stores(a, [f'buffer_store_dwordx4 v[{TMP}:{TMP+3}], v{V_TST}, {WS}, s{S_T0} offen',
                             f'buffer_store_dwordx4 v[{TMP+4}:{TMP+7}], v{V_TST}, {WS}, s{S_T0} offen offset:512'])
        a.e(f's_mov_b32 s{S_T1}, {hex(LSTRIDE + ST_OFF)}')
        emit_stats_partial32(a, V_RES, TMP + 8, f's{S_T1}')
        a.e(f's_add_u32 s{S_EP}, s{S_EP}, 6')
        emit_signal(a, f's{S_EP}')
        if opt.timing:
            dump([tmreg(i) for i in range(tm[0])])
        a.e(f's_mov_b32 s{S_L}, 1')
        a.e(f's_mov_b32 s{S_LOFF}, {hex(LSTRIDE)}')
        for i in range(3): a.e(f's_mov_b32 s{S_PA+i}, s{S_WS+i}')
        a.e(f's_mov_b32 s{S_PA+3}, 0x20000')
        a.e(f'v_mov_b32 v{V_P1}, v{V_AB}')
        a.e(f's_mov_b32 s{S_AOFF}, {hex(LSTRIDE + XF_OFF)}')
        a.e(f's_mov_b32 s{S_AOFF2}, {hex(LSTRIDE + XF_OFF + 0x4000)}')
        a.e(f's_mov_b32 s{S_ASTR}, 1024')
        emit_fh()
        a.e(f's_branch {LOOP}')
        a.label(fin)
        emit_pack(a, TMP, V_RES, 16)
        OS = f's[{S_OUT}:{S_OUT+3}]'
        for j in range(4):
            a.e(f'buffer_store_dwordx2 v[{TMP+2*j}:{TMP+2*j+1}], v{V_XRM}, {OS}, 0 offen offset:{16*j}')
    a.label('L_END_COMPUTE')
    nn = a.newlabel('NON')
    a.e(f's_or_b32 s{S_T0}, s2, s{S_W}')
    a.e(f's_cmp_eq_u32 s{S_T0}, 0')
    a.e(f's_cbranch_scc0 {nn}')
    a.e(f's_add_u32 s{S_T0}, s{S_V}, 1')
    a.e(f'v_mov_b32 v{V_T0}, s{S_T0}')
    a.e(f'v_mov_b32 v{V_T1}, {hex(NONCE_OFF)}')
    a.e('s_mov_b64 exec, 1')
    a.e(f'buffer_store_dword v{V_T0}, v{V_T1}, {WS}, 0 offen')
    a.e('s_mov_b64 exec, -1')
    a.label(nn)
    stamp()
    if opt.timing: dump([tmreg(i) for i in range(tm[0])])
    if opt.fine: dump([freg(i) for i in range(fs[0])])
    a.e('s_waitcnt vmcnt(0)')
    a.e('s_endpgm')
    return evq


def gen_loader(a, opt, events):
    VN, VKV, VQ, VW3, VKVn, VQn = 8, 12, 16, 20, 28, 32
    VT0, VT1, VT2, VT3 = 1, 2, 3, 4
    a.c('--- loader setup')
    def srd(s, p, size):
        a.e(f's_mov_b32 s{s}, s{p}'); a.e(f's_mov_b32 s{s+1}, s{p+1}')
        a.e(f's_mov_b32 s{s+2}, {hex(size)}'); a.e(f's_mov_b32 s{s+3}, 0x20000')
    srd(S_WQKV, S_PTR + 2, 512 * 1536 * 2)
    srd(S_WO, S_PTR + 4, 512 * 512 * 2)
    srd(S_W1, S_PTR + 8, 512 * 512 * 2)
    srd(S_W2, S_PTR + 10, 512 * 512 * 2)
    srd(S_W3, S_PTR + 12, 512 * 1792 * 2)
    srd(S_W4, S_PTR + 14, 1792 * 512 * 2)
    a.e(f'v_lshrrev_b32 v{VT0}, 3, v{V_LANE}')
    a.e(f'v_bfe_u32 v{VT1}, v{VT0}, 1, 2')
    a.e(f'v_lshlrev_b32 v{VT1}, 1, v{VT1}')
    a.e(f'v_and_b32 v{VT2}, 7, v{V_LANE}')
    a.e(f'v_xor_b32 v{VT2}, v{VT2}, v{VT1}')
    a.e(f'v_and_b32 v{VT1}, 3, v{VT2}')
    a.e(f'v_lshlrev_b32 v{VT3}, 4, v{VT1}')
    a.e(f'v_lshrrev_b32 v{VT1}, 2, v{VT2}')
    a.e(f'v_lshl_add_u32 v{VT3}, v{VT1}, 10, v{VT3}')
    a.e(f's_lshl_b32 s{S_T0}, s{S_CB2}, 6')
    a.e(f's_add_u32 s{S_T1}, s{S_T0}, 1024')
    a.e(f'v_add_u32 v{VT3}, s{S_T1}, v{VT3}')
    a.e(f'v_lshrrev_b32 v{VT1}, 2, v{VT0}')
    a.e(f'v_lshlrev_b32 v{VT1}, 3, v{VT1}')
    a.e(f'v_and_b32 v{VT2}, 3, v{VT0}')
    a.e(f'v_add_u32 v{VT1}, v{VT1}, v{VT2}')
    a.e(f'v_mul_u32_u24 v{VT1}, 3072, v{VT1}')
    a.e(f'v_add_u32 v{VT1}, v{VT1}, v{VT3}')
    for p in range(4):
        off = (16 * (p & 1) + 4 * (p >> 1)) * 3072 - p * 1024
        a.e(f'v_add_u32 v{VKVn+p}, {hex(off & 0xffffffff)}, v{VT1}')
    a.e(f'v_mul_u32_u24 v{VKV}, 3072, v{VT0}')
    a.e(f'v_add_u32 v{VKV}, v{VKV}, v{VT3}')
    for j in range(1, 4): a.e(f'v_add_u32 v{VKV+j}, {hex(j*(8*3072-1024))}, v{VKV}')

    layers = sorted(set(e[0] for e in events))
    slabs = {L: build_slabs(L) for L in layers}
    stream = []
    needed = set((e[0], e[2], e[3]) for e in events if e[1] == 'B')
    for L in layers:
        for p in PHASES:
            for ci, ch in enumerate(slabs[L][p]):
                if (L, p, ci) in needed: stream += ch
    released = set()
    st = {'issued': 0}
    win = [opt.window0]
    def overlaps_unreleased(s, idx):
        for k in range(idx):
            o = stream[k]
            if (o.layer, o.phase, o.chunk) in released: continue
            if o.addr < s.addr + s.size and s.addr < o.addr + o.size: return True
        return False
    def emit_slab(s):
        kind = s.kind; tag = (s.layer, s.phase, s.chunk)
        if kind in ('WO', 'W1', 'W2', 'W4'):
            srd_ = {'WO': S_WO, 'W1': S_W1, 'W2': S_W2, 'W4': S_W4}[kind]; vb = VN; rs = 1024
        elif kind == 'KV': srd_, vb, rs = S_WQKV, (VKVn if s.layer == 0 else VKV), 3072
        elif kind == 'Q': srd_, vb, rs = S_WQKV, (VQn if s.layer == 0 else VQ), 3072
        else: srd_, vb, rs = S_W3, VW3, 3584
        R4 = f's[{srd_}:{srd_+3}]'
        def grp(addr, srow, ps, v0):
            a.e(f's_mov_b32 m0, {hex(addr)}')
            a.e(f's_mov_b32 s{S_T0}, {hex(srow*rs)}')
            for k, p in enumerate(ps):
                a.vmem(f'buffer_load_dwordx4 v{vb+p}, {R4}, s{S_T0} offen offset:{k*1024} lds', tag)
        if kind == 'W3':
            grp(s.addr, s.srow, [0, 1, 2, 3], 0); grp(s.addr + 4096, s.srow, [4, 5, 6], 0)
        elif kind == 'W4' and s.srow2 != s.srow + 16:
            grp(s.addr, s.srow, [0, 1], 0); grp(s.addr + 2048, s.srow2, [0, 1], 0)
        else:
            grp(s.addr, s.srow, [0, 1, 2, 3], 0)
        if len(a.vm) > win[0]:
            a.e(f's_waitcnt vmcnt({win[0]})')
            a.vm = a.vm[len(a.vm) - win[0]:]
    def issue(cap, must=None):
        n = 0
        while st['issued'] < len(stream):
            s = stream[st['issued']]
            forced = must is not None and any((o.layer, o.phase, o.chunk) == must for o in stream[st['issued']:])
            if not forced and n + s.npieces > cap: break
            if overlaps_unreleased(s, st['issued']):
                assert not forced, ('deadlock', must, s.layer, s.phase, s.chunk)
                break
            emit_slab(s); st['issued'] += 1; n += s.npieces
    issue(32)
    a.e(f's_lshl_b32 s{S_T0}, s{S_G}, 7')
    a.e(f's_lshl_b32 s{S_T1}, s{S_R}, 2')
    a.e(f's_add_u32 s{S_T0}, s{S_T0}, s{S_T1}')
    a.e(f's_add_u32 s{S_T0}, s{S_T0}, {hex(XID_OFF)}')
    a.e(f'v_mov_b32 v{VT1}, s{S_T0}')
    a.e(f's_add_u32 s{S_T1}, s{S_B}, s{S_XCC}')
    a.e(f'v_mov_b32 v{VT0}, s{S_T1}')
    a.e('s_mov_b64 exec, 1')
    a.vmem(f'buffer_store_dword v{VT0}, v{VT1}, {WS}, 0 offen sc1', 'xid')
    a.e('s_mov_b64 exec, -1')
    a.c('cs pieces')
    c1 = a.newlabel('CS'); c2 = a.newlabel('CS'); c3 = a.newlabel('CS'); cend = a.newlabel('CSEND')
    a.e('s_cmp_lt_u32 s2, 96')
    a.e(f's_cbranch_scc0 {c1}')
    for i in range(3): a.e(f's_mov_b32 s{S_CSRD+i}, s{S_WQKV+i}')
    a.e(f's_mov_b32 s{S_T0}, 3072')
    a.e(f's_lshl_b32 s{S_T1}, s2, 5')
    a.e(f's_branch {c3}')
    a.label(c1)
    a.e('s_cmp_lt_u32 s2, 128')
    a.e(f's_cbranch_scc0 {c2}')
    for i in range(3): a.e(f's_mov_b32 s{S_CSRD+i}, s{S_W1+i}')
    a.e(f's_mov_b32 s{S_T0}, 1024')
    a.e(f's_sub_u32 s{S_T1}, s2, 96')
    a.e(f's_lshl_b32 s{S_T1}, s{S_T1}, 5')
    a.e(f's_branch {c3}')
    a.label(c2)
    for i in range(3): a.e(f's_mov_b32 s{S_CSRD+i}, s{S_W3+i}')
    a.e(f's_mov_b32 s{S_T0}, 3584')
    a.e(f's_sub_u32 s{S_T1}, s2, 128')
    a.e(f's_min_u32 s{S_T1}, s{S_T1}, 111')
    a.e(f's_lshl_b32 s{S_T1}, s{S_T1}, 5')
    a.label(c3)
    a.e(f's_mov_b32 s{S_CSRD+3}, 0x20000')
    a.e(f'v_lshrrev_b32 v{VT1}, 1, v{V_LANE}')
    a.e(f'v_mul_lo_u32 v{VT1}, v{VT1}, s{S_T0}')
    a.e(f'v_and_b32 v{VT2}, 1, v{V_LANE}')
    a.e(f'v_lshl_add_u32 v{VT1}, v{VT2}, 4, v{VT1}')
    a.e(f'v_add_u32 v{VT1}, s{S_T1}, v{VT1}')
    a.e(f's_lshl_b32 s{S_T0}, s{S_T0}, 5')
    a.e(f's_mov_b32 s{S_T1}, 0')
    a.e(f's_mov_b32 m0, {hex(CSL)}')
    for p in range(16):
        a.e('s_nop 0')
        a.vmem(f'buffer_load_dwordx4 v{VT1}, s[{S_CSRD}:{S_CSRD+3}], s{S_T1} offen lds', 'cs')
        if p < 15:
            a.e('s_add_u32 m0, m0, 1024')
            a.e(f's_add_u32 s{S_T1}, s{S_T1}, s{S_T0}')
    a.c('W lane offsets')
    a.e(f'v_lshrrev_b32 v{VT0}, 3, v{V_LANE}')
    a.e(f'v_bfe_u32 v{VT1}, v{VT0}, 1, 1')
    a.e(f'v_lshlrev_b32 v{VT1}, 2, v{VT1}')
    a.e(f'v_and_b32 v{VT2}, 7, v{V_LANE}')
    a.e(f'v_xor_b32 v{VT2}, v{VT2}, v{VT1}')
    a.e(f'v_lshlrev_b32 v{VN}, 10, v{VT0}')
    a.e(f'v_lshl_add_u32 v{VN}, v{VT2}, 4, v{VN}')
    a.e(f's_lshl_b32 s{S_T0}, s{S_CB}, 7')
    a.e(f'v_add_u32 v{VN}, s{S_T0}, v{VN}')
    for j in range(1, 4): a.e(f'v_add_u32 v{VN+j}, {hex(j*(8192-1024))}, v{VN}')
    a.e(f'v_lshrrev_b32 v{VT0}, 2, v{V_LANE}')
    a.e(f'v_bfe_u32 v{VT1}, v{VT0}, 2, 1')
    a.e(f'v_lshlrev_b32 v{VT1}, 1, v{VT1}')
    a.e(f'v_and_b32 v{VT2}, 3, v{V_LANE}')
    a.e(f'v_xor_b32 v{VT2}, v{VT2}, v{VT1}')
    a.e(f'v_lshlrev_b32 v{VT3}, 4, v{VT2}')
    a.e(f's_lshl_b32 s{S_T0}, s{S_CB2}, 6')
    a.e(f'v_add_u32 v{VT3}, s{S_T0}, v{VT3}')
    a.e(f'v_mul_u32_u24 v{VQ}, 3072, v{VT0}')
    a.e(f'v_add_u32 v{VQ}, v{VQ}, v{VT3}')
    for j in range(1, 4): a.e(f'v_add_u32 v{VQ+j}, {hex(j*(16*3072-1024))}, v{VQ}')
    a.e(f'v_lshrrev_b32 v{VT1}, 2, v{VT0}')
    a.e(f'v_lshlrev_b32 v{VT1}, 3, v{VT1}')
    a.e(f'v_and_b32 v{VT2}, 3, v{VT0}')
    a.e(f'v_add_u32 v{VT1}, v{VT1}, v{VT2}')
    a.e(f'v_mul_u32_u24 v{VT1}, 3072, v{VT1}')
    a.e(f'v_add_u32 v{VT1}, v{VT1}, v{VT3}')
    for p in range(4):
        off = (4 * (p & 1) + 32 * (p >> 1)) * 3072 - p * 1024
        a.e(f'v_add_u32 v{VQn+p}, {hex(off & 0xffffffff)}, v{VT1}')
    a.e(f's_mul_i32 s{S_T0}, s{S_CB2}, 224')
    M14 = (1 << 20) // 14 + 1
    a.e(f's_mov_b32 s{S_T1}, {hex(M14)}')
    for p in range(7):
        a.e(f'v_add_u32 v{VT0}, {64*p}, v{V_LANE}')
        a.e(f'v_mul_lo_u32 v{VT1}, v{VT0}, s{S_T1}')
        a.e(f'v_lshrrev_b32 v{VT1}, 20, v{VT1}')
        a.e(f'v_mul_u32_u24 v{VT2}, 14, v{VT1}')
        a.e(f'v_sub_u32 v{VT2}, v{VT0}, v{VT2}')
        a.e(f'v_mul_u32_u24 v{VW3+p}, 3584, v{VT1}')
        a.e(f'v_lshl_add_u32 v{VW3+p}, v{VT2}, 4, v{VW3+p}')
        a.e(f'v_add_u32 v{VW3+p}, s{S_T0}, v{VW3+p}')
        if p % 4: a.e(f'v_subrev_u32 v{VW3+p}, {(p%4)*1024}, v{VW3+p}')
    for u in range(448): assert (u * M14) >> 20 == u // 14

    def cs_compute():
        csk = a.newlabel('CSK')
        a.wait_vm('cs')
        a.e('s_cmp_lt_u32 s2, 240')
        a.e(f's_cbranch_scc0 {csk}')
        a.e(f'v_bfe_u32 v{VT0}, v{V_LANE}, 2, 2')
        a.e(f'v_lshrrev_b32 v{VT1}, 4, v{V_LANE}')
        a.e(f'v_lshl_add_u32 v{VT0}, v{VT1}, 2, v{VT0}')
        a.e(f'v_lshlrev_b32 v{VT0}, 5, v{VT0}')
        a.e(f'v_and_b32 v{VT2}, 3, v{V_LANE}')
        a.e(f'v_lshl_add_u32 v{VT0}, v{VT2}, 3, v{VT0}')
        a.e(f'v_add_u32 v{VT0}, {hex(CSL)}, v{VT0}')
        for i in range(4): a.e(f'v_mov_b32 v{40+i}, 0x3f803f80')
        for quarter in range(4):
            for j in range(4):
                jj = quarter * 4 + j
                a.e(f'ds_read_b64_tr_b16 v[{48+4*j}:{49+4*j}], v{VT0} offset:{jj*1024}')
                a.e(f'ds_read_b64_tr_b16 v[{50+4*j}:{51+4*j}], v{VT0} offset:{jj*1024+512}')
            a.e('s_waitcnt lgkmcnt(0)')
            for j in range(4):
                c = '0' if (quarter == 0 and j == 0) else 'v[44:47]'
                a.e(f'v_mfma_f32_16x16x32_bf16 v[44:47], v[{48+4*j}:{51+4*j}], v[40:43], {c}')
        a.e(f's_lshl_b32 s{S_T0}, s2, 6')
        a.e(f's_add_u32 s{S_T0}, s{S_T0}, {hex(CS_OFF)}')
        a.e(f'v_lshlrev_b32 v{VT1}, 4, v{VT1}')
        a.e('s_nop 7')
        set_exec(a, 0x00010001)
        a.e(f'buffer_store_dwordx4 v[44:47], v{VT1}, {WS}, s{S_T0} offen sc1')
        a.e('s_mov_b64 exec, -1')
        a.e(f's_lshl_b32 s{S_T0}, s2, 2')
        a.e(f's_add_u32 s{S_T0}, s{S_T0}, {hex(CSF_OFF)}')
        a.e(f'v_mov_b32 v{VT1}, s{S_T0}')
        a.e(f's_add_u32 s{S_T1}, s{S_B}, 8')
        a.e(f'v_mov_b32 v{VT0}, s{S_T1}')
        a.e('s_waitcnt vmcnt(0)')
        a.e('s_mov_b64 exec, 1')
        a.e(f'buffer_store_dword v{VT0}, v{VT1}, {WS}, 0 offen sc1')
        a.e('s_mov_b64 exec, -1')
        a.label(csk)
        a.e('s_waitcnt vmcnt(0)')
        a.vm = []

    issue(opt.window0)
    chunks_of = {}
    for s in stream: chunks_of.setdefault((s.layer, s.phase), set()).add(s.chunk)
    first = True
    for ev in events:
        L, kind, p, ci = ev
        if kind == 'B':
            issue(0, must=(L, p, ci))
            a.wait_vm((L, p, ci))
            a.e('s_barrier')
            if ci >= 2: released.add((L, p, ci - 2))
            if first:
                first = False
                cs_compute()
                win[0] = opt.window
                issue(opt.cap_E)
            else:
                issue(opt.cap_B0 if ci == 0 else opt.cap_B)
        elif kind == 'E':
            a.e('s_barrier')
            for c in chunks_of[(L, p)]: released.add((L, p, c))
            issue(opt.cap_E)
        else:
            a.e('s_barrier')
    a.e('s_waitcnt vmcnt(0)')
    a.e('s_endpgm')


def generate(opt):
    events = build_events(opt.stop)
    a = Asm()
    hdr = open(os.path.join(os.path.dirname(os.path.abspath(__file__)), 'header.txt')).read()
    out = [hdr.rstrip('\n')]
    out.append(f'; @launch grid=(256,1,1) block=(320,1,1) lds={LDS_TOTAL}')
    out += ['.amdgcn_target "amdgcn-amd-amdhsa--gfx950"', '.text', f'.globl {KNAME}', '.p2align 8',
            f'.type {KNAME},@function', f'{KNAME}:']
    a.e('s_cmp_ge_u32 s2, 256')
    a.e('s_cbranch_scc1 L_EXIT')
    a.e(f's_load_dwordx16 s[{S_PTR}:{S_PTR+15}], s[0:1], 0')
    a.e(f's_load_dwordx4 s[{S_PTR+16}:{S_PTR+19}], s[0:1], 64')
    a.e(f's_load_dwordx2 s[{S_PTR+20}:{S_PTR+21}], s[0:1], 80')
    a.e('v_lshrrev_b32 v1, 6, v0')
    a.e('s_nop 0')
    if opt.prefetch_code:
        a.e('s_getpc_b64 s[34:35]')
        a.label('L_PC')
        a.e(f's_sub_u32 s34, s34, (L_PC - {KNAME})')
        a.e('s_subb_u32 s35, s35, 0')
        a.e('v_lshlrev_b32 v2, 7, v0')
        a.e(f's_mov_b32 s36, (L_CODE_END - {KNAME} - 4)')
        a.e('v_min_u32 v2, s36, v2')
        a.e('v_and_b32 v2, -4, v2')
        a.e('global_load_dword v255, v2, s[34:35]')
        a.e('v_add_u32 v2, 40960, v2')
        a.e('v_min_u32 v2, s36, v2')
        a.e('v_and_b32 v2, -4, v2')
        a.e('global_load_dword v255, v2, s[34:35]')
    a.e(f'v_readfirstlane_b32 s{S_W}, v1')
    a.e(f'v_and_b32 v{V_LANE}, 63, v0')
    a.e(f's_getreg_b32 s{S_XCC}, hwreg(HW_REG_XCC_ID)')
    a.e(f's_and_b32 s{S_XCC}, s{S_XCC}, 7')
    a.e(f's_and_b32 s{S_G}, s2, 7')
    a.e(f's_lshr_b32 s{S_R}, s2, 3')
    a.e(f's_lshr_b32 s{S_RB}, s{S_R}, 3')
    a.e(f's_and_b32 s{S_CB}, s{S_R}, 7')
    a.e(f's_lshr_b32 s{S_RB2}, s{S_R}, 4')
    a.e(f's_and_b32 s{S_CB2}, s{S_R}, 15')
    a.e('s_waitcnt lgkmcnt(0)')
    a.e(f's_add_u32 s34, s{S_PTR+20}, {hex(NONCE_OFF)}')
    a.e(f's_addc_u32 s35, s{S_PTR+21}, 0')
    a.e(f's_load_dword s{S_V}, s[34:35], 0')
    def srd(s, p, size):
        a.e(f's_mov_b32 s{s}, s{p}'); a.e(f's_mov_b32 s{s+1}, s{p+1}')
        a.e(f's_mov_b32 s{s+2}, {hex(size)}'); a.e(f's_mov_b32 s{s+3}, 0x20000')
    srd(S_WS, S_PTR + 20, WS_USED)
    srd(S_X, S_PTR + 0, 2048 * 512 * 2)
    srd(S_OUT, S_PTR + 16, 2048 * 512 * 2)
    a.e(f's_cmp_eq_u32 s{S_W}, 4')
    a.e('s_cbranch_scc0 L_COMPUTE')
    a.e('s_waitcnt lgkmcnt(0)')
    a.e(f's_mul_i32 s{S_B}, s{S_V}, 0x9e3779b1')
    a.e(f's_add_u32 s{S_B}, s{S_B}, 0x7f4a7c15')
    a.e(f's_and_b32 s{S_B}, s{S_B}, 0xffffff00')
    a.e('s_getpc_b64 s[34:35]')
    a.label('L_PC2')
    a.e('s_add_u32 s34, s34, (L_LOADER - L_PC2)')
    a.e('s_addc_u32 s35, s35, 0')
    a.e('s_setpc_b64 s[34:35]')
    a.label('L_EXIT')
    a.e('s_endpgm')
    a.label('L_COMPUTE')
    a.e('s_waitcnt lgkmcnt(0)')
    a.e(f's_mul_i32 s{S_B}, s{S_V}, 0x9e3779b1')
    a.e(f's_add_u32 s{S_B}, s{S_B}, 0x7f4a7c15')
    a.e(f's_and_b32 s{S_B}, s{S_B}, 0xffffff00')
    a.vm = ['pf', 'pf'] if opt.prefetch_code else []
    if opt.stop is not None and opt.stop[0] == 0: cev = events
    else: cev = [e for e in build_events(None) if e[0] == 0]
    rest = gen_compute(a, opt, cev)
    assert not rest, rest
    a.label('L_LOADER')
    a.vm = ['pf', 'pf'] if opt.prefetch_code else []
    a.fstamp = lambda p: None
    gen_loader(a, opt, events)
    a.label('L_CODE_END')
    out.append(a.text())
    out += ['.section .rodata,"a"', '.p2align 6', f'.amdhsa_kernel {KNAME}',
            '  .amdhsa_next_free_vgpr 256', '  .amdhsa_next_free_sgpr 102', '  .amdhsa_accum_offset 256',
            '  .amdhsa_group_segment_fixed_size 0', '  .amdhsa_kernarg_size 88', '  .amdhsa_user_sgpr_count 2',
            '  .amdhsa_user_sgpr_kernarg_segment_ptr 1', '  .amdhsa_system_sgpr_workgroup_id_x 1', '.end_amdhsa_kernel']
    return '\n'.join(out) + '\n'


if __name__ == '__main__':
    import argparse
    ap = argparse.ArgumentParser()
    ap.add_argument('-o', default='interleave_layers__linear_attn_block__mixer_s_mlp__prompt.s')
    ap.add_argument('--stop', default=None)
    ap.add_argument('--timing', action='store_true')
    ap.add_argument('--safe', action='store_true')
    ap.add_argument('--set', action='append', default=[])
    ap.add_argument('--fine', default=None)
    args = ap.parse_args()
    opt = Opt()
    if args.stop:
        l, p = args.stop.split(','); opt.stop = (int(l), p)
    opt.timing = args.timing; opt.force_safe = args.safe; opt.fine = args.fine
    for kv in args.set:
        k, v = kv.split('='); setattr(opt, k, int(v))
    open(args.o, 'w').write(generate(opt))
    print('written', args.o)
```

```python
import sys, os, struct

KNAME = 'interleave_layers__linear_attn_block__mixer_s_mlp__prompt_kernel'

class Opt:
    stop = None
    timing = False
    fine = None
    force_safe = False
    window = 40
    window0 = 56
    caps = {'P1KV.E': 64, 'P1Q.B0': 16, 'P1Q.B1': 16, 'X2': 32,
            'P3.B0': 0, 'P3.B1': 32, 'P3.B2': 16, 'P3.B3': 16,
            'P4.B1': 32, 'P4.B2': 16, 'P4.B3': 16,
            'P5.B1': 35, 'P5.B2': 14, 'P5.B3': 21,
            'P6.B0': 35, 'P6.B1': 28, 'P6.B2': 28, 'P6.B3': 28, 'P6.E': 64,
            'P7.B*': 16, 'P7.E': 64}
    cap0 = 0
    touch = True
    dbg_w_same = 0
    w_nt = 0
    g_cold = 0
    touch_at = 'B,P1Q,0'
    rot = 1
    kvflag_at = 5
    up3 = 1
    startdiag = 0
    gtouch_at = 'B,P5,2'
    dbg_a_same = 0
    touch_flags = ''
    spin = 1 << 17
    prefetch_code = True
    D_kv = 4
    D_p6 = 4

MB = 1 << 20
A0_OFF = 0
A1_OFF = 0x280000
A2_OFF = 0x480000
G_OFF = 0x680000
ST_OFF = 0xD80000
KVP_OFF = 0xDC0000
KVP_L = 0x88000
LSTRIDE = 0x780000
FL_OFF = 0xF00000
LF_OFF = FL_OFF
KVF_OFF = FL_OFF + 4096
HF_OFF = FL_OFF + 8192
XID_OFF = FL_OFF + 29696
NONCE_OFF = FL_OFF + 30720
TM_OFF = FL_OFF + 32768
CSP_OFF = FL_OFF + 32768 + 65536
CSF_OFF = CSP_OFF + 65536
WS_USED = CSF_OFF + 32768
KVREC = 2176

LDS_TOTAL = 163840
AREG = 0
SCR = 49152
CSL = 16384
WRING = 65536
RING = 93952
PHI = 53248
CSC = WRING + RING
assert CSC + 1088 <= LDS_TOTAL

EPS = 1e-5

def f2u(x):
    return struct.unpack('<I', struct.pack('<f', x))[0]

class Asm:
    def __init__(self):
        self.lines = []; self.nlabel = 0; self.vm = []
        self.fstamp = lambda p: None
    def e(self, s): self.lines.append('  ' + s)
    def c(self, s): self.lines.append('  ; ' + s)
    def label(self, name): self.lines.append(name + ':')
    def newlabel(self, base='L'):
        self.nlabel += 1
        return f'{base}_{self.nlabel}'
    def vmem(self, s, tag=None):
        self.e(s); self.vm.append(tag)
    def count_vm(self, tag):
        if tag not in self.vm: return None
        idx = max(i for i, t in enumerate(self.vm) if t == tag)
        n = len(self.vm) - 1 - idx
        assert n <= 63, n
        self.vm = self.vm[idx + 1:]
        return n
    def wait_vm(self, tag):
        n = self.count_vm(tag)
        if n is not None: self.e(f's_waitcnt vmcnt({n})')
    def wait_vm_all(self):
        self.e('s_waitcnt vmcnt(0)'); self.vm = []
    def text(self): return '\n'.join(self.lines)

def set_exec(a, lo, hi=None):
    a.e(f's_mov_b32 exec_lo, {hex(lo)}')
    a.e(f's_mov_b32 exec_hi, {hex(lo if hi is None else hi)}')

S_V = 3
S_WS = 4; S_X = 8; S_OUT = 12; S_PA = 16
S_G, S_R, S_W, S_RB, S_CB, S_RB2, S_CB2 = 20, 21, 22, 23, 24, 25, 26
S_MODE, S_L, S_LOFF, S_EP, S_B, S_XCC = 27, 28, 29, 30, 31, 32
S_T0, S_T1, S_T2, S_T3, S_T4, S_T5 = 33, 34, 35, 36, 37, 38
S_SPIN, S_THR = 39, 40
S_AOFF, S_AOFF2, S_ASTR = 41, 42, 43
S_C1, S_C2, S_ONE2 = 44, 46, 48
S_LOG2E, S_EPS6 = 50, 51
S_W4K = 52
S_RH, S_CH = 53, 54
S_U0, S_U1, S_U2, S_U3, S_U4 = 55, 56, 57, 58, 59
S_COLD = 62
S_GH = 63
S_RA = 86
S_RK = 90
S_P7 = 94
S_ROTK = 45
S_PTR = 64
S_WQKV, S_WO, S_W1, S_W2, S_W3, S_W4 = 40, 44, 48, 52, 56, 60
S_CSRD = 88

V_LANE = 0
V_AS, V_AB, V_AG, V_P1 = 1, 2, 3, 4
V_AH = 5
V_STS, V_STB, V_STST, V_XRM, V_TST = 9, 10, 11, 12, 13
V_FSB, V_FBS, V_FSS, V_FH, V_FOWN, V_FKV = 14, 15, 16, 17, 18, 19
V_T128, V_T64, V_T224, V_TN, V_TA = 20, 21, 22, 23, 24
V_T0, V_T1, V_T2 = 25, 26, 27
V_TB = 28
V_RES = 32
V_MEAN, V_RS = 48, 49
V_X = 50
V_PQ = 56
V_ACC = 64
V_A = 128

PHASES = ['P1KV', 'P1Q', 'P3', 'P4', 'P5', 'P6', 'P7']
NCH = {'P1KV': 4, 'P1Q': 2, 'P3': 4, 'P4': 4, 'P5': 4, 'P6': 4, 'P7': 14}

NOE = ('P3', 'P4', 'P5')

class Slab:
    def __init__(self, layer, phase, chunk, kind, size, srow, npieces, srow2=None):
        self.layer, self.phase, self.chunk, self.kind = layer, phase, chunk, kind
        self.size, self.srow, self.npieces, self.srow2 = size, srow, npieces, srow2
        self.addr = None

def w4_tile_seq():
    seq = []
    for c in range(8):
        for i in [0, 1, 2, 3, 4, 5, 7, 8, 9, 10, 11, 12, 6, 13]:
            seq.append(14 * c + i)
    return seq

def build_slabs(layer):
    ph = {}
    def simple(phase, kind, nchunk, per, size, rows, np_):
        ph[phase] = [[Slab(layer, phase, c, kind, size, (c * per + j) * rows, np_) for j in range(per)] for c in range(nchunk)]
    simple('P1KV', 'KV', 4, 4, 4096, 32, 4)
    simple('P1Q', 'Q', 2, 4, 4096, 64, 4)
    simple('P3', 'WO', 4, 4, 4096, 32, 4)
    simple('P4', 'W1', 4, 4, 4096, 32, 4)
    simple('P5', 'W2', 4, 4, 4096, 32, 4)
    simple('P6', 'W3', 4, 4, 7168, 32, 7)
    seq = w4_tile_seq()
    ph['P7'] = [[Slab(layer, 'P7', c, 'W4', 4096, seq[2 * (c * 4 + j)] * 16, 4, srow2=seq[2 * (c * 4 + j) + 1] * 16)
                 for j in range(4)] for c in range(14)]
    pos = PHI
    for p in PHASES:
        for ch in ph[p]:
            for s in ch:
                if pos + s.size > RING: pos = 0
                s.addr = WRING + pos
                pos += s.size
    assert pos == PHI, pos
    return ph

def build_events(stop):
    ev = []
    for L in range(2):
        for p in PHASES:
            for c in range(NCH[p]): ev.append((L, 'B', p, c))
            if p not in NOE: ev.append((L, 'E', p, None))
            if p == 'P1KV': ev.append((L, 'X', 'X1', None))
            if p == 'P1Q': ev.append((L, 'X', 'X2', None))
            if stop == (L, p): return ev
    return ev

WS = f's[{S_WS}:{S_WS+3}]'

def thr_value(a, dst, epoch, xcc=False):
    if isinstance(epoch, int):
        a.e(f's_add_u32 s{dst}, s{S_B}, {8*epoch}')
    else:
        a.e(f's_lshl_b32 s{dst}, {epoch}, 3')
        a.e(f's_add_u32 s{dst}, s{dst}, s{S_B}')
    if xcc: a.e(f's_add_u32 s{dst}, s{dst}, s{S_XCC}')

def emit_poll(a, vaddr, epoch, soff='0', opt=Opt, x4=False, tbase=None):
    L = a.newlabel('POLL'); D = a.newlabel('POLLD')
    thr_value(a, S_THR, epoch)
    a.e(f's_mov_b32 s{S_SPIN}, {opt.spin}')
    a.label(L)
    if x4:
        T = tbase
        a.e(f'buffer_load_dwordx4 v[{T}:{T+3}], v{vaddr}, {WS}, {soff} offen sc1')
        a.e('s_waitcnt vmcnt(0)')
        for i in range(4): a.e(f'v_subrev_u32 v{T+i}, s{S_THR}, v{T+i}')
        a.e(f'v_max_u32 v{T}, v{T}, v{T+1}')
        a.e(f'v_max_u32 v{T+2}, v{T+2}, v{T+3}')
        a.e(f'v_max_u32 v{V_T0}, v{T}, v{T+2}')
    else:
        a.e(f'buffer_load_dword v{V_T2}, v{vaddr}, {WS}, {soff} offen sc1')
        a.e('s_waitcnt vmcnt(0)')
        a.e(f'v_subrev_u32 v{V_T0}, s{S_THR}, v{V_T2}')
    a.vm = []
    a.e(f'v_cmp_gt_u32 vcc, 0x80, v{V_T0}')
    a.e(f's_sub_u32 s{S_SPIN}, s{S_SPIN}, 1')
    a.e(f's_cbranch_scc1 {D}')
    a.e('s_cmp_eq_u64 vcc, -1')
    a.e(f's_cbranch_scc0 {L}')
    a.label(D)

def emit_mode_stores(a, stores, cold=False):
    F = a.newlabel('STF'); D = a.newlabel('STD')
    a.e(f's_cmp_eq_u32 s{S_COLD if cold else S_MODE}, 0')
    a.e(f's_cbranch_scc1 {F}')
    for s in stores: a.e(s + ' sc1')
    a.e(f's_branch {D}')
    a.label(F)
    for s in stores: a.e(s)
    a.label(D)
    for s in stores: a.vm.append('st')

def emit_signal(a, epoch):
    thr_value(a, S_THR, epoch, xcc=True)
    a.e(f'v_mov_b32 v{V_T0}, s{S_THR}')
    a.wait_vm_all()
    a.e('s_mov_b64 exec, 1')
    emit_mode_stores(a, [f'buffer_store_dword v{V_T0}, v{V_FOWN}, {WS}, 0 offen'])
    a.e('s_mov_b64 exec, -1')

def emit_xreduce(a, regs, tmp, over16=True):
    for r, t in zip(regs, tmp): a.e(f'v_mov_b32 v{t}, v{r}')
    a.e('s_nop 1')
    for r, t in zip(regs, tmp): a.e(f'v_permlane32_swap_b32 v{r}, v{t}')
    a.e('s_nop 0')
    for r, t in zip(regs, tmp): a.e(f'v_add_f32 v{r}, v{r}, v{t}')
    if over16:
        for r, t in zip(regs, tmp): a.e(f'v_mov_b32 v{t}, v{r}')
        a.e('s_nop 1')
        for r, t in zip(regs, tmp): a.e(f'v_permlane16_swap_b32 v{r}, v{t}')
        a.e('s_nop 0')
        for r, t in zip(regs, tmp): a.e(f'v_add_f32 v{r}, v{r}, v{t}')

def pk(op, d, x, y, z=None, mods=''):
    s = f'v_pk_{op}_f32 v[{d}:{d+1}], {x}, {y}'
    if z is not None: s += f', {z}'
    return s + mods
def vp(r): return f'v[{r}:{r+1}]'

def emit_stats_partial32(a, vals, t0, st_soff, cold=False):
    s, q = t0, t0 + 2
    a.e(pk('add', s, vp(vals), vp(vals + 2)))
    a.e(pk('mul', q, vp(vals), vp(vals)))
    a.e(pk('fma', q, vp(vals + 2), vp(vals + 2), vp(q)))
    for i in range(4, 16, 2):
        a.e(pk('add', s, vp(s), vp(vals + i)))
        a.e(pk('fma', q, vp(vals + i), vp(vals + i), vp(q)))
    a.e(f'v_add_f32 v{t0}, v{s}, v{s+1}')
    a.e(f'v_add_f32 v{t0+1}, v{q}, v{q+1}')
    emit_xreduce(a, [t0, t0 + 1], [t0 + 4, t0 + 5], over16=False)
    set_exec(a, 0xffffffff, 0)
    emit_mode_stores(a, [f'buffer_store_dwordx2 v[{t0}:{t0+1}], v{V_STST}, {WS}, {st_soff} offen'], cold=cold)
    a.e('s_mov_b64 exec, -1')

def emit_stats_from_sums(a, s, ss, out_a, out_b, tmp, double=False, keep=None):
    mean, var = s, ss
    a.e(f'v_mul_f32 v{mean}, {hex(f2u(1.0/512))}, v{s}')
    a.e(f'v_mul_f32 v{var}, {hex(f2u(1.0/512))}, v{ss}')
    a.e(f'v_fma_f32 v{var}, -v{mean}, v{mean}, v{var}')
    a.e(f'v_max_f32 v{var}, 0, v{var}')
    a.e(f'v_add_f32 v{tmp}, {hex(f2u(EPS))}, v{var}')
    a.e(f'v_rsq_f32 v{tmp}, v{tmp}')
    a.e('s_nop 0')
    if double:
        a.e(f'v_mul_f32 v{tmp+1}, v{tmp}, v{tmp}')
        a.e(f'v_mul_f32 v{tmp+1}, v{tmp+1}, v{var}')
        a.e(f'v_add_f32 v{tmp+1}, {hex(f2u(EPS))}, v{tmp+1}')
        a.e(f'v_rsq_f32 v{tmp+1}, v{tmp+1}')
        a.e('s_nop 0')
        a.e(f'v_mul_f32 v{out_a}, v{tmp}, v{tmp+1}')
    else:
        a.e(f'v_mov_b32 v{out_a}, v{tmp}')
    if keep:
        a.e(f'v_mov_b32 v{keep[0]}, v{mean}')
        a.e(f'v_mov_b32 v{keep[1]}, v{tmp}')
    a.e(f'v_mul_f32 v{out_b}, v{out_a}, v{mean}')
    a.e(f'v_sub_f32 v{out_b}, 0, v{out_b}')

def emit_sum_partials(a, raw, n):
    k = n
    step = 2
    regs = [raw + i for i in range(0, n, 2)]
    while len(regs) > 1:
        nxt = []
        for i in range(0, len(regs), 2):
            a.e(pk('add', regs[i], vp(regs[i]), vp(regs[i + 1])))
            nxt.append(regs[i])
        regs = nxt

def emit_lnfold(a, acc, cs, av, bv, n):
    for i in range(0, n, 2):
        a.e(pk('mul', acc + i, vp(acc + i), vp(av), mods=' op_sel_hi:[1,0]'))
    for i in range(0, n, 2):
        a.e(pk('fma', acc + i, vp(cs + i), vp(bv), vp(acc + i), mods=' op_sel_hi:[1,0,1]'))

def emit_gelu(a, x, n, tmp, c1reg):
    blk = 16
    a.e(f'v_mov_b32 v{c1reg}, s{S_C1}')
    for b0 in range(0, n, blk):
        m = min(blk, n - b0); t = tmp
        for i in range(0, m, 2): a.e(pk('mul', t + i, vp(x + b0 + i), vp(x + b0 + i)))
        for i in range(0, m, 2): a.e(pk('fma', t + i, vp(t + i), f's[{S_C2}:{S_C2+1}]', vp(c1reg), mods=' op_sel_hi:[1,1,0]'))
        for i in range(0, m, 2): a.e(pk('mul', t + i, vp(t + i), vp(x + b0 + i)))
        for i in range(m): a.e(f'v_exp_f32 v{t+i}, v{t+i}')
        for i in range(0, m, 2): a.e(pk('add', t + i, vp(t + i), f's[{S_ONE2}:{S_ONE2+1}]'))
        for i in range(m): a.e(f'v_rcp_f32 v{t+i}, v{t+i}')
        for i in range(0, m, 2): a.e(pk('mul', x + b0 + i, vp(x + b0 + i), vp(t + i)))

def emit_phi(a, regs, tmp):
    for i, r in enumerate(regs): a.e(f'v_min_f32 v{tmp+i}, 0, v{r}')
    for i, r in enumerate(regs): a.e(f'v_mul_f32 v{tmp+i}, s{S_LOG2E}, v{tmp+i}')
    for i, r in enumerate(regs): a.e(f'v_exp_f32 v{tmp+i}, v{tmp+i}')
    for i, r in enumerate(regs): a.e(f'v_max_f32 v{r}, 0, v{r}')
    for i, r in enumerate(regs): a.e(f'v_add_f32 v{r}, v{r}, v{tmp+i}')
    for i, r in enumerate(regs): a.e(f'v_add_f32 v{r}, s{S_EPS6}, v{r}')

def emit_pack(a, dst, src, n):
    for i in range(0, n, 2): a.e(f'v_cvt_pk_bf16_f32 v{dst+i//2}, v{src+i}, v{src+i+1}')

def emit_pack32(a, dst, src):
    for k, j in enumerate([0, 2, 1, 3]):
        a.e(f'v_cvt_pk_bf16_f32 v{dst+2*k}, v{src+4*j}, v{src+4*j+1}')
        a.e(f'v_cvt_pk_bf16_f32 v{dst+2*k+1}, v{src+4*j+2}, v{src+4*j+3}')

class TrBase:
    def __init__(self, a, lane_reg, nt):
        self.a, self.lane_reg, self.nt, self.cur = a, lane_reg, nt, None
    def off(self, addr, span):
        if self.cur is None or addr < self.cur or addr + span - self.cur > 65535:
            self.cur = addr
            for t in range(self.nt):
                if t == 0:
                    self.a.e(f'v_add_u32 v{V_TB}, {hex(addr)}, v{self.lane_reg}')
                else:
                    self.a.e(f'v_xor_b32 v{V_TB+t}, {t << 5}, v{self.lane_reg}')
                    self.a.e(f'v_add_u32 v{V_TB+t}, {hex(addr)}, v{V_TB+t}')
        return addr - self.cur

def emit_gemm16(a, bar, phase, chunks, CT, kind, acc_of, a_of, a_wait, a_issue, wr, S, normal=False, extra=None):
    R, LA = 2, 4
    ks = []
    for ci, ch in enumerate(chunks):
        first = True
        for s in ch:
            ks.append((ci, s.addr, first)); first = False
            if kind == '64': ks.append((ci, s.addr + 2048, False))
    KS = len(ks)
    if kind == '128':
        trb = TrBase(a, V_T128, 4); second = 2048; span = 4096; tb = lambda t: V_TB + t; timm = lambda t: 0
    elif kind == '64':
        trb = TrBase(a, V_T64, 2); second = 1024; span = 2048; tb = lambda t: V_TB + t; timm = lambda t: 0
    else:
        trb = TrBase(a, V_T224, 1); second = 3584; span = 7168; tb = lambda t: V_TB; timm = lambda t: 32 * t
    total = KS * CT
    def slot(n): return wr + 4 * (n % S)
    def pre_issue(n):
        j, t = divmod(n, CT)
        ci, addr, first = ks[j]
        if t == 0 and first:
            a.fstamp(phase); bar(('B', phase, ci)); a.fstamp(phase)
        imm = trb.off(addr, span) if t == 0 else addr - trb.cur
        return imm + timm(t), t
    def rd(n, half, info):
        imm, t = info
        a.e(f'ds_read_b64_tr_b16 v[{slot(n)+2*half}:{slot(n)+2*half+1}], v{tb(t)} offset:{imm + (second if half else 0)}')
    def mfma(m, r):
        j, t = divmod(m, CT)
        d = acc_of(r, t); c = '0' if j == 0 else f'v[{d}:{d+3}]'
        w = f'v[{slot(m)}:{slot(m)+3}]'; x = f'v[{a_of(r,j)}:{a_of(r,j)+3}]'
        a.e(f'v_mfma_f32_16x16x32_bf16 v[{d}:{d+3}], ' + (f'{x}, {w}' if normal else f'{w}, {x}') + f', {c}')
    for n in range(min(LA, total)):
        info = pre_issue(n); rd(n, 0, info); rd(n, 1, info)
    for n in range(total):
        j, t = divmod(n, CT)
        lg = 2 * (min(n - 1 + LA, total - 1) - n)
        vmn = a_wait(j) if t == 0 else None
        if t == 0 and j in (0, 1): a.fstamp(phase)
        a.e((f's_waitcnt vmcnt({vmn}) lgkmcnt({lg})') if vmn is not None else f's_waitcnt lgkmcnt({lg})')
        nx = n + LA; info = None
        mfma(n, 0)
        if nx < total:
            info = pre_issue(nx); rd(nx, 0, info)
        mfma(n, 1)
        if nx < total: rd(nx, 1, info)
        a_issue(j, t)
        if extra and t == CT - 1: extra(j)
    a.fstamp(phase); bar(('E', phase, None)); a.fstamp(phase)
    a.e('s_nop 7')

def emit_gemm32(a, bar, phase, chunks, a_pieces, acc, wr, tail=None):
    LA, S = 4, 5
    nch = len(chunks)
    total = nch * 8
    trb = TrBase(a, V_TN, 1)
    def slot(n): return wr + 8 * (n % S)
    def reads(n):
        c, rem = divmod(n, 8); ksl, s = divmod(rem, 2)
        out = []
        if rem == 0:
            a.wait_vm(('A', c)); a.fstamp(phase); bar(('B', phase, c)); a.fstamp(phase)
        sl = chunks[c][ksl]
        imm = trb.off(sl.addr, 4096)
        out.append(f'ds_read_b128 v[{slot(n)}:{slot(n)+3}], v{V_TA} offset:{(c % 4) * 16384 + ksl * 1024 + s * 512}')
        out.append(f'ds_read_b64_tr_b16 v[{slot(n)+4}:{slot(n)+5}], v{V_TB} offset:{imm + s * 1024}')
        out.append(f'ds_read_b64_tr_b16 v[{slot(n)+6}:{slot(n)+7}], v{V_TB} offset:{imm + s * 1024 + 2048}')
        return out
    up = (0, 1, 2) if a.opt.up3 else (0, 1)
    for c in up:
        for t in a_pieces(c): t()
    queue = []
    nxt = len(up)
    passed = -1
    for n in range(LA):
        for s in reads(n): a.e(s)
    passed = 0
    for n in range(total):
        lg = 3 * (min(n - 1 + LA, total - 1) - n)
        a.e(f's_waitcnt lgkmcnt({lg})')
        c = '0' if n == 0 else f'v[{acc}:{acc+15}]'
        a.e(f'v_mfma_f32_32x32x16_bf16 v[{acc}:{acc+15}], v[{slot(n)+4}:{slot(n)+7}], v[{slot(n)}:{slot(n)+3}], {c}')
        nx = n + LA
        if nx < total:
            if nx % 8 == 0:
                assert nx // 8 < nxt and not any(q[0] == nx // 8 for q in queue), (phase, nx)
                passed = nx // 8
            for s in reads(nx): a.e(s)
        while nxt < nch and (nxt <= passed + 2 or nxt <= 3) and len(queue) < 4:
            queue += [(nxt, t) for t in a_pieces(nxt)]; nxt += 1
        if queue:
            queue.pop(0)[1]()
        if tail and n == total - 10: tail()
    a.fstamp(phase)
    if phase not in NOE:
        bar(('E', phase, None))
    a.fstamp(phase)
    a.e('s_nop 7'); a.e('s_nop 3')


def gen_compute(a, opt, events):
    evq = list(events)
    tm = [0]
    def tmreg(i):
        assert i < 22, i
        return 64 + i
    def dump(regs):
        sk = a.newlabel('TMS')
        a.e('s_waitcnt lgkmcnt(0)')
        a.e(f's_cmp_eq_u32 s{S_W}, 0')
        a.e(f's_cbranch_scc0 {sk}')
        a.e(f's_lshl_b32 s{S_T0}, s2, 8')
        a.e(f's_lshl_b32 s{S_T1}, s{S_L}, 7')
        if opt.timing: a.e(f's_add_u32 s{S_T0}, s{S_T0}, s{S_T1}')
        a.e(f's_add_u32 s{S_T0}, s{S_T0}, {hex(TM_OFF)}')
        for i, r in enumerate(regs):
            a.e(f'v_mov_b32 v{V_T0}, s{r}')
            a.e(f'v_mov_b32 v{V_T1}, {4*i}')
            a.e(f'buffer_store_dword v{V_T0}, v{V_T1}, {WS}, s{S_T0} offen')
        a.label(sk)
        a.e('s_waitcnt vmcnt(0)')
    fs = [0]
    def freg(i): return 64 + 2 * i
    def fstamp(phase):
        if opt.fine == phase and fs[0] < 11:
            a.e(f's_memtime s[{freg(fs[0])}:{freg(fs[0])+1}]'); fs[0] += 1
    a.fstamp = fstamp
    def stamp():
        if opt.timing:
            a.e('s_memtime s[60:61]')
            a.e('s_waitcnt lgkmcnt(0)')
            a.e(f's_mov_b32 s{tmreg(tm[0])}, s60'); tm[0] += 1

    T0, T1, T2, TB = V_T0, V_T1, V_T2, V_TB
    a.c('--- compute: early address setup')
    if opt.startdiag:
        a.e('s_memtime s[98:99]'); a.e('s_waitcnt lgkmcnt(0)'); a.e('s_sub_u32 s98, s98, s100'); a.e('s_mov_b32 s85, s98')
    stamp()
    a.e(f's_lshr_b32 s{S_RH}, s{S_W}, 1')
    a.e(f's_and_b32 s{S_CH}, s{S_W}, 1')
    a.e(f's_lshl_b32 s{S_W4K}, s{S_W}, 12')
    a.e(f's_lshl_b32 s{S_U0}, s{S_G}, 4')
    a.e(f's_lshl_b32 s{S_T1}, s{S_RB}, 2')
    a.e(f's_add_u32 s{S_U0}, s{S_U0}, s{S_T1}')
    a.e(f's_lshl_b32 s{S_T1}, s{S_RH}, 1')
    a.e(f's_add_u32 s{S_U2}, s{S_U0}, s{S_T1}')
    a.e(f's_add_u32 s{S_U0}, s{S_U0}, s{S_W}')
    a.e(f's_lshl_b32 s{S_U1}, s{S_G}, 4')
    a.e(f's_lshl_b32 s{S_T2}, s{S_RB2}, 3')
    a.e(f's_add_u32 s{S_U1}, s{S_U1}, s{S_T2}')
    a.e(f's_lshl_b32 s{S_T2}, s{S_W}, 1')
    a.e(f's_add_u32 s{S_U1}, s{S_U1}, s{S_T2}')
    a.e(f'v_and_b32 v{T0}, 15, v{V_LANE}')
    a.e(f'v_and_b32 v{T1}, 0x30, v{V_LANE}')
    a.e(f'v_lshl_add_u32 v{V_P1}, v{T0}, 10, v{T1}')
    a.e(f's_lshl_b32 s{S_T2}, s{S_U1}, 14')
    a.e(f'v_add_u32 v{V_P1}, s{S_T2}, v{V_P1}')
    for i in range(4): a.e(f's_mov_b32 s{S_PA+i}, s{S_X+i}')
    a.e(f's_mov_b32 s{S_PA+3}, 0x20000')
    a.e(f's_lshl_b32 s{S_ROTK}, s{S_RB2}, 1')
    a.e(f's_add_u32 s{S_ROTK}, s{S_ROTK}, s{S_CB2}')
    a.e(f's_and_b32 s{S_ROTK}, s{S_ROTK}, {3 if opt.rot else 0}')
    for c in range(4):
        a.e(f's_xor_b32 s{S_RK+c}, s{S_ROTK}, {c}')
        a.e(f's_lshl_b32 s{S_RK+c}, s{S_RK+c}, 8')
    a.e(f's_mov_b32 s{S_ASTR}, 64')
    a.e(f'v_and_b32 v{T2}, 31, v{V_LANE}')
    a.e(f'v_lshrrev_b32 v{TB}, 5, v{V_LANE}')
    a.e(f'v_lshlrev_b32 v{V_XRM}, 10, v{T2}')
    a.e(f'v_lshl_add_u32 v{V_XRM}, v{TB}, 3, v{V_XRM}')
    a.e(f's_lshl_b32 s{S_T2}, s{S_U2}, 14')
    a.e(f's_lshl_b32 s{S_T3}, s{S_CB}, 7')
    a.e(f's_add_u32 s{S_T2}, s{S_T2}, s{S_T3}')
    a.e(f's_lshl_b32 s{S_T3}, s{S_CH}, 6')
    a.e(f's_add_u32 s{S_T2}, s{S_T2}, s{S_T3}')
    a.e(f'v_add_u32 v{V_XRM}, s{S_T2}, v{V_XRM}')
    PA = f's[{S_PA}:{S_PA+3}]'
    def p1_load(j):
        if j % 4 == 0:
            a.e(f's_mov_b32 s{S_AOFF}, s{S_RK + j // 4}')
            a.e(f's_add_u32 s{S_AOFF2}, s{S_AOFF}, 0x4000')
        for r in range(2):
            a.vmem(f'buffer_load_dwordx4 v[{V_A+(r*16+j)*4}:{V_A+(r*16+j)*4+3}], v{V_P1}, {PA}, s{S_AOFF if r == 0 else S_AOFF2} offen', ('A', j))
        if j % 4 != 3:
            a.e(f's_add_u32 s{S_AOFF}, s{S_AOFF}, s{S_ASTR}')
            a.e(f's_add_u32 s{S_AOFF2}, s{S_AOFF2}, s{S_ASTR}')
    XS = f's[{S_X}:{S_X+3}]'
    for j in range(4):
        a.vmem(f'buffer_load_dwordx2 v[{V_RES+4*j}:{V_RES+4*j+1}], v{V_XRM}, {XS}, 0 offen offset:{16*j}', 'x')
    for j in range(opt.D_kv): p1_load(j)

    a.e('s_waitcnt lgkmcnt(0)')
    a.e(f's_mul_i32 s{S_B}, s{S_V}, 0x9e3779b1')
    a.e(f's_add_u32 s{S_B}, s{S_B}, 0x7f4a7c15')
    a.e(f's_and_b32 s{S_B}, s{S_B}, 0xffffff00')
    a.c('--- compute: address setup')
    a.e(f'v_lshlrev_b32 v{V_X}, 4, v{V_LANE}')
    a.e(f's_lshl_b32 s{S_T2}, s{S_U0}, 14')
    a.e(f'v_add_u32 v{V_AS}, s{S_T2}, v{V_X}')
    a.e(f's_lshl_b32 s{S_T2}, s{S_U1}, 14')
    a.e(f'v_add_u32 v{V_AB}, s{S_T2}, v{V_X}')
    a.e(f's_mul_i32 s{S_T2}, s{S_U0}, 57344')
    a.e(f'v_add_u32 v{V_AG}, s{S_T2}, v{V_X}')
    a.e(f'v_lshlrev_b32 v{V_STS}, 7, v{T2}')
    a.e(f'v_lshl_add_u32 v{V_STS}, v{TB}, 6, v{V_STS}')
    a.e(f's_lshl_b32 s{S_T2}, s{S_U2}, 11')
    a.e(f'v_add_u32 v{V_STS}, s{S_T2}, v{V_STS}')
    a.e(f'v_lshlrev_b32 v{V_STST}, 7, v{T2}')
    a.e(f's_lshl_b32 s{S_T3}, s{S_CB}, 1')
    a.e(f's_add_u32 s{S_T3}, s{S_T3}, s{S_CH}')
    a.e(f's_lshl_b32 s{S_T4}, s{S_T3}, 3')
    a.e(f's_add_u32 s{S_T2}, s{S_T2}, s{S_T4}')
    a.e(f'v_add_u32 v{V_STST}, s{S_T2}, v{V_STST}')
    a.e(f'v_lshlrev_b32 v{V_STB}, 7, v{T0}')
    a.e(f'v_lshl_add_u32 v{V_STB}, v{T1}, 1, v{V_STB}')
    a.e(f's_lshl_b32 s{S_T2}, s{S_U1}, 11')
    a.e(f'v_add_u32 v{V_STB}, s{S_T2}, v{V_STB}')
    a.e(f'v_lshrrev_b32 v{V_TST}, 4, v{T2}')
    a.e(f'v_lshlrev_b32 v{V_TST}, 14, v{V_TST}')
    a.e(f'v_lshl_add_u32 v{V_TST}, v{TB}, 8, v{V_TST}')
    a.e(f'v_lshl_add_u32 v{V_TST}, v{T0}, 4, v{V_TST}')
    a.e(f's_lshl_b32 s{S_T2}, s{S_U2}, 14')
    a.e(f's_lshl_b32 s{S_T4}, s{S_T3}, 10')
    a.e(f's_add_u32 s{S_T2}, s{S_T2}, s{S_T4}')
    a.e(f'v_add_u32 v{V_TST}, s{S_T2}, v{V_TST}')
    a.e(f's_lshl_b32 s{S_T2}, s{S_RB}, 6')
    a.e(f's_lshl_b32 s{S_T3}, s{S_W}, 4')
    a.e(f's_add_u32 s{S_T2}, s{S_T2}, s{S_T3}')
    a.e(f's_mul_i32 s{S_T3}, s{S_G}, 18')
    a.e(f's_lshl_b32 s{S_T4}, s{S_G}, 8')
    rmask = 3 if opt.rot else 0
    for c in range(4):
        a.e(f's_and_b32 s{S_RA+c}, s{S_RB}, {rmask}')
        a.e(f's_xor_b32 s{S_RA+c}, s{S_RA+c}, {c}')
        a.e(f's_lshl_b32 s{S_RA+c}, s{S_RA+c}, 12')
    for p_ in range(8):
        a.e(f's_and_b32 s{S_P7+p_}, s{S_RB}, {rmask}')
        a.e(f's_lshl_b32 s{S_P7+p_}, s{S_P7+p_}, 1')
        a.e(f's_xor_b32 s{S_P7+p_}, s{S_P7+p_}, {p_}')
        a.e(f's_mul_i32 s{S_P7+p_}, s{S_P7+p_}, 7168')
    for kg in range(4):
        r = V_AH + kg
        a.e(f's_lshr_b32 s{S_T5}, s{S_RA+kg}, 12')
        a.e(f's_lshr_b32 s{S_U3}, s{S_T5}, 1')
        a.e(f's_add_u32 s{S_U3}, s{S_U3}, 1')
        a.e(f's_sub_u32 s{S_U4}, 0, s{S_U3}')
        a.e(f's_bitcmp1_b32 s{S_T5}, 0')
        a.e(f's_cselect_b32 s{S_U3}, s{S_U3}, s{S_U4}')
        a.e(f's_add_u32 s{S_T5}, s{S_T2}, s{S_U3}')
        a.e(f's_add_u32 s{S_T5}, s{S_T5}, 16')
        a.e(f'v_add_u32 v{r}, s{S_T5}, v{T0}')
        a.e(f'v_lshrrev_b32 v{V_X+1}, 4, v{r}')
        a.e(f'v_add_u32 v{V_X+1}, s{S_T3}, v{V_X+1}')
        a.e(f'v_lshlrev_b32 v{V_X+1}, 14, v{V_X+1}')
        a.e(f'v_and_b32 v{V_X+2}, 15, v{r}')
        a.e(f'v_add_u32 v{V_X+2}, v{T1}, v{V_X+2}')
        a.e(f'v_lshl_add_u32 v{V_X+1}, v{V_X+2}, 4, v{V_X+1}')
        a.e(f'v_add_u32 v{V_X+2}, s{S_T4}, v{r}')
        a.e(f'v_subrev_u32 v{V_X+2}, 16, v{V_X+2}')
        a.e(f'v_cmp_gt_u32 vcc, 0x800, v{V_X+2}')
        a.e(f'v_mov_b32 v{r}, 0x80000000')
        a.e('s_nop 0')
        a.e(f'v_cndmask_b32 v{r}, v{r}, v{V_X+1}, vcc')
    a.e(f's_lshl_b32 s{S_T2}, s{S_G}, 9')
    a.e(f's_add_u32 s{S_T2}, s{S_T2}, {hex(LF_OFF)}')
    a.e(f's_lshl_b32 s{S_T3}, s{S_W}, 7')
    a.e(f's_add_u32 s{S_T3}, s{S_T3}, s{S_T2}')
    a.e(f's_lshl_b32 s{S_T4}, s{S_R}, 2')
    a.e(f's_add_u32 s{S_T4}, s{S_T4}, s{S_T3}')
    a.e(f'v_mov_b32 v{V_FOWN}, s{S_T4}')
    a.e(f'v_and_b32 v{V_X+1}, 7, v{V_LANE}')
    a.e(f'v_lshlrev_b32 v{V_X+1}, 2, v{V_X+1}')
    a.e(f'v_bfe_u32 v{V_X+2}, v{V_LANE}, 3, 1')
    a.e(f'v_lshl_add_u32 v{V_X+1}, v{V_X+2}, 7, v{V_X+1}')
    a.e(f's_lshl_b32 s{S_T4}, s{S_RH}, 8')
    a.e(f's_lshl_b32 s{S_T5}, s{S_RB}, 5')
    a.e(f's_add_u32 s{S_T4}, s{S_T4}, s{S_T5}')
    a.e(f's_add_u32 s{S_T4}, s{S_T4}, s{S_T2}')
    a.e(f'v_add_u32 v{V_FSS}, s{S_T4}, v{V_X+1}')
    a.e(f's_lshl_b32 s{S_T4}, s{S_RB2}, 1')
    a.e(f's_add_u32 s{S_T4}, s{S_T4}, s{S_RH}')
    a.e(f's_lshl_b32 s{S_T4}, s{S_T4}, 5')
    a.e(f's_lshl_b32 s{S_T5}, s{S_CH}, 8')
    a.e(f's_add_u32 s{S_T4}, s{S_T4}, s{S_T5}')
    a.e(f's_add_u32 s{S_T4}, s{S_T4}, s{S_T2}')
    a.e(f'v_add_u32 v{V_FSB}, s{S_T4}, v{V_X+1}')
    a.e(f's_and_b32 s{S_T4}, s{S_RB}, 1')
    a.e(f's_lshl_b32 s{S_T4}, s{S_T4}, 1')
    a.e(f's_add_u32 s{S_T4}, s{S_T4}, s{S_RH}')
    a.e(f's_lshl_b32 s{S_T4}, s{S_T4}, 7')
    a.e(f's_add_u32 s{S_T4}, s{S_T4}, s{S_T2}')
    a.e(f's_lshr_b32 s{S_T5}, s{S_RB}, 1')
    a.e(f's_lshl_b32 s{S_T5}, s{S_T5}, 6')
    a.e(f's_add_u32 s{S_T4}, s{S_T4}, s{S_T5}')
    a.e(f'v_lshlrev_b32 v{V_FBS}, 2, v{T0}')
    a.e(f'v_add_u32 v{V_FBS}, s{S_T4}, v{V_FBS}')
    a.e(f's_lshl_b32 s{S_T4}, s{S_R}, 2')
    a.e(f's_add_u32 s{S_T4}, s{S_T4}, s{S_T2}')
    a.e(f'v_and_b32 v{V_X+1}, 3, v{V_LANE}')
    a.e(f'v_lshlrev_b32 v{V_X+1}, 7, v{V_X+1}')
    a.e(f'v_add_u32 v{V_X+1}, s{S_T4}, v{V_X+1}')
    a.e(f'v_lshrrev_b32 v{V_X+2}, 2, v{V_LANE}')
    a.e(f'v_cmp_eq_u32 vcc, 4, v{V_X+2}')
    a.e('s_nop 1')
    a.e(f'v_cndmask_b32 v{V_FSS}, v{V_FSS}, v{V_X+1}, vcc')
    a.e(f'v_cndmask_b32 v{V_FBS}, v{V_FBS}, v{V_X+1}, vcc')
    a.e(f's_lshl_b32 s{S_T4}, s{S_CB2}, 7')
    a.e(f's_add_u32 s{S_T4}, s{S_T4}, {hex(KVF_OFF)}')
    a.e(f'v_lshlrev_b32 v{V_FKV}, 2, v{T2}')
    a.e(f'v_add_u32 v{V_FKV}, s{S_T4}, v{V_FKV}')
    a.e(f'v_bfe_u32 v{V_X+1}, v{V_LANE}, 2, 2')
    a.e(f'v_lshrrev_b32 v{V_X+2}, 4, v{V_LANE}')
    a.e(f'v_lshl_add_u32 v{V_X+3}, v{V_X+2}, 2, v{V_X+1}')
    a.e(f'v_and_b32 v{V_X+4}, 3, v{V_LANE}')
    a.e(f'v_lshlrev_b32 v{V_X+4}, 3, v{V_X+4}')
    a.e(f'v_bfe_u32 v{V_X+5}, v{V_X+3}, 1, 2')
    a.e(f'v_lshl_add_u32 v{V_T128}, v{V_X+5}, 5, v{V_X+4}')
    a.e(f'v_lshl_add_u32 v{V_T128}, v{V_X+3}, 7, v{V_T128}')
    a.e(f'v_bfe_u32 v{V_X+5}, v{V_X+3}, 2, 1')
    a.e(f'v_lshl_add_u32 v{V_T64}, v{V_X+5}, 5, v{V_X+4}')
    a.e(f'v_lshl_add_u32 v{V_T64}, v{V_X+3}, 6, v{V_T64}')
    a.e(f'v_mul_u32_u24 v{V_T224}, 224, v{V_X+3}')
    a.e(f'v_add_u32 v{V_T224}, v{V_T224}, v{V_X+4}')
    a.e(f'v_lshrrev_b32 v{V_X+3}, 1, v{V_X+2}')
    a.e(f'v_lshl_add_u32 v{V_X+3}, v{V_X+3}, 2, v{V_X+1}')
    a.e(f'v_and_b32 v{V_X+5}, 1, v{V_X+2}')
    a.e(f's_lshl_b32 s{S_T4}, s{S_CH}, 1')
    a.e(f'v_add_u32 v{V_X+5}, s{S_T4}, v{V_X+5}')
    a.e(f'v_and_b32 v{V_X+1}, 2, v{V_X+1}')
    a.e(f'v_xor_b32 v{V_X+5}, v{V_X+5}, v{V_X+1}')
    a.e(f'v_lshl_add_u32 v{V_TN}, v{V_X+5}, 5, v{V_X+4}')
    a.e(f'v_lshl_add_u32 v{V_TN}, v{V_X+3}, 7, v{V_TN}')
    a.e(f'v_bfe_u32 v{V_TA}, v{V_LANE}, 4, 1')
    a.e(f's_lshl_b32 s{S_T4}, s{S_RH}, 1')
    a.e(f'v_add_u32 v{V_TA}, s{S_T4}, v{V_TA}')
    a.e(f'v_lshlrev_b32 v{V_TA}, 12, v{V_TA}')
    a.e(f'v_lshl_add_u32 v{V_TA}, v{TB}, 8, v{V_TA}')
    a.e(f'v_lshl_add_u32 v{V_TA}, v{T0}, 4, v{V_TA}')
    if AREG: a.e(f'v_add_u32 v{V_TA}, {hex(AREG)}, v{V_TA}')
    c1 = -2.0 * 0.7978845608028654 * 1.4426950408889634
    c2 = c1 * 0.044715
    for s, v in [(S_C1, c1), (S_C2, c2), (S_C2 + 1, c2), (S_ONE2, 1.0), (S_ONE2 + 1, 1.0),
                 (S_LOG2E, 1.4426950408889634), (S_EPS6, 1e-6)]:
        a.e(f's_mov_b32 s{s}, {hex(f2u(v))}')
    a.e(f's_mov_b32 s{S_L}, 0')
    a.e(f's_mov_b32 s{S_LOFF}, 0')
    a.e(f's_mov_b32 s{S_EP}, 1')
    a.e(f's_mov_b32 s{S_MODE}, 1')
    a.e(f's_mov_b32 s{S_COLD}, 1')
    a.e(f's_lshl_b32 s{S_GH}, s{S_G}, 1')
    a.e(f's_add_u32 s{S_GH}, s{S_GH}, 1')
    a.e(f's_lshl_b32 s{S_GH}, s{S_GH}, 14')

    def emit_fh():
        a.c('build FH')
        a.e(f's_lshl_b32 s{S_T0}, s{S_RB}, 2')
        a.e(f's_add_u32 s{S_T0}, s{S_T0}, s{S_W}')
        a.e(f's_lshl_b32 s{S_T1}, s{S_G}, 9')
        a.e(f's_add_u32 s{S_T1}, s{S_T1}, {hex(LF_OFF)}')
        def local_addr(dst, d):
            a.e(f's_add_i32 s{S_T2}, s{S_T0}, {d}')
            a.e(f's_and_b32 s{S_T3}, s{S_T2}, 2')
            a.e(f's_lshl_b32 s{S_T3}, s{S_T3}, 7')
            a.e(f's_lshr_b32 s{S_T2}, s{S_T2}, 2')
            a.e(f's_lshl_b32 s{S_T2}, s{S_T2}, 5')
            a.e(f's_add_u32 s{S_T2}, s{S_T2}, s{S_T3}')
            a.e(f's_add_u32 s{dst}, s{S_T2}, s{S_T1}')
        local_addr(S_U0, 0); local_addr(S_U1, -1); local_addr(S_U2, 1)
        a.e(f's_mov_b32 s{S_U3}, 128'); a.e(f's_mov_b32 s{S_U4}, 128')
        a.e(f's_lshl_b32 s{S_T2}, s{S_L}, 11')
        a.e(f's_lshl_b32 s{S_T3}, s{S_G}, 8')
        a.e(f's_add_u32 s{S_T2}, s{S_T2}, s{S_T3}')
        a.e(f's_add_u32 s{S_T2}, s{S_T2}, {hex(HF_OFF)}')
        la = a.newlabel('FH'); lb = a.newlabel('FH')
        a.e(f's_cmp_eq_u32 s{S_T0}, 0')
        a.e(f's_cbranch_scc0 {la}')
        a.e(f's_mov_b32 s{S_U1}, s{S_U0}')
        a.e(f's_cmp_eq_u32 s{S_G}, 0')
        a.e(f's_cbranch_scc1 {la}')
        a.e(f's_mov_b32 s{S_U1}, s{S_T2}')
        a.e(f's_mov_b32 s{S_U3}, 0')
        a.label(la)
        a.e(f's_cmp_eq_u32 s{S_T0}, 15')
        a.e(f's_cbranch_scc0 {lb}')
        a.e(f's_mov_b32 s{S_U2}, s{S_U0}')
        a.e(f's_cmp_eq_u32 s{S_G}, 7')
        a.e(f's_cbranch_scc1 {lb}')
        a.e(f's_add_u32 s{S_U2}, s{S_T2}, 128')
        a.e(f's_mov_b32 s{S_U4}, 0')
        a.label(lb)
        a.e(f'v_lshrrev_b32 v{T1}, 4, v{V_LANE}')
        a.e(f'v_mov_b32 v{V_FH}, s{S_U0}')
        a.e(f'v_mov_b32 v{T2}, 128')
        a.e(f'v_cmp_eq_u32 vcc, 1, v{T1}')
        a.e(f'v_mov_b32 v{T0}, s{S_U1}')
        a.e(f'v_mov_b32 v{TB}, s{S_U3}')
        a.e('s_nop 0')
        a.e(f'v_cndmask_b32 v{V_FH}, v{V_FH}, v{T0}, vcc')
        a.e(f'v_cndmask_b32 v{T2}, v{T2}, v{TB}, vcc')
        a.e(f'v_cmp_eq_u32 vcc, 2, v{T1}')
        a.e(f'v_mov_b32 v{T0}, s{S_U2}')
        a.e(f'v_mov_b32 v{TB}, s{S_U4}')
        a.e('s_nop 0')
        a.e(f'v_cndmask_b32 v{V_FH}, v{V_FH}, v{T0}, vcc')
        a.e(f'v_cndmask_b32 v{T2}, v{T2}, v{TB}, vcc')
        a.e(f'v_bfe_u32 v{T1}, v{V_LANE}, 3, 1')
        a.e(f'v_mul_u32_u24 v{T1}, v{T1}, v{T2}')
        a.e(f'v_add_u32 v{V_FH}, v{V_FH}, v{T1}')
        a.e(f'v_and_b32 v{T1}, 7, v{V_LANE}')
        a.e(f'v_lshl_add_u32 v{V_FH}, v{T1}, 2, v{V_FH}')
        a.e(f's_lshl_b32 s{S_T2}, s{S_R}, 2')
        a.e(f's_add_u32 s{S_T2}, s{S_T2}, s{S_T1}')
        a.e(f'v_and_b32 v{T1}, 3, v{V_LANE}')
        a.e(f'v_lshlrev_b32 v{T1}, 7, v{T1}')
        a.e(f'v_add_u32 v{T1}, s{S_T2}, v{T1}')
        a.e(f'v_lshrrev_b32 v{T2}, 2, v{V_LANE}')
        a.e(f'v_cmp_eq_u32 vcc, 12, v{T2}')
        a.e('s_nop 1')
        a.e(f'v_cndmask_b32 v{V_FH}, v{V_FH}, v{T1}, vcc')

    emit_fh()
    LOOP = 'LAYER_LOOP'
    a.label(LOOP)
    slabs = build_slabs(0)

    def run_layer():
        def bar(ev):
            exp = evq.pop(0)
            assert exp[1:] == ev or (exp[1] == 'X' and ev[0] == 'X' and exp[2] == ev[1]), (exp, ev)
            a.e('s_barrier')
        def soff(reg, base, extra=0, gh=False):
            if gh: a.e(f's_add_u32 s{reg}, s{S_GH}, {hex(base + extra)}')
            else: a.e(f's_mov_b32 s{reg}, {hex(base + extra)}')
        def done(p):
            if opt.stop == (1, p):
                a.e(f's_cmp_eq_u32 s{S_L}, 1')
                a.e('s_cbranch_scc1 L_END_COMPUTE')
            return opt.stop == (0, p)
        def ep(k):
            a.e(f's_add_u32 s{S_T5}, s{S_EP}, {k}')
            return f's{S_T5}'

        a.c('=== P1KV')
        l0 = a.newlabel('L0')
        a.e(f's_cmp_eq_u32 s{S_L}, 0')
        a.e(f's_cbranch_scc1 {l0}')
        emit_poll(a, V_FSB, f's{S_EP}', opt=opt)
        for j in range(opt.D_kv): p1_load(j)
        a.label(l0)
        a.vm = [('A', j) for j in range(opt.D_kv) for _ in range(2)]
        stamp()
        a.fstamp('P1KV')
        WR1 = 96; D1 = 116; ONES = 124; D2 = V_PQ
        for i in range(4): a.e(f'v_mov_b32 v{ONES+i}, 0x3f803f80')
        def kv_issue(j, t):
            if t == 1:
                if j + opt.D_kv < 16:
                    p1_load(j + opt.D_kv)
                elif j + opt.D_kv == 16:
                    ld = a.newlabel('STD'); le = a.newlabel('STE')
                    a.e(f's_cmp_eq_u32 s{S_L}, 0')
                    a.e(f's_cbranch_scc1 {ld}')
                    soff(S_T0, ST_OFF)
                    a.e(f'buffer_load_dwordx4 v[{D1}:{D1+3}], v{V_STB}, {WS}, s{S_T0} offen sc1')
                    a.e(f'buffer_load_dwordx4 v[{D1+4}:{D1+7}], v{V_STB}, {WS}, s{S_T0} offen offset:16 sc1')
                    a.e(f'buffer_load_dwordx4 v[{D2}:{D2+3}], v{V_STB}, {WS}, s{S_T0} offen offset:2048 sc1')
                    a.e(f'buffer_load_dwordx4 v[{D2+4}:{D2+7}], v{V_STB}, {WS}, s{S_T0} offen offset:2064 sc1')
                    a.e(f's_branch {le}')
                    a.label(ld)
                    for i in range(4):
                        a.e(f'buffer_load_dword v{V_X+i}, v{V_FOWN}, {WS}, 0 offen')
                    a.label(le)
                    a.vm += ['st'] * 4
        def kv_extra(j):
            sk = a.newlabel('MS')
            a.e(f's_cmp_eq_u32 s{S_L}, 0')
            a.e(f's_cbranch_scc0 {sk}')
            for r in range(2):
                x = f'v[{V_A+(r*16+j)*4}:{V_A+(r*16+j)*4+3}]'
                c1_ = '0' if j == 0 else f'v[{D1+4*r}:{D1+4*r+3}]'
                c2_ = '0' if j == 0 else f'v[{D2+4*r}:{D2+4*r+3}]'
                a.e(f'v_mfma_f32_16x16x32_bf16 v[{D1+4*r}:{D1+4*r+3}], v[{ONES}:{ONES+3}], {x}, {c1_}')
                a.e(f'v_mfma_f32_16x16x32_bf16 v[{D2+4*r}:{D2+4*r+3}], {x}, {x}, {c2_}')
            a.label(sk)
        emit_gemm16(a, bar, 'P1KV', slabs['P1KV'], 4, '128',
                    acc_of=lambda r, t: V_ACC + (r * 4 + t) * 4, a_of=lambda r, j: V_A + (r * 16 + j) * 4,
                    a_wait=lambda j: a.count_vm(('A', j)), a_issue=kv_issue, wr=WR1, S=5, normal=True, extra=kv_extra)
        stamp()
        a.wait_vm_all()
        SUM = [(V_X, V_X + 1), (V_X + 2, V_X + 3)]
        l1 = a.newlabel('S1'); le = a.newlabel('SE')
        a.e(f's_cmp_eq_u32 s{S_L}, 0')
        a.e(f's_cbranch_scc0 {l1}')
        for j in range(4):
            b = V_RES + 4 * j
            a.e(f'v_and_b32 v{b+3}, 0xffff0000, v{b+1}')
            a.e(f'v_lshlrev_b32 v{b+2}, 16, v{b+1}')
            a.e(f'v_and_b32 v{b+1}, 0xffff0000, v{b}')
            a.e(f'v_lshlrev_b32 v{b}, 16, v{b}')
        a.e(f'v_and_b32 v{T0}, 3, v{V_LANE}')
        a.e(f'v_bfe_u32 v{T1}, v{V_LANE}, 2, 2')
        a.e(f'v_lshrrev_b32 v{T2}, 4, v{V_LANE}')
        for r in range(2):
            s_, ss_ = SUM[r]
            a.e(f'v_mov_b32 v{s_}, v{D1+4*r}')
            a.e(f'v_mov_b32 v{ss_}, v{D2+4*r}')
            for i in range(1, 4):
                a.e(f'v_cmp_eq_u32 vcc, {i}, v{T0}')
                a.e('s_nop 1')
                a.e(f'v_cndmask_b32 v{ss_}, v{ss_}, v{D2+4*r+i}, vcc')
            a.e(f'v_cmp_eq_u32 vcc, v{T1}, v{T2}')
            a.e('s_nop 1')
            a.e(f'v_cndmask_b32 v{ss_}, 0, v{ss_}, vcc')
        emit_xreduce(a, [SUM[0][1], SUM[1][1]], [T0, T1])
        a.e(f's_branch {le}')
        a.label(l1)
        for r, raw in enumerate([D1, D2]):
            emit_sum_partials(a, raw, 8)
            a.e(f'v_mov_b32 v{SUM[r][0]}, v{raw}')
            a.e(f'v_mov_b32 v{SUM[r][1]}, v{raw+1}')
        emit_xreduce(a, [SUM[0][0], SUM[0][1], SUM[1][0], SUM[1][1]], [WR1, WR1 + 1, WR1 + 2, WR1 + 3])
        a.label(le)
        CSR = 120
        a.e(f'v_and_b32 v{T0}, 15, v{V_LANE}')
        a.e(f'v_lshlrev_b32 v{T0}, 2, v{T0}')
        a.e(f'v_add_u32 v{T0}, {hex(CSC)}, v{T0}')
        a.e(f'v_and_b32 v{T1}, 0x30, v{V_LANE}')
        for t in range(4):
            a.e(f'ds_read_b32 v{CSR+t}, v{T0} offset:{64*t}')
        KEEP = [(V_PQ + 0, V_PQ + 2), (V_PQ + 4, V_PQ + 6)]
        for r in range(2):
            emit_stats_from_sums(a, SUM[r][0], SUM[r][1], KEEP[r][0], KEEP[r][1], WR1)
        AI = [WR1, WR1 + 8]; BI = [WR1 + 4, WR1 + 12]
        for r in range(2):
            for i in range(4):
                a.e(f'ds_bpermute_b32 v{AI[r]+i}, v{T1}, v{KEEP[r][0]} offset:{4*i}')
                a.e(f'ds_bpermute_b32 v{BI[r]+i}, v{T1}, v{KEEP[r][1]} offset:{4*i}')
        a.e('s_waitcnt vmcnt(0) lgkmcnt(0)'); a.vm = []
        CSE = WR1 + 16
        for t in range(4): a.e(f'v_mov_b32 v{CSE+2*t}, v{CSR+t}')
        for r in range(2):
            for t in range(4):
                for i in (0, 2):
                    d = V_ACC + (r * 4 + t) * 4 + i
                    a.e(pk('mul', d, vp(d), vp(AI[r] + i)))
            for t in range(4):
                for i in (0, 2):
                    d = V_ACC + (r * 4 + t) * 4 + i
                    a.e(pk('fma', d, vp(BI[r] + i), vp(CSE + 2 * t), vp(d), mods=' op_sel_hi:[1,0,1]'))
        regs = [V_ACC + (r * 4 + t) * 4 + i for r in range(2) for t in range(2) for i in range(4)]
        emit_phi(a, regs, WR1)
        for t in range(4):
            b0 = V_ACC + t * 4; b1 = V_ACC + (4 + t) * 4
            a.e(f'v_cvt_pk_bf16_f32 v{b0}, v{b0}, v{b0+1}')
            a.e(f'v_cvt_pk_bf16_f32 v{b0+1}, v{b0+2}, v{b0+3}')
            a.e(f'v_cvt_pk_bf16_f32 v{b0+2}, v{b1}, v{b1+1}')
            a.e(f'v_cvt_pk_bf16_f32 v{b0+3}, v{b1+2}, v{b1+3}')
        a.e('s_nop 1')
        KVD = V_ACC + 16
        for h in range(2):
            a.e(f'v_mfma_f32_16x16x32_bf16 v[{KVD+4*h}:{KVD+4*h+3}], v[{V_ACC+4*h}:{V_ACC+4*h+3}], v[{V_ACC+8+4*h}:{V_ACC+8+4*h+3}], 0')
            a.e(f'v_mfma_f32_16x16x32_bf16 v[{KVD+8+4*h}:{KVD+8+4*h+3}], v[{V_ACC+4*h}:{V_ACC+4*h+3}], v[{ONES}:{ONES+3}], 0')
        a.e(f's_lshl_b32 s{S_T0}, s{S_W}, 11')
        a.e(f's_add_u32 s{S_T0}, s{S_T0}, {hex(SCR)}')
        a.e(f'v_lshlrev_b32 v{T0}, 4, v{V_LANE}')
        a.e(f'v_add_u32 v{T0}, s{S_T0}, v{T0}')
        a.e(f's_lshl_b32 s{S_T0}, s{S_W}, 7')
        a.e(f's_add_u32 s{S_T0}, s{S_T0}, {hex(SCR + 8192)}')
        a.e(f'v_add_u32 v{T2}, s{S_T0}, v{T1}')
        a.e('s_nop 4')
        a.e(f'ds_write_b128 v{T0}, v[{KVD}:{KVD+3}]')
        a.e(f'ds_write_b128 v{T0}, v[{KVD+4}:{KVD+7}] offset:1024')
        set_exec(a, 0x00010001)
        a.e(f'ds_write_b128 v{T2}, v[{KVD+8}:{KVD+11}]')
        a.e(f'ds_write_b128 v{T2}, v[{KVD+12}:{KVD+15}] offset:64')
        a.e('s_mov_b64 exec, -1')
        a.e('s_waitcnt lgkmcnt(0)')
        bar(('X', 'X1'))
        sk = a.newlabel('KVST')
        a.e(f's_cmp_lt_u32 s{S_W}, 2')
        a.e(f's_cbranch_scc0 {sk}')
        a.e(f's_lshl_b32 s{S_T0}, s{S_W}, 10')
        a.e(f's_add_u32 s{S_T0}, s{S_T0}, {hex(SCR)}')
        a.e(f'v_lshlrev_b32 v{T0}, 4, v{V_LANE}')
        a.e(f'v_add_u32 v{T2}, s{S_T0}, v{T0}')
        a.e(f's_lshl_b32 s{S_T0}, s{S_W}, 6')
        a.e(f's_add_u32 s{S_T0}, s{S_T0}, {hex(SCR + 8192)}')
        a.e(f'v_add_u32 v{V_X}, s{S_T0}, v{T1}')
        KB = V_ACC
        for ww in range(4):
            a.e(f'ds_read_b128 v[{KB+4*ww}:{KB+4*ww+3}], v{T2} offset:{ww*2048}')
            a.e(f'ds_read_b128 v[{KB+16+4*ww}:{KB+16+4*ww+3}], v{V_X} offset:{ww*128}')
        a.e(f's_lshl_b32 s{S_T0}, s{S_CB2}, 4')
        a.e(f's_lshl_b32 s{S_T1}, s{S_G}, 1')
        a.e(f's_add_u32 s{S_T0}, s{S_T0}, s{S_T1}')
        a.e(f's_add_u32 s{S_T0}, s{S_T0}, s{S_RB2}')
        a.e(f's_mul_i32 s{S_T0}, s{S_T0}, {KVREC}')
        a.e(f's_add_u32 s{S_T0}, s{S_T0}, s{S_LOFF}')
        a.e(f's_add_u32 s{S_T0}, s{S_T0}, {hex(KVP_OFF)}')
        a.e(f's_lshl_b32 s{S_T1}, s{S_W}, 10')
        a.e(f's_add_u32 s{S_T1}, s{S_T1}, s{S_T0}')
        a.e(f's_lshl_b32 s{S_T2}, s{S_W}, 6')
        a.e(f's_add_u32 s{S_T2}, s{S_T2}, s{S_T0}')
        a.e(f's_add_u32 s{S_T2}, s{S_T2}, 2048')
        a.e('s_waitcnt lgkmcnt(0)')
        for base in (KB, KB + 16):
            for i in range(0, 4, 2):
                a.e(pk('add', base + i, vp(base + i), vp(base + 4 + i)))
                a.e(pk('add', base + 8 + i, vp(base + 8 + i), vp(base + 12 + i)))
                a.e(pk('add', base + i, vp(base + i), vp(base + 8 + i)))
        a.e(f'buffer_store_dwordx4 v[{KB}:{KB+3}], v{T0}, {WS}, s{S_T1} offen sc1')
        set_exec(a, 0x00010001)
        a.e(f'buffer_store_dwordx4 v[{KB+16}:{KB+19}], v{T1}, {WS}, s{S_T2} offen sc1')
        a.e('s_mov_b64 exec, -1')
        a.e(f's_lshl_b32 s{S_T0}, s{S_L}, 11')
        a.e(f's_lshl_b32 s{S_T1}, s{S_CB2}, 7')
        a.e(f's_add_u32 s{S_T0}, s{S_T0}, s{S_T1}')
        a.e(f's_lshl_b32 s{S_T1}, s{S_W}, 6')
        a.e(f's_add_u32 s{S_T0}, s{S_T0}, s{S_T1}')
        a.e(f's_lshl_b32 s{S_T1}, s{S_G}, 3')
        a.e(f's_add_u32 s{S_T0}, s{S_T0}, s{S_T1}')
        a.e(f's_lshl_b32 s{S_T1}, s{S_RB2}, 2')
        a.e(f's_add_u32 s{S_T0}, s{S_T0}, s{S_T1}')
        a.e(f's_add_u32 s{S_T0}, s{S_T0}, {hex(KVF_OFF)}')
        a.e(f'v_mov_b32 v{V_X+4}, s{S_T0}')
        a.label(sk)
        a.vm = []
        stamp()
        if done('P1KV'): return True

        a.c('=== P1Q')
        QCS = V_ACC + 16
        a.e(f'v_and_b32 v{T1}, 0x30, v{V_LANE}')
        a.e(f'v_add_u32 v{T1}, {hex(CSC + 256)}, v{T1}')
        a.e(f'ds_read_b128 v[{QCS}:{QCS+3}], v{T1}')
        a.e(f'ds_read_b128 v[{QCS+4}:{QCS+7}], v{T1} offset:64')
        a.e('s_waitcnt lgkmcnt(0)')
        QAB = [(V_ACC + 24, V_ACC + 26), (V_ACC + 28, V_ACC + 30)]
        for r in range(2):
            a.e(f'v_mov_b32 v{QAB[r][0]}, v{KEEP[r][0]}')
            a.e(f'v_mov_b32 v{QAB[r][1]}, v{KEEP[r][1]}')
        def q_issue(j, t):
            if j == opt.kvflag_at and t == 1:
                fk = a.newlabel('KVFL')
                a.e(f's_cmp_lt_u32 s{S_W}, 2')
                a.e(f's_cbranch_scc0 {fk}')
                thr_value(a, S_THR, 1, xcc=True)
                a.e(f'v_mov_b32 v{V_X+5}, s{S_THR}')
                a.e('s_waitcnt vmcnt(0)')
                a.e('s_mov_b64 exec, 1')
                a.e(f'buffer_store_dword v{V_X+5}, v{V_X+4}, {WS}, 0 offen sc1')
                a.e('s_mov_b64 exec, -1')
                a.label(fk)
        emit_gemm16(a, bar, 'P1Q', slabs['P1Q'], 2, '64',
                    acc_of=lambda r, t: V_ACC + (r * 2 + t) * 4, a_of=lambda r, j: V_A + (r * 16 + j) * 4,
                    a_wait=lambda j: None, a_issue=q_issue, wr=96, S=8)
        for r in range(2):
            for t in range(2):
                emit_lnfold(a, V_ACC + (r * 2 + t) * 4, QCS + 4 * t, QAB[r][0], QAB[r][1], 4)
        emit_phi(a, [V_ACC + i for i in range(16)], 96)
        for r in range(2):
            for h in range(2):
                emit_pack(a, V_PQ + (r * 2 + h) * 2, V_ACC + (r * 2 + h) * 4, 4)
        stamp()
        sk = a.newlabel('MODE')
        a.e(f's_cmp_eq_u32 s{S_L}, 0')
        a.e(f's_cbranch_scc0 {sk}')
        a.e(f'v_and_b32 v{T1}, 31, v{V_LANE}')
        a.e(f'v_lshlrev_b32 v{T1}, 2, v{T1}')
        a.e(f's_lshl_b32 s{S_T0}, s{S_G}, 7')
        a.e(f's_add_u32 s{S_T0}, s{S_T0}, {hex(XID_OFF)}')
        emit_poll(a, T1, 0, soff=f's{S_T0}', opt=opt)
        a.e(f'v_and_b32 v{T2}, 7, v{T2}')
        a.e(f'v_cmp_eq_u32 vcc, s{S_XCC}, v{T2}')
        a.e('s_nop 1')
        a.e('s_cmp_eq_u64 vcc, -1')
        a.e(f's_cselect_b32 s{S_MODE}, 0, 1')
        if opt.force_safe: a.e(f's_mov_b32 s{S_MODE}, 1')
        a.label(sk)
        a.e(f's_lshl_b32 s{S_T0}, s{S_L}, 11')
        emit_poll(a, V_FKV, 1, soff=f's{S_T0}', opt=opt)
        stamp()
        a.e(f's_lshl_b32 s{S_T0}, s{S_CB2}, 4')
        a.e(f's_lshl_b32 s{S_T1}, s{S_W}, 2')
        a.e(f's_add_u32 s{S_T0}, s{S_T0}, s{S_T1}')
        a.e(f's_mul_i32 s{S_T0}, s{S_T0}, {KVREC}')
        a.e(f's_add_u32 s{S_T0}, s{S_T0}, s{S_LOFF}')
        a.e(f's_add_u32 s{S_T0}, s{S_T0}, {hex(KVP_OFF)}')
        a.e(f'v_lshlrev_b32 v{T0}, 4, v{V_LANE}')
        a.e(f'v_and_b32 v{T1}, 0x30, v{V_LANE}')
        PB = V_A
        for s4 in range(4):
            b = PB + 16 * s4
            a.vmem(f'buffer_load_dwordx4 v[{b}:{b+3}], v{T0}, {WS}, s{S_T0} offen sc1', 'kp')
            a.vmem(f'buffer_load_dwordx4 v[{b+4}:{b+7}], v{T0}, {WS}, s{S_T0} offen offset:1024 sc1', 'kp')
            a.vmem(f'buffer_load_dwordx4 v[{b+8}:{b+11}], v{T1}, {WS}, s{S_T0} offen offset:2048 sc1', 'kp')
            a.vmem(f'buffer_load_dwordx4 v[{b+12}:{b+15}], v{T1}, {WS}, s{S_T0} offen offset:2112 sc1', 'kp')
            if s4 < 3: a.e(f's_add_u32 s{S_T0}, s{S_T0}, {KVREC}')
        a.e(f's_lshl_b32 s{S_T0}, s{S_W}, 11')
        a.e(f's_add_u32 s{S_T0}, s{S_T0}, {hex(SCR)}')
        a.e(f'v_add_u32 v{T0}, s{S_T0}, v{T0}')
        a.e(f's_lshl_b32 s{S_T0}, s{S_W}, 7')
        a.e(f's_add_u32 s{S_T0}, s{S_T0}, {hex(SCR + 8192)}')
        a.e(f'v_add_u32 v{T2}, s{S_T0}, v{T1}')
        a.wait_vm_all()
        for i in range(0, 16, 2):
            a.e(pk('add', PB + i, vp(PB + i), vp(PB + 16 + i)))
            a.e(pk('add', PB + 32 + i, vp(PB + 32 + i), vp(PB + 48 + i)))
        for i in range(0, 16, 2):
            a.e(pk('add', PB + i, vp(PB + i), vp(PB + 32 + i)))
        a.e(f'ds_write_b128 v{T0}, v[{PB}:{PB+3}]')
        a.e(f'ds_write_b128 v{T0}, v[{PB+4}:{PB+7}] offset:1024')
        set_exec(a, 0x00010001)
        a.e(f'ds_write_b128 v{T2}, v[{PB+8}:{PB+11}]')
        a.e(f'ds_write_b128 v{T2}, v[{PB+12}:{PB+15}] offset:64')
        a.e('s_mov_b64 exec, -1')
        a.e(f'v_lshlrev_b32 v{T0}, 4, v{V_LANE}')
        a.e(f'v_add_u32 v{T0}, {hex(SCR)}, v{T0}')
        a.e(f'v_add_u32 v{T2}, {hex(SCR + 8192)}, v{T1}')
        a.e('s_waitcnt lgkmcnt(0)')
        bar(('X', 'X2'))
        RB = V_A + 64
        for ww in range(4):
            b = RB + 16 * ww
            a.e(f'ds_read_b128 v[{b}:{b+3}], v{T0} offset:{ww*2048}')
            a.e(f'ds_read_b128 v[{b+4}:{b+7}], v{T0} offset:{ww*2048+1024}')
            a.e(f'ds_read_b128 v[{b+8}:{b+11}], v{T2} offset:{ww*128}')
            a.e(f'ds_read_b128 v[{b+12}:{b+15}], v{T2} offset:{ww*128+64}')
            if ww == 2: a.e('s_waitcnt lgkmcnt(8)')
        a.e('s_waitcnt lgkmcnt(0)')
        for i in range(0, 16, 2):
            a.e(pk('add', RB + i, vp(RB + i), vp(RB + 16 + i)))
            a.e(pk('add', RB + 32 + i, vp(RB + 32 + i), vp(RB + 48 + i)))
        for i in range(0, 16, 2):
            a.e(pk('add', RB + i, vp(RB + i), vp(RB + 32 + i)))
        OPB = V_ACC + 16
        emit_pack(a, OPB, RB, 16)
        a.e('s_nop 1')
        NUM = V_A; DEN = V_A + 16
        for r in range(2):
            for h in range(2):
                pq = V_PQ + (r * 2 + h) * 2
                n_ = NUM + (r * 2 + h) * 4; d_ = DEN + (r * 2 + h) * 4
                a.e(f'v_mfma_f32_16x16x16_bf16 v[{n_}:{n_+3}], v[{OPB+2*h}:{OPB+2*h+1}], v[{pq}:{pq+1}], 0')
                a.e(f'v_mfma_f32_16x16x16_bf16 v[{d_}:{d_+3}], v[{OPB+4+2*h}:{OPB+4+2*h+1}], v[{pq}:{pq+1}], 0')
        a.e(f's_lshl_b32 s{S_T0}, s{S_CB2}, 10')
        a.e(f's_add_u32 s{S_T0}, s{S_T0}, s{S_GH}')
        a.e(f's_add_u32 s{S_T1}, s{S_T0}, 0x4000')
        a.e('s_nop 4')
        for k in range(4): a.e(f'v_add_f32 v{DEN+4*k}, s{S_EPS6}, v{DEN+4*k}')
        for k in range(4): a.e(f'v_rcp_f32 v{DEN+4*k}, v{DEN+4*k}')
        a.e('s_nop 0')
        for k in range(4):
            for i in range(4): a.e(f'v_mul_f32 v{NUM+4*k+i}, v{NUM+4*k+i}, v{DEN+4*k}')
        OPK = V_A + 32
        emit_pack(a, OPK, NUM, 16)
        emit_mode_stores(a, [f'buffer_store_dwordx4 v[{OPK}:{OPK+3}], v{V_AB}, {WS}, s{S_T0} offen',
                             f'buffer_store_dwordx4 v[{OPK+4}:{OPK+7}], v{V_AB}, {WS}, s{S_T1} offen'], cold=True)
        emit_signal(a, ep(1))
        stamp()
        if done('P1Q'): return True

        ACC = V_ACC; WR = 80; TMP = V_A
        def small_gemm(phase, vaddr, base, tail=None, gh=False):
            def pieces(c):
                va = vaddr[c] if isinstance(vaddr, list) else vaddr
                out = []
                state = {'last': None}
                def mk(k):
                    def f():
                        if k == 0:
                            a.e(f's_add_u32 m0, s{S_W4K}, {hex(AREG + (c % 4) * 16384)}')
                        if phase != 'P7':
                            if k == 0:
                                a.e(f's_add_u32 s{S_T0}, s{S_RA+c}, {hex(base)}')
                                if gh: a.e(f's_add_u32 s{S_T0}, s{S_T0}, s{S_GH}')
                        else:
                            p_, i_ = divmod(4 * c + k, 7)
                            const = base + (i_ - k) * 1024
                            if state['last'] != (p_, const):
                                a.e(f's_add_u32 s{S_T0}, s{S_P7+p_}, {hex(const & 0xffffffff)}')
                                state['last'] = (p_, const)
                        a.vmem(f'buffer_load_dwordx4 v{va}, {WS}, s{S_T0} offen offset:{k*1024} sc1 lds', ('A', c))
                    return f
                return [mk(k) for k in range(4)]
            a.fstamp(phase)
            emit_gemm32(a, bar, phase, slabs[phase], pieces, ACC, WR, tail=tail)
        def tile_store(pkb, base, gh=False, cold=False):
            soff(S_T0, base, gh=gh)
            emit_mode_stores(a, [f'buffer_store_dwordx4 v[{pkb}:{pkb+3}], v{V_TST}, {WS}, s{S_T0} offen',
                                 f'buffer_store_dwordx4 v[{pkb+4}:{pkb+7}], v{V_TST}, {WS}, s{S_T0} offen offset:512'], cold=cold)

        a.c('=== P3')
        emit_poll(a, V_FBS, ep(1), opt=opt)
        stamp()
        small_gemm('P3', V_AS, A0_OFF, gh=True)
        stamp()
        for i in range(0, 16, 2): a.e(pk('add', V_RES + i, vp(V_RES + i), vp(ACC + i)))
        emit_pack32(a, TMP, V_RES)
        tile_store(TMP, A1_OFF, cold=True)
        soff(S_T1, ST_OFF)
        emit_stats_partial32(a, V_RES, TMP + 8, f's{S_T1}', cold=True)
        emit_signal(a, ep(2))
        stamp()
        if done('P3'): return True

        a.c('=== P4')
        CS4 = TMP + 16; RAW = TMP + 32
        a.e(f'v_lshrrev_b32 v{T1}, 5, v{V_LANE}')
        a.e(f'v_lshlrev_b32 v{T1}, 4, v{T1}')
        a.e(f's_lshl_b32 s{S_T1}, s{S_CH}, 7')
        a.e(f's_add_u32 s{S_T1}, s{S_T1}, {hex(CSC + 384)}')
        a.e(f'v_add_u32 v{T1}, s{S_T1}, v{T1}')
        for j in range(4):
            a.e(f'ds_read_b128 v[{CS4+4*j}:{CS4+4*j+3}], v{T1} offset:{32*j}')
        a.e('s_waitcnt lgkmcnt(0)')
        emit_poll(a, V_FSS, ep(2), opt=opt)
        stamp()
        def p4_tail():
            soff(S_T0, ST_OFF)
            for k in range(4):
                a.vmem(f'buffer_load_dwordx4 v[{RAW+4*k}:{RAW+4*k+3}], v{V_STS}, {WS}, s{S_T0} offen offset:{16*k} sc1', 'st')
        small_gemm('P4', V_AS, A1_OFF, tail=p4_tail)
        stamp()
        a.wait_vm_all()
        emit_sum_partials(a, RAW, 16)
        emit_xreduce(a, [RAW, RAW + 1], [RAW + 2, RAW + 3], over16=False)
        emit_stats_from_sums(a, RAW, RAW + 1, RAW + 4, RAW + 6, RAW + 8, double=True, keep=(V_MEAN, V_RS))
        emit_lnfold(a, ACC, CS4, RAW + 4, RAW + 6, 16)
        emit_gelu(a, ACC, 16, TMP + 48, V_PQ)
        emit_pack32(a, TMP, ACC)
        tile_store(TMP, A0_OFF, gh=True)
        gl = a.newlabel('GH'); gu = a.newlabel('GH'); gd = a.newlabel('GH')
        a.e(f's_cmp_eq_u32 s{S_RB}, 3')
        a.e(f's_cbranch_scc0 {gu}')
        a.e(f's_cmp_eq_u32 s{S_RH}, 1')
        a.e(f's_cbranch_scc0 {gd}')
        a.e(f's_bitcmp1_b32 s{S_CB}, 1')
        a.e(f's_cbranch_scc1 {gd}')
        a.e(f's_cmp_eq_u32 s{S_G}, 7')
        a.e(f's_cbranch_scc1 {gd}')
        a.e(f's_add_u32 s{S_T1}, s{S_G}, 1')
        a.e(f's_mul_i32 s{S_T2}, s{S_T1}, {18*16384}')
        a.e(f's_lshl_b32 s{S_T3}, s{S_T1}, 8')
        set_exec(a, 0xc0000000)
        a.e(f's_branch {gl}')
        a.label(gu)
        a.e(f's_cmp_eq_u32 s{S_RB}, 0')
        a.e(f's_cbranch_scc0 {gd}')
        a.e(f's_cmp_eq_u32 s{S_RH}, 0')
        a.e(f's_cbranch_scc0 {gd}')
        a.e(f's_bitcmp1_b32 s{S_CB}, 1')
        a.e(f's_cbranch_scc0 {gd}')
        a.e(f's_cmp_eq_u32 s{S_G}, 0')
        a.e(f's_cbranch_scc1 {gd}')
        a.e(f's_sub_u32 s{S_T1}, s{S_G}, 1')
        a.e(f's_mul_i32 s{S_T2}, s{S_T1}, {18*16384}')
        a.e(f's_add_u32 s{S_T2}, s{S_T2}, {17*16384}')
        a.e(f's_lshl_b32 s{S_T3}, s{S_T1}, 8')
        a.e(f's_add_u32 s{S_T3}, s{S_T3}, 128')
        set_exec(a, 0x00000003)
        a.label(gl)
        a.e(f's_lshl_b32 s{S_T0}, s{S_CB}, 1')
        a.e(f's_add_u32 s{S_T0}, s{S_T0}, s{S_CH}')
        a.e(f's_lshl_b32 s{S_T0}, s{S_T0}, 10')
        a.e(f's_add_u32 s{S_T2}, s{S_T2}, s{S_T0}')
        a.e(f'v_and_b32 v{T0}, 0x3fff, v{V_TST}')
        a.e(f'v_and_b32 v{T0}, 0x3ff, v{T0}')
        a.e(f'buffer_store_dwordx4 v[{TMP}:{TMP+3}], v{T0}, {WS}, s{S_T2} offen sc1')
        a.e(f'buffer_store_dwordx4 v[{TMP+4}:{TMP+7}], v{T0}, {WS}, s{S_T2} offen offset:512 sc1')
        a.e('s_mov_b64 exec, -1')
        a.e(f's_and_b32 s{S_T0}, s{S_CB}, 1')
        a.e(f's_lshr_b32 s{S_T1}, s{S_CB}, 2')
        a.e(f's_lshl_b32 s{S_T1}, s{S_T1}, 1')
        a.e(f's_add_u32 s{S_T0}, s{S_T0}, s{S_T1}')
        a.e(f's_lshl_b32 s{S_T0}, s{S_T0}, 1')
        a.e(f's_add_u32 s{S_T0}, s{S_T0}, s{S_CH}')
        a.e(f's_lshl_b32 s{S_T0}, s{S_T0}, 2')
        a.e(f's_add_u32 s{S_T3}, s{S_T3}, s{S_T0}')
        a.e(f's_lshl_b32 s{S_T0}, s{S_L}, 11')
        a.e(f's_add_u32 s{S_T3}, s{S_T3}, s{S_T0}')
        a.e(f's_add_u32 s{S_T3}, s{S_T3}, {hex(HF_OFF)}')
        thr_value(a, S_THR, ep(3), xcc=True)
        a.e(f'v_mov_b32 v{T0}, s{S_T3}')
        a.e(f'v_mov_b32 v{T1}, s{S_THR}')
        a.e('s_waitcnt vmcnt(0)')
        a.e('s_mov_b64 exec, 1')
        a.e(f'buffer_store_dword v{T1}, v{T0}, {WS}, 0 offen sc1')
        a.e('s_mov_b64 exec, -1')
        a.label(gd)
        emit_signal(a, ep(3))
        stamp()
        if done('P4'): return True

        a.c('=== P5')
        emit_poll(a, V_FH, ep(3), opt=opt)
        stamp()
        small_gemm('P5', [V_AH + k for k in range(4)], A0_OFF)
        stamp()
        a.e(f'v_mul_f32 v{TMP+10}, v{V_MEAN}, v{V_RS}')
        a.e(f'v_sub_f32 v{TMP+10}, 0, v{TMP+10}')
        a.e(f'v_mov_b32 v{TMP+8}, v{V_RS}')
        for i in range(0, 16, 2):
            a.e(pk('fma', ACC + i, vp(V_RES + i), vp(TMP + 8), vp(ACC + i), mods=' op_sel_hi:[1,0,1]'))
        for i in range(0, 16, 2):
            a.e(pk('add', ACC + i, vp(ACC + i), vp(TMP + 10), mods=' op_sel_hi:[1,0]'))
        emit_pack32(a, TMP, ACC)
        tile_store(TMP, A1_OFF)
        soff(S_T1, ST_OFF)
        emit_stats_partial32(a, ACC, TMP + 12, f's{S_T1}')
        for i in range(0, 16, 2): a.e(pk('add', V_RES + i, vp(V_RES + i), vp(ACC + i)))
        emit_signal(a, ep(4))
        stamp()
        if done('P5'): return True

        a.c('=== P6')
        CS6 = V_ACC; ACC6 = 192; WR6 = 96
        a.e(f'v_and_b32 v{T1}, 0x30, v{V_LANE}')
        a.e(f'v_add_u32 v{T1}, {hex(CSC + 640)}, v{T1}')
        for t in range(7):
            a.e(f'ds_read_b128 v[{CS6+4*t}:{CS6+4*t+3}], v{T1} offset:{64*t}')
        a.e('s_waitcnt lgkmcnt(0)')
        emit_poll(a, V_FSB, ep(4), opt=opt)
        stamp()
        def p6_load(j):
            a.e(f's_lshl_b32 s{S_T0}, s{S_RB2}, {13 if opt.rot else 31}')
            if not opt.rot: a.e(f's_mov_b32 s{S_T0}, 0')
            a.e(f's_xor_b32 s{S_T0}, s{S_T0}, {hex((j // 4) * 4096)}')
            a.e(f's_add_u32 s{S_T0}, s{S_T0}, {hex(A1_OFF)}')
            a.e(f's_add_u32 s{S_T1}, s{S_T0}, 0x4000')
            for r in range(2):
                d = V_A + ((j % 8) * 2 + r) * 4
                a.vmem(f'buffer_load_dwordx4 v[{d}:{d+3}], v{V_AB}, {WS}, s{S_T0 if r == 0 else S_T1} offen offset:{(j%4)*1024} sc1', ('A', j))
        RAW6 = [V_PQ, 248]
        def p6_issue(j, t):
            if t == 1:
                if j + opt.D_p6 < 16:
                    p6_load(j + opt.D_p6)
                elif j + opt.D_p6 == 16:
                    soff(S_T0, ST_OFF)
                    for r in range(2):
                        a.vmem(f'buffer_load_dwordx4 v[{RAW6[r]}:{RAW6[r]+3}], v{V_STB}, {WS}, s{S_T0} offen offset:{2048*r} sc1', 'st')
                        a.vmem(f'buffer_load_dwordx4 v[{RAW6[r]+4}:{RAW6[r]+7}], v{V_STB}, {WS}, s{S_T0} offen offset:{2048*r+16} sc1', 'st')
        a.fstamp('P6')
        for j in range(opt.D_p6): p6_load(j)
        emit_gemm16(a, bar, 'P6', slabs['P6'], 7, '224',
                    acc_of=lambda r, t: ACC6 + (r * 7 + t) * 4, a_of=lambda r, j: V_A + ((j % 8) * 2 + r) * 4,
                    a_wait=lambda j: a.count_vm(('A', j)), a_issue=p6_issue, wr=WR6, S=8)
        stamp()
        a.wait_vm_all()
        for r in range(2): emit_sum_partials(a, RAW6[r], 8)
        emit_xreduce(a, [RAW6[0], RAW6[0] + 1, RAW6[1], RAW6[1] + 1], [V_X, V_X + 1, V_X + 2, V_X + 3])
        AB6 = [(92, 94), (RAW6[1] + 4, RAW6[1] + 6)]
        for r in range(2):
            emit_stats_from_sums(a, RAW6[r], RAW6[r] + 1, AB6[r][0], AB6[r][1], V_X)
        a.e(f's_lshl_b32 s{S_T0}, s{S_G}, 4')
        a.e(f's_lshl_b32 s{S_T1}, s{S_RB2}, 3')
        a.e(f's_add_u32 s{S_T0}, s{S_T0}, s{S_T1}')
        a.e(f's_lshl_b32 s{S_T1}, s{S_W}, 1')
        a.e(f's_add_u32 s{S_T0}, s{S_T0}, s{S_T1}')
        a.e(f's_mul_i32 s{S_T0}, s{S_T0}, 57344')
        a.e(f's_lshr_b32 s{S_T1}, s{S_CB2}, 1')
        a.e(f's_mul_i32 s{S_T1}, s{S_T1}, 7168')
        a.e(f's_add_u32 s{S_T0}, s{S_T0}, s{S_T1}')
        a.e(f's_add_u32 s{S_T0}, s{S_T0}, {hex(G_OFF)}')
        a.e(f's_and_b32 s{S_T1}, s{S_CB2}, 1')
        a.e(f's_mul_i32 s{S_U0}, s{S_T1}, 3072')
        a.e(f's_add_u32 s{S_U0}, s{S_U0}, s{S_T0}')
        a.e(f's_add_u32 s{S_U1}, s{S_U0}, 57344')
        a.e(f's_lshl_b32 s{S_T1}, s{S_T1}, 3')
        a.e(f's_add_u32 s{S_U2}, s{S_T0}, s{S_T1}')
        a.e(f's_add_u32 s{S_U2}, s{S_U2}, 6144')
        a.e(f's_add_u32 s{S_U3}, s{S_U2}, 57344')
        a.e(f'v_lshlrev_b32 v{V_X+4}, 4, v{V_LANE}')
        for r in range(2):
            emit_lnfold(a, ACC6 + r * 28, CS6, AB6[r][0], AB6[r][1], 28)
            emit_gelu(a, ACC6 + r * 28, 28, V_A, V_PQ + 4)
            pkb = V_A + 16 + r * 16
            emit_pack(a, pkb, ACC6 + r * 28, 28)
            st = [f'buffer_store_dwordx4 v[{pkb+4*j}:{pkb+4*j+3}], v{V_X+4}, {WS}, s{S_U0+r} offen offset:{1024*j}' for j in range(3)]
            st.append(f'buffer_store_dwordx2 v[{pkb+12}:{pkb+13}], v{V_X+4}, {WS}, s{S_U2+r} offen')
            emit_mode_stores(a, st, cold=bool(opt.g_cold))
        emit_signal(a, ep(5))
        stamp()
        if done('P6'): return True

        a.c('=== P7')
        emit_poll(a, V_FBS, ep(5), opt=opt)
        stamp()
        small_gemm('P7', V_AG, G_OFF)
        stamp()
        for i in range(0, 16, 2): a.e(pk('add', V_RES + i, vp(V_RES + i), vp(ACC + i)))
        emit_pack32(a, TMP, V_RES)
        return False

    stopped = run_layer()
    if not stopped:
        fin = a.newlabel('FIN'); TMP = V_A
        a.e(f's_cmp_eq_u32 s{S_L}, 1')
        a.e(f's_cbranch_scc1 {fin}')
        a.e(f's_mov_b32 s{S_T0}, {hex(A2_OFF)}')
        emit_mode_stores(a, [f'buffer_store_dwordx4 v[{TMP}:{TMP+3}], v{V_TST}, {WS}, s{S_T0} offen',
                             f'buffer_store_dwordx4 v[{TMP+4}:{TMP+7}], v{V_TST}, {WS}, s{S_T0} offen offset:512'], cold=True)
        a.e(f's_mov_b32 s{S_T1}, {hex(ST_OFF)}')
        emit_stats_partial32(a, V_RES, TMP + 8, f's{S_T1}')
        a.e(f's_add_u32 s{S_EP}, s{S_EP}, 6')
        emit_signal(a, f's{S_EP}')
        if opt.timing:
            dump([tmreg(i) for i in range(tm[0])])
        a.e(f's_mov_b32 s{S_L}, 1')
        a.e(f's_mov_b32 s{S_LOFF}, {hex(KVP_L)}')
        a.e(f's_mov_b32 s{S_COLD}, s{S_MODE}')
        for i in range(3): a.e(f's_mov_b32 s{S_PA+i}, s{S_WS+i}')
        a.e(f's_mov_b32 s{S_PA+3}, 0x20000')
        a.e(f'v_mov_b32 v{V_P1}, v{V_AB}')
        for c in range(4):
            a.e(f's_xor_b32 s{S_RK+c}, s{S_ROTK}, {c}')
            a.e(f's_lshl_b32 s{S_RK+c}, s{S_RK+c}, 12')
            a.e(f's_add_u32 s{S_RK+c}, s{S_RK+c}, {hex(A2_OFF)}')
        a.e(f's_mov_b32 s{S_ASTR}, 1024')
        emit_fh()
        a.e(f's_branch {LOOP}')
        a.label(fin)
        emit_pack(a, TMP, V_RES, 16)
        OS = f's[{S_OUT}:{S_OUT+3}]'
        for j in range(4):
            a.e(f'buffer_store_dwordx2 v[{TMP+2*j}:{TMP+2*j+1}], v{V_XRM}, {OS}, 0 offen offset:{16*j}')
    a.label('L_END_COMPUTE')
    nn = a.newlabel('NON')
    a.e(f's_or_b32 s{S_T0}, s2, s{S_W}')
    a.e(f's_cmp_eq_u32 s{S_T0}, 0')
    a.e(f's_cbranch_scc0 {nn}')
    a.e(f's_add_u32 s{S_T0}, s{S_V}, 1')
    a.e(f'v_mov_b32 v{V_T0}, s{S_T0}')
    a.e(f'v_mov_b32 v{V_T1}, {hex(NONCE_OFF)}')
    a.e('s_mov_b64 exec, 1')
    a.e(f'buffer_store_dword v{V_T0}, v{V_T1}, {WS}, 0 offen')
    a.e('s_mov_b64 exec, -1')
    a.label(nn)
    stamp()
    if opt.timing: dump([tmreg(i) for i in range(tm[0])] + ([85] if False else []))
    if opt.fine: dump([freg(i) for i in range(fs[0])])
    a.e('s_waitcnt vmcnt(0)')
    a.e('s_endpgm')
    return evq


def gen_loader(a, opt, events):
    VN, VKV, VQ, VW3, VKVn, VQn = 8, 12, 16, 20, 28, 32
    VT0, VT1, VT2, VT3 = 1, 2, 3, 4
    a.c('--- loader setup')
    def srd(s, p, size):
        a.e(f's_mov_b32 s{s}, s{p}'); a.e(f's_mov_b32 s{s+1}, s{p+1}')
        a.e(f's_mov_b32 s{s+2}, {hex(size)}'); a.e(f's_mov_b32 s{s+3}, 0x20000')
    srd(S_WQKV, S_PTR + 2, 512 * 1536 * 2)
    srd(S_WO, S_PTR + 4, 512 * 512 * 2)
    srd(S_W1, S_PTR + 8, 512 * 512 * 2)
    srd(S_W2, S_PTR + 10, 512 * 512 * 2)
    srd(S_W3, S_PTR + 12, 512 * 1792 * 2)
    srd(S_W4, S_PTR + 14, 1792 * 512 * 2)
    CBS, CBK, CB6, CB7 = 64, 68, 72, 76
    a.e(f's_lshl_b32 s{S_T1}, s{S_RB2}, 1')
    a.e(f's_add_u32 s{S_T1}, s{S_T1}, s{S_CB2}')
    a.e(f's_and_b32 s{S_T1}, s{S_T1}, {3 if opt.rot else 0}')
    for c in range(4):
        a.e(f's_xor_b32 s{CBK+c}, s{S_T1}, {c}')
        a.e(f's_mul_i32 s{CBK+c}, s{CBK+c}, {128*3072}')
    def late_tables():
        rm = 3 if opt.rot else 0
        for c in range(4):
            a.e(f's_and_b32 s{CBS+c}, s{S_RB}, {rm}')
            a.e(f's_xor_b32 s{CBS+c}, s{CBS+c}, {c}')
            a.e(f's_lshl_b32 s{CBS+c}, s{CBS+c}, 17')
            a.e(f's_lshl_b32 s{CB6+c}, s{S_RB2}, 1')
            a.e(f's_and_b32 s{CB6+c}, s{CB6+c}, {rm}')
            a.e(f's_xor_b32 s{CB6+c}, s{CB6+c}, {c}')
            a.e(f's_mul_i32 s{CB6+c}, s{CB6+c}, {128*3584}')
        for p_ in range(8):
            a.e(f's_and_b32 s{CB7+p_}, s{S_RB}, {rm}')
            a.e(f's_lshl_b32 s{CB7+p_}, s{CB7+p_}, 1')
            a.e(f's_xor_b32 s{CB7+p_}, s{CB7+p_}, {p_}')
            a.e(f's_mul_i32 s{CB7+p_}, s{CB7+p_}, {224*1024}')

    def cs_issue():
        a.c('cs pieces')
        c1 = a.newlabel('CS'); c2 = a.newlabel('CS'); c3 = a.newlabel('CS')
        a.e(f's_min_u32 s{92}, s2, 239')
        a.e(f's_lshr_b32 s{93}, s{92}, 2')
        a.e(f's_and_b32 s{94}, s{92}, 3')
        a.e(f's_cmp_lt_u32 s{93}, 24')
        a.e(f's_cbranch_scc0 {c1}')
        for i in range(3): a.e(f's_mov_b32 s{S_CSRD+i}, s{S_WQKV+i}')
        a.e(f's_mov_b32 s{S_T0}, 3072')
        a.e(f's_lshl_b32 s{S_T1}, s{93}, 7')
        a.e(f's_branch {c3}')
        a.label(c1)
        a.e(f's_cmp_lt_u32 s{93}, 32')
        a.e(f's_cbranch_scc0 {c2}')
        for i in range(3): a.e(f's_mov_b32 s{S_CSRD+i}, s{S_W1+i}')
        a.e(f's_mov_b32 s{S_T0}, 1024')
        a.e(f's_sub_u32 s{S_T1}, s{93}, 24')
        a.e(f's_lshl_b32 s{S_T1}, s{S_T1}, 7')
        a.e(f's_branch {c3}')
        a.label(c2)
        for i in range(3): a.e(f's_mov_b32 s{S_CSRD+i}, s{S_W3+i}')
        a.e(f's_mov_b32 s{S_T0}, 3584')
        a.e(f's_sub_u32 s{S_T1}, s{93}, 32')
        a.e(f's_lshl_b32 s{S_T1}, s{S_T1}, 7')
        a.label(c3)
        a.e(f's_mov_b32 s{S_CSRD+3}, 0x20000')
        a.e(f'v_lshrrev_b32 v{VT1}, 3, v{V_LANE}')
        a.e(f'v_mul_lo_u32 v{VT1}, v{VT1}, s{S_T0}')
        a.e(f'v_and_b32 v{VT2}, 7, v{V_LANE}')
        a.e(f'v_lshl_add_u32 v{VT1}, v{VT2}, 4, v{VT1}')
        a.e(f'v_add_u32 v{VT1}, s{S_T1}, v{VT1}')
        a.e(f's_lshl_b32 s{S_T1}, s{94}, 7')
        a.e(f's_mul_i32 s{S_T1}, s{S_T1}, s{S_T0}')
        a.e(f's_lshl_b32 s{S_T0}, s{S_T0}, 3')
        a.e(f's_mov_b32 m0, {hex(CSL)}')
        for p in range(16):
            a.e('s_nop 0')
            a.vmem(f'buffer_load_dwordx4 v{VT1}, s[{S_CSRD}:{S_CSRD+3}], s{S_T1} offen lds', 'cs')
            if p < 15:
                a.e('s_add_u32 m0, m0, 1024')
                a.e(f's_add_u32 s{S_T1}, s{S_T1}, s{S_T0}')
    dg = [0]
    def dstamp():
        if opt.startdiag:
            a.e(f's_memtime s[{84+2*dg[0]}:{85+2*dg[0]}]') if False else None
            a.e('s_memtime s[98:99]'); a.e('s_waitcnt lgkmcnt(0)')
            a.e('s_sub_u32 s98, s98, s100')
            a.e(f'v_mov_b32 v{100+dg[0]}, s98'); dg[0] += 1
    dstamp()
    a.e(f'v_lshrrev_b32 v{VT0}, 3, v{V_LANE}')
    a.e(f'v_bfe_u32 v{VT1}, v{VT0}, 1, 2')
    a.e(f'v_lshlrev_b32 v{VT1}, 1, v{VT1}')
    a.e(f'v_and_b32 v{VT2}, 7, v{V_LANE}')
    a.e(f'v_xor_b32 v{VT2}, v{VT2}, v{VT1}')
    a.e(f'v_and_b32 v{VT1}, 3, v{VT2}')
    a.e(f'v_lshlrev_b32 v{VT3}, 4, v{VT1}')
    a.e(f'v_lshrrev_b32 v{VT1}, 2, v{VT2}')
    a.e(f'v_lshl_add_u32 v{VT3}, v{VT1}, 10, v{VT3}')
    a.e(f's_lshl_b32 s{S_T0}, s{S_CB2}, 6')
    a.e(f's_add_u32 s{S_T1}, s{S_T0}, 1024')
    a.e(f'v_add_u32 v{VT3}, s{S_T1}, v{VT3}')
    a.e(f'v_lshrrev_b32 v{VT1}, 2, v{VT0}')
    a.e(f'v_lshlrev_b32 v{VT1}, 3, v{VT1}')
    a.e(f'v_and_b32 v{VT2}, 3, v{VT0}')
    a.e(f'v_add_u32 v{VT1}, v{VT1}, v{VT2}')
    a.e(f'v_mul_u32_u24 v{VT1}, 3072, v{VT1}')
    a.e(f'v_add_u32 v{VT1}, v{VT1}, v{VT3}')
    for p in range(4):
        off = (16 * (p & 1) + 4 * (p >> 1)) * 3072 - p * 1024
        a.e(f'v_add_u32 v{VKVn+p}, {hex(off & 0xffffffff)}, v{VT1}')
    a.e(f'v_mul_u32_u24 v{VKV}, 3072, v{VT0}')
    a.e(f'v_add_u32 v{VKV}, v{VKV}, v{VT3}')
    for j in range(1, 4): a.e(f'v_add_u32 v{VKV+j}, {hex(j*(8*3072-1024))}, v{VKV}')

    layers = sorted(set(e[0] for e in events))
    slabs = {L: build_slabs(L) for L in layers}
    stream = []
    needed = set((e[0], e[2], e[3]) for e in events if e[1] == 'B')
    for L in layers:
        for p in PHASES:
            for ci, ch in enumerate(slabs[L][p]):
                if (L, p, ci) in needed: stream += ch
    released = set()
    log = []; cur = ['start']
    opt._log = log
    st = {'issued': 0}
    win = [opt.window0]
    def overlaps_unreleased(s, idx):
        for k in range(idx):
            o = stream[k]
            if (o.layer, o.phase, o.chunk) in released: continue
            if o.addr < s.addr + s.size and s.addr < o.addr + o.size: return True
        return False
    def emit_slab(s):
        kind = s.kind; tag = (s.layer, s.phase, s.chunk)
        if kind in ('WO', 'W1', 'W2', 'W4'):
            srd_ = {'WO': S_WO, 'W1': S_W1, 'W2': S_W2, 'W4': S_W4}[kind]; vb = VN; rs = 1024
        elif kind == 'KV': srd_, vb, rs = S_WQKV, (VKVn if s.layer == 0 else VKV), 3072
        elif kind == 'Q': srd_, vb, rs = S_WQKV, (VQn if s.layer == 0 else VQ), 3072
        else: srd_, vb, rs = S_W3, VW3, 3584
        R4 = f's[{srd_}:{srd_+3}]'
        def grp(addr, srow, ps, v0):
            a.e(f's_mov_b32 m0, {hex(addr)}')
            if kind == 'W4':
                p_, rr_ = divmod(srow, 224); tb_ = CB7 + p_
            else:
                c_, rr_ = divmod(srow, 128); tb_ = {'KV': CBK, 'Q': CBK, 'W3': CB6}.get(kind, CBS) + c_
            a.e(f's_add_u32 s{S_T0}, s{tb_}, {hex(rr_*rs)}')
            for k, p in enumerate(ps):
                a.vmem(f'buffer_load_dwordx4 v{vb+p}, {R4}, s{S_T0} offen offset:{k*1024} {"nt " if opt.w_nt else ""}lds', tag)
        if kind == 'W3':
            grp(s.addr, s.srow, [0, 1, 2, 3], 0); grp(s.addr + 4096, s.srow, [4, 5, 6], 0)
        elif kind == 'W4' and s.srow2 != s.srow + 16:
            grp(s.addr, s.srow, [0, 1], 0); grp(s.addr + 2048, s.srow2, [0, 1], 0)
        else:
            grp(s.addr, s.srow, [0, 1, 2, 3], 0)
        if len(a.vm) > win[0]:
            a.e(f's_waitcnt vmcnt({win[0]})')
            a.vm = a.vm[len(a.vm) - win[0]:]
    def issue(cap, must=None):
        n = 0
        while st['issued'] < len(stream):
            s = stream[st['issued']]
            forced = must is not None and any((o.layer, o.phase, o.chunk) == must for o in stream[st['issued']:])
            if not forced and n + s.npieces > cap: break
            if overlaps_unreleased(s, st['issued']):
                assert not forced, ('deadlock', must, s.layer, s.phase, s.chunk)
                break
            emit_slab(s); st['issued'] += 1; n += s.npieces
            log.append((cur[0], s.layer, s.phase, s.chunk, forced))
    issue(32)
    dstamp()
    cs_issue()
    dstamp()
    a.e('s_waitcnt lgkmcnt(0)')
    a.e(f's_mul_i32 s{S_B}, s{S_V}, 0x9e3779b1')
    a.e(f's_add_u32 s{S_B}, s{S_B}, 0x7f4a7c15')
    a.e(f's_and_b32 s{S_B}, s{S_B}, 0xffffff00')
    a.e(f's_lshl_b32 s{S_T0}, s{S_G}, 7')
    a.e(f's_lshl_b32 s{S_T1}, s{S_R}, 2')
    a.e(f's_add_u32 s{S_T0}, s{S_T0}, s{S_T1}')
    a.e(f's_add_u32 s{S_T0}, s{S_T0}, {hex(XID_OFF)}')
    a.e(f'v_mov_b32 v{VT1}, s{S_T0}')
    a.e(f's_add_u32 s{S_T1}, s{S_B}, s{S_XCC}')
    a.e(f'v_mov_b32 v{VT0}, s{S_T1}')
    a.e('s_mov_b64 exec, 1')
    a.vmem(f'buffer_store_dword v{VT0}, v{VT1}, {WS}, 0 offen sc1', 'xid')
    a.e('s_mov_b64 exec, -1')
    late_tables()
    a.c('W lane offsets')
    a.e(f'v_lshrrev_b32 v{VT0}, 3, v{V_LANE}')
    a.e(f'v_bfe_u32 v{VT1}, v{VT0}, 1, 1')
    a.e(f'v_lshlrev_b32 v{VT1}, 2, v{VT1}')
    a.e(f'v_and_b32 v{VT2}, 7, v{V_LANE}')
    a.e(f'v_xor_b32 v{VT2}, v{VT2}, v{VT1}')
    a.e(f'v_lshlrev_b32 v{VN}, 10, v{VT0}')
    a.e(f'v_lshl_add_u32 v{VN}, v{VT2}, 4, v{VN}')
    a.e(f's_lshl_b32 s{S_T0}, s{S_CB}, 7')
    a.e(f'v_add_u32 v{VN}, s{S_T0}, v{VN}')
    for j in range(1, 4): a.e(f'v_add_u32 v{VN+j}, {hex(j*(8192-1024))}, v{VN}')
    a.e(f'v_lshrrev_b32 v{VT0}, 2, v{V_LANE}')
    a.e(f'v_bfe_u32 v{VT1}, v{VT0}, 2, 1')
    a.e(f'v_lshlrev_b32 v{VT1}, 1, v{VT1}')
    a.e(f'v_and_b32 v{VT2}, 3, v{V_LANE}')
    a.e(f'v_xor_b32 v{VT2}, v{VT2}, v{VT1}')
    a.e(f'v_lshlrev_b32 v{VT3}, 4, v{VT2}')
    a.e(f's_lshl_b32 s{S_T0}, s{S_CB2}, 6')
    a.e(f'v_add_u32 v{VT3}, s{S_T0}, v{VT3}')
    a.e(f'v_mul_u32_u24 v{VQ}, 3072, v{VT0}')
    a.e(f'v_add_u32 v{VQ}, v{VQ}, v{VT3}')
    for j in range(1, 4): a.e(f'v_add_u32 v{VQ+j}, {hex(j*(16*3072-1024))}, v{VQ}')
    a.e(f'v_lshrrev_b32 v{VT1}, 2, v{VT0}')
    a.e(f'v_lshlrev_b32 v{VT1}, 3, v{VT1}')
    a.e(f'v_and_b32 v{VT2}, 3, v{VT0}')
    a.e(f'v_add_u32 v{VT1}, v{VT1}, v{VT2}')
    a.e(f'v_mul_u32_u24 v{VT1}, 3072, v{VT1}')
    a.e(f'v_add_u32 v{VT1}, v{VT1}, v{VT3}')
    for p in range(4):
        off = (4 * (p & 1) + 32 * (p >> 1)) * 3072 - p * 1024
        a.e(f'v_add_u32 v{VQn+p}, {hex(off & 0xffffffff)}, v{VT1}')
    a.e(f's_mul_i32 s{S_T0}, s{S_CB2}, 224')
    M14 = (1 << 20) // 14 + 1
    a.e(f's_mov_b32 s{S_T1}, {hex(M14)}')
    for p in range(7):
        a.e(f'v_add_u32 v{VT0}, {64*p}, v{V_LANE}')
        a.e(f'v_mul_lo_u32 v{VT1}, v{VT0}, s{S_T1}')
        a.e(f'v_lshrrev_b32 v{VT1}, 20, v{VT1}')
        a.e(f'v_mul_u32_u24 v{VT2}, 14, v{VT1}')
        a.e(f'v_sub_u32 v{VT2}, v{VT0}, v{VT2}')
        a.e(f'v_mul_u32_u24 v{VW3+p}, 3584, v{VT1}')
        a.e(f'v_lshl_add_u32 v{VW3+p}, v{VT2}, 4, v{VW3+p}')
        a.e(f'v_add_u32 v{VW3+p}, s{S_T0}, v{VW3+p}')
        if p % 4: a.e(f'v_subrev_u32 v{VW3+p}, {(p%4)*1024}, v{VW3+p}')
    for u in range(448): assert (u * M14) >> 20 == u // 14

    def cs_part1():
        a.wait_vm('cs')
        a.e(f'v_bfe_u32 v{VT0}, v{V_LANE}, 2, 2')
        a.e(f'v_lshrrev_b32 v{VT1}, 4, v{V_LANE}')
        a.e(f'v_lshl_add_u32 v{VT0}, v{VT1}, 2, v{VT0}')
        a.e(f'v_lshlrev_b32 v{VT0}, 7, v{VT0}')
        a.e(f'v_and_b32 v{VT2}, 3, v{V_LANE}')
        a.e(f'v_lshl_add_u32 v{VT0}, v{VT2}, 3, v{VT0}')
        a.e(f'v_add_u32 v{VT0}, {hex(CSL)}, v{VT0}')
        for i in range(4): a.e(f'v_mov_b32 v{40+i}, 0x3f803f80')
        for j in range(4):
            for t in range(4):
                a.e(f'ds_read_b64_tr_b16 v[{64+4*t}:{65+4*t}], v{VT0} offset:{j*4096+t*32}')
                a.e(f'ds_read_b64_tr_b16 v[{66+4*t}:{67+4*t}], v{VT0} offset:{j*4096+t*32+2048}')
            a.e('s_waitcnt lgkmcnt(0)')
            for t in range(4):
                c = '0' if j == 0 else f'v[{44+4*t}:{47+4*t}]'
                a.e(f'v_mfma_f32_16x16x32_bf16 v[{44+4*t}:{47+4*t}], v[{64+4*t}:{67+4*t}], v[40:43], {c}')
        a.e(f's_mul_i32 s{S_T0}, s{94}, 15360')
        a.e(f's_lshl_b32 s{S_T1}, s{93}, 8')
        a.e(f's_add_u32 s{S_T0}, s{S_T0}, s{S_T1}')
        a.e(f's_add_u32 s{S_T0}, s{S_T0}, {hex(CSP_OFF)}')
        a.e(f'v_lshlrev_b32 v{VT1}, 4, v{VT1}')
        a.e('s_nop 7')
        set_exec(a, 0x00010001)
        for t in range(4):
            a.vmem(f'buffer_store_dwordx4 v[{44+4*t}:{47+4*t}], v{VT1}, {WS}, s{S_T0} offen offset:{64*t} sc1', 'csst')
        a.e('s_mov_b64 exec, -1')
    def cs_part2():
        a.e(f's_lshl_b32 s{S_T0}, s2, 7')
        a.e(f's_add_u32 s{S_T0}, s{S_T0}, {hex(CSF_OFF)}')
        a.e(f'v_mov_b32 v{VT1}, s{S_T0}')
        a.e(f's_add_u32 s{S_T1}, s{S_B}, 8')
        a.e(f'v_mov_b32 v{VT0}, s{S_T1}')
        a.wait_vm('csst')
        a.e('s_mov_b64 exec, 1')
        a.vmem(f'buffer_store_dword v{VT0}, v{VT1}, {WS}, 0 offen sc1', 'csf')
        a.e('s_mov_b64 exec, -1')
    def cs_fill():
        L_ = a.newlabel('CPOLL'); D_ = a.newlabel('CPOLLD')
        a.e(f'v_min_u32 v{VT0}, 27, v{V_LANE}')
        a.e(f'v_lshrrev_b32 v{VT2}, 2, v{VT0}')
        a.e(f's_lshr_b32 s{S_T0}, s{S_CB2}, 1')
        a.e(f'v_lshlrev_b32 v{VT1}, 3, v{VT2}')
        a.e(f'v_add_u32 v{VT1}, s{S_T0}, v{VT1}')
        a.e(f's_add_u32 s{S_T0}, s{S_CB}, 24')
        a.e(f'v_mov_b32 v{VT3}, s{S_T0}')
        a.e(f'v_cmp_eq_u32 vcc, 3, v{VT2}')
        a.e('s_nop 1')
        a.e(f'v_cndmask_b32 v{VT1}, v{VT1}, v{VT3}, vcc')
        a.e(f's_mul_i32 s{S_T0}, s{S_CB2}, 112')
        a.e(f's_lshr_b32 s{S_T0}, s{S_T0}, 6')
        a.e(f's_add_u32 s{S_T0}, s{S_T0}, {32 - 4}')
        a.e(f'v_add_u32 v{VT3}, s{S_T0}, v{VT2}')
        a.e(f'v_min_u32 v{VT3}, 59, v{VT3}')
        a.e(f'v_cmp_lt_u32 vcc, 3, v{VT2}')
        a.e('s_nop 1')
        a.e(f'v_cndmask_b32 v{VT1}, v{VT1}, v{VT3}, vcc')
        a.e(f'v_and_b32 v{VT0}, 3, v{VT0}')
        a.e(f'v_lshl_add_u32 v{VT1}, v{VT1}, 2, v{VT0}')
        a.e(f'v_lshlrev_b32 v{VT1}, 7, v{VT1}')
        a.e(f's_mov_b32 s{S_T0}, {hex(CSF_OFF)}')
        a.e(f's_add_u32 s{S_T1}, s{S_B}, 8')
        a.e(f's_mov_b32 s{95}, {opt.spin}')
        a.label(L_)
        a.e(f'buffer_load_dword v40, v{VT1}, {WS}, s{S_T0} offen sc1')
        a.e('s_waitcnt vmcnt(0)')
        a.e(f'v_subrev_u32 v40, s{S_T1}, v40')
        a.e('v_cmp_gt_u32 vcc, 0x80, v40')
        a.e(f's_sub_u32 s{95}, s{95}, 1')
        a.e(f's_cbranch_scc1 {D_}')
        a.e('s_cmp_eq_u64 vcc, -1')
        a.e(f's_cbranch_scc0 {L_}')
        a.label(D_)
        a.vm = []
        def colof(dst, gofs):
            a.e(f'v_add_u32 v{VT0}, {gofs}, v{V_LANE}')
            a.e(f'v_lshlrev_b32 v{VT2}, 2, v{VT0}')
            a.e(f's_lshl_b32 s{S_T0}, s{S_CB2}, 5')
            a.e(f's_mul_i32 s{S_T1}, s{S_CB2}, 112')
            a.e(f's_add_u32 s{S_T1}, s{S_T1}, {2048 - 160}')
            a.e(f'v_add_u32 v{dst}, s{S_T1}, v{VT2}')
            for lim, addc, useb in [(40, 1536 - 96, 'cb'), (24, -64, 'hp'), (16, 1024 - 32, 'hp'), (8, 512, 'hp')]:
                if useb == 'cb':
                    a.e(f's_lshl_b32 s{S_T1}, s{S_CB}, 6')
                    a.e(f's_add_u32 s{S_T1}, s{S_T1}, {addc}')
                else:
                    a.e(f's_add_u32 s{S_T1}, s{S_T0}, {hex(addc & 0xffffffff)}')
                a.e(f'v_add_u32 v{VT3}, s{S_T1}, v{VT2}')
                a.e(f'v_cmp_gt_u32 vcc, {lim}, v{VT0}')
                a.e('s_nop 1')
                a.e(f'v_cndmask_b32 v{dst}, v{dst}, v{VT3}, vcc')
            a.e(f'v_lshlrev_b32 v{dst}, 2, v{dst}')
        colof(36, 0); colof(37, 64)
        a.e(f's_mov_b32 s{S_T0}, {hex(CSP_OFF)}')
        for kq in range(4):
            a.e(f'buffer_load_dwordx4 v[{40+4*kq}:{43+4*kq}], v36, {WS}, s{S_T0} offen sc1')
            a.e('s_mov_b64 exec, 0xf')
            a.e(f'buffer_load_dwordx4 v[{56+4*kq}:{59+4*kq}], v37, {WS}, s{S_T0} offen sc1')
            a.e('s_mov_b64 exec, -1')
            if kq < 3: a.e(f's_add_u32 s{S_T0}, s{S_T0}, 15360')
        a.e(f'v_lshlrev_b32 v{VT0}, 4, v{V_LANE}')
        a.e(f'v_add_u32 v{VT0}, {hex(CSC)}, v{VT0}')
        a.e('s_waitcnt vmcnt(0)')
        for b in (40, 56):
            for i in (0, 2):
                a.e(pk('add', b + i, vp(b + i), vp(b + 4 + i)))
                a.e(pk('add', b + 8 + i, vp(b + 8 + i), vp(b + 12 + i)))
                a.e(pk('add', b + i, vp(b + i), vp(b + 8 + i)))
        a.e(f'ds_write_b128 v{VT0}, v[40:43]')
        a.e('s_mov_b64 exec, 0xf')
        a.e(f'ds_write_b128 v{VT0}, v[56:59] offset:1024')
        a.e('s_mov_b64 exec, -1')
        a.e('s_waitcnt lgkmcnt(0)')

    chunks_of = {}
    for s in stream: chunks_of.setdefault((s.layer, s.phase), set()).add(s.chunk)
    nb = 0
    for ev in events:
        L, kind, p, ci = ev
        if kind == 'B':
            cur[0] = f'pre {L}.{p}.B{ci}'
            issue(0, must=(L, p, ci))
            cur[0] = f'{L}.{p}.B{ci}'
            if nb < 5: dstamp()
            a.wait_vm((L, p, ci))
            if nb < 5: dstamp()
            a.e('s_barrier')
            nb += 1
            if ci >= 2: released.add((L, p, ci - 2))
            if ci == 0:
                for (l2, p2), cs_ in chunks_of.items():
                    if p2 in NOE and (l2, PHASES.index(p2)) < (L, PHASES.index(p)):
                        for c in cs_: released.add((l2, p2, c))
            if nb == 1:
                issue(32)
            elif nb == 2:
                cs_part1()
            elif nb == 3:
                cs_part2()
            elif nb == 4:
                cs_fill()
                win[0] = opt.window
            else:
                issue(opt.caps.get(f'{p}.B{ci}', opt.caps.get(f'{p}.B*', 0)))
        elif kind == 'E':
            cur[0] = f'{L}.{p}.E'
            a.e('s_barrier')
            for c in chunks_of[(L, p)]: released.add((L, p, c))
            issue(opt.caps.get(f'{p}.E', 0))
        else:
            cur[0] = f'{L}.{p}'
            a.e('s_barrier')
            issue(opt.caps.get(p, 0))
    if opt.startdiag:
        a.e(f's_lshl_b32 s{S_T0}, s2, 8')
        a.e(f's_add_u32 s{S_T0}, s{S_T0}, {hex(TM_OFF + 128)}')
        for i in range(dg[0]):
            a.e(f'v_mov_b32 v99, {4*i}')
            a.e(f'buffer_store_dword v{100+i}, v99, {WS}, s{S_T0} offen')
    a.e('s_waitcnt vmcnt(0)')
    a.e('s_endpgm')


def gen_toucher(a, opt, events):
    a.c('--- toucher')
    mats = {'QKV': (S_PTR + 2, 512 * 1536 * 2), 'WO': (S_PTR + 4, 512 * 512 * 2), 'W1': (S_PTR + 8, 512 * 512 * 2),
            'W2': (S_PTR + 10, 512 * 512 * 2), 'W3': (S_PTR + 12, 512 * 1792 * 2), 'W4': (S_PTR + 14, 1792 * 512 * 2)}
    srds = {}
    base = 36
    for i, (k, (p, size)) in enumerate(mats.items()):
        s = base + 4 * i
        a.e(f's_mov_b32 s{s}, s{p}'); a.e(f's_mov_b32 s{s+1}, s{p+1}')
        a.e(f's_mov_b32 s{s+2}, {hex(size)}'); a.e(f's_mov_b32 s{s+3}, 0x20000')
        srds[k] = s
    a.e(f'v_lshlrev_b32 v1, 7, v{V_LANE}')
    def mall_touch():
        for k in ['W3', 'W4', 'WO', 'W1', 'W2']:
            size = mats[k][1]; per = size // 256; nl = per // 128
            s = srds[k]
            a.e(f's_mul_i32 s33, s2, {per}')
            a.e(f's_mov_b64 exec, {hex((1 << nl) - 1)}' if nl <= 32 else 's_mov_b32 exec_lo, -1')
            if nl > 32: a.e(f's_mov_b32 exec_hi, {hex((1 << (nl - 32)) - 1)}')
            a.e(f'buffer_load_dword v2, v1, s[{s}:{s+3}], s33 offen {opt.touch_flags}')
        a.e('s_mov_b64 exec, -1')
    def g_touch():
        a.e(f's_mul_i32 s33, s{S_G}, {16 * 57344}')
        a.e(f's_mul_i32 s34, s{S_R}, 28672')
        a.e('s_add_u32 s33, s33, s34')
        a.e(f's_add_u32 s33, s33, {hex(G_OFF)}')
        for i in range(4):
            if i == 3: a.e('s_mov_b32 exec_hi, 0')
            a.e(f'buffer_load_dword v2, v1, {WS}, s33 offen')
            a.e('s_add_u32 s33, s33, 8192')
        a.e('s_mov_b64 exec, -1')
    def key(sx):
        k, p, c = sx.split(',')
        return (0, k, p, None if c == '-' else int(c))
    for ev in events:
        a.e('s_barrier')
        if opt.touch and opt.touch_at and ev == key(opt.touch_at): mall_touch()
        if opt.gtouch_at and ev == key(opt.gtouch_at): g_touch()
    a.e('s_waitcnt vmcnt(0)')
    a.e('s_endpgm')


def generate(opt):
    events = build_events(opt.stop)
    a = Asm(); a.opt = opt
    hdr = open(os.path.join(os.path.dirname(os.path.abspath(__file__)), 'header.txt')).read()
    out = [hdr.rstrip('\n')]
    out.append(f'; @launch grid=(256,1,1) block=(384,1,1) lds={LDS_TOTAL}')
    out += ['.amdgcn_target "amdgcn-amd-amdhsa--gfx950"', '.text', f'.globl {KNAME}', '.p2align 8',
            f'.type {KNAME},@function', f'{KNAME}:']
    a.e('s_cmp_ge_u32 s2, 256')
    a.e('s_cbranch_scc1 L_EXIT')
    if opt.startdiag: a.e('s_memtime s[100:101]')
    a.e(f's_load_dwordx16 s[{S_PTR}:{S_PTR+15}], s[0:1], 0')
    a.e(f's_load_dwordx4 s[{S_PTR+16}:{S_PTR+19}], s[0:1], 64')
    a.e(f's_load_dwordx2 s[{S_PTR+20}:{S_PTR+21}], s[0:1], 80')
    a.e('v_lshrrev_b32 v1, 6, v0')
    a.e('s_nop 0')
    if opt.prefetch_code:
        a.e('s_getpc_b64 s[34:35]')
        a.label('L_PC')
        a.e(f's_sub_u32 s34, s34, (L_PC - {KNAME})')
        a.e('s_subb_u32 s35, s35, 0')
        a.e('v_lshlrev_b32 v2, 7, v0')
        a.e(f's_mov_b32 s36, (L_CODE_END - {KNAME} - 4)')
        a.e('v_min_u32 v2, s36, v2')
        a.e('v_and_b32 v2, -4, v2')
        a.e('global_load_dword v255, v2, s[34:35]')
        a.e('v_add_u32 v2, 49152, v2')
        a.e('v_min_u32 v2, s36, v2')
        a.e('v_and_b32 v2, -4, v2')
        a.e('global_load_dword v255, v2, s[34:35]')
    a.e(f'v_readfirstlane_b32 s{S_W}, v1')
    a.e(f'v_and_b32 v{V_LANE}, 63, v0')
    a.e(f's_getreg_b32 s{S_XCC}, hwreg(HW_REG_XCC_ID)')
    a.e(f's_and_b32 s{S_XCC}, s{S_XCC}, 7')
    a.e(f's_and_b32 s{S_G}, s2, 7')
    a.e(f's_lshr_b32 s{S_R}, s2, 3')
    a.e(f's_lshr_b32 s{S_RB}, s{S_R}, 3')
    a.e(f's_and_b32 s{S_CB}, s{S_R}, 7')
    a.e(f's_lshr_b32 s{S_RB2}, s{S_R}, 4')
    a.e(f's_and_b32 s{S_CB2}, s{S_R}, 15')
    a.e('s_waitcnt lgkmcnt(0)')
    a.e(f's_add_u32 s34, s{S_PTR+20}, {hex(NONCE_OFF)}')
    a.e(f's_addc_u32 s35, s{S_PTR+21}, 0')
    a.e(f's_load_dword s{S_V}, s[34:35], 0')
    def srd(s, p, size):
        a.e(f's_mov_b32 s{s}, s{p}'); a.e(f's_mov_b32 s{s+1}, s{p+1}')
        a.e(f's_mov_b32 s{s+2}, {hex(size)}'); a.e(f's_mov_b32 s{s+3}, 0x20000')
    srd(S_WS, S_PTR + 20, WS_USED)
    srd(S_X, S_PTR + 0, 2048 * 512 * 2)
    srd(S_OUT, S_PTR + 16, 2048 * 512 * 2)
    a.e(f's_cmp_lt_u32 s{S_W}, 4')
    a.e('s_cbranch_scc1 L_COMPUTE')
    a.e(f's_cmp_eq_u32 s{S_W}, 5')
    a.e('s_cbranch_scc0 L_GOLOADER')
    a.e('s_getpc_b64 s[34:35]')
    a.label('L_PC3')
    a.e('s_add_u32 s34, s34, (L_TOUCHER - L_PC3)')
    a.e('s_addc_u32 s35, s35, 0')
    a.e('s_setpc_b64 s[34:35]')
    a.label('L_GOLOADER')
    a.e('s_getpc_b64 s[34:35]')
    a.label('L_PC2')
    a.e('s_add_u32 s34, s34, (L_LOADER - L_PC2)')
    a.e('s_addc_u32 s35, s35, 0')
    a.e('s_setpc_b64 s[34:35]')
    a.label('L_EXIT')
    a.e('s_endpgm')
    a.label('L_COMPUTE')
    a.vm = ['pf', 'pf'] if opt.prefetch_code else []
    if opt.stop is not None and opt.stop[0] == 0: cev = events
    else: cev = [e for e in build_events(None) if e[0] == 0]
    rest = gen_compute(a, opt, cev)
    assert not rest, rest
    a.label('L_LOADER')
    a.vm = ['pf', 'pf'] if opt.prefetch_code else []
    a.fstamp = lambda p: None
    gen_loader(a, opt, events)
    a.label('L_TOUCHER')
    gen_toucher(a, opt, events)
    a.label('L_CODE_END')
    out.append(a.text())
    out += ['.section .rodata,"a"', '.p2align 6', f'.amdhsa_kernel {KNAME}',
            '  .amdhsa_next_free_vgpr 256', '  .amdhsa_next_free_sgpr 102', '  .amdhsa_accum_offset 256',
            '  .amdhsa_group_segment_fixed_size 0', '  .amdhsa_kernarg_size 88', '  .amdhsa_user_sgpr_count 2',
            '  .amdhsa_user_sgpr_kernarg_segment_ptr 1', '  .amdhsa_system_sgpr_workgroup_id_x 1', '.end_amdhsa_kernel']
    return '\n'.join(out) + '\n'


if __name__ == '__main__':
    import argparse
    ap = argparse.ArgumentParser()
    ap.add_argument('-o', default='interleave_layers__linear_attn_block__mixer_s_mlp__prompt.s')
    ap.add_argument('--stop', default=None)
    ap.add_argument('--timing', action='store_true')
    ap.add_argument('--safe', action='store_true')
    ap.add_argument('--set', action='append', default=[])
    ap.add_argument('--fine', default=None)
    args = ap.parse_args()
    opt = Opt()
    if args.stop:
        l, p = args.stop.split(','); opt.stop = (int(l), p)
    opt.timing = args.timing; opt.force_safe = args.safe; opt.fine = args.fine
    opt.caps = dict(Opt.caps)
    for kv in args.set:
        k, v = kv.split('=')
        if '.' in k or k in ('X1', 'X2'): opt.caps[k] = int(v)
        else:
            try: setattr(opt, k, int(v))
            except ValueError: setattr(opt, k, v.replace(':', ','))
    open(args.o, 'w').write(generate(opt))
    print('written', args.o)
    if os.environ.get('SCHED'):
        import itertools
        for k, g in itertools.groupby(opt._log, key=lambda x: x[0]):
            g = list(g); d = {}
            for x in g: d[(x[1], x[2], x[3])] = d.get((x[1], x[2], x[3]), 0) + 1
            print(k, ' '.join(f'{a_}.{b_}.c{c_}x{n_}' for (a_, b_, c_), n_ in d.items()), 'FORCED' if any(x[4] for x in g) else '')
```

```python
import sys, os, struct

KNAME = 'interleave_layers__linear_attn_block__mixer_s_mlp__prompt_kernel'

class Opt:
    stop = None
    timing = False
    fine = None
    force_safe = False
    window = 40
    window0 = 56
    caps = {'P1KV.E': 64, 'P1Q.B0': 16, 'P1Q.B1': 16, 'X2': 32,
            'P3.B0': 0, 'P3.B1': 32, 'P3.B2': 16, 'P3.B3': 16,
            'P4.B1': 32, 'P4.B2': 16, 'P4.B3': 16,
            'P5.B1': 35, 'P5.B2': 14, 'P5.B3': 21,
            'P6.B0': 35, 'P6.B1': 28, 'P6.B2': 28, 'P6.B3': 28, 'P6.E': 64,
            'P7.B*': 16, 'P7.E': 64}
    cap0 = 0
    touch = True
    dbg_w_same = 0
    w_nt = 0
    g_cold = 0
    touch_at = 'B,P1Q,0'
    rot = 1
    ws_base = 0
    late_a = 1
    kvflag_at = 5
    up3 = 1
    startdiag = 0
    gtouch_at = 'B,P5,2'
    dbg_a_same = 0
    touch_flags = ''
    spin = 1 << 17
    prefetch_code = True
    D_kv = 4
    D_p6 = 4

MB = 1 << 20
A0_OFF = 0
A1_OFF = 0x280000
A2_OFF = 0x480000
G_OFF = 0x680000
ST_OFF = 0xD80000
KVP_OFF = 0xDC0000
KVP_L = 0x88000
LSTRIDE = 0x780000
FL_OFF = 0xF00000
LF_OFF = FL_OFF
KVF_OFF = FL_OFF + 4096
HF_OFF = FL_OFF + 8192
XID_OFF = FL_OFF + 29696
NONCE_OFF = FL_OFF + 30720
TM_OFF = FL_OFF + 32768
CSP_OFF = FL_OFF + 32768 + 65536
CSF_OFF = CSP_OFF + 65536
WS_USED = CSF_OFF + 32768
KVREC = 2176

LDS_TOTAL = 163840
AREG = 0
SCR = 49152
CSL = 16384
WRING = 65536
RING = 93952
PHI = 53248
CSC = WRING + RING
assert CSC + 1088 <= LDS_TOTAL

EPS = 1e-5

def f2u(x):
    return struct.unpack('<I', struct.pack('<f', x))[0]

class Asm:
    def __init__(self):
        self.lines = []; self.nlabel = 0; self.vm = []
        self.fstamp = lambda p: None
    def e(self, s): self.lines.append('  ' + s)
    def c(self, s): self.lines.append('  ; ' + s)
    def label(self, name): self.lines.append(name + ':')
    def newlabel(self, base='L'):
        self.nlabel += 1
        return f'{base}_{self.nlabel}'
    def vmem(self, s, tag=None):
        self.e(s); self.vm.append(tag)
    def count_vm(self, tag):
        if tag not in self.vm: return None
        idx = max(i for i, t in enumerate(self.vm) if t == tag)
        n = len(self.vm) - 1 - idx
        assert n <= 63, n
        self.vm = self.vm[idx + 1:]
        return n
    def wait_vm(self, tag):
        n = self.count_vm(tag)
        if n is not None: self.e(f's_waitcnt vmcnt({n})')
    def wait_vm_all(self):
        self.e('s_waitcnt vmcnt(0)'); self.vm = []
    def text(self): return '\n'.join(self.lines)

def set_exec(a, lo, hi=None):
    a.e(f's_mov_b32 exec_lo, {hex(lo)}')
    a.e(f's_mov_b32 exec_hi, {hex(lo if hi is None else hi)}')

S_V = 3
S_WS = 4; S_X = 8; S_OUT = 12; S_PA = 16
S_G, S_R, S_W, S_RB, S_CB, S_RB2, S_CB2 = 20, 21, 22, 23, 24, 25, 26
S_MODE, S_L, S_LOFF, S_EP, S_B, S_XCC = 27, 28, 29, 30, 31, 32
S_T0, S_T1, S_T2, S_T3, S_T4, S_T5 = 33, 34, 35, 36, 37, 38
S_SPIN, S_THR = 39, 40
S_AOFF, S_AOFF2, S_ASTR = 41, 42, 43
S_C1, S_C2, S_ONE2 = 44, 46, 48
S_LOG2E, S_EPS6 = 50, 51
S_W4K = 52
S_RH, S_CH = 53, 54
S_U0, S_U1, S_U2, S_U3, S_U4 = 55, 56, 57, 58, 59
S_COLD = 62
S_GH = 63
S_RA = 86
S_RK = 90
S_P7 = 94
S_ROTK = 45
S_PTR = 64
S_WQKV, S_WO, S_W1, S_W2, S_W3, S_W4 = 40, 44, 48, 52, 56, 60
S_CSRD = 88

V_LANE = 0
V_AS, V_AB, V_AG, V_P1 = 1, 2, 3, 4
V_AH = 5
V_STS, V_STB, V_STST, V_XRM, V_TST = 9, 10, 11, 12, 13
V_FSB, V_FBS, V_FSS, V_FH, V_FOWN, V_FKV = 14, 15, 16, 17, 18, 19
V_T128, V_T64, V_T224, V_TN, V_TA = 20, 21, 22, 23, 24
V_T0, V_T1, V_T2 = 25, 26, 27
V_TB = 28
V_RES = 32
V_MEAN, V_RS = 48, 49
V_X = 50
V_PQ = 56
V_ACC = 64
V_A = 128

PHASES = ['P1KV', 'P1Q', 'P3', 'P4', 'P5', 'P6', 'P7']
NCH = {'P1KV': 4, 'P1Q': 2, 'P3': 4, 'P4': 4, 'P5': 4, 'P6': 4, 'P7': 14}

NOE = ('P3', 'P4', 'P5')

class Slab:
    def __init__(self, layer, phase, chunk, kind, size, srow, npieces, srow2=None):
        self.layer, self.phase, self.chunk, self.kind = layer, phase, chunk, kind
        self.size, self.srow, self.npieces, self.srow2 = size, srow, npieces, srow2
        self.addr = None

def w4_tile_seq():
    seq = []
    for c in range(8):
        for i in [0, 1, 2, 3, 4, 5, 7, 8, 9, 10, 11, 12, 6, 13]:
            seq.append(14 * c + i)
    return seq

def build_slabs(layer):
    ph = {}
    def simple(phase, kind, nchunk, per, size, rows, np_):
        ph[phase] = [[Slab(layer, phase, c, kind, size, (c * per + j) * rows, np_) for j in range(per)] for c in range(nchunk)]
    simple('P1KV', 'KV', 4, 4, 4096, 32, 4)
    simple('P1Q', 'Q', 2, 4, 4096, 64, 4)
    simple('P3', 'WO', 4, 4, 4096, 32, 4)
    simple('P4', 'W1', 4, 4, 4096, 32, 4)
    simple('P5', 'W2', 4, 4, 4096, 32, 4)
    simple('P6', 'W3', 4, 4, 7168, 32, 7)
    seq = w4_tile_seq()
    ph['P7'] = [[Slab(layer, 'P7', c, 'W4', 4096, seq[2 * (c * 4 + j)] * 16, 4, srow2=seq[2 * (c * 4 + j) + 1] * 16)
                 for j in range(4)] for c in range(14)]
    pos = PHI
    for p in PHASES:
        for ch in ph[p]:
            for s in ch:
                if pos + s.size > RING: pos = 0
                s.addr = WRING + pos
                pos += s.size
    assert pos == PHI, pos
    return ph

def build_events(stop):
    ev = []
    for L in range(2):
        for p in PHASES:
            for c in range(NCH[p]): ev.append((L, 'B', p, c))
            if p not in NOE: ev.append((L, 'E', p, None))
            if p == 'P1KV': ev.append((L, 'X', 'X1', None))
            if p == 'P1Q': ev.append((L, 'X', 'X2', None))
            if stop == (L, p): return ev
    return ev

WS = f's[{S_WS}:{S_WS+3}]'

def thr_value(a, dst, epoch, xcc=False):
    if isinstance(epoch, int):
        a.e(f's_add_u32 s{dst}, s{S_B}, {8*epoch}')
    else:
        a.e(f's_lshl_b32 s{dst}, {epoch}, 3')
        a.e(f's_add_u32 s{dst}, s{dst}, s{S_B}')
    if xcc: a.e(f's_add_u32 s{dst}, s{dst}, s{S_XCC}')

def emit_poll(a, vaddr, epoch, soff='0', opt=Opt, x4=False, tbase=None):
    L = a.newlabel('POLL'); D = a.newlabel('POLLD')
    thr_value(a, S_THR, epoch)
    a.e(f's_mov_b32 s{S_SPIN}, {opt.spin}')
    a.label(L)
    if x4:
        T = tbase
        a.e(f'buffer_load_dwordx4 v[{T}:{T+3}], v{vaddr}, {WS}, {soff} offen sc1')
        a.e('s_waitcnt vmcnt(0)')
        for i in range(4): a.e(f'v_subrev_u32 v{T+i}, s{S_THR}, v{T+i}')
        a.e(f'v_max_u32 v{T}, v{T}, v{T+1}')
        a.e(f'v_max_u32 v{T+2}, v{T+2}, v{T+3}')
        a.e(f'v_max_u32 v{V_T0}, v{T}, v{T+2}')
    else:
        a.e(f'buffer_load_dword v{V_T2}, v{vaddr}, {WS}, {soff} offen sc1')
        a.e('s_waitcnt vmcnt(0)')
        a.e(f'v_subrev_u32 v{V_T0}, s{S_THR}, v{V_T2}')
    a.vm = []
    a.e(f'v_cmp_gt_u32 vcc, 0x80, v{V_T0}')
    a.e(f's_sub_u32 s{S_SPIN}, s{S_SPIN}, 1')
    a.e(f's_cbranch_scc1 {D}')
    a.e('s_cmp_eq_u64 vcc, -1')
    a.e(f's_cbranch_scc0 {L}')
    a.label(D)

def emit_mode_stores(a, stores, cold=False):
    F = a.newlabel('STF'); D = a.newlabel('STD')
    a.e(f's_cmp_eq_u32 s{S_COLD if cold else S_MODE}, 0')
    a.e(f's_cbranch_scc1 {F}')
    for s in stores: a.e(s + ' sc1')
    a.e(f's_branch {D}')
    a.label(F)
    for s in stores: a.e(s)
    a.label(D)
    for s in stores: a.vm.append('st')

def emit_signal(a, epoch):
    thr_value(a, S_THR, epoch, xcc=True)
    a.e(f'v_mov_b32 v{V_T0}, s{S_THR}')
    a.wait_vm_all()
    a.e('s_mov_b64 exec, 1')
    emit_mode_stores(a, [f'buffer_store_dword v{V_T0}, v{V_FOWN}, {WS}, 0 offen'])
    a.e('s_mov_b64 exec, -1')

def emit_xreduce(a, regs, tmp, over16=True):
    for r, t in zip(regs, tmp): a.e(f'v_mov_b32 v{t}, v{r}')
    a.e('s_nop 1')
    for r, t in zip(regs, tmp): a.e(f'v_permlane32_swap_b32 v{r}, v{t}')
    a.e('s_nop 0')
    for r, t in zip(regs, tmp): a.e(f'v_add_f32 v{r}, v{r}, v{t}')
    if over16:
        for r, t in zip(regs, tmp): a.e(f'v_mov_b32 v{t}, v{r}')
        a.e('s_nop 1')
        for r, t in zip(regs, tmp): a.e(f'v_permlane16_swap_b32 v{r}, v{t}')
        a.e('s_nop 0')
        for r, t in zip(regs, tmp): a.e(f'v_add_f32 v{r}, v{r}, v{t}')

def pk(op, d, x, y, z=None, mods=''):
    s = f'v_pk_{op}_f32 v[{d}:{d+1}], {x}, {y}'
    if z is not None: s += f', {z}'
    return s + mods
def vp(r): return f'v[{r}:{r+1}]'

def emit_stats_partial32(a, vals, t0, st_soff, cold=False):
    s, q = t0, t0 + 2
    a.e(pk('add', s, vp(vals), vp(vals + 2)))
    a.e(pk('mul', q, vp(vals), vp(vals)))
    a.e(pk('fma', q, vp(vals + 2), vp(vals + 2), vp(q)))
    for i in range(4, 16, 2):
        a.e(pk('add', s, vp(s), vp(vals + i)))
        a.e(pk('fma', q, vp(vals + i), vp(vals + i), vp(q)))
    a.e(f'v_add_f32 v{t0}, v{s}, v{s+1}')
    a.e(f'v_add_f32 v{t0+1}, v{q}, v{q+1}')
    emit_xreduce(a, [t0, t0 + 1], [t0 + 4, t0 + 5], over16=False)
    set_exec(a, 0xffffffff, 0)
    emit_mode_stores(a, [f'buffer_store_dwordx2 v[{t0}:{t0+1}], v{V_STST}, {WS}, {st_soff} offen'], cold=cold)
    a.e('s_mov_b64 exec, -1')

def emit_stats_from_sums(a, s, ss, out_a, out_b, tmp, double=False, keep=None):
    mean, var = s, ss
    a.e(f'v_mul_f32 v{mean}, {hex(f2u(1.0/512))}, v{s}')
    a.e(f'v_mul_f32 v{var}, {hex(f2u(1.0/512))}, v{ss}')
    a.e(f'v_fma_f32 v{var}, -v{mean}, v{mean}, v{var}')
    a.e(f'v_max_f32 v{var}, 0, v{var}')
    a.e(f'v_add_f32 v{tmp}, {hex(f2u(EPS))}, v{var}')
    a.e(f'v_rsq_f32 v{tmp}, v{tmp}')
    a.e('s_nop 0')
    if double:
        a.e(f'v_mul_f32 v{tmp+1}, v{tmp}, v{tmp}')
        a.e(f'v_mul_f32 v{tmp+1}, v{tmp+1}, v{var}')
        a.e(f'v_add_f32 v{tmp+1}, {hex(f2u(EPS))}, v{tmp+1}')
        a.e(f'v_rsq_f32 v{tmp+1}, v{tmp+1}')
        a.e('s_nop 0')
        a.e(f'v_mul_f32 v{out_a}, v{tmp}, v{tmp+1}')
    else:
        a.e(f'v_mov_b32 v{out_a}, v{tmp}')
    if keep:
        a.e(f'v_mov_b32 v{keep[0]}, v{mean}')
        a.e(f'v_mov_b32 v{keep[1]}, v{tmp}')
    a.e(f'v_mul_f32 v{out_b}, v{out_a}, v{mean}')
    a.e(f'v_sub_f32 v{out_b}, 0, v{out_b}')

def emit_sum_partials(a, raw, n):
    k = n
    step = 2
    regs = [raw + i for i in range(0, n, 2)]
    while len(regs) > 1:
        nxt = []
        for i in range(0, len(regs), 2):
            a.e(pk('add', regs[i], vp(regs[i]), vp(regs[i + 1])))
            nxt.append(regs[i])
        regs = nxt

def emit_lnfold(a, acc, cs, av, bv, n):
    for i in range(0, n, 2):
        a.e(pk('mul', acc + i, vp(acc + i), vp(av), mods=' op_sel_hi:[1,0]'))
    for i in range(0, n, 2):
        a.e(pk('fma', acc + i, vp(cs + i), vp(bv), vp(acc + i), mods=' op_sel_hi:[1,0,1]'))

def emit_gelu(a, x, n, tmp, c1reg):
    blk = 16
    a.e(f'v_mov_b32 v{c1reg}, s{S_C1}')
    for b0 in range(0, n, blk):
        m = min(blk, n - b0); t = tmp
        for i in range(0, m, 2): a.e(pk('mul', t + i, vp(x + b0 + i), vp(x + b0 + i)))
        for i in range(0, m, 2): a.e(pk('fma', t + i, vp(t + i), f's[{S_C2}:{S_C2+1}]', vp(c1reg), mods=' op_sel_hi:[1,1,0]'))
        for i in range(0, m, 2): a.e(pk('mul', t + i, vp(t + i), vp(x + b0 + i)))
        for i in range(m): a.e(f'v_exp_f32 v{t+i}, v{t+i}')
        for i in range(0, m, 2): a.e(pk('add', t + i, vp(t + i), f's[{S_ONE2}:{S_ONE2+1}]'))
        for i in range(m): a.e(f'v_rcp_f32 v{t+i}, v{t+i}')
        for i in range(0, m, 2): a.e(pk('mul', x + b0 + i, vp(x + b0 + i), vp(t + i)))

def emit_phi(a, regs, tmp):
    for i, r in enumerate(regs): a.e(f'v_min_f32 v{tmp+i}, 0, v{r}')
    for i, r in enumerate(regs): a.e(f'v_mul_f32 v{tmp+i}, s{S_LOG2E}, v{tmp+i}')
    for i, r in enumerate(regs): a.e(f'v_exp_f32 v{tmp+i}, v{tmp+i}')
    for i, r in enumerate(regs): a.e(f'v_max_f32 v{r}, 0, v{r}')
    for i, r in enumerate(regs): a.e(f'v_add_f32 v{r}, v{r}, v{tmp+i}')
    for i, r in enumerate(regs): a.e(f'v_add_f32 v{r}, s{S_EPS6}, v{r}')

def emit_pack(a, dst, src, n):
    for i in range(0, n, 2): a.e(f'v_cvt_pk_bf16_f32 v{dst+i//2}, v{src+i}, v{src+i+1}')

def emit_pack32(a, dst, src):
    for k, j in enumerate([0, 2, 1, 3]):
        a.e(f'v_cvt_pk_bf16_f32 v{dst+2*k}, v{src+4*j}, v{src+4*j+1}')
        a.e(f'v_cvt_pk_bf16_f32 v{dst+2*k+1}, v{src+4*j+2}, v{src+4*j+3}')

class TrBase:
    def __init__(self, a, lane_reg, nt):
        self.a, self.lane_reg, self.nt, self.cur = a, lane_reg, nt, None
    def off(self, addr, span):
        if self.cur is None or addr < self.cur or addr + span - self.cur > 65535:
            self.cur = addr
            for t in range(self.nt):
                if t == 0:
                    self.a.e(f'v_add_u32 v{V_TB}, {hex(addr)}, v{self.lane_reg}')
                else:
                    self.a.e(f'v_xor_b32 v{V_TB+t}, {t << 5}, v{self.lane_reg}')
                    self.a.e(f'v_add_u32 v{V_TB+t}, {hex(addr)}, v{V_TB+t}')
        return addr - self.cur

def emit_gemm16(a, bar, phase, chunks, CT, kind, acc_of, a_of, a_wait, a_issue, wr, S, normal=False, extra=None):
    R, LA = 2, 4
    ks = []
    for ci, ch in enumerate(chunks):
        first = True
        for s in ch:
            ks.append((ci, s.addr, first)); first = False
            if kind == '64': ks.append((ci, s.addr + 2048, False))
    KS = len(ks)
    if kind == '128':
        trb = TrBase(a, V_T128, 4); second = 2048; span = 4096; tb = lambda t: V_TB + t; timm = lambda t: 0
    elif kind == '64':
        trb = TrBase(a, V_T64, 2); second = 1024; span = 2048; tb = lambda t: V_TB + t; timm = lambda t: 0
    else:
        trb = TrBase(a, V_T224, 1); second = 3584; span = 7168; tb = lambda t: V_TB; timm = lambda t: 32 * t
    total = KS * CT
    def slot(n): return wr + 4 * (n % S)
    def pre_issue(n):
        j, t = divmod(n, CT)
        ci, addr, first = ks[j]
        if t == 0 and first:
            a.fstamp(phase); bar(('B', phase, ci)); a.fstamp(phase)
        imm = trb.off(addr, span) if t == 0 else addr - trb.cur
        return imm + timm(t), t
    def rd(n, half, info):
        imm, t = info
        a.e(f'ds_read_b64_tr_b16 v[{slot(n)+2*half}:{slot(n)+2*half+1}], v{tb(t)} offset:{imm + (second if half else 0)}')
    def mfma(m, r):
        j, t = divmod(m, CT)
        d = acc_of(r, t); c = '0' if j == 0 else f'v[{d}:{d+3}]'
        w = f'v[{slot(m)}:{slot(m)+3}]'; x = f'v[{a_of(r,j)}:{a_of(r,j)+3}]'
        a.e(f'v_mfma_f32_16x16x32_bf16 v[{d}:{d+3}], ' + (f'{x}, {w}' if normal else f'{w}, {x}') + f', {c}')
    for n in range(min(LA, total)):
        info = pre_issue(n); rd(n, 0, info); rd(n, 1, info)
    for n in range(total):
        j, t = divmod(n, CT)
        lg = 2 * (min(n - 1 + LA, total - 1) - n)
        vmn = a_wait(j) if t == 0 else None
        if t == 0 and j in (0, 1): a.fstamp(phase)
        a.e((f's_waitcnt vmcnt({vmn}) lgkmcnt({lg})') if vmn is not None else f's_waitcnt lgkmcnt({lg})')
        nx = n + LA; info = None
        mfma(n, 0)
        if nx < total:
            info = pre_issue(nx); rd(nx, 0, info)
        mfma(n, 1)
        if nx < total: rd(nx, 1, info)
        a_issue(j, t)
        if extra and t == CT - 1: extra(j)
    a.fstamp(phase); bar(('E', phase, None)); a.fstamp(phase)
    a.e('s_nop 7')

def emit_gemm32(a, bar, phase, chunks, a_pieces, acc, wr, tail=None):
    LA, S = 4, 5
    nch = len(chunks)
    total = nch * 8
    trb = TrBase(a, V_TN, 1)
    def slot(n): return wr + 8 * (n % S)
    def reads(n):
        c, rem = divmod(n, 8); ksl, s = divmod(rem, 2)
        out = []
        if rem == 0:
            a.wait_vm(('A', c)); a.fstamp(phase); bar(('B', phase, c)); a.fstamp(phase)
        sl = chunks[c][ksl]
        imm = trb.off(sl.addr, 4096)
        out.append(f'ds_read_b128 v[{slot(n)}:{slot(n)+3}], v{V_TA} offset:{(c % 4) * 16384 + ksl * 1024 + s * 512}')
        out.append(f'ds_read_b64_tr_b16 v[{slot(n)+4}:{slot(n)+5}], v{V_TB} offset:{imm + s * 1024}')
        out.append(f'ds_read_b64_tr_b16 v[{slot(n)+6}:{slot(n)+7}], v{V_TB} offset:{imm + s * 1024 + 2048}')
        return out
    up = (0, 1, 2) if a.opt.up3 else (0, 1)
    for c in up:
        for t in a_pieces(c): t()
    queue = []
    nxt = len(up)
    passed = -1
    for n in range(LA):
        for s in reads(n): a.e(s)
    passed = 0
    for n in range(total):
        lg = 3 * (min(n - 1 + LA, total - 1) - n)
        a.e(f's_waitcnt lgkmcnt({lg})')
        c = '0' if n == 0 else f'v[{acc}:{acc+15}]'
        a.e(f'v_mfma_f32_32x32x16_bf16 v[{acc}:{acc+15}], v[{slot(n)+4}:{slot(n)+7}], v[{slot(n)}:{slot(n)+3}], {c}')
        nx = n + LA
        if nx < total:
            if nx % 8 == 0:
                assert nx // 8 < nxt and not any(q[0] == nx // 8 for q in queue), (phase, nx)
                passed = nx // 8
            for s in reads(nx): a.e(s)
        while nxt < nch and (nxt <= passed + 2 or nxt <= 3) and len(queue) < 4:
            queue += [(nxt, t) for t in a_pieces(nxt)]; nxt += 1
        if queue:
            queue.pop(0)[1]()
        if tail and n == total - 10: tail()
    a.fstamp(phase)
    if phase not in NOE:
        bar(('E', phase, None))
    a.fstamp(phase)
    a.e('s_nop 7'); a.e('s_nop 3')


def gen_compute(a, opt, events):
    evq = list(events)
    tm = [0]
    def tmreg(i):
        assert i < 22, i
        return 64 + i
    def dump(regs):
        sk = a.newlabel('TMS')
        a.e('s_waitcnt lgkmcnt(0)')
        a.e(f's_cmp_eq_u32 s{S_W}, 0')
        a.e(f's_cbranch_scc0 {sk}')
        a.e(f's_lshl_b32 s{S_T0}, s2, 8')
        a.e(f's_lshl_b32 s{S_T1}, s{S_L}, 7')
        if opt.timing: a.e(f's_add_u32 s{S_T0}, s{S_T0}, s{S_T1}')
        a.e(f's_add_u32 s{S_T0}, s{S_T0}, {hex(TM_OFF)}')
        for i, r in enumerate(regs):
            a.e(f'v_mov_b32 v{V_T0}, s{r}')
            a.e(f'v_mov_b32 v{V_T1}, {4*i}')
            a.e(f'buffer_store_dword v{V_T0}, v{V_T1}, {WS}, s{S_T0} offen')
        a.label(sk)
        a.e('s_waitcnt vmcnt(0)')
    fs = [0]
    def freg(i): return 64 + 2 * i
    def fstamp(phase):
        if opt.fine == phase and fs[0] < 11:
            a.e(f's_memtime s[{freg(fs[0])}:{freg(fs[0])+1}]'); fs[0] += 1
    a.fstamp = fstamp
    def stamp():
        if opt.timing:
            a.e('s_memtime s[60:61]')
            a.e('s_waitcnt lgkmcnt(0)')
            a.e(f's_mov_b32 s{tmreg(tm[0])}, s60'); tm[0] += 1

    T0, T1, T2, TB = V_T0, V_T1, V_T2, V_TB
    a.c('--- compute: early address setup')
    if opt.startdiag:
        a.e('s_memtime s[98:99]'); a.e('s_waitcnt lgkmcnt(0)'); a.e('s_sub_u32 s98, s98, s100'); a.e('s_mov_b32 s85, s98')
    stamp()
    a.e(f's_lshr_b32 s{S_RH}, s{S_W}, 1')
    a.e(f's_and_b32 s{S_CH}, s{S_W}, 1')
    a.e(f's_lshl_b32 s{S_W4K}, s{S_W}, 12')
    a.e(f's_lshl_b32 s{S_U0}, s{S_G}, 4')
    a.e(f's_lshl_b32 s{S_T1}, s{S_RB}, 2')
    a.e(f's_add_u32 s{S_U0}, s{S_U0}, s{S_T1}')
    a.e(f's_lshl_b32 s{S_T1}, s{S_RH}, 1')
    a.e(f's_add_u32 s{S_U2}, s{S_U0}, s{S_T1}')
    a.e(f's_add_u32 s{S_U0}, s{S_U0}, s{S_W}')
    a.e(f's_lshl_b32 s{S_U1}, s{S_G}, 4')
    a.e(f's_lshl_b32 s{S_T2}, s{S_RB2}, 3')
    a.e(f's_add_u32 s{S_U1}, s{S_U1}, s{S_T2}')
    a.e(f's_lshl_b32 s{S_T2}, s{S_W}, 1')
    a.e(f's_add_u32 s{S_U1}, s{S_U1}, s{S_T2}')
    a.e(f'v_and_b32 v{T0}, 15, v{V_LANE}')
    a.e(f'v_and_b32 v{T1}, 0x30, v{V_LANE}')
    a.e(f'v_lshl_add_u32 v{V_P1}, v{T0}, 10, v{T1}')
    a.e(f's_lshl_b32 s{S_T2}, s{S_U1}, 14')
    a.e(f'v_add_u32 v{V_P1}, s{S_T2}, v{V_P1}')
    for i in range(4): a.e(f's_mov_b32 s{S_PA+i}, s{S_X+i}')
    a.e(f's_mov_b32 s{S_PA+3}, 0x20000')
    a.e(f's_lshl_b32 s{S_ROTK}, s{S_RB2}, 1')
    a.e(f's_add_u32 s{S_ROTK}, s{S_ROTK}, s{S_CB2}')
    a.e(f's_and_b32 s{S_ROTK}, s{S_ROTK}, {3 if opt.rot else 0}')
    for c in range(4):
        a.e(f's_xor_b32 s{S_RK+c}, s{S_ROTK}, {c}')
        a.e(f's_lshl_b32 s{S_RK+c}, s{S_RK+c}, 8')
    a.e(f's_mov_b32 s{S_ASTR}, 64')
    a.e(f'v_and_b32 v{T2}, 31, v{V_LANE}')
    a.e(f'v_lshrrev_b32 v{TB}, 5, v{V_LANE}')
    a.e(f'v_lshlrev_b32 v{V_XRM}, 10, v{T2}')
    a.e(f'v_lshl_add_u32 v{V_XRM}, v{TB}, 3, v{V_XRM}')
    a.e(f's_lshl_b32 s{S_T2}, s{S_U2}, 14')
    a.e(f's_lshl_b32 s{S_T3}, s{S_CB}, 7')
    a.e(f's_add_u32 s{S_T2}, s{S_T2}, s{S_T3}')
    a.e(f's_lshl_b32 s{S_T3}, s{S_CH}, 6')
    a.e(f's_add_u32 s{S_T2}, s{S_T2}, s{S_T3}')
    a.e(f'v_add_u32 v{V_XRM}, s{S_T2}, v{V_XRM}')
    PA = f's[{S_PA}:{S_PA+3}]'
    def p1_load(j):
        if j % 4 == 0:
            a.e(f's_mov_b32 s{S_AOFF}, s{S_RK + j // 4}')
            a.e(f's_add_u32 s{S_AOFF2}, s{S_AOFF}, 0x4000')
        for r in range(2):
            a.vmem(f'buffer_load_dwordx4 v[{V_A+(r*16+j)*4}:{V_A+(r*16+j)*4+3}], v{V_P1}, {PA}, s{S_AOFF if r == 0 else S_AOFF2} offen', ('A', j))
        if j % 4 != 3:
            a.e(f's_add_u32 s{S_AOFF}, s{S_AOFF}, s{S_ASTR}')
            a.e(f's_add_u32 s{S_AOFF2}, s{S_AOFF2}, s{S_ASTR}')
    XS = f's[{S_X}:{S_X+3}]'
    for j in range(4):
        a.vmem(f'buffer_load_dwordx2 v[{V_RES+4*j}:{V_RES+4*j+1}], v{V_XRM}, {XS}, 0 offen offset:{16*j}', 'x')
    for j in range(opt.D_kv): p1_load(j)

    a.e('s_waitcnt lgkmcnt(0)')
    a.e(f's_mul_i32 s{S_B}, s{S_V}, 0x9e3779b1')
    a.e(f's_add_u32 s{S_B}, s{S_B}, 0x7f4a7c15')
    a.e(f's_and_b32 s{S_B}, s{S_B}, 0xffffff00')
    a.c('--- compute: address setup')
    a.e(f'v_lshlrev_b32 v{V_X}, 4, v{V_LANE}')
    a.e(f's_lshl_b32 s{S_T2}, s{S_U0}, 14')
    a.e(f'v_add_u32 v{V_AS}, s{S_T2}, v{V_X}')
    a.e(f's_lshl_b32 s{S_T2}, s{S_U1}, 14')
    a.e(f'v_add_u32 v{V_AB}, s{S_T2}, v{V_X}')
    a.e(f's_mul_i32 s{S_T2}, s{S_U0}, 57344')
    a.e(f'v_add_u32 v{V_AG}, s{S_T2}, v{V_X}')
    a.e(f'v_lshlrev_b32 v{V_STS}, 7, v{T2}')
    a.e(f'v_lshl_add_u32 v{V_STS}, v{TB}, 6, v{V_STS}')
    a.e(f's_lshl_b32 s{S_T2}, s{S_U2}, 11')
    a.e(f'v_add_u32 v{V_STS}, s{S_T2}, v{V_STS}')
    a.e(f'v_lshlrev_b32 v{V_STST}, 7, v{T2}')
    a.e(f's_lshl_b32 s{S_T3}, s{S_CB}, 1')
    a.e(f's_add_u32 s{S_T3}, s{S_T3}, s{S_CH}')
    a.e(f's_lshl_b32 s{S_T4}, s{S_T3}, 3')
    a.e(f's_add_u32 s{S_T2}, s{S_T2}, s{S_T4}')
    a.e(f'v_add_u32 v{V_STST}, s{S_T2}, v{V_STST}')
    a.e(f'v_lshlrev_b32 v{V_STB}, 7, v{T0}')
    a.e(f'v_lshl_add_u32 v{V_STB}, v{T1}, 1, v{V_STB}')
    a.e(f's_lshl_b32 s{S_T2}, s{S_U1}, 11')
    a.e(f'v_add_u32 v{V_STB}, s{S_T2}, v{V_STB}')
    a.e(f'v_lshrrev_b32 v{V_TST}, 4, v{T2}')
    a.e(f'v_lshlrev_b32 v{V_TST}, 14, v{V_TST}')
    a.e(f'v_lshl_add_u32 v{V_TST}, v{TB}, 8, v{V_TST}')
    a.e(f'v_lshl_add_u32 v{V_TST}, v{T0}, 4, v{V_TST}')
    a.e(f's_lshl_b32 s{S_T2}, s{S_U2}, 14')
    a.e(f's_lshl_b32 s{S_T4}, s{S_T3}, 10')
    a.e(f's_add_u32 s{S_T2}, s{S_T2}, s{S_T4}')
    a.e(f'v_add_u32 v{V_TST}, s{S_T2}, v{V_TST}')
    a.e(f's_lshl_b32 s{S_T2}, s{S_RB}, 6')
    a.e(f's_lshl_b32 s{S_T3}, s{S_W}, 4')
    a.e(f's_add_u32 s{S_T2}, s{S_T2}, s{S_T3}')
    a.e(f's_mul_i32 s{S_T3}, s{S_G}, 18')
    a.e(f's_lshl_b32 s{S_T4}, s{S_G}, 8')
    rmask = 3 if opt.rot else 0
    for c in range(4):
        a.e(f's_and_b32 s{S_RA+c}, s{S_RB}, {rmask}')
        a.e(f's_xor_b32 s{S_RA+c}, s{S_RA+c}, {c}')
        a.e(f's_lshl_b32 s{S_RA+c}, s{S_RA+c}, 12')
    for p_ in range(8):
        a.e(f's_and_b32 s{S_P7+p_}, s{S_RB}, {rmask}')
        a.e(f's_lshl_b32 s{S_P7+p_}, s{S_P7+p_}, 1')
        a.e(f's_xor_b32 s{S_P7+p_}, s{S_P7+p_}, {p_}')
        a.e(f's_mul_i32 s{S_P7+p_}, s{S_P7+p_}, 7168')
    for kg in range(4):
        r = V_AH + kg
        a.e(f's_lshr_b32 s{S_T5}, s{S_RA+kg}, 12')
        a.e(f's_lshr_b32 s{S_U3}, s{S_T5}, 1')
        a.e(f's_add_u32 s{S_U3}, s{S_U3}, 1')
        a.e(f's_sub_u32 s{S_U4}, 0, s{S_U3}')
        a.e(f's_bitcmp1_b32 s{S_T5}, 0')
        a.e(f's_cselect_b32 s{S_U3}, s{S_U3}, s{S_U4}')
        a.e(f's_add_u32 s{S_T5}, s{S_T2}, s{S_U3}')
        a.e(f's_add_u32 s{S_T5}, s{S_T5}, 16')
        a.e(f'v_add_u32 v{r}, s{S_T5}, v{T0}')
        a.e(f'v_lshrrev_b32 v{V_X+1}, 4, v{r}')
        a.e(f'v_add_u32 v{V_X+1}, s{S_T3}, v{V_X+1}')
        a.e(f'v_lshlrev_b32 v{V_X+1}, 14, v{V_X+1}')
        a.e(f'v_and_b32 v{V_X+2}, 15, v{r}')
        a.e(f'v_add_u32 v{V_X+2}, v{T1}, v{V_X+2}')
        a.e(f'v_lshl_add_u32 v{V_X+1}, v{V_X+2}, 4, v{V_X+1}')
        a.e(f'v_add_u32 v{V_X+2}, s{S_T4}, v{r}')
        a.e(f'v_subrev_u32 v{V_X+2}, 16, v{V_X+2}')
        a.e(f'v_cmp_gt_u32 vcc, 0x800, v{V_X+2}')
        a.e(f'v_mov_b32 v{r}, 0x80000000')
        a.e('s_nop 0')
        a.e(f'v_cndmask_b32 v{r}, v{r}, v{V_X+1}, vcc')
    a.e(f's_lshl_b32 s{S_T2}, s{S_G}, 9')
    a.e(f's_add_u32 s{S_T2}, s{S_T2}, {hex(LF_OFF)}')
    a.e(f's_lshl_b32 s{S_T3}, s{S_W}, 7')
    a.e(f's_add_u32 s{S_T3}, s{S_T3}, s{S_T2}')
    a.e(f's_lshl_b32 s{S_T4}, s{S_R}, 2')
    a.e(f's_add_u32 s{S_T4}, s{S_T4}, s{S_T3}')
    a.e(f'v_mov_b32 v{V_FOWN}, s{S_T4}')
    a.e(f'v_and_b32 v{V_X+1}, 7, v{V_LANE}')
    a.e(f'v_lshlrev_b32 v{V_X+1}, 2, v{V_X+1}')
    a.e(f'v_bfe_u32 v{V_X+2}, v{V_LANE}, 3, 1')
    a.e(f'v_lshl_add_u32 v{V_X+1}, v{V_X+2}, 7, v{V_X+1}')
    a.e(f's_lshl_b32 s{S_T4}, s{S_RH}, 8')
    a.e(f's_lshl_b32 s{S_T5}, s{S_RB}, 5')
    a.e(f's_add_u32 s{S_T4}, s{S_T4}, s{S_T5}')
    a.e(f's_add_u32 s{S_T4}, s{S_T4}, s{S_T2}')
    a.e(f'v_add_u32 v{V_FSS}, s{S_T4}, v{V_X+1}')
    a.e(f's_lshl_b32 s{S_T4}, s{S_RB2}, 1')
    a.e(f's_add_u32 s{S_T4}, s{S_T4}, s{S_RH}')
    a.e(f's_lshl_b32 s{S_T4}, s{S_T4}, 5')
    a.e(f's_lshl_b32 s{S_T5}, s{S_CH}, 8')
    a.e(f's_add_u32 s{S_T4}, s{S_T4}, s{S_T5}')
    a.e(f's_add_u32 s{S_T4}, s{S_T4}, s{S_T2}')
    a.e(f'v_add_u32 v{V_FSB}, s{S_T4}, v{V_X+1}')
    a.e(f's_and_b32 s{S_T4}, s{S_RB}, 1')
    a.e(f's_lshl_b32 s{S_T4}, s{S_T4}, 1')
    a.e(f's_add_u32 s{S_T4}, s{S_T4}, s{S_RH}')
    a.e(f's_lshl_b32 s{S_T4}, s{S_T4}, 7')
    a.e(f's_add_u32 s{S_T4}, s{S_T4}, s{S_T2}')
    a.e(f's_lshr_b32 s{S_T5}, s{S_RB}, 1')
    a.e(f's_lshl_b32 s{S_T5}, s{S_T5}, 6')
    a.e(f's_add_u32 s{S_T4}, s{S_T4}, s{S_T5}')
    a.e(f'v_lshlrev_b32 v{V_FBS}, 2, v{T0}')
    a.e(f'v_add_u32 v{V_FBS}, s{S_T4}, v{V_FBS}')
    a.e(f's_lshl_b32 s{S_T4}, s{S_R}, 2')
    a.e(f's_add_u32 s{S_T4}, s{S_T4}, s{S_T2}')
    a.e(f'v_and_b32 v{V_X+1}, 3, v{V_LANE}')
    a.e(f'v_lshlrev_b32 v{V_X+1}, 7, v{V_X+1}')
    a.e(f'v_add_u32 v{V_X+1}, s{S_T4}, v{V_X+1}')
    a.e(f'v_lshrrev_b32 v{V_X+2}, 2, v{V_LANE}')
    a.e(f'v_cmp_eq_u32 vcc, 4, v{V_X+2}')
    a.e('s_nop 1')
    a.e(f'v_cndmask_b32 v{V_FSS}, v{V_FSS}, v{V_X+1}, vcc')
    a.e(f'v_cndmask_b32 v{V_FBS}, v{V_FBS}, v{V_X+1}, vcc')
    a.e(f's_lshl_b32 s{S_T4}, s{S_CB2}, 7')
    a.e(f's_add_u32 s{S_T4}, s{S_T4}, {hex(KVF_OFF)}')
    a.e(f'v_lshlrev_b32 v{V_FKV}, 2, v{T2}')
    a.e(f'v_add_u32 v{V_FKV}, s{S_T4}, v{V_FKV}')
    a.e(f'v_bfe_u32 v{V_X+1}, v{V_LANE}, 2, 2')
    a.e(f'v_lshrrev_b32 v{V_X+2}, 4, v{V_LANE}')
    a.e(f'v_lshl_add_u32 v{V_X+3}, v{V_X+2}, 2, v{V_X+1}')
    a.e(f'v_and_b32 v{V_X+4}, 3, v{V_LANE}')
    a.e(f'v_lshlrev_b32 v{V_X+4}, 3, v{V_X+4}')
    a.e(f'v_bfe_u32 v{V_X+5}, v{V_X+3}, 1, 2')
    a.e(f'v_lshl_add_u32 v{V_T128}, v{V_X+5}, 5, v{V_X+4}')
    a.e(f'v_lshl_add_u32 v{V_T128}, v{V_X+3}, 7, v{V_T128}')
    a.e(f'v_bfe_u32 v{V_X+5}, v{V_X+3}, 2, 1')
    a.e(f'v_lshl_add_u32 v{V_T64}, v{V_X+5}, 5, v{V_X+4}')
    a.e(f'v_lshl_add_u32 v{V_T64}, v{V_X+3}, 6, v{V_T64}')
    a.e(f'v_mul_u32_u24 v{V_T224}, 224, v{V_X+3}')
    a.e(f'v_add_u32 v{V_T224}, v{V_T224}, v{V_X+4}')
    a.e(f'v_lshrrev_b32 v{V_X+3}, 1, v{V_X+2}')
    a.e(f'v_lshl_add_u32 v{V_X+3}, v{V_X+3}, 2, v{V_X+1}')
    a.e(f'v_and_b32 v{V_X+5}, 1, v{V_X+2}')
    a.e(f's_lshl_b32 s{S_T4}, s{S_CH}, 1')
    a.e(f'v_add_u32 v{V_X+5}, s{S_T4}, v{V_X+5}')
    a.e(f'v_and_b32 v{V_X+1}, 2, v{V_X+1}')
    a.e(f'v_xor_b32 v{V_X+5}, v{V_X+5}, v{V_X+1}')
    a.e(f'v_lshl_add_u32 v{V_TN}, v{V_X+5}, 5, v{V_X+4}')
    a.e(f'v_lshl_add_u32 v{V_TN}, v{V_X+3}, 7, v{V_TN}')
    a.e(f'v_bfe_u32 v{V_TA}, v{V_LANE}, 4, 1')
    a.e(f's_lshl_b32 s{S_T4}, s{S_RH}, 1')
    a.e(f'v_add_u32 v{V_TA}, s{S_T4}, v{V_TA}')
    a.e(f'v_lshlrev_b32 v{V_TA}, 12, v{V_TA}')
    a.e(f'v_lshl_add_u32 v{V_TA}, v{TB}, 8, v{V_TA}')
    a.e(f'v_lshl_add_u32 v{V_TA}, v{T0}, 4, v{V_TA}')
    if AREG: a.e(f'v_add_u32 v{V_TA}, {hex(AREG)}, v{V_TA}')
    c1 = -2.0 * 0.7978845608028654 * 1.4426950408889634
    c2 = c1 * 0.044715
    for s, v in [(S_C1, c1), (S_C2, c2), (S_C2 + 1, c2), (S_ONE2, 1.0), (S_ONE2 + 1, 1.0),
                 (S_LOG2E, 1.4426950408889634), (S_EPS6, 1e-6)]:
        a.e(f's_mov_b32 s{s}, {hex(f2u(v))}')
    a.e(f's_mov_b32 s{S_L}, 0')
    a.e(f's_mov_b32 s{S_LOFF}, 0')
    a.e(f's_mov_b32 s{S_EP}, 1')
    a.e(f's_mov_b32 s{S_MODE}, 1')
    a.e(f's_mov_b32 s{S_COLD}, 1')
    a.e(f's_lshl_b32 s{S_GH}, s{S_G}, 1')
    a.e(f's_add_u32 s{S_GH}, s{S_GH}, 1')
    a.e(f's_lshl_b32 s{S_GH}, s{S_GH}, 14')

    def emit_fh():
        a.c('build FH')
        a.e(f's_lshl_b32 s{S_T0}, s{S_RB}, 2')
        a.e(f's_add_u32 s{S_T0}, s{S_T0}, s{S_W}')
        a.e(f's_lshl_b32 s{S_T1}, s{S_G}, 9')
        a.e(f's_add_u32 s{S_T1}, s{S_T1}, {hex(LF_OFF)}')
        def local_addr(dst, d):
            a.e(f's_add_i32 s{S_T2}, s{S_T0}, {d}')
            a.e(f's_and_b32 s{S_T3}, s{S_T2}, 2')
            a.e(f's_lshl_b32 s{S_T3}, s{S_T3}, 7')
            a.e(f's_lshr_b32 s{S_T2}, s{S_T2}, 2')
            a.e(f's_lshl_b32 s{S_T2}, s{S_T2}, 5')
            a.e(f's_add_u32 s{S_T2}, s{S_T2}, s{S_T3}')
            a.e(f's_add_u32 s{dst}, s{S_T2}, s{S_T1}')
        local_addr(S_U0, 0); local_addr(S_U1, -1); local_addr(S_U2, 1)
        a.e(f's_mov_b32 s{S_U3}, 128'); a.e(f's_mov_b32 s{S_U4}, 128')
        a.e(f's_lshl_b32 s{S_T2}, s{S_L}, 11')
        a.e(f's_lshl_b32 s{S_T3}, s{S_G}, 8')
        a.e(f's_add_u32 s{S_T2}, s{S_T2}, s{S_T3}')
        a.e(f's_add_u32 s{S_T2}, s{S_T2}, {hex(HF_OFF)}')
        la = a.newlabel('FH'); lb = a.newlabel('FH')
        a.e(f's_cmp_eq_u32 s{S_T0}, 0')
        a.e(f's_cbranch_scc0 {la}')
        a.e(f's_mov_b32 s{S_U1}, s{S_U0}')
        a.e(f's_cmp_eq_u32 s{S_G}, 0')
        a.e(f's_cbranch_scc1 {la}')
        a.e(f's_mov_b32 s{S_U1}, s{S_T2}')
        a.e(f's_mov_b32 s{S_U3}, 0')
        a.label(la)
        a.e(f's_cmp_eq_u32 s{S_T0}, 15')
        a.e(f's_cbranch_scc0 {lb}')
        a.e(f's_mov_b32 s{S_U2}, s{S_U0}')
        a.e(f's_cmp_eq_u32 s{S_G}, 7')
        a.e(f's_cbranch_scc1 {lb}')
        a.e(f's_add_u32 s{S_U2}, s{S_T2}, 128')
        a.e(f's_mov_b32 s{S_U4}, 0')
        a.label(lb)
        a.e(f'v_lshrrev_b32 v{T1}, 4, v{V_LANE}')
        a.e(f'v_mov_b32 v{V_FH}, s{S_U0}')
        a.e(f'v_mov_b32 v{T2}, 128')
        a.e(f'v_cmp_eq_u32 vcc, 1, v{T1}')
        a.e(f'v_mov_b32 v{T0}, s{S_U1}')
        a.e(f'v_mov_b32 v{TB}, s{S_U3}')
        a.e('s_nop 0')
        a.e(f'v_cndmask_b32 v{V_FH}, v{V_FH}, v{T0}, vcc')
        a.e(f'v_cndmask_b32 v{T2}, v{T2}, v{TB}, vcc')
        a.e(f'v_cmp_eq_u32 vcc, 2, v{T1}')
        a.e(f'v_mov_b32 v{T0}, s{S_U2}')
        a.e(f'v_mov_b32 v{TB}, s{S_U4}')
        a.e('s_nop 0')
        a.e(f'v_cndmask_b32 v{V_FH}, v{V_FH}, v{T0}, vcc')
        a.e(f'v_cndmask_b32 v{T2}, v{T2}, v{TB}, vcc')
        a.e(f'v_bfe_u32 v{T1}, v{V_LANE}, 3, 1')
        a.e(f'v_mul_u32_u24 v{T1}, v{T1}, v{T2}')
        a.e(f'v_add_u32 v{V_FH}, v{V_FH}, v{T1}')
        a.e(f'v_and_b32 v{T1}, 7, v{V_LANE}')
        a.e(f'v_lshl_add_u32 v{V_FH}, v{T1}, 2, v{V_FH}')
        a.e(f's_lshl_b32 s{S_T2}, s{S_R}, 2')
        a.e(f's_add_u32 s{S_T2}, s{S_T2}, s{S_T1}')
        a.e(f'v_and_b32 v{T1}, 3, v{V_LANE}')
        a.e(f'v_lshlrev_b32 v{T1}, 7, v{T1}')
        a.e(f'v_add_u32 v{T1}, s{S_T2}, v{T1}')
        a.e(f'v_lshrrev_b32 v{T2}, 2, v{V_LANE}')
        a.e(f'v_cmp_eq_u32 vcc, 12, v{T2}')
        a.e('s_nop 1')
        a.e(f'v_cndmask_b32 v{V_FH}, v{V_FH}, v{T1}, vcc')

    emit_fh()
    if opt.late_a:
        a.wait_vm('x')
        for j in range(opt.D_kv): p1_load(j)
    LOOP = 'LAYER_LOOP'
    a.label(LOOP)
    slabs = build_slabs(0)

    def run_layer():
        def bar(ev):
            exp = evq.pop(0)
            assert exp[1:] == ev or (exp[1] == 'X' and ev[0] == 'X' and exp[2] == ev[1]), (exp, ev)
            a.e('s_barrier')
        def soff(reg, base, extra=0, gh=False):
            if gh: a.e(f's_add_u32 s{reg}, s{S_GH}, {hex(base + extra)}')
            else: a.e(f's_mov_b32 s{reg}, {hex(base + extra)}')
        def done(p):
            if opt.stop == (1, p):
                a.e(f's_cmp_eq_u32 s{S_L}, 1')
                a.e('s_cbranch_scc1 L_END_COMPUTE')
            return opt.stop == (0, p)
        def ep(k):
            a.e(f's_add_u32 s{S_T5}, s{S_EP}, {k}')
            return f's{S_T5}'

        a.c('=== P1KV')
        l0 = a.newlabel('L0')
        a.e(f's_cmp_eq_u32 s{S_L}, 0')
        a.e(f's_cbranch_scc1 {l0}')
        emit_poll(a, V_FSB, f's{S_EP}', opt=opt)
        for j in range(opt.D_kv): p1_load(j)
        a.label(l0)
        a.vm = [('A', j) for j in range(opt.D_kv) for _ in range(2)]
        stamp()
        a.fstamp('P1KV')
        WR1 = 96; D1 = 116; ONES = 124; D2 = V_PQ
        for i in range(4): a.e(f'v_mov_b32 v{ONES+i}, 0x3f803f80')
        def kv_issue(j, t):
            if t == 1:
                if j + opt.D_kv < 16:
                    p1_load(j + opt.D_kv)
                elif j + opt.D_kv == 16:
                    ld = a.newlabel('STD'); le = a.newlabel('STE')
                    a.e(f's_cmp_eq_u32 s{S_L}, 0')
                    a.e(f's_cbranch_scc1 {ld}')
                    soff(S_T0, ST_OFF)
                    a.e(f'buffer_load_dwordx4 v[{D1}:{D1+3}], v{V_STB}, {WS}, s{S_T0} offen sc1')
                    a.e(f'buffer_load_dwordx4 v[{D1+4}:{D1+7}], v{V_STB}, {WS}, s{S_T0} offen offset:16 sc1')
                    a.e(f'buffer_load_dwordx4 v[{D2}:{D2+3}], v{V_STB}, {WS}, s{S_T0} offen offset:2048 sc1')
                    a.e(f'buffer_load_dwordx4 v[{D2+4}:{D2+7}], v{V_STB}, {WS}, s{S_T0} offen offset:2064 sc1')
                    a.e(f's_branch {le}')
                    a.label(ld)
                    for i in range(4):
                        a.e(f'buffer_load_dword v{V_X+i}, v{V_FOWN}, {WS}, 0 offen')
                    a.label(le)
                    a.vm += ['st'] * 4
        def kv_extra(j):
            sk = a.newlabel('MS')
            a.e(f's_cmp_eq_u32 s{S_L}, 0')
            a.e(f's_cbranch_scc0 {sk}')
            for r in range(2):
                x = f'v[{V_A+(r*16+j)*4}:{V_A+(r*16+j)*4+3}]'
                c1_ = '0' if j == 0 else f'v[{D1+4*r}:{D1+4*r+3}]'
                c2_ = '0' if j == 0 else f'v[{D2+4*r}:{D2+4*r+3}]'
                a.e(f'v_mfma_f32_16x16x32_bf16 v[{D1+4*r}:{D1+4*r+3}], v[{ONES}:{ONES+3}], {x}, {c1_}')
                a.e(f'v_mfma_f32_16x16x32_bf16 v[{D2+4*r}:{D2+4*r+3}], {x}, {x}, {c2_}')
            a.label(sk)
        emit_gemm16(a, bar, 'P1KV', slabs['P1KV'], 4, '128',
                    acc_of=lambda r, t: V_ACC + (r * 4 + t) * 4, a_of=lambda r, j: V_A + (r * 16 + j) * 4,
                    a_wait=lambda j: a.count_vm(('A', j)), a_issue=kv_issue, wr=WR1, S=5, normal=True, extra=kv_extra)
        stamp()
        a.wait_vm_all()
        SUM = [(V_X, V_X + 1), (V_X + 2, V_X + 3)]
        l1 = a.newlabel('S1'); le = a.newlabel('SE')
        a.e(f's_cmp_eq_u32 s{S_L}, 0')
        a.e(f's_cbranch_scc0 {l1}')
        for j in range(4):
            b = V_RES + 4 * j
            a.e(f'v_and_b32 v{b+3}, 0xffff0000, v{b+1}')
            a.e(f'v_lshlrev_b32 v{b+2}, 16, v{b+1}')
            a.e(f'v_and_b32 v{b+1}, 0xffff0000, v{b}')
            a.e(f'v_lshlrev_b32 v{b}, 16, v{b}')
        a.e(f'v_and_b32 v{T0}, 3, v{V_LANE}')
        a.e(f'v_bfe_u32 v{T1}, v{V_LANE}, 2, 2')
        a.e(f'v_lshrrev_b32 v{T2}, 4, v{V_LANE}')
        for r in range(2):
            s_, ss_ = SUM[r]
            a.e(f'v_mov_b32 v{s_}, v{D1+4*r}')
            a.e(f'v_mov_b32 v{ss_}, v{D2+4*r}')
            for i in range(1, 4):
                a.e(f'v_cmp_eq_u32 vcc, {i}, v{T0}')
                a.e('s_nop 1')
                a.e(f'v_cndmask_b32 v{ss_}, v{ss_}, v{D2+4*r+i}, vcc')
            a.e(f'v_cmp_eq_u32 vcc, v{T1}, v{T2}')
            a.e('s_nop 1')
            a.e(f'v_cndmask_b32 v{ss_}, 0, v{ss_}, vcc')
        emit_xreduce(a, [SUM[0][1], SUM[1][1]], [T0, T1])
        a.e(f's_branch {le}')
        a.label(l1)
        for r, raw in enumerate([D1, D2]):
            emit_sum_partials(a, raw, 8)
            a.e(f'v_mov_b32 v{SUM[r][0]}, v{raw}')
            a.e(f'v_mov_b32 v{SUM[r][1]}, v{raw+1}')
        emit_xreduce(a, [SUM[0][0], SUM[0][1], SUM[1][0], SUM[1][1]], [WR1, WR1 + 1, WR1 + 2, WR1 + 3])
        a.label(le)
        CSR = 120
        a.e(f'v_and_b32 v{T0}, 15, v{V_LANE}')
        a.e(f'v_lshlrev_b32 v{T0}, 2, v{T0}')
        a.e(f'v_add_u32 v{T0}, {hex(CSC)}, v{T0}')
        a.e(f'v_and_b32 v{T1}, 0x30, v{V_LANE}')
        for t in range(4):
            a.e(f'ds_read_b32 v{CSR+t}, v{T0} offset:{64*t}')
        KEEP = [(V_PQ + 0, V_PQ + 2), (V_PQ + 4, V_PQ + 6)]
        for r in range(2):
            emit_stats_from_sums(a, SUM[r][0], SUM[r][1], KEEP[r][0], KEEP[r][1], WR1)
        AI = [WR1, WR1 + 8]; BI = [WR1 + 4, WR1 + 12]
        for r in range(2):
            for i in range(4):
                a.e(f'ds_bpermute_b32 v{AI[r]+i}, v{T1}, v{KEEP[r][0]} offset:{4*i}')
                a.e(f'ds_bpermute_b32 v{BI[r]+i}, v{T1}, v{KEEP[r][1]} offset:{4*i}')
        a.e('s_waitcnt vmcnt(0) lgkmcnt(0)'); a.vm = []
        CSE = WR1 + 16
        for t in range(4): a.e(f'v_mov_b32 v{CSE+2*t}, v{CSR+t}')
        for r in range(2):
            for t in range(4):
                for i in (0, 2):
                    d = V_ACC + (r * 4 + t) * 4 + i
                    a.e(pk('mul', d, vp(d), vp(AI[r] + i)))
            for t in range(4):
                for i in (0, 2):
                    d = V_ACC + (r * 4 + t) * 4 + i
                    a.e(pk('fma', d, vp(BI[r] + i), vp(CSE + 2 * t), vp(d), mods=' op_sel_hi:[1,0,1]'))
        regs = [V_ACC + (r * 4 + t) * 4 + i for r in range(2) for t in range(2) for i in range(4)]
        emit_phi(a, regs, WR1)
        for t in range(4):
            b0 = V_ACC + t * 4; b1 = V_ACC + (4 + t) * 4
            a.e(f'v_cvt_pk_bf16_f32 v{b0}, v{b0}, v{b0+1}')
            a.e(f'v_cvt_pk_bf16_f32 v{b0+1}, v{b0+2}, v{b0+3}')
            a.e(f'v_cvt_pk_bf16_f32 v{b0+2}, v{b1}, v{b1+1}')
            a.e(f'v_cvt_pk_bf16_f32 v{b0+3}, v{b1+2}, v{b1+3}')
        a.e('s_nop 1')
        KVD = V_ACC + 16
        for h in range(2):
            a.e(f'v_mfma_f32_16x16x32_bf16 v[{KVD+4*h}:{KVD+4*h+3}], v[{V_ACC+4*h}:{V_ACC+4*h+3}], v[{V_ACC+8+4*h}:{V_ACC+8+4*h+3}], 0')
            a.e(f'v_mfma_f32_16x16x32_bf16 v[{KVD+8+4*h}:{KVD+8+4*h+3}], v[{V_ACC+4*h}:{V_ACC+4*h+3}], v[{ONES}:{ONES+3}], 0')
        a.e(f's_lshl_b32 s{S_T0}, s{S_W}, 11')
        a.e(f's_add_u32 s{S_T0}, s{S_T0}, {hex(SCR)}')
        a.e(f'v_lshlrev_b32 v{T0}, 4, v{V_LANE}')
        a.e(f'v_add_u32 v{T0}, s{S_T0}, v{T0}')
        a.e(f's_lshl_b32 s{S_T0}, s{S_W}, 7')
        a.e(f's_add_u32 s{S_T0}, s{S_T0}, {hex(SCR + 8192)}')
        a.e(f'v_add_u32 v{T2}, s{S_T0}, v{T1}')
        a.e('s_nop 4')
        a.e(f'ds_write_b128 v{T0}, v[{KVD}:{KVD+3}]')
        a.e(f'ds_write_b128 v{T0}, v[{KVD+4}:{KVD+7}] offset:1024')
        set_exec(a, 0x00010001)
        a.e(f'ds_write_b128 v{T2}, v[{KVD+8}:{KVD+11}]')
        a.e(f'ds_write_b128 v{T2}, v[{KVD+12}:{KVD+15}] offset:64')
        a.e('s_mov_b64 exec, -1')
        a.e('s_waitcnt lgkmcnt(0)')
        bar(('X', 'X1'))
        sk = a.newlabel('KVST')
        a.e(f's_cmp_lt_u32 s{S_W}, 2')
        a.e(f's_cbranch_scc0 {sk}')
        a.e(f's_lshl_b32 s{S_T0}, s{S_W}, 10')
        a.e(f's_add_u32 s{S_T0}, s{S_T0}, {hex(SCR)}')
        a.e(f'v_lshlrev_b32 v{T0}, 4, v{V_LANE}')
        a.e(f'v_add_u32 v{T2}, s{S_T0}, v{T0}')
        a.e(f's_lshl_b32 s{S_T0}, s{S_W}, 6')
        a.e(f's_add_u32 s{S_T0}, s{S_T0}, {hex(SCR + 8192)}')
        a.e(f'v_add_u32 v{V_X}, s{S_T0}, v{T1}')
        KB = V_ACC
        for ww in range(4):
            a.e(f'ds_read_b128 v[{KB+4*ww}:{KB+4*ww+3}], v{T2} offset:{ww*2048}')
            a.e(f'ds_read_b128 v[{KB+16+4*ww}:{KB+16+4*ww+3}], v{V_X} offset:{ww*128}')
        a.e(f's_lshl_b32 s{S_T0}, s{S_CB2}, 4')
        a.e(f's_lshl_b32 s{S_T1}, s{S_G}, 1')
        a.e(f's_add_u32 s{S_T0}, s{S_T0}, s{S_T1}')
        a.e(f's_add_u32 s{S_T0}, s{S_T0}, s{S_RB2}')
        a.e(f's_mul_i32 s{S_T0}, s{S_T0}, {KVREC}')
        a.e(f's_add_u32 s{S_T0}, s{S_T0}, s{S_LOFF}')
        a.e(f's_add_u32 s{S_T0}, s{S_T0}, {hex(KVP_OFF)}')
        a.e(f's_lshl_b32 s{S_T1}, s{S_W}, 10')
        a.e(f's_add_u32 s{S_T1}, s{S_T1}, s{S_T0}')
        a.e(f's_lshl_b32 s{S_T2}, s{S_W}, 6')
        a.e(f's_add_u32 s{S_T2}, s{S_T2}, s{S_T0}')
        a.e(f's_add_u32 s{S_T2}, s{S_T2}, 2048')
        a.e('s_waitcnt lgkmcnt(0)')
        for base in (KB, KB + 16):
            for i in range(0, 4, 2):
                a.e(pk('add', base + i, vp(base + i), vp(base + 4 + i)))
                a.e(pk('add', base + 8 + i, vp(base + 8 + i), vp(base + 12 + i)))
                a.e(pk('add', base + i, vp(base + i), vp(base + 8 + i)))
        a.e(f'buffer_store_dwordx4 v[{KB}:{KB+3}], v{T0}, {WS}, s{S_T1} offen sc1')
        set_exec(a, 0x00010001)
        a.e(f'buffer_store_dwordx4 v[{KB+16}:{KB+19}], v{T1}, {WS}, s{S_T2} offen sc1')
        a.e('s_mov_b64 exec, -1')
        a.e(f's_lshl_b32 s{S_T0}, s{S_L}, 11')
        a.e(f's_lshl_b32 s{S_T1}, s{S_CB2}, 7')
        a.e(f's_add_u32 s{S_T0}, s{S_T0}, s{S_T1}')
        a.e(f's_lshl_b32 s{S_T1}, s{S_W}, 6')
        a.e(f's_add_u32 s{S_T0}, s{S_T0}, s{S_T1}')
        a.e(f's_lshl_b32 s{S_T1}, s{S_G}, 3')
        a.e(f's_add_u32 s{S_T0}, s{S_T0}, s{S_T1}')
        a.e(f's_lshl_b32 s{S_T1}, s{S_RB2}, 2')
        a.e(f's_add_u32 s{S_T0}, s{S_T0}, s{S_T1}')
        a.e(f's_add_u32 s{S_T0}, s{S_T0}, {hex(KVF_OFF)}')
        a.e(f'v_mov_b32 v{V_X+4}, s{S_T0}')
        a.label(sk)
        a.vm = []
        stamp()
        if done('P1KV'): return True

        a.c('=== P1Q')
        QCS = V_ACC + 16
        a.e(f'v_and_b32 v{T1}, 0x30, v{V_LANE}')
        a.e(f'v_add_u32 v{T1}, {hex(CSC + 256)}, v{T1}')
        a.e(f'ds_read_b128 v[{QCS}:{QCS+3}], v{T1}')
        a.e(f'ds_read_b128 v[{QCS+4}:{QCS+7}], v{T1} offset:64')
        a.e('s_waitcnt lgkmcnt(0)')
        QAB = [(V_ACC + 24, V_ACC + 26), (V_ACC + 28, V_ACC + 30)]
        for r in range(2):
            a.e(f'v_mov_b32 v{QAB[r][0]}, v{KEEP[r][0]}')
            a.e(f'v_mov_b32 v{QAB[r][1]}, v{KEEP[r][1]}')
        def q_issue(j, t):
            if j == opt.kvflag_at and t == 1:
                fk = a.newlabel('KVFL')
                a.e(f's_cmp_lt_u32 s{S_W}, 2')
                a.e(f's_cbranch_scc0 {fk}')
                thr_value(a, S_THR, 1, xcc=True)
                a.e(f'v_mov_b32 v{V_X+5}, s{S_THR}')
                a.e('s_waitcnt vmcnt(0)')
                a.e('s_mov_b64 exec, 1')
                a.e(f'buffer_store_dword v{V_X+5}, v{V_X+4}, {WS}, 0 offen sc1')
                a.e('s_mov_b64 exec, -1')
                a.label(fk)
        emit_gemm16(a, bar, 'P1Q', slabs['P1Q'], 2, '64',
                    acc_of=lambda r, t: V_ACC + (r * 2 + t) * 4, a_of=lambda r, j: V_A + (r * 16 + j) * 4,
                    a_wait=lambda j: None, a_issue=q_issue, wr=96, S=8)
        for r in range(2):
            for t in range(2):
                emit_lnfold(a, V_ACC + (r * 2 + t) * 4, QCS + 4 * t, QAB[r][0], QAB[r][1], 4)
        emit_phi(a, [V_ACC + i for i in range(16)], 96)
        for r in range(2):
            for h in range(2):
                emit_pack(a, V_PQ + (r * 2 + h) * 2, V_ACC + (r * 2 + h) * 4, 4)
        stamp()
        sk = a.newlabel('MODE')
        a.e(f's_cmp_eq_u32 s{S_L}, 0')
        a.e(f's_cbranch_scc0 {sk}')
        a.e(f'v_and_b32 v{T1}, 31, v{V_LANE}')
        a.e(f'v_lshlrev_b32 v{T1}, 2, v{T1}')
        a.e(f's_lshl_b32 s{S_T0}, s{S_G}, 7')
        a.e(f's_add_u32 s{S_T0}, s{S_T0}, {hex(XID_OFF)}')
        emit_poll(a, T1, 0, soff=f's{S_T0}', opt=opt)
        a.e(f'v_and_b32 v{T2}, 7, v{T2}')
        a.e(f'v_cmp_eq_u32 vcc, s{S_XCC}, v{T2}')
        a.e('s_nop 1')
        a.e('s_cmp_eq_u64 vcc, -1')
        a.e(f's_cselect_b32 s{S_MODE}, 0, 1')
        if opt.force_safe: a.e(f's_mov_b32 s{S_MODE}, 1')
        a.label(sk)
        a.e(f's_lshl_b32 s{S_T0}, s{S_L}, 11')
        emit_poll(a, V_FKV, 1, soff=f's{S_T0}', opt=opt)
        stamp()
        a.e(f's_lshl_b32 s{S_T0}, s{S_CB2}, 4')
        a.e(f's_lshl_b32 s{S_T1}, s{S_W}, 2')
        a.e(f's_add_u32 s{S_T0}, s{S_T0}, s{S_T1}')
        a.e(f's_mul_i32 s{S_T0}, s{S_T0}, {KVREC}')
        a.e(f's_add_u32 s{S_T0}, s{S_T0}, s{S_LOFF}')
        a.e(f's_add_u32 s{S_T0}, s{S_T0}, {hex(KVP_OFF)}')
        a.e(f'v_lshlrev_b32 v{T0}, 4, v{V_LANE}')
        a.e(f'v_and_b32 v{T1}, 0x30, v{V_LANE}')
        PB = V_A
        for s4 in range(4):
            b = PB + 16 * s4
            a.vmem(f'buffer_load_dwordx4 v[{b}:{b+3}], v{T0}, {WS}, s{S_T0} offen sc1', 'kp')
            a.vmem(f'buffer_load_dwordx4 v[{b+4}:{b+7}], v{T0}, {WS}, s{S_T0} offen offset:1024 sc1', 'kp')
            a.vmem(f'buffer_load_dwordx4 v[{b+8}:{b+11}], v{T1}, {WS}, s{S_T0} offen offset:2048 sc1', 'kp')
            a.vmem(f'buffer_load_dwordx4 v[{b+12}:{b+15}], v{T1}, {WS}, s{S_T0} offen offset:2112 sc1', 'kp')
            if s4 < 3: a.e(f's_add_u32 s{S_T0}, s{S_T0}, {KVREC}')
        a.e(f's_lshl_b32 s{S_T0}, s{S_W}, 11')
        a.e(f's_add_u32 s{S_T0}, s{S_T0}, {hex(SCR)}')
        a.e(f'v_add_u32 v{T0}, s{S_T0}, v{T0}')
        a.e(f's_lshl_b32 s{S_T0}, s{S_W}, 7')
        a.e(f's_add_u32 s{S_T0}, s{S_T0}, {hex(SCR + 8192)}')
        a.e(f'v_add_u32 v{T2}, s{S_T0}, v{T1}')
        a.wait_vm_all()
        for i in range(0, 16, 2):
            a.e(pk('add', PB + i, vp(PB + i), vp(PB + 16 + i)))
            a.e(pk('add', PB + 32 + i, vp(PB + 32 + i), vp(PB + 48 + i)))
        for i in range(0, 16, 2):
            a.e(pk('add', PB + i, vp(PB + i), vp(PB + 32 + i)))
        a.e(f'ds_write_b128 v{T0}, v[{PB}:{PB+3}]')
        a.e(f'ds_write_b128 v{T0}, v[{PB+4}:{PB+7}] offset:1024')
        set_exec(a, 0x00010001)
        a.e(f'ds_write_b128 v{T2}, v[{PB+8}:{PB+11}]')
        a.e(f'ds_write_b128 v{T2}, v[{PB+12}:{PB+15}] offset:64')
        a.e('s_mov_b64 exec, -1')
        a.e(f'v_lshlrev_b32 v{T0}, 4, v{V_LANE}')
        a.e(f'v_add_u32 v{T0}, {hex(SCR)}, v{T0}')
        a.e(f'v_add_u32 v{T2}, {hex(SCR + 8192)}, v{T1}')
        a.e('s_waitcnt lgkmcnt(0)')
        bar(('X', 'X2'))
        RB = V_A + 64
        for ww in range(4):
            b = RB + 16 * ww
            a.e(f'ds_read_b128 v[{b}:{b+3}], v{T0} offset:{ww*2048}')
            a.e(f'ds_read_b128 v[{b+4}:{b+7}], v{T0} offset:{ww*2048+1024}')
            a.e(f'ds_read_b128 v[{b+8}:{b+11}], v{T2} offset:{ww*128}')
            a.e(f'ds_read_b128 v[{b+12}:{b+15}], v{T2} offset:{ww*128+64}')
            if ww == 2: a.e('s_waitcnt lgkmcnt(8)')
        a.e('s_waitcnt lgkmcnt(0)')
        for i in range(0, 16, 2):
            a.e(pk('add', RB + i, vp(RB + i), vp(RB + 16 + i)))
            a.e(pk('add', RB + 32 + i, vp(RB + 32 + i), vp(RB + 48 + i)))
        for i in range(0, 16, 2):
            a.e(pk('add', RB + i, vp(RB + i), vp(RB + 32 + i)))
        OPB = V_ACC + 16
        emit_pack(a, OPB, RB, 16)
        a.e('s_nop 1')
        NUM = V_A; DEN = V_A + 16
        for r in range(2):
            for h in range(2):
                pq = V_PQ + (r * 2 + h) * 2
                n_ = NUM + (r * 2 + h) * 4; d_ = DEN + (r * 2 + h) * 4
                a.e(f'v_mfma_f32_16x16x16_bf16 v[{n_}:{n_+3}], v[{OPB+2*h}:{OPB+2*h+1}], v[{pq}:{pq+1}], 0')
                a.e(f'v_mfma_f32_16x16x16_bf16 v[{d_}:{d_+3}], v[{OPB+4+2*h}:{OPB+4+2*h+1}], v[{pq}:{pq+1}], 0')
        a.e(f's_lshl_b32 s{S_T0}, s{S_CB2}, 10')
        a.e(f's_add_u32 s{S_T0}, s{S_T0}, s{S_GH}')
        a.e(f's_add_u32 s{S_T1}, s{S_T0}, 0x4000')
        a.e('s_nop 4')
        for k in range(4): a.e(f'v_add_f32 v{DEN+4*k}, s{S_EPS6}, v{DEN+4*k}')
        for k in range(4): a.e(f'v_rcp_f32 v{DEN+4*k}, v{DEN+4*k}')
        a.e('s_nop 0')
        for k in range(4):
            for i in range(4): a.e(f'v_mul_f32 v{NUM+4*k+i}, v{NUM+4*k+i}, v{DEN+4*k}')
        OPK = V_A + 32
        emit_pack(a, OPK, NUM, 16)
        emit_mode_stores(a, [f'buffer_store_dwordx4 v[{OPK}:{OPK+3}], v{V_AB}, {WS}, s{S_T0} offen',
                             f'buffer_store_dwordx4 v[{OPK+4}:{OPK+7}], v{V_AB}, {WS}, s{S_T1} offen'], cold=True)
        emit_signal(a, ep(1))
        stamp()
        if done('P1Q'): return True

        ACC = V_ACC; WR = 80; TMP = V_A
        def small_gemm(phase, vaddr, base, tail=None, gh=False):
            def pieces(c):
                va = vaddr[c] if isinstance(vaddr, list) else vaddr
                out = []
                state = {'last': None}
                def mk(k):
                    def f():
                        if k == 0:
                            a.e(f's_add_u32 m0, s{S_W4K}, {hex(AREG + (c % 4) * 16384)}')
                        if phase != 'P7':
                            if k == 0:
                                a.e(f's_add_u32 s{S_T0}, s{S_RA+c}, {hex(base)}')
                                if gh: a.e(f's_add_u32 s{S_T0}, s{S_T0}, s{S_GH}')
                        else:
                            p_, i_ = divmod(4 * c + k, 7)
                            const = base + (i_ - k) * 1024
                            if state['last'] != (p_, const):
                                a.e(f's_add_u32 s{S_T0}, s{S_P7+p_}, {hex(const & 0xffffffff)}')
                                state['last'] = (p_, const)
                        a.vmem(f'buffer_load_dwordx4 v{va}, {WS}, s{S_T0} offen offset:{k*1024} sc1 lds', ('A', c))
                    return f
                return [mk(k) for k in range(4)]
            a.fstamp(phase)
            emit_gemm32(a, bar, phase, slabs[phase], pieces, ACC, WR, tail=tail)
        def tile_store(pkb, base, gh=False, cold=False):
            soff(S_T0, base, gh=gh)
            emit_mode_stores(a, [f'buffer_store_dwordx4 v[{pkb}:{pkb+3}], v{V_TST}, {WS}, s{S_T0} offen',
                                 f'buffer_store_dwordx4 v[{pkb+4}:{pkb+7}], v{V_TST}, {WS}, s{S_T0} offen offset:512'], cold=cold)

        a.c('=== P3')
        emit_poll(a, V_FBS, ep(1), opt=opt)
        stamp()
        small_gemm('P3', V_AS, A0_OFF, gh=True)
        stamp()
        for i in range(0, 16, 2): a.e(pk('add', V_RES + i, vp(V_RES + i), vp(ACC + i)))
        emit_pack32(a, TMP, V_RES)
        tile_store(TMP, A1_OFF, cold=True)
        soff(S_T1, ST_OFF)
        emit_stats_partial32(a, V_RES, TMP + 8, f's{S_T1}', cold=True)
        emit_signal(a, ep(2))
        stamp()
        if done('P3'): return True

        a.c('=== P4')
        CS4 = TMP + 16; RAW = TMP + 32
        a.e(f'v_lshrrev_b32 v{T1}, 5, v{V_LANE}')
        a.e(f'v_lshlrev_b32 v{T1}, 4, v{T1}')
        a.e(f's_lshl_b32 s{S_T1}, s{S_CH}, 7')
        a.e(f's_add_u32 s{S_T1}, s{S_T1}, {hex(CSC + 384)}')
        a.e(f'v_add_u32 v{T1}, s{S_T1}, v{T1}')
        for j in range(4):
            a.e(f'ds_read_b128 v[{CS4+4*j}:{CS4+4*j+3}], v{T1} offset:{32*j}')
        a.e('s_waitcnt lgkmcnt(0)')
        emit_poll(a, V_FSS, ep(2), opt=opt)
        stamp()
        def p4_tail():
            soff(S_T0, ST_OFF)
            for k in range(4):
                a.vmem(f'buffer_load_dwordx4 v[{RAW+4*k}:{RAW+4*k+3}], v{V_STS}, {WS}, s{S_T0} offen offset:{16*k} sc1', 'st')
        small_gemm('P4', V_AS, A1_OFF, tail=p4_tail)
        stamp()
        a.wait_vm_all()
        emit_sum_partials(a, RAW, 16)
        emit_xreduce(a, [RAW, RAW + 1], [RAW + 2, RAW + 3], over16=False)
        emit_stats_from_sums(a, RAW, RAW + 1, RAW + 4, RAW + 6, RAW + 8, double=True, keep=(V_MEAN, V_RS))
        emit_lnfold(a, ACC, CS4, RAW + 4, RAW + 6, 16)
        emit_gelu(a, ACC, 16, TMP + 48, V_PQ)
        emit_pack32(a, TMP, ACC)
        tile_store(TMP, A0_OFF, gh=True)
        gl = a.newlabel('GH'); gu = a.newlabel('GH'); gd = a.newlabel('GH')
        a.e(f's_cmp_eq_u32 s{S_RB}, 3')
        a.e(f's_cbranch_scc0 {gu}')
        a.e(f's_cmp_eq_u32 s{S_RH}, 1')
        a.e(f's_cbranch_scc0 {gd}')
        a.e(f's_bitcmp1_b32 s{S_CB}, 1')
        a.e(f's_cbranch_scc1 {gd}')
        a.e(f's_cmp_eq_u32 s{S_G}, 7')
        a.e(f's_cbranch_scc1 {gd}')
        a.e(f's_add_u32 s{S_T1}, s{S_G}, 1')
        a.e(f's_mul_i32 s{S_T2}, s{S_T1}, {18*16384}')
        a.e(f's_lshl_b32 s{S_T3}, s{S_T1}, 8')
        set_exec(a, 0xc0000000)
        a.e(f's_branch {gl}')
        a.label(gu)
        a.e(f's_cmp_eq_u32 s{S_RB}, 0')
        a.e(f's_cbranch_scc0 {gd}')
        a.e(f's_cmp_eq_u32 s{S_RH}, 0')
        a.e(f's_cbranch_scc0 {gd}')
        a.e(f's_bitcmp1_b32 s{S_CB}, 1')
        a.e(f's_cbranch_scc0 {gd}')
        a.e(f's_cmp_eq_u32 s{S_G}, 0')
        a.e(f's_cbranch_scc1 {gd}')
        a.e(f's_sub_u32 s{S_T1}, s{S_G}, 1')
        a.e(f's_mul_i32 s{S_T2}, s{S_T1}, {18*16384}')
        a.e(f's_add_u32 s{S_T2}, s{S_T2}, {17*16384}')
        a.e(f's_lshl_b32 s{S_T3}, s{S_T1}, 8')
        a.e(f's_add_u32 s{S_T3}, s{S_T3}, 128')
        set_exec(a, 0x00000003)
        a.label(gl)
        a.e(f's_lshl_b32 s{S_T0}, s{S_CB}, 1')
        a.e(f's_add_u32 s{S_T0}, s{S_T0}, s{S_CH}')
        a.e(f's_lshl_b32 s{S_T0}, s{S_T0}, 10')
        a.e(f's_add_u32 s{S_T2}, s{S_T2}, s{S_T0}')
        a.e(f'v_and_b32 v{T0}, 0x3fff, v{V_TST}')
        a.e(f'v_and_b32 v{T0}, 0x3ff, v{T0}')
        a.e(f'buffer_store_dwordx4 v[{TMP}:{TMP+3}], v{T0}, {WS}, s{S_T2} offen sc1')
        a.e(f'buffer_store_dwordx4 v[{TMP+4}:{TMP+7}], v{T0}, {WS}, s{S_T2} offen offset:512 sc1')
        a.e('s_mov_b64 exec, -1')
        a.e(f's_and_b32 s{S_T0}, s{S_CB}, 1')
        a.e(f's_lshr_b32 s{S_T1}, s{S_CB}, 2')
        a.e(f's_lshl_b32 s{S_T1}, s{S_T1}, 1')
        a.e(f's_add_u32 s{S_T0}, s{S_T0}, s{S_T1}')
        a.e(f's_lshl_b32 s{S_T0}, s{S_T0}, 1')
        a.e(f's_add_u32 s{S_T0}, s{S_T0}, s{S_CH}')
        a.e(f's_lshl_b32 s{S_T0}, s{S_T0}, 2')
        a.e(f's_add_u32 s{S_T3}, s{S_T3}, s{S_T0}')
        a.e(f's_lshl_b32 s{S_T0}, s{S_L}, 11')
        a.e(f's_add_u32 s{S_T3}, s{S_T3}, s{S_T0}')
        a.e(f's_add_u32 s{S_T3}, s{S_T3}, {hex(HF_OFF)}')
        thr_value(a, S_THR, ep(3), xcc=True)
        a.e(f'v_mov_b32 v{T0}, s{S_T3}')
        a.e(f'v_mov_b32 v{T1}, s{S_THR}')
        a.e('s_waitcnt vmcnt(0)')
        a.e('s_mov_b64 exec, 1')
        a.e(f'buffer_store_dword v{T1}, v{T0}, {WS}, 0 offen sc1')
        a.e('s_mov_b64 exec, -1')
        a.label(gd)
        emit_signal(a, ep(3))
        stamp()
        if done('P4'): return True

        a.c('=== P5')
        emit_poll(a, V_FH, ep(3), opt=opt)
        stamp()
        small_gemm('P5', [V_AH + k for k in range(4)], A0_OFF)
        stamp()
        a.e(f'v_mul_f32 v{TMP+10}, v{V_MEAN}, v{V_RS}')
        a.e(f'v_sub_f32 v{TMP+10}, 0, v{TMP+10}')
        a.e(f'v_mov_b32 v{TMP+8}, v{V_RS}')
        for i in range(0, 16, 2):
            a.e(pk('fma', ACC + i, vp(V_RES + i), vp(TMP + 8), vp(ACC + i), mods=' op_sel_hi:[1,0,1]'))
        for i in range(0, 16, 2):
            a.e(pk('add', ACC + i, vp(ACC + i), vp(TMP + 10), mods=' op_sel_hi:[1,0]'))
        emit_pack32(a, TMP, ACC)
        tile_store(TMP, A1_OFF)
        soff(S_T1, ST_OFF)
        emit_stats_partial32(a, ACC, TMP + 12, f's{S_T1}')
        for i in range(0, 16, 2): a.e(pk('add', V_RES + i, vp(V_RES + i), vp(ACC + i)))
        emit_signal(a, ep(4))
        stamp()
        if done('P5'): return True

        a.c('=== P6')
        CS6 = V_ACC; ACC6 = 192; WR6 = 96
        a.e(f'v_and_b32 v{T1}, 0x30, v{V_LANE}')
        a.e(f'v_add_u32 v{T1}, {hex(CSC + 640)}, v{T1}')
        for t in range(7):
            a.e(f'ds_read_b128 v[{CS6+4*t}:{CS6+4*t+3}], v{T1} offset:{64*t}')
        a.e('s_waitcnt lgkmcnt(0)')
        emit_poll(a, V_FSB, ep(4), opt=opt)
        stamp()
        def p6_load(j):
            a.e(f's_lshl_b32 s{S_T0}, s{S_RB2}, {13 if opt.rot else 31}')
            if not opt.rot: a.e(f's_mov_b32 s{S_T0}, 0')
            a.e(f's_xor_b32 s{S_T0}, s{S_T0}, {hex((j // 4) * 4096)}')
            a.e(f's_add_u32 s{S_T0}, s{S_T0}, {hex(A1_OFF)}')
            a.e(f's_add_u32 s{S_T1}, s{S_T0}, 0x4000')
            for r in range(2):
                d = V_A + ((j % 8) * 2 + r) * 4
                a.vmem(f'buffer_load_dwordx4 v[{d}:{d+3}], v{V_AB}, {WS}, s{S_T0 if r == 0 else S_T1} offen offset:{(j%4)*1024} sc1', ('A', j))
        RAW6 = [V_PQ, 248]
        def p6_issue(j, t):
            if t == 1:
                if j + opt.D_p6 < 16:
                    p6_load(j + opt.D_p6)
                elif j + opt.D_p6 == 16:
                    soff(S_T0, ST_OFF)
                    for r in range(2):
                        a.vmem(f'buffer_load_dwordx4 v[{RAW6[r]}:{RAW6[r]+3}], v{V_STB}, {WS}, s{S_T0} offen offset:{2048*r} sc1', 'st')
                        a.vmem(f'buffer_load_dwordx4 v[{RAW6[r]+4}:{RAW6[r]+7}], v{V_STB}, {WS}, s{S_T0} offen offset:{2048*r+16} sc1', 'st')
        a.fstamp('P6')
        for j in range(opt.D_p6): p6_load(j)
        emit_gemm16(a, bar, 'P6', slabs['P6'], 7, '224',
                    acc_of=lambda r, t: ACC6 + (r * 7 + t) * 4, a_of=lambda r, j: V_A + ((j % 8) * 2 + r) * 4,
                    a_wait=lambda j: a.count_vm(('A', j)), a_issue=p6_issue, wr=WR6, S=8)
        stamp()
        a.wait_vm_all()
        for r in range(2): emit_sum_partials(a, RAW6[r], 8)
        emit_xreduce(a, [RAW6[0], RAW6[0] + 1, RAW6[1], RAW6[1] + 1], [V_X, V_X + 1, V_X + 2, V_X + 3])
        AB6 = [(92, 94), (RAW6[1] + 4, RAW6[1] + 6)]
        for r in range(2):
            emit_stats_from_sums(a, RAW6[r], RAW6[r] + 1, AB6[r][0], AB6[r][1], V_X)
        a.e(f's_lshl_b32 s{S_T0}, s{S_G}, 4')
        a.e(f's_lshl_b32 s{S_T1}, s{S_RB2}, 3')
        a.e(f's_add_u32 s{S_T0}, s{S_T0}, s{S_T1}')
        a.e(f's_lshl_b32 s{S_T1}, s{S_W}, 1')
        a.e(f's_add_u32 s{S_T0}, s{S_T0}, s{S_T1}')
        a.e(f's_mul_i32 s{S_T0}, s{S_T0}, 57344')
        a.e(f's_lshr_b32 s{S_T1}, s{S_CB2}, 1')
        a.e(f's_mul_i32 s{S_T1}, s{S_T1}, 7168')
        a.e(f's_add_u32 s{S_T0}, s{S_T0}, s{S_T1}')
        a.e(f's_add_u32 s{S_T0}, s{S_T0}, {hex(G_OFF)}')
        a.e(f's_and_b32 s{S_T1}, s{S_CB2}, 1')
        a.e(f's_mul_i32 s{S_U0}, s{S_T1}, 3072')
        a.e(f's_add_u32 s{S_U0}, s{S_U0}, s{S_T0}')
        a.e(f's_add_u32 s{S_U1}, s{S_U0}, 57344')
        a.e(f's_lshl_b32 s{S_T1}, s{S_T1}, 3')
        a.e(f's_add_u32 s{S_U2}, s{S_T0}, s{S_T1}')
        a.e(f's_add_u32 s{S_U2}, s{S_U2}, 6144')
        a.e(f's_add_u32 s{S_U3}, s{S_U2}, 57344')
        a.e(f'v_lshlrev_b32 v{V_X+4}, 4, v{V_LANE}')
        for r in range(2):
            emit_lnfold(a, ACC6 + r * 28, CS6, AB6[r][0], AB6[r][1], 28)
            emit_gelu(a, ACC6 + r * 28, 28, V_A, V_PQ + 4)
            pkb = V_A + 16 + r * 16
            emit_pack(a, pkb, ACC6 + r * 28, 28)
            st = [f'buffer_store_dwordx4 v[{pkb+4*j}:{pkb+4*j+3}], v{V_X+4}, {WS}, s{S_U0+r} offen offset:{1024*j}' for j in range(3)]
            st.append(f'buffer_store_dwordx2 v[{pkb+12}:{pkb+13}], v{V_X+4}, {WS}, s{S_U2+r} offen')
            emit_mode_stores(a, st, cold=bool(opt.g_cold))
        emit_signal(a, ep(5))
        stamp()
        if done('P6'): return True

        a.c('=== P7')
        emit_poll(a, V_FBS, ep(5), opt=opt)
        stamp()
        small_gemm('P7', V_AG, G_OFF)
        stamp()
        for i in range(0, 16, 2): a.e(pk('add', V_RES + i, vp(V_RES + i), vp(ACC + i)))
        emit_pack32(a, TMP, V_RES)
        return False

    stopped = run_layer()
    if not stopped:
        fin = a.newlabel('FIN'); TMP = V_A
        a.e(f's_cmp_eq_u32 s{S_L}, 1')
        a.e(f's_cbranch_scc1 {fin}')
        a.e(f's_mov_b32 s{S_T0}, {hex(A2_OFF)}')
        emit_mode_stores(a, [f'buffer_store_dwordx4 v[{TMP}:{TMP+3}], v{V_TST}, {WS}, s{S_T0} offen',
                             f'buffer_store_dwordx4 v[{TMP+4}:{TMP+7}], v{V_TST}, {WS}, s{S_T0} offen offset:512'], cold=True)
        a.e(f's_mov_b32 s{S_T1}, {hex(ST_OFF)}')
        emit_stats_partial32(a, V_RES, TMP + 8, f's{S_T1}')
        a.e(f's_add_u32 s{S_EP}, s{S_EP}, 6')
        emit_signal(a, f's{S_EP}')
        if opt.timing:
            dump([tmreg(i) for i in range(tm[0])])
        a.e(f's_mov_b32 s{S_L}, 1')
        a.e(f's_mov_b32 s{S_LOFF}, {hex(KVP_L)}')
        a.e(f's_mov_b32 s{S_COLD}, s{S_MODE}')
        for i in range(3): a.e(f's_mov_b32 s{S_PA+i}, s{S_WS+i}')
        a.e(f's_mov_b32 s{S_PA+3}, 0x20000')
        a.e(f'v_mov_b32 v{V_P1}, v{V_AB}')
        for c in range(4):
            a.e(f's_xor_b32 s{S_RK+c}, s{S_ROTK}, {c}')
            a.e(f's_lshl_b32 s{S_RK+c}, s{S_RK+c}, 12')
            a.e(f's_add_u32 s{S_RK+c}, s{S_RK+c}, {hex(A2_OFF)}')
        a.e(f's_mov_b32 s{S_ASTR}, 1024')
        emit_fh()
        a.e(f's_branch {LOOP}')
        a.label(fin)
        emit_pack(a, TMP, V_RES, 16)
        OS = f's[{S_OUT}:{S_OUT+3}]'
        for j in range(4):
            a.e(f'buffer_store_dwordx2 v[{TMP+2*j}:{TMP+2*j+1}], v{V_XRM}, {OS}, 0 offen offset:{16*j}')
    a.label('L_END_COMPUTE')
    nn = a.newlabel('NON')
    a.e(f's_or_b32 s{S_T0}, s2, s{S_W}')
    a.e(f's_cmp_eq_u32 s{S_T0}, 0')
    a.e(f's_cbranch_scc0 {nn}')
    a.e(f's_add_u32 s{S_T0}, s{S_V}, 1')
    a.e(f'v_mov_b32 v{V_T0}, s{S_T0}')
    a.e(f'v_mov_b32 v{V_T1}, {hex(NONCE_OFF)}')
    a.e('s_mov_b64 exec, 1')
    a.e(f'buffer_store_dword v{V_T0}, v{V_T1}, {WS}, 0 offen')
    a.e('s_mov_b64 exec, -1')
    a.label(nn)
    stamp()
    if opt.timing: dump([tmreg(i) for i in range(tm[0])] + ([85] if False else []))
    if opt.fine: dump([freg(i) for i in range(fs[0])])
    a.e('s_waitcnt vmcnt(0)')
    a.e('s_endpgm')
    return evq


def gen_loader(a, opt, events):
    VN, VKV, VQ, VW3, VKVn, VQn = 8, 12, 16, 20, 28, 32
    VT0, VT1, VT2, VT3 = 1, 2, 3, 4
    a.c('--- loader setup')
    def srd(s, p, size):
        a.e(f's_mov_b32 s{s}, s{p}'); a.e(f's_mov_b32 s{s+1}, s{p+1}')
        a.e(f's_mov_b32 s{s+2}, {hex(size)}'); a.e(f's_mov_b32 s{s+3}, 0x20000')
    srd(S_WQKV, S_PTR + 2, 512 * 1536 * 2)
    srd(S_WO, S_PTR + 4, 512 * 512 * 2)
    srd(S_W1, S_PTR + 8, 512 * 512 * 2)
    srd(S_W2, S_PTR + 10, 512 * 512 * 2)
    srd(S_W3, S_PTR + 12, 512 * 1792 * 2)
    srd(S_W4, S_PTR + 14, 1792 * 512 * 2)
    CBS, CBK, CB6, CB7 = 64, 68, 72, 76
    a.e(f's_lshl_b32 s{S_T1}, s{S_RB2}, 1')
    a.e(f's_add_u32 s{S_T1}, s{S_T1}, s{S_CB2}')
    a.e(f's_and_b32 s{S_T1}, s{S_T1}, {3 if opt.rot else 0}')
    for c in range(4):
        a.e(f's_xor_b32 s{CBK+c}, s{S_T1}, {c}')
        a.e(f's_mul_i32 s{CBK+c}, s{CBK+c}, {128*3072}')
    def late_tables():
        rm = 3 if opt.rot else 0
        for c in range(4):
            a.e(f's_and_b32 s{CBS+c}, s{S_RB}, {rm}')
            a.e(f's_xor_b32 s{CBS+c}, s{CBS+c}, {c}')
            a.e(f's_lshl_b32 s{CBS+c}, s{CBS+c}, 17')
            a.e(f's_lshl_b32 s{CB6+c}, s{S_RB2}, 1')
            a.e(f's_and_b32 s{CB6+c}, s{CB6+c}, {rm}')
            a.e(f's_xor_b32 s{CB6+c}, s{CB6+c}, {c}')
            a.e(f's_mul_i32 s{CB6+c}, s{CB6+c}, {128*3584}')
        for p_ in range(8):
            a.e(f's_and_b32 s{CB7+p_}, s{S_RB}, {rm}')
            a.e(f's_lshl_b32 s{CB7+p_}, s{CB7+p_}, 1')
            a.e(f's_xor_b32 s{CB7+p_}, s{CB7+p_}, {p_}')
            a.e(f's_mul_i32 s{CB7+p_}, s{CB7+p_}, {224*1024}')

    def cs_issue():
        a.c('cs pieces')
        c1 = a.newlabel('CS'); c2 = a.newlabel('CS'); c3 = a.newlabel('CS')
        a.e(f's_min_u32 s{92}, s2, 239')
        a.e(f's_lshr_b32 s{93}, s{92}, 2')
        a.e(f's_and_b32 s{94}, s{92}, 3')
        a.e(f's_cmp_lt_u32 s{93}, 24')
        a.e(f's_cbranch_scc0 {c1}')
        for i in range(3): a.e(f's_mov_b32 s{S_CSRD+i}, s{S_WQKV+i}')
        a.e(f's_mov_b32 s{S_T0}, 3072')
        a.e(f's_lshl_b32 s{S_T1}, s{93}, 7')
        a.e(f's_branch {c3}')
        a.label(c1)
        a.e(f's_cmp_lt_u32 s{93}, 32')
        a.e(f's_cbranch_scc0 {c2}')
        for i in range(3): a.e(f's_mov_b32 s{S_CSRD+i}, s{S_W1+i}')
        a.e(f's_mov_b32 s{S_T0}, 1024')
        a.e(f's_sub_u32 s{S_T1}, s{93}, 24')
        a.e(f's_lshl_b32 s{S_T1}, s{S_T1}, 7')
        a.e(f's_branch {c3}')
        a.label(c2)
        for i in range(3): a.e(f's_mov_b32 s{S_CSRD+i}, s{S_W3+i}')
        a.e(f's_mov_b32 s{S_T0}, 3584')
        a.e(f's_sub_u32 s{S_T1}, s{93}, 32')
        a.e(f's_lshl_b32 s{S_T1}, s{S_T1}, 7')
        a.label(c3)
        a.e(f's_mov_b32 s{S_CSRD+3}, 0x20000')
        a.e(f'v_lshrrev_b32 v{VT1}, 3, v{V_LANE}')
        a.e(f'v_mul_lo_u32 v{VT1}, v{VT1}, s{S_T0}')
        a.e(f'v_and_b32 v{VT2}, 7, v{V_LANE}')
        a.e(f'v_lshl_add_u32 v{VT1}, v{VT2}, 4, v{VT1}')
        a.e(f'v_add_u32 v{VT1}, s{S_T1}, v{VT1}')
        a.e(f's_lshl_b32 s{S_T1}, s{94}, 7')
        a.e(f's_mul_i32 s{S_T1}, s{S_T1}, s{S_T0}')
        a.e(f's_lshl_b32 s{S_T0}, s{S_T0}, 3')
        a.e(f's_mov_b32 m0, {hex(CSL)}')
        for p in range(16):
            a.e('s_nop 0')
            a.vmem(f'buffer_load_dwordx4 v{VT1}, s[{S_CSRD}:{S_CSRD+3}], s{S_T1} offen lds', 'cs')
            if p < 15:
                a.e('s_add_u32 m0, m0, 1024')
                a.e(f's_add_u32 s{S_T1}, s{S_T1}, s{S_T0}')
    dg = [0]
    def dstamp():
        if opt.startdiag:
            a.e(f's_memtime s[{84+2*dg[0]}:{85+2*dg[0]}]') if False else None
            a.e('s_memtime s[98:99]'); a.e('s_waitcnt lgkmcnt(0)')
            a.e('s_sub_u32 s98, s98, s100')
            a.e(f'v_mov_b32 v{100+dg[0]}, s98'); dg[0] += 1
    dstamp()
    a.e(f'v_lshrrev_b32 v{VT0}, 3, v{V_LANE}')
    a.e(f'v_bfe_u32 v{VT1}, v{VT0}, 1, 2')
    a.e(f'v_lshlrev_b32 v{VT1}, 1, v{VT1}')
    a.e(f'v_and_b32 v{VT2}, 7, v{V_LANE}')
    a.e(f'v_xor_b32 v{VT2}, v{VT2}, v{VT1}')
    a.e(f'v_and_b32 v{VT1}, 3, v{VT2}')
    a.e(f'v_lshlrev_b32 v{VT3}, 4, v{VT1}')
    a.e(f'v_lshrrev_b32 v{VT1}, 2, v{VT2}')
    a.e(f'v_lshl_add_u32 v{VT3}, v{VT1}, 10, v{VT3}')
    a.e(f's_lshl_b32 s{S_T0}, s{S_CB2}, 6')
    a.e(f's_add_u32 s{S_T1}, s{S_T0}, 1024')
    a.e(f'v_add_u32 v{VT3}, s{S_T1}, v{VT3}')
    a.e(f'v_lshrrev_b32 v{VT1}, 2, v{VT0}')
    a.e(f'v_lshlrev_b32 v{VT1}, 3, v{VT1}')
    a.e(f'v_and_b32 v{VT2}, 3, v{VT0}')
    a.e(f'v_add_u32 v{VT1}, v{VT1}, v{VT2}')
    a.e(f'v_mul_u32_u24 v{VT1}, 3072, v{VT1}')
    a.e(f'v_add_u32 v{VT1}, v{VT1}, v{VT3}')
    for p in range(4):
        off = (16 * (p & 1) + 4 * (p >> 1)) * 3072 - p * 1024
        a.e(f'v_add_u32 v{VKVn+p}, {hex(off & 0xffffffff)}, v{VT1}')
    a.e(f'v_mul_u32_u24 v{VKV}, 3072, v{VT0}')
    a.e(f'v_add_u32 v{VKV}, v{VKV}, v{VT3}')
    for j in range(1, 4): a.e(f'v_add_u32 v{VKV+j}, {hex(j*(8*3072-1024))}, v{VKV}')

    layers = sorted(set(e[0] for e in events))
    slabs = {L: build_slabs(L) for L in layers}
    stream = []
    needed = set((e[0], e[2], e[3]) for e in events if e[1] == 'B')
    for L in layers:
        for p in PHASES:
            for ci, ch in enumerate(slabs[L][p]):
                if (L, p, ci) in needed: stream += ch
    released = set()
    log = []; cur = ['start']
    opt._log = log
    st = {'issued': 0}
    win = [opt.window0]
    def overlaps_unreleased(s, idx):
        for k in range(idx):
            o = stream[k]
            if (o.layer, o.phase, o.chunk) in released: continue
            if o.addr < s.addr + s.size and s.addr < o.addr + o.size: return True
        return False
    def emit_slab(s):
        kind = s.kind; tag = (s.layer, s.phase, s.chunk)
        if kind in ('WO', 'W1', 'W2', 'W4'):
            srd_ = {'WO': S_WO, 'W1': S_W1, 'W2': S_W2, 'W4': S_W4}[kind]; vb = VN; rs = 1024
        elif kind == 'KV': srd_, vb, rs = S_WQKV, (VKVn if s.layer == 0 else VKV), 3072
        elif kind == 'Q': srd_, vb, rs = S_WQKV, (VQn if s.layer == 0 else VQ), 3072
        else: srd_, vb, rs = S_W3, VW3, 3584
        R4 = f's[{srd_}:{srd_+3}]'
        def grp(addr, srow, ps, v0):
            a.e(f's_mov_b32 m0, {hex(addr)}')
            if kind == 'W4':
                p_, rr_ = divmod(srow, 224); tb_ = CB7 + p_
            else:
                c_, rr_ = divmod(srow, 128); tb_ = {'KV': CBK, 'Q': CBK, 'W3': CB6}.get(kind, CBS) + c_
            a.e(f's_add_u32 s{S_T0}, s{tb_}, {hex(rr_*rs)}')
            for k, p in enumerate(ps):
                a.vmem(f'buffer_load_dwordx4 v{vb+p}, {R4}, s{S_T0} offen offset:{k*1024} {"nt " if opt.w_nt else ""}lds', tag)
        if kind == 'W3':
            grp(s.addr, s.srow, [0, 1, 2, 3], 0); grp(s.addr + 4096, s.srow, [4, 5, 6], 0)
        elif kind == 'W4' and s.srow2 != s.srow + 16:
            grp(s.addr, s.srow, [0, 1], 0); grp(s.addr + 2048, s.srow2, [0, 1], 0)
        else:
            grp(s.addr, s.srow, [0, 1, 2, 3], 0)
        if len(a.vm) > win[0]:
            a.e(f's_waitcnt vmcnt({win[0]})')
            a.vm = a.vm[len(a.vm) - win[0]:]
    def issue(cap, must=None):
        n = 0
        while st['issued'] < len(stream):
            s = stream[st['issued']]
            forced = must is not None and any((o.layer, o.phase, o.chunk) == must for o in stream[st['issued']:])
            if not forced and n + s.npieces > cap: break
            if overlaps_unreleased(s, st['issued']):
                assert not forced, ('deadlock', must, s.layer, s.phase, s.chunk)
                break
            emit_slab(s); st['issued'] += 1; n += s.npieces
            log.append((cur[0], s.layer, s.phase, s.chunk, forced))
    issue(32)
    dstamp()
    cs_issue()
    dstamp()
    a.e('s_waitcnt lgkmcnt(0)')
    a.e(f's_mul_i32 s{S_B}, s{S_V}, 0x9e3779b1')
    a.e(f's_add_u32 s{S_B}, s{S_B}, 0x7f4a7c15')
    a.e(f's_and_b32 s{S_B}, s{S_B}, 0xffffff00')
    a.e(f's_lshl_b32 s{S_T0}, s{S_G}, 7')
    a.e(f's_lshl_b32 s{S_T1}, s{S_R}, 2')
    a.e(f's_add_u32 s{S_T0}, s{S_T0}, s{S_T1}')
    a.e(f's_add_u32 s{S_T0}, s{S_T0}, {hex(XID_OFF)}')
    a.e(f'v_mov_b32 v{VT1}, s{S_T0}')
    a.e(f's_add_u32 s{S_T1}, s{S_B}, s{S_XCC}')
    a.e(f'v_mov_b32 v{VT0}, s{S_T1}')
    a.e('s_mov_b64 exec, 1')
    a.vmem(f'buffer_store_dword v{VT0}, v{VT1}, {WS}, 0 offen sc1', 'xid')
    a.e('s_mov_b64 exec, -1')
    late_tables()
    a.c('W lane offsets')
    a.e(f'v_lshrrev_b32 v{VT0}, 3, v{V_LANE}')
    a.e(f'v_bfe_u32 v{VT1}, v{VT0}, 1, 1')
    a.e(f'v_lshlrev_b32 v{VT1}, 2, v{VT1}')
    a.e(f'v_and_b32 v{VT2}, 7, v{V_LANE}')
    a.e(f'v_xor_b32 v{VT2}, v{VT2}, v{VT1}')
    a.e(f'v_lshlrev_b32 v{VN}, 10, v{VT0}')
    a.e(f'v_lshl_add_u32 v{VN}, v{VT2}, 4, v{VN}')
    a.e(f's_lshl_b32 s{S_T0}, s{S_CB}, 7')
    a.e(f'v_add_u32 v{VN}, s{S_T0}, v{VN}')
    for j in range(1, 4): a.e(f'v_add_u32 v{VN+j}, {hex(j*(8192-1024))}, v{VN}')
    a.e(f'v_lshrrev_b32 v{VT0}, 2, v{V_LANE}')
    a.e(f'v_bfe_u32 v{VT1}, v{VT0}, 2, 1')
    a.e(f'v_lshlrev_b32 v{VT1}, 1, v{VT1}')
    a.e(f'v_and_b32 v{VT2}, 3, v{V_LANE}')
    a.e(f'v_xor_b32 v{VT2}, v{VT2}, v{VT1}')
    a.e(f'v_lshlrev_b32 v{VT3}, 4, v{VT2}')
    a.e(f's_lshl_b32 s{S_T0}, s{S_CB2}, 6')
    a.e(f'v_add_u32 v{VT3}, s{S_T0}, v{VT3}')
    a.e(f'v_mul_u32_u24 v{VQ}, 3072, v{VT0}')
    a.e(f'v_add_u32 v{VQ}, v{VQ}, v{VT3}')
    for j in range(1, 4): a.e(f'v_add_u32 v{VQ+j}, {hex(j*(16*3072-1024))}, v{VQ}')
    a.e(f'v_lshrrev_b32 v{VT1}, 2, v{VT0}')
    a.e(f'v_lshlrev_b32 v{VT1}, 3, v{VT1}')
    a.e(f'v_and_b32 v{VT2}, 3, v{VT0}')
    a.e(f'v_add_u32 v{VT1}, v{VT1}, v{VT2}')
    a.e(f'v_mul_u32_u24 v{VT1}, 3072, v{VT1}')
    a.e(f'v_add_u32 v{VT1}, v{VT1}, v{VT3}')
    for p in range(4):
        off = (4 * (p & 1) + 32 * (p >> 1)) * 3072 - p * 1024
        a.e(f'v_add_u32 v{VQn+p}, {hex(off & 0xffffffff)}, v{VT1}')
    a.e(f's_mul_i32 s{S_T0}, s{S_CB2}, 224')
    M14 = (1 << 20) // 14 + 1
    a.e(f's_mov_b32 s{S_T1}, {hex(M14)}')
    for p in range(7):
        a.e(f'v_add_u32 v{VT0}, {64*p}, v{V_LANE}')
        a.e(f'v_mul_lo_u32 v{VT1}, v{VT0}, s{S_T1}')
        a.e(f'v_lshrrev_b32 v{VT1}, 20, v{VT1}')
        a.e(f'v_mul_u32_u24 v{VT2}, 14, v{VT1}')
        a.e(f'v_sub_u32 v{VT2}, v{VT0}, v{VT2}')
        a.e(f'v_mul_u32_u24 v{VW3+p}, 3584, v{VT1}')
        a.e(f'v_lshl_add_u32 v{VW3+p}, v{VT2}, 4, v{VW3+p}')
        a.e(f'v_add_u32 v{VW3+p}, s{S_T0}, v{VW3+p}')
        if p % 4: a.e(f'v_subrev_u32 v{VW3+p}, {(p%4)*1024}, v{VW3+p}')
    for u in range(448): assert (u * M14) >> 20 == u // 14

    def cs_part1():
        a.wait_vm('cs')
        a.e(f'v_bfe_u32 v{VT0}, v{V_LANE}, 2, 2')
        a.e(f'v_lshrrev_b32 v{VT1}, 4, v{V_LANE}')
        a.e(f'v_lshl_add_u32 v{VT0}, v{VT1}, 2, v{VT0}')
        a.e(f'v_lshlrev_b32 v{VT0}, 7, v{VT0}')
        a.e(f'v_and_b32 v{VT2}, 3, v{V_LANE}')
        a.e(f'v_lshl_add_u32 v{VT0}, v{VT2}, 3, v{VT0}')
        a.e(f'v_add_u32 v{VT0}, {hex(CSL)}, v{VT0}')
        for i in range(4): a.e(f'v_mov_b32 v{40+i}, 0x3f803f80')
        for j in range(4):
            for t in range(4):
                a.e(f'ds_read_b64_tr_b16 v[{64+4*t}:{65+4*t}], v{VT0} offset:{j*4096+t*32}')
                a.e(f'ds_read_b64_tr_b16 v[{66+4*t}:{67+4*t}], v{VT0} offset:{j*4096+t*32+2048}')
            a.e('s_waitcnt lgkmcnt(0)')
            for t in range(4):
                c = '0' if j == 0 else f'v[{44+4*t}:{47+4*t}]'
                a.e(f'v_mfma_f32_16x16x32_bf16 v[{44+4*t}:{47+4*t}], v[{64+4*t}:{67+4*t}], v[40:43], {c}')
        a.e(f's_mul_i32 s{S_T0}, s{94}, 15360')
        a.e(f's_lshl_b32 s{S_T1}, s{93}, 8')
        a.e(f's_add_u32 s{S_T0}, s{S_T0}, s{S_T1}')
        a.e(f's_add_u32 s{S_T0}, s{S_T0}, {hex(CSP_OFF)}')
        a.e(f'v_lshlrev_b32 v{VT1}, 4, v{VT1}')
        a.e('s_nop 7')
        set_exec(a, 0x00010001)
        for t in range(4):
            a.vmem(f'buffer_store_dwordx4 v[{44+4*t}:{47+4*t}], v{VT1}, {WS}, s{S_T0} offen offset:{64*t} sc1', 'csst')
        a.e('s_mov_b64 exec, -1')
    def cs_part2():
        a.e(f's_lshl_b32 s{S_T0}, s2, 7')
        a.e(f's_add_u32 s{S_T0}, s{S_T0}, {hex(CSF_OFF)}')
        a.e(f'v_mov_b32 v{VT1}, s{S_T0}')
        a.e(f's_add_u32 s{S_T1}, s{S_B}, 8')
        a.e(f'v_mov_b32 v{VT0}, s{S_T1}')
        a.wait_vm('csst')
        a.e('s_mov_b64 exec, 1')
        a.vmem(f'buffer_store_dword v{VT0}, v{VT1}, {WS}, 0 offen sc1', 'csf')
        a.e('s_mov_b64 exec, -1')
    def cs_fill():
        L_ = a.newlabel('CPOLL'); D_ = a.newlabel('CPOLLD')
        a.e(f'v_min_u32 v{VT0}, 27, v{V_LANE}')
        a.e(f'v_lshrrev_b32 v{VT2}, 2, v{VT0}')
        a.e(f's_lshr_b32 s{S_T0}, s{S_CB2}, 1')
        a.e(f'v_lshlrev_b32 v{VT1}, 3, v{VT2}')
        a.e(f'v_add_u32 v{VT1}, s{S_T0}, v{VT1}')
        a.e(f's_add_u32 s{S_T0}, s{S_CB}, 24')
        a.e(f'v_mov_b32 v{VT3}, s{S_T0}')
        a.e(f'v_cmp_eq_u32 vcc, 3, v{VT2}')
        a.e('s_nop 1')
        a.e(f'v_cndmask_b32 v{VT1}, v{VT1}, v{VT3}, vcc')
        a.e(f's_mul_i32 s{S_T0}, s{S_CB2}, 112')
        a.e(f's_lshr_b32 s{S_T0}, s{S_T0}, 6')
        a.e(f's_add_u32 s{S_T0}, s{S_T0}, {32 - 4}')
        a.e(f'v_add_u32 v{VT3}, s{S_T0}, v{VT2}')
        a.e(f'v_min_u32 v{VT3}, 59, v{VT3}')
        a.e(f'v_cmp_lt_u32 vcc, 3, v{VT2}')
        a.e('s_nop 1')
        a.e(f'v_cndmask_b32 v{VT1}, v{VT1}, v{VT3}, vcc')
        a.e(f'v_and_b32 v{VT0}, 3, v{VT0}')
        a.e(f'v_lshl_add_u32 v{VT1}, v{VT1}, 2, v{VT0}')
        a.e(f'v_lshlrev_b32 v{VT1}, 7, v{VT1}')
        a.e(f's_mov_b32 s{S_T0}, {hex(CSF_OFF)}')
        a.e(f's_add_u32 s{S_T1}, s{S_B}, 8')
        a.e(f's_mov_b32 s{95}, {opt.spin}')
        a.label(L_)
        a.e(f'buffer_load_dword v40, v{VT1}, {WS}, s{S_T0} offen sc1')
        a.e('s_waitcnt vmcnt(0)')
        a.e(f'v_subrev_u32 v40, s{S_T1}, v40')
        a.e('v_cmp_gt_u32 vcc, 0x80, v40')
        a.e(f's_sub_u32 s{95}, s{95}, 1')
        a.e(f's_cbranch_scc1 {D_}')
        a.e('s_cmp_eq_u64 vcc, -1')
        a.e(f's_cbranch_scc0 {L_}')
        a.label(D_)
        a.vm = []
        def colof(dst, gofs):
            a.e(f'v_add_u32 v{VT0}, {gofs}, v{V_LANE}')
            a.e(f'v_lshlrev_b32 v{VT2}, 2, v{VT0}')
            a.e(f's_lshl_b32 s{S_T0}, s{S_CB2}, 5')
            a.e(f's_mul_i32 s{S_T1}, s{S_CB2}, 112')
            a.e(f's_add_u32 s{S_T1}, s{S_T1}, {2048 - 160}')
            a.e(f'v_add_u32 v{dst}, s{S_T1}, v{VT2}')
            for lim, addc, useb in [(40, 1536 - 96, 'cb'), (24, -64, 'hp'), (16, 1024 - 32, 'hp'), (8, 512, 'hp')]:
                if useb == 'cb':
                    a.e(f's_lshl_b32 s{S_T1}, s{S_CB}, 6')
                    a.e(f's_add_u32 s{S_T1}, s{S_T1}, {addc}')
                else:
                    a.e(f's_add_u32 s{S_T1}, s{S_T0}, {hex(addc & 0xffffffff)}')
                a.e(f'v_add_u32 v{VT3}, s{S_T1}, v{VT2}')
                a.e(f'v_cmp_gt_u32 vcc, {lim}, v{VT0}')
                a.e('s_nop 1')
                a.e(f'v_cndmask_b32 v{dst}, v{dst}, v{VT3}, vcc')
            a.e(f'v_lshlrev_b32 v{dst}, 2, v{dst}')
        colof(36, 0); colof(37, 64)
        a.e(f's_mov_b32 s{S_T0}, {hex(CSP_OFF)}')
        for kq in range(4):
            a.e(f'buffer_load_dwordx4 v[{40+4*kq}:{43+4*kq}], v36, {WS}, s{S_T0} offen sc1')
            a.e('s_mov_b64 exec, 0xf')
            a.e(f'buffer_load_dwordx4 v[{56+4*kq}:{59+4*kq}], v37, {WS}, s{S_T0} offen sc1')
            a.e('s_mov_b64 exec, -1')
            if kq < 3: a.e(f's_add_u32 s{S_T0}, s{S_T0}, 15360')
        a.e(f'v_lshlrev_b32 v{VT0}, 4, v{V_LANE}')
        a.e(f'v_add_u32 v{VT0}, {hex(CSC)}, v{VT0}')
        a.e('s_waitcnt vmcnt(0)')
        for b in (40, 56):
            for i in (0, 2):
                a.e(pk('add', b + i, vp(b + i), vp(b + 4 + i)))
                a.e(pk('add', b + 8 + i, vp(b + 8 + i), vp(b + 12 + i)))
                a.e(pk('add', b + i, vp(b + i), vp(b + 8 + i)))
        a.e(f'ds_write_b128 v{VT0}, v[40:43]')
        a.e('s_mov_b64 exec, 0xf')
        a.e(f'ds_write_b128 v{VT0}, v[56:59] offset:1024')
        a.e('s_mov_b64 exec, -1')
        a.e('s_waitcnt lgkmcnt(0)')

    chunks_of = {}
    for s in stream: chunks_of.setdefault((s.layer, s.phase), set()).add(s.chunk)
    nb = 0
    for ev in events:
        L, kind, p, ci = ev
        if kind == 'B':
            cur[0] = f'pre {L}.{p}.B{ci}'
            issue(0, must=(L, p, ci))
            cur[0] = f'{L}.{p}.B{ci}'
            if nb < 5: dstamp()
            a.wait_vm((L, p, ci))
            if nb < 5: dstamp()
            a.e('s_barrier')
            nb += 1
            if ci >= 2: released.add((L, p, ci - 2))
            if ci == 0:
                for (l2, p2), cs_ in chunks_of.items():
                    if p2 in NOE and (l2, PHASES.index(p2)) < (L, PHASES.index(p)):
                        for c in cs_: released.add((l2, p2, c))
            if nb == 1:
                issue(32)
            elif nb == 2:
                cs_part1()
            elif nb == 3:
                cs_part2()
            elif nb == 4:
                cs_fill()
                win[0] = opt.window
            else:
                issue(opt.caps.get(f'{p}.B{ci}', opt.caps.get(f'{p}.B*', 0)))
        elif kind == 'E':
            cur[0] = f'{L}.{p}.E'
            a.e('s_barrier')
            for c in chunks_of[(L, p)]: released.add((L, p, c))
            issue(opt.caps.get(f'{p}.E', 0))
        else:
            cur[0] = f'{L}.{p}'
            a.e('s_barrier')
            issue(opt.caps.get(p, 0))
    if opt.startdiag:
        a.e(f's_lshl_b32 s{S_T0}, s2, 8')
        a.e(f's_add_u32 s{S_T0}, s{S_T0}, {hex(TM_OFF + 128)}')
        for i in range(dg[0]):
            a.e(f'v_mov_b32 v99, {4*i}')
            a.e(f'buffer_store_dword v{100+i}, v99, {WS}, s{S_T0} offen')
    a.e('s_waitcnt vmcnt(0)')
    a.e('s_endpgm')


def gen_toucher(a, opt, events):
    a.c('--- toucher')
    mats = {'QKV': (S_PTR + 2, 512 * 1536 * 2), 'WO': (S_PTR + 4, 512 * 512 * 2), 'W1': (S_PTR + 8, 512 * 512 * 2),
            'W2': (S_PTR + 10, 512 * 512 * 2), 'W3': (S_PTR + 12, 512 * 1792 * 2), 'W4': (S_PTR + 14, 1792 * 512 * 2)}
    srds = {}
    base = 36
    for i, (k, (p, size)) in enumerate(mats.items()):
        s = base + 4 * i
        a.e(f's_mov_b32 s{s}, s{p}'); a.e(f's_mov_b32 s{s+1}, s{p+1}')
        a.e(f's_mov_b32 s{s+2}, {hex(size)}'); a.e(f's_mov_b32 s{s+3}, 0x20000')
        srds[k] = s
    a.e(f'v_lshlrev_b32 v1, 7, v{V_LANE}')
    def mall_touch():
        for k in ['W3', 'W4', 'WO', 'W1', 'W2']:
            size = mats[k][1]; per = size // 256; nl = per // 128
            s = srds[k]
            a.e(f's_mul_i32 s33, s2, {per}')
            a.e(f's_mov_b64 exec, {hex((1 << nl) - 1)}' if nl <= 32 else 's_mov_b32 exec_lo, -1')
            if nl > 32: a.e(f's_mov_b32 exec_hi, {hex((1 << (nl - 32)) - 1)}')
            a.e(f'buffer_load_dword v2, v1, s[{s}:{s+3}], s33 offen {opt.touch_flags}')
        a.e('s_mov_b64 exec, -1')
    def g_touch():
        a.e(f's_mul_i32 s33, s{S_G}, {16 * 57344}')
        a.e(f's_mul_i32 s34, s{S_R}, 28672')
        a.e('s_add_u32 s33, s33, s34')
        a.e(f's_add_u32 s33, s33, {hex(G_OFF)}')
        for i in range(4):
            if i == 3: a.e('s_mov_b32 exec_hi, 0')
            a.e(f'buffer_load_dword v2, v1, {WS}, s33 offen')
            a.e('s_add_u32 s33, s33, 8192')
        a.e('s_mov_b64 exec, -1')
    def key(sx):
        k, p, c = sx.split(',')
        return (0, k, p, None if c == '-' else int(c))
    for ev in events:
        a.e('s_barrier')
        if opt.touch and opt.touch_at and ev == key(opt.touch_at): mall_touch()
        if opt.gtouch_at and ev == key(opt.gtouch_at): g_touch()
    a.e('s_waitcnt vmcnt(0)')
    a.e('s_endpgm')


def generate(opt):
    events = build_events(opt.stop)
    a = Asm(); a.opt = opt
    hdr = open(os.path.join(os.path.dirname(os.path.abspath(__file__)), 'header.txt')).read()
    out = [hdr.rstrip('\n')]
    out.append(f'; @launch grid=(256,1,1) block=(384,1,1) lds={LDS_TOTAL}')
    out += ['.amdgcn_target "amdgcn-amd-amdhsa--gfx950"', '.text', f'.globl {KNAME}', '.p2align 8',
            f'.type {KNAME},@function', f'{KNAME}:']
    a.e('s_cmp_ge_u32 s2, 256')
    a.e('s_cbranch_scc1 L_EXIT')
    if opt.startdiag: a.e('s_memtime s[100:101]')
    a.e(f's_load_dwordx16 s[{S_PTR}:{S_PTR+15}], s[0:1], 0')
    a.e(f's_load_dwordx4 s[{S_PTR+16}:{S_PTR+19}], s[0:1], 64')
    a.e(f's_load_dwordx2 s[{S_PTR+20}:{S_PTR+21}], s[0:1], 80')
    a.e('v_lshrrev_b32 v1, 6, v0')
    a.e('s_nop 0')
    if opt.prefetch_code:
        a.e('s_getpc_b64 s[34:35]')
        a.label('L_PC')
        a.e(f's_sub_u32 s34, s34, (L_PC - {KNAME})')
        a.e('s_subb_u32 s35, s35, 0')
        a.e('v_lshlrev_b32 v2, 7, v0')
        a.e(f's_mov_b32 s36, (L_CODE_END - {KNAME} - 4)')
        a.e('v_min_u32 v2, s36, v2')
        a.e('v_and_b32 v2, -4, v2')
        a.e('global_load_dword v255, v2, s[34:35]')
        a.e('v_add_u32 v2, 49152, v2')
        a.e('v_min_u32 v2, s36, v2')
        a.e('v_and_b32 v2, -4, v2')
        a.e('global_load_dword v255, v2, s[34:35]')
    a.e(f'v_readfirstlane_b32 s{S_W}, v1')
    a.e(f'v_and_b32 v{V_LANE}, 63, v0')
    a.e(f's_getreg_b32 s{S_XCC}, hwreg(HW_REG_XCC_ID)')
    a.e(f's_and_b32 s{S_XCC}, s{S_XCC}, 7')
    a.e(f's_and_b32 s{S_G}, s2, 7')
    a.e(f's_lshr_b32 s{S_R}, s2, 3')
    a.e(f's_lshr_b32 s{S_RB}, s{S_R}, 3')
    a.e(f's_and_b32 s{S_CB}, s{S_R}, 7')
    a.e(f's_lshr_b32 s{S_RB2}, s{S_R}, 4')
    a.e(f's_and_b32 s{S_CB2}, s{S_R}, 15')
    a.e('s_waitcnt lgkmcnt(0)')
    if opt.ws_base:
        a.e(f's_add_u32 s{S_PTR+20}, s{S_PTR+20}, {hex(opt.ws_base)}')
        a.e(f's_addc_u32 s{S_PTR+21}, s{S_PTR+21}, 0')
    a.e(f's_add_u32 s34, s{S_PTR+20}, {hex(NONCE_OFF)}')
    a.e(f's_addc_u32 s35, s{S_PTR+21}, 0')
    a.e(f's_load_dword s{S_V}, s[34:35], 0')
    def srd(s, p, size):
        a.e(f's_mov_b32 s{s}, s{p}'); a.e(f's_mov_b32 s{s+1}, s{p+1}')
        a.e(f's_mov_b32 s{s+2}, {hex(size)}'); a.e(f's_mov_b32 s{s+3}, 0x20000')
    srd(S_WS, S_PTR + 20, WS_USED)
    srd(S_X, S_PTR + 0, 2048 * 512 * 2)
    srd(S_OUT, S_PTR + 16, 2048 * 512 * 2)
    a.e(f's_cmp_lt_u32 s{S_W}, 4')
    a.e('s_cbranch_scc1 L_COMPUTE')
    a.e(f's_cmp_eq_u32 s{S_W}, 5')
    a.e('s_cbranch_scc0 L_GOLOADER')
    a.e('s_getpc_b64 s[34:35]')
    a.label('L_PC3')
    a.e('s_add_u32 s34, s34, (L_TOUCHER - L_PC3)')
    a.e('s_addc_u32 s35, s35, 0')
    a.e('s_setpc_b64 s[34:35]')
    a.label('L_GOLOADER')
    a.e('s_getpc_b64 s[34:35]')
    a.label('L_PC2')
    a.e('s_add_u32 s34, s34, (L_LOADER - L_PC2)')
    a.e('s_addc_u32 s35, s35, 0')
    a.e('s_setpc_b64 s[34:35]')
    a.label('L_EXIT')
    a.e('s_endpgm')
    a.label('L_COMPUTE')
    a.vm = ['pf', 'pf'] if opt.prefetch_code else []
    if opt.stop is not None and opt.stop[0] == 0: cev = events
    else: cev = [e for e in build_events(None) if e[0] == 0]
    rest = gen_compute(a, opt, cev)
    assert not rest, rest
    a.label('L_LOADER')
    a.vm = ['pf', 'pf'] if opt.prefetch_code else []
    a.fstamp = lambda p: None
    gen_loader(a, opt, events)
    a.label('L_TOUCHER')
    gen_toucher(a, opt, events)
    a.label('L_CODE_END')
    out.append(a.text())
    out += ['.section .rodata,"a"', '.p2align 6', f'.amdhsa_kernel {KNAME}',
            '  .amdhsa_next_free_vgpr 256', '  .amdhsa_next_free_sgpr 102', '  .amdhsa_accum_offset 256',
            '  .amdhsa_group_segment_fixed_size 0', '  .amdhsa_kernarg_size 88', '  .amdhsa_user_sgpr_count 2',
            '  .amdhsa_user_sgpr_kernarg_segment_ptr 1', '  .amdhsa_system_sgpr_workgroup_id_x 1', '.end_amdhsa_kernel']
    return '\n'.join(out) + '\n'


if __name__ == '__main__':
    import argparse
    ap = argparse.ArgumentParser()
    ap.add_argument('-o', default='interleave_layers__linear_attn_block__mixer_s_mlp__prompt.s')
    ap.add_argument('--stop', default=None)
    ap.add_argument('--timing', action='store_true')
    ap.add_argument('--safe', action='store_true')
    ap.add_argument('--set', action='append', default=[])
    ap.add_argument('--fine', default=None)
    args = ap.parse_args()
    opt = Opt()
    if args.stop:
        l, p = args.stop.split(','); opt.stop = (int(l), p)
    opt.timing = args.timing; opt.force_safe = args.safe; opt.fine = args.fine
    opt.caps = dict(Opt.caps)
    for kv in args.set:
        k, v = kv.split('=')
        if '.' in k or k in ('X1', 'X2'): opt.caps[k] = int(v)
        else:
            try: setattr(opt, k, int(v))
            except ValueError: setattr(opt, k, v.replace(':', ','))
    open(args.o, 'w').write(generate(opt))
    print('written', args.o)
    if os.environ.get('SCHED'):
        import itertools
        for k, g in itertools.groupby(opt._log, key=lambda x: x[0]):
            g = list(g); d = {}
            for x in g: d[(x[1], x[2], x[3])] = d.get((x[1], x[2], x[3]), 0) + 1
            print(k, ' '.join(f'{a_}.{b_}.c{c_}x{n_}' for (a_, b_, c_), n_ in d.items()), 'FORCED' if any(x[4] for x in g) else '')
```

```python
import sys, os, struct

KNAME = 'interleave_layers__linear_attn_block__mixer_s_mlp__prompt_kernel'

class Opt:
    stop = None
    timing = False
    fine = None
    force_safe = False
    window = 40
    window0 = 60
    caps = {'P1KV.E': 64, 'P1Q.B0': 16, 'P1Q.B1': 16, 'X2': 32,
            'P3.B0': 0, 'P3.B1': 32, 'P3.B2': 16, 'P3.B3': 16,
            'P4.B1': 32, 'P4.B2': 16, 'P4.B3': 16,
            'P5.B1': 35, 'P5.B2': 14, 'P5.B3': 21,
            'P6.B0': 35, 'P6.B1': 28, 'P6.B2': 28, 'P6.B3': 28, 'P6.E': 64,
            'P7.B*': 16, 'P7.E': 64}
    cap0 = 0
    touch = True
    dbg_w_same = 0
    w_nt = 0
    g_cold = 0
    touch_at = 'B,P1Q,0'
    rot = 1
    wall = 0
    p7_self = 1
    dbg_skip = ''
    ws_base = 0
    late_a = 0
    kvflag_at = 5
    up3 = 1
    startdiag = 0
    gtouch_at = 'B,P5,2'
    dbg_a_same = 0
    touch_flags = ''
    spin = 1 << 17
    prefetch_code = True
    D_kv = 4
    D_p6 = 4

MB = 1 << 20
A0_OFF = 0
A1_OFF = 0x280000
A2_OFF = 0x480000
G_OFF = 0x680000
ST_OFF = 0xD80000
KVP_OFF = 0xDC0000
KVP_L = 0x88000
LSTRIDE = 0x780000
FL_OFF = 0xF00000
LF_OFF = FL_OFF
KVF_OFF = FL_OFF + 4096
HF_OFF = FL_OFF + 8192
XID_OFF = FL_OFF + 29696
NONCE_OFF = FL_OFF + 30720
TM_OFF = FL_OFF + 32768
CSP_OFF = FL_OFF + 32768 + 65536
CSF_OFF = CSP_OFF + 65536
WS_USED = CSF_OFF + 32768
KVREC = 2176

LDS_TOTAL = 163840
AREG = 0
SCR = 49152
CSL = None
WRING = 65536
RING = 93952
PHI = 53248
CSL = WRING + 28672
CSC = WRING + RING
assert CSC + 1088 <= LDS_TOTAL

EPS = 1e-5

def f2u(x):
    return struct.unpack('<I', struct.pack('<f', x))[0]

class Asm:
    def __init__(self):
        self.lines = []; self.nlabel = 0; self.vm = []
        self.fstamp = lambda p: None
    def e(self, s): self.lines.append('  ' + s)
    def c(self, s): self.lines.append('  ; ' + s)
    def label(self, name): self.lines.append(name + ':')
    def newlabel(self, base='L'):
        self.nlabel += 1
        return f'{base}_{self.nlabel}'
    def vmem(self, s, tag=None):
        self.e(s); self.vm.append(tag)
    def count_vm(self, tag):
        if tag not in self.vm: return None
        idx = max(i for i, t in enumerate(self.vm) if t == tag)
        n = len(self.vm) - 1 - idx
        assert n <= 63, n
        self.vm = self.vm[idx + 1:]
        return n
    def wait_vm(self, tag):
        n = self.count_vm(tag)
        if n is not None: self.e(f's_waitcnt vmcnt({n})')
    def wait_vm_all(self):
        self.e('s_waitcnt vmcnt(0)'); self.vm = []
    def text(self): return '\n'.join(self.lines)

def set_exec(a, lo, hi=None):
    a.e(f's_mov_b32 exec_lo, {hex(lo)}')
    a.e(f's_mov_b32 exec_hi, {hex(lo if hi is None else hi)}')

S_V = 3
S_WS = 4; S_X = 8; S_OUT = 12; S_PA = 16
S_G, S_R, S_W, S_RB, S_CB, S_RB2, S_CB2 = 20, 21, 22, 23, 24, 25, 26
S_MODE, S_L, S_LOFF, S_EP, S_B, S_XCC = 27, 28, 29, 30, 31, 32
S_T0, S_T1, S_T2, S_T3, S_T4, S_T5 = 33, 34, 35, 36, 37, 38
S_SPIN, S_THR = 39, 40
S_AOFF, S_AOFF2, S_ASTR = 41, 42, 43
S_C1, S_C2, S_ONE2 = 44, 46, 48
S_LOG2E, S_EPS6 = 50, 51
S_W4K = 52
S_RH, S_CH = 53, 54
S_U0, S_U1, S_U2, S_U3, S_U4 = 55, 56, 57, 58, 59
S_COLD = 62
S_GH = 63
S_RA = 86
S_RK = 90
S_P7 = 94
S_ROTK = 45
S_PTR = 64
S_WQKV, S_WO, S_W1, S_W2, S_W3, S_W4 = 40, 44, 48, 52, 56, 60
S_CSRD = 88

V_LANE = 0
V_AS, V_AB, V_AG, V_P1 = 1, 2, 3, 4
V_AH = 5
V_STS, V_STB, V_STST, V_XRM, V_TST = 9, 10, 11, 12, 13
V_FSB, V_FBS, V_FSS, V_FH, V_FOWN, V_FKV = 14, 15, 16, 17, 18, 19
V_T128, V_T64, V_T224, V_TN, V_TA = 20, 21, 22, 23, 24
V_T0, V_T1, V_T2 = 25, 26, 27
V_TB = 28
V_RES = 32
V_MEAN, V_RS = 48, 49
V_X = 50
V_PQ = 56
V_ACC = 64
V_A = 128

PHASES = ['P1KV', 'P1Q', 'P3', 'P4', 'P5', 'P6', 'P7']
NCH = {'P1KV': 4, 'P1Q': 2, 'P3': 4, 'P4': 4, 'P5': 4, 'P6': 4, 'P7': 14}

NOE = ('P3', 'P4', 'P5')

class Slab:
    def __init__(self, layer, phase, chunk, kind, size, srow, npieces, srow2=None):
        self.layer, self.phase, self.chunk, self.kind = layer, phase, chunk, kind
        self.size, self.srow, self.npieces, self.srow2 = size, srow, npieces, srow2
        self.addr = None

def w4_tile_seq():
    seq = []
    for c in range(8):
        for i in [0, 1, 2, 3, 4, 5, 7, 8, 9, 10, 11, 12, 6, 13]:
            seq.append(14 * c + i)
    return seq

def build_slabs(layer):
    ph = {}
    def simple(phase, kind, nchunk, per, size, rows, np_):
        ph[phase] = [[Slab(layer, phase, c, kind, size, (c * per + j) * rows, np_) for j in range(per)] for c in range(nchunk)]
    simple('P1KV', 'KV', 4, 4, 4096, 32, 4)
    simple('P1Q', 'Q', 2, 4, 4096, 64, 4)
    simple('P3', 'WO', 4, 4, 4096, 32, 4)
    simple('P4', 'W1', 4, 4, 4096, 32, 4)
    simple('P5', 'W2', 4, 4, 4096, 32, 4)
    simple('P6', 'W3', 4, 4, 7168, 32, 7)
    seq = w4_tile_seq()
    ph['P7'] = [[Slab(layer, 'P7', c, 'W4', 4096, seq[2 * (c * 4 + j)] * 16, 4, srow2=seq[2 * (c * 4 + j) + 1] * 16)
                 for j in range(4)] for c in range(14)]
    pos = PHI
    for p in PHASES:
        for ch in ph[p]:
            for s in ch:
                if pos + s.size > RING: pos = 0
                s.addr = WRING + pos
                pos += s.size
    assert pos == PHI, pos
    return ph

def build_events(stop):
    ev = []
    for L in range(2):
        for p in PHASES:
            for c in range(NCH[p]): ev.append((L, 'B', p, c))
            if p not in NOE: ev.append((L, 'E', p, None))
            if p == 'P1KV': ev.append((L, 'X', 'X1', None))
            if p == 'P1Q': ev.append((L, 'X', 'X2', None))
            if stop == (L, p): return ev
    return ev

WS = f's[{S_WS}:{S_WS+3}]'

def thr_value(a, dst, epoch, xcc=False):
    if isinstance(epoch, int):
        a.e(f's_add_u32 s{dst}, s{S_B}, {8*epoch}')
    else:
        a.e(f's_lshl_b32 s{dst}, {epoch}, 3')
        a.e(f's_add_u32 s{dst}, s{dst}, s{S_B}')
    if xcc: a.e(f's_add_u32 s{dst}, s{dst}, s{S_XCC}')

def emit_poll(a, vaddr, epoch, soff='0', opt=Opt, x4=False, tbase=None):
    L = a.newlabel('POLL'); D = a.newlabel('POLLD')
    thr_value(a, S_THR, epoch)
    a.e(f's_mov_b32 s{S_SPIN}, {opt.spin}')
    a.label(L)
    if x4:
        T = tbase
        a.e(f'buffer_load_dwordx4 v[{T}:{T+3}], v{vaddr}, {WS}, {soff} offen sc1')
        a.e('s_waitcnt vmcnt(0)')
        for i in range(4): a.e(f'v_subrev_u32 v{T+i}, s{S_THR}, v{T+i}')
        a.e(f'v_max_u32 v{T}, v{T}, v{T+1}')
        a.e(f'v_max_u32 v{T+2}, v{T+2}, v{T+3}')
        a.e(f'v_max_u32 v{V_T0}, v{T}, v{T+2}')
    else:
        a.e(f'buffer_load_dword v{V_T2}, v{vaddr}, {WS}, {soff} offen sc1')
        a.e('s_waitcnt vmcnt(0)')
        a.e(f'v_subrev_u32 v{V_T0}, s{S_THR}, v{V_T2}')
    a.vm = []
    a.e(f'v_cmp_gt_u32 vcc, 0x80, v{V_T0}')
    a.e(f's_sub_u32 s{S_SPIN}, s{S_SPIN}, 1')
    a.e(f's_cbranch_scc1 {D}')
    a.e('s_cmp_eq_u64 vcc, -1')
    a.e(f's_cbranch_scc0 {L}')
    a.label(D)

def emit_mode_stores(a, stores, cold=False):
    F = a.newlabel('STF'); D = a.newlabel('STD')
    a.e(f's_cmp_eq_u32 s{S_COLD if cold else S_MODE}, 0')
    a.e(f's_cbranch_scc1 {F}')
    for s in stores: a.e(s + ' sc1')
    a.e(f's_branch {D}')
    a.label(F)
    for s in stores: a.e(s)
    a.label(D)
    for s in stores: a.vm.append('st')

def emit_signal(a, epoch):
    thr_value(a, S_THR, epoch, xcc=True)
    a.e(f'v_mov_b32 v{V_T0}, s{S_THR}')
    a.wait_vm_all()
    a.e('s_mov_b64 exec, 1')
    emit_mode_stores(a, [f'buffer_store_dword v{V_T0}, v{V_FOWN}, {WS}, 0 offen'])
    a.e('s_mov_b64 exec, -1')

def emit_xreduce(a, regs, tmp, over16=True):
    for r, t in zip(regs, tmp): a.e(f'v_mov_b32 v{t}, v{r}')
    a.e('s_nop 1')
    for r, t in zip(regs, tmp): a.e(f'v_permlane32_swap_b32 v{r}, v{t}')
    a.e('s_nop 0')
    for r, t in zip(regs, tmp): a.e(f'v_add_f32 v{r}, v{r}, v{t}')
    if over16:
        for r, t in zip(regs, tmp): a.e(f'v_mov_b32 v{t}, v{r}')
        a.e('s_nop 1')
        for r, t in zip(regs, tmp): a.e(f'v_permlane16_swap_b32 v{r}, v{t}')
        a.e('s_nop 0')
        for r, t in zip(regs, tmp): a.e(f'v_add_f32 v{r}, v{r}, v{t}')

def pk(op, d, x, y, z=None, mods=''):
    s = f'v_pk_{op}_f32 v[{d}:{d+1}], {x}, {y}'
    if z is not None: s += f', {z}'
    return s + mods
def vp(r): return f'v[{r}:{r+1}]'

def emit_stats_partial32(a, vals, t0, st_soff, cold=False):
    s, q = t0, t0 + 2
    a.e(pk('add', s, vp(vals), vp(vals + 2)))
    a.e(pk('mul', q, vp(vals), vp(vals)))
    a.e(pk('fma', q, vp(vals + 2), vp(vals + 2), vp(q)))
    for i in range(4, 16, 2):
        a.e(pk('add', s, vp(s), vp(vals + i)))
        a.e(pk('fma', q, vp(vals + i), vp(vals + i), vp(q)))
    a.e(f'v_add_f32 v{t0}, v{s}, v{s+1}')
    a.e(f'v_add_f32 v{t0+1}, v{q}, v{q+1}')
    emit_xreduce(a, [t0, t0 + 1], [t0 + 4, t0 + 5], over16=False)
    set_exec(a, 0xffffffff, 0)
    emit_mode_stores(a, [f'buffer_store_dwordx2 v[{t0}:{t0+1}], v{V_STST}, {WS}, {st_soff} offen'], cold=cold)
    a.e('s_mov_b64 exec, -1')

def emit_stats_from_sums(a, s, ss, out_a, out_b, tmp, double=False, keep=None):
    mean, var = s, ss
    a.e(f'v_mul_f32 v{mean}, {hex(f2u(1.0/512))}, v{s}')
    a.e(f'v_mul_f32 v{var}, {hex(f2u(1.0/512))}, v{ss}')
    a.e(f'v_fma_f32 v{var}, -v{mean}, v{mean}, v{var}')
    a.e(f'v_max_f32 v{var}, 0, v{var}')
    a.e(f'v_add_f32 v{tmp}, {hex(f2u(EPS))}, v{var}')
    a.e(f'v_rsq_f32 v{tmp}, v{tmp}')
    a.e('s_nop 0')
    if double:
        a.e(f'v_mul_f32 v{tmp+1}, v{tmp}, v{tmp}')
        a.e(f'v_mul_f32 v{tmp+1}, v{tmp+1}, v{var}')
        a.e(f'v_add_f32 v{tmp+1}, {hex(f2u(EPS))}, v{tmp+1}')
        a.e(f'v_rsq_f32 v{tmp+1}, v{tmp+1}')
        a.e('s_nop 0')
        a.e(f'v_mul_f32 v{out_a}, v{tmp}, v{tmp+1}')
    else:
        a.e(f'v_mov_b32 v{out_a}, v{tmp}')
    if keep:
        a.e(f'v_mov_b32 v{keep[0]}, v{mean}')
        a.e(f'v_mov_b32 v{keep[1]}, v{tmp}')
    a.e(f'v_mul_f32 v{out_b}, v{out_a}, v{mean}')
    a.e(f'v_sub_f32 v{out_b}, 0, v{out_b}')

def emit_sum_partials(a, raw, n):
    k = n
    step = 2
    regs = [raw + i for i in range(0, n, 2)]
    while len(regs) > 1:
        nxt = []
        for i in range(0, len(regs), 2):
            a.e(pk('add', regs[i], vp(regs[i]), vp(regs[i + 1])))
            nxt.append(regs[i])
        regs = nxt

def emit_lnfold(a, acc, cs, av, bv, n):
    for i in range(0, n, 2):
        a.e(pk('mul', acc + i, vp(acc + i), vp(av), mods=' op_sel_hi:[1,0]'))
    for i in range(0, n, 2):
        a.e(pk('fma', acc + i, vp(cs + i), vp(bv), vp(acc + i), mods=' op_sel_hi:[1,0,1]'))

def emit_gelu(a, x, n, tmp, c1reg):
    blk = 16
    a.e(f'v_mov_b32 v{c1reg}, s{S_C1}')
    for b0 in range(0, n, blk):
        m = min(blk, n - b0); t = tmp
        for i in range(0, m, 2): a.e(pk('mul', t + i, vp(x + b0 + i), vp(x + b0 + i)))
        for i in range(0, m, 2): a.e(pk('fma', t + i, vp(t + i), f's[{S_C2}:{S_C2+1}]', vp(c1reg), mods=' op_sel_hi:[1,1,0]'))
        for i in range(0, m, 2): a.e(pk('mul', t + i, vp(t + i), vp(x + b0 + i)))
        for i in range(m): a.e(f'v_exp_f32 v{t+i}, v{t+i}')
        for i in range(0, m, 2): a.e(pk('add', t + i, vp(t + i), f's[{S_ONE2}:{S_ONE2+1}]'))
        for i in range(m): a.e(f'v_rcp_f32 v{t+i}, v{t+i}')
        for i in range(0, m, 2): a.e(pk('mul', x + b0 + i, vp(x + b0 + i), vp(t + i)))

def emit_phi(a, regs, tmp):
    for i, r in enumerate(regs): a.e(f'v_min_f32 v{tmp+i}, 0, v{r}')
    for i, r in enumerate(regs): a.e(f'v_mul_f32 v{tmp+i}, s{S_LOG2E}, v{tmp+i}')
    for i, r in enumerate(regs): a.e(f'v_exp_f32 v{tmp+i}, v{tmp+i}')
    for i, r in enumerate(regs): a.e(f'v_max_f32 v{r}, 0, v{r}')
    for i, r in enumerate(regs): a.e(f'v_add_f32 v{r}, v{r}, v{tmp+i}')
    for i, r in enumerate(regs): a.e(f'v_add_f32 v{r}, s{S_EPS6}, v{r}')

def emit_pack(a, dst, src, n):
    for i in range(0, n, 2): a.e(f'v_cvt_pk_bf16_f32 v{dst+i//2}, v{src+i}, v{src+i+1}')

def emit_pack32(a, dst, src):
    for k, j in enumerate([0, 2, 1, 3]):
        a.e(f'v_cvt_pk_bf16_f32 v{dst+2*k}, v{src+4*j}, v{src+4*j+1}')
        a.e(f'v_cvt_pk_bf16_f32 v{dst+2*k+1}, v{src+4*j+2}, v{src+4*j+3}')

class TrBase:
    def __init__(self, a, lane_reg, nt):
        self.a, self.lane_reg, self.nt, self.cur = a, lane_reg, nt, None
    def off(self, addr, span):
        if self.cur is None or addr < self.cur or addr + span - self.cur > 65535:
            self.cur = addr
            for t in range(self.nt):
                if t == 0:
                    self.a.e(f'v_add_u32 v{V_TB}, {hex(addr)}, v{self.lane_reg}')
                else:
                    self.a.e(f'v_xor_b32 v{V_TB+t}, {t << 5}, v{self.lane_reg}')
                    self.a.e(f'v_add_u32 v{V_TB+t}, {hex(addr)}, v{V_TB+t}')
        return addr - self.cur

def emit_gemm16(a, bar, phase, chunks, CT, kind, acc_of, a_of, a_wait, a_issue, wr, S, normal=False, extra=None, a_lds=None):
    R, LA = 2, 4
    ks = []
    for ci, ch in enumerate(chunks):
        first = True
        for s in ch:
            ks.append((ci, s.addr, first)); first = False
            if kind == '64': ks.append((ci, s.addr + 2048, False))
    KS = len(ks)
    if kind == '128':
        trb = TrBase(a, V_T128, 4); second = 2048; span = 4096; tb = lambda t: V_TB + t; timm = lambda t: 0
    elif kind == '64':
        trb = TrBase(a, V_T64, 2); second = 1024; span = 2048; tb = lambda t: V_TB + t; timm = lambda t: 0
    else:
        trb = TrBase(a, V_T224, 1); second = 3584; span = 7168; tb = lambda t: V_TB; timm = lambda t: 32 * t
    total = KS * CT
    def slot(n): return wr + 4 * (n % S)
    def pre_issue(n):
        j, t = divmod(n, CT)
        ci, addr, first = ks[j]
        if t == 0 and first:
            a.fstamp(phase); bar(('B', phase, ci)); a.fstamp(phase)
        imm = trb.off(addr, span) if t == 0 else addr - trb.cur
        return imm + timm(t), t
    def rd(n, half, info):
        imm, t = info
        a.e(f'ds_read_b64_tr_b16 v[{slot(n)+2*half}:{slot(n)+2*half+1}], v{tb(t)} offset:{imm + (second if half else 0)}')
    def mfma(m, r):
        j, t = divmod(m, CT)
        d = acc_of(r, t); c = '0' if j == 0 else f'v[{d}:{d+3}]'
        w = f'v[{slot(m)}:{slot(m)+3}]'; x = f'v[{a_of(r,j)}:{a_of(r,j)+3}]'
        a.e(f'v_mfma_f32_16x16x32_bf16 v[{d}:{d+3}], ' + (f'{x}, {w}' if normal else f'{w}, {x}') + f', {c}')
    lq = []
    def need(tags):
        idx = max((i for i, g in enumerate(lq) if g in tags), default=None)
        if idx is None: return None
        n_ = len(lq) - 1 - idx
        del lq[:idx + 1]
        assert n_ <= 15
        return n_
    def pre2(n):
        info = pre_issue(n)
        j, t = divmod(n, CT)
        if a_lds and t == 0:
            for s_ in a_lds(j):
                a.e(s_); lq.append(('A', j))
        return info
    def rd2(n, half, info):
        rd(n, half, info); lq.append(('W', n))
    for n in range(min(LA, total)):
        info = pre2(n); rd2(n, 0, info); rd2(n, 1, info)
    for n in range(total):
        j, t = divmod(n, CT)
        lg = need({('W', n), ('A', j)})
        vmn = a_wait(j) if t == 0 else None
        if t == 0 and j in (0, 1): a.fstamp(phase)
        parts = ([f'vmcnt({vmn})'] if vmn is not None else []) + ([f'lgkmcnt({lg})'] if lg is not None else [])
        if parts: a.e('s_waitcnt ' + ' '.join(parts))
        nx = n + LA; info = None
        mfma(n, 0)
        if nx < total:
            info = pre2(nx); rd2(nx, 0, info)
        mfma(n, 1)
        if nx < total: rd2(nx, 1, info)
        a_issue(j, t)
        if extra and t == CT - 1: extra(j)
    a.fstamp(phase); bar(('E', phase, None)); a.fstamp(phase)
    a.e('s_nop 7')

def emit_gemm32(a, bar, phase, chunks, acc, wr, tail=None, a_pieces=None):
    LA, S = 4, 5
    nch = len(chunks)
    total = nch * 8
    trb = TrBase(a, V_TN, 1)
    def slot(n): return wr + 8 * (n % S)
    def reads(n):
        c, rem = divmod(n, 8); ksl, s = divmod(rem, 2)
        out = []
        if rem == 0:
            if a_pieces: a.wait_vm(('A', c))
            a.fstamp(phase); bar(('B', phase, c)); a.fstamp(phase)
        sl = chunks[c][ksl]
        imm = trb.off(sl.addr, 4096)
        out.append(f'ds_read_b128 v[{slot(n)}:{slot(n)+3}], v{V_TA} offset:{(c % 4) * 16384 + ksl * 1024 + s * 512}')
        out.append(f'ds_read_b64_tr_b16 v[{slot(n)+4}:{slot(n)+5}], v{V_TB} offset:{imm + s * 1024}')
        out.append(f'ds_read_b64_tr_b16 v[{slot(n)+6}:{slot(n)+7}], v{V_TB} offset:{imm + s * 1024 + 2048}')
        return out
    queue = []; nxt = 2; passed = 0
    if a_pieces:
        for c in (0, 1):
            for t in a_pieces(c): t()
    for n in range(LA):
        for s in reads(n): a.e(s)
    for n in range(total):
        lg = 3 * (min(n - 1 + LA, total - 1) - n)
        a.e(f's_waitcnt lgkmcnt({lg})')
        c = '0' if n == 0 else f'v[{acc}:{acc+15}]'
        a.e(f'v_mfma_f32_32x32x16_bf16 v[{acc}:{acc+15}], v[{slot(n)+4}:{slot(n)+7}], v[{slot(n)}:{slot(n)+3}], {c}')
        nx = n + LA
        if nx < total:
            if nx % 8 == 0: passed = nx // 8
            for s in reads(nx): a.e(s)
        if a_pieces:
            while nxt < nch and (nxt <= passed + 2 or nxt <= 3) and len(queue) < 4:
                queue += list(a_pieces(nxt)); nxt += 1
            if queue: queue.pop(0)()
        if tail and n == max(total - 24, 0): tail()
    a.fstamp(phase)
    if phase not in NOE:
        bar(('E', phase, None))
    a.fstamp(phase)
    a.e('s_nop 7'); a.e('s_nop 3')


def gen_compute(a, opt, events):
    evq = list(events)
    tm = [0]
    def tmreg(i):
        assert i < 22, i
        return 64 + i
    def dump(regs):
        sk = a.newlabel('TMS')
        a.e('s_waitcnt lgkmcnt(0)')
        a.e(f's_cmp_eq_u32 s{S_W}, 0')
        a.e(f's_cbranch_scc0 {sk}')
        a.e(f's_lshl_b32 s{S_T0}, s2, 8')
        a.e(f's_lshl_b32 s{S_T1}, s{S_L}, 7')
        if opt.timing: a.e(f's_add_u32 s{S_T0}, s{S_T0}, s{S_T1}')
        a.e(f's_add_u32 s{S_T0}, s{S_T0}, {hex(TM_OFF)}')
        for i, r in enumerate(regs):
            a.e(f'v_mov_b32 v{V_T0}, s{r}')
            a.e(f'v_mov_b32 v{V_T1}, {4*i}')
            a.e(f'buffer_store_dword v{V_T0}, v{V_T1}, {WS}, s{S_T0} offen')
        a.label(sk)
        a.e('s_waitcnt vmcnt(0)')
    fs = [0]
    def freg(i): return 64 + 2 * i
    def fstamp(phase):
        if opt.fine == phase and fs[0] < 11:
            a.e(f's_memtime s[{freg(fs[0])}:{freg(fs[0])+1}]'); fs[0] += 1
    a.fstamp = fstamp
    def stamp():
        if opt.timing:
            a.e('s_memtime s[60:61]')
            a.e('s_waitcnt lgkmcnt(0)')
            a.e(f's_mov_b32 s{tmreg(tm[0])}, s60'); tm[0] += 1

    T0, T1, T2, TB = V_T0, V_T1, V_T2, V_TB
    if opt.wall:
        a.e('s_memrealtime s[60:61]'); a.e('s_waitcnt lgkmcnt(0)'); a.e('s_mov_b32 s84, s60')
        a.e('s_memtime s[60:61]'); a.e('s_waitcnt lgkmcnt(0)'); a.e('s_mov_b32 s85, s60')
    a.c('--- compute: early address setup')
    if opt.startdiag:
        a.e('s_memtime s[98:99]'); a.e('s_waitcnt lgkmcnt(0)'); a.e('s_sub_u32 s98, s98, s100'); a.e('s_mov_b32 s85, s98')
    stamp()
    a.e(f's_lshr_b32 s{S_RH}, s{S_W}, 1')
    a.e(f's_and_b32 s{S_CH}, s{S_W}, 1')
    a.e(f's_lshl_b32 s{S_W4K}, s{S_W}, 12')
    a.e(f's_lshl_b32 s{S_U0}, s{S_G}, 4')
    a.e(f's_lshl_b32 s{S_T1}, s{S_RB}, 2')
    a.e(f's_add_u32 s{S_U0}, s{S_U0}, s{S_T1}')
    a.e(f's_lshl_b32 s{S_T1}, s{S_RH}, 1')
    a.e(f's_add_u32 s{S_U2}, s{S_U0}, s{S_T1}')
    a.e(f's_add_u32 s{S_U0}, s{S_U0}, s{S_W}')
    a.e(f's_lshl_b32 s{S_U1}, s{S_G}, 4')
    a.e(f's_lshl_b32 s{S_T2}, s{S_RB2}, 3')
    a.e(f's_add_u32 s{S_U1}, s{S_U1}, s{S_T2}')
    a.e(f's_lshl_b32 s{S_T2}, s{S_W}, 1')
    a.e(f's_add_u32 s{S_U1}, s{S_U1}, s{S_T2}')
    a.e(f'v_and_b32 v{T0}, 15, v{V_LANE}')
    a.e(f'v_and_b32 v{T1}, 0x30, v{V_LANE}')
    a.e(f's_lshl_b32 s{S_ROTK}, s{S_RB2}, 1')
    a.e(f's_add_u32 s{S_ROTK}, s{S_ROTK}, s{S_CB2}')
    a.e(f's_and_b32 s{S_ROTK}, s{S_ROTK}, {3 if opt.rot else 0}')
    a.e(f'v_and_b32 v{T2}, 31, v{V_LANE}')
    a.e(f'v_lshrrev_b32 v{TB}, 5, v{V_LANE}')
    a.e(f'v_lshlrev_b32 v{V_XRM}, 10, v{T2}')
    a.e(f'v_lshl_add_u32 v{V_XRM}, v{TB}, 3, v{V_XRM}')
    a.e(f's_lshl_b32 s{S_T2}, s{S_U2}, 14')
    a.e(f's_lshl_b32 s{S_T3}, s{S_CB}, 7')
    a.e(f's_add_u32 s{S_T2}, s{S_T2}, s{S_T3}')
    a.e(f's_lshl_b32 s{S_T3}, s{S_CH}, 6')
    a.e(f's_add_u32 s{S_T2}, s{S_T2}, s{S_T3}')
    a.e(f'v_add_u32 v{V_XRM}, s{S_T2}, v{V_XRM}')
    PA = f's[{S_PA}:{S_PA+3}]'
    def p1_load(j):
        if j % 4 == 0:
            a.e(f's_mov_b32 s{S_AOFF}, s{S_RK + j // 4}')
            a.e(f's_add_u32 s{S_AOFF2}, s{S_AOFF}, 0x4000')
        for r in range(2):
            a.vmem(f'buffer_load_dwordx4 v[{V_A+(r*16+j)*4}:{V_A+(r*16+j)*4+3}], v{V_P1}, {PA}, s{S_AOFF if r == 0 else S_AOFF2} offen', ('A', j))
        if j % 4 != 3:
            a.e(f's_add_u32 s{S_AOFF}, s{S_AOFF}, s{S_ASTR}')
            a.e(f's_add_u32 s{S_AOFF2}, s{S_AOFF2}, s{S_ASTR}')
    a.e('s_waitcnt lgkmcnt(0)')
    a.e(f's_mul_i32 s{S_B}, s{S_V}, 0x9e3779b1')
    a.e(f's_add_u32 s{S_B}, s{S_B}, 0x7f4a7c15')
    a.e(f's_and_b32 s{S_B}, s{S_B}, 0xffffff00')
    a.c('--- compute: address setup')
    a.e(f'v_lshlrev_b32 v{V_X}, 4, v{V_LANE}')
    a.e(f's_lshl_b32 s{S_T2}, s{S_U1}, 14')
    a.e(f'v_add_u32 v{V_AB}, s{S_T2}, v{V_X}')
    a.e(f'v_lshlrev_b32 v{V_STS}, 4, v{T2}')
    a.e(f'v_lshl_add_u32 v{V_STS}, v{TB}, 11, v{V_STS}')
    a.e(f's_lshl_b32 s{S_T2}, s{S_U2}, 11')
    a.e(f'v_add_u32 v{V_STS}, s{S_T2}, v{V_STS}')
    a.e(f'v_lshlrev_b32 v{V_STST}, 4, v{T2}')
    a.e(f's_lshl_b32 s{S_T4}, s{S_CB}, 9')
    a.e(f's_add_u32 s{S_T2}, s{S_T2}, s{S_T4}')
    a.e(f's_lshl_b32 s{S_T4}, s{S_CH}, 3')
    a.e(f's_add_u32 s{S_T2}, s{S_T2}, s{S_T4}')
    a.e(f'v_add_u32 v{V_STST}, s{S_T2}, v{V_STST}')
    a.e(f's_lshl_b32 s{S_T3}, s{S_CB}, 1')
    a.e(f's_add_u32 s{S_T3}, s{S_T3}, s{S_CH}')
    a.e(f'v_lshlrev_b32 v{V_STB}, 4, v{T0}')
    a.e(f'v_lshl_add_u32 v{V_STB}, v{T1}, 6, v{V_STB}')
    a.e(f's_lshl_b32 s{S_T2}, s{S_U1}, 11')
    a.e(f'v_add_u32 v{V_STB}, s{S_T2}, v{V_STB}')
    a.e(f'v_lshrrev_b32 v{V_TST}, 4, v{T2}')
    a.e(f'v_lshlrev_b32 v{V_TST}, 14, v{V_TST}')
    a.e(f'v_lshl_add_u32 v{V_TST}, v{TB}, 8, v{V_TST}')
    a.e(f'v_lshl_add_u32 v{V_TST}, v{T0}, 4, v{V_TST}')
    a.e(f's_lshl_b32 s{S_T2}, s{S_U2}, 14')
    a.e(f's_lshl_b32 s{S_T4}, s{S_T3}, 10')
    a.e(f's_add_u32 s{S_T2}, s{S_T2}, s{S_T4}')
    a.e(f'v_add_u32 v{V_TST}, s{S_T2}, v{V_TST}')
    a.e(f's_lshl_b32 s{S_T2}, s{S_G}, 9')
    a.e(f's_add_u32 s{S_T2}, s{S_T2}, {hex(LF_OFF)}')
    a.e(f's_lshl_b32 s{S_T3}, s{S_W}, 7')
    a.e(f's_add_u32 s{S_T3}, s{S_T3}, s{S_T2}')
    a.e(f's_lshl_b32 s{S_T4}, s{S_R}, 2')
    a.e(f's_add_u32 s{S_T4}, s{S_T4}, s{S_T3}')
    a.e(f'v_mov_b32 v{V_FOWN}, s{S_T4}')
    a.e(f'v_and_b32 v{V_X+1}, 7, v{V_LANE}')
    a.e(f'v_lshlrev_b32 v{V_X+1}, 2, v{V_X+1}')
    a.e(f'v_bfe_u32 v{V_X+2}, v{V_LANE}, 3, 1')
    a.e(f'v_lshl_add_u32 v{V_X+1}, v{V_X+2}, 7, v{V_X+1}')
    a.e(f's_lshl_b32 s{S_T4}, s{S_RB2}, 1')
    a.e(f's_add_u32 s{S_T4}, s{S_T4}, s{S_RH}')
    a.e(f's_lshl_b32 s{S_T4}, s{S_T4}, 5')
    a.e(f's_lshl_b32 s{S_T5}, s{S_CH}, 8')
    a.e(f's_add_u32 s{S_T4}, s{S_T4}, s{S_T5}')
    a.e(f's_add_u32 s{S_T4}, s{S_T4}, s{S_T2}')
    a.e(f'v_add_u32 v{V_FSB}, s{S_T4}, v{V_X+1}')
    a.e(f's_lshl_b32 s{S_T4}, s{S_CB2}, 7')
    a.e(f's_add_u32 s{S_T4}, s{S_T4}, {hex(KVF_OFF)}')
    a.e(f'v_lshlrev_b32 v{V_FKV}, 2, v{T2}')
    a.e(f'v_add_u32 v{V_FKV}, s{S_T4}, v{V_FKV}')
    a.e(f'v_bfe_u32 v{V_X+1}, v{V_LANE}, 2, 2')
    a.e(f'v_lshrrev_b32 v{V_X+2}, 4, v{V_LANE}')
    a.e(f'v_lshl_add_u32 v{V_X+3}, v{V_X+2}, 2, v{V_X+1}')
    a.e(f'v_and_b32 v{V_X+4}, 3, v{V_LANE}')
    a.e(f'v_lshlrev_b32 v{V_X+4}, 3, v{V_X+4}')
    a.e(f'v_bfe_u32 v{V_X+5}, v{V_X+3}, 1, 2')
    a.e(f'v_lshl_add_u32 v{V_T128}, v{V_X+5}, 5, v{V_X+4}')
    a.e(f'v_lshl_add_u32 v{V_T128}, v{V_X+3}, 7, v{V_T128}')
    a.e(f'v_bfe_u32 v{V_X+5}, v{V_X+3}, 2, 1')
    a.e(f'v_lshl_add_u32 v{V_T64}, v{V_X+5}, 5, v{V_X+4}')
    a.e(f'v_lshl_add_u32 v{V_T64}, v{V_X+3}, 6, v{V_T64}')
    a.e(f'v_mul_u32_u24 v{V_T224}, 224, v{V_X+3}')
    a.e(f'v_add_u32 v{V_T224}, v{V_T224}, v{V_X+4}')
    a.e(f'v_lshrrev_b32 v{V_X+3}, 1, v{V_X+2}')
    a.e(f'v_lshl_add_u32 v{V_X+3}, v{V_X+3}, 2, v{V_X+1}')
    a.e(f'v_and_b32 v{V_X+5}, 1, v{V_X+2}')
    a.e(f's_lshl_b32 s{S_T4}, s{S_CH}, 1')
    a.e(f'v_add_u32 v{V_X+5}, s{S_T4}, v{V_X+5}')
    a.e(f'v_and_b32 v{V_X+1}, 2, v{V_X+1}')
    a.e(f'v_xor_b32 v{V_X+5}, v{V_X+5}, v{V_X+1}')
    a.e(f'v_lshl_add_u32 v{V_TN}, v{V_X+5}, 5, v{V_X+4}')
    a.e(f'v_lshl_add_u32 v{V_TN}, v{V_X+3}, 7, v{V_TN}')
    a.e(f'v_bfe_u32 v{V_TA}, v{V_LANE}, 4, 1')
    a.e(f's_lshl_b32 s{S_T4}, s{S_RH}, 1')
    a.e(f'v_add_u32 v{V_TA}, s{S_T4}, v{V_TA}')
    a.e(f'v_lshlrev_b32 v{V_TA}, 12, v{V_TA}')
    a.e(f'v_lshl_add_u32 v{V_TA}, v{TB}, 8, v{V_TA}')
    a.e(f'v_lshl_add_u32 v{V_TA}, v{T0}, 4, v{V_TA}')
    if AREG: a.e(f'v_add_u32 v{V_TA}, {hex(AREG)}, v{V_TA}')
    c1 = -2.0 * 0.7978845608028654 * 1.4426950408889634
    c2 = c1 * 0.044715
    for s, v in [(S_C1, c1), (S_C2, c2), (S_C2 + 1, c2), (S_ONE2, 1.0), (S_ONE2 + 1, 1.0),
                 (S_LOG2E, 1.4426950408889634), (S_EPS6, 1e-6)]:
        a.e(f's_mov_b32 s{s}, {hex(f2u(v))}')
    a.e(f's_mov_b32 s{S_L}, 0')
    a.e(f's_mov_b32 s{S_LOFF}, 0')
    a.e(f's_mov_b32 s{S_EP}, 1')
    a.e(f's_mov_b32 s{S_MODE}, 1')
    a.e(f's_mov_b32 s{S_COLD}, 1')
    a.e(f's_lshl_b32 s{S_GH}, s{S_G}, 1')
    a.e(f's_add_u32 s{S_GH}, s{S_GH}, 1')
    a.e(f's_lshl_b32 s{S_GH}, s{S_GH}, 14')

    LOOP = 'LAYER_LOOP'
    a.label(LOOP)
    slabs = build_slabs(0)

    def run_layer():
        def bar(ev):
            exp = evq.pop(0)
            assert exp[1:] == ev or (exp[1] == 'X' and ev[0] == 'X' and exp[2] == ev[1]), (exp, ev)
            a.e('s_barrier')
        def soff(reg, base, extra=0, gh=False):
            if gh: a.e(f's_add_u32 s{reg}, s{S_GH}, {hex(base + extra)}')
            else: a.e(f's_mov_b32 s{reg}, {hex(base + extra)}')
        def done(p):
            if opt.stop == (1, p):
                a.e(f's_cmp_eq_u32 s{S_L}, 1')
                a.e('s_cbranch_scc1 L_END_COMPUTE')
            return opt.stop == (0, p)
        def ep(k):
            a.e(f's_add_u32 s{S_T5}, s{S_EP}, {k}')
            return f's{S_T5}'

        a.c('=== P1KV')
        WR1 = 96; D1 = 116; ONES = 124; D2 = V_PQ
        for i in range(4): a.e(f'v_mov_b32 v{ONES+i}, 0x3f803f80')
        l0 = a.newlabel('KVL0'); ljoin = a.newlabel('KVJ')
        a.e(f's_cmp_eq_u32 s{S_L}, 0')
        a.e(f's_cbranch_scc1 {l0}')
        saved_ev = list(evq)
        emit_poll(a, V_FSB, f's{S_EP}', opt=opt)
        for j in range(opt.D_kv): p1_load(j)
        stamp()
        a.fstamp('P1KV')
        def kv_issue(j, t):
            if t == 1:
                if j + opt.D_kv < 16:
                    p1_load(j + opt.D_kv)
                elif j + opt.D_kv == 16:
                    soff(S_T0, ST_OFF)
                    a.vmem(f'buffer_load_dwordx4 v[{D1}:{D1+3}], v{V_STB}, {WS}, s{S_T0} offen sc1', 'st')
                    a.vmem(f'buffer_load_dwordx4 v[{D1+4}:{D1+7}], v{V_STB}, {WS}, s{S_T0} offen offset:512 sc1', 'st')
                    a.vmem(f'buffer_load_dwordx4 v[{D2}:{D2+3}], v{V_STB}, {WS}, s{S_T0} offen offset:256 sc1', 'st')
                    a.vmem(f'buffer_load_dwordx4 v[{D2+4}:{D2+7}], v{V_STB}, {WS}, s{S_T0} offen offset:768 sc1', 'st')
        emit_gemm16(a, bar, 'P1KV', slabs['P1KV'], 4, '128',
                    acc_of=lambda r, t: V_ACC + (r * 4 + t) * 4, a_of=lambda r, j: V_A + (r * 16 + j) * 4,
                    a_wait=lambda j: a.count_vm(('A', j)), a_issue=kv_issue, wr=WR1, S=5, normal=True)
        a.e(f's_branch {ljoin}')
        a.label(l0)
        evq[:] = saved_ev
        a.vm = []
        tm[0] -= 1 if opt.timing else 0
        stamp()
        VLA = V_X
        a.e(f'v_and_b32 v{T0}, 15, v{V_LANE}')
        a.e(f'v_lshrrev_b32 v{T1}, 4, v{V_LANE}')
        a.e(f'v_xor_b32 v{T1}, v{T1}, v{T0}')
        a.e(f'v_lshlrev_b32 v{T1}, 4, v{T1}')
        a.e(f's_lshl_b32 s{S_T0}, s{S_W}, 5')
        a.e(f'v_add_u32 v{T0}, s{S_T0}, v{T0}')
        a.e(f'v_lshlrev_b32 v{T0}, 8, v{T0}')
        for j in range(4):
            a.e(f'v_xor_b32 v{VLA+j}, {64*j}, v{T1}')
            a.e(f'v_add_u32 v{VLA+j}, v{VLA+j}, v{T0}')
        def kv_lds(j):
            c = j // 4
            return [f'ds_read_b128 v[{V_A+(r*16+j)*4}:{V_A+(r*16+j)*4+3}], v{VLA + j % 4} offset:{AREG + (c & 1) * 32768 + r * 4096}' for r in range(2)]
        def kv_extra(j):
            for r in range(2):
                x = f'v[{V_A+(r*16+j)*4}:{V_A+(r*16+j)*4+3}]'
                c1_ = '0' if j == 0 else f'v[{D1+4*r}:{D1+4*r+3}]'
                c2_ = '0' if j == 0 else f'v[{D2+4*r}:{D2+4*r+3}]'
                a.e(f'v_mfma_f32_16x16x32_bf16 v[{D1+4*r}:{D1+4*r+3}], v[{ONES}:{ONES+3}], {x}, {c1_}')
                a.e(f'v_mfma_f32_16x16x32_bf16 v[{D2+4*r}:{D2+4*r+3}], {x}, {x}, {c2_}')
        emit_gemm16(a, bar, 'P1KV', slabs['P1KV'], 4, '128',
                    acc_of=lambda r, t: V_ACC + (r * 4 + t) * 4, a_of=lambda r, j: V_A + (r * 16 + j) * 4,
                    a_wait=lambda j: None, a_issue=lambda j, t: None, wr=WR1, S=5, normal=True, extra=kv_extra, a_lds=kv_lds)
        a.label(ljoin)
        stamp()
        a.wait_vm_all()
        SUM = [(V_X, V_X + 1), (V_X + 2, V_X + 3)]
        l1 = a.newlabel('S1'); le = a.newlabel('SE')
        a.e(f's_cmp_eq_u32 s{S_L}, 0')
        a.e(f's_cbranch_scc0 {l1}')
        a.e(f'v_and_b32 v{T0}, 31, v{V_LANE}')
        a.e(f'v_lshlrev_b32 v{T0}, 7, v{T0}')
        a.e(f'v_lshrrev_b32 v{T1}, 5, v{V_LANE}')
        a.e(f'v_lshl_add_u32 v{T0}, v{T1}, 3, v{T0}')
        a.e(f's_lshl_b32 s{S_T0}, s{S_RH}, 12')
        a.e(f's_lshl_b32 s{S_T1}, s{S_CH}, 6')
        a.e(f's_add_u32 s{S_T0}, s{S_T0}, s{S_T1}')
        if AREG: a.e(f's_add_u32 s{S_T0}, s{S_T0}, {hex(AREG)}')
        a.e(f'v_add_u32 v{T0}, s{S_T0}, v{T0}')
        for j in range(4):
            a.e(f'ds_read_b64 v[{V_RES+4*j}:{V_RES+4*j+1}], v{T0} offset:{16*j}')
        a.e('s_waitcnt lgkmcnt(0)')
        for j in range(4):
            b = V_RES + 4 * j
            a.e(f'v_and_b32 v{b+3}, 0xffff0000, v{b+1}')
            a.e(f'v_lshlrev_b32 v{b+2}, 16, v{b+1}')
            a.e(f'v_and_b32 v{b+1}, 0xffff0000, v{b}')
            a.e(f'v_lshlrev_b32 v{b}, 16, v{b}')
        a.e(f'v_and_b32 v{T0}, 3, v{V_LANE}')
        a.e(f'v_bfe_u32 v{T1}, v{V_LANE}, 2, 2')
        a.e(f'v_lshrrev_b32 v{T2}, 4, v{V_LANE}')
        for r in range(2):
            s_, ss_ = SUM[r]
            a.e(f'v_mov_b32 v{s_}, v{D1+4*r}')
            a.e(f'v_mov_b32 v{ss_}, v{D2+4*r}')
            for i in range(1, 4):
                a.e(f'v_cmp_eq_u32 vcc, {i}, v{T0}')
                a.e('s_nop 1')
                a.e(f'v_cndmask_b32 v{ss_}, v{ss_}, v{D2+4*r+i}, vcc')
            a.e(f'v_cmp_eq_u32 vcc, v{T1}, v{T2}')
            a.e('s_nop 1')
            a.e(f'v_cndmask_b32 v{ss_}, 0, v{ss_}, vcc')
        emit_xreduce(a, [SUM[0][1], SUM[1][1]], [T0, T1])
        a.e(f's_branch {le}')
        a.label(l1)
        for r, raw in enumerate([D1, D2]):
            emit_sum_partials(a, raw, 8)
            a.e(f'v_mov_b32 v{SUM[r][0]}, v{raw}')
            a.e(f'v_mov_b32 v{SUM[r][1]}, v{raw+1}')
        emit_xreduce(a, [SUM[0][0], SUM[0][1], SUM[1][0], SUM[1][1]], [WR1, WR1 + 1, WR1 + 2, WR1 + 3])
        a.label(le)
        CSR = 120
        a.e(f'v_and_b32 v{T0}, 15, v{V_LANE}')
        a.e(f'v_lshlrev_b32 v{T0}, 2, v{T0}')
        a.e(f'v_add_u32 v{T0}, {hex(CSC)}, v{T0}')
        a.e(f'v_and_b32 v{T1}, 0x30, v{V_LANE}')
        for t in range(4):
            a.e(f'ds_read_b32 v{CSR+t}, v{T0} offset:{64*t}')
        KEEP = [(V_PQ + 0, V_PQ + 2), (V_PQ + 4, V_PQ + 6)]
        for r in range(2):
            emit_stats_from_sums(a, SUM[r][0], SUM[r][1], KEEP[r][0], KEEP[r][1], WR1)
        AI = [WR1, WR1 + 8]; BI = [WR1 + 4, WR1 + 12]
        for r in range(2):
            for i in range(4):
                a.e(f'ds_bpermute_b32 v{AI[r]+i}, v{T1}, v{KEEP[r][0]} offset:{4*i}')
                a.e(f'ds_bpermute_b32 v{BI[r]+i}, v{T1}, v{KEEP[r][1]} offset:{4*i}')
        a.e('s_waitcnt vmcnt(0) lgkmcnt(0)'); a.vm = []
        CSE = WR1 + 16
        for t in range(4): a.e(f'v_mov_b32 v{CSE+2*t}, v{CSR+t}')
        for r in range(2):
            for t in range(4):
                for i in (0, 2):
                    d = V_ACC + (r * 4 + t) * 4 + i
                    a.e(pk('mul', d, vp(d), vp(AI[r] + i)))
            for t in range(4):
                for i in (0, 2):
                    d = V_ACC + (r * 4 + t) * 4 + i
                    a.e(pk('fma', d, vp(BI[r] + i), vp(CSE + 2 * t), vp(d), mods=' op_sel_hi:[1,0,1]'))
        regs = [V_ACC + (r * 4 + t) * 4 + i for r in range(2) for t in range(2) for i in range(4)]
        emit_phi(a, regs, WR1)
        for t in range(4):
            b0 = V_ACC + t * 4; b1 = V_ACC + (4 + t) * 4
            a.e(f'v_cvt_pk_bf16_f32 v{b0}, v{b0}, v{b0+1}')
            a.e(f'v_cvt_pk_bf16_f32 v{b0+1}, v{b0+2}, v{b0+3}')
            a.e(f'v_cvt_pk_bf16_f32 v{b0+2}, v{b1}, v{b1+1}')
            a.e(f'v_cvt_pk_bf16_f32 v{b0+3}, v{b1+2}, v{b1+3}')
        a.e('s_nop 1')
        KVD = V_ACC + 16
        for h in range(2):
            a.e(f'v_mfma_f32_16x16x32_bf16 v[{KVD+4*h}:{KVD+4*h+3}], v[{V_ACC+4*h}:{V_ACC+4*h+3}], v[{V_ACC+8+4*h}:{V_ACC+8+4*h+3}], 0')
            a.e(f'v_mfma_f32_16x16x32_bf16 v[{KVD+8+4*h}:{KVD+8+4*h+3}], v[{V_ACC+4*h}:{V_ACC+4*h+3}], v[{ONES}:{ONES+3}], 0')
        a.e(f's_lshl_b32 s{S_T0}, s{S_W}, 11')
        a.e(f's_add_u32 s{S_T0}, s{S_T0}, {hex(SCR)}')
        a.e(f'v_lshlrev_b32 v{T0}, 4, v{V_LANE}')
        a.e(f'v_add_u32 v{T0}, s{S_T0}, v{T0}')
        a.e(f's_lshl_b32 s{S_T0}, s{S_W}, 7')
        a.e(f's_add_u32 s{S_T0}, s{S_T0}, {hex(SCR + 8192)}')
        a.e(f'v_add_u32 v{T2}, s{S_T0}, v{T1}')
        a.e('s_nop 4')
        a.e(f'ds_write_b128 v{T0}, v[{KVD}:{KVD+3}]')
        a.e(f'ds_write_b128 v{T0}, v[{KVD+4}:{KVD+7}] offset:1024')
        set_exec(a, 0x00010001)
        a.e(f'ds_write_b128 v{T2}, v[{KVD+8}:{KVD+11}]')
        a.e(f'ds_write_b128 v{T2}, v[{KVD+12}:{KVD+15}] offset:64')
        a.e('s_mov_b64 exec, -1')
        a.e('s_waitcnt lgkmcnt(0)')
        bar(('X', 'X1'))
        sk = a.newlabel('KVST')
        a.e(f's_cmp_lt_u32 s{S_W}, 2')
        a.e(f's_cbranch_scc0 {sk}')
        a.e(f's_lshl_b32 s{S_T0}, s{S_W}, 10')
        a.e(f's_add_u32 s{S_T0}, s{S_T0}, {hex(SCR)}')
        a.e(f'v_lshlrev_b32 v{T0}, 4, v{V_LANE}')
        a.e(f'v_add_u32 v{T2}, s{S_T0}, v{T0}')
        a.e(f's_lshl_b32 s{S_T0}, s{S_W}, 6')
        a.e(f's_add_u32 s{S_T0}, s{S_T0}, {hex(SCR + 8192)}')
        a.e(f'v_add_u32 v{V_X}, s{S_T0}, v{T1}')
        KB = V_ACC
        for ww in range(4):
            a.e(f'ds_read_b128 v[{KB+4*ww}:{KB+4*ww+3}], v{T2} offset:{ww*2048}')
            a.e(f'ds_read_b128 v[{KB+16+4*ww}:{KB+16+4*ww+3}], v{V_X} offset:{ww*128}')
        a.e(f's_lshl_b32 s{S_T0}, s{S_CB2}, 4')
        a.e(f's_lshl_b32 s{S_T1}, s{S_G}, 1')
        a.e(f's_add_u32 s{S_T0}, s{S_T0}, s{S_T1}')
        a.e(f's_add_u32 s{S_T0}, s{S_T0}, s{S_RB2}')
        a.e(f's_mul_i32 s{S_T0}, s{S_T0}, {KVREC}')
        a.e(f's_add_u32 s{S_T0}, s{S_T0}, s{S_LOFF}')
        a.e(f's_add_u32 s{S_T0}, s{S_T0}, {hex(KVP_OFF)}')
        a.e(f's_lshl_b32 s{S_T1}, s{S_W}, 10')
        a.e(f's_add_u32 s{S_T1}, s{S_T1}, s{S_T0}')
        a.e(f's_lshl_b32 s{S_T2}, s{S_W}, 6')
        a.e(f's_add_u32 s{S_T2}, s{S_T2}, s{S_T0}')
        a.e(f's_add_u32 s{S_T2}, s{S_T2}, 2048')
        a.e('s_waitcnt lgkmcnt(0)')
        for base in (KB, KB + 16):
            for i in range(0, 4, 2):
                a.e(pk('add', base + i, vp(base + i), vp(base + 4 + i)))
                a.e(pk('add', base + 8 + i, vp(base + 8 + i), vp(base + 12 + i)))
                a.e(pk('add', base + i, vp(base + i), vp(base + 8 + i)))
        a.e(f'buffer_store_dwordx4 v[{KB}:{KB+3}], v{T0}, {WS}, s{S_T1} offen sc1')
        set_exec(a, 0x00010001)
        a.e(f'buffer_store_dwordx4 v[{KB+16}:{KB+19}], v{T1}, {WS}, s{S_T2} offen sc1')
        a.e('s_mov_b64 exec, -1')
        a.e(f's_lshl_b32 s{S_T0}, s{S_L}, 11')
        a.e(f's_lshl_b32 s{S_T1}, s{S_CB2}, 7')
        a.e(f's_add_u32 s{S_T0}, s{S_T0}, s{S_T1}')
        a.e(f's_lshl_b32 s{S_T1}, s{S_W}, 6')
        a.e(f's_add_u32 s{S_T0}, s{S_T0}, s{S_T1}')
        a.e(f's_lshl_b32 s{S_T1}, s{S_G}, 3')
        a.e(f's_add_u32 s{S_T0}, s{S_T0}, s{S_T1}')
        a.e(f's_lshl_b32 s{S_T1}, s{S_RB2}, 2')
        a.e(f's_add_u32 s{S_T0}, s{S_T0}, s{S_T1}')
        a.e(f's_add_u32 s{S_T0}, s{S_T0}, {hex(KVF_OFF)}')
        a.e(f'v_mov_b32 v{V_X+4}, s{S_T0}')
        a.label(sk)
        a.vm = []
        stamp()
        if done('P1KV'): return True

        a.c('=== P1Q')
        QCS = V_ACC + 16
        a.e(f'v_and_b32 v{T1}, 0x30, v{V_LANE}')
        a.e(f'v_add_u32 v{T1}, {hex(CSC + 256)}, v{T1}')
        a.e(f'ds_read_b128 v[{QCS}:{QCS+3}], v{T1}')
        a.e(f'ds_read_b128 v[{QCS+4}:{QCS+7}], v{T1} offset:64')
        a.e('s_waitcnt lgkmcnt(0)')
        QAB = [(V_ACC + 24, V_ACC + 26), (V_ACC + 28, V_ACC + 30)]
        for r in range(2):
            a.e(f'v_mov_b32 v{QAB[r][0]}, v{KEEP[r][0]}')
            a.e(f'v_mov_b32 v{QAB[r][1]}, v{KEEP[r][1]}')
        def q_issue(j, t):
            if j == opt.kvflag_at and t == 1:
                fk = a.newlabel('KVFL')
                a.e(f's_cmp_lt_u32 s{S_W}, 2')
                a.e(f's_cbranch_scc0 {fk}')
                thr_value(a, S_THR, 1, xcc=True)
                a.e(f'v_mov_b32 v{V_X+5}, s{S_THR}')
                a.e('s_waitcnt vmcnt(0)')
                a.e('s_mov_b64 exec, 1')
                a.e(f'buffer_store_dword v{V_X+5}, v{V_X+4}, {WS}, 0 offen sc1')
                a.e('s_mov_b64 exec, -1')
                a.label(fk)
        emit_gemm16(a, bar, 'P1Q', slabs['P1Q'], 2, '64',
                    acc_of=lambda r, t: V_ACC + (r * 2 + t) * 4, a_of=lambda r, j: V_A + (r * 16 + j) * 4,
                    a_wait=lambda j: None, a_issue=q_issue, wr=96, S=8)
        for r in range(2):
            for t in range(2):
                emit_lnfold(a, V_ACC + (r * 2 + t) * 4, QCS + 4 * t, QAB[r][0], QAB[r][1], 4)
        emit_phi(a, [V_ACC + i for i in range(16)], 96)
        for r in range(2):
            for h in range(2):
                emit_pack(a, V_PQ + (r * 2 + h) * 2, V_ACC + (r * 2 + h) * 4, 4)
        stamp()
        sk = a.newlabel('MODE')
        a.e(f's_cmp_eq_u32 s{S_L}, 0')
        a.e(f's_cbranch_scc0 {sk}')
        a.e(f'v_and_b32 v{T1}, 31, v{V_LANE}')
        a.e(f'v_lshlrev_b32 v{T1}, 2, v{T1}')
        a.e(f's_lshl_b32 s{S_T0}, s{S_G}, 7')
        a.e(f's_add_u32 s{S_T0}, s{S_T0}, {hex(XID_OFF)}')
        emit_poll(a, T1, 0, soff=f's{S_T0}', opt=opt)
        a.e(f'v_and_b32 v{T2}, 7, v{T2}')
        a.e(f'v_cmp_eq_u32 vcc, s{S_XCC}, v{T2}')
        a.e('s_nop 1')
        a.e('s_cmp_eq_u64 vcc, -1')
        a.e(f's_cselect_b32 s{S_MODE}, 0, 1')
        if opt.force_safe: a.e(f's_mov_b32 s{S_MODE}, 1')
        a.label(sk)
        a.e(f's_lshl_b32 s{S_T0}, s{S_L}, 11')
        emit_poll(a, V_FKV, 1, soff=f's{S_T0}', opt=opt)
        stamp()
        a.e(f's_lshl_b32 s{S_T0}, s{S_CB2}, 4')
        a.e(f's_lshl_b32 s{S_T1}, s{S_W}, 2')
        a.e(f's_add_u32 s{S_T0}, s{S_T0}, s{S_T1}')
        a.e(f's_mul_i32 s{S_T0}, s{S_T0}, {KVREC}')
        a.e(f's_add_u32 s{S_T0}, s{S_T0}, s{S_LOFF}')
        a.e(f's_add_u32 s{S_T0}, s{S_T0}, {hex(KVP_OFF)}')
        a.e(f'v_lshlrev_b32 v{T0}, 4, v{V_LANE}')
        a.e(f'v_and_b32 v{T1}, 0x30, v{V_LANE}')
        PB = V_A
        for s4 in range(4):
            b = PB + 16 * s4
            a.vmem(f'buffer_load_dwordx4 v[{b}:{b+3}], v{T0}, {WS}, s{S_T0} offen sc1', 'kp')
            a.vmem(f'buffer_load_dwordx4 v[{b+4}:{b+7}], v{T0}, {WS}, s{S_T0} offen offset:1024 sc1', 'kp')
            a.vmem(f'buffer_load_dwordx4 v[{b+8}:{b+11}], v{T1}, {WS}, s{S_T0} offen offset:2048 sc1', 'kp')
            a.vmem(f'buffer_load_dwordx4 v[{b+12}:{b+15}], v{T1}, {WS}, s{S_T0} offen offset:2112 sc1', 'kp')
            if s4 < 3: a.e(f's_add_u32 s{S_T0}, s{S_T0}, {KVREC}')
        a.e(f's_lshl_b32 s{S_T0}, s{S_W}, 11')
        a.e(f's_add_u32 s{S_T0}, s{S_T0}, {hex(SCR)}')
        a.e(f'v_add_u32 v{T0}, s{S_T0}, v{T0}')
        a.e(f's_lshl_b32 s{S_T0}, s{S_W}, 7')
        a.e(f's_add_u32 s{S_T0}, s{S_T0}, {hex(SCR + 8192)}')
        a.e(f'v_add_u32 v{T2}, s{S_T0}, v{T1}')
        a.wait_vm_all()
        for i in range(0, 16, 2):
            a.e(pk('add', PB + i, vp(PB + i), vp(PB + 16 + i)))
            a.e(pk('add', PB + 32 + i, vp(PB + 32 + i), vp(PB + 48 + i)))
        for i in range(0, 16, 2):
            a.e(pk('add', PB + i, vp(PB + i), vp(PB + 32 + i)))
        a.e(f'ds_write_b128 v{T0}, v[{PB}:{PB+3}]')
        a.e(f'ds_write_b128 v{T0}, v[{PB+4}:{PB+7}] offset:1024')
        set_exec(a, 0x00010001)
        a.e(f'ds_write_b128 v{T2}, v[{PB+8}:{PB+11}]')
        a.e(f'ds_write_b128 v{T2}, v[{PB+12}:{PB+15}] offset:64')
        a.e('s_mov_b64 exec, -1')
        a.e(f'v_lshlrev_b32 v{T0}, 4, v{V_LANE}')
        a.e(f'v_add_u32 v{T0}, {hex(SCR)}, v{T0}')
        a.e(f'v_add_u32 v{T2}, {hex(SCR + 8192)}, v{T1}')
        a.e('s_waitcnt lgkmcnt(0)')
        bar(('X', 'X2'))
        RB = V_A + 64
        for ww in range(4):
            b = RB + 16 * ww
            a.e(f'ds_read_b128 v[{b}:{b+3}], v{T0} offset:{ww*2048}')
            a.e(f'ds_read_b128 v[{b+4}:{b+7}], v{T0} offset:{ww*2048+1024}')
            a.e(f'ds_read_b128 v[{b+8}:{b+11}], v{T2} offset:{ww*128}')
            a.e(f'ds_read_b128 v[{b+12}:{b+15}], v{T2} offset:{ww*128+64}')
            if ww == 2: a.e('s_waitcnt lgkmcnt(8)')
        a.e('s_waitcnt lgkmcnt(0)')
        for i in range(0, 16, 2):
            a.e(pk('add', RB + i, vp(RB + i), vp(RB + 16 + i)))
            a.e(pk('add', RB + 32 + i, vp(RB + 32 + i), vp(RB + 48 + i)))
        for i in range(0, 16, 2):
            a.e(pk('add', RB + i, vp(RB + i), vp(RB + 32 + i)))
        OPB = V_ACC + 16
        emit_pack(a, OPB, RB, 16)
        a.e('s_nop 1')
        NUM = V_A; DEN = V_A + 16
        for r in range(2):
            for h in range(2):
                pq = V_PQ + (r * 2 + h) * 2
                n_ = NUM + (r * 2 + h) * 4; d_ = DEN + (r * 2 + h) * 4
                a.e(f'v_mfma_f32_16x16x16_bf16 v[{n_}:{n_+3}], v[{OPB+2*h}:{OPB+2*h+1}], v[{pq}:{pq+1}], 0')
                a.e(f'v_mfma_f32_16x16x16_bf16 v[{d_}:{d_+3}], v[{OPB+4+2*h}:{OPB+4+2*h+1}], v[{pq}:{pq+1}], 0')
        a.e(f's_lshl_b32 s{S_T0}, s{S_CB2}, 10')
        a.e(f's_add_u32 s{S_T0}, s{S_T0}, s{S_GH}')
        a.e(f's_add_u32 s{S_T1}, s{S_T0}, 0x4000')
        a.e('s_nop 4')
        for k in range(4): a.e(f'v_add_f32 v{DEN+4*k}, s{S_EPS6}, v{DEN+4*k}')
        for k in range(4): a.e(f'v_rcp_f32 v{DEN+4*k}, v{DEN+4*k}')
        a.e('s_nop 0')
        for k in range(4):
            for i in range(4): a.e(f'v_mul_f32 v{NUM+4*k+i}, v{NUM+4*k+i}, v{DEN+4*k}')
        OPK = V_A + 32
        emit_pack(a, OPK, NUM, 16)
        emit_mode_stores(a, [f'buffer_store_dwordx4 v[{OPK}:{OPK+3}], v{V_AB}, {WS}, s{S_T0} offen',
                             f'buffer_store_dwordx4 v[{OPK+4}:{OPK+7}], v{V_AB}, {WS}, s{S_T1} offen'], cold=True)
        emit_signal(a, ep(1))
        stamp()
        if done('P1Q'): return True

        ACC = V_ACC; WR = 80; TMP = V_A
        def small_gemm(phase, tail=None):
            a.fstamp(phase)
            emit_gemm32(a, bar, phase, slabs[phase], ACC, WR, tail=tail)
        def tile_store(pkb, base, gh=False, cold=False):
            soff(S_T0, base, gh=gh)
            emit_mode_stores(a, [f'buffer_store_dwordx4 v[{pkb}:{pkb+3}], v{V_TST}, {WS}, s{S_T0} offen',
                                 f'buffer_store_dwordx4 v[{pkb+4}:{pkb+7}], v{V_TST}, {WS}, s{S_T0} offen offset:512'], cold=cold)

        a.c('=== P3')
        stamp()
        small_gemm('P3')
        stamp()
        for i in range(0, 16, 2): a.e(pk('add', V_RES + i, vp(V_RES + i), vp(ACC + i)))
        emit_pack32(a, TMP, V_RES)
        tile_store(TMP, A1_OFF, cold=True)
        soff(S_T1, ST_OFF)
        emit_stats_partial32(a, V_RES, TMP + 8, f's{S_T1}', cold=True)
        emit_signal(a, ep(2))
        stamp()
        if done('P3'): return True

        a.c('=== P4')
        CS4 = TMP + 16; RAW = TMP + 32
        a.e(f'v_lshrrev_b32 v{T1}, 5, v{V_LANE}')
        a.e(f'v_lshlrev_b32 v{T1}, 4, v{T1}')
        a.e(f's_lshl_b32 s{S_T1}, s{S_CH}, 7')
        a.e(f's_add_u32 s{S_T1}, s{S_T1}, {hex(CSC + 384)}')
        a.e(f'v_add_u32 v{T1}, s{S_T1}, v{T1}')
        for j in range(4):
            a.e(f'ds_read_b128 v[{CS4+4*j}:{CS4+4*j+3}], v{T1} offset:{32*j}')
        a.e('s_waitcnt lgkmcnt(0)')
        stamp()
        def p4_tail():
            soff(S_T0, ST_OFF)
            for k in range(4):
                a.vmem(f'buffer_load_dwordx4 v[{RAW+4*k}:{RAW+4*k+3}], v{V_STS}, {WS}, s{S_T0} offen offset:{512*k} sc1', 'st')
        small_gemm('P4', tail=p4_tail)
        stamp()
        a.wait_vm_all()
        emit_sum_partials(a, RAW, 16)
        emit_xreduce(a, [RAW, RAW + 1], [RAW + 2, RAW + 3], over16=False)
        emit_stats_from_sums(a, RAW, RAW + 1, RAW + 4, RAW + 6, RAW + 8, double=True, keep=(V_MEAN, V_RS))
        emit_lnfold(a, ACC, CS4, RAW + 4, RAW + 6, 16)
        emit_gelu(a, ACC, 16, TMP + 48, V_PQ)
        emit_pack32(a, TMP, ACC)
        tile_store(TMP, A0_OFF, gh=True)
        gl = a.newlabel('GH'); gu = a.newlabel('GH'); gd = a.newlabel('GH')
        a.e(f's_cmp_eq_u32 s{S_RB}, 3')
        a.e(f's_cbranch_scc0 {gu}')
        a.e(f's_cmp_eq_u32 s{S_RH}, 1')
        a.e(f's_cbranch_scc0 {gd}')
        a.e(f's_bitcmp1_b32 s{S_CB}, 1')
        a.e(f's_cbranch_scc1 {gd}')
        a.e(f's_cmp_eq_u32 s{S_G}, 7')
        a.e(f's_cbranch_scc1 {gd}')
        a.e(f's_add_u32 s{S_T1}, s{S_G}, 1')
        a.e(f's_mul_i32 s{S_T2}, s{S_T1}, {18*16384}')
        a.e(f's_lshl_b32 s{S_T3}, s{S_T1}, 8')
        set_exec(a, 0xc0000000)
        a.e(f's_branch {gl}')
        a.label(gu)
        a.e(f's_cmp_eq_u32 s{S_RB}, 0')
        a.e(f's_cbranch_scc0 {gd}')
        a.e(f's_cmp_eq_u32 s{S_RH}, 0')
        a.e(f's_cbranch_scc0 {gd}')
        a.e(f's_bitcmp1_b32 s{S_CB}, 1')
        a.e(f's_cbranch_scc0 {gd}')
        a.e(f's_cmp_eq_u32 s{S_G}, 0')
        a.e(f's_cbranch_scc1 {gd}')
        a.e(f's_sub_u32 s{S_T1}, s{S_G}, 1')
        a.e(f's_mul_i32 s{S_T2}, s{S_T1}, {18*16384}')
        a.e(f's_add_u32 s{S_T2}, s{S_T2}, {17*16384}')
        a.e(f's_lshl_b32 s{S_T3}, s{S_T1}, 8')
        a.e(f's_add_u32 s{S_T3}, s{S_T3}, 128')
        set_exec(a, 0x00000003)
        a.label(gl)
        a.e(f's_lshl_b32 s{S_T0}, s{S_CB}, 1')
        a.e(f's_add_u32 s{S_T0}, s{S_T0}, s{S_CH}')
        a.e(f's_lshl_b32 s{S_T0}, s{S_T0}, 10')
        a.e(f's_add_u32 s{S_T2}, s{S_T2}, s{S_T0}')
        a.e(f'v_and_b32 v{T0}, 0x3fff, v{V_TST}')
        a.e(f'v_and_b32 v{T0}, 0x3ff, v{T0}')
        a.e(f'buffer_store_dwordx4 v[{TMP}:{TMP+3}], v{T0}, {WS}, s{S_T2} offen sc1')
        a.e(f'buffer_store_dwordx4 v[{TMP+4}:{TMP+7}], v{T0}, {WS}, s{S_T2} offen offset:512 sc1')
        a.e('s_mov_b64 exec, -1')
        a.e(f's_and_b32 s{S_T0}, s{S_CB}, 1')
        a.e(f's_lshr_b32 s{S_T1}, s{S_CB}, 2')
        a.e(f's_lshl_b32 s{S_T1}, s{S_T1}, 1')
        a.e(f's_add_u32 s{S_T0}, s{S_T0}, s{S_T1}')
        a.e(f's_lshl_b32 s{S_T0}, s{S_T0}, 1')
        a.e(f's_add_u32 s{S_T0}, s{S_T0}, s{S_CH}')
        a.e(f's_lshl_b32 s{S_T0}, s{S_T0}, 2')
        a.e(f's_add_u32 s{S_T3}, s{S_T3}, s{S_T0}')
        a.e(f's_lshl_b32 s{S_T0}, s{S_L}, 11')
        a.e(f's_add_u32 s{S_T3}, s{S_T3}, s{S_T0}')
        a.e(f's_add_u32 s{S_T3}, s{S_T3}, {hex(HF_OFF)}')
        thr_value(a, S_THR, ep(3), xcc=True)
        a.e(f'v_mov_b32 v{T0}, s{S_T3}')
        a.e(f'v_mov_b32 v{T1}, s{S_THR}')
        a.e('s_waitcnt vmcnt(0)')
        a.e('s_mov_b64 exec, 1')
        a.e(f'buffer_store_dword v{T1}, v{T0}, {WS}, 0 offen sc1')
        a.e('s_mov_b64 exec, -1')
        a.label(gd)
        emit_signal(a, ep(3))
        stamp()
        if done('P4'): return True

        a.c('=== P5')
        stamp()
        small_gemm('P5')
        stamp()
        a.e(f'v_mul_f32 v{TMP+10}, v{V_MEAN}, v{V_RS}')
        a.e(f'v_sub_f32 v{TMP+10}, 0, v{TMP+10}')
        a.e(f'v_mov_b32 v{TMP+8}, v{V_RS}')
        for i in range(0, 16, 2):
            a.e(pk('fma', ACC + i, vp(V_RES + i), vp(TMP + 8), vp(ACC + i), mods=' op_sel_hi:[1,0,1]'))
        for i in range(0, 16, 2):
            a.e(pk('add', ACC + i, vp(ACC + i), vp(TMP + 10), mods=' op_sel_hi:[1,0]'))
        emit_pack32(a, TMP, ACC)
        tile_store(TMP, A1_OFF)
        soff(S_T1, ST_OFF)
        emit_stats_partial32(a, ACC, TMP + 12, f's{S_T1}')
        for i in range(0, 16, 2): a.e(pk('add', V_RES + i, vp(V_RES + i), vp(ACC + i)))
        emit_signal(a, ep(4))
        stamp()
        if done('P5'): return True

        a.c('=== P6')
        CS6 = V_ACC; ACC6 = 192; WR6 = 96
        a.e(f'v_and_b32 v{T1}, 0x30, v{V_LANE}')
        a.e(f'v_add_u32 v{T1}, {hex(CSC + 640)}, v{T1}')
        for t in range(7):
            a.e(f'ds_read_b128 v[{CS6+4*t}:{CS6+4*t+3}], v{T1} offset:{64*t}')
        a.e('s_waitcnt lgkmcnt(0)')
        emit_poll(a, V_FSB, ep(4), opt=opt)
        stamp()
        def p6_load(j):
            a.e(f's_lshl_b32 s{S_T0}, s{S_RB2}, {13 if opt.rot else 31}')
            if not opt.rot: a.e(f's_mov_b32 s{S_T0}, 0')
            a.e(f's_xor_b32 s{S_T0}, s{S_T0}, {hex((j // 4) * 4096)}')
            a.e(f's_add_u32 s{S_T0}, s{S_T0}, {hex(A1_OFF)}')
            a.e(f's_add_u32 s{S_T1}, s{S_T0}, 0x4000')
            for r in range(2):
                d = V_A + ((j % 8) * 2 + r) * 4
                a.vmem(f'buffer_load_dwordx4 v[{d}:{d+3}], v{V_AB}, {WS}, s{S_T0 if r == 0 else S_T1} offen offset:{(j%4)*1024} sc1', ('A', j))
        RAW6 = [V_PQ, 248]
        def p6_issue(j, t):
            if t == 1:
                if j + opt.D_p6 < 16:
                    p6_load(j + opt.D_p6)
                elif j + opt.D_p6 == 16:
                    soff(S_T0, ST_OFF)
                    for r in range(2):
                        a.vmem(f'buffer_load_dwordx4 v[{RAW6[r]}:{RAW6[r]+3}], v{V_STB}, {WS}, s{S_T0} offen offset:{256*r} sc1', 'st')
                        a.vmem(f'buffer_load_dwordx4 v[{RAW6[r]+4}:{RAW6[r]+7}], v{V_STB}, {WS}, s{S_T0} offen offset:{256*r+512} sc1', 'st')
        a.fstamp('P6')
        for j in range(opt.D_p6): p6_load(j)
        emit_gemm16(a, bar, 'P6', slabs['P6'], 7, '224',
                    acc_of=lambda r, t: ACC6 + (r * 7 + t) * 4, a_of=lambda r, j: V_A + ((j % 8) * 2 + r) * 4,
                    a_wait=lambda j: a.count_vm(('A', j)), a_issue=p6_issue, wr=WR6, S=8)
        stamp()
        a.wait_vm_all()
        for r in range(2): emit_sum_partials(a, RAW6[r], 8)
        emit_xreduce(a, [RAW6[0], RAW6[0] + 1, RAW6[1], RAW6[1] + 1], [V_X, V_X + 1, V_X + 2, V_X + 3])
        AB6 = [(92, 94), (RAW6[1] + 4, RAW6[1] + 6)]
        for r in range(2):
            emit_stats_from_sums(a, RAW6[r], RAW6[r] + 1, AB6[r][0], AB6[r][1], V_X)
        a.e(f's_lshl_b32 s{S_T0}, s{S_G}, 4')
        a.e(f's_lshl_b32 s{S_T1}, s{S_RB2}, 3')
        a.e(f's_add_u32 s{S_T0}, s{S_T0}, s{S_T1}')
        a.e(f's_lshl_b32 s{S_T1}, s{S_W}, 1')
        a.e(f's_add_u32 s{S_T0}, s{S_T0}, s{S_T1}')
        a.e(f's_mul_i32 s{S_T0}, s{S_T0}, 57344')
        a.e(f's_lshr_b32 s{S_T1}, s{S_CB2}, 1')
        a.e(f's_mul_i32 s{S_T1}, s{S_T1}, 7168')
        a.e(f's_add_u32 s{S_T0}, s{S_T0}, s{S_T1}')
        a.e(f's_add_u32 s{S_T0}, s{S_T0}, {hex(G_OFF)}')
        a.e(f's_and_b32 s{S_T1}, s{S_CB2}, 1')
        a.e(f's_mul_i32 s{S_U0}, s{S_T1}, 3072')
        a.e(f's_add_u32 s{S_U0}, s{S_U0}, s{S_T0}')
        a.e(f's_add_u32 s{S_U1}, s{S_U0}, 57344')
        a.e(f's_lshl_b32 s{S_T1}, s{S_T1}, 3')
        a.e(f's_add_u32 s{S_U2}, s{S_T0}, s{S_T1}')
        a.e(f's_add_u32 s{S_U2}, s{S_U2}, 6144')
        a.e(f's_add_u32 s{S_U3}, s{S_U2}, 57344')
        a.e(f'v_lshlrev_b32 v{V_X+4}, 4, v{V_LANE}')
        for r in range(2):
            emit_lnfold(a, ACC6 + r * 28, CS6, AB6[r][0], AB6[r][1], 28)
            emit_gelu(a, ACC6 + r * 28, 28, V_A, V_PQ + 4)
            pkb = V_A + 16 + r * 16
            emit_pack(a, pkb, ACC6 + r * 28, 28)
            st = [f'buffer_store_dwordx4 v[{pkb+4*j}:{pkb+4*j+3}], v{V_X+4}, {WS}, s{S_U0+r} offen offset:{1024*j}' for j in range(3)]
            st.append(f'buffer_store_dwordx2 v[{pkb+12}:{pkb+13}], v{V_X+4}, {WS}, s{S_U2+r} offen')
            emit_mode_stores(a, st, cold=bool(opt.g_cold))
        emit_signal(a, ep(5))
        stamp()
        if done('P6'): return True

        a.c('=== P7')
        if opt.p7_self:
            VG, VF = V_A + 100, V_A + 101
            a.e(f's_lshl_b32 s{S_T0}, s{S_G}, 4'); a.e(f's_lshl_b32 s{S_T1}, s{S_RB}, 2'); a.e(f's_add_u32 s{S_T0}, s{S_T0}, s{S_T1}')
            a.e(f's_add_u32 s{S_T0}, s{S_T0}, s{S_W}'); a.e(f's_mul_i32 s{S_T0}, s{S_T0}, 57344')
            a.e(f'v_lshlrev_b32 v{VG}, 4, v{V_LANE}'); a.e(f'v_add_u32 v{VG}, s{S_T0}, v{VG}')
            for p_ in range(8):
                a.e(f's_and_b32 s{S_P7+p_}, s{S_RB}, {3 if opt.rot else 0}'); a.e(f's_lshl_b32 s{S_P7+p_}, s{S_P7+p_}, 1')
                a.e(f's_xor_b32 s{S_P7+p_}, s{S_P7+p_}, {p_}'); a.e(f's_mul_i32 s{S_P7+p_}, s{S_P7+p_}, 7168')
            a.e(f's_lshl_b32 s{S_T2}, s{S_G}, 9'); a.e(f's_add_u32 s{S_T2}, s{S_T2}, {hex(LF_OFF)}')
            a.e(f's_and_b32 s{S_T3}, s{S_RB}, 1'); a.e(f's_lshl_b32 s{S_T3}, s{S_T3}, 1'); a.e(f's_add_u32 s{S_T3}, s{S_T3}, s{S_RH}')
            a.e(f's_lshl_b32 s{S_T3}, s{S_T3}, 7'); a.e(f's_add_u32 s{S_T3}, s{S_T3}, s{S_T2}')
            a.e(f's_lshr_b32 s{S_T4}, s{S_RB}, 1'); a.e(f's_lshl_b32 s{S_T4}, s{S_T4}, 6'); a.e(f's_add_u32 s{S_T3}, s{S_T3}, s{S_T4}')
            a.e(f'v_and_b32 v{VF}, 15, v{V_LANE}'); a.e(f'v_lshlrev_b32 v{VF}, 2, v{VF}'); a.e(f'v_add_u32 v{VF}, s{S_T3}, v{VF}')
            a.e(f's_lshl_b32 s{S_T3}, s{S_R}, 2'); a.e(f's_add_u32 s{S_T3}, s{S_T3}, s{S_T2}')
            a.e(f'v_and_b32 v{T1}, 3, v{V_LANE}'); a.e(f'v_lshlrev_b32 v{T1}, 7, v{T1}'); a.e(f'v_add_u32 v{T1}, s{S_T3}, v{T1}')
            a.e(f'v_cmp_lt_u32 vcc, 15, v{V_LANE}'); a.e('s_nop 1'); a.e(f'v_cndmask_b32 v{VF}, v{VF}, v{T1}, vcc')
            emit_poll(a, VF, ep(5), opt=opt)
            stamp()
            def pieces7(c):
                state = {'last': None}
                def mk(k):
                    def f():
                        if k == 0: a.e(f's_add_u32 m0, s{S_W4K}, {hex(AREG + (c % 4) * 16384)}')
                        p_, i_ = divmod(4 * c + k, 7)
                        const = G_OFF + (i_ - k) * 1024
                        if state['last'] != (p_, const):
                            a.e(f's_add_u32 s{S_T0}, s{S_P7+p_}, {hex(const & 0xffffffff)}'); state['last'] = (p_, const)
                        a.vmem(f'buffer_load_dwordx4 v{VG}, {WS}, s{S_T0} offen offset:{k*1024} sc1 lds', ('A', c))
                    return f
                return [mk(k) for k in range(4)]
            emit_gemm32(a, bar, 'P7', slabs['P7'], ACC, WR, a_pieces=pieces7)
        else:
            stamp()
            small_gemm('P7')
        stamp()
        for i in range(0, 16, 2): a.e(pk('add', V_RES + i, vp(V_RES + i), vp(ACC + i)))
        emit_pack32(a, TMP, V_RES)
        return False

    stopped = run_layer()
    if not stopped:
        fin = a.newlabel('FIN'); TMP = V_A
        a.e(f's_cmp_eq_u32 s{S_L}, 1')
        a.e(f's_cbranch_scc1 {fin}')
        a.e(f's_mov_b32 s{S_T0}, {hex(A2_OFF)}')
        emit_mode_stores(a, [f'buffer_store_dwordx4 v[{TMP}:{TMP+3}], v{V_TST}, {WS}, s{S_T0} offen',
                             f'buffer_store_dwordx4 v[{TMP+4}:{TMP+7}], v{V_TST}, {WS}, s{S_T0} offen offset:512'], cold=True)
        a.e(f's_mov_b32 s{S_T1}, {hex(ST_OFF)}')
        emit_stats_partial32(a, V_RES, TMP + 8, f's{S_T1}')
        a.e(f's_add_u32 s{S_EP}, s{S_EP}, 6')
        emit_signal(a, f's{S_EP}')
        if opt.timing:
            dump([tmreg(i) for i in range(tm[0])])
        a.e(f's_mov_b32 s{S_L}, 1')
        a.e(f's_mov_b32 s{S_LOFF}, {hex(KVP_L)}')
        a.e(f's_mov_b32 s{S_COLD}, s{S_MODE}')
        for i in range(3): a.e(f's_mov_b32 s{S_PA+i}, s{S_WS+i}')
        a.e(f's_mov_b32 s{S_PA+3}, 0x20000')
        a.e(f'v_mov_b32 v{V_P1}, v{V_AB}')
        for c in range(4):
            a.e(f's_xor_b32 s{S_RK+c}, s{S_ROTK}, {c}')
            a.e(f's_lshl_b32 s{S_RK+c}, s{S_RK+c}, 12')
            a.e(f's_add_u32 s{S_RK+c}, s{S_RK+c}, {hex(A2_OFF)}')
        a.e(f's_mov_b32 s{S_ASTR}, 1024')
        a.e(f's_branch {LOOP}')
        a.label(fin)
        emit_pack(a, TMP, V_RES, 16)
        OS = f's[{S_OUT}:{S_OUT+3}]'
        for j in range(4):
            a.e(f'buffer_store_dwordx2 v[{TMP+2*j}:{TMP+2*j+1}], v{V_XRM}, {OS}, 0 offen offset:{16*j}')
    a.label('L_END_COMPUTE')
    nn = a.newlabel('NON')
    a.e(f's_or_b32 s{S_T0}, s2, s{S_W}')
    a.e(f's_cmp_eq_u32 s{S_T0}, 0')
    a.e(f's_cbranch_scc0 {nn}')
    a.e(f's_add_u32 s{S_T0}, s{S_V}, 1')
    a.e(f'v_mov_b32 v{V_T0}, s{S_T0}')
    a.e(f'v_mov_b32 v{V_T1}, {hex(NONCE_OFF)}')
    a.e('s_mov_b64 exec, 1')
    a.e(f'buffer_store_dword v{V_T0}, v{V_T1}, {WS}, 0 offen')
    a.e('s_mov_b64 exec, -1')
    a.label(nn)
    stamp()
    if opt.timing: dump([tmreg(i) for i in range(tm[0])] + ([85] if False else []))
    if opt.fine: dump([freg(i) for i in range(fs[0])])
    if opt.wall:
        a.e('s_waitcnt vmcnt(0)')
        a.e('s_memrealtime s[82:83]'); a.e('s_memtime s[80:81]'); a.e('s_waitcnt lgkmcnt(0)')
        dump([84, 82, 85, 80])
    a.e('s_waitcnt vmcnt(0)')
    a.e('s_endpgm')
    return evq


def gen_loader(a, opt, events):
    VN, VKV, VQ, VW3, VKVn, VQn = 8, 12, 16, 20, 28, 32
    VT0, VT1, VT2, VT3 = 1, 2, 3, 4
    a.c('--- loader setup')
    def srd(s, p, size):
        a.e(f's_mov_b32 s{s}, s{p}'); a.e(f's_mov_b32 s{s+1}, s{p+1}')
        a.e(f's_mov_b32 s{s+2}, {hex(size)}'); a.e(f's_mov_b32 s{s+3}, 0x20000')
    srd(S_WQKV, S_PTR + 2, 512 * 1536 * 2)
    srd(S_WO, S_PTR + 4, 512 * 512 * 2)
    srd(S_W1, S_PTR + 8, 512 * 512 * 2)
    srd(S_W2, S_PTR + 10, 512 * 512 * 2)
    srd(S_W3, S_PTR + 12, 512 * 1792 * 2)
    srd(S_W4, S_PTR + 14, 1792 * 512 * 2)
    CBS, CBK, CB6, CB7 = 64, 68, 72, 76
    a.e(f's_lshl_b32 s{S_T1}, s{S_RB2}, 1')
    a.e(f's_add_u32 s{S_T1}, s{S_T1}, s{S_CB2}')
    a.e(f's_and_b32 s{S_T1}, s{S_T1}, {3 if opt.rot else 0}')
    for c in range(4):
        a.e(f's_xor_b32 s{CBK+c}, s{S_T1}, {c}')
        a.e(f's_mul_i32 s{CBK+c}, s{CBK+c}, {128*3072}')
    def late_tables():
        rm = 3 if opt.rot else 0
        for c in range(4):
            a.e(f's_and_b32 s{CBS+c}, s{S_RB}, {rm}')
            a.e(f's_xor_b32 s{CBS+c}, s{CBS+c}, {c}')
            a.e(f's_lshl_b32 s{CBS+c}, s{CBS+c}, 17')
            a.e(f's_lshl_b32 s{CB6+c}, s{S_RB2}, 1')
            a.e(f's_and_b32 s{CB6+c}, s{CB6+c}, {rm}')
            a.e(f's_xor_b32 s{CB6+c}, s{CB6+c}, {c}')
            a.e(f's_mul_i32 s{CB6+c}, s{CB6+c}, {128*3584}')
        for p_ in range(8):
            a.e(f's_and_b32 s{CB7+p_}, s{S_RB}, {rm}')
            a.e(f's_lshl_b32 s{CB7+p_}, s{CB7+p_}, 1')
            a.e(f's_xor_b32 s{CB7+p_}, s{CB7+p_}, {p_}')
            a.e(f's_mul_i32 s{CB7+p_}, s{CB7+p_}, {224*1024}')

    def cs_issue():
        a.c('cs pieces')
        c1 = a.newlabel('CS'); c2 = a.newlabel('CS'); c3 = a.newlabel('CS')
        a.e(f's_min_u32 s{92}, s2, 239')
        a.e(f's_lshr_b32 s{93}, s{92}, 2')
        a.e(f's_and_b32 s{94}, s{92}, 3')
        a.e(f's_cmp_lt_u32 s{93}, 24')
        a.e(f's_cbranch_scc0 {c1}')
        for i in range(3): a.e(f's_mov_b32 s{S_CSRD+i}, s{S_WQKV+i}')
        a.e(f's_mov_b32 s{S_T0}, 3072')
        a.e(f's_lshl_b32 s{S_T1}, s{93}, 7')
        a.e(f's_branch {c3}')
        a.label(c1)
        a.e(f's_cmp_lt_u32 s{93}, 32')
        a.e(f's_cbranch_scc0 {c2}')
        for i in range(3): a.e(f's_mov_b32 s{S_CSRD+i}, s{S_W1+i}')
        a.e(f's_mov_b32 s{S_T0}, 1024')
        a.e(f's_sub_u32 s{S_T1}, s{93}, 24')
        a.e(f's_lshl_b32 s{S_T1}, s{S_T1}, 7')
        a.e(f's_branch {c3}')
        a.label(c2)
        for i in range(3): a.e(f's_mov_b32 s{S_CSRD+i}, s{S_W3+i}')
        a.e(f's_mov_b32 s{S_T0}, 3584')
        a.e(f's_sub_u32 s{S_T1}, s{93}, 32')
        a.e(f's_lshl_b32 s{S_T1}, s{S_T1}, 7')
        a.label(c3)
        a.e(f's_mov_b32 s{S_CSRD+3}, 0x20000')
        a.e(f'v_lshrrev_b32 v{VT1}, 3, v{V_LANE}')
        a.e(f'v_mul_lo_u32 v{VT1}, v{VT1}, s{S_T0}')
        a.e(f'v_and_b32 v{VT2}, 7, v{V_LANE}')
        a.e(f'v_lshl_add_u32 v{VT1}, v{VT2}, 4, v{VT1}')
        a.e(f'v_add_u32 v{VT1}, s{S_T1}, v{VT1}')
        a.e(f's_lshl_b32 s{S_T1}, s{94}, 7')
        a.e(f's_mul_i32 s{S_T1}, s{S_T1}, s{S_T0}')
        a.e(f's_lshl_b32 s{S_T0}, s{S_T0}, 3')
        a.e(f's_mov_b32 m0, {hex(CSL)}')
        for p in range(16):
            a.e('s_nop 0')
            a.vmem(f'buffer_load_dwordx4 v{VT1}, s[{S_CSRD}:{S_CSRD+3}], s{S_T1} offen lds', 'cs')
            if p < 15:
                a.e('s_add_u32 m0, m0, 1024')
                a.e(f's_add_u32 s{S_T1}, s{S_T1}, s{S_T0}')
    dg = [0]
    def dstamp():
        if opt.startdiag:
            a.e(f's_memtime s[{84+2*dg[0]}:{85+2*dg[0]}]') if False else None
            a.e('s_memtime s[98:99]'); a.e('s_waitcnt lgkmcnt(0)')
            a.e('s_sub_u32 s98, s98, s100')
            a.e(f'v_mov_b32 v{100+dg[0]}, s98'); dg[0] += 1
    dstamp()
    cs_issue()
    a.e(f'v_lshrrev_b32 v{VT0}, 3, v{V_LANE}')
    a.e(f'v_bfe_u32 v{VT1}, v{VT0}, 1, 2')
    a.e(f'v_lshlrev_b32 v{VT1}, 1, v{VT1}')
    a.e(f'v_and_b32 v{VT2}, 7, v{V_LANE}')
    a.e(f'v_xor_b32 v{VT2}, v{VT2}, v{VT1}')
    a.e(f'v_and_b32 v{VT1}, 3, v{VT2}')
    a.e(f'v_lshlrev_b32 v{VT3}, 4, v{VT1}')
    a.e(f'v_lshrrev_b32 v{VT1}, 2, v{VT2}')
    a.e(f'v_lshl_add_u32 v{VT3}, v{VT1}, 10, v{VT3}')
    a.e(f's_lshl_b32 s{S_T0}, s{S_CB2}, 6')
    a.e(f's_add_u32 s{S_T1}, s{S_T0}, 1024')
    a.e(f'v_add_u32 v{VT3}, s{S_T1}, v{VT3}')
    a.e(f'v_lshrrev_b32 v{VT1}, 2, v{VT0}')
    a.e(f'v_lshlrev_b32 v{VT1}, 3, v{VT1}')
    a.e(f'v_and_b32 v{VT2}, 3, v{VT0}')
    a.e(f'v_add_u32 v{VT1}, v{VT1}, v{VT2}')
    a.e(f'v_mul_u32_u24 v{VT1}, 3072, v{VT1}')
    a.e(f'v_add_u32 v{VT1}, v{VT1}, v{VT3}')
    for p in range(4):
        off = (16 * (p & 1) + 4 * (p >> 1)) * 3072 - p * 1024
        a.e(f'v_add_u32 v{VKVn+p}, {hex(off & 0xffffffff)}, v{VT1}')
    a.e(f'v_mul_u32_u24 v{VKV}, 3072, v{VT0}')
    a.e(f'v_add_u32 v{VKV}, v{VKV}, v{VT3}')
    for j in range(1, 4): a.e(f'v_add_u32 v{VKV+j}, {hex(j*(8*3072-1024))}, v{VKV}')

    layers = sorted(set(e[0] for e in events))
    slabs = {L: build_slabs(L) for L in layers}
    stream = []
    needed = set((e[0], e[2], e[3]) for e in events if e[1] == 'B')
    for L in layers:
        for p in PHASES:
            for ci, ch in enumerate(slabs[L][p]):
                if (L, p, ci) in needed: stream += ch
    released = set()
    log = []; cur = ['start']
    opt._log = log
    st = {'issued': 0}
    win = [opt.window0]
    def overlaps_unreleased(s, idx):
        for k in range(idx):
            o = stream[k]
            if (o.layer, o.phase, o.chunk) in released: continue
            if o.addr < s.addr + s.size and s.addr < o.addr + o.size: return True
        return False
    def emit_slab(s):
        kind = s.kind; tag = (s.layer, s.phase, s.chunk)
        if kind in opt.dbg_skip.split(','): return
        if kind in ('WO', 'W1', 'W2', 'W4'):
            srd_ = {'WO': S_WO, 'W1': S_W1, 'W2': S_W2, 'W4': S_W4}[kind]; vb = VN; rs = 1024
        elif kind == 'KV': srd_, vb, rs = S_WQKV, (VKVn if s.layer == 0 else VKV), 3072
        elif kind == 'Q': srd_, vb, rs = S_WQKV, (VQn if s.layer == 0 else VQ), 3072
        else: srd_, vb, rs = S_W3, VW3, 3584
        R4 = f's[{srd_}:{srd_+3}]'
        def grp(addr, srow, ps, v0):
            a.e(f's_mov_b32 m0, {hex(addr)}')
            if kind == 'W4':
                p_, rr_ = divmod(srow, 224); tb_ = CB7 + p_
            else:
                c_, rr_ = divmod(srow, 128); tb_ = {'KV': CBK, 'Q': CBK, 'W3': CB6}.get(kind, CBS) + c_
            a.e(f's_add_u32 s{S_T0}, s{tb_}, {hex(rr_*rs)}')
            for k, p in enumerate(ps):
                a.vmem(f'buffer_load_dwordx4 v{vb+p}, {R4}, s{S_T0} offen offset:{k*1024} {"nt " if opt.w_nt else ""}lds', tag)
        if kind == 'W3':
            grp(s.addr, s.srow, [0, 1, 2, 3], 0); grp(s.addr + 4096, s.srow, [4, 5, 6], 0)
        elif kind == 'W4' and s.srow2 != s.srow + 16:
            grp(s.addr, s.srow, [0, 1], 0); grp(s.addr + 2048, s.srow2, [0, 1], 0)
        else:
            grp(s.addr, s.srow, [0, 1, 2, 3], 0)
        if len(a.vm) > win[0]:
            a.e(f's_waitcnt vmcnt({win[0]})')
            a.vm = a.vm[len(a.vm) - win[0]:]
    def issue(cap, must=None):
        n = 0
        while st['issued'] < len(stream):
            s = stream[st['issued']]
            forced = must is not None and any((o.layer, o.phase, o.chunk) == must for o in stream[st['issued']:])
            if not forced and n + s.npieces > cap: break
            if overlaps_unreleased(s, st['issued']):
                assert not forced, ('deadlock', must, s.layer, s.phase, s.chunk)
                break
            emit_slab(s); st['issued'] += 1; n += s.npieces
            log.append((cur[0], s.layer, s.phase, s.chunk, forced))
    issue(64)
    dstamp()
    def late_setup():
        a.e('s_waitcnt lgkmcnt(0)')
        a.e(f's_mul_i32 s{S_B}, s{S_V}, 0x9e3779b1')
        a.e(f's_add_u32 s{S_B}, s{S_B}, 0x7f4a7c15')
        a.e(f's_and_b32 s{S_B}, s{S_B}, 0xffffff00')
        a.e(f's_lshl_b32 s{S_T0}, s{S_G}, 7')
        a.e(f's_lshl_b32 s{S_T1}, s{S_R}, 2')
        a.e(f's_add_u32 s{S_T0}, s{S_T0}, s{S_T1}')
        a.e(f's_add_u32 s{S_T0}, s{S_T0}, {hex(XID_OFF)}')
        a.e(f'v_mov_b32 v{VT1}, s{S_T0}')
        a.e(f's_add_u32 s{S_T1}, s{S_B}, s{S_XCC}')
        a.e(f'v_mov_b32 v{VT0}, s{S_T1}')
        a.e('s_mov_b64 exec, 1')
        a.vmem(f'buffer_store_dword v{VT0}, v{VT1}, {WS}, 0 offen sc1', 'xid')
        a.e('s_mov_b64 exec, -1')
        late_tables()
        a.c('W lane offsets')
        a.e(f'v_lshrrev_b32 v{VT0}, 3, v{V_LANE}')
        a.e(f'v_bfe_u32 v{VT1}, v{VT0}, 1, 1')
        a.e(f'v_lshlrev_b32 v{VT1}, 2, v{VT1}')
        a.e(f'v_and_b32 v{VT2}, 7, v{V_LANE}')
        a.e(f'v_xor_b32 v{VT2}, v{VT2}, v{VT1}')
        a.e(f'v_lshlrev_b32 v{VN}, 10, v{VT0}')
        a.e(f'v_lshl_add_u32 v{VN}, v{VT2}, 4, v{VN}')
        a.e(f's_lshl_b32 s{S_T0}, s{S_CB}, 7')
        a.e(f'v_add_u32 v{VN}, s{S_T0}, v{VN}')
        for j in range(1, 4): a.e(f'v_add_u32 v{VN+j}, {hex(j*(8192-1024))}, v{VN}')
        a.e(f'v_lshrrev_b32 v{VT0}, 2, v{V_LANE}')
        a.e(f'v_bfe_u32 v{VT1}, v{VT0}, 2, 1')
        a.e(f'v_lshlrev_b32 v{VT1}, 1, v{VT1}')
        a.e(f'v_and_b32 v{VT2}, 3, v{V_LANE}')
        a.e(f'v_xor_b32 v{VT2}, v{VT2}, v{VT1}')
        a.e(f'v_lshlrev_b32 v{VT3}, 4, v{VT2}')
        a.e(f's_lshl_b32 s{S_T0}, s{S_CB2}, 6')
        a.e(f'v_add_u32 v{VT3}, s{S_T0}, v{VT3}')
        a.e(f'v_mul_u32_u24 v{VQ}, 3072, v{VT0}')
        a.e(f'v_add_u32 v{VQ}, v{VQ}, v{VT3}')
        for j in range(1, 4): a.e(f'v_add_u32 v{VQ+j}, {hex(j*(16*3072-1024))}, v{VQ}')
        a.e(f'v_lshrrev_b32 v{VT1}, 2, v{VT0}')
        a.e(f'v_lshlrev_b32 v{VT1}, 3, v{VT1}')
        a.e(f'v_and_b32 v{VT2}, 3, v{VT0}')
        a.e(f'v_add_u32 v{VT1}, v{VT1}, v{VT2}')
        a.e(f'v_mul_u32_u24 v{VT1}, 3072, v{VT1}')
        a.e(f'v_add_u32 v{VT1}, v{VT1}, v{VT3}')
        for p in range(4):
            off = (4 * (p & 1) + 32 * (p >> 1)) * 3072 - p * 1024
            a.e(f'v_add_u32 v{VQn+p}, {hex(off & 0xffffffff)}, v{VT1}')
        a.e(f's_mul_i32 s{S_T0}, s{S_CB2}, 224')
        M14 = (1 << 20) // 14 + 1
        a.e(f's_mov_b32 s{S_T1}, {hex(M14)}')
        for p in range(7):
            a.e(f'v_add_u32 v{VT0}, {64*p}, v{V_LANE}')
            a.e(f'v_mul_lo_u32 v{VT1}, v{VT0}, s{S_T1}')
            a.e(f'v_lshrrev_b32 v{VT1}, 20, v{VT1}')
            a.e(f'v_mul_u32_u24 v{VT2}, 14, v{VT1}')
            a.e(f'v_sub_u32 v{VT2}, v{VT0}, v{VT2}')
            a.e(f'v_mul_u32_u24 v{VW3+p}, 3584, v{VT1}')
            a.e(f'v_lshl_add_u32 v{VW3+p}, v{VT2}, 4, v{VW3+p}')
            a.e(f'v_add_u32 v{VW3+p}, s{S_T0}, v{VW3+p}')
            if p % 4: a.e(f'v_subrev_u32 v{VW3+p}, {(p%4)*1024}, v{VW3+p}')
        for u in range(448): assert (u * M14) >> 20 == u // 14

    def cs_part1():
        a.wait_vm('cs')
        a.e(f'v_bfe_u32 v{VT0}, v{V_LANE}, 2, 2')
        a.e(f'v_lshrrev_b32 v{VT1}, 4, v{V_LANE}')
        a.e(f'v_lshl_add_u32 v{VT0}, v{VT1}, 2, v{VT0}')
        a.e(f'v_lshlrev_b32 v{VT0}, 7, v{VT0}')
        a.e(f'v_and_b32 v{VT2}, 3, v{V_LANE}')
        a.e(f'v_lshl_add_u32 v{VT0}, v{VT2}, 3, v{VT0}')
        a.e(f'v_add_u32 v{VT0}, {hex(CSL)}, v{VT0}')
        for i in range(4): a.e(f'v_mov_b32 v{40+i}, 0x3f803f80')
        for j in range(4):
            for t in range(4):
                a.e(f'ds_read_b64_tr_b16 v[{64+4*t}:{65+4*t}], v{VT0} offset:{j*4096+t*32}')
                a.e(f'ds_read_b64_tr_b16 v[{66+4*t}:{67+4*t}], v{VT0} offset:{j*4096+t*32+2048}')
            a.e('s_waitcnt lgkmcnt(0)')
            for t in range(4):
                c = '0' if j == 0 else f'v[{44+4*t}:{47+4*t}]'
                a.e(f'v_mfma_f32_16x16x32_bf16 v[{44+4*t}:{47+4*t}], v[{64+4*t}:{67+4*t}], v[40:43], {c}')
        a.e(f's_mul_i32 s{S_T0}, s{94}, 15360')
        a.e(f's_lshl_b32 s{S_T1}, s{93}, 8')
        a.e(f's_add_u32 s{S_T0}, s{S_T0}, s{S_T1}')
        a.e(f's_add_u32 s{S_T0}, s{S_T0}, {hex(CSP_OFF)}')
        a.e(f'v_lshlrev_b32 v{VT1}, 4, v{VT1}')
        a.e('s_nop 7')
        set_exec(a, 0x00010001)
        for t in range(4):
            a.vmem(f'buffer_store_dwordx4 v[{44+4*t}:{47+4*t}], v{VT1}, {WS}, s{S_T0} offen offset:{64*t} sc1', 'csst')
        a.e('s_mov_b64 exec, -1')
    def cs_part2():
        a.e(f's_lshl_b32 s{S_T0}, s2, 7')
        a.e(f's_add_u32 s{S_T0}, s{S_T0}, {hex(CSF_OFF)}')
        a.e(f'v_mov_b32 v{VT1}, s{S_T0}')
        a.e(f's_add_u32 s{S_T1}, s{S_B}, 8')
        a.e(f'v_mov_b32 v{VT0}, s{S_T1}')
        a.wait_vm('csst')
        a.e('s_mov_b64 exec, 1')
        a.vmem(f'buffer_store_dword v{VT0}, v{VT1}, {WS}, 0 offen sc1', 'csf')
        a.e('s_mov_b64 exec, -1')
    def cs_fill():
        L_ = a.newlabel('CPOLL'); D_ = a.newlabel('CPOLLD')
        a.e(f'v_min_u32 v{VT0}, 27, v{V_LANE}')
        a.e(f'v_lshrrev_b32 v{VT2}, 2, v{VT0}')
        a.e(f's_lshr_b32 s{S_T0}, s{S_CB2}, 1')
        a.e(f'v_lshlrev_b32 v{VT1}, 3, v{VT2}')
        a.e(f'v_add_u32 v{VT1}, s{S_T0}, v{VT1}')
        a.e(f's_add_u32 s{S_T0}, s{S_CB}, 24')
        a.e(f'v_mov_b32 v{VT3}, s{S_T0}')
        a.e(f'v_cmp_eq_u32 vcc, 3, v{VT2}')
        a.e('s_nop 1')
        a.e(f'v_cndmask_b32 v{VT1}, v{VT1}, v{VT3}, vcc')
        a.e(f's_mul_i32 s{S_T0}, s{S_CB2}, 112')
        a.e(f's_lshr_b32 s{S_T0}, s{S_T0}, 6')
        a.e(f's_add_u32 s{S_T0}, s{S_T0}, {32 - 4}')
        a.e(f'v_add_u32 v{VT3}, s{S_T0}, v{VT2}')
        a.e(f'v_min_u32 v{VT3}, 59, v{VT3}')
        a.e(f'v_cmp_lt_u32 vcc, 3, v{VT2}')
        a.e('s_nop 1')
        a.e(f'v_cndmask_b32 v{VT1}, v{VT1}, v{VT3}, vcc')
        a.e(f'v_and_b32 v{VT0}, 3, v{VT0}')
        a.e(f'v_lshl_add_u32 v{VT1}, v{VT1}, 2, v{VT0}')
        a.e(f'v_lshlrev_b32 v{VT1}, 7, v{VT1}')
        a.e(f's_mov_b32 s{S_T0}, {hex(CSF_OFF)}')
        a.e(f's_add_u32 s{S_T1}, s{S_B}, 8')
        a.e(f's_mov_b32 s{95}, {opt.spin}')
        a.label(L_)
        a.e(f'buffer_load_dword v40, v{VT1}, {WS}, s{S_T0} offen sc1')
        a.e('s_waitcnt vmcnt(0)')
        a.e(f'v_subrev_u32 v40, s{S_T1}, v40')
        a.e('v_cmp_gt_u32 vcc, 0x80, v40')
        a.e(f's_sub_u32 s{95}, s{95}, 1')
        a.e(f's_cbranch_scc1 {D_}')
        a.e('s_cmp_eq_u64 vcc, -1')
        a.e(f's_cbranch_scc0 {L_}')
        a.label(D_)
        a.vm = []
        def colof(dst, gofs):
            a.e(f'v_add_u32 v{VT0}, {gofs}, v{V_LANE}')
            a.e(f'v_lshlrev_b32 v{VT2}, 2, v{VT0}')
            a.e(f's_lshl_b32 s{S_T0}, s{S_CB2}, 5')
            a.e(f's_mul_i32 s{S_T1}, s{S_CB2}, 112')
            a.e(f's_add_u32 s{S_T1}, s{S_T1}, {2048 - 160}')
            a.e(f'v_add_u32 v{dst}, s{S_T1}, v{VT2}')
            for lim, addc, useb in [(40, 1536 - 96, 'cb'), (24, -64, 'hp'), (16, 1024 - 32, 'hp'), (8, 512, 'hp')]:
                if useb == 'cb':
                    a.e(f's_lshl_b32 s{S_T1}, s{S_CB}, 6')
                    a.e(f's_add_u32 s{S_T1}, s{S_T1}, {addc}')
                else:
                    a.e(f's_add_u32 s{S_T1}, s{S_T0}, {hex(addc & 0xffffffff)}')
                a.e(f'v_add_u32 v{VT3}, s{S_T1}, v{VT2}')
                a.e(f'v_cmp_gt_u32 vcc, {lim}, v{VT0}')
                a.e('s_nop 1')
                a.e(f'v_cndmask_b32 v{dst}, v{dst}, v{VT3}, vcc')
            a.e(f'v_lshlrev_b32 v{dst}, 2, v{dst}')
        colof(36, 0); colof(37, 64)
        a.e(f's_mov_b32 s{S_T0}, {hex(CSP_OFF)}')
        for kq in range(4):
            a.e(f'buffer_load_dwordx4 v[{40+4*kq}:{43+4*kq}], v36, {WS}, s{S_T0} offen sc1')
            a.e('s_mov_b64 exec, 0xf')
            a.e(f'buffer_load_dwordx4 v[{56+4*kq}:{59+4*kq}], v37, {WS}, s{S_T0} offen sc1')
            a.e('s_mov_b64 exec, -1')
            if kq < 3: a.e(f's_add_u32 s{S_T0}, s{S_T0}, 15360')
        a.e(f'v_lshlrev_b32 v{VT0}, 4, v{V_LANE}')
        a.e(f'v_add_u32 v{VT0}, {hex(CSC)}, v{VT0}')
        a.e('s_waitcnt vmcnt(0)')
        for b in (40, 56):
            for i in (0, 2):
                a.e(pk('add', b + i, vp(b + i), vp(b + 4 + i)))
                a.e(pk('add', b + 8 + i, vp(b + 8 + i), vp(b + 12 + i)))
                a.e(pk('add', b + i, vp(b + i), vp(b + 8 + i)))
        a.e(f'ds_write_b128 v{VT0}, v[40:43]')
        a.e('s_mov_b64 exec, 0xf')
        a.e(f'ds_write_b128 v{VT0}, v[56:59] offset:1024')
        a.e('s_mov_b64 exec, -1')
        a.e('s_waitcnt lgkmcnt(0)')

    cs_part1()
    chunks_of = {}
    for s in stream: chunks_of.setdefault((s.layer, s.phase), set()).add(s.chunk)
    nb = 0
    for ev in events:
        L, kind, p, ci = ev
        if kind == 'B':
            cur[0] = f'pre {L}.{p}.B{ci}'
            issue(0, must=(L, p, ci))
            cur[0] = f'{L}.{p}.B{ci}'
            if nb < 5: dstamp()
            a.wait_vm((L, p, ci))
            if nb < 5: dstamp()
            a.e('s_barrier')
            nb += 1
            if ci >= 2: released.add((L, p, ci - 2))
            if ci == 0:
                for (l2, p2), cs_ in chunks_of.items():
                    if p2 in NOE and (l2, PHASES.index(p2)) < (L, PHASES.index(p)):
                        for c in cs_: released.add((l2, p2, c))
            if nb == 1:
                late_setup()
                cs_part2()
            elif nb == 3:
                cs_fill()
                win[0] = opt.window
            elif nb in (2, 4):
                pass
            else:
                issue(opt.caps.get(f'{p}.B{ci}', opt.caps.get(f'{p}.B*', 0)))
        elif kind == 'E':
            cur[0] = f'{L}.{p}.E'
            a.e('s_barrier')
            for c in chunks_of[(L, p)]: released.add((L, p, c))
            issue(opt.caps.get(f'{p}.E', 0))
        else:
            cur[0] = f'{L}.{p}'
            a.e('s_barrier')
            issue(opt.caps.get(p, 0))
    if opt.startdiag:
        a.e(f's_lshl_b32 s{S_T0}, s2, 8')
        a.e(f's_add_u32 s{S_T0}, s{S_T0}, {hex(TM_OFF + 128)}')
        for i in range(dg[0]):
            a.e(f'v_mov_b32 v99, {4*i}')
            a.e(f'buffer_store_dword v{100+i}, v99, {WS}, s{S_T0} offen')
    a.e('s_waitcnt vmcnt(0)')
    a.e('s_endpgm')


def gen_toucher(a, opt, events):
    a.c('--- A loader / toucher')
    mats = {'WO': (S_PTR + 4, 512 * 512 * 2), 'W1': (S_PTR + 8, 512 * 512 * 2),
            'W2': (S_PTR + 10, 512 * 512 * 2), 'W3': (S_PTR + 12, 512 * 1792 * 2), 'W4': (S_PTR + 14, 1792 * 512 * 2)}
    srds = {}
    for i, (k, (p, size)) in enumerate(mats.items()):
        s = 40 + 4 * i
        a.e(f's_mov_b32 s{s}, s{p}'); a.e(f's_mov_b32 s{s+1}, s{p+1}')
        a.e(f's_mov_b32 s{s+2}, {hex(size)}'); a.e(f's_mov_b32 s{s+3}, 0x20000')
        srds[k] = s
    T0s, T1s, T2s, T3s, T4s, T5s = 33, 34, 35, 36, 37, 38
    THR, SPIN = 60, 61
    RA, P7T = 64, 68
    U0, U1, U2, U3, U4 = 76, 77, 78, 79, 80
    VAS, VAG, VFS, VFB, VFH, VAH = 3, 4, 5, 6, 7, 8
    X0, X1, X2, X3 = 24, 25, 26, 27
    X0W = 31
    e = a.e
    VXK = 40
    e(f'v_lshrrev_b32 v2, 4, v{V_LANE}')
    e(f'v_and_b32 v3, 15, v{V_LANE}')
    for k in range(4):
        e(f'v_add_u32 v{VXK+k}, {4*k}, v2'); e(f'v_xor_b32 v{VXK+k}, v{VXK+k}, v3'); e(f'v_lshlrev_b32 v{VXK+k}, 4, v{VXK+k}')
        e(f'v_lshl_add_u32 v{VXK+k}, v2, 10, v{VXK+k}')
    e(f's_lshl_b32 s33, s{S_G}, 8'); e(f's_lshl_b32 s34, s{S_RB2}, 7'); e('s_add_u32 s33, s33, s34'); e('s_lshl_b32 s82, s33, 10')
    e(f's_lshl_b32 s83, s{S_RB2}, 1'); e(f's_add_u32 s83, s83, s{S_CB2}'); e(f's_and_b32 s83, s83, {3 if opt.rot else 0}')
    e(f's_lshr_b32 s81, s{S_CB2}, 2'); e(f's_lshl_b32 s81, s81, {13 if opt.rot else 31}')
    if not opt.rot: e('s_mov_b32 s81, 0')
    def x_chunk(c):
        e(f's_xor_b32 s33, s83, {c}'); e('s_lshl_b32 s33, s33, 8'); e('s_add_u32 s33, s33, s82')
        e('s_mov_b32 s34, s81'); e('s_mov_b32 s36, 8')
        lp = a.newlabel('XC'); a.label(lp)
        for k in range(4):
            e(f's_add_u32 m0, s34, {hex(AREG + (c & 1) * 32768)}')
            e('s_lshl_b32 s35, s34, 2'); e('s_add_u32 s35, s35, s33')
            e(f'buffer_load_dwordx4 v{VXK + k}, s[{S_X}:{S_X+3}], s35 offen lds')
            e('s_add_u32 s34, s34, 1024')
        e('s_and_b32 s34, s34, 0x7fff')
        e('s_waitcnt vmcnt(52)')
        e('s_sub_u32 s36, s36, 1'); e('s_cmp_lg_u32 s36, 0'); e(f's_cbranch_scc1 {lp}')
        a.vm += [('X', c)] * 32
        a.vm = a.vm[-52:]
    def x_tile():
        e(f'v_lshrrev_b32 v2, 3, v{V_LANE}'); e('v_lshlrev_b32 v2, 10, v2')
        e(f'v_and_b32 v30, 7, v{V_LANE}'); e('v_lshl_add_u32 v2, v30, 4, v2')
        e(f's_lshl_b32 s33, s{S_G}, 8'); e(f's_lshl_b32 s34, s{S_RB}, 6'); e('s_add_u32 s33, s33, s34'); e('s_lshl_b32 s33, s33, 10')
        e(f's_lshl_b32 s34, s{S_CB}, 7'); e('s_add_u32 s33, s33, s34')
        for p_ in range(8):
            e(f's_mov_b32 m0, {hex(AREG + p_ * 1024)}')
            if p_: e('s_add_u32 s33, s33, 8192')
            else: e('s_nop 0')
            a.vmem(f'buffer_load_dwordx4 v2, s[{S_X}:{S_X+3}], s33 offen lds', 'x')
    x_chunk(0); x_chunk(1)
    e(f'v_lshlrev_b32 v1, 7, v{V_LANE}')
    e(f'v_lshlrev_b32 v{X0}, 4, v{V_LANE}')
    e(f'v_lshlrev_b32 v{X0W}, 4, v{V_LANE}')
    e(f's_lshl_b32 s{T0s}, s{S_G}, 4'); e(f's_lshl_b32 s{T1s}, s{S_RB}, 2'); e(f's_add_u32 s{T0s}, s{T0s}, s{T1s}')
    e(f's_lshl_b32 s{T1s}, s{T0s}, 14'); e(f'v_add_u32 v{VAS}, s{T1s}, v{X0}')
    e(f's_mul_i32 s{T1s}, s{T0s}, 57344'); e(f'v_add_u32 v{VAG}, s{T1s}, v{X0}')
    rmask = 3 if opt.rot else 0
    for c in range(4):
        e(f's_and_b32 s{RA+c}, s{S_RB}, {rmask}'); e(f's_xor_b32 s{RA+c}, s{RA+c}, {c}'); e(f's_lshl_b32 s{RA+c}, s{RA+c}, 12')
    for p_ in range(8):
        e(f's_and_b32 s{P7T+p_}, s{S_RB}, {rmask}'); e(f's_lshl_b32 s{P7T+p_}, s{P7T+p_}, 1')
        e(f's_xor_b32 s{P7T+p_}, s{P7T+p_}, {p_}'); e(f's_mul_i32 s{P7T+p_}, s{P7T+p_}, 7168')
    e(f'v_and_b32 v{X1}, 15, v{V_LANE}')
    e(f'v_and_b32 v{X2}, 0x30, v{V_LANE}')
    e(f's_mul_i32 s{T3s}, s{S_G}, 18')
    e(f's_lshl_b32 s{T4s}, s{S_G}, 8')
    for c in range(4):
        e(f's_lshr_b32 s{T5s}, s{RA+c}, 12')
        e(f's_lshr_b32 s{U3}, s{T5s}, 1'); e(f's_add_u32 s{U3}, s{U3}, 1'); e(f's_sub_u32 s{U4}, 0, s{U3}')
        e(f's_bitcmp1_b32 s{T5s}, 0'); e(f's_cselect_b32 s{U3}, s{U3}, s{U4}')
        e(f's_lshl_b32 s{T2s}, s{S_RB}, 6'); e(f's_add_u32 s{T2s}, s{T2s}, s{U3}'); e(f's_add_u32 s{T2s}, s{T2s}, 16')
        for w in range(4):
            r = VAH + 4 * c + w
            e(f's_add_u32 s{T5s}, s{T2s}, {16 * w}')
            e(f'v_add_u32 v{r}, s{T5s}, v{X1}')
            e(f'v_lshrrev_b32 v{X3}, 4, v{r}'); e(f'v_add_u32 v{X3}, s{T3s}, v{X3}'); e(f'v_lshlrev_b32 v{X3}, 14, v{X3}')
            e(f'v_and_b32 v28, 15, v{r}'); e(f'v_add_u32 v28, v{X2}, v28'); e(f'v_lshl_add_u32 v{X3}, v28, 4, v{X3}')
            e(f'v_add_u32 v28, s{T4s}, v{r}'); e('v_subrev_u32 v28, 16, v28')
            e('v_cmp_gt_u32 vcc, 0x800, v28')
            e(f'v_mov_b32 v{r}, 0x80000000'); e('s_nop 0')
            e(f'v_cndmask_b32 v{r}, v{r}, v{X3}, vcc')
    e(f's_lshl_b32 s{T2s}, s{S_G}, 9'); e(f's_add_u32 s{T2s}, s{T2s}, {hex(LF_OFF)}')
    e(f'v_bfe_u32 v{X1}, v{V_LANE}, 3, 2'); e(f'v_lshlrev_b32 v{X1}, 7, v{X1}')
    e(f'v_and_b32 v{X2}, 7, v{V_LANE}'); e(f'v_lshl_add_u32 v{X1}, v{X2}, 2, v{X1}')
    e(f's_lshl_b32 s{T3s}, s{S_RB}, 5'); e(f's_add_u32 s{T3s}, s{T3s}, s{T2s}')
    e(f'v_add_u32 v{VFS}, s{T3s}, v{X1}')
    e(f's_and_b32 s{T3s}, s{S_RB}, 1'); e(f's_lshl_b32 s{T3s}, s{T3s}, 8'); e(f's_add_u32 s{T3s}, s{T3s}, s{T2s}')
    e(f's_lshr_b32 s{T4s}, s{S_RB}, 1'); e(f's_lshl_b32 s{T4s}, s{T4s}, 6'); e(f's_add_u32 s{T3s}, s{T3s}, s{T4s}')
    e(f'v_bfe_u32 v{X2}, v{V_LANE}, 4, 1'); e(f'v_lshlrev_b32 v{X2}, 7, v{X2}')
    e(f'v_and_b32 v{X3}, 15, v{V_LANE}'); e(f'v_lshl_add_u32 v{X2}, v{X3}, 2, v{X2}')
    e(f'v_add_u32 v{VFB}, s{T3s}, v{X2}')
    e(f's_lshl_b32 s{T3s}, s{S_R}, 2'); e(f's_add_u32 s{T3s}, s{T3s}, s{T2s}')
    e(f'v_and_b32 v{X2}, 3, v{V_LANE}'); e(f'v_lshlrev_b32 v{X2}, 7, v{X2}'); e(f'v_add_u32 v{X2}, s{T3s}, v{X2}')
    e(f'v_cmp_lt_u32 vcc, 31, v{V_LANE}'); e('s_nop 1')
    e(f'v_cndmask_b32 v{VFB}, v{VFB}, v{X2}, vcc')
    def build_fh(L):
        la = a.newlabel('FH'); lb = a.newlabel('FH')
        e(f's_lshl_b32 s{T2s}, s{S_G}, 9'); e(f's_add_u32 s{T2s}, s{T2s}, {hex(LF_OFF)}')
        e(f's_lshl_b32 s{T3s}, s{S_RB}, 5'); e(f's_add_u32 s{T3s}, s{T3s}, s{T2s}')
        e(f's_sub_u32 s{U1}, s{T3s}, 32'); e(f's_add_u32 s{U1}, s{U1}, 256'); e(f's_mov_b32 s{U3}, 128')
        e(f's_add_u32 s{U2}, s{T3s}, 32'); e(f's_mov_b32 s{U4}, 128')
        e(f's_lshl_b32 s{T4s}, s{S_G}, 8'); e(f's_add_u32 s{T4s}, s{T4s}, {hex(HF_OFF + L * 2048)}')
        e(f's_cmp_eq_u32 s{S_RB}, 0'); e(f's_cbranch_scc0 {la}')
        e(f's_mov_b32 s{U1}, s{T3s}')
        e(f's_cmp_eq_u32 s{S_G}, 0'); e(f's_cbranch_scc1 {la}')
        e(f's_mov_b32 s{U1}, s{T4s}'); e(f's_mov_b32 s{U3}, 0')
        a.label(la)
        e(f's_cmp_eq_u32 s{S_RB}, 3'); e(f's_cbranch_scc0 {lb}')
        e(f's_mov_b32 s{U2}, s{T3s}')
        e(f's_cmp_eq_u32 s{S_G}, 7'); e(f's_cbranch_scc1 {lb}')
        e(f's_add_u32 s{U2}, s{T4s}, 128'); e(f's_mov_b32 s{U4}, 0')
        a.label(lb)
        e(f'v_bfe_u32 v{X1}, v{V_LANE}, 3, 1'); e(f'v_and_b32 v{X2}, 7, v{V_LANE}'); e(f'v_lshlrev_b32 v{X2}, 2, v{X2}')
        for base_s, mul_s, sel in ((U1, U3, 2), (U2, U4, 3)):
            e(f'v_mul_u32_u24 v{X3}, s{mul_s}, v{X1}'); e(f'v_add_u32 v{X3}, v{X3}, v{X2}'); e(f'v_add_u32 v{X3}, s{base_s}, v{X3}')
            e(f'v_lshrrev_b32 v28, 4, v{V_LANE}'); e(f'v_cmp_eq_u32 vcc, {sel}, v28'); e('s_nop 1')
            e(f'v_cndmask_b32 v{VFH}, v{VFH if sel == 3 else VFS}, v{X3}, vcc')
    e('s_waitcnt lgkmcnt(0)')
    e(f's_mul_i32 s{S_B}, s{S_V}, 0x9e3779b1'); e(f's_add_u32 s{S_B}, s{S_B}, 0x7f4a7c15'); e(f's_and_b32 s{S_B}, s{S_B}, 0xffffff00')

    def poll(v, epoch):
        L_ = a.newlabel('AP'); D_ = a.newlabel('APD')
        e(f's_add_u32 s{THR}, s{S_B}, {8*epoch}'); e(f's_mov_b32 s{SPIN}, {opt.spin}')
        a.label(L_)
        e(f'buffer_load_dword v30, v{v}, {WS}, 0 offen sc1'); e('s_waitcnt vmcnt(0)')
        e(f'v_subrev_u32 v30, s{THR}, v30'); e('v_cmp_gt_u32 vcc, 0x80, v30')
        e(f's_sub_u32 s{SPIN}, s{SPIN}, 1'); e(f's_cbranch_scc1 {D_}')
        e('s_cmp_eq_u64 vcc, -1'); e(f's_cbranch_scc0 {L_}')
        a.label(D_); a.vm = []
    def a_chunk(phase, c):
        for w in range(4):
            e(f's_mov_b32 m0, {hex(AREG + (c % 4) * 16384 + w * 4096)}')
            if phase == 'P7':
                last = None
                for k in range(4):
                    p_, i_ = divmod(4 * c + k, 7)
                    const = G_OFF + w * 57344 + (i_ - k) * 1024
                    if last != (p_, const):
                        e(f's_add_u32 s{T0s}, s{P7T+p_}, {hex(const & 0xffffffff)}'); last = (p_, const)
                    a.vmem(f'buffer_load_dwordx4 v{VAG}, {WS}, s{T0s} offen offset:{k*1024} sc1 lds', ('A', phase, c))
            else:
                if phase == 'P5':
                    va = VAH + 4 * c + w; e(f's_add_u32 s{T0s}, s{RA+c}, {hex(A0_OFF)}' if A0_OFF else f's_mov_b32 s{T0s}, s{RA+c}')
                elif phase == 'P3':
                    va = VAS; e(f's_add_u32 s{T0s}, s{RA+c}, s{U0}'); e(f's_add_u32 s{T0s}, s{T0s}, {hex(A0_OFF + w * 16384)}')
                else:
                    va = VAS; e(f's_add_u32 s{T0s}, s{RA+c}, {hex(A1_OFF + w * 16384)}')
                for k in range(4):
                    a.vmem(f'buffer_load_dwordx4 v{va}, {WS}, s{T0s} offen offset:{k*1024} sc1 lds', ('A', phase, c))
    e(f's_lshl_b32 s{U0}, s{S_G}, 1'); e(f's_add_u32 s{U0}, s{U0}, 1'); e(f's_lshl_b32 s{U0}, s{U0}, 14')

    dummy = [0]
    def wide(srd_s, soff_s):
        d = 64 + 4 * (dummy[0] % 40); dummy[0] += 1
        a.vmem(f'buffer_load_dwordx4 v[{d}:{d+3}], v{X0W}, {srd_s}, s{soff_s} offen {opt.touch_flags}', 'T')
    def mall_touch():
        for k in ['WO', 'W2', 'W4']:
            size = mats[k][1]; per = size // 256
            s = srds[k]
            e(f's_mul_i32 s{T0s}, s2, {per}')
            for i in range(per // 1024):
                if i: e(f's_add_u32 s{T0s}, s{T0s}, 1024')
                wide(f's[{s}:{s+3}]', T0s)
    def g_touch():
        e(f's_mul_i32 s{T0s}, s{S_G}, {16 * 57344}'); e(f's_mul_i32 s{T1s}, s{S_R}, 28672')
        e(f's_add_u32 s{T0s}, s{T0s}, s{T1s}'); e(f's_add_u32 s{T0s}, s{T0s}, {hex(G_OFF)}')
        for i in range(28):
            if i: e(f's_add_u32 s{T0s}, s{T0s}, 1024')
            wide(WS, T0s)
    def key(sx):
        k, p, c = sx.split(',')
        return (0, k, p, None if c == '-' else int(c))
    EPO = {'P3': 1, 'P4': 2, 'P5': 3, 'P7': 5}
    if opt.p7_self: del EPO['P7']
    nxt = 0
    for ev in events:
        L, kind, p, ci = ev
        if kind == 'B' and p in EPO:
            nch = NCH[p]
            if ci == 0:
                if p == 'P5': build_fh(L)
                poll({'P3': VFB, 'P4': VFS, 'P5': VFH, 'P7': VFB}[p], 1 + 6 * L + EPO[p])
                a_chunk(p, 0); a_chunk(p, 1); nxt = 2
            a.wait_vm(('A', p, ci))
            e('s_barrier')
            while nxt < nch and (nxt <= ci + 2 or nxt <= 3) and nxt <= ci + 2 + (1 if ci == 0 and False else 0):
                a_chunk(p, nxt); nxt += 1
        elif L == 0 and kind == 'B' and p == 'P1KV':
            a.wait_vm(('X', ci))
            e('s_barrier')
            if 1 <= ci <= 2: x_chunk(ci + 1)
            if ci == 3: x_tile()
        else:
            if ev == (0, 'E', 'P1KV', None): a.wait_vm('x')
            e('s_barrier')
        if opt.touch and opt.touch_at and ev == key(opt.touch_at): mall_touch()
        if opt.gtouch_at and ev == key(opt.gtouch_at): g_touch()
    e('s_waitcnt vmcnt(0)')
    e('s_endpgm')


def generate(opt):
    events = build_events(opt.stop)
    a = Asm(); a.opt = opt
    hdr = open(os.path.join(os.path.dirname(os.path.abspath(__file__)), 'header.txt')).read()
    out = [hdr.rstrip('\n')]
    out.append(f'; @launch grid=(256,1,1) block=(384,1,1) lds={LDS_TOTAL}')
    out += ['.amdgcn_target "amdgcn-amd-amdhsa--gfx950"', '.text', f'.globl {KNAME}', '.p2align 8',
            f'.type {KNAME},@function', f'{KNAME}:']
    a.e('s_cmp_ge_u32 s2, 256')
    a.e('s_cbranch_scc1 L_EXIT')
    if opt.startdiag: a.e('s_memtime s[100:101]')
    if opt.wall:
        a.e('s_memrealtime s[18:19]') if False else None
    a.e(f's_load_dwordx16 s[{S_PTR}:{S_PTR+15}], s[0:1], 0')
    a.e(f's_load_dwordx4 s[{S_PTR+16}:{S_PTR+19}], s[0:1], 64')
    a.e(f's_load_dwordx2 s[{S_PTR+20}:{S_PTR+21}], s[0:1], 80')
    a.e('v_lshrrev_b32 v1, 6, v0')
    a.e('s_nop 0')
    if opt.prefetch_code:
        a.e('s_getpc_b64 s[34:35]')
        a.label('L_PC')
        a.e(f's_sub_u32 s34, s34, (L_PC - {KNAME})')
        a.e('s_subb_u32 s35, s35, 0')
        a.e('s_lshr_b32 s36, s2, 3')
        a.e('s_lshl_b32 s36, s36, 11')
        a.e('v_lshlrev_b32 v2, 7, v0')
        a.e('v_add_u32 v2, s36, v2')
        a.e(f's_mov_b32 s36, (L_CODE_END - {KNAME} - 4)')
        a.e('v_min_u32 v2, s36, v2')
        a.e('v_and_b32 v2, -4, v2')
        a.e('v_cmp_gt_u32 vcc, 16, v0')
        a.e('s_and_saveexec_b64 s[36:37], vcc')
        a.e('s_cbranch_execz L_NOPF')
        a.e('global_load_dword v255, v2, s[34:35]')
        a.label('L_NOPF')
        a.e('s_mov_b64 exec, s[36:37]')
    a.e(f'v_readfirstlane_b32 s{S_W}, v1')
    a.e(f'v_and_b32 v{V_LANE}, 63, v0')
    a.e(f's_getreg_b32 s{S_XCC}, hwreg(HW_REG_XCC_ID)')
    a.e(f's_and_b32 s{S_XCC}, s{S_XCC}, 7')
    a.e(f's_and_b32 s{S_G}, s2, 7')
    a.e(f's_lshr_b32 s{S_R}, s2, 3')
    a.e(f's_lshr_b32 s{S_RB}, s{S_R}, 3')
    a.e(f's_and_b32 s{S_CB}, s{S_R}, 7')
    a.e(f's_lshr_b32 s{S_RB2}, s{S_R}, 4')
    a.e(f's_and_b32 s{S_CB2}, s{S_R}, 15')
    a.e('s_waitcnt lgkmcnt(0)')
    if opt.ws_base:
        a.e(f's_add_u32 s{S_PTR+20}, s{S_PTR+20}, {hex(opt.ws_base)}')
        a.e(f's_addc_u32 s{S_PTR+21}, s{S_PTR+21}, 0')
    a.e(f's_add_u32 s34, s{S_PTR+20}, {hex(NONCE_OFF)}')
    a.e(f's_addc_u32 s35, s{S_PTR+21}, 0')
    a.e(f's_load_dword s{S_V}, s[34:35], 0')
    def srd(s, p, size):
        a.e(f's_mov_b32 s{s}, s{p}'); a.e(f's_mov_b32 s{s+1}, s{p+1}')
        a.e(f's_mov_b32 s{s+2}, {hex(size)}'); a.e(f's_mov_b32 s{s+3}, 0x20000')
    srd(S_WS, S_PTR + 20, WS_USED)
    srd(S_X, S_PTR + 0, 2048 * 512 * 2)
    srd(S_OUT, S_PTR + 16, 2048 * 512 * 2)
    a.e(f's_cmp_lt_u32 s{S_W}, 4')
    a.e('s_cbranch_scc1 L_COMPUTE')
    a.e(f's_cmp_eq_u32 s{S_W}, 5')
    a.e('s_cbranch_scc0 L_GOLOADER')
    a.e('s_getpc_b64 s[34:35]')
    a.label('L_PC3')
    a.e('s_add_u32 s34, s34, (L_TOUCHER - L_PC3)')
    a.e('s_addc_u32 s35, s35, 0')
    a.e('s_setpc_b64 s[34:35]')
    a.label('L_GOLOADER')
    a.e('s_getpc_b64 s[34:35]')
    a.label('L_PC2')
    a.e('s_add_u32 s34, s34, (L_LOADER - L_PC2)')
    a.e('s_addc_u32 s35, s35, 0')
    a.e('s_setpc_b64 s[34:35]')
    a.label('L_EXIT')
    a.e('s_endpgm')
    a.label('L_COMPUTE')
    a.vm = []
    if opt.stop is not None and opt.stop[0] == 0: cev = events
    else: cev = [e for e in build_events(None) if e[0] == 0]
    rest = gen_compute(a, opt, cev)
    assert not rest, rest
    a.label('L_LOADER')
    a.vm = []
    a.fstamp = lambda p: None
    gen_loader(a, opt, events)
    a.label('L_TOUCHER')
    a.vm = []
    gen_toucher(a, opt, events)
    a.label('L_CODE_END')
    out.append(a.text())
    out += ['.section .rodata,"a"', '.p2align 6', f'.amdhsa_kernel {KNAME}',
            '  .amdhsa_next_free_vgpr 256', '  .amdhsa_next_free_sgpr 102', '  .amdhsa_accum_offset 256',
            '  .amdhsa_group_segment_fixed_size 0', '  .amdhsa_kernarg_size 88', '  .amdhsa_user_sgpr_count 2',
            '  .amdhsa_user_sgpr_kernarg_segment_ptr 1', '  .amdhsa_system_sgpr_workgroup_id_x 1', '.end_amdhsa_kernel']
    return '\n'.join(out) + '\n'


if __name__ == '__main__':
    import argparse
    ap = argparse.ArgumentParser()
    ap.add_argument('-o', default='interleave_layers__linear_attn_block__mixer_s_mlp__prompt.s')
    ap.add_argument('--stop', default=None)
    ap.add_argument('--timing', action='store_true')
    ap.add_argument('--safe', action='store_true')
    ap.add_argument('--set', action='append', default=[])
    ap.add_argument('--fine', default=None)
    args = ap.parse_args()
    opt = Opt()
    if args.stop:
        l, p = args.stop.split(','); opt.stop = (int(l), p)
    opt.timing = args.timing; opt.force_safe = args.safe; opt.fine = args.fine
    opt.caps = dict(Opt.caps)
    for kv in args.set:
        k, v = kv.split('=')
        if '.' in k or k in ('X1', 'X2'): opt.caps[k] = int(v)
        else:
            try: setattr(opt, k, int(v))
            except ValueError: setattr(opt, k, v.replace(':', ','))
    open(args.o, 'w').write(generate(opt))
    print('written', args.o)
    if os.environ.get('SCHED'):
        import itertools
        for k, g in itertools.groupby(opt._log, key=lambda x: x[0]):
            g = list(g); d = {}
            for x in g: d[(x[1], x[2], x[3])] = d.get((x[1], x[2], x[3]), 0) + 1
            print(k, ' '.join(f'{a_}.{b_}.c{c_}x{n_}' for (a_, b_, c_), n_ in d.items()), 'FORCED' if any(x[4] for x in g) else '')
```

```python
import sys, os, struct

KNAME = 'interleave_layers__linear_attn_block__mixer_s_mlp__prompt_kernel'

class Opt:
    stop = None
    timing = False
    fine = None
    force_safe = False
    window = 40
    window0 = 60
    caps = {'P1KV.E': 64, 'P1Q.B0': 16, 'P1Q.B1': 16, 'P1Q.E': 32,
            'P3.B0': 0, 'P3.B1': 32, 'P3.B2': 16, 'P3.B3': 16,
            'P4.B1': 32, 'P4.B2': 16, 'P4.B3': 16,
            'P5.B1': 35, 'P5.B2': 14, 'P5.B3': 21,
            'P6.B0': 35, 'P6.B1': 28, 'P6.B2': 28, 'P6.B3': 28, 'P6.E': 64,
            'P7.B*': 16, 'P7.E': 64}
    cap0 = 0
    touch = True
    dbg_w_same = 0
    w_nt = 0
    g_cold = 0
    touch_at = 'B,P1Q,0'
    rot = 1
    park = 1
    park_w3 = {'P1KV.E': 4, 'X1': 3, 'P1Q.E': 5}
    park_caps = {'P6.B1': 0, 'P6.B2': 0, 'P6.B3': 0, 'P6.E': 0}
    unpark_max = 6
    kv_atomic = 1
    wall = 0
    p7_self = 1
    dbg_skip = ''
    ws_base = 0
    late_a = 0
    kvflag_at = 5
    up3 = 1
    startdiag = 0
    gtouch_at = 'B,P5,2'
    dbg_a_same = 0
    touch_flags = ''
    spin = 1 << 17
    prefetch_code = True
    D_kv = 4
    D_p6 = 4

MB = 1 << 20
A0_OFF = 0
A1_OFF = 0x280000
A2_OFF = 0x480000
G_OFF = 0x680000
ST_OFF = 0xD80000
KVP_OFF = 0xDC0000
KVP_L = 0x88000
KVA_OFF = 0xED0000
LSTRIDE = 0x780000
FL_OFF = 0xF00000
LF_OFF = FL_OFF
KVF_OFF = FL_OFF + 4096
HF_OFF = FL_OFF + 8192
XID_OFF = FL_OFF + 29696
NONCE_OFF = FL_OFF + 30720
TM_OFF = FL_OFF + 32768
CSP_OFF = FL_OFF + 32768 + 65536
CSF_OFF = CSP_OFF + 65536
WS_USED = CSF_OFF + 32768
KVREC = 2176

LDS_TOTAL = 163840
AREG = 0
SCR = 49152
CSL = None
WRING = 65536
RING = 93952
PHI = 53248
CSL = WRING + 28672
CSC = WRING + RING
assert CSC + 1088 <= LDS_TOTAL

EPS = 1e-5

def f2u(x):
    return struct.unpack('<I', struct.pack('<f', x))[0]

class Asm:
    def __init__(self):
        self.lines = []; self.nlabel = 0; self.vm = []
        self.fstamp = lambda p: None
    def e(self, s): self.lines.append('  ' + s)
    def c(self, s): self.lines.append('  ; ' + s)
    def label(self, name): self.lines.append(name + ':')
    def newlabel(self, base='L'):
        self.nlabel += 1
        return f'{base}_{self.nlabel}'
    def vmem(self, s, tag=None):
        self.e(s); self.vm.append(tag)
    def count_vm(self, tag):
        if tag not in self.vm: return None
        idx = max(i for i, t in enumerate(self.vm) if t == tag)
        n = len(self.vm) - 1 - idx
        assert n <= 63, n
        self.vm = self.vm[idx + 1:]
        return n
    def wait_vm(self, tag):
        n = self.count_vm(tag)
        if n is not None: self.e(f's_waitcnt vmcnt({n})')
    def wait_vm_all(self):
        self.e('s_waitcnt vmcnt(0)'); self.vm = []
    def text(self): return '\n'.join(self.lines)

def set_exec(a, lo, hi=None):
    a.e(f's_mov_b32 exec_lo, {hex(lo)}')
    a.e(f's_mov_b32 exec_hi, {hex(lo if hi is None else hi)}')

S_V = 3
S_WS = 4; S_X = 8; S_OUT = 12; S_PA = 16
S_G, S_R, S_W, S_RB, S_CB, S_RB2, S_CB2 = 20, 21, 22, 23, 24, 25, 26
S_MODE, S_L, S_LOFF, S_EP, S_B, S_XCC = 27, 28, 29, 30, 31, 32
S_T0, S_T1, S_T2, S_T3, S_T4, S_T5 = 33, 34, 35, 36, 37, 38
S_SPIN, S_THR = 39, 40
S_AOFF, S_AOFF2, S_ASTR = 41, 42, 43
S_C1, S_C2, S_ONE2 = 44, 46, 48
S_LOG2E, S_EPS6 = 50, 51
S_W4K = 52
S_RH, S_CH = 53, 54
S_U0, S_U1, S_U2, S_U3, S_U4 = 55, 56, 57, 58, 59
S_COLD = 62
S_GH = 63
S_RA = 86
S_RK = 90
S_P7 = 94
S_ROTK = 45
S_PTR = 64
S_WQKV, S_WO, S_W1, S_W2, S_W3, S_W4 = 40, 44, 48, 52, 56, 60
S_CSRD = 88

V_LANE = 0
V_AS, V_AB, V_AG, V_P1 = 1, 2, 3, 4
V_AH = 5
V_STS, V_STB, V_STST, V_XRM, V_TST = 9, 10, 11, 12, 13
V_FSB, V_FBS, V_FSS, V_FH, V_FOWN, V_FKV = 14, 15, 16, 17, 18, 19
V_T128, V_T64, V_T224, V_TN, V_TA = 20, 21, 22, 23, 24
V_T0, V_T1, V_T2 = 25, 26, 27
V_TB = 28
V_RES = 32
V_MEAN, V_RS = 48, 49
V_X = 50
V_PQ = 56
V_ACC = 64
V_A = 128

PHASES = ['P1KV', 'P1Q', 'P3', 'P4', 'P5', 'P6', 'P7']
NCH = {'P1KV': 4, 'P1Q': 2, 'P3': 4, 'P4': 4, 'P5': 4, 'P6': 4, 'P7': 14}

ATOMIC = [1]
NOE = ('P3', 'P4', 'P5')

class Slab:
    def __init__(self, layer, phase, chunk, kind, size, srow, npieces, srow2=None):
        self.layer, self.phase, self.chunk, self.kind = layer, phase, chunk, kind
        self.size, self.srow, self.npieces, self.srow2 = size, srow, npieces, srow2
        self.addr = None

def w4_tile_seq():
    seq = []
    for c in range(8):
        for i in [0, 1, 2, 3, 4, 5, 7, 8, 9, 10, 11, 12, 6, 13]:
            seq.append(14 * c + i)
    return seq

def build_slabs(layer):
    ph = {}
    def simple(phase, kind, nchunk, per, size, rows, np_):
        ph[phase] = [[Slab(layer, phase, c, kind, size, (c * per + j) * rows, np_) for j in range(per)] for c in range(nchunk)]
    simple('P1KV', 'KV', 4, 4, 4096, 32, 4)
    simple('P1Q', 'Q', 2, 4, 4096, 64, 4)
    simple('P3', 'WO', 4, 4, 4096, 32, 4)
    simple('P4', 'W1', 4, 4, 4096, 32, 4)
    simple('P5', 'W2', 4, 4, 4096, 32, 4)
    simple('P6', 'W3', 4, 4, 7168, 32, 7)
    seq = w4_tile_seq()
    ph['P7'] = [[Slab(layer, 'P7', c, 'W4', 4096, seq[2 * (c * 4 + j)] * 16, 4, srow2=seq[2 * (c * 4 + j) + 1] * 16)
                 for j in range(4)] for c in range(14)]
    pos = PHI
    for p in PHASES:
        for ch in ph[p]:
            for s in ch:
                if pos + s.size > RING: pos = 0
                s.addr = WRING + pos
                pos += s.size
    assert pos == PHI, pos
    return ph

def build_events(stop):
    ev = []
    for L in range(2):
        for p in PHASES:
            for c in range(NCH[p]): ev.append((L, 'B', p, c))
            if p not in NOE: ev.append((L, 'E', p, None))
            if p == 'P1KV': ev.append((L, 'X', 'X1', None))
            if p == 'P1Q' and not ATOMIC[0]: ev.append((L, 'X', 'X2', None))
            if stop == (L, p): return ev
    return ev

WS = f's[{S_WS}:{S_WS+3}]'

def thr_value(a, dst, epoch, xcc=False):
    if isinstance(epoch, int):
        a.e(f's_add_u32 s{dst}, s{S_B}, {8*epoch}')
    else:
        a.e(f's_lshl_b32 s{dst}, {epoch}, 3')
        a.e(f's_add_u32 s{dst}, s{dst}, s{S_B}')
    if xcc: a.e(f's_add_u32 s{dst}, s{dst}, s{S_XCC}')

def emit_poll(a, vaddr, epoch, soff='0', opt=Opt, x4=False, tbase=None):
    L = a.newlabel('POLL'); D = a.newlabel('POLLD')
    thr_value(a, S_THR, epoch)
    a.e(f's_mov_b32 s{S_SPIN}, {opt.spin}')
    a.label(L)
    if x4:
        T = tbase
        a.e(f'buffer_load_dwordx4 v[{T}:{T+3}], v{vaddr}, {WS}, {soff} offen sc1')
        a.e('s_waitcnt vmcnt(0)')
        for i in range(4): a.e(f'v_subrev_u32 v{T+i}, s{S_THR}, v{T+i}')
        a.e(f'v_max_u32 v{T}, v{T}, v{T+1}')
        a.e(f'v_max_u32 v{T+2}, v{T+2}, v{T+3}')
        a.e(f'v_max_u32 v{V_T0}, v{T}, v{T+2}')
    else:
        a.e(f'buffer_load_dword v{V_T2}, v{vaddr}, {WS}, {soff} offen sc1')
        a.e('s_waitcnt vmcnt(0)')
        a.e(f'v_subrev_u32 v{V_T0}, s{S_THR}, v{V_T2}')
    a.vm = []
    a.e(f'v_cmp_gt_u32 vcc, 0x80, v{V_T0}')
    a.e(f's_sub_u32 s{S_SPIN}, s{S_SPIN}, 1')
    a.e(f's_cbranch_scc1 {D}')
    a.e('s_cmp_eq_u64 vcc, -1')
    a.e(f's_cbranch_scc0 {L}')
    a.label(D)

def emit_mode_stores(a, stores, cold=False):
    F = a.newlabel('STF'); D = a.newlabel('STD')
    a.e(f's_cmp_eq_u32 s{S_COLD if cold else S_MODE}, 0')
    a.e(f's_cbranch_scc1 {F}')
    for s in stores: a.e(s + ' sc1')
    a.e(f's_branch {D}')
    a.label(F)
    for s in stores: a.e(s)
    a.label(D)
    for s in stores: a.vm.append('st')

def emit_signal(a, epoch):
    thr_value(a, S_THR, epoch, xcc=True)
    a.e(f'v_mov_b32 v{V_T0}, s{S_THR}')
    a.wait_vm_all()
    a.e('s_mov_b64 exec, 1')
    emit_mode_stores(a, [f'buffer_store_dword v{V_T0}, v{V_FOWN}, {WS}, 0 offen'])
    a.e('s_mov_b64 exec, -1')

def emit_xreduce(a, regs, tmp, over16=True):
    for r, t in zip(regs, tmp): a.e(f'v_mov_b32 v{t}, v{r}')
    a.e('s_nop 1')
    for r, t in zip(regs, tmp): a.e(f'v_permlane32_swap_b32 v{r}, v{t}')
    a.e('s_nop 0')
    for r, t in zip(regs, tmp): a.e(f'v_add_f32 v{r}, v{r}, v{t}')
    if over16:
        for r, t in zip(regs, tmp): a.e(f'v_mov_b32 v{t}, v{r}')
        a.e('s_nop 1')
        for r, t in zip(regs, tmp): a.e(f'v_permlane16_swap_b32 v{r}, v{t}')
        a.e('s_nop 0')
        for r, t in zip(regs, tmp): a.e(f'v_add_f32 v{r}, v{r}, v{t}')

def pk(op, d, x, y, z=None, mods=''):
    s = f'v_pk_{op}_f32 v[{d}:{d+1}], {x}, {y}'
    if z is not None: s += f', {z}'
    return s + mods
def vp(r): return f'v[{r}:{r+1}]'

def emit_stats_partial32(a, vals, t0, st_soff, cold=False):
    s, q = t0, t0 + 2
    a.e(pk('add', s, vp(vals), vp(vals + 2)))
    a.e(pk('mul', q, vp(vals), vp(vals)))
    a.e(pk('fma', q, vp(vals + 2), vp(vals + 2), vp(q)))
    for i in range(4, 16, 2):
        a.e(pk('add', s, vp(s), vp(vals + i)))
        a.e(pk('fma', q, vp(vals + i), vp(vals + i), vp(q)))
    a.e(f'v_add_f32 v{t0}, v{s}, v{s+1}')
    a.e(f'v_add_f32 v{t0+1}, v{q}, v{q+1}')
    emit_xreduce(a, [t0, t0 + 1], [t0 + 4, t0 + 5], over16=False)
    set_exec(a, 0xffffffff, 0)
    emit_mode_stores(a, [f'buffer_store_dwordx2 v[{t0}:{t0+1}], v{V_STST}, {WS}, {st_soff} offen'], cold=cold)
    a.e('s_mov_b64 exec, -1')

def emit_stats_from_sums(a, s, ss, out_a, out_b, tmp, double=False, keep=None):
    mean, var = s, ss
    a.e(f'v_mul_f32 v{mean}, {hex(f2u(1.0/512))}, v{s}')
    a.e(f'v_mul_f32 v{var}, {hex(f2u(1.0/512))}, v{ss}')
    a.e(f'v_fma_f32 v{var}, -v{mean}, v{mean}, v{var}')
    a.e(f'v_max_f32 v{var}, 0, v{var}')
    a.e(f'v_add_f32 v{tmp}, {hex(f2u(EPS))}, v{var}')
    a.e(f'v_rsq_f32 v{tmp}, v{tmp}')
    a.e('s_nop 0')
    if double:
        a.e(f'v_mul_f32 v{tmp+1}, v{tmp}, v{tmp}')
        a.e(f'v_mul_f32 v{tmp+1}, v{tmp+1}, v{var}')
        a.e(f'v_add_f32 v{tmp+1}, {hex(f2u(EPS))}, v{tmp+1}')
        a.e(f'v_rsq_f32 v{tmp+1}, v{tmp+1}')
        a.e('s_nop 0')
        a.e(f'v_mul_f32 v{out_a}, v{tmp}, v{tmp+1}')
    else:
        a.e(f'v_mov_b32 v{out_a}, v{tmp}')
    if keep:
        a.e(f'v_mov_b32 v{keep[0]}, v{mean}')
        a.e(f'v_mov_b32 v{keep[1]}, v{tmp}')
    a.e(f'v_mul_f32 v{out_b}, v{out_a}, v{mean}')
    a.e(f'v_sub_f32 v{out_b}, 0, v{out_b}')

def emit_sum_partials(a, raw, n):
    k = n
    step = 2
    regs = [raw + i for i in range(0, n, 2)]
    while len(regs) > 1:
        nxt = []
        for i in range(0, len(regs), 2):
            a.e(pk('add', regs[i], vp(regs[i]), vp(regs[i + 1])))
            nxt.append(regs[i])
        regs = nxt

def emit_lnfold(a, acc, cs, av, bv, n):
    for i in range(0, n, 2):
        a.e(pk('mul', acc + i, vp(acc + i), vp(av), mods=' op_sel_hi:[1,0]'))
    for i in range(0, n, 2):
        a.e(pk('fma', acc + i, vp(cs + i), vp(bv), vp(acc + i), mods=' op_sel_hi:[1,0,1]'))

def emit_gelu(a, x, n, tmp, c1reg):
    blk = 16
    a.e(f'v_mov_b32 v{c1reg}, s{S_C1}')
    for b0 in range(0, n, blk):
        m = min(blk, n - b0); t = tmp
        for i in range(0, m, 2): a.e(pk('mul', t + i, vp(x + b0 + i), vp(x + b0 + i)))
        for i in range(0, m, 2): a.e(pk('fma', t + i, vp(t + i), f's[{S_C2}:{S_C2+1}]', vp(c1reg), mods=' op_sel_hi:[1,1,0]'))
        for i in range(0, m, 2): a.e(pk('mul', t + i, vp(t + i), vp(x + b0 + i)))
        for i in range(m): a.e(f'v_exp_f32 v{t+i}, v{t+i}')
        for i in range(0, m, 2): a.e(pk('add', t + i, vp(t + i), f's[{S_ONE2}:{S_ONE2+1}]'))
        for i in range(m): a.e(f'v_rcp_f32 v{t+i}, v{t+i}')
        for i in range(0, m, 2): a.e(pk('mul', x + b0 + i, vp(x + b0 + i), vp(t + i)))

def emit_phi(a, regs, tmp):
    for i, r in enumerate(regs): a.e(f'v_min_f32 v{tmp+i}, 0, v{r}')
    for i, r in enumerate(regs): a.e(f'v_mul_f32 v{tmp+i}, s{S_LOG2E}, v{tmp+i}')
    for i, r in enumerate(regs): a.e(f'v_exp_f32 v{tmp+i}, v{tmp+i}')
    for i, r in enumerate(regs): a.e(f'v_max_f32 v{r}, 0, v{r}')
    for i, r in enumerate(regs): a.e(f'v_add_f32 v{r}, v{r}, v{tmp+i}')
    for i, r in enumerate(regs): a.e(f'v_add_f32 v{r}, s{S_EPS6}, v{r}')

def emit_pack(a, dst, src, n):
    for i in range(0, n, 2): a.e(f'v_cvt_pk_bf16_f32 v{dst+i//2}, v{src+i}, v{src+i+1}')

def emit_pack32(a, dst, src):
    for k, j in enumerate([0, 2, 1, 3]):
        a.e(f'v_cvt_pk_bf16_f32 v{dst+2*k}, v{src+4*j}, v{src+4*j+1}')
        a.e(f'v_cvt_pk_bf16_f32 v{dst+2*k+1}, v{src+4*j+2}, v{src+4*j+3}')

class TrBase:
    def __init__(self, a, lane_reg, nt):
        self.a, self.lane_reg, self.nt, self.cur = a, lane_reg, nt, None
    def off(self, addr, span):
        if self.cur is None or addr < self.cur or addr + span - self.cur > 65535:
            self.cur = addr
            for t in range(self.nt):
                if t == 0:
                    self.a.e(f'v_add_u32 v{V_TB}, {hex(addr)}, v{self.lane_reg}')
                else:
                    self.a.e(f'v_xor_b32 v{V_TB+t}, {t << 5}, v{self.lane_reg}')
                    self.a.e(f'v_add_u32 v{V_TB+t}, {hex(addr)}, v{V_TB+t}')
        return addr - self.cur

def emit_gemm16(a, bar, phase, chunks, CT, kind, acc_of, a_of, a_wait, a_issue, wr, S, normal=False, extra=None, a_lds=None):
    R, LA = 2, 4
    ks = []
    for ci, ch in enumerate(chunks):
        first = True
        for s in ch:
            ks.append((ci, s.addr, first)); first = False
            if kind == '64': ks.append((ci, s.addr + 2048, False))
    KS = len(ks)
    if kind == '128':
        trb = TrBase(a, V_T128, 4); second = 2048; span = 4096; tb = lambda t: V_TB + t; timm = lambda t: 0
    elif kind == '64':
        trb = TrBase(a, V_T64, 2); second = 1024; span = 2048; tb = lambda t: V_TB + t; timm = lambda t: 0
    else:
        trb = TrBase(a, V_T224, 1); second = 3584; span = 7168; tb = lambda t: V_TB; timm = lambda t: 32 * t
    total = KS * CT
    def slot(n): return wr + 4 * (n % S)
    def pre_issue(n):
        j, t = divmod(n, CT)
        ci, addr, first = ks[j]
        if t == 0 and first:
            a.fstamp(phase); bar(('B', phase, ci)); a.fstamp(phase)
        imm = trb.off(addr, span) if t == 0 else addr - trb.cur
        return imm + timm(t), t
    def rd(n, half, info):
        imm, t = info
        a.e(f'ds_read_b64_tr_b16 v[{slot(n)+2*half}:{slot(n)+2*half+1}], v{tb(t)} offset:{imm + (second if half else 0)}')
    def mfma(m, r):
        j, t = divmod(m, CT)
        d = acc_of(r, t); c = '0' if j == 0 else f'v[{d}:{d+3}]'
        w = f'v[{slot(m)}:{slot(m)+3}]'; x = f'v[{a_of(r,j)}:{a_of(r,j)+3}]'
        a.e(f'v_mfma_f32_16x16x32_bf16 v[{d}:{d+3}], ' + (f'{x}, {w}' if normal else f'{w}, {x}') + f', {c}')
    lq = []
    def need(tags):
        idx = max((i for i, g in enumerate(lq) if g in tags), default=None)
        if idx is None: return None
        n_ = len(lq) - 1 - idx
        del lq[:idx + 1]
        assert n_ <= 15
        return n_
    def pre2(n):
        info = pre_issue(n)
        j, t = divmod(n, CT)
        if a_lds and t == 0:
            for s_ in a_lds(j):
                a.e(s_); lq.append(('A', j))
        return info
    def rd2(n, half, info):
        rd(n, half, info); lq.append(('W', n))
    for n in range(min(LA, total)):
        info = pre2(n); rd2(n, 0, info); rd2(n, 1, info)
    for n in range(total):
        j, t = divmod(n, CT)
        lg = need({('W', n), ('A', j)})
        vmn = a_wait(j) if t == 0 else None
        if t == 0 and j in (0, 1): a.fstamp(phase)
        parts = ([f'vmcnt({vmn})'] if vmn is not None else []) + ([f'lgkmcnt({lg})'] if lg is not None else [])
        if parts: a.e('s_waitcnt ' + ' '.join(parts))
        nx = n + LA; info = None
        mfma(n, 0)
        if nx < total:
            info = pre2(nx); rd2(nx, 0, info)
        mfma(n, 1)
        if nx < total: rd2(nx, 1, info)
        a_issue(j, t)
        if extra and t == CT - 1: extra(j)
    a.fstamp(phase); bar(('E', phase, None)); a.fstamp(phase)
    a.e('s_nop 7')

def emit_gemm32(a, bar, phase, chunks, acc, wr, tail=None, a_pieces=None):
    LA, S = 4, 5
    nch = len(chunks)
    total = nch * 8
    trb = TrBase(a, V_TN, 1)
    def slot(n): return wr + 8 * (n % S)
    def reads(n):
        c, rem = divmod(n, 8); ksl, s = divmod(rem, 2)
        out = []
        if rem == 0:
            if a_pieces: a.wait_vm(('A', c))
            a.fstamp(phase); bar(('B', phase, c)); a.fstamp(phase)
        sl = chunks[c][ksl]
        imm = trb.off(sl.addr, 4096)
        out.append(f'ds_read_b128 v[{slot(n)}:{slot(n)+3}], v{V_TA} offset:{(c % 4) * 16384 + ksl * 1024 + s * 512}')
        out.append(f'ds_read_b64_tr_b16 v[{slot(n)+4}:{slot(n)+5}], v{V_TB} offset:{imm + s * 1024}')
        out.append(f'ds_read_b64_tr_b16 v[{slot(n)+6}:{slot(n)+7}], v{V_TB} offset:{imm + s * 1024 + 2048}')
        return out
    queue = []; nxt = 2; passed = 0
    if a_pieces:
        for c in (0, 1):
            for t in a_pieces(c): t()
    for n in range(LA):
        for s in reads(n): a.e(s)
    for n in range(total):
        lg = 3 * (min(n - 1 + LA, total - 1) - n)
        a.e(f's_waitcnt lgkmcnt({lg})')
        c = '0' if n == 0 else f'v[{acc}:{acc+15}]'
        a.e(f'v_mfma_f32_32x32x16_bf16 v[{acc}:{acc+15}], v[{slot(n)+4}:{slot(n)+7}], v[{slot(n)}:{slot(n)+3}], {c}')
        nx = n + LA
        if nx < total:
            if nx % 8 == 0: passed = nx // 8
            for s in reads(nx): a.e(s)
        if a_pieces:
            while nxt < nch and (nxt <= passed + 2 or nxt <= 3) and len(queue) < 4:
                queue += list(a_pieces(nxt)); nxt += 1
            if queue: queue.pop(0)()
        if tail and n == max(total - 24, 0): tail()
    a.fstamp(phase)
    if phase not in NOE:
        bar(('E', phase, None))
    a.fstamp(phase)
    a.e('s_nop 7'); a.e('s_nop 3')


def gen_compute(a, opt, events):
    evq = list(events)
    tm = [0]
    def tmreg(i):
        assert i < 22, i
        return 64 + i
    def dump(regs):
        sk = a.newlabel('TMS')
        a.e('s_waitcnt lgkmcnt(0)')
        a.e(f's_cmp_eq_u32 s{S_W}, 0')
        a.e(f's_cbranch_scc0 {sk}')
        a.e(f's_lshl_b32 s{S_T0}, s2, 8')
        a.e(f's_lshl_b32 s{S_T1}, s{S_L}, 7')
        if opt.timing: a.e(f's_add_u32 s{S_T0}, s{S_T0}, s{S_T1}')
        a.e(f's_add_u32 s{S_T0}, s{S_T0}, {hex(TM_OFF)}')
        for i, r in enumerate(regs):
            a.e(f'v_mov_b32 v{V_T0}, s{r}')
            a.e(f'v_mov_b32 v{V_T1}, {4*i}')
            a.e(f'buffer_store_dword v{V_T0}, v{V_T1}, {WS}, s{S_T0} offen')
        a.label(sk)
        a.e('s_waitcnt vmcnt(0)')
    fs = [0]
    def freg(i): return 64 + 2 * i
    def fstamp(phase):
        if opt.fine == phase and fs[0] < 11:
            a.e(f's_memtime s[{freg(fs[0])}:{freg(fs[0])+1}]'); fs[0] += 1
    a.fstamp = fstamp
    def stamp():
        if opt.timing:
            a.e('s_memtime s[60:61]')
            a.e('s_waitcnt lgkmcnt(0)')
            a.e(f's_mov_b32 s{tmreg(tm[0])}, s60'); tm[0] += 1

    T0, T1, T2, TB = V_T0, V_T1, V_T2, V_TB
    if opt.wall:
        a.e('s_memrealtime s[60:61]'); a.e('s_waitcnt lgkmcnt(0)'); a.e('s_mov_b32 s84, s60')
        a.e('s_memtime s[60:61]'); a.e('s_waitcnt lgkmcnt(0)'); a.e('s_mov_b32 s85, s60')
    a.c('--- compute: early address setup')
    if opt.startdiag:
        a.e('s_memtime s[98:99]'); a.e('s_waitcnt lgkmcnt(0)'); a.e('s_sub_u32 s98, s98, s100'); a.e('s_mov_b32 s85, s98')
    stamp()
    a.e(f's_lshr_b32 s{S_RH}, s{S_W}, 1')
    a.e(f's_and_b32 s{S_CH}, s{S_W}, 1')
    a.e(f's_lshl_b32 s{S_W4K}, s{S_W}, 12')
    a.e(f's_lshl_b32 s{S_U0}, s{S_G}, 4')
    a.e(f's_lshl_b32 s{S_T1}, s{S_RB}, 2')
    a.e(f's_add_u32 s{S_U0}, s{S_U0}, s{S_T1}')
    a.e(f's_lshl_b32 s{S_T1}, s{S_RH}, 1')
    a.e(f's_add_u32 s{S_U2}, s{S_U0}, s{S_T1}')
    a.e(f's_add_u32 s{S_U0}, s{S_U0}, s{S_W}')
    a.e(f's_lshl_b32 s{S_U1}, s{S_G}, 4')
    a.e(f's_lshl_b32 s{S_T2}, s{S_RB2}, 3')
    a.e(f's_add_u32 s{S_U1}, s{S_U1}, s{S_T2}')
    a.e(f's_lshl_b32 s{S_T2}, s{S_W}, 1')
    a.e(f's_add_u32 s{S_U1}, s{S_U1}, s{S_T2}')
    a.e(f'v_and_b32 v{T0}, 15, v{V_LANE}')
    a.e(f'v_and_b32 v{T1}, 0x30, v{V_LANE}')
    a.e(f's_lshl_b32 s{S_ROTK}, s{S_RB2}, 1')
    a.e(f's_add_u32 s{S_ROTK}, s{S_ROTK}, s{S_CB2}')
    a.e(f's_and_b32 s{S_ROTK}, s{S_ROTK}, {3 if opt.rot else 0}')
    a.e(f'v_and_b32 v{T2}, 31, v{V_LANE}')
    a.e(f'v_lshrrev_b32 v{TB}, 5, v{V_LANE}')
    a.e(f'v_lshlrev_b32 v{V_XRM}, 10, v{T2}')
    a.e(f'v_lshl_add_u32 v{V_XRM}, v{TB}, 3, v{V_XRM}')
    a.e(f's_lshl_b32 s{S_T2}, s{S_U2}, 14')
    a.e(f's_lshl_b32 s{S_T3}, s{S_CB}, 7')
    a.e(f's_add_u32 s{S_T2}, s{S_T2}, s{S_T3}')
    a.e(f's_lshl_b32 s{S_T3}, s{S_CH}, 6')
    a.e(f's_add_u32 s{S_T2}, s{S_T2}, s{S_T3}')
    a.e(f'v_add_u32 v{V_XRM}, s{S_T2}, v{V_XRM}')
    PA = f's[{S_PA}:{S_PA+3}]'
    def p1_load(j):
        if j % 4 == 0:
            a.e(f's_mov_b32 s{S_AOFF}, s{S_RK + j // 4}')
            a.e(f's_add_u32 s{S_AOFF2}, s{S_AOFF}, 0x4000')
        for r in range(2):
            a.vmem(f'buffer_load_dwordx4 v[{V_A+(r*16+j)*4}:{V_A+(r*16+j)*4+3}], v{V_P1}, {PA}, s{S_AOFF if r == 0 else S_AOFF2} offen', ('A', j))
        if j % 4 != 3:
            a.e(f's_add_u32 s{S_AOFF}, s{S_AOFF}, s{S_ASTR}')
            a.e(f's_add_u32 s{S_AOFF2}, s{S_AOFF2}, s{S_ASTR}')
    a.e('s_waitcnt lgkmcnt(0)')
    a.e(f's_mul_i32 s{S_B}, s{S_V}, 0x9e3779b1')
    a.e(f's_add_u32 s{S_B}, s{S_B}, 0x7f4a7c15')
    a.e(f's_and_b32 s{S_B}, s{S_B}, 0xffffff00')
    a.c('--- compute: address setup')
    a.e(f'v_lshlrev_b32 v{V_X}, 4, v{V_LANE}')
    a.e(f's_lshl_b32 s{S_T2}, s{S_U1}, 14')
    a.e(f'v_add_u32 v{V_AB}, s{S_T2}, v{V_X}')
    a.e(f'v_lshlrev_b32 v{V_STS}, 4, v{T2}')
    a.e(f'v_lshl_add_u32 v{V_STS}, v{TB}, 11, v{V_STS}')
    a.e(f's_lshl_b32 s{S_T2}, s{S_U2}, 11')
    a.e(f'v_add_u32 v{V_STS}, s{S_T2}, v{V_STS}')
    a.e(f'v_lshlrev_b32 v{V_STST}, 4, v{T2}')
    a.e(f's_lshl_b32 s{S_T4}, s{S_CB}, 9')
    a.e(f's_add_u32 s{S_T2}, s{S_T2}, s{S_T4}')
    a.e(f's_lshl_b32 s{S_T4}, s{S_CH}, 3')
    a.e(f's_add_u32 s{S_T2}, s{S_T2}, s{S_T4}')
    a.e(f'v_add_u32 v{V_STST}, s{S_T2}, v{V_STST}')
    a.e(f's_lshl_b32 s{S_T3}, s{S_CB}, 1')
    a.e(f's_add_u32 s{S_T3}, s{S_T3}, s{S_CH}')
    a.e(f'v_lshlrev_b32 v{V_STB}, 4, v{T0}')
    a.e(f'v_lshl_add_u32 v{V_STB}, v{T1}, 6, v{V_STB}')
    a.e(f's_lshl_b32 s{S_T2}, s{S_U1}, 11')
    a.e(f'v_add_u32 v{V_STB}, s{S_T2}, v{V_STB}')
    a.e(f'v_lshrrev_b32 v{V_TST}, 4, v{T2}')
    a.e(f'v_lshlrev_b32 v{V_TST}, 14, v{V_TST}')
    a.e(f'v_lshl_add_u32 v{V_TST}, v{TB}, 8, v{V_TST}')
    a.e(f'v_lshl_add_u32 v{V_TST}, v{T0}, 4, v{V_TST}')
    a.e(f's_lshl_b32 s{S_T2}, s{S_U2}, 14')
    a.e(f's_lshl_b32 s{S_T4}, s{S_T3}, 10')
    a.e(f's_add_u32 s{S_T2}, s{S_T2}, s{S_T4}')
    a.e(f'v_add_u32 v{V_TST}, s{S_T2}, v{V_TST}')
    a.e(f's_lshl_b32 s{S_T2}, s{S_G}, 9')
    a.e(f's_add_u32 s{S_T2}, s{S_T2}, {hex(LF_OFF)}')
    a.e(f's_lshl_b32 s{S_T3}, s{S_W}, 7')
    a.e(f's_add_u32 s{S_T3}, s{S_T3}, s{S_T2}')
    a.e(f's_lshl_b32 s{S_T4}, s{S_R}, 2')
    a.e(f's_add_u32 s{S_T4}, s{S_T4}, s{S_T3}')
    a.e(f'v_mov_b32 v{V_FOWN}, s{S_T4}')
    a.e(f'v_and_b32 v{V_X+1}, 7, v{V_LANE}')
    a.e(f'v_lshlrev_b32 v{V_X+1}, 2, v{V_X+1}')
    a.e(f'v_bfe_u32 v{V_X+2}, v{V_LANE}, 3, 1')
    a.e(f'v_lshl_add_u32 v{V_X+1}, v{V_X+2}, 7, v{V_X+1}')
    a.e(f's_lshl_b32 s{S_T4}, s{S_RB2}, 1')
    a.e(f's_add_u32 s{S_T4}, s{S_T4}, s{S_RH}')
    a.e(f's_lshl_b32 s{S_T4}, s{S_T4}, 5')
    a.e(f's_lshl_b32 s{S_T5}, s{S_CH}, 8')
    a.e(f's_add_u32 s{S_T4}, s{S_T4}, s{S_T5}')
    a.e(f's_add_u32 s{S_T4}, s{S_T4}, s{S_T2}')
    a.e(f'v_add_u32 v{V_FSB}, s{S_T4}, v{V_X+1}')
    a.e(f's_lshl_b32 s{S_T4}, s{S_CB2}, 7')
    a.e(f's_add_u32 s{S_T4}, s{S_T4}, {hex(KVF_OFF)}')
    a.e(f'v_lshlrev_b32 v{V_FKV}, 2, v{T2}')
    a.e(f'v_add_u32 v{V_FKV}, s{S_T4}, v{V_FKV}')
    a.e(f'v_bfe_u32 v{V_X+1}, v{V_LANE}, 2, 2')
    a.e(f'v_lshrrev_b32 v{V_X+2}, 4, v{V_LANE}')
    a.e(f'v_lshl_add_u32 v{V_X+3}, v{V_X+2}, 2, v{V_X+1}')
    a.e(f'v_and_b32 v{V_X+4}, 3, v{V_LANE}')
    a.e(f'v_lshlrev_b32 v{V_X+4}, 3, v{V_X+4}')
    a.e(f'v_bfe_u32 v{V_X+5}, v{V_X+3}, 1, 2')
    a.e(f'v_lshl_add_u32 v{V_T128}, v{V_X+5}, 5, v{V_X+4}')
    a.e(f'v_lshl_add_u32 v{V_T128}, v{V_X+3}, 7, v{V_T128}')
    a.e(f'v_bfe_u32 v{V_X+5}, v{V_X+3}, 2, 1')
    a.e(f'v_lshl_add_u32 v{V_T64}, v{V_X+5}, 5, v{V_X+4}')
    a.e(f'v_lshl_add_u32 v{V_T64}, v{V_X+3}, 6, v{V_T64}')
    a.e(f'v_mul_u32_u24 v{V_T224}, 224, v{V_X+3}')
    a.e(f'v_add_u32 v{V_T224}, v{V_T224}, v{V_X+4}')
    a.e(f'v_lshrrev_b32 v{V_X+3}, 1, v{V_X+2}')
    a.e(f'v_lshl_add_u32 v{V_X+3}, v{V_X+3}, 2, v{V_X+1}')
    a.e(f'v_and_b32 v{V_X+5}, 1, v{V_X+2}')
    a.e(f's_lshl_b32 s{S_T4}, s{S_CH}, 1')
    a.e(f'v_add_u32 v{V_X+5}, s{S_T4}, v{V_X+5}')
    a.e(f'v_and_b32 v{V_X+1}, 2, v{V_X+1}')
    a.e(f'v_xor_b32 v{V_X+5}, v{V_X+5}, v{V_X+1}')
    a.e(f'v_lshl_add_u32 v{V_TN}, v{V_X+5}, 5, v{V_X+4}')
    a.e(f'v_lshl_add_u32 v{V_TN}, v{V_X+3}, 7, v{V_TN}')
    a.e(f'v_bfe_u32 v{V_TA}, v{V_LANE}, 4, 1')
    a.e(f's_lshl_b32 s{S_T4}, s{S_RH}, 1')
    a.e(f'v_add_u32 v{V_TA}, s{S_T4}, v{V_TA}')
    a.e(f'v_lshlrev_b32 v{V_TA}, 12, v{V_TA}')
    a.e(f'v_lshl_add_u32 v{V_TA}, v{TB}, 8, v{V_TA}')
    a.e(f'v_lshl_add_u32 v{V_TA}, v{T0}, 4, v{V_TA}')
    if AREG: a.e(f'v_add_u32 v{V_TA}, {hex(AREG)}, v{V_TA}')
    c1 = -2.0 * 0.7978845608028654 * 1.4426950408889634
    c2 = c1 * 0.044715
    for s, v in [(S_C1, c1), (S_C2, c2), (S_C2 + 1, c2), (S_ONE2, 1.0), (S_ONE2 + 1, 1.0),
                 (S_LOG2E, 1.4426950408889634), (S_EPS6, 1e-6)]:
        a.e(f's_mov_b32 s{s}, {hex(f2u(v))}')
    a.e(f's_mov_b32 s{S_L}, 0')
    a.e(f's_mov_b32 s{S_LOFF}, 0')
    a.e(f's_mov_b32 s{S_EP}, 1')
    a.e(f's_mov_b32 s{S_MODE}, 1')
    a.e(f's_mov_b32 s{S_COLD}, 1')
    a.e(f's_lshl_b32 s{S_GH}, s{S_G}, 1')
    a.e(f's_add_u32 s{S_GH}, s{S_GH}, 1')
    a.e(f's_lshl_b32 s{S_GH}, s{S_GH}, 14')

    LOOP = 'LAYER_LOOP'
    a.label(LOOP)
    slabs = build_slabs(0)

    def run_layer():
        def bar(ev):
            exp = evq.pop(0)
            assert exp[1:] == ev or (exp[1] == 'X' and ev[0] == 'X' and exp[2] == ev[1]), (exp, ev)
            a.e('s_barrier')
        def soff(reg, base, extra=0, gh=False):
            if gh: a.e(f's_add_u32 s{reg}, s{S_GH}, {hex(base + extra)}')
            else: a.e(f's_mov_b32 s{reg}, {hex(base + extra)}')
        def done(p):
            if opt.stop == (1, p):
                a.e(f's_cmp_eq_u32 s{S_L}, 1')
                a.e('s_cbranch_scc1 L_END_COMPUTE')
            return opt.stop == (0, p)
        def ep(k):
            a.e(f's_add_u32 s{S_T5}, s{S_EP}, {k}')
            return f's{S_T5}'

        a.c('=== P1KV')
        WR1 = 96; D1 = 116; ONES = 124; D2 = V_PQ
        for i in range(4): a.e(f'v_mov_b32 v{ONES+i}, 0x3f803f80')
        l0 = a.newlabel('KVL0'); ljoin = a.newlabel('KVJ')
        a.e(f's_cmp_eq_u32 s{S_L}, 0')
        a.e(f's_cbranch_scc1 {l0}')
        saved_ev = list(evq)
        emit_poll(a, V_FSB, f's{S_EP}', opt=opt)
        for j in range(opt.D_kv): p1_load(j)
        stamp()
        a.fstamp('P1KV')
        def kv_issue(j, t):
            if t == 1:
                if j + opt.D_kv < 16:
                    p1_load(j + opt.D_kv)
                elif j + opt.D_kv == 16:
                    soff(S_T0, ST_OFF)
                    a.vmem(f'buffer_load_dwordx4 v[{D1}:{D1+3}], v{V_STB}, {WS}, s{S_T0} offen sc1', 'st')
                    a.vmem(f'buffer_load_dwordx4 v[{D1+4}:{D1+7}], v{V_STB}, {WS}, s{S_T0} offen offset:512 sc1', 'st')
                    a.vmem(f'buffer_load_dwordx4 v[{D2}:{D2+3}], v{V_STB}, {WS}, s{S_T0} offen offset:256 sc1', 'st')
                    a.vmem(f'buffer_load_dwordx4 v[{D2+4}:{D2+7}], v{V_STB}, {WS}, s{S_T0} offen offset:768 sc1', 'st')
        emit_gemm16(a, bar, 'P1KV', slabs['P1KV'], 4, '128',
                    acc_of=lambda r, t: V_ACC + (r * 4 + t) * 4, a_of=lambda r, j: V_A + (r * 16 + j) * 4,
                    a_wait=lambda j: a.count_vm(('A', j)), a_issue=kv_issue, wr=WR1, S=5, normal=True)
        a.e(f's_branch {ljoin}')
        a.label(l0)
        evq[:] = saved_ev
        a.vm = []
        tm[0] -= 1 if opt.timing else 0
        stamp()
        VLA = V_X
        a.e(f'v_and_b32 v{T0}, 15, v{V_LANE}')
        a.e(f'v_lshrrev_b32 v{T1}, 4, v{V_LANE}')
        a.e(f'v_xor_b32 v{T1}, v{T1}, v{T0}')
        a.e(f'v_lshlrev_b32 v{T1}, 4, v{T1}')
        a.e(f's_lshl_b32 s{S_T0}, s{S_W}, 5')
        a.e(f'v_add_u32 v{T0}, s{S_T0}, v{T0}')
        a.e(f'v_lshlrev_b32 v{T0}, 8, v{T0}')
        for j in range(4):
            a.e(f'v_xor_b32 v{VLA+j}, {64*j}, v{T1}')
            a.e(f'v_add_u32 v{VLA+j}, v{VLA+j}, v{T0}')
        def kv_lds(j):
            c = j // 4
            return [f'ds_read_b128 v[{V_A+(r*16+j)*4}:{V_A+(r*16+j)*4+3}], v{VLA + j % 4} offset:{AREG + (c & 1) * 32768 + r * 4096}' for r in range(2)]
        def kv_extra(j):
            for r in range(2):
                x = f'v[{V_A+(r*16+j)*4}:{V_A+(r*16+j)*4+3}]'
                c1_ = '0' if j == 0 else f'v[{D1+4*r}:{D1+4*r+3}]'
                c2_ = '0' if j == 0 else f'v[{D2+4*r}:{D2+4*r+3}]'
                a.e(f'v_mfma_f32_16x16x32_bf16 v[{D1+4*r}:{D1+4*r+3}], v[{ONES}:{ONES+3}], {x}, {c1_}')
                a.e(f'v_mfma_f32_16x16x32_bf16 v[{D2+4*r}:{D2+4*r+3}], {x}, {x}, {c2_}')
        emit_gemm16(a, bar, 'P1KV', slabs['P1KV'], 4, '128',
                    acc_of=lambda r, t: V_ACC + (r * 4 + t) * 4, a_of=lambda r, j: V_A + (r * 16 + j) * 4,
                    a_wait=lambda j: None, a_issue=lambda j, t: None, wr=WR1, S=5, normal=True, extra=kv_extra, a_lds=kv_lds)
        a.label(ljoin)
        stamp()
        a.wait_vm_all()
        SUM = [(V_X, V_X + 1), (V_X + 2, V_X + 3)]
        l1 = a.newlabel('S1'); le = a.newlabel('SE')
        a.e(f's_cmp_eq_u32 s{S_L}, 0')
        a.e(f's_cbranch_scc0 {l1}')
        a.e(f'v_and_b32 v{T0}, 31, v{V_LANE}')
        a.e(f'v_lshlrev_b32 v{T0}, 7, v{T0}')
        a.e(f'v_lshrrev_b32 v{T1}, 5, v{V_LANE}')
        a.e(f'v_lshl_add_u32 v{T0}, v{T1}, 3, v{T0}')
        a.e(f's_lshl_b32 s{S_T0}, s{S_RH}, 12')
        a.e(f's_lshl_b32 s{S_T1}, s{S_CH}, 6')
        a.e(f's_add_u32 s{S_T0}, s{S_T0}, s{S_T1}')
        if AREG: a.e(f's_add_u32 s{S_T0}, s{S_T0}, {hex(AREG)}')
        a.e(f'v_add_u32 v{T0}, s{S_T0}, v{T0}')
        for j in range(4):
            a.e(f'ds_read_b64 v[{V_RES+4*j}:{V_RES+4*j+1}], v{T0} offset:{16*j}')
        a.e('s_waitcnt lgkmcnt(0)')
        for j in range(4):
            b = V_RES + 4 * j
            a.e(f'v_and_b32 v{b+3}, 0xffff0000, v{b+1}')
            a.e(f'v_lshlrev_b32 v{b+2}, 16, v{b+1}')
            a.e(f'v_and_b32 v{b+1}, 0xffff0000, v{b}')
            a.e(f'v_lshlrev_b32 v{b}, 16, v{b}')
        a.e(f'v_and_b32 v{T0}, 3, v{V_LANE}')
        a.e(f'v_bfe_u32 v{T1}, v{V_LANE}, 2, 2')
        a.e(f'v_lshrrev_b32 v{T2}, 4, v{V_LANE}')
        for r in range(2):
            s_, ss_ = SUM[r]
            a.e(f'v_mov_b32 v{s_}, v{D1+4*r}')
            a.e(f'v_mov_b32 v{ss_}, v{D2+4*r}')
            for i in range(1, 4):
                a.e(f'v_cmp_eq_u32 vcc, {i}, v{T0}')
                a.e('s_nop 1')
                a.e(f'v_cndmask_b32 v{ss_}, v{ss_}, v{D2+4*r+i}, vcc')
            a.e(f'v_cmp_eq_u32 vcc, v{T1}, v{T2}')
            a.e('s_nop 1')
            a.e(f'v_cndmask_b32 v{ss_}, 0, v{ss_}, vcc')
        emit_xreduce(a, [SUM[0][1], SUM[1][1]], [T0, T1])
        a.e(f's_branch {le}')
        a.label(l1)
        for r, raw in enumerate([D1, D2]):
            emit_sum_partials(a, raw, 8)
            a.e(f'v_mov_b32 v{SUM[r][0]}, v{raw}')
            a.e(f'v_mov_b32 v{SUM[r][1]}, v{raw+1}')
        emit_xreduce(a, [SUM[0][0], SUM[0][1], SUM[1][0], SUM[1][1]], [WR1, WR1 + 1, WR1 + 2, WR1 + 3])
        a.label(le)
        CSR = 120
        a.e(f'v_and_b32 v{T0}, 15, v{V_LANE}')
        a.e(f'v_lshlrev_b32 v{T0}, 2, v{T0}')
        a.e(f'v_add_u32 v{T0}, {hex(CSC)}, v{T0}')
        a.e(f'v_and_b32 v{T1}, 0x30, v{V_LANE}')
        for t in range(4):
            a.e(f'ds_read_b32 v{CSR+t}, v{T0} offset:{64*t}')
        KEEP = [(V_PQ + 0, V_PQ + 2), (V_PQ + 4, V_PQ + 6)]
        for r in range(2):
            emit_stats_from_sums(a, SUM[r][0], SUM[r][1], KEEP[r][0], KEEP[r][1], WR1)
        AI = [WR1, WR1 + 8]; BI = [WR1 + 4, WR1 + 12]
        for r in range(2):
            for i in range(4):
                a.e(f'ds_bpermute_b32 v{AI[r]+i}, v{T1}, v{KEEP[r][0]} offset:{4*i}')
                a.e(f'ds_bpermute_b32 v{BI[r]+i}, v{T1}, v{KEEP[r][1]} offset:{4*i}')
        a.e('s_waitcnt vmcnt(0) lgkmcnt(0)'); a.vm = []
        CSE = WR1 + 16
        for t in range(4): a.e(f'v_mov_b32 v{CSE+2*t}, v{CSR+t}')
        for r in range(2):
            for t in range(4):
                for i in (0, 2):
                    d = V_ACC + (r * 4 + t) * 4 + i
                    a.e(pk('mul', d, vp(d), vp(AI[r] + i)))
            for t in range(4):
                for i in (0, 2):
                    d = V_ACC + (r * 4 + t) * 4 + i
                    a.e(pk('fma', d, vp(BI[r] + i), vp(CSE + 2 * t), vp(d), mods=' op_sel_hi:[1,0,1]'))
        regs = [V_ACC + (r * 4 + t) * 4 + i for r in range(2) for t in range(2) for i in range(4)]
        emit_phi(a, regs, WR1)
        for t in range(4):
            b0 = V_ACC + t * 4; b1 = V_ACC + (4 + t) * 4
            a.e(f'v_cvt_pk_bf16_f32 v{b0}, v{b0}, v{b0+1}')
            a.e(f'v_cvt_pk_bf16_f32 v{b0+1}, v{b0+2}, v{b0+3}')
            a.e(f'v_cvt_pk_bf16_f32 v{b0+2}, v{b1}, v{b1+1}')
            a.e(f'v_cvt_pk_bf16_f32 v{b0+3}, v{b1+2}, v{b1+3}')
        a.e('s_nop 1')
        KVD = V_ACC + 16
        for h in range(2):
            a.e(f'v_mfma_f32_16x16x32_bf16 v[{KVD+4*h}:{KVD+4*h+3}], v[{V_ACC+4*h}:{V_ACC+4*h+3}], v[{V_ACC+8+4*h}:{V_ACC+8+4*h+3}], 0')
            a.e(f'v_mfma_f32_16x16x32_bf16 v[{KVD+8+4*h}:{KVD+8+4*h+3}], v[{V_ACC+4*h}:{V_ACC+4*h+3}], v[{ONES}:{ONES+3}], 0')
        a.e(f's_lshl_b32 s{S_T0}, s{S_W}, 11')
        a.e(f's_add_u32 s{S_T0}, s{S_T0}, {hex(SCR)}')
        a.e(f'v_lshlrev_b32 v{T0}, 4, v{V_LANE}')
        a.e(f'v_add_u32 v{T0}, s{S_T0}, v{T0}')
        a.e(f's_lshl_b32 s{S_T0}, s{S_W}, 7')
        a.e(f's_add_u32 s{S_T0}, s{S_T0}, {hex(SCR + 8192)}')
        a.e(f'v_add_u32 v{T2}, s{S_T0}, v{T1}')
        a.e('s_nop 4')
        a.e(f'ds_write_b128 v{T0}, v[{KVD}:{KVD+3}]')
        a.e(f'ds_write_b128 v{T0}, v[{KVD+4}:{KVD+7}] offset:1024')
        set_exec(a, 0x00010001)
        a.e(f'ds_write_b128 v{T2}, v[{KVD+8}:{KVD+11}]')
        a.e(f'ds_write_b128 v{T2}, v[{KVD+12}:{KVD+15}] offset:64')
        a.e('s_mov_b64 exec, -1')
        a.e('s_waitcnt lgkmcnt(0)')
        bar(('X', 'X1'))
        sk = a.newlabel('KVST')
        a.e(f's_cmp_lt_u32 s{S_W}, 2')
        a.e(f's_cbranch_scc0 {sk}')
        if opt.kv_atomic:
            a.e(f's_lshl_b32 s{S_T0}, s{S_W}, 10')
            a.e(f's_add_u32 s{S_T0}, s{S_T0}, {hex(SCR)}')
            a.e(f'v_lshlrev_b32 v{T0}, 2, v{V_LANE}')
            a.e(f'v_add_u32 v{T2}, s{S_T0}, v{T0}')
            a.e(f's_lshl_b32 s{S_T0}, s{S_W}, 6')
            a.e(f's_add_u32 s{S_T0}, s{S_T0}, {hex(SCR + 8192)}')
            a.e(f'v_add_u32 v{V_X}, s{S_T0}, v{T0}')
            KB = V_ACC
            for ww in range(4):
                for i in range(4):
                    a.e(f'ds_read_b32 v{KB+4*ww+i}, v{T2} offset:{ww*2048+256*i}')
                if ww == 2: a.e('s_waitcnt lgkmcnt(4)')
            for ww in range(4):
                a.e(f'ds_read_b32 v{KB+16+ww}, v{V_X} offset:{ww*128}')
            a.e(f's_mul_i32 s{S_T0}, s{S_CB2}, {KVREC}')
            a.e(f's_mul_i32 s{S_T1}, s{S_L}, {16*KVREC}')
            a.e(f's_add_u32 s{S_T0}, s{S_T0}, s{S_T1}')
            a.e(f's_add_u32 s{S_T0}, s{S_T0}, {hex(KVA_OFF)}')
            a.e(f's_lshl_b32 s{S_T1}, s{S_W}, 10')
            a.e(f's_add_u32 s{S_T1}, s{S_T1}, s{S_T0}')
            a.e(f's_lshl_b32 s{S_T2}, s{S_W}, 6')
            a.e(f's_add_u32 s{S_T2}, s{S_T2}, s{S_T0}')
            a.e(f's_add_u32 s{S_T2}, s{S_T2}, 2048')
            a.e('s_waitcnt lgkmcnt(0)')
            for i in (0, 2):
                a.e(pk('add', KB + i, vp(KB + i), vp(KB + 4 + i)))
                a.e(pk('add', KB + 8 + i, vp(KB + 8 + i), vp(KB + 12 + i)))
                a.e(pk('add', KB + i, vp(KB + i), vp(KB + 8 + i)))
            a.e(pk('add', KB + 16, vp(KB + 16), vp(KB + 18)))
            a.e(f'v_add_f32 v{KB+16}, v{KB+16}, v{KB+17}')
            for i in range(4):
                a.e(f'buffer_atomic_add_f32 v{KB+i}, v{T0}, {WS}, s{S_T1} offen offset:{256*i}')
            a.e('s_mov_b64 exec, 0xffff')
            a.e(f'buffer_atomic_add_f32 v{KB+16}, v{T0}, {WS}, s{S_T2} offen')
            a.e('s_mov_b64 exec, -1')
        else:
            a.e(f's_lshl_b32 s{S_T0}, s{S_W}, 10')
            a.e(f's_add_u32 s{S_T0}, s{S_T0}, {hex(SCR)}')
            a.e(f'v_lshlrev_b32 v{T0}, 4, v{V_LANE}')
            a.e(f'v_add_u32 v{T2}, s{S_T0}, v{T0}')
            a.e(f's_lshl_b32 s{S_T0}, s{S_W}, 6')
            a.e(f's_add_u32 s{S_T0}, s{S_T0}, {hex(SCR + 8192)}')
            a.e(f'v_add_u32 v{V_X}, s{S_T0}, v{T1}')
            KB = V_ACC
            for ww in range(4):
                a.e(f'ds_read_b128 v[{KB+4*ww}:{KB+4*ww+3}], v{T2} offset:{ww*2048}')
                a.e(f'ds_read_b128 v[{KB+16+4*ww}:{KB+16+4*ww+3}], v{V_X} offset:{ww*128}')
            a.e(f's_lshl_b32 s{S_T0}, s{S_CB2}, 4')
            a.e(f's_lshl_b32 s{S_T1}, s{S_G}, 1')
            a.e(f's_add_u32 s{S_T0}, s{S_T0}, s{S_T1}')
            a.e(f's_add_u32 s{S_T0}, s{S_T0}, s{S_RB2}')
            a.e(f's_mul_i32 s{S_T0}, s{S_T0}, {KVREC}')
            a.e(f's_add_u32 s{S_T0}, s{S_T0}, s{S_LOFF}')
            a.e(f's_add_u32 s{S_T0}, s{S_T0}, {hex(KVP_OFF)}')
            a.e(f's_lshl_b32 s{S_T1}, s{S_W}, 10')
            a.e(f's_add_u32 s{S_T1}, s{S_T1}, s{S_T0}')
            a.e(f's_lshl_b32 s{S_T2}, s{S_W}, 6')
            a.e(f's_add_u32 s{S_T2}, s{S_T2}, s{S_T0}')
            a.e(f's_add_u32 s{S_T2}, s{S_T2}, 2048')
            a.e('s_waitcnt lgkmcnt(0)')
            for base in (KB, KB + 16):
                for i in range(0, 4, 2):
                    a.e(pk('add', base + i, vp(base + i), vp(base + 4 + i)))
                    a.e(pk('add', base + 8 + i, vp(base + 8 + i), vp(base + 12 + i)))
                    a.e(pk('add', base + i, vp(base + i), vp(base + 8 + i)))
            a.e(f'buffer_store_dwordx4 v[{KB}:{KB+3}], v{T0}, {WS}, s{S_T1} offen sc1')
            set_exec(a, 0x00010001)
            a.e(f'buffer_store_dwordx4 v[{KB+16}:{KB+19}], v{T1}, {WS}, s{S_T2} offen sc1')
            a.e('s_mov_b64 exec, -1')
        a.e(f's_lshl_b32 s{S_T0}, s{S_L}, 11')
        a.e(f's_lshl_b32 s{S_T1}, s{S_CB2}, 7')
        a.e(f's_add_u32 s{S_T0}, s{S_T0}, s{S_T1}')
        a.e(f's_lshl_b32 s{S_T1}, s{S_W}, 6')
        a.e(f's_add_u32 s{S_T0}, s{S_T0}, s{S_T1}')
        a.e(f's_lshl_b32 s{S_T1}, s{S_G}, 3')
        a.e(f's_add_u32 s{S_T0}, s{S_T0}, s{S_T1}')
        a.e(f's_lshl_b32 s{S_T1}, s{S_RB2}, 2')
        a.e(f's_add_u32 s{S_T0}, s{S_T0}, s{S_T1}')
        a.e(f's_add_u32 s{S_T0}, s{S_T0}, {hex(KVF_OFF)}')
        a.e(f'v_mov_b32 v{V_X+4}, s{S_T0}')
        a.label(sk)
        a.vm = []
        stamp()
        if done('P1KV'): return True

        a.c('=== P1Q')
        QCS = V_ACC + 16
        a.e(f'v_and_b32 v{T1}, 0x30, v{V_LANE}')
        a.e(f'v_add_u32 v{T1}, {hex(CSC + 256)}, v{T1}')
        a.e(f'ds_read_b128 v[{QCS}:{QCS+3}], v{T1}')
        a.e(f'ds_read_b128 v[{QCS+4}:{QCS+7}], v{T1} offset:64')
        a.e('s_waitcnt lgkmcnt(0)')
        QAB = [(V_ACC + 24, V_ACC + 26), (V_ACC + 28, V_ACC + 30)]
        for r in range(2):
            a.e(f'v_mov_b32 v{QAB[r][0]}, v{KEEP[r][0]}')
            a.e(f'v_mov_b32 v{QAB[r][1]}, v{KEEP[r][1]}')
        def q_issue(j, t):
            if j == opt.kvflag_at and t == 1:
                fk = a.newlabel('KVFL')
                a.e(f's_cmp_lt_u32 s{S_W}, 2')
                a.e(f's_cbranch_scc0 {fk}')
                thr_value(a, S_THR, 1, xcc=True)
                a.e(f'v_mov_b32 v{V_X+5}, s{S_THR}')
                a.e('s_waitcnt vmcnt(0)')
                a.e('s_mov_b64 exec, 1')
                a.e(f'buffer_store_dword v{V_X+5}, v{V_X+4}, {WS}, 0 offen sc1')
                a.e('s_mov_b64 exec, -1')
                a.label(fk)
        emit_gemm16(a, bar, 'P1Q', slabs['P1Q'], 2, '64',
                    acc_of=lambda r, t: V_ACC + (r * 2 + t) * 4, a_of=lambda r, j: V_A + (r * 16 + j) * 4,
                    a_wait=lambda j: None, a_issue=q_issue, wr=96, S=8)
        for r in range(2):
            for t in range(2):
                emit_lnfold(a, V_ACC + (r * 2 + t) * 4, QCS + 4 * t, QAB[r][0], QAB[r][1], 4)
        emit_phi(a, [V_ACC + i for i in range(16)], 96)
        for r in range(2):
            for h in range(2):
                emit_pack(a, V_PQ + (r * 2 + h) * 2, V_ACC + (r * 2 + h) * 4, 4)
        stamp()
        sk = a.newlabel('MODE')
        a.e(f's_cmp_eq_u32 s{S_L}, 0')
        a.e(f's_cbranch_scc0 {sk}')
        a.e(f'v_and_b32 v{T1}, 31, v{V_LANE}')
        a.e(f'v_lshlrev_b32 v{T1}, 2, v{T1}')
        a.e(f's_lshl_b32 s{S_T0}, s{S_G}, 7')
        a.e(f's_add_u32 s{S_T0}, s{S_T0}, {hex(XID_OFF)}')
        emit_poll(a, T1, 0, soff=f's{S_T0}', opt=opt)
        a.e(f'v_and_b32 v{T2}, 7, v{T2}')
        a.e(f'v_cmp_eq_u32 vcc, s{S_XCC}, v{T2}')
        a.e('s_nop 1')
        a.e('s_cmp_eq_u64 vcc, -1')
        a.e(f's_cselect_b32 s{S_MODE}, 0, 1')
        if opt.force_safe: a.e(f's_mov_b32 s{S_MODE}, 1')
        a.label(sk)
        a.e(f's_lshl_b32 s{S_T0}, s{S_L}, 11')
        emit_poll(a, V_FKV, 1, soff=f's{S_T0}', opt=opt)
        stamp()
        RB = V_A + 64
        if opt.kv_atomic:
            a.e(f's_mul_i32 s{S_T0}, s{S_CB2}, {KVREC}')
            a.e(f's_mul_i32 s{S_T1}, s{S_L}, {16*KVREC}')
            a.e(f's_add_u32 s{S_T0}, s{S_T0}, s{S_T1}')
            a.e(f's_add_u32 s{S_T0}, s{S_T0}, {hex(KVA_OFF)}')
            a.e(f'v_lshlrev_b32 v{T0}, 4, v{V_LANE}')
            a.e(f'v_and_b32 v{T1}, 0x30, v{V_LANE}')
            a.vmem(f'buffer_load_dwordx4 v[{RB}:{RB+3}], v{T0}, {WS}, s{S_T0} offen sc1', 'kp')
            a.vmem(f'buffer_load_dwordx4 v[{RB+4}:{RB+7}], v{T0}, {WS}, s{S_T0} offen offset:1024 sc1', 'kp')
            a.vmem(f'buffer_load_dwordx4 v[{RB+8}:{RB+11}], v{T1}, {WS}, s{S_T0} offen offset:2048 sc1', 'kp')
            a.vmem(f'buffer_load_dwordx4 v[{RB+12}:{RB+15}], v{T1}, {WS}, s{S_T0} offen offset:2112 sc1', 'kp')
            a.wait_vm_all()
        else:
            a.e(f's_lshl_b32 s{S_T0}, s{S_CB2}, 4')
            a.e(f's_lshl_b32 s{S_T1}, s{S_W}, 2')
            a.e(f's_add_u32 s{S_T0}, s{S_T0}, s{S_T1}')
            a.e(f's_mul_i32 s{S_T0}, s{S_T0}, {KVREC}')
            a.e(f's_add_u32 s{S_T0}, s{S_T0}, s{S_LOFF}')
            a.e(f's_add_u32 s{S_T0}, s{S_T0}, {hex(KVP_OFF)}')
            a.e(f'v_lshlrev_b32 v{T0}, 4, v{V_LANE}')
            a.e(f'v_and_b32 v{T1}, 0x30, v{V_LANE}')
            PB = V_A
            for s4 in range(4):
                b = PB + 16 * s4
                a.vmem(f'buffer_load_dwordx4 v[{b}:{b+3}], v{T0}, {WS}, s{S_T0} offen sc1', 'kp')
                a.vmem(f'buffer_load_dwordx4 v[{b+4}:{b+7}], v{T0}, {WS}, s{S_T0} offen offset:1024 sc1', 'kp')
                a.vmem(f'buffer_load_dwordx4 v[{b+8}:{b+11}], v{T1}, {WS}, s{S_T0} offen offset:2048 sc1', 'kp')
                a.vmem(f'buffer_load_dwordx4 v[{b+12}:{b+15}], v{T1}, {WS}, s{S_T0} offen offset:2112 sc1', 'kp')
                if s4 < 3: a.e(f's_add_u32 s{S_T0}, s{S_T0}, {KVREC}')
            a.e(f's_lshl_b32 s{S_T0}, s{S_W}, 11')
            a.e(f's_add_u32 s{S_T0}, s{S_T0}, {hex(SCR)}')
            a.e(f'v_add_u32 v{T0}, s{S_T0}, v{T0}')
            a.e(f's_lshl_b32 s{S_T0}, s{S_W}, 7')
            a.e(f's_add_u32 s{S_T0}, s{S_T0}, {hex(SCR + 8192)}')
            a.e(f'v_add_u32 v{T2}, s{S_T0}, v{T1}')
            a.wait_vm_all()
            for i in range(0, 16, 2):
                a.e(pk('add', PB + i, vp(PB + i), vp(PB + 16 + i)))
                a.e(pk('add', PB + 32 + i, vp(PB + 32 + i), vp(PB + 48 + i)))
            for i in range(0, 16, 2):
                a.e(pk('add', PB + i, vp(PB + i), vp(PB + 32 + i)))
            a.e(f'ds_write_b128 v{T0}, v[{PB}:{PB+3}]')
            a.e(f'ds_write_b128 v{T0}, v[{PB+4}:{PB+7}] offset:1024')
            set_exec(a, 0x00010001)
            a.e(f'ds_write_b128 v{T2}, v[{PB+8}:{PB+11}]')
            a.e(f'ds_write_b128 v{T2}, v[{PB+12}:{PB+15}] offset:64')
            a.e('s_mov_b64 exec, -1')
            a.e(f'v_lshlrev_b32 v{T0}, 4, v{V_LANE}')
            a.e(f'v_add_u32 v{T0}, {hex(SCR)}, v{T0}')
            a.e(f'v_add_u32 v{T2}, {hex(SCR + 8192)}, v{T1}')
            a.e('s_waitcnt lgkmcnt(0)')
            bar(('X', 'X2'))
            for ww in range(4):
                b = RB + 16 * ww
                a.e(f'ds_read_b128 v[{b}:{b+3}], v{T0} offset:{ww*2048}')
                a.e(f'ds_read_b128 v[{b+4}:{b+7}], v{T0} offset:{ww*2048+1024}')
                a.e(f'ds_read_b128 v[{b+8}:{b+11}], v{T2} offset:{ww*128}')
                a.e(f'ds_read_b128 v[{b+12}:{b+15}], v{T2} offset:{ww*128+64}')
                if ww == 2: a.e('s_waitcnt lgkmcnt(8)')
            a.e('s_waitcnt lgkmcnt(0)')
            for i in range(0, 16, 2):
                a.e(pk('add', RB + i, vp(RB + i), vp(RB + 16 + i)))
                a.e(pk('add', RB + 32 + i, vp(RB + 32 + i), vp(RB + 48 + i)))
            for i in range(0, 16, 2):
                a.e(pk('add', RB + i, vp(RB + i), vp(RB + 32 + i)))
        OPB = V_ACC + 16
        emit_pack(a, OPB, RB, 16)
        a.e('s_nop 1')
        NUM = V_A; DEN = V_A + 16
        for r in range(2):
            for h in range(2):
                pq = V_PQ + (r * 2 + h) * 2
                n_ = NUM + (r * 2 + h) * 4; d_ = DEN + (r * 2 + h) * 4
                a.e(f'v_mfma_f32_16x16x16_bf16 v[{n_}:{n_+3}], v[{OPB+2*h}:{OPB+2*h+1}], v[{pq}:{pq+1}], 0')
                a.e(f'v_mfma_f32_16x16x16_bf16 v[{d_}:{d_+3}], v[{OPB+4+2*h}:{OPB+4+2*h+1}], v[{pq}:{pq+1}], 0')
        a.e(f's_lshl_b32 s{S_T0}, s{S_CB2}, 10')
        a.e(f's_add_u32 s{S_T0}, s{S_T0}, s{S_GH}')
        a.e(f's_add_u32 s{S_T1}, s{S_T0}, 0x4000')
        a.e('s_nop 4')
        for k in range(4): a.e(f'v_add_f32 v{DEN+4*k}, s{S_EPS6}, v{DEN+4*k}')
        for k in range(4): a.e(f'v_rcp_f32 v{DEN+4*k}, v{DEN+4*k}')
        a.e('s_nop 0')
        for k in range(4):
            for i in range(4): a.e(f'v_mul_f32 v{NUM+4*k+i}, v{NUM+4*k+i}, v{DEN+4*k}')
        OPK = V_A + 32
        emit_pack(a, OPK, NUM, 16)
        emit_mode_stores(a, [f'buffer_store_dwordx4 v[{OPK}:{OPK+3}], v{V_AB}, {WS}, s{S_T0} offen',
                             f'buffer_store_dwordx4 v[{OPK+4}:{OPK+7}], v{V_AB}, {WS}, s{S_T1} offen'], cold=True)
        emit_signal(a, ep(1))
        stamp()
        if done('P1Q'): return True

        ACC = V_ACC; WR = 80; TMP = V_A
        def small_gemm(phase, tail=None):
            a.fstamp(phase)
            emit_gemm32(a, bar, phase, slabs[phase], ACC, WR, tail=tail)
        def tile_store(pkb, base, gh=False, cold=False):
            soff(S_T0, base, gh=gh)
            emit_mode_stores(a, [f'buffer_store_dwordx4 v[{pkb}:{pkb+3}], v{V_TST}, {WS}, s{S_T0} offen',
                                 f'buffer_store_dwordx4 v[{pkb+4}:{pkb+7}], v{V_TST}, {WS}, s{S_T0} offen offset:512'], cold=cold)

        a.c('=== P3')
        stamp()
        small_gemm('P3')
        stamp()
        for i in range(0, 16, 2): a.e(pk('add', V_RES + i, vp(V_RES + i), vp(ACC + i)))
        emit_pack32(a, TMP, V_RES)
        tile_store(TMP, A1_OFF, cold=True)
        soff(S_T1, ST_OFF)
        emit_stats_partial32(a, V_RES, TMP + 8, f's{S_T1}', cold=True)
        emit_signal(a, ep(2))
        stamp()
        if done('P3'): return True

        a.c('=== P4')
        CS4 = TMP + 16; RAW = TMP + 32
        a.e(f'v_lshrrev_b32 v{T1}, 5, v{V_LANE}')
        a.e(f'v_lshlrev_b32 v{T1}, 4, v{T1}')
        a.e(f's_lshl_b32 s{S_T1}, s{S_CH}, 7')
        a.e(f's_add_u32 s{S_T1}, s{S_T1}, {hex(CSC + 384)}')
        a.e(f'v_add_u32 v{T1}, s{S_T1}, v{T1}')
        for j in range(4):
            a.e(f'ds_read_b128 v[{CS4+4*j}:{CS4+4*j+3}], v{T1} offset:{32*j}')
        a.e('s_waitcnt lgkmcnt(0)')
        stamp()
        def p4_tail():
            soff(S_T0, ST_OFF)
            for k in range(4):
                a.vmem(f'buffer_load_dwordx4 v[{RAW+4*k}:{RAW+4*k+3}], v{V_STS}, {WS}, s{S_T0} offen offset:{512*k} sc1', 'st')
        small_gemm('P4', tail=p4_tail)
        stamp()
        a.wait_vm_all()
        emit_sum_partials(a, RAW, 16)
        emit_xreduce(a, [RAW, RAW + 1], [RAW + 2, RAW + 3], over16=False)
        emit_stats_from_sums(a, RAW, RAW + 1, RAW + 4, RAW + 6, RAW + 8, double=True, keep=(V_MEAN, V_RS))
        emit_lnfold(a, ACC, CS4, RAW + 4, RAW + 6, 16)
        emit_gelu(a, ACC, 16, TMP + 48, V_PQ)
        emit_pack32(a, TMP, ACC)
        tile_store(TMP, A0_OFF, gh=True)
        gl = a.newlabel('GH'); gu = a.newlabel('GH'); gd = a.newlabel('GH')
        a.e(f's_cmp_eq_u32 s{S_RB}, 3')
        a.e(f's_cbranch_scc0 {gu}')
        a.e(f's_cmp_eq_u32 s{S_RH}, 1')
        a.e(f's_cbranch_scc0 {gd}')
        a.e(f's_bitcmp1_b32 s{S_CB}, 1')
        a.e(f's_cbranch_scc1 {gd}')
        a.e(f's_cmp_eq_u32 s{S_G}, 7')
        a.e(f's_cbranch_scc1 {gd}')
        a.e(f's_add_u32 s{S_T1}, s{S_G}, 1')
        a.e(f's_mul_i32 s{S_T2}, s{S_T1}, {18*16384}')
        a.e(f's_lshl_b32 s{S_T3}, s{S_T1}, 8')
        set_exec(a, 0xc0000000)
        a.e(f's_branch {gl}')
        a.label(gu)
        a.e(f's_cmp_eq_u32 s{S_RB}, 0')
        a.e(f's_cbranch_scc0 {gd}')
        a.e(f's_cmp_eq_u32 s{S_RH}, 0')
        a.e(f's_cbranch_scc0 {gd}')
        a.e(f's_bitcmp1_b32 s{S_CB}, 1')
        a.e(f's_cbranch_scc0 {gd}')
        a.e(f's_cmp_eq_u32 s{S_G}, 0')
        a.e(f's_cbranch_scc1 {gd}')
        a.e(f's_sub_u32 s{S_T1}, s{S_G}, 1')
        a.e(f's_mul_i32 s{S_T2}, s{S_T1}, {18*16384}')
        a.e(f's_add_u32 s{S_T2}, s{S_T2}, {17*16384}')
        a.e(f's_lshl_b32 s{S_T3}, s{S_T1}, 8')
        a.e(f's_add_u32 s{S_T3}, s{S_T3}, 128')
        set_exec(a, 0x00000003)
        a.label(gl)
        a.e(f's_lshl_b32 s{S_T0}, s{S_CB}, 1')
        a.e(f's_add_u32 s{S_T0}, s{S_T0}, s{S_CH}')
        a.e(f's_lshl_b32 s{S_T0}, s{S_T0}, 10')
        a.e(f's_add_u32 s{S_T2}, s{S_T2}, s{S_T0}')
        a.e(f'v_and_b32 v{T0}, 0x3fff, v{V_TST}')
        a.e(f'v_and_b32 v{T0}, 0x3ff, v{T0}')
        a.e(f'buffer_store_dwordx4 v[{TMP}:{TMP+3}], v{T0}, {WS}, s{S_T2} offen sc1')
        a.e(f'buffer_store_dwordx4 v[{TMP+4}:{TMP+7}], v{T0}, {WS}, s{S_T2} offen offset:512 sc1')
        a.e('s_mov_b64 exec, -1')
        a.e(f's_and_b32 s{S_T0}, s{S_CB}, 1')
        a.e(f's_lshr_b32 s{S_T1}, s{S_CB}, 2')
        a.e(f's_lshl_b32 s{S_T1}, s{S_T1}, 1')
        a.e(f's_add_u32 s{S_T0}, s{S_T0}, s{S_T1}')
        a.e(f's_lshl_b32 s{S_T0}, s{S_T0}, 1')
        a.e(f's_add_u32 s{S_T0}, s{S_T0}, s{S_CH}')
        a.e(f's_lshl_b32 s{S_T0}, s{S_T0}, 2')
        a.e(f's_add_u32 s{S_T3}, s{S_T3}, s{S_T0}')
        a.e(f's_lshl_b32 s{S_T0}, s{S_L}, 11')
        a.e(f's_add_u32 s{S_T3}, s{S_T3}, s{S_T0}')
        a.e(f's_add_u32 s{S_T3}, s{S_T3}, {hex(HF_OFF)}')
        thr_value(a, S_THR, ep(3), xcc=True)
        a.e(f'v_mov_b32 v{T0}, s{S_T3}')
        a.e(f'v_mov_b32 v{T1}, s{S_THR}')
        a.e('s_waitcnt vmcnt(0)')
        a.e('s_mov_b64 exec, 1')
        a.e(f'buffer_store_dword v{T1}, v{T0}, {WS}, 0 offen sc1')
        a.e('s_mov_b64 exec, -1')
        a.label(gd)
        emit_signal(a, ep(3))
        stamp()
        if done('P4'): return True

        a.c('=== P5')
        stamp()
        small_gemm('P5')
        stamp()
        a.e(f'v_mul_f32 v{TMP+10}, v{V_MEAN}, v{V_RS}')
        a.e(f'v_sub_f32 v{TMP+10}, 0, v{TMP+10}')
        a.e(f'v_mov_b32 v{TMP+8}, v{V_RS}')
        for i in range(0, 16, 2):
            a.e(pk('fma', ACC + i, vp(V_RES + i), vp(TMP + 8), vp(ACC + i), mods=' op_sel_hi:[1,0,1]'))
        for i in range(0, 16, 2):
            a.e(pk('add', ACC + i, vp(ACC + i), vp(TMP + 10), mods=' op_sel_hi:[1,0]'))
        emit_pack32(a, TMP, ACC)
        tile_store(TMP, A1_OFF)
        soff(S_T1, ST_OFF)
        emit_stats_partial32(a, ACC, TMP + 12, f's{S_T1}')
        for i in range(0, 16, 2): a.e(pk('add', V_RES + i, vp(V_RES + i), vp(ACC + i)))
        emit_signal(a, ep(4))
        stamp()
        if done('P5'): return True

        a.c('=== P6')
        CS6 = V_ACC; ACC6 = 192; WR6 = 96
        a.e(f'v_and_b32 v{T1}, 0x30, v{V_LANE}')
        a.e(f'v_add_u32 v{T1}, {hex(CSC + 640)}, v{T1}')
        for t in range(7):
            a.e(f'ds_read_b128 v[{CS6+4*t}:{CS6+4*t+3}], v{T1} offset:{64*t}')
        a.e('s_waitcnt lgkmcnt(0)')
        emit_poll(a, V_FSB, ep(4), opt=opt)
        stamp()
        def p6_load(j):
            a.e(f's_lshl_b32 s{S_T0}, s{S_RB2}, {13 if opt.rot else 31}')
            if not opt.rot: a.e(f's_mov_b32 s{S_T0}, 0')
            a.e(f's_xor_b32 s{S_T0}, s{S_T0}, {hex((j // 4) * 4096)}')
            a.e(f's_add_u32 s{S_T0}, s{S_T0}, {hex(A1_OFF)}')
            a.e(f's_add_u32 s{S_T1}, s{S_T0}, 0x4000')
            for r in range(2):
                d = V_A + ((j % 8) * 2 + r) * 4
                a.vmem(f'buffer_load_dwordx4 v[{d}:{d+3}], v{V_AB}, {WS}, s{S_T0 if r == 0 else S_T1} offen offset:{(j%4)*1024} sc1', ('A', j))
        RAW6 = [V_PQ, 248]
        def p6_issue(j, t):
            if t == 1:
                if j + opt.D_p6 < 16:
                    p6_load(j + opt.D_p6)
                elif j + opt.D_p6 == 16:
                    soff(S_T0, ST_OFF)
                    for r in range(2):
                        a.vmem(f'buffer_load_dwordx4 v[{RAW6[r]}:{RAW6[r]+3}], v{V_STB}, {WS}, s{S_T0} offen offset:{256*r} sc1', 'st')
                        a.vmem(f'buffer_load_dwordx4 v[{RAW6[r]+4}:{RAW6[r]+7}], v{V_STB}, {WS}, s{S_T0} offen offset:{256*r+512} sc1', 'st')
        a.fstamp('P6')
        for j in range(opt.D_p6): p6_load(j)
        emit_gemm16(a, bar, 'P6', slabs['P6'], 7, '224',
                    acc_of=lambda r, t: ACC6 + (r * 7 + t) * 4, a_of=lambda r, j: V_A + ((j % 8) * 2 + r) * 4,
                    a_wait=lambda j: a.count_vm(('A', j)), a_issue=p6_issue, wr=WR6, S=8)
        stamp()
        a.wait_vm_all()
        for r in range(2): emit_sum_partials(a, RAW6[r], 8)
        emit_xreduce(a, [RAW6[0], RAW6[0] + 1, RAW6[1], RAW6[1] + 1], [V_X, V_X + 1, V_X + 2, V_X + 3])
        AB6 = [(92, 94), (RAW6[1] + 4, RAW6[1] + 6)]
        for r in range(2):
            emit_stats_from_sums(a, RAW6[r], RAW6[r] + 1, AB6[r][0], AB6[r][1], V_X)
        a.e(f's_lshl_b32 s{S_T0}, s{S_G}, 4')
        a.e(f's_lshl_b32 s{S_T1}, s{S_RB2}, 3')
        a.e(f's_add_u32 s{S_T0}, s{S_T0}, s{S_T1}')
        a.e(f's_lshl_b32 s{S_T1}, s{S_W}, 1')
        a.e(f's_add_u32 s{S_T0}, s{S_T0}, s{S_T1}')
        a.e(f's_mul_i32 s{S_T0}, s{S_T0}, 57344')
        a.e(f's_lshr_b32 s{S_T1}, s{S_CB2}, 1')
        a.e(f's_mul_i32 s{S_T1}, s{S_T1}, 7168')
        a.e(f's_add_u32 s{S_T0}, s{S_T0}, s{S_T1}')
        a.e(f's_add_u32 s{S_T0}, s{S_T0}, {hex(G_OFF)}')
        a.e(f's_and_b32 s{S_T1}, s{S_CB2}, 1')
        a.e(f's_mul_i32 s{S_U0}, s{S_T1}, 3072')
        a.e(f's_add_u32 s{S_U0}, s{S_U0}, s{S_T0}')
        a.e(f's_add_u32 s{S_U1}, s{S_U0}, 57344')
        a.e(f's_lshl_b32 s{S_T1}, s{S_T1}, 3')
        a.e(f's_add_u32 s{S_U2}, s{S_T0}, s{S_T1}')
        a.e(f's_add_u32 s{S_U2}, s{S_U2}, 6144')
        a.e(f's_add_u32 s{S_U3}, s{S_U2}, 57344')
        a.e(f'v_lshlrev_b32 v{V_X+4}, 4, v{V_LANE}')
        for r in range(2):
            emit_lnfold(a, ACC6 + r * 28, CS6, AB6[r][0], AB6[r][1], 28)
            emit_gelu(a, ACC6 + r * 28, 28, V_A, V_PQ + 4)
            pkb = V_A + 16 + r * 16
            emit_pack(a, pkb, ACC6 + r * 28, 28)
            st = [f'buffer_store_dwordx4 v[{pkb+4*j}:{pkb+4*j+3}], v{V_X+4}, {WS}, s{S_U0+r} offen offset:{1024*j}' for j in range(3)]
            st.append(f'buffer_store_dwordx2 v[{pkb+12}:{pkb+13}], v{V_X+4}, {WS}, s{S_U2+r} offen')
            emit_mode_stores(a, st, cold=bool(opt.g_cold))
        emit_signal(a, ep(5))
        stamp()
        if done('P6'): return True

        a.c('=== P7')
        if opt.p7_self:
            VG, VF = V_A + 100, V_A + 101
            a.e(f's_lshl_b32 s{S_T0}, s{S_G}, 4'); a.e(f's_lshl_b32 s{S_T1}, s{S_RB}, 2'); a.e(f's_add_u32 s{S_T0}, s{S_T0}, s{S_T1}')
            a.e(f's_add_u32 s{S_T0}, s{S_T0}, s{S_W}'); a.e(f's_mul_i32 s{S_T0}, s{S_T0}, 57344')
            a.e(f'v_lshlrev_b32 v{VG}, 4, v{V_LANE}'); a.e(f'v_add_u32 v{VG}, s{S_T0}, v{VG}')
            for p_ in range(8):
                a.e(f's_and_b32 s{S_P7+p_}, s{S_RB}, {3 if opt.rot else 0}'); a.e(f's_lshl_b32 s{S_P7+p_}, s{S_P7+p_}, 1')
                a.e(f's_xor_b32 s{S_P7+p_}, s{S_P7+p_}, {p_}'); a.e(f's_mul_i32 s{S_P7+p_}, s{S_P7+p_}, 7168')
            a.e(f's_lshl_b32 s{S_T2}, s{S_G}, 9'); a.e(f's_add_u32 s{S_T2}, s{S_T2}, {hex(LF_OFF)}')
            a.e(f's_and_b32 s{S_T3}, s{S_RB}, 1'); a.e(f's_lshl_b32 s{S_T3}, s{S_T3}, 1'); a.e(f's_add_u32 s{S_T3}, s{S_T3}, s{S_RH}')
            a.e(f's_lshl_b32 s{S_T3}, s{S_T3}, 7'); a.e(f's_add_u32 s{S_T3}, s{S_T3}, s{S_T2}')
            a.e(f's_lshr_b32 s{S_T4}, s{S_RB}, 1'); a.e(f's_lshl_b32 s{S_T4}, s{S_T4}, 6'); a.e(f's_add_u32 s{S_T3}, s{S_T3}, s{S_T4}')
            a.e(f'v_and_b32 v{VF}, 15, v{V_LANE}'); a.e(f'v_lshlrev_b32 v{VF}, 2, v{VF}'); a.e(f'v_add_u32 v{VF}, s{S_T3}, v{VF}')
            a.e(f's_lshl_b32 s{S_T3}, s{S_R}, 2'); a.e(f's_add_u32 s{S_T3}, s{S_T3}, s{S_T2}')
            a.e(f'v_and_b32 v{T1}, 3, v{V_LANE}'); a.e(f'v_lshlrev_b32 v{T1}, 7, v{T1}'); a.e(f'v_add_u32 v{T1}, s{S_T3}, v{T1}')
            a.e(f'v_cmp_lt_u32 vcc, 15, v{V_LANE}'); a.e('s_nop 1'); a.e(f'v_cndmask_b32 v{VF}, v{VF}, v{T1}, vcc')
            emit_poll(a, VF, ep(5), opt=opt)
            stamp()
            def pieces7(c):
                state = {'last': None}
                def mk(k):
                    def f():
                        if k == 0: a.e(f's_add_u32 m0, s{S_W4K}, {hex(AREG + (c % 4) * 16384)}')
                        p_, i_ = divmod(4 * c + k, 7)
                        const = G_OFF + (i_ - k) * 1024
                        if state['last'] != (p_, const):
                            a.e(f's_add_u32 s{S_T0}, s{S_P7+p_}, {hex(const & 0xffffffff)}'); state['last'] = (p_, const)
                        a.vmem(f'buffer_load_dwordx4 v{VG}, {WS}, s{S_T0} offen offset:{k*1024} sc1 lds', ('A', c))
                    return f
                return [mk(k) for k in range(4)]
            emit_gemm32(a, bar, 'P7', slabs['P7'], ACC, WR, a_pieces=pieces7)
        else:
            stamp()
            small_gemm('P7')
        stamp()
        for i in range(0, 16, 2): a.e(pk('add', V_RES + i, vp(V_RES + i), vp(ACC + i)))
        emit_pack32(a, TMP, V_RES)
        return False

    stopped = run_layer()
    if not stopped:
        fin = a.newlabel('FIN'); TMP = V_A
        a.e(f's_cmp_eq_u32 s{S_L}, 1')
        a.e(f's_cbranch_scc1 {fin}')
        a.e(f's_mov_b32 s{S_T0}, {hex(A2_OFF)}')
        emit_mode_stores(a, [f'buffer_store_dwordx4 v[{TMP}:{TMP+3}], v{V_TST}, {WS}, s{S_T0} offen',
                             f'buffer_store_dwordx4 v[{TMP+4}:{TMP+7}], v{V_TST}, {WS}, s{S_T0} offen offset:512'], cold=True)
        a.e(f's_mov_b32 s{S_T1}, {hex(ST_OFF)}')
        emit_stats_partial32(a, V_RES, TMP + 8, f's{S_T1}')
        a.e(f's_add_u32 s{S_EP}, s{S_EP}, 6')
        emit_signal(a, f's{S_EP}')
        if opt.timing:
            dump([tmreg(i) for i in range(tm[0])])
        a.e(f's_mov_b32 s{S_L}, 1')
        a.e(f's_mov_b32 s{S_LOFF}, {hex(KVP_L)}')
        a.e(f's_mov_b32 s{S_COLD}, s{S_MODE}')
        for i in range(3): a.e(f's_mov_b32 s{S_PA+i}, s{S_WS+i}')
        a.e(f's_mov_b32 s{S_PA+3}, 0x20000')
        a.e(f'v_mov_b32 v{V_P1}, v{V_AB}')
        for c in range(4):
            a.e(f's_xor_b32 s{S_RK+c}, s{S_ROTK}, {c}')
            a.e(f's_lshl_b32 s{S_RK+c}, s{S_RK+c}, 12')
            a.e(f's_add_u32 s{S_RK+c}, s{S_RK+c}, {hex(A2_OFF)}')
        a.e(f's_mov_b32 s{S_ASTR}, 1024')
        a.e(f's_branch {LOOP}')
        a.label(fin)
        emit_pack(a, TMP, V_RES, 16)
        OS = f's[{S_OUT}:{S_OUT+3}]'
        for j in range(4):
            a.e(f'buffer_store_dwordx2 v[{TMP+2*j}:{TMP+2*j+1}], v{V_XRM}, {OS}, 0 offen offset:{16*j}')
    a.label('L_END_COMPUTE')
    nn = a.newlabel('NON')
    a.e(f's_or_b32 s{S_T0}, s2, s{S_W}')
    a.e(f's_cmp_eq_u32 s{S_T0}, 0')
    a.e(f's_cbranch_scc0 {nn}')
    a.e(f's_add_u32 s{S_T0}, s{S_V}, 1')
    a.e(f'v_mov_b32 v{V_T0}, s{S_T0}')
    a.e(f'v_mov_b32 v{V_T1}, {hex(NONCE_OFF)}')
    a.e('s_mov_b64 exec, 1')
    a.e(f'buffer_store_dword v{V_T0}, v{V_T1}, {WS}, 0 offen')
    a.e('s_mov_b64 exec, -1')
    a.label(nn)
    stamp()
    if opt.timing: dump([tmreg(i) for i in range(tm[0])] + ([85] if False else []))
    if opt.fine: dump([freg(i) for i in range(fs[0])])
    if opt.wall:
        a.e('s_waitcnt vmcnt(0)')
        a.e('s_memrealtime s[82:83]'); a.e('s_memtime s[80:81]'); a.e('s_waitcnt lgkmcnt(0)')
        dump([84, 82, 85, 80])
    a.e('s_waitcnt vmcnt(0)')
    a.e('s_endpgm')
    return evq


def gen_loader(a, opt, events):
    VN, VKV, VQ, VW3, VKVn, VQn = 8, 12, 16, 20, 28, 32
    VT0, VT1, VT2, VT3 = 1, 2, 3, 4
    a.c('--- loader setup')
    def srd(s, p, size):
        a.e(f's_mov_b32 s{s}, s{p}'); a.e(f's_mov_b32 s{s+1}, s{p+1}')
        a.e(f's_mov_b32 s{s+2}, {hex(size)}'); a.e(f's_mov_b32 s{s+3}, 0x20000')
    srd(S_WQKV, S_PTR + 2, 512 * 1536 * 2)
    srd(S_WO, S_PTR + 4, 512 * 512 * 2)
    srd(S_W1, S_PTR + 8, 512 * 512 * 2)
    srd(S_W2, S_PTR + 10, 512 * 512 * 2)
    srd(S_W3, S_PTR + 12, 512 * 1792 * 2)
    srd(S_W4, S_PTR + 14, 1792 * 512 * 2)
    CBS, CBK, CB6, CB7 = 64, 68, 72, 76
    a.e(f's_lshl_b32 s{S_T1}, s{S_RB2}, 1')
    a.e(f's_add_u32 s{S_T1}, s{S_T1}, s{S_CB2}')
    a.e(f's_and_b32 s{S_T1}, s{S_T1}, {3 if opt.rot else 0}')
    for c in range(4):
        a.e(f's_xor_b32 s{CBK+c}, s{S_T1}, {c}')
        a.e(f's_mul_i32 s{CBK+c}, s{CBK+c}, {128*3072}')
    def late_tables():
        rm = 3 if opt.rot else 0
        for c in range(4):
            a.e(f's_and_b32 s{CBS+c}, s{S_RB}, {rm}')
            a.e(f's_xor_b32 s{CBS+c}, s{CBS+c}, {c}')
            a.e(f's_lshl_b32 s{CBS+c}, s{CBS+c}, 17')
            a.e(f's_lshl_b32 s{CB6+c}, s{S_RB2}, 1')
            a.e(f's_and_b32 s{CB6+c}, s{CB6+c}, {rm}')
            a.e(f's_xor_b32 s{CB6+c}, s{CB6+c}, {c}')
            a.e(f's_mul_i32 s{CB6+c}, s{CB6+c}, {128*3584}')
        for p_ in range(8):
            a.e(f's_and_b32 s{CB7+p_}, s{S_RB}, {rm}')
            a.e(f's_lshl_b32 s{CB7+p_}, s{CB7+p_}, 1')
            a.e(f's_xor_b32 s{CB7+p_}, s{CB7+p_}, {p_}')
            a.e(f's_mul_i32 s{CB7+p_}, s{CB7+p_}, {224*1024}')

    def cs_issue():
        a.c('cs pieces')
        c1 = a.newlabel('CS'); c2 = a.newlabel('CS'); c3 = a.newlabel('CS')
        a.e(f's_min_u32 s{92}, s2, 239')
        a.e(f's_lshr_b32 s{93}, s{92}, 2')
        a.e(f's_and_b32 s{94}, s{92}, 3')
        a.e(f's_cmp_lt_u32 s{93}, 24')
        a.e(f's_cbranch_scc0 {c1}')
        for i in range(3): a.e(f's_mov_b32 s{S_CSRD+i}, s{S_WQKV+i}')
        a.e(f's_mov_b32 s{S_T0}, 3072')
        a.e(f's_lshl_b32 s{S_T1}, s{93}, 7')
        a.e(f's_branch {c3}')
        a.label(c1)
        a.e(f's_cmp_lt_u32 s{93}, 32')
        a.e(f's_cbranch_scc0 {c2}')
        for i in range(3): a.e(f's_mov_b32 s{S_CSRD+i}, s{S_W1+i}')
        a.e(f's_mov_b32 s{S_T0}, 1024')
        a.e(f's_sub_u32 s{S_T1}, s{93}, 24')
        a.e(f's_lshl_b32 s{S_T1}, s{S_T1}, 7')
        a.e(f's_branch {c3}')
        a.label(c2)
        for i in range(3): a.e(f's_mov_b32 s{S_CSRD+i}, s{S_W3+i}')
        a.e(f's_mov_b32 s{S_T0}, 3584')
        a.e(f's_sub_u32 s{S_T1}, s{93}, 32')
        a.e(f's_lshl_b32 s{S_T1}, s{S_T1}, 7')
        a.label(c3)
        a.e(f's_mov_b32 s{S_CSRD+3}, 0x20000')
        a.e(f'v_lshrrev_b32 v{VT1}, 3, v{V_LANE}')
        a.e(f'v_mul_lo_u32 v{VT1}, v{VT1}, s{S_T0}')
        a.e(f'v_and_b32 v{VT2}, 7, v{V_LANE}')
        a.e(f'v_lshl_add_u32 v{VT1}, v{VT2}, 4, v{VT1}')
        a.e(f'v_add_u32 v{VT1}, s{S_T1}, v{VT1}')
        a.e(f's_lshl_b32 s{S_T1}, s{94}, 7')
        a.e(f's_mul_i32 s{S_T1}, s{S_T1}, s{S_T0}')
        a.e(f's_lshl_b32 s{S_T0}, s{S_T0}, 3')
        a.e(f's_mov_b32 m0, {hex(CSL)}')
        for p in range(16):
            a.e('s_nop 0')
            a.vmem(f'buffer_load_dwordx4 v{VT1}, s[{S_CSRD}:{S_CSRD+3}], s{S_T1} offen lds', 'cs')
            if p < 15:
                a.e('s_add_u32 m0, m0, 1024')
                a.e(f's_add_u32 s{S_T1}, s{S_T1}, s{S_T0}')
    dg = [0]
    def dstamp():
        if opt.startdiag:
            a.e(f's_memtime s[{84+2*dg[0]}:{85+2*dg[0]}]') if False else None
            a.e('s_memtime s[98:99]'); a.e('s_waitcnt lgkmcnt(0)')
            a.e('s_sub_u32 s98, s98, s100')
            a.e(f'v_mov_b32 v{100+dg[0]}, s98'); dg[0] += 1
    dstamp()
    cs_issue()
    a.e(f'v_lshrrev_b32 v{VT0}, 3, v{V_LANE}')
    a.e(f'v_bfe_u32 v{VT1}, v{VT0}, 1, 2')
    a.e(f'v_lshlrev_b32 v{VT1}, 1, v{VT1}')
    a.e(f'v_and_b32 v{VT2}, 7, v{V_LANE}')
    a.e(f'v_xor_b32 v{VT2}, v{VT2}, v{VT1}')
    a.e(f'v_and_b32 v{VT1}, 3, v{VT2}')
    a.e(f'v_lshlrev_b32 v{VT3}, 4, v{VT1}')
    a.e(f'v_lshrrev_b32 v{VT1}, 2, v{VT2}')
    a.e(f'v_lshl_add_u32 v{VT3}, v{VT1}, 10, v{VT3}')
    a.e(f's_lshl_b32 s{S_T0}, s{S_CB2}, 6')
    a.e(f's_add_u32 s{S_T1}, s{S_T0}, 1024')
    a.e(f'v_add_u32 v{VT3}, s{S_T1}, v{VT3}')
    a.e(f'v_lshrrev_b32 v{VT1}, 2, v{VT0}')
    a.e(f'v_lshlrev_b32 v{VT1}, 3, v{VT1}')
    a.e(f'v_and_b32 v{VT2}, 3, v{VT0}')
    a.e(f'v_add_u32 v{VT1}, v{VT1}, v{VT2}')
    a.e(f'v_mul_u32_u24 v{VT1}, 3072, v{VT1}')
    a.e(f'v_add_u32 v{VT1}, v{VT1}, v{VT3}')
    for p in range(4):
        off = (16 * (p & 1) + 4 * (p >> 1)) * 3072 - p * 1024
        a.e(f'v_add_u32 v{VKVn+p}, {hex(off & 0xffffffff)}, v{VT1}')
    a.e(f'v_mul_u32_u24 v{VKV}, 3072, v{VT0}')
    a.e(f'v_add_u32 v{VKV}, v{VKV}, v{VT3}')
    for j in range(1, 4): a.e(f'v_add_u32 v{VKV+j}, {hex(j*(8*3072-1024))}, v{VKV}')

    layers = sorted(set(e[0] for e in events))
    slabs = {L: build_slabs(L) for L in layers}
    stream = []
    needed = set((e[0], e[2], e[3]) for e in events if e[1] == 'B')
    for L in layers:
        for p in PHASES:
            for ci, ch in enumerate(slabs[L][p]):
                if (L, p, ci) in needed: stream += ch
    released = set()
    log = []; cur = ['start']
    opt._log = log
    st = {'issued': 0}
    win = [opt.window0]
    def overlaps_unreleased(s, idx):
        for k in range(idx):
            o = stream[k]
            if (o.layer, o.phase, o.chunk) in released: continue
            if o.addr < s.addr + s.size and s.addr < o.addr + o.size: return True
        return False
    def emit_slab(s):
        kind = s.kind; tag = (s.layer, s.phase, s.chunk)
        if kind in opt.dbg_skip.split(','): return
        if kind in ('WO', 'W1', 'W2', 'W4'):
            srd_ = {'WO': S_WO, 'W1': S_W1, 'W2': S_W2, 'W4': S_W4}[kind]; vb = VN; rs = 1024
        elif kind == 'KV': srd_, vb, rs = S_WQKV, (VKVn if s.layer == 0 else VKV), 3072
        elif kind == 'Q': srd_, vb, rs = S_WQKV, (VQn if s.layer == 0 else VQ), 3072
        else: srd_, vb, rs = S_W3, VW3, 3584
        R4 = f's[{srd_}:{srd_+3}]'
        def grp(addr, srow, ps, v0):
            a.e(f's_mov_b32 m0, {hex(addr)}')
            if kind == 'W4':
                p_, rr_ = divmod(srow, 224); tb_ = CB7 + p_
            else:
                c_, rr_ = divmod(srow, 128); tb_ = {'KV': CBK, 'Q': CBK, 'W3': CB6}.get(kind, CBS) + c_
            a.e(f's_add_u32 s{S_T0}, s{tb_}, {hex(rr_*rs)}')
            for k, p in enumerate(ps):
                a.vmem(f'buffer_load_dwordx4 v{vb+p}, {R4}, s{S_T0} offen offset:{k*1024} {"nt " if opt.w_nt else ""}lds', tag)
        if kind == 'W3':
            grp(s.addr, s.srow, [0, 1, 2, 3], 0); grp(s.addr + 4096, s.srow, [4, 5, 6], 0)
        elif kind == 'W4' and s.srow2 != s.srow + 16:
            grp(s.addr, s.srow, [0, 1], 0); grp(s.addr + 2048, s.srow2, [0, 1], 0)
        else:
            grp(s.addr, s.srow, [0, 1, 2, 3], 0)
        if len(a.vm) > win[0]:
            a.e(f's_waitcnt vmcnt({win[0]})')
            a.vm = a.vm[len(a.vm) - win[0]:]
    plan = {}
    opt._plan = plan
    free = [60, 60]
    def need_slots(s): return (4, 3) if s.kind == 'W3' else (2, 2)
    def park_policy(key):
        if not opt.park: return
        name = key.split('.', 1)[1] if key[0] in '01' else None
        if name is None: return
        L = int(key[0])
        if name in opt.park_w3:
            cand = [s for s in stream[st['issued']:] if s.layer == L and s.phase == 'P6' and s.chunk >= 1]; cap = opt.park_w3[name]
        elif name in opt.park_caps:
            cand = [s for s in stream[st['issued']:] if s.layer == L and s.phase == 'P7' and s.chunk >= 6]; cap = opt.park_caps[name]
        else:
            return
        for s in cand:
            if getattr(s, 'parked', False): continue
            n0, n1 = need_slots(s)
            if cap <= 0 or free[0] < n0 or free[1] < n1: break
            s.parked = True; free[0] -= n0; free[1] -= n1; cap -= 1
            plan.setdefault(key, []).append(('park', s))
    def issue(cap, must=None):
        n = 0; nu = 0
        while st['issued'] < len(stream):
            s = stream[st['issued']]
            forced = must is not None and any((o.layer, o.phase, o.chunk) == must for o in stream[st['issued']:])
            pk_ = getattr(s, 'parked', False)
            if not forced and not pk_ and n + s.npieces > cap: break
            if not forced and pk_ and (nu >= opt.unpark_max or must is not None): break
            if overlaps_unreleased(s, st['issued']):
                assert not forced, ('deadlock', must, s.layer, s.phase, s.chunk)
                break
            if pk_:
                plan.setdefault(cur[0], []).append(('unpark', s)); nu += 1
                n0, n1 = need_slots(s); free[0] += n0; free[1] += n1
                st['issued'] += 1
                log.append((cur[0], s.layer, s.phase + '*', s.chunk, forced))
                continue
            emit_slab(s); st['issued'] += 1; n += s.npieces
            log.append((cur[0], s.layer, s.phase, s.chunk, forced))
    issue(64)
    dstamp()
    def late_setup():
        a.e('s_waitcnt lgkmcnt(0)')
        a.e(f's_mul_i32 s{S_B}, s{S_V}, 0x9e3779b1')
        a.e(f's_add_u32 s{S_B}, s{S_B}, 0x7f4a7c15')
        a.e(f's_and_b32 s{S_B}, s{S_B}, 0xffffff00')
        a.e(f's_lshl_b32 s{S_T0}, s{S_G}, 7')
        a.e(f's_lshl_b32 s{S_T1}, s{S_R}, 2')
        a.e(f's_add_u32 s{S_T0}, s{S_T0}, s{S_T1}')
        a.e(f's_add_u32 s{S_T0}, s{S_T0}, {hex(XID_OFF)}')
        a.e(f'v_mov_b32 v{VT1}, s{S_T0}')
        a.e(f's_add_u32 s{S_T1}, s{S_B}, s{S_XCC}')
        a.e(f'v_mov_b32 v{VT0}, s{S_T1}')
        a.e('s_mov_b64 exec, 1')
        a.vmem(f'buffer_store_dword v{VT0}, v{VT1}, {WS}, 0 offen sc1', 'xid')
        a.e('s_mov_b64 exec, -1')
        late_tables()
        a.c('W lane offsets')
        a.e(f'v_lshrrev_b32 v{VT0}, 3, v{V_LANE}')
        a.e(f'v_bfe_u32 v{VT1}, v{VT0}, 1, 1')
        a.e(f'v_lshlrev_b32 v{VT1}, 2, v{VT1}')
        a.e(f'v_and_b32 v{VT2}, 7, v{V_LANE}')
        a.e(f'v_xor_b32 v{VT2}, v{VT2}, v{VT1}')
        a.e(f'v_lshlrev_b32 v{VN}, 10, v{VT0}')
        a.e(f'v_lshl_add_u32 v{VN}, v{VT2}, 4, v{VN}')
        a.e(f's_lshl_b32 s{S_T0}, s{S_CB}, 7')
        a.e(f'v_add_u32 v{VN}, s{S_T0}, v{VN}')
        for j in range(1, 4): a.e(f'v_add_u32 v{VN+j}, {hex(j*(8192-1024))}, v{VN}')
        a.e(f'v_lshrrev_b32 v{VT0}, 2, v{V_LANE}')
        a.e(f'v_bfe_u32 v{VT1}, v{VT0}, 2, 1')
        a.e(f'v_lshlrev_b32 v{VT1}, 1, v{VT1}')
        a.e(f'v_and_b32 v{VT2}, 3, v{V_LANE}')
        a.e(f'v_xor_b32 v{VT2}, v{VT2}, v{VT1}')
        a.e(f'v_lshlrev_b32 v{VT3}, 4, v{VT2}')
        a.e(f's_lshl_b32 s{S_T0}, s{S_CB2}, 6')
        a.e(f'v_add_u32 v{VT3}, s{S_T0}, v{VT3}')
        a.e(f'v_mul_u32_u24 v{VQ}, 3072, v{VT0}')
        a.e(f'v_add_u32 v{VQ}, v{VQ}, v{VT3}')
        for j in range(1, 4): a.e(f'v_add_u32 v{VQ+j}, {hex(j*(16*3072-1024))}, v{VQ}')
        a.e(f'v_lshrrev_b32 v{VT1}, 2, v{VT0}')
        a.e(f'v_lshlrev_b32 v{VT1}, 3, v{VT1}')
        a.e(f'v_and_b32 v{VT2}, 3, v{VT0}')
        a.e(f'v_add_u32 v{VT1}, v{VT1}, v{VT2}')
        a.e(f'v_mul_u32_u24 v{VT1}, 3072, v{VT1}')
        a.e(f'v_add_u32 v{VT1}, v{VT1}, v{VT3}')
        for p in range(4):
            off = (4 * (p & 1) + 32 * (p >> 1)) * 3072 - p * 1024
            a.e(f'v_add_u32 v{VQn+p}, {hex(off & 0xffffffff)}, v{VT1}')
        a.e(f's_mul_i32 s{S_T0}, s{S_CB2}, 224')
        M14 = (1 << 20) // 14 + 1
        a.e(f's_mov_b32 s{S_T1}, {hex(M14)}')
        for p in range(7):
            a.e(f'v_add_u32 v{VT0}, {64*p}, v{V_LANE}')
            a.e(f'v_mul_lo_u32 v{VT1}, v{VT0}, s{S_T1}')
            a.e(f'v_lshrrev_b32 v{VT1}, 20, v{VT1}')
            a.e(f'v_mul_u32_u24 v{VT2}, 14, v{VT1}')
            a.e(f'v_sub_u32 v{VT2}, v{VT0}, v{VT2}')
            a.e(f'v_mul_u32_u24 v{VW3+p}, 3584, v{VT1}')
            a.e(f'v_lshl_add_u32 v{VW3+p}, v{VT2}, 4, v{VW3+p}')
            a.e(f'v_add_u32 v{VW3+p}, s{S_T0}, v{VW3+p}')
            if p % 4: a.e(f'v_subrev_u32 v{VW3+p}, {(p%4)*1024}, v{VW3+p}')
        for u in range(448): assert (u * M14) >> 20 == u // 14

    def cs_part1():
        a.wait_vm('cs')
        a.e(f'v_bfe_u32 v{VT0}, v{V_LANE}, 2, 2')
        a.e(f'v_lshrrev_b32 v{VT1}, 4, v{V_LANE}')
        a.e(f'v_lshl_add_u32 v{VT0}, v{VT1}, 2, v{VT0}')
        a.e(f'v_lshlrev_b32 v{VT0}, 7, v{VT0}')
        a.e(f'v_and_b32 v{VT2}, 3, v{V_LANE}')
        a.e(f'v_lshl_add_u32 v{VT0}, v{VT2}, 3, v{VT0}')
        a.e(f'v_add_u32 v{VT0}, {hex(CSL)}, v{VT0}')
        for i in range(4): a.e(f'v_mov_b32 v{40+i}, 0x3f803f80')
        for j in range(4):
            for t in range(4):
                a.e(f'ds_read_b64_tr_b16 v[{64+4*t}:{65+4*t}], v{VT0} offset:{j*4096+t*32}')
                a.e(f'ds_read_b64_tr_b16 v[{66+4*t}:{67+4*t}], v{VT0} offset:{j*4096+t*32+2048}')
            a.e('s_waitcnt lgkmcnt(0)')
            for t in range(4):
                c = '0' if j == 0 else f'v[{44+4*t}:{47+4*t}]'
                a.e(f'v_mfma_f32_16x16x32_bf16 v[{44+4*t}:{47+4*t}], v[{64+4*t}:{67+4*t}], v[40:43], {c}')
        a.e(f's_mul_i32 s{S_T0}, s{94}, 15360')
        a.e(f's_lshl_b32 s{S_T1}, s{93}, 8')
        a.e(f's_add_u32 s{S_T0}, s{S_T0}, s{S_T1}')
        a.e(f's_add_u32 s{S_T0}, s{S_T0}, {hex(CSP_OFF)}')
        a.e(f'v_lshlrev_b32 v{VT1}, 4, v{VT1}')
        a.e('s_nop 7')
        set_exec(a, 0x00010001)
        for t in range(4):
            a.vmem(f'buffer_store_dwordx4 v[{44+4*t}:{47+4*t}], v{VT1}, {WS}, s{S_T0} offen offset:{64*t} sc1', 'csst')
        a.e('s_mov_b64 exec, -1')
        if opt.kv_atomic:
            zl = a.newlabel('ZK')
            a.e(f's_lshr_b32 s{S_T0}, s2, 3')
            a.e(f's_mul_i32 s{S_T0}, s{S_T0}, {KVREC}')
            a.e(f's_add_u32 s{S_T0}, s{S_T0}, {hex(KVA_OFF)}')
            a.e(f's_and_b32 s{S_T1}, s2, 0x87')
            a.e(f's_cmp_eq_u32 s{S_T1}, 0')
            a.e(f's_cbranch_scc0 {zl}')
            for i in range(4): a.e(f'v_mov_b32 v{60+i}, 0')
            a.e(f'v_lshlrev_b32 v{VT0}, 4, v{V_LANE}')
            for l_ in range(2):
                a.vmem(f'buffer_store_dwordx4 v[60:63], v{VT0}, {WS}, s{S_T0} offen sc1', 'csst')
                a.vmem(f'buffer_store_dwordx4 v[60:63], v{VT0}, {WS}, s{S_T0} offen offset:1024 sc1', 'csst')
                a.e('s_mov_b64 exec, 0xff')
                a.vmem(f'buffer_store_dwordx4 v[60:63], v{VT0}, {WS}, s{S_T0} offen offset:2048 sc1', 'csst')
                a.e('s_mov_b64 exec, -1')
                if l_ == 0: a.e(f's_add_u32 s{S_T0}, s{S_T0}, {16*KVREC}')
            a.label(zl)
    def cs_part2():
        a.e(f's_lshl_b32 s{S_T0}, s2, 7')
        a.e(f's_add_u32 s{S_T0}, s{S_T0}, {hex(CSF_OFF)}')
        a.e(f'v_mov_b32 v{VT1}, s{S_T0}')
        a.e(f's_add_u32 s{S_T1}, s{S_B}, 8')
        a.e(f'v_mov_b32 v{VT0}, s{S_T1}')
        a.wait_vm('csst')
        a.e('s_mov_b64 exec, 1')
        a.vmem(f'buffer_store_dword v{VT0}, v{VT1}, {WS}, 0 offen sc1', 'csf')
        a.e('s_mov_b64 exec, -1')
    def cs_fill():
        L_ = a.newlabel('CPOLL'); D_ = a.newlabel('CPOLLD')
        a.e(f'v_min_u32 v{VT0}, 27, v{V_LANE}')
        a.e(f'v_lshrrev_b32 v{VT2}, 2, v{VT0}')
        a.e(f's_lshr_b32 s{S_T0}, s{S_CB2}, 1')
        a.e(f'v_lshlrev_b32 v{VT1}, 3, v{VT2}')
        a.e(f'v_add_u32 v{VT1}, s{S_T0}, v{VT1}')
        a.e(f's_add_u32 s{S_T0}, s{S_CB}, 24')
        a.e(f'v_mov_b32 v{VT3}, s{S_T0}')
        a.e(f'v_cmp_eq_u32 vcc, 3, v{VT2}')
        a.e('s_nop 1')
        a.e(f'v_cndmask_b32 v{VT1}, v{VT1}, v{VT3}, vcc')
        a.e(f's_mul_i32 s{S_T0}, s{S_CB2}, 112')
        a.e(f's_lshr_b32 s{S_T0}, s{S_T0}, 6')
        a.e(f's_add_u32 s{S_T0}, s{S_T0}, {32 - 4}')
        a.e(f'v_add_u32 v{VT3}, s{S_T0}, v{VT2}')
        a.e(f'v_min_u32 v{VT3}, 59, v{VT3}')
        a.e(f'v_cmp_lt_u32 vcc, 3, v{VT2}')
        a.e('s_nop 1')
        a.e(f'v_cndmask_b32 v{VT1}, v{VT1}, v{VT3}, vcc')
        a.e(f'v_and_b32 v{VT0}, 3, v{VT0}')
        a.e(f'v_lshl_add_u32 v{VT1}, v{VT1}, 2, v{VT0}')
        if opt.kv_atomic:
            a.e(f's_lshl_b32 s{S_T0}, s{S_CB2}, 3')
            a.e(f'v_mov_b32 v{VT3}, s{S_T0}')
            a.e(f'v_cmp_lt_u32 vcc, 27, v{V_LANE}')
            a.e('s_nop 1')
            a.e(f'v_cndmask_b32 v{VT1}, v{VT1}, v{VT3}, vcc')
        a.e(f'v_lshlrev_b32 v{VT1}, 7, v{VT1}')
        a.e(f's_mov_b32 s{S_T0}, {hex(CSF_OFF)}')
        a.e(f's_add_u32 s{S_T1}, s{S_B}, 8')
        a.e(f's_mov_b32 s{95}, {opt.spin}')
        a.label(L_)
        a.e(f'buffer_load_dword v40, v{VT1}, {WS}, s{S_T0} offen sc1')
        a.e('s_waitcnt vmcnt(0)')
        a.e(f'v_subrev_u32 v40, s{S_T1}, v40')
        a.e('v_cmp_gt_u32 vcc, 0x80, v40')
        a.e(f's_sub_u32 s{95}, s{95}, 1')
        a.e(f's_cbranch_scc1 {D_}')
        a.e('s_cmp_eq_u64 vcc, -1')
        a.e(f's_cbranch_scc0 {L_}')
        a.label(D_)
        a.vm = []
        def colof(dst, gofs):
            a.e(f'v_add_u32 v{VT0}, {gofs}, v{V_LANE}')
            a.e(f'v_lshlrev_b32 v{VT2}, 2, v{VT0}')
            a.e(f's_lshl_b32 s{S_T0}, s{S_CB2}, 5')
            a.e(f's_mul_i32 s{S_T1}, s{S_CB2}, 112')
            a.e(f's_add_u32 s{S_T1}, s{S_T1}, {2048 - 160}')
            a.e(f'v_add_u32 v{dst}, s{S_T1}, v{VT2}')
            for lim, addc, useb in [(40, 1536 - 96, 'cb'), (24, -64, 'hp'), (16, 1024 - 32, 'hp'), (8, 512, 'hp')]:
                if useb == 'cb':
                    a.e(f's_lshl_b32 s{S_T1}, s{S_CB}, 6')
                    a.e(f's_add_u32 s{S_T1}, s{S_T1}, {addc}')
                else:
                    a.e(f's_add_u32 s{S_T1}, s{S_T0}, {hex(addc & 0xffffffff)}')
                a.e(f'v_add_u32 v{VT3}, s{S_T1}, v{VT2}')
                a.e(f'v_cmp_gt_u32 vcc, {lim}, v{VT0}')
                a.e('s_nop 1')
                a.e(f'v_cndmask_b32 v{dst}, v{dst}, v{VT3}, vcc')
            a.e(f'v_lshlrev_b32 v{dst}, 2, v{dst}')
        colof(36, 0); colof(37, 64)
        a.e(f's_mov_b32 s{S_T0}, {hex(CSP_OFF)}')
        for kq in range(4):
            a.e(f'buffer_load_dwordx4 v[{40+4*kq}:{43+4*kq}], v36, {WS}, s{S_T0} offen sc1')
            a.e('s_mov_b64 exec, 0xf')
            a.e(f'buffer_load_dwordx4 v[{56+4*kq}:{59+4*kq}], v37, {WS}, s{S_T0} offen sc1')
            a.e('s_mov_b64 exec, -1')
            if kq < 3: a.e(f's_add_u32 s{S_T0}, s{S_T0}, 15360')
        a.e(f'v_lshlrev_b32 v{VT0}, 4, v{V_LANE}')
        a.e(f'v_add_u32 v{VT0}, {hex(CSC)}, v{VT0}')
        a.e('s_waitcnt vmcnt(0)')
        for b in (40, 56):
            for i in (0, 2):
                a.e(pk('add', b + i, vp(b + i), vp(b + 4 + i)))
                a.e(pk('add', b + 8 + i, vp(b + 8 + i), vp(b + 12 + i)))
                a.e(pk('add', b + i, vp(b + i), vp(b + 8 + i)))
        a.e(f'ds_write_b128 v{VT0}, v[40:43]')
        a.e('s_mov_b64 exec, 0xf')
        a.e(f'ds_write_b128 v{VT0}, v[56:59] offset:1024')
        a.e('s_mov_b64 exec, -1')
        a.e('s_waitcnt lgkmcnt(0)')

    cs_part1()
    chunks_of = {}
    for s in stream: chunks_of.setdefault((s.layer, s.phase), set()).add(s.chunk)
    nb = 0
    for ev in events:
        L, kind, p, ci = ev
        if kind == 'B':
            cur[0] = f'pre {L}.{p}.B{ci}'
            issue(0, must=(L, p, ci))
            cur[0] = f'{L}.{p}.B{ci}'
            if nb < 5: dstamp()
            a.wait_vm((L, p, ci))
            if nb < 5: dstamp()
            a.e('s_barrier')
            nb += 1
            if ci >= 2: released.add((L, p, ci - 2))
            if ci == 0:
                for (l2, p2), cs_ in chunks_of.items():
                    if p2 in NOE and (l2, PHASES.index(p2)) < (L, PHASES.index(p)):
                        for c in cs_: released.add((l2, p2, c))
            if nb == 1:
                late_setup()
                cs_part2()
            elif nb == 3:
                cs_fill()
                win[0] = opt.window
            elif nb in (2, 4):
                pass
            else:
                issue(opt.caps.get(f'{p}.B{ci}', opt.caps.get(f'{p}.B*', 0)))
                park_policy(cur[0])
        elif kind == 'E':
            cur[0] = f'{L}.{p}.E'
            a.e('s_barrier')
            for c in chunks_of[(L, p)]: released.add((L, p, c))
            issue(opt.caps.get(f'{p}.E', 0))
            park_policy(cur[0])
        else:
            cur[0] = f'{L}.{p}'
            a.e('s_barrier')
            issue(opt.caps.get(p, 0))
            park_policy(cur[0])
    if opt.startdiag:
        a.e(f's_lshl_b32 s{S_T0}, s2, 8')
        a.e(f's_add_u32 s{S_T0}, s{S_T0}, {hex(TM_OFF + 128)}')
        for i in range(dg[0]):
            a.e(f'v_mov_b32 v99, {4*i}')
            a.e(f'buffer_store_dword v{100+i}, v99, {WS}, s{S_T0} offen')
    a.e('s_waitcnt vmcnt(0)')
    a.e('s_endpgm')


def gen_toucher(a, opt, events):
    a.c('--- A loader / toucher')
    mats = {'WO': (S_PTR + 4, 512 * 512 * 2), 'W1': (S_PTR + 8, 512 * 512 * 2),
            'W2': (S_PTR + 10, 512 * 512 * 2), 'W3': (S_PTR + 12, 512 * 1792 * 2), 'W4': (S_PTR + 14, 1792 * 512 * 2)}
    srds = {}
    for i, (k, (p, size)) in enumerate(mats.items()):
        s = 40 + 4 * i
        a.e(f's_mov_b32 s{s}, s{p}'); a.e(f's_mov_b32 s{s+1}, s{p+1}')
        a.e(f's_mov_b32 s{s+2}, {hex(size)}'); a.e(f's_mov_b32 s{s+3}, 0x20000')
        srds[k] = s
    T0s, T1s, T2s, T3s, T4s, T5s = 33, 34, 35, 36, 37, 38
    THR, SPIN = 60, 61
    RA, P7T = 64, 68
    U0, U1, U2, U3, U4 = 76, 77, 78, 79, 80
    VAS, VAG, VFS, VFB, VFH, VAH = 3, 4, 5, 6, 7, 8
    X0, X1, X2, X3 = 24, 25, 26, 27
    X0W = 31
    e = a.e
    VXK = 40
    e(f'v_lshrrev_b32 v2, 4, v{V_LANE}')
    e(f'v_and_b32 v3, 15, v{V_LANE}')
    for k in range(4):
        e(f'v_add_u32 v{VXK+k}, {4*k}, v2'); e(f'v_xor_b32 v{VXK+k}, v{VXK+k}, v3'); e(f'v_lshlrev_b32 v{VXK+k}, 4, v{VXK+k}')
        e(f'v_lshl_add_u32 v{VXK+k}, v2, 10, v{VXK+k}')
    e(f's_lshl_b32 s33, s{S_G}, 8'); e(f's_lshl_b32 s34, s{S_RB2}, 7'); e('s_add_u32 s33, s33, s34'); e('s_lshl_b32 s82, s33, 10')
    e(f's_lshl_b32 s83, s{S_RB2}, 1'); e(f's_add_u32 s83, s83, s{S_CB2}'); e(f's_and_b32 s83, s83, {3 if opt.rot else 0}')
    e(f's_lshr_b32 s81, s{S_CB2}, 2'); e(f's_lshl_b32 s81, s81, {13 if opt.rot else 31}')
    if not opt.rot: e('s_mov_b32 s81, 0')
    def x_chunk(c):
        e(f's_xor_b32 s33, s83, {c}'); e('s_lshl_b32 s33, s33, 8'); e('s_add_u32 s33, s33, s82')
        e('s_mov_b32 s34, s81'); e('s_mov_b32 s36, 8')
        lp = a.newlabel('XC'); a.label(lp)
        for k in range(4):
            e(f's_add_u32 m0, s34, {hex(AREG + (c & 1) * 32768)}')
            e('s_lshl_b32 s35, s34, 2'); e('s_add_u32 s35, s35, s33')
            e(f'buffer_load_dwordx4 v{VXK + k}, s[{S_X}:{S_X+3}], s35 offen lds')
            e('s_add_u32 s34, s34, 1024')
        e('s_and_b32 s34, s34, 0x7fff')
        e('s_waitcnt vmcnt(52)')
        e('s_sub_u32 s36, s36, 1'); e('s_cmp_lg_u32 s36, 0'); e(f's_cbranch_scc1 {lp}')
        a.vm += [('X', c)] * 32
        a.vm = a.vm[-52:]
    def x_tile():
        e(f'v_lshrrev_b32 v2, 3, v{V_LANE}'); e('v_lshlrev_b32 v2, 10, v2')
        e(f'v_and_b32 v30, 7, v{V_LANE}'); e('v_lshl_add_u32 v2, v30, 4, v2')
        e(f's_lshl_b32 s33, s{S_G}, 8'); e(f's_lshl_b32 s34, s{S_RB}, 6'); e('s_add_u32 s33, s33, s34'); e('s_lshl_b32 s33, s33, 10')
        e(f's_lshl_b32 s34, s{S_CB}, 7'); e('s_add_u32 s33, s33, s34')
        for p_ in range(8):
            e(f's_mov_b32 m0, {hex(AREG + p_ * 1024)}')
            if p_: e('s_add_u32 s33, s33, 8192')
            else: e('s_nop 0')
            a.vmem(f'buffer_load_dwordx4 v2, s[{S_X}:{S_X+3}], s33 offen lds', 'x')
    x_chunk(0); x_chunk(1)
    e(f'v_lshlrev_b32 v1, 7, v{V_LANE}')
    e(f'v_lshlrev_b32 v{X0}, 4, v{V_LANE}')
    e(f'v_lshlrev_b32 v{X0W}, 4, v{V_LANE}')
    e(f's_lshl_b32 s{T0s}, s{S_G}, 4'); e(f's_lshl_b32 s{T1s}, s{S_RB}, 2'); e(f's_add_u32 s{T0s}, s{T0s}, s{T1s}')
    e(f's_lshl_b32 s{T1s}, s{T0s}, 14'); e(f'v_add_u32 v{VAS}, s{T1s}, v{X0}')
    e(f's_mul_i32 s{T1s}, s{T0s}, 57344'); e(f'v_add_u32 v{VAG}, s{T1s}, v{X0}')
    rmask = 3 if opt.rot else 0
    for c in range(4):
        e(f's_and_b32 s{RA+c}, s{S_RB}, {rmask}'); e(f's_xor_b32 s{RA+c}, s{RA+c}, {c}'); e(f's_lshl_b32 s{RA+c}, s{RA+c}, 12')
    for p_ in range(8):
        e(f's_and_b32 s{P7T+p_}, s{S_RB}, {rmask}'); e(f's_lshl_b32 s{P7T+p_}, s{P7T+p_}, 1')
        e(f's_xor_b32 s{P7T+p_}, s{P7T+p_}, {p_}'); e(f's_mul_i32 s{P7T+p_}, s{P7T+p_}, 7168')
    e(f'v_and_b32 v{X1}, 15, v{V_LANE}')
    e(f'v_and_b32 v{X2}, 0x30, v{V_LANE}')
    e(f's_mul_i32 s{T3s}, s{S_G}, 18')
    e(f's_lshl_b32 s{T4s}, s{S_G}, 8')
    for c in range(4):
        e(f's_lshr_b32 s{T5s}, s{RA+c}, 12')
        e(f's_lshr_b32 s{U3}, s{T5s}, 1'); e(f's_add_u32 s{U3}, s{U3}, 1'); e(f's_sub_u32 s{U4}, 0, s{U3}')
        e(f's_bitcmp1_b32 s{T5s}, 0'); e(f's_cselect_b32 s{U3}, s{U3}, s{U4}')
        e(f's_lshl_b32 s{T2s}, s{S_RB}, 6'); e(f's_add_u32 s{T2s}, s{T2s}, s{U3}'); e(f's_add_u32 s{T2s}, s{T2s}, 16')
        for w in range(4):
            r = VAH + 4 * c + w
            e(f's_add_u32 s{T5s}, s{T2s}, {16 * w}')
            e(f'v_add_u32 v{r}, s{T5s}, v{X1}')
            e(f'v_lshrrev_b32 v{X3}, 4, v{r}'); e(f'v_add_u32 v{X3}, s{T3s}, v{X3}'); e(f'v_lshlrev_b32 v{X3}, 14, v{X3}')
            e(f'v_and_b32 v28, 15, v{r}'); e(f'v_add_u32 v28, v{X2}, v28'); e(f'v_lshl_add_u32 v{X3}, v28, 4, v{X3}')
            e(f'v_add_u32 v28, s{T4s}, v{r}'); e('v_subrev_u32 v28, 16, v28')
            e('v_cmp_gt_u32 vcc, 0x800, v28')
            e(f'v_mov_b32 v{r}, 0x80000000'); e('s_nop 0')
            e(f'v_cndmask_b32 v{r}, v{r}, v{X3}, vcc')
    e(f's_lshl_b32 s{T2s}, s{S_G}, 9'); e(f's_add_u32 s{T2s}, s{T2s}, {hex(LF_OFF)}')
    e(f'v_bfe_u32 v{X1}, v{V_LANE}, 3, 2'); e(f'v_lshlrev_b32 v{X1}, 7, v{X1}')
    e(f'v_and_b32 v{X2}, 7, v{V_LANE}'); e(f'v_lshl_add_u32 v{X1}, v{X2}, 2, v{X1}')
    e(f's_lshl_b32 s{T3s}, s{S_RB}, 5'); e(f's_add_u32 s{T3s}, s{T3s}, s{T2s}')
    e(f'v_add_u32 v{VFS}, s{T3s}, v{X1}')
    e(f's_and_b32 s{T3s}, s{S_RB}, 1'); e(f's_lshl_b32 s{T3s}, s{T3s}, 8'); e(f's_add_u32 s{T3s}, s{T3s}, s{T2s}')
    e(f's_lshr_b32 s{T4s}, s{S_RB}, 1'); e(f's_lshl_b32 s{T4s}, s{T4s}, 6'); e(f's_add_u32 s{T3s}, s{T3s}, s{T4s}')
    e(f'v_bfe_u32 v{X2}, v{V_LANE}, 4, 1'); e(f'v_lshlrev_b32 v{X2}, 7, v{X2}')
    e(f'v_and_b32 v{X3}, 15, v{V_LANE}'); e(f'v_lshl_add_u32 v{X2}, v{X3}, 2, v{X2}')
    e(f'v_add_u32 v{VFB}, s{T3s}, v{X2}')
    e(f's_lshl_b32 s{T3s}, s{S_R}, 2'); e(f's_add_u32 s{T3s}, s{T3s}, s{T2s}')
    e(f'v_and_b32 v{X2}, 3, v{V_LANE}'); e(f'v_lshlrev_b32 v{X2}, 7, v{X2}'); e(f'v_add_u32 v{X2}, s{T3s}, v{X2}')
    e(f'v_cmp_lt_u32 vcc, 31, v{V_LANE}'); e('s_nop 1')
    e(f'v_cndmask_b32 v{VFB}, v{VFB}, v{X2}, vcc')
    def build_fh(L):
        la = a.newlabel('FH'); lb = a.newlabel('FH')
        e(f's_lshl_b32 s{T2s}, s{S_G}, 9'); e(f's_add_u32 s{T2s}, s{T2s}, {hex(LF_OFF)}')
        e(f's_lshl_b32 s{T3s}, s{S_RB}, 5'); e(f's_add_u32 s{T3s}, s{T3s}, s{T2s}')
        e(f's_sub_u32 s{U1}, s{T3s}, 32'); e(f's_add_u32 s{U1}, s{U1}, 256'); e(f's_mov_b32 s{U3}, 128')
        e(f's_add_u32 s{U2}, s{T3s}, 32'); e(f's_mov_b32 s{U4}, 128')
        e(f's_lshl_b32 s{T4s}, s{S_G}, 8'); e(f's_add_u32 s{T4s}, s{T4s}, {hex(HF_OFF + L * 2048)}')
        e(f's_cmp_eq_u32 s{S_RB}, 0'); e(f's_cbranch_scc0 {la}')
        e(f's_mov_b32 s{U1}, s{T3s}')
        e(f's_cmp_eq_u32 s{S_G}, 0'); e(f's_cbranch_scc1 {la}')
        e(f's_mov_b32 s{U1}, s{T4s}'); e(f's_mov_b32 s{U3}, 0')
        a.label(la)
        e(f's_cmp_eq_u32 s{S_RB}, 3'); e(f's_cbranch_scc0 {lb}')
        e(f's_mov_b32 s{U2}, s{T3s}')
        e(f's_cmp_eq_u32 s{S_G}, 7'); e(f's_cbranch_scc1 {lb}')
        e(f's_add_u32 s{U2}, s{T4s}, 128'); e(f's_mov_b32 s{U4}, 0')
        a.label(lb)
        e(f'v_bfe_u32 v{X1}, v{V_LANE}, 3, 1'); e(f'v_and_b32 v{X2}, 7, v{V_LANE}'); e(f'v_lshlrev_b32 v{X2}, 2, v{X2}')
        for base_s, mul_s, sel in ((U1, U3, 2), (U2, U4, 3)):
            e(f'v_mul_u32_u24 v{X3}, s{mul_s}, v{X1}'); e(f'v_add_u32 v{X3}, v{X3}, v{X2}'); e(f'v_add_u32 v{X3}, s{base_s}, v{X3}')
            e(f'v_lshrrev_b32 v28, 4, v{V_LANE}'); e(f'v_cmp_eq_u32 vcc, {sel}, v28'); e('s_nop 1')
            e(f'v_cndmask_b32 v{VFH}, v{VFH if sel == 3 else VFS}, v{X3}, vcc')
    e('s_waitcnt lgkmcnt(0)')
    e(f's_mul_i32 s{S_B}, s{S_V}, 0x9e3779b1'); e(f's_add_u32 s{S_B}, s{S_B}, 0x7f4a7c15'); e(f's_and_b32 s{S_B}, s{S_B}, 0xffffff00')

    def poll(v, epoch):
        L_ = a.newlabel('AP'); D_ = a.newlabel('APD')
        e(f's_add_u32 s{THR}, s{S_B}, {8*epoch}'); e(f's_mov_b32 s{SPIN}, {opt.spin}')
        a.label(L_)
        e(f'buffer_load_dword v30, v{v}, {WS}, 0 offen sc1'); e('s_waitcnt vmcnt(0)')
        e(f'v_subrev_u32 v30, s{THR}, v30'); e('v_cmp_gt_u32 vcc, 0x80, v30')
        e(f's_sub_u32 s{SPIN}, s{SPIN}, 1'); e(f's_cbranch_scc1 {D_}')
        e('s_cmp_eq_u64 vcc, -1'); e(f's_cbranch_scc0 {L_}')
        a.label(D_); a.vm = []
    def a_chunk(phase, c):
        for w in range(4):
            e(f's_mov_b32 m0, {hex(AREG + (c % 4) * 16384 + w * 4096)}')
            if phase == 'P7':
                last = None
                for k in range(4):
                    p_, i_ = divmod(4 * c + k, 7)
                    const = G_OFF + w * 57344 + (i_ - k) * 1024
                    if last != (p_, const):
                        e(f's_add_u32 s{T0s}, s{P7T+p_}, {hex(const & 0xffffffff)}'); last = (p_, const)
                    a.vmem(f'buffer_load_dwordx4 v{VAG}, {WS}, s{T0s} offen offset:{k*1024} sc1 lds', ('A', phase, c))
            else:
                if phase == 'P5':
                    va = VAH + 4 * c + w; e(f's_add_u32 s{T0s}, s{RA+c}, {hex(A0_OFF)}' if A0_OFF else f's_mov_b32 s{T0s}, s{RA+c}')
                elif phase == 'P3':
                    va = VAS; e(f's_add_u32 s{T0s}, s{RA+c}, s{U0}'); e(f's_add_u32 s{T0s}, s{T0s}, {hex(A0_OFF + w * 16384)}')
                else:
                    va = VAS; e(f's_add_u32 s{T0s}, s{RA+c}, {hex(A1_OFF + w * 16384)}')
                for k in range(4):
                    a.vmem(f'buffer_load_dwordx4 v{va}, {WS}, s{T0s} offen offset:{k*1024} sc1 lds', ('A', phase, c))
    e(f's_lshl_b32 s{U0}, s{S_G}, 1'); e(f's_add_u32 s{U0}, s{U0}, 1'); e(f's_lshl_b32 s{U0}, s{U0}, 14')

    dummy = [0]
    def wide(srd_s, soff_s):
        d = 64 + 4 * (dummy[0] % 40); dummy[0] += 1
        a.vmem(f'buffer_load_dwordx4 v[{d}:{d+3}], v{X0W}, {srd_s}, s{soff_s} offen {opt.touch_flags}', 'T')
    def mall_touch():
        for k in ['WO', 'W2', 'W4']:
            size = mats[k][1]; per = size // 256
            s = srds[k]
            e(f's_mul_i32 s{T0s}, s2, {per}')
            for i in range(per // 1024):
                if i: e(f's_add_u32 s{T0s}, s{T0s}, 1024')
                wide(f's[{s}:{s+3}]', T0s)
    def g_touch():
        e(f's_mul_i32 s{T0s}, s{S_G}, {16 * 57344}'); e(f's_mul_i32 s{T1s}, s{S_R}, 28672')
        e(f's_add_u32 s{T0s}, s{T0s}, s{T1s}'); e(f's_add_u32 s{T0s}, s{T0s}, {hex(G_OFF)}')
        for i in range(28):
            if i: e(f's_add_u32 s{T0s}, s{T0s}, 1024')
            wide(WS, T0s)
    def key(sx):
        k, p, c = sx.split(',')
        return (0, k, p, None if c == '-' else int(c))
    EPO = {'P3': 1, 'P4': 2, 'P5': 3, 'P7': 5}
    if opt.p7_self: del EPO['P7']
    nxt = 0
    for ev in events:
        L, kind, p, ci = ev
        if kind == 'B' and p in EPO:
            nch = NCH[p]
            if ci == 0:
                if p == 'P5': build_fh(L)
                poll({'P3': VFB, 'P4': VFS, 'P5': VFH, 'P7': VFB}[p], 1 + 6 * L + EPO[p])
                a_chunk(p, 0); a_chunk(p, 1); nxt = 2
            a.wait_vm(('A', p, ci))
            e('s_barrier')
            while nxt < nch and (nxt <= ci + 2 or nxt <= 3) and nxt <= ci + 2 + (1 if ci == 0 and False else 0):
                a_chunk(p, nxt); nxt += 1
        elif L == 0 and kind == 'B' and p == 'P1KV':
            a.wait_vm(('X', ci))
            e('s_barrier')
            if 1 <= ci <= 2: x_chunk(ci + 1)
            if ci == 3: x_tile()
        else:
            if ev == (0, 'E', 'P1KV', None): a.wait_vm('x')
            e('s_barrier')
        if opt.touch and opt.touch_at and ev == key(opt.touch_at): mall_touch()
        if opt.gtouch_at and ev == key(opt.gtouch_at): g_touch()
    e('s_waitcnt vmcnt(0)')
    e('s_endpgm')


def gen_parker(a, opt, events, h):
    e = a.e
    a.c(f'--- parker {h}')
    plan = opt._plan
    W3S, W4S, CB6, CB7 = 40, 44, 64, 68
    for s_, p_, size in ((W3S, S_PTR + 12, 512 * 1792 * 2), (W4S, S_PTR + 14, 1792 * 512 * 2)):
        e(f's_mov_b32 s{s_}, s{p_}'); e(f's_mov_b32 s{s_+1}, s{p_+1}'); e(f's_mov_b32 s{s_+2}, {hex(size)}'); e(f's_mov_b32 s{s_+3}, 0x20000')
    rm = 3 if opt.rot else 0
    for c in range(4):
        e(f's_lshl_b32 s{CB6+c}, s{S_RB2}, 1'); e(f's_and_b32 s{CB6+c}, s{CB6+c}, {rm}'); e(f's_xor_b32 s{CB6+c}, s{CB6+c}, {c}')
        e(f's_mul_i32 s{CB6+c}, s{CB6+c}, {128*3584}')
    for p_ in range(8):
        e(f's_and_b32 s{CB7+p_}, s{S_RB}, {rm}'); e(f's_lshl_b32 s{CB7+p_}, s{CB7+p_}, 1'); e(f's_xor_b32 s{CB7+p_}, s{CB7+p_}, {p_}')
        e(f's_mul_i32 s{CB7+p_}, s{CB7+p_}, {224*1024}')
    VN, VW, VL, X0, X1, X2 = 2, 4, 8, 11, 12, 13
    e(f'v_lshrrev_b32 v{X0}, 3, v{V_LANE}'); e(f'v_bfe_u32 v{X1}, v{X0}, 1, 1'); e(f'v_lshlrev_b32 v{X1}, 2, v{X1}')
    e(f'v_and_b32 v{X2}, 7, v{V_LANE}'); e(f'v_xor_b32 v{X2}, v{X2}, v{X1}')
    e(f'v_lshlrev_b32 v{VN}, 10, v{X0}'); e(f'v_lshl_add_u32 v{VN}, v{X2}, 4, v{VN}')
    e(f's_lshl_b32 s33, s{S_CB}, 7'); e(f'v_add_u32 v{VN}, s33, v{VN}'); e(f'v_add_u32 v{VN+1}, {hex(8192-1024)}, v{VN}')
    ps = [0, 1, 2, 3] if h == 0 else [4, 5, 6]
    M14 = (1 << 20) // 14 + 1
    e(f's_mul_i32 s33, s{S_CB2}, 224'); e(f's_mov_b32 s34, {hex(M14)}')
    for k, p_ in enumerate(ps):
        e(f'v_add_u32 v{X0}, {64*p_}, v{V_LANE}'); e(f'v_mul_lo_u32 v{X1}, v{X0}, s34'); e(f'v_lshrrev_b32 v{X1}, 20, v{X1}')
        e(f'v_mul_u32_u24 v{X2}, 14, v{X1}'); e(f'v_sub_u32 v{X2}, v{X0}, v{X2}')
        e(f'v_mul_u32_u24 v{VW+k}, 3584, v{X1}'); e(f'v_lshl_add_u32 v{VW+k}, v{X2}, 4, v{VW+k}'); e(f'v_add_u32 v{VW+k}, s33, v{VW+k}')
    e(f'v_lshlrev_b32 v{VL}, 4, v{V_LANE}'); e(f'v_add_u32 v{VL+1}, 0x10000, v{VL}'); e(f'v_add_u32 v{VL+2}, 0x20000, v{VL}')
    slots = list(range(60))
    held = {}
    pending = set()
    def do(actions):
        for act, s_ in actions:
            if act == 'park':
                if s_.kind == 'W3':
                    c_, rr_ = divmod(s_.srow, 128)
                    e(f's_add_u32 s33, s{CB6+c_}, {hex(rr_*3584)}')
                    regs = []
                    for k, p_ in enumerate(ps):
                        sl = slots.pop(0); regs.append((sl, p_))
                        a.vmem(f'buffer_load_dwordx4 v[{16+4*sl}:{19+4*sl}], v{VW+k}, s[{W3S}:{W3S+3}], s33 offen', id(s_))
                else:
                    srow = s_.srow if h == 0 else s_.srow2
                    p_, rr_ = divmod(srow, 224)
                    e(f's_add_u32 s33, s{CB7+p_}, {hex(rr_*1024)}')
                    regs = []
                    for k in range(2):
                        sl = slots.pop(0); regs.append((sl, 2 * h + k))
                        a.vmem(f'buffer_load_dwordx4 v[{16+4*sl}:{19+4*sl}], v{VN+k}, s[{W4S}:{W4S+3}], s33 offen offset:{k*1024}', id(s_))
                held[id(s_)] = regs
            else:
                a.wait_vm(id(s_))
                for sl, p_ in held.pop(id(s_)):
                    ad = s_.addr + p_ * 1024
                    e(f'ds_write_b128 v{VL + (ad >> 16)}, v[{16+4*sl}:{19+4*sl}] offset:{ad & 0xffff}')
                    slots.append(sl)
                pending.add((s_.layer, s_.phase, s_.chunk))
    for ev in events:
        L, kind, p, ci = ev
        if kind == 'B':
            do(plan.get(f'pre {L}.{p}.B{ci}', []))
            if (L, p, ci) in pending:
                e('s_waitcnt lgkmcnt(0)'); pending.clear()
            e('s_barrier')
            acts = plan.get(f'{L}.{p}.B{ci}', [])
        elif kind == 'E':
            e('s_barrier'); acts = plan.get(f'{L}.{p}.E', [])
        else:
            e('s_barrier'); acts = plan.get(f'{L}.{p}', [])
        do([x for x in acts if x[0] == 'unpark'])
        do([x for x in acts if x[0] == 'park'])
    e('s_waitcnt vmcnt(0) lgkmcnt(0)')
    e('s_endpgm')


def generate(opt):
    ATOMIC[0] = opt.kv_atomic
    events = build_events(opt.stop)
    a = Asm(); a.opt = opt
    hdr = open(os.path.join(os.path.dirname(os.path.abspath(__file__)), 'header.txt')).read()
    out = [hdr.rstrip('\n')]
    out.append(f'; @launch grid=(256,1,1) block=({64*(8 if opt.park else 6)},1,1) lds={LDS_TOTAL}')
    out += ['.amdgcn_target "amdgcn-amd-amdhsa--gfx950"', '.text', f'.globl {KNAME}', '.p2align 8',
            f'.type {KNAME},@function', f'{KNAME}:']
    a.e('s_cmp_ge_u32 s2, 256')
    a.e('s_cbranch_scc1 L_EXIT')
    if opt.startdiag: a.e('s_memtime s[100:101]')
    if opt.wall:
        a.e('s_memrealtime s[18:19]') if False else None
    a.e(f's_load_dwordx16 s[{S_PTR}:{S_PTR+15}], s[0:1], 0')
    a.e(f's_load_dwordx4 s[{S_PTR+16}:{S_PTR+19}], s[0:1], 64')
    a.e(f's_load_dwordx2 s[{S_PTR+20}:{S_PTR+21}], s[0:1], 80')
    a.e('v_lshrrev_b32 v1, 6, v0')
    a.e('s_nop 0')
    if opt.prefetch_code:
        a.e('s_getpc_b64 s[34:35]')
        a.label('L_PC')
        a.e(f's_sub_u32 s34, s34, (L_PC - {KNAME})')
        a.e('s_subb_u32 s35, s35, 0')
        a.e('s_lshr_b32 s36, s2, 3')
        a.e('s_mul_i32 s36, s36, 2560')
        a.e('v_lshlrev_b32 v2, 7, v0')
        a.e('v_add_u32 v2, s36, v2')
        a.e(f's_mov_b32 s36, (L_CODE_END - {KNAME} - 4)')
        a.e('v_min_u32 v2, s36, v2')
        a.e('v_and_b32 v2, -4, v2')
        a.e('v_cmp_gt_u32 vcc, 20, v0')
        a.e('s_and_saveexec_b64 s[36:37], vcc')
        a.e('s_cbranch_execz L_NOPF')
        a.e('global_load_dword v255, v2, s[34:35]')
        a.label('L_NOPF')
        a.e('s_mov_b64 exec, s[36:37]')
    a.e(f'v_readfirstlane_b32 s{S_W}, v1')
    a.e(f'v_and_b32 v{V_LANE}, 63, v0')
    a.e(f's_getreg_b32 s{S_XCC}, hwreg(HW_REG_XCC_ID)')
    a.e(f's_and_b32 s{S_XCC}, s{S_XCC}, 7')
    a.e(f's_and_b32 s{S_G}, s2, 7')
    a.e(f's_lshr_b32 s{S_R}, s2, 3')
    a.e(f's_lshr_b32 s{S_RB}, s{S_R}, 3')
    a.e(f's_and_b32 s{S_CB}, s{S_R}, 7')
    a.e(f's_lshr_b32 s{S_RB2}, s{S_R}, 4')
    a.e(f's_and_b32 s{S_CB2}, s{S_R}, 15')
    a.e('s_waitcnt lgkmcnt(0)')
    if opt.ws_base:
        a.e(f's_add_u32 s{S_PTR+20}, s{S_PTR+20}, {hex(opt.ws_base)}')
        a.e(f's_addc_u32 s{S_PTR+21}, s{S_PTR+21}, 0')
    a.e(f's_add_u32 s34, s{S_PTR+20}, {hex(NONCE_OFF)}')
    a.e(f's_addc_u32 s35, s{S_PTR+21}, 0')
    a.e(f's_load_dword s{S_V}, s[34:35], 0')
    def srd(s, p, size):
        a.e(f's_mov_b32 s{s}, s{p}'); a.e(f's_mov_b32 s{s+1}, s{p+1}')
        a.e(f's_mov_b32 s{s+2}, {hex(size)}'); a.e(f's_mov_b32 s{s+3}, 0x20000')
    srd(S_WS, S_PTR + 20, WS_USED)
    srd(S_X, S_PTR + 0, 2048 * 512 * 2)
    srd(S_OUT, S_PTR + 16, 2048 * 512 * 2)
    a.e(f's_cmp_lt_u32 s{S_W}, 4')
    a.e('s_cbranch_scc1 L_COMPUTE')
    if opt.park:
        for wv in (6, 7):
            a.e(f's_cmp_eq_u32 s{S_W}, {wv}')
            a.e(f's_cbranch_scc0 L_NOTP{wv}')
            a.e('s_getpc_b64 s[34:35]')
            a.label(f'L_PCP{wv}')
            a.e(f's_add_u32 s34, s34, (L_PARKER{wv} - L_PCP{wv})')
            a.e('s_addc_u32 s35, s35, 0')
            a.e('s_setpc_b64 s[34:35]')
            a.label(f'L_NOTP{wv}')
    a.e(f's_cmp_eq_u32 s{S_W}, 5')
    a.e('s_cbranch_scc0 L_GOLOADER')
    a.e('s_getpc_b64 s[34:35]')
    a.label('L_PC3')
    a.e('s_add_u32 s34, s34, (L_TOUCHER - L_PC3)')
    a.e('s_addc_u32 s35, s35, 0')
    a.e('s_setpc_b64 s[34:35]')
    a.label('L_GOLOADER')
    a.e('s_getpc_b64 s[34:35]')
    a.label('L_PC2')
    a.e('s_add_u32 s34, s34, (L_LOADER - L_PC2)')
    a.e('s_addc_u32 s35, s35, 0')
    a.e('s_setpc_b64 s[34:35]')
    a.label('L_EXIT')
    a.e('s_endpgm')
    a.label('L_COMPUTE')
    a.vm = []
    if opt.stop is not None and opt.stop[0] == 0: cev = events
    else: cev = [e for e in build_events(None) if e[0] == 0]
    rest = gen_compute(a, opt, cev)
    assert not rest, rest
    a.label('L_LOADER')
    a.vm = []
    a.fstamp = lambda p: None
    gen_loader(a, opt, events)
    a.label('L_TOUCHER')
    a.vm = []
    gen_toucher(a, opt, events)
    if opt.park:
        for wv in (6, 7):
            a.label(f'L_PARKER{wv}')
            a.vm = []
            gen_parker(a, opt, events, wv - 6)
    a.label('L_CODE_END')
    out.append(a.text())
    out += ['.section .rodata,"a"', '.p2align 6', f'.amdhsa_kernel {KNAME}',
            '  .amdhsa_next_free_vgpr 256', '  .amdhsa_next_free_sgpr 102', '  .amdhsa_accum_offset 256',
            '  .amdhsa_group_segment_fixed_size 0', '  .amdhsa_kernarg_size 88', '  .amdhsa_user_sgpr_count 2',
            '  .amdhsa_user_sgpr_kernarg_segment_ptr 1', '  .amdhsa_system_sgpr_workgroup_id_x 1', '.end_amdhsa_kernel']
    return '\n'.join(out) + '\n'


if __name__ == '__main__':
    import argparse
    ap = argparse.ArgumentParser()
    ap.add_argument('-o', default='interleave_layers__linear_attn_block__mixer_s_mlp__prompt.s')
    ap.add_argument('--stop', default=None)
    ap.add_argument('--timing', action='store_true')
    ap.add_argument('--safe', action='store_true')
    ap.add_argument('--set', action='append', default=[])
    ap.add_argument('--fine', default=None)
    args = ap.parse_args()
    opt = Opt()
    if args.stop:
        l, p = args.stop.split(','); opt.stop = (int(l), p)
    opt.timing = args.timing; opt.force_safe = args.safe; opt.fine = args.fine
    opt.caps = dict(Opt.caps); opt.park_w3 = dict(Opt.park_w3); opt.park_caps = dict(Opt.park_caps)
    for kv in args.set:
        k, v = kv.split('=')
        if k.startswith('pk3:'): opt.park_w3[k[4:]] = int(v)
        elif k.startswith('pk4:'): opt.park_caps[k[4:]] = int(v)
        elif '.' in k or k in ('X1', 'X2'): opt.caps[k] = int(v)
        else:
            try: setattr(opt, k, int(v))
            except ValueError: setattr(opt, k, v.replace(':', ','))
    open(args.o, 'w').write(generate(opt))
    print('written', args.o)
    if os.environ.get('SCHED'):
        import itertools
        for k, g in itertools.groupby(opt._log, key=lambda x: x[0]):
            g = list(g); d = {}
            for x in g: d[(x[1], x[2], x[3])] = d.get((x[1], x[2], x[3]), 0) + 1
            print(k, ' '.join(f'{a_}.{b_}.c{c_}x{n_}' for (a_, b_, c_), n_ in d.items()), 'FORCED' if any(x[4] for x in g) else '')
```

```python
import sys, os, struct

KNAME = 'interleave_layers__linear_attn_block__mixer_s_mlp__prompt_kernel'

class Opt:
    stop = None
    timing = False
    fine = None
    force_safe = False
    window = 40
    window0 = 60
    caps = {'P1KV.E': 64, 'P1Q.B0': 16, 'P1Q.B1': 16, 'P1Q.E': 32,
            'P3.B0': 0, 'P3.B1': 32, 'P3.B2': 16, 'P3.B3': 16,
            'P4.B1': 32, 'P4.B2': 16, 'P4.B3': 16,
            'P5.B1': 35, 'P5.B2': 14, 'P5.B3': 21,
            'P6.B0': 35, 'P6.B1': 28, 'P6.B2': 28, 'P6.B3': 28, 'P6.E': 64,
            'P7.B*': 16, 'P7.E': 64}
    cap0 = 0
    touch = True
    dbg_w_same = 0
    w_nt = 0
    g_cold = 0
    touch_at = 'B,P1Q,0'
    rot = 1
    pretouch = 1
    a2touch_at = 'B,P6,3'
    a01touch_at = 'B,P1KV,2'
    gtouch_parker = 1
    park = 1
    park_w3 = {'P1KV.E': 2, 'X1': 2, 'P1Q.E': 8}
    park_caps = {'P6.B1': 0, 'P6.B2': 0, 'P6.B3': 0, 'P6.E': 0}
    unpark_max = 6
    kv_atomic = 1
    wall = 0
    p7_self = 1
    dbg_skip = ''
    ws_base = 0
    late_a = 0
    kvflag_at = 5
    up3 = 1
    startdiag = 0
    gtouch_at = 'B,P5,2'
    dbg_a_same = 0
    touch_flags = ''
    spin = 1 << 17
    prefetch_code = True
    D_kv = 4
    D_p6 = 4

MB = 1 << 20
A0_OFF = 0
A1_OFF = 0x280000
A2_OFF = 0x480000
G_OFF = 0x680000
ST_OFF = 0xD80000
KVP_OFF = 0xDC0000
KVP_L = 0x88000
KVA_OFF = 0xED0000
LSTRIDE = 0x780000
FL_OFF = 0xF00000
LF_OFF = FL_OFF
KVF_OFF = FL_OFF + 4096
HF_OFF = FL_OFF + 8192
XID_OFF = FL_OFF + 29696
NONCE_OFF = FL_OFF + 30720
TM_OFF = FL_OFF + 32768
CSP_OFF = FL_OFF + 32768 + 65536
CSF_OFF = CSP_OFF + 65536
WS_USED = CSF_OFF + 32768
KVREC = 2176

LDS_TOTAL = 163840
AREG = 0
SCR = 49152
CSL = None
WRING = 65536
RING = 93952
PHI = 53248
CSL = WRING + 28672
CSC = WRING + RING
assert CSC + 1088 <= LDS_TOTAL

EPS = 1e-5

def f2u(x):
    return struct.unpack('<I', struct.pack('<f', x))[0]

class Asm:
    def __init__(self):
        self.lines = []; self.nlabel = 0; self.vm = []
        self.fstamp = lambda p: None
    def e(self, s): self.lines.append('  ' + s)
    def c(self, s): self.lines.append('  ; ' + s)
    def label(self, name): self.lines.append(name + ':')
    def newlabel(self, base='L'):
        self.nlabel += 1
        return f'{base}_{self.nlabel}'
    def vmem(self, s, tag=None):
        self.e(s); self.vm.append(tag)
    def count_vm(self, tag):
        if tag not in self.vm: return None
        idx = max(i for i, t in enumerate(self.vm) if t == tag)
        n = len(self.vm) - 1 - idx
        assert n <= 63, n
        self.vm = self.vm[idx + 1:]
        return n
    def wait_vm(self, tag):
        n = self.count_vm(tag)
        if n is not None: self.e(f's_waitcnt vmcnt({n})')
    def wait_vm_all(self):
        self.e('s_waitcnt vmcnt(0)'); self.vm = []
    def text(self): return '\n'.join(self.lines)

def set_exec(a, lo, hi=None):
    a.e(f's_mov_b32 exec_lo, {hex(lo)}')
    a.e(f's_mov_b32 exec_hi, {hex(lo if hi is None else hi)}')

S_V = 3
S_WS = 4; S_X = 8; S_OUT = 12; S_PA = 16
S_G, S_R, S_W, S_RB, S_CB, S_RB2, S_CB2 = 20, 21, 22, 23, 24, 25, 26
S_MODE, S_L, S_LOFF, S_EP, S_B, S_XCC = 27, 28, 29, 30, 31, 32
S_T0, S_T1, S_T2, S_T3, S_T4, S_T5 = 33, 34, 35, 36, 37, 38
S_SPIN, S_THR = 39, 40
S_AOFF, S_AOFF2, S_ASTR = 41, 42, 43
S_C1, S_C2, S_ONE2 = 44, 46, 48
S_LOG2E, S_EPS6 = 50, 51
S_W4K = 52
S_RH, S_CH = 53, 54
S_U0, S_U1, S_U2, S_U3, S_U4 = 55, 56, 57, 58, 59
S_COLD = 62
S_GH = 63
S_RA = 86
S_RK = 90
S_P7 = 94
S_ROTK = 45
S_PTR = 64
S_WQKV, S_WO, S_W1, S_W2, S_W3, S_W4 = 40, 44, 48, 52, 56, 60
S_CSRD = 88

V_LANE = 0
V_AS, V_AB, V_AG, V_P1 = 1, 2, 3, 4
V_AH = 5
V_STS, V_STB, V_STST, V_XRM, V_TST = 9, 10, 11, 12, 13
V_FSB, V_FBS, V_FSS, V_FH, V_FOWN, V_FKV = 14, 15, 16, 17, 18, 19
V_T128, V_T64, V_T224, V_TN, V_TA = 20, 21, 22, 23, 24
V_T0, V_T1, V_T2 = 25, 26, 27
V_TB = 28
V_RES = 32
V_MEAN, V_RS = 48, 49
V_X = 50
V_PQ = 56
V_ACC = 64
V_A = 128

PHASES = ['P1KV', 'P1Q', 'P3', 'P4', 'P5', 'P6', 'P7']
NCH = {'P1KV': 4, 'P1Q': 2, 'P3': 4, 'P4': 4, 'P5': 4, 'P6': 4, 'P7': 14}

ATOMIC = [1]
NOE = ('P3', 'P4', 'P5')

class Slab:
    def __init__(self, layer, phase, chunk, kind, size, srow, npieces, srow2=None):
        self.layer, self.phase, self.chunk, self.kind = layer, phase, chunk, kind
        self.size, self.srow, self.npieces, self.srow2 = size, srow, npieces, srow2
        self.addr = None

def w4_tile_seq():
    seq = []
    for c in range(8):
        for i in [0, 1, 2, 3, 4, 5, 7, 8, 9, 10, 11, 12, 6, 13]:
            seq.append(14 * c + i)
    return seq

def build_slabs(layer):
    ph = {}
    def simple(phase, kind, nchunk, per, size, rows, np_):
        ph[phase] = [[Slab(layer, phase, c, kind, size, (c * per + j) * rows, np_) for j in range(per)] for c in range(nchunk)]
    simple('P1KV', 'KV', 4, 4, 4096, 32, 4)
    simple('P1Q', 'Q', 2, 4, 4096, 64, 4)
    simple('P3', 'WO', 4, 4, 4096, 32, 4)
    simple('P4', 'W1', 4, 4, 4096, 32, 4)
    simple('P5', 'W2', 4, 4, 4096, 32, 4)
    simple('P6', 'W3', 4, 4, 7168, 32, 7)
    seq = w4_tile_seq()
    ph['P7'] = [[Slab(layer, 'P7', c, 'W4', 4096, seq[2 * (c * 4 + j)] * 16, 4, srow2=seq[2 * (c * 4 + j) + 1] * 16)
                 for j in range(4)] for c in range(14)]
    pos = PHI
    for p in PHASES:
        for ch in ph[p]:
            for s in ch:
                if pos + s.size > RING: pos = 0
                s.addr = WRING + pos
                pos += s.size
    assert pos == PHI, pos
    return ph

def build_events(stop):
    ev = []
    for L in range(2):
        for p in PHASES:
            for c in range(NCH[p]): ev.append((L, 'B', p, c))
            if p not in NOE: ev.append((L, 'E', p, None))
            if p == 'P1KV': ev.append((L, 'X', 'X1', None))
            if p == 'P1Q' and not ATOMIC[0]: ev.append((L, 'X', 'X2', None))
            if stop == (L, p): return ev
    return ev

WS = f's[{S_WS}:{S_WS+3}]'

def thr_value(a, dst, epoch, xcc=False):
    if isinstance(epoch, int):
        a.e(f's_add_u32 s{dst}, s{S_B}, {8*epoch}')
    else:
        a.e(f's_lshl_b32 s{dst}, {epoch}, 3')
        a.e(f's_add_u32 s{dst}, s{dst}, s{S_B}')
    if xcc: a.e(f's_add_u32 s{dst}, s{dst}, s{S_XCC}')

def emit_poll(a, vaddr, epoch, soff='0', opt=Opt, x4=False, tbase=None):
    L = a.newlabel('POLL'); D = a.newlabel('POLLD')
    thr_value(a, S_THR, epoch)
    a.e(f's_mov_b32 s{S_SPIN}, {opt.spin}')
    a.label(L)
    if x4:
        T = tbase
        a.e(f'buffer_load_dwordx4 v[{T}:{T+3}], v{vaddr}, {WS}, {soff} offen sc1')
        a.e('s_waitcnt vmcnt(0)')
        for i in range(4): a.e(f'v_subrev_u32 v{T+i}, s{S_THR}, v{T+i}')
        a.e(f'v_max_u32 v{T}, v{T}, v{T+1}')
        a.e(f'v_max_u32 v{T+2}, v{T+2}, v{T+3}')
        a.e(f'v_max_u32 v{V_T0}, v{T}, v{T+2}')
    else:
        a.e(f'buffer_load_dword v{V_T2}, v{vaddr}, {WS}, {soff} offen sc1')
        a.e('s_waitcnt vmcnt(0)')
        a.e(f'v_subrev_u32 v{V_T0}, s{S_THR}, v{V_T2}')
    a.vm = []
    a.e(f'v_cmp_gt_u32 vcc, 0x80, v{V_T0}')
    a.e(f's_sub_u32 s{S_SPIN}, s{S_SPIN}, 1')
    a.e(f's_cbranch_scc1 {D}')
    a.e('s_cmp_eq_u64 vcc, -1')
    a.e(f's_cbranch_scc0 {L}')
    a.label(D)

def emit_mode_stores(a, stores, cold=False):
    F = a.newlabel('STF'); D = a.newlabel('STD')
    if getattr(a, 'opt', None) is not None and a.opt.pretouch and a.opt.park: cold = False
    a.e(f's_cmp_eq_u32 s{S_COLD if cold else S_MODE}, 0')
    a.e(f's_cbranch_scc1 {F}')
    for s in stores: a.e(s + ' sc1')
    a.e(f's_branch {D}')
    a.label(F)
    for s in stores: a.e(s)
    a.label(D)
    for s in stores: a.vm.append('st')

def emit_signal(a, epoch):
    thr_value(a, S_THR, epoch, xcc=True)
    a.e(f'v_mov_b32 v{V_T0}, s{S_THR}')
    a.wait_vm_all()
    a.e('s_mov_b64 exec, 1')
    emit_mode_stores(a, [f'buffer_store_dword v{V_T0}, v{V_FOWN}, {WS}, 0 offen'])
    a.e('s_mov_b64 exec, -1')

def emit_xreduce(a, regs, tmp, over16=True):
    for r, t in zip(regs, tmp): a.e(f'v_mov_b32 v{t}, v{r}')
    a.e('s_nop 1')
    for r, t in zip(regs, tmp): a.e(f'v_permlane32_swap_b32 v{r}, v{t}')
    a.e('s_nop 0')
    for r, t in zip(regs, tmp): a.e(f'v_add_f32 v{r}, v{r}, v{t}')
    if over16:
        for r, t in zip(regs, tmp): a.e(f'v_mov_b32 v{t}, v{r}')
        a.e('s_nop 1')
        for r, t in zip(regs, tmp): a.e(f'v_permlane16_swap_b32 v{r}, v{t}')
        a.e('s_nop 0')
        for r, t in zip(regs, tmp): a.e(f'v_add_f32 v{r}, v{r}, v{t}')

def pk(op, d, x, y, z=None, mods=''):
    s = f'v_pk_{op}_f32 v[{d}:{d+1}], {x}, {y}'
    if z is not None: s += f', {z}'
    return s + mods
def vp(r): return f'v[{r}:{r+1}]'

def emit_stats_partial32(a, vals, t0, st_soff, cold=False):
    s, q = t0, t0 + 2
    a.e(pk('add', s, vp(vals), vp(vals + 2)))
    a.e(pk('mul', q, vp(vals), vp(vals)))
    a.e(pk('fma', q, vp(vals + 2), vp(vals + 2), vp(q)))
    for i in range(4, 16, 2):
        a.e(pk('add', s, vp(s), vp(vals + i)))
        a.e(pk('fma', q, vp(vals + i), vp(vals + i), vp(q)))
    a.e(f'v_add_f32 v{t0}, v{s}, v{s+1}')
    a.e(f'v_add_f32 v{t0+1}, v{q}, v{q+1}')
    emit_xreduce(a, [t0, t0 + 1], [t0 + 4, t0 + 5], over16=False)
    set_exec(a, 0xffffffff, 0)
    emit_mode_stores(a, [f'buffer_store_dwordx2 v[{t0}:{t0+1}], v{V_STST}, {WS}, {st_soff} offen'], cold=cold)
    a.e('s_mov_b64 exec, -1')

def emit_stats_from_sums(a, s, ss, out_a, out_b, tmp, double=False, keep=None):
    mean, var = s, ss
    a.e(f'v_mul_f32 v{mean}, {hex(f2u(1.0/512))}, v{s}')
    a.e(f'v_mul_f32 v{var}, {hex(f2u(1.0/512))}, v{ss}')
    a.e(f'v_fma_f32 v{var}, -v{mean}, v{mean}, v{var}')
    a.e(f'v_max_f32 v{var}, 0, v{var}')
    a.e(f'v_add_f32 v{tmp}, {hex(f2u(EPS))}, v{var}')
    a.e(f'v_rsq_f32 v{tmp}, v{tmp}')
    a.e('s_nop 0')
    if double:
        a.e(f'v_mul_f32 v{tmp+1}, v{tmp}, v{tmp}')
        a.e(f'v_mul_f32 v{tmp+1}, v{tmp+1}, v{var}')
        a.e(f'v_add_f32 v{tmp+1}, {hex(f2u(EPS))}, v{tmp+1}')
        a.e(f'v_rsq_f32 v{tmp+1}, v{tmp+1}')
        a.e('s_nop 0')
        a.e(f'v_mul_f32 v{out_a}, v{tmp}, v{tmp+1}')
    else:
        a.e(f'v_mov_b32 v{out_a}, v{tmp}')
    if keep:
        a.e(f'v_mov_b32 v{keep[0]}, v{mean}')
        a.e(f'v_mov_b32 v{keep[1]}, v{tmp}')
    a.e(f'v_mul_f32 v{out_b}, v{out_a}, v{mean}')
    a.e(f'v_sub_f32 v{out_b}, 0, v{out_b}')

def emit_sum_partials(a, raw, n):
    k = n
    step = 2
    regs = [raw + i for i in range(0, n, 2)]
    while len(regs) > 1:
        nxt = []
        for i in range(0, len(regs), 2):
            a.e(pk('add', regs[i], vp(regs[i]), vp(regs[i + 1])))
            nxt.append(regs[i])
        regs = nxt

def emit_lnfold(a, acc, cs, av, bv, n):
    for i in range(0, n, 2):
        a.e(pk('mul', acc + i, vp(acc + i), vp(av), mods=' op_sel_hi:[1,0]'))
    for i in range(0, n, 2):
        a.e(pk('fma', acc + i, vp(cs + i), vp(bv), vp(acc + i), mods=' op_sel_hi:[1,0,1]'))

def emit_gelu(a, x, n, tmp, c1reg):
    blk = 16
    a.e(f'v_mov_b32 v{c1reg}, s{S_C1}')
    for b0 in range(0, n, blk):
        m = min(blk, n - b0); t = tmp
        for i in range(0, m, 2): a.e(pk('mul', t + i, vp(x + b0 + i), vp(x + b0 + i)))
        for i in range(0, m, 2): a.e(pk('fma', t + i, vp(t + i), f's[{S_C2}:{S_C2+1}]', vp(c1reg), mods=' op_sel_hi:[1,1,0]'))
        for i in range(0, m, 2): a.e(pk('mul', t + i, vp(t + i), vp(x + b0 + i)))
        for i in range(m): a.e(f'v_exp_f32 v{t+i}, v{t+i}')
        for i in range(0, m, 2): a.e(pk('add', t + i, vp(t + i), f's[{S_ONE2}:{S_ONE2+1}]'))
        for i in range(m): a.e(f'v_rcp_f32 v{t+i}, v{t+i}')
        for i in range(0, m, 2): a.e(pk('mul', x + b0 + i, vp(x + b0 + i), vp(t + i)))

def emit_phi(a, regs, tmp):
    for i, r in enumerate(regs): a.e(f'v_min_f32 v{tmp+i}, 0, v{r}')
    for i, r in enumerate(regs): a.e(f'v_mul_f32 v{tmp+i}, s{S_LOG2E}, v{tmp+i}')
    for i, r in enumerate(regs): a.e(f'v_exp_f32 v{tmp+i}, v{tmp+i}')
    for i, r in enumerate(regs): a.e(f'v_max_f32 v{r}, 0, v{r}')
    for i, r in enumerate(regs): a.e(f'v_add_f32 v{r}, v{r}, v{tmp+i}')
    for i, r in enumerate(regs): a.e(f'v_add_f32 v{r}, s{S_EPS6}, v{r}')

def emit_pack(a, dst, src, n):
    for i in range(0, n, 2): a.e(f'v_cvt_pk_bf16_f32 v{dst+i//2}, v{src+i}, v{src+i+1}')

def emit_pack32(a, dst, src):
    for k, j in enumerate([0, 2, 1, 3]):
        a.e(f'v_cvt_pk_bf16_f32 v{dst+2*k}, v{src+4*j}, v{src+4*j+1}')
        a.e(f'v_cvt_pk_bf16_f32 v{dst+2*k+1}, v{src+4*j+2}, v{src+4*j+3}')

class TrBase:
    def __init__(self, a, lane_reg, nt):
        self.a, self.lane_reg, self.nt, self.cur = a, lane_reg, nt, None
    def off(self, addr, span):
        if self.cur is None or addr < self.cur or addr + span - self.cur > 65535:
            self.cur = addr
            for t in range(self.nt):
                if t == 0:
                    self.a.e(f'v_add_u32 v{V_TB}, {hex(addr)}, v{self.lane_reg}')
                else:
                    self.a.e(f'v_xor_b32 v{V_TB+t}, {t << 5}, v{self.lane_reg}')
                    self.a.e(f'v_add_u32 v{V_TB+t}, {hex(addr)}, v{V_TB+t}')
        return addr - self.cur

def emit_gemm16(a, bar, phase, chunks, CT, kind, acc_of, a_of, a_wait, a_issue, wr, S, normal=False, extra=None, a_lds=None):
    R, LA = 2, 4
    ks = []
    for ci, ch in enumerate(chunks):
        first = True
        for s in ch:
            ks.append((ci, s.addr, first)); first = False
            if kind == '64': ks.append((ci, s.addr + 2048, False))
    KS = len(ks)
    if kind == '128':
        trb = TrBase(a, V_T128, 4); second = 2048; span = 4096; tb = lambda t: V_TB + t; timm = lambda t: 0
    elif kind == '64':
        trb = TrBase(a, V_T64, 2); second = 1024; span = 2048; tb = lambda t: V_TB + t; timm = lambda t: 0
    else:
        trb = TrBase(a, V_T224, 1); second = 3584; span = 7168; tb = lambda t: V_TB; timm = lambda t: 32 * t
    total = KS * CT
    def slot(n): return wr + 4 * (n % S)
    def pre_issue(n):
        j, t = divmod(n, CT)
        ci, addr, first = ks[j]
        if t == 0 and first:
            a.fstamp(phase); bar(('B', phase, ci)); a.fstamp(phase)
        imm = trb.off(addr, span) if t == 0 else addr - trb.cur
        return imm + timm(t), t
    def rd(n, half, info):
        imm, t = info
        a.e(f'ds_read_b64_tr_b16 v[{slot(n)+2*half}:{slot(n)+2*half+1}], v{tb(t)} offset:{imm + (second if half else 0)}')
    def mfma(m, r):
        j, t = divmod(m, CT)
        d = acc_of(r, t); c = '0' if j == 0 else f'v[{d}:{d+3}]'
        w = f'v[{slot(m)}:{slot(m)+3}]'; x = f'v[{a_of(r,j)}:{a_of(r,j)+3}]'
        a.e(f'v_mfma_f32_16x16x32_bf16 v[{d}:{d+3}], ' + (f'{x}, {w}' if normal else f'{w}, {x}') + f', {c}')
    lq = []
    def need(tags):
        idx = max((i for i, g in enumerate(lq) if g in tags), default=None)
        if idx is None: return None
        n_ = len(lq) - 1 - idx
        del lq[:idx + 1]
        assert n_ <= 15
        return n_
    def pre2(n):
        info = pre_issue(n)
        j, t = divmod(n, CT)
        if a_lds and t == 0:
            for s_ in a_lds(j):
                a.e(s_); lq.append(('A', j))
        return info
    def rd2(n, half, info):
        rd(n, half, info); lq.append(('W', n))
    for n in range(min(LA, total)):
        info = pre2(n); rd2(n, 0, info); rd2(n, 1, info)
    for n in range(total):
        j, t = divmod(n, CT)
        lg = need({('W', n), ('A', j)})
        vmn = a_wait(j) if t == 0 else None
        if t == 0 and j in (0, 1): a.fstamp(phase)
        parts = ([f'vmcnt({vmn})'] if vmn is not None else []) + ([f'lgkmcnt({lg})'] if lg is not None else [])
        if parts: a.e('s_waitcnt ' + ' '.join(parts))
        nx = n + LA; info = None
        mfma(n, 0)
        if nx < total:
            info = pre2(nx); rd2(nx, 0, info)
        mfma(n, 1)
        if nx < total: rd2(nx, 1, info)
        a_issue(j, t)
        if extra and t == CT - 1: extra(j)
    a.fstamp(phase); bar(('E', phase, None)); a.fstamp(phase)
    a.e('s_nop 7')

def emit_gemm32(a, bar, phase, chunks, acc, wr, tail=None, a_pieces=None):
    LA, S = 4, 5
    nch = len(chunks)
    total = nch * 8
    trb = TrBase(a, V_TN, 1)
    def slot(n): return wr + 8 * (n % S)
    def reads(n):
        c, rem = divmod(n, 8); ksl, s = divmod(rem, 2)
        out = []
        if rem == 0:
            if a_pieces: a.wait_vm(('A', c))
            a.fstamp(phase); bar(('B', phase, c)); a.fstamp(phase)
        sl = chunks[c][ksl]
        imm = trb.off(sl.addr, 4096)
        out.append(f'ds_read_b128 v[{slot(n)}:{slot(n)+3}], v{V_TA} offset:{(c % 4) * 16384 + ksl * 1024 + s * 512}')
        out.append(f'ds_read_b64_tr_b16 v[{slot(n)+4}:{slot(n)+5}], v{V_TB} offset:{imm + s * 1024}')
        out.append(f'ds_read_b64_tr_b16 v[{slot(n)+6}:{slot(n)+7}], v{V_TB} offset:{imm + s * 1024 + 2048}')
        return out
    queue = []; nxt = 2; passed = 0
    if a_pieces:
        for c in (0, 1):
            for t in a_pieces(c): t()
    for n in range(LA):
        for s in reads(n): a.e(s)
    for n in range(total):
        lg = 3 * (min(n - 1 + LA, total - 1) - n)
        a.e(f's_waitcnt lgkmcnt({lg})')
        c = '0' if n == 0 else f'v[{acc}:{acc+15}]'
        a.e(f'v_mfma_f32_32x32x16_bf16 v[{acc}:{acc+15}], v[{slot(n)+4}:{slot(n)+7}], v[{slot(n)}:{slot(n)+3}], {c}')
        nx = n + LA
        if nx < total:
            if nx % 8 == 0: passed = nx // 8
            for s in reads(nx): a.e(s)
        if a_pieces:
            while nxt < nch and (nxt <= passed + 2 or nxt <= 3) and len(queue) < 4:
                queue += list(a_pieces(nxt)); nxt += 1
            if queue: queue.pop(0)()
        if tail and n == max(total - 24, 0): tail()
    a.fstamp(phase)
    if phase not in NOE:
        bar(('E', phase, None))
    a.fstamp(phase)
    a.e('s_nop 7'); a.e('s_nop 3')


def gen_compute(a, opt, events):
    evq = list(events)
    tm = [0]
    def tmreg(i):
        assert i < 22, i
        return 64 + i
    def dump(regs):
        sk = a.newlabel('TMS')
        a.e('s_waitcnt lgkmcnt(0)')
        a.e(f's_cmp_eq_u32 s{S_W}, 0')
        a.e(f's_cbranch_scc0 {sk}')
        a.e(f's_lshl_b32 s{S_T0}, s2, 8')
        a.e(f's_lshl_b32 s{S_T1}, s{S_L}, 7')
        if opt.timing: a.e(f's_add_u32 s{S_T0}, s{S_T0}, s{S_T1}')
        a.e(f's_add_u32 s{S_T0}, s{S_T0}, {hex(TM_OFF)}')
        for i, r in enumerate(regs):
            a.e(f'v_mov_b32 v{V_T0}, s{r}')
            a.e(f'v_mov_b32 v{V_T1}, {4*i}')
            a.e(f'buffer_store_dword v{V_T0}, v{V_T1}, {WS}, s{S_T0} offen')
        a.label(sk)
        a.e('s_waitcnt vmcnt(0)')
    fs = [0]
    def freg(i): return 64 + 2 * i
    def fstamp(phase):
        if opt.fine == phase and fs[0] < 11:
            a.e(f's_memtime s[{freg(fs[0])}:{freg(fs[0])+1}]'); fs[0] += 1
    a.fstamp = fstamp
    def stamp():
        if opt.timing:
            a.e('s_memtime s[60:61]')
            a.e('s_waitcnt lgkmcnt(0)')
            a.e(f's_mov_b32 s{tmreg(tm[0])}, s60'); tm[0] += 1

    T0, T1, T2, TB = V_T0, V_T1, V_T2, V_TB
    if opt.wall:
        a.e('s_memrealtime s[60:61]'); a.e('s_waitcnt lgkmcnt(0)'); a.e('s_mov_b32 s84, s60')
        a.e('s_memtime s[60:61]'); a.e('s_waitcnt lgkmcnt(0)'); a.e('s_mov_b32 s85, s60')
    a.c('--- compute: early address setup')
    if opt.startdiag:
        a.e('s_memtime s[98:99]'); a.e('s_waitcnt lgkmcnt(0)'); a.e('s_sub_u32 s98, s98, s100'); a.e('s_mov_b32 s85, s98')
    stamp()
    a.e(f's_lshr_b32 s{S_RH}, s{S_W}, 1')
    a.e(f's_and_b32 s{S_CH}, s{S_W}, 1')
    a.e(f's_lshl_b32 s{S_W4K}, s{S_W}, 12')
    a.e(f's_lshl_b32 s{S_U0}, s{S_G}, 4')
    a.e(f's_lshl_b32 s{S_T1}, s{S_RB}, 2')
    a.e(f's_add_u32 s{S_U0}, s{S_U0}, s{S_T1}')
    a.e(f's_lshl_b32 s{S_T1}, s{S_RH}, 1')
    a.e(f's_add_u32 s{S_U2}, s{S_U0}, s{S_T1}')
    a.e(f's_add_u32 s{S_U0}, s{S_U0}, s{S_W}')
    a.e(f's_lshl_b32 s{S_U1}, s{S_G}, 4')
    a.e(f's_lshl_b32 s{S_T2}, s{S_RB2}, 3')
    a.e(f's_add_u32 s{S_U1}, s{S_U1}, s{S_T2}')
    a.e(f's_lshl_b32 s{S_T2}, s{S_W}, 1')
    a.e(f's_add_u32 s{S_U1}, s{S_U1}, s{S_T2}')
    a.e(f'v_and_b32 v{T0}, 15, v{V_LANE}')
    a.e(f'v_and_b32 v{T1}, 0x30, v{V_LANE}')
    a.e(f's_lshl_b32 s{S_ROTK}, s{S_RB2}, 1')
    a.e(f's_add_u32 s{S_ROTK}, s{S_ROTK}, s{S_CB2}')
    a.e(f's_and_b32 s{S_ROTK}, s{S_ROTK}, {3 if opt.rot else 0}')
    a.e(f'v_and_b32 v{T2}, 31, v{V_LANE}')
    a.e(f'v_lshrrev_b32 v{TB}, 5, v{V_LANE}')
    a.e(f'v_lshlrev_b32 v{V_XRM}, 10, v{T2}')
    a.e(f'v_lshl_add_u32 v{V_XRM}, v{TB}, 3, v{V_XRM}')
    a.e(f's_lshl_b32 s{S_T2}, s{S_U2}, 14')
    a.e(f's_lshl_b32 s{S_T3}, s{S_CB}, 7')
    a.e(f's_add_u32 s{S_T2}, s{S_T2}, s{S_T3}')
    a.e(f's_lshl_b32 s{S_T3}, s{S_CH}, 6')
    a.e(f's_add_u32 s{S_T2}, s{S_T2}, s{S_T3}')
    a.e(f'v_add_u32 v{V_XRM}, s{S_T2}, v{V_XRM}')
    PA = f's[{S_PA}:{S_PA+3}]'
    def p1_load(j):
        if j % 4 == 0:
            a.e(f's_mov_b32 s{S_AOFF}, s{S_RK + j // 4}')
            a.e(f's_add_u32 s{S_AOFF2}, s{S_AOFF}, 0x4000')
        for r in range(2):
            a.vmem(f'buffer_load_dwordx4 v[{V_A+(r*16+j)*4}:{V_A+(r*16+j)*4+3}], v{V_P1}, {PA}, s{S_AOFF if r == 0 else S_AOFF2} offen', ('A', j))
        if j % 4 != 3:
            a.e(f's_add_u32 s{S_AOFF}, s{S_AOFF}, s{S_ASTR}')
            a.e(f's_add_u32 s{S_AOFF2}, s{S_AOFF2}, s{S_ASTR}')
    a.e('s_waitcnt lgkmcnt(0)')
    a.e(f's_mul_i32 s{S_B}, s{S_V}, 0x9e3779b1')
    a.e(f's_add_u32 s{S_B}, s{S_B}, 0x7f4a7c15')
    a.e(f's_and_b32 s{S_B}, s{S_B}, 0xffffff00')
    a.c('--- compute: address setup')
    a.e(f'v_lshlrev_b32 v{V_X}, 4, v{V_LANE}')
    a.e(f's_lshl_b32 s{S_T2}, s{S_U1}, 14')
    a.e(f'v_add_u32 v{V_AB}, s{S_T2}, v{V_X}')
    a.e(f'v_lshlrev_b32 v{V_STS}, 4, v{T2}')
    a.e(f'v_lshl_add_u32 v{V_STS}, v{TB}, 11, v{V_STS}')
    a.e(f's_lshl_b32 s{S_T2}, s{S_U2}, 11')
    a.e(f'v_add_u32 v{V_STS}, s{S_T2}, v{V_STS}')
    a.e(f'v_lshlrev_b32 v{V_STST}, 4, v{T2}')
    a.e(f's_lshl_b32 s{S_T4}, s{S_CB}, 9')
    a.e(f's_add_u32 s{S_T2}, s{S_T2}, s{S_T4}')
    a.e(f's_lshl_b32 s{S_T4}, s{S_CH}, 3')
    a.e(f's_add_u32 s{S_T2}, s{S_T2}, s{S_T4}')
    a.e(f'v_add_u32 v{V_STST}, s{S_T2}, v{V_STST}')
    a.e(f's_lshl_b32 s{S_T3}, s{S_CB}, 1')
    a.e(f's_add_u32 s{S_T3}, s{S_T3}, s{S_CH}')
    a.e(f'v_lshlrev_b32 v{V_STB}, 4, v{T0}')
    a.e(f'v_lshl_add_u32 v{V_STB}, v{T1}, 6, v{V_STB}')
    a.e(f's_lshl_b32 s{S_T2}, s{S_U1}, 11')
    a.e(f'v_add_u32 v{V_STB}, s{S_T2}, v{V_STB}')
    a.e(f'v_lshrrev_b32 v{V_TST}, 4, v{T2}')
    a.e(f'v_lshlrev_b32 v{V_TST}, 14, v{V_TST}')
    a.e(f'v_lshl_add_u32 v{V_TST}, v{TB}, 8, v{V_TST}')
    a.e(f'v_lshl_add_u32 v{V_TST}, v{T0}, 4, v{V_TST}')
    a.e(f's_lshl_b32 s{S_T2}, s{S_U2}, 14')
    a.e(f's_lshl_b32 s{S_T4}, s{S_T3}, 10')
    a.e(f's_add_u32 s{S_T2}, s{S_T2}, s{S_T4}')
    a.e(f'v_add_u32 v{V_TST}, s{S_T2}, v{V_TST}')
    a.e(f's_lshl_b32 s{S_T2}, s{S_G}, 9')
    a.e(f's_add_u32 s{S_T2}, s{S_T2}, {hex(LF_OFF)}')
    a.e(f's_lshl_b32 s{S_T3}, s{S_W}, 7')
    a.e(f's_add_u32 s{S_T3}, s{S_T3}, s{S_T2}')
    a.e(f's_lshl_b32 s{S_T4}, s{S_R}, 2')
    a.e(f's_add_u32 s{S_T4}, s{S_T4}, s{S_T3}')
    a.e(f'v_mov_b32 v{V_FOWN}, s{S_T4}')
    a.e(f'v_and_b32 v{V_X+1}, 7, v{V_LANE}')
    a.e(f'v_lshlrev_b32 v{V_X+1}, 2, v{V_X+1}')
    a.e(f'v_bfe_u32 v{V_X+2}, v{V_LANE}, 3, 1')
    a.e(f'v_lshl_add_u32 v{V_X+1}, v{V_X+2}, 7, v{V_X+1}')
    a.e(f's_lshl_b32 s{S_T4}, s{S_RB2}, 1')
    a.e(f's_add_u32 s{S_T4}, s{S_T4}, s{S_RH}')
    a.e(f's_lshl_b32 s{S_T4}, s{S_T4}, 5')
    a.e(f's_lshl_b32 s{S_T5}, s{S_CH}, 8')
    a.e(f's_add_u32 s{S_T4}, s{S_T4}, s{S_T5}')
    a.e(f's_add_u32 s{S_T4}, s{S_T4}, s{S_T2}')
    a.e(f'v_add_u32 v{V_FSB}, s{S_T4}, v{V_X+1}')
    a.e(f's_lshl_b32 s{S_T4}, s{S_CB2}, 7')
    a.e(f's_add_u32 s{S_T4}, s{S_T4}, {hex(KVF_OFF)}')
    a.e(f'v_lshlrev_b32 v{V_FKV}, 2, v{T2}')
    a.e(f'v_add_u32 v{V_FKV}, s{S_T4}, v{V_FKV}')
    a.e(f'v_bfe_u32 v{V_X+1}, v{V_LANE}, 2, 2')
    a.e(f'v_lshrrev_b32 v{V_X+2}, 4, v{V_LANE}')
    a.e(f'v_lshl_add_u32 v{V_X+3}, v{V_X+2}, 2, v{V_X+1}')
    a.e(f'v_and_b32 v{V_X+4}, 3, v{V_LANE}')
    a.e(f'v_lshlrev_b32 v{V_X+4}, 3, v{V_X+4}')
    a.e(f'v_bfe_u32 v{V_X+5}, v{V_X+3}, 1, 2')
    a.e(f'v_lshl_add_u32 v{V_T128}, v{V_X+5}, 5, v{V_X+4}')
    a.e(f'v_lshl_add_u32 v{V_T128}, v{V_X+3}, 7, v{V_T128}')
    a.e(f'v_bfe_u32 v{V_X+5}, v{V_X+3}, 2, 1')
    a.e(f'v_lshl_add_u32 v{V_T64}, v{V_X+5}, 5, v{V_X+4}')
    a.e(f'v_lshl_add_u32 v{V_T64}, v{V_X+3}, 6, v{V_T64}')
    a.e(f'v_mul_u32_u24 v{V_T224}, 224, v{V_X+3}')
    a.e(f'v_add_u32 v{V_T224}, v{V_T224}, v{V_X+4}')
    a.e(f'v_lshrrev_b32 v{V_X+3}, 1, v{V_X+2}')
    a.e(f'v_lshl_add_u32 v{V_X+3}, v{V_X+3}, 2, v{V_X+1}')
    a.e(f'v_and_b32 v{V_X+5}, 1, v{V_X+2}')
    a.e(f's_lshl_b32 s{S_T4}, s{S_CH}, 1')
    a.e(f'v_add_u32 v{V_X+5}, s{S_T4}, v{V_X+5}')
    a.e(f'v_and_b32 v{V_X+1}, 2, v{V_X+1}')
    a.e(f'v_xor_b32 v{V_X+5}, v{V_X+5}, v{V_X+1}')
    a.e(f'v_lshl_add_u32 v{V_TN}, v{V_X+5}, 5, v{V_X+4}')
    a.e(f'v_lshl_add_u32 v{V_TN}, v{V_X+3}, 7, v{V_TN}')
    a.e(f'v_bfe_u32 v{V_TA}, v{V_LANE}, 4, 1')
    a.e(f's_lshl_b32 s{S_T4}, s{S_RH}, 1')
    a.e(f'v_add_u32 v{V_TA}, s{S_T4}, v{V_TA}')
    a.e(f'v_lshlrev_b32 v{V_TA}, 12, v{V_TA}')
    a.e(f'v_lshl_add_u32 v{V_TA}, v{TB}, 8, v{V_TA}')
    a.e(f'v_lshl_add_u32 v{V_TA}, v{T0}, 4, v{V_TA}')
    if AREG: a.e(f'v_add_u32 v{V_TA}, {hex(AREG)}, v{V_TA}')
    c1 = -2.0 * 0.7978845608028654 * 1.4426950408889634
    c2 = c1 * 0.044715
    for s, v in [(S_C1, c1), (S_C2, c2), (S_C2 + 1, c2), (S_ONE2, 1.0), (S_ONE2 + 1, 1.0),
                 (S_LOG2E, 1.4426950408889634), (S_EPS6, 1e-6)]:
        a.e(f's_mov_b32 s{s}, {hex(f2u(v))}')
    a.e(f's_mov_b32 s{S_L}, 0')
    a.e(f's_mov_b32 s{S_LOFF}, 0')
    a.e(f's_mov_b32 s{S_EP}, 1')
    a.e(f's_mov_b32 s{S_MODE}, 1')
    a.e(f's_mov_b32 s{S_COLD}, 1')
    a.e(f's_lshl_b32 s{S_GH}, s{S_G}, 1')
    a.e(f's_add_u32 s{S_GH}, s{S_GH}, 1')
    a.e(f's_lshl_b32 s{S_GH}, s{S_GH}, 14')

    LOOP = 'LAYER_LOOP'
    a.label(LOOP)
    slabs = build_slabs(0)

    def run_layer():
        def bar(ev):
            exp = evq.pop(0)
            assert exp[1:] == ev or (exp[1] == 'X' and ev[0] == 'X' and exp[2] == ev[1]), (exp, ev)
            a.e('s_barrier')
        def soff(reg, base, extra=0, gh=False):
            if gh: a.e(f's_add_u32 s{reg}, s{S_GH}, {hex(base + extra)}')
            else: a.e(f's_mov_b32 s{reg}, {hex(base + extra)}')
        def done(p):
            if opt.stop == (1, p):
                a.e(f's_cmp_eq_u32 s{S_L}, 1')
                a.e('s_cbranch_scc1 L_END_COMPUTE')
            return opt.stop == (0, p)
        def ep(k):
            a.e(f's_add_u32 s{S_T5}, s{S_EP}, {k}')
            return f's{S_T5}'

        a.c('=== P1KV')
        WR1 = 96; D1 = 116; ONES = 124; D2 = V_PQ
        for i in range(4): a.e(f'v_mov_b32 v{ONES+i}, 0x3f803f80')
        l0 = a.newlabel('KVL0'); ljoin = a.newlabel('KVJ')
        a.e(f's_cmp_eq_u32 s{S_L}, 0')
        a.e(f's_cbranch_scc1 {l0}')
        saved_ev = list(evq)
        emit_poll(a, V_FSB, f's{S_EP}', opt=opt)
        for j in range(opt.D_kv): p1_load(j)
        stamp()
        a.fstamp('P1KV')
        def kv_issue(j, t):
            if t == 1:
                if j + opt.D_kv < 16:
                    p1_load(j + opt.D_kv)
                elif j + opt.D_kv == 16:
                    soff(S_T0, ST_OFF)
                    a.vmem(f'buffer_load_dwordx4 v[{D1}:{D1+3}], v{V_STB}, {WS}, s{S_T0} offen sc1', 'st')
                    a.vmem(f'buffer_load_dwordx4 v[{D1+4}:{D1+7}], v{V_STB}, {WS}, s{S_T0} offen offset:512 sc1', 'st')
                    a.vmem(f'buffer_load_dwordx4 v[{D2}:{D2+3}], v{V_STB}, {WS}, s{S_T0} offen offset:256 sc1', 'st')
                    a.vmem(f'buffer_load_dwordx4 v[{D2+4}:{D2+7}], v{V_STB}, {WS}, s{S_T0} offen offset:768 sc1', 'st')
        emit_gemm16(a, bar, 'P1KV', slabs['P1KV'], 4, '128',
                    acc_of=lambda r, t: V_ACC + (r * 4 + t) * 4, a_of=lambda r, j: V_A + (r * 16 + j) * 4,
                    a_wait=lambda j: a.count_vm(('A', j)), a_issue=kv_issue, wr=WR1, S=5, normal=True)
        a.e(f's_branch {ljoin}')
        a.label(l0)
        evq[:] = saved_ev
        a.vm = []
        tm[0] -= 1 if opt.timing else 0
        stamp()
        VLA = V_X
        a.e(f'v_and_b32 v{T0}, 15, v{V_LANE}')
        a.e(f'v_lshrrev_b32 v{T1}, 4, v{V_LANE}')
        a.e(f'v_xor_b32 v{T1}, v{T1}, v{T0}')
        a.e(f'v_lshlrev_b32 v{T1}, 4, v{T1}')
        a.e(f's_lshl_b32 s{S_T0}, s{S_W}, 5')
        a.e(f'v_add_u32 v{T0}, s{S_T0}, v{T0}')
        a.e(f'v_lshlrev_b32 v{T0}, 8, v{T0}')
        for j in range(4):
            a.e(f'v_xor_b32 v{VLA+j}, {64*j}, v{T1}')
            a.e(f'v_add_u32 v{VLA+j}, v{VLA+j}, v{T0}')
        def kv_lds(j):
            c = j // 4
            return [f'ds_read_b128 v[{V_A+(r*16+j)*4}:{V_A+(r*16+j)*4+3}], v{VLA + j % 4} offset:{AREG + (c & 1) * 32768 + r * 4096}' for r in range(2)]
        def kv_extra(j):
            for r in range(2):
                x = f'v[{V_A+(r*16+j)*4}:{V_A+(r*16+j)*4+3}]'
                c1_ = '0' if j == 0 else f'v[{D1+4*r}:{D1+4*r+3}]'
                c2_ = '0' if j == 0 else f'v[{D2+4*r}:{D2+4*r+3}]'
                a.e(f'v_mfma_f32_16x16x32_bf16 v[{D1+4*r}:{D1+4*r+3}], v[{ONES}:{ONES+3}], {x}, {c1_}')
                a.e(f'v_mfma_f32_16x16x32_bf16 v[{D2+4*r}:{D2+4*r+3}], {x}, {x}, {c2_}')
        emit_gemm16(a, bar, 'P1KV', slabs['P1KV'], 4, '128',
                    acc_of=lambda r, t: V_ACC + (r * 4 + t) * 4, a_of=lambda r, j: V_A + (r * 16 + j) * 4,
                    a_wait=lambda j: None, a_issue=lambda j, t: None, wr=WR1, S=5, normal=True, extra=kv_extra, a_lds=kv_lds)
        a.label(ljoin)
        stamp()
        a.wait_vm_all()
        SUM = [(V_X, V_X + 1), (V_X + 2, V_X + 3)]
        l1 = a.newlabel('S1'); le = a.newlabel('SE')
        a.e(f's_cmp_eq_u32 s{S_L}, 0')
        a.e(f's_cbranch_scc0 {l1}')
        a.e(f'v_and_b32 v{T0}, 31, v{V_LANE}')
        a.e(f'v_lshlrev_b32 v{T0}, 7, v{T0}')
        a.e(f'v_lshrrev_b32 v{T1}, 5, v{V_LANE}')
        a.e(f'v_lshl_add_u32 v{T0}, v{T1}, 3, v{T0}')
        a.e(f's_lshl_b32 s{S_T0}, s{S_RH}, 12')
        a.e(f's_lshl_b32 s{S_T1}, s{S_CH}, 6')
        a.e(f's_add_u32 s{S_T0}, s{S_T0}, s{S_T1}')
        if AREG: a.e(f's_add_u32 s{S_T0}, s{S_T0}, {hex(AREG)}')
        a.e(f'v_add_u32 v{T0}, s{S_T0}, v{T0}')
        for j in range(4):
            a.e(f'ds_read_b64 v[{V_RES+4*j}:{V_RES+4*j+1}], v{T0} offset:{16*j}')
        a.e('s_waitcnt lgkmcnt(0)')
        for j in range(4):
            b = V_RES + 4 * j
            a.e(f'v_and_b32 v{b+3}, 0xffff0000, v{b+1}')
            a.e(f'v_lshlrev_b32 v{b+2}, 16, v{b+1}')
            a.e(f'v_and_b32 v{b+1}, 0xffff0000, v{b}')
            a.e(f'v_lshlrev_b32 v{b}, 16, v{b}')
        a.e(f'v_and_b32 v{T0}, 3, v{V_LANE}')
        a.e(f'v_bfe_u32 v{T1}, v{V_LANE}, 2, 2')
        a.e(f'v_lshrrev_b32 v{T2}, 4, v{V_LANE}')
        for r in range(2):
            s_, ss_ = SUM[r]
            a.e(f'v_mov_b32 v{s_}, v{D1+4*r}')
            a.e(f'v_mov_b32 v{ss_}, v{D2+4*r}')
            for i in range(1, 4):
                a.e(f'v_cmp_eq_u32 vcc, {i}, v{T0}')
                a.e('s_nop 1')
                a.e(f'v_cndmask_b32 v{ss_}, v{ss_}, v{D2+4*r+i}, vcc')
            a.e(f'v_cmp_eq_u32 vcc, v{T1}, v{T2}')
            a.e('s_nop 1')
            a.e(f'v_cndmask_b32 v{ss_}, 0, v{ss_}, vcc')
        emit_xreduce(a, [SUM[0][1], SUM[1][1]], [T0, T1])
        a.e(f's_branch {le}')
        a.label(l1)
        for r, raw in enumerate([D1, D2]):
            emit_sum_partials(a, raw, 8)
            a.e(f'v_mov_b32 v{SUM[r][0]}, v{raw}')
            a.e(f'v_mov_b32 v{SUM[r][1]}, v{raw+1}')
        emit_xreduce(a, [SUM[0][0], SUM[0][1], SUM[1][0], SUM[1][1]], [WR1, WR1 + 1, WR1 + 2, WR1 + 3])
        a.label(le)
        CSR = 120
        a.e(f'v_and_b32 v{T0}, 15, v{V_LANE}')
        a.e(f'v_lshlrev_b32 v{T0}, 2, v{T0}')
        a.e(f'v_add_u32 v{T0}, {hex(CSC)}, v{T0}')
        a.e(f'v_and_b32 v{T1}, 0x30, v{V_LANE}')
        for t in range(4):
            a.e(f'ds_read_b32 v{CSR+t}, v{T0} offset:{64*t}')
        KEEP = [(V_PQ + 0, V_PQ + 2), (V_PQ + 4, V_PQ + 6)]
        for r in range(2):
            emit_stats_from_sums(a, SUM[r][0], SUM[r][1], KEEP[r][0], KEEP[r][1], WR1)
        AI = [WR1, WR1 + 8]; BI = [WR1 + 4, WR1 + 12]
        for r in range(2):
            for i in range(4):
                a.e(f'ds_bpermute_b32 v{AI[r]+i}, v{T1}, v{KEEP[r][0]} offset:{4*i}')
                a.e(f'ds_bpermute_b32 v{BI[r]+i}, v{T1}, v{KEEP[r][1]} offset:{4*i}')
        a.e('s_waitcnt vmcnt(0) lgkmcnt(0)'); a.vm = []
        CSE = WR1 + 16
        for t in range(4): a.e(f'v_mov_b32 v{CSE+2*t}, v{CSR+t}')
        for r in range(2):
            for t in range(4):
                for i in (0, 2):
                    d = V_ACC + (r * 4 + t) * 4 + i
                    a.e(pk('mul', d, vp(d), vp(AI[r] + i)))
            for t in range(4):
                for i in (0, 2):
                    d = V_ACC + (r * 4 + t) * 4 + i
                    a.e(pk('fma', d, vp(BI[r] + i), vp(CSE + 2 * t), vp(d), mods=' op_sel_hi:[1,0,1]'))
        regs = [V_ACC + (r * 4 + t) * 4 + i for r in range(2) for t in range(2) for i in range(4)]
        emit_phi(a, regs, WR1)
        for t in range(4):
            b0 = V_ACC + t * 4; b1 = V_ACC + (4 + t) * 4
            a.e(f'v_cvt_pk_bf16_f32 v{b0}, v{b0}, v{b0+1}')
            a.e(f'v_cvt_pk_bf16_f32 v{b0+1}, v{b0+2}, v{b0+3}')
            a.e(f'v_cvt_pk_bf16_f32 v{b0+2}, v{b1}, v{b1+1}')
            a.e(f'v_cvt_pk_bf16_f32 v{b0+3}, v{b1+2}, v{b1+3}')
        a.e('s_nop 1')
        KVD = V_ACC + 16
        for h in range(2):
            a.e(f'v_mfma_f32_16x16x32_bf16 v[{KVD+4*h}:{KVD+4*h+3}], v[{V_ACC+4*h}:{V_ACC+4*h+3}], v[{V_ACC+8+4*h}:{V_ACC+8+4*h+3}], 0')
            a.e(f'v_mfma_f32_16x16x32_bf16 v[{KVD+8+4*h}:{KVD+8+4*h+3}], v[{V_ACC+4*h}:{V_ACC+4*h+3}], v[{ONES}:{ONES+3}], 0')
        a.e(f's_lshl_b32 s{S_T0}, s{S_W}, 11')
        a.e(f's_add_u32 s{S_T0}, s{S_T0}, {hex(SCR)}')
        a.e(f'v_lshlrev_b32 v{T0}, 4, v{V_LANE}')
        a.e(f'v_add_u32 v{T0}, s{S_T0}, v{T0}')
        a.e(f's_lshl_b32 s{S_T0}, s{S_W}, 7')
        a.e(f's_add_u32 s{S_T0}, s{S_T0}, {hex(SCR + 8192)}')
        a.e(f'v_add_u32 v{T2}, s{S_T0}, v{T1}')
        a.e('s_nop 4')
        a.e(f'ds_write_b128 v{T0}, v[{KVD}:{KVD+3}]')
        a.e(f'ds_write_b128 v{T0}, v[{KVD+4}:{KVD+7}] offset:1024')
        set_exec(a, 0x00010001)
        a.e(f'ds_write_b128 v{T2}, v[{KVD+8}:{KVD+11}]')
        a.e(f'ds_write_b128 v{T2}, v[{KVD+12}:{KVD+15}] offset:64')
        a.e('s_mov_b64 exec, -1')
        a.e('s_waitcnt lgkmcnt(0)')
        bar(('X', 'X1'))
        sk = a.newlabel('KVST')
        a.e(f's_cmp_lt_u32 s{S_W}, 2')
        a.e(f's_cbranch_scc0 {sk}')
        if opt.kv_atomic:
            a.e(f's_lshl_b32 s{S_T0}, s{S_W}, 10')
            a.e(f's_add_u32 s{S_T0}, s{S_T0}, {hex(SCR)}')
            a.e(f'v_lshlrev_b32 v{T0}, 2, v{V_LANE}')
            a.e(f'v_add_u32 v{T2}, s{S_T0}, v{T0}')
            a.e(f's_lshl_b32 s{S_T0}, s{S_W}, 6')
            a.e(f's_add_u32 s{S_T0}, s{S_T0}, {hex(SCR + 8192)}')
            a.e(f'v_add_u32 v{V_X}, s{S_T0}, v{T0}')
            KB = V_ACC
            for ww in range(4):
                for i in range(4):
                    a.e(f'ds_read_b32 v{KB+4*ww+i}, v{T2} offset:{ww*2048+256*i}')
                if ww == 2: a.e('s_waitcnt lgkmcnt(4)')
            for ww in range(4):
                a.e(f'ds_read_b32 v{KB+16+ww}, v{V_X} offset:{ww*128}')
            a.e(f's_mul_i32 s{S_T0}, s{S_CB2}, {KVREC}')
            a.e(f's_mul_i32 s{S_T1}, s{S_L}, {16*KVREC}')
            a.e(f's_add_u32 s{S_T0}, s{S_T0}, s{S_T1}')
            a.e(f's_add_u32 s{S_T0}, s{S_T0}, {hex(KVA_OFF)}')
            a.e(f's_lshl_b32 s{S_T1}, s{S_W}, 10')
            a.e(f's_add_u32 s{S_T1}, s{S_T1}, s{S_T0}')
            a.e(f's_lshl_b32 s{S_T2}, s{S_W}, 6')
            a.e(f's_add_u32 s{S_T2}, s{S_T2}, s{S_T0}')
            a.e(f's_add_u32 s{S_T2}, s{S_T2}, 2048')
            a.e('s_waitcnt lgkmcnt(0)')
            for i in (0, 2):
                a.e(pk('add', KB + i, vp(KB + i), vp(KB + 4 + i)))
                a.e(pk('add', KB + 8 + i, vp(KB + 8 + i), vp(KB + 12 + i)))
                a.e(pk('add', KB + i, vp(KB + i), vp(KB + 8 + i)))
            a.e(pk('add', KB + 16, vp(KB + 16), vp(KB + 18)))
            a.e(f'v_add_f32 v{KB+16}, v{KB+16}, v{KB+17}')
            for i in range(4):
                a.e(f'buffer_atomic_add_f32 v{KB+i}, v{T0}, {WS}, s{S_T1} offen offset:{256*i}')
            a.e('s_mov_b64 exec, 0xffff')
            a.e(f'buffer_atomic_add_f32 v{KB+16}, v{T0}, {WS}, s{S_T2} offen')
            a.e('s_mov_b64 exec, -1')
        else:
            a.e(f's_lshl_b32 s{S_T0}, s{S_W}, 10')
            a.e(f's_add_u32 s{S_T0}, s{S_T0}, {hex(SCR)}')
            a.e(f'v_lshlrev_b32 v{T0}, 4, v{V_LANE}')
            a.e(f'v_add_u32 v{T2}, s{S_T0}, v{T0}')
            a.e(f's_lshl_b32 s{S_T0}, s{S_W}, 6')
            a.e(f's_add_u32 s{S_T0}, s{S_T0}, {hex(SCR + 8192)}')
            a.e(f'v_add_u32 v{V_X}, s{S_T0}, v{T1}')
            KB = V_ACC
            for ww in range(4):
                a.e(f'ds_read_b128 v[{KB+4*ww}:{KB+4*ww+3}], v{T2} offset:{ww*2048}')
                a.e(f'ds_read_b128 v[{KB+16+4*ww}:{KB+16+4*ww+3}], v{V_X} offset:{ww*128}')
            a.e(f's_lshl_b32 s{S_T0}, s{S_CB2}, 4')
            a.e(f's_lshl_b32 s{S_T1}, s{S_G}, 1')
            a.e(f's_add_u32 s{S_T0}, s{S_T0}, s{S_T1}')
            a.e(f's_add_u32 s{S_T0}, s{S_T0}, s{S_RB2}')
            a.e(f's_mul_i32 s{S_T0}, s{S_T0}, {KVREC}')
            a.e(f's_add_u32 s{S_T0}, s{S_T0}, s{S_LOFF}')
            a.e(f's_add_u32 s{S_T0}, s{S_T0}, {hex(KVP_OFF)}')
            a.e(f's_lshl_b32 s{S_T1}, s{S_W}, 10')
            a.e(f's_add_u32 s{S_T1}, s{S_T1}, s{S_T0}')
            a.e(f's_lshl_b32 s{S_T2}, s{S_W}, 6')
            a.e(f's_add_u32 s{S_T2}, s{S_T2}, s{S_T0}')
            a.e(f's_add_u32 s{S_T2}, s{S_T2}, 2048')
            a.e('s_waitcnt lgkmcnt(0)')
            for base in (KB, KB + 16):
                for i in range(0, 4, 2):
                    a.e(pk('add', base + i, vp(base + i), vp(base + 4 + i)))
                    a.e(pk('add', base + 8 + i, vp(base + 8 + i), vp(base + 12 + i)))
                    a.e(pk('add', base + i, vp(base + i), vp(base + 8 + i)))
            a.e(f'buffer_store_dwordx4 v[{KB}:{KB+3}], v{T0}, {WS}, s{S_T1} offen sc1')
            set_exec(a, 0x00010001)
            a.e(f'buffer_store_dwordx4 v[{KB+16}:{KB+19}], v{T1}, {WS}, s{S_T2} offen sc1')
            a.e('s_mov_b64 exec, -1')
        a.e(f's_lshl_b32 s{S_T0}, s{S_L}, 11')
        a.e(f's_lshl_b32 s{S_T1}, s{S_CB2}, 7')
        a.e(f's_add_u32 s{S_T0}, s{S_T0}, s{S_T1}')
        a.e(f's_lshl_b32 s{S_T1}, s{S_W}, 6')
        a.e(f's_add_u32 s{S_T0}, s{S_T0}, s{S_T1}')
        a.e(f's_lshl_b32 s{S_T1}, s{S_G}, 3')
        a.e(f's_add_u32 s{S_T0}, s{S_T0}, s{S_T1}')
        a.e(f's_lshl_b32 s{S_T1}, s{S_RB2}, 2')
        a.e(f's_add_u32 s{S_T0}, s{S_T0}, s{S_T1}')
        a.e(f's_add_u32 s{S_T0}, s{S_T0}, {hex(KVF_OFF)}')
        a.e(f'v_mov_b32 v{V_X+4}, s{S_T0}')
        a.label(sk)
        a.vm = []
        stamp()
        if done('P1KV'): return True

        a.c('=== P1Q')
        QCS = V_ACC + 16
        a.e(f'v_and_b32 v{T1}, 0x30, v{V_LANE}')
        a.e(f'v_add_u32 v{T1}, {hex(CSC + 256)}, v{T1}')
        a.e(f'ds_read_b128 v[{QCS}:{QCS+3}], v{T1}')
        a.e(f'ds_read_b128 v[{QCS+4}:{QCS+7}], v{T1} offset:64')
        a.e('s_waitcnt lgkmcnt(0)')
        QAB = [(V_ACC + 24, V_ACC + 26), (V_ACC + 28, V_ACC + 30)]
        for r in range(2):
            a.e(f'v_mov_b32 v{QAB[r][0]}, v{KEEP[r][0]}')
            a.e(f'v_mov_b32 v{QAB[r][1]}, v{KEEP[r][1]}')
        def q_issue(j, t):
            if j == opt.kvflag_at and t == 1:
                fk = a.newlabel('KVFL')
                a.e(f's_cmp_lt_u32 s{S_W}, 2')
                a.e(f's_cbranch_scc0 {fk}')
                thr_value(a, S_THR, 1, xcc=True)
                a.e(f'v_mov_b32 v{V_X+5}, s{S_THR}')
                a.e('s_waitcnt vmcnt(0)')
                a.e('s_mov_b64 exec, 1')
                a.e(f'buffer_store_dword v{V_X+5}, v{V_X+4}, {WS}, 0 offen sc1')
                a.e('s_mov_b64 exec, -1')
                a.label(fk)
        emit_gemm16(a, bar, 'P1Q', slabs['P1Q'], 2, '64',
                    acc_of=lambda r, t: V_ACC + (r * 2 + t) * 4, a_of=lambda r, j: V_A + (r * 16 + j) * 4,
                    a_wait=lambda j: None, a_issue=q_issue, wr=96, S=8)
        for r in range(2):
            for t in range(2):
                emit_lnfold(a, V_ACC + (r * 2 + t) * 4, QCS + 4 * t, QAB[r][0], QAB[r][1], 4)
        emit_phi(a, [V_ACC + i for i in range(16)], 96)
        for r in range(2):
            for h in range(2):
                emit_pack(a, V_PQ + (r * 2 + h) * 2, V_ACC + (r * 2 + h) * 4, 4)
        stamp()
        sk = a.newlabel('MODE')
        a.e(f's_cmp_eq_u32 s{S_L}, 0')
        a.e(f's_cbranch_scc0 {sk}')
        a.e(f'v_and_b32 v{T1}, 31, v{V_LANE}')
        a.e(f'v_lshlrev_b32 v{T1}, 2, v{T1}')
        a.e(f's_lshl_b32 s{S_T0}, s{S_G}, 7')
        a.e(f's_add_u32 s{S_T0}, s{S_T0}, {hex(XID_OFF)}')
        emit_poll(a, T1, 0, soff=f's{S_T0}', opt=opt)
        a.e(f'v_and_b32 v{T2}, 7, v{T2}')
        a.e(f'v_cmp_eq_u32 vcc, s{S_XCC}, v{T2}')
        a.e('s_nop 1')
        a.e('s_cmp_eq_u64 vcc, -1')
        a.e(f's_cselect_b32 s{S_MODE}, 0, 1')
        if opt.force_safe: a.e(f's_mov_b32 s{S_MODE}, 1')
        a.label(sk)
        a.e(f's_lshl_b32 s{S_T0}, s{S_L}, 11')
        emit_poll(a, V_FKV, 1, soff=f's{S_T0}', opt=opt)
        stamp()
        RB = V_A + 64
        if opt.kv_atomic:
            a.e(f's_mul_i32 s{S_T0}, s{S_CB2}, {KVREC}')
            a.e(f's_mul_i32 s{S_T1}, s{S_L}, {16*KVREC}')
            a.e(f's_add_u32 s{S_T0}, s{S_T0}, s{S_T1}')
            a.e(f's_add_u32 s{S_T0}, s{S_T0}, {hex(KVA_OFF)}')
            a.e(f'v_lshlrev_b32 v{T0}, 4, v{V_LANE}')
            a.e(f'v_and_b32 v{T1}, 0x30, v{V_LANE}')
            a.vmem(f'buffer_load_dwordx4 v[{RB}:{RB+3}], v{T0}, {WS}, s{S_T0} offen sc1', 'kp')
            a.vmem(f'buffer_load_dwordx4 v[{RB+4}:{RB+7}], v{T0}, {WS}, s{S_T0} offen offset:1024 sc1', 'kp')
            a.vmem(f'buffer_load_dwordx4 v[{RB+8}:{RB+11}], v{T1}, {WS}, s{S_T0} offen offset:2048 sc1', 'kp')
            a.vmem(f'buffer_load_dwordx4 v[{RB+12}:{RB+15}], v{T1}, {WS}, s{S_T0} offen offset:2112 sc1', 'kp')
            a.wait_vm_all()
        else:
            a.e(f's_lshl_b32 s{S_T0}, s{S_CB2}, 4')
            a.e(f's_lshl_b32 s{S_T1}, s{S_W}, 2')
            a.e(f's_add_u32 s{S_T0}, s{S_T0}, s{S_T1}')
            a.e(f's_mul_i32 s{S_T0}, s{S_T0}, {KVREC}')
            a.e(f's_add_u32 s{S_T0}, s{S_T0}, s{S_LOFF}')
            a.e(f's_add_u32 s{S_T0}, s{S_T0}, {hex(KVP_OFF)}')
            a.e(f'v_lshlrev_b32 v{T0}, 4, v{V_LANE}')
            a.e(f'v_and_b32 v{T1}, 0x30, v{V_LANE}')
            PB = V_A
            for s4 in range(4):
                b = PB + 16 * s4
                a.vmem(f'buffer_load_dwordx4 v[{b}:{b+3}], v{T0}, {WS}, s{S_T0} offen sc1', 'kp')
                a.vmem(f'buffer_load_dwordx4 v[{b+4}:{b+7}], v{T0}, {WS}, s{S_T0} offen offset:1024 sc1', 'kp')
                a.vmem(f'buffer_load_dwordx4 v[{b+8}:{b+11}], v{T1}, {WS}, s{S_T0} offen offset:2048 sc1', 'kp')
                a.vmem(f'buffer_load_dwordx4 v[{b+12}:{b+15}], v{T1}, {WS}, s{S_T0} offen offset:2112 sc1', 'kp')
                if s4 < 3: a.e(f's_add_u32 s{S_T0}, s{S_T0}, {KVREC}')
            a.e(f's_lshl_b32 s{S_T0}, s{S_W}, 11')
            a.e(f's_add_u32 s{S_T0}, s{S_T0}, {hex(SCR)}')
            a.e(f'v_add_u32 v{T0}, s{S_T0}, v{T0}')
            a.e(f's_lshl_b32 s{S_T0}, s{S_W}, 7')
            a.e(f's_add_u32 s{S_T0}, s{S_T0}, {hex(SCR + 8192)}')
            a.e(f'v_add_u32 v{T2}, s{S_T0}, v{T1}')
            a.wait_vm_all()
            for i in range(0, 16, 2):
                a.e(pk('add', PB + i, vp(PB + i), vp(PB + 16 + i)))
                a.e(pk('add', PB + 32 + i, vp(PB + 32 + i), vp(PB + 48 + i)))
            for i in range(0, 16, 2):
                a.e(pk('add', PB + i, vp(PB + i), vp(PB + 32 + i)))
            a.e(f'ds_write_b128 v{T0}, v[{PB}:{PB+3}]')
            a.e(f'ds_write_b128 v{T0}, v[{PB+4}:{PB+7}] offset:1024')
            set_exec(a, 0x00010001)
            a.e(f'ds_write_b128 v{T2}, v[{PB+8}:{PB+11}]')
            a.e(f'ds_write_b128 v{T2}, v[{PB+12}:{PB+15}] offset:64')
            a.e('s_mov_b64 exec, -1')
            a.e(f'v_lshlrev_b32 v{T0}, 4, v{V_LANE}')
            a.e(f'v_add_u32 v{T0}, {hex(SCR)}, v{T0}')
            a.e(f'v_add_u32 v{T2}, {hex(SCR + 8192)}, v{T1}')
            a.e('s_waitcnt lgkmcnt(0)')
            bar(('X', 'X2'))
            for ww in range(4):
                b = RB + 16 * ww
                a.e(f'ds_read_b128 v[{b}:{b+3}], v{T0} offset:{ww*2048}')
                a.e(f'ds_read_b128 v[{b+4}:{b+7}], v{T0} offset:{ww*2048+1024}')
                a.e(f'ds_read_b128 v[{b+8}:{b+11}], v{T2} offset:{ww*128}')
                a.e(f'ds_read_b128 v[{b+12}:{b+15}], v{T2} offset:{ww*128+64}')
                if ww == 2: a.e('s_waitcnt lgkmcnt(8)')
            a.e('s_waitcnt lgkmcnt(0)')
            for i in range(0, 16, 2):
                a.e(pk('add', RB + i, vp(RB + i), vp(RB + 16 + i)))
                a.e(pk('add', RB + 32 + i, vp(RB + 32 + i), vp(RB + 48 + i)))
            for i in range(0, 16, 2):
                a.e(pk('add', RB + i, vp(RB + i), vp(RB + 32 + i)))
        OPB = V_ACC + 16
        emit_pack(a, OPB, RB, 16)
        a.e('s_nop 1')
        NUM = V_A; DEN = V_A + 16
        for r in range(2):
            for h in range(2):
                pq = V_PQ + (r * 2 + h) * 2
                n_ = NUM + (r * 2 + h) * 4; d_ = DEN + (r * 2 + h) * 4
                a.e(f'v_mfma_f32_16x16x16_bf16 v[{n_}:{n_+3}], v[{OPB+2*h}:{OPB+2*h+1}], v[{pq}:{pq+1}], 0')
                a.e(f'v_mfma_f32_16x16x16_bf16 v[{d_}:{d_+3}], v[{OPB+4+2*h}:{OPB+4+2*h+1}], v[{pq}:{pq+1}], 0')
        a.e(f's_lshl_b32 s{S_T0}, s{S_CB2}, 10')
        a.e(f's_add_u32 s{S_T0}, s{S_T0}, s{S_GH}')
        a.e(f's_add_u32 s{S_T1}, s{S_T0}, 0x4000')
        a.e('s_nop 4')
        for k in range(4): a.e(f'v_add_f32 v{DEN+4*k}, s{S_EPS6}, v{DEN+4*k}')
        for k in range(4): a.e(f'v_rcp_f32 v{DEN+4*k}, v{DEN+4*k}')
        a.e('s_nop 0')
        for k in range(4):
            for i in range(4): a.e(f'v_mul_f32 v{NUM+4*k+i}, v{NUM+4*k+i}, v{DEN+4*k}')
        OPK = V_A + 32
        emit_pack(a, OPK, NUM, 16)
        emit_mode_stores(a, [f'buffer_store_dwordx4 v[{OPK}:{OPK+3}], v{V_AB}, {WS}, s{S_T0} offen',
                             f'buffer_store_dwordx4 v[{OPK+4}:{OPK+7}], v{V_AB}, {WS}, s{S_T1} offen'], cold=True)
        emit_signal(a, ep(1))
        stamp()
        if done('P1Q'): return True

        ACC = V_ACC; WR = 80; TMP = V_A
        def small_gemm(phase, tail=None):
            a.fstamp(phase)
            emit_gemm32(a, bar, phase, slabs[phase], ACC, WR, tail=tail)
        def tile_store(pkb, base, gh=False, cold=False):
            soff(S_T0, base, gh=gh)
            emit_mode_stores(a, [f'buffer_store_dwordx4 v[{pkb}:{pkb+3}], v{V_TST}, {WS}, s{S_T0} offen',
                                 f'buffer_store_dwordx4 v[{pkb+4}:{pkb+7}], v{V_TST}, {WS}, s{S_T0} offen offset:512'], cold=cold)

        a.c('=== P3')
        stamp()
        small_gemm('P3')
        stamp()
        for i in range(0, 16, 2): a.e(pk('add', V_RES + i, vp(V_RES + i), vp(ACC + i)))
        emit_pack32(a, TMP, V_RES)
        tile_store(TMP, A1_OFF, cold=True)
        soff(S_T1, ST_OFF)
        emit_stats_partial32(a, V_RES, TMP + 8, f's{S_T1}', cold=True)
        emit_signal(a, ep(2))
        stamp()
        if done('P3'): return True

        a.c('=== P4')
        CS4 = TMP + 16; RAW = TMP + 32
        a.e(f'v_lshrrev_b32 v{T1}, 5, v{V_LANE}')
        a.e(f'v_lshlrev_b32 v{T1}, 4, v{T1}')
        a.e(f's_lshl_b32 s{S_T1}, s{S_CH}, 7')
        a.e(f's_add_u32 s{S_T1}, s{S_T1}, {hex(CSC + 384)}')
        a.e(f'v_add_u32 v{T1}, s{S_T1}, v{T1}')
        for j in range(4):
            a.e(f'ds_read_b128 v[{CS4+4*j}:{CS4+4*j+3}], v{T1} offset:{32*j}')
        a.e('s_waitcnt lgkmcnt(0)')
        stamp()
        def p4_tail():
            soff(S_T0, ST_OFF)
            for k in range(4):
                a.vmem(f'buffer_load_dwordx4 v[{RAW+4*k}:{RAW+4*k+3}], v{V_STS}, {WS}, s{S_T0} offen offset:{512*k} sc1', 'st')
        small_gemm('P4', tail=p4_tail)
        stamp()
        a.wait_vm_all()
        emit_sum_partials(a, RAW, 16)
        emit_xreduce(a, [RAW, RAW + 1], [RAW + 2, RAW + 3], over16=False)
        emit_stats_from_sums(a, RAW, RAW + 1, RAW + 4, RAW + 6, RAW + 8, double=True, keep=(V_MEAN, V_RS))
        emit_lnfold(a, ACC, CS4, RAW + 4, RAW + 6, 16)
        emit_gelu(a, ACC, 16, TMP + 48, V_PQ)
        emit_pack32(a, TMP, ACC)
        tile_store(TMP, A0_OFF, gh=True)
        gl = a.newlabel('GH'); gu = a.newlabel('GH'); gd = a.newlabel('GH')
        a.e(f's_cmp_eq_u32 s{S_RB}, 3')
        a.e(f's_cbranch_scc0 {gu}')
        a.e(f's_cmp_eq_u32 s{S_RH}, 1')
        a.e(f's_cbranch_scc0 {gd}')
        a.e(f's_bitcmp1_b32 s{S_CB}, 1')
        a.e(f's_cbranch_scc1 {gd}')
        a.e(f's_cmp_eq_u32 s{S_G}, 7')
        a.e(f's_cbranch_scc1 {gd}')
        a.e(f's_add_u32 s{S_T1}, s{S_G}, 1')
        a.e(f's_mul_i32 s{S_T2}, s{S_T1}, {18*16384}')
        a.e(f's_lshl_b32 s{S_T3}, s{S_T1}, 8')
        set_exec(a, 0xc0000000)
        a.e(f's_branch {gl}')
        a.label(gu)
        a.e(f's_cmp_eq_u32 s{S_RB}, 0')
        a.e(f's_cbranch_scc0 {gd}')
        a.e(f's_cmp_eq_u32 s{S_RH}, 0')
        a.e(f's_cbranch_scc0 {gd}')
        a.e(f's_bitcmp1_b32 s{S_CB}, 1')
        a.e(f's_cbranch_scc0 {gd}')
        a.e(f's_cmp_eq_u32 s{S_G}, 0')
        a.e(f's_cbranch_scc1 {gd}')
        a.e(f's_sub_u32 s{S_T1}, s{S_G}, 1')
        a.e(f's_mul_i32 s{S_T2}, s{S_T1}, {18*16384}')
        a.e(f's_add_u32 s{S_T2}, s{S_T2}, {17*16384}')
        a.e(f's_lshl_b32 s{S_T3}, s{S_T1}, 8')
        a.e(f's_add_u32 s{S_T3}, s{S_T3}, 128')
        set_exec(a, 0x00000003)
        a.label(gl)
        a.e(f's_lshl_b32 s{S_T0}, s{S_CB}, 1')
        a.e(f's_add_u32 s{S_T0}, s{S_T0}, s{S_CH}')
        a.e(f's_lshl_b32 s{S_T0}, s{S_T0}, 10')
        a.e(f's_add_u32 s{S_T2}, s{S_T2}, s{S_T0}')
        a.e(f'v_and_b32 v{T0}, 0x3fff, v{V_TST}')
        a.e(f'v_and_b32 v{T0}, 0x3ff, v{T0}')
        a.e(f'buffer_store_dwordx4 v[{TMP}:{TMP+3}], v{T0}, {WS}, s{S_T2} offen sc1')
        a.e(f'buffer_store_dwordx4 v[{TMP+4}:{TMP+7}], v{T0}, {WS}, s{S_T2} offen offset:512 sc1')
        a.e('s_mov_b64 exec, -1')
        a.e(f's_and_b32 s{S_T0}, s{S_CB}, 1')
        a.e(f's_lshr_b32 s{S_T1}, s{S_CB}, 2')
        a.e(f's_lshl_b32 s{S_T1}, s{S_T1}, 1')
        a.e(f's_add_u32 s{S_T0}, s{S_T0}, s{S_T1}')
        a.e(f's_lshl_b32 s{S_T0}, s{S_T0}, 1')
        a.e(f's_add_u32 s{S_T0}, s{S_T0}, s{S_CH}')
        a.e(f's_lshl_b32 s{S_T0}, s{S_T0}, 2')
        a.e(f's_add_u32 s{S_T3}, s{S_T3}, s{S_T0}')
        a.e(f's_lshl_b32 s{S_T0}, s{S_L}, 11')
        a.e(f's_add_u32 s{S_T3}, s{S_T3}, s{S_T0}')
        a.e(f's_add_u32 s{S_T3}, s{S_T3}, {hex(HF_OFF)}')
        thr_value(a, S_THR, ep(3), xcc=True)
        a.e(f'v_mov_b32 v{T0}, s{S_T3}')
        a.e(f'v_mov_b32 v{T1}, s{S_THR}')
        a.e('s_waitcnt vmcnt(0)')
        a.e('s_mov_b64 exec, 1')
        a.e(f'buffer_store_dword v{T1}, v{T0}, {WS}, 0 offen sc1')
        a.e('s_mov_b64 exec, -1')
        a.label(gd)
        emit_signal(a, ep(3))
        stamp()
        if done('P4'): return True

        a.c('=== P5')
        stamp()
        small_gemm('P5')
        stamp()
        a.e(f'v_mul_f32 v{TMP+10}, v{V_MEAN}, v{V_RS}')
        a.e(f'v_sub_f32 v{TMP+10}, 0, v{TMP+10}')
        a.e(f'v_mov_b32 v{TMP+8}, v{V_RS}')
        for i in range(0, 16, 2):
            a.e(pk('fma', ACC + i, vp(V_RES + i), vp(TMP + 8), vp(ACC + i), mods=' op_sel_hi:[1,0,1]'))
        for i in range(0, 16, 2):
            a.e(pk('add', ACC + i, vp(ACC + i), vp(TMP + 10), mods=' op_sel_hi:[1,0]'))
        emit_pack32(a, TMP, ACC)
        tile_store(TMP, A1_OFF)
        soff(S_T1, ST_OFF)
        emit_stats_partial32(a, ACC, TMP + 12, f's{S_T1}')
        for i in range(0, 16, 2): a.e(pk('add', V_RES + i, vp(V_RES + i), vp(ACC + i)))
        emit_signal(a, ep(4))
        stamp()
        if done('P5'): return True

        a.c('=== P6')
        CS6 = V_ACC; ACC6 = 192; WR6 = 96
        a.e(f'v_and_b32 v{T1}, 0x30, v{V_LANE}')
        a.e(f'v_add_u32 v{T1}, {hex(CSC + 640)}, v{T1}')
        for t in range(7):
            a.e(f'ds_read_b128 v[{CS6+4*t}:{CS6+4*t+3}], v{T1} offset:{64*t}')
        a.e('s_waitcnt lgkmcnt(0)')
        emit_poll(a, V_FSB, ep(4), opt=opt)
        stamp()
        def p6_load(j):
            a.e(f's_lshl_b32 s{S_T0}, s{S_RB2}, {13 if opt.rot else 31}')
            if not opt.rot: a.e(f's_mov_b32 s{S_T0}, 0')
            a.e(f's_xor_b32 s{S_T0}, s{S_T0}, {hex((j // 4) * 4096)}')
            a.e(f's_add_u32 s{S_T0}, s{S_T0}, {hex(A1_OFF)}')
            a.e(f's_add_u32 s{S_T1}, s{S_T0}, 0x4000')
            for r in range(2):
                d = V_A + ((j % 8) * 2 + r) * 4
                a.vmem(f'buffer_load_dwordx4 v[{d}:{d+3}], v{V_AB}, {WS}, s{S_T0 if r == 0 else S_T1} offen offset:{(j%4)*1024} sc1', ('A', j))
        RAW6 = [V_PQ, 248]
        def p6_issue(j, t):
            if t == 1:
                if j + opt.D_p6 < 16:
                    p6_load(j + opt.D_p6)
                elif j + opt.D_p6 == 16:
                    soff(S_T0, ST_OFF)
                    for r in range(2):
                        a.vmem(f'buffer_load_dwordx4 v[{RAW6[r]}:{RAW6[r]+3}], v{V_STB}, {WS}, s{S_T0} offen offset:{256*r} sc1', 'st')
                        a.vmem(f'buffer_load_dwordx4 v[{RAW6[r]+4}:{RAW6[r]+7}], v{V_STB}, {WS}, s{S_T0} offen offset:{256*r+512} sc1', 'st')
        a.fstamp('P6')
        for j in range(opt.D_p6): p6_load(j)
        emit_gemm16(a, bar, 'P6', slabs['P6'], 7, '224',
                    acc_of=lambda r, t: ACC6 + (r * 7 + t) * 4, a_of=lambda r, j: V_A + ((j % 8) * 2 + r) * 4,
                    a_wait=lambda j: a.count_vm(('A', j)), a_issue=p6_issue, wr=WR6, S=8)
        stamp()
        a.wait_vm_all()
        for r in range(2): emit_sum_partials(a, RAW6[r], 8)
        emit_xreduce(a, [RAW6[0], RAW6[0] + 1, RAW6[1], RAW6[1] + 1], [V_X, V_X + 1, V_X + 2, V_X + 3])
        AB6 = [(92, 94), (RAW6[1] + 4, RAW6[1] + 6)]
        for r in range(2):
            emit_stats_from_sums(a, RAW6[r], RAW6[r] + 1, AB6[r][0], AB6[r][1], V_X)
        a.e(f's_lshl_b32 s{S_T0}, s{S_G}, 4')
        a.e(f's_lshl_b32 s{S_T1}, s{S_RB2}, 3')
        a.e(f's_add_u32 s{S_T0}, s{S_T0}, s{S_T1}')
        a.e(f's_lshl_b32 s{S_T1}, s{S_W}, 1')
        a.e(f's_add_u32 s{S_T0}, s{S_T0}, s{S_T1}')
        a.e(f's_mul_i32 s{S_T0}, s{S_T0}, 57344')
        a.e(f's_lshr_b32 s{S_T1}, s{S_CB2}, 1')
        a.e(f's_mul_i32 s{S_T1}, s{S_T1}, 7168')
        a.e(f's_add_u32 s{S_T0}, s{S_T0}, s{S_T1}')
        a.e(f's_add_u32 s{S_T0}, s{S_T0}, {hex(G_OFF)}')
        a.e(f's_and_b32 s{S_T1}, s{S_CB2}, 1')
        a.e(f's_mul_i32 s{S_U0}, s{S_T1}, 3072')
        a.e(f's_add_u32 s{S_U0}, s{S_U0}, s{S_T0}')
        a.e(f's_add_u32 s{S_U1}, s{S_U0}, 57344')
        a.e(f's_lshl_b32 s{S_T1}, s{S_T1}, 3')
        a.e(f's_add_u32 s{S_U2}, s{S_T0}, s{S_T1}')
        a.e(f's_add_u32 s{S_U2}, s{S_U2}, 6144')
        a.e(f's_add_u32 s{S_U3}, s{S_U2}, 57344')
        a.e(f'v_lshlrev_b32 v{V_X+4}, 4, v{V_LANE}')
        for r in range(2):
            emit_lnfold(a, ACC6 + r * 28, CS6, AB6[r][0], AB6[r][1], 28)
            emit_gelu(a, ACC6 + r * 28, 28, V_A, V_PQ + 4)
            pkb = V_A + 16 + r * 16
            emit_pack(a, pkb, ACC6 + r * 28, 28)
            st = [f'buffer_store_dwordx4 v[{pkb+4*j}:{pkb+4*j+3}], v{V_X+4}, {WS}, s{S_U0+r} offen offset:{1024*j}' for j in range(3)]
            st.append(f'buffer_store_dwordx2 v[{pkb+12}:{pkb+13}], v{V_X+4}, {WS}, s{S_U2+r} offen')
            emit_mode_stores(a, st, cold=bool(opt.g_cold))
        emit_signal(a, ep(5))
        stamp()
        if done('P6'): return True

        a.c('=== P7')
        if opt.p7_self:
            VG, VF = V_A + 100, V_A + 101
            a.e(f's_lshl_b32 s{S_T0}, s{S_G}, 4'); a.e(f's_lshl_b32 s{S_T1}, s{S_RB}, 2'); a.e(f's_add_u32 s{S_T0}, s{S_T0}, s{S_T1}')
            a.e(f's_add_u32 s{S_T0}, s{S_T0}, s{S_W}'); a.e(f's_mul_i32 s{S_T0}, s{S_T0}, 57344')
            a.e(f'v_lshlrev_b32 v{VG}, 4, v{V_LANE}'); a.e(f'v_add_u32 v{VG}, s{S_T0}, v{VG}')
            for p_ in range(8):
                a.e(f's_and_b32 s{S_P7+p_}, s{S_RB}, {3 if opt.rot else 0}'); a.e(f's_lshl_b32 s{S_P7+p_}, s{S_P7+p_}, 1')
                a.e(f's_xor_b32 s{S_P7+p_}, s{S_P7+p_}, {p_}'); a.e(f's_mul_i32 s{S_P7+p_}, s{S_P7+p_}, 7168')
            a.e(f's_lshl_b32 s{S_T2}, s{S_G}, 9'); a.e(f's_add_u32 s{S_T2}, s{S_T2}, {hex(LF_OFF)}')
            a.e(f's_and_b32 s{S_T3}, s{S_RB}, 1'); a.e(f's_lshl_b32 s{S_T3}, s{S_T3}, 1'); a.e(f's_add_u32 s{S_T3}, s{S_T3}, s{S_RH}')
            a.e(f's_lshl_b32 s{S_T3}, s{S_T3}, 7'); a.e(f's_add_u32 s{S_T3}, s{S_T3}, s{S_T2}')
            a.e(f's_lshr_b32 s{S_T4}, s{S_RB}, 1'); a.e(f's_lshl_b32 s{S_T4}, s{S_T4}, 6'); a.e(f's_add_u32 s{S_T3}, s{S_T3}, s{S_T4}')
            a.e(f'v_and_b32 v{VF}, 15, v{V_LANE}'); a.e(f'v_lshlrev_b32 v{VF}, 2, v{VF}'); a.e(f'v_add_u32 v{VF}, s{S_T3}, v{VF}')
            a.e(f's_lshl_b32 s{S_T3}, s{S_R}, 2'); a.e(f's_add_u32 s{S_T3}, s{S_T3}, s{S_T2}')
            a.e(f'v_and_b32 v{T1}, 3, v{V_LANE}'); a.e(f'v_lshlrev_b32 v{T1}, 7, v{T1}'); a.e(f'v_add_u32 v{T1}, s{S_T3}, v{T1}')
            a.e(f'v_cmp_lt_u32 vcc, 15, v{V_LANE}'); a.e('s_nop 1'); a.e(f'v_cndmask_b32 v{VF}, v{VF}, v{T1}, vcc')
            emit_poll(a, VF, ep(5), opt=opt)
            stamp()
            def pieces7(c):
                state = {'last': None}
                def mk(k):
                    def f():
                        if k == 0: a.e(f's_add_u32 m0, s{S_W4K}, {hex(AREG + (c % 4) * 16384)}')
                        p_, i_ = divmod(4 * c + k, 7)
                        const = G_OFF + (i_ - k) * 1024
                        if state['last'] != (p_, const):
                            a.e(f's_add_u32 s{S_T0}, s{S_P7+p_}, {hex(const & 0xffffffff)}'); state['last'] = (p_, const)
                        a.vmem(f'buffer_load_dwordx4 v{VG}, {WS}, s{S_T0} offen offset:{k*1024} sc1 lds', ('A', c))
                    return f
                return [mk(k) for k in range(4)]
            emit_gemm32(a, bar, 'P7', slabs['P7'], ACC, WR, a_pieces=pieces7)
        else:
            stamp()
            small_gemm('P7')
        stamp()
        for i in range(0, 16, 2): a.e(pk('add', V_RES + i, vp(V_RES + i), vp(ACC + i)))
        emit_pack32(a, TMP, V_RES)
        return False

    stopped = run_layer()
    if not stopped:
        fin = a.newlabel('FIN'); TMP = V_A
        a.e(f's_cmp_eq_u32 s{S_L}, 1')
        a.e(f's_cbranch_scc1 {fin}')
        a.e(f's_mov_b32 s{S_T0}, {hex(A2_OFF)}')
        emit_mode_stores(a, [f'buffer_store_dwordx4 v[{TMP}:{TMP+3}], v{V_TST}, {WS}, s{S_T0} offen',
                             f'buffer_store_dwordx4 v[{TMP+4}:{TMP+7}], v{V_TST}, {WS}, s{S_T0} offen offset:512'], cold=True)
        a.e(f's_mov_b32 s{S_T1}, {hex(ST_OFF)}')
        emit_stats_partial32(a, V_RES, TMP + 8, f's{S_T1}')
        a.e(f's_add_u32 s{S_EP}, s{S_EP}, 6')
        emit_signal(a, f's{S_EP}')
        if opt.timing:
            dump([tmreg(i) for i in range(tm[0])])
        a.e(f's_mov_b32 s{S_L}, 1')
        a.e(f's_mov_b32 s{S_LOFF}, {hex(KVP_L)}')
        a.e(f's_mov_b32 s{S_COLD}, s{S_MODE}')
        for i in range(3): a.e(f's_mov_b32 s{S_PA+i}, s{S_WS+i}')
        a.e(f's_mov_b32 s{S_PA+3}, 0x20000')
        a.e(f'v_mov_b32 v{V_P1}, v{V_AB}')
        for c in range(4):
            a.e(f's_xor_b32 s{S_RK+c}, s{S_ROTK}, {c}')
            a.e(f's_lshl_b32 s{S_RK+c}, s{S_RK+c}, 12')
            a.e(f's_add_u32 s{S_RK+c}, s{S_RK+c}, {hex(A2_OFF)}')
        a.e(f's_mov_b32 s{S_ASTR}, 1024')
        a.e(f's_branch {LOOP}')
        a.label(fin)
        emit_pack(a, TMP, V_RES, 16)
        OS = f's[{S_OUT}:{S_OUT+3}]'
        for j in range(4):
            a.e(f'buffer_store_dwordx2 v[{TMP+2*j}:{TMP+2*j+1}], v{V_XRM}, {OS}, 0 offen offset:{16*j}')
    a.label('L_END_COMPUTE')
    nn = a.newlabel('NON')
    a.e(f's_or_b32 s{S_T0}, s2, s{S_W}')
    a.e(f's_cmp_eq_u32 s{S_T0}, 0')
    a.e(f's_cbranch_scc0 {nn}')
    a.e(f's_add_u32 s{S_T0}, s{S_V}, 1')
    a.e(f'v_mov_b32 v{V_T0}, s{S_T0}')
    a.e(f'v_mov_b32 v{V_T1}, {hex(NONCE_OFF)}')
    a.e('s_mov_b64 exec, 1')
    a.e(f'buffer_store_dword v{V_T0}, v{V_T1}, {WS}, 0 offen')
    a.e('s_mov_b64 exec, -1')
    a.label(nn)
    stamp()
    if opt.timing: dump([tmreg(i) for i in range(tm[0])] + ([85] if False else []))
    if opt.fine: dump([freg(i) for i in range(fs[0])])
    if opt.wall:
        a.e('s_waitcnt vmcnt(0)')
        a.e('s_memrealtime s[82:83]'); a.e('s_memtime s[80:81]'); a.e('s_waitcnt lgkmcnt(0)')
        dump([84, 82, 85, 80])
    a.e('s_waitcnt vmcnt(0)')
    a.e('s_endpgm')
    return evq


def gen_loader(a, opt, events):
    VN, VKV, VQ, VW3, VKVn, VQn = 8, 12, 16, 20, 28, 32
    VT0, VT1, VT2, VT3 = 1, 2, 3, 4
    a.c('--- loader setup')
    def srd(s, p, size):
        a.e(f's_mov_b32 s{s}, s{p}'); a.e(f's_mov_b32 s{s+1}, s{p+1}')
        a.e(f's_mov_b32 s{s+2}, {hex(size)}'); a.e(f's_mov_b32 s{s+3}, 0x20000')
    srd(S_WQKV, S_PTR + 2, 512 * 1536 * 2)
    srd(S_WO, S_PTR + 4, 512 * 512 * 2)
    srd(S_W1, S_PTR + 8, 512 * 512 * 2)
    srd(S_W2, S_PTR + 10, 512 * 512 * 2)
    srd(S_W3, S_PTR + 12, 512 * 1792 * 2)
    srd(S_W4, S_PTR + 14, 1792 * 512 * 2)
    CBS, CBK, CB6, CB7 = 64, 68, 72, 76
    a.e(f's_lshl_b32 s{S_T1}, s{S_RB2}, 1')
    a.e(f's_add_u32 s{S_T1}, s{S_T1}, s{S_CB2}')
    a.e(f's_and_b32 s{S_T1}, s{S_T1}, {3 if opt.rot else 0}')
    for c in range(4):
        a.e(f's_xor_b32 s{CBK+c}, s{S_T1}, {c}')
        a.e(f's_mul_i32 s{CBK+c}, s{CBK+c}, {128*3072}')
    def late_tables():
        rm = 3 if opt.rot else 0
        for c in range(4):
            a.e(f's_and_b32 s{CBS+c}, s{S_RB}, {rm}')
            a.e(f's_xor_b32 s{CBS+c}, s{CBS+c}, {c}')
            a.e(f's_lshl_b32 s{CBS+c}, s{CBS+c}, 17')
            a.e(f's_lshl_b32 s{CB6+c}, s{S_RB2}, 1')
            a.e(f's_and_b32 s{CB6+c}, s{CB6+c}, {rm}')
            a.e(f's_xor_b32 s{CB6+c}, s{CB6+c}, {c}')
            a.e(f's_mul_i32 s{CB6+c}, s{CB6+c}, {128*3584}')
        for p_ in range(8):
            a.e(f's_and_b32 s{CB7+p_}, s{S_RB}, {rm}')
            a.e(f's_lshl_b32 s{CB7+p_}, s{CB7+p_}, 1')
            a.e(f's_xor_b32 s{CB7+p_}, s{CB7+p_}, {p_}')
            a.e(f's_mul_i32 s{CB7+p_}, s{CB7+p_}, {224*1024}')

    def cs_issue():
        a.c('cs pieces')
        c1 = a.newlabel('CS'); c2 = a.newlabel('CS'); c3 = a.newlabel('CS')
        a.e(f's_min_u32 s{92}, s2, 239')
        a.e(f's_lshr_b32 s{93}, s{92}, 2')
        a.e(f's_and_b32 s{94}, s{92}, 3')
        a.e(f's_cmp_lt_u32 s{93}, 24')
        a.e(f's_cbranch_scc0 {c1}')
        for i in range(3): a.e(f's_mov_b32 s{S_CSRD+i}, s{S_WQKV+i}')
        a.e(f's_mov_b32 s{S_T0}, 3072')
        a.e(f's_lshl_b32 s{S_T1}, s{93}, 7')
        a.e(f's_branch {c3}')
        a.label(c1)
        a.e(f's_cmp_lt_u32 s{93}, 32')
        a.e(f's_cbranch_scc0 {c2}')
        for i in range(3): a.e(f's_mov_b32 s{S_CSRD+i}, s{S_W1+i}')
        a.e(f's_mov_b32 s{S_T0}, 1024')
        a.e(f's_sub_u32 s{S_T1}, s{93}, 24')
        a.e(f's_lshl_b32 s{S_T1}, s{S_T1}, 7')
        a.e(f's_branch {c3}')
        a.label(c2)
        for i in range(3): a.e(f's_mov_b32 s{S_CSRD+i}, s{S_W3+i}')
        a.e(f's_mov_b32 s{S_T0}, 3584')
        a.e(f's_sub_u32 s{S_T1}, s{93}, 32')
        a.e(f's_lshl_b32 s{S_T1}, s{S_T1}, 7')
        a.label(c3)
        a.e(f's_mov_b32 s{S_CSRD+3}, 0x20000')
        a.e(f'v_lshrrev_b32 v{VT1}, 3, v{V_LANE}')
        a.e(f'v_mul_lo_u32 v{VT1}, v{VT1}, s{S_T0}')
        a.e(f'v_and_b32 v{VT2}, 7, v{V_LANE}')
        a.e(f'v_lshl_add_u32 v{VT1}, v{VT2}, 4, v{VT1}')
        a.e(f'v_add_u32 v{VT1}, s{S_T1}, v{VT1}')
        a.e(f's_lshl_b32 s{S_T1}, s{94}, 7')
        a.e(f's_mul_i32 s{S_T1}, s{S_T1}, s{S_T0}')
        a.e(f's_lshl_b32 s{S_T0}, s{S_T0}, 3')
        a.e(f's_mov_b32 m0, {hex(CSL)}')
        for p in range(16):
            a.e('s_nop 0')
            a.vmem(f'buffer_load_dwordx4 v{VT1}, s[{S_CSRD}:{S_CSRD+3}], s{S_T1} offen lds', 'cs')
            if p < 15:
                a.e('s_add_u32 m0, m0, 1024')
                a.e(f's_add_u32 s{S_T1}, s{S_T1}, s{S_T0}')
    dg = [0]
    def dstamp():
        if opt.startdiag:
            a.e(f's_memtime s[{84+2*dg[0]}:{85+2*dg[0]}]') if False else None
            a.e('s_memtime s[98:99]'); a.e('s_waitcnt lgkmcnt(0)')
            a.e('s_sub_u32 s98, s98, s100')
            a.e(f'v_mov_b32 v{100+dg[0]}, s98'); dg[0] += 1
    dstamp()
    cs_issue()
    a.e(f'v_lshrrev_b32 v{VT0}, 3, v{V_LANE}')
    a.e(f'v_bfe_u32 v{VT1}, v{VT0}, 1, 2')
    a.e(f'v_lshlrev_b32 v{VT1}, 1, v{VT1}')
    a.e(f'v_and_b32 v{VT2}, 7, v{V_LANE}')
    a.e(f'v_xor_b32 v{VT2}, v{VT2}, v{VT1}')
    a.e(f'v_and_b32 v{VT1}, 3, v{VT2}')
    a.e(f'v_lshlrev_b32 v{VT3}, 4, v{VT1}')
    a.e(f'v_lshrrev_b32 v{VT1}, 2, v{VT2}')
    a.e(f'v_lshl_add_u32 v{VT3}, v{VT1}, 10, v{VT3}')
    a.e(f's_lshl_b32 s{S_T0}, s{S_CB2}, 6')
    a.e(f's_add_u32 s{S_T1}, s{S_T0}, 1024')
    a.e(f'v_add_u32 v{VT3}, s{S_T1}, v{VT3}')
    a.e(f'v_lshrrev_b32 v{VT1}, 2, v{VT0}')
    a.e(f'v_lshlrev_b32 v{VT1}, 3, v{VT1}')
    a.e(f'v_and_b32 v{VT2}, 3, v{VT0}')
    a.e(f'v_add_u32 v{VT1}, v{VT1}, v{VT2}')
    a.e(f'v_mul_u32_u24 v{VT1}, 3072, v{VT1}')
    a.e(f'v_add_u32 v{VT1}, v{VT1}, v{VT3}')
    for p in range(4):
        off = (16 * (p & 1) + 4 * (p >> 1)) * 3072 - p * 1024
        a.e(f'v_add_u32 v{VKVn+p}, {hex(off & 0xffffffff)}, v{VT1}')
    a.e(f'v_mul_u32_u24 v{VKV}, 3072, v{VT0}')
    a.e(f'v_add_u32 v{VKV}, v{VKV}, v{VT3}')
    for j in range(1, 4): a.e(f'v_add_u32 v{VKV+j}, {hex(j*(8*3072-1024))}, v{VKV}')

    layers = sorted(set(e[0] for e in events))
    slabs = {L: build_slabs(L) for L in layers}
    stream = []
    needed = set((e[0], e[2], e[3]) for e in events if e[1] == 'B')
    for L in layers:
        for p in PHASES:
            for ci, ch in enumerate(slabs[L][p]):
                if (L, p, ci) in needed: stream += ch
    released = set()
    log = []; cur = ['start']
    opt._log = log
    st = {'issued': 0}
    win = [opt.window0]
    def overlaps_unreleased(s, idx):
        for k in range(idx):
            o = stream[k]
            if (o.layer, o.phase, o.chunk) in released: continue
            if o.addr < s.addr + s.size and s.addr < o.addr + o.size: return True
        return False
    def emit_slab(s):
        kind = s.kind; tag = (s.layer, s.phase, s.chunk)
        if kind in opt.dbg_skip.split(','): return
        if kind in ('WO', 'W1', 'W2', 'W4'):
            srd_ = {'WO': S_WO, 'W1': S_W1, 'W2': S_W2, 'W4': S_W4}[kind]; vb = VN; rs = 1024
        elif kind == 'KV': srd_, vb, rs = S_WQKV, (VKVn if s.layer == 0 else VKV), 3072
        elif kind == 'Q': srd_, vb, rs = S_WQKV, (VQn if s.layer == 0 else VQ), 3072
        else: srd_, vb, rs = S_W3, VW3, 3584
        R4 = f's[{srd_}:{srd_+3}]'
        def grp(addr, srow, ps, v0):
            a.e(f's_mov_b32 m0, {hex(addr)}')
            if kind == 'W4':
                p_, rr_ = divmod(srow, 224); tb_ = CB7 + p_
            else:
                c_, rr_ = divmod(srow, 128); tb_ = {'KV': CBK, 'Q': CBK, 'W3': CB6}.get(kind, CBS) + c_
            a.e(f's_add_u32 s{S_T0}, s{tb_}, {hex(rr_*rs)}')
            for k, p in enumerate(ps):
                a.vmem(f'buffer_load_dwordx4 v{vb+p}, {R4}, s{S_T0} offen offset:{k*1024} {"nt " if opt.w_nt else ""}lds', tag)
        if kind == 'W3':
            grp(s.addr, s.srow, [0, 1, 2, 3], 0); grp(s.addr + 4096, s.srow, [4, 5, 6], 0)
        elif kind == 'W4' and s.srow2 != s.srow + 16:
            grp(s.addr, s.srow, [0, 1], 0); grp(s.addr + 2048, s.srow2, [0, 1], 0)
        else:
            grp(s.addr, s.srow, [0, 1, 2, 3], 0)
        if len(a.vm) > win[0]:
            a.e(f's_waitcnt vmcnt({win[0]})')
            a.vm = a.vm[len(a.vm) - win[0]:]
    plan = {}
    opt._plan = plan
    free = [56, 56]
    def need_slots(s): return (4, 3) if s.kind == 'W3' else (2, 2)
    def park_policy(key):
        if not opt.park: return
        name = key.split('.', 1)[1] if key[0] in '01' else None
        if name is None: return
        L = int(key[0])
        if name in opt.park_w3:
            cand = [s for s in stream[st['issued']:] if s.layer == L and s.phase == 'P6' and s.chunk >= 1]; cap = opt.park_w3[name]
        elif name in opt.park_caps:
            cand = [s for s in stream[st['issued']:] if s.layer == L and s.phase == 'P7' and s.chunk >= 6]; cap = opt.park_caps[name]
        else:
            return
        for s in cand:
            if getattr(s, 'parked', False): continue
            n0, n1 = need_slots(s)
            if cap <= 0 or free[0] < n0 or free[1] < n1: break
            s.parked = True; free[0] -= n0; free[1] -= n1; cap -= 1
            plan.setdefault(key, []).append(('park', s))
    def issue(cap, must=None):
        n = 0; nu = 0
        while st['issued'] < len(stream):
            s = stream[st['issued']]
            forced = must is not None and any((o.layer, o.phase, o.chunk) == must for o in stream[st['issued']:])
            pk_ = getattr(s, 'parked', False)
            if not forced and not pk_ and n + s.npieces > cap: break
            if not forced and pk_ and (nu >= opt.unpark_max or must is not None): break
            if overlaps_unreleased(s, st['issued']):
                assert not forced, ('deadlock', must, s.layer, s.phase, s.chunk)
                break
            if pk_:
                plan.setdefault(cur[0], []).append(('unpark', s)); nu += 1
                n0, n1 = need_slots(s); free[0] += n0; free[1] += n1
                st['issued'] += 1
                log.append((cur[0], s.layer, s.phase + '*', s.chunk, forced))
                continue
            emit_slab(s); st['issued'] += 1; n += s.npieces
            log.append((cur[0], s.layer, s.phase, s.chunk, forced))
    issue(64)
    dstamp()
    def late_setup():
        a.e('s_waitcnt lgkmcnt(0)')
        a.e(f's_mul_i32 s{S_B}, s{S_V}, 0x9e3779b1')
        a.e(f's_add_u32 s{S_B}, s{S_B}, 0x7f4a7c15')
        a.e(f's_and_b32 s{S_B}, s{S_B}, 0xffffff00')
        a.e(f's_lshl_b32 s{S_T0}, s{S_G}, 7')
        a.e(f's_lshl_b32 s{S_T1}, s{S_R}, 2')
        a.e(f's_add_u32 s{S_T0}, s{S_T0}, s{S_T1}')
        a.e(f's_add_u32 s{S_T0}, s{S_T0}, {hex(XID_OFF)}')
        a.e(f'v_mov_b32 v{VT1}, s{S_T0}')
        a.e(f's_add_u32 s{S_T1}, s{S_B}, s{S_XCC}')
        a.e(f'v_mov_b32 v{VT0}, s{S_T1}')
        a.e('s_mov_b64 exec, 1')
        a.vmem(f'buffer_store_dword v{VT0}, v{VT1}, {WS}, 0 offen sc1', 'xid')
        a.e('s_mov_b64 exec, -1')
        late_tables()
        a.c('W lane offsets')
        a.e(f'v_lshrrev_b32 v{VT0}, 3, v{V_LANE}')
        a.e(f'v_bfe_u32 v{VT1}, v{VT0}, 1, 1')
        a.e(f'v_lshlrev_b32 v{VT1}, 2, v{VT1}')
        a.e(f'v_and_b32 v{VT2}, 7, v{V_LANE}')
        a.e(f'v_xor_b32 v{VT2}, v{VT2}, v{VT1}')
        a.e(f'v_lshlrev_b32 v{VN}, 10, v{VT0}')
        a.e(f'v_lshl_add_u32 v{VN}, v{VT2}, 4, v{VN}')
        a.e(f's_lshl_b32 s{S_T0}, s{S_CB}, 7')
        a.e(f'v_add_u32 v{VN}, s{S_T0}, v{VN}')
        for j in range(1, 4): a.e(f'v_add_u32 v{VN+j}, {hex(j*(8192-1024))}, v{VN}')
        a.e(f'v_lshrrev_b32 v{VT0}, 2, v{V_LANE}')
        a.e(f'v_bfe_u32 v{VT1}, v{VT0}, 2, 1')
        a.e(f'v_lshlrev_b32 v{VT1}, 1, v{VT1}')
        a.e(f'v_and_b32 v{VT2}, 3, v{V_LANE}')
        a.e(f'v_xor_b32 v{VT2}, v{VT2}, v{VT1}')
        a.e(f'v_lshlrev_b32 v{VT3}, 4, v{VT2}')
        a.e(f's_lshl_b32 s{S_T0}, s{S_CB2}, 6')
        a.e(f'v_add_u32 v{VT3}, s{S_T0}, v{VT3}')
        a.e(f'v_mul_u32_u24 v{VQ}, 3072, v{VT0}')
        a.e(f'v_add_u32 v{VQ}, v{VQ}, v{VT3}')
        for j in range(1, 4): a.e(f'v_add_u32 v{VQ+j}, {hex(j*(16*3072-1024))}, v{VQ}')
        a.e(f'v_lshrrev_b32 v{VT1}, 2, v{VT0}')
        a.e(f'v_lshlrev_b32 v{VT1}, 3, v{VT1}')
        a.e(f'v_and_b32 v{VT2}, 3, v{VT0}')
        a.e(f'v_add_u32 v{VT1}, v{VT1}, v{VT2}')
        a.e(f'v_mul_u32_u24 v{VT1}, 3072, v{VT1}')
        a.e(f'v_add_u32 v{VT1}, v{VT1}, v{VT3}')
        for p in range(4):
            off = (4 * (p & 1) + 32 * (p >> 1)) * 3072 - p * 1024
            a.e(f'v_add_u32 v{VQn+p}, {hex(off & 0xffffffff)}, v{VT1}')
        a.e(f's_mul_i32 s{S_T0}, s{S_CB2}, 224')
        M14 = (1 << 20) // 14 + 1
        a.e(f's_mov_b32 s{S_T1}, {hex(M14)}')
        for p in range(7):
            a.e(f'v_add_u32 v{VT0}, {64*p}, v{V_LANE}')
            a.e(f'v_mul_lo_u32 v{VT1}, v{VT0}, s{S_T1}')
            a.e(f'v_lshrrev_b32 v{VT1}, 20, v{VT1}')
            a.e(f'v_mul_u32_u24 v{VT2}, 14, v{VT1}')
            a.e(f'v_sub_u32 v{VT2}, v{VT0}, v{VT2}')
            a.e(f'v_mul_u32_u24 v{VW3+p}, 3584, v{VT1}')
            a.e(f'v_lshl_add_u32 v{VW3+p}, v{VT2}, 4, v{VW3+p}')
            a.e(f'v_add_u32 v{VW3+p}, s{S_T0}, v{VW3+p}')
            if p % 4: a.e(f'v_subrev_u32 v{VW3+p}, {(p%4)*1024}, v{VW3+p}')
        for u in range(448): assert (u * M14) >> 20 == u // 14

    def cs_part1():
        a.wait_vm('cs')
        a.e(f'v_bfe_u32 v{VT0}, v{V_LANE}, 2, 2')
        a.e(f'v_lshrrev_b32 v{VT1}, 4, v{V_LANE}')
        a.e(f'v_lshl_add_u32 v{VT0}, v{VT1}, 2, v{VT0}')
        a.e(f'v_lshlrev_b32 v{VT0}, 7, v{VT0}')
        a.e(f'v_and_b32 v{VT2}, 3, v{V_LANE}')
        a.e(f'v_lshl_add_u32 v{VT0}, v{VT2}, 3, v{VT0}')
        a.e(f'v_add_u32 v{VT0}, {hex(CSL)}, v{VT0}')
        for i in range(4): a.e(f'v_mov_b32 v{40+i}, 0x3f803f80')
        for j in range(4):
            for t in range(4):
                a.e(f'ds_read_b64_tr_b16 v[{64+4*t}:{65+4*t}], v{VT0} offset:{j*4096+t*32}')
                a.e(f'ds_read_b64_tr_b16 v[{66+4*t}:{67+4*t}], v{VT0} offset:{j*4096+t*32+2048}')
            a.e('s_waitcnt lgkmcnt(0)')
            for t in range(4):
                c = '0' if j == 0 else f'v[{44+4*t}:{47+4*t}]'
                a.e(f'v_mfma_f32_16x16x32_bf16 v[{44+4*t}:{47+4*t}], v[{64+4*t}:{67+4*t}], v[40:43], {c}')
        a.e(f's_mul_i32 s{S_T0}, s{94}, 15360')
        a.e(f's_lshl_b32 s{S_T1}, s{93}, 8')
        a.e(f's_add_u32 s{S_T0}, s{S_T0}, s{S_T1}')
        a.e(f's_add_u32 s{S_T0}, s{S_T0}, {hex(CSP_OFF)}')
        a.e(f'v_lshlrev_b32 v{VT1}, 4, v{VT1}')
        a.e('s_nop 7')
        set_exec(a, 0x00010001)
        for t in range(4):
            a.vmem(f'buffer_store_dwordx4 v[{44+4*t}:{47+4*t}], v{VT1}, {WS}, s{S_T0} offen offset:{64*t} sc1', 'csst')
        a.e('s_mov_b64 exec, -1')
        if opt.kv_atomic:
            zl = a.newlabel('ZK')
            a.e(f's_lshr_b32 s{S_T0}, s2, 3')
            a.e(f's_mul_i32 s{S_T0}, s{S_T0}, {KVREC}')
            a.e(f's_add_u32 s{S_T0}, s{S_T0}, {hex(KVA_OFF)}')
            a.e(f's_and_b32 s{S_T1}, s2, 0x87')
            a.e(f's_cmp_eq_u32 s{S_T1}, 0')
            a.e(f's_cbranch_scc0 {zl}')
            for i in range(4): a.e(f'v_mov_b32 v{60+i}, 0')
            a.e(f'v_lshlrev_b32 v{VT0}, 4, v{V_LANE}')
            for l_ in range(2):
                a.vmem(f'buffer_store_dwordx4 v[60:63], v{VT0}, {WS}, s{S_T0} offen sc1', 'csst')
                a.vmem(f'buffer_store_dwordx4 v[60:63], v{VT0}, {WS}, s{S_T0} offen offset:1024 sc1', 'csst')
                a.e('s_mov_b64 exec, 0xff')
                a.vmem(f'buffer_store_dwordx4 v[60:63], v{VT0}, {WS}, s{S_T0} offen offset:2048 sc1', 'csst')
                a.e('s_mov_b64 exec, -1')
                if l_ == 0: a.e(f's_add_u32 s{S_T0}, s{S_T0}, {16*KVREC}')
            a.label(zl)
    def cs_part2():
        a.e(f's_lshl_b32 s{S_T0}, s2, 7')
        a.e(f's_add_u32 s{S_T0}, s{S_T0}, {hex(CSF_OFF)}')
        a.e(f'v_mov_b32 v{VT1}, s{S_T0}')
        a.e(f's_add_u32 s{S_T1}, s{S_B}, 8')
        a.e(f'v_mov_b32 v{VT0}, s{S_T1}')
        a.wait_vm('csst')
        a.e('s_mov_b64 exec, 1')
        a.vmem(f'buffer_store_dword v{VT0}, v{VT1}, {WS}, 0 offen sc1', 'csf')
        a.e('s_mov_b64 exec, -1')
    def cs_fill():
        L_ = a.newlabel('CPOLL'); D_ = a.newlabel('CPOLLD')
        a.e(f'v_min_u32 v{VT0}, 27, v{V_LANE}')
        a.e(f'v_lshrrev_b32 v{VT2}, 2, v{VT0}')
        a.e(f's_lshr_b32 s{S_T0}, s{S_CB2}, 1')
        a.e(f'v_lshlrev_b32 v{VT1}, 3, v{VT2}')
        a.e(f'v_add_u32 v{VT1}, s{S_T0}, v{VT1}')
        a.e(f's_add_u32 s{S_T0}, s{S_CB}, 24')
        a.e(f'v_mov_b32 v{VT3}, s{S_T0}')
        a.e(f'v_cmp_eq_u32 vcc, 3, v{VT2}')
        a.e('s_nop 1')
        a.e(f'v_cndmask_b32 v{VT1}, v{VT1}, v{VT3}, vcc')
        a.e(f's_mul_i32 s{S_T0}, s{S_CB2}, 112')
        a.e(f's_lshr_b32 s{S_T0}, s{S_T0}, 6')
        a.e(f's_add_u32 s{S_T0}, s{S_T0}, {32 - 4}')
        a.e(f'v_add_u32 v{VT3}, s{S_T0}, v{VT2}')
        a.e(f'v_min_u32 v{VT3}, 59, v{VT3}')
        a.e(f'v_cmp_lt_u32 vcc, 3, v{VT2}')
        a.e('s_nop 1')
        a.e(f'v_cndmask_b32 v{VT1}, v{VT1}, v{VT3}, vcc')
        a.e(f'v_and_b32 v{VT0}, 3, v{VT0}')
        a.e(f'v_lshl_add_u32 v{VT1}, v{VT1}, 2, v{VT0}')
        if opt.kv_atomic:
            a.e(f's_lshl_b32 s{S_T0}, s{S_CB2}, 3')
            a.e(f'v_mov_b32 v{VT3}, s{S_T0}')
            a.e(f'v_cmp_lt_u32 vcc, 27, v{V_LANE}')
            a.e('s_nop 1')
            a.e(f'v_cndmask_b32 v{VT1}, v{VT1}, v{VT3}, vcc')
        a.e(f'v_lshlrev_b32 v{VT1}, 7, v{VT1}')
        a.e(f's_mov_b32 s{S_T0}, {hex(CSF_OFF)}')
        a.e(f's_add_u32 s{S_T1}, s{S_B}, 8')
        a.e(f's_mov_b32 s{95}, {opt.spin}')
        a.label(L_)
        a.e(f'buffer_load_dword v40, v{VT1}, {WS}, s{S_T0} offen sc1')
        a.e('s_waitcnt vmcnt(0)')
        a.e(f'v_subrev_u32 v40, s{S_T1}, v40')
        a.e('v_cmp_gt_u32 vcc, 0x80, v40')
        a.e(f's_sub_u32 s{95}, s{95}, 1')
        a.e(f's_cbranch_scc1 {D_}')
        a.e('s_cmp_eq_u64 vcc, -1')
        a.e(f's_cbranch_scc0 {L_}')
        a.label(D_)
        a.vm = []
        def colof(dst, gofs):
            a.e(f'v_add_u32 v{VT0}, {gofs}, v{V_LANE}')
            a.e(f'v_lshlrev_b32 v{VT2}, 2, v{VT0}')
            a.e(f's_lshl_b32 s{S_T0}, s{S_CB2}, 5')
            a.e(f's_mul_i32 s{S_T1}, s{S_CB2}, 112')
            a.e(f's_add_u32 s{S_T1}, s{S_T1}, {2048 - 160}')
            a.e(f'v_add_u32 v{dst}, s{S_T1}, v{VT2}')
            for lim, addc, useb in [(40, 1536 - 96, 'cb'), (24, -64, 'hp'), (16, 1024 - 32, 'hp'), (8, 512, 'hp')]:
                if useb == 'cb':
                    a.e(f's_lshl_b32 s{S_T1}, s{S_CB}, 6')
                    a.e(f's_add_u32 s{S_T1}, s{S_T1}, {addc}')
                else:
                    a.e(f's_add_u32 s{S_T1}, s{S_T0}, {hex(addc & 0xffffffff)}')
                a.e(f'v_add_u32 v{VT3}, s{S_T1}, v{VT2}')
                a.e(f'v_cmp_gt_u32 vcc, {lim}, v{VT0}')
                a.e('s_nop 1')
                a.e(f'v_cndmask_b32 v{dst}, v{dst}, v{VT3}, vcc')
            a.e(f'v_lshlrev_b32 v{dst}, 2, v{dst}')
        colof(36, 0); colof(37, 64)
        a.e(f's_mov_b32 s{S_T0}, {hex(CSP_OFF)}')
        for kq in range(4):
            a.e(f'buffer_load_dwordx4 v[{40+4*kq}:{43+4*kq}], v36, {WS}, s{S_T0} offen sc1')
            a.e('s_mov_b64 exec, 0xf')
            a.e(f'buffer_load_dwordx4 v[{56+4*kq}:{59+4*kq}], v37, {WS}, s{S_T0} offen sc1')
            a.e('s_mov_b64 exec, -1')
            if kq < 3: a.e(f's_add_u32 s{S_T0}, s{S_T0}, 15360')
        a.e(f'v_lshlrev_b32 v{VT0}, 4, v{V_LANE}')
        a.e(f'v_add_u32 v{VT0}, {hex(CSC)}, v{VT0}')
        a.e('s_waitcnt vmcnt(0)')
        for b in (40, 56):
            for i in (0, 2):
                a.e(pk('add', b + i, vp(b + i), vp(b + 4 + i)))
                a.e(pk('add', b + 8 + i, vp(b + 8 + i), vp(b + 12 + i)))
                a.e(pk('add', b + i, vp(b + i), vp(b + 8 + i)))
        a.e(f'ds_write_b128 v{VT0}, v[40:43]')
        a.e('s_mov_b64 exec, 0xf')
        a.e(f'ds_write_b128 v{VT0}, v[56:59] offset:1024')
        a.e('s_mov_b64 exec, -1')
        a.e('s_waitcnt lgkmcnt(0)')

    cs_part1()
    chunks_of = {}
    for s in stream: chunks_of.setdefault((s.layer, s.phase), set()).add(s.chunk)
    nb = 0
    for ev in events:
        L, kind, p, ci = ev
        if kind == 'B':
            cur[0] = f'pre {L}.{p}.B{ci}'
            issue(0, must=(L, p, ci))
            cur[0] = f'{L}.{p}.B{ci}'
            if nb < 5: dstamp()
            a.wait_vm((L, p, ci))
            if nb < 5: dstamp()
            a.e('s_barrier')
            nb += 1
            if ci >= 2: released.add((L, p, ci - 2))
            if ci == 0:
                for (l2, p2), cs_ in chunks_of.items():
                    if p2 in NOE and (l2, PHASES.index(p2)) < (L, PHASES.index(p)):
                        for c in cs_: released.add((l2, p2, c))
            if nb == 1:
                late_setup()
                cs_part2()
            elif nb == 3:
                cs_fill()
                win[0] = opt.window
            elif nb in (2, 4):
                pass
            else:
                issue(opt.caps.get(f'{p}.B{ci}', opt.caps.get(f'{p}.B*', 0)))
                park_policy(cur[0])
        elif kind == 'E':
            cur[0] = f'{L}.{p}.E'
            a.e('s_barrier')
            for c in chunks_of[(L, p)]: released.add((L, p, c))
            issue(opt.caps.get(f'{p}.E', 0))
            park_policy(cur[0])
        else:
            cur[0] = f'{L}.{p}'
            a.e('s_barrier')
            issue(opt.caps.get(p, 0))
            park_policy(cur[0])
    if opt.startdiag:
        a.e(f's_lshl_b32 s{S_T0}, s2, 8')
        a.e(f's_add_u32 s{S_T0}, s{S_T0}, {hex(TM_OFF + 128)}')
        for i in range(dg[0]):
            a.e(f'v_mov_b32 v99, {4*i}')
            a.e(f'buffer_store_dword v{100+i}, v99, {WS}, s{S_T0} offen')
    a.e('s_waitcnt vmcnt(0)')
    a.e('s_endpgm')


def gen_toucher(a, opt, events):
    a.c('--- A loader / toucher')
    mats = {'WO': (S_PTR + 4, 512 * 512 * 2), 'W1': (S_PTR + 8, 512 * 512 * 2),
            'W2': (S_PTR + 10, 512 * 512 * 2), 'W3': (S_PTR + 12, 512 * 1792 * 2), 'W4': (S_PTR + 14, 1792 * 512 * 2)}
    srds = {}
    for i, (k, (p, size)) in enumerate(mats.items()):
        s = 40 + 4 * i
        a.e(f's_mov_b32 s{s}, s{p}'); a.e(f's_mov_b32 s{s+1}, s{p+1}')
        a.e(f's_mov_b32 s{s+2}, {hex(size)}'); a.e(f's_mov_b32 s{s+3}, 0x20000')
        srds[k] = s
    T0s, T1s, T2s, T3s, T4s, T5s = 33, 34, 35, 36, 37, 38
    THR, SPIN = 60, 61
    RA, P7T = 64, 68
    U0, U1, U2, U3, U4 = 76, 77, 78, 79, 80
    VAS, VAG, VFS, VFB, VFH, VAH = 3, 4, 5, 6, 7, 8
    X0, X1, X2, X3 = 24, 25, 26, 27
    X0W = 31
    e = a.e
    VXK = 40
    e(f'v_lshrrev_b32 v2, 4, v{V_LANE}')
    e(f'v_and_b32 v3, 15, v{V_LANE}')
    for k in range(4):
        e(f'v_add_u32 v{VXK+k}, {4*k}, v2'); e(f'v_xor_b32 v{VXK+k}, v{VXK+k}, v3'); e(f'v_lshlrev_b32 v{VXK+k}, 4, v{VXK+k}')
        e(f'v_lshl_add_u32 v{VXK+k}, v2, 10, v{VXK+k}')
    e(f's_lshl_b32 s33, s{S_G}, 8'); e(f's_lshl_b32 s34, s{S_RB2}, 7'); e('s_add_u32 s33, s33, s34'); e('s_lshl_b32 s82, s33, 10')
    e(f's_lshl_b32 s83, s{S_RB2}, 1'); e(f's_add_u32 s83, s83, s{S_CB2}'); e(f's_and_b32 s83, s83, {3 if opt.rot else 0}')
    e(f's_lshr_b32 s81, s{S_CB2}, 2'); e(f's_lshl_b32 s81, s81, {13 if opt.rot else 31}')
    if not opt.rot: e('s_mov_b32 s81, 0')
    def x_chunk(c):
        e(f's_xor_b32 s33, s83, {c}'); e('s_lshl_b32 s33, s33, 8'); e('s_add_u32 s33, s33, s82')
        e('s_mov_b32 s34, s81'); e('s_mov_b32 s36, 8')
        lp = a.newlabel('XC'); a.label(lp)
        for k in range(4):
            e(f's_add_u32 m0, s34, {hex(AREG + (c & 1) * 32768)}')
            e('s_lshl_b32 s35, s34, 2'); e('s_add_u32 s35, s35, s33')
            e(f'buffer_load_dwordx4 v{VXK + k}, s[{S_X}:{S_X+3}], s35 offen lds')
            e('s_add_u32 s34, s34, 1024')
        e('s_and_b32 s34, s34, 0x7fff')
        e('s_waitcnt vmcnt(52)')
        e('s_sub_u32 s36, s36, 1'); e('s_cmp_lg_u32 s36, 0'); e(f's_cbranch_scc1 {lp}')
        a.vm += [('X', c)] * 32
        a.vm = a.vm[-52:]
    def x_tile():
        e(f'v_lshrrev_b32 v2, 3, v{V_LANE}'); e('v_lshlrev_b32 v2, 10, v2')
        e(f'v_and_b32 v30, 7, v{V_LANE}'); e('v_lshl_add_u32 v2, v30, 4, v2')
        e(f's_lshl_b32 s33, s{S_G}, 8'); e(f's_lshl_b32 s34, s{S_RB}, 6'); e('s_add_u32 s33, s33, s34'); e('s_lshl_b32 s33, s33, 10')
        e(f's_lshl_b32 s34, s{S_CB}, 7'); e('s_add_u32 s33, s33, s34')
        for p_ in range(8):
            e(f's_mov_b32 m0, {hex(AREG + p_ * 1024)}')
            if p_: e('s_add_u32 s33, s33, 8192')
            else: e('s_nop 0')
            a.vmem(f'buffer_load_dwordx4 v2, s[{S_X}:{S_X+3}], s33 offen lds', 'x')
    x_chunk(0); x_chunk(1)
    e(f'v_lshlrev_b32 v1, 7, v{V_LANE}')
    e(f'v_lshlrev_b32 v{X0}, 4, v{V_LANE}')
    e(f'v_lshlrev_b32 v{X0W}, 4, v{V_LANE}')
    e(f's_lshl_b32 s{T0s}, s{S_G}, 4'); e(f's_lshl_b32 s{T1s}, s{S_RB}, 2'); e(f's_add_u32 s{T0s}, s{T0s}, s{T1s}')
    e(f's_lshl_b32 s{T1s}, s{T0s}, 14'); e(f'v_add_u32 v{VAS}, s{T1s}, v{X0}')
    e(f's_mul_i32 s{T1s}, s{T0s}, 57344'); e(f'v_add_u32 v{VAG}, s{T1s}, v{X0}')
    rmask = 3 if opt.rot else 0
    for c in range(4):
        e(f's_and_b32 s{RA+c}, s{S_RB}, {rmask}'); e(f's_xor_b32 s{RA+c}, s{RA+c}, {c}'); e(f's_lshl_b32 s{RA+c}, s{RA+c}, 12')
    for p_ in range(8):
        e(f's_and_b32 s{P7T+p_}, s{S_RB}, {rmask}'); e(f's_lshl_b32 s{P7T+p_}, s{P7T+p_}, 1')
        e(f's_xor_b32 s{P7T+p_}, s{P7T+p_}, {p_}'); e(f's_mul_i32 s{P7T+p_}, s{P7T+p_}, 7168')
    e(f'v_and_b32 v{X1}, 15, v{V_LANE}')
    e(f'v_and_b32 v{X2}, 0x30, v{V_LANE}')
    e(f's_mul_i32 s{T3s}, s{S_G}, 18')
    e(f's_lshl_b32 s{T4s}, s{S_G}, 8')
    for c in range(4):
        e(f's_lshr_b32 s{T5s}, s{RA+c}, 12')
        e(f's_lshr_b32 s{U3}, s{T5s}, 1'); e(f's_add_u32 s{U3}, s{U3}, 1'); e(f's_sub_u32 s{U4}, 0, s{U3}')
        e(f's_bitcmp1_b32 s{T5s}, 0'); e(f's_cselect_b32 s{U3}, s{U3}, s{U4}')
        e(f's_lshl_b32 s{T2s}, s{S_RB}, 6'); e(f's_add_u32 s{T2s}, s{T2s}, s{U3}'); e(f's_add_u32 s{T2s}, s{T2s}, 16')
        for w in range(4):
            r = VAH + 4 * c + w
            e(f's_add_u32 s{T5s}, s{T2s}, {16 * w}')
            e(f'v_add_u32 v{r}, s{T5s}, v{X1}')
            e(f'v_lshrrev_b32 v{X3}, 4, v{r}'); e(f'v_add_u32 v{X3}, s{T3s}, v{X3}'); e(f'v_lshlrev_b32 v{X3}, 14, v{X3}')
            e(f'v_and_b32 v28, 15, v{r}'); e(f'v_add_u32 v28, v{X2}, v28'); e(f'v_lshl_add_u32 v{X3}, v28, 4, v{X3}')
            e(f'v_add_u32 v28, s{T4s}, v{r}'); e('v_subrev_u32 v28, 16, v28')
            e('v_cmp_gt_u32 vcc, 0x800, v28')
            e(f'v_mov_b32 v{r}, 0x80000000'); e('s_nop 0')
            e(f'v_cndmask_b32 v{r}, v{r}, v{X3}, vcc')
    e(f's_lshl_b32 s{T2s}, s{S_G}, 9'); e(f's_add_u32 s{T2s}, s{T2s}, {hex(LF_OFF)}')
    e(f'v_bfe_u32 v{X1}, v{V_LANE}, 3, 2'); e(f'v_lshlrev_b32 v{X1}, 7, v{X1}')
    e(f'v_and_b32 v{X2}, 7, v{V_LANE}'); e(f'v_lshl_add_u32 v{X1}, v{X2}, 2, v{X1}')
    e(f's_lshl_b32 s{T3s}, s{S_RB}, 5'); e(f's_add_u32 s{T3s}, s{T3s}, s{T2s}')
    e(f'v_add_u32 v{VFS}, s{T3s}, v{X1}')
    e(f's_and_b32 s{T3s}, s{S_RB}, 1'); e(f's_lshl_b32 s{T3s}, s{T3s}, 8'); e(f's_add_u32 s{T3s}, s{T3s}, s{T2s}')
    e(f's_lshr_b32 s{T4s}, s{S_RB}, 1'); e(f's_lshl_b32 s{T4s}, s{T4s}, 6'); e(f's_add_u32 s{T3s}, s{T3s}, s{T4s}')
    e(f'v_bfe_u32 v{X2}, v{V_LANE}, 4, 1'); e(f'v_lshlrev_b32 v{X2}, 7, v{X2}')
    e(f'v_and_b32 v{X3}, 15, v{V_LANE}'); e(f'v_lshl_add_u32 v{X2}, v{X3}, 2, v{X2}')
    e(f'v_add_u32 v{VFB}, s{T3s}, v{X2}')
    e(f's_lshl_b32 s{T3s}, s{S_R}, 2'); e(f's_add_u32 s{T3s}, s{T3s}, s{T2s}')
    e(f'v_and_b32 v{X2}, 3, v{V_LANE}'); e(f'v_lshlrev_b32 v{X2}, 7, v{X2}'); e(f'v_add_u32 v{X2}, s{T3s}, v{X2}')
    e(f'v_cmp_lt_u32 vcc, 31, v{V_LANE}'); e('s_nop 1')
    e(f'v_cndmask_b32 v{VFB}, v{VFB}, v{X2}, vcc')
    def build_fh(L):
        la = a.newlabel('FH'); lb = a.newlabel('FH')
        e(f's_lshl_b32 s{T2s}, s{S_G}, 9'); e(f's_add_u32 s{T2s}, s{T2s}, {hex(LF_OFF)}')
        e(f's_lshl_b32 s{T3s}, s{S_RB}, 5'); e(f's_add_u32 s{T3s}, s{T3s}, s{T2s}')
        e(f's_sub_u32 s{U1}, s{T3s}, 32'); e(f's_add_u32 s{U1}, s{U1}, 256'); e(f's_mov_b32 s{U3}, 128')
        e(f's_add_u32 s{U2}, s{T3s}, 32'); e(f's_mov_b32 s{U4}, 128')
        e(f's_lshl_b32 s{T4s}, s{S_G}, 8'); e(f's_add_u32 s{T4s}, s{T4s}, {hex(HF_OFF + L * 2048)}')
        e(f's_cmp_eq_u32 s{S_RB}, 0'); e(f's_cbranch_scc0 {la}')
        e(f's_mov_b32 s{U1}, s{T3s}')
        e(f's_cmp_eq_u32 s{S_G}, 0'); e(f's_cbranch_scc1 {la}')
        e(f's_mov_b32 s{U1}, s{T4s}'); e(f's_mov_b32 s{U3}, 0')
        a.label(la)
        e(f's_cmp_eq_u32 s{S_RB}, 3'); e(f's_cbranch_scc0 {lb}')
        e(f's_mov_b32 s{U2}, s{T3s}')
        e(f's_cmp_eq_u32 s{S_G}, 7'); e(f's_cbranch_scc1 {lb}')
        e(f's_add_u32 s{U2}, s{T4s}, 128'); e(f's_mov_b32 s{U4}, 0')
        a.label(lb)
        e(f'v_bfe_u32 v{X1}, v{V_LANE}, 3, 1'); e(f'v_and_b32 v{X2}, 7, v{V_LANE}'); e(f'v_lshlrev_b32 v{X2}, 2, v{X2}')
        for base_s, mul_s, sel in ((U1, U3, 2), (U2, U4, 3)):
            e(f'v_mul_u32_u24 v{X3}, s{mul_s}, v{X1}'); e(f'v_add_u32 v{X3}, v{X3}, v{X2}'); e(f'v_add_u32 v{X3}, s{base_s}, v{X3}')
            e(f'v_lshrrev_b32 v28, 4, v{V_LANE}'); e(f'v_cmp_eq_u32 vcc, {sel}, v28'); e('s_nop 1')
            e(f'v_cndmask_b32 v{VFH}, v{VFH if sel == 3 else VFS}, v{X3}, vcc')
    e('s_waitcnt lgkmcnt(0)')
    e(f's_mul_i32 s{S_B}, s{S_V}, 0x9e3779b1'); e(f's_add_u32 s{S_B}, s{S_B}, 0x7f4a7c15'); e(f's_and_b32 s{S_B}, s{S_B}, 0xffffff00')

    def poll(v, epoch):
        L_ = a.newlabel('AP'); D_ = a.newlabel('APD')
        e(f's_add_u32 s{THR}, s{S_B}, {8*epoch}'); e(f's_mov_b32 s{SPIN}, {opt.spin}')
        a.label(L_)
        e(f'buffer_load_dword v30, v{v}, {WS}, 0 offen sc1'); e('s_waitcnt vmcnt(0)')
        e(f'v_subrev_u32 v30, s{THR}, v30'); e('v_cmp_gt_u32 vcc, 0x80, v30')
        e(f's_sub_u32 s{SPIN}, s{SPIN}, 1'); e(f's_cbranch_scc1 {D_}')
        e('s_cmp_eq_u64 vcc, -1'); e(f's_cbranch_scc0 {L_}')
        a.label(D_); a.vm = []
    def a_chunk(phase, c):
        for w in range(4):
            e(f's_mov_b32 m0, {hex(AREG + (c % 4) * 16384 + w * 4096)}')
            if phase == 'P7':
                last = None
                for k in range(4):
                    p_, i_ = divmod(4 * c + k, 7)
                    const = G_OFF + w * 57344 + (i_ - k) * 1024
                    if last != (p_, const):
                        e(f's_add_u32 s{T0s}, s{P7T+p_}, {hex(const & 0xffffffff)}'); last = (p_, const)
                    a.vmem(f'buffer_load_dwordx4 v{VAG}, {WS}, s{T0s} offen offset:{k*1024} sc1 lds', ('A', phase, c))
            else:
                if phase == 'P5':
                    va = VAH + 4 * c + w; e(f's_add_u32 s{T0s}, s{RA+c}, {hex(A0_OFF)}' if A0_OFF else f's_mov_b32 s{T0s}, s{RA+c}')
                elif phase == 'P3':
                    va = VAS; e(f's_add_u32 s{T0s}, s{RA+c}, s{U0}'); e(f's_add_u32 s{T0s}, s{T0s}, {hex(A0_OFF + w * 16384)}')
                else:
                    va = VAS; e(f's_add_u32 s{T0s}, s{RA+c}, {hex(A1_OFF + w * 16384)}')
                for k in range(4):
                    a.vmem(f'buffer_load_dwordx4 v{va}, {WS}, s{T0s} offen offset:{k*1024} sc1 lds', ('A', phase, c))
    e(f's_lshl_b32 s{U0}, s{S_G}, 1'); e(f's_add_u32 s{U0}, s{U0}, 1'); e(f's_lshl_b32 s{U0}, s{U0}, 14')

    dummy = [0]
    def wide(srd_s, soff_s):
        d = 64 + 4 * (dummy[0] % 40); dummy[0] += 1
        a.vmem(f'buffer_load_dwordx4 v[{d}:{d+3}], v{X0W}, {srd_s}, s{soff_s} offen {opt.touch_flags}', 'T')
    def mall_touch():
        for k in ['WO', 'W2', 'W4']:
            size = mats[k][1]; per = size // 256
            s = srds[k]
            e(f's_mul_i32 s{T0s}, s2, {per}')
            for i in range(per // 1024):
                if i: e(f's_add_u32 s{T0s}, s{T0s}, 1024')
                wide(f's[{s}:{s+3}]', T0s)
    def g_touch():
        e(f's_mul_i32 s{T0s}, s{S_G}, {16 * 57344}'); e(f's_mul_i32 s{T1s}, s{S_R}, 28672')
        e(f's_add_u32 s{T0s}, s{T0s}, s{T1s}'); e(f's_add_u32 s{T0s}, s{T0s}, {hex(G_OFF)}')
        for i in range(28):
            if i: e(f's_add_u32 s{T0s}, s{T0s}, 1024')
            wide(WS, T0s)
    def key(sx):
        k, p, c = sx.split(',')
        return (0, k, p, None if c == '-' else int(c))
    EPO = {'P3': 1, 'P4': 2, 'P5': 3, 'P7': 5}
    if opt.p7_self: del EPO['P7']
    nxt = 0
    for ev in events:
        L, kind, p, ci = ev
        if kind == 'B' and p in EPO:
            nch = NCH[p]
            if ci == 0:
                if p == 'P5': build_fh(L)
                poll({'P3': VFB, 'P4': VFS, 'P5': VFH, 'P7': VFB}[p], 1 + 6 * L + EPO[p])
                a_chunk(p, 0); a_chunk(p, 1); nxt = 2
            a.wait_vm(('A', p, ci))
            e('s_barrier')
            while nxt < nch and (nxt <= ci + 2 or nxt <= 3) and nxt <= ci + 2 + (1 if ci == 0 and False else 0):
                a_chunk(p, nxt); nxt += 1
        elif L == 0 and kind == 'B' and p == 'P1KV':
            a.wait_vm(('X', ci))
            e('s_barrier')
            if 1 <= ci <= 2: x_chunk(ci + 1)
            if ci == 3: x_tile()
        else:
            if ev == (0, 'E', 'P1KV', None): a.wait_vm('x')
            e('s_barrier')
        if opt.touch and opt.touch_at and ev == key(opt.touch_at): mall_touch()
        if opt.gtouch_at and ev == key(opt.gtouch_at) and not (opt.gtouch_parker and opt.park): g_touch()
    e('s_waitcnt vmcnt(0)')
    e('s_endpgm')


def gen_parker(a, opt, events, h):
    e = a.e
    a.c(f'--- parker {h}')
    plan = opt._plan
    W3S, W4S, CB6, CB7 = 40, 44, 64, 68
    for s_, p_, size in ((W3S, S_PTR + 12, 512 * 1792 * 2), (W4S, S_PTR + 14, 1792 * 512 * 2)):
        e(f's_mov_b32 s{s_}, s{p_}'); e(f's_mov_b32 s{s_+1}, s{p_+1}'); e(f's_mov_b32 s{s_+2}, {hex(size)}'); e(f's_mov_b32 s{s_+3}, 0x20000')
    rm = 3 if opt.rot else 0
    for c in range(4):
        e(f's_lshl_b32 s{CB6+c}, s{S_RB2}, 1'); e(f's_and_b32 s{CB6+c}, s{CB6+c}, {rm}'); e(f's_xor_b32 s{CB6+c}, s{CB6+c}, {c}')
        e(f's_mul_i32 s{CB6+c}, s{CB6+c}, {128*3584}')
    for p_ in range(8):
        e(f's_and_b32 s{CB7+p_}, s{S_RB}, {rm}'); e(f's_lshl_b32 s{CB7+p_}, s{CB7+p_}, 1'); e(f's_xor_b32 s{CB7+p_}, s{CB7+p_}, {p_}')
        e(f's_mul_i32 s{CB7+p_}, s{CB7+p_}, {224*1024}')
    VN, VW, VL, X0, X1, X2 = 2, 4, 8, 11, 12, 13
    e(f'v_lshrrev_b32 v{X0}, 3, v{V_LANE}'); e(f'v_bfe_u32 v{X1}, v{X0}, 1, 1'); e(f'v_lshlrev_b32 v{X1}, 2, v{X1}')
    e(f'v_and_b32 v{X2}, 7, v{V_LANE}'); e(f'v_xor_b32 v{X2}, v{X2}, v{X1}')
    e(f'v_lshlrev_b32 v{VN}, 10, v{X0}'); e(f'v_lshl_add_u32 v{VN}, v{X2}, 4, v{VN}')
    e(f's_lshl_b32 s33, s{S_CB}, 7'); e(f'v_add_u32 v{VN}, s33, v{VN}'); e(f'v_add_u32 v{VN+1}, {hex(8192-1024)}, v{VN}')
    ps = [0, 1, 2, 3] if h == 0 else [4, 5, 6]
    M14 = (1 << 20) // 14 + 1
    e(f's_mul_i32 s33, s{S_CB2}, 224'); e(f's_mov_b32 s34, {hex(M14)}')
    for k, p_ in enumerate(ps):
        e(f'v_add_u32 v{X0}, {64*p_}, v{V_LANE}'); e(f'v_mul_lo_u32 v{X1}, v{X0}, s34'); e(f'v_lshrrev_b32 v{X1}, 20, v{X1}')
        e(f'v_mul_u32_u24 v{X2}, 14, v{X1}'); e(f'v_sub_u32 v{X2}, v{X0}, v{X2}')
        e(f'v_mul_u32_u24 v{VW+k}, 3584, v{X1}'); e(f'v_lshl_add_u32 v{VW+k}, v{X2}, 4, v{VW+k}'); e(f'v_add_u32 v{VW+k}, s33, v{VW+k}')
    e(f'v_lshlrev_b32 v{VL}, 4, v{V_LANE}'); e(f'v_add_u32 v{VL+1}, 0x10000, v{VL}'); e(f'v_add_u32 v{VL+2}, 0x20000, v{VL}')
    def wide(base_expr_emit, n):
        base_expr_emit()
        for i in range(n):
            if i: e('s_add_u32 s33, s33, 1024')
            a.vmem(f'buffer_load_dwordx4 v[{240+4*(i%4)}:{243+4*(i%4)}], v{VL}, {WS}, s33 offen', 'T')
    def touch_a0():
        wide(lambda: (e(f's_mul_i32 s33, s{S_G}, {18*16384}'), e(f's_mul_i32 s34, s{S_R}, 9216'), e('s_add_u32 s33, s33, s34'), e(f's_add_u32 s33, s33, {hex(A0_OFF)}') if A0_OFF else None), 9)
    def touch_lin(off, per_group):
        wide(lambda: (e(f's_mul_i32 s33, s{S_G}, {per_group}'), e(f's_mul_i32 s34, s{S_R}, {per_group // 32}'), e('s_add_u32 s33, s33, s34'), e(f's_add_u32 s33, s33, {hex(off)}')), per_group // 32 // 1024)
    def tkey(sx):
        k, p, c = sx.split(',')
        return (0, k, p, None if c == '-' else int(c))
    slots = list(range(56))
    held = {}
    pending = set()
    def do(actions):
        for act, s_ in actions:
            if act == 'park':
                if s_.kind == 'W3':
                    c_, rr_ = divmod(s_.srow, 128)
                    e(f's_add_u32 s33, s{CB6+c_}, {hex(rr_*3584)}')
                    regs = []
                    for k, p_ in enumerate(ps):
                        sl = slots.pop(0); regs.append((sl, p_))
                        a.vmem(f'buffer_load_dwordx4 v[{16+4*sl}:{19+4*sl}], v{VW+k}, s[{W3S}:{W3S+3}], s33 offen', id(s_))
                else:
                    srow = s_.srow if h == 0 else s_.srow2
                    p_, rr_ = divmod(srow, 224)
                    e(f's_add_u32 s33, s{CB7+p_}, {hex(rr_*1024)}')
                    regs = []
                    for k in range(2):
                        sl = slots.pop(0); regs.append((sl, 2 * h + k))
                        a.vmem(f'buffer_load_dwordx4 v[{16+4*sl}:{19+4*sl}], v{VN+k}, s[{W4S}:{W4S+3}], s33 offen offset:{k*1024}', id(s_))
                held[id(s_)] = regs
            else:
                a.wait_vm(id(s_))
                for sl, p_ in held.pop(id(s_)):
                    ad = s_.addr + p_ * 1024
                    e(f'ds_write_b128 v{VL + (ad >> 16)}, v[{16+4*sl}:{19+4*sl}] offset:{ad & 0xffff}')
                    slots.append(sl)
                pending.add((s_.layer, s_.phase, s_.chunk))
    for ev in events:
        L, kind, p, ci = ev
        if kind == 'B':
            do(plan.get(f'pre {L}.{p}.B{ci}', []))
            if (L, p, ci) in pending:
                e('s_waitcnt lgkmcnt(0)'); pending.clear()
            e('s_barrier')
            acts = plan.get(f'{L}.{p}.B{ci}', [])
        elif kind == 'E':
            e('s_barrier'); acts = plan.get(f'{L}.{p}.E', [])
        else:
            e('s_barrier'); acts = plan.get(f'{L}.{p}', [])
        do([x for x in acts if x[0] == 'unpark'])
        do([x for x in acts if x[0] == 'park'])
        if opt.pretouch and h == 1 and ev == tkey(opt.a2touch_at): touch_lin(A2_OFF, 262144)
        if opt.gtouch_parker and opt.gtouch_at and ev == tkey(opt.gtouch_at):
            wide(lambda: (e(f's_mul_i32 s33, s{S_G}, {16*57344}'), e(f's_mul_i32 s34, s{S_R}, 28672'), e('s_add_u32 s33, s33, s34'),
                          e(f's_add_u32 s33, s33, {hex(G_OFF + h * 14336)}')), 14)
        if opt.pretouch and ev == tkey(opt.a01touch_at):
            if h == 0:
                touch_a0(); touch_lin(ST_OFF, 32768)
            else:
                touch_lin(A1_OFF, 262144)
    e('s_waitcnt vmcnt(0) lgkmcnt(0)')
    e('s_endpgm')


def generate(opt):
    ATOMIC[0] = opt.kv_atomic
    events = build_events(opt.stop)
    a = Asm(); a.opt = opt
    hdr = open(os.path.join(os.path.dirname(os.path.abspath(__file__)), 'header.txt')).read()
    out = [hdr.rstrip('\n')]
    out.append(f'; @launch grid=(256,1,1) block=({64*(8 if opt.park else 6)},1,1) lds={LDS_TOTAL}')
    out += ['.amdgcn_target "amdgcn-amd-amdhsa--gfx950"', '.text', f'.globl {KNAME}', '.p2align 8',
            f'.type {KNAME},@function', f'{KNAME}:']
    a.e('s_cmp_ge_u32 s2, 256')
    a.e('s_cbranch_scc1 L_EXIT')
    if opt.startdiag: a.e('s_memtime s[100:101]')
    if opt.wall:
        a.e('s_memrealtime s[18:19]') if False else None
    a.e(f's_load_dwordx16 s[{S_PTR}:{S_PTR+15}], s[0:1], 0')
    a.e(f's_load_dwordx4 s[{S_PTR+16}:{S_PTR+19}], s[0:1], 64')
    a.e(f's_load_dwordx2 s[{S_PTR+20}:{S_PTR+21}], s[0:1], 80')
    a.e('v_lshrrev_b32 v1, 6, v0')
    a.e('s_nop 0')
    if opt.prefetch_code:
        a.e('s_getpc_b64 s[34:35]')
        a.label('L_PC')
        a.e(f's_sub_u32 s34, s34, (L_PC - {KNAME})')
        a.e('s_subb_u32 s35, s35, 0')
        a.e('s_lshr_b32 s36, s2, 3')
        a.e('s_mul_i32 s36, s36, 2560')
        a.e('v_lshlrev_b32 v2, 7, v0')
        a.e('v_add_u32 v2, s36, v2')
        a.e(f's_mov_b32 s36, (L_CODE_END - {KNAME} - 4)')
        a.e('v_min_u32 v2, s36, v2')
        a.e('v_and_b32 v2, -4, v2')
        a.e('v_cmp_gt_u32 vcc, 20, v0')
        a.e('s_and_saveexec_b64 s[36:37], vcc')
        a.e('s_cbranch_execz L_NOPF')
        a.e('global_load_dword v255, v2, s[34:35]')
        a.label('L_NOPF')
        a.e('s_mov_b64 exec, s[36:37]')
    a.e(f'v_readfirstlane_b32 s{S_W}, v1')
    a.e(f'v_and_b32 v{V_LANE}, 63, v0')
    a.e(f's_getreg_b32 s{S_XCC}, hwreg(HW_REG_XCC_ID)')
    a.e(f's_and_b32 s{S_XCC}, s{S_XCC}, 7')
    a.e(f's_and_b32 s{S_G}, s2, 7')
    a.e(f's_lshr_b32 s{S_R}, s2, 3')
    a.e(f's_lshr_b32 s{S_RB}, s{S_R}, 3')
    a.e(f's_and_b32 s{S_CB}, s{S_R}, 7')
    a.e(f's_lshr_b32 s{S_RB2}, s{S_R}, 4')
    a.e(f's_and_b32 s{S_CB2}, s{S_R}, 15')
    a.e('s_waitcnt lgkmcnt(0)')
    if opt.ws_base:
        a.e(f's_add_u32 s{S_PTR+20}, s{S_PTR+20}, {hex(opt.ws_base)}')
        a.e(f's_addc_u32 s{S_PTR+21}, s{S_PTR+21}, 0')
    a.e(f's_add_u32 s34, s{S_PTR+20}, {hex(NONCE_OFF)}')
    a.e(f's_addc_u32 s35, s{S_PTR+21}, 0')
    a.e(f's_load_dword s{S_V}, s[34:35], 0')
    def srd(s, p, size):
        a.e(f's_mov_b32 s{s}, s{p}'); a.e(f's_mov_b32 s{s+1}, s{p+1}')
        a.e(f's_mov_b32 s{s+2}, {hex(size)}'); a.e(f's_mov_b32 s{s+3}, 0x20000')
    srd(S_WS, S_PTR + 20, WS_USED)
    srd(S_X, S_PTR + 0, 2048 * 512 * 2)
    srd(S_OUT, S_PTR + 16, 2048 * 512 * 2)
    a.e(f's_cmp_lt_u32 s{S_W}, 4')
    a.e('s_cbranch_scc1 L_COMPUTE')
    if opt.park:
        for wv in (6, 7):
            a.e(f's_cmp_eq_u32 s{S_W}, {wv}')
            a.e(f's_cbranch_scc0 L_NOTP{wv}')
            a.e('s_getpc_b64 s[34:35]')
            a.label(f'L_PCP{wv}')
            a.e(f's_add_u32 s34, s34, (L_PARKER{wv} - L_PCP{wv})')
            a.e('s_addc_u32 s35, s35, 0')
            a.e('s_setpc_b64 s[34:35]')
            a.label(f'L_NOTP{wv}')
    a.e(f's_cmp_eq_u32 s{S_W}, 5')
    a.e('s_cbranch_scc0 L_GOLOADER')
    a.e('s_getpc_b64 s[34:35]')
    a.label('L_PC3')
    a.e('s_add_u32 s34, s34, (L_TOUCHER - L_PC3)')
    a.e('s_addc_u32 s35, s35, 0')
    a.e('s_setpc_b64 s[34:35]')
    a.label('L_GOLOADER')
    a.e('s_getpc_b64 s[34:35]')
    a.label('L_PC2')
    a.e('s_add_u32 s34, s34, (L_LOADER - L_PC2)')
    a.e('s_addc_u32 s35, s35, 0')
    a.e('s_setpc_b64 s[34:35]')
    a.label('L_EXIT')
    a.e('s_endpgm')
    a.label('L_COMPUTE')
    a.vm = []
    if opt.stop is not None and opt.stop[0] == 0: cev = events
    else: cev = [e for e in build_events(None) if e[0] == 0]
    rest = gen_compute(a, opt, cev)
    assert not rest, rest
    a.label('L_LOADER')
    a.vm = []
    a.fstamp = lambda p: None
    gen_loader(a, opt, events)
    a.label('L_TOUCHER')
    a.vm = []
    gen_toucher(a, opt, events)
    if opt.park:
        for wv in (6, 7):
            a.label(f'L_PARKER{wv}')
            a.vm = []
            gen_parker(a, opt, events, wv - 6)
    a.label('L_CODE_END')
    out.append(a.text())
    out += ['.section .rodata,"a"', '.p2align 6', f'.amdhsa_kernel {KNAME}',
            '  .amdhsa_next_free_vgpr 256', '  .amdhsa_next_free_sgpr 102', '  .amdhsa_accum_offset 256',
            '  .amdhsa_group_segment_fixed_size 0', '  .amdhsa_kernarg_size 88', '  .amdhsa_user_sgpr_count 2',
            '  .amdhsa_user_sgpr_kernarg_segment_ptr 1', '  .amdhsa_system_sgpr_workgroup_id_x 1', '.end_amdhsa_kernel']
    return '\n'.join(out) + '\n'


if __name__ == '__main__':
    import argparse
    ap = argparse.ArgumentParser()
    ap.add_argument('-o', default='interleave_layers__linear_attn_block__mixer_s_mlp__prompt.s')
    ap.add_argument('--stop', default=None)
    ap.add_argument('--timing', action='store_true')
    ap.add_argument('--safe', action='store_true')
    ap.add_argument('--set', action='append', default=[])
    ap.add_argument('--fine', default=None)
    args = ap.parse_args()
    opt = Opt()
    if args.stop:
        l, p = args.stop.split(','); opt.stop = (int(l), p)
    opt.timing = args.timing; opt.force_safe = args.safe; opt.fine = args.fine
    opt.caps = dict(Opt.caps); opt.park_w3 = dict(Opt.park_w3); opt.park_caps = dict(Opt.park_caps)
    for kv in args.set:
        k, v = kv.split('=')
        if k.startswith('pk3:'): opt.park_w3[k[4:]] = int(v)
        elif k.startswith('pk4:'): opt.park_caps[k[4:]] = int(v)
        elif '.' in k or k in ('X1', 'X2'): opt.caps[k] = int(v)
        else:
            try: setattr(opt, k, int(v))
            except ValueError: setattr(opt, k, v.replace(':', ','))
    open(args.o, 'w').write(generate(opt))
    print('written', args.o)
    if os.environ.get('SCHED'):
        import itertools
        for k, g in itertools.groupby(opt._log, key=lambda x: x[0]):
            g = list(g); d = {}
            for x in g: d[(x[1], x[2], x[3])] = d.get((x[1], x[2], x[3]), 0) + 1
            print(k, ' '.join(f'{a_}.{b_}.c{c_}x{n_}' for (a_, b_, c_), n_ in d.items()), 'FORCED' if any(x[4] for x in g) else '')
```

```python
import sys, os, struct

KNAME = 'interleave_layers__linear_attn_block__mixer_s_mlp__prompt_kernel'

class Opt:
    stop = None
    timing = False
    fine = None
    force_safe = False
    window = 40
    window0 = 60
    caps = {'P1KV.E': 64, 'P1Q.B0': 16, 'P1Q.B1': 16, 'P1Q.E': 32,
            'P3.B0': 0, 'P3.B1': 32, 'P3.B2': 16, 'P3.B3': 16,
            'P4.B1': 32, 'P4.B2': 16, 'P4.B3': 16,
            'P5.B1': 35, 'P5.B2': 14, 'P5.B3': 21,
            'P6.B0': 35, 'P6.B1': 28, 'P6.B2': 28, 'P6.B3': 28, 'P6.E': 64,
            'P7.B*': 16, 'P7.E': 64}
    cap0 = 0
    touch = True
    dbg_w_same = 0
    w_nt = 0
    g_cold = 0
    touch_at = 'B,P1Q,0'
    rot = 1
    dbgout = -1
    dbgwg = 100
    pretouch = 1
    a2touch_at = 'B,P6,3'
    a01touch_at = 'B,P1KV,2'
    gtouch_parker = 1
    park = 1
    park_w3 = {'P1KV.E': 2, 'X1': 2, 'P1Q.E': 8}
    park_caps = {'P6.B1': 0, 'P6.B2': 0, 'P6.B3': 0, 'P6.E': 0}
    unpark_max = 6
    kv_atomic = 1
    wall = 0
    p7_self = 1
    dbg_skip = ''
    ws_base = 0
    late_a = 0
    kvflag_at = 5
    up3 = 1
    startdiag = 0
    gtouch_at = 'B,P5,2'
    dbg_a_same = 0
    touch_flags = ''
    spin = 1 << 17
    prefetch_code = True
    D_kv = 4
    D_p6 = 4

MB = 1 << 20
A0_OFF = 0
A1_OFF = 0x280000
A2_OFF = 0x480000
G_OFF = 0x680000
ST_OFF = 0xD80000
KVP_OFF = 0xDC0000
KVP_L = 0x88000
KVA_OFF = 0xED0000
LSTRIDE = 0x780000
FL_OFF = 0xF00000
LF_OFF = FL_OFF
KVF_OFF = FL_OFF + 4096
HF_OFF = FL_OFF + 8192
XID_OFF = FL_OFF + 29696
NONCE_OFF = FL_OFF + 30720
TM_OFF = FL_OFF + 32768
CSP_OFF = FL_OFF + 32768 + 65536
CSF_OFF = CSP_OFF + 65536
WS_USED = CSF_OFF + 32768
KVREC = 2176

LDS_TOTAL = 163840
AREG = 0
SCR = 49152
CSL = None
WRING = 65536
RING = 93952
PHI = 53248
CSL = WRING + 28672
CSC = WRING + RING
assert CSC + 1088 <= LDS_TOTAL

EPS = 1e-5

def f2u(x):
    return struct.unpack('<I', struct.pack('<f', x))[0]

class Asm:
    def __init__(self):
        self.lines = []; self.nlabel = 0; self.vm = []
        self.fstamp = lambda p: None
    def e(self, s): self.lines.append('  ' + s)
    def c(self, s): self.lines.append('  ; ' + s)
    def label(self, name): self.lines.append(name + ':')
    def newlabel(self, base='L'):
        self.nlabel += 1
        return f'{base}_{self.nlabel}'
    def vmem(self, s, tag=None):
        self.e(s); self.vm.append(tag)
    def count_vm(self, tag):
        if tag not in self.vm: return None
        idx = max(i for i, t in enumerate(self.vm) if t == tag)
        n = len(self.vm) - 1 - idx
        assert n <= 63, n
        self.vm = self.vm[idx + 1:]
        return n
    def wait_vm(self, tag):
        n = self.count_vm(tag)
        if n is not None: self.e(f's_waitcnt vmcnt({n})')
    def wait_vm_all(self):
        self.e('s_waitcnt vmcnt(0)'); self.vm = []
    def text(self): return '\n'.join(self.lines)

def set_exec(a, lo, hi=None):
    a.e(f's_mov_b32 exec_lo, {hex(lo)}')
    a.e(f's_mov_b32 exec_hi, {hex(lo if hi is None else hi)}')

S_V = 3
S_WS = 4; S_X = 8; S_OUT = 12; S_PA = 16
S_G, S_R, S_W, S_RB, S_CB, S_RB2, S_CB2 = 20, 21, 22, 23, 24, 25, 26
S_MODE, S_L, S_LOFF, S_EP, S_B, S_XCC = 27, 28, 29, 30, 31, 32
S_T0, S_T1, S_T2, S_T3, S_T4, S_T5 = 33, 34, 35, 36, 37, 38
S_SPIN, S_THR = 39, 40
S_AOFF, S_AOFF2, S_ASTR = 41, 42, 43
S_C1, S_C2, S_ONE2 = 44, 46, 48
S_LOG2E, S_EPS6 = 50, 51
S_W4K = 52
S_RH, S_CH = 53, 54
S_U0, S_U1, S_U2, S_U3, S_U4 = 55, 56, 57, 58, 59
S_COLD = 62
S_GH = 63
S_RA = 86
S_RK = 90
S_P7 = 94
S_ROTK = 45
S_PTR = 64
S_WQKV, S_WO, S_W1, S_W2, S_W3, S_W4 = 40, 44, 48, 52, 56, 60
S_CSRD = 88

V_LANE = 0
V_AS, V_AB, V_AG, V_P1 = 1, 2, 3, 4
V_AH = 5
V_STS, V_STB, V_STST, V_XRM, V_TST = 9, 10, 11, 12, 13
V_FSB, V_FBS, V_FSS, V_FH, V_FOWN, V_FKV = 14, 15, 16, 17, 18, 19
V_T128, V_T64, V_T224, V_TN, V_TA = 20, 21, 22, 23, 24
V_T0, V_T1, V_T2 = 25, 26, 27
V_TB = 28
V_RES = 32
V_MEAN, V_RS = 48, 49
V_X = 50
V_PQ = 56
V_ACC = 64
V_A = 128

PHASES = ['P1KV', 'P1Q', 'P3', 'P4', 'P5', 'P6', 'P7']
NCH = {'P1KV': 4, 'P1Q': 2, 'P3': 4, 'P4': 4, 'P5': 4, 'P6': 4, 'P7': 14}

ATOMIC = [1]
NOE = ('P3', 'P4', 'P5')

class Slab:
    def __init__(self, layer, phase, chunk, kind, size, srow, npieces, srow2=None):
        self.layer, self.phase, self.chunk, self.kind = layer, phase, chunk, kind
        self.size, self.srow, self.npieces, self.srow2 = size, srow, npieces, srow2
        self.addr = None

def w4_tile_seq():
    seq = []
    for c in range(8):
        for i in [0, 1, 2, 3, 4, 5, 7, 8, 9, 10, 11, 12, 6, 13]:
            seq.append(14 * c + i)
    return seq

def build_slabs(layer):
    ph = {}
    def simple(phase, kind, nchunk, per, size, rows, np_):
        ph[phase] = [[Slab(layer, phase, c, kind, size, (c * per + j) * rows, np_) for j in range(per)] for c in range(nchunk)]
    simple('P1KV', 'KV', 4, 4, 4096, 32, 4)
    simple('P1Q', 'Q', 2, 4, 4096, 64, 4)
    simple('P3', 'WO', 4, 4, 4096, 32, 4)
    simple('P4', 'W1', 4, 4, 4096, 32, 4)
    simple('P5', 'W2', 4, 4, 4096, 32, 4)
    simple('P6', 'W3', 4, 4, 7168, 32, 7)
    seq = w4_tile_seq()
    ph['P7'] = [[Slab(layer, 'P7', c, 'W4', 4096, seq[2 * (c * 4 + j)] * 16, 4, srow2=seq[2 * (c * 4 + j) + 1] * 16)
                 for j in range(4)] for c in range(14)]
    pos = PHI
    for p in PHASES:
        for ch in ph[p]:
            for s in ch:
                if pos + s.size > RING: pos = 0
                s.addr = WRING + pos
                pos += s.size
    assert pos == PHI, pos
    return ph

def build_events(stop):
    ev = []
    for L in range(2):
        for p in PHASES:
            for c in range(NCH[p]): ev.append((L, 'B', p, c))
            if p not in NOE: ev.append((L, 'E', p, None))
            if p == 'P1KV': ev.append((L, 'X', 'X1', None))
            if p == 'P1Q' and not ATOMIC[0]: ev.append((L, 'X', 'X2', None))
            if stop == (L, p): return ev
    return ev

WS = f's[{S_WS}:{S_WS+3}]'

def thr_value(a, dst, epoch, xcc=False):
    if isinstance(epoch, int):
        a.e(f's_add_u32 s{dst}, s{S_B}, {8*epoch}')
    else:
        a.e(f's_lshl_b32 s{dst}, {epoch}, 3')
        a.e(f's_add_u32 s{dst}, s{dst}, s{S_B}')
    if xcc: a.e(f's_add_u32 s{dst}, s{dst}, s{S_XCC}')

def emit_poll(a, vaddr, epoch, soff='0', opt=Opt, x4=False, tbase=None):
    L = a.newlabel('POLL'); D = a.newlabel('POLLD')
    thr_value(a, S_THR, epoch)
    a.e(f's_mov_b32 s{S_SPIN}, {opt.spin}')
    a.label(L)
    if x4:
        T = tbase
        a.e(f'buffer_load_dwordx4 v[{T}:{T+3}], v{vaddr}, {WS}, {soff} offen sc1')
        a.e('s_waitcnt vmcnt(0)')
        for i in range(4): a.e(f'v_subrev_u32 v{T+i}, s{S_THR}, v{T+i}')
        a.e(f'v_max_u32 v{T}, v{T}, v{T+1}')
        a.e(f'v_max_u32 v{T+2}, v{T+2}, v{T+3}')
        a.e(f'v_max_u32 v{V_T0}, v{T}, v{T+2}')
    else:
        a.e(f'buffer_load_dword v{V_T2}, v{vaddr}, {WS}, {soff} offen sc1')
        a.e('s_waitcnt vmcnt(0)')
        a.e(f'v_subrev_u32 v{V_T0}, s{S_THR}, v{V_T2}')
    a.vm = []
    a.e(f'v_cmp_gt_u32 vcc, 0x80, v{V_T0}')
    a.e(f's_sub_u32 s{S_SPIN}, s{S_SPIN}, 1')
    a.e(f's_cbranch_scc1 {D}')
    a.e('s_cmp_eq_u64 vcc, -1')
    a.e(f's_cbranch_scc0 {L}')
    a.label(D)

def emit_mode_stores(a, stores, cold=False):
    F = a.newlabel('STF'); D = a.newlabel('STD')
    if getattr(a, 'opt', None) is not None and a.opt.pretouch and a.opt.park: cold = False
    a.e(f's_cmp_eq_u32 s{S_COLD if cold else S_MODE}, 0')
    a.e(f's_cbranch_scc1 {F}')
    for s in stores: a.e(s + ' sc1')
    a.e(f's_branch {D}')
    a.label(F)
    for s in stores: a.e(s)
    a.label(D)
    for s in stores: a.vm.append('st')

def emit_signal(a, epoch):
    thr_value(a, S_THR, epoch, xcc=True)
    a.e(f'v_mov_b32 v{V_T0}, s{S_THR}')
    a.wait_vm_all()
    a.e('s_mov_b64 exec, 1')
    emit_mode_stores(a, [f'buffer_store_dword v{V_T0}, v{V_FOWN}, {WS}, 0 offen'])
    a.e('s_mov_b64 exec, -1')

def emit_xreduce(a, regs, tmp, over16=True):
    for r, t in zip(regs, tmp): a.e(f'v_mov_b32 v{t}, v{r}')
    a.e('s_nop 1')
    for r, t in zip(regs, tmp): a.e(f'v_permlane32_swap_b32 v{r}, v{t}')
    a.e('s_nop 0')
    for r, t in zip(regs, tmp): a.e(f'v_add_f32 v{r}, v{r}, v{t}')
    if over16:
        for r, t in zip(regs, tmp): a.e(f'v_mov_b32 v{t}, v{r}')
        a.e('s_nop 1')
        for r, t in zip(regs, tmp): a.e(f'v_permlane16_swap_b32 v{r}, v{t}')
        a.e('s_nop 0')
        for r, t in zip(regs, tmp): a.e(f'v_add_f32 v{r}, v{r}, v{t}')

def pk(op, d, x, y, z=None, mods=''):
    s = f'v_pk_{op}_f32 v[{d}:{d+1}], {x}, {y}'
    if z is not None: s += f', {z}'
    return s + mods
def vp(r): return f'v[{r}:{r+1}]'

def emit_stats_partial32(a, vals, t0, st_soff, cold=False):
    s, q = t0, t0 + 2
    a.e(pk('add', s, vp(vals), vp(vals + 2)))
    a.e(pk('mul', q, vp(vals), vp(vals)))
    a.e(pk('fma', q, vp(vals + 2), vp(vals + 2), vp(q)))
    for i in range(4, 16, 2):
        a.e(pk('add', s, vp(s), vp(vals + i)))
        a.e(pk('fma', q, vp(vals + i), vp(vals + i), vp(q)))
    a.e(f'v_add_f32 v{t0}, v{s}, v{s+1}')
    a.e(f'v_add_f32 v{t0+1}, v{q}, v{q+1}')
    emit_xreduce(a, [t0, t0 + 1], [t0 + 4, t0 + 5], over16=False)
    set_exec(a, 0xffffffff, 0)
    emit_mode_stores(a, [f'buffer_store_dwordx2 v[{t0}:{t0+1}], v{V_STST}, {WS}, {st_soff} offen'], cold=cold)
    a.e('s_mov_b64 exec, -1')

def emit_stats_from_sums(a, s, ss, out_a, out_b, tmp, double=False, keep=None):
    mean, var = s, ss
    a.e(f'v_mul_f32 v{mean}, {hex(f2u(1.0/512))}, v{s}')
    a.e(f'v_mul_f32 v{var}, {hex(f2u(1.0/512))}, v{ss}')
    a.e(f'v_fma_f32 v{var}, -v{mean}, v{mean}, v{var}')
    a.e(f'v_max_f32 v{var}, 0, v{var}')
    a.e(f'v_add_f32 v{tmp}, {hex(f2u(EPS))}, v{var}')
    a.e(f'v_rsq_f32 v{tmp}, v{tmp}')
    a.e('s_nop 0')
    if double:
        a.e(f'v_mul_f32 v{tmp+1}, v{tmp}, v{tmp}')
        a.e(f'v_mul_f32 v{tmp+1}, v{tmp+1}, v{var}')
        a.e(f'v_add_f32 v{tmp+1}, {hex(f2u(EPS))}, v{tmp+1}')
        a.e(f'v_rsq_f32 v{tmp+1}, v{tmp+1}')
        a.e('s_nop 0')
        a.e(f'v_mul_f32 v{out_a}, v{tmp}, v{tmp+1}')
    else:
        a.e(f'v_mov_b32 v{out_a}, v{tmp}')
    if keep:
        a.e(f'v_mov_b32 v{keep[0]}, v{mean}')
        a.e(f'v_mov_b32 v{keep[1]}, v{tmp}')
    a.e(f'v_mul_f32 v{out_b}, v{out_a}, v{mean}')
    a.e(f'v_sub_f32 v{out_b}, 0, v{out_b}')

def emit_sum_partials(a, raw, n):
    k = n
    step = 2
    regs = [raw + i for i in range(0, n, 2)]
    while len(regs) > 1:
        nxt = []
        for i in range(0, len(regs), 2):
            a.e(pk('add', regs[i], vp(regs[i]), vp(regs[i + 1])))
            nxt.append(regs[i])
        regs = nxt

def emit_lnfold(a, acc, cs, av, bv, n):
    for i in range(0, n, 2):
        a.e(pk('mul', acc + i, vp(acc + i), vp(av), mods=' op_sel_hi:[1,0]'))
    for i in range(0, n, 2):
        a.e(pk('fma', acc + i, vp(cs + i), vp(bv), vp(acc + i), mods=' op_sel_hi:[1,0,1]'))

def emit_gelu(a, x, n, tmp, c1reg):
    blk = 16
    a.e(f'v_mov_b32 v{c1reg}, s{S_C1}')
    for b0 in range(0, n, blk):
        m = min(blk, n - b0); t = tmp
        for i in range(0, m, 2): a.e(pk('mul', t + i, vp(x + b0 + i), vp(x + b0 + i)))
        for i in range(0, m, 2): a.e(pk('fma', t + i, vp(t + i), f's[{S_C2}:{S_C2+1}]', vp(c1reg), mods=' op_sel_hi:[1,1,0]'))
        for i in range(0, m, 2): a.e(pk('mul', t + i, vp(t + i), vp(x + b0 + i)))
        for i in range(m): a.e(f'v_exp_f32 v{t+i}, v{t+i}')
        for i in range(0, m, 2): a.e(pk('add', t + i, vp(t + i), f's[{S_ONE2}:{S_ONE2+1}]'))
        for i in range(m): a.e(f'v_rcp_f32 v{t+i}, v{t+i}')
        for i in range(0, m, 2): a.e(pk('mul', x + b0 + i, vp(x + b0 + i), vp(t + i)))

def emit_phi(a, regs, tmp):
    for i, r in enumerate(regs): a.e(f'v_min_f32 v{tmp+i}, 0, v{r}')
    for i, r in enumerate(regs): a.e(f'v_mul_f32 v{tmp+i}, s{S_LOG2E}, v{tmp+i}')
    for i, r in enumerate(regs): a.e(f'v_exp_f32 v{tmp+i}, v{tmp+i}')
    for i, r in enumerate(regs): a.e(f'v_max_f32 v{r}, 0, v{r}')
    for i, r in enumerate(regs): a.e(f'v_add_f32 v{r}, v{r}, v{tmp+i}')
    for i, r in enumerate(regs): a.e(f'v_add_f32 v{r}, s{S_EPS6}, v{r}')

def emit_pack(a, dst, src, n):
    for i in range(0, n, 2): a.e(f'v_cvt_pk_bf16_f32 v{dst+i//2}, v{src+i}, v{src+i+1}')

def emit_pack32(a, dst, src):
    for k, j in enumerate([0, 2, 1, 3]):
        a.e(f'v_cvt_pk_bf16_f32 v{dst+2*k}, v{src+4*j}, v{src+4*j+1}')
        a.e(f'v_cvt_pk_bf16_f32 v{dst+2*k+1}, v{src+4*j+2}, v{src+4*j+3}')

class TrBase:
    def __init__(self, a, lane_reg, nt):
        self.a, self.lane_reg, self.nt, self.cur = a, lane_reg, nt, None
    def off(self, addr, span):
        if self.cur is None or addr < self.cur or addr + span - self.cur > 65535:
            self.cur = addr
            for t in range(self.nt):
                if t == 0:
                    self.a.e(f'v_add_u32 v{V_TB}, {hex(addr)}, v{self.lane_reg}')
                else:
                    self.a.e(f'v_xor_b32 v{V_TB+t}, {t << 5}, v{self.lane_reg}')
                    self.a.e(f'v_add_u32 v{V_TB+t}, {hex(addr)}, v{V_TB+t}')
        return addr - self.cur

def emit_gemm16(a, bar, phase, chunks, CT, kind, acc_of, a_of, a_wait, a_issue, wr, S, normal=False, extra=None, a_lds=None):
    R, LA = 2, 4
    ks = []
    for ci, ch in enumerate(chunks):
        first = True
        for s in ch:
            ks.append((ci, s.addr, first)); first = False
            if kind == '64': ks.append((ci, s.addr + 2048, False))
    KS = len(ks)
    if kind == '128':
        trb = TrBase(a, V_T128, 4); second = 2048; span = 4096; tb = lambda t: V_TB + t; timm = lambda t: 0
    elif kind == '64':
        trb = TrBase(a, V_T64, 2); second = 1024; span = 2048; tb = lambda t: V_TB + t; timm = lambda t: 0
    else:
        trb = TrBase(a, V_T224, 1); second = 3584; span = 7168; tb = lambda t: V_TB; timm = lambda t: 32 * t
    total = KS * CT
    def slot(n): return wr + 4 * (n % S)
    def pre_issue(n):
        j, t = divmod(n, CT)
        ci, addr, first = ks[j]
        if t == 0 and first:
            a.fstamp(phase); bar(('B', phase, ci)); a.fstamp(phase)
        imm = trb.off(addr, span) if t == 0 else addr - trb.cur
        return imm + timm(t), t
    def rd(n, half, info):
        imm, t = info
        a.e(f'ds_read_b64_tr_b16 v[{slot(n)+2*half}:{slot(n)+2*half+1}], v{tb(t)} offset:{imm + (second if half else 0)}')
    def mfma(m, r):
        j, t = divmod(m, CT)
        d = acc_of(r, t); c = '0' if j == 0 else f'v[{d}:{d+3}]'
        w = f'v[{slot(m)}:{slot(m)+3}]'; x = f'v[{a_of(r,j)}:{a_of(r,j)+3}]'
        a.e(f'v_mfma_f32_16x16x32_bf16 v[{d}:{d+3}], ' + (f'{x}, {w}' if normal else f'{w}, {x}') + f', {c}')
    lq = []
    def need(tags):
        idx = max((i for i, g in enumerate(lq) if g in tags), default=None)
        if idx is None: return None
        n_ = len(lq) - 1 - idx
        del lq[:idx + 1]
        assert n_ <= 15
        return n_
    def pre2(n):
        info = pre_issue(n)
        j, t = divmod(n, CT)
        if a_lds and t == 0:
            for s_ in a_lds(j):
                a.e(s_); lq.append(('A', j))
        return info
    def rd2(n, half, info):
        rd(n, half, info); lq.append(('W', n))
    for n in range(min(LA, total)):
        info = pre2(n); rd2(n, 0, info); rd2(n, 1, info)
    for n in range(total):
        j, t = divmod(n, CT)
        lg = need({('W', n), ('A', j)})
        vmn = a_wait(j) if t == 0 else None
        if t == 0 and j in (0, 1): a.fstamp(phase)
        parts = ([f'vmcnt({vmn})'] if vmn is not None else []) + ([f'lgkmcnt({lg})'] if lg is not None else [])
        if parts: a.e('s_waitcnt ' + ' '.join(parts))
        nx = n + LA; info = None
        mfma(n, 0)
        if nx < total:
            info = pre2(nx); rd2(nx, 0, info)
        mfma(n, 1)
        if nx < total: rd2(nx, 1, info)
        a_issue(j, t)
        if extra and t == CT - 1: extra(j)
    a.fstamp(phase); bar(('E', phase, None)); a.fstamp(phase)
    a.e('s_nop 7')

def emit_gemm32(a, bar, phase, chunks, acc, wr, tail=None, a_pieces=None):
    LA, S = 4, 5
    nch = len(chunks)
    total = nch * 8
    trb = TrBase(a, V_TN, 1)
    def slot(n): return wr + 8 * (n % S)
    def reads(n):
        c, rem = divmod(n, 8); ksl, s = divmod(rem, 2)
        out = []
        if rem == 0:
            if a_pieces: a.wait_vm(('A', c))
            a.fstamp(phase); bar(('B', phase, c)); a.fstamp(phase)
        sl = chunks[c][ksl]
        imm = trb.off(sl.addr, 4096)
        out.append(f'ds_read_b128 v[{slot(n)}:{slot(n)+3}], v{V_TA} offset:{(c % 4) * 16384 + ksl * 1024 + s * 512}')
        out.append(f'ds_read_b64_tr_b16 v[{slot(n)+4}:{slot(n)+5}], v{V_TB} offset:{imm + s * 1024}')
        out.append(f'ds_read_b64_tr_b16 v[{slot(n)+6}:{slot(n)+7}], v{V_TB} offset:{imm + s * 1024 + 2048}')
        return out
    queue = []; nxt = 2; passed = 0
    if a_pieces:
        for c in (0, 1):
            for t in a_pieces(c): t()
    for n in range(LA):
        for s in reads(n): a.e(s)
    for n in range(total):
        lg = 3 * (min(n - 1 + LA, total - 1) - n)
        a.e(f's_waitcnt lgkmcnt({lg})')
        c = '0' if n == 0 else f'v[{acc}:{acc+15}]'
        a.e(f'v_mfma_f32_32x32x16_bf16 v[{acc}:{acc+15}], v[{slot(n)+4}:{slot(n)+7}], v[{slot(n)}:{slot(n)+3}], {c}')
        nx = n + LA
        if nx < total:
            if nx % 8 == 0: passed = nx // 8
            for s in reads(nx): a.e(s)
        if a_pieces:
            while nxt < nch and (nxt <= passed + 2 or nxt <= 3) and len(queue) < 4:
                queue += list(a_pieces(nxt)); nxt += 1
            if queue: queue.pop(0)()
        if tail and n == max(total - 24, 0): tail()
    a.fstamp(phase)
    if phase not in NOE:
        bar(('E', phase, None))
    a.fstamp(phase)
    a.e('s_nop 7'); a.e('s_nop 3')


def gen_compute(a, opt, events):
    evq = list(events)
    tm = [0]
    def tmreg(i):
        assert i < 22, i
        return 64 + i
    def dump(regs):
        sk = a.newlabel('TMS')
        a.e('s_waitcnt lgkmcnt(0)')
        a.e(f's_cmp_eq_u32 s{S_W}, 0')
        a.e(f's_cbranch_scc0 {sk}')
        if opt.dbgout >= 0 and opt.timing:
            a.e(f's_cmp_eq_u32 s2, {opt.dbgwg}')
            a.e(f's_cbranch_scc0 {sk}')
            a.e(f's_cmp_eq_u32 s{S_L}, {opt.dbgout}')
            a.e(f's_cbranch_scc0 {sk}')
            sel = [1, 2, 3, 4, 5, 6, 8, 9, 11, 12, 14, 15, 16, 17, 18, 20]
            for i, k in enumerate(sel):
                if k >= len(regs): continue
                a.e(f's_sub_u32 s{S_T0}, s{regs[k]}, s{regs[0]}')
                a.e(f'v_mov_b32 v{V_T0}, s{S_T0}')
                a.e(f'v_mov_b32 v{V_T1}, {4*i}')
                a.e(f'global_store_dword v{V_T1}, v{V_T0}, s[86:87]')
        else:
            a.e(f's_lshl_b32 s{S_T0}, s2, 8')
            a.e(f's_lshl_b32 s{S_T1}, s{S_L}, 7')
            if opt.timing: a.e(f's_add_u32 s{S_T0}, s{S_T0}, s{S_T1}')
            a.e(f's_add_u32 s{S_T0}, s{S_T0}, {hex(TM_OFF)}')
            for i, r in enumerate(regs):
                a.e(f'v_mov_b32 v{V_T0}, s{r}')
                a.e(f'v_mov_b32 v{V_T1}, {4*i}')
                a.e(f'buffer_store_dword v{V_T0}, v{V_T1}, {WS}, s{S_T0} offen')
        a.label(sk)
        a.e('s_waitcnt vmcnt(0)')
    fs = [0]
    def freg(i): return 64 + 2 * i
    def fstamp(phase):
        if opt.fine == phase and fs[0] < 11:
            a.e(f's_memtime s[{freg(fs[0])}:{freg(fs[0])+1}]'); fs[0] += 1
    a.fstamp = fstamp
    def stamp():
        if opt.timing:
            a.e('s_memtime s[60:61]')
            a.e('s_waitcnt lgkmcnt(0)')
            a.e(f's_mov_b32 s{tmreg(tm[0])}, s60'); tm[0] += 1

    T0, T1, T2, TB = V_T0, V_T1, V_T2, V_TB
    if opt.wall:
        a.e('s_memrealtime s[60:61]'); a.e('s_waitcnt lgkmcnt(0)'); a.e('s_mov_b32 s84, s60')
        a.e('s_memtime s[60:61]'); a.e('s_waitcnt lgkmcnt(0)'); a.e('s_mov_b32 s85, s60')
    a.c('--- compute: early address setup')
    if opt.startdiag:
        a.e('s_memtime s[98:99]'); a.e('s_waitcnt lgkmcnt(0)'); a.e('s_sub_u32 s98, s98, s100'); a.e('s_mov_b32 s85, s98')
    stamp()
    a.e(f's_lshr_b32 s{S_RH}, s{S_W}, 1')
    a.e(f's_and_b32 s{S_CH}, s{S_W}, 1')
    a.e(f's_lshl_b32 s{S_W4K}, s{S_W}, 12')
    a.e(f's_lshl_b32 s{S_U0}, s{S_G}, 4')
    a.e(f's_lshl_b32 s{S_T1}, s{S_RB}, 2')
    a.e(f's_add_u32 s{S_U0}, s{S_U0}, s{S_T1}')
    a.e(f's_lshl_b32 s{S_T1}, s{S_RH}, 1')
    a.e(f's_add_u32 s{S_U2}, s{S_U0}, s{S_T1}')
    a.e(f's_add_u32 s{S_U0}, s{S_U0}, s{S_W}')
    a.e(f's_lshl_b32 s{S_U1}, s{S_G}, 4')
    a.e(f's_lshl_b32 s{S_T2}, s{S_RB2}, 3')
    a.e(f's_add_u32 s{S_U1}, s{S_U1}, s{S_T2}')
    a.e(f's_lshl_b32 s{S_T2}, s{S_W}, 1')
    a.e(f's_add_u32 s{S_U1}, s{S_U1}, s{S_T2}')
    a.e(f'v_and_b32 v{T0}, 15, v{V_LANE}')
    a.e(f'v_and_b32 v{T1}, 0x30, v{V_LANE}')
    a.e(f's_lshl_b32 s{S_ROTK}, s{S_RB2}, 1')
    a.e(f's_add_u32 s{S_ROTK}, s{S_ROTK}, s{S_CB2}')
    a.e(f's_and_b32 s{S_ROTK}, s{S_ROTK}, {3 if opt.rot else 0}')
    a.e(f'v_and_b32 v{T2}, 31, v{V_LANE}')
    a.e(f'v_lshrrev_b32 v{TB}, 5, v{V_LANE}')
    a.e(f'v_lshlrev_b32 v{V_XRM}, 10, v{T2}')
    a.e(f'v_lshl_add_u32 v{V_XRM}, v{TB}, 3, v{V_XRM}')
    a.e(f's_lshl_b32 s{S_T2}, s{S_U2}, 14')
    a.e(f's_lshl_b32 s{S_T3}, s{S_CB}, 7')
    a.e(f's_add_u32 s{S_T2}, s{S_T2}, s{S_T3}')
    a.e(f's_lshl_b32 s{S_T3}, s{S_CH}, 6')
    a.e(f's_add_u32 s{S_T2}, s{S_T2}, s{S_T3}')
    a.e(f'v_add_u32 v{V_XRM}, s{S_T2}, v{V_XRM}')
    PA = f's[{S_PA}:{S_PA+3}]'
    def p1_load(j):
        if j % 4 == 0:
            a.e(f's_mov_b32 s{S_AOFF}, s{S_RK + j // 4}')
            a.e(f's_add_u32 s{S_AOFF2}, s{S_AOFF}, 0x4000')
        for r in range(2):
            a.vmem(f'buffer_load_dwordx4 v[{V_A+(r*16+j)*4}:{V_A+(r*16+j)*4+3}], v{V_P1}, {PA}, s{S_AOFF if r == 0 else S_AOFF2} offen', ('A', j))
        if j % 4 != 3:
            a.e(f's_add_u32 s{S_AOFF}, s{S_AOFF}, s{S_ASTR}')
            a.e(f's_add_u32 s{S_AOFF2}, s{S_AOFF2}, s{S_ASTR}')
    a.e('s_waitcnt lgkmcnt(0)')
    a.e(f's_mul_i32 s{S_B}, s{S_V}, 0x9e3779b1')
    a.e(f's_add_u32 s{S_B}, s{S_B}, 0x7f4a7c15')
    a.e(f's_and_b32 s{S_B}, s{S_B}, 0xffffff00')
    a.c('--- compute: address setup')
    a.e(f'v_lshlrev_b32 v{V_X}, 4, v{V_LANE}')
    a.e(f's_lshl_b32 s{S_T2}, s{S_U1}, 14')
    a.e(f'v_add_u32 v{V_AB}, s{S_T2}, v{V_X}')
    a.e(f'v_lshlrev_b32 v{V_STS}, 4, v{T2}')
    a.e(f'v_lshl_add_u32 v{V_STS}, v{TB}, 11, v{V_STS}')
    a.e(f's_lshl_b32 s{S_T2}, s{S_U2}, 11')
    a.e(f'v_add_u32 v{V_STS}, s{S_T2}, v{V_STS}')
    a.e(f'v_lshlrev_b32 v{V_STST}, 4, v{T2}')
    a.e(f's_lshl_b32 s{S_T4}, s{S_CB}, 9')
    a.e(f's_add_u32 s{S_T2}, s{S_T2}, s{S_T4}')
    a.e(f's_lshl_b32 s{S_T4}, s{S_CH}, 3')
    a.e(f's_add_u32 s{S_T2}, s{S_T2}, s{S_T4}')
    a.e(f'v_add_u32 v{V_STST}, s{S_T2}, v{V_STST}')
    a.e(f's_lshl_b32 s{S_T3}, s{S_CB}, 1')
    a.e(f's_add_u32 s{S_T3}, s{S_T3}, s{S_CH}')
    a.e(f'v_lshlrev_b32 v{V_STB}, 4, v{T0}')
    a.e(f'v_lshl_add_u32 v{V_STB}, v{T1}, 6, v{V_STB}')
    a.e(f's_lshl_b32 s{S_T2}, s{S_U1}, 11')
    a.e(f'v_add_u32 v{V_STB}, s{S_T2}, v{V_STB}')
    a.e(f'v_lshrrev_b32 v{V_TST}, 4, v{T2}')
    a.e(f'v_lshlrev_b32 v{V_TST}, 14, v{V_TST}')
    a.e(f'v_lshl_add_u32 v{V_TST}, v{TB}, 8, v{V_TST}')
    a.e(f'v_lshl_add_u32 v{V_TST}, v{T0}, 4, v{V_TST}')
    a.e(f's_lshl_b32 s{S_T2}, s{S_U2}, 14')
    a.e(f's_lshl_b32 s{S_T4}, s{S_T3}, 10')
    a.e(f's_add_u32 s{S_T2}, s{S_T2}, s{S_T4}')
    a.e(f'v_add_u32 v{V_TST}, s{S_T2}, v{V_TST}')
    a.e(f's_lshl_b32 s{S_T2}, s{S_G}, 9')
    a.e(f's_add_u32 s{S_T2}, s{S_T2}, {hex(LF_OFF)}')
    a.e(f's_lshl_b32 s{S_T3}, s{S_W}, 7')
    a.e(f's_add_u32 s{S_T3}, s{S_T3}, s{S_T2}')
    a.e(f's_lshl_b32 s{S_T4}, s{S_R}, 2')
    a.e(f's_add_u32 s{S_T4}, s{S_T4}, s{S_T3}')
    a.e(f'v_mov_b32 v{V_FOWN}, s{S_T4}')
    a.e(f'v_and_b32 v{V_X+1}, 7, v{V_LANE}')
    a.e(f'v_lshlrev_b32 v{V_X+1}, 2, v{V_X+1}')
    a.e(f'v_bfe_u32 v{V_X+2}, v{V_LANE}, 3, 1')
    a.e(f'v_lshl_add_u32 v{V_X+1}, v{V_X+2}, 7, v{V_X+1}')
    a.e(f's_lshl_b32 s{S_T4}, s{S_RB2}, 1')
    a.e(f's_add_u32 s{S_T4}, s{S_T4}, s{S_RH}')
    a.e(f's_lshl_b32 s{S_T4}, s{S_T4}, 5')
    a.e(f's_lshl_b32 s{S_T5}, s{S_CH}, 8')
    a.e(f's_add_u32 s{S_T4}, s{S_T4}, s{S_T5}')
    a.e(f's_add_u32 s{S_T4}, s{S_T4}, s{S_T2}')
    a.e(f'v_add_u32 v{V_FSB}, s{S_T4}, v{V_X+1}')
    a.e(f's_lshl_b32 s{S_T4}, s{S_CB2}, 7')
    a.e(f's_add_u32 s{S_T4}, s{S_T4}, {hex(KVF_OFF)}')
    a.e(f'v_lshlrev_b32 v{V_FKV}, 2, v{T2}')
    a.e(f'v_add_u32 v{V_FKV}, s{S_T4}, v{V_FKV}')
    a.e(f'v_bfe_u32 v{V_X+1}, v{V_LANE}, 2, 2')
    a.e(f'v_lshrrev_b32 v{V_X+2}, 4, v{V_LANE}')
    a.e(f'v_lshl_add_u32 v{V_X+3}, v{V_X+2}, 2, v{V_X+1}')
    a.e(f'v_and_b32 v{V_X+4}, 3, v{V_LANE}')
    a.e(f'v_lshlrev_b32 v{V_X+4}, 3, v{V_X+4}')
    a.e(f'v_bfe_u32 v{V_X+5}, v{V_X+3}, 1, 2')
    a.e(f'v_lshl_add_u32 v{V_T128}, v{V_X+5}, 5, v{V_X+4}')
    a.e(f'v_lshl_add_u32 v{V_T128}, v{V_X+3}, 7, v{V_T128}')
    a.e(f'v_bfe_u32 v{V_X+5}, v{V_X+3}, 2, 1')
    a.e(f'v_lshl_add_u32 v{V_T64}, v{V_X+5}, 5, v{V_X+4}')
    a.e(f'v_lshl_add_u32 v{V_T64}, v{V_X+3}, 6, v{V_T64}')
    a.e(f'v_mul_u32_u24 v{V_T224}, 224, v{V_X+3}')
    a.e(f'v_add_u32 v{V_T224}, v{V_T224}, v{V_X+4}')
    a.e(f'v_lshrrev_b32 v{V_X+3}, 1, v{V_X+2}')
    a.e(f'v_lshl_add_u32 v{V_X+3}, v{V_X+3}, 2, v{V_X+1}')
    a.e(f'v_and_b32 v{V_X+5}, 1, v{V_X+2}')
    a.e(f's_lshl_b32 s{S_T4}, s{S_CH}, 1')
    a.e(f'v_add_u32 v{V_X+5}, s{S_T4}, v{V_X+5}')
    a.e(f'v_and_b32 v{V_X+1}, 2, v{V_X+1}')
    a.e(f'v_xor_b32 v{V_X+5}, v{V_X+5}, v{V_X+1}')
    a.e(f'v_lshl_add_u32 v{V_TN}, v{V_X+5}, 5, v{V_X+4}')
    a.e(f'v_lshl_add_u32 v{V_TN}, v{V_X+3}, 7, v{V_TN}')
    a.e(f'v_bfe_u32 v{V_TA}, v{V_LANE}, 4, 1')
    a.e(f's_lshl_b32 s{S_T4}, s{S_RH}, 1')
    a.e(f'v_add_u32 v{V_TA}, s{S_T4}, v{V_TA}')
    a.e(f'v_lshlrev_b32 v{V_TA}, 12, v{V_TA}')
    a.e(f'v_lshl_add_u32 v{V_TA}, v{TB}, 8, v{V_TA}')
    a.e(f'v_lshl_add_u32 v{V_TA}, v{T0}, 4, v{V_TA}')
    if AREG: a.e(f'v_add_u32 v{V_TA}, {hex(AREG)}, v{V_TA}')
    c1 = -2.0 * 0.7978845608028654 * 1.4426950408889634
    c2 = c1 * 0.044715
    for s, v in [(S_C1, c1), (S_C2, c2), (S_C2 + 1, c2), (S_ONE2, 1.0), (S_ONE2 + 1, 1.0),
                 (S_LOG2E, 1.4426950408889634), (S_EPS6, 1e-6)]:
        a.e(f's_mov_b32 s{s}, {hex(f2u(v))}')
    a.e(f's_mov_b32 s{S_L}, 0')
    a.e(f's_mov_b32 s{S_LOFF}, 0')
    a.e(f's_mov_b32 s{S_EP}, 1')
    a.e(f's_mov_b32 s{S_MODE}, 1')
    a.e(f's_mov_b32 s{S_COLD}, 1')
    a.e(f's_lshl_b32 s{S_GH}, s{S_G}, 1')
    a.e(f's_add_u32 s{S_GH}, s{S_GH}, 1')
    a.e(f's_lshl_b32 s{S_GH}, s{S_GH}, 14')

    LOOP = 'LAYER_LOOP'
    a.label(LOOP)
    slabs = build_slabs(0)

    def run_layer():
        def bar(ev):
            exp = evq.pop(0)
            assert exp[1:] == ev or (exp[1] == 'X' and ev[0] == 'X' and exp[2] == ev[1]), (exp, ev)
            a.e('s_barrier')
        def soff(reg, base, extra=0, gh=False):
            if gh: a.e(f's_add_u32 s{reg}, s{S_GH}, {hex(base + extra)}')
            else: a.e(f's_mov_b32 s{reg}, {hex(base + extra)}')
        def done(p):
            if opt.stop == (1, p):
                a.e(f's_cmp_eq_u32 s{S_L}, 1')
                a.e('s_cbranch_scc1 L_END_COMPUTE')
            return opt.stop == (0, p)
        def ep(k):
            a.e(f's_add_u32 s{S_T5}, s{S_EP}, {k}')
            return f's{S_T5}'

        a.c('=== P1KV')
        WR1 = 96; D1 = 116; ONES = 124; D2 = V_PQ
        for i in range(4): a.e(f'v_mov_b32 v{ONES+i}, 0x3f803f80')
        l0 = a.newlabel('KVL0'); ljoin = a.newlabel('KVJ')
        a.e(f's_cmp_eq_u32 s{S_L}, 0')
        a.e(f's_cbranch_scc1 {l0}')
        saved_ev = list(evq)
        emit_poll(a, V_FSB, f's{S_EP}', opt=opt)
        for j in range(opt.D_kv): p1_load(j)
        stamp()
        a.fstamp('P1KV')
        def kv_issue(j, t):
            if t == 1:
                if j + opt.D_kv < 16:
                    p1_load(j + opt.D_kv)
                elif j + opt.D_kv == 16:
                    soff(S_T0, ST_OFF)
                    a.vmem(f'buffer_load_dwordx4 v[{D1}:{D1+3}], v{V_STB}, {WS}, s{S_T0} offen sc1', 'st')
                    a.vmem(f'buffer_load_dwordx4 v[{D1+4}:{D1+7}], v{V_STB}, {WS}, s{S_T0} offen offset:512 sc1', 'st')
                    a.vmem(f'buffer_load_dwordx4 v[{D2}:{D2+3}], v{V_STB}, {WS}, s{S_T0} offen offset:256 sc1', 'st')
                    a.vmem(f'buffer_load_dwordx4 v[{D2+4}:{D2+7}], v{V_STB}, {WS}, s{S_T0} offen offset:768 sc1', 'st')
        emit_gemm16(a, bar, 'P1KV', slabs['P1KV'], 4, '128',
                    acc_of=lambda r, t: V_ACC + (r * 4 + t) * 4, a_of=lambda r, j: V_A + (r * 16 + j) * 4,
                    a_wait=lambda j: a.count_vm(('A', j)), a_issue=kv_issue, wr=WR1, S=5, normal=True)
        a.e(f's_branch {ljoin}')
        a.label(l0)
        evq[:] = saved_ev
        a.vm = []
        tm[0] -= 1 if opt.timing else 0
        stamp()
        VLA = V_X
        a.e(f'v_and_b32 v{T0}, 15, v{V_LANE}')
        a.e(f'v_lshrrev_b32 v{T1}, 4, v{V_LANE}')
        a.e(f'v_xor_b32 v{T1}, v{T1}, v{T0}')
        a.e(f'v_lshlrev_b32 v{T1}, 4, v{T1}')
        a.e(f's_lshl_b32 s{S_T0}, s{S_W}, 5')
        a.e(f'v_add_u32 v{T0}, s{S_T0}, v{T0}')
        a.e(f'v_lshlrev_b32 v{T0}, 8, v{T0}')
        for j in range(4):
            a.e(f'v_xor_b32 v{VLA+j}, {64*j}, v{T1}')
            a.e(f'v_add_u32 v{VLA+j}, v{VLA+j}, v{T0}')
        def kv_lds(j):
            c = j // 4
            return [f'ds_read_b128 v[{V_A+(r*16+j)*4}:{V_A+(r*16+j)*4+3}], v{VLA + j % 4} offset:{AREG + (c & 1) * 32768 + r * 4096}' for r in range(2)]
        def kv_extra(j):
            for r in range(2):
                x = f'v[{V_A+(r*16+j)*4}:{V_A+(r*16+j)*4+3}]'
                c1_ = '0' if j == 0 else f'v[{D1+4*r}:{D1+4*r+3}]'
                c2_ = '0' if j == 0 else f'v[{D2+4*r}:{D2+4*r+3}]'
                a.e(f'v_mfma_f32_16x16x32_bf16 v[{D1+4*r}:{D1+4*r+3}], v[{ONES}:{ONES+3}], {x}, {c1_}')
                a.e(f'v_mfma_f32_16x16x32_bf16 v[{D2+4*r}:{D2+4*r+3}], {x}, {x}, {c2_}')
        emit_gemm16(a, bar, 'P1KV', slabs['P1KV'], 4, '128',
                    acc_of=lambda r, t: V_ACC + (r * 4 + t) * 4, a_of=lambda r, j: V_A + (r * 16 + j) * 4,
                    a_wait=lambda j: None, a_issue=lambda j, t: None, wr=WR1, S=5, normal=True, extra=kv_extra, a_lds=kv_lds)
        a.label(ljoin)
        stamp()
        a.wait_vm_all()
        SUM = [(V_X, V_X + 1), (V_X + 2, V_X + 3)]
        l1 = a.newlabel('S1'); le = a.newlabel('SE')
        a.e(f's_cmp_eq_u32 s{S_L}, 0')
        a.e(f's_cbranch_scc0 {l1}')
        a.e(f'v_and_b32 v{T0}, 31, v{V_LANE}')
        a.e(f'v_lshlrev_b32 v{T0}, 7, v{T0}')
        a.e(f'v_lshrrev_b32 v{T1}, 5, v{V_LANE}')
        a.e(f'v_lshl_add_u32 v{T0}, v{T1}, 3, v{T0}')
        a.e(f's_lshl_b32 s{S_T0}, s{S_RH}, 12')
        a.e(f's_lshl_b32 s{S_T1}, s{S_CH}, 6')
        a.e(f's_add_u32 s{S_T0}, s{S_T0}, s{S_T1}')
        if AREG: a.e(f's_add_u32 s{S_T0}, s{S_T0}, {hex(AREG)}')
        a.e(f'v_add_u32 v{T0}, s{S_T0}, v{T0}')
        for j in range(4):
            a.e(f'ds_read_b64 v[{V_RES+4*j}:{V_RES+4*j+1}], v{T0} offset:{16*j}')
        a.e('s_waitcnt lgkmcnt(0)')
        for j in range(4):
            b = V_RES + 4 * j
            a.e(f'v_and_b32 v{b+3}, 0xffff0000, v{b+1}')
            a.e(f'v_lshlrev_b32 v{b+2}, 16, v{b+1}')
            a.e(f'v_and_b32 v{b+1}, 0xffff0000, v{b}')
            a.e(f'v_lshlrev_b32 v{b}, 16, v{b}')
        a.e(f'v_and_b32 v{T0}, 3, v{V_LANE}')
        a.e(f'v_bfe_u32 v{T1}, v{V_LANE}, 2, 2')
        a.e(f'v_lshrrev_b32 v{T2}, 4, v{V_LANE}')
        for r in range(2):
            s_, ss_ = SUM[r]
            a.e(f'v_mov_b32 v{s_}, v{D1+4*r}')
            a.e(f'v_mov_b32 v{ss_}, v{D2+4*r}')
            for i in range(1, 4):
                a.e(f'v_cmp_eq_u32 vcc, {i}, v{T0}')
                a.e('s_nop 1')
                a.e(f'v_cndmask_b32 v{ss_}, v{ss_}, v{D2+4*r+i}, vcc')
            a.e(f'v_cmp_eq_u32 vcc, v{T1}, v{T2}')
            a.e('s_nop 1')
            a.e(f'v_cndmask_b32 v{ss_}, 0, v{ss_}, vcc')
        emit_xreduce(a, [SUM[0][1], SUM[1][1]], [T0, T1])
        a.e(f's_branch {le}')
        a.label(l1)
        for r, raw in enumerate([D1, D2]):
            emit_sum_partials(a, raw, 8)
            a.e(f'v_mov_b32 v{SUM[r][0]}, v{raw}')
            a.e(f'v_mov_b32 v{SUM[r][1]}, v{raw+1}')
        emit_xreduce(a, [SUM[0][0], SUM[0][1], SUM[1][0], SUM[1][1]], [WR1, WR1 + 1, WR1 + 2, WR1 + 3])
        a.label(le)
        CSR = 120
        a.e(f'v_and_b32 v{T0}, 15, v{V_LANE}')
        a.e(f'v_lshlrev_b32 v{T0}, 2, v{T0}')
        a.e(f'v_add_u32 v{T0}, {hex(CSC)}, v{T0}')
        a.e(f'v_and_b32 v{T1}, 0x30, v{V_LANE}')
        for t in range(4):
            a.e(f'ds_read_b32 v{CSR+t}, v{T0} offset:{64*t}')
        KEEP = [(V_PQ + 0, V_PQ + 2), (V_PQ + 4, V_PQ + 6)]
        for r in range(2):
            emit_stats_from_sums(a, SUM[r][0], SUM[r][1], KEEP[r][0], KEEP[r][1], WR1)
        AI = [WR1, WR1 + 8]; BI = [WR1 + 4, WR1 + 12]
        for r in range(2):
            for i in range(4):
                a.e(f'ds_bpermute_b32 v{AI[r]+i}, v{T1}, v{KEEP[r][0]} offset:{4*i}')
                a.e(f'ds_bpermute_b32 v{BI[r]+i}, v{T1}, v{KEEP[r][1]} offset:{4*i}')
        a.e('s_waitcnt vmcnt(0) lgkmcnt(0)'); a.vm = []
        CSE = WR1 + 16
        for t in range(4): a.e(f'v_mov_b32 v{CSE+2*t}, v{CSR+t}')
        for r in range(2):
            for t in range(4):
                for i in (0, 2):
                    d = V_ACC + (r * 4 + t) * 4 + i
                    a.e(pk('mul', d, vp(d), vp(AI[r] + i)))
            for t in range(4):
                for i in (0, 2):
                    d = V_ACC + (r * 4 + t) * 4 + i
                    a.e(pk('fma', d, vp(BI[r] + i), vp(CSE + 2 * t), vp(d), mods=' op_sel_hi:[1,0,1]'))
        regs = [V_ACC + (r * 4 + t) * 4 + i for r in range(2) for t in range(2) for i in range(4)]
        emit_phi(a, regs, WR1)
        for t in range(4):
            b0 = V_ACC + t * 4; b1 = V_ACC + (4 + t) * 4
            a.e(f'v_cvt_pk_bf16_f32 v{b0}, v{b0}, v{b0+1}')
            a.e(f'v_cvt_pk_bf16_f32 v{b0+1}, v{b0+2}, v{b0+3}')
            a.e(f'v_cvt_pk_bf16_f32 v{b0+2}, v{b1}, v{b1+1}')
            a.e(f'v_cvt_pk_bf16_f32 v{b0+3}, v{b1+2}, v{b1+3}')
        a.e('s_nop 1')
        KVD = V_ACC + 16
        for h in range(2):
            a.e(f'v_mfma_f32_16x16x32_bf16 v[{KVD+4*h}:{KVD+4*h+3}], v[{V_ACC+4*h}:{V_ACC+4*h+3}], v[{V_ACC+8+4*h}:{V_ACC+8+4*h+3}], 0')
            a.e(f'v_mfma_f32_16x16x32_bf16 v[{KVD+8+4*h}:{KVD+8+4*h+3}], v[{V_ACC+4*h}:{V_ACC+4*h+3}], v[{ONES}:{ONES+3}], 0')
        a.e(f's_lshl_b32 s{S_T0}, s{S_W}, 11')
        a.e(f's_add_u32 s{S_T0}, s{S_T0}, {hex(SCR)}')
        a.e(f'v_lshlrev_b32 v{T0}, 4, v{V_LANE}')
        a.e(f'v_add_u32 v{T0}, s{S_T0}, v{T0}')
        a.e(f's_lshl_b32 s{S_T0}, s{S_W}, 7')
        a.e(f's_add_u32 s{S_T0}, s{S_T0}, {hex(SCR + 8192)}')
        a.e(f'v_add_u32 v{T2}, s{S_T0}, v{T1}')
        a.e('s_nop 4')
        a.e(f'ds_write_b128 v{T0}, v[{KVD}:{KVD+3}]')
        a.e(f'ds_write_b128 v{T0}, v[{KVD+4}:{KVD+7}] offset:1024')
        set_exec(a, 0x00010001)
        a.e(f'ds_write_b128 v{T2}, v[{KVD+8}:{KVD+11}]')
        a.e(f'ds_write_b128 v{T2}, v[{KVD+12}:{KVD+15}] offset:64')
        a.e('s_mov_b64 exec, -1')
        a.e('s_waitcnt lgkmcnt(0)')
        bar(('X', 'X1'))
        sk = a.newlabel('KVST')
        a.e(f's_cmp_lt_u32 s{S_W}, 2')
        a.e(f's_cbranch_scc0 {sk}')
        if opt.kv_atomic:
            a.e(f's_lshl_b32 s{S_T0}, s{S_W}, 10')
            a.e(f's_add_u32 s{S_T0}, s{S_T0}, {hex(SCR)}')
            a.e(f'v_lshlrev_b32 v{T0}, 2, v{V_LANE}')
            a.e(f'v_add_u32 v{T2}, s{S_T0}, v{T0}')
            a.e(f's_lshl_b32 s{S_T0}, s{S_W}, 6')
            a.e(f's_add_u32 s{S_T0}, s{S_T0}, {hex(SCR + 8192)}')
            a.e(f'v_add_u32 v{V_X}, s{S_T0}, v{T0}')
            KB = V_ACC
            for ww in range(4):
                for i in range(4):
                    a.e(f'ds_read_b32 v{KB+4*ww+i}, v{T2} offset:{ww*2048+256*i}')
                if ww == 2: a.e('s_waitcnt lgkmcnt(4)')
            for ww in range(4):
                a.e(f'ds_read_b32 v{KB+16+ww}, v{V_X} offset:{ww*128}')
            a.e(f's_mul_i32 s{S_T0}, s{S_CB2}, {KVREC}')
            a.e(f's_mul_i32 s{S_T1}, s{S_L}, {16*KVREC}')
            a.e(f's_add_u32 s{S_T0}, s{S_T0}, s{S_T1}')
            a.e(f's_add_u32 s{S_T0}, s{S_T0}, {hex(KVA_OFF)}')
            a.e(f's_lshl_b32 s{S_T1}, s{S_W}, 10')
            a.e(f's_add_u32 s{S_T1}, s{S_T1}, s{S_T0}')
            a.e(f's_lshl_b32 s{S_T2}, s{S_W}, 6')
            a.e(f's_add_u32 s{S_T2}, s{S_T2}, s{S_T0}')
            a.e(f's_add_u32 s{S_T2}, s{S_T2}, 2048')
            a.e('s_waitcnt lgkmcnt(0)')
            for i in (0, 2):
                a.e(pk('add', KB + i, vp(KB + i), vp(KB + 4 + i)))
                a.e(pk('add', KB + 8 + i, vp(KB + 8 + i), vp(KB + 12 + i)))
                a.e(pk('add', KB + i, vp(KB + i), vp(KB + 8 + i)))
            a.e(pk('add', KB + 16, vp(KB + 16), vp(KB + 18)))
            a.e(f'v_add_f32 v{KB+16}, v{KB+16}, v{KB+17}')
            for i in range(4):
                a.e(f'buffer_atomic_add_f32 v{KB+i}, v{T0}, {WS}, s{S_T1} offen offset:{256*i}')
            a.e('s_mov_b64 exec, 0xffff')
            a.e(f'buffer_atomic_add_f32 v{KB+16}, v{T0}, {WS}, s{S_T2} offen')
            a.e('s_mov_b64 exec, -1')
        else:
            a.e(f's_lshl_b32 s{S_T0}, s{S_W}, 10')
            a.e(f's_add_u32 s{S_T0}, s{S_T0}, {hex(SCR)}')
            a.e(f'v_lshlrev_b32 v{T0}, 4, v{V_LANE}')
            a.e(f'v_add_u32 v{T2}, s{S_T0}, v{T0}')
            a.e(f's_lshl_b32 s{S_T0}, s{S_W}, 6')
            a.e(f's_add_u32 s{S_T0}, s{S_T0}, {hex(SCR + 8192)}')
            a.e(f'v_add_u32 v{V_X}, s{S_T0}, v{T1}')
            KB = V_ACC
            for ww in range(4):
                a.e(f'ds_read_b128 v[{KB+4*ww}:{KB+4*ww+3}], v{T2} offset:{ww*2048}')
                a.e(f'ds_read_b128 v[{KB+16+4*ww}:{KB+16+4*ww+3}], v{V_X} offset:{ww*128}')
            a.e(f's_lshl_b32 s{S_T0}, s{S_CB2}, 4')
            a.e(f's_lshl_b32 s{S_T1}, s{S_G}, 1')
            a.e(f's_add_u32 s{S_T0}, s{S_T0}, s{S_T1}')
            a.e(f's_add_u32 s{S_T0}, s{S_T0}, s{S_RB2}')
            a.e(f's_mul_i32 s{S_T0}, s{S_T0}, {KVREC}')
            a.e(f's_add_u32 s{S_T0}, s{S_T0}, s{S_LOFF}')
            a.e(f's_add_u32 s{S_T0}, s{S_T0}, {hex(KVP_OFF)}')
            a.e(f's_lshl_b32 s{S_T1}, s{S_W}, 10')
            a.e(f's_add_u32 s{S_T1}, s{S_T1}, s{S_T0}')
            a.e(f's_lshl_b32 s{S_T2}, s{S_W}, 6')
            a.e(f's_add_u32 s{S_T2}, s{S_T2}, s{S_T0}')
            a.e(f's_add_u32 s{S_T2}, s{S_T2}, 2048')
            a.e('s_waitcnt lgkmcnt(0)')
            for base in (KB, KB + 16):
                for i in range(0, 4, 2):
                    a.e(pk('add', base + i, vp(base + i), vp(base + 4 + i)))
                    a.e(pk('add', base + 8 + i, vp(base + 8 + i), vp(base + 12 + i)))
                    a.e(pk('add', base + i, vp(base + i), vp(base + 8 + i)))
            a.e(f'buffer_store_dwordx4 v[{KB}:{KB+3}], v{T0}, {WS}, s{S_T1} offen sc1')
            set_exec(a, 0x00010001)
            a.e(f'buffer_store_dwordx4 v[{KB+16}:{KB+19}], v{T1}, {WS}, s{S_T2} offen sc1')
            a.e('s_mov_b64 exec, -1')
        a.e(f's_lshl_b32 s{S_T0}, s{S_L}, 11')
        a.e(f's_lshl_b32 s{S_T1}, s{S_CB2}, 7')
        a.e(f's_add_u32 s{S_T0}, s{S_T0}, s{S_T1}')
        a.e(f's_lshl_b32 s{S_T1}, s{S_W}, 6')
        a.e(f's_add_u32 s{S_T0}, s{S_T0}, s{S_T1}')
        a.e(f's_lshl_b32 s{S_T1}, s{S_G}, 3')
        a.e(f's_add_u32 s{S_T0}, s{S_T0}, s{S_T1}')
        a.e(f's_lshl_b32 s{S_T1}, s{S_RB2}, 2')
        a.e(f's_add_u32 s{S_T0}, s{S_T0}, s{S_T1}')
        a.e(f's_add_u32 s{S_T0}, s{S_T0}, {hex(KVF_OFF)}')
        a.e(f'v_mov_b32 v{V_X+4}, s{S_T0}')
        a.label(sk)
        a.vm = []
        stamp()
        if done('P1KV'): return True

        a.c('=== P1Q')
        QCS = V_ACC + 16
        a.e(f'v_and_b32 v{T1}, 0x30, v{V_LANE}')
        a.e(f'v_add_u32 v{T1}, {hex(CSC + 256)}, v{T1}')
        a.e(f'ds_read_b128 v[{QCS}:{QCS+3}], v{T1}')
        a.e(f'ds_read_b128 v[{QCS+4}:{QCS+7}], v{T1} offset:64')
        a.e('s_waitcnt lgkmcnt(0)')
        QAB = [(V_ACC + 24, V_ACC + 26), (V_ACC + 28, V_ACC + 30)]
        for r in range(2):
            a.e(f'v_mov_b32 v{QAB[r][0]}, v{KEEP[r][0]}')
            a.e(f'v_mov_b32 v{QAB[r][1]}, v{KEEP[r][1]}')
        def q_issue(j, t):
            if j == opt.kvflag_at and t == 1:
                fk = a.newlabel('KVFL')
                a.e(f's_cmp_lt_u32 s{S_W}, 2')
                a.e(f's_cbranch_scc0 {fk}')
                thr_value(a, S_THR, 1, xcc=True)
                a.e(f'v_mov_b32 v{V_X+5}, s{S_THR}')
                a.e('s_waitcnt vmcnt(0)')
                a.e('s_mov_b64 exec, 1')
                a.e(f'buffer_store_dword v{V_X+5}, v{V_X+4}, {WS}, 0 offen sc1')
                a.e('s_mov_b64 exec, -1')
                a.label(fk)
        emit_gemm16(a, bar, 'P1Q', slabs['P1Q'], 2, '64',
                    acc_of=lambda r, t: V_ACC + (r * 2 + t) * 4, a_of=lambda r, j: V_A + (r * 16 + j) * 4,
                    a_wait=lambda j: None, a_issue=q_issue, wr=96, S=8)
        for r in range(2):
            for t in range(2):
                emit_lnfold(a, V_ACC + (r * 2 + t) * 4, QCS + 4 * t, QAB[r][0], QAB[r][1], 4)
        emit_phi(a, [V_ACC + i for i in range(16)], 96)
        for r in range(2):
            for h in range(2):
                emit_pack(a, V_PQ + (r * 2 + h) * 2, V_ACC + (r * 2 + h) * 4, 4)
        stamp()
        sk = a.newlabel('MODE')
        a.e(f's_cmp_eq_u32 s{S_L}, 0')
        a.e(f's_cbranch_scc0 {sk}')
        a.e(f'v_and_b32 v{T1}, 31, v{V_LANE}')
        a.e(f'v_lshlrev_b32 v{T1}, 2, v{T1}')
        a.e(f's_lshl_b32 s{S_T0}, s{S_G}, 7')
        a.e(f's_add_u32 s{S_T0}, s{S_T0}, {hex(XID_OFF)}')
        emit_poll(a, T1, 0, soff=f's{S_T0}', opt=opt)
        a.e(f'v_and_b32 v{T2}, 7, v{T2}')
        a.e(f'v_cmp_eq_u32 vcc, s{S_XCC}, v{T2}')
        a.e('s_nop 1')
        a.e('s_cmp_eq_u64 vcc, -1')
        a.e(f's_cselect_b32 s{S_MODE}, 0, 1')
        if opt.force_safe: a.e(f's_mov_b32 s{S_MODE}, 1')
        a.label(sk)
        a.e(f's_lshl_b32 s{S_T0}, s{S_L}, 11')
        emit_poll(a, V_FKV, 1, soff=f's{S_T0}', opt=opt)
        stamp()
        RB = V_A + 64
        if opt.kv_atomic:
            a.e(f's_mul_i32 s{S_T0}, s{S_CB2}, {KVREC}')
            a.e(f's_mul_i32 s{S_T1}, s{S_L}, {16*KVREC}')
            a.e(f's_add_u32 s{S_T0}, s{S_T0}, s{S_T1}')
            a.e(f's_add_u32 s{S_T0}, s{S_T0}, {hex(KVA_OFF)}')
            a.e(f'v_lshlrev_b32 v{T0}, 4, v{V_LANE}')
            a.e(f'v_and_b32 v{T1}, 0x30, v{V_LANE}')
            a.vmem(f'buffer_load_dwordx4 v[{RB}:{RB+3}], v{T0}, {WS}, s{S_T0} offen sc1', 'kp')
            a.vmem(f'buffer_load_dwordx4 v[{RB+4}:{RB+7}], v{T0}, {WS}, s{S_T0} offen offset:1024 sc1', 'kp')
            a.vmem(f'buffer_load_dwordx4 v[{RB+8}:{RB+11}], v{T1}, {WS}, s{S_T0} offen offset:2048 sc1', 'kp')
            a.vmem(f'buffer_load_dwordx4 v[{RB+12}:{RB+15}], v{T1}, {WS}, s{S_T0} offen offset:2112 sc1', 'kp')
            a.wait_vm_all()
        else:
            a.e(f's_lshl_b32 s{S_T0}, s{S_CB2}, 4')
            a.e(f's_lshl_b32 s{S_T1}, s{S_W}, 2')
            a.e(f's_add_u32 s{S_T0}, s{S_T0}, s{S_T1}')
            a.e(f's_mul_i32 s{S_T0}, s{S_T0}, {KVREC}')
            a.e(f's_add_u32 s{S_T0}, s{S_T0}, s{S_LOFF}')
            a.e(f's_add_u32 s{S_T0}, s{S_T0}, {hex(KVP_OFF)}')
            a.e(f'v_lshlrev_b32 v{T0}, 4, v{V_LANE}')
            a.e(f'v_and_b32 v{T1}, 0x30, v{V_LANE}')
            PB = V_A
            for s4 in range(4):
                b = PB + 16 * s4
                a.vmem(f'buffer_load_dwordx4 v[{b}:{b+3}], v{T0}, {WS}, s{S_T0} offen sc1', 'kp')
                a.vmem(f'buffer_load_dwordx4 v[{b+4}:{b+7}], v{T0}, {WS}, s{S_T0} offen offset:1024 sc1', 'kp')
                a.vmem(f'buffer_load_dwordx4 v[{b+8}:{b+11}], v{T1}, {WS}, s{S_T0} offen offset:2048 sc1', 'kp')
                a.vmem(f'buffer_load_dwordx4 v[{b+12}:{b+15}], v{T1}, {WS}, s{S_T0} offen offset:2112 sc1', 'kp')
                if s4 < 3: a.e(f's_add_u32 s{S_T0}, s{S_T0}, {KVREC}')
            a.e(f's_lshl_b32 s{S_T0}, s{S_W}, 11')
            a.e(f's_add_u32 s{S_T0}, s{S_T0}, {hex(SCR)}')
            a.e(f'v_add_u32 v{T0}, s{S_T0}, v{T0}')
            a.e(f's_lshl_b32 s{S_T0}, s{S_W}, 7')
            a.e(f's_add_u32 s{S_T0}, s{S_T0}, {hex(SCR + 8192)}')
            a.e(f'v_add_u32 v{T2}, s{S_T0}, v{T1}')
            a.wait_vm_all()
            for i in range(0, 16, 2):
                a.e(pk('add', PB + i, vp(PB + i), vp(PB + 16 + i)))
                a.e(pk('add', PB + 32 + i, vp(PB + 32 + i), vp(PB + 48 + i)))
            for i in range(0, 16, 2):
                a.e(pk('add', PB + i, vp(PB + i), vp(PB + 32 + i)))
            a.e(f'ds_write_b128 v{T0}, v[{PB}:{PB+3}]')
            a.e(f'ds_write_b128 v{T0}, v[{PB+4}:{PB+7}] offset:1024')
            set_exec(a, 0x00010001)
            a.e(f'ds_write_b128 v{T2}, v[{PB+8}:{PB+11}]')
            a.e(f'ds_write_b128 v{T2}, v[{PB+12}:{PB+15}] offset:64')
            a.e('s_mov_b64 exec, -1')
            a.e(f'v_lshlrev_b32 v{T0}, 4, v{V_LANE}')
            a.e(f'v_add_u32 v{T0}, {hex(SCR)}, v{T0}')
            a.e(f'v_add_u32 v{T2}, {hex(SCR + 8192)}, v{T1}')
            a.e('s_waitcnt lgkmcnt(0)')
            bar(('X', 'X2'))
            for ww in range(4):
                b = RB + 16 * ww
                a.e(f'ds_read_b128 v[{b}:{b+3}], v{T0} offset:{ww*2048}')
                a.e(f'ds_read_b128 v[{b+4}:{b+7}], v{T0} offset:{ww*2048+1024}')
                a.e(f'ds_read_b128 v[{b+8}:{b+11}], v{T2} offset:{ww*128}')
                a.e(f'ds_read_b128 v[{b+12}:{b+15}], v{T2} offset:{ww*128+64}')
                if ww == 2: a.e('s_waitcnt lgkmcnt(8)')
            a.e('s_waitcnt lgkmcnt(0)')
            for i in range(0, 16, 2):
                a.e(pk('add', RB + i, vp(RB + i), vp(RB + 16 + i)))
                a.e(pk('add', RB + 32 + i, vp(RB + 32 + i), vp(RB + 48 + i)))
            for i in range(0, 16, 2):
                a.e(pk('add', RB + i, vp(RB + i), vp(RB + 32 + i)))
        OPB = V_ACC + 16
        emit_pack(a, OPB, RB, 16)
        a.e('s_nop 1')
        NUM = V_A; DEN = V_A + 16
        for r in range(2):
            for h in range(2):
                pq = V_PQ + (r * 2 + h) * 2
                n_ = NUM + (r * 2 + h) * 4; d_ = DEN + (r * 2 + h) * 4
                a.e(f'v_mfma_f32_16x16x16_bf16 v[{n_}:{n_+3}], v[{OPB+2*h}:{OPB+2*h+1}], v[{pq}:{pq+1}], 0')
                a.e(f'v_mfma_f32_16x16x16_bf16 v[{d_}:{d_+3}], v[{OPB+4+2*h}:{OPB+4+2*h+1}], v[{pq}:{pq+1}], 0')
        a.e(f's_lshl_b32 s{S_T0}, s{S_CB2}, 10')
        a.e(f's_add_u32 s{S_T0}, s{S_T0}, s{S_GH}')
        a.e(f's_add_u32 s{S_T1}, s{S_T0}, 0x4000')
        a.e('s_nop 4')
        for k in range(4): a.e(f'v_add_f32 v{DEN+4*k}, s{S_EPS6}, v{DEN+4*k}')
        for k in range(4): a.e(f'v_rcp_f32 v{DEN+4*k}, v{DEN+4*k}')
        a.e('s_nop 0')
        for k in range(4):
            for i in range(4): a.e(f'v_mul_f32 v{NUM+4*k+i}, v{NUM+4*k+i}, v{DEN+4*k}')
        OPK = V_A + 32
        emit_pack(a, OPK, NUM, 16)
        emit_mode_stores(a, [f'buffer_store_dwordx4 v[{OPK}:{OPK+3}], v{V_AB}, {WS}, s{S_T0} offen',
                             f'buffer_store_dwordx4 v[{OPK+4}:{OPK+7}], v{V_AB}, {WS}, s{S_T1} offen'], cold=True)
        emit_signal(a, ep(1))
        stamp()
        if done('P1Q'): return True

        ACC = V_ACC; WR = 80; TMP = V_A
        def small_gemm(phase, tail=None):
            a.fstamp(phase)
            emit_gemm32(a, bar, phase, slabs[phase], ACC, WR, tail=tail)
        def tile_store(pkb, base, gh=False, cold=False):
            soff(S_T0, base, gh=gh)
            emit_mode_stores(a, [f'buffer_store_dwordx4 v[{pkb}:{pkb+3}], v{V_TST}, {WS}, s{S_T0} offen',
                                 f'buffer_store_dwordx4 v[{pkb+4}:{pkb+7}], v{V_TST}, {WS}, s{S_T0} offen offset:512'], cold=cold)

        a.c('=== P3')
        stamp()
        small_gemm('P3')
        stamp()
        for i in range(0, 16, 2): a.e(pk('add', V_RES + i, vp(V_RES + i), vp(ACC + i)))
        emit_pack32(a, TMP, V_RES)
        tile_store(TMP, A1_OFF, cold=True)
        soff(S_T1, ST_OFF)
        emit_stats_partial32(a, V_RES, TMP + 8, f's{S_T1}', cold=True)
        emit_signal(a, ep(2))
        stamp()
        if done('P3'): return True

        a.c('=== P4')
        CS4 = TMP + 16; RAW = TMP + 32
        a.e(f'v_lshrrev_b32 v{T1}, 5, v{V_LANE}')
        a.e(f'v_lshlrev_b32 v{T1}, 4, v{T1}')
        a.e(f's_lshl_b32 s{S_T1}, s{S_CH}, 7')
        a.e(f's_add_u32 s{S_T1}, s{S_T1}, {hex(CSC + 384)}')
        a.e(f'v_add_u32 v{T1}, s{S_T1}, v{T1}')
        for j in range(4):
            a.e(f'ds_read_b128 v[{CS4+4*j}:{CS4+4*j+3}], v{T1} offset:{32*j}')
        a.e('s_waitcnt lgkmcnt(0)')
        stamp()
        def p4_tail():
            soff(S_T0, ST_OFF)
            for k in range(4):
                a.vmem(f'buffer_load_dwordx4 v[{RAW+4*k}:{RAW+4*k+3}], v{V_STS}, {WS}, s{S_T0} offen offset:{512*k} sc1', 'st')
        small_gemm('P4', tail=p4_tail)
        stamp()
        a.wait_vm_all()
        emit_sum_partials(a, RAW, 16)
        emit_xreduce(a, [RAW, RAW + 1], [RAW + 2, RAW + 3], over16=False)
        emit_stats_from_sums(a, RAW, RAW + 1, RAW + 4, RAW + 6, RAW + 8, double=True, keep=(V_MEAN, V_RS))
        emit_lnfold(a, ACC, CS4, RAW + 4, RAW + 6, 16)
        emit_gelu(a, ACC, 16, TMP + 48, V_PQ)
        emit_pack32(a, TMP, ACC)
        tile_store(TMP, A0_OFF, gh=True)
        gl = a.newlabel('GH'); gu = a.newlabel('GH'); gd = a.newlabel('GH')
        a.e(f's_cmp_eq_u32 s{S_RB}, 3')
        a.e(f's_cbranch_scc0 {gu}')
        a.e(f's_cmp_eq_u32 s{S_RH}, 1')
        a.e(f's_cbranch_scc0 {gd}')
        a.e(f's_bitcmp1_b32 s{S_CB}, 1')
        a.e(f's_cbranch_scc1 {gd}')
        a.e(f's_cmp_eq_u32 s{S_G}, 7')
        a.e(f's_cbranch_scc1 {gd}')
        a.e(f's_add_u32 s{S_T1}, s{S_G}, 1')
        a.e(f's_mul_i32 s{S_T2}, s{S_T1}, {18*16384}')
        a.e(f's_lshl_b32 s{S_T3}, s{S_T1}, 8')
        set_exec(a, 0xc0000000)
        a.e(f's_branch {gl}')
        a.label(gu)
        a.e(f's_cmp_eq_u32 s{S_RB}, 0')
        a.e(f's_cbranch_scc0 {gd}')
        a.e(f's_cmp_eq_u32 s{S_RH}, 0')
        a.e(f's_cbranch_scc0 {gd}')
        a.e(f's_bitcmp1_b32 s{S_CB}, 1')
        a.e(f's_cbranch_scc0 {gd}')
        a.e(f's_cmp_eq_u32 s{S_G}, 0')
        a.e(f's_cbranch_scc1 {gd}')
        a.e(f's_sub_u32 s{S_T1}, s{S_G}, 1')
        a.e(f's_mul_i32 s{S_T2}, s{S_T1}, {18*16384}')
        a.e(f's_add_u32 s{S_T2}, s{S_T2}, {17*16384}')
        a.e(f's_lshl_b32 s{S_T3}, s{S_T1}, 8')
        a.e(f's_add_u32 s{S_T3}, s{S_T3}, 128')
        set_exec(a, 0x00000003)
        a.label(gl)
        a.e(f's_lshl_b32 s{S_T0}, s{S_CB}, 1')
        a.e(f's_add_u32 s{S_T0}, s{S_T0}, s{S_CH}')
        a.e(f's_lshl_b32 s{S_T0}, s{S_T0}, 10')
        a.e(f's_add_u32 s{S_T2}, s{S_T2}, s{S_T0}')
        a.e(f'v_and_b32 v{T0}, 0x3fff, v{V_TST}')
        a.e(f'v_and_b32 v{T0}, 0x3ff, v{T0}')
        a.e(f'buffer_store_dwordx4 v[{TMP}:{TMP+3}], v{T0}, {WS}, s{S_T2} offen sc1')
        a.e(f'buffer_store_dwordx4 v[{TMP+4}:{TMP+7}], v{T0}, {WS}, s{S_T2} offen offset:512 sc1')
        a.e('s_mov_b64 exec, -1')
        a.e(f's_and_b32 s{S_T0}, s{S_CB}, 1')
        a.e(f's_lshr_b32 s{S_T1}, s{S_CB}, 2')
        a.e(f's_lshl_b32 s{S_T1}, s{S_T1}, 1')
        a.e(f's_add_u32 s{S_T0}, s{S_T0}, s{S_T1}')
        a.e(f's_lshl_b32 s{S_T0}, s{S_T0}, 1')
        a.e(f's_add_u32 s{S_T0}, s{S_T0}, s{S_CH}')
        a.e(f's_lshl_b32 s{S_T0}, s{S_T0}, 2')
        a.e(f's_add_u32 s{S_T3}, s{S_T3}, s{S_T0}')
        a.e(f's_lshl_b32 s{S_T0}, s{S_L}, 11')
        a.e(f's_add_u32 s{S_T3}, s{S_T3}, s{S_T0}')
        a.e(f's_add_u32 s{S_T3}, s{S_T3}, {hex(HF_OFF)}')
        thr_value(a, S_THR, ep(3), xcc=True)
        a.e(f'v_mov_b32 v{T0}, s{S_T3}')
        a.e(f'v_mov_b32 v{T1}, s{S_THR}')
        a.e('s_waitcnt vmcnt(0)')
        a.e('s_mov_b64 exec, 1')
        a.e(f'buffer_store_dword v{T1}, v{T0}, {WS}, 0 offen sc1')
        a.e('s_mov_b64 exec, -1')
        a.label(gd)
        emit_signal(a, ep(3))
        stamp()
        if done('P4'): return True

        a.c('=== P5')
        stamp()
        small_gemm('P5')
        stamp()
        a.e(f'v_mul_f32 v{TMP+10}, v{V_MEAN}, v{V_RS}')
        a.e(f'v_sub_f32 v{TMP+10}, 0, v{TMP+10}')
        a.e(f'v_mov_b32 v{TMP+8}, v{V_RS}')
        for i in range(0, 16, 2):
            a.e(pk('fma', ACC + i, vp(V_RES + i), vp(TMP + 8), vp(ACC + i), mods=' op_sel_hi:[1,0,1]'))
        for i in range(0, 16, 2):
            a.e(pk('add', ACC + i, vp(ACC + i), vp(TMP + 10), mods=' op_sel_hi:[1,0]'))
        emit_pack32(a, TMP, ACC)
        tile_store(TMP, A1_OFF)
        soff(S_T1, ST_OFF)
        emit_stats_partial32(a, ACC, TMP + 12, f's{S_T1}')
        for i in range(0, 16, 2): a.e(pk('add', V_RES + i, vp(V_RES + i), vp(ACC + i)))
        emit_signal(a, ep(4))
        stamp()
        if done('P5'): return True

        a.c('=== P6')
        CS6 = V_ACC; ACC6 = 192; WR6 = 96
        a.e(f'v_and_b32 v{T1}, 0x30, v{V_LANE}')
        a.e(f'v_add_u32 v{T1}, {hex(CSC + 640)}, v{T1}')
        for t in range(7):
            a.e(f'ds_read_b128 v[{CS6+4*t}:{CS6+4*t+3}], v{T1} offset:{64*t}')
        a.e('s_waitcnt lgkmcnt(0)')
        emit_poll(a, V_FSB, ep(4), opt=opt)
        stamp()
        def p6_load(j):
            a.e(f's_lshl_b32 s{S_T0}, s{S_RB2}, {13 if opt.rot else 31}')
            if not opt.rot: a.e(f's_mov_b32 s{S_T0}, 0')
            a.e(f's_xor_b32 s{S_T0}, s{S_T0}, {hex((j // 4) * 4096)}')
            a.e(f's_add_u32 s{S_T0}, s{S_T0}, {hex(A1_OFF)}')
            a.e(f's_add_u32 s{S_T1}, s{S_T0}, 0x4000')
            for r in range(2):
                d = V_A + ((j % 8) * 2 + r) * 4
                a.vmem(f'buffer_load_dwordx4 v[{d}:{d+3}], v{V_AB}, {WS}, s{S_T0 if r == 0 else S_T1} offen offset:{(j%4)*1024} sc1', ('A', j))
        RAW6 = [V_PQ, 248]
        def p6_issue(j, t):
            if t == 1:
                if j + opt.D_p6 < 16:
                    p6_load(j + opt.D_p6)
                elif j + opt.D_p6 == 16:
                    soff(S_T0, ST_OFF)
                    for r in range(2):
                        a.vmem(f'buffer_load_dwordx4 v[{RAW6[r]}:{RAW6[r]+3}], v{V_STB}, {WS}, s{S_T0} offen offset:{256*r} sc1', 'st')
                        a.vmem(f'buffer_load_dwordx4 v[{RAW6[r]+4}:{RAW6[r]+7}], v{V_STB}, {WS}, s{S_T0} offen offset:{256*r+512} sc1', 'st')
        a.fstamp('P6')
        for j in range(opt.D_p6): p6_load(j)
        emit_gemm16(a, bar, 'P6', slabs['P6'], 7, '224',
                    acc_of=lambda r, t: ACC6 + (r * 7 + t) * 4, a_of=lambda r, j: V_A + ((j % 8) * 2 + r) * 4,
                    a_wait=lambda j: a.count_vm(('A', j)), a_issue=p6_issue, wr=WR6, S=8)
        stamp()
        a.wait_vm_all()
        for r in range(2): emit_sum_partials(a, RAW6[r], 8)
        emit_xreduce(a, [RAW6[0], RAW6[0] + 1, RAW6[1], RAW6[1] + 1], [V_X, V_X + 1, V_X + 2, V_X + 3])
        AB6 = [(92, 94), (RAW6[1] + 4, RAW6[1] + 6)]
        for r in range(2):
            emit_stats_from_sums(a, RAW6[r], RAW6[r] + 1, AB6[r][0], AB6[r][1], V_X)
        a.e(f's_lshl_b32 s{S_T0}, s{S_G}, 4')
        a.e(f's_lshl_b32 s{S_T1}, s{S_RB2}, 3')
        a.e(f's_add_u32 s{S_T0}, s{S_T0}, s{S_T1}')
        a.e(f's_lshl_b32 s{S_T1}, s{S_W}, 1')
        a.e(f's_add_u32 s{S_T0}, s{S_T0}, s{S_T1}')
        a.e(f's_mul_i32 s{S_T0}, s{S_T0}, 57344')
        a.e(f's_lshr_b32 s{S_T1}, s{S_CB2}, 1')
        a.e(f's_mul_i32 s{S_T1}, s{S_T1}, 7168')
        a.e(f's_add_u32 s{S_T0}, s{S_T0}, s{S_T1}')
        a.e(f's_add_u32 s{S_T0}, s{S_T0}, {hex(G_OFF)}')
        a.e(f's_and_b32 s{S_T1}, s{S_CB2}, 1')
        a.e(f's_mul_i32 s{S_U0}, s{S_T1}, 3072')
        a.e(f's_add_u32 s{S_U0}, s{S_U0}, s{S_T0}')
        a.e(f's_add_u32 s{S_U1}, s{S_U0}, 57344')
        a.e(f's_lshl_b32 s{S_T1}, s{S_T1}, 3')
        a.e(f's_add_u32 s{S_U2}, s{S_T0}, s{S_T1}')
        a.e(f's_add_u32 s{S_U2}, s{S_U2}, 6144')
        a.e(f's_add_u32 s{S_U3}, s{S_U2}, 57344')
        a.e(f'v_lshlrev_b32 v{V_X+4}, 4, v{V_LANE}')
        for r in range(2):
            emit_lnfold(a, ACC6 + r * 28, CS6, AB6[r][0], AB6[r][1], 28)
            emit_gelu(a, ACC6 + r * 28, 28, V_A, V_PQ + 4)
            pkb = V_A + 16 + r * 16
            emit_pack(a, pkb, ACC6 + r * 28, 28)
            st = [f'buffer_store_dwordx4 v[{pkb+4*j}:{pkb+4*j+3}], v{V_X+4}, {WS}, s{S_U0+r} offen offset:{1024*j}' for j in range(3)]
            st.append(f'buffer_store_dwordx2 v[{pkb+12}:{pkb+13}], v{V_X+4}, {WS}, s{S_U2+r} offen')
            emit_mode_stores(a, st, cold=bool(opt.g_cold))
        emit_signal(a, ep(5))
        stamp()
        if done('P6'): return True

        a.c('=== P7')
        if opt.p7_self:
            VG, VF = V_A + 100, V_A + 101
            a.e(f's_lshl_b32 s{S_T0}, s{S_G}, 4'); a.e(f's_lshl_b32 s{S_T1}, s{S_RB}, 2'); a.e(f's_add_u32 s{S_T0}, s{S_T0}, s{S_T1}')
            a.e(f's_add_u32 s{S_T0}, s{S_T0}, s{S_W}'); a.e(f's_mul_i32 s{S_T0}, s{S_T0}, 57344')
            a.e(f'v_lshlrev_b32 v{VG}, 4, v{V_LANE}'); a.e(f'v_add_u32 v{VG}, s{S_T0}, v{VG}')
            for p_ in range(8):
                a.e(f's_and_b32 s{S_P7+p_}, s{S_RB}, {3 if opt.rot else 0}'); a.e(f's_lshl_b32 s{S_P7+p_}, s{S_P7+p_}, 1')
                a.e(f's_xor_b32 s{S_P7+p_}, s{S_P7+p_}, {p_}'); a.e(f's_mul_i32 s{S_P7+p_}, s{S_P7+p_}, 7168')
            a.e(f's_lshl_b32 s{S_T2}, s{S_G}, 9'); a.e(f's_add_u32 s{S_T2}, s{S_T2}, {hex(LF_OFF)}')
            a.e(f's_and_b32 s{S_T3}, s{S_RB}, 1'); a.e(f's_lshl_b32 s{S_T3}, s{S_T3}, 1'); a.e(f's_add_u32 s{S_T3}, s{S_T3}, s{S_RH}')
            a.e(f's_lshl_b32 s{S_T3}, s{S_T3}, 7'); a.e(f's_add_u32 s{S_T3}, s{S_T3}, s{S_T2}')
            a.e(f's_lshr_b32 s{S_T4}, s{S_RB}, 1'); a.e(f's_lshl_b32 s{S_T4}, s{S_T4}, 6'); a.e(f's_add_u32 s{S_T3}, s{S_T3}, s{S_T4}')
            a.e(f'v_and_b32 v{VF}, 15, v{V_LANE}'); a.e(f'v_lshlrev_b32 v{VF}, 2, v{VF}'); a.e(f'v_add_u32 v{VF}, s{S_T3}, v{VF}')
            a.e(f's_lshl_b32 s{S_T3}, s{S_R}, 2'); a.e(f's_add_u32 s{S_T3}, s{S_T3}, s{S_T2}')
            a.e(f'v_and_b32 v{T1}, 3, v{V_LANE}'); a.e(f'v_lshlrev_b32 v{T1}, 7, v{T1}'); a.e(f'v_add_u32 v{T1}, s{S_T3}, v{T1}')
            a.e(f'v_cmp_lt_u32 vcc, 15, v{V_LANE}'); a.e('s_nop 1'); a.e(f'v_cndmask_b32 v{VF}, v{VF}, v{T1}, vcc')
            emit_poll(a, VF, ep(5), opt=opt)
            stamp()
            def pieces7(c):
                state = {'last': None}
                def mk(k):
                    def f():
                        if k == 0: a.e(f's_add_u32 m0, s{S_W4K}, {hex(AREG + (c % 4) * 16384)}')
                        p_, i_ = divmod(4 * c + k, 7)
                        const = G_OFF + (i_ - k) * 1024
                        if state['last'] != (p_, const):
                            a.e(f's_add_u32 s{S_T0}, s{S_P7+p_}, {hex(const & 0xffffffff)}'); state['last'] = (p_, const)
                        a.vmem(f'buffer_load_dwordx4 v{VG}, {WS}, s{S_T0} offen offset:{k*1024} sc1 lds', ('A', c))
                    return f
                return [mk(k) for k in range(4)]
            emit_gemm32(a, bar, 'P7', slabs['P7'], ACC, WR, a_pieces=pieces7)
        else:
            stamp()
            small_gemm('P7')
        stamp()
        for i in range(0, 16, 2): a.e(pk('add', V_RES + i, vp(V_RES + i), vp(ACC + i)))
        emit_pack32(a, TMP, V_RES)
        return False

    stopped = run_layer()
    if not stopped:
        fin = a.newlabel('FIN'); TMP = V_A
        a.e(f's_cmp_eq_u32 s{S_L}, 1')
        a.e(f's_cbranch_scc1 {fin}')
        a.e(f's_mov_b32 s{S_T0}, {hex(A2_OFF)}')
        emit_mode_stores(a, [f'buffer_store_dwordx4 v[{TMP}:{TMP+3}], v{V_TST}, {WS}, s{S_T0} offen',
                             f'buffer_store_dwordx4 v[{TMP+4}:{TMP+7}], v{V_TST}, {WS}, s{S_T0} offen offset:512'], cold=True)
        a.e(f's_mov_b32 s{S_T1}, {hex(ST_OFF)}')
        emit_stats_partial32(a, V_RES, TMP + 8, f's{S_T1}')
        a.e(f's_add_u32 s{S_EP}, s{S_EP}, 6')
        emit_signal(a, f's{S_EP}')
        if opt.timing:
            dump([tmreg(i) for i in range(tm[0])])
        a.e(f's_mov_b32 s{S_L}, 1')
        a.e(f's_mov_b32 s{S_LOFF}, {hex(KVP_L)}')
        a.e(f's_mov_b32 s{S_COLD}, s{S_MODE}')
        for i in range(3): a.e(f's_mov_b32 s{S_PA+i}, s{S_WS+i}')
        a.e(f's_mov_b32 s{S_PA+3}, 0x20000')
        a.e(f'v_mov_b32 v{V_P1}, v{V_AB}')
        for c in range(4):
            a.e(f's_xor_b32 s{S_RK+c}, s{S_ROTK}, {c}')
            a.e(f's_lshl_b32 s{S_RK+c}, s{S_RK+c}, 12')
            a.e(f's_add_u32 s{S_RK+c}, s{S_RK+c}, {hex(A2_OFF)}')
        a.e(f's_mov_b32 s{S_ASTR}, 1024')
        a.e(f's_branch {LOOP}')
        a.label(fin)
        emit_pack(a, TMP, V_RES, 16)
        OS = f's[{S_OUT}:{S_OUT+3}]'
        for j in range(4):
            a.e(f'buffer_store_dwordx2 v[{TMP+2*j}:{TMP+2*j+1}], v{V_XRM}, {OS}, 0 offen offset:{16*j}')
    a.label('L_END_COMPUTE')
    nn = a.newlabel('NON')
    a.e(f's_or_b32 s{S_T0}, s2, s{S_W}')
    a.e(f's_cmp_eq_u32 s{S_T0}, 0')
    a.e(f's_cbranch_scc0 {nn}')
    a.e(f's_add_u32 s{S_T0}, s{S_V}, 1')
    a.e(f'v_mov_b32 v{V_T0}, s{S_T0}')
    a.e(f'v_mov_b32 v{V_T1}, {hex(NONCE_OFF)}')
    a.e('s_mov_b64 exec, 1')
    a.e(f'buffer_store_dword v{V_T0}, v{V_T1}, {WS}, 0 offen')
    a.e('s_mov_b64 exec, -1')
    a.label(nn)
    stamp()
    if opt.timing: dump([tmreg(i) for i in range(tm[0])] + ([85] if False else []))
    if opt.fine: dump([freg(i) for i in range(fs[0])])
    if opt.wall:
        a.e('s_waitcnt vmcnt(0)')
        a.e('s_memrealtime s[82:83]'); a.e('s_memtime s[80:81]'); a.e('s_waitcnt lgkmcnt(0)')
        dump([84, 82, 85, 80])
    a.e('s_waitcnt vmcnt(0)')
    a.e('s_endpgm')
    return evq


def gen_loader(a, opt, events):
    VN, VKV, VQ, VW3, VKVn, VQn = 8, 12, 16, 20, 28, 32
    VT0, VT1, VT2, VT3 = 1, 2, 3, 4
    a.c('--- loader setup')
    def srd(s, p, size):
        a.e(f's_mov_b32 s{s}, s{p}'); a.e(f's_mov_b32 s{s+1}, s{p+1}')
        a.e(f's_mov_b32 s{s+2}, {hex(size)}'); a.e(f's_mov_b32 s{s+3}, 0x20000')
    srd(S_WQKV, S_PTR + 2, 512 * 1536 * 2)
    srd(S_WO, S_PTR + 4, 512 * 512 * 2)
    srd(S_W1, S_PTR + 8, 512 * 512 * 2)
    srd(S_W2, S_PTR + 10, 512 * 512 * 2)
    srd(S_W3, S_PTR + 12, 512 * 1792 * 2)
    srd(S_W4, S_PTR + 14, 1792 * 512 * 2)
    CBS, CBK, CB6, CB7 = 64, 68, 72, 76
    a.e(f's_lshl_b32 s{S_T1}, s{S_RB2}, 1')
    a.e(f's_add_u32 s{S_T1}, s{S_T1}, s{S_CB2}')
    a.e(f's_and_b32 s{S_T1}, s{S_T1}, {3 if opt.rot else 0}')
    for c in range(4):
        a.e(f's_xor_b32 s{CBK+c}, s{S_T1}, {c}')
        a.e(f's_mul_i32 s{CBK+c}, s{CBK+c}, {128*3072}')
    def late_tables():
        rm = 3 if opt.rot else 0
        for c in range(4):
            a.e(f's_and_b32 s{CBS+c}, s{S_RB}, {rm}')
            a.e(f's_xor_b32 s{CBS+c}, s{CBS+c}, {c}')
            a.e(f's_lshl_b32 s{CBS+c}, s{CBS+c}, 17')
            a.e(f's_lshl_b32 s{CB6+c}, s{S_RB2}, 1')
            a.e(f's_and_b32 s{CB6+c}, s{CB6+c}, {rm}')
            a.e(f's_xor_b32 s{CB6+c}, s{CB6+c}, {c}')
            a.e(f's_mul_i32 s{CB6+c}, s{CB6+c}, {128*3584}')
        for p_ in range(8):
            a.e(f's_and_b32 s{CB7+p_}, s{S_RB}, {rm}')
            a.e(f's_lshl_b32 s{CB7+p_}, s{CB7+p_}, 1')
            a.e(f's_xor_b32 s{CB7+p_}, s{CB7+p_}, {p_}')
            a.e(f's_mul_i32 s{CB7+p_}, s{CB7+p_}, {224*1024}')

    def cs_issue():
        a.c('cs pieces')
        c1 = a.newlabel('CS'); c2 = a.newlabel('CS'); c3 = a.newlabel('CS')
        a.e(f's_min_u32 s{92}, s2, 239')
        a.e(f's_lshr_b32 s{93}, s{92}, 2')
        a.e(f's_and_b32 s{94}, s{92}, 3')
        a.e(f's_cmp_lt_u32 s{93}, 24')
        a.e(f's_cbranch_scc0 {c1}')
        for i in range(3): a.e(f's_mov_b32 s{S_CSRD+i}, s{S_WQKV+i}')
        a.e(f's_mov_b32 s{S_T0}, 3072')
        a.e(f's_lshl_b32 s{S_T1}, s{93}, 7')
        a.e(f's_branch {c3}')
        a.label(c1)
        a.e(f's_cmp_lt_u32 s{93}, 32')
        a.e(f's_cbranch_scc0 {c2}')
        for i in range(3): a.e(f's_mov_b32 s{S_CSRD+i}, s{S_W1+i}')
        a.e(f's_mov_b32 s{S_T0}, 1024')
        a.e(f's_sub_u32 s{S_T1}, s{93}, 24')
        a.e(f's_lshl_b32 s{S_T1}, s{S_T1}, 7')
        a.e(f's_branch {c3}')
        a.label(c2)
        for i in range(3): a.e(f's_mov_b32 s{S_CSRD+i}, s{S_W3+i}')
        a.e(f's_mov_b32 s{S_T0}, 3584')
        a.e(f's_sub_u32 s{S_T1}, s{93}, 32')
        a.e(f's_lshl_b32 s{S_T1}, s{S_T1}, 7')
        a.label(c3)
        a.e(f's_mov_b32 s{S_CSRD+3}, 0x20000')
        a.e(f'v_lshrrev_b32 v{VT1}, 3, v{V_LANE}')
        a.e(f'v_mul_lo_u32 v{VT1}, v{VT1}, s{S_T0}')
        a.e(f'v_and_b32 v{VT2}, 7, v{V_LANE}')
        a.e(f'v_lshl_add_u32 v{VT1}, v{VT2}, 4, v{VT1}')
        a.e(f'v_add_u32 v{VT1}, s{S_T1}, v{VT1}')
        a.e(f's_lshl_b32 s{S_T1}, s{94}, 7')
        a.e(f's_mul_i32 s{S_T1}, s{S_T1}, s{S_T0}')
        a.e(f's_lshl_b32 s{S_T0}, s{S_T0}, 3')
        a.e(f's_mov_b32 m0, {hex(CSL)}')
        for p in range(16):
            a.e('s_nop 0')
            a.vmem(f'buffer_load_dwordx4 v{VT1}, s[{S_CSRD}:{S_CSRD+3}], s{S_T1} offen lds', 'cs')
            if p < 15:
                a.e('s_add_u32 m0, m0, 1024')
                a.e(f's_add_u32 s{S_T1}, s{S_T1}, s{S_T0}')
    dg = [0]
    def dstamp():
        if opt.startdiag:
            a.e(f's_memtime s[{84+2*dg[0]}:{85+2*dg[0]}]') if False else None
            a.e('s_memtime s[98:99]'); a.e('s_waitcnt lgkmcnt(0)')
            a.e('s_sub_u32 s98, s98, s100')
            a.e(f'v_mov_b32 v{100+dg[0]}, s98'); dg[0] += 1
    dstamp()
    cs_issue()
    a.e(f'v_lshrrev_b32 v{VT0}, 3, v{V_LANE}')
    a.e(f'v_bfe_u32 v{VT1}, v{VT0}, 1, 2')
    a.e(f'v_lshlrev_b32 v{VT1}, 1, v{VT1}')
    a.e(f'v_and_b32 v{VT2}, 7, v{V_LANE}')
    a.e(f'v_xor_b32 v{VT2}, v{VT2}, v{VT1}')
    a.e(f'v_and_b32 v{VT1}, 3, v{VT2}')
    a.e(f'v_lshlrev_b32 v{VT3}, 4, v{VT1}')
    a.e(f'v_lshrrev_b32 v{VT1}, 2, v{VT2}')
    a.e(f'v_lshl_add_u32 v{VT3}, v{VT1}, 10, v{VT3}')
    a.e(f's_lshl_b32 s{S_T0}, s{S_CB2}, 6')
    a.e(f's_add_u32 s{S_T1}, s{S_T0}, 1024')
    a.e(f'v_add_u32 v{VT3}, s{S_T1}, v{VT3}')
    a.e(f'v_lshrrev_b32 v{VT1}, 2, v{VT0}')
    a.e(f'v_lshlrev_b32 v{VT1}, 3, v{VT1}')
    a.e(f'v_and_b32 v{VT2}, 3, v{VT0}')
    a.e(f'v_add_u32 v{VT1}, v{VT1}, v{VT2}')
    a.e(f'v_mul_u32_u24 v{VT1}, 3072, v{VT1}')
    a.e(f'v_add_u32 v{VT1}, v{VT1}, v{VT3}')
    for p in range(4):
        off = (16 * (p & 1) + 4 * (p >> 1)) * 3072 - p * 1024
        a.e(f'v_add_u32 v{VKVn+p}, {hex(off & 0xffffffff)}, v{VT1}')
    a.e(f'v_mul_u32_u24 v{VKV}, 3072, v{VT0}')
    a.e(f'v_add_u32 v{VKV}, v{VKV}, v{VT3}')
    for j in range(1, 4): a.e(f'v_add_u32 v{VKV+j}, {hex(j*(8*3072-1024))}, v{VKV}')

    layers = sorted(set(e[0] for e in events))
    slabs = {L: build_slabs(L) for L in layers}
    stream = []
    needed = set((e[0], e[2], e[3]) for e in events if e[1] == 'B')
    for L in layers:
        for p in PHASES:
            for ci, ch in enumerate(slabs[L][p]):
                if (L, p, ci) in needed: stream += ch
    released = set()
    log = []; cur = ['start']
    opt._log = log
    st = {'issued': 0}
    win = [opt.window0]
    def overlaps_unreleased(s, idx):
        for k in range(idx):
            o = stream[k]
            if (o.layer, o.phase, o.chunk) in released: continue
            if o.addr < s.addr + s.size and s.addr < o.addr + o.size: return True
        return False
    def emit_slab(s):
        kind = s.kind; tag = (s.layer, s.phase, s.chunk)
        if kind in opt.dbg_skip.split(','): return
        if kind in ('WO', 'W1', 'W2', 'W4'):
            srd_ = {'WO': S_WO, 'W1': S_W1, 'W2': S_W2, 'W4': S_W4}[kind]; vb = VN; rs = 1024
        elif kind == 'KV': srd_, vb, rs = S_WQKV, (VKVn if s.layer == 0 else VKV), 3072
        elif kind == 'Q': srd_, vb, rs = S_WQKV, (VQn if s.layer == 0 else VQ), 3072
        else: srd_, vb, rs = S_W3, VW3, 3584
        R4 = f's[{srd_}:{srd_+3}]'
        def grp(addr, srow, ps, v0):
            a.e(f's_mov_b32 m0, {hex(addr)}')
            if kind == 'W4':
                p_, rr_ = divmod(srow, 224); tb_ = CB7 + p_
            else:
                c_, rr_ = divmod(srow, 128); tb_ = {'KV': CBK, 'Q': CBK, 'W3': CB6}.get(kind, CBS) + c_
            a.e(f's_add_u32 s{S_T0}, s{tb_}, {hex(rr_*rs)}')
            for k, p in enumerate(ps):
                a.vmem(f'buffer_load_dwordx4 v{vb+p}, {R4}, s{S_T0} offen offset:{k*1024} {"nt " if opt.w_nt else ""}lds', tag)
        if kind == 'W3':
            grp(s.addr, s.srow, [0, 1, 2, 3], 0); grp(s.addr + 4096, s.srow, [4, 5, 6], 0)
        elif kind == 'W4' and s.srow2 != s.srow + 16:
            grp(s.addr, s.srow, [0, 1], 0); grp(s.addr + 2048, s.srow2, [0, 1], 0)
        else:
            grp(s.addr, s.srow, [0, 1, 2, 3], 0)
        if len(a.vm) > win[0]:
            a.e(f's_waitcnt vmcnt({win[0]})')
            a.vm = a.vm[len(a.vm) - win[0]:]
    plan = {}
    opt._plan = plan
    free = [56, 56]
    def need_slots(s): return (4, 3) if s.kind == 'W3' else (2, 2)
    def park_policy(key):
        if not opt.park: return
        name = key.split('.', 1)[1] if key[0] in '01' else None
        if name is None: return
        L = int(key[0])
        if name in opt.park_w3:
            cand = [s for s in stream[st['issued']:] if s.layer == L and s.phase == 'P6' and s.chunk >= 1]; cap = opt.park_w3[name]
        elif name in opt.park_caps:
            cand = [s for s in stream[st['issued']:] if s.layer == L and s.phase == 'P7' and s.chunk >= 6]; cap = opt.park_caps[name]
        else:
            return
        for s in cand:
            if getattr(s, 'parked', False): continue
            n0, n1 = need_slots(s)
            if cap <= 0 or free[0] < n0 or free[1] < n1: break
            s.parked = True; free[0] -= n0; free[1] -= n1; cap -= 1
            plan.setdefault(key, []).append(('park', s))
    def issue(cap, must=None):
        n = 0; nu = 0
        while st['issued'] < len(stream):
            s = stream[st['issued']]
            forced = must is not None and any((o.layer, o.phase, o.chunk) == must for o in stream[st['issued']:])
            pk_ = getattr(s, 'parked', False)
            if not forced and not pk_ and n + s.npieces > cap: break
            if not forced and pk_ and (nu >= opt.unpark_max or must is not None): break
            if overlaps_unreleased(s, st['issued']):
                assert not forced, ('deadlock', must, s.layer, s.phase, s.chunk)
                break
            if pk_:
                plan.setdefault(cur[0], []).append(('unpark', s)); nu += 1
                n0, n1 = need_slots(s); free[0] += n0; free[1] += n1
                st['issued'] += 1
                log.append((cur[0], s.layer, s.phase + '*', s.chunk, forced))
                continue
            emit_slab(s); st['issued'] += 1; n += s.npieces
            log.append((cur[0], s.layer, s.phase, s.chunk, forced))
    issue(64)
    dstamp()
    def late_setup():
        a.e('s_waitcnt lgkmcnt(0)')
        a.e(f's_mul_i32 s{S_B}, s{S_V}, 0x9e3779b1')
        a.e(f's_add_u32 s{S_B}, s{S_B}, 0x7f4a7c15')
        a.e(f's_and_b32 s{S_B}, s{S_B}, 0xffffff00')
        a.e(f's_lshl_b32 s{S_T0}, s{S_G}, 7')
        a.e(f's_lshl_b32 s{S_T1}, s{S_R}, 2')
        a.e(f's_add_u32 s{S_T0}, s{S_T0}, s{S_T1}')
        a.e(f's_add_u32 s{S_T0}, s{S_T0}, {hex(XID_OFF)}')
        a.e(f'v_mov_b32 v{VT1}, s{S_T0}')
        a.e(f's_add_u32 s{S_T1}, s{S_B}, s{S_XCC}')
        a.e(f'v_mov_b32 v{VT0}, s{S_T1}')
        a.e('s_mov_b64 exec, 1')
        a.vmem(f'buffer_store_dword v{VT0}, v{VT1}, {WS}, 0 offen sc1', 'xid')
        a.e('s_mov_b64 exec, -1')
        late_tables()
        a.c('W lane offsets')
        a.e(f'v_lshrrev_b32 v{VT0}, 3, v{V_LANE}')
        a.e(f'v_bfe_u32 v{VT1}, v{VT0}, 1, 1')
        a.e(f'v_lshlrev_b32 v{VT1}, 2, v{VT1}')
        a.e(f'v_and_b32 v{VT2}, 7, v{V_LANE}')
        a.e(f'v_xor_b32 v{VT2}, v{VT2}, v{VT1}')
        a.e(f'v_lshlrev_b32 v{VN}, 10, v{VT0}')
        a.e(f'v_lshl_add_u32 v{VN}, v{VT2}, 4, v{VN}')
        a.e(f's_lshl_b32 s{S_T0}, s{S_CB}, 7')
        a.e(f'v_add_u32 v{VN}, s{S_T0}, v{VN}')
        for j in range(1, 4): a.e(f'v_add_u32 v{VN+j}, {hex(j*(8192-1024))}, v{VN}')
        a.e(f'v_lshrrev_b32 v{VT0}, 2, v{V_LANE}')
        a.e(f'v_bfe_u32 v{VT1}, v{VT0}, 2, 1')
        a.e(f'v_lshlrev_b32 v{VT1}, 1, v{VT1}')
        a.e(f'v_and_b32 v{VT2}, 3, v{V_LANE}')
        a.e(f'v_xor_b32 v{VT2}, v{VT2}, v{VT1}')
        a.e(f'v_lshlrev_b32 v{VT3}, 4, v{VT2}')
        a.e(f's_lshl_b32 s{S_T0}, s{S_CB2}, 6')
        a.e(f'v_add_u32 v{VT3}, s{S_T0}, v{VT3}')
        a.e(f'v_mul_u32_u24 v{VQ}, 3072, v{VT0}')
        a.e(f'v_add_u32 v{VQ}, v{VQ}, v{VT3}')
        for j in range(1, 4): a.e(f'v_add_u32 v{VQ+j}, {hex(j*(16*3072-1024))}, v{VQ}')
        a.e(f'v_lshrrev_b32 v{VT1}, 2, v{VT0}')
        a.e(f'v_lshlrev_b32 v{VT1}, 3, v{VT1}')
        a.e(f'v_and_b32 v{VT2}, 3, v{VT0}')
        a.e(f'v_add_u32 v{VT1}, v{VT1}, v{VT2}')
        a.e(f'v_mul_u32_u24 v{VT1}, 3072, v{VT1}')
        a.e(f'v_add_u32 v{VT1}, v{VT1}, v{VT3}')
        for p in range(4):
            off = (4 * (p & 1) + 32 * (p >> 1)) * 3072 - p * 1024
            a.e(f'v_add_u32 v{VQn+p}, {hex(off & 0xffffffff)}, v{VT1}')
        a.e(f's_mul_i32 s{S_T0}, s{S_CB2}, 224')
        M14 = (1 << 20) // 14 + 1
        a.e(f's_mov_b32 s{S_T1}, {hex(M14)}')
        for p in range(7):
            a.e(f'v_add_u32 v{VT0}, {64*p}, v{V_LANE}')
            a.e(f'v_mul_lo_u32 v{VT1}, v{VT0}, s{S_T1}')
            a.e(f'v_lshrrev_b32 v{VT1}, 20, v{VT1}')
            a.e(f'v_mul_u32_u24 v{VT2}, 14, v{VT1}')
            a.e(f'v_sub_u32 v{VT2}, v{VT0}, v{VT2}')
            a.e(f'v_mul_u32_u24 v{VW3+p}, 3584, v{VT1}')
            a.e(f'v_lshl_add_u32 v{VW3+p}, v{VT2}, 4, v{VW3+p}')
            a.e(f'v_add_u32 v{VW3+p}, s{S_T0}, v{VW3+p}')
            if p % 4: a.e(f'v_subrev_u32 v{VW3+p}, {(p%4)*1024}, v{VW3+p}')
        for u in range(448): assert (u * M14) >> 20 == u // 14

    def cs_part1():
        a.wait_vm('cs')
        a.e(f'v_bfe_u32 v{VT0}, v{V_LANE}, 2, 2')
        a.e(f'v_lshrrev_b32 v{VT1}, 4, v{V_LANE}')
        a.e(f'v_lshl_add_u32 v{VT0}, v{VT1}, 2, v{VT0}')
        a.e(f'v_lshlrev_b32 v{VT0}, 7, v{VT0}')
        a.e(f'v_and_b32 v{VT2}, 3, v{V_LANE}')
        a.e(f'v_lshl_add_u32 v{VT0}, v{VT2}, 3, v{VT0}')
        a.e(f'v_add_u32 v{VT0}, {hex(CSL)}, v{VT0}')
        for i in range(4): a.e(f'v_mov_b32 v{40+i}, 0x3f803f80')
        for j in range(4):
            for t in range(4):
                a.e(f'ds_read_b64_tr_b16 v[{64+4*t}:{65+4*t}], v{VT0} offset:{j*4096+t*32}')
                a.e(f'ds_read_b64_tr_b16 v[{66+4*t}:{67+4*t}], v{VT0} offset:{j*4096+t*32+2048}')
            a.e('s_waitcnt lgkmcnt(0)')
            for t in range(4):
                c = '0' if j == 0 else f'v[{44+4*t}:{47+4*t}]'
                a.e(f'v_mfma_f32_16x16x32_bf16 v[{44+4*t}:{47+4*t}], v[{64+4*t}:{67+4*t}], v[40:43], {c}')
        a.e(f's_mul_i32 s{S_T0}, s{94}, 15360')
        a.e(f's_lshl_b32 s{S_T1}, s{93}, 8')
        a.e(f's_add_u32 s{S_T0}, s{S_T0}, s{S_T1}')
        a.e(f's_add_u32 s{S_T0}, s{S_T0}, {hex(CSP_OFF)}')
        a.e(f'v_lshlrev_b32 v{VT1}, 4, v{VT1}')
        a.e('s_nop 7')
        set_exec(a, 0x00010001)
        for t in range(4):
            a.vmem(f'buffer_store_dwordx4 v[{44+4*t}:{47+4*t}], v{VT1}, {WS}, s{S_T0} offen offset:{64*t} sc1', 'csst')
        a.e('s_mov_b64 exec, -1')
        if opt.kv_atomic:
            zl = a.newlabel('ZK')
            a.e(f's_lshr_b32 s{S_T0}, s2, 3')
            a.e(f's_mul_i32 s{S_T0}, s{S_T0}, {KVREC}')
            a.e(f's_add_u32 s{S_T0}, s{S_T0}, {hex(KVA_OFF)}')
            a.e(f's_and_b32 s{S_T1}, s2, 0x87')
            a.e(f's_cmp_eq_u32 s{S_T1}, 0')
            a.e(f's_cbranch_scc0 {zl}')
            for i in range(4): a.e(f'v_mov_b32 v{60+i}, 0')
            a.e(f'v_lshlrev_b32 v{VT0}, 4, v{V_LANE}')
            for l_ in range(2):
                a.vmem(f'buffer_store_dwordx4 v[60:63], v{VT0}, {WS}, s{S_T0} offen sc1', 'csst')
                a.vmem(f'buffer_store_dwordx4 v[60:63], v{VT0}, {WS}, s{S_T0} offen offset:1024 sc1', 'csst')
                a.e('s_mov_b64 exec, 0xff')
                a.vmem(f'buffer_store_dwordx4 v[60:63], v{VT0}, {WS}, s{S_T0} offen offset:2048 sc1', 'csst')
                a.e('s_mov_b64 exec, -1')
                if l_ == 0: a.e(f's_add_u32 s{S_T0}, s{S_T0}, {16*KVREC}')
            a.label(zl)
    def cs_part2():
        a.e(f's_lshl_b32 s{S_T0}, s2, 7')
        a.e(f's_add_u32 s{S_T0}, s{S_T0}, {hex(CSF_OFF)}')
        a.e(f'v_mov_b32 v{VT1}, s{S_T0}')
        a.e(f's_add_u32 s{S_T1}, s{S_B}, 8')
        a.e(f'v_mov_b32 v{VT0}, s{S_T1}')
        a.wait_vm('csst')
        a.e('s_mov_b64 exec, 1')
        a.vmem(f'buffer_store_dword v{VT0}, v{VT1}, {WS}, 0 offen sc1', 'csf')
        a.e('s_mov_b64 exec, -1')
    def cs_fill():
        L_ = a.newlabel('CPOLL'); D_ = a.newlabel('CPOLLD')
        a.e(f'v_min_u32 v{VT0}, 27, v{V_LANE}')
        a.e(f'v_lshrrev_b32 v{VT2}, 2, v{VT0}')
        a.e(f's_lshr_b32 s{S_T0}, s{S_CB2}, 1')
        a.e(f'v_lshlrev_b32 v{VT1}, 3, v{VT2}')
        a.e(f'v_add_u32 v{VT1}, s{S_T0}, v{VT1}')
        a.e(f's_add_u32 s{S_T0}, s{S_CB}, 24')
        a.e(f'v_mov_b32 v{VT3}, s{S_T0}')
        a.e(f'v_cmp_eq_u32 vcc, 3, v{VT2}')
        a.e('s_nop 1')
        a.e(f'v_cndmask_b32 v{VT1}, v{VT1}, v{VT3}, vcc')
        a.e(f's_mul_i32 s{S_T0}, s{S_CB2}, 112')
        a.e(f's_lshr_b32 s{S_T0}, s{S_T0}, 6')
        a.e(f's_add_u32 s{S_T0}, s{S_T0}, {32 - 4}')
        a.e(f'v_add_u32 v{VT3}, s{S_T0}, v{VT2}')
        a.e(f'v_min_u32 v{VT3}, 59, v{VT3}')
        a.e(f'v_cmp_lt_u32 vcc, 3, v{VT2}')
        a.e('s_nop 1')
        a.e(f'v_cndmask_b32 v{VT1}, v{VT1}, v{VT3}, vcc')
        a.e(f'v_and_b32 v{VT0}, 3, v{VT0}')
        a.e(f'v_lshl_add_u32 v{VT1}, v{VT1}, 2, v{VT0}')
        if opt.kv_atomic:
            a.e(f's_lshl_b32 s{S_T0}, s{S_CB2}, 3')
            a.e(f'v_mov_b32 v{VT3}, s{S_T0}')
            a.e(f'v_cmp_lt_u32 vcc, 27, v{V_LANE}')
            a.e('s_nop 1')
            a.e(f'v_cndmask_b32 v{VT1}, v{VT1}, v{VT3}, vcc')
        a.e(f'v_lshlrev_b32 v{VT1}, 7, v{VT1}')
        a.e(f's_mov_b32 s{S_T0}, {hex(CSF_OFF)}')
        a.e(f's_add_u32 s{S_T1}, s{S_B}, 8')
        a.e(f's_mov_b32 s{95}, {opt.spin}')
        a.label(L_)
        a.e(f'buffer_load_dword v40, v{VT1}, {WS}, s{S_T0} offen sc1')
        a.e('s_waitcnt vmcnt(0)')
        a.e(f'v_subrev_u32 v40, s{S_T1}, v40')
        a.e('v_cmp_gt_u32 vcc, 0x80, v40')
        a.e(f's_sub_u32 s{95}, s{95}, 1')
        a.e(f's_cbranch_scc1 {D_}')
        a.e('s_cmp_eq_u64 vcc, -1')
        a.e(f's_cbranch_scc0 {L_}')
        a.label(D_)
        a.vm = []
        def colof(dst, gofs):
            a.e(f'v_add_u32 v{VT0}, {gofs}, v{V_LANE}')
            a.e(f'v_lshlrev_b32 v{VT2}, 2, v{VT0}')
            a.e(f's_lshl_b32 s{S_T0}, s{S_CB2}, 5')
            a.e(f's_mul_i32 s{S_T1}, s{S_CB2}, 112')
            a.e(f's_add_u32 s{S_T1}, s{S_T1}, {2048 - 160}')
            a.e(f'v_add_u32 v{dst}, s{S_T1}, v{VT2}')
            for lim, addc, useb in [(40, 1536 - 96, 'cb'), (24, -64, 'hp'), (16, 1024 - 32, 'hp'), (8, 512, 'hp')]:
                if useb == 'cb':
                    a.e(f's_lshl_b32 s{S_T1}, s{S_CB}, 6')
                    a.e(f's_add_u32 s{S_T1}, s{S_T1}, {addc}')
                else:
                    a.e(f's_add_u32 s{S_T1}, s{S_T0}, {hex(addc & 0xffffffff)}')
                a.e(f'v_add_u32 v{VT3}, s{S_T1}, v{VT2}')
                a.e(f'v_cmp_gt_u32 vcc, {lim}, v{VT0}')
                a.e('s_nop 1')
                a.e(f'v_cndmask_b32 v{dst}, v{dst}, v{VT3}, vcc')
            a.e(f'v_lshlrev_b32 v{dst}, 2, v{dst}')
        colof(36, 0); colof(37, 64)
        a.e(f's_mov_b32 s{S_T0}, {hex(CSP_OFF)}')
        for kq in range(4):
            a.e(f'buffer_load_dwordx4 v[{40+4*kq}:{43+4*kq}], v36, {WS}, s{S_T0} offen sc1')
            a.e('s_mov_b64 exec, 0xf')
            a.e(f'buffer_load_dwordx4 v[{56+4*kq}:{59+4*kq}], v37, {WS}, s{S_T0} offen sc1')
            a.e('s_mov_b64 exec, -1')
            if kq < 3: a.e(f's_add_u32 s{S_T0}, s{S_T0}, 15360')
        a.e(f'v_lshlrev_b32 v{VT0}, 4, v{V_LANE}')
        a.e(f'v_add_u32 v{VT0}, {hex(CSC)}, v{VT0}')
        a.e('s_waitcnt vmcnt(0)')
        for b in (40, 56):
            for i in (0, 2):
                a.e(pk('add', b + i, vp(b + i), vp(b + 4 + i)))
                a.e(pk('add', b + 8 + i, vp(b + 8 + i), vp(b + 12 + i)))
                a.e(pk('add', b + i, vp(b + i), vp(b + 8 + i)))
        a.e(f'ds_write_b128 v{VT0}, v[40:43]')
        a.e('s_mov_b64 exec, 0xf')
        a.e(f'ds_write_b128 v{VT0}, v[56:59] offset:1024')
        a.e('s_mov_b64 exec, -1')
        a.e('s_waitcnt lgkmcnt(0)')

    cs_part1()
    chunks_of = {}
    for s in stream: chunks_of.setdefault((s.layer, s.phase), set()).add(s.chunk)
    nb = 0
    for ev in events:
        L, kind, p, ci = ev
        if kind == 'B':
            cur[0] = f'pre {L}.{p}.B{ci}'
            issue(0, must=(L, p, ci))
            cur[0] = f'{L}.{p}.B{ci}'
            if nb < 5: dstamp()
            a.wait_vm((L, p, ci))
            if nb < 5: dstamp()
            a.e('s_barrier')
            nb += 1
            if ci >= 2: released.add((L, p, ci - 2))
            if ci == 0:
                for (l2, p2), cs_ in chunks_of.items():
                    if p2 in NOE and (l2, PHASES.index(p2)) < (L, PHASES.index(p)):
                        for c in cs_: released.add((l2, p2, c))
            if nb == 1:
                late_setup()
                cs_part2()
            elif nb == 3:
                cs_fill()
                win[0] = opt.window
            elif nb in (2, 4):
                pass
            else:
                issue(opt.caps.get(f'{p}.B{ci}', opt.caps.get(f'{p}.B*', 0)))
                park_policy(cur[0])
        elif kind == 'E':
            cur[0] = f'{L}.{p}.E'
            a.e('s_barrier')
            for c in chunks_of[(L, p)]: released.add((L, p, c))
            issue(opt.caps.get(f'{p}.E', 0))
            park_policy(cur[0])
        else:
            cur[0] = f'{L}.{p}'
            a.e('s_barrier')
            issue(opt.caps.get(p, 0))
            park_policy(cur[0])
    if opt.startdiag:
        a.e(f's_lshl_b32 s{S_T0}, s2, 8')
        a.e(f's_add_u32 s{S_T0}, s{S_T0}, {hex(TM_OFF + 128)}')
        for i in range(dg[0]):
            a.e(f'v_mov_b32 v99, {4*i}')
            a.e(f'buffer_store_dword v{100+i}, v99, {WS}, s{S_T0} offen')
    a.e('s_waitcnt vmcnt(0)')
    a.e('s_endpgm')


def gen_toucher(a, opt, events):
    a.c('--- A loader / toucher')
    mats = {'WO': (S_PTR + 4, 512 * 512 * 2), 'W1': (S_PTR + 8, 512 * 512 * 2),
            'W2': (S_PTR + 10, 512 * 512 * 2), 'W3': (S_PTR + 12, 512 * 1792 * 2), 'W4': (S_PTR + 14, 1792 * 512 * 2)}
    srds = {}
    for i, (k, (p, size)) in enumerate(mats.items()):
        s = 40 + 4 * i
        a.e(f's_mov_b32 s{s}, s{p}'); a.e(f's_mov_b32 s{s+1}, s{p+1}')
        a.e(f's_mov_b32 s{s+2}, {hex(size)}'); a.e(f's_mov_b32 s{s+3}, 0x20000')
        srds[k] = s
    T0s, T1s, T2s, T3s, T4s, T5s = 33, 34, 35, 36, 37, 38
    THR, SPIN = 60, 61
    RA, P7T = 64, 68
    U0, U1, U2, U3, U4 = 76, 77, 78, 79, 80
    VAS, VAG, VFS, VFB, VFH, VAH = 3, 4, 5, 6, 7, 8
    X0, X1, X2, X3 = 24, 25, 26, 27
    X0W = 31
    e = a.e
    VXK = 40
    e(f'v_lshrrev_b32 v2, 4, v{V_LANE}')
    e(f'v_and_b32 v3, 15, v{V_LANE}')
    for k in range(4):
        e(f'v_add_u32 v{VXK+k}, {4*k}, v2'); e(f'v_xor_b32 v{VXK+k}, v{VXK+k}, v3'); e(f'v_lshlrev_b32 v{VXK+k}, 4, v{VXK+k}')
        e(f'v_lshl_add_u32 v{VXK+k}, v2, 10, v{VXK+k}')
    e(f's_lshl_b32 s33, s{S_G}, 8'); e(f's_lshl_b32 s34, s{S_RB2}, 7'); e('s_add_u32 s33, s33, s34'); e('s_lshl_b32 s82, s33, 10')
    e(f's_lshl_b32 s83, s{S_RB2}, 1'); e(f's_add_u32 s83, s83, s{S_CB2}'); e(f's_and_b32 s83, s83, {3 if opt.rot else 0}')
    e(f's_lshr_b32 s81, s{S_CB2}, 2'); e(f's_lshl_b32 s81, s81, {13 if opt.rot else 31}')
    if not opt.rot: e('s_mov_b32 s81, 0')
    def x_chunk(c):
        e(f's_xor_b32 s33, s83, {c}'); e('s_lshl_b32 s33, s33, 8'); e('s_add_u32 s33, s33, s82')
        e('s_mov_b32 s34, s81'); e('s_mov_b32 s36, 8')
        lp = a.newlabel('XC'); a.label(lp)
        for k in range(4):
            e(f's_add_u32 m0, s34, {hex(AREG + (c & 1) * 32768)}')
            e('s_lshl_b32 s35, s34, 2'); e('s_add_u32 s35, s35, s33')
            e(f'buffer_load_dwordx4 v{VXK + k}, s[{S_X}:{S_X+3}], s35 offen lds')
            e('s_add_u32 s34, s34, 1024')
        e('s_and_b32 s34, s34, 0x7fff')
        e('s_waitcnt vmcnt(52)')
        e('s_sub_u32 s36, s36, 1'); e('s_cmp_lg_u32 s36, 0'); e(f's_cbranch_scc1 {lp}')
        a.vm += [('X', c)] * 32
        a.vm = a.vm[-52:]
    def x_tile():
        e(f'v_lshrrev_b32 v2, 3, v{V_LANE}'); e('v_lshlrev_b32 v2, 10, v2')
        e(f'v_and_b32 v30, 7, v{V_LANE}'); e('v_lshl_add_u32 v2, v30, 4, v2')
        e(f's_lshl_b32 s33, s{S_G}, 8'); e(f's_lshl_b32 s34, s{S_RB}, 6'); e('s_add_u32 s33, s33, s34'); e('s_lshl_b32 s33, s33, 10')
        e(f's_lshl_b32 s34, s{S_CB}, 7'); e('s_add_u32 s33, s33, s34')
        for p_ in range(8):
            e(f's_mov_b32 m0, {hex(AREG + p_ * 1024)}')
            if p_: e('s_add_u32 s33, s33, 8192')
            else: e('s_nop 0')
            a.vmem(f'buffer_load_dwordx4 v2, s[{S_X}:{S_X+3}], s33 offen lds', 'x')
    x_chunk(0); x_chunk(1)
    e(f'v_lshlrev_b32 v1, 7, v{V_LANE}')
    e(f'v_lshlrev_b32 v{X0}, 4, v{V_LANE}')
    e(f'v_lshlrev_b32 v{X0W}, 4, v{V_LANE}')
    e(f's_lshl_b32 s{T0s}, s{S_G}, 4'); e(f's_lshl_b32 s{T1s}, s{S_RB}, 2'); e(f's_add_u32 s{T0s}, s{T0s}, s{T1s}')
    e(f's_lshl_b32 s{T1s}, s{T0s}, 14'); e(f'v_add_u32 v{VAS}, s{T1s}, v{X0}')
    e(f's_mul_i32 s{T1s}, s{T0s}, 57344'); e(f'v_add_u32 v{VAG}, s{T1s}, v{X0}')
    rmask = 3 if opt.rot else 0
    for c in range(4):
        e(f's_and_b32 s{RA+c}, s{S_RB}, {rmask}'); e(f's_xor_b32 s{RA+c}, s{RA+c}, {c}'); e(f's_lshl_b32 s{RA+c}, s{RA+c}, 12')
    for p_ in range(8):
        e(f's_and_b32 s{P7T+p_}, s{S_RB}, {rmask}'); e(f's_lshl_b32 s{P7T+p_}, s{P7T+p_}, 1')
        e(f's_xor_b32 s{P7T+p_}, s{P7T+p_}, {p_}'); e(f's_mul_i32 s{P7T+p_}, s{P7T+p_}, 7168')
    e(f'v_and_b32 v{X1}, 15, v{V_LANE}')
    e(f'v_and_b32 v{X2}, 0x30, v{V_LANE}')
    e(f's_mul_i32 s{T3s}, s{S_G}, 18')
    e(f's_lshl_b32 s{T4s}, s{S_G}, 8')
    for c in range(4):
        e(f's_lshr_b32 s{T5s}, s{RA+c}, 12')
        e(f's_lshr_b32 s{U3}, s{T5s}, 1'); e(f's_add_u32 s{U3}, s{U3}, 1'); e(f's_sub_u32 s{U4}, 0, s{U3}')
        e(f's_bitcmp1_b32 s{T5s}, 0'); e(f's_cselect_b32 s{U3}, s{U3}, s{U4}')
        e(f's_lshl_b32 s{T2s}, s{S_RB}, 6'); e(f's_add_u32 s{T2s}, s{T2s}, s{U3}'); e(f's_add_u32 s{T2s}, s{T2s}, 16')
        for w in range(4):
            r = VAH + 4 * c + w
            e(f's_add_u32 s{T5s}, s{T2s}, {16 * w}')
            e(f'v_add_u32 v{r}, s{T5s}, v{X1}')
            e(f'v_lshrrev_b32 v{X3}, 4, v{r}'); e(f'v_add_u32 v{X3}, s{T3s}, v{X3}'); e(f'v_lshlrev_b32 v{X3}, 14, v{X3}')
            e(f'v_and_b32 v28, 15, v{r}'); e(f'v_add_u32 v28, v{X2}, v28'); e(f'v_lshl_add_u32 v{X3}, v28, 4, v{X3}')
            e(f'v_add_u32 v28, s{T4s}, v{r}'); e('v_subrev_u32 v28, 16, v28')
            e('v_cmp_gt_u32 vcc, 0x800, v28')
            e(f'v_mov_b32 v{r}, 0x80000000'); e('s_nop 0')
            e(f'v_cndmask_b32 v{r}, v{r}, v{X3}, vcc')
    e(f's_lshl_b32 s{T2s}, s{S_G}, 9'); e(f's_add_u32 s{T2s}, s{T2s}, {hex(LF_OFF)}')
    e(f'v_bfe_u32 v{X1}, v{V_LANE}, 3, 2'); e(f'v_lshlrev_b32 v{X1}, 7, v{X1}')
    e(f'v_and_b32 v{X2}, 7, v{V_LANE}'); e(f'v_lshl_add_u32 v{X1}, v{X2}, 2, v{X1}')
    e(f's_lshl_b32 s{T3s}, s{S_RB}, 5'); e(f's_add_u32 s{T3s}, s{T3s}, s{T2s}')
    e(f'v_add_u32 v{VFS}, s{T3s}, v{X1}')
    e(f's_and_b32 s{T3s}, s{S_RB}, 1'); e(f's_lshl_b32 s{T3s}, s{T3s}, 8'); e(f's_add_u32 s{T3s}, s{T3s}, s{T2s}')
    e(f's_lshr_b32 s{T4s}, s{S_RB}, 1'); e(f's_lshl_b32 s{T4s}, s{T4s}, 6'); e(f's_add_u32 s{T3s}, s{T3s}, s{T4s}')
    e(f'v_bfe_u32 v{X2}, v{V_LANE}, 4, 1'); e(f'v_lshlrev_b32 v{X2}, 7, v{X2}')
    e(f'v_and_b32 v{X3}, 15, v{V_LANE}'); e(f'v_lshl_add_u32 v{X2}, v{X3}, 2, v{X2}')
    e(f'v_add_u32 v{VFB}, s{T3s}, v{X2}')
    e(f's_lshl_b32 s{T3s}, s{S_R}, 2'); e(f's_add_u32 s{T3s}, s{T3s}, s{T2s}')
    e(f'v_and_b32 v{X2}, 3, v{V_LANE}'); e(f'v_lshlrev_b32 v{X2}, 7, v{X2}'); e(f'v_add_u32 v{X2}, s{T3s}, v{X2}')
    e(f'v_cmp_lt_u32 vcc, 31, v{V_LANE}'); e('s_nop 1')
    e(f'v_cndmask_b32 v{VFB}, v{VFB}, v{X2}, vcc')
    def build_fh(L):
        la = a.newlabel('FH'); lb = a.newlabel('FH')
        e(f's_lshl_b32 s{T2s}, s{S_G}, 9'); e(f's_add_u32 s{T2s}, s{T2s}, {hex(LF_OFF)}')
        e(f's_lshl_b32 s{T3s}, s{S_RB}, 5'); e(f's_add_u32 s{T3s}, s{T3s}, s{T2s}')
        e(f's_sub_u32 s{U1}, s{T3s}, 32'); e(f's_add_u32 s{U1}, s{U1}, 256'); e(f's_mov_b32 s{U3}, 128')
        e(f's_add_u32 s{U2}, s{T3s}, 32'); e(f's_mov_b32 s{U4}, 128')
        e(f's_lshl_b32 s{T4s}, s{S_G}, 8'); e(f's_add_u32 s{T4s}, s{T4s}, {hex(HF_OFF + L * 2048)}')
        e(f's_cmp_eq_u32 s{S_RB}, 0'); e(f's_cbranch_scc0 {la}')
        e(f's_mov_b32 s{U1}, s{T3s}')
        e(f's_cmp_eq_u32 s{S_G}, 0'); e(f's_cbranch_scc1 {la}')
        e(f's_mov_b32 s{U1}, s{T4s}'); e(f's_mov_b32 s{U3}, 0')
        a.label(la)
        e(f's_cmp_eq_u32 s{S_RB}, 3'); e(f's_cbranch_scc0 {lb}')
        e(f's_mov_b32 s{U2}, s{T3s}')
        e(f's_cmp_eq_u32 s{S_G}, 7'); e(f's_cbranch_scc1 {lb}')
        e(f's_add_u32 s{U2}, s{T4s}, 128'); e(f's_mov_b32 s{U4}, 0')
        a.label(lb)
        e(f'v_bfe_u32 v{X1}, v{V_LANE}, 3, 1'); e(f'v_and_b32 v{X2}, 7, v{V_LANE}'); e(f'v_lshlrev_b32 v{X2}, 2, v{X2}')
        for base_s, mul_s, sel in ((U1, U3, 2), (U2, U4, 3)):
            e(f'v_mul_u32_u24 v{X3}, s{mul_s}, v{X1}'); e(f'v_add_u32 v{X3}, v{X3}, v{X2}'); e(f'v_add_u32 v{X3}, s{base_s}, v{X3}')
            e(f'v_lshrrev_b32 v28, 4, v{V_LANE}'); e(f'v_cmp_eq_u32 vcc, {sel}, v28'); e('s_nop 1')
            e(f'v_cndmask_b32 v{VFH}, v{VFH if sel == 3 else VFS}, v{X3}, vcc')
    e('s_waitcnt lgkmcnt(0)')
    e(f's_mul_i32 s{S_B}, s{S_V}, 0x9e3779b1'); e(f's_add_u32 s{S_B}, s{S_B}, 0x7f4a7c15'); e(f's_and_b32 s{S_B}, s{S_B}, 0xffffff00')

    def poll(v, epoch):
        L_ = a.newlabel('AP'); D_ = a.newlabel('APD')
        e(f's_add_u32 s{THR}, s{S_B}, {8*epoch}'); e(f's_mov_b32 s{SPIN}, {opt.spin}')
        a.label(L_)
        e(f'buffer_load_dword v30, v{v}, {WS}, 0 offen sc1'); e('s_waitcnt vmcnt(0)')
        e(f'v_subrev_u32 v30, s{THR}, v30'); e('v_cmp_gt_u32 vcc, 0x80, v30')
        e(f's_sub_u32 s{SPIN}, s{SPIN}, 1'); e(f's_cbranch_scc1 {D_}')
        e('s_cmp_eq_u64 vcc, -1'); e(f's_cbranch_scc0 {L_}')
        a.label(D_); a.vm = []
    def a_chunk(phase, c):
        for w in range(4):
            e(f's_mov_b32 m0, {hex(AREG + (c % 4) * 16384 + w * 4096)}')
            if phase == 'P7':
                last = None
                for k in range(4):
                    p_, i_ = divmod(4 * c + k, 7)
                    const = G_OFF + w * 57344 + (i_ - k) * 1024
                    if last != (p_, const):
                        e(f's_add_u32 s{T0s}, s{P7T+p_}, {hex(const & 0xffffffff)}'); last = (p_, const)
                    a.vmem(f'buffer_load_dwordx4 v{VAG}, {WS}, s{T0s} offen offset:{k*1024} sc1 lds', ('A', phase, c))
            else:
                if phase == 'P5':
                    va = VAH + 4 * c + w; e(f's_add_u32 s{T0s}, s{RA+c}, {hex(A0_OFF)}' if A0_OFF else f's_mov_b32 s{T0s}, s{RA+c}')
                elif phase == 'P3':
                    va = VAS; e(f's_add_u32 s{T0s}, s{RA+c}, s{U0}'); e(f's_add_u32 s{T0s}, s{T0s}, {hex(A0_OFF + w * 16384)}')
                else:
                    va = VAS; e(f's_add_u32 s{T0s}, s{RA+c}, {hex(A1_OFF + w * 16384)}')
                for k in range(4):
                    a.vmem(f'buffer_load_dwordx4 v{va}, {WS}, s{T0s} offen offset:{k*1024} sc1 lds', ('A', phase, c))
    e(f's_lshl_b32 s{U0}, s{S_G}, 1'); e(f's_add_u32 s{U0}, s{U0}, 1'); e(f's_lshl_b32 s{U0}, s{U0}, 14')

    dummy = [0]
    def wide(srd_s, soff_s):
        d = 64 + 4 * (dummy[0] % 40); dummy[0] += 1
        a.vmem(f'buffer_load_dwordx4 v[{d}:{d+3}], v{X0W}, {srd_s}, s{soff_s} offen {opt.touch_flags}', 'T')
    def mall_touch():
        for k in ['WO', 'W2', 'W4']:
            size = mats[k][1]; per = size // 256
            s = srds[k]
            e(f's_mul_i32 s{T0s}, s2, {per}')
            for i in range(per // 1024):
                if i: e(f's_add_u32 s{T0s}, s{T0s}, 1024')
                wide(f's[{s}:{s+3}]', T0s)
    def g_touch():
        e(f's_mul_i32 s{T0s}, s{S_G}, {16 * 57344}'); e(f's_mul_i32 s{T1s}, s{S_R}, 28672')
        e(f's_add_u32 s{T0s}, s{T0s}, s{T1s}'); e(f's_add_u32 s{T0s}, s{T0s}, {hex(G_OFF)}')
        for i in range(28):
            if i: e(f's_add_u32 s{T0s}, s{T0s}, 1024')
            wide(WS, T0s)
    def key(sx):
        k, p, c = sx.split(',')
        return (0, k, p, None if c == '-' else int(c))
    EPO = {'P3': 1, 'P4': 2, 'P5': 3, 'P7': 5}
    if opt.p7_self: del EPO['P7']
    nxt = 0
    for ev in events:
        L, kind, p, ci = ev
        if kind == 'B' and p in EPO:
            nch = NCH[p]
            if ci == 0:
                if p == 'P5': build_fh(L)
                poll({'P3': VFB, 'P4': VFS, 'P5': VFH, 'P7': VFB}[p], 1 + 6 * L + EPO[p])
                a_chunk(p, 0); a_chunk(p, 1); nxt = 2
            a.wait_vm(('A', p, ci))
            e('s_barrier')
            while nxt < nch and (nxt <= ci + 2 or nxt <= 3) and nxt <= ci + 2 + (1 if ci == 0 and False else 0):
                a_chunk(p, nxt); nxt += 1
        elif L == 0 and kind == 'B' and p == 'P1KV':
            a.wait_vm(('X', ci))
            e('s_barrier')
            if 1 <= ci <= 2: x_chunk(ci + 1)
            if ci == 3: x_tile()
        else:
            if ev == (0, 'E', 'P1KV', None): a.wait_vm('x')
            e('s_barrier')
        if opt.touch and opt.touch_at and ev == key(opt.touch_at): mall_touch()
        if opt.gtouch_at and ev == key(opt.gtouch_at) and not (opt.gtouch_parker and opt.park): g_touch()
    e('s_waitcnt vmcnt(0)')
    e('s_endpgm')


def gen_parker(a, opt, events, h):
    e = a.e
    a.c(f'--- parker {h}')
    plan = opt._plan
    W3S, W4S, CB6, CB7 = 40, 44, 64, 68
    for s_, p_, size in ((W3S, S_PTR + 12, 512 * 1792 * 2), (W4S, S_PTR + 14, 1792 * 512 * 2)):
        e(f's_mov_b32 s{s_}, s{p_}'); e(f's_mov_b32 s{s_+1}, s{p_+1}'); e(f's_mov_b32 s{s_+2}, {hex(size)}'); e(f's_mov_b32 s{s_+3}, 0x20000')
    rm = 3 if opt.rot else 0
    for c in range(4):
        e(f's_lshl_b32 s{CB6+c}, s{S_RB2}, 1'); e(f's_and_b32 s{CB6+c}, s{CB6+c}, {rm}'); e(f's_xor_b32 s{CB6+c}, s{CB6+c}, {c}')
        e(f's_mul_i32 s{CB6+c}, s{CB6+c}, {128*3584}')
    for p_ in range(8):
        e(f's_and_b32 s{CB7+p_}, s{S_RB}, {rm}'); e(f's_lshl_b32 s{CB7+p_}, s{CB7+p_}, 1'); e(f's_xor_b32 s{CB7+p_}, s{CB7+p_}, {p_}')
        e(f's_mul_i32 s{CB7+p_}, s{CB7+p_}, {224*1024}')
    VN, VW, VL, X0, X1, X2 = 2, 4, 8, 11, 12, 13
    e(f'v_lshrrev_b32 v{X0}, 3, v{V_LANE}'); e(f'v_bfe_u32 v{X1}, v{X0}, 1, 1'); e(f'v_lshlrev_b32 v{X1}, 2, v{X1}')
    e(f'v_and_b32 v{X2}, 7, v{V_LANE}'); e(f'v_xor_b32 v{X2}, v{X2}, v{X1}')
    e(f'v_lshlrev_b32 v{VN}, 10, v{X0}'); e(f'v_lshl_add_u32 v{VN}, v{X2}, 4, v{VN}')
    e(f's_lshl_b32 s33, s{S_CB}, 7'); e(f'v_add_u32 v{VN}, s33, v{VN}'); e(f'v_add_u32 v{VN+1}, {hex(8192-1024)}, v{VN}')
    ps = [0, 1, 2, 3] if h == 0 else [4, 5, 6]
    M14 = (1 << 20) // 14 + 1
    e(f's_mul_i32 s33, s{S_CB2}, 224'); e(f's_mov_b32 s34, {hex(M14)}')
    for k, p_ in enumerate(ps):
        e(f'v_add_u32 v{X0}, {64*p_}, v{V_LANE}'); e(f'v_mul_lo_u32 v{X1}, v{X0}, s34'); e(f'v_lshrrev_b32 v{X1}, 20, v{X1}')
        e(f'v_mul_u32_u24 v{X2}, 14, v{X1}'); e(f'v_sub_u32 v{X2}, v{X0}, v{X2}')
        e(f'v_mul_u32_u24 v{VW+k}, 3584, v{X1}'); e(f'v_lshl_add_u32 v{VW+k}, v{X2}, 4, v{VW+k}'); e(f'v_add_u32 v{VW+k}, s33, v{VW+k}')
    e(f'v_lshlrev_b32 v{VL}, 4, v{V_LANE}'); e(f'v_add_u32 v{VL+1}, 0x10000, v{VL}'); e(f'v_add_u32 v{VL+2}, 0x20000, v{VL}')
    def wide(base_expr_emit, n):
        base_expr_emit()
        for i in range(n):
            if i: e('s_add_u32 s33, s33, 1024')
            a.vmem(f'buffer_load_dwordx4 v[{240+4*(i%4)}:{243+4*(i%4)}], v{VL}, {WS}, s33 offen', 'T')
    def touch_a0():
        wide(lambda: (e(f's_mul_i32 s33, s{S_G}, {18*16384}'), e(f's_mul_i32 s34, s{S_R}, 9216'), e('s_add_u32 s33, s33, s34'), e(f's_add_u32 s33, s33, {hex(A0_OFF)}') if A0_OFF else None), 9)
    def touch_lin(off, per_group):
        wide(lambda: (e(f's_mul_i32 s33, s{S_G}, {per_group}'), e(f's_mul_i32 s34, s{S_R}, {per_group // 32}'), e('s_add_u32 s33, s33, s34'), e(f's_add_u32 s33, s33, {hex(off)}')), per_group // 32 // 1024)
    def tkey(sx):
        k, p, c = sx.split(',')
        return (0, k, p, None if c == '-' else int(c))
    slots = list(range(56))
    held = {}
    pending = set()
    def do(actions):
        for act, s_ in actions:
            if act == 'park':
                if s_.kind == 'W3':
                    c_, rr_ = divmod(s_.srow, 128)
                    e(f's_add_u32 s33, s{CB6+c_}, {hex(rr_*3584)}')
                    regs = []
                    for k, p_ in enumerate(ps):
                        sl = slots.pop(0); regs.append((sl, p_))
                        a.vmem(f'buffer_load_dwordx4 v[{16+4*sl}:{19+4*sl}], v{VW+k}, s[{W3S}:{W3S+3}], s33 offen', id(s_))
                else:
                    srow = s_.srow if h == 0 else s_.srow2
                    p_, rr_ = divmod(srow, 224)
                    e(f's_add_u32 s33, s{CB7+p_}, {hex(rr_*1024)}')
                    regs = []
                    for k in range(2):
                        sl = slots.pop(0); regs.append((sl, 2 * h + k))
                        a.vmem(f'buffer_load_dwordx4 v[{16+4*sl}:{19+4*sl}], v{VN+k}, s[{W4S}:{W4S+3}], s33 offen offset:{k*1024}', id(s_))
                held[id(s_)] = regs
            else:
                a.wait_vm(id(s_))
                for sl, p_ in held.pop(id(s_)):
                    ad = s_.addr + p_ * 1024
                    e(f'ds_write_b128 v{VL + (ad >> 16)}, v[{16+4*sl}:{19+4*sl}] offset:{ad & 0xffff}')
                    slots.append(sl)
                pending.add((s_.layer, s_.phase, s_.chunk))
    for ev in events:
        L, kind, p, ci = ev
        if kind == 'B':
            do(plan.get(f'pre {L}.{p}.B{ci}', []))
            if (L, p, ci) in pending:
                e('s_waitcnt lgkmcnt(0)'); pending.clear()
            e('s_barrier')
            acts = plan.get(f'{L}.{p}.B{ci}', [])
        elif kind == 'E':
            e('s_barrier'); acts = plan.get(f'{L}.{p}.E', [])
        else:
            e('s_barrier'); acts = plan.get(f'{L}.{p}', [])
        do([x for x in acts if x[0] == 'unpark'])
        do([x for x in acts if x[0] == 'park'])
        if opt.pretouch and h == 1 and ev == tkey(opt.a2touch_at): touch_lin(A2_OFF, 262144)
        if opt.gtouch_parker and opt.gtouch_at and ev == tkey(opt.gtouch_at):
            wide(lambda: (e(f's_mul_i32 s33, s{S_G}, {16*57344}'), e(f's_mul_i32 s34, s{S_R}, 28672'), e('s_add_u32 s33, s33, s34'),
                          e(f's_add_u32 s33, s33, {hex(G_OFF + h * 14336)}')), 14)
        if opt.pretouch and ev == tkey(opt.a01touch_at):
            if h == 0:
                touch_a0(); touch_lin(ST_OFF, 32768)
            else:
                touch_lin(A1_OFF, 262144)
    e('s_waitcnt vmcnt(0) lgkmcnt(0)')
    e('s_endpgm')


def generate(opt):
    ATOMIC[0] = opt.kv_atomic
    events = build_events(opt.stop)
    a = Asm(); a.opt = opt
    hdr = open(os.path.join(os.path.dirname(os.path.abspath(__file__)), 'header.txt')).read()
    out = [hdr.rstrip('\n')]
    out.append(f'; @launch grid=(256,1,1) block=({64*(8 if opt.park else 6)},1,1) lds={LDS_TOTAL}')
    out += ['.amdgcn_target "amdgcn-amd-amdhsa--gfx950"', '.text', f'.globl {KNAME}', '.p2align 8',
            f'.type {KNAME},@function', f'{KNAME}:']
    a.e('s_cmp_ge_u32 s2, 256')
    a.e('s_cbranch_scc1 L_EXIT')
    if opt.startdiag: a.e('s_memtime s[100:101]')
    if opt.wall:
        a.e('s_memrealtime s[18:19]') if False else None
    a.e(f's_load_dwordx16 s[{S_PTR}:{S_PTR+15}], s[0:1], 0')
    a.e(f's_load_dwordx4 s[{S_PTR+16}:{S_PTR+19}], s[0:1], 64')
    a.e(f's_load_dwordx2 s[{S_PTR+20}:{S_PTR+21}], s[0:1], 80')
    a.e('v_lshrrev_b32 v1, 6, v0')
    a.e('s_nop 0')
    if opt.prefetch_code:
        a.e('s_getpc_b64 s[34:35]')
        a.label('L_PC')
        a.e(f's_sub_u32 s34, s34, (L_PC - {KNAME})')
        a.e('s_subb_u32 s35, s35, 0')
        a.e('s_lshr_b32 s36, s2, 3')
        a.e('s_mul_i32 s36, s36, 2560')
        a.e('v_lshlrev_b32 v2, 7, v0')
        a.e('v_add_u32 v2, s36, v2')
        a.e(f's_mov_b32 s36, (L_CODE_END - {KNAME} - 4)')
        a.e('v_min_u32 v2, s36, v2')
        a.e('v_and_b32 v2, -4, v2')
        a.e('v_cmp_gt_u32 vcc, 20, v0')
        a.e('s_and_saveexec_b64 s[36:37], vcc')
        a.e('s_cbranch_execz L_NOPF')
        a.e('global_load_dword v255, v2, s[34:35]')
        a.label('L_NOPF')
        a.e('s_mov_b64 exec, s[36:37]')
    a.e(f'v_readfirstlane_b32 s{S_W}, v1')
    a.e(f'v_and_b32 v{V_LANE}, 63, v0')
    a.e(f's_getreg_b32 s{S_XCC}, hwreg(HW_REG_XCC_ID)')
    a.e(f's_and_b32 s{S_XCC}, s{S_XCC}, 7')
    a.e(f's_and_b32 s{S_G}, s2, 7')
    a.e(f's_lshr_b32 s{S_R}, s2, 3')
    a.e(f's_lshr_b32 s{S_RB}, s{S_R}, 3')
    a.e(f's_and_b32 s{S_CB}, s{S_R}, 7')
    a.e(f's_lshr_b32 s{S_RB2}, s{S_R}, 4')
    a.e(f's_and_b32 s{S_CB2}, s{S_R}, 15')
    a.e('s_waitcnt lgkmcnt(0)')
    if opt.ws_base:
        a.e(f's_add_u32 s{S_PTR+20}, s{S_PTR+20}, {hex(opt.ws_base)}')
        a.e(f's_addc_u32 s{S_PTR+21}, s{S_PTR+21}, 0')
    a.e(f's_add_u32 s34, s{S_PTR+20}, {hex(NONCE_OFF)}')
    a.e(f's_addc_u32 s35, s{S_PTR+21}, 0')
    a.e(f's_load_dword s{S_V}, s[34:35], 0')
    def srd(s, p, size):
        a.e(f's_mov_b32 s{s}, s{p}'); a.e(f's_mov_b32 s{s+1}, s{p+1}')
        a.e(f's_mov_b32 s{s+2}, {hex(size)}'); a.e(f's_mov_b32 s{s+3}, 0x20000')
    if opt.dbgout >= 0:
        a.e(f's_mov_b32 s86, s{S_PTR+18}'); a.e(f's_mov_b32 s87, s{S_PTR+19}')
    srd(S_WS, S_PTR + 20, WS_USED)
    srd(S_X, S_PTR + 0, 2048 * 512 * 2)
    srd(S_OUT, S_PTR + 16, 2048 * 512 * 2)
    a.e(f's_cmp_lt_u32 s{S_W}, 4')
    a.e('s_cbranch_scc1 L_COMPUTE')
    if opt.park:
        for wv in (6, 7):
            a.e(f's_cmp_eq_u32 s{S_W}, {wv}')
            a.e(f's_cbranch_scc0 L_NOTP{wv}')
            a.e('s_getpc_b64 s[34:35]')
            a.label(f'L_PCP{wv}')
            a.e(f's_add_u32 s34, s34, (L_PARKER{wv} - L_PCP{wv})')
            a.e('s_addc_u32 s35, s35, 0')
            a.e('s_setpc_b64 s[34:35]')
            a.label(f'L_NOTP{wv}')
    a.e(f's_cmp_eq_u32 s{S_W}, 5')
    a.e('s_cbranch_scc0 L_GOLOADER')
    a.e('s_getpc_b64 s[34:35]')
    a.label('L_PC3')
    a.e('s_add_u32 s34, s34, (L_TOUCHER - L_PC3)')
    a.e('s_addc_u32 s35, s35, 0')
    a.e('s_setpc_b64 s[34:35]')
    a.label('L_GOLOADER')
    a.e('s_getpc_b64 s[34:35]')
    a.label('L_PC2')
    a.e('s_add_u32 s34, s34, (L_LOADER - L_PC2)')
    a.e('s_addc_u32 s35, s35, 0')
    a.e('s_setpc_b64 s[34:35]')
    a.label('L_EXIT')
    a.e('s_endpgm')
    a.label('L_COMPUTE')
    a.vm = []
    if opt.stop is not None and opt.stop[0] == 0: cev = events
    else: cev = [e for e in build_events(None) if e[0] == 0]
    rest = gen_compute(a, opt, cev)
    assert not rest, rest
    a.label('L_LOADER')
    a.vm = []
    a.fstamp = lambda p: None
    gen_loader(a, opt, events)
    a.label('L_TOUCHER')
    a.vm = []
    gen_toucher(a, opt, events)
    if opt.park:
        for wv in (6, 7):
            a.label(f'L_PARKER{wv}')
            a.vm = []
            gen_parker(a, opt, events, wv - 6)
    a.label('L_CODE_END')
    out.append(a.text())
    out += ['.section .rodata,"a"', '.p2align 6', f'.amdhsa_kernel {KNAME}',
            '  .amdhsa_next_free_vgpr 256', '  .amdhsa_next_free_sgpr 102', '  .amdhsa_accum_offset 256',
            '  .amdhsa_group_segment_fixed_size 0', '  .amdhsa_kernarg_size 88', '  .amdhsa_user_sgpr_count 2',
            '  .amdhsa_user_sgpr_kernarg_segment_ptr 1', '  .amdhsa_system_sgpr_workgroup_id_x 1', '.end_amdhsa_kernel']
    return '\n'.join(out) + '\n'


if __name__ == '__main__':
    import argparse
    ap = argparse.ArgumentParser()
    ap.add_argument('-o', default='interleave_layers__linear_attn_block__mixer_s_mlp__prompt.s')
    ap.add_argument('--stop', default=None)
    ap.add_argument('--timing', action='store_true')
    ap.add_argument('--safe', action='store_true')
    ap.add_argument('--set', action='append', default=[])
    ap.add_argument('--fine', default=None)
    args = ap.parse_args()
    opt = Opt()
    if args.stop:
        l, p = args.stop.split(','); opt.stop = (int(l), p)
    opt.timing = args.timing; opt.force_safe = args.safe; opt.fine = args.fine
    opt.caps = dict(Opt.caps); opt.park_w3 = dict(Opt.park_w3); opt.park_caps = dict(Opt.park_caps)
    for kv in args.set:
        k, v = kv.split('=')
        if k.startswith('pk3:'): opt.park_w3[k[4:]] = int(v)
        elif k.startswith('pk4:'): opt.park_caps[k[4:]] = int(v)
        elif '.' in k or k in ('X1', 'X2'): opt.caps[k] = int(v)
        else:
            try: setattr(opt, k, int(v))
            except ValueError: setattr(opt, k, v.replace(':', ','))
    open(args.o, 'w').write(generate(opt))
    print('written', args.o)
    if os.environ.get('SCHED'):
        import itertools
        for k, g in itertools.groupby(opt._log, key=lambda x: x[0]):
            g = list(g); d = {}
            for x in g: d[(x[1], x[2], x[3])] = d.get((x[1], x[2], x[3]), 0) + 1
            print(k, ' '.join(f'{a_}.{b_}.c{c_}x{n_}' for (a_, b_, c_), n_ in d.items()), 'FORCED' if any(x[4] for x in g) else '')
```

```python
import sys, os, struct

KNAME = 'interleave_layers__linear_attn_block__mixer_s_mlp__prompt_kernel'

class Opt:
    stop = None
    timing = False
    fine = None
    force_safe = False
    window = 40
    window0 = 60
    caps = {'P1KV.E': 64, 'P1Q.B0': 16, 'P1Q.B1': 16, 'P1Q.E': 32,
            'P3.B0': 0, 'P3.B1': 32, 'P3.B2': 16, 'P3.B3': 16,
            'P4.B1': 32, 'P4.B2': 16, 'P4.B3': 16,
            'P5.B1': 35, 'P5.B2': 14, 'P5.B3': 21,
            'P6.B0': 35, 'P6.B1': 28, 'P6.B2': 28, 'P6.B3': 28, 'P6.E': 64,
            'P7.B*': 16, 'P7.E': 64}
    cap0 = 0
    touch = True
    dbg_w_same = 0
    w_nt = 0
    g_cold = 0
    touch_at = 'B,P1Q,0'
    rot = 1
    poll_sleep = 0
    dbgout = -1
    dbgwg = 100
    pretouch = 1
    a2touch_at = 'B,P6,3'
    a01touch_at = 'B,P1KV,2'
    gtouch_parker = 1
    park = 1
    park_w3 = {'P1KV.E': 2, 'X1': 2, 'P1Q.E': 8}
    park_caps = {'P6.B1': 0, 'P6.B2': 0, 'P6.B3': 0, 'P6.E': 0}
    unpark_max = 6
    kv_atomic = 1
    wall = 0
    p7_self = 1
    dbg_skip = ''
    ws_base = 0
    late_a = 0
    kvflag_at = 5
    up3 = 1
    startdiag = 0
    gtouch_at = 'B,P5,2'
    dbg_a_same = 0
    touch_flags = ''
    spin = 1 << 17
    prefetch_code = True
    D_kv = 4
    D_p6 = 4

MB = 1 << 20
A0_OFF = 0
A1_OFF = 0x280000
A2_OFF = 0x480000
G_OFF = 0x680000
ST_OFF = 0xD80000
KVP_OFF = 0xDC0000
KVP_L = 0x88000
KVA_OFF = 0xED0000
LSTRIDE = 0x780000
FL_OFF = 0xF00000
LF_OFF = FL_OFF
KVF_OFF = FL_OFF + 4096
HF_OFF = FL_OFF + 8192
XID_OFF = FL_OFF + 29696
NONCE_OFF = FL_OFF + 30720
TM_OFF = FL_OFF + 32768
CSP_OFF = FL_OFF + 32768 + 65536
CSF_OFF = CSP_OFF + 65536
WS_USED = CSF_OFF + 32768
KVREC = 2176

LDS_TOTAL = 163840
AREG = 0
SCR = 49152
CSL = None
WRING = 65536
RING = 93952
PHI = 53248
CSL = WRING + 28672
CSC = WRING + RING
assert CSC + 1088 <= LDS_TOTAL

EPS = 1e-5

def f2u(x):
    return struct.unpack('<I', struct.pack('<f', x))[0]

class Asm:
    def __init__(self):
        self.lines = []; self.nlabel = 0; self.vm = []
        self.fstamp = lambda p: None
    def e(self, s): self.lines.append('  ' + s)
    def c(self, s): self.lines.append('  ; ' + s)
    def label(self, name): self.lines.append(name + ':')
    def newlabel(self, base='L'):
        self.nlabel += 1
        return f'{base}_{self.nlabel}'
    def vmem(self, s, tag=None):
        self.e(s); self.vm.append(tag)
    def count_vm(self, tag):
        if tag not in self.vm: return None
        idx = max(i for i, t in enumerate(self.vm) if t == tag)
        n = len(self.vm) - 1 - idx
        assert n <= 63, n
        self.vm = self.vm[idx + 1:]
        return n
    def wait_vm(self, tag):
        n = self.count_vm(tag)
        if n is not None: self.e(f's_waitcnt vmcnt({n})')
    def wait_vm_all(self):
        self.e('s_waitcnt vmcnt(0)'); self.vm = []
    def text(self): return '\n'.join(self.lines)

def set_exec(a, lo, hi=None):
    a.e(f's_mov_b32 exec_lo, {hex(lo)}')
    a.e(f's_mov_b32 exec_hi, {hex(lo if hi is None else hi)}')

S_V = 3
S_WS = 4; S_X = 8; S_OUT = 12; S_PA = 16
S_G, S_R, S_W, S_RB, S_CB, S_RB2, S_CB2 = 20, 21, 22, 23, 24, 25, 26
S_MODE, S_L, S_LOFF, S_EP, S_B, S_XCC = 27, 28, 29, 30, 31, 32
S_T0, S_T1, S_T2, S_T3, S_T4, S_T5 = 33, 34, 35, 36, 37, 38
S_SPIN, S_THR = 39, 40
S_AOFF, S_AOFF2, S_ASTR = 41, 42, 43
S_C1, S_C2, S_ONE2 = 44, 46, 48
S_LOG2E, S_EPS6 = 50, 51
S_W4K = 52
S_RH, S_CH = 53, 54
S_U0, S_U1, S_U2, S_U3, S_U4 = 55, 56, 57, 58, 59
S_COLD = 62
S_GH = 63
S_RA = 86
S_RK = 90
S_P7 = 94
S_ROTK = 45
S_PTR = 64
S_WQKV, S_WO, S_W1, S_W2, S_W3, S_W4 = 40, 44, 48, 52, 56, 60
S_CSRD = 88

V_LANE = 0
V_AS, V_AB, V_AG, V_P1 = 1, 2, 3, 4
V_AH = 5
V_STS, V_STB, V_STST, V_XRM, V_TST = 9, 10, 11, 12, 13
V_FSB, V_FBS, V_FSS, V_FH, V_FOWN, V_FKV = 14, 15, 16, 17, 18, 19
V_T128, V_T64, V_T224, V_TN, V_TA = 20, 21, 22, 23, 24
V_T0, V_T1, V_T2 = 25, 26, 27
V_TB = 28
V_RES = 32
V_MEAN, V_RS = 48, 49
V_X = 50
V_PQ = 56
V_ACC = 64
V_A = 128

PHASES = ['P1KV', 'P1Q', 'P3', 'P4', 'P5', 'P6', 'P7']
NCH = {'P1KV': 4, 'P1Q': 2, 'P3': 4, 'P4': 4, 'P5': 4, 'P6': 4, 'P7': 14}

ATOMIC = [1]
NOE = ('P3', 'P4', 'P5')

class Slab:
    def __init__(self, layer, phase, chunk, kind, size, srow, npieces, srow2=None):
        self.layer, self.phase, self.chunk, self.kind = layer, phase, chunk, kind
        self.size, self.srow, self.npieces, self.srow2 = size, srow, npieces, srow2
        self.addr = None

def w4_tile_seq():
    seq = []
    for c in range(8):
        for i in [0, 1, 2, 3, 4, 5, 7, 8, 9, 10, 11, 12, 6, 13]:
            seq.append(14 * c + i)
    return seq

def build_slabs(layer):
    ph = {}
    def simple(phase, kind, nchunk, per, size, rows, np_):
        ph[phase] = [[Slab(layer, phase, c, kind, size, (c * per + j) * rows, np_) for j in range(per)] for c in range(nchunk)]
    simple('P1KV', 'KV', 4, 4, 4096, 32, 4)
    simple('P1Q', 'Q', 2, 4, 4096, 64, 4)
    simple('P3', 'WO', 4, 4, 4096, 32, 4)
    simple('P4', 'W1', 4, 4, 4096, 32, 4)
    simple('P5', 'W2', 4, 4, 4096, 32, 4)
    simple('P6', 'W3', 4, 4, 7168, 32, 7)
    seq = w4_tile_seq()
    ph['P7'] = [[Slab(layer, 'P7', c, 'W4', 4096, seq[2 * (c * 4 + j)] * 16, 4, srow2=seq[2 * (c * 4 + j) + 1] * 16)
                 for j in range(4)] for c in range(14)]
    pos = PHI
    for p in PHASES:
        for ch in ph[p]:
            for s in ch:
                if pos + s.size > RING: pos = 0
                s.addr = WRING + pos
                pos += s.size
    assert pos == PHI, pos
    return ph

def build_events(stop):
    ev = []
    for L in range(2):
        for p in PHASES:
            for c in range(NCH[p]): ev.append((L, 'B', p, c))
            if p not in NOE: ev.append((L, 'E', p, None))
            if p == 'P1KV': ev.append((L, 'X', 'X1', None))
            if p == 'P1Q' and not ATOMIC[0]: ev.append((L, 'X', 'X2', None))
            if stop == (L, p): return ev
    return ev

WS = f's[{S_WS}:{S_WS+3}]'

def thr_value(a, dst, epoch, xcc=False):
    if isinstance(epoch, int):
        a.e(f's_add_u32 s{dst}, s{S_B}, {8*epoch}')
    else:
        a.e(f's_lshl_b32 s{dst}, {epoch}, 3')
        a.e(f's_add_u32 s{dst}, s{dst}, s{S_B}')
    if xcc: a.e(f's_add_u32 s{dst}, s{dst}, s{S_XCC}')

def emit_poll(a, vaddr, epoch, soff='0', opt=Opt, x4=False, tbase=None):
    L = a.newlabel('POLL'); D = a.newlabel('POLLD')
    thr_value(a, S_THR, epoch)
    a.e(f's_mov_b32 s{S_SPIN}, {opt.spin}')
    a.label(L)
    if x4:
        T = tbase
        a.e(f'buffer_load_dwordx4 v[{T}:{T+3}], v{vaddr}, {WS}, {soff} offen sc1')
        a.e('s_waitcnt vmcnt(0)')
        for i in range(4): a.e(f'v_subrev_u32 v{T+i}, s{S_THR}, v{T+i}')
        a.e(f'v_max_u32 v{T}, v{T}, v{T+1}')
        a.e(f'v_max_u32 v{T+2}, v{T+2}, v{T+3}')
        a.e(f'v_max_u32 v{V_T0}, v{T}, v{T+2}')
    else:
        a.e(f'buffer_load_dword v{V_T2}, v{vaddr}, {WS}, {soff} offen sc1')
        a.e('s_waitcnt vmcnt(0)')
        a.e(f'v_subrev_u32 v{V_T0}, s{S_THR}, v{V_T2}')
    a.vm = []
    a.e(f'v_cmp_gt_u32 vcc, 0x80, v{V_T0}')
    a.e(f's_sub_u32 s{S_SPIN}, s{S_SPIN}, 1')
    a.e(f's_cbranch_scc1 {D}')
    a.e('s_cmp_eq_u64 vcc, -1')
    if opt.poll_sleep:
        a.e(f's_cbranch_scc1 {D}')
        a.e(f's_sleep {opt.poll_sleep}')
        a.e(f's_branch {L}')
    else:
        a.e(f's_cbranch_scc0 {L}')
    a.label(D)

def emit_mode_stores(a, stores, cold=False):
    F = a.newlabel('STF'); D = a.newlabel('STD')
    if getattr(a, 'opt', None) is not None and a.opt.pretouch and a.opt.park: cold = False
    a.e(f's_cmp_eq_u32 s{S_COLD if cold else S_MODE}, 0')
    a.e(f's_cbranch_scc1 {F}')
    for s in stores: a.e(s + ' sc1')
    a.e(f's_branch {D}')
    a.label(F)
    for s in stores: a.e(s)
    a.label(D)
    for s in stores: a.vm.append('st')

def emit_signal(a, epoch):
    thr_value(a, S_THR, epoch, xcc=True)
    a.e(f'v_mov_b32 v{V_T0}, s{S_THR}')
    a.wait_vm_all()
    a.e('s_mov_b64 exec, 1')
    emit_mode_stores(a, [f'buffer_store_dword v{V_T0}, v{V_FOWN}, {WS}, 0 offen'])
    a.e('s_mov_b64 exec, -1')

def emit_xreduce(a, regs, tmp, over16=True):
    for r, t in zip(regs, tmp): a.e(f'v_mov_b32 v{t}, v{r}')
    a.e('s_nop 1')
    for r, t in zip(regs, tmp): a.e(f'v_permlane32_swap_b32 v{r}, v{t}')
    a.e('s_nop 0')
    for r, t in zip(regs, tmp): a.e(f'v_add_f32 v{r}, v{r}, v{t}')
    if over16:
        for r, t in zip(regs, tmp): a.e(f'v_mov_b32 v{t}, v{r}')
        a.e('s_nop 1')
        for r, t in zip(regs, tmp): a.e(f'v_permlane16_swap_b32 v{r}, v{t}')
        a.e('s_nop 0')
        for r, t in zip(regs, tmp): a.e(f'v_add_f32 v{r}, v{r}, v{t}')

def pk(op, d, x, y, z=None, mods=''):
    s = f'v_pk_{op}_f32 v[{d}:{d+1}], {x}, {y}'
    if z is not None: s += f', {z}'
    return s + mods
def vp(r): return f'v[{r}:{r+1}]'

def emit_stats_partial32(a, vals, t0, st_soff, cold=False):
    s, q = t0, t0 + 2
    a.e(pk('add', s, vp(vals), vp(vals + 2)))
    a.e(pk('mul', q, vp(vals), vp(vals)))
    a.e(pk('fma', q, vp(vals + 2), vp(vals + 2), vp(q)))
    for i in range(4, 16, 2):
        a.e(pk('add', s, vp(s), vp(vals + i)))
        a.e(pk('fma', q, vp(vals + i), vp(vals + i), vp(q)))
    a.e(f'v_add_f32 v{t0}, v{s}, v{s+1}')
    a.e(f'v_add_f32 v{t0+1}, v{q}, v{q+1}')
    emit_xreduce(a, [t0, t0 + 1], [t0 + 4, t0 + 5], over16=False)
    set_exec(a, 0xffffffff, 0)
    emit_mode_stores(a, [f'buffer_store_dwordx2 v[{t0}:{t0+1}], v{V_STST}, {WS}, {st_soff} offen'], cold=cold)
    a.e('s_mov_b64 exec, -1')

def emit_stats_from_sums(a, s, ss, out_a, out_b, tmp, double=False, keep=None):
    mean, var = s, ss
    a.e(f'v_mul_f32 v{mean}, {hex(f2u(1.0/512))}, v{s}')
    a.e(f'v_mul_f32 v{var}, {hex(f2u(1.0/512))}, v{ss}')
    a.e(f'v_fma_f32 v{var}, -v{mean}, v{mean}, v{var}')
    a.e(f'v_max_f32 v{var}, 0, v{var}')
    a.e(f'v_add_f32 v{tmp}, {hex(f2u(EPS))}, v{var}')
    a.e(f'v_rsq_f32 v{tmp}, v{tmp}')
    a.e('s_nop 0')
    if double:
        a.e(f'v_mul_f32 v{tmp+1}, v{tmp}, v{tmp}')
        a.e(f'v_mul_f32 v{tmp+1}, v{tmp+1}, v{var}')
        a.e(f'v_add_f32 v{tmp+1}, {hex(f2u(EPS))}, v{tmp+1}')
        a.e(f'v_rsq_f32 v{tmp+1}, v{tmp+1}')
        a.e('s_nop 0')
        a.e(f'v_mul_f32 v{out_a}, v{tmp}, v{tmp+1}')
    else:
        a.e(f'v_mov_b32 v{out_a}, v{tmp}')
    if keep:
        a.e(f'v_mov_b32 v{keep[0]}, v{mean}')
        a.e(f'v_mov_b32 v{keep[1]}, v{tmp}')
    a.e(f'v_mul_f32 v{out_b}, v{out_a}, v{mean}')
    a.e(f'v_sub_f32 v{out_b}, 0, v{out_b}')

def emit_sum_partials(a, raw, n):
    k = n
    step = 2
    regs = [raw + i for i in range(0, n, 2)]
    while len(regs) > 1:
        nxt = []
        for i in range(0, len(regs), 2):
            a.e(pk('add', regs[i], vp(regs[i]), vp(regs[i + 1])))
            nxt.append(regs[i])
        regs = nxt

def emit_lnfold(a, acc, cs, av, bv, n):
    for i in range(0, n, 2):
        a.e(pk('mul', acc + i, vp(acc + i), vp(av), mods=' op_sel_hi:[1,0]'))
    for i in range(0, n, 2):
        a.e(pk('fma', acc + i, vp(cs + i), vp(bv), vp(acc + i), mods=' op_sel_hi:[1,0,1]'))

def emit_gelu(a, x, n, tmp, c1reg):
    blk = 16
    a.e(f'v_mov_b32 v{c1reg}, s{S_C1}')
    for b0 in range(0, n, blk):
        m = min(blk, n - b0); t = tmp
        for i in range(0, m, 2): a.e(pk('mul', t + i, vp(x + b0 + i), vp(x + b0 + i)))
        for i in range(0, m, 2): a.e(pk('fma', t + i, vp(t + i), f's[{S_C2}:{S_C2+1}]', vp(c1reg), mods=' op_sel_hi:[1,1,0]'))
        for i in range(0, m, 2): a.e(pk('mul', t + i, vp(t + i), vp(x + b0 + i)))
        for i in range(m): a.e(f'v_exp_f32 v{t+i}, v{t+i}')
        for i in range(0, m, 2): a.e(pk('add', t + i, vp(t + i), f's[{S_ONE2}:{S_ONE2+1}]'))
        for i in range(m): a.e(f'v_rcp_f32 v{t+i}, v{t+i}')
        for i in range(0, m, 2): a.e(pk('mul', x + b0 + i, vp(x + b0 + i), vp(t + i)))

def emit_phi(a, regs, tmp):
    for i, r in enumerate(regs): a.e(f'v_min_f32 v{tmp+i}, 0, v{r}')
    for i, r in enumerate(regs): a.e(f'v_mul_f32 v{tmp+i}, s{S_LOG2E}, v{tmp+i}')
    for i, r in enumerate(regs): a.e(f'v_exp_f32 v{tmp+i}, v{tmp+i}')
    for i, r in enumerate(regs): a.e(f'v_max_f32 v{r}, 0, v{r}')
    for i, r in enumerate(regs): a.e(f'v_add_f32 v{r}, v{r}, v{tmp+i}')
    for i, r in enumerate(regs): a.e(f'v_add_f32 v{r}, s{S_EPS6}, v{r}')

def emit_pack(a, dst, src, n):
    for i in range(0, n, 2): a.e(f'v_cvt_pk_bf16_f32 v{dst+i//2}, v{src+i}, v{src+i+1}')

def emit_pack32(a, dst, src):
    for k, j in enumerate([0, 2, 1, 3]):
        a.e(f'v_cvt_pk_bf16_f32 v{dst+2*k}, v{src+4*j}, v{src+4*j+1}')
        a.e(f'v_cvt_pk_bf16_f32 v{dst+2*k+1}, v{src+4*j+2}, v{src+4*j+3}')

class TrBase:
    def __init__(self, a, lane_reg, nt):
        self.a, self.lane_reg, self.nt, self.cur = a, lane_reg, nt, None
    def off(self, addr, span):
        if self.cur is None or addr < self.cur or addr + span - self.cur > 65535:
            self.cur = addr
            for t in range(self.nt):
                if t == 0:
                    self.a.e(f'v_add_u32 v{V_TB}, {hex(addr)}, v{self.lane_reg}')
                else:
                    self.a.e(f'v_xor_b32 v{V_TB+t}, {t << 5}, v{self.lane_reg}')
                    self.a.e(f'v_add_u32 v{V_TB+t}, {hex(addr)}, v{V_TB+t}')
        return addr - self.cur

def emit_gemm16(a, bar, phase, chunks, CT, kind, acc_of, a_of, a_wait, a_issue, wr, S, normal=False, extra=None, a_lds=None):
    R, LA = 2, 4
    ks = []
    for ci, ch in enumerate(chunks):
        first = True
        for s in ch:
            ks.append((ci, s.addr, first)); first = False
            if kind == '64': ks.append((ci, s.addr + 2048, False))
    KS = len(ks)
    if kind == '128':
        trb = TrBase(a, V_T128, 4); second = 2048; span = 4096; tb = lambda t: V_TB + t; timm = lambda t: 0
    elif kind == '64':
        trb = TrBase(a, V_T64, 2); second = 1024; span = 2048; tb = lambda t: V_TB + t; timm = lambda t: 0
    else:
        trb = TrBase(a, V_T224, 1); second = 3584; span = 7168; tb = lambda t: V_TB; timm = lambda t: 32 * t
    total = KS * CT
    def slot(n): return wr + 4 * (n % S)
    def pre_issue(n):
        j, t = divmod(n, CT)
        ci, addr, first = ks[j]
        if t == 0 and first:
            a.fstamp(phase); bar(('B', phase, ci)); a.fstamp(phase)
        imm = trb.off(addr, span) if t == 0 else addr - trb.cur
        return imm + timm(t), t
    def rd(n, half, info):
        imm, t = info
        a.e(f'ds_read_b64_tr_b16 v[{slot(n)+2*half}:{slot(n)+2*half+1}], v{tb(t)} offset:{imm + (second if half else 0)}')
    def mfma(m, r):
        j, t = divmod(m, CT)
        d = acc_of(r, t); c = '0' if j == 0 else f'v[{d}:{d+3}]'
        w = f'v[{slot(m)}:{slot(m)+3}]'; x = f'v[{a_of(r,j)}:{a_of(r,j)+3}]'
        a.e(f'v_mfma_f32_16x16x32_bf16 v[{d}:{d+3}], ' + (f'{x}, {w}' if normal else f'{w}, {x}') + f', {c}')
    lq = []
    def need(tags):
        idx = max((i for i, g in enumerate(lq) if g in tags), default=None)
        if idx is None: return None
        n_ = len(lq) - 1 - idx
        del lq[:idx + 1]
        assert n_ <= 15
        return n_
    def pre2(n):
        info = pre_issue(n)
        j, t = divmod(n, CT)
        if a_lds and t == 0:
            for s_ in a_lds(j):
                a.e(s_); lq.append(('A', j))
        return info
    def rd2(n, half, info):
        rd(n, half, info); lq.append(('W', n))
    for n in range(min(LA, total)):
        info = pre2(n); rd2(n, 0, info); rd2(n, 1, info)
    for n in range(total):
        j, t = divmod(n, CT)
        lg = need({('W', n), ('A', j)})
        vmn = a_wait(j) if t == 0 else None
        if t == 0 and j in (0, 1): a.fstamp(phase)
        parts = ([f'vmcnt({vmn})'] if vmn is not None else []) + ([f'lgkmcnt({lg})'] if lg is not None else [])
        if parts: a.e('s_waitcnt ' + ' '.join(parts))
        nx = n + LA; info = None
        mfma(n, 0)
        if nx < total:
            info = pre2(nx); rd2(nx, 0, info)
        mfma(n, 1)
        if nx < total: rd2(nx, 1, info)
        a_issue(j, t)
        if extra and t == CT - 1: extra(j)
    a.fstamp(phase); bar(('E', phase, None)); a.fstamp(phase)
    a.e('s_nop 7')

def emit_gemm32(a, bar, phase, chunks, acc, wr, tail=None, a_pieces=None):
    LA, S = 4, 5
    nch = len(chunks)
    total = nch * 8
    trb = TrBase(a, V_TN, 1)
    def slot(n): return wr + 8 * (n % S)
    def reads(n):
        c, rem = divmod(n, 8); ksl, s = divmod(rem, 2)
        out = []
        if rem == 0:
            if a_pieces: a.wait_vm(('A', c))
            a.fstamp(phase); bar(('B', phase, c)); a.fstamp(phase)
        sl = chunks[c][ksl]
        imm = trb.off(sl.addr, 4096)
        out.append(f'ds_read_b128 v[{slot(n)}:{slot(n)+3}], v{V_TA} offset:{(c % 4) * 16384 + ksl * 1024 + s * 512}')
        out.append(f'ds_read_b64_tr_b16 v[{slot(n)+4}:{slot(n)+5}], v{V_TB} offset:{imm + s * 1024}')
        out.append(f'ds_read_b64_tr_b16 v[{slot(n)+6}:{slot(n)+7}], v{V_TB} offset:{imm + s * 1024 + 2048}')
        return out
    queue = []; nxt = 2; passed = 0
    if a_pieces:
        for c in (0, 1):
            for t in a_pieces(c): t()
    for n in range(LA):
        for s in reads(n): a.e(s)
    for n in range(total):
        lg = 3 * (min(n - 1 + LA, total - 1) - n)
        a.e(f's_waitcnt lgkmcnt({lg})')
        c = '0' if n == 0 else f'v[{acc}:{acc+15}]'
        a.e(f'v_mfma_f32_32x32x16_bf16 v[{acc}:{acc+15}], v[{slot(n)+4}:{slot(n)+7}], v[{slot(n)}:{slot(n)+3}], {c}')
        nx = n + LA
        if nx < total:
            if nx % 8 == 0: passed = nx // 8
            for s in reads(nx): a.e(s)
        if a_pieces:
            while nxt < nch and (nxt <= passed + 2 or nxt <= 3) and len(queue) < 4:
                queue += list(a_pieces(nxt)); nxt += 1
            if queue: queue.pop(0)()
        if tail and n == max(total - 24, 0): tail()
    a.fstamp(phase)
    if phase not in NOE:
        bar(('E', phase, None))
    a.fstamp(phase)
    a.e('s_nop 7'); a.e('s_nop 3')


def gen_compute(a, opt, events):
    evq = list(events)
    tm = [0]
    def tmreg(i):
        assert i < 22, i
        return 64 + i
    def dump(regs):
        sk = a.newlabel('TMS')
        a.e('s_waitcnt lgkmcnt(0)')
        a.e(f's_cmp_eq_u32 s{S_W}, 0')
        a.e(f's_cbranch_scc0 {sk}')
        if opt.dbgout >= 0 and opt.timing:
            a.e(f's_cmp_eq_u32 s2, {opt.dbgwg}')
            a.e(f's_cbranch_scc0 {sk}')
            a.e(f's_cmp_eq_u32 s{S_L}, {opt.dbgout}')
            a.e(f's_cbranch_scc0 {sk}')
            sel = [1, 2, 3, 4, 5, 6, 8, 9, 11, 12, 14, 15, 16, 17, 18, 20]
            for i, k in enumerate(sel):
                if k >= len(regs): continue
                a.e(f's_sub_u32 s{S_T0}, s{regs[k]}, s{regs[0]}')
                a.e(f'v_mov_b32 v{V_T0}, s{S_T0}')
                a.e(f'v_mov_b32 v{V_T1}, {4*i}')
                a.e(f'global_store_dword v{V_T1}, v{V_T0}, s[86:87]')
        else:
            a.e(f's_lshl_b32 s{S_T0}, s2, 8')
            a.e(f's_lshl_b32 s{S_T1}, s{S_L}, 7')
            if opt.timing: a.e(f's_add_u32 s{S_T0}, s{S_T0}, s{S_T1}')
            a.e(f's_add_u32 s{S_T0}, s{S_T0}, {hex(TM_OFF)}')
            for i, r in enumerate(regs):
                a.e(f'v_mov_b32 v{V_T0}, s{r}')
                a.e(f'v_mov_b32 v{V_T1}, {4*i}')
                a.e(f'buffer_store_dword v{V_T0}, v{V_T1}, {WS}, s{S_T0} offen')
        a.label(sk)
        a.e('s_waitcnt vmcnt(0)')
    fs = [0]
    def freg(i): return 64 + 2 * i
    def fstamp(phase):
        if opt.fine == phase and fs[0] < 11:
            a.e(f's_memtime s[{freg(fs[0])}:{freg(fs[0])+1}]'); fs[0] += 1
    a.fstamp = fstamp
    def stamp():
        if opt.timing:
            a.e('s_memtime s[60:61]')
            a.e('s_waitcnt lgkmcnt(0)')
            a.e(f's_mov_b32 s{tmreg(tm[0])}, s60'); tm[0] += 1

    T0, T1, T2, TB = V_T0, V_T1, V_T2, V_TB
    if opt.wall:
        a.e('s_memrealtime s[60:61]'); a.e('s_waitcnt lgkmcnt(0)'); a.e('s_mov_b32 s84, s60')
        a.e('s_memtime s[60:61]'); a.e('s_waitcnt lgkmcnt(0)'); a.e('s_mov_b32 s85, s60')
    a.c('--- compute: early address setup')
    if opt.startdiag:
        a.e('s_memtime s[98:99]'); a.e('s_waitcnt lgkmcnt(0)'); a.e('s_sub_u32 s98, s98, s100'); a.e('s_mov_b32 s85, s98')
    stamp()
    a.e(f's_lshr_b32 s{S_RH}, s{S_W}, 1')
    a.e(f's_and_b32 s{S_CH}, s{S_W}, 1')
    a.e(f's_lshl_b32 s{S_W4K}, s{S_W}, 12')
    a.e(f's_lshl_b32 s{S_U0}, s{S_G}, 4')
    a.e(f's_lshl_b32 s{S_T1}, s{S_RB}, 2')
    a.e(f's_add_u32 s{S_U0}, s{S_U0}, s{S_T1}')
    a.e(f's_lshl_b32 s{S_T1}, s{S_RH}, 1')
    a.e(f's_add_u32 s{S_U2}, s{S_U0}, s{S_T1}')
    a.e(f's_add_u32 s{S_U0}, s{S_U0}, s{S_W}')
    a.e(f's_lshl_b32 s{S_U1}, s{S_G}, 4')
    a.e(f's_lshl_b32 s{S_T2}, s{S_RB2}, 3')
    a.e(f's_add_u32 s{S_U1}, s{S_U1}, s{S_T2}')
    a.e(f's_lshl_b32 s{S_T2}, s{S_W}, 1')
    a.e(f's_add_u32 s{S_U1}, s{S_U1}, s{S_T2}')
    a.e(f'v_and_b32 v{T0}, 15, v{V_LANE}')
    a.e(f'v_and_b32 v{T1}, 0x30, v{V_LANE}')
    a.e(f's_lshl_b32 s{S_ROTK}, s{S_RB2}, 1')
    a.e(f's_add_u32 s{S_ROTK}, s{S_ROTK}, s{S_CB2}')
    a.e(f's_and_b32 s{S_ROTK}, s{S_ROTK}, {3 if opt.rot else 0}')
    a.e(f'v_and_b32 v{T2}, 31, v{V_LANE}')
    a.e(f'v_lshrrev_b32 v{TB}, 5, v{V_LANE}')
    a.e(f'v_lshlrev_b32 v{V_XRM}, 10, v{T2}')
    a.e(f'v_lshl_add_u32 v{V_XRM}, v{TB}, 3, v{V_XRM}')
    a.e(f's_lshl_b32 s{S_T2}, s{S_U2}, 14')
    a.e(f's_lshl_b32 s{S_T3}, s{S_CB}, 7')
    a.e(f's_add_u32 s{S_T2}, s{S_T2}, s{S_T3}')
    a.e(f's_lshl_b32 s{S_T3}, s{S_CH}, 6')
    a.e(f's_add_u32 s{S_T2}, s{S_T2}, s{S_T3}')
    a.e(f'v_add_u32 v{V_XRM}, s{S_T2}, v{V_XRM}')
    PA = f's[{S_PA}:{S_PA+3}]'
    def p1_load(j):
        if j % 4 == 0:
            a.e(f's_mov_b32 s{S_AOFF}, s{S_RK + j // 4}')
            a.e(f's_add_u32 s{S_AOFF2}, s{S_AOFF}, 0x4000')
        for r in range(2):
            a.vmem(f'buffer_load_dwordx4 v[{V_A+(r*16+j)*4}:{V_A+(r*16+j)*4+3}], v{V_P1}, {PA}, s{S_AOFF if r == 0 else S_AOFF2} offen', ('A', j))
        if j % 4 != 3:
            a.e(f's_add_u32 s{S_AOFF}, s{S_AOFF}, s{S_ASTR}')
            a.e(f's_add_u32 s{S_AOFF2}, s{S_AOFF2}, s{S_ASTR}')
    a.e('s_waitcnt lgkmcnt(0)')
    a.e(f's_mul_i32 s{S_B}, s{S_V}, 0x9e3779b1')
    a.e(f's_add_u32 s{S_B}, s{S_B}, 0x7f4a7c15')
    a.e(f's_and_b32 s{S_B}, s{S_B}, 0xffffff00')
    a.c('--- compute: address setup')
    a.e(f'v_lshlrev_b32 v{V_X}, 4, v{V_LANE}')
    a.e(f's_lshl_b32 s{S_T2}, s{S_U1}, 14')
    a.e(f'v_add_u32 v{V_AB}, s{S_T2}, v{V_X}')
    a.e(f'v_lshlrev_b32 v{V_STS}, 4, v{T2}')
    a.e(f'v_lshl_add_u32 v{V_STS}, v{TB}, 11, v{V_STS}')
    a.e(f's_lshl_b32 s{S_T2}, s{S_U2}, 11')
    a.e(f'v_add_u32 v{V_STS}, s{S_T2}, v{V_STS}')
    a.e(f'v_lshlrev_b32 v{V_STST}, 4, v{T2}')
    a.e(f's_lshl_b32 s{S_T4}, s{S_CB}, 9')
    a.e(f's_add_u32 s{S_T2}, s{S_T2}, s{S_T4}')
    a.e(f's_lshl_b32 s{S_T4}, s{S_CH}, 3')
    a.e(f's_add_u32 s{S_T2}, s{S_T2}, s{S_T4}')
    a.e(f'v_add_u32 v{V_STST}, s{S_T2}, v{V_STST}')
    a.e(f's_lshl_b32 s{S_T3}, s{S_CB}, 1')
    a.e(f's_add_u32 s{S_T3}, s{S_T3}, s{S_CH}')
    a.e(f'v_lshlrev_b32 v{V_STB}, 4, v{T0}')
    a.e(f'v_lshl_add_u32 v{V_STB}, v{T1}, 6, v{V_STB}')
    a.e(f's_lshl_b32 s{S_T2}, s{S_U1}, 11')
    a.e(f'v_add_u32 v{V_STB}, s{S_T2}, v{V_STB}')
    a.e(f'v_lshrrev_b32 v{V_TST}, 4, v{T2}')
    a.e(f'v_lshlrev_b32 v{V_TST}, 14, v{V_TST}')
    a.e(f'v_lshl_add_u32 v{V_TST}, v{TB}, 8, v{V_TST}')
    a.e(f'v_lshl_add_u32 v{V_TST}, v{T0}, 4, v{V_TST}')
    a.e(f's_lshl_b32 s{S_T2}, s{S_U2}, 14')
    a.e(f's_lshl_b32 s{S_T4}, s{S_T3}, 10')
    a.e(f's_add_u32 s{S_T2}, s{S_T2}, s{S_T4}')
    a.e(f'v_add_u32 v{V_TST}, s{S_T2}, v{V_TST}')
    a.e(f's_lshl_b32 s{S_T2}, s{S_G}, 9')
    a.e(f's_add_u32 s{S_T2}, s{S_T2}, {hex(LF_OFF)}')
    a.e(f's_lshl_b32 s{S_T3}, s{S_W}, 7')
    a.e(f's_add_u32 s{S_T3}, s{S_T3}, s{S_T2}')
    a.e(f's_lshl_b32 s{S_T4}, s{S_R}, 2')
    a.e(f's_add_u32 s{S_T4}, s{S_T4}, s{S_T3}')
    a.e(f'v_mov_b32 v{V_FOWN}, s{S_T4}')
    a.e(f'v_and_b32 v{V_X+1}, 7, v{V_LANE}')
    a.e(f'v_lshlrev_b32 v{V_X+1}, 2, v{V_X+1}')
    a.e(f'v_bfe_u32 v{V_X+2}, v{V_LANE}, 3, 1')
    a.e(f'v_lshl_add_u32 v{V_X+1}, v{V_X+2}, 7, v{V_X+1}')
    a.e(f's_lshl_b32 s{S_T4}, s{S_RB2}, 1')
    a.e(f's_add_u32 s{S_T4}, s{S_T4}, s{S_RH}')
    a.e(f's_lshl_b32 s{S_T4}, s{S_T4}, 5')
    a.e(f's_lshl_b32 s{S_T5}, s{S_CH}, 8')
    a.e(f's_add_u32 s{S_T4}, s{S_T4}, s{S_T5}')
    a.e(f's_add_u32 s{S_T4}, s{S_T4}, s{S_T2}')
    a.e(f'v_add_u32 v{V_FSB}, s{S_T4}, v{V_X+1}')
    a.e(f's_lshl_b32 s{S_T4}, s{S_CB2}, 7')
    a.e(f's_add_u32 s{S_T4}, s{S_T4}, {hex(KVF_OFF)}')
    a.e(f'v_lshlrev_b32 v{V_FKV}, 2, v{T2}')
    a.e(f'v_add_u32 v{V_FKV}, s{S_T4}, v{V_FKV}')
    a.e(f'v_bfe_u32 v{V_X+1}, v{V_LANE}, 2, 2')
    a.e(f'v_lshrrev_b32 v{V_X+2}, 4, v{V_LANE}')
    a.e(f'v_lshl_add_u32 v{V_X+3}, v{V_X+2}, 2, v{V_X+1}')
    a.e(f'v_and_b32 v{V_X+4}, 3, v{V_LANE}')
    a.e(f'v_lshlrev_b32 v{V_X+4}, 3, v{V_X+4}')
    a.e(f'v_bfe_u32 v{V_X+5}, v{V_X+3}, 1, 2')
    a.e(f'v_lshl_add_u32 v{V_T128}, v{V_X+5}, 5, v{V_X+4}')
    a.e(f'v_lshl_add_u32 v{V_T128}, v{V_X+3}, 7, v{V_T128}')
    a.e(f'v_bfe_u32 v{V_X+5}, v{V_X+3}, 2, 1')
    a.e(f'v_lshl_add_u32 v{V_T64}, v{V_X+5}, 5, v{V_X+4}')
    a.e(f'v_lshl_add_u32 v{V_T64}, v{V_X+3}, 6, v{V_T64}')
    a.e(f'v_mul_u32_u24 v{V_T224}, 224, v{V_X+3}')
    a.e(f'v_add_u32 v{V_T224}, v{V_T224}, v{V_X+4}')
    a.e(f'v_lshrrev_b32 v{V_X+3}, 1, v{V_X+2}')
    a.e(f'v_lshl_add_u32 v{V_X+3}, v{V_X+3}, 2, v{V_X+1}')
    a.e(f'v_and_b32 v{V_X+5}, 1, v{V_X+2}')
    a.e(f's_lshl_b32 s{S_T4}, s{S_CH}, 1')
    a.e(f'v_add_u32 v{V_X+5}, s{S_T4}, v{V_X+5}')
    a.e(f'v_and_b32 v{V_X+1}, 2, v{V_X+1}')
    a.e(f'v_xor_b32 v{V_X+5}, v{V_X+5}, v{V_X+1}')
    a.e(f'v_lshl_add_u32 v{V_TN}, v{V_X+5}, 5, v{V_X+4}')
    a.e(f'v_lshl_add_u32 v{V_TN}, v{V_X+3}, 7, v{V_TN}')
    a.e(f'v_bfe_u32 v{V_TA}, v{V_LANE}, 4, 1')
    a.e(f's_lshl_b32 s{S_T4}, s{S_RH}, 1')
    a.e(f'v_add_u32 v{V_TA}, s{S_T4}, v{V_TA}')
    a.e(f'v_lshlrev_b32 v{V_TA}, 12, v{V_TA}')
    a.e(f'v_lshl_add_u32 v{V_TA}, v{TB}, 8, v{V_TA}')
    a.e(f'v_lshl_add_u32 v{V_TA}, v{T0}, 4, v{V_TA}')
    if AREG: a.e(f'v_add_u32 v{V_TA}, {hex(AREG)}, v{V_TA}')
    c1 = -2.0 * 0.7978845608028654 * 1.4426950408889634
    c2 = c1 * 0.044715
    for s, v in [(S_C1, c1), (S_C2, c2), (S_C2 + 1, c2), (S_ONE2, 1.0), (S_ONE2 + 1, 1.0),
                 (S_LOG2E, 1.4426950408889634), (S_EPS6, 1e-6)]:
        a.e(f's_mov_b32 s{s}, {hex(f2u(v))}')
    a.e(f's_mov_b32 s{S_L}, 0')
    a.e(f's_mov_b32 s{S_LOFF}, 0')
    a.e(f's_mov_b32 s{S_EP}, 1')
    a.e(f's_mov_b32 s{S_MODE}, 1')
    a.e(f's_mov_b32 s{S_COLD}, 1')
    a.e(f's_lshl_b32 s{S_GH}, s{S_G}, 1')
    a.e(f's_add_u32 s{S_GH}, s{S_GH}, 1')
    a.e(f's_lshl_b32 s{S_GH}, s{S_GH}, 14')

    LOOP = 'LAYER_LOOP'
    a.label(LOOP)
    slabs = build_slabs(0)

    def run_layer():
        def bar(ev):
            exp = evq.pop(0)
            assert exp[1:] == ev or (exp[1] == 'X' and ev[0] == 'X' and exp[2] == ev[1]), (exp, ev)
            a.e('s_barrier')
        def soff(reg, base, extra=0, gh=False):
            if gh: a.e(f's_add_u32 s{reg}, s{S_GH}, {hex(base + extra)}')
            else: a.e(f's_mov_b32 s{reg}, {hex(base + extra)}')
        def done(p):
            if opt.stop == (1, p):
                a.e(f's_cmp_eq_u32 s{S_L}, 1')
                a.e('s_cbranch_scc1 L_END_COMPUTE')
            return opt.stop == (0, p)
        def ep(k):
            a.e(f's_add_u32 s{S_T5}, s{S_EP}, {k}')
            return f's{S_T5}'

        a.c('=== P1KV')
        WR1 = 96; D1 = 116; ONES = 124; D2 = V_PQ
        for i in range(4): a.e(f'v_mov_b32 v{ONES+i}, 0x3f803f80')
        l0 = a.newlabel('KVL0'); ljoin = a.newlabel('KVJ')
        a.e(f's_cmp_eq_u32 s{S_L}, 0')
        a.e(f's_cbranch_scc1 {l0}')
        saved_ev = list(evq)
        emit_poll(a, V_FSB, f's{S_EP}', opt=opt)
        for j in range(opt.D_kv): p1_load(j)
        stamp()
        a.fstamp('P1KV')
        def kv_issue(j, t):
            if t == 1:
                if j + opt.D_kv < 16:
                    p1_load(j + opt.D_kv)
                elif j + opt.D_kv == 16:
                    soff(S_T0, ST_OFF)
                    a.vmem(f'buffer_load_dwordx4 v[{D1}:{D1+3}], v{V_STB}, {WS}, s{S_T0} offen sc1', 'st')
                    a.vmem(f'buffer_load_dwordx4 v[{D1+4}:{D1+7}], v{V_STB}, {WS}, s{S_T0} offen offset:512 sc1', 'st')
                    a.vmem(f'buffer_load_dwordx4 v[{D2}:{D2+3}], v{V_STB}, {WS}, s{S_T0} offen offset:256 sc1', 'st')
                    a.vmem(f'buffer_load_dwordx4 v[{D2+4}:{D2+7}], v{V_STB}, {WS}, s{S_T0} offen offset:768 sc1', 'st')
        emit_gemm16(a, bar, 'P1KV', slabs['P1KV'], 4, '128',
                    acc_of=lambda r, t: V_ACC + (r * 4 + t) * 4, a_of=lambda r, j: V_A + (r * 16 + j) * 4,
                    a_wait=lambda j: a.count_vm(('A', j)), a_issue=kv_issue, wr=WR1, S=5, normal=True)
        a.e(f's_branch {ljoin}')
        a.label(l0)
        evq[:] = saved_ev
        a.vm = []
        tm[0] -= 1 if opt.timing else 0
        stamp()
        VLA = V_X
        a.e(f'v_and_b32 v{T0}, 15, v{V_LANE}')
        a.e(f'v_lshrrev_b32 v{T1}, 4, v{V_LANE}')
        a.e(f'v_xor_b32 v{T1}, v{T1}, v{T0}')
        a.e(f'v_lshlrev_b32 v{T1}, 4, v{T1}')
        a.e(f's_lshl_b32 s{S_T0}, s{S_W}, 5')
        a.e(f'v_add_u32 v{T0}, s{S_T0}, v{T0}')
        a.e(f'v_lshlrev_b32 v{T0}, 8, v{T0}')
        for j in range(4):
            a.e(f'v_xor_b32 v{VLA+j}, {64*j}, v{T1}')
            a.e(f'v_add_u32 v{VLA+j}, v{VLA+j}, v{T0}')
        def kv_lds(j):
            c = j // 4
            return [f'ds_read_b128 v[{V_A+(r*16+j)*4}:{V_A+(r*16+j)*4+3}], v{VLA + j % 4} offset:{AREG + (c & 1) * 32768 + r * 4096}' for r in range(2)]
        def kv_extra(j):
            for r in range(2):
                x = f'v[{V_A+(r*16+j)*4}:{V_A+(r*16+j)*4+3}]'
                c1_ = '0' if j == 0 else f'v[{D1+4*r}:{D1+4*r+3}]'
                c2_ = '0' if j == 0 else f'v[{D2+4*r}:{D2+4*r+3}]'
                a.e(f'v_mfma_f32_16x16x32_bf16 v[{D1+4*r}:{D1+4*r+3}], v[{ONES}:{ONES+3}], {x}, {c1_}')
                a.e(f'v_mfma_f32_16x16x32_bf16 v[{D2+4*r}:{D2+4*r+3}], {x}, {x}, {c2_}')
        emit_gemm16(a, bar, 'P1KV', slabs['P1KV'], 4, '128',
                    acc_of=lambda r, t: V_ACC + (r * 4 + t) * 4, a_of=lambda r, j: V_A + (r * 16 + j) * 4,
                    a_wait=lambda j: None, a_issue=lambda j, t: None, wr=WR1, S=5, normal=True, extra=kv_extra, a_lds=kv_lds)
        a.label(ljoin)
        stamp()
        a.wait_vm_all()
        SUM = [(V_X, V_X + 1), (V_X + 2, V_X + 3)]
        l1 = a.newlabel('S1'); le = a.newlabel('SE')
        a.e(f's_cmp_eq_u32 s{S_L}, 0')
        a.e(f's_cbranch_scc0 {l1}')
        a.e(f'v_and_b32 v{T0}, 31, v{V_LANE}')
        a.e(f'v_lshlrev_b32 v{T0}, 7, v{T0}')
        a.e(f'v_lshrrev_b32 v{T1}, 5, v{V_LANE}')
        a.e(f'v_lshl_add_u32 v{T0}, v{T1}, 3, v{T0}')
        a.e(f's_lshl_b32 s{S_T0}, s{S_RH}, 12')
        a.e(f's_lshl_b32 s{S_T1}, s{S_CH}, 6')
        a.e(f's_add_u32 s{S_T0}, s{S_T0}, s{S_T1}')
        if AREG: a.e(f's_add_u32 s{S_T0}, s{S_T0}, {hex(AREG)}')
        a.e(f'v_add_u32 v{T0}, s{S_T0}, v{T0}')
        for j in range(4):
            a.e(f'ds_read_b64 v[{V_RES+4*j}:{V_RES+4*j+1}], v{T0} offset:{16*j}')
        a.e('s_waitcnt lgkmcnt(0)')
        for j in range(4):
            b = V_RES + 4 * j
            a.e(f'v_and_b32 v{b+3}, 0xffff0000, v{b+1}')
            a.e(f'v_lshlrev_b32 v{b+2}, 16, v{b+1}')
            a.e(f'v_and_b32 v{b+1}, 0xffff0000, v{b}')
            a.e(f'v_lshlrev_b32 v{b}, 16, v{b}')
        a.e(f'v_and_b32 v{T0}, 3, v{V_LANE}')
        a.e(f'v_bfe_u32 v{T1}, v{V_LANE}, 2, 2')
        a.e(f'v_lshrrev_b32 v{T2}, 4, v{V_LANE}')
        for r in range(2):
            s_, ss_ = SUM[r]
            a.e(f'v_mov_b32 v{s_}, v{D1+4*r}')
            a.e(f'v_mov_b32 v{ss_}, v{D2+4*r}')
            for i in range(1, 4):
                a.e(f'v_cmp_eq_u32 vcc, {i}, v{T0}')
                a.e('s_nop 1')
                a.e(f'v_cndmask_b32 v{ss_}, v{ss_}, v{D2+4*r+i}, vcc')
            a.e(f'v_cmp_eq_u32 vcc, v{T1}, v{T2}')
            a.e('s_nop 1')
            a.e(f'v_cndmask_b32 v{ss_}, 0, v{ss_}, vcc')
        emit_xreduce(a, [SUM[0][1], SUM[1][1]], [T0, T1])
        a.e(f's_branch {le}')
        a.label(l1)
        for r, raw in enumerate([D1, D2]):
            emit_sum_partials(a, raw, 8)
            a.e(f'v_mov_b32 v{SUM[r][0]}, v{raw}')
            a.e(f'v_mov_b32 v{SUM[r][1]}, v{raw+1}')
        emit_xreduce(a, [SUM[0][0], SUM[0][1], SUM[1][0], SUM[1][1]], [WR1, WR1 + 1, WR1 + 2, WR1 + 3])
        a.label(le)
        CSR = 120
        a.e(f'v_and_b32 v{T0}, 15, v{V_LANE}')
        a.e(f'v_lshlrev_b32 v{T0}, 2, v{T0}')
        a.e(f'v_add_u32 v{T0}, {hex(CSC)}, v{T0}')
        a.e(f'v_and_b32 v{T1}, 0x30, v{V_LANE}')
        for t in range(4):
            a.e(f'ds_read_b32 v{CSR+t}, v{T0} offset:{64*t}')
        KEEP = [(V_PQ + 0, V_PQ + 2), (V_PQ + 4, V_PQ + 6)]
        for r in range(2):
            emit_stats_from_sums(a, SUM[r][0], SUM[r][1], KEEP[r][0], KEEP[r][1], WR1)
        AI = [WR1, WR1 + 8]; BI = [WR1 + 4, WR1 + 12]
        for r in range(2):
            for i in range(4):
                a.e(f'ds_bpermute_b32 v{AI[r]+i}, v{T1}, v{KEEP[r][0]} offset:{4*i}')
                a.e(f'ds_bpermute_b32 v{BI[r]+i}, v{T1}, v{KEEP[r][1]} offset:{4*i}')
        a.e('s_waitcnt vmcnt(0) lgkmcnt(0)'); a.vm = []
        CSE = WR1 + 16
        for t in range(4): a.e(f'v_mov_b32 v{CSE+2*t}, v{CSR+t}')
        for r in range(2):
            for t in range(4):
                for i in (0, 2):
                    d = V_ACC + (r * 4 + t) * 4 + i
                    a.e(pk('mul', d, vp(d), vp(AI[r] + i)))
            for t in range(4):
                for i in (0, 2):
                    d = V_ACC + (r * 4 + t) * 4 + i
                    a.e(pk('fma', d, vp(BI[r] + i), vp(CSE + 2 * t), vp(d), mods=' op_sel_hi:[1,0,1]'))
        regs = [V_ACC + (r * 4 + t) * 4 + i for r in range(2) for t in range(2) for i in range(4)]
        emit_phi(a, regs, WR1)
        for t in range(4):
            b0 = V_ACC + t * 4; b1 = V_ACC + (4 + t) * 4
            a.e(f'v_cvt_pk_bf16_f32 v{b0}, v{b0}, v{b0+1}')
            a.e(f'v_cvt_pk_bf16_f32 v{b0+1}, v{b0+2}, v{b0+3}')
            a.e(f'v_cvt_pk_bf16_f32 v{b0+2}, v{b1}, v{b1+1}')
            a.e(f'v_cvt_pk_bf16_f32 v{b0+3}, v{b1+2}, v{b1+3}')
        a.e('s_nop 1')
        KVD = V_ACC + 16
        for h in range(2):
            a.e(f'v_mfma_f32_16x16x32_bf16 v[{KVD+4*h}:{KVD+4*h+3}], v[{V_ACC+4*h}:{V_ACC+4*h+3}], v[{V_ACC+8+4*h}:{V_ACC+8+4*h+3}], 0')
            a.e(f'v_mfma_f32_16x16x32_bf16 v[{KVD+8+4*h}:{KVD+8+4*h+3}], v[{V_ACC+4*h}:{V_ACC+4*h+3}], v[{ONES}:{ONES+3}], 0')
        a.e(f's_lshl_b32 s{S_T0}, s{S_W}, 11')
        a.e(f's_add_u32 s{S_T0}, s{S_T0}, {hex(SCR)}')
        a.e(f'v_lshlrev_b32 v{T0}, 4, v{V_LANE}')
        a.e(f'v_add_u32 v{T0}, s{S_T0}, v{T0}')
        a.e(f's_lshl_b32 s{S_T0}, s{S_W}, 7')
        a.e(f's_add_u32 s{S_T0}, s{S_T0}, {hex(SCR + 8192)}')
        a.e(f'v_add_u32 v{T2}, s{S_T0}, v{T1}')
        a.e('s_nop 4')
        a.e(f'ds_write_b128 v{T0}, v[{KVD}:{KVD+3}]')
        a.e(f'ds_write_b128 v{T0}, v[{KVD+4}:{KVD+7}] offset:1024')
        set_exec(a, 0x00010001)
        a.e(f'ds_write_b128 v{T2}, v[{KVD+8}:{KVD+11}]')
        a.e(f'ds_write_b128 v{T2}, v[{KVD+12}:{KVD+15}] offset:64')
        a.e('s_mov_b64 exec, -1')
        a.e('s_waitcnt lgkmcnt(0)')
        bar(('X', 'X1'))
        sk = a.newlabel('KVST')
        a.e(f's_cmp_lt_u32 s{S_W}, 2')
        a.e(f's_cbranch_scc0 {sk}')
        if opt.kv_atomic:
            a.e(f's_lshl_b32 s{S_T0}, s{S_W}, 10')
            a.e(f's_add_u32 s{S_T0}, s{S_T0}, {hex(SCR)}')
            a.e(f'v_lshlrev_b32 v{T0}, 2, v{V_LANE}')
            a.e(f'v_add_u32 v{T2}, s{S_T0}, v{T0}')
            a.e(f's_lshl_b32 s{S_T0}, s{S_W}, 6')
            a.e(f's_add_u32 s{S_T0}, s{S_T0}, {hex(SCR + 8192)}')
            a.e(f'v_add_u32 v{V_X}, s{S_T0}, v{T0}')
            KB = V_ACC
            for ww in range(4):
                for i in range(4):
                    a.e(f'ds_read_b32 v{KB+4*ww+i}, v{T2} offset:{ww*2048+256*i}')
                if ww == 2: a.e('s_waitcnt lgkmcnt(4)')
            for ww in range(4):
                a.e(f'ds_read_b32 v{KB+16+ww}, v{V_X} offset:{ww*128}')
            a.e(f's_mul_i32 s{S_T0}, s{S_CB2}, {KVREC}')
            a.e(f's_mul_i32 s{S_T1}, s{S_L}, {16*KVREC}')
            a.e(f's_add_u32 s{S_T0}, s{S_T0}, s{S_T1}')
            a.e(f's_add_u32 s{S_T0}, s{S_T0}, {hex(KVA_OFF)}')
            a.e(f's_lshl_b32 s{S_T1}, s{S_W}, 10')
            a.e(f's_add_u32 s{S_T1}, s{S_T1}, s{S_T0}')
            a.e(f's_lshl_b32 s{S_T2}, s{S_W}, 6')
            a.e(f's_add_u32 s{S_T2}, s{S_T2}, s{S_T0}')
            a.e(f's_add_u32 s{S_T2}, s{S_T2}, 2048')
            a.e('s_waitcnt lgkmcnt(0)')
            for i in (0, 2):
                a.e(pk('add', KB + i, vp(KB + i), vp(KB + 4 + i)))
                a.e(pk('add', KB + 8 + i, vp(KB + 8 + i), vp(KB + 12 + i)))
                a.e(pk('add', KB + i, vp(KB + i), vp(KB + 8 + i)))
            a.e(pk('add', KB + 16, vp(KB + 16), vp(KB + 18)))
            a.e(f'v_add_f32 v{KB+16}, v{KB+16}, v{KB+17}')
            for i in range(4):
                a.e(f'buffer_atomic_add_f32 v{KB+i}, v{T0}, {WS}, s{S_T1} offen offset:{256*i}')
            a.e('s_mov_b64 exec, 0xffff')
            a.e(f'buffer_atomic_add_f32 v{KB+16}, v{T0}, {WS}, s{S_T2} offen')
            a.e('s_mov_b64 exec, -1')
        else:
            a.e(f's_lshl_b32 s{S_T0}, s{S_W}, 10')
            a.e(f's_add_u32 s{S_T0}, s{S_T0}, {hex(SCR)}')
            a.e(f'v_lshlrev_b32 v{T0}, 4, v{V_LANE}')
            a.e(f'v_add_u32 v{T2}, s{S_T0}, v{T0}')
            a.e(f's_lshl_b32 s{S_T0}, s{S_W}, 6')
            a.e(f's_add_u32 s{S_T0}, s{S_T0}, {hex(SCR + 8192)}')
            a.e(f'v_add_u32 v{V_X}, s{S_T0}, v{T1}')
            KB = V_ACC
            for ww in range(4):
                a.e(f'ds_read_b128 v[{KB+4*ww}:{KB+4*ww+3}], v{T2} offset:{ww*2048}')
                a.e(f'ds_read_b128 v[{KB+16+4*ww}:{KB+16+4*ww+3}], v{V_X} offset:{ww*128}')
            a.e(f's_lshl_b32 s{S_T0}, s{S_CB2}, 4')
            a.e(f's_lshl_b32 s{S_T1}, s{S_G}, 1')
            a.e(f's_add_u32 s{S_T0}, s{S_T0}, s{S_T1}')
            a.e(f's_add_u32 s{S_T0}, s{S_T0}, s{S_RB2}')
            a.e(f's_mul_i32 s{S_T0}, s{S_T0}, {KVREC}')
            a.e(f's_add_u32 s{S_T0}, s{S_T0}, s{S_LOFF}')
            a.e(f's_add_u32 s{S_T0}, s{S_T0}, {hex(KVP_OFF)}')
            a.e(f's_lshl_b32 s{S_T1}, s{S_W}, 10')
            a.e(f's_add_u32 s{S_T1}, s{S_T1}, s{S_T0}')
            a.e(f's_lshl_b32 s{S_T2}, s{S_W}, 6')
            a.e(f's_add_u32 s{S_T2}, s{S_T2}, s{S_T0}')
            a.e(f's_add_u32 s{S_T2}, s{S_T2}, 2048')
            a.e('s_waitcnt lgkmcnt(0)')
            for base in (KB, KB + 16):
                for i in range(0, 4, 2):
                    a.e(pk('add', base + i, vp(base + i), vp(base + 4 + i)))
                    a.e(pk('add', base + 8 + i, vp(base + 8 + i), vp(base + 12 + i)))
                    a.e(pk('add', base + i, vp(base + i), vp(base + 8 + i)))
            a.e(f'buffer_store_dwordx4 v[{KB}:{KB+3}], v{T0}, {WS}, s{S_T1} offen sc1')
            set_exec(a, 0x00010001)
            a.e(f'buffer_store_dwordx4 v[{KB+16}:{KB+19}], v{T1}, {WS}, s{S_T2} offen sc1')
            a.e('s_mov_b64 exec, -1')
        a.e(f's_lshl_b32 s{S_T0}, s{S_L}, 11')
        a.e(f's_lshl_b32 s{S_T1}, s{S_CB2}, 7')
        a.e(f's_add_u32 s{S_T0}, s{S_T0}, s{S_T1}')
        a.e(f's_lshl_b32 s{S_T1}, s{S_W}, 6')
        a.e(f's_add_u32 s{S_T0}, s{S_T0}, s{S_T1}')
        a.e(f's_lshl_b32 s{S_T1}, s{S_G}, 3')
        a.e(f's_add_u32 s{S_T0}, s{S_T0}, s{S_T1}')
        a.e(f's_lshl_b32 s{S_T1}, s{S_RB2}, 2')
        a.e(f's_add_u32 s{S_T0}, s{S_T0}, s{S_T1}')
        a.e(f's_add_u32 s{S_T0}, s{S_T0}, {hex(KVF_OFF)}')
        a.e(f'v_mov_b32 v{V_X+4}, s{S_T0}')
        a.label(sk)
        a.vm = []
        stamp()
        if done('P1KV'): return True

        a.c('=== P1Q')
        QCS = V_ACC + 16
        a.e(f'v_and_b32 v{T1}, 0x30, v{V_LANE}')
        a.e(f'v_add_u32 v{T1}, {hex(CSC + 256)}, v{T1}')
        a.e(f'ds_read_b128 v[{QCS}:{QCS+3}], v{T1}')
        a.e(f'ds_read_b128 v[{QCS+4}:{QCS+7}], v{T1} offset:64')
        a.e('s_waitcnt lgkmcnt(0)')
        QAB = [(V_ACC + 24, V_ACC + 26), (V_ACC + 28, V_ACC + 30)]
        for r in range(2):
            a.e(f'v_mov_b32 v{QAB[r][0]}, v{KEEP[r][0]}')
            a.e(f'v_mov_b32 v{QAB[r][1]}, v{KEEP[r][1]}')
        def q_issue(j, t):
            if j == opt.kvflag_at and t == 1:
                fk = a.newlabel('KVFL')
                a.e(f's_cmp_lt_u32 s{S_W}, 2')
                a.e(f's_cbranch_scc0 {fk}')
                thr_value(a, S_THR, 1, xcc=True)
                a.e(f'v_mov_b32 v{V_X+5}, s{S_THR}')
                a.e('s_waitcnt vmcnt(0)')
                a.e('s_mov_b64 exec, 1')
                a.e(f'buffer_store_dword v{V_X+5}, v{V_X+4}, {WS}, 0 offen sc1')
                a.e('s_mov_b64 exec, -1')
                a.label(fk)
        emit_gemm16(a, bar, 'P1Q', slabs['P1Q'], 2, '64',
                    acc_of=lambda r, t: V_ACC + (r * 2 + t) * 4, a_of=lambda r, j: V_A + (r * 16 + j) * 4,
                    a_wait=lambda j: None, a_issue=q_issue, wr=96, S=8)
        for r in range(2):
            for t in range(2):
                emit_lnfold(a, V_ACC + (r * 2 + t) * 4, QCS + 4 * t, QAB[r][0], QAB[r][1], 4)
        emit_phi(a, [V_ACC + i for i in range(16)], 96)
        for r in range(2):
            for h in range(2):
                emit_pack(a, V_PQ + (r * 2 + h) * 2, V_ACC + (r * 2 + h) * 4, 4)
        stamp()
        sk = a.newlabel('MODE')
        a.e(f's_cmp_eq_u32 s{S_L}, 0')
        a.e(f's_cbranch_scc0 {sk}')
        a.e(f'v_and_b32 v{T1}, 31, v{V_LANE}')
        a.e(f'v_lshlrev_b32 v{T1}, 2, v{T1}')
        a.e(f's_lshl_b32 s{S_T0}, s{S_G}, 7')
        a.e(f's_add_u32 s{S_T0}, s{S_T0}, {hex(XID_OFF)}')
        emit_poll(a, T1, 0, soff=f's{S_T0}', opt=opt)
        a.e(f'v_and_b32 v{T2}, 7, v{T2}')
        a.e(f'v_cmp_eq_u32 vcc, s{S_XCC}, v{T2}')
        a.e('s_nop 1')
        a.e('s_cmp_eq_u64 vcc, -1')
        a.e(f's_cselect_b32 s{S_MODE}, 0, 1')
        if opt.force_safe: a.e(f's_mov_b32 s{S_MODE}, 1')
        a.label(sk)
        a.e(f's_lshl_b32 s{S_T0}, s{S_L}, 11')
        emit_poll(a, V_FKV, 1, soff=f's{S_T0}', opt=opt)
        stamp()
        RB = V_A + 64
        if opt.kv_atomic:
            a.e(f's_mul_i32 s{S_T0}, s{S_CB2}, {KVREC}')
            a.e(f's_mul_i32 s{S_T1}, s{S_L}, {16*KVREC}')
            a.e(f's_add_u32 s{S_T0}, s{S_T0}, s{S_T1}')
            a.e(f's_add_u32 s{S_T0}, s{S_T0}, {hex(KVA_OFF)}')
            a.e(f'v_lshlrev_b32 v{T0}, 4, v{V_LANE}')
            a.e(f'v_and_b32 v{T1}, 0x30, v{V_LANE}')
            a.vmem(f'buffer_load_dwordx4 v[{RB}:{RB+3}], v{T0}, {WS}, s{S_T0} offen sc1', 'kp')
            a.vmem(f'buffer_load_dwordx4 v[{RB+4}:{RB+7}], v{T0}, {WS}, s{S_T0} offen offset:1024 sc1', 'kp')
            a.vmem(f'buffer_load_dwordx4 v[{RB+8}:{RB+11}], v{T1}, {WS}, s{S_T0} offen offset:2048 sc1', 'kp')
            a.vmem(f'buffer_load_dwordx4 v[{RB+12}:{RB+15}], v{T1}, {WS}, s{S_T0} offen offset:2112 sc1', 'kp')
            a.wait_vm_all()
        else:
            a.e(f's_lshl_b32 s{S_T0}, s{S_CB2}, 4')
            a.e(f's_lshl_b32 s{S_T1}, s{S_W}, 2')
            a.e(f's_add_u32 s{S_T0}, s{S_T0}, s{S_T1}')
            a.e(f's_mul_i32 s{S_T0}, s{S_T0}, {KVREC}')
            a.e(f's_add_u32 s{S_T0}, s{S_T0}, s{S_LOFF}')
            a.e(f's_add_u32 s{S_T0}, s{S_T0}, {hex(KVP_OFF)}')
            a.e(f'v_lshlrev_b32 v{T0}, 4, v{V_LANE}')
            a.e(f'v_and_b32 v{T1}, 0x30, v{V_LANE}')
            PB = V_A
            for s4 in range(4):
                b = PB + 16 * s4
                a.vmem(f'buffer_load_dwordx4 v[{b}:{b+3}], v{T0}, {WS}, s{S_T0} offen sc1', 'kp')
                a.vmem(f'buffer_load_dwordx4 v[{b+4}:{b+7}], v{T0}, {WS}, s{S_T0} offen offset:1024 sc1', 'kp')
                a.vmem(f'buffer_load_dwordx4 v[{b+8}:{b+11}], v{T1}, {WS}, s{S_T0} offen offset:2048 sc1', 'kp')
                a.vmem(f'buffer_load_dwordx4 v[{b+12}:{b+15}], v{T1}, {WS}, s{S_T0} offen offset:2112 sc1', 'kp')
                if s4 < 3: a.e(f's_add_u32 s{S_T0}, s{S_T0}, {KVREC}')
            a.e(f's_lshl_b32 s{S_T0}, s{S_W}, 11')
            a.e(f's_add_u32 s{S_T0}, s{S_T0}, {hex(SCR)}')
            a.e(f'v_add_u32 v{T0}, s{S_T0}, v{T0}')
            a.e(f's_lshl_b32 s{S_T0}, s{S_W}, 7')
            a.e(f's_add_u32 s{S_T0}, s{S_T0}, {hex(SCR + 8192)}')
            a.e(f'v_add_u32 v{T2}, s{S_T0}, v{T1}')
            a.wait_vm_all()
            for i in range(0, 16, 2):
                a.e(pk('add', PB + i, vp(PB + i), vp(PB + 16 + i)))
                a.e(pk('add', PB + 32 + i, vp(PB + 32 + i), vp(PB + 48 + i)))
            for i in range(0, 16, 2):
                a.e(pk('add', PB + i, vp(PB + i), vp(PB + 32 + i)))
            a.e(f'ds_write_b128 v{T0}, v[{PB}:{PB+3}]')
            a.e(f'ds_write_b128 v{T0}, v[{PB+4}:{PB+7}] offset:1024')
            set_exec(a, 0x00010001)
            a.e(f'ds_write_b128 v{T2}, v[{PB+8}:{PB+11}]')
            a.e(f'ds_write_b128 v{T2}, v[{PB+12}:{PB+15}] offset:64')
            a.e('s_mov_b64 exec, -1')
            a.e(f'v_lshlrev_b32 v{T0}, 4, v{V_LANE}')
            a.e(f'v_add_u32 v{T0}, {hex(SCR)}, v{T0}')
            a.e(f'v_add_u32 v{T2}, {hex(SCR + 8192)}, v{T1}')
            a.e('s_waitcnt lgkmcnt(0)')
            bar(('X', 'X2'))
            for ww in range(4):
                b = RB + 16 * ww
                a.e(f'ds_read_b128 v[{b}:{b+3}], v{T0} offset:{ww*2048}')
                a.e(f'ds_read_b128 v[{b+4}:{b+7}], v{T0} offset:{ww*2048+1024}')
                a.e(f'ds_read_b128 v[{b+8}:{b+11}], v{T2} offset:{ww*128}')
                a.e(f'ds_read_b128 v[{b+12}:{b+15}], v{T2} offset:{ww*128+64}')
                if ww == 2: a.e('s_waitcnt lgkmcnt(8)')
            a.e('s_waitcnt lgkmcnt(0)')
            for i in range(0, 16, 2):
                a.e(pk('add', RB + i, vp(RB + i), vp(RB + 16 + i)))
                a.e(pk('add', RB + 32 + i, vp(RB + 32 + i), vp(RB + 48 + i)))
            for i in range(0, 16, 2):
                a.e(pk('add', RB + i, vp(RB + i), vp(RB + 32 + i)))
        OPB = V_ACC + 16
        emit_pack(a, OPB, RB, 16)
        a.e('s_nop 1')
        NUM = V_A; DEN = V_A + 16
        for r in range(2):
            for h in range(2):
                pq = V_PQ + (r * 2 + h) * 2
                n_ = NUM + (r * 2 + h) * 4; d_ = DEN + (r * 2 + h) * 4
                a.e(f'v_mfma_f32_16x16x16_bf16 v[{n_}:{n_+3}], v[{OPB+2*h}:{OPB+2*h+1}], v[{pq}:{pq+1}], 0')
                a.e(f'v_mfma_f32_16x16x16_bf16 v[{d_}:{d_+3}], v[{OPB+4+2*h}:{OPB+4+2*h+1}], v[{pq}:{pq+1}], 0')
        a.e(f's_lshl_b32 s{S_T0}, s{S_CB2}, 10')
        a.e(f's_add_u32 s{S_T0}, s{S_T0}, s{S_GH}')
        a.e(f's_add_u32 s{S_T1}, s{S_T0}, 0x4000')
        a.e('s_nop 4')
        for k in range(4): a.e(f'v_add_f32 v{DEN+4*k}, s{S_EPS6}, v{DEN+4*k}')
        for k in range(4): a.e(f'v_rcp_f32 v{DEN+4*k}, v{DEN+4*k}')
        a.e('s_nop 0')
        for k in range(4):
            for i in range(4): a.e(f'v_mul_f32 v{NUM+4*k+i}, v{NUM+4*k+i}, v{DEN+4*k}')
        OPK = V_A + 32
        emit_pack(a, OPK, NUM, 16)
        emit_mode_stores(a, [f'buffer_store_dwordx4 v[{OPK}:{OPK+3}], v{V_AB}, {WS}, s{S_T0} offen',
                             f'buffer_store_dwordx4 v[{OPK+4}:{OPK+7}], v{V_AB}, {WS}, s{S_T1} offen'], cold=True)
        emit_signal(a, ep(1))
        stamp()
        if done('P1Q'): return True

        ACC = V_ACC; WR = 80; TMP = V_A
        def small_gemm(phase, tail=None):
            a.fstamp(phase)
            emit_gemm32(a, bar, phase, slabs[phase], ACC, WR, tail=tail)
        def tile_store(pkb, base, gh=False, cold=False):
            soff(S_T0, base, gh=gh)
            emit_mode_stores(a, [f'buffer_store_dwordx4 v[{pkb}:{pkb+3}], v{V_TST}, {WS}, s{S_T0} offen',
                                 f'buffer_store_dwordx4 v[{pkb+4}:{pkb+7}], v{V_TST}, {WS}, s{S_T0} offen offset:512'], cold=cold)

        a.c('=== P3')
        stamp()
        small_gemm('P3')
        stamp()
        for i in range(0, 16, 2): a.e(pk('add', V_RES + i, vp(V_RES + i), vp(ACC + i)))
        emit_pack32(a, TMP, V_RES)
        tile_store(TMP, A1_OFF, cold=True)
        soff(S_T1, ST_OFF)
        emit_stats_partial32(a, V_RES, TMP + 8, f's{S_T1}', cold=True)
        emit_signal(a, ep(2))
        stamp()
        if done('P3'): return True

        a.c('=== P4')
        CS4 = TMP + 16; RAW = TMP + 32
        a.e(f'v_lshrrev_b32 v{T1}, 5, v{V_LANE}')
        a.e(f'v_lshlrev_b32 v{T1}, 4, v{T1}')
        a.e(f's_lshl_b32 s{S_T1}, s{S_CH}, 7')
        a.e(f's_add_u32 s{S_T1}, s{S_T1}, {hex(CSC + 384)}')
        a.e(f'v_add_u32 v{T1}, s{S_T1}, v{T1}')
        for j in range(4):
            a.e(f'ds_read_b128 v[{CS4+4*j}:{CS4+4*j+3}], v{T1} offset:{32*j}')
        a.e('s_waitcnt lgkmcnt(0)')
        stamp()
        def p4_tail():
            soff(S_T0, ST_OFF)
            for k in range(4):
                a.vmem(f'buffer_load_dwordx4 v[{RAW+4*k}:{RAW+4*k+3}], v{V_STS}, {WS}, s{S_T0} offen offset:{512*k} sc1', 'st')
        small_gemm('P4', tail=p4_tail)
        stamp()
        a.wait_vm_all()
        emit_sum_partials(a, RAW, 16)
        emit_xreduce(a, [RAW, RAW + 1], [RAW + 2, RAW + 3], over16=False)
        emit_stats_from_sums(a, RAW, RAW + 1, RAW + 4, RAW + 6, RAW + 8, double=True, keep=(V_MEAN, V_RS))
        emit_lnfold(a, ACC, CS4, RAW + 4, RAW + 6, 16)
        emit_gelu(a, ACC, 16, TMP + 48, V_PQ)
        emit_pack32(a, TMP, ACC)
        tile_store(TMP, A0_OFF, gh=True)
        gl = a.newlabel('GH'); gu = a.newlabel('GH'); gd = a.newlabel('GH')
        a.e(f's_cmp_eq_u32 s{S_RB}, 3')
        a.e(f's_cbranch_scc0 {gu}')
        a.e(f's_cmp_eq_u32 s{S_RH}, 1')
        a.e(f's_cbranch_scc0 {gd}')
        a.e(f's_bitcmp1_b32 s{S_CB}, 1')
        a.e(f's_cbranch_scc1 {gd}')
        a.e(f's_cmp_eq_u32 s{S_G}, 7')
        a.e(f's_cbranch_scc1 {gd}')
        a.e(f's_add_u32 s{S_T1}, s{S_G}, 1')
        a.e(f's_mul_i32 s{S_T2}, s{S_T1}, {18*16384}')
        a.e(f's_lshl_b32 s{S_T3}, s{S_T1}, 8')
        set_exec(a, 0xc0000000)
        a.e(f's_branch {gl}')
        a.label(gu)
        a.e(f's_cmp_eq_u32 s{S_RB}, 0')
        a.e(f's_cbranch_scc0 {gd}')
        a.e(f's_cmp_eq_u32 s{S_RH}, 0')
        a.e(f's_cbranch_scc0 {gd}')
        a.e(f's_bitcmp1_b32 s{S_CB}, 1')
        a.e(f's_cbranch_scc0 {gd}')
        a.e(f's_cmp_eq_u32 s{S_G}, 0')
        a.e(f's_cbranch_scc1 {gd}')
        a.e(f's_sub_u32 s{S_T1}, s{S_G}, 1')
        a.e(f's_mul_i32 s{S_T2}, s{S_T1}, {18*16384}')
        a.e(f's_add_u32 s{S_T2}, s{S_T2}, {17*16384}')
        a.e(f's_lshl_b32 s{S_T3}, s{S_T1}, 8')
        a.e(f's_add_u32 s{S_T3}, s{S_T3}, 128')
        set_exec(a, 0x00000003)
        a.label(gl)
        a.e(f's_lshl_b32 s{S_T0}, s{S_CB}, 1')
        a.e(f's_add_u32 s{S_T0}, s{S_T0}, s{S_CH}')
        a.e(f's_lshl_b32 s{S_T0}, s{S_T0}, 10')
        a.e(f's_add_u32 s{S_T2}, s{S_T2}, s{S_T0}')
        a.e(f'v_and_b32 v{T0}, 0x3fff, v{V_TST}')
        a.e(f'v_and_b32 v{T0}, 0x3ff, v{T0}')
        a.e(f'buffer_store_dwordx4 v[{TMP}:{TMP+3}], v{T0}, {WS}, s{S_T2} offen sc1')
        a.e(f'buffer_store_dwordx4 v[{TMP+4}:{TMP+7}], v{T0}, {WS}, s{S_T2} offen offset:512 sc1')
        a.e('s_mov_b64 exec, -1')
        a.e(f's_and_b32 s{S_T0}, s{S_CB}, 1')
        a.e(f's_lshr_b32 s{S_T1}, s{S_CB}, 2')
        a.e(f's_lshl_b32 s{S_T1}, s{S_T1}, 1')
        a.e(f's_add_u32 s{S_T0}, s{S_T0}, s{S_T1}')
        a.e(f's_lshl_b32 s{S_T0}, s{S_T0}, 1')
        a.e(f's_add_u32 s{S_T0}, s{S_T0}, s{S_CH}')
        a.e(f's_lshl_b32 s{S_T0}, s{S_T0}, 2')
        a.e(f's_add_u32 s{S_T3}, s{S_T3}, s{S_T0}')
        a.e(f's_lshl_b32 s{S_T0}, s{S_L}, 11')
        a.e(f's_add_u32 s{S_T3}, s{S_T3}, s{S_T0}')
        a.e(f's_add_u32 s{S_T3}, s{S_T3}, {hex(HF_OFF)}')
        thr_value(a, S_THR, ep(3), xcc=True)
        a.e(f'v_mov_b32 v{T0}, s{S_T3}')
        a.e(f'v_mov_b32 v{T1}, s{S_THR}')
        a.e('s_waitcnt vmcnt(0)')
        a.e('s_mov_b64 exec, 1')
        a.e(f'buffer_store_dword v{T1}, v{T0}, {WS}, 0 offen sc1')
        a.e('s_mov_b64 exec, -1')
        a.label(gd)
        emit_signal(a, ep(3))
        stamp()
        if done('P4'): return True

        a.c('=== P5')
        stamp()
        small_gemm('P5')
        stamp()
        a.e(f'v_mul_f32 v{TMP+10}, v{V_MEAN}, v{V_RS}')
        a.e(f'v_sub_f32 v{TMP+10}, 0, v{TMP+10}')
        a.e(f'v_mov_b32 v{TMP+8}, v{V_RS}')
        for i in range(0, 16, 2):
            a.e(pk('fma', ACC + i, vp(V_RES + i), vp(TMP + 8), vp(ACC + i), mods=' op_sel_hi:[1,0,1]'))
        for i in range(0, 16, 2):
            a.e(pk('add', ACC + i, vp(ACC + i), vp(TMP + 10), mods=' op_sel_hi:[1,0]'))
        emit_pack32(a, TMP, ACC)
        tile_store(TMP, A1_OFF)
        soff(S_T1, ST_OFF)
        emit_stats_partial32(a, ACC, TMP + 12, f's{S_T1}')
        for i in range(0, 16, 2): a.e(pk('add', V_RES + i, vp(V_RES + i), vp(ACC + i)))
        emit_signal(a, ep(4))
        stamp()
        if done('P5'): return True

        a.c('=== P6')
        CS6 = V_ACC; ACC6 = 192; WR6 = 96
        a.e(f'v_and_b32 v{T1}, 0x30, v{V_LANE}')
        a.e(f'v_add_u32 v{T1}, {hex(CSC + 640)}, v{T1}')
        for t in range(7):
            a.e(f'ds_read_b128 v[{CS6+4*t}:{CS6+4*t+3}], v{T1} offset:{64*t}')
        a.e('s_waitcnt lgkmcnt(0)')
        emit_poll(a, V_FSB, ep(4), opt=opt)
        stamp()
        def p6_load(j):
            a.e(f's_lshl_b32 s{S_T0}, s{S_RB2}, {13 if opt.rot else 31}')
            if not opt.rot: a.e(f's_mov_b32 s{S_T0}, 0')
            a.e(f's_xor_b32 s{S_T0}, s{S_T0}, {hex((j // 4) * 4096)}')
            a.e(f's_add_u32 s{S_T0}, s{S_T0}, {hex(A1_OFF)}')
            a.e(f's_add_u32 s{S_T1}, s{S_T0}, 0x4000')
            for r in range(2):
                d = V_A + ((j % 8) * 2 + r) * 4
                a.vmem(f'buffer_load_dwordx4 v[{d}:{d+3}], v{V_AB}, {WS}, s{S_T0 if r == 0 else S_T1} offen offset:{(j%4)*1024} sc1', ('A', j))
        RAW6 = [V_PQ, 248]
        def p6_issue(j, t):
            if t == 1:
                if j + opt.D_p6 < 16:
                    p6_load(j + opt.D_p6)
                elif j + opt.D_p6 == 16:
                    soff(S_T0, ST_OFF)
                    for r in range(2):
                        a.vmem(f'buffer_load_dwordx4 v[{RAW6[r]}:{RAW6[r]+3}], v{V_STB}, {WS}, s{S_T0} offen offset:{256*r} sc1', 'st')
                        a.vmem(f'buffer_load_dwordx4 v[{RAW6[r]+4}:{RAW6[r]+7}], v{V_STB}, {WS}, s{S_T0} offen offset:{256*r+512} sc1', 'st')
        a.fstamp('P6')
        for j in range(opt.D_p6): p6_load(j)
        emit_gemm16(a, bar, 'P6', slabs['P6'], 7, '224',
                    acc_of=lambda r, t: ACC6 + (r * 7 + t) * 4, a_of=lambda r, j: V_A + ((j % 8) * 2 + r) * 4,
                    a_wait=lambda j: a.count_vm(('A', j)), a_issue=p6_issue, wr=WR6, S=8)
        stamp()
        a.wait_vm_all()
        for r in range(2): emit_sum_partials(a, RAW6[r], 8)
        emit_xreduce(a, [RAW6[0], RAW6[0] + 1, RAW6[1], RAW6[1] + 1], [V_X, V_X + 1, V_X + 2, V_X + 3])
        AB6 = [(92, 94), (RAW6[1] + 4, RAW6[1] + 6)]
        for r in range(2):
            emit_stats_from_sums(a, RAW6[r], RAW6[r] + 1, AB6[r][0], AB6[r][1], V_X)
        a.e(f's_lshl_b32 s{S_T0}, s{S_G}, 4')
        a.e(f's_lshl_b32 s{S_T1}, s{S_RB2}, 3')
        a.e(f's_add_u32 s{S_T0}, s{S_T0}, s{S_T1}')
        a.e(f's_lshl_b32 s{S_T1}, s{S_W}, 1')
        a.e(f's_add_u32 s{S_T0}, s{S_T0}, s{S_T1}')
        a.e(f's_mul_i32 s{S_T0}, s{S_T0}, 57344')
        a.e(f's_lshr_b32 s{S_T1}, s{S_CB2}, 1')
        a.e(f's_mul_i32 s{S_T1}, s{S_T1}, 7168')
        a.e(f's_add_u32 s{S_T0}, s{S_T0}, s{S_T1}')
        a.e(f's_add_u32 s{S_T0}, s{S_T0}, {hex(G_OFF)}')
        a.e(f's_and_b32 s{S_T1}, s{S_CB2}, 1')
        a.e(f's_mul_i32 s{S_U0}, s{S_T1}, 3072')
        a.e(f's_add_u32 s{S_U0}, s{S_U0}, s{S_T0}')
        a.e(f's_add_u32 s{S_U1}, s{S_U0}, 57344')
        a.e(f's_lshl_b32 s{S_T1}, s{S_T1}, 3')
        a.e(f's_add_u32 s{S_U2}, s{S_T0}, s{S_T1}')
        a.e(f's_add_u32 s{S_U2}, s{S_U2}, 6144')
        a.e(f's_add_u32 s{S_U3}, s{S_U2}, 57344')
        a.e(f'v_lshlrev_b32 v{V_X+4}, 4, v{V_LANE}')
        for r in range(2):
            emit_lnfold(a, ACC6 + r * 28, CS6, AB6[r][0], AB6[r][1], 28)
            emit_gelu(a, ACC6 + r * 28, 28, V_A, V_PQ + 4)
            pkb = V_A + 16 + r * 16
            emit_pack(a, pkb, ACC6 + r * 28, 28)
            st = [f'buffer_store_dwordx4 v[{pkb+4*j}:{pkb+4*j+3}], v{V_X+4}, {WS}, s{S_U0+r} offen offset:{1024*j}' for j in range(3)]
            st.append(f'buffer_store_dwordx2 v[{pkb+12}:{pkb+13}], v{V_X+4}, {WS}, s{S_U2+r} offen')
            emit_mode_stores(a, st, cold=bool(opt.g_cold))
        emit_signal(a, ep(5))
        stamp()
        if done('P6'): return True

        a.c('=== P7')
        if opt.p7_self:
            VG, VF = V_A + 100, V_A + 101
            a.e(f's_lshl_b32 s{S_T0}, s{S_G}, 4'); a.e(f's_lshl_b32 s{S_T1}, s{S_RB}, 2'); a.e(f's_add_u32 s{S_T0}, s{S_T0}, s{S_T1}')
            a.e(f's_add_u32 s{S_T0}, s{S_T0}, s{S_W}'); a.e(f's_mul_i32 s{S_T0}, s{S_T0}, 57344')
            a.e(f'v_lshlrev_b32 v{VG}, 4, v{V_LANE}'); a.e(f'v_add_u32 v{VG}, s{S_T0}, v{VG}')
            for p_ in range(8):
                a.e(f's_and_b32 s{S_P7+p_}, s{S_RB}, {3 if opt.rot else 0}'); a.e(f's_lshl_b32 s{S_P7+p_}, s{S_P7+p_}, 1')
                a.e(f's_xor_b32 s{S_P7+p_}, s{S_P7+p_}, {p_}'); a.e(f's_mul_i32 s{S_P7+p_}, s{S_P7+p_}, 7168')
            a.e(f's_lshl_b32 s{S_T2}, s{S_G}, 9'); a.e(f's_add_u32 s{S_T2}, s{S_T2}, {hex(LF_OFF)}')
            a.e(f's_and_b32 s{S_T3}, s{S_RB}, 1'); a.e(f's_lshl_b32 s{S_T3}, s{S_T3}, 1'); a.e(f's_add_u32 s{S_T3}, s{S_T3}, s{S_RH}')
            a.e(f's_lshl_b32 s{S_T3}, s{S_T3}, 7'); a.e(f's_add_u32 s{S_T3}, s{S_T3}, s{S_T2}')
            a.e(f's_lshr_b32 s{S_T4}, s{S_RB}, 1'); a.e(f's_lshl_b32 s{S_T4}, s{S_T4}, 6'); a.e(f's_add_u32 s{S_T3}, s{S_T3}, s{S_T4}')
            a.e(f'v_and_b32 v{VF}, 15, v{V_LANE}'); a.e(f'v_lshlrev_b32 v{VF}, 2, v{VF}'); a.e(f'v_add_u32 v{VF}, s{S_T3}, v{VF}')
            a.e(f's_lshl_b32 s{S_T3}, s{S_R}, 2'); a.e(f's_add_u32 s{S_T3}, s{S_T3}, s{S_T2}')
            a.e(f'v_and_b32 v{T1}, 3, v{V_LANE}'); a.e(f'v_lshlrev_b32 v{T1}, 7, v{T1}'); a.e(f'v_add_u32 v{T1}, s{S_T3}, v{T1}')
            a.e(f'v_cmp_lt_u32 vcc, 15, v{V_LANE}'); a.e('s_nop 1'); a.e(f'v_cndmask_b32 v{VF}, v{VF}, v{T1}, vcc')
            emit_poll(a, VF, ep(5), opt=opt)
            stamp()
            def pieces7(c):
                state = {'last': None}
                def mk(k):
                    def f():
                        if k == 0: a.e(f's_add_u32 m0, s{S_W4K}, {hex(AREG + (c % 4) * 16384)}')
                        p_, i_ = divmod(4 * c + k, 7)
                        const = G_OFF + (i_ - k) * 1024
                        if state['last'] != (p_, const):
                            a.e(f's_add_u32 s{S_T0}, s{S_P7+p_}, {hex(const & 0xffffffff)}'); state['last'] = (p_, const)
                        a.vmem(f'buffer_load_dwordx4 v{VG}, {WS}, s{S_T0} offen offset:{k*1024} sc1 lds', ('A', c))
                    return f
                return [mk(k) for k in range(4)]
            emit_gemm32(a, bar, 'P7', slabs['P7'], ACC, WR, a_pieces=pieces7)
        else:
            stamp()
            small_gemm('P7')
        stamp()
        for i in range(0, 16, 2): a.e(pk('add', V_RES + i, vp(V_RES + i), vp(ACC + i)))
        emit_pack32(a, TMP, V_RES)
        return False

    stopped = run_layer()
    if not stopped:
        fin = a.newlabel('FIN'); TMP = V_A
        a.e(f's_cmp_eq_u32 s{S_L}, 1')
        a.e(f's_cbranch_scc1 {fin}')
        a.e(f's_mov_b32 s{S_T0}, {hex(A2_OFF)}')
        emit_mode_stores(a, [f'buffer_store_dwordx4 v[{TMP}:{TMP+3}], v{V_TST}, {WS}, s{S_T0} offen',
                             f'buffer_store_dwordx4 v[{TMP+4}:{TMP+7}], v{V_TST}, {WS}, s{S_T0} offen offset:512'], cold=True)
        a.e(f's_mov_b32 s{S_T1}, {hex(ST_OFF)}')
        emit_stats_partial32(a, V_RES, TMP + 8, f's{S_T1}')
        a.e(f's_add_u32 s{S_EP}, s{S_EP}, 6')
        emit_signal(a, f's{S_EP}')
        if opt.timing:
            dump([tmreg(i) for i in range(tm[0])])
        a.e(f's_mov_b32 s{S_L}, 1')
        a.e(f's_mov_b32 s{S_LOFF}, {hex(KVP_L)}')
        a.e(f's_mov_b32 s{S_COLD}, s{S_MODE}')
        for i in range(3): a.e(f's_mov_b32 s{S_PA+i}, s{S_WS+i}')
        a.e(f's_mov_b32 s{S_PA+3}, 0x20000')
        a.e(f'v_mov_b32 v{V_P1}, v{V_AB}')
        for c in range(4):
            a.e(f's_xor_b32 s{S_RK+c}, s{S_ROTK}, {c}')
            a.e(f's_lshl_b32 s{S_RK+c}, s{S_RK+c}, 12')
            a.e(f's_add_u32 s{S_RK+c}, s{S_RK+c}, {hex(A2_OFF)}')
        a.e(f's_mov_b32 s{S_ASTR}, 1024')
        a.e(f's_branch {LOOP}')
        a.label(fin)
        emit_pack(a, TMP, V_RES, 16)
        OS = f's[{S_OUT}:{S_OUT+3}]'
        for j in range(4):
            a.e(f'buffer_store_dwordx2 v[{TMP+2*j}:{TMP+2*j+1}], v{V_XRM}, {OS}, 0 offen offset:{16*j}')
    a.label('L_END_COMPUTE')
    nn = a.newlabel('NON')
    a.e(f's_or_b32 s{S_T0}, s2, s{S_W}')
    a.e(f's_cmp_eq_u32 s{S_T0}, 0')
    a.e(f's_cbranch_scc0 {nn}')
    a.e(f's_add_u32 s{S_T0}, s{S_V}, 1')
    a.e(f'v_mov_b32 v{V_T0}, s{S_T0}')
    a.e(f'v_mov_b32 v{V_T1}, {hex(NONCE_OFF)}')
    a.e('s_mov_b64 exec, 1')
    a.e(f'buffer_store_dword v{V_T0}, v{V_T1}, {WS}, 0 offen')
    a.e('s_mov_b64 exec, -1')
    a.label(nn)
    stamp()
    if opt.timing: dump([tmreg(i) for i in range(tm[0])] + ([85] if False else []))
    if opt.fine: dump([freg(i) for i in range(fs[0])])
    if opt.wall:
        a.e('s_waitcnt vmcnt(0)')
        a.e('s_memrealtime s[82:83]'); a.e('s_memtime s[80:81]'); a.e('s_waitcnt lgkmcnt(0)')
        dump([84, 82, 85, 80])
    a.e('s_waitcnt vmcnt(0)')
    a.e('s_endpgm')
    return evq


def gen_loader(a, opt, events):
    VN, VKV, VQ, VW3, VKVn, VQn = 8, 12, 16, 20, 28, 32
    VT0, VT1, VT2, VT3 = 1, 2, 3, 4
    a.c('--- loader setup')
    def srd(s, p, size):
        a.e(f's_mov_b32 s{s}, s{p}'); a.e(f's_mov_b32 s{s+1}, s{p+1}')
        a.e(f's_mov_b32 s{s+2}, {hex(size)}'); a.e(f's_mov_b32 s{s+3}, 0x20000')
    srd(S_WQKV, S_PTR + 2, 512 * 1536 * 2)
    srd(S_WO, S_PTR + 4, 512 * 512 * 2)
    srd(S_W1, S_PTR + 8, 512 * 512 * 2)
    srd(S_W2, S_PTR + 10, 512 * 512 * 2)
    srd(S_W3, S_PTR + 12, 512 * 1792 * 2)
    srd(S_W4, S_PTR + 14, 1792 * 512 * 2)
    CBS, CBK, CB6, CB7 = 64, 68, 72, 76
    a.e(f's_lshl_b32 s{S_T1}, s{S_RB2}, 1')
    a.e(f's_add_u32 s{S_T1}, s{S_T1}, s{S_CB2}')
    a.e(f's_and_b32 s{S_T1}, s{S_T1}, {3 if opt.rot else 0}')
    for c in range(4):
        a.e(f's_xor_b32 s{CBK+c}, s{S_T1}, {c}')
        a.e(f's_mul_i32 s{CBK+c}, s{CBK+c}, {128*3072}')
    def late_tables():
        rm = 3 if opt.rot else 0
        for c in range(4):
            a.e(f's_and_b32 s{CBS+c}, s{S_RB}, {rm}')
            a.e(f's_xor_b32 s{CBS+c}, s{CBS+c}, {c}')
            a.e(f's_lshl_b32 s{CBS+c}, s{CBS+c}, 17')
            a.e(f's_lshl_b32 s{CB6+c}, s{S_RB2}, 1')
            a.e(f's_and_b32 s{CB6+c}, s{CB6+c}, {rm}')
            a.e(f's_xor_b32 s{CB6+c}, s{CB6+c}, {c}')
            a.e(f's_mul_i32 s{CB6+c}, s{CB6+c}, {128*3584}')
        for p_ in range(8):
            a.e(f's_and_b32 s{CB7+p_}, s{S_RB}, {rm}')
            a.e(f's_lshl_b32 s{CB7+p_}, s{CB7+p_}, 1')
            a.e(f's_xor_b32 s{CB7+p_}, s{CB7+p_}, {p_}')
            a.e(f's_mul_i32 s{CB7+p_}, s{CB7+p_}, {224*1024}')

    def cs_issue():
        a.c('cs pieces')
        c1 = a.newlabel('CS'); c2 = a.newlabel('CS'); c3 = a.newlabel('CS')
        a.e(f's_min_u32 s{92}, s2, 239')
        a.e(f's_lshr_b32 s{93}, s{92}, 2')
        a.e(f's_and_b32 s{94}, s{92}, 3')
        a.e(f's_cmp_lt_u32 s{93}, 24')
        a.e(f's_cbranch_scc0 {c1}')
        for i in range(3): a.e(f's_mov_b32 s{S_CSRD+i}, s{S_WQKV+i}')
        a.e(f's_mov_b32 s{S_T0}, 3072')
        a.e(f's_lshl_b32 s{S_T1}, s{93}, 7')
        a.e(f's_branch {c3}')
        a.label(c1)
        a.e(f's_cmp_lt_u32 s{93}, 32')
        a.e(f's_cbranch_scc0 {c2}')
        for i in range(3): a.e(f's_mov_b32 s{S_CSRD+i}, s{S_W1+i}')
        a.e(f's_mov_b32 s{S_T0}, 1024')
        a.e(f's_sub_u32 s{S_T1}, s{93}, 24')
        a.e(f's_lshl_b32 s{S_T1}, s{S_T1}, 7')
        a.e(f's_branch {c3}')
        a.label(c2)
        for i in range(3): a.e(f's_mov_b32 s{S_CSRD+i}, s{S_W3+i}')
        a.e(f's_mov_b32 s{S_T0}, 3584')
        a.e(f's_sub_u32 s{S_T1}, s{93}, 32')
        a.e(f's_lshl_b32 s{S_T1}, s{S_T1}, 7')
        a.label(c3)
        a.e(f's_mov_b32 s{S_CSRD+3}, 0x20000')
        a.e(f'v_lshrrev_b32 v{VT1}, 3, v{V_LANE}')
        a.e(f'v_mul_lo_u32 v{VT1}, v{VT1}, s{S_T0}')
        a.e(f'v_and_b32 v{VT2}, 7, v{V_LANE}')
        a.e(f'v_lshl_add_u32 v{VT1}, v{VT2}, 4, v{VT1}')
        a.e(f'v_add_u32 v{VT1}, s{S_T1}, v{VT1}')
        a.e(f's_lshl_b32 s{S_T1}, s{94}, 7')
        a.e(f's_mul_i32 s{S_T1}, s{S_T1}, s{S_T0}')
        a.e(f's_lshl_b32 s{S_T0}, s{S_T0}, 3')
        a.e(f's_mov_b32 m0, {hex(CSL)}')
        for p in range(16):
            a.e('s_nop 0')
            a.vmem(f'buffer_load_dwordx4 v{VT1}, s[{S_CSRD}:{S_CSRD+3}], s{S_T1} offen lds', 'cs')
            if p < 15:
                a.e('s_add_u32 m0, m0, 1024')
                a.e(f's_add_u32 s{S_T1}, s{S_T1}, s{S_T0}')
    dg = [0]
    def dstamp():
        if opt.startdiag:
            a.e(f's_memtime s[{84+2*dg[0]}:{85+2*dg[0]}]') if False else None
            a.e('s_memtime s[98:99]'); a.e('s_waitcnt lgkmcnt(0)')
            a.e('s_sub_u32 s98, s98, s100')
            a.e(f'v_mov_b32 v{100+dg[0]}, s98'); dg[0] += 1
    dstamp()
    cs_issue()
    a.e(f'v_lshrrev_b32 v{VT0}, 3, v{V_LANE}')
    a.e(f'v_bfe_u32 v{VT1}, v{VT0}, 1, 2')
    a.e(f'v_lshlrev_b32 v{VT1}, 1, v{VT1}')
    a.e(f'v_and_b32 v{VT2}, 7, v{V_LANE}')
    a.e(f'v_xor_b32 v{VT2}, v{VT2}, v{VT1}')
    a.e(f'v_and_b32 v{VT1}, 3, v{VT2}')
    a.e(f'v_lshlrev_b32 v{VT3}, 4, v{VT1}')
    a.e(f'v_lshrrev_b32 v{VT1}, 2, v{VT2}')
    a.e(f'v_lshl_add_u32 v{VT3}, v{VT1}, 10, v{VT3}')
    a.e(f's_lshl_b32 s{S_T0}, s{S_CB2}, 6')
    a.e(f's_add_u32 s{S_T1}, s{S_T0}, 1024')
    a.e(f'v_add_u32 v{VT3}, s{S_T1}, v{VT3}')
    a.e(f'v_lshrrev_b32 v{VT1}, 2, v{VT0}')
    a.e(f'v_lshlrev_b32 v{VT1}, 3, v{VT1}')
    a.e(f'v_and_b32 v{VT2}, 3, v{VT0}')
    a.e(f'v_add_u32 v{VT1}, v{VT1}, v{VT2}')
    a.e(f'v_mul_u32_u24 v{VT1}, 3072, v{VT1}')
    a.e(f'v_add_u32 v{VT1}, v{VT1}, v{VT3}')
    for p in range(4):
        off = (16 * (p & 1) + 4 * (p >> 1)) * 3072 - p * 1024
        a.e(f'v_add_u32 v{VKVn+p}, {hex(off & 0xffffffff)}, v{VT1}')
    a.e(f'v_mul_u32_u24 v{VKV}, 3072, v{VT0}')
    a.e(f'v_add_u32 v{VKV}, v{VKV}, v{VT3}')
    for j in range(1, 4): a.e(f'v_add_u32 v{VKV+j}, {hex(j*(8*3072-1024))}, v{VKV}')

    layers = sorted(set(e[0] for e in events))
    slabs = {L: build_slabs(L) for L in layers}
    stream = []
    needed = set((e[0], e[2], e[3]) for e in events if e[1] == 'B')
    for L in layers:
        for p in PHASES:
            for ci, ch in enumerate(slabs[L][p]):
                if (L, p, ci) in needed: stream += ch
    released = set()
    log = []; cur = ['start']
    opt._log = log
    st = {'issued': 0}
    win = [opt.window0]
    def overlaps_unreleased(s, idx):
        for k in range(idx):
            o = stream[k]
            if (o.layer, o.phase, o.chunk) in released: continue
            if o.addr < s.addr + s.size and s.addr < o.addr + o.size: return True
        return False
    def emit_slab(s):
        kind = s.kind; tag = (s.layer, s.phase, s.chunk)
        if kind in opt.dbg_skip.split(','): return
        if kind in ('WO', 'W1', 'W2', 'W4'):
            srd_ = {'WO': S_WO, 'W1': S_W1, 'W2': S_W2, 'W4': S_W4}[kind]; vb = VN; rs = 1024
        elif kind == 'KV': srd_, vb, rs = S_WQKV, (VKVn if s.layer == 0 else VKV), 3072
        elif kind == 'Q': srd_, vb, rs = S_WQKV, (VQn if s.layer == 0 else VQ), 3072
        else: srd_, vb, rs = S_W3, VW3, 3584
        R4 = f's[{srd_}:{srd_+3}]'
        def grp(addr, srow, ps, v0):
            a.e(f's_mov_b32 m0, {hex(addr)}')
            if kind == 'W4':
                p_, rr_ = divmod(srow, 224); tb_ = CB7 + p_
            else:
                c_, rr_ = divmod(srow, 128); tb_ = {'KV': CBK, 'Q': CBK, 'W3': CB6}.get(kind, CBS) + c_
            a.e(f's_add_u32 s{S_T0}, s{tb_}, {hex(rr_*rs)}')
            for k, p in enumerate(ps):
                a.vmem(f'buffer_load_dwordx4 v{vb+p}, {R4}, s{S_T0} offen offset:{k*1024} {"nt " if opt.w_nt else ""}lds', tag)
        if kind == 'W3':
            grp(s.addr, s.srow, [0, 1, 2, 3], 0); grp(s.addr + 4096, s.srow, [4, 5, 6], 0)
        elif kind == 'W4' and s.srow2 != s.srow + 16:
            grp(s.addr, s.srow, [0, 1], 0); grp(s.addr + 2048, s.srow2, [0, 1], 0)
        else:
            grp(s.addr, s.srow, [0, 1, 2, 3], 0)
        if len(a.vm) > win[0]:
            a.e(f's_waitcnt vmcnt({win[0]})')
            a.vm = a.vm[len(a.vm) - win[0]:]
    plan = {}
    opt._plan = plan
    free = [56, 56]
    def need_slots(s): return (4, 3) if s.kind == 'W3' else (2, 2)
    def park_policy(key):
        if not opt.park: return
        name = key.split('.', 1)[1] if key[0] in '01' else None
        if name is None: return
        L = int(key[0])
        if name in opt.park_w3:
            cand = [s for s in stream[st['issued']:] if s.layer == L and s.phase == 'P6' and s.chunk >= 1]; cap = opt.park_w3[name]
        elif name in opt.park_caps:
            cand = [s for s in stream[st['issued']:] if s.layer == L and s.phase == 'P7' and s.chunk >= 6]; cap = opt.park_caps[name]
        else:
            return
        for s in cand:
            if getattr(s, 'parked', False): continue
            n0, n1 = need_slots(s)
            if cap <= 0 or free[0] < n0 or free[1] < n1: break
            s.parked = True; free[0] -= n0; free[1] -= n1; cap -= 1
            plan.setdefault(key, []).append(('park', s))
    def issue(cap, must=None):
        n = 0; nu = 0
        while st['issued'] < len(stream):
            s = stream[st['issued']]
            forced = must is not None and any((o.layer, o.phase, o.chunk) == must for o in stream[st['issued']:])
            pk_ = getattr(s, 'parked', False)
            if not forced and not pk_ and n + s.npieces > cap: break
            if not forced and pk_ and (nu >= opt.unpark_max or must is not None): break
            if overlaps_unreleased(s, st['issued']):
                assert not forced, ('deadlock', must, s.layer, s.phase, s.chunk)
                break
            if pk_:
                plan.setdefault(cur[0], []).append(('unpark', s)); nu += 1
                n0, n1 = need_slots(s); free[0] += n0; free[1] += n1
                st['issued'] += 1
                log.append((cur[0], s.layer, s.phase + '*', s.chunk, forced))
                continue
            emit_slab(s); st['issued'] += 1; n += s.npieces
            log.append((cur[0], s.layer, s.phase, s.chunk, forced))
    issue(64)
    dstamp()
    def late_setup():
        a.e('s_waitcnt lgkmcnt(0)')
        a.e(f's_mul_i32 s{S_B}, s{S_V}, 0x9e3779b1')
        a.e(f's_add_u32 s{S_B}, s{S_B}, 0x7f4a7c15')
        a.e(f's_and_b32 s{S_B}, s{S_B}, 0xffffff00')
        a.e(f's_lshl_b32 s{S_T0}, s{S_G}, 7')
        a.e(f's_lshl_b32 s{S_T1}, s{S_R}, 2')
        a.e(f's_add_u32 s{S_T0}, s{S_T0}, s{S_T1}')
        a.e(f's_add_u32 s{S_T0}, s{S_T0}, {hex(XID_OFF)}')
        a.e(f'v_mov_b32 v{VT1}, s{S_T0}')
        a.e(f's_add_u32 s{S_T1}, s{S_B}, s{S_XCC}')
        a.e(f'v_mov_b32 v{VT0}, s{S_T1}')
        a.e('s_mov_b64 exec, 1')
        a.vmem(f'buffer_store_dword v{VT0}, v{VT1}, {WS}, 0 offen sc1', 'xid')
        a.e('s_mov_b64 exec, -1')
        late_tables()
        a.c('W lane offsets')
        a.e(f'v_lshrrev_b32 v{VT0}, 3, v{V_LANE}')
        a.e(f'v_bfe_u32 v{VT1}, v{VT0}, 1, 1')
        a.e(f'v_lshlrev_b32 v{VT1}, 2, v{VT1}')
        a.e(f'v_and_b32 v{VT2}, 7, v{V_LANE}')
        a.e(f'v_xor_b32 v{VT2}, v{VT2}, v{VT1}')
        a.e(f'v_lshlrev_b32 v{VN}, 10, v{VT0}')
        a.e(f'v_lshl_add_u32 v{VN}, v{VT2}, 4, v{VN}')
        a.e(f's_lshl_b32 s{S_T0}, s{S_CB}, 7')
        a.e(f'v_add_u32 v{VN}, s{S_T0}, v{VN}')
        for j in range(1, 4): a.e(f'v_add_u32 v{VN+j}, {hex(j*(8192-1024))}, v{VN}')
        a.e(f'v_lshrrev_b32 v{VT0}, 2, v{V_LANE}')
        a.e(f'v_bfe_u32 v{VT1}, v{VT0}, 2, 1')
        a.e(f'v_lshlrev_b32 v{VT1}, 1, v{VT1}')
        a.e(f'v_and_b32 v{VT2}, 3, v{V_LANE}')
        a.e(f'v_xor_b32 v{VT2}, v{VT2}, v{VT1}')
        a.e(f'v_lshlrev_b32 v{VT3}, 4, v{VT2}')
        a.e(f's_lshl_b32 s{S_T0}, s{S_CB2}, 6')
        a.e(f'v_add_u32 v{VT3}, s{S_T0}, v{VT3}')
        a.e(f'v_mul_u32_u24 v{VQ}, 3072, v{VT0}')
        a.e(f'v_add_u32 v{VQ}, v{VQ}, v{VT3}')
        for j in range(1, 4): a.e(f'v_add_u32 v{VQ+j}, {hex(j*(16*3072-1024))}, v{VQ}')
        a.e(f'v_lshrrev_b32 v{VT1}, 2, v{VT0}')
        a.e(f'v_lshlrev_b32 v{VT1}, 3, v{VT1}')
        a.e(f'v_and_b32 v{VT2}, 3, v{VT0}')
        a.e(f'v_add_u32 v{VT1}, v{VT1}, v{VT2}')
        a.e(f'v_mul_u32_u24 v{VT1}, 3072, v{VT1}')
        a.e(f'v_add_u32 v{VT1}, v{VT1}, v{VT3}')
        for p in range(4):
            off = (4 * (p & 1) + 32 * (p >> 1)) * 3072 - p * 1024
            a.e(f'v_add_u32 v{VQn+p}, {hex(off & 0xffffffff)}, v{VT1}')
        a.e(f's_mul_i32 s{S_T0}, s{S_CB2}, 224')
        M14 = (1 << 20) // 14 + 1
        a.e(f's_mov_b32 s{S_T1}, {hex(M14)}')
        for p in range(7):
            a.e(f'v_add_u32 v{VT0}, {64*p}, v{V_LANE}')
            a.e(f'v_mul_lo_u32 v{VT1}, v{VT0}, s{S_T1}')
            a.e(f'v_lshrrev_b32 v{VT1}, 20, v{VT1}')
            a.e(f'v_mul_u32_u24 v{VT2}, 14, v{VT1}')
            a.e(f'v_sub_u32 v{VT2}, v{VT0}, v{VT2}')
            a.e(f'v_mul_u32_u24 v{VW3+p}, 3584, v{VT1}')
            a.e(f'v_lshl_add_u32 v{VW3+p}, v{VT2}, 4, v{VW3+p}')
            a.e(f'v_add_u32 v{VW3+p}, s{S_T0}, v{VW3+p}')
            if p % 4: a.e(f'v_subrev_u32 v{VW3+p}, {(p%4)*1024}, v{VW3+p}')
        for u in range(448): assert (u * M14) >> 20 == u // 14

    def cs_part1():
        a.wait_vm('cs')
        a.e(f'v_bfe_u32 v{VT0}, v{V_LANE}, 2, 2')
        a.e(f'v_lshrrev_b32 v{VT1}, 4, v{V_LANE}')
        a.e(f'v_lshl_add_u32 v{VT0}, v{VT1}, 2, v{VT0}')
        a.e(f'v_lshlrev_b32 v{VT0}, 7, v{VT0}')
        a.e(f'v_and_b32 v{VT2}, 3, v{V_LANE}')
        a.e(f'v_lshl_add_u32 v{VT0}, v{VT2}, 3, v{VT0}')
        a.e(f'v_add_u32 v{VT0}, {hex(CSL)}, v{VT0}')
        for i in range(4): a.e(f'v_mov_b32 v{40+i}, 0x3f803f80')
        for j in range(4):
            for t in range(4):
                a.e(f'ds_read_b64_tr_b16 v[{64+4*t}:{65+4*t}], v{VT0} offset:{j*4096+t*32}')
                a.e(f'ds_read_b64_tr_b16 v[{66+4*t}:{67+4*t}], v{VT0} offset:{j*4096+t*32+2048}')
            a.e('s_waitcnt lgkmcnt(0)')
            for t in range(4):
                c = '0' if j == 0 else f'v[{44+4*t}:{47+4*t}]'
                a.e(f'v_mfma_f32_16x16x32_bf16 v[{44+4*t}:{47+4*t}], v[{64+4*t}:{67+4*t}], v[40:43], {c}')
        a.e(f's_mul_i32 s{S_T0}, s{94}, 15360')
        a.e(f's_lshl_b32 s{S_T1}, s{93}, 8')
        a.e(f's_add_u32 s{S_T0}, s{S_T0}, s{S_T1}')
        a.e(f's_add_u32 s{S_T0}, s{S_T0}, {hex(CSP_OFF)}')
        a.e(f'v_lshlrev_b32 v{VT1}, 4, v{VT1}')
        a.e('s_nop 7')
        set_exec(a, 0x00010001)
        for t in range(4):
            a.vmem(f'buffer_store_dwordx4 v[{44+4*t}:{47+4*t}], v{VT1}, {WS}, s{S_T0} offen offset:{64*t} sc1', 'csst')
        a.e('s_mov_b64 exec, -1')
        if opt.kv_atomic:
            zl = a.newlabel('ZK')
            a.e(f's_lshr_b32 s{S_T0}, s2, 3')
            a.e(f's_mul_i32 s{S_T0}, s{S_T0}, {KVREC}')
            a.e(f's_add_u32 s{S_T0}, s{S_T0}, {hex(KVA_OFF)}')
            a.e(f's_and_b32 s{S_T1}, s2, 0x87')
            a.e(f's_cmp_eq_u32 s{S_T1}, 0')
            a.e(f's_cbranch_scc0 {zl}')
            for i in range(4): a.e(f'v_mov_b32 v{60+i}, 0')
            a.e(f'v_lshlrev_b32 v{VT0}, 4, v{V_LANE}')
            for l_ in range(2):
                a.vmem(f'buffer_store_dwordx4 v[60:63], v{VT0}, {WS}, s{S_T0} offen sc1', 'csst')
                a.vmem(f'buffer_store_dwordx4 v[60:63], v{VT0}, {WS}, s{S_T0} offen offset:1024 sc1', 'csst')
                a.e('s_mov_b64 exec, 0xff')
                a.vmem(f'buffer_store_dwordx4 v[60:63], v{VT0}, {WS}, s{S_T0} offen offset:2048 sc1', 'csst')
                a.e('s_mov_b64 exec, -1')
                if l_ == 0: a.e(f's_add_u32 s{S_T0}, s{S_T0}, {16*KVREC}')
            a.label(zl)
    def cs_part2():
        a.e(f's_lshl_b32 s{S_T0}, s2, 7')
        a.e(f's_add_u32 s{S_T0}, s{S_T0}, {hex(CSF_OFF)}')
        a.e(f'v_mov_b32 v{VT1}, s{S_T0}')
        a.e(f's_add_u32 s{S_T1}, s{S_B}, 8')
        a.e(f'v_mov_b32 v{VT0}, s{S_T1}')
        a.wait_vm('csst')
        a.e('s_mov_b64 exec, 1')
        a.vmem(f'buffer_store_dword v{VT0}, v{VT1}, {WS}, 0 offen sc1', 'csf')
        a.e('s_mov_b64 exec, -1')
    def cs_fill():
        L_ = a.newlabel('CPOLL'); D_ = a.newlabel('CPOLLD')
        a.e(f'v_min_u32 v{VT0}, 27, v{V_LANE}')
        a.e(f'v_lshrrev_b32 v{VT2}, 2, v{VT0}')
        a.e(f's_lshr_b32 s{S_T0}, s{S_CB2}, 1')
        a.e(f'v_lshlrev_b32 v{VT1}, 3, v{VT2}')
        a.e(f'v_add_u32 v{VT1}, s{S_T0}, v{VT1}')
        a.e(f's_add_u32 s{S_T0}, s{S_CB}, 24')
        a.e(f'v_mov_b32 v{VT3}, s{S_T0}')
        a.e(f'v_cmp_eq_u32 vcc, 3, v{VT2}')
        a.e('s_nop 1')
        a.e(f'v_cndmask_b32 v{VT1}, v{VT1}, v{VT3}, vcc')
        a.e(f's_mul_i32 s{S_T0}, s{S_CB2}, 112')
        a.e(f's_lshr_b32 s{S_T0}, s{S_T0}, 6')
        a.e(f's_add_u32 s{S_T0}, s{S_T0}, {32 - 4}')
        a.e(f'v_add_u32 v{VT3}, s{S_T0}, v{VT2}')
        a.e(f'v_min_u32 v{VT3}, 59, v{VT3}')
        a.e(f'v_cmp_lt_u32 vcc, 3, v{VT2}')
        a.e('s_nop 1')
        a.e(f'v_cndmask_b32 v{VT1}, v{VT1}, v{VT3}, vcc')
        a.e(f'v_and_b32 v{VT0}, 3, v{VT0}')
        a.e(f'v_lshl_add_u32 v{VT1}, v{VT1}, 2, v{VT0}')
        if opt.kv_atomic:
            a.e(f's_lshl_b32 s{S_T0}, s{S_CB2}, 3')
            a.e(f'v_mov_b32 v{VT3}, s{S_T0}')
            a.e(f'v_cmp_lt_u32 vcc, 27, v{V_LANE}')
            a.e('s_nop 1')
            a.e(f'v_cndmask_b32 v{VT1}, v{VT1}, v{VT3}, vcc')
        a.e(f'v_lshlrev_b32 v{VT1}, 7, v{VT1}')
        a.e(f's_mov_b32 s{S_T0}, {hex(CSF_OFF)}')
        a.e(f's_add_u32 s{S_T1}, s{S_B}, 8')
        a.e(f's_mov_b32 s{95}, {opt.spin}')
        a.label(L_)
        a.e(f'buffer_load_dword v40, v{VT1}, {WS}, s{S_T0} offen sc1')
        a.e('s_waitcnt vmcnt(0)')
        a.e(f'v_subrev_u32 v40, s{S_T1}, v40')
        a.e('v_cmp_gt_u32 vcc, 0x80, v40')
        a.e(f's_sub_u32 s{95}, s{95}, 1')
        a.e(f's_cbranch_scc1 {D_}')
        a.e('s_cmp_eq_u64 vcc, -1')
        a.e(f's_cbranch_scc0 {L_}')
        a.label(D_)
        a.vm = []
        def colof(dst, gofs):
            a.e(f'v_add_u32 v{VT0}, {gofs}, v{V_LANE}')
            a.e(f'v_lshlrev_b32 v{VT2}, 2, v{VT0}')
            a.e(f's_lshl_b32 s{S_T0}, s{S_CB2}, 5')
            a.e(f's_mul_i32 s{S_T1}, s{S_CB2}, 112')
            a.e(f's_add_u32 s{S_T1}, s{S_T1}, {2048 - 160}')
            a.e(f'v_add_u32 v{dst}, s{S_T1}, v{VT2}')
            for lim, addc, useb in [(40, 1536 - 96, 'cb'), (24, -64, 'hp'), (16, 1024 - 32, 'hp'), (8, 512, 'hp')]:
                if useb == 'cb':
                    a.e(f's_lshl_b32 s{S_T1}, s{S_CB}, 6')
                    a.e(f's_add_u32 s{S_T1}, s{S_T1}, {addc}')
                else:
                    a.e(f's_add_u32 s{S_T1}, s{S_T0}, {hex(addc & 0xffffffff)}')
                a.e(f'v_add_u32 v{VT3}, s{S_T1}, v{VT2}')
                a.e(f'v_cmp_gt_u32 vcc, {lim}, v{VT0}')
                a.e('s_nop 1')
                a.e(f'v_cndmask_b32 v{dst}, v{dst}, v{VT3}, vcc')
            a.e(f'v_lshlrev_b32 v{dst}, 2, v{dst}')
        colof(36, 0); colof(37, 64)
        a.e(f's_mov_b32 s{S_T0}, {hex(CSP_OFF)}')
        for kq in range(4):
            a.e(f'buffer_load_dwordx4 v[{40+4*kq}:{43+4*kq}], v36, {WS}, s{S_T0} offen sc1')
            a.e('s_mov_b64 exec, 0xf')
            a.e(f'buffer_load_dwordx4 v[{56+4*kq}:{59+4*kq}], v37, {WS}, s{S_T0} offen sc1')
            a.e('s_mov_b64 exec, -1')
            if kq < 3: a.e(f's_add_u32 s{S_T0}, s{S_T0}, 15360')
        a.e(f'v_lshlrev_b32 v{VT0}, 4, v{V_LANE}')
        a.e(f'v_add_u32 v{VT0}, {hex(CSC)}, v{VT0}')
        a.e('s_waitcnt vmcnt(0)')
        for b in (40, 56):
            for i in (0, 2):
                a.e(pk('add', b + i, vp(b + i), vp(b + 4 + i)))
                a.e(pk('add', b + 8 + i, vp(b + 8 + i), vp(b + 12 + i)))
                a.e(pk('add', b + i, vp(b + i), vp(b + 8 + i)))
        a.e(f'ds_write_b128 v{VT0}, v[40:43]')
        a.e('s_mov_b64 exec, 0xf')
        a.e(f'ds_write_b128 v{VT0}, v[56:59] offset:1024')
        a.e('s_mov_b64 exec, -1')
        a.e('s_waitcnt lgkmcnt(0)')

    cs_part1()
    chunks_of = {}
    for s in stream: chunks_of.setdefault((s.layer, s.phase), set()).add(s.chunk)
    nb = 0
    for ev in events:
        L, kind, p, ci = ev
        if kind == 'B':
            cur[0] = f'pre {L}.{p}.B{ci}'
            issue(0, must=(L, p, ci))
            cur[0] = f'{L}.{p}.B{ci}'
            if nb < 5: dstamp()
            a.wait_vm((L, p, ci))
            if nb < 5: dstamp()
            a.e('s_barrier')
            nb += 1
            if ci >= 2: released.add((L, p, ci - 2))
            if ci == 0:
                for (l2, p2), cs_ in chunks_of.items():
                    if p2 in NOE and (l2, PHASES.index(p2)) < (L, PHASES.index(p)):
                        for c in cs_: released.add((l2, p2, c))
            if nb == 1:
                late_setup()
                cs_part2()
            elif nb == 3:
                cs_fill()
                win[0] = opt.window
            elif nb in (2, 4):
                pass
            else:
                issue(opt.caps.get(f'{p}.B{ci}', opt.caps.get(f'{p}.B*', 0)))
                park_policy(cur[0])
        elif kind == 'E':
            cur[0] = f'{L}.{p}.E'
            a.e('s_barrier')
            for c in chunks_of[(L, p)]: released.add((L, p, c))
            issue(opt.caps.get(f'{p}.E', 0))
            park_policy(cur[0])
        else:
            cur[0] = f'{L}.{p}'
            a.e('s_barrier')
            issue(opt.caps.get(p, 0))
            park_policy(cur[0])
    if opt.startdiag:
        a.e(f's_lshl_b32 s{S_T0}, s2, 8')
        a.e(f's_add_u32 s{S_T0}, s{S_T0}, {hex(TM_OFF + 128)}')
        for i in range(dg[0]):
            a.e(f'v_mov_b32 v99, {4*i}')
            a.e(f'buffer_store_dword v{100+i}, v99, {WS}, s{S_T0} offen')
    a.e('s_waitcnt vmcnt(0)')
    a.e('s_endpgm')


def gen_toucher(a, opt, events):
    a.c('--- A loader / toucher')
    mats = {'WO': (S_PTR + 4, 512 * 512 * 2), 'W1': (S_PTR + 8, 512 * 512 * 2),
            'W2': (S_PTR + 10, 512 * 512 * 2), 'W3': (S_PTR + 12, 512 * 1792 * 2), 'W4': (S_PTR + 14, 1792 * 512 * 2)}
    srds = {}
    for i, (k, (p, size)) in enumerate(mats.items()):
        s = 40 + 4 * i
        a.e(f's_mov_b32 s{s}, s{p}'); a.e(f's_mov_b32 s{s+1}, s{p+1}')
        a.e(f's_mov_b32 s{s+2}, {hex(size)}'); a.e(f's_mov_b32 s{s+3}, 0x20000')
        srds[k] = s
    T0s, T1s, T2s, T3s, T4s, T5s = 33, 34, 35, 36, 37, 38
    THR, SPIN = 60, 61
    RA, P7T = 64, 68
    U0, U1, U2, U3, U4 = 76, 77, 78, 79, 80
    VAS, VAG, VFS, VFB, VFH, VAH = 3, 4, 5, 6, 7, 8
    X0, X1, X2, X3 = 24, 25, 26, 27
    X0W = 31
    e = a.e
    VXK = 40
    e(f'v_lshrrev_b32 v2, 4, v{V_LANE}')
    e(f'v_and_b32 v3, 15, v{V_LANE}')
    for k in range(4):
        e(f'v_add_u32 v{VXK+k}, {4*k}, v2'); e(f'v_xor_b32 v{VXK+k}, v{VXK+k}, v3'); e(f'v_lshlrev_b32 v{VXK+k}, 4, v{VXK+k}')
        e(f'v_lshl_add_u32 v{VXK+k}, v2, 10, v{VXK+k}')
    e(f's_lshl_b32 s33, s{S_G}, 8'); e(f's_lshl_b32 s34, s{S_RB2}, 7'); e('s_add_u32 s33, s33, s34'); e('s_lshl_b32 s82, s33, 10')
    e(f's_lshl_b32 s83, s{S_RB2}, 1'); e(f's_add_u32 s83, s83, s{S_CB2}'); e(f's_and_b32 s83, s83, {3 if opt.rot else 0}')
    e(f's_lshr_b32 s81, s{S_CB2}, 2'); e(f's_lshl_b32 s81, s81, {13 if opt.rot else 31}')
    if not opt.rot: e('s_mov_b32 s81, 0')
    def x_chunk(c):
        e(f's_xor_b32 s33, s83, {c}'); e('s_lshl_b32 s33, s33, 8'); e('s_add_u32 s33, s33, s82')
        e('s_mov_b32 s34, s81'); e('s_mov_b32 s36, 8')
        lp = a.newlabel('XC'); a.label(lp)
        for k in range(4):
            e(f's_add_u32 m0, s34, {hex(AREG + (c & 1) * 32768)}')
            e('s_lshl_b32 s35, s34, 2'); e('s_add_u32 s35, s35, s33')
            e(f'buffer_load_dwordx4 v{VXK + k}, s[{S_X}:{S_X+3}], s35 offen lds')
            e('s_add_u32 s34, s34, 1024')
        e('s_and_b32 s34, s34, 0x7fff')
        e('s_waitcnt vmcnt(52)')
        e('s_sub_u32 s36, s36, 1'); e('s_cmp_lg_u32 s36, 0'); e(f's_cbranch_scc1 {lp}')
        a.vm += [('X', c)] * 32
        a.vm = a.vm[-52:]
    def x_tile():
        e(f'v_lshrrev_b32 v2, 3, v{V_LANE}'); e('v_lshlrev_b32 v2, 10, v2')
        e(f'v_and_b32 v30, 7, v{V_LANE}'); e('v_lshl_add_u32 v2, v30, 4, v2')
        e(f's_lshl_b32 s33, s{S_G}, 8'); e(f's_lshl_b32 s34, s{S_RB}, 6'); e('s_add_u32 s33, s33, s34'); e('s_lshl_b32 s33, s33, 10')
        e(f's_lshl_b32 s34, s{S_CB}, 7'); e('s_add_u32 s33, s33, s34')
        for p_ in range(8):
            e(f's_mov_b32 m0, {hex(AREG + p_ * 1024)}')
            if p_: e('s_add_u32 s33, s33, 8192')
            else: e('s_nop 0')
            a.vmem(f'buffer_load_dwordx4 v2, s[{S_X}:{S_X+3}], s33 offen lds', 'x')
    x_chunk(0); x_chunk(1)
    e(f'v_lshlrev_b32 v1, 7, v{V_LANE}')
    e(f'v_lshlrev_b32 v{X0}, 4, v{V_LANE}')
    e(f'v_lshlrev_b32 v{X0W}, 4, v{V_LANE}')
    e(f's_lshl_b32 s{T0s}, s{S_G}, 4'); e(f's_lshl_b32 s{T1s}, s{S_RB}, 2'); e(f's_add_u32 s{T0s}, s{T0s}, s{T1s}')
    e(f's_lshl_b32 s{T1s}, s{T0s}, 14'); e(f'v_add_u32 v{VAS}, s{T1s}, v{X0}')
    e(f's_mul_i32 s{T1s}, s{T0s}, 57344'); e(f'v_add_u32 v{VAG}, s{T1s}, v{X0}')
    rmask = 3 if opt.rot else 0
    for c in range(4):
        e(f's_and_b32 s{RA+c}, s{S_RB}, {rmask}'); e(f's_xor_b32 s{RA+c}, s{RA+c}, {c}'); e(f's_lshl_b32 s{RA+c}, s{RA+c}, 12')
    for p_ in range(8):
        e(f's_and_b32 s{P7T+p_}, s{S_RB}, {rmask}'); e(f's_lshl_b32 s{P7T+p_}, s{P7T+p_}, 1')
        e(f's_xor_b32 s{P7T+p_}, s{P7T+p_}, {p_}'); e(f's_mul_i32 s{P7T+p_}, s{P7T+p_}, 7168')
    e(f'v_and_b32 v{X1}, 15, v{V_LANE}')
    e(f'v_and_b32 v{X2}, 0x30, v{V_LANE}')
    e(f's_mul_i32 s{T3s}, s{S_G}, 18')
    e(f's_lshl_b32 s{T4s}, s{S_G}, 8')
    for c in range(4):
        e(f's_lshr_b32 s{T5s}, s{RA+c}, 12')
        e(f's_lshr_b32 s{U3}, s{T5s}, 1'); e(f's_add_u32 s{U3}, s{U3}, 1'); e(f's_sub_u32 s{U4}, 0, s{U3}')
        e(f's_bitcmp1_b32 s{T5s}, 0'); e(f's_cselect_b32 s{U3}, s{U3}, s{U4}')
        e(f's_lshl_b32 s{T2s}, s{S_RB}, 6'); e(f's_add_u32 s{T2s}, s{T2s}, s{U3}'); e(f's_add_u32 s{T2s}, s{T2s}, 16')
        for w in range(4):
            r = VAH + 4 * c + w
            e(f's_add_u32 s{T5s}, s{T2s}, {16 * w}')
            e(f'v_add_u32 v{r}, s{T5s}, v{X1}')
            e(f'v_lshrrev_b32 v{X3}, 4, v{r}'); e(f'v_add_u32 v{X3}, s{T3s}, v{X3}'); e(f'v_lshlrev_b32 v{X3}, 14, v{X3}')
            e(f'v_and_b32 v28, 15, v{r}'); e(f'v_add_u32 v28, v{X2}, v28'); e(f'v_lshl_add_u32 v{X3}, v28, 4, v{X3}')
            e(f'v_add_u32 v28, s{T4s}, v{r}'); e('v_subrev_u32 v28, 16, v28')
            e('v_cmp_gt_u32 vcc, 0x800, v28')
            e(f'v_mov_b32 v{r}, 0x80000000'); e('s_nop 0')
            e(f'v_cndmask_b32 v{r}, v{r}, v{X3}, vcc')
    e(f's_lshl_b32 s{T2s}, s{S_G}, 9'); e(f's_add_u32 s{T2s}, s{T2s}, {hex(LF_OFF)}')
    e(f'v_bfe_u32 v{X1}, v{V_LANE}, 3, 2'); e(f'v_lshlrev_b32 v{X1}, 7, v{X1}')
    e(f'v_and_b32 v{X2}, 7, v{V_LANE}'); e(f'v_lshl_add_u32 v{X1}, v{X2}, 2, v{X1}')
    e(f's_lshl_b32 s{T3s}, s{S_RB}, 5'); e(f's_add_u32 s{T3s}, s{T3s}, s{T2s}')
    e(f'v_add_u32 v{VFS}, s{T3s}, v{X1}')
    e(f's_and_b32 s{T3s}, s{S_RB}, 1'); e(f's_lshl_b32 s{T3s}, s{T3s}, 8'); e(f's_add_u32 s{T3s}, s{T3s}, s{T2s}')
    e(f's_lshr_b32 s{T4s}, s{S_RB}, 1'); e(f's_lshl_b32 s{T4s}, s{T4s}, 6'); e(f's_add_u32 s{T3s}, s{T3s}, s{T4s}')
    e(f'v_bfe_u32 v{X2}, v{V_LANE}, 4, 1'); e(f'v_lshlrev_b32 v{X2}, 7, v{X2}')
    e(f'v_and_b32 v{X3}, 15, v{V_LANE}'); e(f'v_lshl_add_u32 v{X2}, v{X3}, 2, v{X2}')
    e(f'v_add_u32 v{VFB}, s{T3s}, v{X2}')
    e(f's_lshl_b32 s{T3s}, s{S_R}, 2'); e(f's_add_u32 s{T3s}, s{T3s}, s{T2s}')
    e(f'v_and_b32 v{X2}, 3, v{V_LANE}'); e(f'v_lshlrev_b32 v{X2}, 7, v{X2}'); e(f'v_add_u32 v{X2}, s{T3s}, v{X2}')
    e(f'v_cmp_lt_u32 vcc, 31, v{V_LANE}'); e('s_nop 1')
    e(f'v_cndmask_b32 v{VFB}, v{VFB}, v{X2}, vcc')
    def build_fh(L):
        la = a.newlabel('FH'); lb = a.newlabel('FH')
        e(f's_lshl_b32 s{T2s}, s{S_G}, 9'); e(f's_add_u32 s{T2s}, s{T2s}, {hex(LF_OFF)}')
        e(f's_lshl_b32 s{T3s}, s{S_RB}, 5'); e(f's_add_u32 s{T3s}, s{T3s}, s{T2s}')
        e(f's_sub_u32 s{U1}, s{T3s}, 32'); e(f's_add_u32 s{U1}, s{U1}, 256'); e(f's_mov_b32 s{U3}, 128')
        e(f's_add_u32 s{U2}, s{T3s}, 32'); e(f's_mov_b32 s{U4}, 128')
        e(f's_lshl_b32 s{T4s}, s{S_G}, 8'); e(f's_add_u32 s{T4s}, s{T4s}, {hex(HF_OFF + L * 2048)}')
        e(f's_cmp_eq_u32 s{S_RB}, 0'); e(f's_cbranch_scc0 {la}')
        e(f's_mov_b32 s{U1}, s{T3s}')
        e(f's_cmp_eq_u32 s{S_G}, 0'); e(f's_cbranch_scc1 {la}')
        e(f's_mov_b32 s{U1}, s{T4s}'); e(f's_mov_b32 s{U3}, 0')
        a.label(la)
        e(f's_cmp_eq_u32 s{S_RB}, 3'); e(f's_cbranch_scc0 {lb}')
        e(f's_mov_b32 s{U2}, s{T3s}')
        e(f's_cmp_eq_u32 s{S_G}, 7'); e(f's_cbranch_scc1 {lb}')
        e(f's_add_u32 s{U2}, s{T4s}, 128'); e(f's_mov_b32 s{U4}, 0')
        a.label(lb)
        e(f'v_bfe_u32 v{X1}, v{V_LANE}, 3, 1'); e(f'v_and_b32 v{X2}, 7, v{V_LANE}'); e(f'v_lshlrev_b32 v{X2}, 2, v{X2}')
        for base_s, mul_s, sel in ((U1, U3, 2), (U2, U4, 3)):
            e(f'v_mul_u32_u24 v{X3}, s{mul_s}, v{X1}'); e(f'v_add_u32 v{X3}, v{X3}, v{X2}'); e(f'v_add_u32 v{X3}, s{base_s}, v{X3}')
            e(f'v_lshrrev_b32 v28, 4, v{V_LANE}'); e(f'v_cmp_eq_u32 vcc, {sel}, v28'); e('s_nop 1')
            e(f'v_cndmask_b32 v{VFH}, v{VFH if sel == 3 else VFS}, v{X3}, vcc')
    e('s_waitcnt lgkmcnt(0)')
    e(f's_mul_i32 s{S_B}, s{S_V}, 0x9e3779b1'); e(f's_add_u32 s{S_B}, s{S_B}, 0x7f4a7c15'); e(f's_and_b32 s{S_B}, s{S_B}, 0xffffff00')

    def poll(v, epoch):
        L_ = a.newlabel('AP'); D_ = a.newlabel('APD')
        e(f's_add_u32 s{THR}, s{S_B}, {8*epoch}'); e(f's_mov_b32 s{SPIN}, {opt.spin}')
        a.label(L_)
        e(f'buffer_load_dword v30, v{v}, {WS}, 0 offen sc1'); e('s_waitcnt vmcnt(0)')
        e(f'v_subrev_u32 v30, s{THR}, v30'); e('v_cmp_gt_u32 vcc, 0x80, v30')
        e(f's_sub_u32 s{SPIN}, s{SPIN}, 1'); e(f's_cbranch_scc1 {D_}')
        e('s_cmp_eq_u64 vcc, -1')
        if opt.poll_sleep:
            e(f's_cbranch_scc1 {D_}'); e(f's_sleep {opt.poll_sleep}'); e(f's_branch {L_}')
        else:
            e(f's_cbranch_scc0 {L_}')
        a.label(D_); a.vm = []
    def a_chunk(phase, c):
        for w in range(4):
            e(f's_mov_b32 m0, {hex(AREG + (c % 4) * 16384 + w * 4096)}')
            if phase == 'P7':
                last = None
                for k in range(4):
                    p_, i_ = divmod(4 * c + k, 7)
                    const = G_OFF + w * 57344 + (i_ - k) * 1024
                    if last != (p_, const):
                        e(f's_add_u32 s{T0s}, s{P7T+p_}, {hex(const & 0xffffffff)}'); last = (p_, const)
                    a.vmem(f'buffer_load_dwordx4 v{VAG}, {WS}, s{T0s} offen offset:{k*1024} sc1 lds', ('A', phase, c))
            else:
                if phase == 'P5':
                    va = VAH + 4 * c + w; e(f's_add_u32 s{T0s}, s{RA+c}, {hex(A0_OFF)}' if A0_OFF else f's_mov_b32 s{T0s}, s{RA+c}')
                elif phase == 'P3':
                    va = VAS; e(f's_add_u32 s{T0s}, s{RA+c}, s{U0}'); e(f's_add_u32 s{T0s}, s{T0s}, {hex(A0_OFF + w * 16384)}')
                else:
                    va = VAS; e(f's_add_u32 s{T0s}, s{RA+c}, {hex(A1_OFF + w * 16384)}')
                for k in range(4):
                    a.vmem(f'buffer_load_dwordx4 v{va}, {WS}, s{T0s} offen offset:{k*1024} sc1 lds', ('A', phase, c))
    e(f's_lshl_b32 s{U0}, s{S_G}, 1'); e(f's_add_u32 s{U0}, s{U0}, 1'); e(f's_lshl_b32 s{U0}, s{U0}, 14')

    dummy = [0]
    def wide(srd_s, soff_s):
        d = 64 + 4 * (dummy[0] % 40); dummy[0] += 1
        a.vmem(f'buffer_load_dwordx4 v[{d}:{d+3}], v{X0W}, {srd_s}, s{soff_s} offen {opt.touch_flags}', 'T')
    def mall_touch():
        for k in ['WO', 'W2', 'W4']:
            size = mats[k][1]; per = size // 256
            s = srds[k]
            e(f's_mul_i32 s{T0s}, s2, {per}')
            for i in range(per // 1024):
                if i: e(f's_add_u32 s{T0s}, s{T0s}, 1024')
                wide(f's[{s}:{s+3}]', T0s)
    def g_touch():
        e(f's_mul_i32 s{T0s}, s{S_G}, {16 * 57344}'); e(f's_mul_i32 s{T1s}, s{S_R}, 28672')
        e(f's_add_u32 s{T0s}, s{T0s}, s{T1s}'); e(f's_add_u32 s{T0s}, s{T0s}, {hex(G_OFF)}')
        for i in range(28):
            if i: e(f's_add_u32 s{T0s}, s{T0s}, 1024')
            wide(WS, T0s)
    def key(sx):
        k, p, c = sx.split(',')
        return (0, k, p, None if c == '-' else int(c))
    EPO = {'P3': 1, 'P4': 2, 'P5': 3, 'P7': 5}
    if opt.p7_self: del EPO['P7']
    nxt = 0
    for ev in events:
        L, kind, p, ci = ev
        if kind == 'B' and p in EPO:
            nch = NCH[p]
            if ci == 0:
                if p == 'P5': build_fh(L)
                poll({'P3': VFB, 'P4': VFS, 'P5': VFH, 'P7': VFB}[p], 1 + 6 * L + EPO[p])
                a_chunk(p, 0); a_chunk(p, 1); nxt = 2
            a.wait_vm(('A', p, ci))
            e('s_barrier')
            while nxt < nch and (nxt <= ci + 2 or nxt <= 3) and nxt <= ci + 2 + (1 if ci == 0 and False else 0):
                a_chunk(p, nxt); nxt += 1
        elif L == 0 and kind == 'B' and p == 'P1KV':
            a.wait_vm(('X', ci))
            e('s_barrier')
            if 1 <= ci <= 2: x_chunk(ci + 1)
            if ci == 3: x_tile()
        else:
            if ev == (0, 'E', 'P1KV', None): a.wait_vm('x')
            e('s_barrier')
        if opt.touch and opt.touch_at and ev == key(opt.touch_at): mall_touch()
        if opt.gtouch_at and ev == key(opt.gtouch_at) and not (opt.gtouch_parker and opt.park): g_touch()
    e('s_waitcnt vmcnt(0)')
    e('s_endpgm')


def gen_parker(a, opt, events, h):
    e = a.e
    a.c(f'--- parker {h}')
    plan = opt._plan
    W3S, W4S, CB6, CB7 = 40, 44, 64, 68
    for s_, p_, size in ((W3S, S_PTR + 12, 512 * 1792 * 2), (W4S, S_PTR + 14, 1792 * 512 * 2)):
        e(f's_mov_b32 s{s_}, s{p_}'); e(f's_mov_b32 s{s_+1}, s{p_+1}'); e(f's_mov_b32 s{s_+2}, {hex(size)}'); e(f's_mov_b32 s{s_+3}, 0x20000')
    rm = 3 if opt.rot else 0
    for c in range(4):
        e(f's_lshl_b32 s{CB6+c}, s{S_RB2}, 1'); e(f's_and_b32 s{CB6+c}, s{CB6+c}, {rm}'); e(f's_xor_b32 s{CB6+c}, s{CB6+c}, {c}')
        e(f's_mul_i32 s{CB6+c}, s{CB6+c}, {128*3584}')
    for p_ in range(8):
        e(f's_and_b32 s{CB7+p_}, s{S_RB}, {rm}'); e(f's_lshl_b32 s{CB7+p_}, s{CB7+p_}, 1'); e(f's_xor_b32 s{CB7+p_}, s{CB7+p_}, {p_}')
        e(f's_mul_i32 s{CB7+p_}, s{CB7+p_}, {224*1024}')
    VN, VW, VL, X0, X1, X2 = 2, 4, 8, 11, 12, 13
    e(f'v_lshrrev_b32 v{X0}, 3, v{V_LANE}'); e(f'v_bfe_u32 v{X1}, v{X0}, 1, 1'); e(f'v_lshlrev_b32 v{X1}, 2, v{X1}')
    e(f'v_and_b32 v{X2}, 7, v{V_LANE}'); e(f'v_xor_b32 v{X2}, v{X2}, v{X1}')
    e(f'v_lshlrev_b32 v{VN}, 10, v{X0}'); e(f'v_lshl_add_u32 v{VN}, v{X2}, 4, v{VN}')
    e(f's_lshl_b32 s33, s{S_CB}, 7'); e(f'v_add_u32 v{VN}, s33, v{VN}'); e(f'v_add_u32 v{VN+1}, {hex(8192-1024)}, v{VN}')
    ps = [0, 1, 2, 3] if h == 0 else [4, 5, 6]
    M14 = (1 << 20) // 14 + 1
    e(f's_mul_i32 s33, s{S_CB2}, 224'); e(f's_mov_b32 s34, {hex(M14)}')
    for k, p_ in enumerate(ps):
        e(f'v_add_u32 v{X0}, {64*p_}, v{V_LANE}'); e(f'v_mul_lo_u32 v{X1}, v{X0}, s34'); e(f'v_lshrrev_b32 v{X1}, 20, v{X1}')
        e(f'v_mul_u32_u24 v{X2}, 14, v{X1}'); e(f'v_sub_u32 v{X2}, v{X0}, v{X2}')
        e(f'v_mul_u32_u24 v{VW+k}, 3584, v{X1}'); e(f'v_lshl_add_u32 v{VW+k}, v{X2}, 4, v{VW+k}'); e(f'v_add_u32 v{VW+k}, s33, v{VW+k}')
    e(f'v_lshlrev_b32 v{VL}, 4, v{V_LANE}'); e(f'v_add_u32 v{VL+1}, 0x10000, v{VL}'); e(f'v_add_u32 v{VL+2}, 0x20000, v{VL}')
    def wide(base_expr_emit, n):
        base_expr_emit()
        for i in range(n):
            if i: e('s_add_u32 s33, s33, 1024')
            a.vmem(f'buffer_load_dwordx4 v[{240+4*(i%4)}:{243+4*(i%4)}], v{VL}, {WS}, s33 offen', 'T')
    def touch_a0():
        wide(lambda: (e(f's_mul_i32 s33, s{S_G}, {18*16384}'), e(f's_mul_i32 s34, s{S_R}, 9216'), e('s_add_u32 s33, s33, s34'), e(f's_add_u32 s33, s33, {hex(A0_OFF)}') if A0_OFF else None), 9)
    def touch_lin(off, per_group):
        wide(lambda: (e(f's_mul_i32 s33, s{S_G}, {per_group}'), e(f's_mul_i32 s34, s{S_R}, {per_group // 32}'), e('s_add_u32 s33, s33, s34'), e(f's_add_u32 s33, s33, {hex(off)}')), per_group // 32 // 1024)
    def tkey(sx):
        k, p, c = sx.split(',')
        return (0, k, p, None if c == '-' else int(c))
    slots = list(range(56))
    held = {}
    pending = set()
    def do(actions):
        for act, s_ in actions:
            if act == 'park':
                if s_.kind == 'W3':
                    c_, rr_ = divmod(s_.srow, 128)
                    e(f's_add_u32 s33, s{CB6+c_}, {hex(rr_*3584)}')
                    regs = []
                    for k, p_ in enumerate(ps):
                        sl = slots.pop(0); regs.append((sl, p_))
                        a.vmem(f'buffer_load_dwordx4 v[{16+4*sl}:{19+4*sl}], v{VW+k}, s[{W3S}:{W3S+3}], s33 offen', id(s_))
                else:
                    srow = s_.srow if h == 0 else s_.srow2
                    p_, rr_ = divmod(srow, 224)
                    e(f's_add_u32 s33, s{CB7+p_}, {hex(rr_*1024)}')
                    regs = []
                    for k in range(2):
                        sl = slots.pop(0); regs.append((sl, 2 * h + k))
                        a.vmem(f'buffer_load_dwordx4 v[{16+4*sl}:{19+4*sl}], v{VN+k}, s[{W4S}:{W4S+3}], s33 offen offset:{k*1024}', id(s_))
                held[id(s_)] = regs
            else:
                a.wait_vm(id(s_))
                for sl, p_ in held.pop(id(s_)):
                    ad = s_.addr + p_ * 1024
                    e(f'ds_write_b128 v{VL + (ad >> 16)}, v[{16+4*sl}:{19+4*sl}] offset:{ad & 0xffff}')
                    slots.append(sl)
                pending.add((s_.layer, s_.phase, s_.chunk))
    for ev in events:
        L, kind, p, ci = ev
        if kind == 'B':
            do(plan.get(f'pre {L}.{p}.B{ci}', []))
            if (L, p, ci) in pending:
                e('s_waitcnt lgkmcnt(0)'); pending.clear()
            e('s_barrier')
            acts = plan.get(f'{L}.{p}.B{ci}', [])
        elif kind == 'E':
            e('s_barrier'); acts = plan.get(f'{L}.{p}.E', [])
        else:
            e('s_barrier'); acts = plan.get(f'{L}.{p}', [])
        do([x for x in acts if x[0] == 'unpark'])
        do([x for x in acts if x[0] == 'park'])
        if opt.pretouch and h == 1 and ev == tkey(opt.a2touch_at): touch_lin(A2_OFF, 262144)
        if opt.gtouch_parker and opt.gtouch_at and ev == tkey(opt.gtouch_at):
            wide(lambda: (e(f's_mul_i32 s33, s{S_G}, {16*57344}'), e(f's_mul_i32 s34, s{S_R}, 28672'), e('s_add_u32 s33, s33, s34'),
                          e(f's_add_u32 s33, s33, {hex(G_OFF + h * 14336)}')), 14)
        if opt.pretouch and ev == tkey(opt.a01touch_at):
            if h == 0:
                touch_a0(); touch_lin(ST_OFF, 32768)
            else:
                touch_lin(A1_OFF, 262144)
    e('s_waitcnt vmcnt(0) lgkmcnt(0)')
    e('s_endpgm')


def generate(opt):
    ATOMIC[0] = opt.kv_atomic
    events = build_events(opt.stop)
    a = Asm(); a.opt = opt
    hdr = open(os.path.join(os.path.dirname(os.path.abspath(__file__)), 'header.txt')).read()
    out = [hdr.rstrip('\n')]
    out.append(f'; @launch grid=(256,1,1) block=({64*(8 if opt.park else 6)},1,1) lds={LDS_TOTAL}')
    out += ['.amdgcn_target "amdgcn-amd-amdhsa--gfx950"', '.text', f'.globl {KNAME}', '.p2align 8',
            f'.type {KNAME},@function', f'{KNAME}:']
    a.e('s_cmp_ge_u32 s2, 256')
    a.e('s_cbranch_scc1 L_EXIT')
    if opt.startdiag: a.e('s_memtime s[100:101]')
    if opt.wall:
        a.e('s_memrealtime s[18:19]') if False else None
    a.e(f's_load_dwordx16 s[{S_PTR}:{S_PTR+15}], s[0:1], 0')
    a.e(f's_load_dwordx4 s[{S_PTR+16}:{S_PTR+19}], s[0:1], 64')
    a.e(f's_load_dwordx2 s[{S_PTR+20}:{S_PTR+21}], s[0:1], 80')
    a.e('v_lshrrev_b32 v1, 6, v0')
    a.e('s_nop 0')
    if opt.prefetch_code:
        a.e('s_getpc_b64 s[34:35]')
        a.label('L_PC')
        a.e(f's_sub_u32 s34, s34, (L_PC - {KNAME})')
        a.e('s_subb_u32 s35, s35, 0')
        a.e('s_lshr_b32 s36, s2, 3')
        a.e('s_mul_i32 s36, s36, 2560')
        a.e('v_lshlrev_b32 v2, 7, v0')
        a.e('v_add_u32 v2, s36, v2')
        a.e(f's_mov_b32 s36, (L_CODE_END - {KNAME} - 4)')
        a.e('v_min_u32 v2, s36, v2')
        a.e('v_and_b32 v2, -4, v2')
        a.e('v_cmp_gt_u32 vcc, 20, v0')
        a.e('s_and_saveexec_b64 s[36:37], vcc')
        a.e('s_cbranch_execz L_NOPF')
        a.e('global_load_dword v255, v2, s[34:35]')
        a.label('L_NOPF')
        a.e('s_mov_b64 exec, s[36:37]')
    a.e(f'v_readfirstlane_b32 s{S_W}, v1')
    a.e(f'v_and_b32 v{V_LANE}, 63, v0')
    a.e(f's_getreg_b32 s{S_XCC}, hwreg(HW_REG_XCC_ID)')
    a.e(f's_and_b32 s{S_XCC}, s{S_XCC}, 7')
    a.e(f's_and_b32 s{S_G}, s2, 7')
    a.e(f's_lshr_b32 s{S_R}, s2, 3')
    a.e(f's_lshr_b32 s{S_RB}, s{S_R}, 3')
    a.e(f's_and_b32 s{S_CB}, s{S_R}, 7')
    a.e(f's_lshr_b32 s{S_RB2}, s{S_R}, 4')
    a.e(f's_and_b32 s{S_CB2}, s{S_R}, 15')
    a.e('s_waitcnt lgkmcnt(0)')
    if opt.ws_base:
        a.e(f's_add_u32 s{S_PTR+20}, s{S_PTR+20}, {hex(opt.ws_base)}')
        a.e(f's_addc_u32 s{S_PTR+21}, s{S_PTR+21}, 0')
    a.e(f's_add_u32 s34, s{S_PTR+20}, {hex(NONCE_OFF)}')
    a.e(f's_addc_u32 s35, s{S_PTR+21}, 0')
    a.e(f's_load_dword s{S_V}, s[34:35], 0')
    def srd(s, p, size):
        a.e(f's_mov_b32 s{s}, s{p}'); a.e(f's_mov_b32 s{s+1}, s{p+1}')
        a.e(f's_mov_b32 s{s+2}, {hex(size)}'); a.e(f's_mov_b32 s{s+3}, 0x20000')
    if opt.dbgout >= 0:
        a.e(f's_mov_b32 s86, s{S_PTR+18}'); a.e(f's_mov_b32 s87, s{S_PTR+19}')
    srd(S_WS, S_PTR + 20, WS_USED)
    srd(S_X, S_PTR + 0, 2048 * 512 * 2)
    srd(S_OUT, S_PTR + 16, 2048 * 512 * 2)
    a.e(f's_cmp_lt_u32 s{S_W}, 4')
    a.e('s_cbranch_scc1 L_COMPUTE')
    if opt.park:
        for wv in (6, 7):
            a.e(f's_cmp_eq_u32 s{S_W}, {wv}')
            a.e(f's_cbranch_scc0 L_NOTP{wv}')
            a.e('s_getpc_b64 s[34:35]')
            a.label(f'L_PCP{wv}')
            a.e(f's_add_u32 s34, s34, (L_PARKER{wv} - L_PCP{wv})')
            a.e('s_addc_u32 s35, s35, 0')
            a.e('s_setpc_b64 s[34:35]')
            a.label(f'L_NOTP{wv}')
    a.e(f's_cmp_eq_u32 s{S_W}, 5')
    a.e('s_cbranch_scc0 L_GOLOADER')
    a.e('s_getpc_b64 s[34:35]')
    a.label('L_PC3')
    a.e('s_add_u32 s34, s34, (L_TOUCHER - L_PC3)')
    a.e('s_addc_u32 s35, s35, 0')
    a.e('s_setpc_b64 s[34:35]')
    a.label('L_GOLOADER')
    a.e('s_getpc_b64 s[34:35]')
    a.label('L_PC2')
    a.e('s_add_u32 s34, s34, (L_LOADER - L_PC2)')
    a.e('s_addc_u32 s35, s35, 0')
    a.e('s_setpc_b64 s[34:35]')
    a.label('L_EXIT')
    a.e('s_endpgm')
    a.label('L_COMPUTE')
    a.vm = []
    if opt.stop is not None and opt.stop[0] == 0: cev = events
    else: cev = [e for e in build_events(None) if e[0] == 0]
    rest = gen_compute(a, opt, cev)
    assert not rest, rest
    a.label('L_LOADER')
    a.vm = []
    a.fstamp = lambda p: None
    gen_loader(a, opt, events)
    a.label('L_TOUCHER')
    a.vm = []
    gen_toucher(a, opt, events)
    if opt.park:
        for wv in (6, 7):
            a.label(f'L_PARKER{wv}')
            a.vm = []
            gen_parker(a, opt, events, wv - 6)
    a.label('L_CODE_END')
    out.append(a.text())
    out += ['.section .rodata,"a"', '.p2align 6', f'.amdhsa_kernel {KNAME}',
            '  .amdhsa_next_free_vgpr 256', '  .amdhsa_next_free_sgpr 102', '  .amdhsa_accum_offset 256',
            '  .amdhsa_group_segment_fixed_size 0', '  .amdhsa_kernarg_size 88', '  .amdhsa_user_sgpr_count 2',
            '  .amdhsa_user_sgpr_kernarg_segment_ptr 1', '  .amdhsa_system_sgpr_workgroup_id_x 1', '.end_amdhsa_kernel']
    return '\n'.join(out) + '\n'


if __name__ == '__main__':
    import argparse
    ap = argparse.ArgumentParser()
    ap.add_argument('-o', default='interleave_layers__linear_attn_block__mixer_s_mlp__prompt.s')
    ap.add_argument('--stop', default=None)
    ap.add_argument('--timing', action='store_true')
    ap.add_argument('--safe', action='store_true')
    ap.add_argument('--set', action='append', default=[])
    ap.add_argument('--fine', default=None)
    args = ap.parse_args()
    opt = Opt()
    if args.stop:
        l, p = args.stop.split(','); opt.stop = (int(l), p)
    opt.timing = args.timing; opt.force_safe = args.safe; opt.fine = args.fine
    opt.caps = dict(Opt.caps); opt.park_w3 = dict(Opt.park_w3); opt.park_caps = dict(Opt.park_caps)
    for kv in args.set:
        k, v = kv.split('=')
        if k.startswith('pk3:'): opt.park_w3[k[4:]] = int(v)
        elif k.startswith('pk4:'): opt.park_caps[k[4:]] = int(v)
        elif '.' in k or k in ('X1', 'X2'): opt.caps[k] = int(v)
        else:
            try: setattr(opt, k, int(v))
            except ValueError: setattr(opt, k, v.replace(':', ','))
    open(args.o, 'w').write(generate(opt))
    print('written', args.o)
    if os.environ.get('SCHED'):
        import itertools
        for k, g in itertools.groupby(opt._log, key=lambda x: x[0]):
            g = list(g); d = {}
            for x in g: d[(x[1], x[2], x[3])] = d.get((x[1], x[2], x[3]), 0) + 1
            print(k, ' '.join(f'{a_}.{b_}.c{c_}x{n_}' for (a_, b_, c_), n_ in d.items()), 'FORCED' if any(x[4] for x in g) else '')
```

```python
import sys, os, struct

KNAME = 'interleave_layers__linear_attn_block__mixer_s_mlp__prompt_kernel'

class Opt:
    stop = None
    timing = False
    fine = None
    force_safe = False
    window = 40
    window0 = 60
    caps = {'P1KV.E': 64, 'P1Q.B0': 16, 'P1Q.B1': 16, 'P1Q.E': 32,
            'P3.B0': 0, 'P3.B1': 32, 'P3.B2': 16, 'P3.B3': 16,
            'P4.B1': 32, 'P4.B2': 16, 'P4.B3': 16,
            'P5.B1': 35, 'P5.B2': 14, 'P5.B3': 21,
            'P6.B0': 35, 'P6.B1': 28, 'P6.B2': 28, 'P6.B3': 28, 'P6.E': 64,
            'P7.B*': 16, 'P7.E': 64}
    cap0 = 0
    touch = True
    dbg_w_same = 0
    w_nt = 0
    g_cold = 0
    touch_at = 'B,P1Q,0'
    rot = 1
    cs_late = 1
    poll_sleep = 0
    dbgout = -1
    dbgwg = 100
    pretouch = 1
    a2touch_at = 'B,P6,3'
    a01touch_at = 'B,P1KV,2'
    gtouch_parker = 1
    park = 1
    park_w3 = {'P1KV.E': 2, 'X1': 2, 'P1Q.E': 8}
    park_caps = {'P6.B1': 0, 'P6.B2': 0, 'P6.B3': 0, 'P6.E': 0}
    unpark_max = 6
    kv_atomic = 1
    wall = 0
    p7_self = 1
    dbg_skip = ''
    ws_base = 0
    late_a = 0
    kvflag_at = 5
    up3 = 1
    startdiag = 0
    gtouch_at = 'B,P5,2'
    dbg_a_same = 0
    touch_flags = ''
    spin = 1 << 17
    prefetch_code = True
    D_kv = 4
    D_p6 = 4

MB = 1 << 20
A0_OFF = 0
A1_OFF = 0x280000
A2_OFF = 0x480000
G_OFF = 0x680000
ST_OFF = 0xD80000
KVP_OFF = 0xDC0000
KVP_L = 0x88000
KVA_OFF = 0xED0000
LSTRIDE = 0x780000
FL_OFF = 0xF00000
LF_OFF = FL_OFF
KVF_OFF = FL_OFF + 4096
HF_OFF = FL_OFF + 8192
XID_OFF = FL_OFF + 29696
NONCE_OFF = FL_OFF + 30720
TM_OFF = FL_OFF + 32768
CSP_OFF = FL_OFF + 32768 + 65536
CSF_OFF = CSP_OFF + 65536
WS_USED = CSF_OFF + 32768
KVREC = 2176

LDS_TOTAL = 163840
AREG = 0
SCR = 49152
CSL = None
WRING = 65536
RING = 93952
PHI = 53248
CSL = WRING + 28672
CSC = WRING + RING
assert CSC + 1088 <= LDS_TOTAL

EPS = 1e-5

def f2u(x):
    return struct.unpack('<I', struct.pack('<f', x))[0]

class Asm:
    def __init__(self):
        self.lines = []; self.nlabel = 0; self.vm = []
        self.fstamp = lambda p: None
    def e(self, s): self.lines.append('  ' + s)
    def c(self, s): self.lines.append('  ; ' + s)
    def label(self, name): self.lines.append(name + ':')
    def newlabel(self, base='L'):
        self.nlabel += 1
        return f'{base}_{self.nlabel}'
    def vmem(self, s, tag=None):
        self.e(s); self.vm.append(tag)
    def count_vm(self, tag):
        if tag not in self.vm: return None
        idx = max(i for i, t in enumerate(self.vm) if t == tag)
        n = len(self.vm) - 1 - idx
        assert n <= 63, n
        self.vm = self.vm[idx + 1:]
        return n
    def wait_vm(self, tag):
        n = self.count_vm(tag)
        if n is not None: self.e(f's_waitcnt vmcnt({n})')
    def wait_vm_all(self):
        self.e('s_waitcnt vmcnt(0)'); self.vm = []
    def text(self): return '\n'.join(self.lines)

def set_exec(a, lo, hi=None):
    a.e(f's_mov_b32 exec_lo, {hex(lo)}')
    a.e(f's_mov_b32 exec_hi, {hex(lo if hi is None else hi)}')

S_V = 3
S_WS = 4; S_X = 8; S_OUT = 12; S_PA = 16
S_G, S_R, S_W, S_RB, S_CB, S_RB2, S_CB2 = 20, 21, 22, 23, 24, 25, 26
S_MODE, S_L, S_LOFF, S_EP, S_B, S_XCC = 27, 28, 29, 30, 31, 32
S_T0, S_T1, S_T2, S_T3, S_T4, S_T5 = 33, 34, 35, 36, 37, 38
S_SPIN, S_THR = 39, 40
S_AOFF, S_AOFF2, S_ASTR = 41, 42, 43
S_C1, S_C2, S_ONE2 = 44, 46, 48
S_LOG2E, S_EPS6 = 50, 51
S_W4K = 52
S_RH, S_CH = 53, 54
S_U0, S_U1, S_U2, S_U3, S_U4 = 55, 56, 57, 58, 59
S_COLD = 62
S_GH = 63
S_RA = 86
S_RK = 90
S_P7 = 94
S_ROTK = 45
S_PTR = 64
S_WQKV, S_WO, S_W1, S_W2, S_W3, S_W4 = 40, 44, 48, 52, 56, 60
S_CSRD = 88

V_LANE = 0
V_AS, V_AB, V_AG, V_P1 = 1, 2, 3, 4
V_AH = 5
V_STS, V_STB, V_STST, V_XRM, V_TST = 9, 10, 11, 12, 13
V_FSB, V_FBS, V_FSS, V_FH, V_FOWN, V_FKV = 14, 15, 16, 17, 18, 19
V_T128, V_T64, V_T224, V_TN, V_TA = 20, 21, 22, 23, 24
V_T0, V_T1, V_T2 = 25, 26, 27
V_TB = 28
V_RES = 32
V_MEAN, V_RS = 48, 49
V_X = 50
V_PQ = 56
V_ACC = 64
V_A = 128

PHASES = ['P1KV', 'P1Q', 'P3', 'P4', 'P5', 'P6', 'P7']
NCH = {'P1KV': 4, 'P1Q': 2, 'P3': 4, 'P4': 4, 'P5': 4, 'P6': 4, 'P7': 14}

ATOMIC = [1]
NOE = ('P3', 'P4', 'P5')

class Slab:
    def __init__(self, layer, phase, chunk, kind, size, srow, npieces, srow2=None):
        self.layer, self.phase, self.chunk, self.kind = layer, phase, chunk, kind
        self.size, self.srow, self.npieces, self.srow2 = size, srow, npieces, srow2
        self.addr = None

def w4_tile_seq():
    seq = []
    for c in range(8):
        for i in [0, 1, 2, 3, 4, 5, 7, 8, 9, 10, 11, 12, 6, 13]:
            seq.append(14 * c + i)
    return seq

def build_slabs(layer):
    ph = {}
    def simple(phase, kind, nchunk, per, size, rows, np_):
        ph[phase] = [[Slab(layer, phase, c, kind, size, (c * per + j) * rows, np_) for j in range(per)] for c in range(nchunk)]
    simple('P1KV', 'KV', 4, 4, 4096, 32, 4)
    simple('P1Q', 'Q', 2, 4, 4096, 64, 4)
    simple('P3', 'WO', 4, 4, 4096, 32, 4)
    simple('P4', 'W1', 4, 4, 4096, 32, 4)
    simple('P5', 'W2', 4, 4, 4096, 32, 4)
    simple('P6', 'W3', 4, 4, 7168, 32, 7)
    seq = w4_tile_seq()
    ph['P7'] = [[Slab(layer, 'P7', c, 'W4', 4096, seq[2 * (c * 4 + j)] * 16, 4, srow2=seq[2 * (c * 4 + j) + 1] * 16)
                 for j in range(4)] for c in range(14)]
    pos = PHI
    for p in PHASES:
        for ch in ph[p]:
            for s in ch:
                if pos + s.size > RING: pos = 0
                s.addr = WRING + pos
                pos += s.size
    assert pos == PHI, pos
    return ph

def build_events(stop):
    ev = []
    for L in range(2):
        for p in PHASES:
            for c in range(NCH[p]): ev.append((L, 'B', p, c))
            if p not in NOE: ev.append((L, 'E', p, None))
            if p == 'P1KV': ev.append((L, 'X', 'X1', None))
            if p == 'P1Q' and not ATOMIC[0]: ev.append((L, 'X', 'X2', None))
            if stop == (L, p): return ev
    return ev

WS = f's[{S_WS}:{S_WS+3}]'

def thr_value(a, dst, epoch, xcc=False):
    if isinstance(epoch, int):
        a.e(f's_add_u32 s{dst}, s{S_B}, {8*epoch}')
    else:
        a.e(f's_lshl_b32 s{dst}, {epoch}, 3')
        a.e(f's_add_u32 s{dst}, s{dst}, s{S_B}')
    if xcc: a.e(f's_add_u32 s{dst}, s{dst}, s{S_XCC}')

def emit_poll(a, vaddr, epoch, soff='0', opt=Opt, x4=False, tbase=None):
    L = a.newlabel('POLL'); D = a.newlabel('POLLD')
    thr_value(a, S_THR, epoch)
    a.e(f's_mov_b32 s{S_SPIN}, {opt.spin}')
    a.label(L)
    if x4:
        T = tbase
        a.e(f'buffer_load_dwordx4 v[{T}:{T+3}], v{vaddr}, {WS}, {soff} offen sc1')
        a.e('s_waitcnt vmcnt(0)')
        for i in range(4): a.e(f'v_subrev_u32 v{T+i}, s{S_THR}, v{T+i}')
        a.e(f'v_max_u32 v{T}, v{T}, v{T+1}')
        a.e(f'v_max_u32 v{T+2}, v{T+2}, v{T+3}')
        a.e(f'v_max_u32 v{V_T0}, v{T}, v{T+2}')
    else:
        a.e(f'buffer_load_dword v{V_T2}, v{vaddr}, {WS}, {soff} offen sc1')
        a.e('s_waitcnt vmcnt(0)')
        a.e(f'v_subrev_u32 v{V_T0}, s{S_THR}, v{V_T2}')
    a.vm = []
    a.e(f'v_cmp_gt_u32 vcc, 0x80, v{V_T0}')
    a.e(f's_sub_u32 s{S_SPIN}, s{S_SPIN}, 1')
    a.e(f's_cbranch_scc1 {D}')
    a.e('s_cmp_eq_u64 vcc, -1')
    if opt.poll_sleep:
        a.e(f's_cbranch_scc1 {D}')
        a.e(f's_sleep {opt.poll_sleep}')
        a.e(f's_branch {L}')
    else:
        a.e(f's_cbranch_scc0 {L}')
    a.label(D)

def emit_mode_stores(a, stores, cold=False):
    F = a.newlabel('STF'); D = a.newlabel('STD')
    if getattr(a, 'opt', None) is not None and a.opt.pretouch and a.opt.park: cold = False
    a.e(f's_cmp_eq_u32 s{S_COLD if cold else S_MODE}, 0')
    a.e(f's_cbranch_scc1 {F}')
    for s in stores: a.e(s + ' sc1')
    a.e(f's_branch {D}')
    a.label(F)
    for s in stores: a.e(s)
    a.label(D)
    for s in stores: a.vm.append('st')

def emit_signal(a, epoch):
    thr_value(a, S_THR, epoch, xcc=True)
    a.e(f'v_mov_b32 v{V_T0}, s{S_THR}')
    a.wait_vm_all()
    a.e('s_mov_b64 exec, 1')
    emit_mode_stores(a, [f'buffer_store_dword v{V_T0}, v{V_FOWN}, {WS}, 0 offen'])
    a.e('s_mov_b64 exec, -1')

def emit_xreduce(a, regs, tmp, over16=True):
    for r, t in zip(regs, tmp): a.e(f'v_mov_b32 v{t}, v{r}')
    a.e('s_nop 1')
    for r, t in zip(regs, tmp): a.e(f'v_permlane32_swap_b32 v{r}, v{t}')
    a.e('s_nop 0')
    for r, t in zip(regs, tmp): a.e(f'v_add_f32 v{r}, v{r}, v{t}')
    if over16:
        for r, t in zip(regs, tmp): a.e(f'v_mov_b32 v{t}, v{r}')
        a.e('s_nop 1')
        for r, t in zip(regs, tmp): a.e(f'v_permlane16_swap_b32 v{r}, v{t}')
        a.e('s_nop 0')
        for r, t in zip(regs, tmp): a.e(f'v_add_f32 v{r}, v{r}, v{t}')

def pk(op, d, x, y, z=None, mods=''):
    s = f'v_pk_{op}_f32 v[{d}:{d+1}], {x}, {y}'
    if z is not None: s += f', {z}'
    return s + mods
def vp(r): return f'v[{r}:{r+1}]'

def emit_stats_partial32(a, vals, t0, st_soff, cold=False):
    s, q = t0, t0 + 2
    a.e(pk('add', s, vp(vals), vp(vals + 2)))
    a.e(pk('mul', q, vp(vals), vp(vals)))
    a.e(pk('fma', q, vp(vals + 2), vp(vals + 2), vp(q)))
    for i in range(4, 16, 2):
        a.e(pk('add', s, vp(s), vp(vals + i)))
        a.e(pk('fma', q, vp(vals + i), vp(vals + i), vp(q)))
    a.e(f'v_add_f32 v{t0}, v{s}, v{s+1}')
    a.e(f'v_add_f32 v{t0+1}, v{q}, v{q+1}')
    emit_xreduce(a, [t0, t0 + 1], [t0 + 4, t0 + 5], over16=False)
    set_exec(a, 0xffffffff, 0)
    emit_mode_stores(a, [f'buffer_store_dwordx2 v[{t0}:{t0+1}], v{V_STST}, {WS}, {st_soff} offen'], cold=cold)
    a.e('s_mov_b64 exec, -1')

def emit_stats_from_sums(a, s, ss, out_a, out_b, tmp, double=False, keep=None):
    mean, var = s, ss
    a.e(f'v_mul_f32 v{mean}, {hex(f2u(1.0/512))}, v{s}')
    a.e(f'v_mul_f32 v{var}, {hex(f2u(1.0/512))}, v{ss}')
    a.e(f'v_fma_f32 v{var}, -v{mean}, v{mean}, v{var}')
    a.e(f'v_max_f32 v{var}, 0, v{var}')
    a.e(f'v_add_f32 v{tmp}, {hex(f2u(EPS))}, v{var}')
    a.e(f'v_rsq_f32 v{tmp}, v{tmp}')
    a.e('s_nop 0')
    if double:
        a.e(f'v_mul_f32 v{tmp+1}, v{tmp}, v{tmp}')
        a.e(f'v_mul_f32 v{tmp+1}, v{tmp+1}, v{var}')
        a.e(f'v_add_f32 v{tmp+1}, {hex(f2u(EPS))}, v{tmp+1}')
        a.e(f'v_rsq_f32 v{tmp+1}, v{tmp+1}')
        a.e('s_nop 0')
        a.e(f'v_mul_f32 v{out_a}, v{tmp}, v{tmp+1}')
    else:
        a.e(f'v_mov_b32 v{out_a}, v{tmp}')
    if keep:
        a.e(f'v_mov_b32 v{keep[0]}, v{mean}')
        a.e(f'v_mov_b32 v{keep[1]}, v{tmp}')
    a.e(f'v_mul_f32 v{out_b}, v{out_a}, v{mean}')
    a.e(f'v_sub_f32 v{out_b}, 0, v{out_b}')

def emit_sum_partials(a, raw, n):
    k = n
    step = 2
    regs = [raw + i for i in range(0, n, 2)]
    while len(regs) > 1:
        nxt = []
        for i in range(0, len(regs), 2):
            a.e(pk('add', regs[i], vp(regs[i]), vp(regs[i + 1])))
            nxt.append(regs[i])
        regs = nxt

def emit_lnfold(a, acc, cs, av, bv, n):
    for i in range(0, n, 2):
        a.e(pk('mul', acc + i, vp(acc + i), vp(av), mods=' op_sel_hi:[1,0]'))
    for i in range(0, n, 2):
        a.e(pk('fma', acc + i, vp(cs + i), vp(bv), vp(acc + i), mods=' op_sel_hi:[1,0,1]'))

def emit_gelu(a, x, n, tmp, c1reg):
    blk = 16
    a.e(f'v_mov_b32 v{c1reg}, s{S_C1}')
    for b0 in range(0, n, blk):
        m = min(blk, n - b0); t = tmp
        for i in range(0, m, 2): a.e(pk('mul', t + i, vp(x + b0 + i), vp(x + b0 + i)))
        for i in range(0, m, 2): a.e(pk('fma', t + i, vp(t + i), f's[{S_C2}:{S_C2+1}]', vp(c1reg), mods=' op_sel_hi:[1,1,0]'))
        for i in range(0, m, 2): a.e(pk('mul', t + i, vp(t + i), vp(x + b0 + i)))
        for i in range(m): a.e(f'v_exp_f32 v{t+i}, v{t+i}')
        for i in range(0, m, 2): a.e(pk('add', t + i, vp(t + i), f's[{S_ONE2}:{S_ONE2+1}]'))
        for i in range(m): a.e(f'v_rcp_f32 v{t+i}, v{t+i}')
        for i in range(0, m, 2): a.e(pk('mul', x + b0 + i, vp(x + b0 + i), vp(t + i)))

def emit_phi(a, regs, tmp):
    for i, r in enumerate(regs): a.e(f'v_min_f32 v{tmp+i}, 0, v{r}')
    for i, r in enumerate(regs): a.e(f'v_mul_f32 v{tmp+i}, s{S_LOG2E}, v{tmp+i}')
    for i, r in enumerate(regs): a.e(f'v_exp_f32 v{tmp+i}, v{tmp+i}')
    for i, r in enumerate(regs): a.e(f'v_max_f32 v{r}, 0, v{r}')
    for i, r in enumerate(regs): a.e(f'v_add_f32 v{r}, v{r}, v{tmp+i}')
    for i, r in enumerate(regs): a.e(f'v_add_f32 v{r}, s{S_EPS6}, v{r}')

def emit_pack(a, dst, src, n):
    for i in range(0, n, 2): a.e(f'v_cvt_pk_bf16_f32 v{dst+i//2}, v{src+i}, v{src+i+1}')

def emit_pack32(a, dst, src):
    for k, j in enumerate([0, 2, 1, 3]):
        a.e(f'v_cvt_pk_bf16_f32 v{dst+2*k}, v{src+4*j}, v{src+4*j+1}')
        a.e(f'v_cvt_pk_bf16_f32 v{dst+2*k+1}, v{src+4*j+2}, v{src+4*j+3}')

class TrBase:
    def __init__(self, a, lane_reg, nt):
        self.a, self.lane_reg, self.nt, self.cur = a, lane_reg, nt, None
    def off(self, addr, span):
        if self.cur is None or addr < self.cur or addr + span - self.cur > 65535:
            self.cur = addr
            for t in range(self.nt):
                if t == 0:
                    self.a.e(f'v_add_u32 v{V_TB}, {hex(addr)}, v{self.lane_reg}')
                else:
                    self.a.e(f'v_xor_b32 v{V_TB+t}, {t << 5}, v{self.lane_reg}')
                    self.a.e(f'v_add_u32 v{V_TB+t}, {hex(addr)}, v{V_TB+t}')
        return addr - self.cur

def emit_gemm16(a, bar, phase, chunks, CT, kind, acc_of, a_of, a_wait, a_issue, wr, S, normal=False, extra=None, a_lds=None):
    R, LA = 2, 4
    ks = []
    for ci, ch in enumerate(chunks):
        first = True
        for s in ch:
            ks.append((ci, s.addr, first)); first = False
            if kind == '64': ks.append((ci, s.addr + 2048, False))
    KS = len(ks)
    if kind == '128':
        trb = TrBase(a, V_T128, 4); second = 2048; span = 4096; tb = lambda t: V_TB + t; timm = lambda t: 0
    elif kind == '64':
        trb = TrBase(a, V_T64, 2); second = 1024; span = 2048; tb = lambda t: V_TB + t; timm = lambda t: 0
    else:
        trb = TrBase(a, V_T224, 1); second = 3584; span = 7168; tb = lambda t: V_TB; timm = lambda t: 32 * t
    total = KS * CT
    def slot(n): return wr + 4 * (n % S)
    def pre_issue(n):
        j, t = divmod(n, CT)
        ci, addr, first = ks[j]
        if t == 0 and first:
            a.fstamp(phase); bar(('B', phase, ci)); a.fstamp(phase)
        imm = trb.off(addr, span) if t == 0 else addr - trb.cur
        return imm + timm(t), t
    def rd(n, half, info):
        imm, t = info
        a.e(f'ds_read_b64_tr_b16 v[{slot(n)+2*half}:{slot(n)+2*half+1}], v{tb(t)} offset:{imm + (second if half else 0)}')
    def mfma(m, r):
        j, t = divmod(m, CT)
        d = acc_of(r, t); c = '0' if j == 0 else f'v[{d}:{d+3}]'
        w = f'v[{slot(m)}:{slot(m)+3}]'; x = f'v[{a_of(r,j)}:{a_of(r,j)+3}]'
        a.e(f'v_mfma_f32_16x16x32_bf16 v[{d}:{d+3}], ' + (f'{x}, {w}' if normal else f'{w}, {x}') + f', {c}')
    lq = []
    def need(tags):
        idx = max((i for i, g in enumerate(lq) if g in tags), default=None)
        if idx is None: return None
        n_ = len(lq) - 1 - idx
        del lq[:idx + 1]
        assert n_ <= 15
        return n_
    def pre2(n):
        info = pre_issue(n)
        j, t = divmod(n, CT)
        if a_lds and t == 0:
            for s_ in a_lds(j):
                a.e(s_); lq.append(('A', j))
        return info
    def rd2(n, half, info):
        rd(n, half, info); lq.append(('W', n))
    for n in range(min(LA, total)):
        info = pre2(n); rd2(n, 0, info); rd2(n, 1, info)
    for n in range(total):
        j, t = divmod(n, CT)
        lg = need({('W', n), ('A', j)})
        vmn = a_wait(j) if t == 0 else None
        if t == 0 and j in (0, 1): a.fstamp(phase)
        parts = ([f'vmcnt({vmn})'] if vmn is not None else []) + ([f'lgkmcnt({lg})'] if lg is not None else [])
        if parts: a.e('s_waitcnt ' + ' '.join(parts))
        nx = n + LA; info = None
        mfma(n, 0)
        if nx < total:
            info = pre2(nx); rd2(nx, 0, info)
        mfma(n, 1)
        if nx < total: rd2(nx, 1, info)
        a_issue(j, t)
        if extra and t == CT - 1: extra(j)
    a.fstamp(phase); bar(('E', phase, None)); a.fstamp(phase)
    a.e('s_nop 7')

def emit_gemm32(a, bar, phase, chunks, acc, wr, tail=None, a_pieces=None):
    LA, S = 4, 5
    nch = len(chunks)
    total = nch * 8
    trb = TrBase(a, V_TN, 1)
    def slot(n): return wr + 8 * (n % S)
    def reads(n):
        c, rem = divmod(n, 8); ksl, s = divmod(rem, 2)
        out = []
        if rem == 0:
            if a_pieces: a.wait_vm(('A', c))
            a.fstamp(phase); bar(('B', phase, c)); a.fstamp(phase)
        sl = chunks[c][ksl]
        imm = trb.off(sl.addr, 4096)
        out.append(f'ds_read_b128 v[{slot(n)}:{slot(n)+3}], v{V_TA} offset:{(c % 4) * 16384 + ksl * 1024 + s * 512}')
        out.append(f'ds_read_b64_tr_b16 v[{slot(n)+4}:{slot(n)+5}], v{V_TB} offset:{imm + s * 1024}')
        out.append(f'ds_read_b64_tr_b16 v[{slot(n)+6}:{slot(n)+7}], v{V_TB} offset:{imm + s * 1024 + 2048}')
        return out
    queue = []; nxt = 2; passed = 0
    if a_pieces:
        for c in (0, 1):
            for t in a_pieces(c): t()
    for n in range(LA):
        for s in reads(n): a.e(s)
    for n in range(total):
        lg = 3 * (min(n - 1 + LA, total - 1) - n)
        a.e(f's_waitcnt lgkmcnt({lg})')
        c = '0' if n == 0 else f'v[{acc}:{acc+15}]'
        a.e(f'v_mfma_f32_32x32x16_bf16 v[{acc}:{acc+15}], v[{slot(n)+4}:{slot(n)+7}], v[{slot(n)}:{slot(n)+3}], {c}')
        nx = n + LA
        if nx < total:
            if nx % 8 == 0: passed = nx // 8
            for s in reads(nx): a.e(s)
        if a_pieces:
            while nxt < nch and (nxt <= passed + 2 or nxt <= 3) and len(queue) < 4:
                queue += list(a_pieces(nxt)); nxt += 1
            if queue: queue.pop(0)()
        if tail and n == max(total - 24, 0): tail()
    a.fstamp(phase)
    if phase not in NOE:
        bar(('E', phase, None))
    a.fstamp(phase)
    a.e('s_nop 7'); a.e('s_nop 3')


def gen_compute(a, opt, events):
    evq = list(events)
    tm = [0]
    def tmreg(i):
        assert i < 22, i
        return 64 + i
    def dump(regs):
        sk = a.newlabel('TMS')
        a.e('s_waitcnt lgkmcnt(0)')
        a.e(f's_cmp_eq_u32 s{S_W}, 0')
        a.e(f's_cbranch_scc0 {sk}')
        if opt.dbgout >= 0 and opt.timing:
            a.e(f's_cmp_eq_u32 s2, {opt.dbgwg}')
            a.e(f's_cbranch_scc0 {sk}')
            a.e(f's_cmp_eq_u32 s{S_L}, {opt.dbgout}')
            a.e(f's_cbranch_scc0 {sk}')
            sel = [1, 2, 3, 4, 5, 6, 8, 9, 11, 12, 14, 15, 16, 17, 18, 20]
            for i, k in enumerate(sel):
                if k >= len(regs): continue
                a.e(f's_sub_u32 s{S_T0}, s{regs[k]}, s{regs[0]}')
                a.e(f'v_mov_b32 v{V_T0}, s{S_T0}')
                a.e(f'v_mov_b32 v{V_T1}, {4*i}')
                a.e(f'global_store_dword v{V_T1}, v{V_T0}, s[86:87]')
        else:
            a.e(f's_lshl_b32 s{S_T0}, s2, 8')
            a.e(f's_lshl_b32 s{S_T1}, s{S_L}, 7')
            if opt.timing: a.e(f's_add_u32 s{S_T0}, s{S_T0}, s{S_T1}')
            a.e(f's_add_u32 s{S_T0}, s{S_T0}, {hex(TM_OFF)}')
            for i, r in enumerate(regs):
                a.e(f'v_mov_b32 v{V_T0}, s{r}')
                a.e(f'v_mov_b32 v{V_T1}, {4*i}')
                a.e(f'buffer_store_dword v{V_T0}, v{V_T1}, {WS}, s{S_T0} offen')
        a.label(sk)
        a.e('s_waitcnt vmcnt(0)')
    fs = [0]
    def freg(i): return 64 + 2 * i
    def fstamp(phase):
        if opt.fine == phase and fs[0] < 11:
            a.e(f's_memtime s[{freg(fs[0])}:{freg(fs[0])+1}]'); fs[0] += 1
    a.fstamp = fstamp
    def stamp():
        if opt.timing:
            a.e('s_memtime s[60:61]')
            a.e('s_waitcnt lgkmcnt(0)')
            a.e(f's_mov_b32 s{tmreg(tm[0])}, s60'); tm[0] += 1

    T0, T1, T2, TB = V_T0, V_T1, V_T2, V_TB
    if opt.wall:
        a.e('s_memrealtime s[60:61]'); a.e('s_waitcnt lgkmcnt(0)'); a.e('s_mov_b32 s84, s60')
        a.e('s_memtime s[60:61]'); a.e('s_waitcnt lgkmcnt(0)'); a.e('s_mov_b32 s85, s60')
    a.c('--- compute: early address setup')
    if opt.startdiag:
        a.e('s_memtime s[98:99]'); a.e('s_waitcnt lgkmcnt(0)'); a.e('s_sub_u32 s98, s98, s100'); a.e('s_mov_b32 s85, s98')
    stamp()
    a.e(f's_lshr_b32 s{S_RH}, s{S_W}, 1')
    a.e(f's_and_b32 s{S_CH}, s{S_W}, 1')
    a.e(f's_lshl_b32 s{S_W4K}, s{S_W}, 12')
    a.e(f's_lshl_b32 s{S_U0}, s{S_G}, 4')
    a.e(f's_lshl_b32 s{S_T1}, s{S_RB}, 2')
    a.e(f's_add_u32 s{S_U0}, s{S_U0}, s{S_T1}')
    a.e(f's_lshl_b32 s{S_T1}, s{S_RH}, 1')
    a.e(f's_add_u32 s{S_U2}, s{S_U0}, s{S_T1}')
    a.e(f's_add_u32 s{S_U0}, s{S_U0}, s{S_W}')
    a.e(f's_lshl_b32 s{S_U1}, s{S_G}, 4')
    a.e(f's_lshl_b32 s{S_T2}, s{S_RB2}, 3')
    a.e(f's_add_u32 s{S_U1}, s{S_U1}, s{S_T2}')
    a.e(f's_lshl_b32 s{S_T2}, s{S_W}, 1')
    a.e(f's_add_u32 s{S_U1}, s{S_U1}, s{S_T2}')
    a.e(f'v_and_b32 v{T0}, 15, v{V_LANE}')
    a.e(f'v_and_b32 v{T1}, 0x30, v{V_LANE}')
    a.e(f's_lshl_b32 s{S_ROTK}, s{S_RB2}, 1')
    a.e(f's_add_u32 s{S_ROTK}, s{S_ROTK}, s{S_CB2}')
    a.e(f's_and_b32 s{S_ROTK}, s{S_ROTK}, {3 if opt.rot else 0}')
    a.e(f'v_and_b32 v{T2}, 31, v{V_LANE}')
    a.e(f'v_lshrrev_b32 v{TB}, 5, v{V_LANE}')
    a.e(f'v_lshlrev_b32 v{V_XRM}, 10, v{T2}')
    a.e(f'v_lshl_add_u32 v{V_XRM}, v{TB}, 3, v{V_XRM}')
    a.e(f's_lshl_b32 s{S_T2}, s{S_U2}, 14')
    a.e(f's_lshl_b32 s{S_T3}, s{S_CB}, 7')
    a.e(f's_add_u32 s{S_T2}, s{S_T2}, s{S_T3}')
    a.e(f's_lshl_b32 s{S_T3}, s{S_CH}, 6')
    a.e(f's_add_u32 s{S_T2}, s{S_T2}, s{S_T3}')
    a.e(f'v_add_u32 v{V_XRM}, s{S_T2}, v{V_XRM}')
    PA = f's[{S_PA}:{S_PA+3}]'
    def p1_load(j):
        if j % 4 == 0:
            a.e(f's_mov_b32 s{S_AOFF}, s{S_RK + j // 4}')
            a.e(f's_add_u32 s{S_AOFF2}, s{S_AOFF}, 0x4000')
        for r in range(2):
            a.vmem(f'buffer_load_dwordx4 v[{V_A+(r*16+j)*4}:{V_A+(r*16+j)*4+3}], v{V_P1}, {PA}, s{S_AOFF if r == 0 else S_AOFF2} offen', ('A', j))
        if j % 4 != 3:
            a.e(f's_add_u32 s{S_AOFF}, s{S_AOFF}, s{S_ASTR}')
            a.e(f's_add_u32 s{S_AOFF2}, s{S_AOFF2}, s{S_ASTR}')
    a.e('s_waitcnt lgkmcnt(0)')
    a.e(f's_mul_i32 s{S_B}, s{S_V}, 0x9e3779b1')
    a.e(f's_add_u32 s{S_B}, s{S_B}, 0x7f4a7c15')
    a.e(f's_and_b32 s{S_B}, s{S_B}, 0xffffff00')
    a.c('--- compute: address setup')
    a.e(f'v_lshlrev_b32 v{V_X}, 4, v{V_LANE}')
    a.e(f's_lshl_b32 s{S_T2}, s{S_U1}, 14')
    a.e(f'v_add_u32 v{V_AB}, s{S_T2}, v{V_X}')
    a.e(f'v_lshlrev_b32 v{V_STS}, 4, v{T2}')
    a.e(f'v_lshl_add_u32 v{V_STS}, v{TB}, 11, v{V_STS}')
    a.e(f's_lshl_b32 s{S_T2}, s{S_U2}, 11')
    a.e(f'v_add_u32 v{V_STS}, s{S_T2}, v{V_STS}')
    a.e(f'v_lshlrev_b32 v{V_STST}, 4, v{T2}')
    a.e(f's_lshl_b32 s{S_T4}, s{S_CB}, 9')
    a.e(f's_add_u32 s{S_T2}, s{S_T2}, s{S_T4}')
    a.e(f's_lshl_b32 s{S_T4}, s{S_CH}, 3')
    a.e(f's_add_u32 s{S_T2}, s{S_T2}, s{S_T4}')
    a.e(f'v_add_u32 v{V_STST}, s{S_T2}, v{V_STST}')
    a.e(f's_lshl_b32 s{S_T3}, s{S_CB}, 1')
    a.e(f's_add_u32 s{S_T3}, s{S_T3}, s{S_CH}')
    a.e(f'v_lshlrev_b32 v{V_STB}, 4, v{T0}')
    a.e(f'v_lshl_add_u32 v{V_STB}, v{T1}, 6, v{V_STB}')
    a.e(f's_lshl_b32 s{S_T2}, s{S_U1}, 11')
    a.e(f'v_add_u32 v{V_STB}, s{S_T2}, v{V_STB}')
    a.e(f'v_lshrrev_b32 v{V_TST}, 4, v{T2}')
    a.e(f'v_lshlrev_b32 v{V_TST}, 14, v{V_TST}')
    a.e(f'v_lshl_add_u32 v{V_TST}, v{TB}, 8, v{V_TST}')
    a.e(f'v_lshl_add_u32 v{V_TST}, v{T0}, 4, v{V_TST}')
    a.e(f's_lshl_b32 s{S_T2}, s{S_U2}, 14')
    a.e(f's_lshl_b32 s{S_T4}, s{S_T3}, 10')
    a.e(f's_add_u32 s{S_T2}, s{S_T2}, s{S_T4}')
    a.e(f'v_add_u32 v{V_TST}, s{S_T2}, v{V_TST}')
    a.e(f's_lshl_b32 s{S_T2}, s{S_G}, 9')
    a.e(f's_add_u32 s{S_T2}, s{S_T2}, {hex(LF_OFF)}')
    a.e(f's_lshl_b32 s{S_T3}, s{S_W}, 7')
    a.e(f's_add_u32 s{S_T3}, s{S_T3}, s{S_T2}')
    a.e(f's_lshl_b32 s{S_T4}, s{S_R}, 2')
    a.e(f's_add_u32 s{S_T4}, s{S_T4}, s{S_T3}')
    a.e(f'v_mov_b32 v{V_FOWN}, s{S_T4}')
    a.e(f'v_and_b32 v{V_X+1}, 7, v{V_LANE}')
    a.e(f'v_lshlrev_b32 v{V_X+1}, 2, v{V_X+1}')
    a.e(f'v_bfe_u32 v{V_X+2}, v{V_LANE}, 3, 1')
    a.e(f'v_lshl_add_u32 v{V_X+1}, v{V_X+2}, 7, v{V_X+1}')
    a.e(f's_lshl_b32 s{S_T4}, s{S_RB2}, 1')
    a.e(f's_add_u32 s{S_T4}, s{S_T4}, s{S_RH}')
    a.e(f's_lshl_b32 s{S_T4}, s{S_T4}, 5')
    a.e(f's_lshl_b32 s{S_T5}, s{S_CH}, 8')
    a.e(f's_add_u32 s{S_T4}, s{S_T4}, s{S_T5}')
    a.e(f's_add_u32 s{S_T4}, s{S_T4}, s{S_T2}')
    a.e(f'v_add_u32 v{V_FSB}, s{S_T4}, v{V_X+1}')
    a.e(f's_lshl_b32 s{S_T4}, s{S_CB2}, 7')
    a.e(f's_add_u32 s{S_T4}, s{S_T4}, {hex(KVF_OFF)}')
    a.e(f'v_lshlrev_b32 v{V_FKV}, 2, v{T2}')
    a.e(f'v_add_u32 v{V_FKV}, s{S_T4}, v{V_FKV}')
    a.e(f'v_bfe_u32 v{V_X+1}, v{V_LANE}, 2, 2')
    a.e(f'v_lshrrev_b32 v{V_X+2}, 4, v{V_LANE}')
    a.e(f'v_lshl_add_u32 v{V_X+3}, v{V_X+2}, 2, v{V_X+1}')
    a.e(f'v_and_b32 v{V_X+4}, 3, v{V_LANE}')
    a.e(f'v_lshlrev_b32 v{V_X+4}, 3, v{V_X+4}')
    a.e(f'v_bfe_u32 v{V_X+5}, v{V_X+3}, 1, 2')
    a.e(f'v_lshl_add_u32 v{V_T128}, v{V_X+5}, 5, v{V_X+4}')
    a.e(f'v_lshl_add_u32 v{V_T128}, v{V_X+3}, 7, v{V_T128}')
    a.e(f'v_bfe_u32 v{V_X+5}, v{V_X+3}, 2, 1')
    a.e(f'v_lshl_add_u32 v{V_T64}, v{V_X+5}, 5, v{V_X+4}')
    a.e(f'v_lshl_add_u32 v{V_T64}, v{V_X+3}, 6, v{V_T64}')
    a.e(f'v_mul_u32_u24 v{V_T224}, 224, v{V_X+3}')
    a.e(f'v_add_u32 v{V_T224}, v{V_T224}, v{V_X+4}')
    a.e(f'v_lshrrev_b32 v{V_X+3}, 1, v{V_X+2}')
    a.e(f'v_lshl_add_u32 v{V_X+3}, v{V_X+3}, 2, v{V_X+1}')
    a.e(f'v_and_b32 v{V_X+5}, 1, v{V_X+2}')
    a.e(f's_lshl_b32 s{S_T4}, s{S_CH}, 1')
    a.e(f'v_add_u32 v{V_X+5}, s{S_T4}, v{V_X+5}')
    a.e(f'v_and_b32 v{V_X+1}, 2, v{V_X+1}')
    a.e(f'v_xor_b32 v{V_X+5}, v{V_X+5}, v{V_X+1}')
    a.e(f'v_lshl_add_u32 v{V_TN}, v{V_X+5}, 5, v{V_X+4}')
    a.e(f'v_lshl_add_u32 v{V_TN}, v{V_X+3}, 7, v{V_TN}')
    a.e(f'v_bfe_u32 v{V_TA}, v{V_LANE}, 4, 1')
    a.e(f's_lshl_b32 s{S_T4}, s{S_RH}, 1')
    a.e(f'v_add_u32 v{V_TA}, s{S_T4}, v{V_TA}')
    a.e(f'v_lshlrev_b32 v{V_TA}, 12, v{V_TA}')
    a.e(f'v_lshl_add_u32 v{V_TA}, v{TB}, 8, v{V_TA}')
    a.e(f'v_lshl_add_u32 v{V_TA}, v{T0}, 4, v{V_TA}')
    if AREG: a.e(f'v_add_u32 v{V_TA}, {hex(AREG)}, v{V_TA}')
    c1 = -2.0 * 0.7978845608028654 * 1.4426950408889634
    c2 = c1 * 0.044715
    for s, v in [(S_C1, c1), (S_C2, c2), (S_C2 + 1, c2), (S_ONE2, 1.0), (S_ONE2 + 1, 1.0),
                 (S_LOG2E, 1.4426950408889634), (S_EPS6, 1e-6)]:
        a.e(f's_mov_b32 s{s}, {hex(f2u(v))}')
    a.e(f's_mov_b32 s{S_L}, 0')
    a.e(f's_mov_b32 s{S_LOFF}, 0')
    a.e(f's_mov_b32 s{S_EP}, 1')
    a.e(f's_mov_b32 s{S_MODE}, 1')
    a.e(f's_mov_b32 s{S_COLD}, 1')
    a.e(f's_lshl_b32 s{S_GH}, s{S_G}, 1')
    a.e(f's_add_u32 s{S_GH}, s{S_GH}, 1')
    a.e(f's_lshl_b32 s{S_GH}, s{S_GH}, 14')

    LOOP = 'LAYER_LOOP'
    a.label(LOOP)
    slabs = build_slabs(0)

    def run_layer():
        def bar(ev):
            exp = evq.pop(0)
            assert exp[1:] == ev or (exp[1] == 'X' and ev[0] == 'X' and exp[2] == ev[1]), (exp, ev)
            a.e('s_barrier')
        def soff(reg, base, extra=0, gh=False):
            if gh: a.e(f's_add_u32 s{reg}, s{S_GH}, {hex(base + extra)}')
            else: a.e(f's_mov_b32 s{reg}, {hex(base + extra)}')
        def done(p):
            if opt.stop == (1, p):
                a.e(f's_cmp_eq_u32 s{S_L}, 1')
                a.e('s_cbranch_scc1 L_END_COMPUTE')
            return opt.stop == (0, p)
        def ep(k):
            a.e(f's_add_u32 s{S_T5}, s{S_EP}, {k}')
            return f's{S_T5}'

        a.c('=== P1KV')
        WR1 = 96; D1 = 116; ONES = 124; D2 = V_PQ
        for i in range(4): a.e(f'v_mov_b32 v{ONES+i}, 0x3f803f80')
        l0 = a.newlabel('KVL0'); ljoin = a.newlabel('KVJ')
        a.e(f's_cmp_eq_u32 s{S_L}, 0')
        a.e(f's_cbranch_scc1 {l0}')
        saved_ev = list(evq)
        emit_poll(a, V_FSB, f's{S_EP}', opt=opt)
        for j in range(opt.D_kv): p1_load(j)
        stamp()
        a.fstamp('P1KV')
        def kv_issue(j, t):
            if t == 1:
                if j + opt.D_kv < 16:
                    p1_load(j + opt.D_kv)
                elif j + opt.D_kv == 16:
                    soff(S_T0, ST_OFF)
                    a.vmem(f'buffer_load_dwordx4 v[{D1}:{D1+3}], v{V_STB}, {WS}, s{S_T0} offen sc1', 'st')
                    a.vmem(f'buffer_load_dwordx4 v[{D1+4}:{D1+7}], v{V_STB}, {WS}, s{S_T0} offen offset:512 sc1', 'st')
                    a.vmem(f'buffer_load_dwordx4 v[{D2}:{D2+3}], v{V_STB}, {WS}, s{S_T0} offen offset:256 sc1', 'st')
                    a.vmem(f'buffer_load_dwordx4 v[{D2+4}:{D2+7}], v{V_STB}, {WS}, s{S_T0} offen offset:768 sc1', 'st')
        emit_gemm16(a, bar, 'P1KV', slabs['P1KV'], 4, '128',
                    acc_of=lambda r, t: V_ACC + (r * 4 + t) * 4, a_of=lambda r, j: V_A + (r * 16 + j) * 4,
                    a_wait=lambda j: a.count_vm(('A', j)), a_issue=kv_issue, wr=WR1, S=5, normal=True)
        a.e(f's_branch {ljoin}')
        a.label(l0)
        evq[:] = saved_ev
        a.vm = []
        tm[0] -= 1 if opt.timing else 0
        stamp()
        VLA = V_X
        a.e(f'v_and_b32 v{T0}, 15, v{V_LANE}')
        a.e(f'v_lshrrev_b32 v{T1}, 4, v{V_LANE}')
        a.e(f'v_xor_b32 v{T1}, v{T1}, v{T0}')
        a.e(f'v_lshlrev_b32 v{T1}, 4, v{T1}')
        a.e(f's_lshl_b32 s{S_T0}, s{S_W}, 5')
        a.e(f'v_add_u32 v{T0}, s{S_T0}, v{T0}')
        a.e(f'v_lshlrev_b32 v{T0}, 8, v{T0}')
        for j in range(4):
            a.e(f'v_xor_b32 v{VLA+j}, {64*j}, v{T1}')
            a.e(f'v_add_u32 v{VLA+j}, v{VLA+j}, v{T0}')
        def kv_lds(j):
            c = j // 4
            return [f'ds_read_b128 v[{V_A+(r*16+j)*4}:{V_A+(r*16+j)*4+3}], v{VLA + j % 4} offset:{AREG + (c & 1) * 32768 + r * 4096}' for r in range(2)]
        def kv_extra(j):
            for r in range(2):
                x = f'v[{V_A+(r*16+j)*4}:{V_A+(r*16+j)*4+3}]'
                c1_ = '0' if j == 0 else f'v[{D1+4*r}:{D1+4*r+3}]'
                c2_ = '0' if j == 0 else f'v[{D2+4*r}:{D2+4*r+3}]'
                a.e(f'v_mfma_f32_16x16x32_bf16 v[{D1+4*r}:{D1+4*r+3}], v[{ONES}:{ONES+3}], {x}, {c1_}')
                a.e(f'v_mfma_f32_16x16x32_bf16 v[{D2+4*r}:{D2+4*r+3}], {x}, {x}, {c2_}')
        emit_gemm16(a, bar, 'P1KV', slabs['P1KV'], 4, '128',
                    acc_of=lambda r, t: V_ACC + (r * 4 + t) * 4, a_of=lambda r, j: V_A + (r * 16 + j) * 4,
                    a_wait=lambda j: None, a_issue=lambda j, t: None, wr=WR1, S=5, normal=True, extra=kv_extra, a_lds=kv_lds)
        a.label(ljoin)
        stamp()
        a.wait_vm_all()
        SUM = [(V_X, V_X + 1), (V_X + 2, V_X + 3)]
        l1 = a.newlabel('S1'); le = a.newlabel('SE')
        a.e(f's_cmp_eq_u32 s{S_L}, 0')
        a.e(f's_cbranch_scc0 {l1}')
        a.e(f'v_and_b32 v{T0}, 31, v{V_LANE}')
        a.e(f'v_lshlrev_b32 v{T0}, 7, v{T0}')
        a.e(f'v_lshrrev_b32 v{T1}, 5, v{V_LANE}')
        a.e(f'v_lshl_add_u32 v{T0}, v{T1}, 3, v{T0}')
        a.e(f's_lshl_b32 s{S_T0}, s{S_RH}, 12')
        a.e(f's_lshl_b32 s{S_T1}, s{S_CH}, 6')
        a.e(f's_add_u32 s{S_T0}, s{S_T0}, s{S_T1}')
        if AREG: a.e(f's_add_u32 s{S_T0}, s{S_T0}, {hex(AREG)}')
        a.e(f'v_add_u32 v{T0}, s{S_T0}, v{T0}')
        for j in range(4):
            a.e(f'ds_read_b64 v[{V_RES+4*j}:{V_RES+4*j+1}], v{T0} offset:{16*j}')
        a.e('s_waitcnt lgkmcnt(0)')
        for j in range(4):
            b = V_RES + 4 * j
            a.e(f'v_and_b32 v{b+3}, 0xffff0000, v{b+1}')
            a.e(f'v_lshlrev_b32 v{b+2}, 16, v{b+1}')
            a.e(f'v_and_b32 v{b+1}, 0xffff0000, v{b}')
            a.e(f'v_lshlrev_b32 v{b}, 16, v{b}')
        a.e(f'v_and_b32 v{T0}, 3, v{V_LANE}')
        a.e(f'v_bfe_u32 v{T1}, v{V_LANE}, 2, 2')
        a.e(f'v_lshrrev_b32 v{T2}, 4, v{V_LANE}')
        for r in range(2):
            s_, ss_ = SUM[r]
            a.e(f'v_mov_b32 v{s_}, v{D1+4*r}')
            a.e(f'v_mov_b32 v{ss_}, v{D2+4*r}')
            for i in range(1, 4):
                a.e(f'v_cmp_eq_u32 vcc, {i}, v{T0}')
                a.e('s_nop 1')
                a.e(f'v_cndmask_b32 v{ss_}, v{ss_}, v{D2+4*r+i}, vcc')
            a.e(f'v_cmp_eq_u32 vcc, v{T1}, v{T2}')
            a.e('s_nop 1')
            a.e(f'v_cndmask_b32 v{ss_}, 0, v{ss_}, vcc')
        emit_xreduce(a, [SUM[0][1], SUM[1][1]], [T0, T1])
        a.e(f's_branch {le}')
        a.label(l1)
        for r, raw in enumerate([D1, D2]):
            emit_sum_partials(a, raw, 8)
            a.e(f'v_mov_b32 v{SUM[r][0]}, v{raw}')
            a.e(f'v_mov_b32 v{SUM[r][1]}, v{raw+1}')
        emit_xreduce(a, [SUM[0][0], SUM[0][1], SUM[1][0], SUM[1][1]], [WR1, WR1 + 1, WR1 + 2, WR1 + 3])
        a.label(le)
        CSR = 120
        a.e(f'v_and_b32 v{T0}, 15, v{V_LANE}')
        a.e(f'v_lshlrev_b32 v{T0}, 2, v{T0}')
        a.e(f'v_add_u32 v{T0}, {hex(CSC)}, v{T0}')
        a.e(f'v_and_b32 v{T1}, 0x30, v{V_LANE}')
        for t in range(4):
            a.e(f'ds_read_b32 v{CSR+t}, v{T0} offset:{64*t}')
        KEEP = [(V_PQ + 0, V_PQ + 2), (V_PQ + 4, V_PQ + 6)]
        for r in range(2):
            emit_stats_from_sums(a, SUM[r][0], SUM[r][1], KEEP[r][0], KEEP[r][1], WR1)
        AI = [WR1, WR1 + 8]; BI = [WR1 + 4, WR1 + 12]
        for r in range(2):
            for i in range(4):
                a.e(f'ds_bpermute_b32 v{AI[r]+i}, v{T1}, v{KEEP[r][0]} offset:{4*i}')
                a.e(f'ds_bpermute_b32 v{BI[r]+i}, v{T1}, v{KEEP[r][1]} offset:{4*i}')
        a.e('s_waitcnt vmcnt(0) lgkmcnt(0)'); a.vm = []
        CSE = WR1 + 16
        for t in range(4): a.e(f'v_mov_b32 v{CSE+2*t}, v{CSR+t}')
        for r in range(2):
            for t in range(4):
                for i in (0, 2):
                    d = V_ACC + (r * 4 + t) * 4 + i
                    a.e(pk('mul', d, vp(d), vp(AI[r] + i)))
            for t in range(4):
                for i in (0, 2):
                    d = V_ACC + (r * 4 + t) * 4 + i
                    a.e(pk('fma', d, vp(BI[r] + i), vp(CSE + 2 * t), vp(d), mods=' op_sel_hi:[1,0,1]'))
        regs = [V_ACC + (r * 4 + t) * 4 + i for r in range(2) for t in range(2) for i in range(4)]
        emit_phi(a, regs, WR1)
        for t in range(4):
            b0 = V_ACC + t * 4; b1 = V_ACC + (4 + t) * 4
            a.e(f'v_cvt_pk_bf16_f32 v{b0}, v{b0}, v{b0+1}')
            a.e(f'v_cvt_pk_bf16_f32 v{b0+1}, v{b0+2}, v{b0+3}')
            a.e(f'v_cvt_pk_bf16_f32 v{b0+2}, v{b1}, v{b1+1}')
            a.e(f'v_cvt_pk_bf16_f32 v{b0+3}, v{b1+2}, v{b1+3}')
        a.e('s_nop 1')
        KVD = V_ACC + 16
        for h in range(2):
            a.e(f'v_mfma_f32_16x16x32_bf16 v[{KVD+4*h}:{KVD+4*h+3}], v[{V_ACC+4*h}:{V_ACC+4*h+3}], v[{V_ACC+8+4*h}:{V_ACC+8+4*h+3}], 0')
            a.e(f'v_mfma_f32_16x16x32_bf16 v[{KVD+8+4*h}:{KVD+8+4*h+3}], v[{V_ACC+4*h}:{V_ACC+4*h+3}], v[{ONES}:{ONES+3}], 0')
        a.e(f's_lshl_b32 s{S_T0}, s{S_W}, 11')
        a.e(f's_add_u32 s{S_T0}, s{S_T0}, {hex(SCR)}')
        a.e(f'v_lshlrev_b32 v{T0}, 4, v{V_LANE}')
        a.e(f'v_add_u32 v{T0}, s{S_T0}, v{T0}')
        a.e(f's_lshl_b32 s{S_T0}, s{S_W}, 7')
        a.e(f's_add_u32 s{S_T0}, s{S_T0}, {hex(SCR + 8192)}')
        a.e(f'v_add_u32 v{T2}, s{S_T0}, v{T1}')
        a.e('s_nop 4')
        a.e(f'ds_write_b128 v{T0}, v[{KVD}:{KVD+3}]')
        a.e(f'ds_write_b128 v{T0}, v[{KVD+4}:{KVD+7}] offset:1024')
        set_exec(a, 0x00010001)
        a.e(f'ds_write_b128 v{T2}, v[{KVD+8}:{KVD+11}]')
        a.e(f'ds_write_b128 v{T2}, v[{KVD+12}:{KVD+15}] offset:64')
        a.e('s_mov_b64 exec, -1')
        a.e('s_waitcnt lgkmcnt(0)')
        bar(('X', 'X1'))
        sk = a.newlabel('KVST')
        a.e(f's_cmp_lt_u32 s{S_W}, 2')
        a.e(f's_cbranch_scc0 {sk}')
        if opt.kv_atomic:
            a.e(f's_lshl_b32 s{S_T0}, s{S_W}, 10')
            a.e(f's_add_u32 s{S_T0}, s{S_T0}, {hex(SCR)}')
            a.e(f'v_lshlrev_b32 v{T0}, 2, v{V_LANE}')
            a.e(f'v_add_u32 v{T2}, s{S_T0}, v{T0}')
            a.e(f's_lshl_b32 s{S_T0}, s{S_W}, 6')
            a.e(f's_add_u32 s{S_T0}, s{S_T0}, {hex(SCR + 8192)}')
            a.e(f'v_add_u32 v{V_X}, s{S_T0}, v{T0}')
            KB = V_ACC
            for ww in range(4):
                for i in range(4):
                    a.e(f'ds_read_b32 v{KB+4*ww+i}, v{T2} offset:{ww*2048+256*i}')
                if ww == 2: a.e('s_waitcnt lgkmcnt(4)')
            for ww in range(4):
                a.e(f'ds_read_b32 v{KB+16+ww}, v{V_X} offset:{ww*128}')
            a.e(f's_mul_i32 s{S_T0}, s{S_CB2}, {KVREC}')
            a.e(f's_mul_i32 s{S_T1}, s{S_L}, {16*KVREC}')
            a.e(f's_add_u32 s{S_T0}, s{S_T0}, s{S_T1}')
            a.e(f's_add_u32 s{S_T0}, s{S_T0}, {hex(KVA_OFF)}')
            a.e(f's_lshl_b32 s{S_T1}, s{S_W}, 10')
            a.e(f's_add_u32 s{S_T1}, s{S_T1}, s{S_T0}')
            a.e(f's_lshl_b32 s{S_T2}, s{S_W}, 6')
            a.e(f's_add_u32 s{S_T2}, s{S_T2}, s{S_T0}')
            a.e(f's_add_u32 s{S_T2}, s{S_T2}, 2048')
            a.e('s_waitcnt lgkmcnt(0)')
            for i in (0, 2):
                a.e(pk('add', KB + i, vp(KB + i), vp(KB + 4 + i)))
                a.e(pk('add', KB + 8 + i, vp(KB + 8 + i), vp(KB + 12 + i)))
                a.e(pk('add', KB + i, vp(KB + i), vp(KB + 8 + i)))
            a.e(pk('add', KB + 16, vp(KB + 16), vp(KB + 18)))
            a.e(f'v_add_f32 v{KB+16}, v{KB+16}, v{KB+17}')
            for i in range(4):
                a.e(f'buffer_atomic_add_f32 v{KB+i}, v{T0}, {WS}, s{S_T1} offen offset:{256*i}')
            a.e('s_mov_b64 exec, 0xffff')
            a.e(f'buffer_atomic_add_f32 v{KB+16}, v{T0}, {WS}, s{S_T2} offen')
            a.e('s_mov_b64 exec, -1')
        else:
            a.e(f's_lshl_b32 s{S_T0}, s{S_W}, 10')
            a.e(f's_add_u32 s{S_T0}, s{S_T0}, {hex(SCR)}')
            a.e(f'v_lshlrev_b32 v{T0}, 4, v{V_LANE}')
            a.e(f'v_add_u32 v{T2}, s{S_T0}, v{T0}')
            a.e(f's_lshl_b32 s{S_T0}, s{S_W}, 6')
            a.e(f's_add_u32 s{S_T0}, s{S_T0}, {hex(SCR + 8192)}')
            a.e(f'v_add_u32 v{V_X}, s{S_T0}, v{T1}')
            KB = V_ACC
            for ww in range(4):
                a.e(f'ds_read_b128 v[{KB+4*ww}:{KB+4*ww+3}], v{T2} offset:{ww*2048}')
                a.e(f'ds_read_b128 v[{KB+16+4*ww}:{KB+16+4*ww+3}], v{V_X} offset:{ww*128}')
            a.e(f's_lshl_b32 s{S_T0}, s{S_CB2}, 4')
            a.e(f's_lshl_b32 s{S_T1}, s{S_G}, 1')
            a.e(f's_add_u32 s{S_T0}, s{S_T0}, s{S_T1}')
            a.e(f's_add_u32 s{S_T0}, s{S_T0}, s{S_RB2}')
            a.e(f's_mul_i32 s{S_T0}, s{S_T0}, {KVREC}')
            a.e(f's_add_u32 s{S_T0}, s{S_T0}, s{S_LOFF}')
            a.e(f's_add_u32 s{S_T0}, s{S_T0}, {hex(KVP_OFF)}')
            a.e(f's_lshl_b32 s{S_T1}, s{S_W}, 10')
            a.e(f's_add_u32 s{S_T1}, s{S_T1}, s{S_T0}')
            a.e(f's_lshl_b32 s{S_T2}, s{S_W}, 6')
            a.e(f's_add_u32 s{S_T2}, s{S_T2}, s{S_T0}')
            a.e(f's_add_u32 s{S_T2}, s{S_T2}, 2048')
            a.e('s_waitcnt lgkmcnt(0)')
            for base in (KB, KB + 16):
                for i in range(0, 4, 2):
                    a.e(pk('add', base + i, vp(base + i), vp(base + 4 + i)))
                    a.e(pk('add', base + 8 + i, vp(base + 8 + i), vp(base + 12 + i)))
                    a.e(pk('add', base + i, vp(base + i), vp(base + 8 + i)))
            a.e(f'buffer_store_dwordx4 v[{KB}:{KB+3}], v{T0}, {WS}, s{S_T1} offen sc1')
            set_exec(a, 0x00010001)
            a.e(f'buffer_store_dwordx4 v[{KB+16}:{KB+19}], v{T1}, {WS}, s{S_T2} offen sc1')
            a.e('s_mov_b64 exec, -1')
        a.e(f's_lshl_b32 s{S_T0}, s{S_L}, 11')
        a.e(f's_lshl_b32 s{S_T1}, s{S_CB2}, 7')
        a.e(f's_add_u32 s{S_T0}, s{S_T0}, s{S_T1}')
        a.e(f's_lshl_b32 s{S_T1}, s{S_W}, 6')
        a.e(f's_add_u32 s{S_T0}, s{S_T0}, s{S_T1}')
        a.e(f's_lshl_b32 s{S_T1}, s{S_G}, 3')
        a.e(f's_add_u32 s{S_T0}, s{S_T0}, s{S_T1}')
        a.e(f's_lshl_b32 s{S_T1}, s{S_RB2}, 2')
        a.e(f's_add_u32 s{S_T0}, s{S_T0}, s{S_T1}')
        a.e(f's_add_u32 s{S_T0}, s{S_T0}, {hex(KVF_OFF)}')
        a.e(f'v_mov_b32 v{V_X+4}, s{S_T0}')
        a.label(sk)
        a.vm = []
        stamp()
        if done('P1KV'): return True

        a.c('=== P1Q')
        QCS = V_ACC + 16
        a.e(f'v_and_b32 v{T1}, 0x30, v{V_LANE}')
        a.e(f'v_add_u32 v{T1}, {hex(CSC + 256)}, v{T1}')
        a.e(f'ds_read_b128 v[{QCS}:{QCS+3}], v{T1}')
        a.e(f'ds_read_b128 v[{QCS+4}:{QCS+7}], v{T1} offset:64')
        a.e('s_waitcnt lgkmcnt(0)')
        QAB = [(V_ACC + 24, V_ACC + 26), (V_ACC + 28, V_ACC + 30)]
        for r in range(2):
            a.e(f'v_mov_b32 v{QAB[r][0]}, v{KEEP[r][0]}')
            a.e(f'v_mov_b32 v{QAB[r][1]}, v{KEEP[r][1]}')
        def q_issue(j, t):
            if j == opt.kvflag_at and t == 1:
                fk = a.newlabel('KVFL')
                a.e(f's_cmp_lt_u32 s{S_W}, 2')
                a.e(f's_cbranch_scc0 {fk}')
                thr_value(a, S_THR, 1, xcc=True)
                a.e(f'v_mov_b32 v{V_X+5}, s{S_THR}')
                a.e('s_waitcnt vmcnt(0)')
                a.e('s_mov_b64 exec, 1')
                a.e(f'buffer_store_dword v{V_X+5}, v{V_X+4}, {WS}, 0 offen sc1')
                a.e('s_mov_b64 exec, -1')
                a.label(fk)
        emit_gemm16(a, bar, 'P1Q', slabs['P1Q'], 2, '64',
                    acc_of=lambda r, t: V_ACC + (r * 2 + t) * 4, a_of=lambda r, j: V_A + (r * 16 + j) * 4,
                    a_wait=lambda j: None, a_issue=q_issue, wr=96, S=8)
        for r in range(2):
            for t in range(2):
                emit_lnfold(a, V_ACC + (r * 2 + t) * 4, QCS + 4 * t, QAB[r][0], QAB[r][1], 4)
        emit_phi(a, [V_ACC + i for i in range(16)], 96)
        for r in range(2):
            for h in range(2):
                emit_pack(a, V_PQ + (r * 2 + h) * 2, V_ACC + (r * 2 + h) * 4, 4)
        stamp()
        sk = a.newlabel('MODE')
        a.e(f's_cmp_eq_u32 s{S_L}, 0')
        a.e(f's_cbranch_scc0 {sk}')
        a.e(f'v_and_b32 v{T1}, 31, v{V_LANE}')
        a.e(f'v_lshlrev_b32 v{T1}, 2, v{T1}')
        a.e(f's_lshl_b32 s{S_T0}, s{S_G}, 7')
        a.e(f's_add_u32 s{S_T0}, s{S_T0}, {hex(XID_OFF)}')
        emit_poll(a, T1, 0, soff=f's{S_T0}', opt=opt)
        a.e(f'v_and_b32 v{T2}, 7, v{T2}')
        a.e(f'v_cmp_eq_u32 vcc, s{S_XCC}, v{T2}')
        a.e('s_nop 1')
        a.e('s_cmp_eq_u64 vcc, -1')
        a.e(f's_cselect_b32 s{S_MODE}, 0, 1')
        if opt.force_safe: a.e(f's_mov_b32 s{S_MODE}, 1')
        a.label(sk)
        a.e(f's_lshl_b32 s{S_T0}, s{S_L}, 11')
        emit_poll(a, V_FKV, 1, soff=f's{S_T0}', opt=opt)
        stamp()
        RB = V_A + 64
        if opt.kv_atomic:
            a.e(f's_mul_i32 s{S_T0}, s{S_CB2}, {KVREC}')
            a.e(f's_mul_i32 s{S_T1}, s{S_L}, {16*KVREC}')
            a.e(f's_add_u32 s{S_T0}, s{S_T0}, s{S_T1}')
            a.e(f's_add_u32 s{S_T0}, s{S_T0}, {hex(KVA_OFF)}')
            a.e(f'v_lshlrev_b32 v{T0}, 4, v{V_LANE}')
            a.e(f'v_and_b32 v{T1}, 0x30, v{V_LANE}')
            a.vmem(f'buffer_load_dwordx4 v[{RB}:{RB+3}], v{T0}, {WS}, s{S_T0} offen sc1', 'kp')
            a.vmem(f'buffer_load_dwordx4 v[{RB+4}:{RB+7}], v{T0}, {WS}, s{S_T0} offen offset:1024 sc1', 'kp')
            a.vmem(f'buffer_load_dwordx4 v[{RB+8}:{RB+11}], v{T1}, {WS}, s{S_T0} offen offset:2048 sc1', 'kp')
            a.vmem(f'buffer_load_dwordx4 v[{RB+12}:{RB+15}], v{T1}, {WS}, s{S_T0} offen offset:2112 sc1', 'kp')
            a.wait_vm_all()
        else:
            a.e(f's_lshl_b32 s{S_T0}, s{S_CB2}, 4')
            a.e(f's_lshl_b32 s{S_T1}, s{S_W}, 2')
            a.e(f's_add_u32 s{S_T0}, s{S_T0}, s{S_T1}')
            a.e(f's_mul_i32 s{S_T0}, s{S_T0}, {KVREC}')
            a.e(f's_add_u32 s{S_T0}, s{S_T0}, s{S_LOFF}')
            a.e(f's_add_u32 s{S_T0}, s{S_T0}, {hex(KVP_OFF)}')
            a.e(f'v_lshlrev_b32 v{T0}, 4, v{V_LANE}')
            a.e(f'v_and_b32 v{T1}, 0x30, v{V_LANE}')
            PB = V_A
            for s4 in range(4):
                b = PB + 16 * s4
                a.vmem(f'buffer_load_dwordx4 v[{b}:{b+3}], v{T0}, {WS}, s{S_T0} offen sc1', 'kp')
                a.vmem(f'buffer_load_dwordx4 v[{b+4}:{b+7}], v{T0}, {WS}, s{S_T0} offen offset:1024 sc1', 'kp')
                a.vmem(f'buffer_load_dwordx4 v[{b+8}:{b+11}], v{T1}, {WS}, s{S_T0} offen offset:2048 sc1', 'kp')
                a.vmem(f'buffer_load_dwordx4 v[{b+12}:{b+15}], v{T1}, {WS}, s{S_T0} offen offset:2112 sc1', 'kp')
                if s4 < 3: a.e(f's_add_u32 s{S_T0}, s{S_T0}, {KVREC}')
            a.e(f's_lshl_b32 s{S_T0}, s{S_W}, 11')
            a.e(f's_add_u32 s{S_T0}, s{S_T0}, {hex(SCR)}')
            a.e(f'v_add_u32 v{T0}, s{S_T0}, v{T0}')
            a.e(f's_lshl_b32 s{S_T0}, s{S_W}, 7')
            a.e(f's_add_u32 s{S_T0}, s{S_T0}, {hex(SCR + 8192)}')
            a.e(f'v_add_u32 v{T2}, s{S_T0}, v{T1}')
            a.wait_vm_all()
            for i in range(0, 16, 2):
                a.e(pk('add', PB + i, vp(PB + i), vp(PB + 16 + i)))
                a.e(pk('add', PB + 32 + i, vp(PB + 32 + i), vp(PB + 48 + i)))
            for i in range(0, 16, 2):
                a.e(pk('add', PB + i, vp(PB + i), vp(PB + 32 + i)))
            a.e(f'ds_write_b128 v{T0}, v[{PB}:{PB+3}]')
            a.e(f'ds_write_b128 v{T0}, v[{PB+4}:{PB+7}] offset:1024')
            set_exec(a, 0x00010001)
            a.e(f'ds_write_b128 v{T2}, v[{PB+8}:{PB+11}]')
            a.e(f'ds_write_b128 v{T2}, v[{PB+12}:{PB+15}] offset:64')
            a.e('s_mov_b64 exec, -1')
            a.e(f'v_lshlrev_b32 v{T0}, 4, v{V_LANE}')
            a.e(f'v_add_u32 v{T0}, {hex(SCR)}, v{T0}')
            a.e(f'v_add_u32 v{T2}, {hex(SCR + 8192)}, v{T1}')
            a.e('s_waitcnt lgkmcnt(0)')
            bar(('X', 'X2'))
            for ww in range(4):
                b = RB + 16 * ww
                a.e(f'ds_read_b128 v[{b}:{b+3}], v{T0} offset:{ww*2048}')
                a.e(f'ds_read_b128 v[{b+4}:{b+7}], v{T0} offset:{ww*2048+1024}')
                a.e(f'ds_read_b128 v[{b+8}:{b+11}], v{T2} offset:{ww*128}')
                a.e(f'ds_read_b128 v[{b+12}:{b+15}], v{T2} offset:{ww*128+64}')
                if ww == 2: a.e('s_waitcnt lgkmcnt(8)')
            a.e('s_waitcnt lgkmcnt(0)')
            for i in range(0, 16, 2):
                a.e(pk('add', RB + i, vp(RB + i), vp(RB + 16 + i)))
                a.e(pk('add', RB + 32 + i, vp(RB + 32 + i), vp(RB + 48 + i)))
            for i in range(0, 16, 2):
                a.e(pk('add', RB + i, vp(RB + i), vp(RB + 32 + i)))
        OPB = V_ACC + 16
        emit_pack(a, OPB, RB, 16)
        a.e('s_nop 1')
        NUM = V_A; DEN = V_A + 16
        for r in range(2):
            for h in range(2):
                pq = V_PQ + (r * 2 + h) * 2
                n_ = NUM + (r * 2 + h) * 4; d_ = DEN + (r * 2 + h) * 4
                a.e(f'v_mfma_f32_16x16x16_bf16 v[{n_}:{n_+3}], v[{OPB+2*h}:{OPB+2*h+1}], v[{pq}:{pq+1}], 0')
                a.e(f'v_mfma_f32_16x16x16_bf16 v[{d_}:{d_+3}], v[{OPB+4+2*h}:{OPB+4+2*h+1}], v[{pq}:{pq+1}], 0')
        a.e(f's_lshl_b32 s{S_T0}, s{S_CB2}, 10')
        a.e(f's_add_u32 s{S_T0}, s{S_T0}, s{S_GH}')
        a.e(f's_add_u32 s{S_T1}, s{S_T0}, 0x4000')
        a.e('s_nop 4')
        for k in range(4): a.e(f'v_add_f32 v{DEN+4*k}, s{S_EPS6}, v{DEN+4*k}')
        for k in range(4): a.e(f'v_rcp_f32 v{DEN+4*k}, v{DEN+4*k}')
        a.e('s_nop 0')
        for k in range(4):
            for i in range(4): a.e(f'v_mul_f32 v{NUM+4*k+i}, v{NUM+4*k+i}, v{DEN+4*k}')
        OPK = V_A + 32
        emit_pack(a, OPK, NUM, 16)
        emit_mode_stores(a, [f'buffer_store_dwordx4 v[{OPK}:{OPK+3}], v{V_AB}, {WS}, s{S_T0} offen',
                             f'buffer_store_dwordx4 v[{OPK+4}:{OPK+7}], v{V_AB}, {WS}, s{S_T1} offen'], cold=True)
        emit_signal(a, ep(1))
        stamp()
        if done('P1Q'): return True

        ACC = V_ACC; WR = 80; TMP = V_A
        def small_gemm(phase, tail=None):
            a.fstamp(phase)
            emit_gemm32(a, bar, phase, slabs[phase], ACC, WR, tail=tail)
        def tile_store(pkb, base, gh=False, cold=False):
            soff(S_T0, base, gh=gh)
            emit_mode_stores(a, [f'buffer_store_dwordx4 v[{pkb}:{pkb+3}], v{V_TST}, {WS}, s{S_T0} offen',
                                 f'buffer_store_dwordx4 v[{pkb+4}:{pkb+7}], v{V_TST}, {WS}, s{S_T0} offen offset:512'], cold=cold)

        a.c('=== P3')
        stamp()
        small_gemm('P3')
        stamp()
        for i in range(0, 16, 2): a.e(pk('add', V_RES + i, vp(V_RES + i), vp(ACC + i)))
        emit_pack32(a, TMP, V_RES)
        tile_store(TMP, A1_OFF, cold=True)
        soff(S_T1, ST_OFF)
        emit_stats_partial32(a, V_RES, TMP + 8, f's{S_T1}', cold=True)
        emit_signal(a, ep(2))
        stamp()
        if done('P3'): return True

        a.c('=== P4')
        CS4 = TMP + 16; RAW = TMP + 32
        a.e(f'v_lshrrev_b32 v{T1}, 5, v{V_LANE}')
        a.e(f'v_lshlrev_b32 v{T1}, 4, v{T1}')
        a.e(f's_lshl_b32 s{S_T1}, s{S_CH}, 7')
        a.e(f's_add_u32 s{S_T1}, s{S_T1}, {hex(CSC + 384)}')
        a.e(f'v_add_u32 v{T1}, s{S_T1}, v{T1}')
        for j in range(4):
            a.e(f'ds_read_b128 v[{CS4+4*j}:{CS4+4*j+3}], v{T1} offset:{32*j}')
        a.e('s_waitcnt lgkmcnt(0)')
        stamp()
        def p4_tail():
            soff(S_T0, ST_OFF)
            for k in range(4):
                a.vmem(f'buffer_load_dwordx4 v[{RAW+4*k}:{RAW+4*k+3}], v{V_STS}, {WS}, s{S_T0} offen offset:{512*k} sc1', 'st')
        small_gemm('P4', tail=p4_tail)
        stamp()
        a.wait_vm_all()
        emit_sum_partials(a, RAW, 16)
        emit_xreduce(a, [RAW, RAW + 1], [RAW + 2, RAW + 3], over16=False)
        emit_stats_from_sums(a, RAW, RAW + 1, RAW + 4, RAW + 6, RAW + 8, double=True, keep=(V_MEAN, V_RS))
        emit_lnfold(a, ACC, CS4, RAW + 4, RAW + 6, 16)
        emit_gelu(a, ACC, 16, TMP + 48, V_PQ)
        emit_pack32(a, TMP, ACC)
        tile_store(TMP, A0_OFF, gh=True)
        gl = a.newlabel('GH'); gu = a.newlabel('GH'); gd = a.newlabel('GH')
        a.e(f's_cmp_eq_u32 s{S_RB}, 3')
        a.e(f's_cbranch_scc0 {gu}')
        a.e(f's_cmp_eq_u32 s{S_RH}, 1')
        a.e(f's_cbranch_scc0 {gd}')
        a.e(f's_bitcmp1_b32 s{S_CB}, 1')
        a.e(f's_cbranch_scc1 {gd}')
        a.e(f's_cmp_eq_u32 s{S_G}, 7')
        a.e(f's_cbranch_scc1 {gd}')
        a.e(f's_add_u32 s{S_T1}, s{S_G}, 1')
        a.e(f's_mul_i32 s{S_T2}, s{S_T1}, {18*16384}')
        a.e(f's_lshl_b32 s{S_T3}, s{S_T1}, 8')
        set_exec(a, 0xc0000000)
        a.e(f's_branch {gl}')
        a.label(gu)
        a.e(f's_cmp_eq_u32 s{S_RB}, 0')
        a.e(f's_cbranch_scc0 {gd}')
        a.e(f's_cmp_eq_u32 s{S_RH}, 0')
        a.e(f's_cbranch_scc0 {gd}')
        a.e(f's_bitcmp1_b32 s{S_CB}, 1')
        a.e(f's_cbranch_scc0 {gd}')
        a.e(f's_cmp_eq_u32 s{S_G}, 0')
        a.e(f's_cbranch_scc1 {gd}')
        a.e(f's_sub_u32 s{S_T1}, s{S_G}, 1')
        a.e(f's_mul_i32 s{S_T2}, s{S_T1}, {18*16384}')
        a.e(f's_add_u32 s{S_T2}, s{S_T2}, {17*16384}')
        a.e(f's_lshl_b32 s{S_T3}, s{S_T1}, 8')
        a.e(f's_add_u32 s{S_T3}, s{S_T3}, 128')
        set_exec(a, 0x00000003)
        a.label(gl)
        a.e(f's_lshl_b32 s{S_T0}, s{S_CB}, 1')
        a.e(f's_add_u32 s{S_T0}, s{S_T0}, s{S_CH}')
        a.e(f's_lshl_b32 s{S_T0}, s{S_T0}, 10')
        a.e(f's_add_u32 s{S_T2}, s{S_T2}, s{S_T0}')
        a.e(f'v_and_b32 v{T0}, 0x3fff, v{V_TST}')
        a.e(f'v_and_b32 v{T0}, 0x3ff, v{T0}')
        a.e(f'buffer_store_dwordx4 v[{TMP}:{TMP+3}], v{T0}, {WS}, s{S_T2} offen sc1')
        a.e(f'buffer_store_dwordx4 v[{TMP+4}:{TMP+7}], v{T0}, {WS}, s{S_T2} offen offset:512 sc1')
        a.e('s_mov_b64 exec, -1')
        a.e(f's_and_b32 s{S_T0}, s{S_CB}, 1')
        a.e(f's_lshr_b32 s{S_T1}, s{S_CB}, 2')
        a.e(f's_lshl_b32 s{S_T1}, s{S_T1}, 1')
        a.e(f's_add_u32 s{S_T0}, s{S_T0}, s{S_T1}')
        a.e(f's_lshl_b32 s{S_T0}, s{S_T0}, 1')
        a.e(f's_add_u32 s{S_T0}, s{S_T0}, s{S_CH}')
        a.e(f's_lshl_b32 s{S_T0}, s{S_T0}, 2')
        a.e(f's_add_u32 s{S_T3}, s{S_T3}, s{S_T0}')
        a.e(f's_lshl_b32 s{S_T0}, s{S_L}, 11')
        a.e(f's_add_u32 s{S_T3}, s{S_T3}, s{S_T0}')
        a.e(f's_add_u32 s{S_T3}, s{S_T3}, {hex(HF_OFF)}')
        thr_value(a, S_THR, ep(3), xcc=True)
        a.e(f'v_mov_b32 v{T0}, s{S_T3}')
        a.e(f'v_mov_b32 v{T1}, s{S_THR}')
        a.e('s_waitcnt vmcnt(0)')
        a.e('s_mov_b64 exec, 1')
        a.e(f'buffer_store_dword v{T1}, v{T0}, {WS}, 0 offen sc1')
        a.e('s_mov_b64 exec, -1')
        a.label(gd)
        emit_signal(a, ep(3))
        stamp()
        if done('P4'): return True

        a.c('=== P5')
        stamp()
        small_gemm('P5')
        stamp()
        a.e(f'v_mul_f32 v{TMP+10}, v{V_MEAN}, v{V_RS}')
        a.e(f'v_sub_f32 v{TMP+10}, 0, v{TMP+10}')
        a.e(f'v_mov_b32 v{TMP+8}, v{V_RS}')
        for i in range(0, 16, 2):
            a.e(pk('fma', ACC + i, vp(V_RES + i), vp(TMP + 8), vp(ACC + i), mods=' op_sel_hi:[1,0,1]'))
        for i in range(0, 16, 2):
            a.e(pk('add', ACC + i, vp(ACC + i), vp(TMP + 10), mods=' op_sel_hi:[1,0]'))
        emit_pack32(a, TMP, ACC)
        tile_store(TMP, A1_OFF)
        soff(S_T1, ST_OFF)
        emit_stats_partial32(a, ACC, TMP + 12, f's{S_T1}')
        for i in range(0, 16, 2): a.e(pk('add', V_RES + i, vp(V_RES + i), vp(ACC + i)))
        emit_signal(a, ep(4))
        stamp()
        if done('P5'): return True

        a.c('=== P6')
        CS6 = V_ACC; ACC6 = 192; WR6 = 96
        a.e(f'v_and_b32 v{T1}, 0x30, v{V_LANE}')
        a.e(f'v_add_u32 v{T1}, {hex(CSC + 640)}, v{T1}')
        for t in range(7):
            a.e(f'ds_read_b128 v[{CS6+4*t}:{CS6+4*t+3}], v{T1} offset:{64*t}')
        a.e('s_waitcnt lgkmcnt(0)')
        emit_poll(a, V_FSB, ep(4), opt=opt)
        stamp()
        def p6_load(j):
            a.e(f's_lshl_b32 s{S_T0}, s{S_RB2}, {13 if opt.rot else 31}')
            if not opt.rot: a.e(f's_mov_b32 s{S_T0}, 0')
            a.e(f's_xor_b32 s{S_T0}, s{S_T0}, {hex((j // 4) * 4096)}')
            a.e(f's_add_u32 s{S_T0}, s{S_T0}, {hex(A1_OFF)}')
            a.e(f's_add_u32 s{S_T1}, s{S_T0}, 0x4000')
            for r in range(2):
                d = V_A + ((j % 8) * 2 + r) * 4
                a.vmem(f'buffer_load_dwordx4 v[{d}:{d+3}], v{V_AB}, {WS}, s{S_T0 if r == 0 else S_T1} offen offset:{(j%4)*1024} sc1', ('A', j))
        RAW6 = [V_PQ, 248]
        def p6_issue(j, t):
            if t == 1:
                if j + opt.D_p6 < 16:
                    p6_load(j + opt.D_p6)
                elif j + opt.D_p6 == 16:
                    soff(S_T0, ST_OFF)
                    for r in range(2):
                        a.vmem(f'buffer_load_dwordx4 v[{RAW6[r]}:{RAW6[r]+3}], v{V_STB}, {WS}, s{S_T0} offen offset:{256*r} sc1', 'st')
                        a.vmem(f'buffer_load_dwordx4 v[{RAW6[r]+4}:{RAW6[r]+7}], v{V_STB}, {WS}, s{S_T0} offen offset:{256*r+512} sc1', 'st')
        a.fstamp('P6')
        for j in range(opt.D_p6): p6_load(j)
        emit_gemm16(a, bar, 'P6', slabs['P6'], 7, '224',
                    acc_of=lambda r, t: ACC6 + (r * 7 + t) * 4, a_of=lambda r, j: V_A + ((j % 8) * 2 + r) * 4,
                    a_wait=lambda j: a.count_vm(('A', j)), a_issue=p6_issue, wr=WR6, S=8)
        stamp()
        a.wait_vm_all()
        for r in range(2): emit_sum_partials(a, RAW6[r], 8)
        emit_xreduce(a, [RAW6[0], RAW6[0] + 1, RAW6[1], RAW6[1] + 1], [V_X, V_X + 1, V_X + 2, V_X + 3])
        AB6 = [(92, 94), (RAW6[1] + 4, RAW6[1] + 6)]
        for r in range(2):
            emit_stats_from_sums(a, RAW6[r], RAW6[r] + 1, AB6[r][0], AB6[r][1], V_X)
        a.e(f's_lshl_b32 s{S_T0}, s{S_G}, 4')
        a.e(f's_lshl_b32 s{S_T1}, s{S_RB2}, 3')
        a.e(f's_add_u32 s{S_T0}, s{S_T0}, s{S_T1}')
        a.e(f's_lshl_b32 s{S_T1}, s{S_W}, 1')
        a.e(f's_add_u32 s{S_T0}, s{S_T0}, s{S_T1}')
        a.e(f's_mul_i32 s{S_T0}, s{S_T0}, 57344')
        a.e(f's_lshr_b32 s{S_T1}, s{S_CB2}, 1')
        a.e(f's_mul_i32 s{S_T1}, s{S_T1}, 7168')
        a.e(f's_add_u32 s{S_T0}, s{S_T0}, s{S_T1}')
        a.e(f's_add_u32 s{S_T0}, s{S_T0}, {hex(G_OFF)}')
        a.e(f's_and_b32 s{S_T1}, s{S_CB2}, 1')
        a.e(f's_mul_i32 s{S_U0}, s{S_T1}, 3072')
        a.e(f's_add_u32 s{S_U0}, s{S_U0}, s{S_T0}')
        a.e(f's_add_u32 s{S_U1}, s{S_U0}, 57344')
        a.e(f's_lshl_b32 s{S_T1}, s{S_T1}, 3')
        a.e(f's_add_u32 s{S_U2}, s{S_T0}, s{S_T1}')
        a.e(f's_add_u32 s{S_U2}, s{S_U2}, 6144')
        a.e(f's_add_u32 s{S_U3}, s{S_U2}, 57344')
        a.e(f'v_lshlrev_b32 v{V_X+4}, 4, v{V_LANE}')
        for r in range(2):
            emit_lnfold(a, ACC6 + r * 28, CS6, AB6[r][0], AB6[r][1], 28)
            emit_gelu(a, ACC6 + r * 28, 28, V_A, V_PQ + 4)
            pkb = V_A + 16 + r * 16
            emit_pack(a, pkb, ACC6 + r * 28, 28)
            st = [f'buffer_store_dwordx4 v[{pkb+4*j}:{pkb+4*j+3}], v{V_X+4}, {WS}, s{S_U0+r} offen offset:{1024*j}' for j in range(3)]
            st.append(f'buffer_store_dwordx2 v[{pkb+12}:{pkb+13}], v{V_X+4}, {WS}, s{S_U2+r} offen')
            emit_mode_stores(a, st, cold=bool(opt.g_cold))
        emit_signal(a, ep(5))
        stamp()
        if done('P6'): return True

        a.c('=== P7')
        if opt.p7_self:
            VG, VF = V_A + 100, V_A + 101
            a.e(f's_lshl_b32 s{S_T0}, s{S_G}, 4'); a.e(f's_lshl_b32 s{S_T1}, s{S_RB}, 2'); a.e(f's_add_u32 s{S_T0}, s{S_T0}, s{S_T1}')
            a.e(f's_add_u32 s{S_T0}, s{S_T0}, s{S_W}'); a.e(f's_mul_i32 s{S_T0}, s{S_T0}, 57344')
            a.e(f'v_lshlrev_b32 v{VG}, 4, v{V_LANE}'); a.e(f'v_add_u32 v{VG}, s{S_T0}, v{VG}')
            for p_ in range(8):
                a.e(f's_and_b32 s{S_P7+p_}, s{S_RB}, {3 if opt.rot else 0}'); a.e(f's_lshl_b32 s{S_P7+p_}, s{S_P7+p_}, 1')
                a.e(f's_xor_b32 s{S_P7+p_}, s{S_P7+p_}, {p_}'); a.e(f's_mul_i32 s{S_P7+p_}, s{S_P7+p_}, 7168')
            a.e(f's_lshl_b32 s{S_T2}, s{S_G}, 9'); a.e(f's_add_u32 s{S_T2}, s{S_T2}, {hex(LF_OFF)}')
            a.e(f's_and_b32 s{S_T3}, s{S_RB}, 1'); a.e(f's_lshl_b32 s{S_T3}, s{S_T3}, 1'); a.e(f's_add_u32 s{S_T3}, s{S_T3}, s{S_RH}')
            a.e(f's_lshl_b32 s{S_T3}, s{S_T3}, 7'); a.e(f's_add_u32 s{S_T3}, s{S_T3}, s{S_T2}')
            a.e(f's_lshr_b32 s{S_T4}, s{S_RB}, 1'); a.e(f's_lshl_b32 s{S_T4}, s{S_T4}, 6'); a.e(f's_add_u32 s{S_T3}, s{S_T3}, s{S_T4}')
            a.e(f'v_and_b32 v{VF}, 15, v{V_LANE}'); a.e(f'v_lshlrev_b32 v{VF}, 2, v{VF}'); a.e(f'v_add_u32 v{VF}, s{S_T3}, v{VF}')
            a.e(f's_lshl_b32 s{S_T3}, s{S_R}, 2'); a.e(f's_add_u32 s{S_T3}, s{S_T3}, s{S_T2}')
            a.e(f'v_and_b32 v{T1}, 3, v{V_LANE}'); a.e(f'v_lshlrev_b32 v{T1}, 7, v{T1}'); a.e(f'v_add_u32 v{T1}, s{S_T3}, v{T1}')
            a.e(f'v_cmp_lt_u32 vcc, 15, v{V_LANE}'); a.e('s_nop 1'); a.e(f'v_cndmask_b32 v{VF}, v{VF}, v{T1}, vcc')
            emit_poll(a, VF, ep(5), opt=opt)
            stamp()
            def pieces7(c):
                state = {'last': None}
                def mk(k):
                    def f():
                        if k == 0: a.e(f's_add_u32 m0, s{S_W4K}, {hex(AREG + (c % 4) * 16384)}')
                        p_, i_ = divmod(4 * c + k, 7)
                        const = G_OFF + (i_ - k) * 1024
                        if state['last'] != (p_, const):
                            a.e(f's_add_u32 s{S_T0}, s{S_P7+p_}, {hex(const & 0xffffffff)}'); state['last'] = (p_, const)
                        a.vmem(f'buffer_load_dwordx4 v{VG}, {WS}, s{S_T0} offen offset:{k*1024} sc1 lds', ('A', c))
                    return f
                return [mk(k) for k in range(4)]
            emit_gemm32(a, bar, 'P7', slabs['P7'], ACC, WR, a_pieces=pieces7)
        else:
            stamp()
            small_gemm('P7')
        stamp()
        for i in range(0, 16, 2): a.e(pk('add', V_RES + i, vp(V_RES + i), vp(ACC + i)))
        emit_pack32(a, TMP, V_RES)
        return False

    stopped = run_layer()
    if not stopped:
        fin = a.newlabel('FIN'); TMP = V_A
        a.e(f's_cmp_eq_u32 s{S_L}, 1')
        a.e(f's_cbranch_scc1 {fin}')
        a.e(f's_mov_b32 s{S_T0}, {hex(A2_OFF)}')
        emit_mode_stores(a, [f'buffer_store_dwordx4 v[{TMP}:{TMP+3}], v{V_TST}, {WS}, s{S_T0} offen',
                             f'buffer_store_dwordx4 v[{TMP+4}:{TMP+7}], v{V_TST}, {WS}, s{S_T0} offen offset:512'], cold=True)
        a.e(f's_mov_b32 s{S_T1}, {hex(ST_OFF)}')
        emit_stats_partial32(a, V_RES, TMP + 8, f's{S_T1}')
        a.e(f's_add_u32 s{S_EP}, s{S_EP}, 6')
        emit_signal(a, f's{S_EP}')
        if opt.timing:
            dump([tmreg(i) for i in range(tm[0])])
        a.e(f's_mov_b32 s{S_L}, 1')
        a.e(f's_mov_b32 s{S_LOFF}, {hex(KVP_L)}')
        a.e(f's_mov_b32 s{S_COLD}, s{S_MODE}')
        for i in range(3): a.e(f's_mov_b32 s{S_PA+i}, s{S_WS+i}')
        a.e(f's_mov_b32 s{S_PA+3}, 0x20000')
        a.e(f'v_mov_b32 v{V_P1}, v{V_AB}')
        for c in range(4):
            a.e(f's_xor_b32 s{S_RK+c}, s{S_ROTK}, {c}')
            a.e(f's_lshl_b32 s{S_RK+c}, s{S_RK+c}, 12')
            a.e(f's_add_u32 s{S_RK+c}, s{S_RK+c}, {hex(A2_OFF)}')
        a.e(f's_mov_b32 s{S_ASTR}, 1024')
        a.e(f's_branch {LOOP}')
        a.label(fin)
        emit_pack(a, TMP, V_RES, 16)
        OS = f's[{S_OUT}:{S_OUT+3}]'
        for j in range(4):
            a.e(f'buffer_store_dwordx2 v[{TMP+2*j}:{TMP+2*j+1}], v{V_XRM}, {OS}, 0 offen offset:{16*j}')
    a.label('L_END_COMPUTE')
    nn = a.newlabel('NON')
    a.e(f's_or_b32 s{S_T0}, s2, s{S_W}')
    a.e(f's_cmp_eq_u32 s{S_T0}, 0')
    a.e(f's_cbranch_scc0 {nn}')
    a.e(f's_add_u32 s{S_T0}, s{S_V}, 1')
    a.e(f'v_mov_b32 v{V_T0}, s{S_T0}')
    a.e(f'v_mov_b32 v{V_T1}, {hex(NONCE_OFF)}')
    a.e('s_mov_b64 exec, 1')
    a.e(f'buffer_store_dword v{V_T0}, v{V_T1}, {WS}, 0 offen')
    a.e('s_mov_b64 exec, -1')
    a.label(nn)
    stamp()
    if opt.timing: dump([tmreg(i) for i in range(tm[0])] + ([85] if False else []))
    if opt.fine: dump([freg(i) for i in range(fs[0])])
    if opt.wall:
        a.e('s_waitcnt vmcnt(0)')
        a.e('s_memrealtime s[82:83]'); a.e('s_memtime s[80:81]'); a.e('s_waitcnt lgkmcnt(0)')
        dump([84, 82, 85, 80])
    a.e('s_waitcnt vmcnt(0)')
    a.e('s_endpgm')
    return evq


def gen_loader(a, opt, events):
    VN, VKV, VQ, VW3, VKVn, VQn = 8, 12, 16, 20, 28, 32
    VT0, VT1, VT2, VT3 = 1, 2, 3, 4
    a.c('--- loader setup')
    def srd(s, p, size):
        a.e(f's_mov_b32 s{s}, s{p}'); a.e(f's_mov_b32 s{s+1}, s{p+1}')
        a.e(f's_mov_b32 s{s+2}, {hex(size)}'); a.e(f's_mov_b32 s{s+3}, 0x20000')
    srd(S_WQKV, S_PTR + 2, 512 * 1536 * 2)
    srd(S_WO, S_PTR + 4, 512 * 512 * 2)
    srd(S_W1, S_PTR + 8, 512 * 512 * 2)
    srd(S_W2, S_PTR + 10, 512 * 512 * 2)
    srd(S_W3, S_PTR + 12, 512 * 1792 * 2)
    srd(S_W4, S_PTR + 14, 1792 * 512 * 2)
    CBS, CBK, CB6, CB7 = 64, 68, 72, 76
    a.e(f's_lshl_b32 s{S_T1}, s{S_RB2}, 1')
    a.e(f's_add_u32 s{S_T1}, s{S_T1}, s{S_CB2}')
    a.e(f's_and_b32 s{S_T1}, s{S_T1}, {3 if opt.rot else 0}')
    for c in range(4):
        a.e(f's_xor_b32 s{CBK+c}, s{S_T1}, {c}')
        a.e(f's_mul_i32 s{CBK+c}, s{CBK+c}, {128*3072}')
    def late_tables():
        rm = 3 if opt.rot else 0
        for c in range(4):
            a.e(f's_and_b32 s{CBS+c}, s{S_RB}, {rm}')
            a.e(f's_xor_b32 s{CBS+c}, s{CBS+c}, {c}')
            a.e(f's_lshl_b32 s{CBS+c}, s{CBS+c}, 17')
            a.e(f's_lshl_b32 s{CB6+c}, s{S_RB2}, 1')
            a.e(f's_and_b32 s{CB6+c}, s{CB6+c}, {rm}')
            a.e(f's_xor_b32 s{CB6+c}, s{CB6+c}, {c}')
            a.e(f's_mul_i32 s{CB6+c}, s{CB6+c}, {128*3584}')
        for p_ in range(8):
            a.e(f's_and_b32 s{CB7+p_}, s{S_RB}, {rm}')
            a.e(f's_lshl_b32 s{CB7+p_}, s{CB7+p_}, 1')
            a.e(f's_xor_b32 s{CB7+p_}, s{CB7+p_}, {p_}')
            a.e(f's_mul_i32 s{CB7+p_}, s{CB7+p_}, {224*1024}')

    def cs_issue():
        a.c('cs pieces')
        c1 = a.newlabel('CS'); c2 = a.newlabel('CS'); c3 = a.newlabel('CS')
        a.e(f's_min_u32 s{92}, s2, 239')
        a.e(f's_lshr_b32 s{93}, s{92}, 2')
        a.e(f's_and_b32 s{94}, s{92}, 3')
        a.e(f's_cmp_lt_u32 s{93}, 24')
        a.e(f's_cbranch_scc0 {c1}')
        for i in range(3): a.e(f's_mov_b32 s{S_CSRD+i}, s{S_WQKV+i}')
        a.e(f's_mov_b32 s{S_T0}, 3072')
        a.e(f's_lshl_b32 s{S_T1}, s{93}, 7')
        a.e(f's_branch {c3}')
        a.label(c1)
        a.e(f's_cmp_lt_u32 s{93}, 32')
        a.e(f's_cbranch_scc0 {c2}')
        for i in range(3): a.e(f's_mov_b32 s{S_CSRD+i}, s{S_W1+i}')
        a.e(f's_mov_b32 s{S_T0}, 1024')
        a.e(f's_sub_u32 s{S_T1}, s{93}, 24')
        a.e(f's_lshl_b32 s{S_T1}, s{S_T1}, 7')
        a.e(f's_branch {c3}')
        a.label(c2)
        for i in range(3): a.e(f's_mov_b32 s{S_CSRD+i}, s{S_W3+i}')
        a.e(f's_mov_b32 s{S_T0}, 3584')
        a.e(f's_sub_u32 s{S_T1}, s{93}, 32')
        a.e(f's_lshl_b32 s{S_T1}, s{S_T1}, 7')
        a.label(c3)
        a.e(f's_mov_b32 s{S_CSRD+3}, 0x20000')
        a.e(f'v_lshrrev_b32 v{VT1}, 3, v{V_LANE}')
        a.e(f'v_mul_lo_u32 v{VT1}, v{VT1}, s{S_T0}')
        a.e(f'v_and_b32 v{VT2}, 7, v{V_LANE}')
        a.e(f'v_lshl_add_u32 v{VT1}, v{VT2}, 4, v{VT1}')
        a.e(f'v_add_u32 v{VT1}, s{S_T1}, v{VT1}')
        a.e(f's_lshl_b32 s{S_T1}, s{94}, 7')
        a.e(f's_mul_i32 s{S_T1}, s{S_T1}, s{S_T0}')
        a.e(f's_lshl_b32 s{S_T0}, s{S_T0}, 3')
        a.e(f's_mov_b32 m0, {hex(CSL)}')
        for p in range(16):
            a.e('s_nop 0')
            a.vmem(f'buffer_load_dwordx4 v{VT1}, s[{S_CSRD}:{S_CSRD+3}], s{S_T1} offen lds', 'cs')
            if p < 15:
                a.e('s_add_u32 m0, m0, 1024')
                a.e(f's_add_u32 s{S_T1}, s{S_T1}, s{S_T0}')
    dg = [0]
    def dstamp():
        if opt.startdiag:
            a.e(f's_memtime s[{84+2*dg[0]}:{85+2*dg[0]}]') if False else None
            a.e('s_memtime s[98:99]'); a.e('s_waitcnt lgkmcnt(0)')
            a.e('s_sub_u32 s98, s98, s100')
            a.e(f'v_mov_b32 v{100+dg[0]}, s98'); dg[0] += 1
    dstamp()
    cs_issue()
    a.e(f'v_lshrrev_b32 v{VT0}, 3, v{V_LANE}')
    a.e(f'v_bfe_u32 v{VT1}, v{VT0}, 1, 2')
    a.e(f'v_lshlrev_b32 v{VT1}, 1, v{VT1}')
    a.e(f'v_and_b32 v{VT2}, 7, v{V_LANE}')
    a.e(f'v_xor_b32 v{VT2}, v{VT2}, v{VT1}')
    a.e(f'v_and_b32 v{VT1}, 3, v{VT2}')
    a.e(f'v_lshlrev_b32 v{VT3}, 4, v{VT1}')
    a.e(f'v_lshrrev_b32 v{VT1}, 2, v{VT2}')
    a.e(f'v_lshl_add_u32 v{VT3}, v{VT1}, 10, v{VT3}')
    a.e(f's_lshl_b32 s{S_T0}, s{S_CB2}, 6')
    a.e(f's_add_u32 s{S_T1}, s{S_T0}, 1024')
    a.e(f'v_add_u32 v{VT3}, s{S_T1}, v{VT3}')
    a.e(f'v_lshrrev_b32 v{VT1}, 2, v{VT0}')
    a.e(f'v_lshlrev_b32 v{VT1}, 3, v{VT1}')
    a.e(f'v_and_b32 v{VT2}, 3, v{VT0}')
    a.e(f'v_add_u32 v{VT1}, v{VT1}, v{VT2}')
    a.e(f'v_mul_u32_u24 v{VT1}, 3072, v{VT1}')
    a.e(f'v_add_u32 v{VT1}, v{VT1}, v{VT3}')
    for p in range(4):
        off = (16 * (p & 1) + 4 * (p >> 1)) * 3072 - p * 1024
        a.e(f'v_add_u32 v{VKVn+p}, {hex(off & 0xffffffff)}, v{VT1}')
    a.e(f'v_mul_u32_u24 v{VKV}, 3072, v{VT0}')
    a.e(f'v_add_u32 v{VKV}, v{VKV}, v{VT3}')
    for j in range(1, 4): a.e(f'v_add_u32 v{VKV+j}, {hex(j*(8*3072-1024))}, v{VKV}')

    layers = sorted(set(e[0] for e in events))
    slabs = {L: build_slabs(L) for L in layers}
    stream = []
    needed = set((e[0], e[2], e[3]) for e in events if e[1] == 'B')
    for L in layers:
        for p in PHASES:
            for ci, ch in enumerate(slabs[L][p]):
                if (L, p, ci) in needed: stream += ch
    released = set()
    log = []; cur = ['start']
    opt._log = log
    st = {'issued': 0}
    win = [opt.window0]
    def overlaps_unreleased(s, idx):
        for k in range(idx):
            o = stream[k]
            if (o.layer, o.phase, o.chunk) in released: continue
            if o.addr < s.addr + s.size and s.addr < o.addr + o.size: return True
        return False
    def emit_slab(s):
        kind = s.kind; tag = (s.layer, s.phase, s.chunk)
        if kind in opt.dbg_skip.split(','): return
        if kind in ('WO', 'W1', 'W2', 'W4'):
            srd_ = {'WO': S_WO, 'W1': S_W1, 'W2': S_W2, 'W4': S_W4}[kind]; vb = VN; rs = 1024
        elif kind == 'KV': srd_, vb, rs = S_WQKV, (VKVn if s.layer == 0 else VKV), 3072
        elif kind == 'Q': srd_, vb, rs = S_WQKV, (VQn if s.layer == 0 else VQ), 3072
        else: srd_, vb, rs = S_W3, VW3, 3584
        R4 = f's[{srd_}:{srd_+3}]'
        def grp(addr, srow, ps, v0):
            a.e(f's_mov_b32 m0, {hex(addr)}')
            if kind == 'W4':
                p_, rr_ = divmod(srow, 224); tb_ = CB7 + p_
            else:
                c_, rr_ = divmod(srow, 128); tb_ = {'KV': CBK, 'Q': CBK, 'W3': CB6}.get(kind, CBS) + c_
            a.e(f's_add_u32 s{S_T0}, s{tb_}, {hex(rr_*rs)}')
            for k, p in enumerate(ps):
                a.vmem(f'buffer_load_dwordx4 v{vb+p}, {R4}, s{S_T0} offen offset:{k*1024} {"nt " if opt.w_nt else ""}lds', tag)
        if kind == 'W3':
            grp(s.addr, s.srow, [0, 1, 2, 3], 0); grp(s.addr + 4096, s.srow, [4, 5, 6], 0)
        elif kind == 'W4' and s.srow2 != s.srow + 16:
            grp(s.addr, s.srow, [0, 1], 0); grp(s.addr + 2048, s.srow2, [0, 1], 0)
        else:
            grp(s.addr, s.srow, [0, 1, 2, 3], 0)
        if len(a.vm) > win[0]:
            a.e(f's_waitcnt vmcnt({win[0]})')
            a.vm = a.vm[len(a.vm) - win[0]:]
    plan = {}
    opt._plan = plan
    free = [56, 56]
    def need_slots(s): return (4, 3) if s.kind == 'W3' else (2, 2)
    def park_policy(key):
        if not opt.park: return
        name = key.split('.', 1)[1] if key[0] in '01' else None
        if name is None: return
        L = int(key[0])
        if name in opt.park_w3:
            cand = [s for s in stream[st['issued']:] if s.layer == L and s.phase == 'P6' and s.chunk >= 1]; cap = opt.park_w3[name]
        elif name in opt.park_caps:
            cand = [s for s in stream[st['issued']:] if s.layer == L and s.phase == 'P7' and s.chunk >= 6]; cap = opt.park_caps[name]
        else:
            return
        for s in cand:
            if getattr(s, 'parked', False): continue
            n0, n1 = need_slots(s)
            if cap <= 0 or free[0] < n0 or free[1] < n1: break
            s.parked = True; free[0] -= n0; free[1] -= n1; cap -= 1
            plan.setdefault(key, []).append(('park', s))
    def issue(cap, must=None):
        n = 0; nu = 0
        while st['issued'] < len(stream):
            s = stream[st['issued']]
            forced = must is not None and any((o.layer, o.phase, o.chunk) == must for o in stream[st['issued']:])
            pk_ = getattr(s, 'parked', False)
            if not forced and not pk_ and n + s.npieces > cap: break
            if not forced and pk_ and (nu >= opt.unpark_max or must is not None): break
            if overlaps_unreleased(s, st['issued']):
                assert not forced, ('deadlock', must, s.layer, s.phase, s.chunk)
                break
            if pk_:
                plan.setdefault(cur[0], []).append(('unpark', s)); nu += 1
                n0, n1 = need_slots(s); free[0] += n0; free[1] += n1
                st['issued'] += 1
                log.append((cur[0], s.layer, s.phase + '*', s.chunk, forced))
                continue
            emit_slab(s); st['issued'] += 1; n += s.npieces
            log.append((cur[0], s.layer, s.phase, s.chunk, forced))
    issue(64)
    dstamp()
    def nonce_setup():
        a.e('s_waitcnt lgkmcnt(0)')
        a.e(f's_mul_i32 s{S_B}, s{S_V}, 0x9e3779b1')
        a.e(f's_add_u32 s{S_B}, s{S_B}, 0x7f4a7c15')
        a.e(f's_and_b32 s{S_B}, s{S_B}, 0xffffff00')
    def late_setup():
        if not opt.cs_late: nonce_setup()
        a.e(f's_lshl_b32 s{S_T0}, s{S_G}, 7')
        a.e(f's_lshl_b32 s{S_T1}, s{S_R}, 2')
        a.e(f's_add_u32 s{S_T0}, s{S_T0}, s{S_T1}')
        a.e(f's_add_u32 s{S_T0}, s{S_T0}, {hex(XID_OFF)}')
        a.e(f'v_mov_b32 v{VT1}, s{S_T0}')
        a.e(f's_add_u32 s{S_T1}, s{S_B}, s{S_XCC}')
        a.e(f'v_mov_b32 v{VT0}, s{S_T1}')
        a.e('s_mov_b64 exec, 1')
        a.vmem(f'buffer_store_dword v{VT0}, v{VT1}, {WS}, 0 offen sc1', 'xid')
        a.e('s_mov_b64 exec, -1')
        late_tables()
        a.c('W lane offsets')
        a.e(f'v_lshrrev_b32 v{VT0}, 3, v{V_LANE}')
        a.e(f'v_bfe_u32 v{VT1}, v{VT0}, 1, 1')
        a.e(f'v_lshlrev_b32 v{VT1}, 2, v{VT1}')
        a.e(f'v_and_b32 v{VT2}, 7, v{V_LANE}')
        a.e(f'v_xor_b32 v{VT2}, v{VT2}, v{VT1}')
        a.e(f'v_lshlrev_b32 v{VN}, 10, v{VT0}')
        a.e(f'v_lshl_add_u32 v{VN}, v{VT2}, 4, v{VN}')
        a.e(f's_lshl_b32 s{S_T0}, s{S_CB}, 7')
        a.e(f'v_add_u32 v{VN}, s{S_T0}, v{VN}')
        for j in range(1, 4): a.e(f'v_add_u32 v{VN+j}, {hex(j*(8192-1024))}, v{VN}')
        a.e(f'v_lshrrev_b32 v{VT0}, 2, v{V_LANE}')
        a.e(f'v_bfe_u32 v{VT1}, v{VT0}, 2, 1')
        a.e(f'v_lshlrev_b32 v{VT1}, 1, v{VT1}')
        a.e(f'v_and_b32 v{VT2}, 3, v{V_LANE}')
        a.e(f'v_xor_b32 v{VT2}, v{VT2}, v{VT1}')
        a.e(f'v_lshlrev_b32 v{VT3}, 4, v{VT2}')
        a.e(f's_lshl_b32 s{S_T0}, s{S_CB2}, 6')
        a.e(f'v_add_u32 v{VT3}, s{S_T0}, v{VT3}')
        a.e(f'v_mul_u32_u24 v{VQ}, 3072, v{VT0}')
        a.e(f'v_add_u32 v{VQ}, v{VQ}, v{VT3}')
        for j in range(1, 4): a.e(f'v_add_u32 v{VQ+j}, {hex(j*(16*3072-1024))}, v{VQ}')
        a.e(f'v_lshrrev_b32 v{VT1}, 2, v{VT0}')
        a.e(f'v_lshlrev_b32 v{VT1}, 3, v{VT1}')
        a.e(f'v_and_b32 v{VT2}, 3, v{VT0}')
        a.e(f'v_add_u32 v{VT1}, v{VT1}, v{VT2}')
        a.e(f'v_mul_u32_u24 v{VT1}, 3072, v{VT1}')
        a.e(f'v_add_u32 v{VT1}, v{VT1}, v{VT3}')
        for p in range(4):
            off = (4 * (p & 1) + 32 * (p >> 1)) * 3072 - p * 1024
            a.e(f'v_add_u32 v{VQn+p}, {hex(off & 0xffffffff)}, v{VT1}')
        a.e(f's_mul_i32 s{S_T0}, s{S_CB2}, 224')
        M14 = (1 << 20) // 14 + 1
        a.e(f's_mov_b32 s{S_T1}, {hex(M14)}')
        for p in range(7):
            a.e(f'v_add_u32 v{VT0}, {64*p}, v{V_LANE}')
            a.e(f'v_mul_lo_u32 v{VT1}, v{VT0}, s{S_T1}')
            a.e(f'v_lshrrev_b32 v{VT1}, 20, v{VT1}')
            a.e(f'v_mul_u32_u24 v{VT2}, 14, v{VT1}')
            a.e(f'v_sub_u32 v{VT2}, v{VT0}, v{VT2}')
            a.e(f'v_mul_u32_u24 v{VW3+p}, 3584, v{VT1}')
            a.e(f'v_lshl_add_u32 v{VW3+p}, v{VT2}, 4, v{VW3+p}')
            a.e(f'v_add_u32 v{VW3+p}, s{S_T0}, v{VW3+p}')
            if p % 4: a.e(f'v_subrev_u32 v{VW3+p}, {(p%4)*1024}, v{VW3+p}')
        for u in range(448): assert (u * M14) >> 20 == u // 14

    def cs_part1():
        a.wait_vm('cs')
        a.e(f'v_bfe_u32 v{VT0}, v{V_LANE}, 2, 2')
        a.e(f'v_lshrrev_b32 v{VT1}, 4, v{V_LANE}')
        a.e(f'v_lshl_add_u32 v{VT0}, v{VT1}, 2, v{VT0}')
        a.e(f'v_lshlrev_b32 v{VT0}, 7, v{VT0}')
        a.e(f'v_and_b32 v{VT2}, 3, v{V_LANE}')
        a.e(f'v_lshl_add_u32 v{VT0}, v{VT2}, 3, v{VT0}')
        a.e(f'v_add_u32 v{VT0}, {hex(CSL)}, v{VT0}')
        for i in range(4): a.e(f'v_mov_b32 v{40+i}, 0x3f803f80')
        for j in range(4):
            for t in range(4):
                a.e(f'ds_read_b64_tr_b16 v[{64+4*t}:{65+4*t}], v{VT0} offset:{j*4096+t*32}')
                a.e(f'ds_read_b64_tr_b16 v[{66+4*t}:{67+4*t}], v{VT0} offset:{j*4096+t*32+2048}')
            a.e('s_waitcnt lgkmcnt(0)')
            for t in range(4):
                c = '0' if j == 0 else f'v[{44+4*t}:{47+4*t}]'
                a.e(f'v_mfma_f32_16x16x32_bf16 v[{44+4*t}:{47+4*t}], v[{64+4*t}:{67+4*t}], v[40:43], {c}')
        a.e(f's_mul_i32 s{S_T0}, s{94}, 15360')
        a.e(f's_lshl_b32 s{S_T1}, s{93}, 8')
        a.e(f's_add_u32 s{S_T0}, s{S_T0}, s{S_T1}')
        a.e(f's_add_u32 s{S_T0}, s{S_T0}, {hex(CSP_OFF)}')
        a.e(f'v_lshlrev_b32 v{VT1}, 4, v{VT1}')
        a.e('s_nop 7')
        set_exec(a, 0x00010001)
        for t in range(4):
            a.vmem(f'buffer_store_dwordx4 v[{44+4*t}:{47+4*t}], v{VT1}, {WS}, s{S_T0} offen offset:{64*t} sc1', 'csst')
        a.e('s_mov_b64 exec, -1')
        if opt.kv_atomic:
            zl = a.newlabel('ZK')
            a.e(f's_lshr_b32 s{S_T0}, s2, 3')
            a.e(f's_mul_i32 s{S_T0}, s{S_T0}, {KVREC}')
            a.e(f's_add_u32 s{S_T0}, s{S_T0}, {hex(KVA_OFF)}')
            a.e(f's_and_b32 s{S_T1}, s2, 0x87')
            a.e(f's_cmp_eq_u32 s{S_T1}, 0')
            a.e(f's_cbranch_scc0 {zl}')
            for i in range(4): a.e(f'v_mov_b32 v{60+i}, 0')
            a.e(f'v_lshlrev_b32 v{VT0}, 4, v{V_LANE}')
            for l_ in range(2):
                a.vmem(f'buffer_store_dwordx4 v[60:63], v{VT0}, {WS}, s{S_T0} offen sc1', 'csst')
                a.vmem(f'buffer_store_dwordx4 v[60:63], v{VT0}, {WS}, s{S_T0} offen offset:1024 sc1', 'csst')
                a.e('s_mov_b64 exec, 0xff')
                a.vmem(f'buffer_store_dwordx4 v[60:63], v{VT0}, {WS}, s{S_T0} offen offset:2048 sc1', 'csst')
                a.e('s_mov_b64 exec, -1')
                if l_ == 0: a.e(f's_add_u32 s{S_T0}, s{S_T0}, {16*KVREC}')
            a.label(zl)
    def cs_part2():
        a.e(f's_lshl_b32 s{S_T0}, s2, 7')
        a.e(f's_add_u32 s{S_T0}, s{S_T0}, {hex(CSF_OFF)}')
        a.e(f'v_mov_b32 v{VT1}, s{S_T0}')
        a.e(f's_add_u32 s{S_T1}, s{S_B}, 8')
        a.e(f'v_mov_b32 v{VT0}, s{S_T1}')
        a.wait_vm('csst')
        a.e('s_mov_b64 exec, 1')
        a.vmem(f'buffer_store_dword v{VT0}, v{VT1}, {WS}, 0 offen sc1', 'csf')
        a.e('s_mov_b64 exec, -1')
    def cs_fill():
        L_ = a.newlabel('CPOLL'); D_ = a.newlabel('CPOLLD')
        a.e(f'v_min_u32 v{VT0}, 27, v{V_LANE}')
        a.e(f'v_lshrrev_b32 v{VT2}, 2, v{VT0}')
        a.e(f's_lshr_b32 s{S_T0}, s{S_CB2}, 1')
        a.e(f'v_lshlrev_b32 v{VT1}, 3, v{VT2}')
        a.e(f'v_add_u32 v{VT1}, s{S_T0}, v{VT1}')
        a.e(f's_add_u32 s{S_T0}, s{S_CB}, 24')
        a.e(f'v_mov_b32 v{VT3}, s{S_T0}')
        a.e(f'v_cmp_eq_u32 vcc, 3, v{VT2}')
        a.e('s_nop 1')
        a.e(f'v_cndmask_b32 v{VT1}, v{VT1}, v{VT3}, vcc')
        a.e(f's_mul_i32 s{S_T0}, s{S_CB2}, 112')
        a.e(f's_lshr_b32 s{S_T0}, s{S_T0}, 6')
        a.e(f's_add_u32 s{S_T0}, s{S_T0}, {32 - 4}')
        a.e(f'v_add_u32 v{VT3}, s{S_T0}, v{VT2}')
        a.e(f'v_min_u32 v{VT3}, 59, v{VT3}')
        a.e(f'v_cmp_lt_u32 vcc, 3, v{VT2}')
        a.e('s_nop 1')
        a.e(f'v_cndmask_b32 v{VT1}, v{VT1}, v{VT3}, vcc')
        a.e(f'v_and_b32 v{VT0}, 3, v{VT0}')
        a.e(f'v_lshl_add_u32 v{VT1}, v{VT1}, 2, v{VT0}')
        if opt.kv_atomic:
            a.e(f's_lshl_b32 s{S_T0}, s{S_CB2}, 3')
            a.e(f'v_mov_b32 v{VT3}, s{S_T0}')
            a.e(f'v_cmp_lt_u32 vcc, 27, v{V_LANE}')
            a.e('s_nop 1')
            a.e(f'v_cndmask_b32 v{VT1}, v{VT1}, v{VT3}, vcc')
        a.e(f'v_lshlrev_b32 v{VT1}, 7, v{VT1}')
        a.e(f's_mov_b32 s{S_T0}, {hex(CSF_OFF)}')
        a.e(f's_add_u32 s{S_T1}, s{S_B}, 8')
        a.e(f's_mov_b32 s{95}, {opt.spin}')
        a.label(L_)
        a.e(f'buffer_load_dword v40, v{VT1}, {WS}, s{S_T0} offen sc1')
        a.e('s_waitcnt vmcnt(0)')
        a.e(f'v_subrev_u32 v40, s{S_T1}, v40')
        a.e('v_cmp_gt_u32 vcc, 0x80, v40')
        a.e(f's_sub_u32 s{95}, s{95}, 1')
        a.e(f's_cbranch_scc1 {D_}')
        a.e('s_cmp_eq_u64 vcc, -1')
        a.e(f's_cbranch_scc0 {L_}')
        a.label(D_)
        a.vm = []
        def colof(dst, gofs):
            a.e(f'v_add_u32 v{VT0}, {gofs}, v{V_LANE}')
            a.e(f'v_lshlrev_b32 v{VT2}, 2, v{VT0}')
            a.e(f's_lshl_b32 s{S_T0}, s{S_CB2}, 5')
            a.e(f's_mul_i32 s{S_T1}, s{S_CB2}, 112')
            a.e(f's_add_u32 s{S_T1}, s{S_T1}, {2048 - 160}')
            a.e(f'v_add_u32 v{dst}, s{S_T1}, v{VT2}')
            for lim, addc, useb in [(40, 1536 - 96, 'cb'), (24, -64, 'hp'), (16, 1024 - 32, 'hp'), (8, 512, 'hp')]:
                if useb == 'cb':
                    a.e(f's_lshl_b32 s{S_T1}, s{S_CB}, 6')
                    a.e(f's_add_u32 s{S_T1}, s{S_T1}, {addc}')
                else:
                    a.e(f's_add_u32 s{S_T1}, s{S_T0}, {hex(addc & 0xffffffff)}')
                a.e(f'v_add_u32 v{VT3}, s{S_T1}, v{VT2}')
                a.e(f'v_cmp_gt_u32 vcc, {lim}, v{VT0}')
                a.e('s_nop 1')
                a.e(f'v_cndmask_b32 v{dst}, v{dst}, v{VT3}, vcc')
            a.e(f'v_lshlrev_b32 v{dst}, 2, v{dst}')
        colof(36, 0); colof(37, 64)
        a.e(f's_mov_b32 s{S_T0}, {hex(CSP_OFF)}')
        for kq in range(4):
            a.e(f'buffer_load_dwordx4 v[{40+4*kq}:{43+4*kq}], v36, {WS}, s{S_T0} offen sc1')
            a.e('s_mov_b64 exec, 0xf')
            a.e(f'buffer_load_dwordx4 v[{56+4*kq}:{59+4*kq}], v37, {WS}, s{S_T0} offen sc1')
            a.e('s_mov_b64 exec, -1')
            if kq < 3: a.e(f's_add_u32 s{S_T0}, s{S_T0}, 15360')
        a.e(f'v_lshlrev_b32 v{VT0}, 4, v{V_LANE}')
        a.e(f'v_add_u32 v{VT0}, {hex(CSC)}, v{VT0}')
        a.e('s_waitcnt vmcnt(0)')
        for b in (40, 56):
            for i in (0, 2):
                a.e(pk('add', b + i, vp(b + i), vp(b + 4 + i)))
                a.e(pk('add', b + 8 + i, vp(b + 8 + i), vp(b + 12 + i)))
                a.e(pk('add', b + i, vp(b + i), vp(b + 8 + i)))
        a.e(f'ds_write_b128 v{VT0}, v[40:43]')
        a.e('s_mov_b64 exec, 0xf')
        a.e(f'ds_write_b128 v{VT0}, v[56:59] offset:1024')
        a.e('s_mov_b64 exec, -1')
        a.e('s_waitcnt lgkmcnt(0)')

    if not opt.cs_late: cs_part1()
    chunks_of = {}
    for s in stream: chunks_of.setdefault((s.layer, s.phase), set()).add(s.chunk)
    nb = 0
    for ev in events:
        L, kind, p, ci = ev
        if kind == 'B':
            cur[0] = f'pre {L}.{p}.B{ci}'
            issue(0, must=(L, p, ci))
            cur[0] = f'{L}.{p}.B{ci}'
            if nb < 5: dstamp()
            a.wait_vm((L, p, ci))
            if nb < 5: dstamp()
            a.e('s_barrier')
            nb += 1
            if ci >= 2: released.add((L, p, ci - 2))
            if ci == 0:
                for (l2, p2), cs_ in chunks_of.items():
                    if p2 in NOE and (l2, PHASES.index(p2)) < (L, PHASES.index(p)):
                        for c in cs_: released.add((l2, p2, c))
            if opt.cs_late and nb <= 4:
                if nb == 1:
                    cs_part1()
                    nonce_setup()
                elif nb == 2:
                    cs_part2()
                    late_setup()
                elif nb == 3:
                    pass
                elif nb == 4:
                    cs_fill()
                    win[0] = opt.window
            elif nb == 1:
                late_setup()
                cs_part2()
            elif nb == 3:
                cs_fill()
                win[0] = opt.window
            elif nb in (2, 4):
                pass
            else:
                issue(opt.caps.get(f'{p}.B{ci}', opt.caps.get(f'{p}.B*', 0)))
                park_policy(cur[0])
        elif kind == 'E':
            cur[0] = f'{L}.{p}.E'
            a.e('s_barrier')
            for c in chunks_of[(L, p)]: released.add((L, p, c))
            issue(opt.caps.get(f'{p}.E', 0))
            park_policy(cur[0])
        else:
            cur[0] = f'{L}.{p}'
            a.e('s_barrier')
            issue(opt.caps.get(p, 0))
            park_policy(cur[0])
    if opt.startdiag:
        a.e(f's_lshl_b32 s{S_T0}, s2, 8')
        a.e(f's_add_u32 s{S_T0}, s{S_T0}, {hex(TM_OFF + 128)}')
        for i in range(dg[0]):
            a.e(f'v_mov_b32 v99, {4*i}')
            a.e(f'buffer_store_dword v{100+i}, v99, {WS}, s{S_T0} offen')
    a.e('s_waitcnt vmcnt(0)')
    a.e('s_endpgm')


def gen_toucher(a, opt, events):
    a.c('--- A loader / toucher')
    mats = {'WO': (S_PTR + 4, 512 * 512 * 2), 'W1': (S_PTR + 8, 512 * 512 * 2),
            'W2': (S_PTR + 10, 512 * 512 * 2), 'W3': (S_PTR + 12, 512 * 1792 * 2), 'W4': (S_PTR + 14, 1792 * 512 * 2)}
    srds = {}
    for i, (k, (p, size)) in enumerate(mats.items()):
        s = 40 + 4 * i
        a.e(f's_mov_b32 s{s}, s{p}'); a.e(f's_mov_b32 s{s+1}, s{p+1}')
        a.e(f's_mov_b32 s{s+2}, {hex(size)}'); a.e(f's_mov_b32 s{s+3}, 0x20000')
        srds[k] = s
    T0s, T1s, T2s, T3s, T4s, T5s = 33, 34, 35, 36, 37, 38
    THR, SPIN = 60, 61
    RA, P7T = 64, 68
    U0, U1, U2, U3, U4 = 76, 77, 78, 79, 80
    VAS, VAG, VFS, VFB, VFH, VAH = 3, 4, 5, 6, 7, 8
    X0, X1, X2, X3 = 24, 25, 26, 27
    X0W = 31
    e = a.e
    VXK = 40
    e(f'v_lshrrev_b32 v2, 4, v{V_LANE}')
    e(f'v_and_b32 v3, 15, v{V_LANE}')
    for k in range(4):
        e(f'v_add_u32 v{VXK+k}, {4*k}, v2'); e(f'v_xor_b32 v{VXK+k}, v{VXK+k}, v3'); e(f'v_lshlrev_b32 v{VXK+k}, 4, v{VXK+k}')
        e(f'v_lshl_add_u32 v{VXK+k}, v2, 10, v{VXK+k}')
    e(f's_lshl_b32 s33, s{S_G}, 8'); e(f's_lshl_b32 s34, s{S_RB2}, 7'); e('s_add_u32 s33, s33, s34'); e('s_lshl_b32 s82, s33, 10')
    e(f's_lshl_b32 s83, s{S_RB2}, 1'); e(f's_add_u32 s83, s83, s{S_CB2}'); e(f's_and_b32 s83, s83, {3 if opt.rot else 0}')
    e(f's_lshr_b32 s81, s{S_CB2}, 2'); e(f's_lshl_b32 s81, s81, {13 if opt.rot else 31}')
    if not opt.rot: e('s_mov_b32 s81, 0')
    def x_chunk(c):
        e(f's_xor_b32 s33, s83, {c}'); e('s_lshl_b32 s33, s33, 8'); e('s_add_u32 s33, s33, s82')
        e('s_mov_b32 s34, s81'); e('s_mov_b32 s36, 8')
        lp = a.newlabel('XC'); a.label(lp)
        for k in range(4):
            e(f's_add_u32 m0, s34, {hex(AREG + (c & 1) * 32768)}')
            e('s_lshl_b32 s35, s34, 2'); e('s_add_u32 s35, s35, s33')
            e(f'buffer_load_dwordx4 v{VXK + k}, s[{S_X}:{S_X+3}], s35 offen lds')
            e('s_add_u32 s34, s34, 1024')
        e('s_and_b32 s34, s34, 0x7fff')
        e('s_waitcnt vmcnt(52)')
        e('s_sub_u32 s36, s36, 1'); e('s_cmp_lg_u32 s36, 0'); e(f's_cbranch_scc1 {lp}')
        a.vm += [('X', c)] * 32
        a.vm = a.vm[-52:]
    def x_tile():
        e(f'v_lshrrev_b32 v2, 3, v{V_LANE}'); e('v_lshlrev_b32 v2, 10, v2')
        e(f'v_and_b32 v30, 7, v{V_LANE}'); e('v_lshl_add_u32 v2, v30, 4, v2')
        e(f's_lshl_b32 s33, s{S_G}, 8'); e(f's_lshl_b32 s34, s{S_RB}, 6'); e('s_add_u32 s33, s33, s34'); e('s_lshl_b32 s33, s33, 10')
        e(f's_lshl_b32 s34, s{S_CB}, 7'); e('s_add_u32 s33, s33, s34')
        for p_ in range(8):
            e(f's_mov_b32 m0, {hex(AREG + p_ * 1024)}')
            if p_: e('s_add_u32 s33, s33, 8192')
            else: e('s_nop 0')
            a.vmem(f'buffer_load_dwordx4 v2, s[{S_X}:{S_X+3}], s33 offen lds', 'x')
    x_chunk(0); x_chunk(1)
    e(f'v_lshlrev_b32 v1, 7, v{V_LANE}')
    e(f'v_lshlrev_b32 v{X0}, 4, v{V_LANE}')
    e(f'v_lshlrev_b32 v{X0W}, 4, v{V_LANE}')
    e(f's_lshl_b32 s{T0s}, s{S_G}, 4'); e(f's_lshl_b32 s{T1s}, s{S_RB}, 2'); e(f's_add_u32 s{T0s}, s{T0s}, s{T1s}')
    e(f's_lshl_b32 s{T1s}, s{T0s}, 14'); e(f'v_add_u32 v{VAS}, s{T1s}, v{X0}')
    e(f's_mul_i32 s{T1s}, s{T0s}, 57344'); e(f'v_add_u32 v{VAG}, s{T1s}, v{X0}')
    rmask = 3 if opt.rot else 0
    for c in range(4):
        e(f's_and_b32 s{RA+c}, s{S_RB}, {rmask}'); e(f's_xor_b32 s{RA+c}, s{RA+c}, {c}'); e(f's_lshl_b32 s{RA+c}, s{RA+c}, 12')
    for p_ in range(8):
        e(f's_and_b32 s{P7T+p_}, s{S_RB}, {rmask}'); e(f's_lshl_b32 s{P7T+p_}, s{P7T+p_}, 1')
        e(f's_xor_b32 s{P7T+p_}, s{P7T+p_}, {p_}'); e(f's_mul_i32 s{P7T+p_}, s{P7T+p_}, 7168')
    e(f'v_and_b32 v{X1}, 15, v{V_LANE}')
    e(f'v_and_b32 v{X2}, 0x30, v{V_LANE}')
    e(f's_mul_i32 s{T3s}, s{S_G}, 18')
    e(f's_lshl_b32 s{T4s}, s{S_G}, 8')
    for c in range(4):
        e(f's_lshr_b32 s{T5s}, s{RA+c}, 12')
        e(f's_lshr_b32 s{U3}, s{T5s}, 1'); e(f's_add_u32 s{U3}, s{U3}, 1'); e(f's_sub_u32 s{U4}, 0, s{U3}')
        e(f's_bitcmp1_b32 s{T5s}, 0'); e(f's_cselect_b32 s{U3}, s{U3}, s{U4}')
        e(f's_lshl_b32 s{T2s}, s{S_RB}, 6'); e(f's_add_u32 s{T2s}, s{T2s}, s{U3}'); e(f's_add_u32 s{T2s}, s{T2s}, 16')
        for w in range(4):
            r = VAH + 4 * c + w
            e(f's_add_u32 s{T5s}, s{T2s}, {16 * w}')
            e(f'v_add_u32 v{r}, s{T5s}, v{X1}')
            e(f'v_lshrrev_b32 v{X3}, 4, v{r}'); e(f'v_add_u32 v{X3}, s{T3s}, v{X3}'); e(f'v_lshlrev_b32 v{X3}, 14, v{X3}')
            e(f'v_and_b32 v28, 15, v{r}'); e(f'v_add_u32 v28, v{X2}, v28'); e(f'v_lshl_add_u32 v{X3}, v28, 4, v{X3}')
            e(f'v_add_u32 v28, s{T4s}, v{r}'); e('v_subrev_u32 v28, 16, v28')
            e('v_cmp_gt_u32 vcc, 0x800, v28')
            e(f'v_mov_b32 v{r}, 0x80000000'); e('s_nop 0')
            e(f'v_cndmask_b32 v{r}, v{r}, v{X3}, vcc')
    e(f's_lshl_b32 s{T2s}, s{S_G}, 9'); e(f's_add_u32 s{T2s}, s{T2s}, {hex(LF_OFF)}')
    e(f'v_bfe_u32 v{X1}, v{V_LANE}, 3, 2'); e(f'v_lshlrev_b32 v{X1}, 7, v{X1}')
    e(f'v_and_b32 v{X2}, 7, v{V_LANE}'); e(f'v_lshl_add_u32 v{X1}, v{X2}, 2, v{X1}')
    e(f's_lshl_b32 s{T3s}, s{S_RB}, 5'); e(f's_add_u32 s{T3s}, s{T3s}, s{T2s}')
    e(f'v_add_u32 v{VFS}, s{T3s}, v{X1}')
    e(f's_and_b32 s{T3s}, s{S_RB}, 1'); e(f's_lshl_b32 s{T3s}, s{T3s}, 8'); e(f's_add_u32 s{T3s}, s{T3s}, s{T2s}')
    e(f's_lshr_b32 s{T4s}, s{S_RB}, 1'); e(f's_lshl_b32 s{T4s}, s{T4s}, 6'); e(f's_add_u32 s{T3s}, s{T3s}, s{T4s}')
    e(f'v_bfe_u32 v{X2}, v{V_LANE}, 4, 1'); e(f'v_lshlrev_b32 v{X2}, 7, v{X2}')
    e(f'v_and_b32 v{X3}, 15, v{V_LANE}'); e(f'v_lshl_add_u32 v{X2}, v{X3}, 2, v{X2}')
    e(f'v_add_u32 v{VFB}, s{T3s}, v{X2}')
    e(f's_lshl_b32 s{T3s}, s{S_R}, 2'); e(f's_add_u32 s{T3s}, s{T3s}, s{T2s}')
    e(f'v_and_b32 v{X2}, 3, v{V_LANE}'); e(f'v_lshlrev_b32 v{X2}, 7, v{X2}'); e(f'v_add_u32 v{X2}, s{T3s}, v{X2}')
    e(f'v_cmp_lt_u32 vcc, 31, v{V_LANE}'); e('s_nop 1')
    e(f'v_cndmask_b32 v{VFB}, v{VFB}, v{X2}, vcc')
    def build_fh(L):
        la = a.newlabel('FH'); lb = a.newlabel('FH')
        e(f's_lshl_b32 s{T2s}, s{S_G}, 9'); e(f's_add_u32 s{T2s}, s{T2s}, {hex(LF_OFF)}')
        e(f's_lshl_b32 s{T3s}, s{S_RB}, 5'); e(f's_add_u32 s{T3s}, s{T3s}, s{T2s}')
        e(f's_sub_u32 s{U1}, s{T3s}, 32'); e(f's_add_u32 s{U1}, s{U1}, 256'); e(f's_mov_b32 s{U3}, 128')
        e(f's_add_u32 s{U2}, s{T3s}, 32'); e(f's_mov_b32 s{U4}, 128')
        e(f's_lshl_b32 s{T4s}, s{S_G}, 8'); e(f's_add_u32 s{T4s}, s{T4s}, {hex(HF_OFF + L * 2048)}')
        e(f's_cmp_eq_u32 s{S_RB}, 0'); e(f's_cbranch_scc0 {la}')
        e(f's_mov_b32 s{U1}, s{T3s}')
        e(f's_cmp_eq_u32 s{S_G}, 0'); e(f's_cbranch_scc1 {la}')
        e(f's_mov_b32 s{U1}, s{T4s}'); e(f's_mov_b32 s{U3}, 0')
        a.label(la)
        e(f's_cmp_eq_u32 s{S_RB}, 3'); e(f's_cbranch_scc0 {lb}')
        e(f's_mov_b32 s{U2}, s{T3s}')
        e(f's_cmp_eq_u32 s{S_G}, 7'); e(f's_cbranch_scc1 {lb}')
        e(f's_add_u32 s{U2}, s{T4s}, 128'); e(f's_mov_b32 s{U4}, 0')
        a.label(lb)
        e(f'v_bfe_u32 v{X1}, v{V_LANE}, 3, 1'); e(f'v_and_b32 v{X2}, 7, v{V_LANE}'); e(f'v_lshlrev_b32 v{X2}, 2, v{X2}')
        for base_s, mul_s, sel in ((U1, U3, 2), (U2, U4, 3)):
            e(f'v_mul_u32_u24 v{X3}, s{mul_s}, v{X1}'); e(f'v_add_u32 v{X3}, v{X3}, v{X2}'); e(f'v_add_u32 v{X3}, s{base_s}, v{X3}')
            e(f'v_lshrrev_b32 v28, 4, v{V_LANE}'); e(f'v_cmp_eq_u32 vcc, {sel}, v28'); e('s_nop 1')
            e(f'v_cndmask_b32 v{VFH}, v{VFH if sel == 3 else VFS}, v{X3}, vcc')
    e('s_waitcnt lgkmcnt(0)')
    e(f's_mul_i32 s{S_B}, s{S_V}, 0x9e3779b1'); e(f's_add_u32 s{S_B}, s{S_B}, 0x7f4a7c15'); e(f's_and_b32 s{S_B}, s{S_B}, 0xffffff00')

    def poll(v, epoch):
        L_ = a.newlabel('AP'); D_ = a.newlabel('APD')
        e(f's_add_u32 s{THR}, s{S_B}, {8*epoch}'); e(f's_mov_b32 s{SPIN}, {opt.spin}')
        a.label(L_)
        e(f'buffer_load_dword v30, v{v}, {WS}, 0 offen sc1'); e('s_waitcnt vmcnt(0)')
        e(f'v_subrev_u32 v30, s{THR}, v30'); e('v_cmp_gt_u32 vcc, 0x80, v30')
        e(f's_sub_u32 s{SPIN}, s{SPIN}, 1'); e(f's_cbranch_scc1 {D_}')
        e('s_cmp_eq_u64 vcc, -1')
        if opt.poll_sleep:
            e(f's_cbranch_scc1 {D_}'); e(f's_sleep {opt.poll_sleep}'); e(f's_branch {L_}')
        else:
            e(f's_cbranch_scc0 {L_}')
        a.label(D_); a.vm = []
    def a_chunk(phase, c):
        for w in range(4):
            e(f's_mov_b32 m0, {hex(AREG + (c % 4) * 16384 + w * 4096)}')
            if phase == 'P7':
                last = None
                for k in range(4):
                    p_, i_ = divmod(4 * c + k, 7)
                    const = G_OFF + w * 57344 + (i_ - k) * 1024
                    if last != (p_, const):
                        e(f's_add_u32 s{T0s}, s{P7T+p_}, {hex(const & 0xffffffff)}'); last = (p_, const)
                    a.vmem(f'buffer_load_dwordx4 v{VAG}, {WS}, s{T0s} offen offset:{k*1024} sc1 lds', ('A', phase, c))
            else:
                if phase == 'P5':
                    va = VAH + 4 * c + w; e(f's_add_u32 s{T0s}, s{RA+c}, {hex(A0_OFF)}' if A0_OFF else f's_mov_b32 s{T0s}, s{RA+c}')
                elif phase == 'P3':
                    va = VAS; e(f's_add_u32 s{T0s}, s{RA+c}, s{U0}'); e(f's_add_u32 s{T0s}, s{T0s}, {hex(A0_OFF + w * 16384)}')
                else:
                    va = VAS; e(f's_add_u32 s{T0s}, s{RA+c}, {hex(A1_OFF + w * 16384)}')
                for k in range(4):
                    a.vmem(f'buffer_load_dwordx4 v{va}, {WS}, s{T0s} offen offset:{k*1024} sc1 lds', ('A', phase, c))
    e(f's_lshl_b32 s{U0}, s{S_G}, 1'); e(f's_add_u32 s{U0}, s{U0}, 1'); e(f's_lshl_b32 s{U0}, s{U0}, 14')

    dummy = [0]
    def wide(srd_s, soff_s):
        d = 64 + 4 * (dummy[0] % 40); dummy[0] += 1
        a.vmem(f'buffer_load_dwordx4 v[{d}:{d+3}], v{X0W}, {srd_s}, s{soff_s} offen {opt.touch_flags}', 'T')
    def mall_touch():
        for k in ['WO', 'W2', 'W4']:
            size = mats[k][1]; per = size // 256
            s = srds[k]
            e(f's_mul_i32 s{T0s}, s2, {per}')
            for i in range(per // 1024):
                if i: e(f's_add_u32 s{T0s}, s{T0s}, 1024')
                wide(f's[{s}:{s+3}]', T0s)
    def g_touch():
        e(f's_mul_i32 s{T0s}, s{S_G}, {16 * 57344}'); e(f's_mul_i32 s{T1s}, s{S_R}, 28672')
        e(f's_add_u32 s{T0s}, s{T0s}, s{T1s}'); e(f's_add_u32 s{T0s}, s{T0s}, {hex(G_OFF)}')
        for i in range(28):
            if i: e(f's_add_u32 s{T0s}, s{T0s}, 1024')
            wide(WS, T0s)
    def key(sx):
        k, p, c = sx.split(',')
        return (0, k, p, None if c == '-' else int(c))
    EPO = {'P3': 1, 'P4': 2, 'P5': 3, 'P7': 5}
    if opt.p7_self: del EPO['P7']
    nxt = 0
    for ev in events:
        L, kind, p, ci = ev
        if kind == 'B' and p in EPO:
            nch = NCH[p]
            if ci == 0:
                if p == 'P5': build_fh(L)
                poll({'P3': VFB, 'P4': VFS, 'P5': VFH, 'P7': VFB}[p], 1 + 6 * L + EPO[p])
                a_chunk(p, 0); a_chunk(p, 1); nxt = 2
            a.wait_vm(('A', p, ci))
            e('s_barrier')
            while nxt < nch and (nxt <= ci + 2 or nxt <= 3) and nxt <= ci + 2 + (1 if ci == 0 and False else 0):
                a_chunk(p, nxt); nxt += 1
        elif L == 0 and kind == 'B' and p == 'P1KV':
            a.wait_vm(('X', ci))
            e('s_barrier')
            if 1 <= ci <= 2: x_chunk(ci + 1)
            if ci == 3: x_tile()
        else:
            if ev == (0, 'E', 'P1KV', None): a.wait_vm('x')
            e('s_barrier')
        if opt.touch and opt.touch_at and ev == key(opt.touch_at): mall_touch()
        if opt.gtouch_at and ev == key(opt.gtouch_at) and not (opt.gtouch_parker and opt.park): g_touch()
    e('s_waitcnt vmcnt(0)')
    e('s_endpgm')


def gen_parker(a, opt, events, h):
    e = a.e
    a.c(f'--- parker {h}')
    plan = opt._plan
    W3S, W4S, CB6, CB7 = 40, 44, 64, 68
    for s_, p_, size in ((W3S, S_PTR + 12, 512 * 1792 * 2), (W4S, S_PTR + 14, 1792 * 512 * 2)):
        e(f's_mov_b32 s{s_}, s{p_}'); e(f's_mov_b32 s{s_+1}, s{p_+1}'); e(f's_mov_b32 s{s_+2}, {hex(size)}'); e(f's_mov_b32 s{s_+3}, 0x20000')
    rm = 3 if opt.rot else 0
    for c in range(4):
        e(f's_lshl_b32 s{CB6+c}, s{S_RB2}, 1'); e(f's_and_b32 s{CB6+c}, s{CB6+c}, {rm}'); e(f's_xor_b32 s{CB6+c}, s{CB6+c}, {c}')
        e(f's_mul_i32 s{CB6+c}, s{CB6+c}, {128*3584}')
    for p_ in range(8):
        e(f's_and_b32 s{CB7+p_}, s{S_RB}, {rm}'); e(f's_lshl_b32 s{CB7+p_}, s{CB7+p_}, 1'); e(f's_xor_b32 s{CB7+p_}, s{CB7+p_}, {p_}')
        e(f's_mul_i32 s{CB7+p_}, s{CB7+p_}, {224*1024}')
    VN, VW, VL, X0, X1, X2 = 2, 4, 8, 11, 12, 13
    e(f'v_lshrrev_b32 v{X0}, 3, v{V_LANE}'); e(f'v_bfe_u32 v{X1}, v{X0}, 1, 1'); e(f'v_lshlrev_b32 v{X1}, 2, v{X1}')
    e(f'v_and_b32 v{X2}, 7, v{V_LANE}'); e(f'v_xor_b32 v{X2}, v{X2}, v{X1}')
    e(f'v_lshlrev_b32 v{VN}, 10, v{X0}'); e(f'v_lshl_add_u32 v{VN}, v{X2}, 4, v{VN}')
    e(f's_lshl_b32 s33, s{S_CB}, 7'); e(f'v_add_u32 v{VN}, s33, v{VN}'); e(f'v_add_u32 v{VN+1}, {hex(8192-1024)}, v{VN}')
    ps = [0, 1, 2, 3] if h == 0 else [4, 5, 6]
    M14 = (1 << 20) // 14 + 1
    e(f's_mul_i32 s33, s{S_CB2}, 224'); e(f's_mov_b32 s34, {hex(M14)}')
    for k, p_ in enumerate(ps):
        e(f'v_add_u32 v{X0}, {64*p_}, v{V_LANE}'); e(f'v_mul_lo_u32 v{X1}, v{X0}, s34'); e(f'v_lshrrev_b32 v{X1}, 20, v{X1}')
        e(f'v_mul_u32_u24 v{X2}, 14, v{X1}'); e(f'v_sub_u32 v{X2}, v{X0}, v{X2}')
        e(f'v_mul_u32_u24 v{VW+k}, 3584, v{X1}'); e(f'v_lshl_add_u32 v{VW+k}, v{X2}, 4, v{VW+k}'); e(f'v_add_u32 v{VW+k}, s33, v{VW+k}')
    e(f'v_lshlrev_b32 v{VL}, 4, v{V_LANE}'); e(f'v_add_u32 v{VL+1}, 0x10000, v{VL}'); e(f'v_add_u32 v{VL+2}, 0x20000, v{VL}')
    def wide(base_expr_emit, n):
        base_expr_emit()
        for i in range(n):
            if i: e('s_add_u32 s33, s33, 1024')
            a.vmem(f'buffer_load_dwordx4 v[{240+4*(i%4)}:{243+4*(i%4)}], v{VL}, {WS}, s33 offen', 'T')
    def touch_a0():
        wide(lambda: (e(f's_mul_i32 s33, s{S_G}, {18*16384}'), e(f's_mul_i32 s34, s{S_R}, 9216'), e('s_add_u32 s33, s33, s34'), e(f's_add_u32 s33, s33, {hex(A0_OFF)}') if A0_OFF else None), 9)
    def touch_lin(off, per_group):
        wide(lambda: (e(f's_mul_i32 s33, s{S_G}, {per_group}'), e(f's_mul_i32 s34, s{S_R}, {per_group // 32}'), e('s_add_u32 s33, s33, s34'), e(f's_add_u32 s33, s33, {hex(off)}')), per_group // 32 // 1024)
    def tkey(sx):
        k, p, c = sx.split(',')
        return (0, k, p, None if c == '-' else int(c))
    slots = list(range(56))
    held = {}
    pending = set()
    def do(actions):
        for act, s_ in actions:
            if act == 'park':
                if s_.kind == 'W3':
                    c_, rr_ = divmod(s_.srow, 128)
                    e(f's_add_u32 s33, s{CB6+c_}, {hex(rr_*3584)}')
                    regs = []
                    for k, p_ in enumerate(ps):
                        sl = slots.pop(0); regs.append((sl, p_))
                        a.vmem(f'buffer_load_dwordx4 v[{16+4*sl}:{19+4*sl}], v{VW+k}, s[{W3S}:{W3S+3}], s33 offen', id(s_))
                else:
                    srow = s_.srow if h == 0 else s_.srow2
                    p_, rr_ = divmod(srow, 224)
                    e(f's_add_u32 s33, s{CB7+p_}, {hex(rr_*1024)}')
                    regs = []
                    for k in range(2):
                        sl = slots.pop(0); regs.append((sl, 2 * h + k))
                        a.vmem(f'buffer_load_dwordx4 v[{16+4*sl}:{19+4*sl}], v{VN+k}, s[{W4S}:{W4S+3}], s33 offen offset:{k*1024}', id(s_))
                held[id(s_)] = regs
            else:
                a.wait_vm(id(s_))
                for sl, p_ in held.pop(id(s_)):
                    ad = s_.addr + p_ * 1024
                    e(f'ds_write_b128 v{VL + (ad >> 16)}, v[{16+4*sl}:{19+4*sl}] offset:{ad & 0xffff}')
                    slots.append(sl)
                pending.add((s_.layer, s_.phase, s_.chunk))
    for ev in events:
        L, kind, p, ci = ev
        if kind == 'B':
            do(plan.get(f'pre {L}.{p}.B{ci}', []))
            if (L, p, ci) in pending:
                e('s_waitcnt lgkmcnt(0)'); pending.clear()
            e('s_barrier')
            acts = plan.get(f'{L}.{p}.B{ci}', [])
        elif kind == 'E':
            e('s_barrier'); acts = plan.get(f'{L}.{p}.E', [])
        else:
            e('s_barrier'); acts = plan.get(f'{L}.{p}', [])
        do([x for x in acts if x[0] == 'unpark'])
        do([x for x in acts if x[0] == 'park'])
        if opt.pretouch and h == 1 and ev == tkey(opt.a2touch_at): touch_lin(A2_OFF, 262144)
        if opt.gtouch_parker and opt.gtouch_at and ev == tkey(opt.gtouch_at):
            wide(lambda: (e(f's_mul_i32 s33, s{S_G}, {16*57344}'), e(f's_mul_i32 s34, s{S_R}, 28672'), e('s_add_u32 s33, s33, s34'),
                          e(f's_add_u32 s33, s33, {hex(G_OFF + h * 14336)}')), 14)
        if opt.pretouch and ev == tkey(opt.a01touch_at):
            if h == 0:
                touch_a0(); touch_lin(ST_OFF, 32768)
            else:
                touch_lin(A1_OFF, 262144)
    e('s_waitcnt vmcnt(0) lgkmcnt(0)')
    e('s_endpgm')


def generate(opt):
    ATOMIC[0] = opt.kv_atomic
    events = build_events(opt.stop)
    a = Asm(); a.opt = opt
    hdr = open(os.path.join(os.path.dirname(os.path.abspath(__file__)), 'header.txt')).read()
    out = [hdr.rstrip('\n')]
    out.append(f'; @launch grid=(256,1,1) block=({64*(8 if opt.park else 6)},1,1) lds={LDS_TOTAL}')
    out += ['.amdgcn_target "amdgcn-amd-amdhsa--gfx950"', '.text', f'.globl {KNAME}', '.p2align 8',
            f'.type {KNAME},@function', f'{KNAME}:']
    a.e('s_cmp_ge_u32 s2, 256')
    a.e('s_cbranch_scc1 L_EXIT')
    if opt.startdiag: a.e('s_memtime s[100:101]')
    if opt.wall:
        a.e('s_memrealtime s[18:19]') if False else None
    a.e(f's_load_dwordx16 s[{S_PTR}:{S_PTR+15}], s[0:1], 0')
    a.e(f's_load_dwordx4 s[{S_PTR+16}:{S_PTR+19}], s[0:1], 64')
    a.e(f's_load_dwordx2 s[{S_PTR+20}:{S_PTR+21}], s[0:1], 80')
    a.e('v_lshrrev_b32 v1, 6, v0')
    a.e('s_nop 0')
    if opt.prefetch_code:
        a.e('s_getpc_b64 s[34:35]')
        a.label('L_PC')
        a.e(f's_sub_u32 s34, s34, (L_PC - {KNAME})')
        a.e('s_subb_u32 s35, s35, 0')
        a.e('s_lshr_b32 s36, s2, 3')
        a.e('s_mul_i32 s36, s36, 2560')
        a.e('v_lshlrev_b32 v2, 7, v0')
        a.e('v_add_u32 v2, s36, v2')
        a.e(f's_mov_b32 s36, (L_CODE_END - {KNAME} - 4)')
        a.e('v_min_u32 v2, s36, v2')
        a.e('v_and_b32 v2, -4, v2')
        a.e('v_cmp_gt_u32 vcc, 20, v0')
        a.e('s_and_saveexec_b64 s[36:37], vcc')
        a.e('s_cbranch_execz L_NOPF')
        a.e('global_load_dword v255, v2, s[34:35]')
        a.label('L_NOPF')
        a.e('s_mov_b64 exec, s[36:37]')
    a.e(f'v_readfirstlane_b32 s{S_W}, v1')
    a.e(f'v_and_b32 v{V_LANE}, 63, v0')
    a.e(f's_getreg_b32 s{S_XCC}, hwreg(HW_REG_XCC_ID)')
    a.e(f's_and_b32 s{S_XCC}, s{S_XCC}, 7')
    a.e(f's_and_b32 s{S_G}, s2, 7')
    a.e(f's_lshr_b32 s{S_R}, s2, 3')
    a.e(f's_lshr_b32 s{S_RB}, s{S_R}, 3')
    a.e(f's_and_b32 s{S_CB}, s{S_R}, 7')
    a.e(f's_lshr_b32 s{S_RB2}, s{S_R}, 4')
    a.e(f's_and_b32 s{S_CB2}, s{S_R}, 15')
    a.e('s_waitcnt lgkmcnt(0)')
    if opt.ws_base:
        a.e(f's_add_u32 s{S_PTR+20}, s{S_PTR+20}, {hex(opt.ws_base)}')
        a.e(f's_addc_u32 s{S_PTR+21}, s{S_PTR+21}, 0')
    a.e(f's_add_u32 s34, s{S_PTR+20}, {hex(NONCE_OFF)}')
    a.e(f's_addc_u32 s35, s{S_PTR+21}, 0')
    a.e(f's_load_dword s{S_V}, s[34:35], 0')
    def srd(s, p, size):
        a.e(f's_mov_b32 s{s}, s{p}'); a.e(f's_mov_b32 s{s+1}, s{p+1}')
        a.e(f's_mov_b32 s{s+2}, {hex(size)}'); a.e(f's_mov_b32 s{s+3}, 0x20000')
    if opt.dbgout >= 0:
        a.e(f's_mov_b32 s86, s{S_PTR+18}'); a.e(f's_mov_b32 s87, s{S_PTR+19}')
    srd(S_WS, S_PTR + 20, WS_USED)
    srd(S_X, S_PTR + 0, 2048 * 512 * 2)
    srd(S_OUT, S_PTR + 16, 2048 * 512 * 2)
    a.e(f's_cmp_lt_u32 s{S_W}, 4')
    a.e('s_cbranch_scc1 L_COMPUTE')
    if opt.park:
        for wv in (6, 7):
            a.e(f's_cmp_eq_u32 s{S_W}, {wv}')
            a.e(f's_cbranch_scc0 L_NOTP{wv}')
            a.e('s_getpc_b64 s[34:35]')
            a.label(f'L_PCP{wv}')
            a.e(f's_add_u32 s34, s34, (L_PARKER{wv} - L_PCP{wv})')
            a.e('s_addc_u32 s35, s35, 0')
            a.e('s_setpc_b64 s[34:35]')
            a.label(f'L_NOTP{wv}')
    a.e(f's_cmp_eq_u32 s{S_W}, 5')
    a.e('s_cbranch_scc0 L_GOLOADER')
    a.e('s_getpc_b64 s[34:35]')
    a.label('L_PC3')
    a.e('s_add_u32 s34, s34, (L_TOUCHER - L_PC3)')
    a.e('s_addc_u32 s35, s35, 0')
    a.e('s_setpc_b64 s[34:35]')
    a.label('L_GOLOADER')
    a.e('s_getpc_b64 s[34:35]')
    a.label('L_PC2')
    a.e('s_add_u32 s34, s34, (L_LOADER - L_PC2)')
    a.e('s_addc_u32 s35, s35, 0')
    a.e('s_setpc_b64 s[34:35]')
    a.label('L_EXIT')
    a.e('s_endpgm')
    a.label('L_COMPUTE')
    a.vm = []
    if opt.stop is not None and opt.stop[0] == 0: cev = events
    else: cev = [e for e in build_events(None) if e[0] == 0]
    rest = gen_compute(a, opt, cev)
    assert not rest, rest
    a.label('L_LOADER')
    a.vm = []
    a.fstamp = lambda p: None
    gen_loader(a, opt, events)
    a.label('L_TOUCHER')
    a.vm = []
    gen_toucher(a, opt, events)
    if opt.park:
        for wv in (6, 7):
            a.label(f'L_PARKER{wv}')
            a.vm = []
            gen_parker(a, opt, events, wv - 6)
    a.label('L_CODE_END')
    out.append(a.text())
    out += ['.section .rodata,"a"', '.p2align 6', f'.amdhsa_kernel {KNAME}',
            '  .amdhsa_next_free_vgpr 256', '  .amdhsa_next_free_sgpr 102', '  .amdhsa_accum_offset 256',
            '  .amdhsa_group_segment_fixed_size 0', '  .amdhsa_kernarg_size 88', '  .amdhsa_user_sgpr_count 2',
            '  .amdhsa_user_sgpr_kernarg_segment_ptr 1', '  .amdhsa_system_sgpr_workgroup_id_x 1', '.end_amdhsa_kernel']
    return '\n'.join(out) + '\n'


if __name__ == '__main__':
    import argparse
    ap = argparse.ArgumentParser()
    ap.add_argument('-o', default='interleave_layers__linear_attn_block__mixer_s_mlp__prompt.s')
    ap.add_argument('--stop', default=None)
    ap.add_argument('--timing', action='store_true')
    ap.add_argument('--safe', action='store_true')
    ap.add_argument('--set', action='append', default=[])
    ap.add_argument('--fine', default=None)
    args = ap.parse_args()
    opt = Opt()
    if args.stop:
        l, p = args.stop.split(','); opt.stop = (int(l), p)
    opt.timing = args.timing; opt.force_safe = args.safe; opt.fine = args.fine
    opt.caps = dict(Opt.caps); opt.park_w3 = dict(Opt.park_w3); opt.park_caps = dict(Opt.park_caps)
    for kv in args.set:
        k, v = kv.split('=')
        if k.startswith('pk3:'): opt.park_w3[k[4:]] = int(v)
        elif k.startswith('pk4:'): opt.park_caps[k[4:]] = int(v)
        elif '.' in k or k in ('X1', 'X2'): opt.caps[k] = int(v)
        else:
            try: setattr(opt, k, int(v))
            except ValueError: setattr(opt, k, v.replace(':', ','))
    open(args.o, 'w').write(generate(opt))
    print('written', args.o)
    if os.environ.get('SCHED'):
        import itertools
        for k, g in itertools.groupby(opt._log, key=lambda x: x[0]):
            g = list(g); d = {}
            for x in g: d[(x[1], x[2], x[3])] = d.get((x[1], x[2], x[3]), 0) + 1
            print(k, ' '.join(f'{a_}.{b_}.c{c_}x{n_}' for (a_, b_, c_), n_ in d.items()), 'FORCED' if any(x[4] for x in g) else '')
```

```python
import sys, os, struct

KNAME = 'interleave_layers__linear_attn_block__mixer_s_mlp__prompt_kernel'

class Opt:
    stop = None
    timing = False
    fine = None
    force_safe = False
    window = 40
    window0 = 60
    caps = {'P1KV.E': 64, 'P1Q.B0': 16, 'P1Q.B1': 16, 'P1Q.E': 32,
            'P3.B0': 0, 'P3.B1': 32, 'P3.B2': 16, 'P3.B3': 16,
            'P4.B1': 32, 'P4.B2': 16, 'P4.B3': 16,
            'P5.B1': 35, 'P5.B2': 14, 'P5.B3': 21,
            'P6.B0': 35, 'P6.B1': 28, 'P6.B2': 28, 'P6.B3': 28, 'P6.E': 64,
            'P7.B*': 16, 'P7.E': 64}
    cap0 = 0
    touch = True
    dbg_w_same = 0
    w_nt = 0
    g_cold = 0
    touch_at = 'B,P1Q,0'
    rot = 1
    warm0 = 1
    cs_late = 1
    poll_sleep = 0
    dbgout = -1
    dbgwg = 100
    pretouch = 1
    a2touch_at = 'B,P6,3'
    a01touch_at = 'B,P1KV,2'
    gtouch_parker = 1
    park = 1
    park_w3 = {'P1KV.E': 2, 'X1': 2, 'P1Q.E': 8}
    park_caps = {'P6.B1': 0, 'P6.B2': 0, 'P6.B3': 0, 'P6.E': 0}
    unpark_max = 6
    kv_atomic = 1
    wall = 0
    p7_self = 1
    dbg_skip = ''
    ws_base = 0
    late_a = 0
    kvflag_at = 5
    up3 = 1
    startdiag = 0
    gtouch_at = 'B,P5,2'
    dbg_a_same = 0
    touch_flags = ''
    spin = 1 << 17
    prefetch_code = True
    D_kv = 4
    D_p6 = 4

MB = 1 << 20
A0_OFF = 0
A1_OFF = 0x280000
A2_OFF = 0x480000
G_OFF = 0x680000
ST_OFF = 0xD80000
KVP_OFF = 0xDC0000
KVP_L = 0x88000
KVA_OFF = 0xED0000
LSTRIDE = 0x780000
FL_OFF = 0xF00000
LF_OFF = FL_OFF
KVF_OFF = FL_OFF + 4096
HF_OFF = FL_OFF + 8192
XID_OFF = FL_OFF + 29696
NONCE_OFF = FL_OFF + 30720
TM_OFF = FL_OFF + 32768
CSP_OFF = FL_OFF + 32768 + 65536
CSF_OFF = CSP_OFF + 65536
WS_USED = CSF_OFF + 32768
KVREC = 2176

LDS_TOTAL = 163840
AREG = 0
SCR = 49152
CSL = None
WRING = 65536
RING = 93952
PHI = 53248
CSL = WRING + 28672
CSC = WRING + RING
assert CSC + 1088 <= LDS_TOTAL

EPS = 1e-5

def f2u(x):
    return struct.unpack('<I', struct.pack('<f', x))[0]

class Asm:
    def __init__(self):
        self.lines = []; self.nlabel = 0; self.vm = []
        self.fstamp = lambda p: None
    def e(self, s): self.lines.append('  ' + s)
    def c(self, s): self.lines.append('  ; ' + s)
    def label(self, name): self.lines.append(name + ':')
    def newlabel(self, base='L'):
        self.nlabel += 1
        return f'{base}_{self.nlabel}'
    def vmem(self, s, tag=None):
        self.e(s); self.vm.append(tag)
    def count_vm(self, tag):
        if tag not in self.vm: return None
        idx = max(i for i, t in enumerate(self.vm) if t == tag)
        n = len(self.vm) - 1 - idx
        assert n <= 63, n
        self.vm = self.vm[idx + 1:]
        return n
    def wait_vm(self, tag):
        n = self.count_vm(tag)
        if n is not None: self.e(f's_waitcnt vmcnt({n})')
    def wait_vm_all(self):
        self.e('s_waitcnt vmcnt(0)'); self.vm = []
    def text(self): return '\n'.join(self.lines)

def set_exec(a, lo, hi=None):
    a.e(f's_mov_b32 exec_lo, {hex(lo)}')
    a.e(f's_mov_b32 exec_hi, {hex(lo if hi is None else hi)}')

S_V = 3
S_WS = 4; S_X = 8; S_OUT = 12; S_PA = 16
S_G, S_R, S_W, S_RB, S_CB, S_RB2, S_CB2 = 20, 21, 22, 23, 24, 25, 26
S_MODE, S_L, S_LOFF, S_EP, S_B, S_XCC = 27, 28, 29, 30, 31, 32
S_T0, S_T1, S_T2, S_T3, S_T4, S_T5 = 33, 34, 35, 36, 37, 38
S_SPIN, S_THR = 39, 40
S_AOFF, S_AOFF2, S_ASTR = 41, 42, 43
S_C1, S_C2, S_ONE2 = 44, 46, 48
S_LOG2E, S_EPS6 = 50, 51
S_W4K = 52
S_RH, S_CH = 53, 54
S_U0, S_U1, S_U2, S_U3, S_U4 = 55, 56, 57, 58, 59
S_COLD = 62
S_GH = 63
S_RA = 86
S_RK = 90
S_P7 = 94
S_ROTK = 45
S_PTR = 64
S_WQKV, S_WO, S_W1, S_W2, S_W3, S_W4 = 40, 44, 48, 52, 56, 60
S_CSRD = 88

V_LANE = 0
V_AS, V_AB, V_AG, V_P1 = 1, 2, 3, 4
V_AH = 5
V_STS, V_STB, V_STST, V_XRM, V_TST = 9, 10, 11, 12, 13
V_FSB, V_FBS, V_FSS, V_FH, V_FOWN, V_FKV = 14, 15, 16, 17, 18, 19
V_T128, V_T64, V_T224, V_TN, V_TA = 20, 21, 22, 23, 24
V_T0, V_T1, V_T2 = 25, 26, 27
V_TB = 28
V_RES = 32
V_MEAN, V_RS = 48, 49
V_X = 50
V_PQ = 56
V_ACC = 64
V_A = 128

PHASES = ['P1KV', 'P1Q', 'P3', 'P4', 'P5', 'P6', 'P7']
NCH = {'P1KV': 4, 'P1Q': 2, 'P3': 4, 'P4': 4, 'P5': 4, 'P6': 4, 'P7': 14}

ATOMIC = [1]
WARM0 = [1]
NOE = ('P3', 'P4', 'P5')

class Slab:
    def __init__(self, layer, phase, chunk, kind, size, srow, npieces, srow2=None):
        self.layer, self.phase, self.chunk, self.kind = layer, phase, chunk, kind
        self.size, self.srow, self.npieces, self.srow2 = size, srow, npieces, srow2
        self.addr = None

def w4_tile_seq():
    seq = []
    for c in range(8):
        for i in [0, 1, 2, 3, 4, 5, 7, 8, 9, 10, 11, 12, 6, 13]:
            seq.append(14 * c + i)
    return seq

def build_slabs(layer):
    ph = {}
    def simple(phase, kind, nchunk, per, size, rows, np_):
        ph[phase] = [[Slab(layer, phase, c, kind, size, (c * per + j) * rows, np_) for j in range(per)] for c in range(nchunk)]
    simple('P1KV', 'KV', 4, 4, 4096, 32, 4)
    simple('P1Q', 'Q', 2, 4, 4096, 64, 4)
    simple('P3', 'WO', 4, 4, 4096, 32, 4)
    simple('P4', 'W1', 4, 4, 4096, 32, 4)
    simple('P5', 'W2', 4, 4, 4096, 32, 4)
    simple('P6', 'W3', 4, 4, 7168, 32, 7)
    seq = w4_tile_seq()
    ph['P7'] = [[Slab(layer, 'P7', c, 'W4', 4096, seq[2 * (c * 4 + j)] * 16, 4, srow2=seq[2 * (c * 4 + j) + 1] * 16)
                 for j in range(4)] for c in range(14)]
    pos = PHI
    for p in PHASES:
        for ch in ph[p]:
            for s in ch:
                if pos + s.size > RING: pos = 0
                s.addr = WRING + pos
                pos += s.size
    assert pos == PHI, pos
    return ph

def build_events(stop):
    ev = [(0, 'X', 'W0', None)] if WARM0[0] else []
    for L in range(2):
        for p in PHASES:
            for c in range(NCH[p]): ev.append((L, 'B', p, c))
            if p not in NOE: ev.append((L, 'E', p, None))
            if p == 'P1KV': ev.append((L, 'X', 'X1', None))
            if p == 'P1Q' and not ATOMIC[0]: ev.append((L, 'X', 'X2', None))
            if stop == (L, p): return ev
    return ev

WS = f's[{S_WS}:{S_WS+3}]'

def thr_value(a, dst, epoch, xcc=False):
    if isinstance(epoch, int):
        a.e(f's_add_u32 s{dst}, s{S_B}, {8*epoch}')
    else:
        a.e(f's_lshl_b32 s{dst}, {epoch}, 3')
        a.e(f's_add_u32 s{dst}, s{dst}, s{S_B}')
    if xcc: a.e(f's_add_u32 s{dst}, s{dst}, s{S_XCC}')

def emit_poll(a, vaddr, epoch, soff='0', opt=Opt, x4=False, tbase=None):
    L = a.newlabel('POLL'); D = a.newlabel('POLLD')
    thr_value(a, S_THR, epoch)
    a.e(f's_mov_b32 s{S_SPIN}, {opt.spin}')
    a.label(L)
    if x4:
        T = tbase
        a.e(f'buffer_load_dwordx4 v[{T}:{T+3}], v{vaddr}, {WS}, {soff} offen sc1')
        a.e('s_waitcnt vmcnt(0)')
        for i in range(4): a.e(f'v_subrev_u32 v{T+i}, s{S_THR}, v{T+i}')
        a.e(f'v_max_u32 v{T}, v{T}, v{T+1}')
        a.e(f'v_max_u32 v{T+2}, v{T+2}, v{T+3}')
        a.e(f'v_max_u32 v{V_T0}, v{T}, v{T+2}')
    else:
        a.e(f'buffer_load_dword v{V_T2}, v{vaddr}, {WS}, {soff} offen sc1')
        a.e('s_waitcnt vmcnt(0)')
        a.e(f'v_subrev_u32 v{V_T0}, s{S_THR}, v{V_T2}')
    a.vm = []
    a.e(f'v_cmp_gt_u32 vcc, 0x80, v{V_T0}')
    a.e(f's_sub_u32 s{S_SPIN}, s{S_SPIN}, 1')
    a.e(f's_cbranch_scc1 {D}')
    a.e('s_cmp_eq_u64 vcc, -1')
    if opt.poll_sleep:
        a.e(f's_cbranch_scc1 {D}')
        a.e(f's_sleep {opt.poll_sleep}')
        a.e(f's_branch {L}')
    else:
        a.e(f's_cbranch_scc0 {L}')
    a.label(D)

def emit_mode_stores(a, stores, cold=False):
    F = a.newlabel('STF'); D = a.newlabel('STD')
    if getattr(a, 'opt', None) is not None and a.opt.pretouch and a.opt.park: cold = False
    a.e(f's_cmp_eq_u32 s{S_COLD if cold else S_MODE}, 0')
    a.e(f's_cbranch_scc1 {F}')
    for s in stores: a.e(s + ' sc1')
    a.e(f's_branch {D}')
    a.label(F)
    for s in stores: a.e(s)
    a.label(D)
    for s in stores: a.vm.append('st')

def emit_signal(a, epoch):
    thr_value(a, S_THR, epoch, xcc=True)
    a.e(f'v_mov_b32 v{V_T0}, s{S_THR}')
    a.wait_vm_all()
    a.e('s_mov_b64 exec, 1')
    emit_mode_stores(a, [f'buffer_store_dword v{V_T0}, v{V_FOWN}, {WS}, 0 offen'])
    a.e('s_mov_b64 exec, -1')

def emit_xreduce(a, regs, tmp, over16=True):
    for r, t in zip(regs, tmp): a.e(f'v_mov_b32 v{t}, v{r}')
    a.e('s_nop 1')
    for r, t in zip(regs, tmp): a.e(f'v_permlane32_swap_b32 v{r}, v{t}')
    a.e('s_nop 0')
    for r, t in zip(regs, tmp): a.e(f'v_add_f32 v{r}, v{r}, v{t}')
    if over16:
        for r, t in zip(regs, tmp): a.e(f'v_mov_b32 v{t}, v{r}')
        a.e('s_nop 1')
        for r, t in zip(regs, tmp): a.e(f'v_permlane16_swap_b32 v{r}, v{t}')
        a.e('s_nop 0')
        for r, t in zip(regs, tmp): a.e(f'v_add_f32 v{r}, v{r}, v{t}')

def pk(op, d, x, y, z=None, mods=''):
    s = f'v_pk_{op}_f32 v[{d}:{d+1}], {x}, {y}'
    if z is not None: s += f', {z}'
    return s + mods
def vp(r): return f'v[{r}:{r+1}]'

def emit_stats_partial32(a, vals, t0, st_soff, cold=False):
    s, q = t0, t0 + 2
    a.e(pk('add', s, vp(vals), vp(vals + 2)))
    a.e(pk('mul', q, vp(vals), vp(vals)))
    a.e(pk('fma', q, vp(vals + 2), vp(vals + 2), vp(q)))
    for i in range(4, 16, 2):
        a.e(pk('add', s, vp(s), vp(vals + i)))
        a.e(pk('fma', q, vp(vals + i), vp(vals + i), vp(q)))
    a.e(f'v_add_f32 v{t0}, v{s}, v{s+1}')
    a.e(f'v_add_f32 v{t0+1}, v{q}, v{q+1}')
    emit_xreduce(a, [t0, t0 + 1], [t0 + 4, t0 + 5], over16=False)
    set_exec(a, 0xffffffff, 0)
    emit_mode_stores(a, [f'buffer_store_dwordx2 v[{t0}:{t0+1}], v{V_STST}, {WS}, {st_soff} offen'], cold=cold)
    a.e('s_mov_b64 exec, -1')

def emit_stats_from_sums(a, s, ss, out_a, out_b, tmp, double=False, keep=None):
    mean, var = s, ss
    a.e(f'v_mul_f32 v{mean}, {hex(f2u(1.0/512))}, v{s}')
    a.e(f'v_mul_f32 v{var}, {hex(f2u(1.0/512))}, v{ss}')
    a.e(f'v_fma_f32 v{var}, -v{mean}, v{mean}, v{var}')
    a.e(f'v_max_f32 v{var}, 0, v{var}')
    a.e(f'v_add_f32 v{tmp}, {hex(f2u(EPS))}, v{var}')
    a.e(f'v_rsq_f32 v{tmp}, v{tmp}')
    a.e('s_nop 0')
    if double:
        a.e(f'v_mul_f32 v{tmp+1}, v{tmp}, v{tmp}')
        a.e(f'v_mul_f32 v{tmp+1}, v{tmp+1}, v{var}')
        a.e(f'v_add_f32 v{tmp+1}, {hex(f2u(EPS))}, v{tmp+1}')
        a.e(f'v_rsq_f32 v{tmp+1}, v{tmp+1}')
        a.e('s_nop 0')
        a.e(f'v_mul_f32 v{out_a}, v{tmp}, v{tmp+1}')
    else:
        a.e(f'v_mov_b32 v{out_a}, v{tmp}')
    if keep:
        a.e(f'v_mov_b32 v{keep[0]}, v{mean}')
        a.e(f'v_mov_b32 v{keep[1]}, v{tmp}')
    a.e(f'v_mul_f32 v{out_b}, v{out_a}, v{mean}')
    a.e(f'v_sub_f32 v{out_b}, 0, v{out_b}')

def emit_sum_partials(a, raw, n):
    k = n
    step = 2
    regs = [raw + i for i in range(0, n, 2)]
    while len(regs) > 1:
        nxt = []
        for i in range(0, len(regs), 2):
            a.e(pk('add', regs[i], vp(regs[i]), vp(regs[i + 1])))
            nxt.append(regs[i])
        regs = nxt

def emit_lnfold(a, acc, cs, av, bv, n):
    for i in range(0, n, 2):
        a.e(pk('mul', acc + i, vp(acc + i), vp(av), mods=' op_sel_hi:[1,0]'))
    for i in range(0, n, 2):
        a.e(pk('fma', acc + i, vp(cs + i), vp(bv), vp(acc + i), mods=' op_sel_hi:[1,0,1]'))

def emit_gelu(a, x, n, tmp, c1reg):
    blk = 16
    a.e(f'v_mov_b32 v{c1reg}, s{S_C1}')
    for b0 in range(0, n, blk):
        m = min(blk, n - b0); t = tmp
        for i in range(0, m, 2): a.e(pk('mul', t + i, vp(x + b0 + i), vp(x + b0 + i)))
        for i in range(0, m, 2): a.e(pk('fma', t + i, vp(t + i), f's[{S_C2}:{S_C2+1}]', vp(c1reg), mods=' op_sel_hi:[1,1,0]'))
        for i in range(0, m, 2): a.e(pk('mul', t + i, vp(t + i), vp(x + b0 + i)))
        for i in range(m): a.e(f'v_exp_f32 v{t+i}, v{t+i}')
        for i in range(0, m, 2): a.e(pk('add', t + i, vp(t + i), f's[{S_ONE2}:{S_ONE2+1}]'))
        for i in range(m): a.e(f'v_rcp_f32 v{t+i}, v{t+i}')
        for i in range(0, m, 2): a.e(pk('mul', x + b0 + i, vp(x + b0 + i), vp(t + i)))

def emit_phi(a, regs, tmp):
    for i, r in enumerate(regs): a.e(f'v_min_f32 v{tmp+i}, 0, v{r}')
    for i, r in enumerate(regs): a.e(f'v_mul_f32 v{tmp+i}, s{S_LOG2E}, v{tmp+i}')
    for i, r in enumerate(regs): a.e(f'v_exp_f32 v{tmp+i}, v{tmp+i}')
    for i, r in enumerate(regs): a.e(f'v_max_f32 v{r}, 0, v{r}')
    for i, r in enumerate(regs): a.e(f'v_add_f32 v{r}, v{r}, v{tmp+i}')
    for i, r in enumerate(regs): a.e(f'v_add_f32 v{r}, s{S_EPS6}, v{r}')

def emit_pack(a, dst, src, n):
    for i in range(0, n, 2): a.e(f'v_cvt_pk_bf16_f32 v{dst+i//2}, v{src+i}, v{src+i+1}')

def emit_pack32(a, dst, src):
    for k, j in enumerate([0, 2, 1, 3]):
        a.e(f'v_cvt_pk_bf16_f32 v{dst+2*k}, v{src+4*j}, v{src+4*j+1}')
        a.e(f'v_cvt_pk_bf16_f32 v{dst+2*k+1}, v{src+4*j+2}, v{src+4*j+3}')

class TrBase:
    def __init__(self, a, lane_reg, nt):
        self.a, self.lane_reg, self.nt, self.cur = a, lane_reg, nt, None
    def off(self, addr, span):
        if self.cur is None or addr < self.cur or addr + span - self.cur > 65535:
            self.cur = addr
            for t in range(self.nt):
                if t == 0:
                    self.a.e(f'v_add_u32 v{V_TB}, {hex(addr)}, v{self.lane_reg}')
                else:
                    self.a.e(f'v_xor_b32 v{V_TB+t}, {t << 5}, v{self.lane_reg}')
                    self.a.e(f'v_add_u32 v{V_TB+t}, {hex(addr)}, v{V_TB+t}')
        return addr - self.cur

def emit_gemm16(a, bar, phase, chunks, CT, kind, acc_of, a_of, a_wait, a_issue, wr, S, normal=False, extra=None, a_lds=None):
    R, LA = 2, 4
    ks = []
    for ci, ch in enumerate(chunks):
        first = True
        for s in ch:
            ks.append((ci, s.addr, first)); first = False
            if kind == '64': ks.append((ci, s.addr + 2048, False))
    KS = len(ks)
    if kind == '128':
        trb = TrBase(a, V_T128, 4); second = 2048; span = 4096; tb = lambda t: V_TB + t; timm = lambda t: 0
    elif kind == '64':
        trb = TrBase(a, V_T64, 2); second = 1024; span = 2048; tb = lambda t: V_TB + t; timm = lambda t: 0
    else:
        trb = TrBase(a, V_T224, 1); second = 3584; span = 7168; tb = lambda t: V_TB; timm = lambda t: 32 * t
    total = KS * CT
    def slot(n): return wr + 4 * (n % S)
    def pre_issue(n):
        j, t = divmod(n, CT)
        ci, addr, first = ks[j]
        if t == 0 and first:
            a.fstamp(phase); bar(('B', phase, ci)); a.fstamp(phase)
        imm = trb.off(addr, span) if t == 0 else addr - trb.cur
        return imm + timm(t), t
    def rd(n, half, info):
        imm, t = info
        a.e(f'ds_read_b64_tr_b16 v[{slot(n)+2*half}:{slot(n)+2*half+1}], v{tb(t)} offset:{imm + (second if half else 0)}')
    def mfma(m, r):
        j, t = divmod(m, CT)
        d = acc_of(r, t); c = '0' if j == 0 else f'v[{d}:{d+3}]'
        w = f'v[{slot(m)}:{slot(m)+3}]'; x = f'v[{a_of(r,j)}:{a_of(r,j)+3}]'
        a.e(f'v_mfma_f32_16x16x32_bf16 v[{d}:{d+3}], ' + (f'{x}, {w}' if normal else f'{w}, {x}') + f', {c}')
    lq = []
    def need(tags):
        idx = max((i for i, g in enumerate(lq) if g in tags), default=None)
        if idx is None: return None
        n_ = len(lq) - 1 - idx
        del lq[:idx + 1]
        assert n_ <= 15
        return n_
    def pre2(n):
        info = pre_issue(n)
        j, t = divmod(n, CT)
        if a_lds and t == 0:
            for s_ in a_lds(j):
                a.e(s_); lq.append(('A', j))
        return info
    def rd2(n, half, info):
        rd(n, half, info); lq.append(('W', n))
    for n in range(min(LA, total)):
        info = pre2(n); rd2(n, 0, info); rd2(n, 1, info)
    for n in range(total):
        j, t = divmod(n, CT)
        lg = need({('W', n), ('A', j)})
        vmn = a_wait(j) if t == 0 else None
        if t == 0 and j in (0, 1): a.fstamp(phase)
        parts = ([f'vmcnt({vmn})'] if vmn is not None else []) + ([f'lgkmcnt({lg})'] if lg is not None else [])
        if parts: a.e('s_waitcnt ' + ' '.join(parts))
        nx = n + LA; info = None
        mfma(n, 0)
        if nx < total:
            info = pre2(nx); rd2(nx, 0, info)
        mfma(n, 1)
        if nx < total: rd2(nx, 1, info)
        a_issue(j, t)
        if extra and t == CT - 1: extra(j)
    a.fstamp(phase); bar(('E', phase, None)); a.fstamp(phase)
    a.e('s_nop 7')

def emit_gemm32(a, bar, phase, chunks, acc, wr, tail=None, a_pieces=None):
    LA, S = 4, 5
    nch = len(chunks)
    total = nch * 8
    trb = TrBase(a, V_TN, 1)
    def slot(n): return wr + 8 * (n % S)
    def reads(n):
        c, rem = divmod(n, 8); ksl, s = divmod(rem, 2)
        out = []
        if rem == 0:
            if a_pieces: a.wait_vm(('A', c))
            a.fstamp(phase); bar(('B', phase, c)); a.fstamp(phase)
        sl = chunks[c][ksl]
        imm = trb.off(sl.addr, 4096)
        out.append(f'ds_read_b128 v[{slot(n)}:{slot(n)+3}], v{V_TA} offset:{(c % 4) * 16384 + ksl * 1024 + s * 512}')
        out.append(f'ds_read_b64_tr_b16 v[{slot(n)+4}:{slot(n)+5}], v{V_TB} offset:{imm + s * 1024}')
        out.append(f'ds_read_b64_tr_b16 v[{slot(n)+6}:{slot(n)+7}], v{V_TB} offset:{imm + s * 1024 + 2048}')
        return out
    queue = []; nxt = 2; passed = 0
    if a_pieces:
        for c in (0, 1):
            for t in a_pieces(c): t()
    for n in range(LA):
        for s in reads(n): a.e(s)
    for n in range(total):
        lg = 3 * (min(n - 1 + LA, total - 1) - n)
        a.e(f's_waitcnt lgkmcnt({lg})')
        c = '0' if n == 0 else f'v[{acc}:{acc+15}]'
        a.e(f'v_mfma_f32_32x32x16_bf16 v[{acc}:{acc+15}], v[{slot(n)+4}:{slot(n)+7}], v[{slot(n)}:{slot(n)+3}], {c}')
        nx = n + LA
        if nx < total:
            if nx % 8 == 0: passed = nx // 8
            for s in reads(nx): a.e(s)
        if a_pieces:
            while nxt < nch and (nxt <= passed + 2 or nxt <= 3) and len(queue) < 4:
                queue += list(a_pieces(nxt)); nxt += 1
            if queue: queue.pop(0)()
        if tail and n == max(total - 24, 0): tail()
    a.fstamp(phase)
    if phase not in NOE:
        bar(('E', phase, None))
    a.fstamp(phase)
    a.e('s_nop 7'); a.e('s_nop 3')


def gen_compute(a, opt, events):
    evq = list(events)
    tm = [0]
    def tmreg(i):
        assert i < 22, i
        return 64 + i
    def dump(regs):
        sk = a.newlabel('TMS')
        a.e('s_waitcnt lgkmcnt(0)')
        a.e(f's_cmp_eq_u32 s{S_W}, 0')
        a.e(f's_cbranch_scc0 {sk}')
        if opt.dbgout >= 0 and opt.fine:
            a.e(f's_cmp_eq_u32 s2, {opt.dbgwg}')
            a.e(f's_cbranch_scc0 {sk}')
            for i, r in enumerate(regs):
                a.e(f's_sub_u32 s{S_T0}, s{r}, s85')
                a.e(f'v_mov_b32 v{V_T0}, s{S_T0}')
                a.e(f'v_mov_b32 v{V_T1}, {4*i}')
                a.e(f'global_store_dword v{V_T1}, v{V_T0}, s[86:87]')
        elif opt.dbgout >= 0 and opt.timing:
            a.e(f's_cmp_eq_u32 s2, {opt.dbgwg}')
            a.e(f's_cbranch_scc0 {sk}')
            a.e(f's_cmp_eq_u32 s{S_L}, {opt.dbgout}')
            a.e(f's_cbranch_scc0 {sk}')
            sel = [1, 2, 3, 4, 5, 6, 8, 9, 11, 12, 14, 15, 16, 17, 18, 20]
            for i, k in enumerate(sel):
                if k >= len(regs): continue
                a.e(f's_sub_u32 s{S_T0}, s{regs[k]}, s{regs[0]}')
                a.e(f'v_mov_b32 v{V_T0}, s{S_T0}')
                a.e(f'v_mov_b32 v{V_T1}, {4*i}')
                a.e(f'global_store_dword v{V_T1}, v{V_T0}, s[86:87]')
        else:
            a.e(f's_lshl_b32 s{S_T0}, s2, 8')
            a.e(f's_lshl_b32 s{S_T1}, s{S_L}, 7')
            if opt.timing: a.e(f's_add_u32 s{S_T0}, s{S_T0}, s{S_T1}')
            a.e(f's_add_u32 s{S_T0}, s{S_T0}, {hex(TM_OFF)}')
            for i, r in enumerate(regs):
                a.e(f'v_mov_b32 v{V_T0}, s{r}')
                a.e(f'v_mov_b32 v{V_T1}, {4*i}')
                a.e(f'buffer_store_dword v{V_T0}, v{V_T1}, {WS}, s{S_T0} offen')
        a.label(sk)
        a.e('s_waitcnt vmcnt(0)')
    fs = [0]
    def freg(i): return 64 + 2 * i
    def fstamp(phase):
        if opt.fine == phase and fs[0] < 10:
            a.e(f's_memtime s[{freg(fs[0])}:{freg(fs[0])+1}]'); fs[0] += 1
    a.fstamp = fstamp
    def stamp():
        if opt.timing:
            a.e('s_memtime s[60:61]')
            a.e('s_waitcnt lgkmcnt(0)')
            a.e(f's_mov_b32 s{tmreg(tm[0])}, s60'); tm[0] += 1

    T0, T1, T2, TB = V_T0, V_T1, V_T2, V_TB
    if opt.wall:
        a.e('s_memrealtime s[60:61]'); a.e('s_waitcnt lgkmcnt(0)'); a.e('s_mov_b32 s84, s60')
        a.e('s_memtime s[60:61]'); a.e('s_waitcnt lgkmcnt(0)'); a.e('s_mov_b32 s85, s60')
    if opt.dbgout >= 0 and opt.fine: a.e('s_mov_b32 s85, s88')
    a.c('--- compute: early address setup')
    if opt.startdiag:
        a.e('s_memtime s[98:99]'); a.e('s_waitcnt lgkmcnt(0)'); a.e('s_sub_u32 s98, s98, s100'); a.e('s_mov_b32 s85, s98')
    stamp()
    a.e(f's_lshr_b32 s{S_RH}, s{S_W}, 1')
    a.e(f's_and_b32 s{S_CH}, s{S_W}, 1')
    a.e(f's_lshl_b32 s{S_W4K}, s{S_W}, 12')
    a.e(f's_lshl_b32 s{S_U0}, s{S_G}, 4')
    a.e(f's_lshl_b32 s{S_T1}, s{S_RB}, 2')
    a.e(f's_add_u32 s{S_U0}, s{S_U0}, s{S_T1}')
    a.e(f's_lshl_b32 s{S_T1}, s{S_RH}, 1')
    a.e(f's_add_u32 s{S_U2}, s{S_U0}, s{S_T1}')
    a.e(f's_add_u32 s{S_U0}, s{S_U0}, s{S_W}')
    a.e(f's_lshl_b32 s{S_U1}, s{S_G}, 4')
    a.e(f's_lshl_b32 s{S_T2}, s{S_RB2}, 3')
    a.e(f's_add_u32 s{S_U1}, s{S_U1}, s{S_T2}')
    a.e(f's_lshl_b32 s{S_T2}, s{S_W}, 1')
    a.e(f's_add_u32 s{S_U1}, s{S_U1}, s{S_T2}')
    a.e(f'v_and_b32 v{T0}, 15, v{V_LANE}')
    a.e(f'v_and_b32 v{T1}, 0x30, v{V_LANE}')
    a.e(f's_lshl_b32 s{S_ROTK}, s{S_RB2}, 1')
    a.e(f's_add_u32 s{S_ROTK}, s{S_ROTK}, s{S_CB2}')
    a.e(f's_and_b32 s{S_ROTK}, s{S_ROTK}, {3 if opt.rot else 0}')
    a.e(f'v_and_b32 v{T2}, 31, v{V_LANE}')
    a.e(f'v_lshrrev_b32 v{TB}, 5, v{V_LANE}')
    a.e(f'v_lshlrev_b32 v{V_XRM}, 10, v{T2}')
    a.e(f'v_lshl_add_u32 v{V_XRM}, v{TB}, 3, v{V_XRM}')
    a.e(f's_lshl_b32 s{S_T2}, s{S_U2}, 14')
    a.e(f's_lshl_b32 s{S_T3}, s{S_CB}, 7')
    a.e(f's_add_u32 s{S_T2}, s{S_T2}, s{S_T3}')
    a.e(f's_lshl_b32 s{S_T3}, s{S_CH}, 6')
    a.e(f's_add_u32 s{S_T2}, s{S_T2}, s{S_T3}')
    a.e(f'v_add_u32 v{V_XRM}, s{S_T2}, v{V_XRM}')
    PA = f's[{S_PA}:{S_PA+3}]'
    def p1_load(j):
        if j % 4 == 0:
            a.e(f's_mov_b32 s{S_AOFF}, s{S_RK + j // 4}')
            a.e(f's_add_u32 s{S_AOFF2}, s{S_AOFF}, 0x4000')
        for r in range(2):
            a.vmem(f'buffer_load_dwordx4 v[{V_A+(r*16+j)*4}:{V_A+(r*16+j)*4+3}], v{V_P1}, {PA}, s{S_AOFF if r == 0 else S_AOFF2} offen', ('A', j))
        if j % 4 != 3:
            a.e(f's_add_u32 s{S_AOFF}, s{S_AOFF}, s{S_ASTR}')
            a.e(f's_add_u32 s{S_AOFF2}, s{S_AOFF2}, s{S_ASTR}')
    a.e('s_waitcnt lgkmcnt(0)')
    a.e(f's_mul_i32 s{S_B}, s{S_V}, 0x9e3779b1')
    a.e(f's_add_u32 s{S_B}, s{S_B}, 0x7f4a7c15')
    a.e(f's_and_b32 s{S_B}, s{S_B}, 0xffffff00')
    a.c('--- compute: address setup')
    a.e(f'v_lshlrev_b32 v{V_X}, 4, v{V_LANE}')
    a.e(f's_lshl_b32 s{S_T2}, s{S_U1}, 14')
    a.e(f'v_add_u32 v{V_AB}, s{S_T2}, v{V_X}')
    a.e(f'v_lshlrev_b32 v{V_STS}, 4, v{T2}')
    a.e(f'v_lshl_add_u32 v{V_STS}, v{TB}, 11, v{V_STS}')
    a.e(f's_lshl_b32 s{S_T2}, s{S_U2}, 11')
    a.e(f'v_add_u32 v{V_STS}, s{S_T2}, v{V_STS}')
    a.e(f'v_lshlrev_b32 v{V_STST}, 4, v{T2}')
    a.e(f's_lshl_b32 s{S_T4}, s{S_CB}, 9')
    a.e(f's_add_u32 s{S_T2}, s{S_T2}, s{S_T4}')
    a.e(f's_lshl_b32 s{S_T4}, s{S_CH}, 3')
    a.e(f's_add_u32 s{S_T2}, s{S_T2}, s{S_T4}')
    a.e(f'v_add_u32 v{V_STST}, s{S_T2}, v{V_STST}')
    a.e(f's_lshl_b32 s{S_T3}, s{S_CB}, 1')
    a.e(f's_add_u32 s{S_T3}, s{S_T3}, s{S_CH}')
    a.e(f'v_lshlrev_b32 v{V_STB}, 4, v{T0}')
    a.e(f'v_lshl_add_u32 v{V_STB}, v{T1}, 6, v{V_STB}')
    a.e(f's_lshl_b32 s{S_T2}, s{S_U1}, 11')
    a.e(f'v_add_u32 v{V_STB}, s{S_T2}, v{V_STB}')
    a.e(f'v_lshrrev_b32 v{V_TST}, 4, v{T2}')
    a.e(f'v_lshlrev_b32 v{V_TST}, 14, v{V_TST}')
    a.e(f'v_lshl_add_u32 v{V_TST}, v{TB}, 8, v{V_TST}')
    a.e(f'v_lshl_add_u32 v{V_TST}, v{T0}, 4, v{V_TST}')
    a.e(f's_lshl_b32 s{S_T2}, s{S_U2}, 14')
    a.e(f's_lshl_b32 s{S_T4}, s{S_T3}, 10')
    a.e(f's_add_u32 s{S_T2}, s{S_T2}, s{S_T4}')
    a.e(f'v_add_u32 v{V_TST}, s{S_T2}, v{V_TST}')
    a.e(f's_lshl_b32 s{S_T2}, s{S_G}, 9')
    a.e(f's_add_u32 s{S_T2}, s{S_T2}, {hex(LF_OFF)}')
    a.e(f's_lshl_b32 s{S_T3}, s{S_W}, 7')
    a.e(f's_add_u32 s{S_T3}, s{S_T3}, s{S_T2}')
    a.e(f's_lshl_b32 s{S_T4}, s{S_R}, 2')
    a.e(f's_add_u32 s{S_T4}, s{S_T4}, s{S_T3}')
    a.e(f'v_mov_b32 v{V_FOWN}, s{S_T4}')
    a.e(f'v_and_b32 v{V_X+1}, 7, v{V_LANE}')
    a.e(f'v_lshlrev_b32 v{V_X+1}, 2, v{V_X+1}')
    a.e(f'v_bfe_u32 v{V_X+2}, v{V_LANE}, 3, 1')
    a.e(f'v_lshl_add_u32 v{V_X+1}, v{V_X+2}, 7, v{V_X+1}')
    a.e(f's_lshl_b32 s{S_T4}, s{S_RB2}, 1')
    a.e(f's_add_u32 s{S_T4}, s{S_T4}, s{S_RH}')
    a.e(f's_lshl_b32 s{S_T4}, s{S_T4}, 5')
    a.e(f's_lshl_b32 s{S_T5}, s{S_CH}, 8')
    a.e(f's_add_u32 s{S_T4}, s{S_T4}, s{S_T5}')
    a.e(f's_add_u32 s{S_T4}, s{S_T4}, s{S_T2}')
    a.e(f'v_add_u32 v{V_FSB}, s{S_T4}, v{V_X+1}')
    a.e(f's_lshl_b32 s{S_T4}, s{S_CB2}, 7')
    a.e(f's_add_u32 s{S_T4}, s{S_T4}, {hex(KVF_OFF)}')
    a.e(f'v_lshlrev_b32 v{V_FKV}, 2, v{T2}')
    a.e(f'v_add_u32 v{V_FKV}, s{S_T4}, v{V_FKV}')
    a.e(f'v_bfe_u32 v{V_X+1}, v{V_LANE}, 2, 2')
    a.e(f'v_lshrrev_b32 v{V_X+2}, 4, v{V_LANE}')
    a.e(f'v_lshl_add_u32 v{V_X+3}, v{V_X+2}, 2, v{V_X+1}')
    a.e(f'v_and_b32 v{V_X+4}, 3, v{V_LANE}')
    a.e(f'v_lshlrev_b32 v{V_X+4}, 3, v{V_X+4}')
    a.e(f'v_bfe_u32 v{V_X+5}, v{V_X+3}, 1, 2')
    a.e(f'v_lshl_add_u32 v{V_T128}, v{V_X+5}, 5, v{V_X+4}')
    a.e(f'v_lshl_add_u32 v{V_T128}, v{V_X+3}, 7, v{V_T128}')
    a.e(f'v_bfe_u32 v{V_X+5}, v{V_X+3}, 2, 1')
    a.e(f'v_lshl_add_u32 v{V_T64}, v{V_X+5}, 5, v{V_X+4}')
    a.e(f'v_lshl_add_u32 v{V_T64}, v{V_X+3}, 6, v{V_T64}')
    a.e(f'v_mul_u32_u24 v{V_T224}, 224, v{V_X+3}')
    a.e(f'v_add_u32 v{V_T224}, v{V_T224}, v{V_X+4}')
    a.e(f'v_lshrrev_b32 v{V_X+3}, 1, v{V_X+2}')
    a.e(f'v_lshl_add_u32 v{V_X+3}, v{V_X+3}, 2, v{V_X+1}')
    a.e(f'v_and_b32 v{V_X+5}, 1, v{V_X+2}')
    a.e(f's_lshl_b32 s{S_T4}, s{S_CH}, 1')
    a.e(f'v_add_u32 v{V_X+5}, s{S_T4}, v{V_X+5}')
    a.e(f'v_and_b32 v{V_X+1}, 2, v{V_X+1}')
    a.e(f'v_xor_b32 v{V_X+5}, v{V_X+5}, v{V_X+1}')
    a.e(f'v_lshl_add_u32 v{V_TN}, v{V_X+5}, 5, v{V_X+4}')
    a.e(f'v_lshl_add_u32 v{V_TN}, v{V_X+3}, 7, v{V_TN}')
    a.e(f'v_bfe_u32 v{V_TA}, v{V_LANE}, 4, 1')
    a.e(f's_lshl_b32 s{S_T4}, s{S_RH}, 1')
    a.e(f'v_add_u32 v{V_TA}, s{S_T4}, v{V_TA}')
    a.e(f'v_lshlrev_b32 v{V_TA}, 12, v{V_TA}')
    a.e(f'v_lshl_add_u32 v{V_TA}, v{TB}, 8, v{V_TA}')
    a.e(f'v_lshl_add_u32 v{V_TA}, v{T0}, 4, v{V_TA}')
    if AREG: a.e(f'v_add_u32 v{V_TA}, {hex(AREG)}, v{V_TA}')
    c1 = -2.0 * 0.7978845608028654 * 1.4426950408889634
    c2 = c1 * 0.044715
    for s, v in [(S_C1, c1), (S_C2, c2), (S_C2 + 1, c2), (S_ONE2, 1.0), (S_ONE2 + 1, 1.0),
                 (S_LOG2E, 1.4426950408889634), (S_EPS6, 1e-6)]:
        a.e(f's_mov_b32 s{s}, {hex(f2u(v))}')
    a.e(f's_mov_b32 s{S_L}, 0')
    a.e(f's_mov_b32 s{S_LOFF}, 0')
    a.e(f's_mov_b32 s{S_EP}, 1')
    a.e(f's_mov_b32 s{S_MODE}, 1')
    a.e(f's_mov_b32 s{S_COLD}, 1')
    a.e(f's_lshl_b32 s{S_GH}, s{S_G}, 1')
    a.e(f's_add_u32 s{S_GH}, s{S_GH}, 1')
    a.e(f's_lshl_b32 s{S_GH}, s{S_GH}, 14')

    if WARM0[0]:
        assert evq[0][2] == 'W0'; evq.pop(0)
        a.e('s_barrier')
    LOOP = 'LAYER_LOOP'
    a.label(LOOP)
    slabs = build_slabs(0)

    def run_layer():
        def bar(ev):
            exp = evq.pop(0)
            assert exp[1:] == ev or (exp[1] == 'X' and ev[0] == 'X' and exp[2] == ev[1]), (exp, ev)
            a.e('s_barrier')
        def soff(reg, base, extra=0, gh=False):
            if gh: a.e(f's_add_u32 s{reg}, s{S_GH}, {hex(base + extra)}')
            else: a.e(f's_mov_b32 s{reg}, {hex(base + extra)}')
        def done(p):
            if opt.stop == (1, p):
                a.e(f's_cmp_eq_u32 s{S_L}, 1')
                a.e('s_cbranch_scc1 L_END_COMPUTE')
            return opt.stop == (0, p)
        def ep(k):
            a.e(f's_add_u32 s{S_T5}, s{S_EP}, {k}')
            return f's{S_T5}'

        a.c('=== P1KV')
        WR1 = 96; D1 = 116; ONES = 124; D2 = V_PQ
        for i in range(4): a.e(f'v_mov_b32 v{ONES+i}, 0x3f803f80')
        l0 = a.newlabel('KVL0'); ljoin = a.newlabel('KVJ')
        a.e(f's_cmp_eq_u32 s{S_L}, 0')
        a.e(f's_cbranch_scc1 {l0}')
        saved_ev = list(evq)
        emit_poll(a, V_FSB, f's{S_EP}', opt=opt)
        for j in range(opt.D_kv): p1_load(j)
        stamp()
        a.fstamp('P1KV')
        def kv_issue(j, t):
            if t == 1:
                if j + opt.D_kv < 16:
                    p1_load(j + opt.D_kv)
                elif j + opt.D_kv == 16:
                    soff(S_T0, ST_OFF)
                    a.vmem(f'buffer_load_dwordx4 v[{D1}:{D1+3}], v{V_STB}, {WS}, s{S_T0} offen sc1', 'st')
                    a.vmem(f'buffer_load_dwordx4 v[{D1+4}:{D1+7}], v{V_STB}, {WS}, s{S_T0} offen offset:512 sc1', 'st')
                    a.vmem(f'buffer_load_dwordx4 v[{D2}:{D2+3}], v{V_STB}, {WS}, s{S_T0} offen offset:256 sc1', 'st')
                    a.vmem(f'buffer_load_dwordx4 v[{D2+4}:{D2+7}], v{V_STB}, {WS}, s{S_T0} offen offset:768 sc1', 'st')
        emit_gemm16(a, bar, 'P1KV', slabs['P1KV'], 4, '128',
                    acc_of=lambda r, t: V_ACC + (r * 4 + t) * 4, a_of=lambda r, j: V_A + (r * 16 + j) * 4,
                    a_wait=lambda j: a.count_vm(('A', j)), a_issue=kv_issue, wr=WR1, S=5, normal=True)
        a.e(f's_branch {ljoin}')
        a.label(l0)
        evq[:] = saved_ev
        a.vm = []
        fs[0] = 0
        a.fstamp('P1KV')
        tm[0] -= 1 if opt.timing else 0
        stamp()
        VLA = V_X
        a.e(f'v_and_b32 v{T0}, 15, v{V_LANE}')
        a.e(f'v_lshrrev_b32 v{T1}, 4, v{V_LANE}')
        a.e(f'v_xor_b32 v{T1}, v{T1}, v{T0}')
        a.e(f'v_lshlrev_b32 v{T1}, 4, v{T1}')
        a.e(f's_lshl_b32 s{S_T0}, s{S_W}, 5')
        a.e(f'v_add_u32 v{T0}, s{S_T0}, v{T0}')
        a.e(f'v_lshlrev_b32 v{T0}, 8, v{T0}')
        for j in range(4):
            a.e(f'v_xor_b32 v{VLA+j}, {64*j}, v{T1}')
            a.e(f'v_add_u32 v{VLA+j}, v{VLA+j}, v{T0}')
        def kv_lds(j):
            c = j // 4
            return [f'ds_read_b128 v[{V_A+(r*16+j)*4}:{V_A+(r*16+j)*4+3}], v{VLA + j % 4} offset:{AREG + (c & 1) * 32768 + r * 4096}' for r in range(2)]
        def kv_extra(j):
            for r in range(2):
                x = f'v[{V_A+(r*16+j)*4}:{V_A+(r*16+j)*4+3}]'
                c1_ = '0' if j == 0 else f'v[{D1+4*r}:{D1+4*r+3}]'
                c2_ = '0' if j == 0 else f'v[{D2+4*r}:{D2+4*r+3}]'
                a.e(f'v_mfma_f32_16x16x32_bf16 v[{D1+4*r}:{D1+4*r+3}], v[{ONES}:{ONES+3}], {x}, {c1_}')
                a.e(f'v_mfma_f32_16x16x32_bf16 v[{D2+4*r}:{D2+4*r+3}], {x}, {x}, {c2_}')
        emit_gemm16(a, bar, 'P1KV', slabs['P1KV'], 4, '128',
                    acc_of=lambda r, t: V_ACC + (r * 4 + t) * 4, a_of=lambda r, j: V_A + (r * 16 + j) * 4,
                    a_wait=lambda j: None, a_issue=lambda j, t: None, wr=WR1, S=5, normal=True, extra=kv_extra, a_lds=kv_lds)
        a.label(ljoin)
        stamp()
        a.wait_vm_all()
        SUM = [(V_X, V_X + 1), (V_X + 2, V_X + 3)]
        l1 = a.newlabel('S1'); le = a.newlabel('SE')
        a.e(f's_cmp_eq_u32 s{S_L}, 0')
        a.e(f's_cbranch_scc0 {l1}')
        a.e(f'v_and_b32 v{T0}, 31, v{V_LANE}')
        a.e(f'v_lshlrev_b32 v{T0}, 7, v{T0}')
        a.e(f'v_lshrrev_b32 v{T1}, 5, v{V_LANE}')
        a.e(f'v_lshl_add_u32 v{T0}, v{T1}, 3, v{T0}')
        a.e(f's_lshl_b32 s{S_T0}, s{S_RH}, 12')
        a.e(f's_lshl_b32 s{S_T1}, s{S_CH}, 6')
        a.e(f's_add_u32 s{S_T0}, s{S_T0}, s{S_T1}')
        if AREG: a.e(f's_add_u32 s{S_T0}, s{S_T0}, {hex(AREG)}')
        a.e(f'v_add_u32 v{T0}, s{S_T0}, v{T0}')
        for j in range(4):
            a.e(f'ds_read_b64 v[{V_RES+4*j}:{V_RES+4*j+1}], v{T0} offset:{16*j}')
        a.e('s_waitcnt lgkmcnt(0)')
        for j in range(4):
            b = V_RES + 4 * j
            a.e(f'v_and_b32 v{b+3}, 0xffff0000, v{b+1}')
            a.e(f'v_lshlrev_b32 v{b+2}, 16, v{b+1}')
            a.e(f'v_and_b32 v{b+1}, 0xffff0000, v{b}')
            a.e(f'v_lshlrev_b32 v{b}, 16, v{b}')
        a.e(f'v_and_b32 v{T0}, 3, v{V_LANE}')
        a.e(f'v_bfe_u32 v{T1}, v{V_LANE}, 2, 2')
        a.e(f'v_lshrrev_b32 v{T2}, 4, v{V_LANE}')
        for r in range(2):
            s_, ss_ = SUM[r]
            a.e(f'v_mov_b32 v{s_}, v{D1+4*r}')
            a.e(f'v_mov_b32 v{ss_}, v{D2+4*r}')
            for i in range(1, 4):
                a.e(f'v_cmp_eq_u32 vcc, {i}, v{T0}')
                a.e('s_nop 1')
                a.e(f'v_cndmask_b32 v{ss_}, v{ss_}, v{D2+4*r+i}, vcc')
            a.e(f'v_cmp_eq_u32 vcc, v{T1}, v{T2}')
            a.e('s_nop 1')
            a.e(f'v_cndmask_b32 v{ss_}, 0, v{ss_}, vcc')
        emit_xreduce(a, [SUM[0][1], SUM[1][1]], [T0, T1])
        a.e(f's_branch {le}')
        a.label(l1)
        for r, raw in enumerate([D1, D2]):
            emit_sum_partials(a, raw, 8)
            a.e(f'v_mov_b32 v{SUM[r][0]}, v{raw}')
            a.e(f'v_mov_b32 v{SUM[r][1]}, v{raw+1}')
        emit_xreduce(a, [SUM[0][0], SUM[0][1], SUM[1][0], SUM[1][1]], [WR1, WR1 + 1, WR1 + 2, WR1 + 3])
        a.label(le)
        CSR = 120
        a.e(f'v_and_b32 v{T0}, 15, v{V_LANE}')
        a.e(f'v_lshlrev_b32 v{T0}, 2, v{T0}')
        a.e(f'v_add_u32 v{T0}, {hex(CSC)}, v{T0}')
        a.e(f'v_and_b32 v{T1}, 0x30, v{V_LANE}')
        for t in range(4):
            a.e(f'ds_read_b32 v{CSR+t}, v{T0} offset:{64*t}')
        KEEP = [(V_PQ + 0, V_PQ + 2), (V_PQ + 4, V_PQ + 6)]
        for r in range(2):
            emit_stats_from_sums(a, SUM[r][0], SUM[r][1], KEEP[r][0], KEEP[r][1], WR1)
        AI = [WR1, WR1 + 8]; BI = [WR1 + 4, WR1 + 12]
        for r in range(2):
            for i in range(4):
                a.e(f'ds_bpermute_b32 v{AI[r]+i}, v{T1}, v{KEEP[r][0]} offset:{4*i}')
                a.e(f'ds_bpermute_b32 v{BI[r]+i}, v{T1}, v{KEEP[r][1]} offset:{4*i}')
        a.e('s_waitcnt vmcnt(0) lgkmcnt(0)'); a.vm = []
        CSE = WR1 + 16
        for t in range(4): a.e(f'v_mov_b32 v{CSE+2*t}, v{CSR+t}')
        for r in range(2):
            for t in range(4):
                for i in (0, 2):
                    d = V_ACC + (r * 4 + t) * 4 + i
                    a.e(pk('mul', d, vp(d), vp(AI[r] + i)))
            for t in range(4):
                for i in (0, 2):
                    d = V_ACC + (r * 4 + t) * 4 + i
                    a.e(pk('fma', d, vp(BI[r] + i), vp(CSE + 2 * t), vp(d), mods=' op_sel_hi:[1,0,1]'))
        regs = [V_ACC + (r * 4 + t) * 4 + i for r in range(2) for t in range(2) for i in range(4)]
        emit_phi(a, regs, WR1)
        for t in range(4):
            b0 = V_ACC + t * 4; b1 = V_ACC + (4 + t) * 4
            a.e(f'v_cvt_pk_bf16_f32 v{b0}, v{b0}, v{b0+1}')
            a.e(f'v_cvt_pk_bf16_f32 v{b0+1}, v{b0+2}, v{b0+3}')
            a.e(f'v_cvt_pk_bf16_f32 v{b0+2}, v{b1}, v{b1+1}')
            a.e(f'v_cvt_pk_bf16_f32 v{b0+3}, v{b1+2}, v{b1+3}')
        a.e('s_nop 1')
        KVD = V_ACC + 16
        for h in range(2):
            a.e(f'v_mfma_f32_16x16x32_bf16 v[{KVD+4*h}:{KVD+4*h+3}], v[{V_ACC+4*h}:{V_ACC+4*h+3}], v[{V_ACC+8+4*h}:{V_ACC+8+4*h+3}], 0')
            a.e(f'v_mfma_f32_16x16x32_bf16 v[{KVD+8+4*h}:{KVD+8+4*h+3}], v[{V_ACC+4*h}:{V_ACC+4*h+3}], v[{ONES}:{ONES+3}], 0')
        a.e(f's_lshl_b32 s{S_T0}, s{S_W}, 11')
        a.e(f's_add_u32 s{S_T0}, s{S_T0}, {hex(SCR)}')
        a.e(f'v_lshlrev_b32 v{T0}, 4, v{V_LANE}')
        a.e(f'v_add_u32 v{T0}, s{S_T0}, v{T0}')
        a.e(f's_lshl_b32 s{S_T0}, s{S_W}, 7')
        a.e(f's_add_u32 s{S_T0}, s{S_T0}, {hex(SCR + 8192)}')
        a.e(f'v_add_u32 v{T2}, s{S_T0}, v{T1}')
        a.e('s_nop 4')
        a.e(f'ds_write_b128 v{T0}, v[{KVD}:{KVD+3}]')
        a.e(f'ds_write_b128 v{T0}, v[{KVD+4}:{KVD+7}] offset:1024')
        set_exec(a, 0x00010001)
        a.e(f'ds_write_b128 v{T2}, v[{KVD+8}:{KVD+11}]')
        a.e(f'ds_write_b128 v{T2}, v[{KVD+12}:{KVD+15}] offset:64')
        a.e('s_mov_b64 exec, -1')
        a.e('s_waitcnt lgkmcnt(0)')
        bar(('X', 'X1'))
        sk = a.newlabel('KVST')
        a.e(f's_cmp_lt_u32 s{S_W}, 2')
        a.e(f's_cbranch_scc0 {sk}')
        if opt.kv_atomic:
            a.e(f's_lshl_b32 s{S_T0}, s{S_W}, 10')
            a.e(f's_add_u32 s{S_T0}, s{S_T0}, {hex(SCR)}')
            a.e(f'v_lshlrev_b32 v{T0}, 2, v{V_LANE}')
            a.e(f'v_add_u32 v{T2}, s{S_T0}, v{T0}')
            a.e(f's_lshl_b32 s{S_T0}, s{S_W}, 6')
            a.e(f's_add_u32 s{S_T0}, s{S_T0}, {hex(SCR + 8192)}')
            a.e(f'v_add_u32 v{V_X}, s{S_T0}, v{T0}')
            KB = V_ACC
            for ww in range(4):
                for i in range(4):
                    a.e(f'ds_read_b32 v{KB+4*ww+i}, v{T2} offset:{ww*2048+256*i}')
                if ww == 2: a.e('s_waitcnt lgkmcnt(4)')
            for ww in range(4):
                a.e(f'ds_read_b32 v{KB+16+ww}, v{V_X} offset:{ww*128}')
            a.e(f's_mul_i32 s{S_T0}, s{S_CB2}, {KVREC}')
            a.e(f's_mul_i32 s{S_T1}, s{S_L}, {16*KVREC}')
            a.e(f's_add_u32 s{S_T0}, s{S_T0}, s{S_T1}')
            a.e(f's_add_u32 s{S_T0}, s{S_T0}, {hex(KVA_OFF)}')
            a.e(f's_lshl_b32 s{S_T1}, s{S_W}, 10')
            a.e(f's_add_u32 s{S_T1}, s{S_T1}, s{S_T0}')
            a.e(f's_lshl_b32 s{S_T2}, s{S_W}, 6')
            a.e(f's_add_u32 s{S_T2}, s{S_T2}, s{S_T0}')
            a.e(f's_add_u32 s{S_T2}, s{S_T2}, 2048')
            a.e('s_waitcnt lgkmcnt(0)')
            for i in (0, 2):
                a.e(pk('add', KB + i, vp(KB + i), vp(KB + 4 + i)))
                a.e(pk('add', KB + 8 + i, vp(KB + 8 + i), vp(KB + 12 + i)))
                a.e(pk('add', KB + i, vp(KB + i), vp(KB + 8 + i)))
            a.e(pk('add', KB + 16, vp(KB + 16), vp(KB + 18)))
            a.e(f'v_add_f32 v{KB+16}, v{KB+16}, v{KB+17}')
            for i in range(4):
                a.e(f'buffer_atomic_add_f32 v{KB+i}, v{T0}, {WS}, s{S_T1} offen offset:{256*i}')
            a.e('s_mov_b64 exec, 0xffff')
            a.e(f'buffer_atomic_add_f32 v{KB+16}, v{T0}, {WS}, s{S_T2} offen')
            a.e('s_mov_b64 exec, -1')
        else:
            a.e(f's_lshl_b32 s{S_T0}, s{S_W}, 10')
            a.e(f's_add_u32 s{S_T0}, s{S_T0}, {hex(SCR)}')
            a.e(f'v_lshlrev_b32 v{T0}, 4, v{V_LANE}')
            a.e(f'v_add_u32 v{T2}, s{S_T0}, v{T0}')
            a.e(f's_lshl_b32 s{S_T0}, s{S_W}, 6')
            a.e(f's_add_u32 s{S_T0}, s{S_T0}, {hex(SCR + 8192)}')
            a.e(f'v_add_u32 v{V_X}, s{S_T0}, v{T1}')
            KB = V_ACC
            for ww in range(4):
                a.e(f'ds_read_b128 v[{KB+4*ww}:{KB+4*ww+3}], v{T2} offset:{ww*2048}')
                a.e(f'ds_read_b128 v[{KB+16+4*ww}:{KB+16+4*ww+3}], v{V_X} offset:{ww*128}')
            a.e(f's_lshl_b32 s{S_T0}, s{S_CB2}, 4')
            a.e(f's_lshl_b32 s{S_T1}, s{S_G}, 1')
            a.e(f's_add_u32 s{S_T0}, s{S_T0}, s{S_T1}')
            a.e(f's_add_u32 s{S_T0}, s{S_T0}, s{S_RB2}')
            a.e(f's_mul_i32 s{S_T0}, s{S_T0}, {KVREC}')
            a.e(f's_add_u32 s{S_T0}, s{S_T0}, s{S_LOFF}')
            a.e(f's_add_u32 s{S_T0}, s{S_T0}, {hex(KVP_OFF)}')
            a.e(f's_lshl_b32 s{S_T1}, s{S_W}, 10')
            a.e(f's_add_u32 s{S_T1}, s{S_T1}, s{S_T0}')
            a.e(f's_lshl_b32 s{S_T2}, s{S_W}, 6')
            a.e(f's_add_u32 s{S_T2}, s{S_T2}, s{S_T0}')
            a.e(f's_add_u32 s{S_T2}, s{S_T2}, 2048')
            a.e('s_waitcnt lgkmcnt(0)')
            for base in (KB, KB + 16):
                for i in range(0, 4, 2):
                    a.e(pk('add', base + i, vp(base + i), vp(base + 4 + i)))
                    a.e(pk('add', base + 8 + i, vp(base + 8 + i), vp(base + 12 + i)))
                    a.e(pk('add', base + i, vp(base + i), vp(base + 8 + i)))
            a.e(f'buffer_store_dwordx4 v[{KB}:{KB+3}], v{T0}, {WS}, s{S_T1} offen sc1')
            set_exec(a, 0x00010001)
            a.e(f'buffer_store_dwordx4 v[{KB+16}:{KB+19}], v{T1}, {WS}, s{S_T2} offen sc1')
            a.e('s_mov_b64 exec, -1')
        a.e(f's_lshl_b32 s{S_T0}, s{S_L}, 11')
        a.e(f's_lshl_b32 s{S_T1}, s{S_CB2}, 7')
        a.e(f's_add_u32 s{S_T0}, s{S_T0}, s{S_T1}')
        a.e(f's_lshl_b32 s{S_T1}, s{S_W}, 6')
        a.e(f's_add_u32 s{S_T0}, s{S_T0}, s{S_T1}')
        a.e(f's_lshl_b32 s{S_T1}, s{S_G}, 3')
        a.e(f's_add_u32 s{S_T0}, s{S_T0}, s{S_T1}')
        a.e(f's_lshl_b32 s{S_T1}, s{S_RB2}, 2')
        a.e(f's_add_u32 s{S_T0}, s{S_T0}, s{S_T1}')
        a.e(f's_add_u32 s{S_T0}, s{S_T0}, {hex(KVF_OFF)}')
        a.e(f'v_mov_b32 v{V_X+4}, s{S_T0}')
        a.label(sk)
        a.vm = []
        stamp()
        if done('P1KV'): return True

        a.c('=== P1Q')
        QCS = V_ACC + 16
        a.e(f'v_and_b32 v{T1}, 0x30, v{V_LANE}')
        a.e(f'v_add_u32 v{T1}, {hex(CSC + 256)}, v{T1}')
        a.e(f'ds_read_b128 v[{QCS}:{QCS+3}], v{T1}')
        a.e(f'ds_read_b128 v[{QCS+4}:{QCS+7}], v{T1} offset:64')
        a.e('s_waitcnt lgkmcnt(0)')
        QAB = [(V_ACC + 24, V_ACC + 26), (V_ACC + 28, V_ACC + 30)]
        for r in range(2):
            a.e(f'v_mov_b32 v{QAB[r][0]}, v{KEEP[r][0]}')
            a.e(f'v_mov_b32 v{QAB[r][1]}, v{KEEP[r][1]}')
        def q_issue(j, t):
            if j == opt.kvflag_at and t == 1:
                fk = a.newlabel('KVFL')
                a.e(f's_cmp_lt_u32 s{S_W}, 2')
                a.e(f's_cbranch_scc0 {fk}')
                thr_value(a, S_THR, 1, xcc=True)
                a.e(f'v_mov_b32 v{V_X+5}, s{S_THR}')
                a.e('s_waitcnt vmcnt(0)')
                a.e('s_mov_b64 exec, 1')
                a.e(f'buffer_store_dword v{V_X+5}, v{V_X+4}, {WS}, 0 offen sc1')
                a.e('s_mov_b64 exec, -1')
                a.label(fk)
        emit_gemm16(a, bar, 'P1Q', slabs['P1Q'], 2, '64',
                    acc_of=lambda r, t: V_ACC + (r * 2 + t) * 4, a_of=lambda r, j: V_A + (r * 16 + j) * 4,
                    a_wait=lambda j: None, a_issue=q_issue, wr=96, S=8)
        for r in range(2):
            for t in range(2):
                emit_lnfold(a, V_ACC + (r * 2 + t) * 4, QCS + 4 * t, QAB[r][0], QAB[r][1], 4)
        emit_phi(a, [V_ACC + i for i in range(16)], 96)
        for r in range(2):
            for h in range(2):
                emit_pack(a, V_PQ + (r * 2 + h) * 2, V_ACC + (r * 2 + h) * 4, 4)
        stamp()
        sk = a.newlabel('MODE')
        a.e(f's_cmp_eq_u32 s{S_L}, 0')
        a.e(f's_cbranch_scc0 {sk}')
        a.e(f'v_and_b32 v{T1}, 31, v{V_LANE}')
        a.e(f'v_lshlrev_b32 v{T1}, 2, v{T1}')
        a.e(f's_lshl_b32 s{S_T0}, s{S_G}, 7')
        a.e(f's_add_u32 s{S_T0}, s{S_T0}, {hex(XID_OFF)}')
        emit_poll(a, T1, 0, soff=f's{S_T0}', opt=opt)
        a.e(f'v_and_b32 v{T2}, 7, v{T2}')
        a.e(f'v_cmp_eq_u32 vcc, s{S_XCC}, v{T2}')
        a.e('s_nop 1')
        a.e('s_cmp_eq_u64 vcc, -1')
        a.e(f's_cselect_b32 s{S_MODE}, 0, 1')
        if opt.force_safe: a.e(f's_mov_b32 s{S_MODE}, 1')
        a.label(sk)
        a.e(f's_lshl_b32 s{S_T0}, s{S_L}, 11')
        emit_poll(a, V_FKV, 1, soff=f's{S_T0}', opt=opt)
        stamp()
        RB = V_A + 64
        if opt.kv_atomic:
            a.e(f's_mul_i32 s{S_T0}, s{S_CB2}, {KVREC}')
            a.e(f's_mul_i32 s{S_T1}, s{S_L}, {16*KVREC}')
            a.e(f's_add_u32 s{S_T0}, s{S_T0}, s{S_T1}')
            a.e(f's_add_u32 s{S_T0}, s{S_T0}, {hex(KVA_OFF)}')
            a.e(f'v_lshlrev_b32 v{T0}, 4, v{V_LANE}')
            a.e(f'v_and_b32 v{T1}, 0x30, v{V_LANE}')
            a.vmem(f'buffer_load_dwordx4 v[{RB}:{RB+3}], v{T0}, {WS}, s{S_T0} offen sc1', 'kp')
            a.vmem(f'buffer_load_dwordx4 v[{RB+4}:{RB+7}], v{T0}, {WS}, s{S_T0} offen offset:1024 sc1', 'kp')
            a.vmem(f'buffer_load_dwordx4 v[{RB+8}:{RB+11}], v{T1}, {WS}, s{S_T0} offen offset:2048 sc1', 'kp')
            a.vmem(f'buffer_load_dwordx4 v[{RB+12}:{RB+15}], v{T1}, {WS}, s{S_T0} offen offset:2112 sc1', 'kp')
            a.wait_vm_all()
        else:
            a.e(f's_lshl_b32 s{S_T0}, s{S_CB2}, 4')
            a.e(f's_lshl_b32 s{S_T1}, s{S_W}, 2')
            a.e(f's_add_u32 s{S_T0}, s{S_T0}, s{S_T1}')
            a.e(f's_mul_i32 s{S_T0}, s{S_T0}, {KVREC}')
            a.e(f's_add_u32 s{S_T0}, s{S_T0}, s{S_LOFF}')
            a.e(f's_add_u32 s{S_T0}, s{S_T0}, {hex(KVP_OFF)}')
            a.e(f'v_lshlrev_b32 v{T0}, 4, v{V_LANE}')
            a.e(f'v_and_b32 v{T1}, 0x30, v{V_LANE}')
            PB = V_A
            for s4 in range(4):
                b = PB + 16 * s4
                a.vmem(f'buffer_load_dwordx4 v[{b}:{b+3}], v{T0}, {WS}, s{S_T0} offen sc1', 'kp')
                a.vmem(f'buffer_load_dwordx4 v[{b+4}:{b+7}], v{T0}, {WS}, s{S_T0} offen offset:1024 sc1', 'kp')
                a.vmem(f'buffer_load_dwordx4 v[{b+8}:{b+11}], v{T1}, {WS}, s{S_T0} offen offset:2048 sc1', 'kp')
                a.vmem(f'buffer_load_dwordx4 v[{b+12}:{b+15}], v{T1}, {WS}, s{S_T0} offen offset:2112 sc1', 'kp')
                if s4 < 3: a.e(f's_add_u32 s{S_T0}, s{S_T0}, {KVREC}')
            a.e(f's_lshl_b32 s{S_T0}, s{S_W}, 11')
            a.e(f's_add_u32 s{S_T0}, s{S_T0}, {hex(SCR)}')
            a.e(f'v_add_u32 v{T0}, s{S_T0}, v{T0}')
            a.e(f's_lshl_b32 s{S_T0}, s{S_W}, 7')
            a.e(f's_add_u32 s{S_T0}, s{S_T0}, {hex(SCR + 8192)}')
            a.e(f'v_add_u32 v{T2}, s{S_T0}, v{T1}')
            a.wait_vm_all()
            for i in range(0, 16, 2):
                a.e(pk('add', PB + i, vp(PB + i), vp(PB + 16 + i)))
                a.e(pk('add', PB + 32 + i, vp(PB + 32 + i), vp(PB + 48 + i)))
            for i in range(0, 16, 2):
                a.e(pk('add', PB + i, vp(PB + i), vp(PB + 32 + i)))
            a.e(f'ds_write_b128 v{T0}, v[{PB}:{PB+3}]')
            a.e(f'ds_write_b128 v{T0}, v[{PB+4}:{PB+7}] offset:1024')
            set_exec(a, 0x00010001)
            a.e(f'ds_write_b128 v{T2}, v[{PB+8}:{PB+11}]')
            a.e(f'ds_write_b128 v{T2}, v[{PB+12}:{PB+15}] offset:64')
            a.e('s_mov_b64 exec, -1')
            a.e(f'v_lshlrev_b32 v{T0}, 4, v{V_LANE}')
            a.e(f'v_add_u32 v{T0}, {hex(SCR)}, v{T0}')
            a.e(f'v_add_u32 v{T2}, {hex(SCR + 8192)}, v{T1}')
            a.e('s_waitcnt lgkmcnt(0)')
            bar(('X', 'X2'))
            for ww in range(4):
                b = RB + 16 * ww
                a.e(f'ds_read_b128 v[{b}:{b+3}], v{T0} offset:{ww*2048}')
                a.e(f'ds_read_b128 v[{b+4}:{b+7}], v{T0} offset:{ww*2048+1024}')
                a.e(f'ds_read_b128 v[{b+8}:{b+11}], v{T2} offset:{ww*128}')
                a.e(f'ds_read_b128 v[{b+12}:{b+15}], v{T2} offset:{ww*128+64}')
                if ww == 2: a.e('s_waitcnt lgkmcnt(8)')
            a.e('s_waitcnt lgkmcnt(0)')
            for i in range(0, 16, 2):
                a.e(pk('add', RB + i, vp(RB + i), vp(RB + 16 + i)))
                a.e(pk('add', RB + 32 + i, vp(RB + 32 + i), vp(RB + 48 + i)))
            for i in range(0, 16, 2):
                a.e(pk('add', RB + i, vp(RB + i), vp(RB + 32 + i)))
        OPB = V_ACC + 16
        emit_pack(a, OPB, RB, 16)
        a.e('s_nop 1')
        NUM = V_A; DEN = V_A + 16
        for r in range(2):
            for h in range(2):
                pq = V_PQ + (r * 2 + h) * 2
                n_ = NUM + (r * 2 + h) * 4; d_ = DEN + (r * 2 + h) * 4
                a.e(f'v_mfma_f32_16x16x16_bf16 v[{n_}:{n_+3}], v[{OPB+2*h}:{OPB+2*h+1}], v[{pq}:{pq+1}], 0')
                a.e(f'v_mfma_f32_16x16x16_bf16 v[{d_}:{d_+3}], v[{OPB+4+2*h}:{OPB+4+2*h+1}], v[{pq}:{pq+1}], 0')
        a.e(f's_lshl_b32 s{S_T0}, s{S_CB2}, 10')
        a.e(f's_add_u32 s{S_T0}, s{S_T0}, s{S_GH}')
        a.e(f's_add_u32 s{S_T1}, s{S_T0}, 0x4000')
        a.e('s_nop 4')
        for k in range(4): a.e(f'v_add_f32 v{DEN+4*k}, s{S_EPS6}, v{DEN+4*k}')
        for k in range(4): a.e(f'v_rcp_f32 v{DEN+4*k}, v{DEN+4*k}')
        a.e('s_nop 0')
        for k in range(4):
            for i in range(4): a.e(f'v_mul_f32 v{NUM+4*k+i}, v{NUM+4*k+i}, v{DEN+4*k}')
        OPK = V_A + 32
        emit_pack(a, OPK, NUM, 16)
        emit_mode_stores(a, [f'buffer_store_dwordx4 v[{OPK}:{OPK+3}], v{V_AB}, {WS}, s{S_T0} offen',
                             f'buffer_store_dwordx4 v[{OPK+4}:{OPK+7}], v{V_AB}, {WS}, s{S_T1} offen'], cold=True)
        emit_signal(a, ep(1))
        stamp()
        if done('P1Q'): return True

        ACC = V_ACC; WR = 80; TMP = V_A
        def small_gemm(phase, tail=None):
            a.fstamp(phase)
            emit_gemm32(a, bar, phase, slabs[phase], ACC, WR, tail=tail)
        def tile_store(pkb, base, gh=False, cold=False):
            soff(S_T0, base, gh=gh)
            emit_mode_stores(a, [f'buffer_store_dwordx4 v[{pkb}:{pkb+3}], v{V_TST}, {WS}, s{S_T0} offen',
                                 f'buffer_store_dwordx4 v[{pkb+4}:{pkb+7}], v{V_TST}, {WS}, s{S_T0} offen offset:512'], cold=cold)

        a.c('=== P3')
        stamp()
        small_gemm('P3')
        stamp()
        for i in range(0, 16, 2): a.e(pk('add', V_RES + i, vp(V_RES + i), vp(ACC + i)))
        emit_pack32(a, TMP, V_RES)
        tile_store(TMP, A1_OFF, cold=True)
        soff(S_T1, ST_OFF)
        emit_stats_partial32(a, V_RES, TMP + 8, f's{S_T1}', cold=True)
        emit_signal(a, ep(2))
        stamp()
        if done('P3'): return True

        a.c('=== P4')
        CS4 = TMP + 16; RAW = TMP + 32
        a.e(f'v_lshrrev_b32 v{T1}, 5, v{V_LANE}')
        a.e(f'v_lshlrev_b32 v{T1}, 4, v{T1}')
        a.e(f's_lshl_b32 s{S_T1}, s{S_CH}, 7')
        a.e(f's_add_u32 s{S_T1}, s{S_T1}, {hex(CSC + 384)}')
        a.e(f'v_add_u32 v{T1}, s{S_T1}, v{T1}')
        for j in range(4):
            a.e(f'ds_read_b128 v[{CS4+4*j}:{CS4+4*j+3}], v{T1} offset:{32*j}')
        a.e('s_waitcnt lgkmcnt(0)')
        stamp()
        def p4_tail():
            soff(S_T0, ST_OFF)
            for k in range(4):
                a.vmem(f'buffer_load_dwordx4 v[{RAW+4*k}:{RAW+4*k+3}], v{V_STS}, {WS}, s{S_T0} offen offset:{512*k} sc1', 'st')
        small_gemm('P4', tail=p4_tail)
        stamp()
        a.wait_vm_all()
        emit_sum_partials(a, RAW, 16)
        emit_xreduce(a, [RAW, RAW + 1], [RAW + 2, RAW + 3], over16=False)
        emit_stats_from_sums(a, RAW, RAW + 1, RAW + 4, RAW + 6, RAW + 8, double=True, keep=(V_MEAN, V_RS))
        emit_lnfold(a, ACC, CS4, RAW + 4, RAW + 6, 16)
        emit_gelu(a, ACC, 16, TMP + 48, V_PQ)
        emit_pack32(a, TMP, ACC)
        tile_store(TMP, A0_OFF, gh=True)
        gl = a.newlabel('GH'); gu = a.newlabel('GH'); gd = a.newlabel('GH')
        a.e(f's_cmp_eq_u32 s{S_RB}, 3')
        a.e(f's_cbranch_scc0 {gu}')
        a.e(f's_cmp_eq_u32 s{S_RH}, 1')
        a.e(f's_cbranch_scc0 {gd}')
        a.e(f's_bitcmp1_b32 s{S_CB}, 1')
        a.e(f's_cbranch_scc1 {gd}')
        a.e(f's_cmp_eq_u32 s{S_G}, 7')
        a.e(f's_cbranch_scc1 {gd}')
        a.e(f's_add_u32 s{S_T1}, s{S_G}, 1')
        a.e(f's_mul_i32 s{S_T2}, s{S_T1}, {18*16384}')
        a.e(f's_lshl_b32 s{S_T3}, s{S_T1}, 8')
        set_exec(a, 0xc0000000)
        a.e(f's_branch {gl}')
        a.label(gu)
        a.e(f's_cmp_eq_u32 s{S_RB}, 0')
        a.e(f's_cbranch_scc0 {gd}')
        a.e(f's_cmp_eq_u32 s{S_RH}, 0')
        a.e(f's_cbranch_scc0 {gd}')
        a.e(f's_bitcmp1_b32 s{S_CB}, 1')
        a.e(f's_cbranch_scc0 {gd}')
        a.e(f's_cmp_eq_u32 s{S_G}, 0')
        a.e(f's_cbranch_scc1 {gd}')
        a.e(f's_sub_u32 s{S_T1}, s{S_G}, 1')
        a.e(f's_mul_i32 s{S_T2}, s{S_T1}, {18*16384}')
        a.e(f's_add_u32 s{S_T2}, s{S_T2}, {17*16384}')
        a.e(f's_lshl_b32 s{S_T3}, s{S_T1}, 8')
        a.e(f's_add_u32 s{S_T3}, s{S_T3}, 128')
        set_exec(a, 0x00000003)
        a.label(gl)
        a.e(f's_lshl_b32 s{S_T0}, s{S_CB}, 1')
        a.e(f's_add_u32 s{S_T0}, s{S_T0}, s{S_CH}')
        a.e(f's_lshl_b32 s{S_T0}, s{S_T0}, 10')
        a.e(f's_add_u32 s{S_T2}, s{S_T2}, s{S_T0}')
        a.e(f'v_and_b32 v{T0}, 0x3fff, v{V_TST}')
        a.e(f'v_and_b32 v{T0}, 0x3ff, v{T0}')
        a.e(f'buffer_store_dwordx4 v[{TMP}:{TMP+3}], v{T0}, {WS}, s{S_T2} offen sc1')
        a.e(f'buffer_store_dwordx4 v[{TMP+4}:{TMP+7}], v{T0}, {WS}, s{S_T2} offen offset:512 sc1')
        a.e('s_mov_b64 exec, -1')
        a.e(f's_and_b32 s{S_T0}, s{S_CB}, 1')
        a.e(f's_lshr_b32 s{S_T1}, s{S_CB}, 2')
        a.e(f's_lshl_b32 s{S_T1}, s{S_T1}, 1')
        a.e(f's_add_u32 s{S_T0}, s{S_T0}, s{S_T1}')
        a.e(f's_lshl_b32 s{S_T0}, s{S_T0}, 1')
        a.e(f's_add_u32 s{S_T0}, s{S_T0}, s{S_CH}')
        a.e(f's_lshl_b32 s{S_T0}, s{S_T0}, 2')
        a.e(f's_add_u32 s{S_T3}, s{S_T3}, s{S_T0}')
        a.e(f's_lshl_b32 s{S_T0}, s{S_L}, 11')
        a.e(f's_add_u32 s{S_T3}, s{S_T3}, s{S_T0}')
        a.e(f's_add_u32 s{S_T3}, s{S_T3}, {hex(HF_OFF)}')
        thr_value(a, S_THR, ep(3), xcc=True)
        a.e(f'v_mov_b32 v{T0}, s{S_T3}')
        a.e(f'v_mov_b32 v{T1}, s{S_THR}')
        a.e('s_waitcnt vmcnt(0)')
        a.e('s_mov_b64 exec, 1')
        a.e(f'buffer_store_dword v{T1}, v{T0}, {WS}, 0 offen sc1')
        a.e('s_mov_b64 exec, -1')
        a.label(gd)
        emit_signal(a, ep(3))
        stamp()
        if done('P4'): return True

        a.c('=== P5')
        stamp()
        small_gemm('P5')
        stamp()
        a.e(f'v_mul_f32 v{TMP+10}, v{V_MEAN}, v{V_RS}')
        a.e(f'v_sub_f32 v{TMP+10}, 0, v{TMP+10}')
        a.e(f'v_mov_b32 v{TMP+8}, v{V_RS}')
        for i in range(0, 16, 2):
            a.e(pk('fma', ACC + i, vp(V_RES + i), vp(TMP + 8), vp(ACC + i), mods=' op_sel_hi:[1,0,1]'))
        for i in range(0, 16, 2):
            a.e(pk('add', ACC + i, vp(ACC + i), vp(TMP + 10), mods=' op_sel_hi:[1,0]'))
        emit_pack32(a, TMP, ACC)
        tile_store(TMP, A1_OFF)
        soff(S_T1, ST_OFF)
        emit_stats_partial32(a, ACC, TMP + 12, f's{S_T1}')
        for i in range(0, 16, 2): a.e(pk('add', V_RES + i, vp(V_RES + i), vp(ACC + i)))
        emit_signal(a, ep(4))
        stamp()
        if done('P5'): return True

        a.c('=== P6')
        CS6 = V_ACC; ACC6 = 192; WR6 = 96
        a.e(f'v_and_b32 v{T1}, 0x30, v{V_LANE}')
        a.e(f'v_add_u32 v{T1}, {hex(CSC + 640)}, v{T1}')
        for t in range(7):
            a.e(f'ds_read_b128 v[{CS6+4*t}:{CS6+4*t+3}], v{T1} offset:{64*t}')
        a.e('s_waitcnt lgkmcnt(0)')
        emit_poll(a, V_FSB, ep(4), opt=opt)
        stamp()
        def p6_load(j):
            a.e(f's_lshl_b32 s{S_T0}, s{S_RB2}, {13 if opt.rot else 31}')
            if not opt.rot: a.e(f's_mov_b32 s{S_T0}, 0')
            a.e(f's_xor_b32 s{S_T0}, s{S_T0}, {hex((j // 4) * 4096)}')
            a.e(f's_add_u32 s{S_T0}, s{S_T0}, {hex(A1_OFF)}')
            a.e(f's_add_u32 s{S_T1}, s{S_T0}, 0x4000')
            for r in range(2):
                d = V_A + ((j % 8) * 2 + r) * 4
                a.vmem(f'buffer_load_dwordx4 v[{d}:{d+3}], v{V_AB}, {WS}, s{S_T0 if r == 0 else S_T1} offen offset:{(j%4)*1024} sc1', ('A', j))
        RAW6 = [V_PQ, 248]
        def p6_issue(j, t):
            if t == 1:
                if j + opt.D_p6 < 16:
                    p6_load(j + opt.D_p6)
                elif j + opt.D_p6 == 16:
                    soff(S_T0, ST_OFF)
                    for r in range(2):
                        a.vmem(f'buffer_load_dwordx4 v[{RAW6[r]}:{RAW6[r]+3}], v{V_STB}, {WS}, s{S_T0} offen offset:{256*r} sc1', 'st')
                        a.vmem(f'buffer_load_dwordx4 v[{RAW6[r]+4}:{RAW6[r]+7}], v{V_STB}, {WS}, s{S_T0} offen offset:{256*r+512} sc1', 'st')
        a.fstamp('P6')
        for j in range(opt.D_p6): p6_load(j)
        emit_gemm16(a, bar, 'P6', slabs['P6'], 7, '224',
                    acc_of=lambda r, t: ACC6 + (r * 7 + t) * 4, a_of=lambda r, j: V_A + ((j % 8) * 2 + r) * 4,
                    a_wait=lambda j: a.count_vm(('A', j)), a_issue=p6_issue, wr=WR6, S=8)
        stamp()
        a.wait_vm_all()
        for r in range(2): emit_sum_partials(a, RAW6[r], 8)
        emit_xreduce(a, [RAW6[0], RAW6[0] + 1, RAW6[1], RAW6[1] + 1], [V_X, V_X + 1, V_X + 2, V_X + 3])
        AB6 = [(92, 94), (RAW6[1] + 4, RAW6[1] + 6)]
        for r in range(2):
            emit_stats_from_sums(a, RAW6[r], RAW6[r] + 1, AB6[r][0], AB6[r][1], V_X)
        a.e(f's_lshl_b32 s{S_T0}, s{S_G}, 4')
        a.e(f's_lshl_b32 s{S_T1}, s{S_RB2}, 3')
        a.e(f's_add_u32 s{S_T0}, s{S_T0}, s{S_T1}')
        a.e(f's_lshl_b32 s{S_T1}, s{S_W}, 1')
        a.e(f's_add_u32 s{S_T0}, s{S_T0}, s{S_T1}')
        a.e(f's_mul_i32 s{S_T0}, s{S_T0}, 57344')
        a.e(f's_lshr_b32 s{S_T1}, s{S_CB2}, 1')
        a.e(f's_mul_i32 s{S_T1}, s{S_T1}, 7168')
        a.e(f's_add_u32 s{S_T0}, s{S_T0}, s{S_T1}')
        a.e(f's_add_u32 s{S_T0}, s{S_T0}, {hex(G_OFF)}')
        a.e(f's_and_b32 s{S_T1}, s{S_CB2}, 1')
        a.e(f's_mul_i32 s{S_U0}, s{S_T1}, 3072')
        a.e(f's_add_u32 s{S_U0}, s{S_U0}, s{S_T0}')
        a.e(f's_add_u32 s{S_U1}, s{S_U0}, 57344')
        a.e(f's_lshl_b32 s{S_T1}, s{S_T1}, 3')
        a.e(f's_add_u32 s{S_U2}, s{S_T0}, s{S_T1}')
        a.e(f's_add_u32 s{S_U2}, s{S_U2}, 6144')
        a.e(f's_add_u32 s{S_U3}, s{S_U2}, 57344')
        a.e(f'v_lshlrev_b32 v{V_X+4}, 4, v{V_LANE}')
        for r in range(2):
            emit_lnfold(a, ACC6 + r * 28, CS6, AB6[r][0], AB6[r][1], 28)
            emit_gelu(a, ACC6 + r * 28, 28, V_A, V_PQ + 4)
            pkb = V_A + 16 + r * 16
            emit_pack(a, pkb, ACC6 + r * 28, 28)
            st = [f'buffer_store_dwordx4 v[{pkb+4*j}:{pkb+4*j+3}], v{V_X+4}, {WS}, s{S_U0+r} offen offset:{1024*j}' for j in range(3)]
            st.append(f'buffer_store_dwordx2 v[{pkb+12}:{pkb+13}], v{V_X+4}, {WS}, s{S_U2+r} offen')
            emit_mode_stores(a, st, cold=bool(opt.g_cold))
        emit_signal(a, ep(5))
        stamp()
        if done('P6'): return True

        a.c('=== P7')
        if opt.p7_self:
            VG, VF = V_A + 100, V_A + 101
            a.e(f's_lshl_b32 s{S_T0}, s{S_G}, 4'); a.e(f's_lshl_b32 s{S_T1}, s{S_RB}, 2'); a.e(f's_add_u32 s{S_T0}, s{S_T0}, s{S_T1}')
            a.e(f's_add_u32 s{S_T0}, s{S_T0}, s{S_W}'); a.e(f's_mul_i32 s{S_T0}, s{S_T0}, 57344')
            a.e(f'v_lshlrev_b32 v{VG}, 4, v{V_LANE}'); a.e(f'v_add_u32 v{VG}, s{S_T0}, v{VG}')
            for p_ in range(8):
                a.e(f's_and_b32 s{S_P7+p_}, s{S_RB}, {3 if opt.rot else 0}'); a.e(f's_lshl_b32 s{S_P7+p_}, s{S_P7+p_}, 1')
                a.e(f's_xor_b32 s{S_P7+p_}, s{S_P7+p_}, {p_}'); a.e(f's_mul_i32 s{S_P7+p_}, s{S_P7+p_}, 7168')
            a.e(f's_lshl_b32 s{S_T2}, s{S_G}, 9'); a.e(f's_add_u32 s{S_T2}, s{S_T2}, {hex(LF_OFF)}')
            a.e(f's_and_b32 s{S_T3}, s{S_RB}, 1'); a.e(f's_lshl_b32 s{S_T3}, s{S_T3}, 1'); a.e(f's_add_u32 s{S_T3}, s{S_T3}, s{S_RH}')
            a.e(f's_lshl_b32 s{S_T3}, s{S_T3}, 7'); a.e(f's_add_u32 s{S_T3}, s{S_T3}, s{S_T2}')
            a.e(f's_lshr_b32 s{S_T4}, s{S_RB}, 1'); a.e(f's_lshl_b32 s{S_T4}, s{S_T4}, 6'); a.e(f's_add_u32 s{S_T3}, s{S_T3}, s{S_T4}')
            a.e(f'v_and_b32 v{VF}, 15, v{V_LANE}'); a.e(f'v_lshlrev_b32 v{VF}, 2, v{VF}'); a.e(f'v_add_u32 v{VF}, s{S_T3}, v{VF}')
            a.e(f's_lshl_b32 s{S_T3}, s{S_R}, 2'); a.e(f's_add_u32 s{S_T3}, s{S_T3}, s{S_T2}')
            a.e(f'v_and_b32 v{T1}, 3, v{V_LANE}'); a.e(f'v_lshlrev_b32 v{T1}, 7, v{T1}'); a.e(f'v_add_u32 v{T1}, s{S_T3}, v{T1}')
            a.e(f'v_cmp_lt_u32 vcc, 15, v{V_LANE}'); a.e('s_nop 1'); a.e(f'v_cndmask_b32 v{VF}, v{VF}, v{T1}, vcc')
            emit_poll(a, VF, ep(5), opt=opt)
            stamp()
            def pieces7(c):
                state = {'last': None}
                def mk(k):
                    def f():
                        if k == 0: a.e(f's_add_u32 m0, s{S_W4K}, {hex(AREG + (c % 4) * 16384)}')
                        p_, i_ = divmod(4 * c + k, 7)
                        const = G_OFF + (i_ - k) * 1024
                        if state['last'] != (p_, const):
                            a.e(f's_add_u32 s{S_T0}, s{S_P7+p_}, {hex(const & 0xffffffff)}'); state['last'] = (p_, const)
                        a.vmem(f'buffer_load_dwordx4 v{VG}, {WS}, s{S_T0} offen offset:{k*1024} sc1 lds', ('A', c))
                    return f
                return [mk(k) for k in range(4)]
            emit_gemm32(a, bar, 'P7', slabs['P7'], ACC, WR, a_pieces=pieces7)
        else:
            stamp()
            small_gemm('P7')
        stamp()
        for i in range(0, 16, 2): a.e(pk('add', V_RES + i, vp(V_RES + i), vp(ACC + i)))
        emit_pack32(a, TMP, V_RES)
        return False

    stopped = run_layer()
    if not stopped:
        fin = a.newlabel('FIN'); TMP = V_A
        a.e(f's_cmp_eq_u32 s{S_L}, 1')
        a.e(f's_cbranch_scc1 {fin}')
        a.e(f's_mov_b32 s{S_T0}, {hex(A2_OFF)}')
        emit_mode_stores(a, [f'buffer_store_dwordx4 v[{TMP}:{TMP+3}], v{V_TST}, {WS}, s{S_T0} offen',
                             f'buffer_store_dwordx4 v[{TMP+4}:{TMP+7}], v{V_TST}, {WS}, s{S_T0} offen offset:512'], cold=True)
        a.e(f's_mov_b32 s{S_T1}, {hex(ST_OFF)}')
        emit_stats_partial32(a, V_RES, TMP + 8, f's{S_T1}')
        a.e(f's_add_u32 s{S_EP}, s{S_EP}, 6')
        emit_signal(a, f's{S_EP}')
        if opt.timing:
            dump([tmreg(i) for i in range(tm[0])])
        a.e(f's_mov_b32 s{S_L}, 1')
        a.e(f's_mov_b32 s{S_LOFF}, {hex(KVP_L)}')
        a.e(f's_mov_b32 s{S_COLD}, s{S_MODE}')
        for i in range(3): a.e(f's_mov_b32 s{S_PA+i}, s{S_WS+i}')
        a.e(f's_mov_b32 s{S_PA+3}, 0x20000')
        a.e(f'v_mov_b32 v{V_P1}, v{V_AB}')
        for c in range(4):
            a.e(f's_xor_b32 s{S_RK+c}, s{S_ROTK}, {c}')
            a.e(f's_lshl_b32 s{S_RK+c}, s{S_RK+c}, 12')
            a.e(f's_add_u32 s{S_RK+c}, s{S_RK+c}, {hex(A2_OFF)}')
        a.e(f's_mov_b32 s{S_ASTR}, 1024')
        a.e(f's_branch {LOOP}')
        a.label(fin)
        emit_pack(a, TMP, V_RES, 16)
        OS = f's[{S_OUT}:{S_OUT+3}]'
        for j in range(4):
            a.e(f'buffer_store_dwordx2 v[{TMP+2*j}:{TMP+2*j+1}], v{V_XRM}, {OS}, 0 offen offset:{16*j}')
    a.label('L_END_COMPUTE')
    nn = a.newlabel('NON')
    a.e(f's_or_b32 s{S_T0}, s2, s{S_W}')
    a.e(f's_cmp_eq_u32 s{S_T0}, 0')
    a.e(f's_cbranch_scc0 {nn}')
    a.e(f's_add_u32 s{S_T0}, s{S_V}, 1')
    a.e(f'v_mov_b32 v{V_T0}, s{S_T0}')
    a.e(f'v_mov_b32 v{V_T1}, {hex(NONCE_OFF)}')
    a.e('s_mov_b64 exec, 1')
    a.e(f'buffer_store_dword v{V_T0}, v{V_T1}, {WS}, 0 offen')
    a.e('s_mov_b64 exec, -1')
    a.label(nn)
    stamp()
    if opt.timing: dump([tmreg(i) for i in range(tm[0])] + ([85] if False else []))
    if opt.fine: dump([freg(i) for i in range(fs[0])])
    if opt.wall:
        a.e('s_waitcnt vmcnt(0)')
        a.e('s_memrealtime s[82:83]'); a.e('s_memtime s[80:81]'); a.e('s_waitcnt lgkmcnt(0)')
        dump([84, 82, 85, 80])
    a.e('s_waitcnt vmcnt(0)')
    a.e('s_endpgm')
    return evq


def gen_loader(a, opt, events):
    VN, VKV, VQ, VW3, VKVn, VQn = 8, 12, 16, 20, 28, 32
    VT0, VT1, VT2, VT3 = 1, 2, 3, 4
    a.c('--- loader setup')
    def srd(s, p, size):
        a.e(f's_mov_b32 s{s}, s{p}'); a.e(f's_mov_b32 s{s+1}, s{p+1}')
        a.e(f's_mov_b32 s{s+2}, {hex(size)}'); a.e(f's_mov_b32 s{s+3}, 0x20000')
    srd(S_WQKV, S_PTR + 2, 512 * 1536 * 2)
    srd(S_WO, S_PTR + 4, 512 * 512 * 2)
    srd(S_W1, S_PTR + 8, 512 * 512 * 2)
    srd(S_W2, S_PTR + 10, 512 * 512 * 2)
    srd(S_W3, S_PTR + 12, 512 * 1792 * 2)
    srd(S_W4, S_PTR + 14, 1792 * 512 * 2)
    CBS, CBK, CB6, CB7 = 64, 68, 72, 76
    a.e(f's_lshl_b32 s{S_T1}, s{S_RB2}, 1')
    a.e(f's_add_u32 s{S_T1}, s{S_T1}, s{S_CB2}')
    a.e(f's_and_b32 s{S_T1}, s{S_T1}, {3 if opt.rot else 0}')
    for c in range(4):
        a.e(f's_xor_b32 s{CBK+c}, s{S_T1}, {c}')
        a.e(f's_mul_i32 s{CBK+c}, s{CBK+c}, {128*3072}')
    def late_tables():
        rm = 3 if opt.rot else 0
        for c in range(4):
            a.e(f's_and_b32 s{CBS+c}, s{S_RB}, {rm}')
            a.e(f's_xor_b32 s{CBS+c}, s{CBS+c}, {c}')
            a.e(f's_lshl_b32 s{CBS+c}, s{CBS+c}, 17')
            a.e(f's_lshl_b32 s{CB6+c}, s{S_RB2}, 1')
            a.e(f's_and_b32 s{CB6+c}, s{CB6+c}, {rm}')
            a.e(f's_xor_b32 s{CB6+c}, s{CB6+c}, {c}')
            a.e(f's_mul_i32 s{CB6+c}, s{CB6+c}, {128*3584}')
        for p_ in range(8):
            a.e(f's_and_b32 s{CB7+p_}, s{S_RB}, {rm}')
            a.e(f's_lshl_b32 s{CB7+p_}, s{CB7+p_}, 1')
            a.e(f's_xor_b32 s{CB7+p_}, s{CB7+p_}, {p_}')
            a.e(f's_mul_i32 s{CB7+p_}, s{CB7+p_}, {224*1024}')

    def cs_issue():
        a.c('cs pieces')
        c1 = a.newlabel('CS'); c2 = a.newlabel('CS'); c3 = a.newlabel('CS')
        a.e(f's_min_u32 s{92}, s2, 239')
        a.e(f's_lshr_b32 s{93}, s{92}, 2')
        a.e(f's_and_b32 s{94}, s{92}, 3')
        a.e(f's_cmp_lt_u32 s{93}, 24')
        a.e(f's_cbranch_scc0 {c1}')
        for i in range(3): a.e(f's_mov_b32 s{S_CSRD+i}, s{S_WQKV+i}')
        a.e(f's_mov_b32 s{S_T0}, 3072')
        a.e(f's_lshl_b32 s{S_T1}, s{93}, 7')
        a.e(f's_branch {c3}')
        a.label(c1)
        a.e(f's_cmp_lt_u32 s{93}, 32')
        a.e(f's_cbranch_scc0 {c2}')
        for i in range(3): a.e(f's_mov_b32 s{S_CSRD+i}, s{S_W1+i}')
        a.e(f's_mov_b32 s{S_T0}, 1024')
        a.e(f's_sub_u32 s{S_T1}, s{93}, 24')
        a.e(f's_lshl_b32 s{S_T1}, s{S_T1}, 7')
        a.e(f's_branch {c3}')
        a.label(c2)
        for i in range(3): a.e(f's_mov_b32 s{S_CSRD+i}, s{S_W3+i}')
        a.e(f's_mov_b32 s{S_T0}, 3584')
        a.e(f's_sub_u32 s{S_T1}, s{93}, 32')
        a.e(f's_lshl_b32 s{S_T1}, s{S_T1}, 7')
        a.label(c3)
        a.e(f's_mov_b32 s{S_CSRD+3}, 0x20000')
        a.e(f'v_lshrrev_b32 v{VT1}, 3, v{V_LANE}')
        a.e(f'v_mul_lo_u32 v{VT1}, v{VT1}, s{S_T0}')
        a.e(f'v_and_b32 v{VT2}, 7, v{V_LANE}')
        a.e(f'v_lshl_add_u32 v{VT1}, v{VT2}, 4, v{VT1}')
        a.e(f'v_add_u32 v{VT1}, s{S_T1}, v{VT1}')
        a.e(f's_lshl_b32 s{S_T1}, s{94}, 7')
        a.e(f's_mul_i32 s{S_T1}, s{S_T1}, s{S_T0}')
        a.e(f's_lshl_b32 s{S_T0}, s{S_T0}, 3')
        a.e(f's_mov_b32 m0, {hex(CSL)}')
        for p in range(16):
            a.e('s_nop 0')
            a.vmem(f'buffer_load_dwordx4 v{VT1}, s[{S_CSRD}:{S_CSRD+3}], s{S_T1} offen lds', 'cs')
            if p < 15:
                a.e('s_add_u32 m0, m0, 1024')
                a.e(f's_add_u32 s{S_T1}, s{S_T1}, s{S_T0}')
    dg = [0]
    def dstamp():
        if opt.startdiag:
            a.e(f's_memtime s[{84+2*dg[0]}:{85+2*dg[0]}]') if False else None
            a.e('s_memtime s[98:99]'); a.e('s_waitcnt lgkmcnt(0)')
            a.e('s_sub_u32 s98, s98, s100')
            a.e(f'v_mov_b32 v{100+dg[0]}, s98'); dg[0] += 1
    dstamp()
    cs_issue()
    a.e(f'v_lshrrev_b32 v{VT0}, 3, v{V_LANE}')
    a.e(f'v_bfe_u32 v{VT1}, v{VT0}, 1, 2')
    a.e(f'v_lshlrev_b32 v{VT1}, 1, v{VT1}')
    a.e(f'v_and_b32 v{VT2}, 7, v{V_LANE}')
    a.e(f'v_xor_b32 v{VT2}, v{VT2}, v{VT1}')
    a.e(f'v_and_b32 v{VT1}, 3, v{VT2}')
    a.e(f'v_lshlrev_b32 v{VT3}, 4, v{VT1}')
    a.e(f'v_lshrrev_b32 v{VT1}, 2, v{VT2}')
    a.e(f'v_lshl_add_u32 v{VT3}, v{VT1}, 10, v{VT3}')
    a.e(f's_lshl_b32 s{S_T0}, s{S_CB2}, 6')
    a.e(f's_add_u32 s{S_T1}, s{S_T0}, 1024')
    a.e(f'v_add_u32 v{VT3}, s{S_T1}, v{VT3}')
    a.e(f'v_lshrrev_b32 v{VT1}, 2, v{VT0}')
    a.e(f'v_lshlrev_b32 v{VT1}, 3, v{VT1}')
    a.e(f'v_and_b32 v{VT2}, 3, v{VT0}')
    a.e(f'v_add_u32 v{VT1}, v{VT1}, v{VT2}')
    a.e(f'v_mul_u32_u24 v{VT1}, 3072, v{VT1}')
    a.e(f'v_add_u32 v{VT1}, v{VT1}, v{VT3}')
    for p in range(4):
        off = (16 * (p & 1) + 4 * (p >> 1)) * 3072 - p * 1024
        a.e(f'v_add_u32 v{VKVn+p}, {hex(off & 0xffffffff)}, v{VT1}')
    a.e(f'v_mul_u32_u24 v{VKV}, 3072, v{VT0}')
    a.e(f'v_add_u32 v{VKV}, v{VKV}, v{VT3}')
    for j in range(1, 4): a.e(f'v_add_u32 v{VKV+j}, {hex(j*(8*3072-1024))}, v{VKV}')

    layers = sorted(set(e[0] for e in events))
    slabs = {L: build_slabs(L) for L in layers}
    stream = []
    needed = set((e[0], e[2], e[3]) for e in events if e[1] == 'B')
    for L in layers:
        for p in PHASES:
            for ci, ch in enumerate(slabs[L][p]):
                if (L, p, ci) in needed: stream += ch
    released = set()
    log = []; cur = ['start']
    opt._log = log
    st = {'issued': 0}
    win = [opt.window0]
    def overlaps_unreleased(s, idx):
        for k in range(idx):
            o = stream[k]
            if (o.layer, o.phase, o.chunk) in released: continue
            if o.addr < s.addr + s.size and s.addr < o.addr + o.size: return True
        return False
    def emit_slab(s):
        kind = s.kind; tag = (s.layer, s.phase, s.chunk)
        if kind in opt.dbg_skip.split(','): return
        if kind in ('WO', 'W1', 'W2', 'W4'):
            srd_ = {'WO': S_WO, 'W1': S_W1, 'W2': S_W2, 'W4': S_W4}[kind]; vb = VN; rs = 1024
        elif kind == 'KV': srd_, vb, rs = S_WQKV, (VKVn if s.layer == 0 else VKV), 3072
        elif kind == 'Q': srd_, vb, rs = S_WQKV, (VQn if s.layer == 0 else VQ), 3072
        else: srd_, vb, rs = S_W3, VW3, 3584
        R4 = f's[{srd_}:{srd_+3}]'
        def grp(addr, srow, ps, v0):
            a.e(f's_mov_b32 m0, {hex(addr)}')
            if kind == 'W4':
                p_, rr_ = divmod(srow, 224); tb_ = CB7 + p_
            else:
                c_, rr_ = divmod(srow, 128); tb_ = {'KV': CBK, 'Q': CBK, 'W3': CB6}.get(kind, CBS) + c_
            a.e(f's_add_u32 s{S_T0}, s{tb_}, {hex(rr_*rs)}')
            for k, p in enumerate(ps):
                a.vmem(f'buffer_load_dwordx4 v{vb+p}, {R4}, s{S_T0} offen offset:{k*1024} {"nt " if opt.w_nt else ""}lds', tag)
        if kind == 'W3':
            grp(s.addr, s.srow, [0, 1, 2, 3], 0); grp(s.addr + 4096, s.srow, [4, 5, 6], 0)
        elif kind == 'W4' and s.srow2 != s.srow + 16:
            grp(s.addr, s.srow, [0, 1], 0); grp(s.addr + 2048, s.srow2, [0, 1], 0)
        else:
            grp(s.addr, s.srow, [0, 1, 2, 3], 0)
        if len(a.vm) > win[0]:
            a.e(f's_waitcnt vmcnt({win[0]})')
            a.vm = a.vm[len(a.vm) - win[0]:]
    plan = {}
    opt._plan = plan
    free = [56, 56]
    def need_slots(s): return (4, 3) if s.kind == 'W3' else (2, 2)
    def park_policy(key):
        if not opt.park: return
        name = key.split('.', 1)[1] if key[0] in '01' else None
        if name is None: return
        L = int(key[0])
        if name in opt.park_w3:
            cand = [s for s in stream[st['issued']:] if s.layer == L and s.phase == 'P6' and s.chunk >= 1]; cap = opt.park_w3[name]
        elif name in opt.park_caps:
            cand = [s for s in stream[st['issued']:] if s.layer == L and s.phase == 'P7' and s.chunk >= 6]; cap = opt.park_caps[name]
        else:
            return
        for s in cand:
            if getattr(s, 'parked', False): continue
            n0, n1 = need_slots(s)
            if cap <= 0 or free[0] < n0 or free[1] < n1: break
            s.parked = True; free[0] -= n0; free[1] -= n1; cap -= 1
            plan.setdefault(key, []).append(('park', s))
    def issue(cap, must=None):
        n = 0; nu = 0
        while st['issued'] < len(stream):
            s = stream[st['issued']]
            forced = must is not None and any((o.layer, o.phase, o.chunk) == must for o in stream[st['issued']:])
            pk_ = getattr(s, 'parked', False)
            if not forced and not pk_ and n + s.npieces > cap: break
            if not forced and pk_ and (nu >= opt.unpark_max or must is not None): break
            if overlaps_unreleased(s, st['issued']):
                assert not forced, ('deadlock', must, s.layer, s.phase, s.chunk)
                break
            if pk_:
                plan.setdefault(cur[0], []).append(('unpark', s)); nu += 1
                n0, n1 = need_slots(s); free[0] += n0; free[1] += n1
                st['issued'] += 1
                log.append((cur[0], s.layer, s.phase + '*', s.chunk, forced))
                continue
            emit_slab(s); st['issued'] += 1; n += s.npieces
            log.append((cur[0], s.layer, s.phase, s.chunk, forced))
    if WARM0[0]:
        a.e('s_barrier')
        events = events[1:]
    issue(64)
    dstamp()
    def nonce_setup():
        a.e('s_waitcnt lgkmcnt(0)')
        a.e(f's_mul_i32 s{S_B}, s{S_V}, 0x9e3779b1')
        a.e(f's_add_u32 s{S_B}, s{S_B}, 0x7f4a7c15')
        a.e(f's_and_b32 s{S_B}, s{S_B}, 0xffffff00')
    def late_setup():
        if not opt.cs_late: nonce_setup()
        a.e(f's_lshl_b32 s{S_T0}, s{S_G}, 7')
        a.e(f's_lshl_b32 s{S_T1}, s{S_R}, 2')
        a.e(f's_add_u32 s{S_T0}, s{S_T0}, s{S_T1}')
        a.e(f's_add_u32 s{S_T0}, s{S_T0}, {hex(XID_OFF)}')
        a.e(f'v_mov_b32 v{VT1}, s{S_T0}')
        a.e(f's_add_u32 s{S_T1}, s{S_B}, s{S_XCC}')
        a.e(f'v_mov_b32 v{VT0}, s{S_T1}')
        a.e('s_mov_b64 exec, 1')
        a.vmem(f'buffer_store_dword v{VT0}, v{VT1}, {WS}, 0 offen sc1', 'xid')
        a.e('s_mov_b64 exec, -1')
        late_tables()
        a.c('W lane offsets')
        a.e(f'v_lshrrev_b32 v{VT0}, 3, v{V_LANE}')
        a.e(f'v_bfe_u32 v{VT1}, v{VT0}, 1, 1')
        a.e(f'v_lshlrev_b32 v{VT1}, 2, v{VT1}')
        a.e(f'v_and_b32 v{VT2}, 7, v{V_LANE}')
        a.e(f'v_xor_b32 v{VT2}, v{VT2}, v{VT1}')
        a.e(f'v_lshlrev_b32 v{VN}, 10, v{VT0}')
        a.e(f'v_lshl_add_u32 v{VN}, v{VT2}, 4, v{VN}')
        a.e(f's_lshl_b32 s{S_T0}, s{S_CB}, 7')
        a.e(f'v_add_u32 v{VN}, s{S_T0}, v{VN}')
        for j in range(1, 4): a.e(f'v_add_u32 v{VN+j}, {hex(j*(8192-1024))}, v{VN}')
        a.e(f'v_lshrrev_b32 v{VT0}, 2, v{V_LANE}')
        a.e(f'v_bfe_u32 v{VT1}, v{VT0}, 2, 1')
        a.e(f'v_lshlrev_b32 v{VT1}, 1, v{VT1}')
        a.e(f'v_and_b32 v{VT2}, 3, v{V_LANE}')
        a.e(f'v_xor_b32 v{VT2}, v{VT2}, v{VT1}')
        a.e(f'v_lshlrev_b32 v{VT3}, 4, v{VT2}')
        a.e(f's_lshl_b32 s{S_T0}, s{S_CB2}, 6')
        a.e(f'v_add_u32 v{VT3}, s{S_T0}, v{VT3}')
        a.e(f'v_mul_u32_u24 v{VQ}, 3072, v{VT0}')
        a.e(f'v_add_u32 v{VQ}, v{VQ}, v{VT3}')
        for j in range(1, 4): a.e(f'v_add_u32 v{VQ+j}, {hex(j*(16*3072-1024))}, v{VQ}')
        a.e(f'v_lshrrev_b32 v{VT1}, 2, v{VT0}')
        a.e(f'v_lshlrev_b32 v{VT1}, 3, v{VT1}')
        a.e(f'v_and_b32 v{VT2}, 3, v{VT0}')
        a.e(f'v_add_u32 v{VT1}, v{VT1}, v{VT2}')
        a.e(f'v_mul_u32_u24 v{VT1}, 3072, v{VT1}')
        a.e(f'v_add_u32 v{VT1}, v{VT1}, v{VT3}')
        for p in range(4):
            off = (4 * (p & 1) + 32 * (p >> 1)) * 3072 - p * 1024
            a.e(f'v_add_u32 v{VQn+p}, {hex(off & 0xffffffff)}, v{VT1}')
        a.e(f's_mul_i32 s{S_T0}, s{S_CB2}, 224')
        M14 = (1 << 20) // 14 + 1
        a.e(f's_mov_b32 s{S_T1}, {hex(M14)}')
        for p in range(7):
            a.e(f'v_add_u32 v{VT0}, {64*p}, v{V_LANE}')
            a.e(f'v_mul_lo_u32 v{VT1}, v{VT0}, s{S_T1}')
            a.e(f'v_lshrrev_b32 v{VT1}, 20, v{VT1}')
            a.e(f'v_mul_u32_u24 v{VT2}, 14, v{VT1}')
            a.e(f'v_sub_u32 v{VT2}, v{VT0}, v{VT2}')
            a.e(f'v_mul_u32_u24 v{VW3+p}, 3584, v{VT1}')
            a.e(f'v_lshl_add_u32 v{VW3+p}, v{VT2}, 4, v{VW3+p}')
            a.e(f'v_add_u32 v{VW3+p}, s{S_T0}, v{VW3+p}')
            if p % 4: a.e(f'v_subrev_u32 v{VW3+p}, {(p%4)*1024}, v{VW3+p}')
        for u in range(448): assert (u * M14) >> 20 == u // 14

    def cs_part1():
        a.wait_vm('cs')
        a.e(f'v_bfe_u32 v{VT0}, v{V_LANE}, 2, 2')
        a.e(f'v_lshrrev_b32 v{VT1}, 4, v{V_LANE}')
        a.e(f'v_lshl_add_u32 v{VT0}, v{VT1}, 2, v{VT0}')
        a.e(f'v_lshlrev_b32 v{VT0}, 7, v{VT0}')
        a.e(f'v_and_b32 v{VT2}, 3, v{V_LANE}')
        a.e(f'v_lshl_add_u32 v{VT0}, v{VT2}, 3, v{VT0}')
        a.e(f'v_add_u32 v{VT0}, {hex(CSL)}, v{VT0}')
        for i in range(4): a.e(f'v_mov_b32 v{40+i}, 0x3f803f80')
        for j in range(4):
            for t in range(4):
                a.e(f'ds_read_b64_tr_b16 v[{64+4*t}:{65+4*t}], v{VT0} offset:{j*4096+t*32}')
                a.e(f'ds_read_b64_tr_b16 v[{66+4*t}:{67+4*t}], v{VT0} offset:{j*4096+t*32+2048}')
            a.e('s_waitcnt lgkmcnt(0)')
            for t in range(4):
                c = '0' if j == 0 else f'v[{44+4*t}:{47+4*t}]'
                a.e(f'v_mfma_f32_16x16x32_bf16 v[{44+4*t}:{47+4*t}], v[{64+4*t}:{67+4*t}], v[40:43], {c}')
        a.e(f's_mul_i32 s{S_T0}, s{94}, 15360')
        a.e(f's_lshl_b32 s{S_T1}, s{93}, 8')
        a.e(f's_add_u32 s{S_T0}, s{S_T0}, s{S_T1}')
        a.e(f's_add_u32 s{S_T0}, s{S_T0}, {hex(CSP_OFF)}')
        a.e(f'v_lshlrev_b32 v{VT1}, 4, v{VT1}')
        a.e('s_nop 7')
        set_exec(a, 0x00010001)
        for t in range(4):
            a.vmem(f'buffer_store_dwordx4 v[{44+4*t}:{47+4*t}], v{VT1}, {WS}, s{S_T0} offen offset:{64*t} sc1', 'csst')
        a.e('s_mov_b64 exec, -1')
        if opt.kv_atomic:
            zl = a.newlabel('ZK')
            a.e(f's_lshr_b32 s{S_T0}, s2, 3')
            a.e(f's_mul_i32 s{S_T0}, s{S_T0}, {KVREC}')
            a.e(f's_add_u32 s{S_T0}, s{S_T0}, {hex(KVA_OFF)}')
            a.e(f's_and_b32 s{S_T1}, s2, 0x87')
            a.e(f's_cmp_eq_u32 s{S_T1}, 0')
            a.e(f's_cbranch_scc0 {zl}')
            for i in range(4): a.e(f'v_mov_b32 v{60+i}, 0')
            a.e(f'v_lshlrev_b32 v{VT0}, 4, v{V_LANE}')
            for l_ in range(2):
                a.vmem(f'buffer_store_dwordx4 v[60:63], v{VT0}, {WS}, s{S_T0} offen sc1', 'csst')
                a.vmem(f'buffer_store_dwordx4 v[60:63], v{VT0}, {WS}, s{S_T0} offen offset:1024 sc1', 'csst')
                a.e('s_mov_b64 exec, 0xff')
                a.vmem(f'buffer_store_dwordx4 v[60:63], v{VT0}, {WS}, s{S_T0} offen offset:2048 sc1', 'csst')
                a.e('s_mov_b64 exec, -1')
                if l_ == 0: a.e(f's_add_u32 s{S_T0}, s{S_T0}, {16*KVREC}')
            a.label(zl)
    def cs_part2():
        a.e(f's_lshl_b32 s{S_T0}, s2, 7')
        a.e(f's_add_u32 s{S_T0}, s{S_T0}, {hex(CSF_OFF)}')
        a.e(f'v_mov_b32 v{VT1}, s{S_T0}')
        a.e(f's_add_u32 s{S_T1}, s{S_B}, 8')
        a.e(f'v_mov_b32 v{VT0}, s{S_T1}')
        a.wait_vm('csst')
        a.e('s_mov_b64 exec, 1')
        a.vmem(f'buffer_store_dword v{VT0}, v{VT1}, {WS}, 0 offen sc1', 'csf')
        a.e('s_mov_b64 exec, -1')
    def cs_fill():
        L_ = a.newlabel('CPOLL'); D_ = a.newlabel('CPOLLD')
        a.e(f'v_min_u32 v{VT0}, 27, v{V_LANE}')
        a.e(f'v_lshrrev_b32 v{VT2}, 2, v{VT0}')
        a.e(f's_lshr_b32 s{S_T0}, s{S_CB2}, 1')
        a.e(f'v_lshlrev_b32 v{VT1}, 3, v{VT2}')
        a.e(f'v_add_u32 v{VT1}, s{S_T0}, v{VT1}')
        a.e(f's_add_u32 s{S_T0}, s{S_CB}, 24')
        a.e(f'v_mov_b32 v{VT3}, s{S_T0}')
        a.e(f'v_cmp_eq_u32 vcc, 3, v{VT2}')
        a.e('s_nop 1')
        a.e(f'v_cndmask_b32 v{VT1}, v{VT1}, v{VT3}, vcc')
        a.e(f's_mul_i32 s{S_T0}, s{S_CB2}, 112')
        a.e(f's_lshr_b32 s{S_T0}, s{S_T0}, 6')
        a.e(f's_add_u32 s{S_T0}, s{S_T0}, {32 - 4}')
        a.e(f'v_add_u32 v{VT3}, s{S_T0}, v{VT2}')
        a.e(f'v_min_u32 v{VT3}, 59, v{VT3}')
        a.e(f'v_cmp_lt_u32 vcc, 3, v{VT2}')
        a.e('s_nop 1')
        a.e(f'v_cndmask_b32 v{VT1}, v{VT1}, v{VT3}, vcc')
        a.e(f'v_and_b32 v{VT0}, 3, v{VT0}')
        a.e(f'v_lshl_add_u32 v{VT1}, v{VT1}, 2, v{VT0}')
        if opt.kv_atomic:
            a.e(f's_lshl_b32 s{S_T0}, s{S_CB2}, 3')
            a.e(f'v_mov_b32 v{VT3}, s{S_T0}')
            a.e(f'v_cmp_lt_u32 vcc, 27, v{V_LANE}')
            a.e('s_nop 1')
            a.e(f'v_cndmask_b32 v{VT1}, v{VT1}, v{VT3}, vcc')
        a.e(f'v_lshlrev_b32 v{VT1}, 7, v{VT1}')
        a.e(f's_mov_b32 s{S_T0}, {hex(CSF_OFF)}')
        a.e(f's_add_u32 s{S_T1}, s{S_B}, 8')
        a.e(f's_mov_b32 s{95}, {opt.spin}')
        a.label(L_)
        a.e(f'buffer_load_dword v40, v{VT1}, {WS}, s{S_T0} offen sc1')
        a.e('s_waitcnt vmcnt(0)')
        a.e(f'v_subrev_u32 v40, s{S_T1}, v40')
        a.e('v_cmp_gt_u32 vcc, 0x80, v40')
        a.e(f's_sub_u32 s{95}, s{95}, 1')
        a.e(f's_cbranch_scc1 {D_}')
        a.e('s_cmp_eq_u64 vcc, -1')
        a.e(f's_cbranch_scc0 {L_}')
        a.label(D_)
        a.vm = []
        def colof(dst, gofs):
            a.e(f'v_add_u32 v{VT0}, {gofs}, v{V_LANE}')
            a.e(f'v_lshlrev_b32 v{VT2}, 2, v{VT0}')
            a.e(f's_lshl_b32 s{S_T0}, s{S_CB2}, 5')
            a.e(f's_mul_i32 s{S_T1}, s{S_CB2}, 112')
            a.e(f's_add_u32 s{S_T1}, s{S_T1}, {2048 - 160}')
            a.e(f'v_add_u32 v{dst}, s{S_T1}, v{VT2}')
            for lim, addc, useb in [(40, 1536 - 96, 'cb'), (24, -64, 'hp'), (16, 1024 - 32, 'hp'), (8, 512, 'hp')]:
                if useb == 'cb':
                    a.e(f's_lshl_b32 s{S_T1}, s{S_CB}, 6')
                    a.e(f's_add_u32 s{S_T1}, s{S_T1}, {addc}')
                else:
                    a.e(f's_add_u32 s{S_T1}, s{S_T0}, {hex(addc & 0xffffffff)}')
                a.e(f'v_add_u32 v{VT3}, s{S_T1}, v{VT2}')
                a.e(f'v_cmp_gt_u32 vcc, {lim}, v{VT0}')
                a.e('s_nop 1')
                a.e(f'v_cndmask_b32 v{dst}, v{dst}, v{VT3}, vcc')
            a.e(f'v_lshlrev_b32 v{dst}, 2, v{dst}')
        colof(36, 0); colof(37, 64)
        a.e(f's_mov_b32 s{S_T0}, {hex(CSP_OFF)}')
        for kq in range(4):
            a.e(f'buffer_load_dwordx4 v[{40+4*kq}:{43+4*kq}], v36, {WS}, s{S_T0} offen sc1')
            a.e('s_mov_b64 exec, 0xf')
            a.e(f'buffer_load_dwordx4 v[{56+4*kq}:{59+4*kq}], v37, {WS}, s{S_T0} offen sc1')
            a.e('s_mov_b64 exec, -1')
            if kq < 3: a.e(f's_add_u32 s{S_T0}, s{S_T0}, 15360')
        a.e(f'v_lshlrev_b32 v{VT0}, 4, v{V_LANE}')
        a.e(f'v_add_u32 v{VT0}, {hex(CSC)}, v{VT0}')
        a.e('s_waitcnt vmcnt(0)')
        for b in (40, 56):
            for i in (0, 2):
                a.e(pk('add', b + i, vp(b + i), vp(b + 4 + i)))
                a.e(pk('add', b + 8 + i, vp(b + 8 + i), vp(b + 12 + i)))
                a.e(pk('add', b + i, vp(b + i), vp(b + 8 + i)))
        a.e(f'ds_write_b128 v{VT0}, v[40:43]')
        a.e('s_mov_b64 exec, 0xf')
        a.e(f'ds_write_b128 v{VT0}, v[56:59] offset:1024')
        a.e('s_mov_b64 exec, -1')
        a.e('s_waitcnt lgkmcnt(0)')

    if not opt.cs_late: cs_part1()
    chunks_of = {}
    for s in stream: chunks_of.setdefault((s.layer, s.phase), set()).add(s.chunk)
    nb = 0
    for ev in events:
        L, kind, p, ci = ev
        if kind == 'B':
            cur[0] = f'pre {L}.{p}.B{ci}'
            issue(0, must=(L, p, ci))
            cur[0] = f'{L}.{p}.B{ci}'
            if nb < 5: dstamp()
            a.wait_vm((L, p, ci))
            if nb < 5: dstamp()
            a.e('s_barrier')
            nb += 1
            if ci >= 2: released.add((L, p, ci - 2))
            if ci == 0:
                for (l2, p2), cs_ in chunks_of.items():
                    if p2 in NOE and (l2, PHASES.index(p2)) < (L, PHASES.index(p)):
                        for c in cs_: released.add((l2, p2, c))
            if opt.cs_late and nb <= 4:
                if nb == 1:
                    cs_part1()
                    nonce_setup()
                elif nb == 2:
                    cs_part2()
                    late_setup()
                elif nb == 3:
                    pass
                elif nb == 4:
                    cs_fill()
                    win[0] = opt.window
            elif nb == 1:
                late_setup()
                cs_part2()
            elif nb == 3:
                cs_fill()
                win[0] = opt.window
            elif nb in (2, 4):
                pass
            else:
                issue(opt.caps.get(f'{p}.B{ci}', opt.caps.get(f'{p}.B*', 0)))
                park_policy(cur[0])
        elif kind == 'E':
            cur[0] = f'{L}.{p}.E'
            a.e('s_barrier')
            for c in chunks_of[(L, p)]: released.add((L, p, c))
            issue(opt.caps.get(f'{p}.E', 0))
            park_policy(cur[0])
        else:
            cur[0] = f'{L}.{p}'
            a.e('s_barrier')
            issue(opt.caps.get(p, 0))
            park_policy(cur[0])
    if opt.startdiag:
        a.e(f's_lshl_b32 s{S_T0}, s2, 8')
        a.e(f's_add_u32 s{S_T0}, s{S_T0}, {hex(TM_OFF + 128)}')
        for i in range(dg[0]):
            a.e(f'v_mov_b32 v99, {4*i}')
            a.e(f'buffer_store_dword v{100+i}, v99, {WS}, s{S_T0} offen')
    a.e('s_waitcnt vmcnt(0)')
    a.e('s_endpgm')


def gen_toucher(a, opt, events):
    a.c('--- A loader / toucher')
    mats = {'WO': (S_PTR + 4, 512 * 512 * 2), 'W1': (S_PTR + 8, 512 * 512 * 2),
            'W2': (S_PTR + 10, 512 * 512 * 2), 'W3': (S_PTR + 12, 512 * 1792 * 2), 'W4': (S_PTR + 14, 1792 * 512 * 2)}
    srds = {}
    for i, (k, (p, size)) in enumerate(mats.items()):
        s = 40 + 4 * i
        a.e(f's_mov_b32 s{s}, s{p}'); a.e(f's_mov_b32 s{s+1}, s{p+1}')
        a.e(f's_mov_b32 s{s+2}, {hex(size)}'); a.e(f's_mov_b32 s{s+3}, 0x20000')
        srds[k] = s
    T0s, T1s, T2s, T3s, T4s, T5s = 33, 34, 35, 36, 37, 38
    THR, SPIN = 60, 61
    RA, P7T = 64, 68
    U0, U1, U2, U3, U4 = 76, 77, 78, 79, 80
    VAS, VAG, VFS, VFB, VFH, VAH = 3, 4, 5, 6, 7, 8
    X0, X1, X2, X3 = 24, 25, 26, 27
    X0W = 31
    e = a.e
    VXK = 40
    e(f'v_lshrrev_b32 v2, 4, v{V_LANE}')
    e(f'v_and_b32 v3, 15, v{V_LANE}')
    for k in range(4):
        e(f'v_add_u32 v{VXK+k}, {4*k}, v2'); e(f'v_xor_b32 v{VXK+k}, v{VXK+k}, v3'); e(f'v_lshlrev_b32 v{VXK+k}, 4, v{VXK+k}')
        e(f'v_lshl_add_u32 v{VXK+k}, v2, 10, v{VXK+k}')
    e(f's_lshl_b32 s33, s{S_G}, 8'); e(f's_lshl_b32 s34, s{S_RB2}, 7'); e('s_add_u32 s33, s33, s34'); e('s_lshl_b32 s82, s33, 10')
    e(f's_lshl_b32 s83, s{S_RB2}, 1'); e(f's_add_u32 s83, s83, s{S_CB2}'); e(f's_and_b32 s83, s83, {3 if opt.rot else 0}')
    e(f's_lshr_b32 s81, s{S_CB2}, 2'); e(f's_lshl_b32 s81, s81, {13 if opt.rot else 31}')
    if not opt.rot: e('s_mov_b32 s81, 0')
    def x_chunk(c):
        e(f's_xor_b32 s33, s83, {c}'); e('s_lshl_b32 s33, s33, 8'); e('s_add_u32 s33, s33, s82')
        e('s_mov_b32 s34, s81'); e('s_mov_b32 s36, 8')
        lp = a.newlabel('XC'); a.label(lp)
        for k in range(4):
            e(f's_add_u32 m0, s34, {hex(AREG + (c & 1) * 32768)}')
            e('s_lshl_b32 s35, s34, 2'); e('s_add_u32 s35, s35, s33')
            e(f'buffer_load_dwordx4 v{VXK + k}, s[{S_X}:{S_X+3}], s35 offen lds')
            e('s_add_u32 s34, s34, 1024')
        e('s_and_b32 s34, s34, 0x7fff')
        e('s_waitcnt vmcnt(52)')
        e('s_sub_u32 s36, s36, 1'); e('s_cmp_lg_u32 s36, 0'); e(f's_cbranch_scc1 {lp}')
        a.vm += [('X', c)] * 32
        a.vm = a.vm[-52:]
    def x_tile():
        e(f'v_lshrrev_b32 v2, 3, v{V_LANE}'); e('v_lshlrev_b32 v2, 10, v2')
        e(f'v_and_b32 v30, 7, v{V_LANE}'); e('v_lshl_add_u32 v2, v30, 4, v2')
        e(f's_lshl_b32 s33, s{S_G}, 8'); e(f's_lshl_b32 s34, s{S_RB}, 6'); e('s_add_u32 s33, s33, s34'); e('s_lshl_b32 s33, s33, 10')
        e(f's_lshl_b32 s34, s{S_CB}, 7'); e('s_add_u32 s33, s33, s34')
        for p_ in range(8):
            e(f's_mov_b32 m0, {hex(AREG + p_ * 1024)}')
            if p_: e('s_add_u32 s33, s33, 8192')
            else: e('s_nop 0')
            a.vmem(f'buffer_load_dwordx4 v2, s[{S_X}:{S_X+3}], s33 offen lds', 'x')
    if WARM0[0]:
        e('s_barrier')
        events = events[1:]
    x_chunk(0); x_chunk(1)
    e(f'v_lshlrev_b32 v1, 7, v{V_LANE}')
    e(f'v_lshlrev_b32 v{X0}, 4, v{V_LANE}')
    e(f'v_lshlrev_b32 v{X0W}, 4, v{V_LANE}')
    e(f's_lshl_b32 s{T0s}, s{S_G}, 4'); e(f's_lshl_b32 s{T1s}, s{S_RB}, 2'); e(f's_add_u32 s{T0s}, s{T0s}, s{T1s}')
    e(f's_lshl_b32 s{T1s}, s{T0s}, 14'); e(f'v_add_u32 v{VAS}, s{T1s}, v{X0}')
    e(f's_mul_i32 s{T1s}, s{T0s}, 57344'); e(f'v_add_u32 v{VAG}, s{T1s}, v{X0}')
    rmask = 3 if opt.rot else 0
    for c in range(4):
        e(f's_and_b32 s{RA+c}, s{S_RB}, {rmask}'); e(f's_xor_b32 s{RA+c}, s{RA+c}, {c}'); e(f's_lshl_b32 s{RA+c}, s{RA+c}, 12')
    for p_ in range(8):
        e(f's_and_b32 s{P7T+p_}, s{S_RB}, {rmask}'); e(f's_lshl_b32 s{P7T+p_}, s{P7T+p_}, 1')
        e(f's_xor_b32 s{P7T+p_}, s{P7T+p_}, {p_}'); e(f's_mul_i32 s{P7T+p_}, s{P7T+p_}, 7168')
    e(f'v_and_b32 v{X1}, 15, v{V_LANE}')
    e(f'v_and_b32 v{X2}, 0x30, v{V_LANE}')
    e(f's_mul_i32 s{T3s}, s{S_G}, 18')
    e(f's_lshl_b32 s{T4s}, s{S_G}, 8')
    for c in range(4):
        e(f's_lshr_b32 s{T5s}, s{RA+c}, 12')
        e(f's_lshr_b32 s{U3}, s{T5s}, 1'); e(f's_add_u32 s{U3}, s{U3}, 1'); e(f's_sub_u32 s{U4}, 0, s{U3}')
        e(f's_bitcmp1_b32 s{T5s}, 0'); e(f's_cselect_b32 s{U3}, s{U3}, s{U4}')
        e(f's_lshl_b32 s{T2s}, s{S_RB}, 6'); e(f's_add_u32 s{T2s}, s{T2s}, s{U3}'); e(f's_add_u32 s{T2s}, s{T2s}, 16')
        for w in range(4):
            r = VAH + 4 * c + w
            e(f's_add_u32 s{T5s}, s{T2s}, {16 * w}')
            e(f'v_add_u32 v{r}, s{T5s}, v{X1}')
            e(f'v_lshrrev_b32 v{X3}, 4, v{r}'); e(f'v_add_u32 v{X3}, s{T3s}, v{X3}'); e(f'v_lshlrev_b32 v{X3}, 14, v{X3}')
            e(f'v_and_b32 v28, 15, v{r}'); e(f'v_add_u32 v28, v{X2}, v28'); e(f'v_lshl_add_u32 v{X3}, v28, 4, v{X3}')
            e(f'v_add_u32 v28, s{T4s}, v{r}'); e('v_subrev_u32 v28, 16, v28')
            e('v_cmp_gt_u32 vcc, 0x800, v28')
            e(f'v_mov_b32 v{r}, 0x80000000'); e('s_nop 0')
            e(f'v_cndmask_b32 v{r}, v{r}, v{X3}, vcc')
    e(f's_lshl_b32 s{T2s}, s{S_G}, 9'); e(f's_add_u32 s{T2s}, s{T2s}, {hex(LF_OFF)}')
    e(f'v_bfe_u32 v{X1}, v{V_LANE}, 3, 2'); e(f'v_lshlrev_b32 v{X1}, 7, v{X1}')
    e(f'v_and_b32 v{X2}, 7, v{V_LANE}'); e(f'v_lshl_add_u32 v{X1}, v{X2}, 2, v{X1}')
    e(f's_lshl_b32 s{T3s}, s{S_RB}, 5'); e(f's_add_u32 s{T3s}, s{T3s}, s{T2s}')
    e(f'v_add_u32 v{VFS}, s{T3s}, v{X1}')
    e(f's_and_b32 s{T3s}, s{S_RB}, 1'); e(f's_lshl_b32 s{T3s}, s{T3s}, 8'); e(f's_add_u32 s{T3s}, s{T3s}, s{T2s}')
    e(f's_lshr_b32 s{T4s}, s{S_RB}, 1'); e(f's_lshl_b32 s{T4s}, s{T4s}, 6'); e(f's_add_u32 s{T3s}, s{T3s}, s{T4s}')
    e(f'v_bfe_u32 v{X2}, v{V_LANE}, 4, 1'); e(f'v_lshlrev_b32 v{X2}, 7, v{X2}')
    e(f'v_and_b32 v{X3}, 15, v{V_LANE}'); e(f'v_lshl_add_u32 v{X2}, v{X3}, 2, v{X2}')
    e(f'v_add_u32 v{VFB}, s{T3s}, v{X2}')
    e(f's_lshl_b32 s{T3s}, s{S_R}, 2'); e(f's_add_u32 s{T3s}, s{T3s}, s{T2s}')
    e(f'v_and_b32 v{X2}, 3, v{V_LANE}'); e(f'v_lshlrev_b32 v{X2}, 7, v{X2}'); e(f'v_add_u32 v{X2}, s{T3s}, v{X2}')
    e(f'v_cmp_lt_u32 vcc, 31, v{V_LANE}'); e('s_nop 1')
    e(f'v_cndmask_b32 v{VFB}, v{VFB}, v{X2}, vcc')
    def build_fh(L):
        la = a.newlabel('FH'); lb = a.newlabel('FH')
        e(f's_lshl_b32 s{T2s}, s{S_G}, 9'); e(f's_add_u32 s{T2s}, s{T2s}, {hex(LF_OFF)}')
        e(f's_lshl_b32 s{T3s}, s{S_RB}, 5'); e(f's_add_u32 s{T3s}, s{T3s}, s{T2s}')
        e(f's_sub_u32 s{U1}, s{T3s}, 32'); e(f's_add_u32 s{U1}, s{U1}, 256'); e(f's_mov_b32 s{U3}, 128')
        e(f's_add_u32 s{U2}, s{T3s}, 32'); e(f's_mov_b32 s{U4}, 128')
        e(f's_lshl_b32 s{T4s}, s{S_G}, 8'); e(f's_add_u32 s{T4s}, s{T4s}, {hex(HF_OFF + L * 2048)}')
        e(f's_cmp_eq_u32 s{S_RB}, 0'); e(f's_cbranch_scc0 {la}')
        e(f's_mov_b32 s{U1}, s{T3s}')
        e(f's_cmp_eq_u32 s{S_G}, 0'); e(f's_cbranch_scc1 {la}')
        e(f's_mov_b32 s{U1}, s{T4s}'); e(f's_mov_b32 s{U3}, 0')
        a.label(la)
        e(f's_cmp_eq_u32 s{S_RB}, 3'); e(f's_cbranch_scc0 {lb}')
        e(f's_mov_b32 s{U2}, s{T3s}')
        e(f's_cmp_eq_u32 s{S_G}, 7'); e(f's_cbranch_scc1 {lb}')
        e(f's_add_u32 s{U2}, s{T4s}, 128'); e(f's_mov_b32 s{U4}, 0')
        a.label(lb)
        e(f'v_bfe_u32 v{X1}, v{V_LANE}, 3, 1'); e(f'v_and_b32 v{X2}, 7, v{V_LANE}'); e(f'v_lshlrev_b32 v{X2}, 2, v{X2}')
        for base_s, mul_s, sel in ((U1, U3, 2), (U2, U4, 3)):
            e(f'v_mul_u32_u24 v{X3}, s{mul_s}, v{X1}'); e(f'v_add_u32 v{X3}, v{X3}, v{X2}'); e(f'v_add_u32 v{X3}, s{base_s}, v{X3}')
            e(f'v_lshrrev_b32 v28, 4, v{V_LANE}'); e(f'v_cmp_eq_u32 vcc, {sel}, v28'); e('s_nop 1')
            e(f'v_cndmask_b32 v{VFH}, v{VFH if sel == 3 else VFS}, v{X3}, vcc')
    e('s_waitcnt lgkmcnt(0)')
    e(f's_mul_i32 s{S_B}, s{S_V}, 0x9e3779b1'); e(f's_add_u32 s{S_B}, s{S_B}, 0x7f4a7c15'); e(f's_and_b32 s{S_B}, s{S_B}, 0xffffff00')

    def poll(v, epoch):
        L_ = a.newlabel('AP'); D_ = a.newlabel('APD')
        e(f's_add_u32 s{THR}, s{S_B}, {8*epoch}'); e(f's_mov_b32 s{SPIN}, {opt.spin}')
        a.label(L_)
        e(f'buffer_load_dword v30, v{v}, {WS}, 0 offen sc1'); e('s_waitcnt vmcnt(0)')
        e(f'v_subrev_u32 v30, s{THR}, v30'); e('v_cmp_gt_u32 vcc, 0x80, v30')
        e(f's_sub_u32 s{SPIN}, s{SPIN}, 1'); e(f's_cbranch_scc1 {D_}')
        e('s_cmp_eq_u64 vcc, -1')
        if opt.poll_sleep:
            e(f's_cbranch_scc1 {D_}'); e(f's_sleep {opt.poll_sleep}'); e(f's_branch {L_}')
        else:
            e(f's_cbranch_scc0 {L_}')
        a.label(D_); a.vm = []
    def a_chunk(phase, c):
        for w in range(4):
            e(f's_mov_b32 m0, {hex(AREG + (c % 4) * 16384 + w * 4096)}')
            if phase == 'P7':
                last = None
                for k in range(4):
                    p_, i_ = divmod(4 * c + k, 7)
                    const = G_OFF + w * 57344 + (i_ - k) * 1024
                    if last != (p_, const):
                        e(f's_add_u32 s{T0s}, s{P7T+p_}, {hex(const & 0xffffffff)}'); last = (p_, const)
                    a.vmem(f'buffer_load_dwordx4 v{VAG}, {WS}, s{T0s} offen offset:{k*1024} sc1 lds', ('A', phase, c))
            else:
                if phase == 'P5':
                    va = VAH + 4 * c + w; e(f's_add_u32 s{T0s}, s{RA+c}, {hex(A0_OFF)}' if A0_OFF else f's_mov_b32 s{T0s}, s{RA+c}')
                elif phase == 'P3':
                    va = VAS; e(f's_add_u32 s{T0s}, s{RA+c}, s{U0}'); e(f's_add_u32 s{T0s}, s{T0s}, {hex(A0_OFF + w * 16384)}')
                else:
                    va = VAS; e(f's_add_u32 s{T0s}, s{RA+c}, {hex(A1_OFF + w * 16384)}')
                for k in range(4):
                    a.vmem(f'buffer_load_dwordx4 v{va}, {WS}, s{T0s} offen offset:{k*1024} sc1 lds', ('A', phase, c))
    e(f's_lshl_b32 s{U0}, s{S_G}, 1'); e(f's_add_u32 s{U0}, s{U0}, 1'); e(f's_lshl_b32 s{U0}, s{U0}, 14')

    dummy = [0]
    def wide(srd_s, soff_s):
        d = 64 + 4 * (dummy[0] % 40); dummy[0] += 1
        a.vmem(f'buffer_load_dwordx4 v[{d}:{d+3}], v{X0W}, {srd_s}, s{soff_s} offen {opt.touch_flags}', 'T')
    def mall_touch():
        for k in ['WO', 'W2', 'W4']:
            size = mats[k][1]; per = size // 256
            s = srds[k]
            e(f's_mul_i32 s{T0s}, s2, {per}')
            for i in range(per // 1024):
                if i: e(f's_add_u32 s{T0s}, s{T0s}, 1024')
                wide(f's[{s}:{s+3}]', T0s)
    def g_touch():
        e(f's_mul_i32 s{T0s}, s{S_G}, {16 * 57344}'); e(f's_mul_i32 s{T1s}, s{S_R}, 28672')
        e(f's_add_u32 s{T0s}, s{T0s}, s{T1s}'); e(f's_add_u32 s{T0s}, s{T0s}, {hex(G_OFF)}')
        for i in range(28):
            if i: e(f's_add_u32 s{T0s}, s{T0s}, 1024')
            wide(WS, T0s)
    def key(sx):
        k, p, c = sx.split(',')
        return (0, k, p, None if c == '-' else int(c))
    EPO = {'P3': 1, 'P4': 2, 'P5': 3, 'P7': 5}
    if opt.p7_self: del EPO['P7']
    nxt = 0
    for ev in events:
        L, kind, p, ci = ev
        if kind == 'B' and p in EPO:
            nch = NCH[p]
            if ci == 0:
                if p == 'P5': build_fh(L)
                poll({'P3': VFB, 'P4': VFS, 'P5': VFH, 'P7': VFB}[p], 1 + 6 * L + EPO[p])
                a_chunk(p, 0); a_chunk(p, 1); nxt = 2
            a.wait_vm(('A', p, ci))
            e('s_barrier')
            while nxt < nch and (nxt <= ci + 2 or nxt <= 3) and nxt <= ci + 2 + (1 if ci == 0 and False else 0):
                a_chunk(p, nxt); nxt += 1
        elif L == 0 and kind == 'B' and p == 'P1KV':
            a.wait_vm(('X', ci))
            e('s_barrier')
            if 1 <= ci <= 2: x_chunk(ci + 1)
            if ci == 3: x_tile()
        else:
            if ev == (0, 'E', 'P1KV', None): a.wait_vm('x')
            e('s_barrier')
        if opt.touch and opt.touch_at and ev == key(opt.touch_at): mall_touch()
        if opt.gtouch_at and ev == key(opt.gtouch_at) and not (opt.gtouch_parker and opt.park): g_touch()
    e('s_waitcnt vmcnt(0)')
    e('s_endpgm')


def gen_parker(a, opt, events, h):
    e = a.e
    a.c(f'--- parker {h}')
    plan = opt._plan
    W3S, W4S, CB6, CB7 = 40, 44, 64, 68
    QS = 48
    e(f's_mov_b32 s{QS}, s{S_PTR+2}'); e(f's_mov_b32 s{QS+1}, s{S_PTR+3}'); e(f's_mov_b32 s{QS+2}, {hex(512*1536*2)}'); e(f's_mov_b32 s{QS+3}, 0x20000')
    for s_, p_, size in ((W3S, S_PTR + 12, 512 * 1792 * 2), (W4S, S_PTR + 14, 1792 * 512 * 2)):
        e(f's_mov_b32 s{s_}, s{p_}'); e(f's_mov_b32 s{s_+1}, s{p_+1}'); e(f's_mov_b32 s{s_+2}, {hex(size)}'); e(f's_mov_b32 s{s_+3}, 0x20000')
    e(f'v_lshlrev_b32 v1, 4, v{V_LANE}')
    if WARM0[0]:
        e(f's_mul_i32 s33, s{S_R}, 49152')
        if h: e('s_add_u32 s33, s33, 24576')
        k_ = 0
        if h == 0:
            e(f's_lshl_b32 s34, s{S_G}, 18'); e(f's_lshl_b32 s35, s{S_R}, 13'); e('s_add_u32 s34, s34, s35')
            for i in range(8):
                a.vmem(f'buffer_load_dwordx4 v[{16+4*k_}:{19+4*k_}], v1, s[{S_X}:{S_X+3}], s34 offen', 'T'); k_ += 1
                e('s_add_u32 s34, s34, 1024')
        for i in range(24):
            a.vmem(f'buffer_load_dwordx4 v[{16+4*k_}:{19+4*k_}], v1, s[{QS}:{QS+3}], s33 offen', 'T'); k_ += 1
            e('s_add_u32 s33, s33, 1024')
    rm = 3 if opt.rot else 0
    for c in range(4):
        e(f's_lshl_b32 s{CB6+c}, s{S_RB2}, 1'); e(f's_and_b32 s{CB6+c}, s{CB6+c}, {rm}'); e(f's_xor_b32 s{CB6+c}, s{CB6+c}, {c}')
        e(f's_mul_i32 s{CB6+c}, s{CB6+c}, {128*3584}')
    for p_ in range(8):
        e(f's_and_b32 s{CB7+p_}, s{S_RB}, {rm}'); e(f's_lshl_b32 s{CB7+p_}, s{CB7+p_}, 1'); e(f's_xor_b32 s{CB7+p_}, s{CB7+p_}, {p_}')
        e(f's_mul_i32 s{CB7+p_}, s{CB7+p_}, {224*1024}')
    VN, VW, VL, X0, X1, X2 = 2, 4, 8, 11, 12, 13
    e(f'v_lshrrev_b32 v{X0}, 3, v{V_LANE}'); e(f'v_bfe_u32 v{X1}, v{X0}, 1, 1'); e(f'v_lshlrev_b32 v{X1}, 2, v{X1}')
    e(f'v_and_b32 v{X2}, 7, v{V_LANE}'); e(f'v_xor_b32 v{X2}, v{X2}, v{X1}')
    e(f'v_lshlrev_b32 v{VN}, 10, v{X0}'); e(f'v_lshl_add_u32 v{VN}, v{X2}, 4, v{VN}')
    e(f's_lshl_b32 s33, s{S_CB}, 7'); e(f'v_add_u32 v{VN}, s33, v{VN}'); e(f'v_add_u32 v{VN+1}, {hex(8192-1024)}, v{VN}')
    ps = [0, 1, 2, 3] if h == 0 else [4, 5, 6]
    M14 = (1 << 20) // 14 + 1
    e(f's_mul_i32 s33, s{S_CB2}, 224'); e(f's_mov_b32 s34, {hex(M14)}')
    for k, p_ in enumerate(ps):
        e(f'v_add_u32 v{X0}, {64*p_}, v{V_LANE}'); e(f'v_mul_lo_u32 v{X1}, v{X0}, s34'); e(f'v_lshrrev_b32 v{X1}, 20, v{X1}')
        e(f'v_mul_u32_u24 v{X2}, 14, v{X1}'); e(f'v_sub_u32 v{X2}, v{X0}, v{X2}')
        e(f'v_mul_u32_u24 v{VW+k}, 3584, v{X1}'); e(f'v_lshl_add_u32 v{VW+k}, v{X2}, 4, v{VW+k}'); e(f'v_add_u32 v{VW+k}, s33, v{VW+k}')
    e(f'v_lshlrev_b32 v{VL}, 4, v{V_LANE}'); e(f'v_add_u32 v{VL+1}, 0x10000, v{VL}'); e(f'v_add_u32 v{VL+2}, 0x20000, v{VL}')
    def wide(base_expr_emit, n):
        base_expr_emit()
        for i in range(n):
            if i: e('s_add_u32 s33, s33, 1024')
            a.vmem(f'buffer_load_dwordx4 v[{240+4*(i%4)}:{243+4*(i%4)}], v{VL}, {WS}, s33 offen', 'T')
    def touch_a0():
        wide(lambda: (e(f's_mul_i32 s33, s{S_G}, {18*16384}'), e(f's_mul_i32 s34, s{S_R}, 9216'), e('s_add_u32 s33, s33, s34'), e(f's_add_u32 s33, s33, {hex(A0_OFF)}') if A0_OFF else None), 9)
    def touch_lin(off, per_group):
        wide(lambda: (e(f's_mul_i32 s33, s{S_G}, {per_group}'), e(f's_mul_i32 s34, s{S_R}, {per_group // 32}'), e('s_add_u32 s33, s33, s34'), e(f's_add_u32 s33, s33, {hex(off)}')), per_group // 32 // 1024)
    if WARM0[0]:
        a.wait_vm_all()
        e('s_barrier')
        events = events[1:]
    def tkey(sx):
        k, p, c = sx.split(',')
        return (0, k, p, None if c == '-' else int(c))
    slots = list(range(56))
    held = {}
    pending = set()
    def do(actions):
        for act, s_ in actions:
            if act == 'park':
                if s_.kind == 'W3':
                    c_, rr_ = divmod(s_.srow, 128)
                    e(f's_add_u32 s33, s{CB6+c_}, {hex(rr_*3584)}')
                    regs = []
                    for k, p_ in enumerate(ps):
                        sl = slots.pop(0); regs.append((sl, p_))
                        a.vmem(f'buffer_load_dwordx4 v[{16+4*sl}:{19+4*sl}], v{VW+k}, s[{W3S}:{W3S+3}], s33 offen', id(s_))
                else:
                    srow = s_.srow if h == 0 else s_.srow2
                    p_, rr_ = divmod(srow, 224)
                    e(f's_add_u32 s33, s{CB7+p_}, {hex(rr_*1024)}')
                    regs = []
                    for k in range(2):
                        sl = slots.pop(0); regs.append((sl, 2 * h + k))
                        a.vmem(f'buffer_load_dwordx4 v[{16+4*sl}:{19+4*sl}], v{VN+k}, s[{W4S}:{W4S+3}], s33 offen offset:{k*1024}', id(s_))
                held[id(s_)] = regs
            else:
                a.wait_vm(id(s_))
                for sl, p_ in held.pop(id(s_)):
                    ad = s_.addr + p_ * 1024
                    e(f'ds_write_b128 v{VL + (ad >> 16)}, v[{16+4*sl}:{19+4*sl}] offset:{ad & 0xffff}')
                    slots.append(sl)
                pending.add((s_.layer, s_.phase, s_.chunk))
    for ev in events:
        L, kind, p, ci = ev
        if kind == 'B':
            do(plan.get(f'pre {L}.{p}.B{ci}', []))
            if (L, p, ci) in pending:
                e('s_waitcnt lgkmcnt(0)'); pending.clear()
            e('s_barrier')
            acts = plan.get(f'{L}.{p}.B{ci}', [])
        elif kind == 'E':
            e('s_barrier'); acts = plan.get(f'{L}.{p}.E', [])
        else:
            e('s_barrier'); acts = plan.get(f'{L}.{p}', [])
        do([x for x in acts if x[0] == 'unpark'])
        do([x for x in acts if x[0] == 'park'])
        if opt.pretouch and h == 1 and ev == tkey(opt.a2touch_at): touch_lin(A2_OFF, 262144)
        if opt.gtouch_parker and opt.gtouch_at and ev == tkey(opt.gtouch_at):
            wide(lambda: (e(f's_mul_i32 s33, s{S_G}, {16*57344}'), e(f's_mul_i32 s34, s{S_R}, 28672'), e('s_add_u32 s33, s33, s34'),
                          e(f's_add_u32 s33, s33, {hex(G_OFF + h * 14336)}')), 14)
        if opt.pretouch and ev == tkey(opt.a01touch_at):
            if h == 0:
                touch_a0(); touch_lin(ST_OFF, 32768)
            else:
                touch_lin(A1_OFF, 262144)
    e('s_waitcnt vmcnt(0) lgkmcnt(0)')
    e('s_endpgm')


def generate(opt):
    ATOMIC[0] = opt.kv_atomic
    WARM0[0] = 1 if (opt.warm0 and opt.park) else 0
    events = build_events(opt.stop)
    a = Asm(); a.opt = opt
    hdr = open(os.path.join(os.path.dirname(os.path.abspath(__file__)), 'header.txt')).read()
    out = [hdr.rstrip('\n')]
    out.append(f'; @launch grid=(256,1,1) block=({64*(8 if opt.park else 6)},1,1) lds={LDS_TOTAL}')
    out += ['.amdgcn_target "amdgcn-amd-amdhsa--gfx950"', '.text', f'.globl {KNAME}', '.p2align 8',
            f'.type {KNAME},@function', f'{KNAME}:']
    a.e('s_cmp_ge_u32 s2, 256')
    a.e('s_cbranch_scc1 L_EXIT')
    if opt.startdiag: a.e('s_memtime s[100:101]')
    if opt.dbgout >= 0 and opt.fine: a.e('s_memtime s[88:89]')
    if opt.wall:
        a.e('s_memrealtime s[18:19]') if False else None
    a.e(f's_load_dwordx16 s[{S_PTR}:{S_PTR+15}], s[0:1], 0')
    a.e(f's_load_dwordx4 s[{S_PTR+16}:{S_PTR+19}], s[0:1], 64')
    a.e(f's_load_dwordx2 s[{S_PTR+20}:{S_PTR+21}], s[0:1], 80')
    a.e('v_lshrrev_b32 v1, 6, v0')
    a.e('s_nop 0')
    if opt.prefetch_code:
        a.e('s_getpc_b64 s[34:35]')
        a.label('L_PC')
        a.e(f's_sub_u32 s34, s34, (L_PC - {KNAME})')
        a.e('s_subb_u32 s35, s35, 0')
        a.e('s_lshr_b32 s36, s2, 3')
        a.e('s_mul_i32 s36, s36, 2560')
        a.e('v_lshlrev_b32 v2, 7, v0')
        a.e('v_add_u32 v2, s36, v2')
        a.e(f's_mov_b32 s36, (L_CODE_END - {KNAME} - 4)')
        a.e('v_min_u32 v2, s36, v2')
        a.e('v_and_b32 v2, -4, v2')
        a.e('v_cmp_gt_u32 vcc, 20, v0')
        a.e('s_and_saveexec_b64 s[36:37], vcc')
        a.e('s_cbranch_execz L_NOPF')
        a.e('global_load_dword v255, v2, s[34:35]')
        a.label('L_NOPF')
        a.e('s_mov_b64 exec, s[36:37]')
    a.e(f'v_readfirstlane_b32 s{S_W}, v1')
    a.e(f'v_and_b32 v{V_LANE}, 63, v0')
    a.e(f's_getreg_b32 s{S_XCC}, hwreg(HW_REG_XCC_ID)')
    a.e(f's_and_b32 s{S_XCC}, s{S_XCC}, 7')
    a.e(f's_and_b32 s{S_G}, s2, 7')
    a.e(f's_lshr_b32 s{S_R}, s2, 3')
    a.e(f's_lshr_b32 s{S_RB}, s{S_R}, 3')
    a.e(f's_and_b32 s{S_CB}, s{S_R}, 7')
    a.e(f's_lshr_b32 s{S_RB2}, s{S_R}, 4')
    a.e(f's_and_b32 s{S_CB2}, s{S_R}, 15')
    a.e('s_waitcnt lgkmcnt(0)')
    if opt.ws_base:
        a.e(f's_add_u32 s{S_PTR+20}, s{S_PTR+20}, {hex(opt.ws_base)}')
        a.e(f's_addc_u32 s{S_PTR+21}, s{S_PTR+21}, 0')
    a.e(f's_add_u32 s34, s{S_PTR+20}, {hex(NONCE_OFF)}')
    a.e(f's_addc_u32 s35, s{S_PTR+21}, 0')
    a.e(f's_load_dword s{S_V}, s[34:35], 0')
    def srd(s, p, size):
        a.e(f's_mov_b32 s{s}, s{p}'); a.e(f's_mov_b32 s{s+1}, s{p+1}')
        a.e(f's_mov_b32 s{s+2}, {hex(size)}'); a.e(f's_mov_b32 s{s+3}, 0x20000')
    if opt.dbgout >= 0:
        a.e(f's_mov_b32 s86, s{S_PTR+18}'); a.e(f's_mov_b32 s87, s{S_PTR+19}')
    srd(S_WS, S_PTR + 20, WS_USED)
    srd(S_X, S_PTR + 0, 2048 * 512 * 2)
    srd(S_OUT, S_PTR + 16, 2048 * 512 * 2)
    a.e(f's_cmp_lt_u32 s{S_W}, 4')
    a.e('s_cbranch_scc1 L_COMPUTE')
    if opt.park:
        for wv in (6, 7):
            a.e(f's_cmp_eq_u32 s{S_W}, {wv}')
            a.e(f's_cbranch_scc0 L_NOTP{wv}')
            a.e('s_getpc_b64 s[34:35]')
            a.label(f'L_PCP{wv}')
            a.e(f's_add_u32 s34, s34, (L_PARKER{wv} - L_PCP{wv})')
            a.e('s_addc_u32 s35, s35, 0')
            a.e('s_setpc_b64 s[34:35]')
            a.label(f'L_NOTP{wv}')
    a.e(f's_cmp_eq_u32 s{S_W}, 5')
    a.e('s_cbranch_scc0 L_GOLOADER')
    a.e('s_getpc_b64 s[34:35]')
    a.label('L_PC3')
    a.e('s_add_u32 s34, s34, (L_TOUCHER - L_PC3)')
    a.e('s_addc_u32 s35, s35, 0')
    a.e('s_setpc_b64 s[34:35]')
    a.label('L_GOLOADER')
    a.e('s_getpc_b64 s[34:35]')
    a.label('L_PC2')
    a.e('s_add_u32 s34, s34, (L_LOADER - L_PC2)')
    a.e('s_addc_u32 s35, s35, 0')
    a.e('s_setpc_b64 s[34:35]')
    a.label('L_EXIT')
    a.e('s_endpgm')
    a.label('L_COMPUTE')
    a.vm = []
    if opt.stop is not None and opt.stop[0] == 0: cev = events
    else: cev = [e for e in build_events(None) if e[0] == 0]
    rest = gen_compute(a, opt, cev)
    assert not rest, rest
    a.label('L_LOADER')
    a.vm = []
    a.fstamp = lambda p: None
    gen_loader(a, opt, events)
    a.label('L_TOUCHER')
    a.vm = []
    gen_toucher(a, opt, events)
    if opt.park:
        for wv in (6, 7):
            a.label(f'L_PARKER{wv}')
            a.vm = []
            gen_parker(a, opt, events, wv - 6)
    a.label('L_CODE_END')
    out.append(a.text())
    out += ['.section .rodata,"a"', '.p2align 6', f'.amdhsa_kernel {KNAME}',
            '  .amdhsa_next_free_vgpr 256', '  .amdhsa_next_free_sgpr 102', '  .amdhsa_accum_offset 256',
            '  .amdhsa_group_segment_fixed_size 0', '  .amdhsa_kernarg_size 88', '  .amdhsa_user_sgpr_count 2',
            '  .amdhsa_user_sgpr_kernarg_segment_ptr 1', '  .amdhsa_system_sgpr_workgroup_id_x 1', '.end_amdhsa_kernel']
    return '\n'.join(out) + '\n'


if __name__ == '__main__':
    import argparse
    ap = argparse.ArgumentParser()
    ap.add_argument('-o', default='interleave_layers__linear_attn_block__mixer_s_mlp__prompt.s')
    ap.add_argument('--stop', default=None)
    ap.add_argument('--timing', action='store_true')
    ap.add_argument('--safe', action='store_true')
    ap.add_argument('--set', action='append', default=[])
    ap.add_argument('--fine', default=None)
    args = ap.parse_args()
    opt = Opt()
    if args.stop:
        l, p = args.stop.split(','); opt.stop = (int(l), p)
    opt.timing = args.timing; opt.force_safe = args.safe; opt.fine = args.fine
    opt.caps = dict(Opt.caps); opt.park_w3 = dict(Opt.park_w3); opt.park_caps = dict(Opt.park_caps)
    for kv in args.set:
        k, v = kv.split('=')
        if k.startswith('pk3:'): opt.park_w3[k[4:]] = int(v)
        elif k.startswith('pk4:'): opt.park_caps[k[4:]] = int(v)
        elif '.' in k or k in ('X1', 'X2'): opt.caps[k] = int(v)
        else:
            try: setattr(opt, k, int(v))
            except ValueError: setattr(opt, k, v.replace(':', ','))
    open(args.o, 'w').write(generate(opt))
    print('written', args.o)
    if os.environ.get('SCHED'):
        import itertools
        for k, g in itertools.groupby(opt._log, key=lambda x: x[0]):
            g = list(g); d = {}
            for x in g: d[(x[1], x[2], x[3])] = d.get((x[1], x[2], x[3]), 0) + 1
            print(k, ' '.join(f'{a_}.{b_}.c{c_}x{n_}' for (a_, b_, c_), n_ in d.items()), 'FORCED' if any(x[4] for x in g) else '')
```

```python
import sys, os, struct

KNAME = 'interleave_layers__linear_attn_block__mixer_s_mlp__prompt_kernel'

class Opt:
    stop = None
    timing = False
    fine = None
    force_safe = False
    window = 40
    window0 = 60
    caps = {'P1KV.E': 64, 'P1Q.B0': 16, 'P1Q.B1': 16, 'P1Q.E': 32,
            'P3.B0': 0, 'P3.B1': 32, 'P3.B2': 16, 'P3.B3': 16,
            'P4.B1': 32, 'P4.B2': 16, 'P4.B3': 16,
            'P5.B1': 35, 'P5.B2': 14, 'P5.B3': 21,
            'P6.B0': 35, 'P6.B1': 28, 'P6.B2': 28, 'P6.B3': 28, 'P6.E': 64,
            'P7.B*': 16, 'P7.E': 64}
    cap0 = 0
    touch = True
    dbg_w_same = 0
    w_nt = 0
    g_cold = 0
    touch_at = 'B,P1Q,0'
    rot = 1
    warm0 = 0
    cs_late = 1
    poll_sleep = 0
    dbgout = -1
    dbgwg = 100
    pretouch = 1
    a2touch_at = 'B,P6,3'
    a01touch_at = 'B,P1KV,2'
    gtouch_parker = 1
    park = 1
    park_w3 = {'P1KV.E': 2, 'X1': 2, 'P1Q.E': 8}
    park_caps = {'P6.B1': 0, 'P6.B2': 0, 'P6.B3': 0, 'P6.E': 0}
    unpark_max = 6
    kv_atomic = 1
    wall = 0
    p7_self = 1
    dbg_skip = ''
    ws_base = 0
    late_a = 0
    kvflag_at = 5
    up3 = 1
    startdiag = 0
    gtouch_at = 'B,P5,2'
    dbg_a_same = 0
    touch_flags = ''
    spin = 1 << 17
    prefetch_code = True
    D_kv = 4
    D_p6 = 4

MB = 1 << 20
A0_OFF = 0
A1_OFF = 0x280000
A2_OFF = 0x480000
G_OFF = 0x680000
ST_OFF = 0xD80000
KVP_OFF = 0xDC0000
KVP_L = 0x88000
KVA_OFF = 0xED0000
LSTRIDE = 0x780000
FL_OFF = 0xF00000
LF_OFF = FL_OFF
KVF_OFF = FL_OFF + 4096
HF_OFF = FL_OFF + 8192
XID_OFF = FL_OFF + 29696
NONCE_OFF = FL_OFF + 30720
TM_OFF = FL_OFF + 32768
CSP_OFF = FL_OFF + 32768 + 65536
CSF_OFF = CSP_OFF + 65536
WS_USED = CSF_OFF + 32768
KVREC = 2176

LDS_TOTAL = 163840
AREG = 0
SCR = 49152
CSL = None
WRING = 65536
RING = 93952
PHI = 53248
CSL = WRING + 28672
CSC = WRING + RING
assert CSC + 1088 <= LDS_TOTAL

EPS = 1e-5

def f2u(x):
    return struct.unpack('<I', struct.pack('<f', x))[0]

class Asm:
    def __init__(self):
        self.lines = []; self.nlabel = 0; self.vm = []
        self.fstamp = lambda p: None
    def e(self, s): self.lines.append('  ' + s)
    def c(self, s): self.lines.append('  ; ' + s)
    def label(self, name): self.lines.append(name + ':')
    def newlabel(self, base='L'):
        self.nlabel += 1
        return f'{base}_{self.nlabel}'
    def vmem(self, s, tag=None):
        self.e(s); self.vm.append(tag)
    def count_vm(self, tag):
        if tag not in self.vm: return None
        idx = max(i for i, t in enumerate(self.vm) if t == tag)
        n = len(self.vm) - 1 - idx
        assert n <= 63, n
        self.vm = self.vm[idx + 1:]
        return n
    def wait_vm(self, tag):
        n = self.count_vm(tag)
        if n is not None: self.e(f's_waitcnt vmcnt({n})')
    def wait_vm_all(self):
        self.e('s_waitcnt vmcnt(0)'); self.vm = []
    def text(self): return '\n'.join(self.lines)

def set_exec(a, lo, hi=None):
    a.e(f's_mov_b32 exec_lo, {hex(lo)}')
    a.e(f's_mov_b32 exec_hi, {hex(lo if hi is None else hi)}')

S_V = 3
S_WS = 4; S_X = 8; S_OUT = 12; S_PA = 16
S_G, S_R, S_W, S_RB, S_CB, S_RB2, S_CB2 = 20, 21, 22, 23, 24, 25, 26
S_MODE, S_L, S_LOFF, S_EP, S_B, S_XCC = 27, 28, 29, 30, 31, 32
S_T0, S_T1, S_T2, S_T3, S_T4, S_T5 = 33, 34, 35, 36, 37, 38
S_SPIN, S_THR = 39, 40
S_AOFF, S_AOFF2, S_ASTR = 41, 42, 43
S_C1, S_C2, S_ONE2 = 44, 46, 48
S_LOG2E, S_EPS6 = 50, 51
S_W4K = 52
S_RH, S_CH = 53, 54
S_U0, S_U1, S_U2, S_U3, S_U4 = 55, 56, 57, 58, 59
S_COLD = 62
S_GH = 63
S_RA = 86
S_RK = 90
S_P7 = 94
S_ROTK = 45
S_PTR = 64
S_WQKV, S_WO, S_W1, S_W2, S_W3, S_W4 = 40, 44, 48, 52, 56, 60
S_CSRD = 88

V_LANE = 0
V_AS, V_AB, V_AG, V_P1 = 1, 2, 3, 4
V_AH = 5
V_STS, V_STB, V_STST, V_XRM, V_TST = 9, 10, 11, 12, 13
V_FSB, V_FBS, V_FSS, V_FH, V_FOWN, V_FKV = 14, 15, 16, 17, 18, 19
V_T128, V_T64, V_T224, V_TN, V_TA = 20, 21, 22, 23, 24
V_T0, V_T1, V_T2 = 25, 26, 27
V_TB = 28
V_RES = 32
V_MEAN, V_RS = 48, 49
V_X = 50
V_PQ = 56
V_ACC = 64
V_A = 128

PHASES = ['P1KV', 'P1Q', 'P3', 'P4', 'P5', 'P6', 'P7']
NCH = {'P1KV': 4, 'P1Q': 2, 'P3': 4, 'P4': 4, 'P5': 4, 'P6': 4, 'P7': 14}

ATOMIC = [1]
WARM0 = [1]
NOE = ('P3', 'P4', 'P5')

class Slab:
    def __init__(self, layer, phase, chunk, kind, size, srow, npieces, srow2=None):
        self.layer, self.phase, self.chunk, self.kind = layer, phase, chunk, kind
        self.size, self.srow, self.npieces, self.srow2 = size, srow, npieces, srow2
        self.addr = None

def w4_tile_seq():
    seq = []
    for c in range(8):
        for i in [0, 1, 2, 3, 4, 5, 7, 8, 9, 10, 11, 12, 6, 13]:
            seq.append(14 * c + i)
    return seq

def build_slabs(layer):
    ph = {}
    def simple(phase, kind, nchunk, per, size, rows, np_):
        ph[phase] = [[Slab(layer, phase, c, kind, size, (c * per + j) * rows, np_) for j in range(per)] for c in range(nchunk)]
    simple('P1KV', 'KV', 4, 4, 4096, 32, 4)
    simple('P1Q', 'Q', 2, 4, 4096, 64, 4)
    simple('P3', 'WO', 4, 4, 4096, 32, 4)
    simple('P4', 'W1', 4, 4, 4096, 32, 4)
    simple('P5', 'W2', 4, 4, 4096, 32, 4)
    simple('P6', 'W3', 4, 4, 7168, 32, 7)
    seq = w4_tile_seq()
    ph['P7'] = [[Slab(layer, 'P7', c, 'W4', 4096, seq[2 * (c * 4 + j)] * 16, 4, srow2=seq[2 * (c * 4 + j) + 1] * 16)
                 for j in range(4)] for c in range(14)]
    pos = PHI
    for p in PHASES:
        for ch in ph[p]:
            for s in ch:
                if pos + s.size > RING: pos = 0
                s.addr = WRING + pos
                pos += s.size
    assert pos == PHI, pos
    return ph

def build_events(stop):
    ev = [(0, 'X', 'W0', None)] if WARM0[0] else []
    for L in range(2):
        for p in PHASES:
            for c in range(NCH[p]): ev.append((L, 'B', p, c))
            if p not in NOE: ev.append((L, 'E', p, None))
            if p == 'P1KV': ev.append((L, 'X', 'X1', None))
            if p == 'P1Q' and not ATOMIC[0]: ev.append((L, 'X', 'X2', None))
            if stop == (L, p): return ev
    return ev

WS = f's[{S_WS}:{S_WS+3}]'

def thr_value(a, dst, epoch, xcc=False):
    if isinstance(epoch, int):
        a.e(f's_add_u32 s{dst}, s{S_B}, {8*epoch}')
    else:
        a.e(f's_lshl_b32 s{dst}, {epoch}, 3')
        a.e(f's_add_u32 s{dst}, s{dst}, s{S_B}')
    if xcc: a.e(f's_add_u32 s{dst}, s{dst}, s{S_XCC}')

def emit_poll(a, vaddr, epoch, soff='0', opt=Opt, x4=False, tbase=None):
    L = a.newlabel('POLL'); D = a.newlabel('POLLD')
    thr_value(a, S_THR, epoch)
    a.e(f's_mov_b32 s{S_SPIN}, {opt.spin}')
    a.label(L)
    if x4:
        T = tbase
        a.e(f'buffer_load_dwordx4 v[{T}:{T+3}], v{vaddr}, {WS}, {soff} offen sc1')
        a.e('s_waitcnt vmcnt(0)')
        for i in range(4): a.e(f'v_subrev_u32 v{T+i}, s{S_THR}, v{T+i}')
        a.e(f'v_max_u32 v{T}, v{T}, v{T+1}')
        a.e(f'v_max_u32 v{T+2}, v{T+2}, v{T+3}')
        a.e(f'v_max_u32 v{V_T0}, v{T}, v{T+2}')
    else:
        a.e(f'buffer_load_dword v{V_T2}, v{vaddr}, {WS}, {soff} offen sc1')
        a.e('s_waitcnt vmcnt(0)')
        a.e(f'v_subrev_u32 v{V_T0}, s{S_THR}, v{V_T2}')
    a.vm = []
    a.e(f'v_cmp_gt_u32 vcc, 0x80, v{V_T0}')
    a.e(f's_sub_u32 s{S_SPIN}, s{S_SPIN}, 1')
    a.e(f's_cbranch_scc1 {D}')
    a.e('s_cmp_eq_u64 vcc, -1')
    if opt.poll_sleep:
        a.e(f's_cbranch_scc1 {D}')
        a.e(f's_sleep {opt.poll_sleep}')
        a.e(f's_branch {L}')
    else:
        a.e(f's_cbranch_scc0 {L}')
    a.label(D)

def emit_mode_stores(a, stores, cold=False):
    F = a.newlabel('STF'); D = a.newlabel('STD')
    if getattr(a, 'opt', None) is not None and a.opt.pretouch and a.opt.park: cold = False
    a.e(f's_cmp_eq_u32 s{S_COLD if cold else S_MODE}, 0')
    a.e(f's_cbranch_scc1 {F}')
    for s in stores: a.e(s + ' sc1')
    a.e(f's_branch {D}')
    a.label(F)
    for s in stores: a.e(s)
    a.label(D)
    for s in stores: a.vm.append('st')

def emit_signal(a, epoch):
    thr_value(a, S_THR, epoch, xcc=True)
    a.e(f'v_mov_b32 v{V_T0}, s{S_THR}')
    a.wait_vm_all()
    a.e('s_mov_b64 exec, 1')
    emit_mode_stores(a, [f'buffer_store_dword v{V_T0}, v{V_FOWN}, {WS}, 0 offen'])
    a.e('s_mov_b64 exec, -1')

def emit_xreduce(a, regs, tmp, over16=True):
    for r, t in zip(regs, tmp): a.e(f'v_mov_b32 v{t}, v{r}')
    a.e('s_nop 1')
    for r, t in zip(regs, tmp): a.e(f'v_permlane32_swap_b32 v{r}, v{t}')
    a.e('s_nop 0')
    for r, t in zip(regs, tmp): a.e(f'v_add_f32 v{r}, v{r}, v{t}')
    if over16:
        for r, t in zip(regs, tmp): a.e(f'v_mov_b32 v{t}, v{r}')
        a.e('s_nop 1')
        for r, t in zip(regs, tmp): a.e(f'v_permlane16_swap_b32 v{r}, v{t}')
        a.e('s_nop 0')
        for r, t in zip(regs, tmp): a.e(f'v_add_f32 v{r}, v{r}, v{t}')

def pk(op, d, x, y, z=None, mods=''):
    s = f'v_pk_{op}_f32 v[{d}:{d+1}], {x}, {y}'
    if z is not None: s += f', {z}'
    return s + mods
def vp(r): return f'v[{r}:{r+1}]'

def emit_stats_partial32(a, vals, t0, st_soff, cold=False):
    s, q = t0, t0 + 2
    a.e(pk('add', s, vp(vals), vp(vals + 2)))
    a.e(pk('mul', q, vp(vals), vp(vals)))
    a.e(pk('fma', q, vp(vals + 2), vp(vals + 2), vp(q)))
    for i in range(4, 16, 2):
        a.e(pk('add', s, vp(s), vp(vals + i)))
        a.e(pk('fma', q, vp(vals + i), vp(vals + i), vp(q)))
    a.e(f'v_add_f32 v{t0}, v{s}, v{s+1}')
    a.e(f'v_add_f32 v{t0+1}, v{q}, v{q+1}')
    emit_xreduce(a, [t0, t0 + 1], [t0 + 4, t0 + 5], over16=False)
    set_exec(a, 0xffffffff, 0)
    emit_mode_stores(a, [f'buffer_store_dwordx2 v[{t0}:{t0+1}], v{V_STST}, {WS}, {st_soff} offen'], cold=cold)
    a.e('s_mov_b64 exec, -1')

def emit_stats_from_sums(a, s, ss, out_a, out_b, tmp, double=False, keep=None):
    mean, var = s, ss
    a.e(f'v_mul_f32 v{mean}, {hex(f2u(1.0/512))}, v{s}')
    a.e(f'v_mul_f32 v{var}, {hex(f2u(1.0/512))}, v{ss}')
    a.e(f'v_fma_f32 v{var}, -v{mean}, v{mean}, v{var}')
    a.e(f'v_max_f32 v{var}, 0, v{var}')
    a.e(f'v_add_f32 v{tmp}, {hex(f2u(EPS))}, v{var}')
    a.e(f'v_rsq_f32 v{tmp}, v{tmp}')
    a.e('s_nop 0')
    if double:
        a.e(f'v_mul_f32 v{tmp+1}, v{tmp}, v{tmp}')
        a.e(f'v_mul_f32 v{tmp+1}, v{tmp+1}, v{var}')
        a.e(f'v_add_f32 v{tmp+1}, {hex(f2u(EPS))}, v{tmp+1}')
        a.e(f'v_rsq_f32 v{tmp+1}, v{tmp+1}')
        a.e('s_nop 0')
        a.e(f'v_mul_f32 v{out_a}, v{tmp}, v{tmp+1}')
    else:
        a.e(f'v_mov_b32 v{out_a}, v{tmp}')
    if keep:
        a.e(f'v_mov_b32 v{keep[0]}, v{mean}')
        a.e(f'v_mov_b32 v{keep[1]}, v{tmp}')
    a.e(f'v_mul_f32 v{out_b}, v{out_a}, v{mean}')
    a.e(f'v_sub_f32 v{out_b}, 0, v{out_b}')

def emit_sum_partials(a, raw, n):
    k = n
    step = 2
    regs = [raw + i for i in range(0, n, 2)]
    while len(regs) > 1:
        nxt = []
        for i in range(0, len(regs), 2):
            a.e(pk('add', regs[i], vp(regs[i]), vp(regs[i + 1])))
            nxt.append(regs[i])
        regs = nxt

def emit_lnfold(a, acc, cs, av, bv, n):
    for i in range(0, n, 2):
        a.e(pk('mul', acc + i, vp(acc + i), vp(av), mods=' op_sel_hi:[1,0]'))
    for i in range(0, n, 2):
        a.e(pk('fma', acc + i, vp(cs + i), vp(bv), vp(acc + i), mods=' op_sel_hi:[1,0,1]'))

def emit_gelu(a, x, n, tmp, c1reg):
    blk = 16
    a.e(f'v_mov_b32 v{c1reg}, s{S_C1}')
    for b0 in range(0, n, blk):
        m = min(blk, n - b0); t = tmp
        for i in range(0, m, 2): a.e(pk('mul', t + i, vp(x + b0 + i), vp(x + b0 + i)))
        for i in range(0, m, 2): a.e(pk('fma', t + i, vp(t + i), f's[{S_C2}:{S_C2+1}]', vp(c1reg), mods=' op_sel_hi:[1,1,0]'))
        for i in range(0, m, 2): a.e(pk('mul', t + i, vp(t + i), vp(x + b0 + i)))
        for i in range(m): a.e(f'v_exp_f32 v{t+i}, v{t+i}')
        for i in range(0, m, 2): a.e(pk('add', t + i, vp(t + i), f's[{S_ONE2}:{S_ONE2+1}]'))
        for i in range(m): a.e(f'v_rcp_f32 v{t+i}, v{t+i}')
        for i in range(0, m, 2): a.e(pk('mul', x + b0 + i, vp(x + b0 + i), vp(t + i)))

def emit_phi(a, regs, tmp):
    for i, r in enumerate(regs): a.e(f'v_min_f32 v{tmp+i}, 0, v{r}')
    for i, r in enumerate(regs): a.e(f'v_mul_f32 v{tmp+i}, s{S_LOG2E}, v{tmp+i}')
    for i, r in enumerate(regs): a.e(f'v_exp_f32 v{tmp+i}, v{tmp+i}')
    for i, r in enumerate(regs): a.e(f'v_max_f32 v{r}, 0, v{r}')
    for i, r in enumerate(regs): a.e(f'v_add_f32 v{r}, v{r}, v{tmp+i}')
    for i, r in enumerate(regs): a.e(f'v_add_f32 v{r}, s{S_EPS6}, v{r}')

def emit_pack(a, dst, src, n):
    for i in range(0, n, 2): a.e(f'v_cvt_pk_bf16_f32 v{dst+i//2}, v{src+i}, v{src+i+1}')

def emit_pack32(a, dst, src):
    for k, j in enumerate([0, 2, 1, 3]):
        a.e(f'v_cvt_pk_bf16_f32 v{dst+2*k}, v{src+4*j}, v{src+4*j+1}')
        a.e(f'v_cvt_pk_bf16_f32 v{dst+2*k+1}, v{src+4*j+2}, v{src+4*j+3}')

class TrBase:
    def __init__(self, a, lane_reg, nt):
        self.a, self.lane_reg, self.nt, self.cur = a, lane_reg, nt, None
    def off(self, addr, span):
        if self.cur is None or addr < self.cur or addr + span - self.cur > 65535:
            self.cur = addr
            for t in range(self.nt):
                if t == 0:
                    self.a.e(f'v_add_u32 v{V_TB}, {hex(addr)}, v{self.lane_reg}')
                else:
                    self.a.e(f'v_xor_b32 v{V_TB+t}, {t << 5}, v{self.lane_reg}')
                    self.a.e(f'v_add_u32 v{V_TB+t}, {hex(addr)}, v{V_TB+t}')
        return addr - self.cur

def emit_gemm16(a, bar, phase, chunks, CT, kind, acc_of, a_of, a_wait, a_issue, wr, S, normal=False, extra=None, a_lds=None):
    R, LA = 2, 4
    ks = []
    for ci, ch in enumerate(chunks):
        first = True
        for s in ch:
            ks.append((ci, s.addr, first)); first = False
            if kind == '64': ks.append((ci, s.addr + 2048, False))
    KS = len(ks)
    if kind == '128':
        trb = TrBase(a, V_T128, 4); second = 2048; span = 4096; tb = lambda t: V_TB + t; timm = lambda t: 0
    elif kind == '64':
        trb = TrBase(a, V_T64, 2); second = 1024; span = 2048; tb = lambda t: V_TB + t; timm = lambda t: 0
    else:
        trb = TrBase(a, V_T224, 1); second = 3584; span = 7168; tb = lambda t: V_TB; timm = lambda t: 32 * t
    total = KS * CT
    def slot(n): return wr + 4 * (n % S)
    def pre_issue(n):
        j, t = divmod(n, CT)
        ci, addr, first = ks[j]
        if t == 0 and first:
            a.fstamp(phase); bar(('B', phase, ci)); a.fstamp(phase)
        imm = trb.off(addr, span) if t == 0 else addr - trb.cur
        return imm + timm(t), t
    def rd(n, half, info):
        imm, t = info
        a.e(f'ds_read_b64_tr_b16 v[{slot(n)+2*half}:{slot(n)+2*half+1}], v{tb(t)} offset:{imm + (second if half else 0)}')
    def mfma(m, r):
        j, t = divmod(m, CT)
        d = acc_of(r, t); c = '0' if j == 0 else f'v[{d}:{d+3}]'
        w = f'v[{slot(m)}:{slot(m)+3}]'; x = f'v[{a_of(r,j)}:{a_of(r,j)+3}]'
        a.e(f'v_mfma_f32_16x16x32_bf16 v[{d}:{d+3}], ' + (f'{x}, {w}' if normal else f'{w}, {x}') + f', {c}')
    lq = []
    def need(tags):
        idx = max((i for i, g in enumerate(lq) if g in tags), default=None)
        if idx is None: return None
        n_ = len(lq) - 1 - idx
        del lq[:idx + 1]
        assert n_ <= 15
        return n_
    def pre2(n):
        info = pre_issue(n)
        j, t = divmod(n, CT)
        if a_lds and t == 0:
            for s_ in a_lds(j):
                a.e(s_); lq.append(('A', j))
        return info
    def rd2(n, half, info):
        rd(n, half, info); lq.append(('W', n))
    for n in range(min(LA, total)):
        info = pre2(n); rd2(n, 0, info); rd2(n, 1, info)
    for n in range(total):
        j, t = divmod(n, CT)
        lg = need({('W', n), ('A', j)})
        vmn = a_wait(j) if t == 0 else None
        if t == 0 and j in (0, 1): a.fstamp(phase)
        parts = ([f'vmcnt({vmn})'] if vmn is not None else []) + ([f'lgkmcnt({lg})'] if lg is not None else [])
        if parts: a.e('s_waitcnt ' + ' '.join(parts))
        nx = n + LA; info = None
        mfma(n, 0)
        if nx < total:
            info = pre2(nx); rd2(nx, 0, info)
        mfma(n, 1)
        if nx < total: rd2(nx, 1, info)
        a_issue(j, t)
        if extra and t == CT - 1: extra(j)
    a.fstamp(phase); bar(('E', phase, None)); a.fstamp(phase)
    a.e('s_nop 7')

def emit_gemm32(a, bar, phase, chunks, acc, wr, tail=None, a_pieces=None):
    LA, S = 4, 5
    nch = len(chunks)
    total = nch * 8
    trb = TrBase(a, V_TN, 1)
    def slot(n): return wr + 8 * (n % S)
    def reads(n):
        c, rem = divmod(n, 8); ksl, s = divmod(rem, 2)
        out = []
        if rem == 0:
            if a_pieces: a.wait_vm(('A', c))
            a.fstamp(phase); bar(('B', phase, c)); a.fstamp(phase)
        sl = chunks[c][ksl]
        imm = trb.off(sl.addr, 4096)
        out.append(f'ds_read_b128 v[{slot(n)}:{slot(n)+3}], v{V_TA} offset:{(c % 4) * 16384 + ksl * 1024 + s * 512}')
        out.append(f'ds_read_b64_tr_b16 v[{slot(n)+4}:{slot(n)+5}], v{V_TB} offset:{imm + s * 1024}')
        out.append(f'ds_read_b64_tr_b16 v[{slot(n)+6}:{slot(n)+7}], v{V_TB} offset:{imm + s * 1024 + 2048}')
        return out
    queue = []; nxt = 2; passed = 0
    if a_pieces:
        for c in (0, 1):
            for t in a_pieces(c): t()
    for n in range(LA):
        for s in reads(n): a.e(s)
    for n in range(total):
        lg = 3 * (min(n - 1 + LA, total - 1) - n)
        a.e(f's_waitcnt lgkmcnt({lg})')
        c = '0' if n == 0 else f'v[{acc}:{acc+15}]'
        a.e(f'v_mfma_f32_32x32x16_bf16 v[{acc}:{acc+15}], v[{slot(n)+4}:{slot(n)+7}], v[{slot(n)}:{slot(n)+3}], {c}')
        nx = n + LA
        if nx < total:
            if nx % 8 == 0: passed = nx // 8
            for s in reads(nx): a.e(s)
        if a_pieces:
            while nxt < nch and (nxt <= passed + 2 or nxt <= 3) and len(queue) < 4:
                queue += list(a_pieces(nxt)); nxt += 1
            if queue: queue.pop(0)()
        if tail and n == max(total - 24, 0): tail()
    a.fstamp(phase)
    if phase not in NOE:
        bar(('E', phase, None))
    a.fstamp(phase)
    a.e('s_nop 7'); a.e('s_nop 3')


def gen_compute(a, opt, events):
    evq = list(events)
    tm = [0]
    def tmreg(i):
        assert i < 22, i
        return 64 + i
    def dump(regs):
        sk = a.newlabel('TMS')
        a.e('s_waitcnt lgkmcnt(0)')
        a.e(f's_cmp_eq_u32 s{S_W}, 0')
        a.e(f's_cbranch_scc0 {sk}')
        if opt.dbgout >= 0 and opt.fine:
            a.e(f's_cmp_eq_u32 s2, {opt.dbgwg}')
            a.e(f's_cbranch_scc0 {sk}')
            for i, r in enumerate(regs):
                a.e(f's_sub_u32 s{S_T0}, s{r}, s85')
                a.e(f'v_mov_b32 v{V_T0}, s{S_T0}')
                a.e(f'v_mov_b32 v{V_T1}, {4*i}')
                a.e(f'global_store_dword v{V_T1}, v{V_T0}, s[86:87]')
        elif opt.dbgout >= 0 and opt.timing:
            a.e(f's_cmp_eq_u32 s2, {opt.dbgwg}')
            a.e(f's_cbranch_scc0 {sk}')
            a.e(f's_cmp_eq_u32 s{S_L}, {opt.dbgout}')
            a.e(f's_cbranch_scc0 {sk}')
            sel = [1, 2, 3, 4, 5, 6, 8, 9, 11, 12, 14, 15, 16, 17, 18, 20]
            for i, k in enumerate(sel):
                if k >= len(regs): continue
                a.e(f's_sub_u32 s{S_T0}, s{regs[k]}, s{regs[0]}')
                a.e(f'v_mov_b32 v{V_T0}, s{S_T0}')
                a.e(f'v_mov_b32 v{V_T1}, {4*i}')
                a.e(f'global_store_dword v{V_T1}, v{V_T0}, s[86:87]')
        else:
            a.e(f's_lshl_b32 s{S_T0}, s2, 8')
            a.e(f's_lshl_b32 s{S_T1}, s{S_L}, 7')
            if opt.timing: a.e(f's_add_u32 s{S_T0}, s{S_T0}, s{S_T1}')
            a.e(f's_add_u32 s{S_T0}, s{S_T0}, {hex(TM_OFF)}')
            for i, r in enumerate(regs):
                a.e(f'v_mov_b32 v{V_T0}, s{r}')
                a.e(f'v_mov_b32 v{V_T1}, {4*i}')
                a.e(f'buffer_store_dword v{V_T0}, v{V_T1}, {WS}, s{S_T0} offen')
        a.label(sk)
        a.e('s_waitcnt vmcnt(0)')
    fs = [0]
    def freg(i): return 64 + 2 * i
    cnt_ = [0]
    def fs_skip(i):
        cnt_[0] += 1
        return cnt_[0] in (2, 4, 5, 6, 8, 10)
    def fstamp(phase):
        if opt.fine == phase and fs[0] < 10 and not (opt.dbgout >= 0 and fs_skip(fs[0])):
            a.e(f's_memtime s[{freg(fs[0])}:{freg(fs[0])+1}]'); fs[0] += 1
    a.fstamp = fstamp
    def stamp():
        if opt.timing:
            a.e('s_memtime s[60:61]')
            a.e('s_waitcnt lgkmcnt(0)')
            a.e(f's_mov_b32 s{tmreg(tm[0])}, s60'); tm[0] += 1

    T0, T1, T2, TB = V_T0, V_T1, V_T2, V_TB
    if opt.wall:
        a.e('s_memrealtime s[60:61]'); a.e('s_waitcnt lgkmcnt(0)'); a.e('s_mov_b32 s84, s60')
        a.e('s_memtime s[60:61]'); a.e('s_waitcnt lgkmcnt(0)'); a.e('s_mov_b32 s85, s60')
    if opt.dbgout >= 0 and opt.fine: a.e('s_mov_b32 s85, s96')
    a.c('--- compute: early address setup')
    if opt.startdiag:
        a.e('s_memtime s[98:99]'); a.e('s_waitcnt lgkmcnt(0)'); a.e('s_sub_u32 s98, s98, s100'); a.e('s_mov_b32 s85, s98')
    stamp()
    a.e(f's_lshr_b32 s{S_RH}, s{S_W}, 1')
    a.e(f's_and_b32 s{S_CH}, s{S_W}, 1')
    a.e(f's_lshl_b32 s{S_W4K}, s{S_W}, 12')
    a.e(f's_lshl_b32 s{S_U0}, s{S_G}, 4')
    a.e(f's_lshl_b32 s{S_T1}, s{S_RB}, 2')
    a.e(f's_add_u32 s{S_U0}, s{S_U0}, s{S_T1}')
    a.e(f's_lshl_b32 s{S_T1}, s{S_RH}, 1')
    a.e(f's_add_u32 s{S_U2}, s{S_U0}, s{S_T1}')
    a.e(f's_add_u32 s{S_U0}, s{S_U0}, s{S_W}')
    a.e(f's_lshl_b32 s{S_U1}, s{S_G}, 4')
    a.e(f's_lshl_b32 s{S_T2}, s{S_RB2}, 3')
    a.e(f's_add_u32 s{S_U1}, s{S_U1}, s{S_T2}')
    a.e(f's_lshl_b32 s{S_T2}, s{S_W}, 1')
    a.e(f's_add_u32 s{S_U1}, s{S_U1}, s{S_T2}')
    a.e(f'v_and_b32 v{T0}, 15, v{V_LANE}')
    a.e(f'v_and_b32 v{T1}, 0x30, v{V_LANE}')
    a.e(f's_lshl_b32 s{S_ROTK}, s{S_RB2}, 1')
    a.e(f's_add_u32 s{S_ROTK}, s{S_ROTK}, s{S_CB2}')
    a.e(f's_and_b32 s{S_ROTK}, s{S_ROTK}, {3 if opt.rot else 0}')
    a.e(f'v_and_b32 v{T2}, 31, v{V_LANE}')
    a.e(f'v_lshrrev_b32 v{TB}, 5, v{V_LANE}')
    a.e(f'v_lshlrev_b32 v{V_XRM}, 10, v{T2}')
    a.e(f'v_lshl_add_u32 v{V_XRM}, v{TB}, 3, v{V_XRM}')
    a.e(f's_lshl_b32 s{S_T2}, s{S_U2}, 14')
    a.e(f's_lshl_b32 s{S_T3}, s{S_CB}, 7')
    a.e(f's_add_u32 s{S_T2}, s{S_T2}, s{S_T3}')
    a.e(f's_lshl_b32 s{S_T3}, s{S_CH}, 6')
    a.e(f's_add_u32 s{S_T2}, s{S_T2}, s{S_T3}')
    a.e(f'v_add_u32 v{V_XRM}, s{S_T2}, v{V_XRM}')
    PA = f's[{S_PA}:{S_PA+3}]'
    def p1_load(j):
        if j % 4 == 0:
            a.e(f's_mov_b32 s{S_AOFF}, s{S_RK + j // 4}')
            a.e(f's_add_u32 s{S_AOFF2}, s{S_AOFF}, 0x4000')
        for r in range(2):
            a.vmem(f'buffer_load_dwordx4 v[{V_A+(r*16+j)*4}:{V_A+(r*16+j)*4+3}], v{V_P1}, {PA}, s{S_AOFF if r == 0 else S_AOFF2} offen', ('A', j))
        if j % 4 != 3:
            a.e(f's_add_u32 s{S_AOFF}, s{S_AOFF}, s{S_ASTR}')
            a.e(f's_add_u32 s{S_AOFF2}, s{S_AOFF2}, s{S_ASTR}')
    a.e('s_waitcnt lgkmcnt(0)')
    a.e(f's_mul_i32 s{S_B}, s{S_V}, 0x9e3779b1')
    a.e(f's_add_u32 s{S_B}, s{S_B}, 0x7f4a7c15')
    a.e(f's_and_b32 s{S_B}, s{S_B}, 0xffffff00')
    a.c('--- compute: address setup')
    a.e(f'v_lshlrev_b32 v{V_X}, 4, v{V_LANE}')
    a.e(f's_lshl_b32 s{S_T2}, s{S_U1}, 14')
    a.e(f'v_add_u32 v{V_AB}, s{S_T2}, v{V_X}')
    a.e(f'v_lshlrev_b32 v{V_STS}, 4, v{T2}')
    a.e(f'v_lshl_add_u32 v{V_STS}, v{TB}, 11, v{V_STS}')
    a.e(f's_lshl_b32 s{S_T2}, s{S_U2}, 11')
    a.e(f'v_add_u32 v{V_STS}, s{S_T2}, v{V_STS}')
    a.e(f'v_lshlrev_b32 v{V_STST}, 4, v{T2}')
    a.e(f's_lshl_b32 s{S_T4}, s{S_CB}, 9')
    a.e(f's_add_u32 s{S_T2}, s{S_T2}, s{S_T4}')
    a.e(f's_lshl_b32 s{S_T4}, s{S_CH}, 3')
    a.e(f's_add_u32 s{S_T2}, s{S_T2}, s{S_T4}')
    a.e(f'v_add_u32 v{V_STST}, s{S_T2}, v{V_STST}')
    a.e(f's_lshl_b32 s{S_T3}, s{S_CB}, 1')
    a.e(f's_add_u32 s{S_T3}, s{S_T3}, s{S_CH}')
    a.e(f'v_lshlrev_b32 v{V_STB}, 4, v{T0}')
    a.e(f'v_lshl_add_u32 v{V_STB}, v{T1}, 6, v{V_STB}')
    a.e(f's_lshl_b32 s{S_T2}, s{S_U1}, 11')
    a.e(f'v_add_u32 v{V_STB}, s{S_T2}, v{V_STB}')
    a.e(f'v_lshrrev_b32 v{V_TST}, 4, v{T2}')
    a.e(f'v_lshlrev_b32 v{V_TST}, 14, v{V_TST}')
    a.e(f'v_lshl_add_u32 v{V_TST}, v{TB}, 8, v{V_TST}')
    a.e(f'v_lshl_add_u32 v{V_TST}, v{T0}, 4, v{V_TST}')
    a.e(f's_lshl_b32 s{S_T2}, s{S_U2}, 14')
    a.e(f's_lshl_b32 s{S_T4}, s{S_T3}, 10')
    a.e(f's_add_u32 s{S_T2}, s{S_T2}, s{S_T4}')
    a.e(f'v_add_u32 v{V_TST}, s{S_T2}, v{V_TST}')
    a.e(f's_lshl_b32 s{S_T2}, s{S_G}, 9')
    a.e(f's_add_u32 s{S_T2}, s{S_T2}, {hex(LF_OFF)}')
    a.e(f's_lshl_b32 s{S_T3}, s{S_W}, 7')
    a.e(f's_add_u32 s{S_T3}, s{S_T3}, s{S_T2}')
    a.e(f's_lshl_b32 s{S_T4}, s{S_R}, 2')
    a.e(f's_add_u32 s{S_T4}, s{S_T4}, s{S_T3}')
    a.e(f'v_mov_b32 v{V_FOWN}, s{S_T4}')
    a.e(f'v_and_b32 v{V_X+1}, 7, v{V_LANE}')
    a.e(f'v_lshlrev_b32 v{V_X+1}, 2, v{V_X+1}')
    a.e(f'v_bfe_u32 v{V_X+2}, v{V_LANE}, 3, 1')
    a.e(f'v_lshl_add_u32 v{V_X+1}, v{V_X+2}, 7, v{V_X+1}')
    a.e(f's_lshl_b32 s{S_T4}, s{S_RB2}, 1')
    a.e(f's_add_u32 s{S_T4}, s{S_T4}, s{S_RH}')
    a.e(f's_lshl_b32 s{S_T4}, s{S_T4}, 5')
    a.e(f's_lshl_b32 s{S_T5}, s{S_CH}, 8')
    a.e(f's_add_u32 s{S_T4}, s{S_T4}, s{S_T5}')
    a.e(f's_add_u32 s{S_T4}, s{S_T4}, s{S_T2}')
    a.e(f'v_add_u32 v{V_FSB}, s{S_T4}, v{V_X+1}')
    a.e(f's_lshl_b32 s{S_T4}, s{S_CB2}, 7')
    a.e(f's_add_u32 s{S_T4}, s{S_T4}, {hex(KVF_OFF)}')
    a.e(f'v_lshlrev_b32 v{V_FKV}, 2, v{T2}')
    a.e(f'v_add_u32 v{V_FKV}, s{S_T4}, v{V_FKV}')
    a.e(f'v_bfe_u32 v{V_X+1}, v{V_LANE}, 2, 2')
    a.e(f'v_lshrrev_b32 v{V_X+2}, 4, v{V_LANE}')
    a.e(f'v_lshl_add_u32 v{V_X+3}, v{V_X+2}, 2, v{V_X+1}')
    a.e(f'v_and_b32 v{V_X+4}, 3, v{V_LANE}')
    a.e(f'v_lshlrev_b32 v{V_X+4}, 3, v{V_X+4}')
    a.e(f'v_bfe_u32 v{V_X+5}, v{V_X+3}, 1, 2')
    a.e(f'v_lshl_add_u32 v{V_T128}, v{V_X+5}, 5, v{V_X+4}')
    a.e(f'v_lshl_add_u32 v{V_T128}, v{V_X+3}, 7, v{V_T128}')
    a.e(f'v_bfe_u32 v{V_X+5}, v{V_X+3}, 2, 1')
    a.e(f'v_lshl_add_u32 v{V_T64}, v{V_X+5}, 5, v{V_X+4}')
    a.e(f'v_lshl_add_u32 v{V_T64}, v{V_X+3}, 6, v{V_T64}')
    a.e(f'v_mul_u32_u24 v{V_T224}, 224, v{V_X+3}')
    a.e(f'v_add_u32 v{V_T224}, v{V_T224}, v{V_X+4}')
    a.e(f'v_lshrrev_b32 v{V_X+3}, 1, v{V_X+2}')
    a.e(f'v_lshl_add_u32 v{V_X+3}, v{V_X+3}, 2, v{V_X+1}')
    a.e(f'v_and_b32 v{V_X+5}, 1, v{V_X+2}')
    a.e(f's_lshl_b32 s{S_T4}, s{S_CH}, 1')
    a.e(f'v_add_u32 v{V_X+5}, s{S_T4}, v{V_X+5}')
    a.e(f'v_and_b32 v{V_X+1}, 2, v{V_X+1}')
    a.e(f'v_xor_b32 v{V_X+5}, v{V_X+5}, v{V_X+1}')
    a.e(f'v_lshl_add_u32 v{V_TN}, v{V_X+5}, 5, v{V_X+4}')
    a.e(f'v_lshl_add_u32 v{V_TN}, v{V_X+3}, 7, v{V_TN}')
    a.e(f'v_bfe_u32 v{V_TA}, v{V_LANE}, 4, 1')
    a.e(f's_lshl_b32 s{S_T4}, s{S_RH}, 1')
    a.e(f'v_add_u32 v{V_TA}, s{S_T4}, v{V_TA}')
    a.e(f'v_lshlrev_b32 v{V_TA}, 12, v{V_TA}')
    a.e(f'v_lshl_add_u32 v{V_TA}, v{TB}, 8, v{V_TA}')
    a.e(f'v_lshl_add_u32 v{V_TA}, v{T0}, 4, v{V_TA}')
    if AREG: a.e(f'v_add_u32 v{V_TA}, {hex(AREG)}, v{V_TA}')
    c1 = -2.0 * 0.7978845608028654 * 1.4426950408889634
    c2 = c1 * 0.044715
    for s, v in [(S_C1, c1), (S_C2, c2), (S_C2 + 1, c2), (S_ONE2, 1.0), (S_ONE2 + 1, 1.0),
                 (S_LOG2E, 1.4426950408889634), (S_EPS6, 1e-6)]:
        a.e(f's_mov_b32 s{s}, {hex(f2u(v))}')
    a.e(f's_mov_b32 s{S_L}, 0')
    a.e(f's_mov_b32 s{S_LOFF}, 0')
    a.e(f's_mov_b32 s{S_EP}, 1')
    a.e(f's_mov_b32 s{S_MODE}, 1')
    a.e(f's_mov_b32 s{S_COLD}, 1')
    a.e(f's_lshl_b32 s{S_GH}, s{S_G}, 1')
    a.e(f's_add_u32 s{S_GH}, s{S_GH}, 1')
    a.e(f's_lshl_b32 s{S_GH}, s{S_GH}, 14')

    if WARM0[0]:
        assert evq[0][2] == 'W0'; evq.pop(0)
        a.e('s_barrier')
    LOOP = 'LAYER_LOOP'
    a.label(LOOP)
    slabs = build_slabs(0)

    def run_layer():
        def bar(ev):
            exp = evq.pop(0)
            assert exp[1:] == ev or (exp[1] == 'X' and ev[0] == 'X' and exp[2] == ev[1]), (exp, ev)
            a.e('s_barrier')
        def soff(reg, base, extra=0, gh=False):
            if gh: a.e(f's_add_u32 s{reg}, s{S_GH}, {hex(base + extra)}')
            else: a.e(f's_mov_b32 s{reg}, {hex(base + extra)}')
        def done(p):
            if opt.stop == (1, p):
                a.e(f's_cmp_eq_u32 s{S_L}, 1')
                a.e('s_cbranch_scc1 L_END_COMPUTE')
            return opt.stop == (0, p)
        def ep(k):
            a.e(f's_add_u32 s{S_T5}, s{S_EP}, {k}')
            return f's{S_T5}'

        a.c('=== P1KV')
        WR1 = 96; D1 = 116; ONES = 124; D2 = V_PQ
        for i in range(4): a.e(f'v_mov_b32 v{ONES+i}, 0x3f803f80')
        l0 = a.newlabel('KVL0'); ljoin = a.newlabel('KVJ')
        a.e(f's_cmp_eq_u32 s{S_L}, 0')
        a.e(f's_cbranch_scc1 {l0}')
        saved_ev = list(evq)
        emit_poll(a, V_FSB, f's{S_EP}', opt=opt)
        for j in range(opt.D_kv): p1_load(j)
        stamp()
        a.fstamp('P1KV')
        def kv_issue(j, t):
            if t == 1:
                if j + opt.D_kv < 16:
                    p1_load(j + opt.D_kv)
                elif j + opt.D_kv == 16:
                    soff(S_T0, ST_OFF)
                    a.vmem(f'buffer_load_dwordx4 v[{D1}:{D1+3}], v{V_STB}, {WS}, s{S_T0} offen sc1', 'st')
                    a.vmem(f'buffer_load_dwordx4 v[{D1+4}:{D1+7}], v{V_STB}, {WS}, s{S_T0} offen offset:512 sc1', 'st')
                    a.vmem(f'buffer_load_dwordx4 v[{D2}:{D2+3}], v{V_STB}, {WS}, s{S_T0} offen offset:256 sc1', 'st')
                    a.vmem(f'buffer_load_dwordx4 v[{D2+4}:{D2+7}], v{V_STB}, {WS}, s{S_T0} offen offset:768 sc1', 'st')
        emit_gemm16(a, bar, 'P1KV', slabs['P1KV'], 4, '128',
                    acc_of=lambda r, t: V_ACC + (r * 4 + t) * 4, a_of=lambda r, j: V_A + (r * 16 + j) * 4,
                    a_wait=lambda j: a.count_vm(('A', j)), a_issue=kv_issue, wr=WR1, S=5, normal=True)
        a.e(f's_branch {ljoin}')
        a.label(l0)
        evq[:] = saved_ev
        a.vm = []
        fs[0] = 0
        cnt_[0] = 0
        a.fstamp('P1KV')
        tm[0] -= 1 if opt.timing else 0
        stamp()
        VLA = V_X
        a.e(f'v_and_b32 v{T0}, 15, v{V_LANE}')
        a.e(f'v_lshrrev_b32 v{T1}, 4, v{V_LANE}')
        a.e(f'v_xor_b32 v{T1}, v{T1}, v{T0}')
        a.e(f'v_lshlrev_b32 v{T1}, 4, v{T1}')
        a.e(f's_lshl_b32 s{S_T0}, s{S_W}, 5')
        a.e(f'v_add_u32 v{T0}, s{S_T0}, v{T0}')
        a.e(f'v_lshlrev_b32 v{T0}, 8, v{T0}')
        for j in range(4):
            a.e(f'v_xor_b32 v{VLA+j}, {64*j}, v{T1}')
            a.e(f'v_add_u32 v{VLA+j}, v{VLA+j}, v{T0}')
        def kv_lds(j):
            c = j // 4
            return [f'ds_read_b128 v[{V_A+(r*16+j)*4}:{V_A+(r*16+j)*4+3}], v{VLA + j % 4} offset:{AREG + (c & 1) * 32768 + r * 4096}' for r in range(2)]
        def kv_extra(j):
            for r in range(2):
                x = f'v[{V_A+(r*16+j)*4}:{V_A+(r*16+j)*4+3}]'
                c1_ = '0' if j == 0 else f'v[{D1+4*r}:{D1+4*r+3}]'
                c2_ = '0' if j == 0 else f'v[{D2+4*r}:{D2+4*r+3}]'
                a.e(f'v_mfma_f32_16x16x32_bf16 v[{D1+4*r}:{D1+4*r+3}], v[{ONES}:{ONES+3}], {x}, {c1_}')
                a.e(f'v_mfma_f32_16x16x32_bf16 v[{D2+4*r}:{D2+4*r+3}], {x}, {x}, {c2_}')
        emit_gemm16(a, bar, 'P1KV', slabs['P1KV'], 4, '128',
                    acc_of=lambda r, t: V_ACC + (r * 4 + t) * 4, a_of=lambda r, j: V_A + (r * 16 + j) * 4,
                    a_wait=lambda j: None, a_issue=lambda j, t: None, wr=WR1, S=5, normal=True, extra=kv_extra, a_lds=kv_lds)
        a.label(ljoin)
        stamp()
        a.wait_vm_all()
        SUM = [(V_X, V_X + 1), (V_X + 2, V_X + 3)]
        l1 = a.newlabel('S1'); le = a.newlabel('SE')
        a.e(f's_cmp_eq_u32 s{S_L}, 0')
        a.e(f's_cbranch_scc0 {l1}')
        a.e(f'v_and_b32 v{T0}, 31, v{V_LANE}')
        a.e(f'v_lshlrev_b32 v{T0}, 7, v{T0}')
        a.e(f'v_lshrrev_b32 v{T1}, 5, v{V_LANE}')
        a.e(f'v_lshl_add_u32 v{T0}, v{T1}, 3, v{T0}')
        a.e(f's_lshl_b32 s{S_T0}, s{S_RH}, 12')
        a.e(f's_lshl_b32 s{S_T1}, s{S_CH}, 6')
        a.e(f's_add_u32 s{S_T0}, s{S_T0}, s{S_T1}')
        if AREG: a.e(f's_add_u32 s{S_T0}, s{S_T0}, {hex(AREG)}')
        a.e(f'v_add_u32 v{T0}, s{S_T0}, v{T0}')
        for j in range(4):
            a.e(f'ds_read_b64 v[{V_RES+4*j}:{V_RES+4*j+1}], v{T0} offset:{16*j}')
        a.e('s_waitcnt lgkmcnt(0)')
        for j in range(4):
            b = V_RES + 4 * j
            a.e(f'v_and_b32 v{b+3}, 0xffff0000, v{b+1}')
            a.e(f'v_lshlrev_b32 v{b+2}, 16, v{b+1}')
            a.e(f'v_and_b32 v{b+1}, 0xffff0000, v{b}')
            a.e(f'v_lshlrev_b32 v{b}, 16, v{b}')
        a.e(f'v_and_b32 v{T0}, 3, v{V_LANE}')
        a.e(f'v_bfe_u32 v{T1}, v{V_LANE}, 2, 2')
        a.e(f'v_lshrrev_b32 v{T2}, 4, v{V_LANE}')
        for r in range(2):
            s_, ss_ = SUM[r]
            a.e(f'v_mov_b32 v{s_}, v{D1+4*r}')
            a.e(f'v_mov_b32 v{ss_}, v{D2+4*r}')
            for i in range(1, 4):
                a.e(f'v_cmp_eq_u32 vcc, {i}, v{T0}')
                a.e('s_nop 1')
                a.e(f'v_cndmask_b32 v{ss_}, v{ss_}, v{D2+4*r+i}, vcc')
            a.e(f'v_cmp_eq_u32 vcc, v{T1}, v{T2}')
            a.e('s_nop 1')
            a.e(f'v_cndmask_b32 v{ss_}, 0, v{ss_}, vcc')
        emit_xreduce(a, [SUM[0][1], SUM[1][1]], [T0, T1])
        a.e(f's_branch {le}')
        a.label(l1)
        for r, raw in enumerate([D1, D2]):
            emit_sum_partials(a, raw, 8)
            a.e(f'v_mov_b32 v{SUM[r][0]}, v{raw}')
            a.e(f'v_mov_b32 v{SUM[r][1]}, v{raw+1}')
        emit_xreduce(a, [SUM[0][0], SUM[0][1], SUM[1][0], SUM[1][1]], [WR1, WR1 + 1, WR1 + 2, WR1 + 3])
        a.label(le)
        CSR = 120
        a.e(f'v_and_b32 v{T0}, 15, v{V_LANE}')
        a.e(f'v_lshlrev_b32 v{T0}, 2, v{T0}')
        a.e(f'v_add_u32 v{T0}, {hex(CSC)}, v{T0}')
        a.e(f'v_and_b32 v{T1}, 0x30, v{V_LANE}')
        for t in range(4):
            a.e(f'ds_read_b32 v{CSR+t}, v{T0} offset:{64*t}')
        KEEP = [(V_PQ + 0, V_PQ + 2), (V_PQ + 4, V_PQ + 6)]
        for r in range(2):
            emit_stats_from_sums(a, SUM[r][0], SUM[r][1], KEEP[r][0], KEEP[r][1], WR1)
        AI = [WR1, WR1 + 8]; BI = [WR1 + 4, WR1 + 12]
        for r in range(2):
            for i in range(4):
                a.e(f'ds_bpermute_b32 v{AI[r]+i}, v{T1}, v{KEEP[r][0]} offset:{4*i}')
                a.e(f'ds_bpermute_b32 v{BI[r]+i}, v{T1}, v{KEEP[r][1]} offset:{4*i}')
        a.e('s_waitcnt vmcnt(0) lgkmcnt(0)'); a.vm = []
        CSE = WR1 + 16
        for t in range(4): a.e(f'v_mov_b32 v{CSE+2*t}, v{CSR+t}')
        for r in range(2):
            for t in range(4):
                for i in (0, 2):
                    d = V_ACC + (r * 4 + t) * 4 + i
                    a.e(pk('mul', d, vp(d), vp(AI[r] + i)))
            for t in range(4):
                for i in (0, 2):
                    d = V_ACC + (r * 4 + t) * 4 + i
                    a.e(pk('fma', d, vp(BI[r] + i), vp(CSE + 2 * t), vp(d), mods=' op_sel_hi:[1,0,1]'))
        regs = [V_ACC + (r * 4 + t) * 4 + i for r in range(2) for t in range(2) for i in range(4)]
        emit_phi(a, regs, WR1)
        for t in range(4):
            b0 = V_ACC + t * 4; b1 = V_ACC + (4 + t) * 4
            a.e(f'v_cvt_pk_bf16_f32 v{b0}, v{b0}, v{b0+1}')
            a.e(f'v_cvt_pk_bf16_f32 v{b0+1}, v{b0+2}, v{b0+3}')
            a.e(f'v_cvt_pk_bf16_f32 v{b0+2}, v{b1}, v{b1+1}')
            a.e(f'v_cvt_pk_bf16_f32 v{b0+3}, v{b1+2}, v{b1+3}')
        a.e('s_nop 1')
        KVD = V_ACC + 16
        for h in range(2):
            a.e(f'v_mfma_f32_16x16x32_bf16 v[{KVD+4*h}:{KVD+4*h+3}], v[{V_ACC+4*h}:{V_ACC+4*h+3}], v[{V_ACC+8+4*h}:{V_ACC+8+4*h+3}], 0')
            a.e(f'v_mfma_f32_16x16x32_bf16 v[{KVD+8+4*h}:{KVD+8+4*h+3}], v[{V_ACC+4*h}:{V_ACC+4*h+3}], v[{ONES}:{ONES+3}], 0')
        a.e(f's_lshl_b32 s{S_T0}, s{S_W}, 11')
        a.e(f's_add_u32 s{S_T0}, s{S_T0}, {hex(SCR)}')
        a.e(f'v_lshlrev_b32 v{T0}, 4, v{V_LANE}')
        a.e(f'v_add_u32 v{T0}, s{S_T0}, v{T0}')
        a.e(f's_lshl_b32 s{S_T0}, s{S_W}, 7')
        a.e(f's_add_u32 s{S_T0}, s{S_T0}, {hex(SCR + 8192)}')
        a.e(f'v_add_u32 v{T2}, s{S_T0}, v{T1}')
        a.e('s_nop 4')
        a.e(f'ds_write_b128 v{T0}, v[{KVD}:{KVD+3}]')
        a.e(f'ds_write_b128 v{T0}, v[{KVD+4}:{KVD+7}] offset:1024')
        set_exec(a, 0x00010001)
        a.e(f'ds_write_b128 v{T2}, v[{KVD+8}:{KVD+11}]')
        a.e(f'ds_write_b128 v{T2}, v[{KVD+12}:{KVD+15}] offset:64')
        a.e('s_mov_b64 exec, -1')
        a.e('s_waitcnt lgkmcnt(0)')
        bar(('X', 'X1'))
        sk = a.newlabel('KVST')
        a.e(f's_cmp_lt_u32 s{S_W}, 2')
        a.e(f's_cbranch_scc0 {sk}')
        if opt.kv_atomic:
            a.e(f's_lshl_b32 s{S_T0}, s{S_W}, 10')
            a.e(f's_add_u32 s{S_T0}, s{S_T0}, {hex(SCR)}')
            a.e(f'v_lshlrev_b32 v{T0}, 2, v{V_LANE}')
            a.e(f'v_add_u32 v{T2}, s{S_T0}, v{T0}')
            a.e(f's_lshl_b32 s{S_T0}, s{S_W}, 6')
            a.e(f's_add_u32 s{S_T0}, s{S_T0}, {hex(SCR + 8192)}')
            a.e(f'v_add_u32 v{V_X}, s{S_T0}, v{T0}')
            KB = V_ACC
            for ww in range(4):
                for i in range(4):
                    a.e(f'ds_read_b32 v{KB+4*ww+i}, v{T2} offset:{ww*2048+256*i}')
                if ww == 2: a.e('s_waitcnt lgkmcnt(4)')
            for ww in range(4):
                a.e(f'ds_read_b32 v{KB+16+ww}, v{V_X} offset:{ww*128}')
            a.e(f's_mul_i32 s{S_T0}, s{S_CB2}, {KVREC}')
            a.e(f's_mul_i32 s{S_T1}, s{S_L}, {16*KVREC}')
            a.e(f's_add_u32 s{S_T0}, s{S_T0}, s{S_T1}')
            a.e(f's_add_u32 s{S_T0}, s{S_T0}, {hex(KVA_OFF)}')
            a.e(f's_lshl_b32 s{S_T1}, s{S_W}, 10')
            a.e(f's_add_u32 s{S_T1}, s{S_T1}, s{S_T0}')
            a.e(f's_lshl_b32 s{S_T2}, s{S_W}, 6')
            a.e(f's_add_u32 s{S_T2}, s{S_T2}, s{S_T0}')
            a.e(f's_add_u32 s{S_T2}, s{S_T2}, 2048')
            a.e('s_waitcnt lgkmcnt(0)')
            for i in (0, 2):
                a.e(pk('add', KB + i, vp(KB + i), vp(KB + 4 + i)))
                a.e(pk('add', KB + 8 + i, vp(KB + 8 + i), vp(KB + 12 + i)))
                a.e(pk('add', KB + i, vp(KB + i), vp(KB + 8 + i)))
            a.e(pk('add', KB + 16, vp(KB + 16), vp(KB + 18)))
            a.e(f'v_add_f32 v{KB+16}, v{KB+16}, v{KB+17}')
            for i in range(4):
                a.e(f'buffer_atomic_add_f32 v{KB+i}, v{T0}, {WS}, s{S_T1} offen offset:{256*i}')
            a.e('s_mov_b64 exec, 0xffff')
            a.e(f'buffer_atomic_add_f32 v{KB+16}, v{T0}, {WS}, s{S_T2} offen')
            a.e('s_mov_b64 exec, -1')
        else:
            a.e(f's_lshl_b32 s{S_T0}, s{S_W}, 10')
            a.e(f's_add_u32 s{S_T0}, s{S_T0}, {hex(SCR)}')
            a.e(f'v_lshlrev_b32 v{T0}, 4, v{V_LANE}')
            a.e(f'v_add_u32 v{T2}, s{S_T0}, v{T0}')
            a.e(f's_lshl_b32 s{S_T0}, s{S_W}, 6')
            a.e(f's_add_u32 s{S_T0}, s{S_T0}, {hex(SCR + 8192)}')
            a.e(f'v_add_u32 v{V_X}, s{S_T0}, v{T1}')
            KB = V_ACC
            for ww in range(4):
                a.e(f'ds_read_b128 v[{KB+4*ww}:{KB+4*ww+3}], v{T2} offset:{ww*2048}')
                a.e(f'ds_read_b128 v[{KB+16+4*ww}:{KB+16+4*ww+3}], v{V_X} offset:{ww*128}')
            a.e(f's_lshl_b32 s{S_T0}, s{S_CB2}, 4')
            a.e(f's_lshl_b32 s{S_T1}, s{S_G}, 1')
            a.e(f's_add_u32 s{S_T0}, s{S_T0}, s{S_T1}')
            a.e(f's_add_u32 s{S_T0}, s{S_T0}, s{S_RB2}')
            a.e(f's_mul_i32 s{S_T0}, s{S_T0}, {KVREC}')
            a.e(f's_add_u32 s{S_T0}, s{S_T0}, s{S_LOFF}')
            a.e(f's_add_u32 s{S_T0}, s{S_T0}, {hex(KVP_OFF)}')
            a.e(f's_lshl_b32 s{S_T1}, s{S_W}, 10')
            a.e(f's_add_u32 s{S_T1}, s{S_T1}, s{S_T0}')
            a.e(f's_lshl_b32 s{S_T2}, s{S_W}, 6')
            a.e(f's_add_u32 s{S_T2}, s{S_T2}, s{S_T0}')
            a.e(f's_add_u32 s{S_T2}, s{S_T2}, 2048')
            a.e('s_waitcnt lgkmcnt(0)')
            for base in (KB, KB + 16):
                for i in range(0, 4, 2):
                    a.e(pk('add', base + i, vp(base + i), vp(base + 4 + i)))
                    a.e(pk('add', base + 8 + i, vp(base + 8 + i), vp(base + 12 + i)))
                    a.e(pk('add', base + i, vp(base + i), vp(base + 8 + i)))
            a.e(f'buffer_store_dwordx4 v[{KB}:{KB+3}], v{T0}, {WS}, s{S_T1} offen sc1')
            set_exec(a, 0x00010001)
            a.e(f'buffer_store_dwordx4 v[{KB+16}:{KB+19}], v{T1}, {WS}, s{S_T2} offen sc1')
            a.e('s_mov_b64 exec, -1')
        a.e(f's_lshl_b32 s{S_T0}, s{S_L}, 11')
        a.e(f's_lshl_b32 s{S_T1}, s{S_CB2}, 7')
        a.e(f's_add_u32 s{S_T0}, s{S_T0}, s{S_T1}')
        a.e(f's_lshl_b32 s{S_T1}, s{S_W}, 6')
        a.e(f's_add_u32 s{S_T0}, s{S_T0}, s{S_T1}')
        a.e(f's_lshl_b32 s{S_T1}, s{S_G}, 3')
        a.e(f's_add_u32 s{S_T0}, s{S_T0}, s{S_T1}')
        a.e(f's_lshl_b32 s{S_T1}, s{S_RB2}, 2')
        a.e(f's_add_u32 s{S_T0}, s{S_T0}, s{S_T1}')
        a.e(f's_add_u32 s{S_T0}, s{S_T0}, {hex(KVF_OFF)}')
        a.e(f'v_mov_b32 v{V_X+4}, s{S_T0}')
        a.label(sk)
        a.vm = []
        stamp()
        if done('P1KV'): return True

        a.c('=== P1Q')
        QCS = V_ACC + 16
        a.e(f'v_and_b32 v{T1}, 0x30, v{V_LANE}')
        a.e(f'v_add_u32 v{T1}, {hex(CSC + 256)}, v{T1}')
        a.e(f'ds_read_b128 v[{QCS}:{QCS+3}], v{T1}')
        a.e(f'ds_read_b128 v[{QCS+4}:{QCS+7}], v{T1} offset:64')
        a.e('s_waitcnt lgkmcnt(0)')
        QAB = [(V_ACC + 24, V_ACC + 26), (V_ACC + 28, V_ACC + 30)]
        for r in range(2):
            a.e(f'v_mov_b32 v{QAB[r][0]}, v{KEEP[r][0]}')
            a.e(f'v_mov_b32 v{QAB[r][1]}, v{KEEP[r][1]}')
        def q_issue(j, t):
            if j == opt.kvflag_at and t == 1:
                fk = a.newlabel('KVFL')
                a.e(f's_cmp_lt_u32 s{S_W}, 2')
                a.e(f's_cbranch_scc0 {fk}')
                thr_value(a, S_THR, 1, xcc=True)
                a.e(f'v_mov_b32 v{V_X+5}, s{S_THR}')
                a.e('s_waitcnt vmcnt(0)')
                a.e('s_mov_b64 exec, 1')
                a.e(f'buffer_store_dword v{V_X+5}, v{V_X+4}, {WS}, 0 offen sc1')
                a.e('s_mov_b64 exec, -1')
                a.label(fk)
        emit_gemm16(a, bar, 'P1Q', slabs['P1Q'], 2, '64',
                    acc_of=lambda r, t: V_ACC + (r * 2 + t) * 4, a_of=lambda r, j: V_A + (r * 16 + j) * 4,
                    a_wait=lambda j: None, a_issue=q_issue, wr=96, S=8)
        for r in range(2):
            for t in range(2):
                emit_lnfold(a, V_ACC + (r * 2 + t) * 4, QCS + 4 * t, QAB[r][0], QAB[r][1], 4)
        emit_phi(a, [V_ACC + i for i in range(16)], 96)
        for r in range(2):
            for h in range(2):
                emit_pack(a, V_PQ + (r * 2 + h) * 2, V_ACC + (r * 2 + h) * 4, 4)
        stamp()
        sk = a.newlabel('MODE')
        a.e(f's_cmp_eq_u32 s{S_L}, 0')
        a.e(f's_cbranch_scc0 {sk}')
        a.e(f'v_and_b32 v{T1}, 31, v{V_LANE}')
        a.e(f'v_lshlrev_b32 v{T1}, 2, v{T1}')
        a.e(f's_lshl_b32 s{S_T0}, s{S_G}, 7')
        a.e(f's_add_u32 s{S_T0}, s{S_T0}, {hex(XID_OFF)}')
        emit_poll(a, T1, 0, soff=f's{S_T0}', opt=opt)
        a.e(f'v_and_b32 v{T2}, 7, v{T2}')
        a.e(f'v_cmp_eq_u32 vcc, s{S_XCC}, v{T2}')
        a.e('s_nop 1')
        a.e('s_cmp_eq_u64 vcc, -1')
        a.e(f's_cselect_b32 s{S_MODE}, 0, 1')
        if opt.force_safe: a.e(f's_mov_b32 s{S_MODE}, 1')
        a.label(sk)
        a.e(f's_lshl_b32 s{S_T0}, s{S_L}, 11')
        emit_poll(a, V_FKV, 1, soff=f's{S_T0}', opt=opt)
        stamp()
        RB = V_A + 64
        if opt.kv_atomic:
            a.e(f's_mul_i32 s{S_T0}, s{S_CB2}, {KVREC}')
            a.e(f's_mul_i32 s{S_T1}, s{S_L}, {16*KVREC}')
            a.e(f's_add_u32 s{S_T0}, s{S_T0}, s{S_T1}')
            a.e(f's_add_u32 s{S_T0}, s{S_T0}, {hex(KVA_OFF)}')
            a.e(f'v_lshlrev_b32 v{T0}, 4, v{V_LANE}')
            a.e(f'v_and_b32 v{T1}, 0x30, v{V_LANE}')
            a.vmem(f'buffer_load_dwordx4 v[{RB}:{RB+3}], v{T0}, {WS}, s{S_T0} offen sc1', 'kp')
            a.vmem(f'buffer_load_dwordx4 v[{RB+4}:{RB+7}], v{T0}, {WS}, s{S_T0} offen offset:1024 sc1', 'kp')
            a.vmem(f'buffer_load_dwordx4 v[{RB+8}:{RB+11}], v{T1}, {WS}, s{S_T0} offen offset:2048 sc1', 'kp')
            a.vmem(f'buffer_load_dwordx4 v[{RB+12}:{RB+15}], v{T1}, {WS}, s{S_T0} offen offset:2112 sc1', 'kp')
            a.wait_vm_all()
        else:
            a.e(f's_lshl_b32 s{S_T0}, s{S_CB2}, 4')
            a.e(f's_lshl_b32 s{S_T1}, s{S_W}, 2')
            a.e(f's_add_u32 s{S_T0}, s{S_T0}, s{S_T1}')
            a.e(f's_mul_i32 s{S_T0}, s{S_T0}, {KVREC}')
            a.e(f's_add_u32 s{S_T0}, s{S_T0}, s{S_LOFF}')
            a.e(f's_add_u32 s{S_T0}, s{S_T0}, {hex(KVP_OFF)}')
            a.e(f'v_lshlrev_b32 v{T0}, 4, v{V_LANE}')
            a.e(f'v_and_b32 v{T1}, 0x30, v{V_LANE}')
            PB = V_A
            for s4 in range(4):
                b = PB + 16 * s4
                a.vmem(f'buffer_load_dwordx4 v[{b}:{b+3}], v{T0}, {WS}, s{S_T0} offen sc1', 'kp')
                a.vmem(f'buffer_load_dwordx4 v[{b+4}:{b+7}], v{T0}, {WS}, s{S_T0} offen offset:1024 sc1', 'kp')
                a.vmem(f'buffer_load_dwordx4 v[{b+8}:{b+11}], v{T1}, {WS}, s{S_T0} offen offset:2048 sc1', 'kp')
                a.vmem(f'buffer_load_dwordx4 v[{b+12}:{b+15}], v{T1}, {WS}, s{S_T0} offen offset:2112 sc1', 'kp')
                if s4 < 3: a.e(f's_add_u32 s{S_T0}, s{S_T0}, {KVREC}')
            a.e(f's_lshl_b32 s{S_T0}, s{S_W}, 11')
            a.e(f's_add_u32 s{S_T0}, s{S_T0}, {hex(SCR)}')
            a.e(f'v_add_u32 v{T0}, s{S_T0}, v{T0}')
            a.e(f's_lshl_b32 s{S_T0}, s{S_W}, 7')
            a.e(f's_add_u32 s{S_T0}, s{S_T0}, {hex(SCR + 8192)}')
            a.e(f'v_add_u32 v{T2}, s{S_T0}, v{T1}')
            a.wait_vm_all()
            for i in range(0, 16, 2):
                a.e(pk('add', PB + i, vp(PB + i), vp(PB + 16 + i)))
                a.e(pk('add', PB + 32 + i, vp(PB + 32 + i), vp(PB + 48 + i)))
            for i in range(0, 16, 2):
                a.e(pk('add', PB + i, vp(PB + i), vp(PB + 32 + i)))
            a.e(f'ds_write_b128 v{T0}, v[{PB}:{PB+3}]')
            a.e(f'ds_write_b128 v{T0}, v[{PB+4}:{PB+7}] offset:1024')
            set_exec(a, 0x00010001)
            a.e(f'ds_write_b128 v{T2}, v[{PB+8}:{PB+11}]')
            a.e(f'ds_write_b128 v{T2}, v[{PB+12}:{PB+15}] offset:64')
            a.e('s_mov_b64 exec, -1')
            a.e(f'v_lshlrev_b32 v{T0}, 4, v{V_LANE}')
            a.e(f'v_add_u32 v{T0}, {hex(SCR)}, v{T0}')
            a.e(f'v_add_u32 v{T2}, {hex(SCR + 8192)}, v{T1}')
            a.e('s_waitcnt lgkmcnt(0)')
            bar(('X', 'X2'))
            for ww in range(4):
                b = RB + 16 * ww
                a.e(f'ds_read_b128 v[{b}:{b+3}], v{T0} offset:{ww*2048}')
                a.e(f'ds_read_b128 v[{b+4}:{b+7}], v{T0} offset:{ww*2048+1024}')
                a.e(f'ds_read_b128 v[{b+8}:{b+11}], v{T2} offset:{ww*128}')
                a.e(f'ds_read_b128 v[{b+12}:{b+15}], v{T2} offset:{ww*128+64}')
                if ww == 2: a.e('s_waitcnt lgkmcnt(8)')
            a.e('s_waitcnt lgkmcnt(0)')
            for i in range(0, 16, 2):
                a.e(pk('add', RB + i, vp(RB + i), vp(RB + 16 + i)))
                a.e(pk('add', RB + 32 + i, vp(RB + 32 + i), vp(RB + 48 + i)))
            for i in range(0, 16, 2):
                a.e(pk('add', RB + i, vp(RB + i), vp(RB + 32 + i)))
        OPB = V_ACC + 16
        emit_pack(a, OPB, RB, 16)
        a.e('s_nop 1')
        NUM = V_A; DEN = V_A + 16
        for r in range(2):
            for h in range(2):
                pq = V_PQ + (r * 2 + h) * 2
                n_ = NUM + (r * 2 + h) * 4; d_ = DEN + (r * 2 + h) * 4
                a.e(f'v_mfma_f32_16x16x16_bf16 v[{n_}:{n_+3}], v[{OPB+2*h}:{OPB+2*h+1}], v[{pq}:{pq+1}], 0')
                a.e(f'v_mfma_f32_16x16x16_bf16 v[{d_}:{d_+3}], v[{OPB+4+2*h}:{OPB+4+2*h+1}], v[{pq}:{pq+1}], 0')
        a.e(f's_lshl_b32 s{S_T0}, s{S_CB2}, 10')
        a.e(f's_add_u32 s{S_T0}, s{S_T0}, s{S_GH}')
        a.e(f's_add_u32 s{S_T1}, s{S_T0}, 0x4000')
        a.e('s_nop 4')
        for k in range(4): a.e(f'v_add_f32 v{DEN+4*k}, s{S_EPS6}, v{DEN+4*k}')
        for k in range(4): a.e(f'v_rcp_f32 v{DEN+4*k}, v{DEN+4*k}')
        a.e('s_nop 0')
        for k in range(4):
            for i in range(4): a.e(f'v_mul_f32 v{NUM+4*k+i}, v{NUM+4*k+i}, v{DEN+4*k}')
        OPK = V_A + 32
        emit_pack(a, OPK, NUM, 16)
        emit_mode_stores(a, [f'buffer_store_dwordx4 v[{OPK}:{OPK+3}], v{V_AB}, {WS}, s{S_T0} offen',
                             f'buffer_store_dwordx4 v[{OPK+4}:{OPK+7}], v{V_AB}, {WS}, s{S_T1} offen'], cold=True)
        emit_signal(a, ep(1))
        stamp()
        if done('P1Q'): return True

        ACC = V_ACC; WR = 80; TMP = V_A
        def small_gemm(phase, tail=None):
            a.fstamp(phase)
            emit_gemm32(a, bar, phase, slabs[phase], ACC, WR, tail=tail)
        def tile_store(pkb, base, gh=False, cold=False):
            soff(S_T0, base, gh=gh)
            emit_mode_stores(a, [f'buffer_store_dwordx4 v[{pkb}:{pkb+3}], v{V_TST}, {WS}, s{S_T0} offen',
                                 f'buffer_store_dwordx4 v[{pkb+4}:{pkb+7}], v{V_TST}, {WS}, s{S_T0} offen offset:512'], cold=cold)

        a.c('=== P3')
        stamp()
        small_gemm('P3')
        stamp()
        for i in range(0, 16, 2): a.e(pk('add', V_RES + i, vp(V_RES + i), vp(ACC + i)))
        emit_pack32(a, TMP, V_RES)
        tile_store(TMP, A1_OFF, cold=True)
        soff(S_T1, ST_OFF)
        emit_stats_partial32(a, V_RES, TMP + 8, f's{S_T1}', cold=True)
        emit_signal(a, ep(2))
        stamp()
        if done('P3'): return True

        a.c('=== P4')
        CS4 = TMP + 16; RAW = TMP + 32
        a.e(f'v_lshrrev_b32 v{T1}, 5, v{V_LANE}')
        a.e(f'v_lshlrev_b32 v{T1}, 4, v{T1}')
        a.e(f's_lshl_b32 s{S_T1}, s{S_CH}, 7')
        a.e(f's_add_u32 s{S_T1}, s{S_T1}, {hex(CSC + 384)}')
        a.e(f'v_add_u32 v{T1}, s{S_T1}, v{T1}')
        for j in range(4):
            a.e(f'ds_read_b128 v[{CS4+4*j}:{CS4+4*j+3}], v{T1} offset:{32*j}')
        a.e('s_waitcnt lgkmcnt(0)')
        stamp()
        def p4_tail():
            soff(S_T0, ST_OFF)
            for k in range(4):
                a.vmem(f'buffer_load_dwordx4 v[{RAW+4*k}:{RAW+4*k+3}], v{V_STS}, {WS}, s{S_T0} offen offset:{512*k} sc1', 'st')
        small_gemm('P4', tail=p4_tail)
        stamp()
        a.wait_vm_all()
        emit_sum_partials(a, RAW, 16)
        emit_xreduce(a, [RAW, RAW + 1], [RAW + 2, RAW + 3], over16=False)
        emit_stats_from_sums(a, RAW, RAW + 1, RAW + 4, RAW + 6, RAW + 8, double=True, keep=(V_MEAN, V_RS))
        emit_lnfold(a, ACC, CS4, RAW + 4, RAW + 6, 16)
        emit_gelu(a, ACC, 16, TMP + 48, V_PQ)
        emit_pack32(a, TMP, ACC)
        tile_store(TMP, A0_OFF, gh=True)
        gl = a.newlabel('GH'); gu = a.newlabel('GH'); gd = a.newlabel('GH')
        a.e(f's_cmp_eq_u32 s{S_RB}, 3')
        a.e(f's_cbranch_scc0 {gu}')
        a.e(f's_cmp_eq_u32 s{S_RH}, 1')
        a.e(f's_cbranch_scc0 {gd}')
        a.e(f's_bitcmp1_b32 s{S_CB}, 1')
        a.e(f's_cbranch_scc1 {gd}')
        a.e(f's_cmp_eq_u32 s{S_G}, 7')
        a.e(f's_cbranch_scc1 {gd}')
        a.e(f's_add_u32 s{S_T1}, s{S_G}, 1')
        a.e(f's_mul_i32 s{S_T2}, s{S_T1}, {18*16384}')
        a.e(f's_lshl_b32 s{S_T3}, s{S_T1}, 8')
        set_exec(a, 0xc0000000)
        a.e(f's_branch {gl}')
        a.label(gu)
        a.e(f's_cmp_eq_u32 s{S_RB}, 0')
        a.e(f's_cbranch_scc0 {gd}')
        a.e(f's_cmp_eq_u32 s{S_RH}, 0')
        a.e(f's_cbranch_scc0 {gd}')
        a.e(f's_bitcmp1_b32 s{S_CB}, 1')
        a.e(f's_cbranch_scc0 {gd}')
        a.e(f's_cmp_eq_u32 s{S_G}, 0')
        a.e(f's_cbranch_scc1 {gd}')
        a.e(f's_sub_u32 s{S_T1}, s{S_G}, 1')
        a.e(f's_mul_i32 s{S_T2}, s{S_T1}, {18*16384}')
        a.e(f's_add_u32 s{S_T2}, s{S_T2}, {17*16384}')
        a.e(f's_lshl_b32 s{S_T3}, s{S_T1}, 8')
        a.e(f's_add_u32 s{S_T3}, s{S_T3}, 128')
        set_exec(a, 0x00000003)
        a.label(gl)
        a.e(f's_lshl_b32 s{S_T0}, s{S_CB}, 1')
        a.e(f's_add_u32 s{S_T0}, s{S_T0}, s{S_CH}')
        a.e(f's_lshl_b32 s{S_T0}, s{S_T0}, 10')
        a.e(f's_add_u32 s{S_T2}, s{S_T2}, s{S_T0}')
        a.e(f'v_and_b32 v{T0}, 0x3fff, v{V_TST}')
        a.e(f'v_and_b32 v{T0}, 0x3ff, v{T0}')
        a.e(f'buffer_store_dwordx4 v[{TMP}:{TMP+3}], v{T0}, {WS}, s{S_T2} offen sc1')
        a.e(f'buffer_store_dwordx4 v[{TMP+4}:{TMP+7}], v{T0}, {WS}, s{S_T2} offen offset:512 sc1')
        a.e('s_mov_b64 exec, -1')
        a.e(f's_and_b32 s{S_T0}, s{S_CB}, 1')
        a.e(f's_lshr_b32 s{S_T1}, s{S_CB}, 2')
        a.e(f's_lshl_b32 s{S_T1}, s{S_T1}, 1')
        a.e(f's_add_u32 s{S_T0}, s{S_T0}, s{S_T1}')
        a.e(f's_lshl_b32 s{S_T0}, s{S_T0}, 1')
        a.e(f's_add_u32 s{S_T0}, s{S_T0}, s{S_CH}')
        a.e(f's_lshl_b32 s{S_T0}, s{S_T0}, 2')
        a.e(f's_add_u32 s{S_T3}, s{S_T3}, s{S_T0}')
        a.e(f's_lshl_b32 s{S_T0}, s{S_L}, 11')
        a.e(f's_add_u32 s{S_T3}, s{S_T3}, s{S_T0}')
        a.e(f's_add_u32 s{S_T3}, s{S_T3}, {hex(HF_OFF)}')
        thr_value(a, S_THR, ep(3), xcc=True)
        a.e(f'v_mov_b32 v{T0}, s{S_T3}')
        a.e(f'v_mov_b32 v{T1}, s{S_THR}')
        a.e('s_waitcnt vmcnt(0)')
        a.e('s_mov_b64 exec, 1')
        a.e(f'buffer_store_dword v{T1}, v{T0}, {WS}, 0 offen sc1')
        a.e('s_mov_b64 exec, -1')
        a.label(gd)
        emit_signal(a, ep(3))
        stamp()
        if done('P4'): return True

        a.c('=== P5')
        stamp()
        small_gemm('P5')
        stamp()
        a.e(f'v_mul_f32 v{TMP+10}, v{V_MEAN}, v{V_RS}')
        a.e(f'v_sub_f32 v{TMP+10}, 0, v{TMP+10}')
        a.e(f'v_mov_b32 v{TMP+8}, v{V_RS}')
        for i in range(0, 16, 2):
            a.e(pk('fma', ACC + i, vp(V_RES + i), vp(TMP + 8), vp(ACC + i), mods=' op_sel_hi:[1,0,1]'))
        for i in range(0, 16, 2):
            a.e(pk('add', ACC + i, vp(ACC + i), vp(TMP + 10), mods=' op_sel_hi:[1,0]'))
        emit_pack32(a, TMP, ACC)
        tile_store(TMP, A1_OFF)
        soff(S_T1, ST_OFF)
        emit_stats_partial32(a, ACC, TMP + 12, f's{S_T1}')
        for i in range(0, 16, 2): a.e(pk('add', V_RES + i, vp(V_RES + i), vp(ACC + i)))
        emit_signal(a, ep(4))
        stamp()
        if done('P5'): return True

        a.c('=== P6')
        CS6 = V_ACC; ACC6 = 192; WR6 = 96
        a.e(f'v_and_b32 v{T1}, 0x30, v{V_LANE}')
        a.e(f'v_add_u32 v{T1}, {hex(CSC + 640)}, v{T1}')
        for t in range(7):
            a.e(f'ds_read_b128 v[{CS6+4*t}:{CS6+4*t+3}], v{T1} offset:{64*t}')
        a.e('s_waitcnt lgkmcnt(0)')
        emit_poll(a, V_FSB, ep(4), opt=opt)
        stamp()
        def p6_load(j):
            a.e(f's_lshl_b32 s{S_T0}, s{S_RB2}, {13 if opt.rot else 31}')
            if not opt.rot: a.e(f's_mov_b32 s{S_T0}, 0')
            a.e(f's_xor_b32 s{S_T0}, s{S_T0}, {hex((j // 4) * 4096)}')
            a.e(f's_add_u32 s{S_T0}, s{S_T0}, {hex(A1_OFF)}')
            a.e(f's_add_u32 s{S_T1}, s{S_T0}, 0x4000')
            for r in range(2):
                d = V_A + ((j % 8) * 2 + r) * 4
                a.vmem(f'buffer_load_dwordx4 v[{d}:{d+3}], v{V_AB}, {WS}, s{S_T0 if r == 0 else S_T1} offen offset:{(j%4)*1024} sc1', ('A', j))
        RAW6 = [V_PQ, 248]
        def p6_issue(j, t):
            if t == 1:
                if j + opt.D_p6 < 16:
                    p6_load(j + opt.D_p6)
                elif j + opt.D_p6 == 16:
                    soff(S_T0, ST_OFF)
                    for r in range(2):
                        a.vmem(f'buffer_load_dwordx4 v[{RAW6[r]}:{RAW6[r]+3}], v{V_STB}, {WS}, s{S_T0} offen offset:{256*r} sc1', 'st')
                        a.vmem(f'buffer_load_dwordx4 v[{RAW6[r]+4}:{RAW6[r]+7}], v{V_STB}, {WS}, s{S_T0} offen offset:{256*r+512} sc1', 'st')
        a.fstamp('P6')
        for j in range(opt.D_p6): p6_load(j)
        emit_gemm16(a, bar, 'P6', slabs['P6'], 7, '224',
                    acc_of=lambda r, t: ACC6 + (r * 7 + t) * 4, a_of=lambda r, j: V_A + ((j % 8) * 2 + r) * 4,
                    a_wait=lambda j: a.count_vm(('A', j)), a_issue=p6_issue, wr=WR6, S=8)
        stamp()
        a.wait_vm_all()
        for r in range(2): emit_sum_partials(a, RAW6[r], 8)
        emit_xreduce(a, [RAW6[0], RAW6[0] + 1, RAW6[1], RAW6[1] + 1], [V_X, V_X + 1, V_X + 2, V_X + 3])
        AB6 = [(92, 94), (RAW6[1] + 4, RAW6[1] + 6)]
        for r in range(2):
            emit_stats_from_sums(a, RAW6[r], RAW6[r] + 1, AB6[r][0], AB6[r][1], V_X)
        a.e(f's_lshl_b32 s{S_T0}, s{S_G}, 4')
        a.e(f's_lshl_b32 s{S_T1}, s{S_RB2}, 3')
        a.e(f's_add_u32 s{S_T0}, s{S_T0}, s{S_T1}')
        a.e(f's_lshl_b32 s{S_T1}, s{S_W}, 1')
        a.e(f's_add_u32 s{S_T0}, s{S_T0}, s{S_T1}')
        a.e(f's_mul_i32 s{S_T0}, s{S_T0}, 57344')
        a.e(f's_lshr_b32 s{S_T1}, s{S_CB2}, 1')
        a.e(f's_mul_i32 s{S_T1}, s{S_T1}, 7168')
        a.e(f's_add_u32 s{S_T0}, s{S_T0}, s{S_T1}')
        a.e(f's_add_u32 s{S_T0}, s{S_T0}, {hex(G_OFF)}')
        a.e(f's_and_b32 s{S_T1}, s{S_CB2}, 1')
        a.e(f's_mul_i32 s{S_U0}, s{S_T1}, 3072')
        a.e(f's_add_u32 s{S_U0}, s{S_U0}, s{S_T0}')
        a.e(f's_add_u32 s{S_U1}, s{S_U0}, 57344')
        a.e(f's_lshl_b32 s{S_T1}, s{S_T1}, 3')
        a.e(f's_add_u32 s{S_U2}, s{S_T0}, s{S_T1}')
        a.e(f's_add_u32 s{S_U2}, s{S_U2}, 6144')
        a.e(f's_add_u32 s{S_U3}, s{S_U2}, 57344')
        a.e(f'v_lshlrev_b32 v{V_X+4}, 4, v{V_LANE}')
        for r in range(2):
            emit_lnfold(a, ACC6 + r * 28, CS6, AB6[r][0], AB6[r][1], 28)
            emit_gelu(a, ACC6 + r * 28, 28, V_A, V_PQ + 4)
            pkb = V_A + 16 + r * 16
            emit_pack(a, pkb, ACC6 + r * 28, 28)
            st = [f'buffer_store_dwordx4 v[{pkb+4*j}:{pkb+4*j+3}], v{V_X+4}, {WS}, s{S_U0+r} offen offset:{1024*j}' for j in range(3)]
            st.append(f'buffer_store_dwordx2 v[{pkb+12}:{pkb+13}], v{V_X+4}, {WS}, s{S_U2+r} offen')
            emit_mode_stores(a, st, cold=bool(opt.g_cold))
        emit_signal(a, ep(5))
        stamp()
        if done('P6'): return True

        a.c('=== P7')
        if opt.p7_self:
            VG, VF = V_A + 100, V_A + 101
            a.e(f's_lshl_b32 s{S_T0}, s{S_G}, 4'); a.e(f's_lshl_b32 s{S_T1}, s{S_RB}, 2'); a.e(f's_add_u32 s{S_T0}, s{S_T0}, s{S_T1}')
            a.e(f's_add_u32 s{S_T0}, s{S_T0}, s{S_W}'); a.e(f's_mul_i32 s{S_T0}, s{S_T0}, 57344')
            a.e(f'v_lshlrev_b32 v{VG}, 4, v{V_LANE}'); a.e(f'v_add_u32 v{VG}, s{S_T0}, v{VG}')
            for p_ in range(8):
                a.e(f's_and_b32 s{S_P7+p_}, s{S_RB}, {3 if opt.rot else 0}'); a.e(f's_lshl_b32 s{S_P7+p_}, s{S_P7+p_}, 1')
                a.e(f's_xor_b32 s{S_P7+p_}, s{S_P7+p_}, {p_}'); a.e(f's_mul_i32 s{S_P7+p_}, s{S_P7+p_}, 7168')
            a.e(f's_lshl_b32 s{S_T2}, s{S_G}, 9'); a.e(f's_add_u32 s{S_T2}, s{S_T2}, {hex(LF_OFF)}')
            a.e(f's_and_b32 s{S_T3}, s{S_RB}, 1'); a.e(f's_lshl_b32 s{S_T3}, s{S_T3}, 1'); a.e(f's_add_u32 s{S_T3}, s{S_T3}, s{S_RH}')
            a.e(f's_lshl_b32 s{S_T3}, s{S_T3}, 7'); a.e(f's_add_u32 s{S_T3}, s{S_T3}, s{S_T2}')
            a.e(f's_lshr_b32 s{S_T4}, s{S_RB}, 1'); a.e(f's_lshl_b32 s{S_T4}, s{S_T4}, 6'); a.e(f's_add_u32 s{S_T3}, s{S_T3}, s{S_T4}')
            a.e(f'v_and_b32 v{VF}, 15, v{V_LANE}'); a.e(f'v_lshlrev_b32 v{VF}, 2, v{VF}'); a.e(f'v_add_u32 v{VF}, s{S_T3}, v{VF}')
            a.e(f's_lshl_b32 s{S_T3}, s{S_R}, 2'); a.e(f's_add_u32 s{S_T3}, s{S_T3}, s{S_T2}')
            a.e(f'v_and_b32 v{T1}, 3, v{V_LANE}'); a.e(f'v_lshlrev_b32 v{T1}, 7, v{T1}'); a.e(f'v_add_u32 v{T1}, s{S_T3}, v{T1}')
            a.e(f'v_cmp_lt_u32 vcc, 15, v{V_LANE}'); a.e('s_nop 1'); a.e(f'v_cndmask_b32 v{VF}, v{VF}, v{T1}, vcc')
            emit_poll(a, VF, ep(5), opt=opt)
            stamp()
            def pieces7(c):
                state = {'last': None}
                def mk(k):
                    def f():
                        if k == 0: a.e(f's_add_u32 m0, s{S_W4K}, {hex(AREG + (c % 4) * 16384)}')
                        p_, i_ = divmod(4 * c + k, 7)
                        const = G_OFF + (i_ - k) * 1024
                        if state['last'] != (p_, const):
                            a.e(f's_add_u32 s{S_T0}, s{S_P7+p_}, {hex(const & 0xffffffff)}'); state['last'] = (p_, const)
                        a.vmem(f'buffer_load_dwordx4 v{VG}, {WS}, s{S_T0} offen offset:{k*1024} sc1 lds', ('A', c))
                    return f
                return [mk(k) for k in range(4)]
            emit_gemm32(a, bar, 'P7', slabs['P7'], ACC, WR, a_pieces=pieces7)
        else:
            stamp()
            small_gemm('P7')
        stamp()
        for i in range(0, 16, 2): a.e(pk('add', V_RES + i, vp(V_RES + i), vp(ACC + i)))
        emit_pack32(a, TMP, V_RES)
        return False

    stopped = run_layer()
    if not stopped:
        fin = a.newlabel('FIN'); TMP = V_A
        a.e(f's_cmp_eq_u32 s{S_L}, 1')
        a.e(f's_cbranch_scc1 {fin}')
        a.e(f's_mov_b32 s{S_T0}, {hex(A2_OFF)}')
        emit_mode_stores(a, [f'buffer_store_dwordx4 v[{TMP}:{TMP+3}], v{V_TST}, {WS}, s{S_T0} offen',
                             f'buffer_store_dwordx4 v[{TMP+4}:{TMP+7}], v{V_TST}, {WS}, s{S_T0} offen offset:512'], cold=True)
        a.e(f's_mov_b32 s{S_T1}, {hex(ST_OFF)}')
        emit_stats_partial32(a, V_RES, TMP + 8, f's{S_T1}')
        a.e(f's_add_u32 s{S_EP}, s{S_EP}, 6')
        emit_signal(a, f's{S_EP}')
        if opt.timing:
            dump([tmreg(i) for i in range(tm[0])])
        a.e(f's_mov_b32 s{S_L}, 1')
        a.e(f's_mov_b32 s{S_LOFF}, {hex(KVP_L)}')
        a.e(f's_mov_b32 s{S_COLD}, s{S_MODE}')
        for i in range(3): a.e(f's_mov_b32 s{S_PA+i}, s{S_WS+i}')
        a.e(f's_mov_b32 s{S_PA+3}, 0x20000')
        a.e(f'v_mov_b32 v{V_P1}, v{V_AB}')
        for c in range(4):
            a.e(f's_xor_b32 s{S_RK+c}, s{S_ROTK}, {c}')
            a.e(f's_lshl_b32 s{S_RK+c}, s{S_RK+c}, 12')
            a.e(f's_add_u32 s{S_RK+c}, s{S_RK+c}, {hex(A2_OFF)}')
        a.e(f's_mov_b32 s{S_ASTR}, 1024')
        a.e(f's_branch {LOOP}')
        a.label(fin)
        emit_pack(a, TMP, V_RES, 16)
        OS = f's[{S_OUT}:{S_OUT+3}]'
        for j in range(4):
            a.e(f'buffer_store_dwordx2 v[{TMP+2*j}:{TMP+2*j+1}], v{V_XRM}, {OS}, 0 offen offset:{16*j}')
    a.label('L_END_COMPUTE')
    nn = a.newlabel('NON')
    a.e(f's_or_b32 s{S_T0}, s2, s{S_W}')
    a.e(f's_cmp_eq_u32 s{S_T0}, 0')
    a.e(f's_cbranch_scc0 {nn}')
    a.e(f's_add_u32 s{S_T0}, s{S_V}, 1')
    a.e(f'v_mov_b32 v{V_T0}, s{S_T0}')
    a.e(f'v_mov_b32 v{V_T1}, {hex(NONCE_OFF)}')
    a.e('s_mov_b64 exec, 1')
    a.e(f'buffer_store_dword v{V_T0}, v{V_T1}, {WS}, 0 offen')
    a.e('s_mov_b64 exec, -1')
    a.label(nn)
    stamp()
    if opt.timing: dump([tmreg(i) for i in range(tm[0])] + ([85] if False else []))
    if opt.fine: dump([freg(i) for i in range(fs[0])])
    if opt.wall:
        a.e('s_waitcnt vmcnt(0)')
        a.e('s_memrealtime s[82:83]'); a.e('s_memtime s[80:81]'); a.e('s_waitcnt lgkmcnt(0)')
        dump([84, 82, 85, 80])
    a.e('s_waitcnt vmcnt(0)')
    a.e('s_endpgm')
    return evq


def hstamp(a, opt, slot):
    if not (opt.dbgout >= 0 and opt.fine): return
    sk = a.newlabel('HS')
    a.e('s_memtime s[98:99]'); a.e('s_waitcnt lgkmcnt(0)')
    a.e(f's_cmp_eq_u32 s2, {opt.dbgwg}'); a.e(f's_cbranch_scc0 {sk}')
    a.e('s_sub_u32 s98, s98, s96')
    a.e('v_mov_b32 v254, s98'); a.e(f'v_mov_b32 v253, {4*slot}')
    a.e('global_store_dword v253, v254, s[86:87]')
    a.label(sk)
    a.vm.append('hs')

def gen_loader(a, opt, events):
    VN, VKV, VQ, VW3, VKVn, VQn = 8, 12, 16, 20, 28, 32
    VT0, VT1, VT2, VT3 = 1, 2, 3, 4
    a.c('--- loader setup')
    def srd(s, p, size):
        a.e(f's_mov_b32 s{s}, s{p}'); a.e(f's_mov_b32 s{s+1}, s{p+1}')
        a.e(f's_mov_b32 s{s+2}, {hex(size)}'); a.e(f's_mov_b32 s{s+3}, 0x20000')
    srd(S_WQKV, S_PTR + 2, 512 * 1536 * 2)
    srd(S_WO, S_PTR + 4, 512 * 512 * 2)
    srd(S_W1, S_PTR + 8, 512 * 512 * 2)
    srd(S_W2, S_PTR + 10, 512 * 512 * 2)
    srd(S_W3, S_PTR + 12, 512 * 1792 * 2)
    srd(S_W4, S_PTR + 14, 1792 * 512 * 2)
    CBS, CBK, CB6, CB7 = 64, 68, 72, 76
    a.e(f's_lshl_b32 s{S_T1}, s{S_RB2}, 1')
    a.e(f's_add_u32 s{S_T1}, s{S_T1}, s{S_CB2}')
    a.e(f's_and_b32 s{S_T1}, s{S_T1}, {3 if opt.rot else 0}')
    for c in range(4):
        a.e(f's_xor_b32 s{CBK+c}, s{S_T1}, {c}')
        a.e(f's_mul_i32 s{CBK+c}, s{CBK+c}, {128*3072}')
    def late_tables():
        rm = 3 if opt.rot else 0
        for c in range(4):
            a.e(f's_and_b32 s{CBS+c}, s{S_RB}, {rm}')
            a.e(f's_xor_b32 s{CBS+c}, s{CBS+c}, {c}')
            a.e(f's_lshl_b32 s{CBS+c}, s{CBS+c}, 17')
            a.e(f's_lshl_b32 s{CB6+c}, s{S_RB2}, 1')
            a.e(f's_and_b32 s{CB6+c}, s{CB6+c}, {rm}')
            a.e(f's_xor_b32 s{CB6+c}, s{CB6+c}, {c}')
            a.e(f's_mul_i32 s{CB6+c}, s{CB6+c}, {128*3584}')
        for p_ in range(8):
            a.e(f's_and_b32 s{CB7+p_}, s{S_RB}, {rm}')
            a.e(f's_lshl_b32 s{CB7+p_}, s{CB7+p_}, 1')
            a.e(f's_xor_b32 s{CB7+p_}, s{CB7+p_}, {p_}')
            a.e(f's_mul_i32 s{CB7+p_}, s{CB7+p_}, {224*1024}')

    def cs_issue():
        a.c('cs pieces')
        c1 = a.newlabel('CS'); c2 = a.newlabel('CS'); c3 = a.newlabel('CS')
        a.e(f's_min_u32 s{92}, s2, 239')
        a.e(f's_lshr_b32 s{93}, s{92}, 2')
        a.e(f's_and_b32 s{94}, s{92}, 3')
        a.e(f's_cmp_lt_u32 s{93}, 24')
        a.e(f's_cbranch_scc0 {c1}')
        for i in range(3): a.e(f's_mov_b32 s{S_CSRD+i}, s{S_WQKV+i}')
        a.e(f's_mov_b32 s{S_T0}, 3072')
        a.e(f's_lshl_b32 s{S_T1}, s{93}, 7')
        a.e(f's_branch {c3}')
        a.label(c1)
        a.e(f's_cmp_lt_u32 s{93}, 32')
        a.e(f's_cbranch_scc0 {c2}')
        for i in range(3): a.e(f's_mov_b32 s{S_CSRD+i}, s{S_W1+i}')
        a.e(f's_mov_b32 s{S_T0}, 1024')
        a.e(f's_sub_u32 s{S_T1}, s{93}, 24')
        a.e(f's_lshl_b32 s{S_T1}, s{S_T1}, 7')
        a.e(f's_branch {c3}')
        a.label(c2)
        for i in range(3): a.e(f's_mov_b32 s{S_CSRD+i}, s{S_W3+i}')
        a.e(f's_mov_b32 s{S_T0}, 3584')
        a.e(f's_sub_u32 s{S_T1}, s{93}, 32')
        a.e(f's_lshl_b32 s{S_T1}, s{S_T1}, 7')
        a.label(c3)
        a.e(f's_mov_b32 s{S_CSRD+3}, 0x20000')
        a.e(f'v_lshrrev_b32 v{VT1}, 3, v{V_LANE}')
        a.e(f'v_mul_lo_u32 v{VT1}, v{VT1}, s{S_T0}')
        a.e(f'v_and_b32 v{VT2}, 7, v{V_LANE}')
        a.e(f'v_lshl_add_u32 v{VT1}, v{VT2}, 4, v{VT1}')
        a.e(f'v_add_u32 v{VT1}, s{S_T1}, v{VT1}')
        a.e(f's_lshl_b32 s{S_T1}, s{94}, 7')
        a.e(f's_mul_i32 s{S_T1}, s{S_T1}, s{S_T0}')
        a.e(f's_lshl_b32 s{S_T0}, s{S_T0}, 3')
        a.e(f's_mov_b32 m0, {hex(CSL)}')
        for p in range(16):
            a.e('s_nop 0')
            a.vmem(f'buffer_load_dwordx4 v{VT1}, s[{S_CSRD}:{S_CSRD+3}], s{S_T1} offen lds', 'cs')
            if p < 15:
                a.e('s_add_u32 m0, m0, 1024')
                a.e(f's_add_u32 s{S_T1}, s{S_T1}, s{S_T0}')
    dg = [0]
    def dstamp():
        if opt.startdiag:
            a.e(f's_memtime s[{84+2*dg[0]}:{85+2*dg[0]}]') if False else None
            a.e('s_memtime s[98:99]'); a.e('s_waitcnt lgkmcnt(0)')
            a.e('s_sub_u32 s98, s98, s100')
            a.e(f'v_mov_b32 v{100+dg[0]}, s98'); dg[0] += 1
    dstamp()
    cs_issue()
    a.e(f'v_lshrrev_b32 v{VT0}, 3, v{V_LANE}')
    a.e(f'v_bfe_u32 v{VT1}, v{VT0}, 1, 2')
    a.e(f'v_lshlrev_b32 v{VT1}, 1, v{VT1}')
    a.e(f'v_and_b32 v{VT2}, 7, v{V_LANE}')
    a.e(f'v_xor_b32 v{VT2}, v{VT2}, v{VT1}')
    a.e(f'v_and_b32 v{VT1}, 3, v{VT2}')
    a.e(f'v_lshlrev_b32 v{VT3}, 4, v{VT1}')
    a.e(f'v_lshrrev_b32 v{VT1}, 2, v{VT2}')
    a.e(f'v_lshl_add_u32 v{VT3}, v{VT1}, 10, v{VT3}')
    a.e(f's_lshl_b32 s{S_T0}, s{S_CB2}, 6')
    a.e(f's_add_u32 s{S_T1}, s{S_T0}, 1024')
    a.e(f'v_add_u32 v{VT3}, s{S_T1}, v{VT3}')
    a.e(f'v_lshrrev_b32 v{VT1}, 2, v{VT0}')
    a.e(f'v_lshlrev_b32 v{VT1}, 3, v{VT1}')
    a.e(f'v_and_b32 v{VT2}, 3, v{VT0}')
    a.e(f'v_add_u32 v{VT1}, v{VT1}, v{VT2}')
    a.e(f'v_mul_u32_u24 v{VT1}, 3072, v{VT1}')
    a.e(f'v_add_u32 v{VT1}, v{VT1}, v{VT3}')
    for p in range(4):
        off = (16 * (p & 1) + 4 * (p >> 1)) * 3072 - p * 1024
        a.e(f'v_add_u32 v{VKVn+p}, {hex(off & 0xffffffff)}, v{VT1}')
    a.e(f'v_mul_u32_u24 v{VKV}, 3072, v{VT0}')
    a.e(f'v_add_u32 v{VKV}, v{VKV}, v{VT3}')
    for j in range(1, 4): a.e(f'v_add_u32 v{VKV+j}, {hex(j*(8*3072-1024))}, v{VKV}')

    layers = sorted(set(e[0] for e in events))
    slabs = {L: build_slabs(L) for L in layers}
    stream = []
    needed = set((e[0], e[2], e[3]) for e in events if e[1] == 'B')
    for L in layers:
        for p in PHASES:
            for ci, ch in enumerate(slabs[L][p]):
                if (L, p, ci) in needed: stream += ch
    released = set()
    log = []; cur = ['start']
    opt._log = log
    st = {'issued': 0}
    win = [opt.window0]
    def overlaps_unreleased(s, idx):
        for k in range(idx):
            o = stream[k]
            if (o.layer, o.phase, o.chunk) in released: continue
            if o.addr < s.addr + s.size and s.addr < o.addr + o.size: return True
        return False
    def emit_slab(s):
        kind = s.kind; tag = (s.layer, s.phase, s.chunk)
        if kind in opt.dbg_skip.split(','): return
        if kind in ('WO', 'W1', 'W2', 'W4'):
            srd_ = {'WO': S_WO, 'W1': S_W1, 'W2': S_W2, 'W4': S_W4}[kind]; vb = VN; rs = 1024
        elif kind == 'KV': srd_, vb, rs = S_WQKV, (VKVn if s.layer == 0 else VKV), 3072
        elif kind == 'Q': srd_, vb, rs = S_WQKV, (VQn if s.layer == 0 else VQ), 3072
        else: srd_, vb, rs = S_W3, VW3, 3584
        R4 = f's[{srd_}:{srd_+3}]'
        def grp(addr, srow, ps, v0):
            a.e(f's_mov_b32 m0, {hex(addr)}')
            if kind == 'W4':
                p_, rr_ = divmod(srow, 224); tb_ = CB7 + p_
            else:
                c_, rr_ = divmod(srow, 128); tb_ = {'KV': CBK, 'Q': CBK, 'W3': CB6}.get(kind, CBS) + c_
            a.e(f's_add_u32 s{S_T0}, s{tb_}, {hex(rr_*rs)}')
            for k, p in enumerate(ps):
                a.vmem(f'buffer_load_dwordx4 v{vb+p}, {R4}, s{S_T0} offen offset:{k*1024} {"nt " if opt.w_nt else ""}lds', tag)
        if kind == 'W3':
            grp(s.addr, s.srow, [0, 1, 2, 3], 0); grp(s.addr + 4096, s.srow, [4, 5, 6], 0)
        elif kind == 'W4' and s.srow2 != s.srow + 16:
            grp(s.addr, s.srow, [0, 1], 0); grp(s.addr + 2048, s.srow2, [0, 1], 0)
        else:
            grp(s.addr, s.srow, [0, 1, 2, 3], 0)
        if len(a.vm) > win[0]:
            a.e(f's_waitcnt vmcnt({win[0]})')
            a.vm = a.vm[len(a.vm) - win[0]:]
    plan = {}
    opt._plan = plan
    free = [56, 56]
    def need_slots(s): return (4, 3) if s.kind == 'W3' else (2, 2)
    def park_policy(key):
        if not opt.park: return
        name = key.split('.', 1)[1] if key[0] in '01' else None
        if name is None: return
        L = int(key[0])
        if name in opt.park_w3:
            cand = [s for s in stream[st['issued']:] if s.layer == L and s.phase == 'P6' and s.chunk >= 1]; cap = opt.park_w3[name]
        elif name in opt.park_caps:
            cand = [s for s in stream[st['issued']:] if s.layer == L and s.phase == 'P7' and s.chunk >= 6]; cap = opt.park_caps[name]
        else:
            return
        for s in cand:
            if getattr(s, 'parked', False): continue
            n0, n1 = need_slots(s)
            if cap <= 0 or free[0] < n0 or free[1] < n1: break
            s.parked = True; free[0] -= n0; free[1] -= n1; cap -= 1
            plan.setdefault(key, []).append(('park', s))
    def issue(cap, must=None):
        n = 0; nu = 0
        while st['issued'] < len(stream):
            s = stream[st['issued']]
            forced = must is not None and any((o.layer, o.phase, o.chunk) == must for o in stream[st['issued']:])
            pk_ = getattr(s, 'parked', False)
            if not forced and not pk_ and n + s.npieces > cap: break
            if not forced and pk_ and (nu >= opt.unpark_max or must is not None): break
            if overlaps_unreleased(s, st['issued']):
                assert not forced, ('deadlock', must, s.layer, s.phase, s.chunk)
                break
            if pk_:
                plan.setdefault(cur[0], []).append(('unpark', s)); nu += 1
                n0, n1 = need_slots(s); free[0] += n0; free[1] += n1
                st['issued'] += 1
                log.append((cur[0], s.layer, s.phase + '*', s.chunk, forced))
                continue
            emit_slab(s); st['issued'] += 1; n += s.npieces
            log.append((cur[0], s.layer, s.phase, s.chunk, forced))
    if WARM0[0]:
        a.e('s_barrier')
        events = events[1:]
    hstamp(a, opt, 8)
    issue(32)
    hstamp(a, opt, 9)
    dstamp()
    def nonce_setup():
        a.e('s_waitcnt lgkmcnt(0)')
        a.e(f's_mul_i32 s{S_B}, s{S_V}, 0x9e3779b1')
        a.e(f's_add_u32 s{S_B}, s{S_B}, 0x7f4a7c15')
        a.e(f's_and_b32 s{S_B}, s{S_B}, 0xffffff00')
    def late_setup():
        if not opt.cs_late: nonce_setup()
        a.e(f's_lshl_b32 s{S_T0}, s{S_G}, 7')
        a.e(f's_lshl_b32 s{S_T1}, s{S_R}, 2')
        a.e(f's_add_u32 s{S_T0}, s{S_T0}, s{S_T1}')
        a.e(f's_add_u32 s{S_T0}, s{S_T0}, {hex(XID_OFF)}')
        a.e(f'v_mov_b32 v{VT1}, s{S_T0}')
        a.e(f's_add_u32 s{S_T1}, s{S_B}, s{S_XCC}')
        a.e(f'v_mov_b32 v{VT0}, s{S_T1}')
        a.e('s_mov_b64 exec, 1')
        a.vmem(f'buffer_store_dword v{VT0}, v{VT1}, {WS}, 0 offen sc1', 'xid')
        a.e('s_mov_b64 exec, -1')
        late_tables()
        a.c('W lane offsets')
        a.e(f'v_lshrrev_b32 v{VT0}, 3, v{V_LANE}')
        a.e(f'v_bfe_u32 v{VT1}, v{VT0}, 1, 1')
        a.e(f'v_lshlrev_b32 v{VT1}, 2, v{VT1}')
        a.e(f'v_and_b32 v{VT2}, 7, v{V_LANE}')
        a.e(f'v_xor_b32 v{VT2}, v{VT2}, v{VT1}')
        a.e(f'v_lshlrev_b32 v{VN}, 10, v{VT0}')
        a.e(f'v_lshl_add_u32 v{VN}, v{VT2}, 4, v{VN}')
        a.e(f's_lshl_b32 s{S_T0}, s{S_CB}, 7')
        a.e(f'v_add_u32 v{VN}, s{S_T0}, v{VN}')
        for j in range(1, 4): a.e(f'v_add_u32 v{VN+j}, {hex(j*(8192-1024))}, v{VN}')
        a.e(f'v_lshrrev_b32 v{VT0}, 2, v{V_LANE}')
        a.e(f'v_bfe_u32 v{VT1}, v{VT0}, 2, 1')
        a.e(f'v_lshlrev_b32 v{VT1}, 1, v{VT1}')
        a.e(f'v_and_b32 v{VT2}, 3, v{V_LANE}')
        a.e(f'v_xor_b32 v{VT2}, v{VT2}, v{VT1}')
        a.e(f'v_lshlrev_b32 v{VT3}, 4, v{VT2}')
        a.e(f's_lshl_b32 s{S_T0}, s{S_CB2}, 6')
        a.e(f'v_add_u32 v{VT3}, s{S_T0}, v{VT3}')
        a.e(f'v_mul_u32_u24 v{VQ}, 3072, v{VT0}')
        a.e(f'v_add_u32 v{VQ}, v{VQ}, v{VT3}')
        for j in range(1, 4): a.e(f'v_add_u32 v{VQ+j}, {hex(j*(16*3072-1024))}, v{VQ}')
        a.e(f'v_lshrrev_b32 v{VT1}, 2, v{VT0}')
        a.e(f'v_lshlrev_b32 v{VT1}, 3, v{VT1}')
        a.e(f'v_and_b32 v{VT2}, 3, v{VT0}')
        a.e(f'v_add_u32 v{VT1}, v{VT1}, v{VT2}')
        a.e(f'v_mul_u32_u24 v{VT1}, 3072, v{VT1}')
        a.e(f'v_add_u32 v{VT1}, v{VT1}, v{VT3}')
        for p in range(4):
            off = (4 * (p & 1) + 32 * (p >> 1)) * 3072 - p * 1024
            a.e(f'v_add_u32 v{VQn+p}, {hex(off & 0xffffffff)}, v{VT1}')
        a.e(f's_mul_i32 s{S_T0}, s{S_CB2}, 224')
        M14 = (1 << 20) // 14 + 1
        a.e(f's_mov_b32 s{S_T1}, {hex(M14)}')
        for p in range(7):
            a.e(f'v_add_u32 v{VT0}, {64*p}, v{V_LANE}')
            a.e(f'v_mul_lo_u32 v{VT1}, v{VT0}, s{S_T1}')
            a.e(f'v_lshrrev_b32 v{VT1}, 20, v{VT1}')
            a.e(f'v_mul_u32_u24 v{VT2}, 14, v{VT1}')
            a.e(f'v_sub_u32 v{VT2}, v{VT0}, v{VT2}')
            a.e(f'v_mul_u32_u24 v{VW3+p}, 3584, v{VT1}')
            a.e(f'v_lshl_add_u32 v{VW3+p}, v{VT2}, 4, v{VW3+p}')
            a.e(f'v_add_u32 v{VW3+p}, s{S_T0}, v{VW3+p}')
            if p % 4: a.e(f'v_subrev_u32 v{VW3+p}, {(p%4)*1024}, v{VW3+p}')
        for u in range(448): assert (u * M14) >> 20 == u // 14

    def cs_part1():
        a.wait_vm('cs')
        a.e(f'v_bfe_u32 v{VT0}, v{V_LANE}, 2, 2')
        a.e(f'v_lshrrev_b32 v{VT1}, 4, v{V_LANE}')
        a.e(f'v_lshl_add_u32 v{VT0}, v{VT1}, 2, v{VT0}')
        a.e(f'v_lshlrev_b32 v{VT0}, 7, v{VT0}')
        a.e(f'v_and_b32 v{VT2}, 3, v{V_LANE}')
        a.e(f'v_lshl_add_u32 v{VT0}, v{VT2}, 3, v{VT0}')
        a.e(f'v_add_u32 v{VT0}, {hex(CSL)}, v{VT0}')
        for i in range(4): a.e(f'v_mov_b32 v{40+i}, 0x3f803f80')
        for j in range(4):
            for t in range(4):
                a.e(f'ds_read_b64_tr_b16 v[{64+4*t}:{65+4*t}], v{VT0} offset:{j*4096+t*32}')
                a.e(f'ds_read_b64_tr_b16 v[{66+4*t}:{67+4*t}], v{VT0} offset:{j*4096+t*32+2048}')
            a.e('s_waitcnt lgkmcnt(0)')
            for t in range(4):
                c = '0' if j == 0 else f'v[{44+4*t}:{47+4*t}]'
                a.e(f'v_mfma_f32_16x16x32_bf16 v[{44+4*t}:{47+4*t}], v[{64+4*t}:{67+4*t}], v[40:43], {c}')
        a.e(f's_mul_i32 s{S_T0}, s{94}, 15360')
        a.e(f's_lshl_b32 s{S_T1}, s{93}, 8')
        a.e(f's_add_u32 s{S_T0}, s{S_T0}, s{S_T1}')
        a.e(f's_add_u32 s{S_T0}, s{S_T0}, {hex(CSP_OFF)}')
        a.e(f'v_lshlrev_b32 v{VT1}, 4, v{VT1}')
        a.e('s_nop 7')
        set_exec(a, 0x00010001)
        for t in range(4):
            a.vmem(f'buffer_store_dwordx4 v[{44+4*t}:{47+4*t}], v{VT1}, {WS}, s{S_T0} offen offset:{64*t} sc1', 'csst')
        a.e('s_mov_b64 exec, -1')
        if opt.kv_atomic:
            zl = a.newlabel('ZK')
            a.e(f's_lshr_b32 s{S_T0}, s2, 3')
            a.e(f's_mul_i32 s{S_T0}, s{S_T0}, {KVREC}')
            a.e(f's_add_u32 s{S_T0}, s{S_T0}, {hex(KVA_OFF)}')
            a.e(f's_and_b32 s{S_T1}, s2, 0x87')
            a.e(f's_cmp_eq_u32 s{S_T1}, 0')
            a.e(f's_cbranch_scc0 {zl}')
            for i in range(4): a.e(f'v_mov_b32 v{60+i}, 0')
            a.e(f'v_lshlrev_b32 v{VT0}, 4, v{V_LANE}')
            for l_ in range(2):
                a.vmem(f'buffer_store_dwordx4 v[60:63], v{VT0}, {WS}, s{S_T0} offen sc1', 'csst')
                a.vmem(f'buffer_store_dwordx4 v[60:63], v{VT0}, {WS}, s{S_T0} offen offset:1024 sc1', 'csst')
                a.e('s_mov_b64 exec, 0xff')
                a.vmem(f'buffer_store_dwordx4 v[60:63], v{VT0}, {WS}, s{S_T0} offen offset:2048 sc1', 'csst')
                a.e('s_mov_b64 exec, -1')
                if l_ == 0: a.e(f's_add_u32 s{S_T0}, s{S_T0}, {16*KVREC}')
            a.label(zl)
    def cs_part2():
        a.e(f's_lshl_b32 s{S_T0}, s2, 7')
        a.e(f's_add_u32 s{S_T0}, s{S_T0}, {hex(CSF_OFF)}')
        a.e(f'v_mov_b32 v{VT1}, s{S_T0}')
        a.e(f's_add_u32 s{S_T1}, s{S_B}, 8')
        a.e(f'v_mov_b32 v{VT0}, s{S_T1}')
        a.wait_vm('csst')
        a.e('s_mov_b64 exec, 1')
        a.vmem(f'buffer_store_dword v{VT0}, v{VT1}, {WS}, 0 offen sc1', 'csf')
        a.e('s_mov_b64 exec, -1')
    def cs_fill():
        L_ = a.newlabel('CPOLL'); D_ = a.newlabel('CPOLLD')
        a.e(f'v_min_u32 v{VT0}, 27, v{V_LANE}')
        a.e(f'v_lshrrev_b32 v{VT2}, 2, v{VT0}')
        a.e(f's_lshr_b32 s{S_T0}, s{S_CB2}, 1')
        a.e(f'v_lshlrev_b32 v{VT1}, 3, v{VT2}')
        a.e(f'v_add_u32 v{VT1}, s{S_T0}, v{VT1}')
        a.e(f's_add_u32 s{S_T0}, s{S_CB}, 24')
        a.e(f'v_mov_b32 v{VT3}, s{S_T0}')
        a.e(f'v_cmp_eq_u32 vcc, 3, v{VT2}')
        a.e('s_nop 1')
        a.e(f'v_cndmask_b32 v{VT1}, v{VT1}, v{VT3}, vcc')
        a.e(f's_mul_i32 s{S_T0}, s{S_CB2}, 112')
        a.e(f's_lshr_b32 s{S_T0}, s{S_T0}, 6')
        a.e(f's_add_u32 s{S_T0}, s{S_T0}, {32 - 4}')
        a.e(f'v_add_u32 v{VT3}, s{S_T0}, v{VT2}')
        a.e(f'v_min_u32 v{VT3}, 59, v{VT3}')
        a.e(f'v_cmp_lt_u32 vcc, 3, v{VT2}')
        a.e('s_nop 1')
        a.e(f'v_cndmask_b32 v{VT1}, v{VT1}, v{VT3}, vcc')
        a.e(f'v_and_b32 v{VT0}, 3, v{VT0}')
        a.e(f'v_lshl_add_u32 v{VT1}, v{VT1}, 2, v{VT0}')
        if opt.kv_atomic:
            a.e(f's_lshl_b32 s{S_T0}, s{S_CB2}, 3')
            a.e(f'v_mov_b32 v{VT3}, s{S_T0}')
            a.e(f'v_cmp_lt_u32 vcc, 27, v{V_LANE}')
            a.e('s_nop 1')
            a.e(f'v_cndmask_b32 v{VT1}, v{VT1}, v{VT3}, vcc')
        a.e(f'v_lshlrev_b32 v{VT1}, 7, v{VT1}')
        a.e(f's_mov_b32 s{S_T0}, {hex(CSF_OFF)}')
        a.e(f's_add_u32 s{S_T1}, s{S_B}, 8')
        a.e(f's_mov_b32 s{95}, {opt.spin}')
        a.label(L_)
        a.e(f'buffer_load_dword v40, v{VT1}, {WS}, s{S_T0} offen sc1')
        a.e('s_waitcnt vmcnt(0)')
        a.e(f'v_subrev_u32 v40, s{S_T1}, v40')
        a.e('v_cmp_gt_u32 vcc, 0x80, v40')
        a.e(f's_sub_u32 s{95}, s{95}, 1')
        a.e(f's_cbranch_scc1 {D_}')
        a.e('s_cmp_eq_u64 vcc, -1')
        a.e(f's_cbranch_scc0 {L_}')
        a.label(D_)
        a.vm = []
        def colof(dst, gofs):
            a.e(f'v_add_u32 v{VT0}, {gofs}, v{V_LANE}')
            a.e(f'v_lshlrev_b32 v{VT2}, 2, v{VT0}')
            a.e(f's_lshl_b32 s{S_T0}, s{S_CB2}, 5')
            a.e(f's_mul_i32 s{S_T1}, s{S_CB2}, 112')
            a.e(f's_add_u32 s{S_T1}, s{S_T1}, {2048 - 160}')
            a.e(f'v_add_u32 v{dst}, s{S_T1}, v{VT2}')
            for lim, addc, useb in [(40, 1536 - 96, 'cb'), (24, -64, 'hp'), (16, 1024 - 32, 'hp'), (8, 512, 'hp')]:
                if useb == 'cb':
                    a.e(f's_lshl_b32 s{S_T1}, s{S_CB}, 6')
                    a.e(f's_add_u32 s{S_T1}, s{S_T1}, {addc}')
                else:
                    a.e(f's_add_u32 s{S_T1}, s{S_T0}, {hex(addc & 0xffffffff)}')
                a.e(f'v_add_u32 v{VT3}, s{S_T1}, v{VT2}')
                a.e(f'v_cmp_gt_u32 vcc, {lim}, v{VT0}')
                a.e('s_nop 1')
                a.e(f'v_cndmask_b32 v{dst}, v{dst}, v{VT3}, vcc')
            a.e(f'v_lshlrev_b32 v{dst}, 2, v{dst}')
        colof(36, 0); colof(37, 64)
        a.e(f's_mov_b32 s{S_T0}, {hex(CSP_OFF)}')
        for kq in range(4):
            a.e(f'buffer_load_dwordx4 v[{40+4*kq}:{43+4*kq}], v36, {WS}, s{S_T0} offen sc1')
            a.e('s_mov_b64 exec, 0xf')
            a.e(f'buffer_load_dwordx4 v[{56+4*kq}:{59+4*kq}], v37, {WS}, s{S_T0} offen sc1')
            a.e('s_mov_b64 exec, -1')
            if kq < 3: a.e(f's_add_u32 s{S_T0}, s{S_T0}, 15360')
        a.e(f'v_lshlrev_b32 v{VT0}, 4, v{V_LANE}')
        a.e(f'v_add_u32 v{VT0}, {hex(CSC)}, v{VT0}')
        a.e('s_waitcnt vmcnt(0)')
        for b in (40, 56):
            for i in (0, 2):
                a.e(pk('add', b + i, vp(b + i), vp(b + 4 + i)))
                a.e(pk('add', b + 8 + i, vp(b + 8 + i), vp(b + 12 + i)))
                a.e(pk('add', b + i, vp(b + i), vp(b + 8 + i)))
        a.e(f'ds_write_b128 v{VT0}, v[40:43]')
        a.e('s_mov_b64 exec, 0xf')
        a.e(f'ds_write_b128 v{VT0}, v[56:59] offset:1024')
        a.e('s_mov_b64 exec, -1')
        a.e('s_waitcnt lgkmcnt(0)')

    if not opt.cs_late: cs_part1()
    chunks_of = {}
    for s in stream: chunks_of.setdefault((s.layer, s.phase), set()).add(s.chunk)
    nb = 0
    for ev in events:
        L, kind, p, ci = ev
        if kind == 'B':
            cur[0] = f'pre {L}.{p}.B{ci}'
            issue(0, must=(L, p, ci))
            cur[0] = f'{L}.{p}.B{ci}'
            if nb < 5: dstamp()
            a.wait_vm((L, p, ci))
            if nb == 0: hstamp(a, opt, 10)
            if nb == 1: hstamp(a, opt, 11)
            if nb < 5: dstamp()
            a.e('s_barrier')
            nb += 1
            if ci >= 2: released.add((L, p, ci - 2))
            if ci == 0:
                for (l2, p2), cs_ in chunks_of.items():
                    if p2 in NOE and (l2, PHASES.index(p2)) < (L, PHASES.index(p)):
                        for c in cs_: released.add((l2, p2, c))
            if opt.cs_late and nb <= 4:
                if nb == 1:
                    issue(16)
                    cs_part1()
                    nonce_setup()
                elif nb == 2:
                    issue(16)
                    cs_part2()
                    late_setup()
                elif nb == 3:
                    pass
                elif nb == 4:
                    cs_fill()
                    win[0] = opt.window
            elif nb == 1:
                issue(32)
                late_setup()
                cs_part2()
            elif nb == 3:
                cs_fill()
                win[0] = opt.window
            elif nb in (2, 4):
                pass
            else:
                issue(opt.caps.get(f'{p}.B{ci}', opt.caps.get(f'{p}.B*', 0)))
                park_policy(cur[0])
        elif kind == 'E':
            cur[0] = f'{L}.{p}.E'
            a.e('s_barrier')
            for c in chunks_of[(L, p)]: released.add((L, p, c))
            issue(opt.caps.get(f'{p}.E', 0))
            park_policy(cur[0])
        else:
            cur[0] = f'{L}.{p}'
            a.e('s_barrier')
            issue(opt.caps.get(p, 0))
            park_policy(cur[0])
    if opt.startdiag:
        a.e(f's_lshl_b32 s{S_T0}, s2, 8')
        a.e(f's_add_u32 s{S_T0}, s{S_T0}, {hex(TM_OFF + 128)}')
        for i in range(dg[0]):
            a.e(f'v_mov_b32 v99, {4*i}')
            a.e(f'buffer_store_dword v{100+i}, v99, {WS}, s{S_T0} offen')
    a.e('s_waitcnt vmcnt(0)')
    a.e('s_endpgm')


def gen_toucher(a, opt, events):
    a.c('--- A loader / toucher')
    mats = {'WO': (S_PTR + 4, 512 * 512 * 2), 'W1': (S_PTR + 8, 512 * 512 * 2),
            'W2': (S_PTR + 10, 512 * 512 * 2), 'W3': (S_PTR + 12, 512 * 1792 * 2), 'W4': (S_PTR + 14, 1792 * 512 * 2)}
    srds = {}
    for i, (k, (p, size)) in enumerate(mats.items()):
        s = 40 + 4 * i
        a.e(f's_mov_b32 s{s}, s{p}'); a.e(f's_mov_b32 s{s+1}, s{p+1}')
        a.e(f's_mov_b32 s{s+2}, {hex(size)}'); a.e(f's_mov_b32 s{s+3}, 0x20000')
        srds[k] = s
    T0s, T1s, T2s, T3s, T4s, T5s = 33, 34, 35, 36, 37, 38
    THR, SPIN = 60, 61
    RA, P7T = 64, 68
    U0, U1, U2, U3, U4 = 76, 77, 78, 79, 80
    VAS, VAG, VFS, VFB, VFH, VAH = 3, 4, 5, 6, 7, 8
    X0, X1, X2, X3 = 24, 25, 26, 27
    X0W = 31
    e = a.e
    VXK = 40
    e(f'v_lshrrev_b32 v2, 4, v{V_LANE}')
    e(f'v_and_b32 v3, 15, v{V_LANE}')
    for k in range(4):
        e(f'v_add_u32 v{VXK+k}, {4*k}, v2'); e(f'v_xor_b32 v{VXK+k}, v{VXK+k}, v3'); e(f'v_lshlrev_b32 v{VXK+k}, 4, v{VXK+k}')
        e(f'v_lshl_add_u32 v{VXK+k}, v2, 10, v{VXK+k}')
    e(f's_lshl_b32 s33, s{S_G}, 8'); e(f's_lshl_b32 s34, s{S_RB2}, 7'); e('s_add_u32 s33, s33, s34'); e('s_lshl_b32 s82, s33, 10')
    e(f's_lshl_b32 s83, s{S_RB2}, 1'); e(f's_add_u32 s83, s83, s{S_CB2}'); e(f's_and_b32 s83, s83, {3 if opt.rot else 0}')
    e(f's_lshr_b32 s81, s{S_CB2}, 2'); e(f's_lshl_b32 s81, s81, {13 if opt.rot else 31}')
    if not opt.rot: e('s_mov_b32 s81, 0')
    def x_chunk(c, half=None):
        e(f's_xor_b32 s33, s83, {c}'); e('s_lshl_b32 s33, s33, 8'); e('s_add_u32 s33, s33, s82')
        if half == 1:
            e('s_add_u32 s34, s81, 16384'); e('s_and_b32 s34, s34, 0x7fff')
        else:
            e('s_mov_b32 s34, s81')
        n = 8 if half is None else 4
        e(f's_mov_b32 s36, {n}')
        lp = a.newlabel('XC'); a.label(lp)
        for k in range(4):
            e(f's_add_u32 m0, s34, {hex(AREG + (c & 1) * 32768)}')
            e('s_lshl_b32 s35, s34, 2'); e('s_add_u32 s35, s35, s33')
            e(f'buffer_load_dwordx4 v{VXK + k}, s[{S_X}:{S_X+3}], s35 offen lds')
            e('s_add_u32 s34, s34, 1024')
        e('s_and_b32 s34, s34, 0x7fff')
        e('s_sub_u32 s36, s36, 1'); e('s_cmp_lg_u32 s36, 0'); e(f's_cbranch_scc1 {lp}')
        a.vm += [('X', c)] * (4 * n)
        assert len(a.vm) <= 63
    def x_tile():
        e(f'v_lshrrev_b32 v2, 3, v{V_LANE}'); e('v_lshlrev_b32 v2, 10, v2')
        e(f'v_and_b32 v30, 7, v{V_LANE}'); e('v_lshl_add_u32 v2, v30, 4, v2')
        e(f's_lshl_b32 s33, s{S_G}, 8'); e(f's_lshl_b32 s34, s{S_RB}, 6'); e('s_add_u32 s33, s33, s34'); e('s_lshl_b32 s33, s33, 10')
        e(f's_lshl_b32 s34, s{S_CB}, 7'); e('s_add_u32 s33, s33, s34')
        for p_ in range(8):
            e(f's_mov_b32 m0, {hex(AREG + p_ * 1024)}')
            if p_: e('s_add_u32 s33, s33, 8192')
            else: e('s_nop 0')
            a.vmem(f'buffer_load_dwordx4 v2, s[{S_X}:{S_X+3}], s33 offen lds', 'x')
    if WARM0[0]:
        e('s_barrier')
        events = events[1:]
    hstamp(a, opt, 12)
    x_chunk(0); x_chunk(1, 0)
    hstamp(a, opt, 13)
    e(f'v_lshlrev_b32 v1, 7, v{V_LANE}')
    e(f'v_lshlrev_b32 v{X0}, 4, v{V_LANE}')
    e(f'v_lshlrev_b32 v{X0W}, 4, v{V_LANE}')
    e(f's_lshl_b32 s{T0s}, s{S_G}, 4'); e(f's_lshl_b32 s{T1s}, s{S_RB}, 2'); e(f's_add_u32 s{T0s}, s{T0s}, s{T1s}')
    e(f's_lshl_b32 s{T1s}, s{T0s}, 14'); e(f'v_add_u32 v{VAS}, s{T1s}, v{X0}')
    e(f's_mul_i32 s{T1s}, s{T0s}, 57344'); e(f'v_add_u32 v{VAG}, s{T1s}, v{X0}')
    rmask = 3 if opt.rot else 0
    for c in range(4):
        e(f's_and_b32 s{RA+c}, s{S_RB}, {rmask}'); e(f's_xor_b32 s{RA+c}, s{RA+c}, {c}'); e(f's_lshl_b32 s{RA+c}, s{RA+c}, 12')
    for p_ in range(8):
        e(f's_and_b32 s{P7T+p_}, s{S_RB}, {rmask}'); e(f's_lshl_b32 s{P7T+p_}, s{P7T+p_}, 1')
        e(f's_xor_b32 s{P7T+p_}, s{P7T+p_}, {p_}'); e(f's_mul_i32 s{P7T+p_}, s{P7T+p_}, 7168')
    e(f'v_and_b32 v{X1}, 15, v{V_LANE}')
    e(f'v_and_b32 v{X2}, 0x30, v{V_LANE}')
    e(f's_mul_i32 s{T3s}, s{S_G}, 18')
    e(f's_lshl_b32 s{T4s}, s{S_G}, 8')
    for c in range(4):
        e(f's_lshr_b32 s{T5s}, s{RA+c}, 12')
        e(f's_lshr_b32 s{U3}, s{T5s}, 1'); e(f's_add_u32 s{U3}, s{U3}, 1'); e(f's_sub_u32 s{U4}, 0, s{U3}')
        e(f's_bitcmp1_b32 s{T5s}, 0'); e(f's_cselect_b32 s{U3}, s{U3}, s{U4}')
        e(f's_lshl_b32 s{T2s}, s{S_RB}, 6'); e(f's_add_u32 s{T2s}, s{T2s}, s{U3}'); e(f's_add_u32 s{T2s}, s{T2s}, 16')
        for w in range(4):
            r = VAH + 4 * c + w
            e(f's_add_u32 s{T5s}, s{T2s}, {16 * w}')
            e(f'v_add_u32 v{r}, s{T5s}, v{X1}')
            e(f'v_lshrrev_b32 v{X3}, 4, v{r}'); e(f'v_add_u32 v{X3}, s{T3s}, v{X3}'); e(f'v_lshlrev_b32 v{X3}, 14, v{X3}')
            e(f'v_and_b32 v28, 15, v{r}'); e(f'v_add_u32 v28, v{X2}, v28'); e(f'v_lshl_add_u32 v{X3}, v28, 4, v{X3}')
            e(f'v_add_u32 v28, s{T4s}, v{r}'); e('v_subrev_u32 v28, 16, v28')
            e('v_cmp_gt_u32 vcc, 0x800, v28')
            e(f'v_mov_b32 v{r}, 0x80000000'); e('s_nop 0')
            e(f'v_cndmask_b32 v{r}, v{r}, v{X3}, vcc')
    e(f's_lshl_b32 s{T2s}, s{S_G}, 9'); e(f's_add_u32 s{T2s}, s{T2s}, {hex(LF_OFF)}')
    e(f'v_bfe_u32 v{X1}, v{V_LANE}, 3, 2'); e(f'v_lshlrev_b32 v{X1}, 7, v{X1}')
    e(f'v_and_b32 v{X2}, 7, v{V_LANE}'); e(f'v_lshl_add_u32 v{X1}, v{X2}, 2, v{X1}')
    e(f's_lshl_b32 s{T3s}, s{S_RB}, 5'); e(f's_add_u32 s{T3s}, s{T3s}, s{T2s}')
    e(f'v_add_u32 v{VFS}, s{T3s}, v{X1}')
    e(f's_and_b32 s{T3s}, s{S_RB}, 1'); e(f's_lshl_b32 s{T3s}, s{T3s}, 8'); e(f's_add_u32 s{T3s}, s{T3s}, s{T2s}')
    e(f's_lshr_b32 s{T4s}, s{S_RB}, 1'); e(f's_lshl_b32 s{T4s}, s{T4s}, 6'); e(f's_add_u32 s{T3s}, s{T3s}, s{T4s}')
    e(f'v_bfe_u32 v{X2}, v{V_LANE}, 4, 1'); e(f'v_lshlrev_b32 v{X2}, 7, v{X2}')
    e(f'v_and_b32 v{X3}, 15, v{V_LANE}'); e(f'v_lshl_add_u32 v{X2}, v{X3}, 2, v{X2}')
    e(f'v_add_u32 v{VFB}, s{T3s}, v{X2}')
    e(f's_lshl_b32 s{T3s}, s{S_R}, 2'); e(f's_add_u32 s{T3s}, s{T3s}, s{T2s}')
    e(f'v_and_b32 v{X2}, 3, v{V_LANE}'); e(f'v_lshlrev_b32 v{X2}, 7, v{X2}'); e(f'v_add_u32 v{X2}, s{T3s}, v{X2}')
    e(f'v_cmp_lt_u32 vcc, 31, v{V_LANE}'); e('s_nop 1')
    e(f'v_cndmask_b32 v{VFB}, v{VFB}, v{X2}, vcc')
    def build_fh(L):
        la = a.newlabel('FH'); lb = a.newlabel('FH')
        e(f's_lshl_b32 s{T2s}, s{S_G}, 9'); e(f's_add_u32 s{T2s}, s{T2s}, {hex(LF_OFF)}')
        e(f's_lshl_b32 s{T3s}, s{S_RB}, 5'); e(f's_add_u32 s{T3s}, s{T3s}, s{T2s}')
        e(f's_sub_u32 s{U1}, s{T3s}, 32'); e(f's_add_u32 s{U1}, s{U1}, 256'); e(f's_mov_b32 s{U3}, 128')
        e(f's_add_u32 s{U2}, s{T3s}, 32'); e(f's_mov_b32 s{U4}, 128')
        e(f's_lshl_b32 s{T4s}, s{S_G}, 8'); e(f's_add_u32 s{T4s}, s{T4s}, {hex(HF_OFF + L * 2048)}')
        e(f's_cmp_eq_u32 s{S_RB}, 0'); e(f's_cbranch_scc0 {la}')
        e(f's_mov_b32 s{U1}, s{T3s}')
        e(f's_cmp_eq_u32 s{S_G}, 0'); e(f's_cbranch_scc1 {la}')
        e(f's_mov_b32 s{U1}, s{T4s}'); e(f's_mov_b32 s{U3}, 0')
        a.label(la)
        e(f's_cmp_eq_u32 s{S_RB}, 3'); e(f's_cbranch_scc0 {lb}')
        e(f's_mov_b32 s{U2}, s{T3s}')
        e(f's_cmp_eq_u32 s{S_G}, 7'); e(f's_cbranch_scc1 {lb}')
        e(f's_add_u32 s{U2}, s{T4s}, 128'); e(f's_mov_b32 s{U4}, 0')
        a.label(lb)
        e(f'v_bfe_u32 v{X1}, v{V_LANE}, 3, 1'); e(f'v_and_b32 v{X2}, 7, v{V_LANE}'); e(f'v_lshlrev_b32 v{X2}, 2, v{X2}')
        for base_s, mul_s, sel in ((U1, U3, 2), (U2, U4, 3)):
            e(f'v_mul_u32_u24 v{X3}, s{mul_s}, v{X1}'); e(f'v_add_u32 v{X3}, v{X3}, v{X2}'); e(f'v_add_u32 v{X3}, s{base_s}, v{X3}')
            e(f'v_lshrrev_b32 v28, 4, v{V_LANE}'); e(f'v_cmp_eq_u32 vcc, {sel}, v28'); e('s_nop 1')
            e(f'v_cndmask_b32 v{VFH}, v{VFH if sel == 3 else VFS}, v{X3}, vcc')
    e('s_waitcnt lgkmcnt(0)')
    e(f's_mul_i32 s{S_B}, s{S_V}, 0x9e3779b1'); e(f's_add_u32 s{S_B}, s{S_B}, 0x7f4a7c15'); e(f's_and_b32 s{S_B}, s{S_B}, 0xffffff00')

    def poll(v, epoch):
        L_ = a.newlabel('AP'); D_ = a.newlabel('APD')
        e(f's_add_u32 s{THR}, s{S_B}, {8*epoch}'); e(f's_mov_b32 s{SPIN}, {opt.spin}')
        a.label(L_)
        e(f'buffer_load_dword v30, v{v}, {WS}, 0 offen sc1'); e('s_waitcnt vmcnt(0)')
        e(f'v_subrev_u32 v30, s{THR}, v30'); e('v_cmp_gt_u32 vcc, 0x80, v30')
        e(f's_sub_u32 s{SPIN}, s{SPIN}, 1'); e(f's_cbranch_scc1 {D_}')
        e('s_cmp_eq_u64 vcc, -1')
        if opt.poll_sleep:
            e(f's_cbranch_scc1 {D_}'); e(f's_sleep {opt.poll_sleep}'); e(f's_branch {L_}')
        else:
            e(f's_cbranch_scc0 {L_}')
        a.label(D_); a.vm = []
    def a_chunk(phase, c):
        for w in range(4):
            e(f's_mov_b32 m0, {hex(AREG + (c % 4) * 16384 + w * 4096)}')
            if phase == 'P7':
                last = None
                for k in range(4):
                    p_, i_ = divmod(4 * c + k, 7)
                    const = G_OFF + w * 57344 + (i_ - k) * 1024
                    if last != (p_, const):
                        e(f's_add_u32 s{T0s}, s{P7T+p_}, {hex(const & 0xffffffff)}'); last = (p_, const)
                    a.vmem(f'buffer_load_dwordx4 v{VAG}, {WS}, s{T0s} offen offset:{k*1024} sc1 lds', ('A', phase, c))
            else:
                if phase == 'P5':
                    va = VAH + 4 * c + w; e(f's_add_u32 s{T0s}, s{RA+c}, {hex(A0_OFF)}' if A0_OFF else f's_mov_b32 s{T0s}, s{RA+c}')
                elif phase == 'P3':
                    va = VAS; e(f's_add_u32 s{T0s}, s{RA+c}, s{U0}'); e(f's_add_u32 s{T0s}, s{T0s}, {hex(A0_OFF + w * 16384)}')
                else:
                    va = VAS; e(f's_add_u32 s{T0s}, s{RA+c}, {hex(A1_OFF + w * 16384)}')
                for k in range(4):
                    a.vmem(f'buffer_load_dwordx4 v{va}, {WS}, s{T0s} offen offset:{k*1024} sc1 lds', ('A', phase, c))
    e(f's_lshl_b32 s{U0}, s{S_G}, 1'); e(f's_add_u32 s{U0}, s{U0}, 1'); e(f's_lshl_b32 s{U0}, s{U0}, 14')

    dummy = [0]
    def wide(srd_s, soff_s):
        d = 64 + 4 * (dummy[0] % 40); dummy[0] += 1
        a.vmem(f'buffer_load_dwordx4 v[{d}:{d+3}], v{X0W}, {srd_s}, s{soff_s} offen {opt.touch_flags}', 'T')
    def mall_touch():
        for k in ['WO', 'W2', 'W4']:
            size = mats[k][1]; per = size // 256
            s = srds[k]
            e(f's_mul_i32 s{T0s}, s2, {per}')
            for i in range(per // 1024):
                if i: e(f's_add_u32 s{T0s}, s{T0s}, 1024')
                wide(f's[{s}:{s+3}]', T0s)
    def g_touch():
        e(f's_mul_i32 s{T0s}, s{S_G}, {16 * 57344}'); e(f's_mul_i32 s{T1s}, s{S_R}, 28672')
        e(f's_add_u32 s{T0s}, s{T0s}, s{T1s}'); e(f's_add_u32 s{T0s}, s{T0s}, {hex(G_OFF)}')
        for i in range(28):
            if i: e(f's_add_u32 s{T0s}, s{T0s}, 1024')
            wide(WS, T0s)
    def key(sx):
        k, p, c = sx.split(',')
        return (0, k, p, None if c == '-' else int(c))
    EPO = {'P3': 1, 'P4': 2, 'P5': 3, 'P7': 5}
    if opt.p7_self: del EPO['P7']
    nxt = 0
    for ev in events:
        L, kind, p, ci = ev
        if kind == 'B' and p in EPO:
            nch = NCH[p]
            if ci == 0:
                if p == 'P5': build_fh(L)
                poll({'P3': VFB, 'P4': VFS, 'P5': VFH, 'P7': VFB}[p], 1 + 6 * L + EPO[p])
                a_chunk(p, 0); a_chunk(p, 1); nxt = 2
            a.wait_vm(('A', p, ci))
            e('s_barrier')
            while nxt < nch and (nxt <= ci + 2 or nxt <= 3) and nxt <= ci + 2 + (1 if ci == 0 and False else 0):
                a_chunk(p, nxt); nxt += 1
        elif L == 0 and kind == 'B' and p == 'P1KV':
            a.wait_vm(('X', ci))
            if ci == 0: hstamp(a, opt, 14)
            if ci == 2: hstamp(a, opt, 15)
            e('s_barrier')
            if ci == 0: x_chunk(1, 1)
            if 1 <= ci <= 2: x_chunk(ci + 1)
            if ci == 3: x_tile()
        else:
            if ev == (0, 'E', 'P1KV', None): a.wait_vm('x')
            e('s_barrier')
        if opt.touch and opt.touch_at and ev == key(opt.touch_at): mall_touch()
        if opt.gtouch_at and ev == key(opt.gtouch_at) and not (opt.gtouch_parker and opt.park): g_touch()
    e('s_waitcnt vmcnt(0)')
    e('s_endpgm')


def gen_parker(a, opt, events, h):
    e = a.e
    a.c(f'--- parker {h}')
    plan = opt._plan
    W3S, W4S, CB6, CB7 = 40, 44, 64, 68
    QS = 48
    e(f's_mov_b32 s{QS}, s{S_PTR+2}'); e(f's_mov_b32 s{QS+1}, s{S_PTR+3}'); e(f's_mov_b32 s{QS+2}, {hex(512*1536*2)}'); e(f's_mov_b32 s{QS+3}, 0x20000')
    for s_, p_, size in ((W3S, S_PTR + 12, 512 * 1792 * 2), (W4S, S_PTR + 14, 1792 * 512 * 2)):
        e(f's_mov_b32 s{s_}, s{p_}'); e(f's_mov_b32 s{s_+1}, s{p_+1}'); e(f's_mov_b32 s{s_+2}, {hex(size)}'); e(f's_mov_b32 s{s_+3}, 0x20000')
    e(f'v_lshlrev_b32 v1, 4, v{V_LANE}')
    if WARM0[0]:
        e(f's_mul_i32 s33, s{S_R}, 49152')
        if h: e('s_add_u32 s33, s33, 24576')
        k_ = 0
        if h == 0:
            e(f's_lshl_b32 s34, s{S_G}, 18'); e(f's_lshl_b32 s35, s{S_R}, 13'); e('s_add_u32 s34, s34, s35')
            for i in range(8):
                a.vmem(f'buffer_load_dwordx4 v[{16+4*k_}:{19+4*k_}], v1, s[{S_X}:{S_X+3}], s34 offen', 'T'); k_ += 1
                e('s_add_u32 s34, s34, 1024')
        for i in range(24):
            a.vmem(f'buffer_load_dwordx4 v[{16+4*k_}:{19+4*k_}], v1, s[{QS}:{QS+3}], s33 offen', 'T'); k_ += 1
            e('s_add_u32 s33, s33, 1024')
    rm = 3 if opt.rot else 0
    for c in range(4):
        e(f's_lshl_b32 s{CB6+c}, s{S_RB2}, 1'); e(f's_and_b32 s{CB6+c}, s{CB6+c}, {rm}'); e(f's_xor_b32 s{CB6+c}, s{CB6+c}, {c}')
        e(f's_mul_i32 s{CB6+c}, s{CB6+c}, {128*3584}')
    for p_ in range(8):
        e(f's_and_b32 s{CB7+p_}, s{S_RB}, {rm}'); e(f's_lshl_b32 s{CB7+p_}, s{CB7+p_}, 1'); e(f's_xor_b32 s{CB7+p_}, s{CB7+p_}, {p_}')
        e(f's_mul_i32 s{CB7+p_}, s{CB7+p_}, {224*1024}')
    VN, VW, VL, X0, X1, X2 = 2, 4, 8, 11, 12, 13
    e(f'v_lshrrev_b32 v{X0}, 3, v{V_LANE}'); e(f'v_bfe_u32 v{X1}, v{X0}, 1, 1'); e(f'v_lshlrev_b32 v{X1}, 2, v{X1}')
    e(f'v_and_b32 v{X2}, 7, v{V_LANE}'); e(f'v_xor_b32 v{X2}, v{X2}, v{X1}')
    e(f'v_lshlrev_b32 v{VN}, 10, v{X0}'); e(f'v_lshl_add_u32 v{VN}, v{X2}, 4, v{VN}')
    e(f's_lshl_b32 s33, s{S_CB}, 7'); e(f'v_add_u32 v{VN}, s33, v{VN}'); e(f'v_add_u32 v{VN+1}, {hex(8192-1024)}, v{VN}')
    ps = [0, 1, 2, 3] if h == 0 else [4, 5, 6]
    M14 = (1 << 20) // 14 + 1
    e(f's_mul_i32 s33, s{S_CB2}, 224'); e(f's_mov_b32 s34, {hex(M14)}')
    for k, p_ in enumerate(ps):
        e(f'v_add_u32 v{X0}, {64*p_}, v{V_LANE}'); e(f'v_mul_lo_u32 v{X1}, v{X0}, s34'); e(f'v_lshrrev_b32 v{X1}, 20, v{X1}')
        e(f'v_mul_u32_u24 v{X2}, 14, v{X1}'); e(f'v_sub_u32 v{X2}, v{X0}, v{X2}')
        e(f'v_mul_u32_u24 v{VW+k}, 3584, v{X1}'); e(f'v_lshl_add_u32 v{VW+k}, v{X2}, 4, v{VW+k}'); e(f'v_add_u32 v{VW+k}, s33, v{VW+k}')
    e(f'v_lshlrev_b32 v{VL}, 4, v{V_LANE}'); e(f'v_add_u32 v{VL+1}, 0x10000, v{VL}'); e(f'v_add_u32 v{VL+2}, 0x20000, v{VL}')
    def wide(base_expr_emit, n):
        base_expr_emit()
        for i in range(n):
            if i: e('s_add_u32 s33, s33, 1024')
            a.vmem(f'buffer_load_dwordx4 v[{240+4*(i%4)}:{243+4*(i%4)}], v{VL}, {WS}, s33 offen', 'T')
    def touch_a0():
        wide(lambda: (e(f's_mul_i32 s33, s{S_G}, {18*16384}'), e(f's_mul_i32 s34, s{S_R}, 9216'), e('s_add_u32 s33, s33, s34'), e(f's_add_u32 s33, s33, {hex(A0_OFF)}') if A0_OFF else None), 9)
    def touch_lin(off, per_group):
        wide(lambda: (e(f's_mul_i32 s33, s{S_G}, {per_group}'), e(f's_mul_i32 s34, s{S_R}, {per_group // 32}'), e('s_add_u32 s33, s33, s34'), e(f's_add_u32 s33, s33, {hex(off)}')), per_group // 32 // 1024)
    if WARM0[0]:
        a.wait_vm_all()
        e('s_barrier')
        events = events[1:]
    def tkey(sx):
        k, p, c = sx.split(',')
        return (0, k, p, None if c == '-' else int(c))
    slots = list(range(56))
    held = {}
    pending = set()
    def do(actions):
        for act, s_ in actions:
            if act == 'park':
                if s_.kind == 'W3':
                    c_, rr_ = divmod(s_.srow, 128)
                    e(f's_add_u32 s33, s{CB6+c_}, {hex(rr_*3584)}')
                    regs = []
                    for k, p_ in enumerate(ps):
                        sl = slots.pop(0); regs.append((sl, p_))
                        a.vmem(f'buffer_load_dwordx4 v[{16+4*sl}:{19+4*sl}], v{VW+k}, s[{W3S}:{W3S+3}], s33 offen', id(s_))
                else:
                    srow = s_.srow if h == 0 else s_.srow2
                    p_, rr_ = divmod(srow, 224)
                    e(f's_add_u32 s33, s{CB7+p_}, {hex(rr_*1024)}')
                    regs = []
                    for k in range(2):
                        sl = slots.pop(0); regs.append((sl, 2 * h + k))
                        a.vmem(f'buffer_load_dwordx4 v[{16+4*sl}:{19+4*sl}], v{VN+k}, s[{W4S}:{W4S+3}], s33 offen offset:{k*1024}', id(s_))
                held[id(s_)] = regs
            else:
                a.wait_vm(id(s_))
                for sl, p_ in held.pop(id(s_)):
                    ad = s_.addr + p_ * 1024
                    e(f'ds_write_b128 v{VL + (ad >> 16)}, v[{16+4*sl}:{19+4*sl}] offset:{ad & 0xffff}')
                    slots.append(sl)
                pending.add((s_.layer, s_.phase, s_.chunk))
    for ev in events:
        L, kind, p, ci = ev
        if kind == 'B':
            do(plan.get(f'pre {L}.{p}.B{ci}', []))
            if (L, p, ci) in pending:
                e('s_waitcnt lgkmcnt(0)'); pending.clear()
            e('s_barrier')
            acts = plan.get(f'{L}.{p}.B{ci}', [])
        elif kind == 'E':
            e('s_barrier'); acts = plan.get(f'{L}.{p}.E', [])
        else:
            e('s_barrier'); acts = plan.get(f'{L}.{p}', [])
        do([x for x in acts if x[0] == 'unpark'])
        do([x for x in acts if x[0] == 'park'])
        if opt.pretouch and h == 1 and ev == tkey(opt.a2touch_at): touch_lin(A2_OFF, 262144)
        if opt.gtouch_parker and opt.gtouch_at and ev == tkey(opt.gtouch_at):
            wide(lambda: (e(f's_mul_i32 s33, s{S_G}, {16*57344}'), e(f's_mul_i32 s34, s{S_R}, 28672'), e('s_add_u32 s33, s33, s34'),
                          e(f's_add_u32 s33, s33, {hex(G_OFF + h * 14336)}')), 14)
        if opt.pretouch and ev == tkey(opt.a01touch_at):
            if h == 0:
                touch_a0(); touch_lin(ST_OFF, 32768)
            else:
                touch_lin(A1_OFF, 262144)
    e('s_waitcnt vmcnt(0) lgkmcnt(0)')
    e('s_endpgm')


def generate(opt):
    ATOMIC[0] = opt.kv_atomic
    WARM0[0] = 1 if (opt.warm0 and opt.park) else 0
    events = build_events(opt.stop)
    a = Asm(); a.opt = opt
    hdr = open(os.path.join(os.path.dirname(os.path.abspath(__file__)), 'header.txt')).read()
    out = [hdr.rstrip('\n')]
    out.append(f'; @launch grid=(256,1,1) block=({64*(8 if opt.park else 6)},1,1) lds={LDS_TOTAL}')
    out += ['.amdgcn_target "amdgcn-amd-amdhsa--gfx950"', '.text', f'.globl {KNAME}', '.p2align 8',
            f'.type {KNAME},@function', f'{KNAME}:']
    a.e('s_cmp_ge_u32 s2, 256')
    a.e('s_cbranch_scc1 L_EXIT')
    if opt.startdiag: a.e('s_memtime s[100:101]')
    if opt.dbgout >= 0 and opt.fine: a.e('s_memtime s[96:97]')
    if opt.wall:
        a.e('s_memrealtime s[18:19]') if False else None
    a.e(f's_load_dwordx16 s[{S_PTR}:{S_PTR+15}], s[0:1], 0')
    a.e(f's_load_dwordx4 s[{S_PTR+16}:{S_PTR+19}], s[0:1], 64')
    a.e(f's_load_dwordx2 s[{S_PTR+20}:{S_PTR+21}], s[0:1], 80')
    a.e('v_lshrrev_b32 v1, 6, v0')
    a.e('s_nop 0')
    if opt.prefetch_code:
        a.e('s_getpc_b64 s[34:35]')
        a.label('L_PC')
        a.e(f's_sub_u32 s34, s34, (L_PC - {KNAME})')
        a.e('s_subb_u32 s35, s35, 0')
        a.e('s_lshr_b32 s36, s2, 3')
        a.e('s_mul_i32 s36, s36, 2560')
        a.e('v_lshlrev_b32 v2, 7, v0')
        a.e('v_add_u32 v2, s36, v2')
        a.e(f's_mov_b32 s36, (L_CODE_END - {KNAME} - 4)')
        a.e('v_min_u32 v2, s36, v2')
        a.e('v_and_b32 v2, -4, v2')
        a.e('v_cmp_gt_u32 vcc, 20, v0')
        a.e('s_and_saveexec_b64 s[36:37], vcc')
        a.e('s_cbranch_execz L_NOPF')
        a.e('global_load_dword v255, v2, s[34:35]')
        a.label('L_NOPF')
        a.e('s_mov_b64 exec, s[36:37]')
    a.e(f'v_readfirstlane_b32 s{S_W}, v1')
    a.e(f'v_and_b32 v{V_LANE}, 63, v0')
    a.e(f's_getreg_b32 s{S_XCC}, hwreg(HW_REG_XCC_ID)')
    a.e(f's_and_b32 s{S_XCC}, s{S_XCC}, 7')
    a.e(f's_and_b32 s{S_G}, s2, 7')
    a.e(f's_lshr_b32 s{S_R}, s2, 3')
    a.e(f's_lshr_b32 s{S_RB}, s{S_R}, 3')
    a.e(f's_and_b32 s{S_CB}, s{S_R}, 7')
    a.e(f's_lshr_b32 s{S_RB2}, s{S_R}, 4')
    a.e(f's_and_b32 s{S_CB2}, s{S_R}, 15')
    a.e('s_waitcnt lgkmcnt(0)')
    if opt.ws_base:
        a.e(f's_add_u32 s{S_PTR+20}, s{S_PTR+20}, {hex(opt.ws_base)}')
        a.e(f's_addc_u32 s{S_PTR+21}, s{S_PTR+21}, 0')
    a.e(f's_add_u32 s34, s{S_PTR+20}, {hex(NONCE_OFF)}')
    a.e(f's_addc_u32 s35, s{S_PTR+21}, 0')
    a.e(f's_load_dword s{S_V}, s[34:35], 0')
    def srd(s, p, size):
        a.e(f's_mov_b32 s{s}, s{p}'); a.e(f's_mov_b32 s{s+1}, s{p+1}')
        a.e(f's_mov_b32 s{s+2}, {hex(size)}'); a.e(f's_mov_b32 s{s+3}, 0x20000')
    if opt.dbgout >= 0:
        a.e(f's_mov_b32 s86, s{S_PTR+18}'); a.e(f's_mov_b32 s87, s{S_PTR+19}')
    srd(S_WS, S_PTR + 20, WS_USED)
    srd(S_X, S_PTR + 0, 2048 * 512 * 2)
    srd(S_OUT, S_PTR + 16, 2048 * 512 * 2)
    a.e(f's_cmp_lt_u32 s{S_W}, 4')
    a.e('s_cbranch_scc1 L_COMPUTE')
    if opt.park:
        for wv in (6, 7):
            a.e(f's_cmp_eq_u32 s{S_W}, {wv}')
            a.e(f's_cbranch_scc0 L_NOTP{wv}')
            a.e('s_getpc_b64 s[34:35]')
            a.label(f'L_PCP{wv}')
            a.e(f's_add_u32 s34, s34, (L_PARKER{wv} - L_PCP{wv})')
            a.e('s_addc_u32 s35, s35, 0')
            a.e('s_setpc_b64 s[34:35]')
            a.label(f'L_NOTP{wv}')
    a.e(f's_cmp_eq_u32 s{S_W}, 5')
    a.e('s_cbranch_scc0 L_GOLOADER')
    a.e('s_getpc_b64 s[34:35]')
    a.label('L_PC3')
    a.e('s_add_u32 s34, s34, (L_TOUCHER - L_PC3)')
    a.e('s_addc_u32 s35, s35, 0')
    a.e('s_setpc_b64 s[34:35]')
    a.label('L_GOLOADER')
    a.e('s_getpc_b64 s[34:35]')
    a.label('L_PC2')
    a.e('s_add_u32 s34, s34, (L_LOADER - L_PC2)')
    a.e('s_addc_u32 s35, s35, 0')
    a.e('s_setpc_b64 s[34:35]')
    a.label('L_EXIT')
    a.e('s_endpgm')
    a.label('L_COMPUTE')
    a.vm = []
    if opt.stop is not None and opt.stop[0] == 0: cev = events
    else: cev = [e for e in build_events(None) if e[0] == 0]
    rest = gen_compute(a, opt, cev)
    assert not rest, rest
    a.label('L_LOADER')
    a.vm = []
    a.fstamp = lambda p: None
    gen_loader(a, opt, events)
    a.label('L_TOUCHER')
    a.vm = []
    gen_toucher(a, opt, events)
    if opt.park:
        for wv in (6, 7):
            a.label(f'L_PARKER{wv}')
            a.vm = []
            gen_parker(a, opt, events, wv - 6)
    a.label('L_CODE_END')
    out.append(a.text())
    out += ['.section .rodata,"a"', '.p2align 6', f'.amdhsa_kernel {KNAME}',
            '  .amdhsa_next_free_vgpr 256', '  .amdhsa_next_free_sgpr 102', '  .amdhsa_accum_offset 256',
            '  .amdhsa_group_segment_fixed_size 0', '  .amdhsa_kernarg_size 88', '  .amdhsa_user_sgpr_count 2',
            '  .amdhsa_user_sgpr_kernarg_segment_ptr 1', '  .amdhsa_system_sgpr_workgroup_id_x 1', '.end_amdhsa_kernel']
    return '\n'.join(out) + '\n'


if __name__ == '__main__':
    import argparse
    ap = argparse.ArgumentParser()
    ap.add_argument('-o', default='interleave_layers__linear_attn_block__mixer_s_mlp__prompt.s')
    ap.add_argument('--stop', default=None)
    ap.add_argument('--timing', action='store_true')
    ap.add_argument('--safe', action='store_true')
    ap.add_argument('--set', action='append', default=[])
    ap.add_argument('--fine', default=None)
    args = ap.parse_args()
    opt = Opt()
    if args.stop:
        l, p = args.stop.split(','); opt.stop = (int(l), p)
    opt.timing = args.timing; opt.force_safe = args.safe; opt.fine = args.fine
    opt.caps = dict(Opt.caps); opt.park_w3 = dict(Opt.park_w3); opt.park_caps = dict(Opt.park_caps)
    for kv in args.set:
        k, v = kv.split('=')
        if k.startswith('pk3:'): opt.park_w3[k[4:]] = int(v)
        elif k.startswith('pk4:'): opt.park_caps[k[4:]] = int(v)
        elif '.' in k or k in ('X1', 'X2'): opt.caps[k] = int(v)
        else:
            try: setattr(opt, k, int(v))
            except ValueError: setattr(opt, k, v.replace(':', ','))
    open(args.o, 'w').write(generate(opt))
    print('written', args.o)
    if os.environ.get('SCHED'):
        import itertools
        for k, g in itertools.groupby(opt._log, key=lambda x: x[0]):
            g = list(g); d = {}
            for x in g: d[(x[1], x[2], x[3])] = d.get((x[1], x[2], x[3]), 0) + 1
            print(k, ' '.join(f'{a_}.{b_}.c{c_}x{n_}' for (a_, b_, c_), n_ in d.items()), 'FORCED' if any(x[4] for x in g) else '')
```

```python
import sys, os, struct

KNAME = 'interleave_layers__linear_attn_block__mixer_s_mlp__prompt_kernel'

class Opt:
    stop = None
    timing = False
    fine = None
    force_safe = False
    window = 40
    window0 = 60
    caps = {'P1KV.E': 64, 'P1Q.B0': 16, 'P1Q.B1': 16, 'P1Q.E': 32,
            'P3.B0': 0, 'P3.B1': 32, 'P3.B2': 16, 'P3.B3': 16,
            'P4.B1': 32, 'P4.B2': 16, 'P4.B3': 16,
            'P5.B1': 35, 'P5.B2': 14, 'P5.B3': 21,
            'P6.B0': 35, 'P6.B1': 28, 'P6.B2': 28, 'P6.B3': 28, 'P6.E': 64,
            'P7.B*': 16, 'P7.E': 64}
    cap0 = 0
    touch = True
    dbg_w_same = 0
    w_nt = 0
    g_cold = 0
    touch_at = 'B,P1Q,0'
    rot = 1
    warm0 = 0
    cs_late = 1
    poll_sleep = 0
    dbgout = -1
    dbgwg = 100
    pretouch = 1
    a2touch_at = 'B,P6,3'
    a01touch_at = 'B,P1KV,2'
    gtouch_parker = 1
    park = 1
    park_w3 = {'P1KV.E': 2, 'X1': 2, 'P1Q.E': 8}
    park_caps = {'P6.B1': 0, 'P6.B2': 0, 'P6.B3': 0, 'P6.E': 0}
    unpark_max = 6
    kv_atomic = 1
    wall = 0
    p7_self = 1
    dbg_skip = ''
    ws_base = 0
    late_a = 0
    kvflag_at = 5
    up3 = 1
    startdiag = 0
    gtouch_at = 'B,P5,2'
    dbg_a_same = 0
    touch_flags = ''
    spin = 1 << 17
    prefetch_code = True
    D_kv = 4
    D_p6 = 4

MB = 1 << 20
A0_OFF = 0
A1_OFF = 0x280000
A2_OFF = 0x480000
G_OFF = 0x680000
ST_OFF = 0xD80000
KVP_OFF = 0xDC0000
KVP_L = 0x88000
KVA_OFF = 0xED0000
LSTRIDE = 0x780000
FL_OFF = 0xF00000
LF_OFF = FL_OFF
KVF_OFF = FL_OFF + 4096
HF_OFF = FL_OFF + 8192
XID_OFF = FL_OFF + 29696
NONCE_OFF = FL_OFF + 30720
TM_OFF = FL_OFF + 32768
CSP_OFF = FL_OFF + 32768 + 65536
CSF_OFF = CSP_OFF + 65536
WS_USED = CSF_OFF + 32768
KVREC = 2176

LDS_TOTAL = 163840
AREG = 0
SCR = 49152
CSL = None
WRING = 65536
RING = 93952
PHI = 53248
CSL = WRING + 28672
CSC = WRING + RING
assert CSC + 1088 <= LDS_TOTAL

EPS = 1e-5

def f2u(x):
    return struct.unpack('<I', struct.pack('<f', x))[0]

class Asm:
    def __init__(self):
        self.lines = []; self.nlabel = 0; self.vm = []
        self.fstamp = lambda p: None
    def e(self, s): self.lines.append('  ' + s)
    def c(self, s): self.lines.append('  ; ' + s)
    def label(self, name): self.lines.append(name + ':')
    def newlabel(self, base='L'):
        self.nlabel += 1
        return f'{base}_{self.nlabel}'
    def vmem(self, s, tag=None):
        self.e(s); self.vm.append(tag)
    def count_vm(self, tag):
        if tag not in self.vm: return None
        idx = max(i for i, t in enumerate(self.vm) if t == tag)
        n = len(self.vm) - 1 - idx
        assert n <= 63, n
        self.vm = self.vm[idx + 1:]
        return n
    def wait_vm(self, tag):
        n = self.count_vm(tag)
        if n is not None: self.e(f's_waitcnt vmcnt({n})')
    def wait_vm_all(self):
        self.e('s_waitcnt vmcnt(0)'); self.vm = []
    def text(self): return '\n'.join(self.lines)

def set_exec(a, lo, hi=None):
    a.e(f's_mov_b32 exec_lo, {hex(lo)}')
    a.e(f's_mov_b32 exec_hi, {hex(lo if hi is None else hi)}')

S_V = 3
S_WS = 4; S_X = 8; S_OUT = 12; S_PA = 16
S_G, S_R, S_W, S_RB, S_CB, S_RB2, S_CB2 = 20, 21, 22, 23, 24, 25, 26
S_MODE, S_L, S_LOFF, S_EP, S_B, S_XCC = 27, 28, 29, 30, 31, 32
S_T0, S_T1, S_T2, S_T3, S_T4, S_T5 = 33, 34, 35, 36, 37, 38
S_SPIN, S_THR = 39, 40
S_AOFF, S_AOFF2, S_ASTR = 41, 42, 43
S_C1, S_C2, S_ONE2 = 44, 46, 48
S_LOG2E, S_EPS6 = 50, 51
S_W4K = 52
S_RH, S_CH = 53, 54
S_U0, S_U1, S_U2, S_U3, S_U4 = 55, 56, 57, 58, 59
S_COLD = 62
S_GH = 63
S_RA = 86
S_RK = 90
S_P7 = 94
S_ROTK = 45
S_PTR = 64
S_WQKV, S_WO, S_W1, S_W2, S_W3, S_W4 = 40, 44, 48, 52, 56, 60
S_CSRD = 88

V_LANE = 0
V_AS, V_AB, V_AG, V_P1 = 1, 2, 3, 4
V_AH = 5
V_STS, V_STB, V_STST, V_XRM, V_TST = 9, 10, 11, 12, 13
V_FSB, V_FBS, V_FSS, V_FH, V_FOWN, V_FKV = 14, 15, 16, 17, 18, 19
V_T128, V_T64, V_T224, V_TN, V_TA = 20, 21, 22, 23, 24
V_T0, V_T1, V_T2 = 25, 26, 27
V_TB = 28
V_RES = 32
V_MEAN, V_RS = 48, 49
V_X = 50
V_PQ = 56
V_ACC = 64
V_A = 128

PHASES = ['P1KV', 'P1Q', 'P3', 'P4', 'P5', 'P6', 'P7']
NCH = {'P1KV': 4, 'P1Q': 2, 'P3': 4, 'P4': 4, 'P5': 4, 'P6': 4, 'P7': 14}

ATOMIC = [1]
WARM0 = [1]
NOE = ('P3', 'P4', 'P5')

class Slab:
    def __init__(self, layer, phase, chunk, kind, size, srow, npieces, srow2=None):
        self.layer, self.phase, self.chunk, self.kind = layer, phase, chunk, kind
        self.size, self.srow, self.npieces, self.srow2 = size, srow, npieces, srow2
        self.addr = None

def w4_tile_seq():
    seq = []
    for c in range(8):
        for i in [0, 1, 2, 3, 4, 5, 7, 8, 9, 10, 11, 12, 6, 13]:
            seq.append(14 * c + i)
    return seq

def build_slabs(layer):
    ph = {}
    def simple(phase, kind, nchunk, per, size, rows, np_):
        ph[phase] = [[Slab(layer, phase, c, kind, size, (c * per + j) * rows, np_) for j in range(per)] for c in range(nchunk)]
    simple('P1KV', 'KV', 4, 4, 4096, 32, 4)
    simple('P1Q', 'Q', 2, 4, 4096, 64, 4)
    simple('P3', 'WO', 4, 4, 4096, 32, 4)
    simple('P4', 'W1', 4, 4, 4096, 32, 4)
    simple('P5', 'W2', 4, 4, 4096, 32, 4)
    simple('P6', 'W3', 4, 4, 7168, 32, 7)
    seq = w4_tile_seq()
    ph['P7'] = [[Slab(layer, 'P7', c, 'W4', 4096, seq[2 * (c * 4 + j)] * 16, 4, srow2=seq[2 * (c * 4 + j) + 1] * 16)
                 for j in range(4)] for c in range(14)]
    pos = PHI
    for p in PHASES:
        for ch in ph[p]:
            for s in ch:
                if pos + s.size > RING: pos = 0
                s.addr = WRING + pos
                pos += s.size
    assert pos == PHI, pos
    return ph

def build_events(stop):
    ev = [(0, 'X', 'W0', None)] if WARM0[0] else []
    for L in range(2):
        for p in PHASES:
            for c in range(NCH[p]): ev.append((L, 'B', p, c))
            if p not in NOE: ev.append((L, 'E', p, None))
            if p == 'P1KV': ev.append((L, 'X', 'X1', None))
            if p == 'P1Q' and not ATOMIC[0]: ev.append((L, 'X', 'X2', None))
            if stop == (L, p): return ev
    return ev

WS = f's[{S_WS}:{S_WS+3}]'

def thr_value(a, dst, epoch, xcc=False):
    if isinstance(epoch, int):
        a.e(f's_add_u32 s{dst}, s{S_B}, {8*epoch}')
    else:
        a.e(f's_lshl_b32 s{dst}, {epoch}, 3')
        a.e(f's_add_u32 s{dst}, s{dst}, s{S_B}')
    if xcc: a.e(f's_add_u32 s{dst}, s{dst}, s{S_XCC}')

def emit_poll(a, vaddr, epoch, soff='0', opt=Opt, x4=False, tbase=None):
    L = a.newlabel('POLL'); D = a.newlabel('POLLD')
    thr_value(a, S_THR, epoch)
    a.e(f's_mov_b32 s{S_SPIN}, {opt.spin}')
    a.label(L)
    if x4:
        T = tbase
        a.e(f'buffer_load_dwordx4 v[{T}:{T+3}], v{vaddr}, {WS}, {soff} offen sc1')
        a.e('s_waitcnt vmcnt(0)')
        for i in range(4): a.e(f'v_subrev_u32 v{T+i}, s{S_THR}, v{T+i}')
        a.e(f'v_max_u32 v{T}, v{T}, v{T+1}')
        a.e(f'v_max_u32 v{T+2}, v{T+2}, v{T+3}')
        a.e(f'v_max_u32 v{V_T0}, v{T}, v{T+2}')
    else:
        a.e(f'buffer_load_dword v{V_T2}, v{vaddr}, {WS}, {soff} offen sc1')
        a.e('s_waitcnt vmcnt(0)')
        a.e(f'v_subrev_u32 v{V_T0}, s{S_THR}, v{V_T2}')
    a.vm = []
    a.e(f'v_cmp_gt_u32 vcc, 0x80, v{V_T0}')
    a.e(f's_sub_u32 s{S_SPIN}, s{S_SPIN}, 1')
    a.e(f's_cbranch_scc1 {D}')
    a.e('s_cmp_eq_u64 vcc, -1')
    if opt.poll_sleep:
        a.e(f's_cbranch_scc1 {D}')
        a.e(f's_sleep {opt.poll_sleep}')
        a.e(f's_branch {L}')
    else:
        a.e(f's_cbranch_scc0 {L}')
    a.label(D)

def emit_mode_stores(a, stores, cold=False):
    F = a.newlabel('STF'); D = a.newlabel('STD')
    if getattr(a, 'opt', None) is not None and a.opt.pretouch and a.opt.park: cold = False
    a.e(f's_cmp_eq_u32 s{S_COLD if cold else S_MODE}, 0')
    a.e(f's_cbranch_scc1 {F}')
    for s in stores: a.e(s + ' sc1')
    a.e(f's_branch {D}')
    a.label(F)
    for s in stores: a.e(s)
    a.label(D)
    for s in stores: a.vm.append('st')

def emit_signal(a, epoch):
    thr_value(a, S_THR, epoch, xcc=True)
    a.e(f'v_mov_b32 v{V_T0}, s{S_THR}')
    a.wait_vm_all()
    a.e('s_mov_b64 exec, 1')
    emit_mode_stores(a, [f'buffer_store_dword v{V_T0}, v{V_FOWN}, {WS}, 0 offen'])
    a.e('s_mov_b64 exec, -1')

def emit_xreduce(a, regs, tmp, over16=True):
    for r, t in zip(regs, tmp): a.e(f'v_mov_b32 v{t}, v{r}')
    a.e('s_nop 1')
    for r, t in zip(regs, tmp): a.e(f'v_permlane32_swap_b32 v{r}, v{t}')
    a.e('s_nop 0')
    for r, t in zip(regs, tmp): a.e(f'v_add_f32 v{r}, v{r}, v{t}')
    if over16:
        for r, t in zip(regs, tmp): a.e(f'v_mov_b32 v{t}, v{r}')
        a.e('s_nop 1')
        for r, t in zip(regs, tmp): a.e(f'v_permlane16_swap_b32 v{r}, v{t}')
        a.e('s_nop 0')
        for r, t in zip(regs, tmp): a.e(f'v_add_f32 v{r}, v{r}, v{t}')

def pk(op, d, x, y, z=None, mods=''):
    s = f'v_pk_{op}_f32 v[{d}:{d+1}], {x}, {y}'
    if z is not None: s += f', {z}'
    return s + mods
def vp(r): return f'v[{r}:{r+1}]'

def emit_stats_partial32(a, vals, t0, st_soff, cold=False):
    s, q = t0, t0 + 2
    a.e(pk('add', s, vp(vals), vp(vals + 2)))
    a.e(pk('mul', q, vp(vals), vp(vals)))
    a.e(pk('fma', q, vp(vals + 2), vp(vals + 2), vp(q)))
    for i in range(4, 16, 2):
        a.e(pk('add', s, vp(s), vp(vals + i)))
        a.e(pk('fma', q, vp(vals + i), vp(vals + i), vp(q)))
    a.e(f'v_add_f32 v{t0}, v{s}, v{s+1}')
    a.e(f'v_add_f32 v{t0+1}, v{q}, v{q+1}')
    emit_xreduce(a, [t0, t0 + 1], [t0 + 4, t0 + 5], over16=False)
    set_exec(a, 0xffffffff, 0)
    emit_mode_stores(a, [f'buffer_store_dwordx2 v[{t0}:{t0+1}], v{V_STST}, {WS}, {st_soff} offen'], cold=cold)
    a.e('s_mov_b64 exec, -1')

def emit_stats_from_sums(a, s, ss, out_a, out_b, tmp, double=False, keep=None):
    mean, var = s, ss
    a.e(f'v_mul_f32 v{mean}, {hex(f2u(1.0/512))}, v{s}')
    a.e(f'v_mul_f32 v{var}, {hex(f2u(1.0/512))}, v{ss}')
    a.e(f'v_fma_f32 v{var}, -v{mean}, v{mean}, v{var}')
    a.e(f'v_max_f32 v{var}, 0, v{var}')
    a.e(f'v_add_f32 v{tmp}, {hex(f2u(EPS))}, v{var}')
    a.e(f'v_rsq_f32 v{tmp}, v{tmp}')
    a.e('s_nop 0')
    if double:
        a.e(f'v_mul_f32 v{tmp+1}, v{tmp}, v{tmp}')
        a.e(f'v_mul_f32 v{tmp+1}, v{tmp+1}, v{var}')
        a.e(f'v_add_f32 v{tmp+1}, {hex(f2u(EPS))}, v{tmp+1}')
        a.e(f'v_rsq_f32 v{tmp+1}, v{tmp+1}')
        a.e('s_nop 0')
        a.e(f'v_mul_f32 v{out_a}, v{tmp}, v{tmp+1}')
    else:
        a.e(f'v_mov_b32 v{out_a}, v{tmp}')
    if keep:
        a.e(f'v_mov_b32 v{keep[0]}, v{mean}')
        a.e(f'v_mov_b32 v{keep[1]}, v{tmp}')
    a.e(f'v_mul_f32 v{out_b}, v{out_a}, v{mean}')
    a.e(f'v_sub_f32 v{out_b}, 0, v{out_b}')

def emit_sum_partials(a, raw, n):
    k = n
    step = 2
    regs = [raw + i for i in range(0, n, 2)]
    while len(regs) > 1:
        nxt = []
        for i in range(0, len(regs), 2):
            a.e(pk('add', regs[i], vp(regs[i]), vp(regs[i + 1])))
            nxt.append(regs[i])
        regs = nxt

def emit_lnfold(a, acc, cs, av, bv, n):
    for i in range(0, n, 2):
        a.e(pk('mul', acc + i, vp(acc + i), vp(av), mods=' op_sel_hi:[1,0]'))
    for i in range(0, n, 2):
        a.e(pk('fma', acc + i, vp(cs + i), vp(bv), vp(acc + i), mods=' op_sel_hi:[1,0,1]'))

def emit_gelu(a, x, n, tmp, c1reg):
    blk = 16
    a.e(f'v_mov_b32 v{c1reg}, s{S_C1}')
    for b0 in range(0, n, blk):
        m = min(blk, n - b0); t = tmp
        for i in range(0, m, 2): a.e(pk('mul', t + i, vp(x + b0 + i), vp(x + b0 + i)))
        for i in range(0, m, 2): a.e(pk('fma', t + i, vp(t + i), f's[{S_C2}:{S_C2+1}]', vp(c1reg), mods=' op_sel_hi:[1,1,0]'))
        for i in range(0, m, 2): a.e(pk('mul', t + i, vp(t + i), vp(x + b0 + i)))
        for i in range(m): a.e(f'v_exp_f32 v{t+i}, v{t+i}')
        for i in range(0, m, 2): a.e(pk('add', t + i, vp(t + i), f's[{S_ONE2}:{S_ONE2+1}]'))
        for i in range(m): a.e(f'v_rcp_f32 v{t+i}, v{t+i}')
        for i in range(0, m, 2): a.e(pk('mul', x + b0 + i, vp(x + b0 + i), vp(t + i)))

def emit_phi(a, regs, tmp):
    for i, r in enumerate(regs): a.e(f'v_min_f32 v{tmp+i}, 0, v{r}')
    for i, r in enumerate(regs): a.e(f'v_mul_f32 v{tmp+i}, s{S_LOG2E}, v{tmp+i}')
    for i, r in enumerate(regs): a.e(f'v_exp_f32 v{tmp+i}, v{tmp+i}')
    for i, r in enumerate(regs): a.e(f'v_max_f32 v{r}, 0, v{r}')
    for i, r in enumerate(regs): a.e(f'v_add_f32 v{r}, v{r}, v{tmp+i}')
    for i, r in enumerate(regs): a.e(f'v_add_f32 v{r}, s{S_EPS6}, v{r}')

def emit_pack(a, dst, src, n):
    for i in range(0, n, 2): a.e(f'v_cvt_pk_bf16_f32 v{dst+i//2}, v{src+i}, v{src+i+1}')

def emit_pack32(a, dst, src):
    for k, j in enumerate([0, 2, 1, 3]):
        a.e(f'v_cvt_pk_bf16_f32 v{dst+2*k}, v{src+4*j}, v{src+4*j+1}')
        a.e(f'v_cvt_pk_bf16_f32 v{dst+2*k+1}, v{src+4*j+2}, v{src+4*j+3}')

class TrBase:
    def __init__(self, a, lane_reg, nt):
        self.a, self.lane_reg, self.nt, self.cur = a, lane_reg, nt, None
    def off(self, addr, span):
        if self.cur is None or addr < self.cur or addr + span - self.cur > 65535:
            self.cur = addr
            for t in range(self.nt):
                if t == 0:
                    self.a.e(f'v_add_u32 v{V_TB}, {hex(addr)}, v{self.lane_reg}')
                else:
                    self.a.e(f'v_xor_b32 v{V_TB+t}, {t << 5}, v{self.lane_reg}')
                    self.a.e(f'v_add_u32 v{V_TB+t}, {hex(addr)}, v{V_TB+t}')
        return addr - self.cur

def emit_gemm16(a, bar, phase, chunks, CT, kind, acc_of, a_of, a_wait, a_issue, wr, S, normal=False, extra=None, a_lds=None):
    R, LA = 2, 4
    ks = []
    for ci, ch in enumerate(chunks):
        first = True
        for s in ch:
            ks.append((ci, s.addr, first)); first = False
            if kind == '64': ks.append((ci, s.addr + 2048, False))
    KS = len(ks)
    if kind == '128':
        trb = TrBase(a, V_T128, 4); second = 2048; span = 4096; tb = lambda t: V_TB + t; timm = lambda t: 0
    elif kind == '64':
        trb = TrBase(a, V_T64, 2); second = 1024; span = 2048; tb = lambda t: V_TB + t; timm = lambda t: 0
    else:
        trb = TrBase(a, V_T224, 1); second = 3584; span = 7168; tb = lambda t: V_TB; timm = lambda t: 32 * t
    total = KS * CT
    def slot(n): return wr + 4 * (n % S)
    def pre_issue(n):
        j, t = divmod(n, CT)
        ci, addr, first = ks[j]
        if t == 0 and first:
            a.fstamp(phase); bar(('B', phase, ci)); a.fstamp(phase)
        imm = trb.off(addr, span) if t == 0 else addr - trb.cur
        return imm + timm(t), t
    def rd(n, half, info):
        imm, t = info
        a.e(f'ds_read_b64_tr_b16 v[{slot(n)+2*half}:{slot(n)+2*half+1}], v{tb(t)} offset:{imm + (second if half else 0)}')
    def mfma(m, r):
        j, t = divmod(m, CT)
        d = acc_of(r, t); c = '0' if j == 0 else f'v[{d}:{d+3}]'
        w = f'v[{slot(m)}:{slot(m)+3}]'; x = f'v[{a_of(r,j)}:{a_of(r,j)+3}]'
        a.e(f'v_mfma_f32_16x16x32_bf16 v[{d}:{d+3}], ' + (f'{x}, {w}' if normal else f'{w}, {x}') + f', {c}')
    lq = []
    def need(tags):
        idx = max((i for i, g in enumerate(lq) if g in tags), default=None)
        if idx is None: return None
        n_ = len(lq) - 1 - idx
        del lq[:idx + 1]
        assert n_ <= 15
        return n_
    def pre2(n):
        info = pre_issue(n)
        j, t = divmod(n, CT)
        if a_lds and t == 0:
            for s_ in a_lds(j):
                a.e(s_); lq.append(('A', j))
        return info
    def rd2(n, half, info):
        rd(n, half, info); lq.append(('W', n))
    for n in range(min(LA, total)):
        info = pre2(n); rd2(n, 0, info); rd2(n, 1, info)
    for n in range(total):
        j, t = divmod(n, CT)
        lg = need({('W', n), ('A', j)})
        vmn = a_wait(j) if t == 0 else None
        if t == 0 and j in (0, 1): a.fstamp(phase)
        parts = ([f'vmcnt({vmn})'] if vmn is not None else []) + ([f'lgkmcnt({lg})'] if lg is not None else [])
        if parts: a.e('s_waitcnt ' + ' '.join(parts))
        nx = n + LA; info = None
        mfma(n, 0)
        if nx < total:
            info = pre2(nx); rd2(nx, 0, info)
        mfma(n, 1)
        if nx < total: rd2(nx, 1, info)
        a_issue(j, t)
        if extra and t == CT - 1: extra(j)
    a.fstamp(phase); bar(('E', phase, None)); a.fstamp(phase)
    a.e('s_nop 7')

def emit_gemm32(a, bar, phase, chunks, acc, wr, tail=None, a_pieces=None):
    LA, S = 4, 5
    nch = len(chunks)
    total = nch * 8
    trb = TrBase(a, V_TN, 1)
    def slot(n): return wr + 8 * (n % S)
    def reads(n):
        c, rem = divmod(n, 8); ksl, s = divmod(rem, 2)
        out = []
        if rem == 0:
            if a_pieces: a.wait_vm(('A', c))
            a.fstamp(phase); bar(('B', phase, c)); a.fstamp(phase)
        sl = chunks[c][ksl]
        imm = trb.off(sl.addr, 4096)
        out.append(f'ds_read_b128 v[{slot(n)}:{slot(n)+3}], v{V_TA} offset:{(c % 4) * 16384 + ksl * 1024 + s * 512}')
        out.append(f'ds_read_b64_tr_b16 v[{slot(n)+4}:{slot(n)+5}], v{V_TB} offset:{imm + s * 1024}')
        out.append(f'ds_read_b64_tr_b16 v[{slot(n)+6}:{slot(n)+7}], v{V_TB} offset:{imm + s * 1024 + 2048}')
        return out
    queue = []; nxt = 2; passed = 0
    if a_pieces:
        for c in (0, 1):
            for t in a_pieces(c): t()
    for n in range(LA):
        for s in reads(n): a.e(s)
    for n in range(total):
        lg = 3 * (min(n - 1 + LA, total - 1) - n)
        a.e(f's_waitcnt lgkmcnt({lg})')
        c = '0' if n == 0 else f'v[{acc}:{acc+15}]'
        a.e(f'v_mfma_f32_32x32x16_bf16 v[{acc}:{acc+15}], v[{slot(n)+4}:{slot(n)+7}], v[{slot(n)}:{slot(n)+3}], {c}')
        nx = n + LA
        if nx < total:
            if nx % 8 == 0: passed = nx // 8
            for s in reads(nx): a.e(s)
        if a_pieces:
            while nxt < nch and (nxt <= passed + 2 or nxt <= 3) and len(queue) < 4:
                queue += list(a_pieces(nxt)); nxt += 1
            if queue: queue.pop(0)()
        if tail and n == max(total - 24, 0): tail()
    a.fstamp(phase)
    if phase not in NOE:
        bar(('E', phase, None))
    a.fstamp(phase)
    a.e('s_nop 7'); a.e('s_nop 3')


def gen_compute(a, opt, events):
    evq = list(events)
    tm = [0]
    def tmreg(i):
        assert i < 22, i
        return 64 + i
    def dump(regs):
        sk = a.newlabel('TMS')
        a.e('s_waitcnt lgkmcnt(0)')
        a.e(f's_cmp_eq_u32 s{S_W}, 0')
        a.e(f's_cbranch_scc0 {sk}')
        if opt.dbgout >= 0 and opt.fine:
            a.e(f's_cmp_eq_u32 s2, {opt.dbgwg}')
            a.e(f's_cbranch_scc0 {sk}')
            for i, r in enumerate(regs):
                a.e(f's_sub_u32 s{S_T0}, s{r}, s85')
                a.e(f'v_mov_b32 v{V_T0}, s{S_T0}')
                a.e(f'v_mov_b32 v{V_T1}, {4*i}')
                a.e(f'global_store_dword v{V_T1}, v{V_T0}, s[86:87]')
        elif opt.dbgout >= 0 and opt.timing:
            a.e(f's_cmp_eq_u32 s2, {opt.dbgwg}')
            a.e(f's_cbranch_scc0 {sk}')
            a.e(f's_cmp_eq_u32 s{S_L}, {opt.dbgout}')
            a.e(f's_cbranch_scc0 {sk}')
            sel = [1, 2, 3, 4, 5, 6, 8, 9, 11, 12, 14, 15, 16, 17, 18, 20]
            for i, k in enumerate(sel):
                if k >= len(regs): continue
                a.e(f's_sub_u32 s{S_T0}, s{regs[k]}, s{regs[0]}')
                a.e(f'v_mov_b32 v{V_T0}, s{S_T0}')
                a.e(f'v_mov_b32 v{V_T1}, {4*i}')
                a.e(f'global_store_dword v{V_T1}, v{V_T0}, s[86:87]')
        else:
            a.e(f's_lshl_b32 s{S_T0}, s2, 8')
            a.e(f's_lshl_b32 s{S_T1}, s{S_L}, 7')
            if opt.timing: a.e(f's_add_u32 s{S_T0}, s{S_T0}, s{S_T1}')
            a.e(f's_add_u32 s{S_T0}, s{S_T0}, {hex(TM_OFF)}')
            for i, r in enumerate(regs):
                a.e(f'v_mov_b32 v{V_T0}, s{r}')
                a.e(f'v_mov_b32 v{V_T1}, {4*i}')
                a.e(f'buffer_store_dword v{V_T0}, v{V_T1}, {WS}, s{S_T0} offen')
        a.label(sk)
        a.e('s_waitcnt vmcnt(0)')
    fs = [0]
    def freg(i): return 64 + 2 * i
    cnt_ = [0]
    def fs_skip(i):
        cnt_[0] += 1
        return cnt_[0] in (2, 4, 5, 6, 8, 10)
    def fstamp(phase):
        if opt.fine == phase and fs[0] < 10 and not (opt.dbgout >= 0 and fs_skip(fs[0])):
            a.e(f's_memtime s[{freg(fs[0])}:{freg(fs[0])+1}]'); fs[0] += 1
    a.fstamp = fstamp
    def stamp():
        if opt.timing:
            a.e('s_memtime s[60:61]')
            a.e('s_waitcnt lgkmcnt(0)')
            a.e(f's_mov_b32 s{tmreg(tm[0])}, s60'); tm[0] += 1

    T0, T1, T2, TB = V_T0, V_T1, V_T2, V_TB
    if opt.wall:
        a.e('s_memrealtime s[60:61]'); a.e('s_waitcnt lgkmcnt(0)'); a.e('s_mov_b32 s84, s60')
        a.e('s_memtime s[60:61]'); a.e('s_waitcnt lgkmcnt(0)'); a.e('s_mov_b32 s85, s60')
    if opt.dbgout >= 0 and opt.fine: a.e('s_mov_b32 s85, s96')
    a.c('--- compute: early address setup')
    if opt.startdiag:
        a.e('s_memtime s[98:99]'); a.e('s_waitcnt lgkmcnt(0)'); a.e('s_sub_u32 s98, s98, s100'); a.e('s_mov_b32 s85, s98')
    stamp()
    a.e(f's_lshr_b32 s{S_RH}, s{S_W}, 1')
    a.e(f's_and_b32 s{S_CH}, s{S_W}, 1')
    a.e(f's_lshl_b32 s{S_W4K}, s{S_W}, 12')
    a.e(f's_lshl_b32 s{S_U0}, s{S_G}, 4')
    a.e(f's_lshl_b32 s{S_T1}, s{S_RB}, 2')
    a.e(f's_add_u32 s{S_U0}, s{S_U0}, s{S_T1}')
    a.e(f's_lshl_b32 s{S_T1}, s{S_RH}, 1')
    a.e(f's_add_u32 s{S_U2}, s{S_U0}, s{S_T1}')
    a.e(f's_add_u32 s{S_U0}, s{S_U0}, s{S_W}')
    a.e(f's_lshl_b32 s{S_U1}, s{S_G}, 4')
    a.e(f's_lshl_b32 s{S_T2}, s{S_RB2}, 3')
    a.e(f's_add_u32 s{S_U1}, s{S_U1}, s{S_T2}')
    a.e(f's_lshl_b32 s{S_T2}, s{S_W}, 1')
    a.e(f's_add_u32 s{S_U1}, s{S_U1}, s{S_T2}')
    a.e(f'v_and_b32 v{T0}, 15, v{V_LANE}')
    a.e(f'v_and_b32 v{T1}, 0x30, v{V_LANE}')
    a.e(f's_lshl_b32 s{S_ROTK}, s{S_RB2}, 1')
    a.e(f's_add_u32 s{S_ROTK}, s{S_ROTK}, s{S_CB2}')
    a.e(f's_and_b32 s{S_ROTK}, s{S_ROTK}, {3 if opt.rot else 0}')
    a.e(f'v_and_b32 v{T2}, 31, v{V_LANE}')
    a.e(f'v_lshrrev_b32 v{TB}, 5, v{V_LANE}')
    a.e(f'v_lshlrev_b32 v{V_XRM}, 10, v{T2}')
    a.e(f'v_lshl_add_u32 v{V_XRM}, v{TB}, 3, v{V_XRM}')
    a.e(f's_lshl_b32 s{S_T2}, s{S_U2}, 14')
    a.e(f's_lshl_b32 s{S_T3}, s{S_CB}, 7')
    a.e(f's_add_u32 s{S_T2}, s{S_T2}, s{S_T3}')
    a.e(f's_lshl_b32 s{S_T3}, s{S_CH}, 6')
    a.e(f's_add_u32 s{S_T2}, s{S_T2}, s{S_T3}')
    a.e(f'v_add_u32 v{V_XRM}, s{S_T2}, v{V_XRM}')
    PA = f's[{S_PA}:{S_PA+3}]'
    def p1_load(j):
        if j % 4 == 0:
            a.e(f's_mov_b32 s{S_AOFF}, s{S_RK + j // 4}')
            a.e(f's_add_u32 s{S_AOFF2}, s{S_AOFF}, 0x4000')
        for r in range(2):
            a.vmem(f'buffer_load_dwordx4 v[{V_A+(r*16+j)*4}:{V_A+(r*16+j)*4+3}], v{V_P1}, {PA}, s{S_AOFF if r == 0 else S_AOFF2} offen sc1', ('A', j))
        if j % 4 != 3:
            a.e(f's_add_u32 s{S_AOFF}, s{S_AOFF}, s{S_ASTR}')
            a.e(f's_add_u32 s{S_AOFF2}, s{S_AOFF2}, s{S_ASTR}')
    a.e('s_waitcnt lgkmcnt(0)')
    a.e(f's_mul_i32 s{S_B}, s{S_V}, 0x9e3779b1')
    a.e(f's_add_u32 s{S_B}, s{S_B}, 0x7f4a7c15')
    a.e(f's_and_b32 s{S_B}, s{S_B}, 0xffffff00')
    a.c('--- compute: address setup')
    a.e(f'v_lshlrev_b32 v{V_X}, 4, v{V_LANE}')
    a.e(f's_lshl_b32 s{S_T2}, s{S_U1}, 14')
    a.e(f'v_add_u32 v{V_AB}, s{S_T2}, v{V_X}')
    a.e(f'v_lshlrev_b32 v{V_STS}, 4, v{T2}')
    a.e(f'v_lshl_add_u32 v{V_STS}, v{TB}, 11, v{V_STS}')
    a.e(f's_lshl_b32 s{S_T2}, s{S_U2}, 11')
    a.e(f'v_add_u32 v{V_STS}, s{S_T2}, v{V_STS}')
    a.e(f'v_lshlrev_b32 v{V_STST}, 4, v{T2}')
    a.e(f's_lshl_b32 s{S_T4}, s{S_CB}, 9')
    a.e(f's_add_u32 s{S_T2}, s{S_T2}, s{S_T4}')
    a.e(f's_lshl_b32 s{S_T4}, s{S_CH}, 3')
    a.e(f's_add_u32 s{S_T2}, s{S_T2}, s{S_T4}')
    a.e(f'v_add_u32 v{V_STST}, s{S_T2}, v{V_STST}')
    a.e(f's_lshl_b32 s{S_T3}, s{S_CB}, 1')
    a.e(f's_add_u32 s{S_T3}, s{S_T3}, s{S_CH}')
    a.e(f'v_lshlrev_b32 v{V_STB}, 4, v{T0}')
    a.e(f'v_lshl_add_u32 v{V_STB}, v{T1}, 6, v{V_STB}')
    a.e(f's_lshl_b32 s{S_T2}, s{S_U1}, 11')
    a.e(f'v_add_u32 v{V_STB}, s{S_T2}, v{V_STB}')
    a.e(f'v_lshrrev_b32 v{V_TST}, 4, v{T2}')
    a.e(f'v_lshlrev_b32 v{V_TST}, 14, v{V_TST}')
    a.e(f'v_lshl_add_u32 v{V_TST}, v{TB}, 8, v{V_TST}')
    a.e(f'v_lshl_add_u32 v{V_TST}, v{T0}, 4, v{V_TST}')
    a.e(f's_lshl_b32 s{S_T2}, s{S_U2}, 14')
    a.e(f's_lshl_b32 s{S_T4}, s{S_T3}, 10')
    a.e(f's_add_u32 s{S_T2}, s{S_T2}, s{S_T4}')
    a.e(f'v_add_u32 v{V_TST}, s{S_T2}, v{V_TST}')
    a.e(f's_lshl_b32 s{S_T2}, s{S_G}, 9')
    a.e(f's_add_u32 s{S_T2}, s{S_T2}, {hex(LF_OFF)}')
    a.e(f's_lshl_b32 s{S_T3}, s{S_W}, 7')
    a.e(f's_add_u32 s{S_T3}, s{S_T3}, s{S_T2}')
    a.e(f's_lshl_b32 s{S_T4}, s{S_R}, 2')
    a.e(f's_add_u32 s{S_T4}, s{S_T4}, s{S_T3}')
    a.e(f'v_mov_b32 v{V_FOWN}, s{S_T4}')
    a.e(f'v_and_b32 v{V_X+1}, 7, v{V_LANE}')
    a.e(f'v_lshlrev_b32 v{V_X+1}, 2, v{V_X+1}')
    a.e(f'v_bfe_u32 v{V_X+2}, v{V_LANE}, 3, 1')
    a.e(f'v_lshl_add_u32 v{V_X+1}, v{V_X+2}, 7, v{V_X+1}')
    a.e(f's_lshl_b32 s{S_T4}, s{S_RB2}, 1')
    a.e(f's_add_u32 s{S_T4}, s{S_T4}, s{S_RH}')
    a.e(f's_lshl_b32 s{S_T4}, s{S_T4}, 5')
    a.e(f's_lshl_b32 s{S_T5}, s{S_CH}, 8')
    a.e(f's_add_u32 s{S_T4}, s{S_T4}, s{S_T5}')
    a.e(f's_add_u32 s{S_T4}, s{S_T4}, s{S_T2}')
    a.e(f'v_add_u32 v{V_FSB}, s{S_T4}, v{V_X+1}')
    a.e(f's_lshl_b32 s{S_T4}, s{S_CB2}, 7')
    a.e(f's_add_u32 s{S_T4}, s{S_T4}, {hex(KVF_OFF)}')
    a.e(f'v_lshlrev_b32 v{V_FKV}, 2, v{T2}')
    a.e(f'v_add_u32 v{V_FKV}, s{S_T4}, v{V_FKV}')
    a.e(f'v_bfe_u32 v{V_X+1}, v{V_LANE}, 2, 2')
    a.e(f'v_lshrrev_b32 v{V_X+2}, 4, v{V_LANE}')
    a.e(f'v_lshl_add_u32 v{V_X+3}, v{V_X+2}, 2, v{V_X+1}')
    a.e(f'v_and_b32 v{V_X+4}, 3, v{V_LANE}')
    a.e(f'v_lshlrev_b32 v{V_X+4}, 3, v{V_X+4}')
    a.e(f'v_bfe_u32 v{V_X+5}, v{V_X+3}, 1, 2')
    a.e(f'v_lshl_add_u32 v{V_T128}, v{V_X+5}, 5, v{V_X+4}')
    a.e(f'v_lshl_add_u32 v{V_T128}, v{V_X+3}, 7, v{V_T128}')
    a.e(f'v_bfe_u32 v{V_X+5}, v{V_X+3}, 2, 1')
    a.e(f'v_lshl_add_u32 v{V_T64}, v{V_X+5}, 5, v{V_X+4}')
    a.e(f'v_lshl_add_u32 v{V_T64}, v{V_X+3}, 6, v{V_T64}')
    a.e(f'v_mul_u32_u24 v{V_T224}, 224, v{V_X+3}')
    a.e(f'v_add_u32 v{V_T224}, v{V_T224}, v{V_X+4}')
    a.e(f'v_lshrrev_b32 v{V_X+3}, 1, v{V_X+2}')
    a.e(f'v_lshl_add_u32 v{V_X+3}, v{V_X+3}, 2, v{V_X+1}')
    a.e(f'v_and_b32 v{V_X+5}, 1, v{V_X+2}')
    a.e(f's_lshl_b32 s{S_T4}, s{S_CH}, 1')
    a.e(f'v_add_u32 v{V_X+5}, s{S_T4}, v{V_X+5}')
    a.e(f'v_and_b32 v{V_X+1}, 2, v{V_X+1}')
    a.e(f'v_xor_b32 v{V_X+5}, v{V_X+5}, v{V_X+1}')
    a.e(f'v_lshl_add_u32 v{V_TN}, v{V_X+5}, 5, v{V_X+4}')
    a.e(f'v_lshl_add_u32 v{V_TN}, v{V_X+3}, 7, v{V_TN}')
    a.e(f'v_bfe_u32 v{V_TA}, v{V_LANE}, 4, 1')
    a.e(f's_lshl_b32 s{S_T4}, s{S_RH}, 1')
    a.e(f'v_add_u32 v{V_TA}, s{S_T4}, v{V_TA}')
    a.e(f'v_lshlrev_b32 v{V_TA}, 12, v{V_TA}')
    a.e(f'v_lshl_add_u32 v{V_TA}, v{TB}, 8, v{V_TA}')
    a.e(f'v_lshl_add_u32 v{V_TA}, v{T0}, 4, v{V_TA}')
    if AREG: a.e(f'v_add_u32 v{V_TA}, {hex(AREG)}, v{V_TA}')
    c1 = -2.0 * 0.7978845608028654 * 1.4426950408889634
    c2 = c1 * 0.044715
    for s, v in [(S_C1, c1), (S_C2, c2), (S_C2 + 1, c2), (S_ONE2, 1.0), (S_ONE2 + 1, 1.0),
                 (S_LOG2E, 1.4426950408889634), (S_EPS6, 1e-6)]:
        a.e(f's_mov_b32 s{s}, {hex(f2u(v))}')
    a.e(f's_mov_b32 s{S_L}, 0')
    a.e(f's_mov_b32 s{S_LOFF}, 0')
    a.e(f's_mov_b32 s{S_EP}, 1')
    a.e(f's_mov_b32 s{S_MODE}, 1')
    a.e(f's_mov_b32 s{S_COLD}, 1')
    a.e(f's_lshl_b32 s{S_GH}, s{S_G}, 1')
    a.e(f's_add_u32 s{S_GH}, s{S_GH}, 1')
    a.e(f's_lshl_b32 s{S_GH}, s{S_GH}, 14')

    if WARM0[0]:
        assert evq[0][2] == 'W0'; evq.pop(0)
        a.e('s_barrier')
    LOOP = 'LAYER_LOOP'
    a.label(LOOP)
    slabs = build_slabs(0)

    def run_layer():
        def bar(ev):
            exp = evq.pop(0)
            assert exp[1:] == ev or (exp[1] == 'X' and ev[0] == 'X' and exp[2] == ev[1]), (exp, ev)
            a.e('s_barrier')
        def soff(reg, base, extra=0, gh=False):
            if gh: a.e(f's_add_u32 s{reg}, s{S_GH}, {hex(base + extra)}')
            else: a.e(f's_mov_b32 s{reg}, {hex(base + extra)}')
        def done(p):
            if opt.stop == (1, p):
                a.e(f's_cmp_eq_u32 s{S_L}, 1')
                a.e('s_cbranch_scc1 L_END_COMPUTE')
            return opt.stop == (0, p)
        def ep(k):
            a.e(f's_add_u32 s{S_T5}, s{S_EP}, {k}')
            return f's{S_T5}'

        a.c('=== P1KV')
        WR1 = 96; D1 = 116; ONES = 124; D2 = V_PQ
        for i in range(4): a.e(f'v_mov_b32 v{ONES+i}, 0x3f803f80')
        l0 = a.newlabel('KVL0'); ljoin = a.newlabel('KVJ')
        a.e(f's_cmp_eq_u32 s{S_L}, 0')
        a.e(f's_cbranch_scc1 {l0}')
        saved_ev = list(evq)
        emit_poll(a, V_FSB, f's{S_EP}', opt=opt)
        for j in range(opt.D_kv): p1_load(j)
        stamp()
        a.fstamp('P1KV')
        def kv_issue(j, t):
            if t == 1:
                if j + opt.D_kv < 16:
                    p1_load(j + opt.D_kv)
                elif j + opt.D_kv == 16:
                    soff(S_T0, ST_OFF)
                    a.vmem(f'buffer_load_dwordx4 v[{D1}:{D1+3}], v{V_STB}, {WS}, s{S_T0} offen sc1', 'st')
                    a.vmem(f'buffer_load_dwordx4 v[{D1+4}:{D1+7}], v{V_STB}, {WS}, s{S_T0} offen offset:512 sc1', 'st')
                    a.vmem(f'buffer_load_dwordx4 v[{D2}:{D2+3}], v{V_STB}, {WS}, s{S_T0} offen offset:256 sc1', 'st')
                    a.vmem(f'buffer_load_dwordx4 v[{D2+4}:{D2+7}], v{V_STB}, {WS}, s{S_T0} offen offset:768 sc1', 'st')
        emit_gemm16(a, bar, 'P1KV', slabs['P1KV'], 4, '128',
                    acc_of=lambda r, t: V_ACC + (r * 4 + t) * 4, a_of=lambda r, j: V_A + (r * 16 + j) * 4,
                    a_wait=lambda j: a.count_vm(('A', j)), a_issue=kv_issue, wr=WR1, S=5, normal=True)
        a.e(f's_branch {ljoin}')
        a.label(l0)
        evq[:] = saved_ev
        a.vm = []
        fs[0] = 0
        cnt_[0] = 0
        a.fstamp('P1KV')
        tm[0] -= 1 if opt.timing else 0
        stamp()
        VLA = V_X
        a.e(f'v_and_b32 v{T0}, 15, v{V_LANE}')
        a.e(f'v_lshrrev_b32 v{T1}, 4, v{V_LANE}')
        a.e(f'v_xor_b32 v{T1}, v{T1}, v{T0}')
        a.e(f'v_lshlrev_b32 v{T1}, 4, v{T1}')
        a.e(f's_lshl_b32 s{S_T0}, s{S_W}, 5')
        a.e(f'v_add_u32 v{T0}, s{S_T0}, v{T0}')
        a.e(f'v_lshlrev_b32 v{T0}, 8, v{T0}')
        for j in range(4):
            a.e(f'v_xor_b32 v{VLA+j}, {64*j}, v{T1}')
            a.e(f'v_add_u32 v{VLA+j}, v{VLA+j}, v{T0}')
        def kv_lds(j):
            c = j // 4
            return [f'ds_read_b128 v[{V_A+(r*16+j)*4}:{V_A+(r*16+j)*4+3}], v{VLA + j % 4} offset:{AREG + (c & 1) * 32768 + r * 4096}' for r in range(2)]
        def kv_extra(j):
            for r in range(2):
                x = f'v[{V_A+(r*16+j)*4}:{V_A+(r*16+j)*4+3}]'
                c1_ = '0' if j == 0 else f'v[{D1+4*r}:{D1+4*r+3}]'
                c2_ = '0' if j == 0 else f'v[{D2+4*r}:{D2+4*r+3}]'
                a.e(f'v_mfma_f32_16x16x32_bf16 v[{D1+4*r}:{D1+4*r+3}], v[{ONES}:{ONES+3}], {x}, {c1_}')
                a.e(f'v_mfma_f32_16x16x32_bf16 v[{D2+4*r}:{D2+4*r+3}], {x}, {x}, {c2_}')
        emit_gemm16(a, bar, 'P1KV', slabs['P1KV'], 4, '128',
                    acc_of=lambda r, t: V_ACC + (r * 4 + t) * 4, a_of=lambda r, j: V_A + (r * 16 + j) * 4,
                    a_wait=lambda j: None, a_issue=lambda j, t: None, wr=WR1, S=5, normal=True, extra=kv_extra, a_lds=kv_lds)
        a.label(ljoin)
        stamp()
        a.wait_vm_all()
        SUM = [(V_X, V_X + 1), (V_X + 2, V_X + 3)]
        l1 = a.newlabel('S1'); le = a.newlabel('SE')
        a.e(f's_cmp_eq_u32 s{S_L}, 0')
        a.e(f's_cbranch_scc0 {l1}')
        a.e(f'v_and_b32 v{T0}, 31, v{V_LANE}')
        a.e(f'v_lshlrev_b32 v{T0}, 7, v{T0}')
        a.e(f'v_lshrrev_b32 v{T1}, 5, v{V_LANE}')
        a.e(f'v_lshl_add_u32 v{T0}, v{T1}, 3, v{T0}')
        a.e(f's_lshl_b32 s{S_T0}, s{S_RH}, 12')
        a.e(f's_lshl_b32 s{S_T1}, s{S_CH}, 6')
        a.e(f's_add_u32 s{S_T0}, s{S_T0}, s{S_T1}')
        if AREG: a.e(f's_add_u32 s{S_T0}, s{S_T0}, {hex(AREG)}')
        a.e(f'v_add_u32 v{T0}, s{S_T0}, v{T0}')
        for j in range(4):
            a.e(f'ds_read_b64 v[{V_RES+4*j}:{V_RES+4*j+1}], v{T0} offset:{16*j}')
        a.e('s_waitcnt lgkmcnt(0)')
        for j in range(4):
            b = V_RES + 4 * j
            a.e(f'v_and_b32 v{b+3}, 0xffff0000, v{b+1}')
            a.e(f'v_lshlrev_b32 v{b+2}, 16, v{b+1}')
            a.e(f'v_and_b32 v{b+1}, 0xffff0000, v{b}')
            a.e(f'v_lshlrev_b32 v{b}, 16, v{b}')
        a.e(f'v_and_b32 v{T0}, 3, v{V_LANE}')
        a.e(f'v_bfe_u32 v{T1}, v{V_LANE}, 2, 2')
        a.e(f'v_lshrrev_b32 v{T2}, 4, v{V_LANE}')
        for r in range(2):
            s_, ss_ = SUM[r]
            a.e(f'v_mov_b32 v{s_}, v{D1+4*r}')
            a.e(f'v_mov_b32 v{ss_}, v{D2+4*r}')
            for i in range(1, 4):
                a.e(f'v_cmp_eq_u32 vcc, {i}, v{T0}')
                a.e('s_nop 1')
                a.e(f'v_cndmask_b32 v{ss_}, v{ss_}, v{D2+4*r+i}, vcc')
            a.e(f'v_cmp_eq_u32 vcc, v{T1}, v{T2}')
            a.e('s_nop 1')
            a.e(f'v_cndmask_b32 v{ss_}, 0, v{ss_}, vcc')
        emit_xreduce(a, [SUM[0][1], SUM[1][1]], [T0, T1])
        a.e(f's_branch {le}')
        a.label(l1)
        for r, raw in enumerate([D1, D2]):
            emit_sum_partials(a, raw, 8)
            a.e(f'v_mov_b32 v{SUM[r][0]}, v{raw}')
            a.e(f'v_mov_b32 v{SUM[r][1]}, v{raw+1}')
        emit_xreduce(a, [SUM[0][0], SUM[0][1], SUM[1][0], SUM[1][1]], [WR1, WR1 + 1, WR1 + 2, WR1 + 3])
        a.label(le)
        CSR = 120
        a.e(f'v_and_b32 v{T0}, 15, v{V_LANE}')
        a.e(f'v_lshlrev_b32 v{T0}, 2, v{T0}')
        a.e(f'v_add_u32 v{T0}, {hex(CSC)}, v{T0}')
        a.e(f'v_and_b32 v{T1}, 0x30, v{V_LANE}')
        for t in range(4):
            a.e(f'ds_read_b32 v{CSR+t}, v{T0} offset:{64*t}')
        KEEP = [(V_PQ + 0, V_PQ + 2), (V_PQ + 4, V_PQ + 6)]
        for r in range(2):
            emit_stats_from_sums(a, SUM[r][0], SUM[r][1], KEEP[r][0], KEEP[r][1], WR1)
        AI = [WR1, WR1 + 8]; BI = [WR1 + 4, WR1 + 12]
        for r in range(2):
            for i in range(4):
                a.e(f'ds_bpermute_b32 v{AI[r]+i}, v{T1}, v{KEEP[r][0]} offset:{4*i}')
                a.e(f'ds_bpermute_b32 v{BI[r]+i}, v{T1}, v{KEEP[r][1]} offset:{4*i}')
        a.e('s_waitcnt vmcnt(0) lgkmcnt(0)'); a.vm = []
        CSE = WR1 + 16
        for t in range(4): a.e(f'v_mov_b32 v{CSE+2*t}, v{CSR+t}')
        for r in range(2):
            for t in range(4):
                for i in (0, 2):
                    d = V_ACC + (r * 4 + t) * 4 + i
                    a.e(pk('mul', d, vp(d), vp(AI[r] + i)))
            for t in range(4):
                for i in (0, 2):
                    d = V_ACC + (r * 4 + t) * 4 + i
                    a.e(pk('fma', d, vp(BI[r] + i), vp(CSE + 2 * t), vp(d), mods=' op_sel_hi:[1,0,1]'))
        regs = [V_ACC + (r * 4 + t) * 4 + i for r in range(2) for t in range(2) for i in range(4)]
        emit_phi(a, regs, WR1)
        for t in range(4):
            b0 = V_ACC + t * 4; b1 = V_ACC + (4 + t) * 4
            a.e(f'v_cvt_pk_bf16_f32 v{b0}, v{b0}, v{b0+1}')
            a.e(f'v_cvt_pk_bf16_f32 v{b0+1}, v{b0+2}, v{b0+3}')
            a.e(f'v_cvt_pk_bf16_f32 v{b0+2}, v{b1}, v{b1+1}')
            a.e(f'v_cvt_pk_bf16_f32 v{b0+3}, v{b1+2}, v{b1+3}')
        a.e('s_nop 1')
        KVD = V_ACC + 16
        for h in range(2):
            a.e(f'v_mfma_f32_16x16x32_bf16 v[{KVD+4*h}:{KVD+4*h+3}], v[{V_ACC+4*h}:{V_ACC+4*h+3}], v[{V_ACC+8+4*h}:{V_ACC+8+4*h+3}], 0')
            a.e(f'v_mfma_f32_16x16x32_bf16 v[{KVD+8+4*h}:{KVD+8+4*h+3}], v[{V_ACC+4*h}:{V_ACC+4*h+3}], v[{ONES}:{ONES+3}], 0')
        a.e(f's_lshl_b32 s{S_T0}, s{S_W}, 11')
        a.e(f's_add_u32 s{S_T0}, s{S_T0}, {hex(SCR)}')
        a.e(f'v_lshlrev_b32 v{T0}, 4, v{V_LANE}')
        a.e(f'v_add_u32 v{T0}, s{S_T0}, v{T0}')
        a.e(f's_lshl_b32 s{S_T0}, s{S_W}, 7')
        a.e(f's_add_u32 s{S_T0}, s{S_T0}, {hex(SCR + 8192)}')
        a.e(f'v_add_u32 v{T2}, s{S_T0}, v{T1}')
        a.e('s_nop 4')
        a.e(f'ds_write_b128 v{T0}, v[{KVD}:{KVD+3}]')
        a.e(f'ds_write_b128 v{T0}, v[{KVD+4}:{KVD+7}] offset:1024')
        set_exec(a, 0x00010001)
        a.e(f'ds_write_b128 v{T2}, v[{KVD+8}:{KVD+11}]')
        a.e(f'ds_write_b128 v{T2}, v[{KVD+12}:{KVD+15}] offset:64')
        a.e('s_mov_b64 exec, -1')
        a.e('s_waitcnt lgkmcnt(0)')
        bar(('X', 'X1'))
        sk = a.newlabel('KVST')
        a.e(f's_cmp_lt_u32 s{S_W}, 2')
        a.e(f's_cbranch_scc0 {sk}')
        if opt.kv_atomic:
            a.e(f's_lshl_b32 s{S_T0}, s{S_W}, 10')
            a.e(f's_add_u32 s{S_T0}, s{S_T0}, {hex(SCR)}')
            a.e(f'v_lshlrev_b32 v{T0}, 2, v{V_LANE}')
            a.e(f'v_add_u32 v{T2}, s{S_T0}, v{T0}')
            a.e(f's_lshl_b32 s{S_T0}, s{S_W}, 6')
            a.e(f's_add_u32 s{S_T0}, s{S_T0}, {hex(SCR + 8192)}')
            a.e(f'v_add_u32 v{V_X}, s{S_T0}, v{T0}')
            KB = V_ACC
            for ww in range(4):
                for i in range(4):
                    a.e(f'ds_read_b32 v{KB+4*ww+i}, v{T2} offset:{ww*2048+256*i}')
                if ww == 2: a.e('s_waitcnt lgkmcnt(4)')
            for ww in range(4):
                a.e(f'ds_read_b32 v{KB+16+ww}, v{V_X} offset:{ww*128}')
            a.e(f's_mul_i32 s{S_T0}, s{S_CB2}, {KVREC}')
            a.e(f's_mul_i32 s{S_T1}, s{S_L}, {16*KVREC}')
            a.e(f's_add_u32 s{S_T0}, s{S_T0}, s{S_T1}')
            a.e(f's_add_u32 s{S_T0}, s{S_T0}, {hex(KVA_OFF)}')
            a.e(f's_lshl_b32 s{S_T1}, s{S_W}, 10')
            a.e(f's_add_u32 s{S_T1}, s{S_T1}, s{S_T0}')
            a.e(f's_lshl_b32 s{S_T2}, s{S_W}, 6')
            a.e(f's_add_u32 s{S_T2}, s{S_T2}, s{S_T0}')
            a.e(f's_add_u32 s{S_T2}, s{S_T2}, 2048')
            a.e('s_waitcnt lgkmcnt(0)')
            for i in (0, 2):
                a.e(pk('add', KB + i, vp(KB + i), vp(KB + 4 + i)))
                a.e(pk('add', KB + 8 + i, vp(KB + 8 + i), vp(KB + 12 + i)))
                a.e(pk('add', KB + i, vp(KB + i), vp(KB + 8 + i)))
            a.e(pk('add', KB + 16, vp(KB + 16), vp(KB + 18)))
            a.e(f'v_add_f32 v{KB+16}, v{KB+16}, v{KB+17}')
            for i in range(4):
                a.e(f'buffer_atomic_add_f32 v{KB+i}, v{T0}, {WS}, s{S_T1} offen offset:{256*i}')
            a.e('s_mov_b64 exec, 0xffff')
            a.e(f'buffer_atomic_add_f32 v{KB+16}, v{T0}, {WS}, s{S_T2} offen')
            a.e('s_mov_b64 exec, -1')
        else:
            a.e(f's_lshl_b32 s{S_T0}, s{S_W}, 10')
            a.e(f's_add_u32 s{S_T0}, s{S_T0}, {hex(SCR)}')
            a.e(f'v_lshlrev_b32 v{T0}, 4, v{V_LANE}')
            a.e(f'v_add_u32 v{T2}, s{S_T0}, v{T0}')
            a.e(f's_lshl_b32 s{S_T0}, s{S_W}, 6')
            a.e(f's_add_u32 s{S_T0}, s{S_T0}, {hex(SCR + 8192)}')
            a.e(f'v_add_u32 v{V_X}, s{S_T0}, v{T1}')
            KB = V_ACC
            for ww in range(4):
                a.e(f'ds_read_b128 v[{KB+4*ww}:{KB+4*ww+3}], v{T2} offset:{ww*2048}')
                a.e(f'ds_read_b128 v[{KB+16+4*ww}:{KB+16+4*ww+3}], v{V_X} offset:{ww*128}')
            a.e(f's_lshl_b32 s{S_T0}, s{S_CB2}, 4')
            a.e(f's_lshl_b32 s{S_T1}, s{S_G}, 1')
            a.e(f's_add_u32 s{S_T0}, s{S_T0}, s{S_T1}')
            a.e(f's_add_u32 s{S_T0}, s{S_T0}, s{S_RB2}')
            a.e(f's_mul_i32 s{S_T0}, s{S_T0}, {KVREC}')
            a.e(f's_add_u32 s{S_T0}, s{S_T0}, s{S_LOFF}')
            a.e(f's_add_u32 s{S_T0}, s{S_T0}, {hex(KVP_OFF)}')
            a.e(f's_lshl_b32 s{S_T1}, s{S_W}, 10')
            a.e(f's_add_u32 s{S_T1}, s{S_T1}, s{S_T0}')
            a.e(f's_lshl_b32 s{S_T2}, s{S_W}, 6')
            a.e(f's_add_u32 s{S_T2}, s{S_T2}, s{S_T0}')
            a.e(f's_add_u32 s{S_T2}, s{S_T2}, 2048')
            a.e('s_waitcnt lgkmcnt(0)')
            for base in (KB, KB + 16):
                for i in range(0, 4, 2):
                    a.e(pk('add', base + i, vp(base + i), vp(base + 4 + i)))
                    a.e(pk('add', base + 8 + i, vp(base + 8 + i), vp(base + 12 + i)))
                    a.e(pk('add', base + i, vp(base + i), vp(base + 8 + i)))
            a.e(f'buffer_store_dwordx4 v[{KB}:{KB+3}], v{T0}, {WS}, s{S_T1} offen sc1')
            set_exec(a, 0x00010001)
            a.e(f'buffer_store_dwordx4 v[{KB+16}:{KB+19}], v{T1}, {WS}, s{S_T2} offen sc1')
            a.e('s_mov_b64 exec, -1')
        a.e(f's_lshl_b32 s{S_T0}, s{S_L}, 11')
        a.e(f's_lshl_b32 s{S_T1}, s{S_CB2}, 7')
        a.e(f's_add_u32 s{S_T0}, s{S_T0}, s{S_T1}')
        a.e(f's_lshl_b32 s{S_T1}, s{S_W}, 6')
        a.e(f's_add_u32 s{S_T0}, s{S_T0}, s{S_T1}')
        a.e(f's_lshl_b32 s{S_T1}, s{S_G}, 3')
        a.e(f's_add_u32 s{S_T0}, s{S_T0}, s{S_T1}')
        a.e(f's_lshl_b32 s{S_T1}, s{S_RB2}, 2')
        a.e(f's_add_u32 s{S_T0}, s{S_T0}, s{S_T1}')
        a.e(f's_add_u32 s{S_T0}, s{S_T0}, {hex(KVF_OFF)}')
        a.e(f'v_mov_b32 v{V_X+4}, s{S_T0}')
        a.label(sk)
        a.vm = []
        stamp()
        if done('P1KV'): return True

        a.c('=== P1Q')
        QCS = V_ACC + 16
        a.e(f'v_and_b32 v{T1}, 0x30, v{V_LANE}')
        a.e(f'v_add_u32 v{T1}, {hex(CSC + 256)}, v{T1}')
        a.e(f'ds_read_b128 v[{QCS}:{QCS+3}], v{T1}')
        a.e(f'ds_read_b128 v[{QCS+4}:{QCS+7}], v{T1} offset:64')
        a.e('s_waitcnt lgkmcnt(0)')
        QAB = [(V_ACC + 24, V_ACC + 26), (V_ACC + 28, V_ACC + 30)]
        for r in range(2):
            a.e(f'v_mov_b32 v{QAB[r][0]}, v{KEEP[r][0]}')
            a.e(f'v_mov_b32 v{QAB[r][1]}, v{KEEP[r][1]}')
        def q_issue(j, t):
            if j == opt.kvflag_at and t == 1:
                fk = a.newlabel('KVFL')
                a.e(f's_cmp_lt_u32 s{S_W}, 2')
                a.e(f's_cbranch_scc0 {fk}')
                thr_value(a, S_THR, 1, xcc=True)
                a.e(f'v_mov_b32 v{V_X+5}, s{S_THR}')
                a.e('s_waitcnt vmcnt(0)')
                a.e('s_mov_b64 exec, 1')
                a.e(f'buffer_store_dword v{V_X+5}, v{V_X+4}, {WS}, 0 offen sc1')
                a.e('s_mov_b64 exec, -1')
                a.label(fk)
        emit_gemm16(a, bar, 'P1Q', slabs['P1Q'], 2, '64',
                    acc_of=lambda r, t: V_ACC + (r * 2 + t) * 4, a_of=lambda r, j: V_A + (r * 16 + j) * 4,
                    a_wait=lambda j: None, a_issue=q_issue, wr=96, S=8)
        for r in range(2):
            for t in range(2):
                emit_lnfold(a, V_ACC + (r * 2 + t) * 4, QCS + 4 * t, QAB[r][0], QAB[r][1], 4)
        emit_phi(a, [V_ACC + i for i in range(16)], 96)
        for r in range(2):
            for h in range(2):
                emit_pack(a, V_PQ + (r * 2 + h) * 2, V_ACC + (r * 2 + h) * 4, 4)
        stamp()
        sk = a.newlabel('MODE')
        a.e(f's_cmp_eq_u32 s{S_L}, 0')
        a.e(f's_cbranch_scc0 {sk}')
        a.e(f'v_and_b32 v{T1}, 31, v{V_LANE}')
        a.e(f'v_lshlrev_b32 v{T1}, 2, v{T1}')
        a.e(f's_lshl_b32 s{S_T0}, s{S_G}, 7')
        a.e(f's_add_u32 s{S_T0}, s{S_T0}, {hex(XID_OFF)}')
        emit_poll(a, T1, 0, soff=f's{S_T0}', opt=opt)
        a.e(f'v_and_b32 v{T2}, 7, v{T2}')
        a.e(f'v_cmp_eq_u32 vcc, s{S_XCC}, v{T2}')
        a.e('s_nop 1')
        a.e('s_cmp_eq_u64 vcc, -1')
        a.e(f's_cselect_b32 s{S_MODE}, 0, 1')
        if opt.force_safe: a.e(f's_mov_b32 s{S_MODE}, 1')
        a.label(sk)
        a.e(f's_lshl_b32 s{S_T0}, s{S_L}, 11')
        emit_poll(a, V_FKV, 1, soff=f's{S_T0}', opt=opt)
        stamp()
        RB = V_A + 64
        if opt.kv_atomic:
            a.e(f's_mul_i32 s{S_T0}, s{S_CB2}, {KVREC}')
            a.e(f's_mul_i32 s{S_T1}, s{S_L}, {16*KVREC}')
            a.e(f's_add_u32 s{S_T0}, s{S_T0}, s{S_T1}')
            a.e(f's_add_u32 s{S_T0}, s{S_T0}, {hex(KVA_OFF)}')
            a.e(f'v_lshlrev_b32 v{T0}, 4, v{V_LANE}')
            a.e(f'v_and_b32 v{T1}, 0x30, v{V_LANE}')
            a.vmem(f'buffer_load_dwordx4 v[{RB}:{RB+3}], v{T0}, {WS}, s{S_T0} offen sc1', 'kp')
            a.vmem(f'buffer_load_dwordx4 v[{RB+4}:{RB+7}], v{T0}, {WS}, s{S_T0} offen offset:1024 sc1', 'kp')
            a.vmem(f'buffer_load_dwordx4 v[{RB+8}:{RB+11}], v{T1}, {WS}, s{S_T0} offen offset:2048 sc1', 'kp')
            a.vmem(f'buffer_load_dwordx4 v[{RB+12}:{RB+15}], v{T1}, {WS}, s{S_T0} offen offset:2112 sc1', 'kp')
            a.wait_vm_all()
        else:
            a.e(f's_lshl_b32 s{S_T0}, s{S_CB2}, 4')
            a.e(f's_lshl_b32 s{S_T1}, s{S_W}, 2')
            a.e(f's_add_u32 s{S_T0}, s{S_T0}, s{S_T1}')
            a.e(f's_mul_i32 s{S_T0}, s{S_T0}, {KVREC}')
            a.e(f's_add_u32 s{S_T0}, s{S_T0}, s{S_LOFF}')
            a.e(f's_add_u32 s{S_T0}, s{S_T0}, {hex(KVP_OFF)}')
            a.e(f'v_lshlrev_b32 v{T0}, 4, v{V_LANE}')
            a.e(f'v_and_b32 v{T1}, 0x30, v{V_LANE}')
            PB = V_A
            for s4 in range(4):
                b = PB + 16 * s4
                a.vmem(f'buffer_load_dwordx4 v[{b}:{b+3}], v{T0}, {WS}, s{S_T0} offen sc1', 'kp')
                a.vmem(f'buffer_load_dwordx4 v[{b+4}:{b+7}], v{T0}, {WS}, s{S_T0} offen offset:1024 sc1', 'kp')
                a.vmem(f'buffer_load_dwordx4 v[{b+8}:{b+11}], v{T1}, {WS}, s{S_T0} offen offset:2048 sc1', 'kp')
                a.vmem(f'buffer_load_dwordx4 v[{b+12}:{b+15}], v{T1}, {WS}, s{S_T0} offen offset:2112 sc1', 'kp')
                if s4 < 3: a.e(f's_add_u32 s{S_T0}, s{S_T0}, {KVREC}')
            a.e(f's_lshl_b32 s{S_T0}, s{S_W}, 11')
            a.e(f's_add_u32 s{S_T0}, s{S_T0}, {hex(SCR)}')
            a.e(f'v_add_u32 v{T0}, s{S_T0}, v{T0}')
            a.e(f's_lshl_b32 s{S_T0}, s{S_W}, 7')
            a.e(f's_add_u32 s{S_T0}, s{S_T0}, {hex(SCR + 8192)}')
            a.e(f'v_add_u32 v{T2}, s{S_T0}, v{T1}')
            a.wait_vm_all()
            for i in range(0, 16, 2):
                a.e(pk('add', PB + i, vp(PB + i), vp(PB + 16 + i)))
                a.e(pk('add', PB + 32 + i, vp(PB + 32 + i), vp(PB + 48 + i)))
            for i in range(0, 16, 2):
                a.e(pk('add', PB + i, vp(PB + i), vp(PB + 32 + i)))
            a.e(f'ds_write_b128 v{T0}, v[{PB}:{PB+3}]')
            a.e(f'ds_write_b128 v{T0}, v[{PB+4}:{PB+7}] offset:1024')
            set_exec(a, 0x00010001)
            a.e(f'ds_write_b128 v{T2}, v[{PB+8}:{PB+11}]')
            a.e(f'ds_write_b128 v{T2}, v[{PB+12}:{PB+15}] offset:64')
            a.e('s_mov_b64 exec, -1')
            a.e(f'v_lshlrev_b32 v{T0}, 4, v{V_LANE}')
            a.e(f'v_add_u32 v{T0}, {hex(SCR)}, v{T0}')
            a.e(f'v_add_u32 v{T2}, {hex(SCR + 8192)}, v{T1}')
            a.e('s_waitcnt lgkmcnt(0)')
            bar(('X', 'X2'))
            for ww in range(4):
                b = RB + 16 * ww
                a.e(f'ds_read_b128 v[{b}:{b+3}], v{T0} offset:{ww*2048}')
                a.e(f'ds_read_b128 v[{b+4}:{b+7}], v{T0} offset:{ww*2048+1024}')
                a.e(f'ds_read_b128 v[{b+8}:{b+11}], v{T2} offset:{ww*128}')
                a.e(f'ds_read_b128 v[{b+12}:{b+15}], v{T2} offset:{ww*128+64}')
                if ww == 2: a.e('s_waitcnt lgkmcnt(8)')
            a.e('s_waitcnt lgkmcnt(0)')
            for i in range(0, 16, 2):
                a.e(pk('add', RB + i, vp(RB + i), vp(RB + 16 + i)))
                a.e(pk('add', RB + 32 + i, vp(RB + 32 + i), vp(RB + 48 + i)))
            for i in range(0, 16, 2):
                a.e(pk('add', RB + i, vp(RB + i), vp(RB + 32 + i)))
        OPB = V_ACC + 16
        emit_pack(a, OPB, RB, 16)
        a.e('s_nop 1')
        NUM = V_A; DEN = V_A + 16
        for r in range(2):
            for h in range(2):
                pq = V_PQ + (r * 2 + h) * 2
                n_ = NUM + (r * 2 + h) * 4; d_ = DEN + (r * 2 + h) * 4
                a.e(f'v_mfma_f32_16x16x16_bf16 v[{n_}:{n_+3}], v[{OPB+2*h}:{OPB+2*h+1}], v[{pq}:{pq+1}], 0')
                a.e(f'v_mfma_f32_16x16x16_bf16 v[{d_}:{d_+3}], v[{OPB+4+2*h}:{OPB+4+2*h+1}], v[{pq}:{pq+1}], 0')
        a.e(f's_lshl_b32 s{S_T0}, s{S_CB2}, 10')
        a.e(f's_add_u32 s{S_T0}, s{S_T0}, s{S_GH}')
        a.e(f's_add_u32 s{S_T1}, s{S_T0}, 0x4000')
        a.e('s_nop 4')
        for k in range(4): a.e(f'v_add_f32 v{DEN+4*k}, s{S_EPS6}, v{DEN+4*k}')
        for k in range(4): a.e(f'v_rcp_f32 v{DEN+4*k}, v{DEN+4*k}')
        a.e('s_nop 0')
        for k in range(4):
            for i in range(4): a.e(f'v_mul_f32 v{NUM+4*k+i}, v{NUM+4*k+i}, v{DEN+4*k}')
        OPK = V_A + 32
        emit_pack(a, OPK, NUM, 16)
        emit_mode_stores(a, [f'buffer_store_dwordx4 v[{OPK}:{OPK+3}], v{V_AB}, {WS}, s{S_T0} offen',
                             f'buffer_store_dwordx4 v[{OPK+4}:{OPK+7}], v{V_AB}, {WS}, s{S_T1} offen'], cold=True)
        emit_signal(a, ep(1))
        stamp()
        if done('P1Q'): return True

        ACC = V_ACC; WR = 80; TMP = V_A
        def small_gemm(phase, tail=None):
            a.fstamp(phase)
            emit_gemm32(a, bar, phase, slabs[phase], ACC, WR, tail=tail)
        def tile_store(pkb, base, gh=False, cold=False):
            soff(S_T0, base, gh=gh)
            emit_mode_stores(a, [f'buffer_store_dwordx4 v[{pkb}:{pkb+3}], v{V_TST}, {WS}, s{S_T0} offen',
                                 f'buffer_store_dwordx4 v[{pkb+4}:{pkb+7}], v{V_TST}, {WS}, s{S_T0} offen offset:512'], cold=cold)

        a.c('=== P3')
        stamp()
        small_gemm('P3')
        stamp()
        for i in range(0, 16, 2): a.e(pk('add', V_RES + i, vp(V_RES + i), vp(ACC + i)))
        emit_pack32(a, TMP, V_RES)
        tile_store(TMP, A1_OFF, cold=True)
        soff(S_T1, ST_OFF)
        emit_stats_partial32(a, V_RES, TMP + 8, f's{S_T1}', cold=True)
        emit_signal(a, ep(2))
        stamp()
        if done('P3'): return True

        a.c('=== P4')
        CS4 = TMP + 16; RAW = TMP + 32
        a.e(f'v_lshrrev_b32 v{T1}, 5, v{V_LANE}')
        a.e(f'v_lshlrev_b32 v{T1}, 4, v{T1}')
        a.e(f's_lshl_b32 s{S_T1}, s{S_CH}, 7')
        a.e(f's_add_u32 s{S_T1}, s{S_T1}, {hex(CSC + 384)}')
        a.e(f'v_add_u32 v{T1}, s{S_T1}, v{T1}')
        for j in range(4):
            a.e(f'ds_read_b128 v[{CS4+4*j}:{CS4+4*j+3}], v{T1} offset:{32*j}')
        a.e('s_waitcnt lgkmcnt(0)')
        stamp()
        def p4_tail():
            soff(S_T0, ST_OFF)
            for k in range(4):
                a.vmem(f'buffer_load_dwordx4 v[{RAW+4*k}:{RAW+4*k+3}], v{V_STS}, {WS}, s{S_T0} offen offset:{512*k} sc1', 'st')
        small_gemm('P4', tail=p4_tail)
        stamp()
        a.wait_vm_all()
        emit_sum_partials(a, RAW, 16)
        emit_xreduce(a, [RAW, RAW + 1], [RAW + 2, RAW + 3], over16=False)
        emit_stats_from_sums(a, RAW, RAW + 1, RAW + 4, RAW + 6, RAW + 8, double=True, keep=(V_MEAN, V_RS))
        emit_lnfold(a, ACC, CS4, RAW + 4, RAW + 6, 16)
        emit_gelu(a, ACC, 16, TMP + 48, V_PQ)
        emit_pack32(a, TMP, ACC)
        tile_store(TMP, A0_OFF, gh=True)
        gl = a.newlabel('GH'); gu = a.newlabel('GH'); gd = a.newlabel('GH')
        a.e(f's_cmp_eq_u32 s{S_RB}, 3')
        a.e(f's_cbranch_scc0 {gu}')
        a.e(f's_cmp_eq_u32 s{S_RH}, 1')
        a.e(f's_cbranch_scc0 {gd}')
        a.e(f's_bitcmp1_b32 s{S_CB}, 1')
        a.e(f's_cbranch_scc1 {gd}')
        a.e(f's_cmp_eq_u32 s{S_G}, 7')
        a.e(f's_cbranch_scc1 {gd}')
        a.e(f's_add_u32 s{S_T1}, s{S_G}, 1')
        a.e(f's_mul_i32 s{S_T2}, s{S_T1}, {18*16384}')
        a.e(f's_lshl_b32 s{S_T3}, s{S_T1}, 8')
        set_exec(a, 0xc0000000)
        a.e(f's_branch {gl}')
        a.label(gu)
        a.e(f's_cmp_eq_u32 s{S_RB}, 0')
        a.e(f's_cbranch_scc0 {gd}')
        a.e(f's_cmp_eq_u32 s{S_RH}, 0')
        a.e(f's_cbranch_scc0 {gd}')
        a.e(f's_bitcmp1_b32 s{S_CB}, 1')
        a.e(f's_cbranch_scc0 {gd}')
        a.e(f's_cmp_eq_u32 s{S_G}, 0')
        a.e(f's_cbranch_scc1 {gd}')
        a.e(f's_sub_u32 s{S_T1}, s{S_G}, 1')
        a.e(f's_mul_i32 s{S_T2}, s{S_T1}, {18*16384}')
        a.e(f's_add_u32 s{S_T2}, s{S_T2}, {17*16384}')
        a.e(f's_lshl_b32 s{S_T3}, s{S_T1}, 8')
        a.e(f's_add_u32 s{S_T3}, s{S_T3}, 128')
        set_exec(a, 0x00000003)
        a.label(gl)
        a.e(f's_lshl_b32 s{S_T0}, s{S_CB}, 1')
        a.e(f's_add_u32 s{S_T0}, s{S_T0}, s{S_CH}')
        a.e(f's_lshl_b32 s{S_T0}, s{S_T0}, 10')
        a.e(f's_add_u32 s{S_T2}, s{S_T2}, s{S_T0}')
        a.e(f'v_and_b32 v{T0}, 0x3fff, v{V_TST}')
        a.e(f'v_and_b32 v{T0}, 0x3ff, v{T0}')
        a.e(f'buffer_store_dwordx4 v[{TMP}:{TMP+3}], v{T0}, {WS}, s{S_T2} offen sc1')
        a.e(f'buffer_store_dwordx4 v[{TMP+4}:{TMP+7}], v{T0}, {WS}, s{S_T2} offen offset:512 sc1')
        a.e('s_mov_b64 exec, -1')
        a.e(f's_and_b32 s{S_T0}, s{S_CB}, 1')
        a.e(f's_lshr_b32 s{S_T1}, s{S_CB}, 2')
        a.e(f's_lshl_b32 s{S_T1}, s{S_T1}, 1')
        a.e(f's_add_u32 s{S_T0}, s{S_T0}, s{S_T1}')
        a.e(f's_lshl_b32 s{S_T0}, s{S_T0}, 1')
        a.e(f's_add_u32 s{S_T0}, s{S_T0}, s{S_CH}')
        a.e(f's_lshl_b32 s{S_T0}, s{S_T0}, 2')
        a.e(f's_add_u32 s{S_T3}, s{S_T3}, s{S_T0}')
        a.e(f's_lshl_b32 s{S_T0}, s{S_L}, 11')
        a.e(f's_add_u32 s{S_T3}, s{S_T3}, s{S_T0}')
        a.e(f's_add_u32 s{S_T3}, s{S_T3}, {hex(HF_OFF)}')
        thr_value(a, S_THR, ep(3), xcc=True)
        a.e(f'v_mov_b32 v{T0}, s{S_T3}')
        a.e(f'v_mov_b32 v{T1}, s{S_THR}')
        a.e('s_waitcnt vmcnt(0)')
        a.e('s_mov_b64 exec, 1')
        a.e(f'buffer_store_dword v{T1}, v{T0}, {WS}, 0 offen sc1')
        a.e('s_mov_b64 exec, -1')
        a.label(gd)
        emit_signal(a, ep(3))
        stamp()
        if done('P4'): return True

        a.c('=== P5')
        stamp()
        small_gemm('P5')
        stamp()
        a.e(f'v_mul_f32 v{TMP+10}, v{V_MEAN}, v{V_RS}')
        a.e(f'v_sub_f32 v{TMP+10}, 0, v{TMP+10}')
        a.e(f'v_mov_b32 v{TMP+8}, v{V_RS}')
        for i in range(0, 16, 2):
            a.e(pk('fma', ACC + i, vp(V_RES + i), vp(TMP + 8), vp(ACC + i), mods=' op_sel_hi:[1,0,1]'))
        for i in range(0, 16, 2):
            a.e(pk('add', ACC + i, vp(ACC + i), vp(TMP + 10), mods=' op_sel_hi:[1,0]'))
        emit_pack32(a, TMP, ACC)
        tile_store(TMP, A1_OFF)
        soff(S_T1, ST_OFF)
        emit_stats_partial32(a, ACC, TMP + 12, f's{S_T1}')
        for i in range(0, 16, 2): a.e(pk('add', V_RES + i, vp(V_RES + i), vp(ACC + i)))
        emit_signal(a, ep(4))
        stamp()
        if done('P5'): return True

        a.c('=== P6')
        CS6 = V_ACC; ACC6 = 192; WR6 = 96
        a.e(f'v_and_b32 v{T1}, 0x30, v{V_LANE}')
        a.e(f'v_add_u32 v{T1}, {hex(CSC + 640)}, v{T1}')
        for t in range(7):
            a.e(f'ds_read_b128 v[{CS6+4*t}:{CS6+4*t+3}], v{T1} offset:{64*t}')
        a.e('s_waitcnt lgkmcnt(0)')
        emit_poll(a, V_FSB, ep(4), opt=opt)
        stamp()
        def p6_load(j):
            a.e(f's_lshl_b32 s{S_T0}, s{S_RB2}, {13 if opt.rot else 31}')
            if not opt.rot: a.e(f's_mov_b32 s{S_T0}, 0')
            a.e(f's_xor_b32 s{S_T0}, s{S_T0}, {hex((j // 4) * 4096)}')
            a.e(f's_add_u32 s{S_T0}, s{S_T0}, {hex(A1_OFF)}')
            a.e(f's_add_u32 s{S_T1}, s{S_T0}, 0x4000')
            for r in range(2):
                d = V_A + ((j % 8) * 2 + r) * 4
                a.vmem(f'buffer_load_dwordx4 v[{d}:{d+3}], v{V_AB}, {WS}, s{S_T0 if r == 0 else S_T1} offen offset:{(j%4)*1024} sc1', ('A', j))
        RAW6 = [V_PQ, 248]
        def p6_issue(j, t):
            if t == 1:
                if j + opt.D_p6 < 16:
                    p6_load(j + opt.D_p6)
                elif j + opt.D_p6 == 16:
                    soff(S_T0, ST_OFF)
                    for r in range(2):
                        a.vmem(f'buffer_load_dwordx4 v[{RAW6[r]}:{RAW6[r]+3}], v{V_STB}, {WS}, s{S_T0} offen offset:{256*r} sc1', 'st')
                        a.vmem(f'buffer_load_dwordx4 v[{RAW6[r]+4}:{RAW6[r]+7}], v{V_STB}, {WS}, s{S_T0} offen offset:{256*r+512} sc1', 'st')
        a.fstamp('P6')
        for j in range(opt.D_p6): p6_load(j)
        emit_gemm16(a, bar, 'P6', slabs['P6'], 7, '224',
                    acc_of=lambda r, t: ACC6 + (r * 7 + t) * 4, a_of=lambda r, j: V_A + ((j % 8) * 2 + r) * 4,
                    a_wait=lambda j: a.count_vm(('A', j)), a_issue=p6_issue, wr=WR6, S=8)
        stamp()
        a.wait_vm_all()
        for r in range(2): emit_sum_partials(a, RAW6[r], 8)
        emit_xreduce(a, [RAW6[0], RAW6[0] + 1, RAW6[1], RAW6[1] + 1], [V_X, V_X + 1, V_X + 2, V_X + 3])
        AB6 = [(92, 94), (RAW6[1] + 4, RAW6[1] + 6)]
        for r in range(2):
            emit_stats_from_sums(a, RAW6[r], RAW6[r] + 1, AB6[r][0], AB6[r][1], V_X)
        a.e(f's_lshl_b32 s{S_T0}, s{S_G}, 4')
        a.e(f's_lshl_b32 s{S_T1}, s{S_RB2}, 3')
        a.e(f's_add_u32 s{S_T0}, s{S_T0}, s{S_T1}')
        a.e(f's_lshl_b32 s{S_T1}, s{S_W}, 1')
        a.e(f's_add_u32 s{S_T0}, s{S_T0}, s{S_T1}')
        a.e(f's_mul_i32 s{S_T0}, s{S_T0}, 57344')
        a.e(f's_lshr_b32 s{S_T1}, s{S_CB2}, 1')
        a.e(f's_mul_i32 s{S_T1}, s{S_T1}, 7168')
        a.e(f's_add_u32 s{S_T0}, s{S_T0}, s{S_T1}')
        a.e(f's_add_u32 s{S_T0}, s{S_T0}, {hex(G_OFF)}')
        a.e(f's_and_b32 s{S_T1}, s{S_CB2}, 1')
        a.e(f's_mul_i32 s{S_U0}, s{S_T1}, 3072')
        a.e(f's_add_u32 s{S_U0}, s{S_U0}, s{S_T0}')
        a.e(f's_add_u32 s{S_U1}, s{S_U0}, 57344')
        a.e(f's_lshl_b32 s{S_T1}, s{S_T1}, 3')
        a.e(f's_add_u32 s{S_U2}, s{S_T0}, s{S_T1}')
        a.e(f's_add_u32 s{S_U2}, s{S_U2}, 6144')
        a.e(f's_add_u32 s{S_U3}, s{S_U2}, 57344')
        a.e(f'v_lshlrev_b32 v{V_X+4}, 4, v{V_LANE}')
        for r in range(2):
            emit_lnfold(a, ACC6 + r * 28, CS6, AB6[r][0], AB6[r][1], 28)
            emit_gelu(a, ACC6 + r * 28, 28, V_A, V_PQ + 4)
            pkb = V_A + 16 + r * 16
            emit_pack(a, pkb, ACC6 + r * 28, 28)
            st = [f'buffer_store_dwordx4 v[{pkb+4*j}:{pkb+4*j+3}], v{V_X+4}, {WS}, s{S_U0+r} offen offset:{1024*j}' for j in range(3)]
            st.append(f'buffer_store_dwordx2 v[{pkb+12}:{pkb+13}], v{V_X+4}, {WS}, s{S_U2+r} offen')
            emit_mode_stores(a, st, cold=bool(opt.g_cold))
        emit_signal(a, ep(5))
        stamp()
        if done('P6'): return True

        a.c('=== P7')
        if opt.p7_self:
            VG, VF = V_A + 100, V_A + 101
            a.e(f's_lshl_b32 s{S_T0}, s{S_G}, 4'); a.e(f's_lshl_b32 s{S_T1}, s{S_RB}, 2'); a.e(f's_add_u32 s{S_T0}, s{S_T0}, s{S_T1}')
            a.e(f's_add_u32 s{S_T0}, s{S_T0}, s{S_W}'); a.e(f's_mul_i32 s{S_T0}, s{S_T0}, 57344')
            a.e(f'v_lshlrev_b32 v{VG}, 4, v{V_LANE}'); a.e(f'v_add_u32 v{VG}, s{S_T0}, v{VG}')
            for p_ in range(8):
                a.e(f's_and_b32 s{S_P7+p_}, s{S_RB}, {3 if opt.rot else 0}'); a.e(f's_lshl_b32 s{S_P7+p_}, s{S_P7+p_}, 1')
                a.e(f's_xor_b32 s{S_P7+p_}, s{S_P7+p_}, {p_}'); a.e(f's_mul_i32 s{S_P7+p_}, s{S_P7+p_}, 7168')
            a.e(f's_lshl_b32 s{S_T2}, s{S_G}, 9'); a.e(f's_add_u32 s{S_T2}, s{S_T2}, {hex(LF_OFF)}')
            a.e(f's_and_b32 s{S_T3}, s{S_RB}, 1'); a.e(f's_lshl_b32 s{S_T3}, s{S_T3}, 1'); a.e(f's_add_u32 s{S_T3}, s{S_T3}, s{S_RH}')
            a.e(f's_lshl_b32 s{S_T3}, s{S_T3}, 7'); a.e(f's_add_u32 s{S_T3}, s{S_T3}, s{S_T2}')
            a.e(f's_lshr_b32 s{S_T4}, s{S_RB}, 1'); a.e(f's_lshl_b32 s{S_T4}, s{S_T4}, 6'); a.e(f's_add_u32 s{S_T3}, s{S_T3}, s{S_T4}')
            a.e(f'v_and_b32 v{VF}, 15, v{V_LANE}'); a.e(f'v_lshlrev_b32 v{VF}, 2, v{VF}'); a.e(f'v_add_u32 v{VF}, s{S_T3}, v{VF}')
            a.e(f's_lshl_b32 s{S_T3}, s{S_R}, 2'); a.e(f's_add_u32 s{S_T3}, s{S_T3}, s{S_T2}')
            a.e(f'v_and_b32 v{T1}, 3, v{V_LANE}'); a.e(f'v_lshlrev_b32 v{T1}, 7, v{T1}'); a.e(f'v_add_u32 v{T1}, s{S_T3}, v{T1}')
            a.e(f'v_cmp_lt_u32 vcc, 15, v{V_LANE}'); a.e('s_nop 1'); a.e(f'v_cndmask_b32 v{VF}, v{VF}, v{T1}, vcc')
            emit_poll(a, VF, ep(5), opt=opt)
            stamp()
            def pieces7(c):
                state = {'last': None}
                def mk(k):
                    def f():
                        if k == 0: a.e(f's_add_u32 m0, s{S_W4K}, {hex(AREG + (c % 4) * 16384)}')
                        p_, i_ = divmod(4 * c + k, 7)
                        const = G_OFF + (i_ - k) * 1024
                        if state['last'] != (p_, const):
                            a.e(f's_add_u32 s{S_T0}, s{S_P7+p_}, {hex(const & 0xffffffff)}'); state['last'] = (p_, const)
                        a.vmem(f'buffer_load_dwordx4 v{VG}, {WS}, s{S_T0} offen offset:{k*1024} sc1 lds', ('A', c))
                    return f
                return [mk(k) for k in range(4)]
            emit_gemm32(a, bar, 'P7', slabs['P7'], ACC, WR, a_pieces=pieces7)
        else:
            stamp()
            small_gemm('P7')
        stamp()
        for i in range(0, 16, 2): a.e(pk('add', V_RES + i, vp(V_RES + i), vp(ACC + i)))
        emit_pack32(a, TMP, V_RES)
        return False

    stopped = run_layer()
    if not stopped:
        fin = a.newlabel('FIN'); TMP = V_A
        a.e(f's_cmp_eq_u32 s{S_L}, 1')
        a.e(f's_cbranch_scc1 {fin}')
        a.e(f's_mov_b32 s{S_T0}, {hex(A2_OFF)}')
        emit_mode_stores(a, [f'buffer_store_dwordx4 v[{TMP}:{TMP+3}], v{V_TST}, {WS}, s{S_T0} offen',
                             f'buffer_store_dwordx4 v[{TMP+4}:{TMP+7}], v{V_TST}, {WS}, s{S_T0} offen offset:512'], cold=True)
        a.e(f's_mov_b32 s{S_T1}, {hex(ST_OFF)}')
        emit_stats_partial32(a, V_RES, TMP + 8, f's{S_T1}')
        a.e(f's_add_u32 s{S_EP}, s{S_EP}, 6')
        emit_signal(a, f's{S_EP}')
        if opt.timing:
            dump([tmreg(i) for i in range(tm[0])])
        a.e(f's_mov_b32 s{S_L}, 1')
        a.e(f's_mov_b32 s{S_LOFF}, {hex(KVP_L)}')
        a.e(f's_mov_b32 s{S_COLD}, s{S_MODE}')
        for i in range(3): a.e(f's_mov_b32 s{S_PA+i}, s{S_WS+i}')
        a.e(f's_mov_b32 s{S_PA+3}, 0x20000')
        a.e(f'v_mov_b32 v{V_P1}, v{V_AB}')
        for c in range(4):
            a.e(f's_xor_b32 s{S_RK+c}, s{S_ROTK}, {c}')
            a.e(f's_lshl_b32 s{S_RK+c}, s{S_RK+c}, 12')
            a.e(f's_add_u32 s{S_RK+c}, s{S_RK+c}, {hex(A2_OFF)}')
        a.e(f's_mov_b32 s{S_ASTR}, 1024')
        a.e(f's_branch {LOOP}')
        a.label(fin)
        emit_pack(a, TMP, V_RES, 16)
        OS = f's[{S_OUT}:{S_OUT+3}]'
        for j in range(4):
            a.e(f'buffer_store_dwordx2 v[{TMP+2*j}:{TMP+2*j+1}], v{V_XRM}, {OS}, 0 offen offset:{16*j}')
    a.label('L_END_COMPUTE')
    nn = a.newlabel('NON')
    a.e(f's_or_b32 s{S_T0}, s2, s{S_W}')
    a.e(f's_cmp_eq_u32 s{S_T0}, 0')
    a.e(f's_cbranch_scc0 {nn}')
    a.e(f's_add_u32 s{S_T0}, s{S_V}, 1')
    a.e(f'v_mov_b32 v{V_T0}, s{S_T0}')
    a.e(f'v_mov_b32 v{V_T1}, {hex(NONCE_OFF)}')
    a.e('s_mov_b64 exec, 1')
    a.e(f'buffer_store_dword v{V_T0}, v{V_T1}, {WS}, 0 offen')
    a.e('s_mov_b64 exec, -1')
    a.label(nn)
    stamp()
    if opt.timing: dump([tmreg(i) for i in range(tm[0])] + ([85] if False else []))
    if opt.fine: dump([freg(i) for i in range(fs[0])])
    if opt.wall:
        a.e('s_waitcnt vmcnt(0)')
        a.e('s_memrealtime s[82:83]'); a.e('s_memtime s[80:81]'); a.e('s_waitcnt lgkmcnt(0)')
        dump([84, 82, 85, 80])
    a.e('s_waitcnt vmcnt(0)')
    a.e('s_endpgm')
    return evq


def hstamp(a, opt, slot):
    if not (opt.dbgout >= 0 and opt.fine): return
    sk = a.newlabel('HS')
    a.e('s_memtime s[98:99]'); a.e('s_waitcnt lgkmcnt(0)')
    a.e(f's_cmp_eq_u32 s2, {opt.dbgwg}'); a.e(f's_cbranch_scc0 {sk}')
    a.e('s_sub_u32 s98, s98, s96')
    a.e('v_mov_b32 v254, s98'); a.e(f'v_mov_b32 v253, {4*slot}')
    a.e('global_store_dword v253, v254, s[86:87]')
    a.label(sk)
    a.vm.append('hs')

def gen_loader(a, opt, events):
    VN, VKV, VQ, VW3, VKVn, VQn = 8, 12, 16, 20, 28, 32
    VT0, VT1, VT2, VT3 = 1, 2, 3, 4
    a.c('--- loader setup')
    def srd(s, p, size):
        a.e(f's_mov_b32 s{s}, s{p}'); a.e(f's_mov_b32 s{s+1}, s{p+1}')
        a.e(f's_mov_b32 s{s+2}, {hex(size)}'); a.e(f's_mov_b32 s{s+3}, 0x20000')
    srd(S_WQKV, S_PTR + 2, 512 * 1536 * 2)
    srd(S_WO, S_PTR + 4, 512 * 512 * 2)
    srd(S_W1, S_PTR + 8, 512 * 512 * 2)
    srd(S_W2, S_PTR + 10, 512 * 512 * 2)
    srd(S_W3, S_PTR + 12, 512 * 1792 * 2)
    srd(S_W4, S_PTR + 14, 1792 * 512 * 2)
    CBS, CBK, CB6, CB7 = 64, 68, 72, 76
    a.e(f's_lshl_b32 s{S_T1}, s{S_RB2}, 1')
    a.e(f's_add_u32 s{S_T1}, s{S_T1}, s{S_CB2}')
    a.e(f's_and_b32 s{S_T1}, s{S_T1}, {3 if opt.rot else 0}')
    for c in range(4):
        a.e(f's_xor_b32 s{CBK+c}, s{S_T1}, {c}')
        a.e(f's_mul_i32 s{CBK+c}, s{CBK+c}, {128*3072}')
    def late_tables():
        rm = 3 if opt.rot else 0
        for c in range(4):
            a.e(f's_and_b32 s{CBS+c}, s{S_RB}, {rm}')
            a.e(f's_xor_b32 s{CBS+c}, s{CBS+c}, {c}')
            a.e(f's_lshl_b32 s{CBS+c}, s{CBS+c}, 17')
            a.e(f's_lshl_b32 s{CB6+c}, s{S_RB2}, 1')
            a.e(f's_and_b32 s{CB6+c}, s{CB6+c}, {rm}')
            a.e(f's_xor_b32 s{CB6+c}, s{CB6+c}, {c}')
            a.e(f's_mul_i32 s{CB6+c}, s{CB6+c}, {128*3584}')
        for p_ in range(8):
            a.e(f's_and_b32 s{CB7+p_}, s{S_RB}, {rm}')
            a.e(f's_lshl_b32 s{CB7+p_}, s{CB7+p_}, 1')
            a.e(f's_xor_b32 s{CB7+p_}, s{CB7+p_}, {p_}')
            a.e(f's_mul_i32 s{CB7+p_}, s{CB7+p_}, {224*1024}')

    def cs_issue():
        a.c('cs pieces')
        c1 = a.newlabel('CS'); c2 = a.newlabel('CS'); c3 = a.newlabel('CS')
        a.e(f's_min_u32 s{92}, s2, 239')
        a.e(f's_lshr_b32 s{93}, s{92}, 2')
        a.e(f's_and_b32 s{94}, s{92}, 3')
        a.e(f's_cmp_lt_u32 s{93}, 24')
        a.e(f's_cbranch_scc0 {c1}')
        for i in range(3): a.e(f's_mov_b32 s{S_CSRD+i}, s{S_WQKV+i}')
        a.e(f's_mov_b32 s{S_T0}, 3072')
        a.e(f's_lshl_b32 s{S_T1}, s{93}, 7')
        a.e(f's_branch {c3}')
        a.label(c1)
        a.e(f's_cmp_lt_u32 s{93}, 32')
        a.e(f's_cbranch_scc0 {c2}')
        for i in range(3): a.e(f's_mov_b32 s{S_CSRD+i}, s{S_W1+i}')
        a.e(f's_mov_b32 s{S_T0}, 1024')
        a.e(f's_sub_u32 s{S_T1}, s{93}, 24')
        a.e(f's_lshl_b32 s{S_T1}, s{S_T1}, 7')
        a.e(f's_branch {c3}')
        a.label(c2)
        for i in range(3): a.e(f's_mov_b32 s{S_CSRD+i}, s{S_W3+i}')
        a.e(f's_mov_b32 s{S_T0}, 3584')
        a.e(f's_sub_u32 s{S_T1}, s{93}, 32')
        a.e(f's_lshl_b32 s{S_T1}, s{S_T1}, 7')
        a.label(c3)
        a.e(f's_mov_b32 s{S_CSRD+3}, 0x20000')
        a.e(f'v_lshrrev_b32 v{VT1}, 3, v{V_LANE}')
        a.e(f'v_mul_lo_u32 v{VT1}, v{VT1}, s{S_T0}')
        a.e(f'v_and_b32 v{VT2}, 7, v{V_LANE}')
        a.e(f'v_lshl_add_u32 v{VT1}, v{VT2}, 4, v{VT1}')
        a.e(f'v_add_u32 v{VT1}, s{S_T1}, v{VT1}')
        a.e(f's_lshl_b32 s{S_T1}, s{94}, 7')
        a.e(f's_mul_i32 s{S_T1}, s{S_T1}, s{S_T0}')
        a.e(f's_lshl_b32 s{S_T0}, s{S_T0}, 3')
        a.e(f's_mov_b32 m0, {hex(CSL)}')
        for p in range(16):
            a.e('s_nop 0')
            a.vmem(f'buffer_load_dwordx4 v{VT1}, s[{S_CSRD}:{S_CSRD+3}], s{S_T1} offen lds', 'cs')
            if p < 15:
                a.e('s_add_u32 m0, m0, 1024')
                a.e(f's_add_u32 s{S_T1}, s{S_T1}, s{S_T0}')
    dg = [0]
    def dstamp():
        if opt.startdiag:
            a.e(f's_memtime s[{84+2*dg[0]}:{85+2*dg[0]}]') if False else None
            a.e('s_memtime s[98:99]'); a.e('s_waitcnt lgkmcnt(0)')
            a.e('s_sub_u32 s98, s98, s100')
            a.e(f'v_mov_b32 v{100+dg[0]}, s98'); dg[0] += 1
    dstamp()
    cs_issue()
    a.e(f'v_lshrrev_b32 v{VT0}, 3, v{V_LANE}')
    a.e(f'v_bfe_u32 v{VT1}, v{VT0}, 1, 2')
    a.e(f'v_lshlrev_b32 v{VT1}, 1, v{VT1}')
    a.e(f'v_and_b32 v{VT2}, 7, v{V_LANE}')
    a.e(f'v_xor_b32 v{VT2}, v{VT2}, v{VT1}')
    a.e(f'v_and_b32 v{VT1}, 3, v{VT2}')
    a.e(f'v_lshlrev_b32 v{VT3}, 4, v{VT1}')
    a.e(f'v_lshrrev_b32 v{VT1}, 2, v{VT2}')
    a.e(f'v_lshl_add_u32 v{VT3}, v{VT1}, 10, v{VT3}')
    a.e(f's_lshl_b32 s{S_T0}, s{S_CB2}, 6')
    a.e(f's_add_u32 s{S_T1}, s{S_T0}, 1024')
    a.e(f'v_add_u32 v{VT3}, s{S_T1}, v{VT3}')
    a.e(f'v_lshrrev_b32 v{VT1}, 2, v{VT0}')
    a.e(f'v_lshlrev_b32 v{VT1}, 3, v{VT1}')
    a.e(f'v_and_b32 v{VT2}, 3, v{VT0}')
    a.e(f'v_add_u32 v{VT1}, v{VT1}, v{VT2}')
    a.e(f'v_mul_u32_u24 v{VT1}, 3072, v{VT1}')
    a.e(f'v_add_u32 v{VT1}, v{VT1}, v{VT3}')
    for p in range(4):
        off = (16 * (p & 1) + 4 * (p >> 1)) * 3072 - p * 1024
        a.e(f'v_add_u32 v{VKVn+p}, {hex(off & 0xffffffff)}, v{VT1}')
    a.e(f'v_mul_u32_u24 v{VKV}, 3072, v{VT0}')
    a.e(f'v_add_u32 v{VKV}, v{VKV}, v{VT3}')
    for j in range(1, 4): a.e(f'v_add_u32 v{VKV+j}, {hex(j*(8*3072-1024))}, v{VKV}')

    layers = sorted(set(e[0] for e in events))
    slabs = {L: build_slabs(L) for L in layers}
    stream = []
    needed = set((e[0], e[2], e[3]) for e in events if e[1] == 'B')
    for L in layers:
        for p in PHASES:
            for ci, ch in enumerate(slabs[L][p]):
                if (L, p, ci) in needed: stream += ch
    released = set()
    log = []; cur = ['start']
    opt._log = log
    st = {'issued': 0}
    win = [opt.window0]
    def overlaps_unreleased(s, idx):
        for k in range(idx):
            o = stream[k]
            if (o.layer, o.phase, o.chunk) in released: continue
            if o.addr < s.addr + s.size and s.addr < o.addr + o.size: return True
        return False
    def emit_slab(s):
        kind = s.kind; tag = (s.layer, s.phase, s.chunk)
        if kind in opt.dbg_skip.split(','): return
        if kind in ('WO', 'W1', 'W2', 'W4'):
            srd_ = {'WO': S_WO, 'W1': S_W1, 'W2': S_W2, 'W4': S_W4}[kind]; vb = VN; rs = 1024
        elif kind == 'KV': srd_, vb, rs = S_WQKV, (VKVn if s.layer == 0 else VKV), 3072
        elif kind == 'Q': srd_, vb, rs = S_WQKV, (VQn if s.layer == 0 else VQ), 3072
        else: srd_, vb, rs = S_W3, VW3, 3584
        R4 = f's[{srd_}:{srd_+3}]'
        def grp(addr, srow, ps, v0):
            a.e(f's_mov_b32 m0, {hex(addr)}')
            if kind == 'W4':
                p_, rr_ = divmod(srow, 224); tb_ = CB7 + p_
            else:
                c_, rr_ = divmod(srow, 128); tb_ = {'KV': CBK, 'Q': CBK, 'W3': CB6}.get(kind, CBS) + c_
            a.e(f's_add_u32 s{S_T0}, s{tb_}, {hex(rr_*rs)}')
            for k, p in enumerate(ps):
                a.vmem(f'buffer_load_dwordx4 v{vb+p}, {R4}, s{S_T0} offen offset:{k*1024} {"nt " if opt.w_nt else ""}lds', tag)
        if kind == 'W3':
            grp(s.addr, s.srow, [0, 1, 2, 3], 0); grp(s.addr + 4096, s.srow, [4, 5, 6], 0)
        elif kind == 'W4' and s.srow2 != s.srow + 16:
            grp(s.addr, s.srow, [0, 1], 0); grp(s.addr + 2048, s.srow2, [0, 1], 0)
        else:
            grp(s.addr, s.srow, [0, 1, 2, 3], 0)
        if len(a.vm) > win[0]:
            a.e(f's_waitcnt vmcnt({win[0]})')
            a.vm = a.vm[len(a.vm) - win[0]:]
    plan = {}
    opt._plan = plan
    free = [56, 56]
    def need_slots(s): return (4, 3) if s.kind == 'W3' else (2, 2)
    def park_policy(key):
        if not opt.park: return
        name = key.split('.', 1)[1] if key[0] in '01' else None
        if name is None: return
        L = int(key[0])
        if name in opt.park_w3:
            cand = [s for s in stream[st['issued']:] if s.layer == L and s.phase == 'P6' and s.chunk >= 1]; cap = opt.park_w3[name]
        elif name in opt.park_caps:
            cand = [s for s in stream[st['issued']:] if s.layer == L and s.phase == 'P7' and s.chunk >= 6]; cap = opt.park_caps[name]
        else:
            return
        for s in cand:
            if getattr(s, 'parked', False): continue
            n0, n1 = need_slots(s)
            if cap <= 0 or free[0] < n0 or free[1] < n1: break
            s.parked = True; free[0] -= n0; free[1] -= n1; cap -= 1
            plan.setdefault(key, []).append(('park', s))
    def issue(cap, must=None):
        n = 0; nu = 0
        while st['issued'] < len(stream):
            s = stream[st['issued']]
            forced = must is not None and any((o.layer, o.phase, o.chunk) == must for o in stream[st['issued']:])
            pk_ = getattr(s, 'parked', False)
            if not forced and not pk_ and n + s.npieces > cap: break
            if not forced and pk_ and (nu >= opt.unpark_max or must is not None): break
            if overlaps_unreleased(s, st['issued']):
                assert not forced, ('deadlock', must, s.layer, s.phase, s.chunk)
                break
            if pk_:
                plan.setdefault(cur[0], []).append(('unpark', s)); nu += 1
                n0, n1 = need_slots(s); free[0] += n0; free[1] += n1
                st['issued'] += 1
                log.append((cur[0], s.layer, s.phase + '*', s.chunk, forced))
                continue
            emit_slab(s); st['issued'] += 1; n += s.npieces
            log.append((cur[0], s.layer, s.phase, s.chunk, forced))
    if WARM0[0]:
        a.e('s_barrier')
        events = events[1:]
    hstamp(a, opt, 8)
    issue(32)
    hstamp(a, opt, 9)
    dstamp()
    def nonce_setup():
        a.e('s_waitcnt lgkmcnt(0)')
        a.e(f's_mul_i32 s{S_B}, s{S_V}, 0x9e3779b1')
        a.e(f's_add_u32 s{S_B}, s{S_B}, 0x7f4a7c15')
        a.e(f's_and_b32 s{S_B}, s{S_B}, 0xffffff00')
    def late_setup():
        if not opt.cs_late: nonce_setup()
        a.e(f's_lshl_b32 s{S_T0}, s{S_G}, 7')
        a.e(f's_lshl_b32 s{S_T1}, s{S_R}, 2')
        a.e(f's_add_u32 s{S_T0}, s{S_T0}, s{S_T1}')
        a.e(f's_add_u32 s{S_T0}, s{S_T0}, {hex(XID_OFF)}')
        a.e(f'v_mov_b32 v{VT1}, s{S_T0}')
        a.e(f's_add_u32 s{S_T1}, s{S_B}, s{S_XCC}')
        a.e(f'v_mov_b32 v{VT0}, s{S_T1}')
        a.e('s_mov_b64 exec, 1')
        a.vmem(f'buffer_store_dword v{VT0}, v{VT1}, {WS}, 0 offen sc1', 'xid')
        a.e('s_mov_b64 exec, -1')
        late_tables()
        a.c('W lane offsets')
        a.e(f'v_lshrrev_b32 v{VT0}, 3, v{V_LANE}')
        a.e(f'v_bfe_u32 v{VT1}, v{VT0}, 1, 1')
        a.e(f'v_lshlrev_b32 v{VT1}, 2, v{VT1}')
        a.e(f'v_and_b32 v{VT2}, 7, v{V_LANE}')
        a.e(f'v_xor_b32 v{VT2}, v{VT2}, v{VT1}')
        a.e(f'v_lshlrev_b32 v{VN}, 10, v{VT0}')
        a.e(f'v_lshl_add_u32 v{VN}, v{VT2}, 4, v{VN}')
        a.e(f's_lshl_b32 s{S_T0}, s{S_CB}, 7')
        a.e(f'v_add_u32 v{VN}, s{S_T0}, v{VN}')
        for j in range(1, 4): a.e(f'v_add_u32 v{VN+j}, {hex(j*(8192-1024))}, v{VN}')
        a.e(f'v_lshrrev_b32 v{VT0}, 2, v{V_LANE}')
        a.e(f'v_bfe_u32 v{VT1}, v{VT0}, 2, 1')
        a.e(f'v_lshlrev_b32 v{VT1}, 1, v{VT1}')
        a.e(f'v_and_b32 v{VT2}, 3, v{V_LANE}')
        a.e(f'v_xor_b32 v{VT2}, v{VT2}, v{VT1}')
        a.e(f'v_lshlrev_b32 v{VT3}, 4, v{VT2}')
        a.e(f's_lshl_b32 s{S_T0}, s{S_CB2}, 6')
        a.e(f'v_add_u32 v{VT3}, s{S_T0}, v{VT3}')
        a.e(f'v_mul_u32_u24 v{VQ}, 3072, v{VT0}')
        a.e(f'v_add_u32 v{VQ}, v{VQ}, v{VT3}')
        for j in range(1, 4): a.e(f'v_add_u32 v{VQ+j}, {hex(j*(16*3072-1024))}, v{VQ}')
        a.e(f'v_lshrrev_b32 v{VT1}, 2, v{VT0}')
        a.e(f'v_lshlrev_b32 v{VT1}, 3, v{VT1}')
        a.e(f'v_and_b32 v{VT2}, 3, v{VT0}')
        a.e(f'v_add_u32 v{VT1}, v{VT1}, v{VT2}')
        a.e(f'v_mul_u32_u24 v{VT1}, 3072, v{VT1}')
        a.e(f'v_add_u32 v{VT1}, v{VT1}, v{VT3}')
        for p in range(4):
            off = (4 * (p & 1) + 32 * (p >> 1)) * 3072 - p * 1024
            a.e(f'v_add_u32 v{VQn+p}, {hex(off & 0xffffffff)}, v{VT1}')
        a.e(f's_mul_i32 s{S_T0}, s{S_CB2}, 224')
        M14 = (1 << 20) // 14 + 1
        a.e(f's_mov_b32 s{S_T1}, {hex(M14)}')
        for p in range(7):
            a.e(f'v_add_u32 v{VT0}, {64*p}, v{V_LANE}')
            a.e(f'v_mul_lo_u32 v{VT1}, v{VT0}, s{S_T1}')
            a.e(f'v_lshrrev_b32 v{VT1}, 20, v{VT1}')
            a.e(f'v_mul_u32_u24 v{VT2}, 14, v{VT1}')
            a.e(f'v_sub_u32 v{VT2}, v{VT0}, v{VT2}')
            a.e(f'v_mul_u32_u24 v{VW3+p}, 3584, v{VT1}')
            a.e(f'v_lshl_add_u32 v{VW3+p}, v{VT2}, 4, v{VW3+p}')
            a.e(f'v_add_u32 v{VW3+p}, s{S_T0}, v{VW3+p}')
            if p % 4: a.e(f'v_subrev_u32 v{VW3+p}, {(p%4)*1024}, v{VW3+p}')
        for u in range(448): assert (u * M14) >> 20 == u // 14

    def cs_part1():
        a.wait_vm('cs')
        a.e(f'v_bfe_u32 v{VT0}, v{V_LANE}, 2, 2')
        a.e(f'v_lshrrev_b32 v{VT1}, 4, v{V_LANE}')
        a.e(f'v_lshl_add_u32 v{VT0}, v{VT1}, 2, v{VT0}')
        a.e(f'v_lshlrev_b32 v{VT0}, 7, v{VT0}')
        a.e(f'v_and_b32 v{VT2}, 3, v{V_LANE}')
        a.e(f'v_lshl_add_u32 v{VT0}, v{VT2}, 3, v{VT0}')
        a.e(f'v_add_u32 v{VT0}, {hex(CSL)}, v{VT0}')
        for i in range(4): a.e(f'v_mov_b32 v{40+i}, 0x3f803f80')
        for j in range(4):
            for t in range(4):
                a.e(f'ds_read_b64_tr_b16 v[{64+4*t}:{65+4*t}], v{VT0} offset:{j*4096+t*32}')
                a.e(f'ds_read_b64_tr_b16 v[{66+4*t}:{67+4*t}], v{VT0} offset:{j*4096+t*32+2048}')
            a.e('s_waitcnt lgkmcnt(0)')
            for t in range(4):
                c = '0' if j == 0 else f'v[{44+4*t}:{47+4*t}]'
                a.e(f'v_mfma_f32_16x16x32_bf16 v[{44+4*t}:{47+4*t}], v[{64+4*t}:{67+4*t}], v[40:43], {c}')
        a.e(f's_mul_i32 s{S_T0}, s{94}, 15360')
        a.e(f's_lshl_b32 s{S_T1}, s{93}, 8')
        a.e(f's_add_u32 s{S_T0}, s{S_T0}, s{S_T1}')
        a.e(f's_add_u32 s{S_T0}, s{S_T0}, {hex(CSP_OFF)}')
        a.e(f'v_lshlrev_b32 v{VT1}, 4, v{VT1}')
        a.e('s_nop 7')
        set_exec(a, 0x00010001)
        for t in range(4):
            a.vmem(f'buffer_store_dwordx4 v[{44+4*t}:{47+4*t}], v{VT1}, {WS}, s{S_T0} offen offset:{64*t} sc1', 'csst')
        a.e('s_mov_b64 exec, -1')
        if opt.kv_atomic:
            zl = a.newlabel('ZK')
            a.e(f's_lshr_b32 s{S_T0}, s2, 3')
            a.e(f's_mul_i32 s{S_T0}, s{S_T0}, {KVREC}')
            a.e(f's_add_u32 s{S_T0}, s{S_T0}, {hex(KVA_OFF)}')
            a.e(f's_and_b32 s{S_T1}, s2, 0x87')
            a.e(f's_cmp_eq_u32 s{S_T1}, 0')
            a.e(f's_cselect_b32 s{S_T1}, 0, 0x80000000')
            for i in range(4): a.e(f'v_mov_b32 v{60+i}, 0')
            a.e(f'v_lshlrev_b32 v{VT0}, 4, v{V_LANE}')
            a.e(f'v_or_b32 v{VT0}, s{S_T1}, v{VT0}')
            for l_ in range(2):
                a.vmem(f'buffer_store_dwordx4 v[60:63], v{VT0}, {WS}, s{S_T0} offen sc1', 'csst')
                a.vmem(f'buffer_store_dwordx4 v[60:63], v{VT0}, {WS}, s{S_T0} offen offset:1024 sc1', 'csst')
                a.e('s_mov_b64 exec, 0xff')
                a.vmem(f'buffer_store_dwordx4 v[60:63], v{VT0}, {WS}, s{S_T0} offen offset:2048 sc1', 'csst')
                a.e('s_mov_b64 exec, -1')
                if l_ == 0: a.e(f's_add_u32 s{S_T0}, s{S_T0}, {16*KVREC}')
    def cs_part2():
        a.e(f's_lshl_b32 s{S_T0}, s2, 7')
        a.e(f's_add_u32 s{S_T0}, s{S_T0}, {hex(CSF_OFF)}')
        a.e(f'v_mov_b32 v{VT1}, s{S_T0}')
        a.e(f's_add_u32 s{S_T1}, s{S_B}, 8')
        a.e(f'v_mov_b32 v{VT0}, s{S_T1}')
        a.wait_vm('csst')
        a.e('s_mov_b64 exec, 1')
        a.vmem(f'buffer_store_dword v{VT0}, v{VT1}, {WS}, 0 offen sc1', 'csf')
        a.e('s_mov_b64 exec, -1')
    def cs_fill():
        L_ = a.newlabel('CPOLL'); D_ = a.newlabel('CPOLLD')
        a.e(f'v_min_u32 v{VT0}, 27, v{V_LANE}')
        a.e(f'v_lshrrev_b32 v{VT2}, 2, v{VT0}')
        a.e(f's_lshr_b32 s{S_T0}, s{S_CB2}, 1')
        a.e(f'v_lshlrev_b32 v{VT1}, 3, v{VT2}')
        a.e(f'v_add_u32 v{VT1}, s{S_T0}, v{VT1}')
        a.e(f's_add_u32 s{S_T0}, s{S_CB}, 24')
        a.e(f'v_mov_b32 v{VT3}, s{S_T0}')
        a.e(f'v_cmp_eq_u32 vcc, 3, v{VT2}')
        a.e('s_nop 1')
        a.e(f'v_cndmask_b32 v{VT1}, v{VT1}, v{VT3}, vcc')
        a.e(f's_mul_i32 s{S_T0}, s{S_CB2}, 112')
        a.e(f's_lshr_b32 s{S_T0}, s{S_T0}, 6')
        a.e(f's_add_u32 s{S_T0}, s{S_T0}, {32 - 4}')
        a.e(f'v_add_u32 v{VT3}, s{S_T0}, v{VT2}')
        a.e(f'v_min_u32 v{VT3}, 59, v{VT3}')
        a.e(f'v_cmp_lt_u32 vcc, 3, v{VT2}')
        a.e('s_nop 1')
        a.e(f'v_cndmask_b32 v{VT1}, v{VT1}, v{VT3}, vcc')
        a.e(f'v_and_b32 v{VT0}, 3, v{VT0}')
        a.e(f'v_lshl_add_u32 v{VT1}, v{VT1}, 2, v{VT0}')
        if opt.kv_atomic:
            a.e(f's_lshl_b32 s{S_T0}, s{S_CB2}, 3')
            a.e(f'v_mov_b32 v{VT3}, s{S_T0}')
            a.e(f'v_cmp_lt_u32 vcc, 27, v{V_LANE}')
            a.e('s_nop 1')
            a.e(f'v_cndmask_b32 v{VT1}, v{VT1}, v{VT3}, vcc')
        a.e(f'v_lshlrev_b32 v{VT1}, 7, v{VT1}')
        a.e(f's_mov_b32 s{S_T0}, {hex(CSF_OFF)}')
        a.e(f's_add_u32 s{S_T1}, s{S_B}, 8')
        a.e(f's_mov_b32 s{95}, {opt.spin}')
        a.label(L_)
        a.e(f'buffer_load_dword v40, v{VT1}, {WS}, s{S_T0} offen sc1')
        a.e('s_waitcnt vmcnt(0)')
        a.e(f'v_subrev_u32 v40, s{S_T1}, v40')
        a.e('v_cmp_gt_u32 vcc, 0x80, v40')
        a.e(f's_sub_u32 s{95}, s{95}, 1')
        a.e(f's_cbranch_scc1 {D_}')
        a.e('s_cmp_eq_u64 vcc, -1')
        a.e(f's_cbranch_scc0 {L_}')
        a.label(D_)
        a.vm = []
        def colof(dst, gofs):
            a.e(f'v_add_u32 v{VT0}, {gofs}, v{V_LANE}')
            a.e(f'v_lshlrev_b32 v{VT2}, 2, v{VT0}')
            a.e(f's_lshl_b32 s{S_T0}, s{S_CB2}, 5')
            a.e(f's_mul_i32 s{S_T1}, s{S_CB2}, 112')
            a.e(f's_add_u32 s{S_T1}, s{S_T1}, {2048 - 160}')
            a.e(f'v_add_u32 v{dst}, s{S_T1}, v{VT2}')
            for lim, addc, useb in [(40, 1536 - 96, 'cb'), (24, -64, 'hp'), (16, 1024 - 32, 'hp'), (8, 512, 'hp')]:
                if useb == 'cb':
                    a.e(f's_lshl_b32 s{S_T1}, s{S_CB}, 6')
                    a.e(f's_add_u32 s{S_T1}, s{S_T1}, {addc}')
                else:
                    a.e(f's_add_u32 s{S_T1}, s{S_T0}, {hex(addc & 0xffffffff)}')
                a.e(f'v_add_u32 v{VT3}, s{S_T1}, v{VT2}')
                a.e(f'v_cmp_gt_u32 vcc, {lim}, v{VT0}')
                a.e('s_nop 1')
                a.e(f'v_cndmask_b32 v{dst}, v{dst}, v{VT3}, vcc')
            a.e(f'v_lshlrev_b32 v{dst}, 2, v{dst}')
        colof(36, 0); colof(37, 64)
        a.e(f's_mov_b32 s{S_T0}, {hex(CSP_OFF)}')
        for kq in range(4):
            a.e(f'buffer_load_dwordx4 v[{40+4*kq}:{43+4*kq}], v36, {WS}, s{S_T0} offen sc1')
            a.e('s_mov_b64 exec, 0xf')
            a.e(f'buffer_load_dwordx4 v[{56+4*kq}:{59+4*kq}], v37, {WS}, s{S_T0} offen sc1')
            a.e('s_mov_b64 exec, -1')
            if kq < 3: a.e(f's_add_u32 s{S_T0}, s{S_T0}, 15360')
        a.e(f'v_lshlrev_b32 v{VT0}, 4, v{V_LANE}')
        a.e(f'v_add_u32 v{VT0}, {hex(CSC)}, v{VT0}')
        a.e('s_waitcnt vmcnt(0)')
        for b in (40, 56):
            for i in (0, 2):
                a.e(pk('add', b + i, vp(b + i), vp(b + 4 + i)))
                a.e(pk('add', b + 8 + i, vp(b + 8 + i), vp(b + 12 + i)))
                a.e(pk('add', b + i, vp(b + i), vp(b + 8 + i)))
        a.e(f'ds_write_b128 v{VT0}, v[40:43]')
        a.e('s_mov_b64 exec, 0xf')
        a.e(f'ds_write_b128 v{VT0}, v[56:59] offset:1024')
        a.e('s_mov_b64 exec, -1')
        a.e('s_waitcnt lgkmcnt(0)')

    if not opt.cs_late: cs_part1()
    chunks_of = {}
    for s in stream: chunks_of.setdefault((s.layer, s.phase), set()).add(s.chunk)
    nb = 0
    for ev in events:
        L, kind, p, ci = ev
        if kind == 'B':
            cur[0] = f'pre {L}.{p}.B{ci}'
            issue(0, must=(L, p, ci))
            cur[0] = f'{L}.{p}.B{ci}'
            if nb < 5: dstamp()
            a.wait_vm((L, p, ci))
            if nb == 0: hstamp(a, opt, 10)
            if nb == 1: hstamp(a, opt, 11)
            if nb < 5: dstamp()
            a.e('s_barrier')
            nb += 1
            if ci >= 2: released.add((L, p, ci - 2))
            if ci == 0:
                for (l2, p2), cs_ in chunks_of.items():
                    if p2 in NOE and (l2, PHASES.index(p2)) < (L, PHASES.index(p)):
                        for c in cs_: released.add((l2, p2, c))
            if opt.cs_late and nb <= 4:
                if nb == 1:
                    issue(16)
                    cs_part1()
                    nonce_setup()
                elif nb == 2:
                    issue(16)
                    cs_part2()
                    late_setup()
                elif nb == 3:
                    pass
                elif nb == 4:
                    cs_fill()
                    win[0] = opt.window
            elif nb == 1:
                issue(32)
                late_setup()
                cs_part2()
            elif nb == 3:
                cs_fill()
                win[0] = opt.window
            elif nb in (2, 4):
                pass
            else:
                issue(opt.caps.get(f'{p}.B{ci}', opt.caps.get(f'{p}.B*', 0)))
                park_policy(cur[0])
        elif kind == 'E':
            cur[0] = f'{L}.{p}.E'
            a.e('s_barrier')
            for c in chunks_of[(L, p)]: released.add((L, p, c))
            issue(opt.caps.get(f'{p}.E', 0))
            park_policy(cur[0])
        else:
            cur[0] = f'{L}.{p}'
            a.e('s_barrier')
            issue(opt.caps.get(p, 0))
            park_policy(cur[0])
    if opt.startdiag:
        a.e(f's_lshl_b32 s{S_T0}, s2, 8')
        a.e(f's_add_u32 s{S_T0}, s{S_T0}, {hex(TM_OFF + 128)}')
        for i in range(dg[0]):
            a.e(f'v_mov_b32 v99, {4*i}')
            a.e(f'buffer_store_dword v{100+i}, v99, {WS}, s{S_T0} offen')
    a.e('s_waitcnt vmcnt(0)')
    a.e('s_endpgm')


def gen_toucher(a, opt, events):
    a.c('--- A loader / toucher')
    mats = {'WO': (S_PTR + 4, 512 * 512 * 2), 'W1': (S_PTR + 8, 512 * 512 * 2),
            'W2': (S_PTR + 10, 512 * 512 * 2), 'W3': (S_PTR + 12, 512 * 1792 * 2), 'W4': (S_PTR + 14, 1792 * 512 * 2)}
    srds = {}
    for i, (k, (p, size)) in enumerate(mats.items()):
        s = 40 + 4 * i
        a.e(f's_mov_b32 s{s}, s{p}'); a.e(f's_mov_b32 s{s+1}, s{p+1}')
        a.e(f's_mov_b32 s{s+2}, {hex(size)}'); a.e(f's_mov_b32 s{s+3}, 0x20000')
        srds[k] = s
    T0s, T1s, T2s, T3s, T4s, T5s = 33, 34, 35, 36, 37, 38
    THR, SPIN = 60, 61
    RA, P7T = 64, 68
    U0, U1, U2, U3, U4 = 76, 77, 78, 79, 80
    VAS, VAG, VFS, VFB, VFH, VAH = 3, 4, 5, 6, 7, 8
    X0, X1, X2, X3 = 24, 25, 26, 27
    X0W = 31
    e = a.e
    VXK = 40
    e(f'v_lshrrev_b32 v2, 4, v{V_LANE}')
    e(f'v_and_b32 v3, 15, v{V_LANE}')
    for k in range(4):
        e(f'v_add_u32 v{VXK+k}, {4*k}, v2'); e(f'v_xor_b32 v{VXK+k}, v{VXK+k}, v3'); e(f'v_lshlrev_b32 v{VXK+k}, 4, v{VXK+k}')
        e(f'v_lshl_add_u32 v{VXK+k}, v2, 10, v{VXK+k}')
    e(f's_lshl_b32 s33, s{S_G}, 8'); e(f's_lshl_b32 s34, s{S_RB2}, 7'); e('s_add_u32 s33, s33, s34'); e('s_lshl_b32 s82, s33, 10')
    e(f's_lshl_b32 s83, s{S_RB2}, 1'); e(f's_add_u32 s83, s83, s{S_CB2}'); e(f's_and_b32 s83, s83, {3 if opt.rot else 0}')
    e(f's_lshr_b32 s81, s{S_CB2}, 2'); e(f's_lshl_b32 s81, s81, {13 if opt.rot else 31}')
    if not opt.rot: e('s_mov_b32 s81, 0')
    def x_chunk(c, half=None):
        e(f's_xor_b32 s33, s83, {c}'); e('s_lshl_b32 s33, s33, 8'); e('s_add_u32 s33, s33, s82')
        if half == 1:
            e('s_add_u32 s34, s81, 16384'); e('s_and_b32 s34, s34, 0x7fff')
        else:
            e('s_mov_b32 s34, s81')
        n = 8 if half is None else 4
        e(f's_mov_b32 s36, {n}')
        lp = a.newlabel('XC'); a.label(lp)
        for k in range(4):
            e(f's_add_u32 m0, s34, {hex(AREG + (c & 1) * 32768)}')
            e('s_lshl_b32 s35, s34, 2'); e('s_add_u32 s35, s35, s33')
            e(f'buffer_load_dwordx4 v{VXK + k}, s[{S_X}:{S_X+3}], s35 offen lds')
            e('s_add_u32 s34, s34, 1024')
        e('s_and_b32 s34, s34, 0x7fff')
        e('s_sub_u32 s36, s36, 1'); e('s_cmp_lg_u32 s36, 0'); e(f's_cbranch_scc1 {lp}')
        a.vm += [('X', c)] * (4 * n)
        assert len(a.vm) <= 63
    def x_tile():
        e(f'v_lshrrev_b32 v2, 3, v{V_LANE}'); e('v_lshlrev_b32 v2, 10, v2')
        e(f'v_and_b32 v30, 7, v{V_LANE}'); e('v_lshl_add_u32 v2, v30, 4, v2')
        e(f's_lshl_b32 s33, s{S_G}, 8'); e(f's_lshl_b32 s34, s{S_RB}, 6'); e('s_add_u32 s33, s33, s34'); e('s_lshl_b32 s33, s33, 10')
        e(f's_lshl_b32 s34, s{S_CB}, 7'); e('s_add_u32 s33, s33, s34')
        for p_ in range(8):
            e(f's_mov_b32 m0, {hex(AREG + p_ * 1024)}')
            if p_: e('s_add_u32 s33, s33, 8192')
            else: e('s_nop 0')
            a.vmem(f'buffer_load_dwordx4 v2, s[{S_X}:{S_X+3}], s33 offen lds', 'x')
    if WARM0[0]:
        e('s_barrier')
        events = events[1:]
    hstamp(a, opt, 12)
    x_chunk(0); x_chunk(1, 0)
    hstamp(a, opt, 13)
    e(f'v_lshlrev_b32 v1, 7, v{V_LANE}')
    e(f'v_lshlrev_b32 v{X0}, 4, v{V_LANE}')
    e(f'v_lshlrev_b32 v{X0W}, 4, v{V_LANE}')
    e(f's_lshl_b32 s{T0s}, s{S_G}, 4'); e(f's_lshl_b32 s{T1s}, s{S_RB}, 2'); e(f's_add_u32 s{T0s}, s{T0s}, s{T1s}')
    e(f's_lshl_b32 s{T1s}, s{T0s}, 14'); e(f'v_add_u32 v{VAS}, s{T1s}, v{X0}')
    e(f's_mul_i32 s{T1s}, s{T0s}, 57344'); e(f'v_add_u32 v{VAG}, s{T1s}, v{X0}')
    rmask = 3 if opt.rot else 0
    for c in range(4):
        e(f's_and_b32 s{RA+c}, s{S_RB}, {rmask}'); e(f's_xor_b32 s{RA+c}, s{RA+c}, {c}'); e(f's_lshl_b32 s{RA+c}, s{RA+c}, 12')
    for p_ in range(8):
        e(f's_and_b32 s{P7T+p_}, s{S_RB}, {rmask}'); e(f's_lshl_b32 s{P7T+p_}, s{P7T+p_}, 1')
        e(f's_xor_b32 s{P7T+p_}, s{P7T+p_}, {p_}'); e(f's_mul_i32 s{P7T+p_}, s{P7T+p_}, 7168')
    e(f'v_and_b32 v{X1}, 15, v{V_LANE}')
    e(f'v_and_b32 v{X2}, 0x30, v{V_LANE}')
    e(f's_mul_i32 s{T3s}, s{S_G}, 18')
    e(f's_lshl_b32 s{T4s}, s{S_G}, 8')
    for c in range(4):
        e(f's_lshr_b32 s{T5s}, s{RA+c}, 12')
        e(f's_lshr_b32 s{U3}, s{T5s}, 1'); e(f's_add_u32 s{U3}, s{U3}, 1'); e(f's_sub_u32 s{U4}, 0, s{U3}')
        e(f's_bitcmp1_b32 s{T5s}, 0'); e(f's_cselect_b32 s{U3}, s{U3}, s{U4}')
        e(f's_lshl_b32 s{T2s}, s{S_RB}, 6'); e(f's_add_u32 s{T2s}, s{T2s}, s{U3}'); e(f's_add_u32 s{T2s}, s{T2s}, 16')
        for w in range(4):
            r = VAH + 4 * c + w
            e(f's_add_u32 s{T5s}, s{T2s}, {16 * w}')
            e(f'v_add_u32 v{r}, s{T5s}, v{X1}')
            e(f'v_lshrrev_b32 v{X3}, 4, v{r}'); e(f'v_add_u32 v{X3}, s{T3s}, v{X3}'); e(f'v_lshlrev_b32 v{X3}, 14, v{X3}')
            e(f'v_and_b32 v28, 15, v{r}'); e(f'v_add_u32 v28, v{X2}, v28'); e(f'v_lshl_add_u32 v{X3}, v28, 4, v{X3}')
            e(f'v_add_u32 v28, s{T4s}, v{r}'); e('v_subrev_u32 v28, 16, v28')
            e('v_cmp_gt_u32 vcc, 0x800, v28')
            e(f'v_mov_b32 v{r}, 0x80000000'); e('s_nop 0')
            e(f'v_cndmask_b32 v{r}, v{r}, v{X3}, vcc')
    e(f's_lshl_b32 s{T2s}, s{S_G}, 9'); e(f's_add_u32 s{T2s}, s{T2s}, {hex(LF_OFF)}')
    e(f'v_bfe_u32 v{X1}, v{V_LANE}, 3, 2'); e(f'v_lshlrev_b32 v{X1}, 7, v{X1}')
    e(f'v_and_b32 v{X2}, 7, v{V_LANE}'); e(f'v_lshl_add_u32 v{X1}, v{X2}, 2, v{X1}')
    e(f's_lshl_b32 s{T3s}, s{S_RB}, 5'); e(f's_add_u32 s{T3s}, s{T3s}, s{T2s}')
    e(f'v_add_u32 v{VFS}, s{T3s}, v{X1}')
    e(f's_and_b32 s{T3s}, s{S_RB}, 1'); e(f's_lshl_b32 s{T3s}, s{T3s}, 8'); e(f's_add_u32 s{T3s}, s{T3s}, s{T2s}')
    e(f's_lshr_b32 s{T4s}, s{S_RB}, 1'); e(f's_lshl_b32 s{T4s}, s{T4s}, 6'); e(f's_add_u32 s{T3s}, s{T3s}, s{T4s}')
    e(f'v_bfe_u32 v{X2}, v{V_LANE}, 4, 1'); e(f'v_lshlrev_b32 v{X2}, 7, v{X2}')
    e(f'v_and_b32 v{X3}, 15, v{V_LANE}'); e(f'v_lshl_add_u32 v{X2}, v{X3}, 2, v{X2}')
    e(f'v_add_u32 v{VFB}, s{T3s}, v{X2}')
    e(f's_lshl_b32 s{T3s}, s{S_R}, 2'); e(f's_add_u32 s{T3s}, s{T3s}, s{T2s}')
    e(f'v_and_b32 v{X2}, 3, v{V_LANE}'); e(f'v_lshlrev_b32 v{X2}, 7, v{X2}'); e(f'v_add_u32 v{X2}, s{T3s}, v{X2}')
    e(f'v_cmp_lt_u32 vcc, 31, v{V_LANE}'); e('s_nop 1')
    e(f'v_cndmask_b32 v{VFB}, v{VFB}, v{X2}, vcc')
    def build_fh(L):
        la = a.newlabel('FH'); lb = a.newlabel('FH')
        e(f's_lshl_b32 s{T2s}, s{S_G}, 9'); e(f's_add_u32 s{T2s}, s{T2s}, {hex(LF_OFF)}')
        e(f's_lshl_b32 s{T3s}, s{S_RB}, 5'); e(f's_add_u32 s{T3s}, s{T3s}, s{T2s}')
        e(f's_sub_u32 s{U1}, s{T3s}, 32'); e(f's_add_u32 s{U1}, s{U1}, 256'); e(f's_mov_b32 s{U3}, 128')
        e(f's_add_u32 s{U2}, s{T3s}, 32'); e(f's_mov_b32 s{U4}, 128')
        e(f's_lshl_b32 s{T4s}, s{S_G}, 8'); e(f's_add_u32 s{T4s}, s{T4s}, {hex(HF_OFF + L * 2048)}')
        e(f's_cmp_eq_u32 s{S_RB}, 0'); e(f's_cbranch_scc0 {la}')
        e(f's_mov_b32 s{U1}, s{T3s}')
        e(f's_cmp_eq_u32 s{S_G}, 0'); e(f's_cbranch_scc1 {la}')
        e(f's_mov_b32 s{U1}, s{T4s}'); e(f's_mov_b32 s{U3}, 0')
        a.label(la)
        e(f's_cmp_eq_u32 s{S_RB}, 3'); e(f's_cbranch_scc0 {lb}')
        e(f's_mov_b32 s{U2}, s{T3s}')
        e(f's_cmp_eq_u32 s{S_G}, 7'); e(f's_cbranch_scc1 {lb}')
        e(f's_add_u32 s{U2}, s{T4s}, 128'); e(f's_mov_b32 s{U4}, 0')
        a.label(lb)
        e(f'v_bfe_u32 v{X1}, v{V_LANE}, 3, 1'); e(f'v_and_b32 v{X2}, 7, v{V_LANE}'); e(f'v_lshlrev_b32 v{X2}, 2, v{X2}')
        for base_s, mul_s, sel in ((U1, U3, 2), (U2, U4, 3)):
            e(f'v_mul_u32_u24 v{X3}, s{mul_s}, v{X1}'); e(f'v_add_u32 v{X3}, v{X3}, v{X2}'); e(f'v_add_u32 v{X3}, s{base_s}, v{X3}')
            e(f'v_lshrrev_b32 v28, 4, v{V_LANE}'); e(f'v_cmp_eq_u32 vcc, {sel}, v28'); e('s_nop 1')
            e(f'v_cndmask_b32 v{VFH}, v{VFH if sel == 3 else VFS}, v{X3}, vcc')
    e('s_waitcnt lgkmcnt(0)')
    e(f's_mul_i32 s{S_B}, s{S_V}, 0x9e3779b1'); e(f's_add_u32 s{S_B}, s{S_B}, 0x7f4a7c15'); e(f's_and_b32 s{S_B}, s{S_B}, 0xffffff00')

    def poll(v, epoch):
        L_ = a.newlabel('AP'); D_ = a.newlabel('APD')
        e(f's_add_u32 s{THR}, s{S_B}, {8*epoch}'); e(f's_mov_b32 s{SPIN}, {opt.spin}')
        a.label(L_)
        e(f'buffer_load_dword v30, v{v}, {WS}, 0 offen sc1'); e('s_waitcnt vmcnt(0)')
        e(f'v_subrev_u32 v30, s{THR}, v30'); e('v_cmp_gt_u32 vcc, 0x80, v30')
        e(f's_sub_u32 s{SPIN}, s{SPIN}, 1'); e(f's_cbranch_scc1 {D_}')
        e('s_cmp_eq_u64 vcc, -1')
        if opt.poll_sleep:
            e(f's_cbranch_scc1 {D_}'); e(f's_sleep {opt.poll_sleep}'); e(f's_branch {L_}')
        else:
            e(f's_cbranch_scc0 {L_}')
        a.label(D_); a.vm = []
    def a_chunk(phase, c):
        for w in range(4):
            e(f's_mov_b32 m0, {hex(AREG + (c % 4) * 16384 + w * 4096)}')
            if phase == 'P7':
                last = None
                for k in range(4):
                    p_, i_ = divmod(4 * c + k, 7)
                    const = G_OFF + w * 57344 + (i_ - k) * 1024
                    if last != (p_, const):
                        e(f's_add_u32 s{T0s}, s{P7T+p_}, {hex(const & 0xffffffff)}'); last = (p_, const)
                    a.vmem(f'buffer_load_dwordx4 v{VAG}, {WS}, s{T0s} offen offset:{k*1024} sc1 lds', ('A', phase, c))
            else:
                if phase == 'P5':
                    va = VAH + 4 * c + w; e(f's_add_u32 s{T0s}, s{RA+c}, {hex(A0_OFF)}' if A0_OFF else f's_mov_b32 s{T0s}, s{RA+c}')
                elif phase == 'P3':
                    va = VAS; e(f's_add_u32 s{T0s}, s{RA+c}, s{U0}'); e(f's_add_u32 s{T0s}, s{T0s}, {hex(A0_OFF + w * 16384)}')
                else:
                    va = VAS; e(f's_add_u32 s{T0s}, s{RA+c}, {hex(A1_OFF + w * 16384)}')
                for k in range(4):
                    a.vmem(f'buffer_load_dwordx4 v{va}, {WS}, s{T0s} offen offset:{k*1024} sc1 lds', ('A', phase, c))
    e(f's_lshl_b32 s{U0}, s{S_G}, 1'); e(f's_add_u32 s{U0}, s{U0}, 1'); e(f's_lshl_b32 s{U0}, s{U0}, 14')

    dummy = [0]
    def wide(srd_s, soff_s):
        d = 64 + 4 * (dummy[0] % 40); dummy[0] += 1
        fl = 'sc1' if srd_s == WS else opt.touch_flags
        a.vmem(f'buffer_load_dwordx4 v[{d}:{d+3}], v{X0W}, {srd_s}, s{soff_s} offen {fl}', 'T')
    def mall_touch():
        for k in ['WO', 'W2', 'W4']:
            size = mats[k][1]; per = size // 256
            s = srds[k]
            e(f's_mul_i32 s{T0s}, s2, {per}')
            for i in range(per // 1024):
                if i: e(f's_add_u32 s{T0s}, s{T0s}, 1024')
                wide(f's[{s}:{s+3}]', T0s)
    def g_touch():
        e(f's_mul_i32 s{T0s}, s{S_G}, {16 * 57344}'); e(f's_mul_i32 s{T1s}, s{S_R}, 28672')
        e(f's_add_u32 s{T0s}, s{T0s}, s{T1s}'); e(f's_add_u32 s{T0s}, s{T0s}, {hex(G_OFF)}')
        for i in range(28):
            if i: e(f's_add_u32 s{T0s}, s{T0s}, 1024')
            wide(WS, T0s)
    def key(sx):
        k, p, c = sx.split(',')
        return (0, k, p, None if c == '-' else int(c))
    EPO = {'P3': 1, 'P4': 2, 'P5': 3, 'P7': 5}
    if opt.p7_self: del EPO['P7']
    nxt = 0
    for ev in events:
        L, kind, p, ci = ev
        if kind == 'B' and p in EPO:
            nch = NCH[p]
            if ci == 0:
                if p == 'P5': build_fh(L)
                poll({'P3': VFB, 'P4': VFS, 'P5': VFH, 'P7': VFB}[p], 1 + 6 * L + EPO[p])
                a_chunk(p, 0); a_chunk(p, 1); nxt = 2
            a.wait_vm(('A', p, ci))
            e('s_barrier')
            while nxt < nch and (nxt <= ci + 2 or nxt <= 3) and nxt <= ci + 2 + (1 if ci == 0 and False else 0):
                a_chunk(p, nxt); nxt += 1
        elif L == 0 and kind == 'B' and p == 'P1KV':
            a.wait_vm(('X', ci))
            if ci == 0: hstamp(a, opt, 14)
            if ci == 2: hstamp(a, opt, 15)
            e('s_barrier')
            if ci == 0: x_chunk(1, 1)
            if 1 <= ci <= 2: x_chunk(ci + 1)
            if ci == 3: x_tile()
        else:
            if ev == (0, 'E', 'P1KV', None): a.wait_vm('x')
            e('s_barrier')
        if opt.touch and opt.touch_at and ev == key(opt.touch_at): mall_touch()
        if opt.gtouch_at and ev == key(opt.gtouch_at) and not (opt.gtouch_parker and opt.park): g_touch()
    e('s_waitcnt vmcnt(0)')
    e('s_endpgm')


def gen_parker(a, opt, events, h):
    e = a.e
    a.c(f'--- parker {h}')
    plan = opt._plan
    W3S, W4S, CB6, CB7 = 40, 44, 64, 68
    QS = 48
    e(f's_mov_b32 s{QS}, s{S_PTR+2}'); e(f's_mov_b32 s{QS+1}, s{S_PTR+3}'); e(f's_mov_b32 s{QS+2}, {hex(512*1536*2)}'); e(f's_mov_b32 s{QS+3}, 0x20000')
    for s_, p_, size in ((W3S, S_PTR + 12, 512 * 1792 * 2), (W4S, S_PTR + 14, 1792 * 512 * 2)):
        e(f's_mov_b32 s{s_}, s{p_}'); e(f's_mov_b32 s{s_+1}, s{p_+1}'); e(f's_mov_b32 s{s_+2}, {hex(size)}'); e(f's_mov_b32 s{s_+3}, 0x20000')
    e(f'v_lshlrev_b32 v1, 4, v{V_LANE}')
    if WARM0[0]:
        e(f's_mul_i32 s33, s{S_R}, 49152')
        if h: e('s_add_u32 s33, s33, 24576')
        k_ = 0
        if h == 0:
            e(f's_lshl_b32 s34, s{S_G}, 18'); e(f's_lshl_b32 s35, s{S_R}, 13'); e('s_add_u32 s34, s34, s35')
            for i in range(8):
                a.vmem(f'buffer_load_dwordx4 v[{16+4*k_}:{19+4*k_}], v1, s[{S_X}:{S_X+3}], s34 offen', 'T'); k_ += 1
                e('s_add_u32 s34, s34, 1024')
        for i in range(24):
            a.vmem(f'buffer_load_dwordx4 v[{16+4*k_}:{19+4*k_}], v1, s[{QS}:{QS+3}], s33 offen', 'T'); k_ += 1
            e('s_add_u32 s33, s33, 1024')
    rm = 3 if opt.rot else 0
    for c in range(4):
        e(f's_lshl_b32 s{CB6+c}, s{S_RB2}, 1'); e(f's_and_b32 s{CB6+c}, s{CB6+c}, {rm}'); e(f's_xor_b32 s{CB6+c}, s{CB6+c}, {c}')
        e(f's_mul_i32 s{CB6+c}, s{CB6+c}, {128*3584}')
    for p_ in range(8):
        e(f's_and_b32 s{CB7+p_}, s{S_RB}, {rm}'); e(f's_lshl_b32 s{CB7+p_}, s{CB7+p_}, 1'); e(f's_xor_b32 s{CB7+p_}, s{CB7+p_}, {p_}')
        e(f's_mul_i32 s{CB7+p_}, s{CB7+p_}, {224*1024}')
    VN, VW, VL, X0, X1, X2 = 2, 4, 8, 11, 12, 13
    e(f'v_lshrrev_b32 v{X0}, 3, v{V_LANE}'); e(f'v_bfe_u32 v{X1}, v{X0}, 1, 1'); e(f'v_lshlrev_b32 v{X1}, 2, v{X1}')
    e(f'v_and_b32 v{X2}, 7, v{V_LANE}'); e(f'v_xor_b32 v{X2}, v{X2}, v{X1}')
    e(f'v_lshlrev_b32 v{VN}, 10, v{X0}'); e(f'v_lshl_add_u32 v{VN}, v{X2}, 4, v{VN}')
    e(f's_lshl_b32 s33, s{S_CB}, 7'); e(f'v_add_u32 v{VN}, s33, v{VN}'); e(f'v_add_u32 v{VN+1}, {hex(8192-1024)}, v{VN}')
    ps = [0, 1, 2, 3] if h == 0 else [4, 5, 6]
    M14 = (1 << 20) // 14 + 1
    e(f's_mul_i32 s33, s{S_CB2}, 224'); e(f's_mov_b32 s34, {hex(M14)}')
    for k, p_ in enumerate(ps):
        e(f'v_add_u32 v{X0}, {64*p_}, v{V_LANE}'); e(f'v_mul_lo_u32 v{X1}, v{X0}, s34'); e(f'v_lshrrev_b32 v{X1}, 20, v{X1}')
        e(f'v_mul_u32_u24 v{X2}, 14, v{X1}'); e(f'v_sub_u32 v{X2}, v{X0}, v{X2}')
        e(f'v_mul_u32_u24 v{VW+k}, 3584, v{X1}'); e(f'v_lshl_add_u32 v{VW+k}, v{X2}, 4, v{VW+k}'); e(f'v_add_u32 v{VW+k}, s33, v{VW+k}')
    e(f'v_lshlrev_b32 v{VL}, 4, v{V_LANE}'); e(f'v_add_u32 v{VL+1}, 0x10000, v{VL}'); e(f'v_add_u32 v{VL+2}, 0x20000, v{VL}')
    def wide(base_expr_emit, n):
        base_expr_emit()
        for i in range(n):
            if i: e('s_add_u32 s33, s33, 1024')
            a.vmem(f'buffer_load_dwordx4 v[{240+4*(i%4)}:{243+4*(i%4)}], v{VL}, {WS}, s33 offen sc1', 'T')
    def touch_a0():
        wide(lambda: (e(f's_mul_i32 s33, s{S_G}, {18*16384}'), e(f's_mul_i32 s34, s{S_R}, 9216'), e('s_add_u32 s33, s33, s34'), e(f's_add_u32 s33, s33, {hex(A0_OFF)}') if A0_OFF else None), 9)
    def touch_lin(off, per_group):
        wide(lambda: (e(f's_mul_i32 s33, s{S_G}, {per_group}'), e(f's_mul_i32 s34, s{S_R}, {per_group // 32}'), e('s_add_u32 s33, s33, s34'), e(f's_add_u32 s33, s33, {hex(off)}')), per_group // 32 // 1024)
    if WARM0[0]:
        a.wait_vm_all()
        e('s_barrier')
        events = events[1:]
    def tkey(sx):
        k, p, c = sx.split(',')
        return (0, k, p, None if c == '-' else int(c))
    slots = list(range(56))
    held = {}
    pending = set()
    def do(actions):
        for act, s_ in actions:
            if act == 'park':
                if s_.kind == 'W3':
                    c_, rr_ = divmod(s_.srow, 128)
                    e(f's_add_u32 s33, s{CB6+c_}, {hex(rr_*3584)}')
                    regs = []
                    for k, p_ in enumerate(ps):
                        sl = slots.pop(0); regs.append((sl, p_))
                        a.vmem(f'buffer_load_dwordx4 v[{16+4*sl}:{19+4*sl}], v{VW+k}, s[{W3S}:{W3S+3}], s33 offen', id(s_))
                else:
                    srow = s_.srow if h == 0 else s_.srow2
                    p_, rr_ = divmod(srow, 224)
                    e(f's_add_u32 s33, s{CB7+p_}, {hex(rr_*1024)}')
                    regs = []
                    for k in range(2):
                        sl = slots.pop(0); regs.append((sl, 2 * h + k))
                        a.vmem(f'buffer_load_dwordx4 v[{16+4*sl}:{19+4*sl}], v{VN+k}, s[{W4S}:{W4S+3}], s33 offen offset:{k*1024}', id(s_))
                held[id(s_)] = regs
            else:
                a.wait_vm(id(s_))
                for sl, p_ in held.pop(id(s_)):
                    ad = s_.addr + p_ * 1024
                    e(f'ds_write_b128 v{VL + (ad >> 16)}, v[{16+4*sl}:{19+4*sl}] offset:{ad & 0xffff}')
                    slots.append(sl)
                pending.add((s_.layer, s_.phase, s_.chunk))
    for ev in events:
        L, kind, p, ci = ev
        if kind == 'B':
            do(plan.get(f'pre {L}.{p}.B{ci}', []))
            if (L, p, ci) in pending:
                e('s_waitcnt lgkmcnt(0)'); pending.clear()
            e('s_barrier')
            acts = plan.get(f'{L}.{p}.B{ci}', [])
        elif kind == 'E':
            e('s_barrier'); acts = plan.get(f'{L}.{p}.E', [])
        else:
            e('s_barrier'); acts = plan.get(f'{L}.{p}', [])
        do([x for x in acts if x[0] == 'unpark'])
        do([x for x in acts if x[0] == 'park'])
        if opt.pretouch and h == 1 and ev == tkey(opt.a2touch_at): touch_lin(A2_OFF, 262144)
        if opt.gtouch_parker and opt.gtouch_at and ev == tkey(opt.gtouch_at):
            wide(lambda: (e(f's_mul_i32 s33, s{S_G}, {16*57344}'), e(f's_mul_i32 s34, s{S_R}, 28672'), e('s_add_u32 s33, s33, s34'),
                          e(f's_add_u32 s33, s33, {hex(G_OFF + h * 14336)}')), 14)
        if opt.pretouch and ev == tkey(opt.a01touch_at):
            if h == 0:
                touch_a0(); touch_lin(ST_OFF, 32768)
            else:
                touch_lin(A1_OFF, 262144)
    e('s_waitcnt vmcnt(0) lgkmcnt(0)')
    e('s_endpgm')


def generate(opt):
    ATOMIC[0] = opt.kv_atomic
    WARM0[0] = 1 if (opt.warm0 and opt.park) else 0
    events = build_events(opt.stop)
    a = Asm(); a.opt = opt
    hdr = open(os.path.join(os.path.dirname(os.path.abspath(__file__)), 'header.txt')).read()
    out = [hdr.rstrip('\n')]
    out.append(f'; @launch grid=(256,1,1) block=({64*(8 if opt.park else 6)},1,1) lds={LDS_TOTAL}')
    out += ['.amdgcn_target "amdgcn-amd-amdhsa--gfx950"', '.text', f'.globl {KNAME}', '.p2align 8',
            f'.type {KNAME},@function', f'{KNAME}:']
    a.e('s_cmp_ge_u32 s2, 256')
    a.e('s_cbranch_scc1 L_EXIT')
    if opt.startdiag: a.e('s_memtime s[100:101]')
    if opt.dbgout >= 0 and opt.fine: a.e('s_memtime s[96:97]')
    if opt.wall:
        a.e('s_memrealtime s[18:19]') if False else None
    a.e(f's_load_dwordx16 s[{S_PTR}:{S_PTR+15}], s[0:1], 0')
    a.e(f's_load_dwordx4 s[{S_PTR+16}:{S_PTR+19}], s[0:1], 64')
    a.e(f's_load_dwordx2 s[{S_PTR+20}:{S_PTR+21}], s[0:1], 80')
    a.e('v_lshrrev_b32 v1, 6, v0')
    a.e('s_nop 0')
    if opt.prefetch_code:
        a.e('s_getpc_b64 s[34:35]')
        a.label('L_PC')
        a.e(f's_sub_u32 s34, s34, (L_PC - {KNAME})')
        a.e('s_subb_u32 s35, s35, 0')
        a.e('s_lshr_b32 s36, s2, 3')
        a.e('s_mul_i32 s36, s36, 2560')
        a.e('v_lshlrev_b32 v2, 7, v0')
        a.e('v_add_u32 v2, s36, v2')
        a.e(f's_mov_b32 s36, (L_CODE_END - {KNAME} - 4)')
        a.e('v_min_u32 v2, s36, v2')
        a.e('v_and_b32 v2, -4, v2')
        a.e('v_cmp_gt_u32 vcc, 20, v0')
        a.e('s_and_saveexec_b64 s[36:37], vcc')
        a.e('s_cbranch_execz L_NOPF')
        a.e('global_load_dword v255, v2, s[34:35]')
        a.label('L_NOPF')
        a.e('s_mov_b64 exec, s[36:37]')
    a.e(f'v_readfirstlane_b32 s{S_W}, v1')
    a.e(f'v_and_b32 v{V_LANE}, 63, v0')
    a.e(f's_getreg_b32 s{S_XCC}, hwreg(HW_REG_XCC_ID)')
    a.e(f's_and_b32 s{S_XCC}, s{S_XCC}, 7')
    a.e(f's_and_b32 s{S_G}, s2, 7')
    a.e(f's_lshr_b32 s{S_R}, s2, 3')
    a.e(f's_lshr_b32 s{S_RB}, s{S_R}, 3')
    a.e(f's_and_b32 s{S_CB}, s{S_R}, 7')
    a.e(f's_lshr_b32 s{S_RB2}, s{S_R}, 4')
    a.e(f's_and_b32 s{S_CB2}, s{S_R}, 15')
    a.e('s_waitcnt lgkmcnt(0)')
    if opt.ws_base:
        a.e(f's_add_u32 s{S_PTR+20}, s{S_PTR+20}, {hex(opt.ws_base)}')
        a.e(f's_addc_u32 s{S_PTR+21}, s{S_PTR+21}, 0')
    a.e(f's_add_u32 s34, s{S_PTR+20}, {hex(NONCE_OFF)}')
    a.e(f's_addc_u32 s35, s{S_PTR+21}, 0')
    a.e(f's_load_dword s{S_V}, s[34:35], 0')
    def srd(s, p, size):
        a.e(f's_mov_b32 s{s}, s{p}'); a.e(f's_mov_b32 s{s+1}, s{p+1}')
        a.e(f's_mov_b32 s{s+2}, {hex(size)}'); a.e(f's_mov_b32 s{s+3}, 0x20000')
    if opt.dbgout >= 0:
        a.e(f's_mov_b32 s86, s{S_PTR+18}'); a.e(f's_mov_b32 s87, s{S_PTR+19}')
    srd(S_WS, S_PTR + 20, WS_USED)
    srd(S_X, S_PTR + 0, 2048 * 512 * 2)
    srd(S_OUT, S_PTR + 16, 2048 * 512 * 2)
    a.e(f's_cmp_lt_u32 s{S_W}, 4')
    a.e('s_cbranch_scc1 L_COMPUTE')
    if opt.park:
        for wv in (6, 7):
            a.e(f's_cmp_eq_u32 s{S_W}, {wv}')
            a.e(f's_cbranch_scc0 L_NOTP{wv}')
            a.e('s_getpc_b64 s[34:35]')
            a.label(f'L_PCP{wv}')
            a.e(f's_add_u32 s34, s34, (L_PARKER{wv} - L_PCP{wv})')
            a.e('s_addc_u32 s35, s35, 0')
            a.e('s_setpc_b64 s[34:35]')
            a.label(f'L_NOTP{wv}')
    a.e(f's_cmp_eq_u32 s{S_W}, 5')
    a.e('s_cbranch_scc0 L_GOLOADER')
    a.e('s_getpc_b64 s[34:35]')
    a.label('L_PC3')
    a.e('s_add_u32 s34, s34, (L_TOUCHER - L_PC3)')
    a.e('s_addc_u32 s35, s35, 0')
    a.e('s_setpc_b64 s[34:35]')
    a.label('L_GOLOADER')
    a.e('s_getpc_b64 s[34:35]')
    a.label('L_PC2')
    a.e('s_add_u32 s34, s34, (L_LOADER - L_PC2)')
    a.e('s_addc_u32 s35, s35, 0')
    a.e('s_setpc_b64 s[34:35]')
    a.label('L_EXIT')
    a.e('s_endpgm')
    a.label('L_COMPUTE')
    a.vm = []
    if opt.stop is not None and opt.stop[0] == 0: cev = events
    else: cev = [e for e in build_events(None) if e[0] == 0]
    rest = gen_compute(a, opt, cev)
    assert not rest, rest
    a.label('L_LOADER')
    a.vm = []
    a.fstamp = lambda p: None
    gen_loader(a, opt, events)
    a.label('L_TOUCHER')
    a.vm = []
    gen_toucher(a, opt, events)
    if opt.park:
        for wv in (6, 7):
            a.label(f'L_PARKER{wv}')
            a.vm = []
            gen_parker(a, opt, events, wv - 6)
    a.label('L_CODE_END')
    out.append(a.text())
    out += ['.section .rodata,"a"', '.p2align 6', f'.amdhsa_kernel {KNAME}',
            '  .amdhsa_next_free_vgpr 256', '  .amdhsa_next_free_sgpr 102', '  .amdhsa_accum_offset 256',
            '  .amdhsa_group_segment_fixed_size 0', '  .amdhsa_kernarg_size 88', '  .amdhsa_user_sgpr_count 2',
            '  .amdhsa_user_sgpr_kernarg_segment_ptr 1', '  .amdhsa_system_sgpr_workgroup_id_x 1', '.end_amdhsa_kernel']
    return '\n'.join(out) + '\n'


if __name__ == '__main__':
    import argparse
    ap = argparse.ArgumentParser()
    ap.add_argument('-o', default='interleave_layers__linear_attn_block__mixer_s_mlp__prompt.s')
    ap.add_argument('--stop', default=None)
    ap.add_argument('--timing', action='store_true')
    ap.add_argument('--safe', action='store_true')
    ap.add_argument('--set', action='append', default=[])
    ap.add_argument('--fine', default=None)
    args = ap.parse_args()
    opt = Opt()
    if args.stop:
        l, p = args.stop.split(','); opt.stop = (int(l), p)
    opt.timing = args.timing; opt.force_safe = args.safe; opt.fine = args.fine
    opt.caps = dict(Opt.caps); opt.park_w3 = dict(Opt.park_w3); opt.park_caps = dict(Opt.park_caps)
    for kv in args.set:
        k, v = kv.split('=')
        if k.startswith('pk3:'): opt.park_w3[k[4:]] = int(v)
        elif k.startswith('pk4:'): opt.park_caps[k[4:]] = int(v)
        elif '.' in k or k in ('X1', 'X2'): opt.caps[k] = int(v)
        else:
            try: setattr(opt, k, int(v))
            except ValueError: setattr(opt, k, v.replace(':', ','))
    open(args.o, 'w').write(generate(opt))
    print('written', args.o)
    if os.environ.get('SCHED'):
        import itertools
        for k, g in itertools.groupby(opt._log, key=lambda x: x[0]):
            g = list(g); d = {}
            for x in g: d[(x[1], x[2], x[3])] = d.get((x[1], x[2], x[3]), 0) + 1
            print(k, ' '.join(f'{a_}.{b_}.c{c_}x{n_}' for (a_, b_, c_), n_ in d.items()), 'FORCED' if any(x[4] for x in g) else '')
```

```python
import sys, os, struct

KNAME = 'interleave_layers__linear_attn_block__mixer_s_mlp__prompt_kernel'

class Opt:
    stop = None
    timing = False
    fine = None
    force_safe = False
    window = 40
    window0 = 60
    caps = {'P1KV.E': 64, 'P1Q.B0': 16, 'P1Q.B1': 16, 'P1Q.E': 32,
            'P3.B0': 0, 'P3.B1': 32, 'P3.B2': 16, 'P3.B3': 16,
            'P4.B1': 32, 'P4.B2': 16, 'P4.B3': 16,
            'P5.B1': 35, 'P5.B2': 14, 'P5.B3': 21,
            'P6.B0': 28, 'P6.B1': 16, 'P6.B2': 16, 'P6.B3': 16, 'P6.E': 64,
            'P7.B*': 16, 'P7.E': 64}
    cap0 = 0
    touch = True
    dbg_w_same = 0
    w_nt = 0
    g_cold = 0
    touch_at = 'B,P1Q,0'
    rot = 1
    prio_c = 0
    prio_a = 0
    prio_l = 0
    phi_clamp = 1
    warm0 = 0
    cs_late = 0
    poll_sleep = 0
    dbgout = -1
    dbgwg = 100
    pretouch = 1
    a2touch_at = 'B,P6,3'
    a01touch_at = 'B,P1KV,2'
    gtouch_parker = 1
    park = 1
    park_w3 = {'P1KV.E': 2, 'X1': 2, 'P1Q.E': 8}
    park_caps = {'P6.B1': 0, 'P6.B2': 0, 'P6.B3': 0, 'P6.E': 0}
    unpark_max = 6
    kv_atomic = 1
    wall = 0
    p7_self = 1
    dbg_skip = ''
    ws_base = 0
    late_a = 0
    kvflag_at = 5
    up3 = 1
    startdiag = 0
    gtouch_at = 'B,P5,2'
    dbg_a_same = 0
    touch_flags = ''
    spin = 1 << 17
    prefetch_code = True
    D_kv = 4
    D_p6 = 4

MB = 1 << 20
A0_OFF = 0
A1_OFF = 0x280000
A2_OFF = 0x480000
G_OFF = 0x680000
ST_OFF = 0xD80000
KVP_OFF = 0xDC0000
KVP_L = 0x88000
KVA_OFF = 0xED0000
LSTRIDE = 0x780000
FL_OFF = 0xF00000
LF_OFF = FL_OFF
KVF_OFF = FL_OFF + 4096
HF_OFF = FL_OFF + 8192
XID_OFF = FL_OFF + 29696
NONCE_OFF = FL_OFF + 30720
TM_OFF = FL_OFF + 32768
CSP_OFF = FL_OFF + 32768 + 65536
CSF_OFF = CSP_OFF + 65536
WS_USED = CSF_OFF + 32768
KVREC = 2176

LDS_TOTAL = 163840
AREG = 0
SCR = 49152
CSL = None
WRING = 65536
RING = 93952
PHI = 53248
CSL = WRING + 28672
CSC = WRING + RING
assert CSC + 1088 <= LDS_TOTAL

EPS = 1e-5

def f2u(x):
    return struct.unpack('<I', struct.pack('<f', x))[0]

class Asm:
    def __init__(self):
        self.lines = []; self.nlabel = 0; self.vm = []
        self.fstamp = lambda p: None
    def e(self, s): self.lines.append('  ' + s)
    def c(self, s): self.lines.append('  ; ' + s)
    def label(self, name): self.lines.append(name + ':')
    def newlabel(self, base='L'):
        self.nlabel += 1
        return f'{base}_{self.nlabel}'
    def vmem(self, s, tag=None):
        self.e(s); self.vm.append(tag)
    def count_vm(self, tag):
        if tag not in self.vm: return None
        idx = max(i for i, t in enumerate(self.vm) if t == tag)
        n = len(self.vm) - 1 - idx
        assert n <= 63, n
        self.vm = self.vm[idx + 1:]
        return n
    def wait_vm(self, tag):
        n = self.count_vm(tag)
        if n is not None: self.e(f's_waitcnt vmcnt({n})')
    def wait_vm_all(self):
        self.e('s_waitcnt vmcnt(0)'); self.vm = []
    def text(self): return '\n'.join(self.lines)

def set_exec(a, lo, hi=None):
    a.e(f's_mov_b32 exec_lo, {hex(lo)}')
    a.e(f's_mov_b32 exec_hi, {hex(lo if hi is None else hi)}')

S_V = 3
S_WS = 4; S_X = 8; S_OUT = 12; S_PA = 16
S_G, S_R, S_W, S_RB, S_CB, S_RB2, S_CB2 = 20, 21, 22, 23, 24, 25, 26
S_MODE, S_L, S_LOFF, S_EP, S_B, S_XCC = 27, 28, 29, 30, 31, 32
S_T0, S_T1, S_T2, S_T3, S_T4, S_T5 = 33, 34, 35, 36, 37, 38
S_SPIN, S_THR = 39, 40
S_AOFF, S_AOFF2, S_ASTR = 41, 42, 43
S_C1, S_C2, S_ONE2 = 44, 46, 48
S_LOG2E, S_EPS6 = 50, 51
S_W4K = 52
S_RH, S_CH = 53, 54
S_U0, S_U1, S_U2, S_U3, S_U4 = 55, 56, 57, 58, 59
S_COLD = 62
S_GH = 63
S_RA = 86
S_RK = 90
S_P7 = 94
S_ROTK = 45
S_L2E2, S_E62 = 88, 86
S_PTR = 64
S_WQKV, S_WO, S_W1, S_W2, S_W3, S_W4 = 40, 44, 48, 52, 56, 60
S_CSRD = 88

V_LANE = 0
V_AS, V_AB, V_AG, V_P1 = 1, 2, 3, 4
V_AH = 5
V_STS, V_STB, V_STST, V_XRM, V_TST = 9, 10, 11, 12, 13
V_FSB, V_FBS, V_FSS, V_FH, V_FOWN, V_FKV = 14, 15, 16, 17, 18, 19
V_T128, V_T64, V_T224, V_TN, V_TA = 20, 21, 22, 23, 24
V_T0, V_T1, V_T2 = 25, 26, 27
V_TB = 28
V_RES = 32
V_MEAN, V_RS = 48, 49
V_X = 50
V_PQ = 56
V_ACC = 64
V_A = 128

PHASES = ['P1KV', 'P1Q', 'P3', 'P4', 'P5', 'P6', 'P7']
NCH = {'P1KV': 4, 'P1Q': 2, 'P3': 4, 'P4': 4, 'P5': 4, 'P6': 4, 'P7': 14}

ATOMIC = [1]
WARM0 = [1]
NOE = ('P3', 'P4', 'P5')

class Slab:
    def __init__(self, layer, phase, chunk, kind, size, srow, npieces, srow2=None):
        self.layer, self.phase, self.chunk, self.kind = layer, phase, chunk, kind
        self.size, self.srow, self.npieces, self.srow2 = size, srow, npieces, srow2
        self.addr = None

def w4_tile_seq():
    seq = []
    for c in range(8):
        for i in [0, 1, 2, 3, 4, 5, 7, 8, 9, 10, 11, 12, 6, 13]:
            seq.append(14 * c + i)
    return seq

def build_slabs(layer):
    ph = {}
    def simple(phase, kind, nchunk, per, size, rows, np_):
        ph[phase] = [[Slab(layer, phase, c, kind, size, (c * per + j) * rows, np_) for j in range(per)] for c in range(nchunk)]
    simple('P1KV', 'KV', 4, 4, 4096, 32, 4)
    simple('P1Q', 'Q', 2, 4, 4096, 64, 4)
    simple('P3', 'WO', 4, 4, 4096, 32, 4)
    simple('P4', 'W1', 4, 4, 4096, 32, 4)
    simple('P5', 'W2', 4, 4, 4096, 32, 4)
    simple('P6', 'W3', 4, 4, 7168, 32, 7)
    seq = w4_tile_seq()
    ph['P7'] = [[Slab(layer, 'P7', c, 'W4', 4096, seq[2 * (c * 4 + j)] * 16, 4, srow2=seq[2 * (c * 4 + j) + 1] * 16)
                 for j in range(4)] for c in range(14)]
    pos = PHI
    for p in PHASES:
        for ch in ph[p]:
            for s in ch:
                if pos + s.size > RING: pos = 0
                s.addr = WRING + pos
                pos += s.size
    assert pos == PHI, pos
    return ph

def build_events(stop):
    ev = [(0, 'X', 'W0', None)] if WARM0[0] else []
    for L in range(2):
        for p in PHASES:
            for c in range(NCH[p]): ev.append((L, 'B', p, c))
            if p not in NOE: ev.append((L, 'E', p, None))
            if p == 'P1KV': ev.append((L, 'X', 'X1', None))
            if p == 'P1Q' and not ATOMIC[0]: ev.append((L, 'X', 'X2', None))
            if stop == (L, p): return ev
    return ev

WS = f's[{S_WS}:{S_WS+3}]'

def thr_value(a, dst, epoch, xcc=False):
    if isinstance(epoch, int):
        a.e(f's_add_u32 s{dst}, s{S_B}, {8*epoch}')
    else:
        a.e(f's_lshl_b32 s{dst}, {epoch}, 3')
        a.e(f's_add_u32 s{dst}, s{dst}, s{S_B}')
    if xcc: a.e(f's_add_u32 s{dst}, s{dst}, s{S_XCC}')

def emit_poll(a, vaddr, epoch, soff='0', opt=Opt, x4=False, tbase=None):
    L = a.newlabel('POLL'); D = a.newlabel('POLLD')
    thr_value(a, S_THR, epoch)
    a.e(f's_mov_b32 s{S_SPIN}, {opt.spin}')
    a.label(L)
    if x4:
        T = tbase
        a.e(f'buffer_load_dwordx4 v[{T}:{T+3}], v{vaddr}, {WS}, {soff} offen sc1')
        a.e('s_waitcnt vmcnt(0)')
        for i in range(4): a.e(f'v_subrev_u32 v{T+i}, s{S_THR}, v{T+i}')
        a.e(f'v_max_u32 v{T}, v{T}, v{T+1}')
        a.e(f'v_max_u32 v{T+2}, v{T+2}, v{T+3}')
        a.e(f'v_max_u32 v{V_T0}, v{T}, v{T+2}')
    else:
        a.e(f'buffer_load_dword v{V_T2}, v{vaddr}, {WS}, {soff} offen sc1')
        a.e('s_waitcnt vmcnt(0)')
        a.e(f'v_subrev_u32 v{V_T0}, s{S_THR}, v{V_T2}')
    a.vm = []
    a.e(f'v_cmp_gt_u32 vcc, 0x80, v{V_T0}')
    a.e(f's_sub_u32 s{S_SPIN}, s{S_SPIN}, 1')
    a.e(f's_cbranch_scc1 {D}')
    a.e('s_cmp_eq_u64 vcc, -1')
    if opt.poll_sleep:
        a.e(f's_cbranch_scc1 {D}')
        a.e(f's_sleep {opt.poll_sleep}')
        a.e(f's_branch {L}')
    else:
        a.e(f's_cbranch_scc0 {L}')
    a.label(D)

def emit_mode_stores(a, stores, cold=False):
    F = a.newlabel('STF'); D = a.newlabel('STD')
    if getattr(a, 'opt', None) is not None and a.opt.pretouch and a.opt.park: cold = False
    a.e(f's_cmp_eq_u32 s{S_COLD if cold else S_MODE}, 0')
    a.e(f's_cbranch_scc1 {F}')
    for s in stores: a.e(s + ' sc1')
    a.e(f's_branch {D}')
    a.label(F)
    for s in stores: a.e(s)
    a.label(D)
    for s in stores: a.vm.append('st')

def emit_signal(a, epoch):
    thr_value(a, S_THR, epoch, xcc=True)
    a.e(f'v_mov_b32 v{V_T0}, s{S_THR}')
    a.wait_vm_all()
    a.e('s_mov_b64 exec, 1')
    emit_mode_stores(a, [f'buffer_store_dword v{V_T0}, v{V_FOWN}, {WS}, 0 offen'])
    a.e('s_mov_b64 exec, -1')

def emit_xreduce(a, regs, tmp, over16=True):
    for r, t in zip(regs, tmp): a.e(f'v_mov_b32 v{t}, v{r}')
    a.e('s_nop 1')
    for r, t in zip(regs, tmp): a.e(f'v_permlane32_swap_b32 v{r}, v{t}')
    a.e('s_nop 0')
    for r, t in zip(regs, tmp): a.e(f'v_add_f32 v{r}, v{r}, v{t}')
    if over16:
        for r, t in zip(regs, tmp): a.e(f'v_mov_b32 v{t}, v{r}')
        a.e('s_nop 1')
        for r, t in zip(regs, tmp): a.e(f'v_permlane16_swap_b32 v{r}, v{t}')
        a.e('s_nop 0')
        for r, t in zip(regs, tmp): a.e(f'v_add_f32 v{r}, v{r}, v{t}')

def pk(op, d, x, y, z=None, mods=''):
    s = f'v_pk_{op}_f32 v[{d}:{d+1}], {x}, {y}'
    if z is not None: s += f', {z}'
    return s + mods
def vp(r): return f'v[{r}:{r+1}]'

def emit_stats_partial32(a, vals, t0, st_soff, cold=False):
    s, q = t0, t0 + 2
    a.e(pk('add', s, vp(vals), vp(vals + 2)))
    a.e(pk('mul', q, vp(vals), vp(vals)))
    a.e(pk('fma', q, vp(vals + 2), vp(vals + 2), vp(q)))
    for i in range(4, 16, 2):
        a.e(pk('add', s, vp(s), vp(vals + i)))
        a.e(pk('fma', q, vp(vals + i), vp(vals + i), vp(q)))
    a.e(f'v_add_f32 v{t0}, v{s}, v{s+1}')
    a.e(f'v_add_f32 v{t0+1}, v{q}, v{q+1}')
    emit_xreduce(a, [t0, t0 + 1], [t0 + 4, t0 + 5], over16=False)
    set_exec(a, 0xffffffff, 0)
    emit_mode_stores(a, [f'buffer_store_dwordx2 v[{t0}:{t0+1}], v{V_STST}, {WS}, {st_soff} offen'], cold=cold)
    a.e('s_mov_b64 exec, -1')

def emit_stats_from_sums(a, s, ss, out_a, out_b, tmp, double=False, keep=None):
    mean, var = s, ss
    a.e(f'v_mul_f32 v{mean}, {hex(f2u(1.0/512))}, v{s}')
    a.e(f'v_mul_f32 v{var}, {hex(f2u(1.0/512))}, v{ss}')
    a.e(f'v_fma_f32 v{var}, -v{mean}, v{mean}, v{var}')
    a.e(f'v_max_f32 v{var}, 0, v{var}')
    a.e(f'v_add_f32 v{tmp}, {hex(f2u(EPS))}, v{var}')
    a.e(f'v_rsq_f32 v{tmp}, v{tmp}')
    a.e('s_nop 0')
    if double:
        a.e(f'v_mul_f32 v{tmp+1}, v{tmp}, v{tmp}')
        a.e(f'v_mul_f32 v{tmp+1}, v{tmp+1}, v{var}')
        a.e(f'v_add_f32 v{tmp+1}, {hex(f2u(EPS))}, v{tmp+1}')
        a.e(f'v_rsq_f32 v{tmp+1}, v{tmp+1}')
        a.e('s_nop 0')
        a.e(f'v_mul_f32 v{out_a}, v{tmp}, v{tmp+1}')
    else:
        a.e(f'v_mov_b32 v{out_a}, v{tmp}')
    if keep:
        a.e(f'v_mov_b32 v{keep[0]}, v{mean}')
        a.e(f'v_mov_b32 v{keep[1]}, v{tmp}')
    a.e(f'v_mul_f32 v{out_b}, v{out_a}, v{mean}')
    a.e(f'v_sub_f32 v{out_b}, 0, v{out_b}')

def emit_sum_partials(a, raw, n):
    k = n
    step = 2
    regs = [raw + i for i in range(0, n, 2)]
    while len(regs) > 1:
        nxt = []
        for i in range(0, len(regs), 2):
            a.e(pk('add', regs[i], vp(regs[i]), vp(regs[i + 1])))
            nxt.append(regs[i])
        regs = nxt

def emit_lnfold(a, acc, cs, av, bv, n):
    for i in range(0, n, 2):
        a.e(pk('mul', acc + i, vp(acc + i), vp(av), mods=' op_sel_hi:[1,0]'))
    for i in range(0, n, 2):
        a.e(pk('fma', acc + i, vp(cs + i), vp(bv), vp(acc + i), mods=' op_sel_hi:[1,0,1]'))

def emit_gelu(a, x, n, tmp, c1reg):
    blk = 16
    a.e(f'v_mov_b32 v{c1reg}, s{S_C1}')
    for b0 in range(0, n, blk):
        m = min(blk, n - b0); t = tmp
        for i in range(0, m, 2): a.e(pk('mul', t + i, vp(x + b0 + i), vp(x + b0 + i)))
        for i in range(0, m, 2): a.e(pk('fma', t + i, vp(t + i), f's[{S_C2}:{S_C2+1}]', vp(c1reg), mods=' op_sel_hi:[1,1,0]'))
        for i in range(0, m, 2): a.e(pk('mul', t + i, vp(t + i), vp(x + b0 + i)))
        for i in range(m): a.e(f'v_exp_f32 v{t+i}, v{t+i}')
        for i in range(0, m, 2): a.e(pk('add', t + i, vp(t + i), f's[{S_ONE2}:{S_ONE2+1}]'))
        for i in range(m): a.e(f'v_rcp_f32 v{t+i}, v{t+i}')
        for i in range(0, m, 2): a.e(pk('mul', x + b0 + i, vp(x + b0 + i), vp(t + i)))

def emit_phi(a, regs, tmp):
    if a.opt.phi_clamp and all(regs[i + 1] == regs[i] + 1 and regs[i] % 2 == 0 for i in range(0, len(regs), 2)) and tmp % 2 == 0:
        for i in range(0, len(regs), 2): a.e(pk('mul', tmp + i, vp(regs[i]), f's[{S_L2E2}:{S_L2E2+1}]'))
        for i, r in enumerate(regs): a.e(f'v_exp_f32_e64 v{tmp+i}, v{tmp+i} clamp')
        for i, r in enumerate(regs): a.e(f'v_max_f32 v{r}, 0, v{r}')
        for i in range(0, len(regs), 2): a.e(pk('add', tmp + i, vp(tmp + i), f's[{S_E62}:{S_E62+1}]'))
        for i in range(0, len(regs), 2): a.e(pk('add', regs[i], vp(regs[i]), vp(tmp + i)))
        return
    for i, r in enumerate(regs): a.e(f'v_min_f32 v{tmp+i}, 0, v{r}')
    for i, r in enumerate(regs): a.e(f'v_mul_f32 v{tmp+i}, s{S_LOG2E}, v{tmp+i}')
    for i, r in enumerate(regs): a.e(f'v_exp_f32 v{tmp+i}, v{tmp+i}')
    for i, r in enumerate(regs): a.e(f'v_max_f32 v{r}, 0, v{r}')
    for i, r in enumerate(regs): a.e(f'v_add_f32 v{r}, v{r}, v{tmp+i}')
    for i, r in enumerate(regs): a.e(f'v_add_f32 v{r}, s{S_EPS6}, v{r}')

def emit_pack(a, dst, src, n):
    for i in range(0, n, 2): a.e(f'v_cvt_pk_bf16_f32 v{dst+i//2}, v{src+i}, v{src+i+1}')

def emit_pack32(a, dst, src):
    for k, j in enumerate([0, 2, 1, 3]):
        a.e(f'v_cvt_pk_bf16_f32 v{dst+2*k}, v{src+4*j}, v{src+4*j+1}')
        a.e(f'v_cvt_pk_bf16_f32 v{dst+2*k+1}, v{src+4*j+2}, v{src+4*j+3}')

class TrBase:
    def __init__(self, a, lane_reg, nt):
        self.a, self.lane_reg, self.nt, self.cur = a, lane_reg, nt, None
    def off(self, addr, span):
        if self.cur is None or addr < self.cur or addr + span - self.cur > 65535:
            self.cur = addr
            for t in range(self.nt):
                if t == 0:
                    self.a.e(f'v_add_u32 v{V_TB}, {hex(addr)}, v{self.lane_reg}')
                else:
                    self.a.e(f'v_xor_b32 v{V_TB+t}, {t << 5}, v{self.lane_reg}')
                    self.a.e(f'v_add_u32 v{V_TB+t}, {hex(addr)}, v{V_TB+t}')
        return addr - self.cur

def emit_gemm16(a, bar, phase, chunks, CT, kind, acc_of, a_of, a_wait, a_issue, wr, S, normal=False, extra=None, a_lds=None):
    R, LA = 2, 4
    ks = []
    for ci, ch in enumerate(chunks):
        first = True
        for s in ch:
            ks.append((ci, s.addr, first)); first = False
            if kind == '64': ks.append((ci, s.addr + 2048, False))
    KS = len(ks)
    if kind == '128':
        trb = TrBase(a, V_T128, 4); second = 2048; span = 4096; tb = lambda t: V_TB + t; timm = lambda t: 0
    elif kind == '64':
        trb = TrBase(a, V_T64, 2); second = 1024; span = 2048; tb = lambda t: V_TB + t; timm = lambda t: 0
    else:
        trb = TrBase(a, V_T224, 1); second = 3584; span = 7168; tb = lambda t: V_TB; timm = lambda t: 32 * t
    total = KS * CT
    def slot(n): return wr + 4 * (n % S)
    def pre_issue(n):
        j, t = divmod(n, CT)
        ci, addr, first = ks[j]
        if t == 0 and first:
            a.fstamp(phase); bar(('B', phase, ci)); a.fstamp(phase)
        imm = trb.off(addr, span) if t == 0 else addr - trb.cur
        return imm + timm(t), t
    def rd(n, half, info):
        imm, t = info
        a.e(f'ds_read_b64_tr_b16 v[{slot(n)+2*half}:{slot(n)+2*half+1}], v{tb(t)} offset:{imm + (second if half else 0)}')
    def mfma(m, r):
        j, t = divmod(m, CT)
        d = acc_of(r, t); c = '0' if j == 0 else f'v[{d}:{d+3}]'
        w = f'v[{slot(m)}:{slot(m)+3}]'; x = f'v[{a_of(r,j)}:{a_of(r,j)+3}]'
        a.e(f'v_mfma_f32_16x16x32_bf16 v[{d}:{d+3}], ' + (f'{x}, {w}' if normal else f'{w}, {x}') + f', {c}')
    lq = []
    def need(tags):
        idx = max((i for i, g in enumerate(lq) if g in tags), default=None)
        if idx is None: return None
        n_ = len(lq) - 1 - idx
        del lq[:idx + 1]
        assert n_ <= 15
        return n_
    def pre2(n):
        info = pre_issue(n)
        j, t = divmod(n, CT)
        if a_lds and t == 0:
            for s_ in a_lds(j):
                a.e(s_); lq.append(('A', j))
        return info
    def rd2(n, half, info):
        rd(n, half, info); lq.append(('W', n))
    for n in range(min(LA, total)):
        info = pre2(n); rd2(n, 0, info); rd2(n, 1, info)
    for n in range(total):
        j, t = divmod(n, CT)
        lg = need({('W', n), ('A', j)})
        vmn = a_wait(j) if t == 0 else None
        if t == 0 and j in (0, 1): a.fstamp(phase)
        parts = ([f'vmcnt({vmn})'] if vmn is not None else []) + ([f'lgkmcnt({lg})'] if lg is not None else [])
        if parts: a.e('s_waitcnt ' + ' '.join(parts))
        nx = n + LA; info = None
        mfma(n, 0)
        if nx < total:
            info = pre2(nx); rd2(nx, 0, info)
        mfma(n, 1)
        if nx < total: rd2(nx, 1, info)
        a_issue(j, t)
        if extra and t == CT - 1: extra(j)
    a.fstamp(phase); bar(('E', phase, None)); a.fstamp(phase)
    a.e('s_nop 7')

def emit_gemm32(a, bar, phase, chunks, acc, wr, tail=None, a_pieces=None):
    LA, S = 4, 5
    nch = len(chunks)
    total = nch * 8
    trb = TrBase(a, V_TN, 1)
    def slot(n): return wr + 8 * (n % S)
    def reads(n):
        c, rem = divmod(n, 8); ksl, s = divmod(rem, 2)
        out = []
        if rem == 0:
            if a_pieces: a.wait_vm(('A', c))
            a.fstamp(phase); bar(('B', phase, c)); a.fstamp(phase)
        sl = chunks[c][ksl]
        imm = trb.off(sl.addr, 4096)
        out.append(f'ds_read_b128 v[{slot(n)}:{slot(n)+3}], v{V_TA} offset:{(c % 4) * 16384 + ksl * 1024 + s * 512}')
        out.append(f'ds_read_b64_tr_b16 v[{slot(n)+4}:{slot(n)+5}], v{V_TB} offset:{imm + s * 1024}')
        out.append(f'ds_read_b64_tr_b16 v[{slot(n)+6}:{slot(n)+7}], v{V_TB} offset:{imm + s * 1024 + 2048}')
        return out
    queue = []; nxt = 2; passed = 0
    if a_pieces:
        for c in (0, 1):
            for t in a_pieces(c): t()
    for n in range(LA):
        for s in reads(n): a.e(s)
    for n in range(total):
        lg = 3 * (min(n - 1 + LA, total - 1) - n)
        a.e(f's_waitcnt lgkmcnt({lg})')
        c = '0' if n == 0 else f'v[{acc}:{acc+15}]'
        a.e(f'v_mfma_f32_32x32x16_bf16 v[{acc}:{acc+15}], v[{slot(n)+4}:{slot(n)+7}], v[{slot(n)}:{slot(n)+3}], {c}')
        nx = n + LA
        if nx < total:
            if nx % 8 == 0: passed = nx // 8
            for s in reads(nx): a.e(s)
        if a_pieces:
            while nxt < nch and (nxt <= passed + 2 or nxt <= 3) and len(queue) < 4:
                queue += list(a_pieces(nxt)); nxt += 1
            if queue: queue.pop(0)()
        if tail and n == max(total - 24, 0): tail()
    a.fstamp(phase)
    if phase not in NOE:
        bar(('E', phase, None))
    a.fstamp(phase)
    a.e('s_nop 7'); a.e('s_nop 3')


def gen_compute(a, opt, events):
    evq = list(events)
    tm = [0]
    def tmreg(i):
        assert i < 22, i
        return 64 + i
    def dump(regs):
        sk = a.newlabel('TMS')
        a.e('s_waitcnt lgkmcnt(0)')
        a.e(f's_cmp_eq_u32 s{S_W}, 0')
        a.e(f's_cbranch_scc0 {sk}')
        if opt.dbgout >= 0 and opt.fine:
            a.e(f's_cmp_eq_u32 s2, {opt.dbgwg}')
            a.e(f's_cbranch_scc0 {sk}')
            for i, r in enumerate(regs):
                a.e(f's_sub_u32 s{S_T0}, s{r}, s85')
                a.e(f'v_mov_b32 v{V_T0}, s{S_T0}')
                a.e(f'v_mov_b32 v{V_T1}, {4*i}')
                a.e(f'global_store_dword v{V_T1}, v{V_T0}, s[86:87]')
        elif opt.dbgout >= 0 and opt.timing:
            a.e(f's_cmp_eq_u32 s2, {opt.dbgwg}')
            a.e(f's_cbranch_scc0 {sk}')
            a.e(f's_cmp_eq_u32 s{S_L}, {opt.dbgout}')
            a.e(f's_cbranch_scc0 {sk}')
            sel = [1, 2, 3, 4, 5, 6, 8, 9, 11, 12, 14, 15, 16, 17, 18, 20]
            for i, k in enumerate(sel):
                if k >= len(regs): continue
                a.e(f's_sub_u32 s{S_T0}, s{regs[k]}, s{regs[0]}')
                a.e(f'v_mov_b32 v{V_T0}, s{S_T0}')
                a.e(f'v_mov_b32 v{V_T1}, {4*i}')
                a.e(f'global_store_dword v{V_T1}, v{V_T0}, s[86:87]')
        else:
            a.e(f's_lshl_b32 s{S_T0}, s2, 8')
            a.e(f's_lshl_b32 s{S_T1}, s{S_L}, 7')
            if opt.timing: a.e(f's_add_u32 s{S_T0}, s{S_T0}, s{S_T1}')
            a.e(f's_add_u32 s{S_T0}, s{S_T0}, {hex(TM_OFF)}')
            for i, r in enumerate(regs):
                a.e(f'v_mov_b32 v{V_T0}, s{r}')
                a.e(f'v_mov_b32 v{V_T1}, {4*i}')
                a.e(f'buffer_store_dword v{V_T0}, v{V_T1}, {WS}, s{S_T0} offen')
        a.label(sk)
        a.e('s_waitcnt vmcnt(0)')
    fs = [0]
    def freg(i): return 64 + 2 * i
    cnt_ = [0]
    def fs_skip(i):
        cnt_[0] += 1
        return cnt_[0] in (2, 4, 5, 6, 8, 10)
    def fstamp(phase):
        if opt.fine == phase and fs[0] < 10 and not (opt.dbgout >= 0 and fs_skip(fs[0])):
            a.e(f's_memtime s[{freg(fs[0])}:{freg(fs[0])+1}]'); fs[0] += 1
    a.fstamp = fstamp
    def stamp():
        if opt.timing:
            a.e('s_memtime s[60:61]')
            a.e('s_waitcnt lgkmcnt(0)')
            a.e(f's_mov_b32 s{tmreg(tm[0])}, s60'); tm[0] += 1

    T0, T1, T2, TB = V_T0, V_T1, V_T2, V_TB
    if opt.wall:
        a.e('s_memrealtime s[60:61]'); a.e('s_waitcnt lgkmcnt(0)'); a.e('s_mov_b32 s84, s60')
        a.e('s_memtime s[60:61]'); a.e('s_waitcnt lgkmcnt(0)'); a.e('s_mov_b32 s85, s60')
    if opt.dbgout >= 0 and opt.fine: a.e('s_mov_b32 s85, s96')
    if opt.prio_c: a.e(f's_setprio {opt.prio_c}')
    a.c('--- compute: early address setup')
    if opt.startdiag:
        a.e('s_memtime s[98:99]'); a.e('s_waitcnt lgkmcnt(0)'); a.e('s_sub_u32 s98, s98, s100'); a.e('s_mov_b32 s85, s98')
    stamp()
    a.e(f's_lshr_b32 s{S_RH}, s{S_W}, 1')
    a.e(f's_and_b32 s{S_CH}, s{S_W}, 1')
    a.e(f's_lshl_b32 s{S_W4K}, s{S_W}, 12')
    a.e(f's_lshl_b32 s{S_U0}, s{S_G}, 4')
    a.e(f's_lshl_b32 s{S_T1}, s{S_RB}, 2')
    a.e(f's_add_u32 s{S_U0}, s{S_U0}, s{S_T1}')
    a.e(f's_lshl_b32 s{S_T1}, s{S_RH}, 1')
    a.e(f's_add_u32 s{S_U2}, s{S_U0}, s{S_T1}')
    a.e(f's_add_u32 s{S_U0}, s{S_U0}, s{S_W}')
    a.e(f's_lshl_b32 s{S_U1}, s{S_G}, 4')
    a.e(f's_lshl_b32 s{S_T2}, s{S_RB2}, 3')
    a.e(f's_add_u32 s{S_U1}, s{S_U1}, s{S_T2}')
    a.e(f's_lshl_b32 s{S_T2}, s{S_W}, 1')
    a.e(f's_add_u32 s{S_U1}, s{S_U1}, s{S_T2}')
    a.e(f'v_and_b32 v{T0}, 15, v{V_LANE}')
    a.e(f'v_and_b32 v{T1}, 0x30, v{V_LANE}')
    a.e(f's_lshl_b32 s{S_ROTK}, s{S_RB2}, 1')
    a.e(f's_add_u32 s{S_ROTK}, s{S_ROTK}, s{S_CB2}')
    a.e(f's_and_b32 s{S_ROTK}, s{S_ROTK}, {3 if opt.rot else 0}')
    a.e(f'v_and_b32 v{T2}, 31, v{V_LANE}')
    a.e(f'v_lshrrev_b32 v{TB}, 5, v{V_LANE}')
    a.e(f'v_lshlrev_b32 v{V_XRM}, 10, v{T2}')
    a.e(f'v_lshl_add_u32 v{V_XRM}, v{TB}, 3, v{V_XRM}')
    a.e(f's_lshl_b32 s{S_T2}, s{S_U2}, 14')
    a.e(f's_lshl_b32 s{S_T3}, s{S_CB}, 7')
    a.e(f's_add_u32 s{S_T2}, s{S_T2}, s{S_T3}')
    a.e(f's_lshl_b32 s{S_T3}, s{S_CH}, 6')
    a.e(f's_add_u32 s{S_T2}, s{S_T2}, s{S_T3}')
    a.e(f'v_add_u32 v{V_XRM}, s{S_T2}, v{V_XRM}')
    PA = f's[{S_PA}:{S_PA+3}]'
    def p1_load(j):
        if j % 4 == 0:
            a.e(f's_mov_b32 s{S_AOFF}, s{S_RK + j // 4}')
            a.e(f's_add_u32 s{S_AOFF2}, s{S_AOFF}, 0x4000')
        for r in range(2):
            a.vmem(f'buffer_load_dwordx4 v[{V_A+(r*16+j)*4}:{V_A+(r*16+j)*4+3}], v{V_P1}, {PA}, s{S_AOFF if r == 0 else S_AOFF2} offen sc1', ('A', j))
        if j % 4 != 3:
            a.e(f's_add_u32 s{S_AOFF}, s{S_AOFF}, s{S_ASTR}')
            a.e(f's_add_u32 s{S_AOFF2}, s{S_AOFF2}, s{S_ASTR}')
    a.e('s_waitcnt lgkmcnt(0)')
    a.e(f's_mul_i32 s{S_B}, s{S_V}, 0x9e3779b1')
    a.e(f's_add_u32 s{S_B}, s{S_B}, 0x7f4a7c15')
    a.e(f's_and_b32 s{S_B}, s{S_B}, 0xffffff00')
    a.c('--- compute: address setup')
    a.e(f'v_lshlrev_b32 v{V_X}, 4, v{V_LANE}')
    a.e(f's_lshl_b32 s{S_T2}, s{S_U1}, 14')
    a.e(f'v_add_u32 v{V_AB}, s{S_T2}, v{V_X}')
    a.e(f'v_lshlrev_b32 v{V_STS}, 4, v{T2}')
    a.e(f'v_lshl_add_u32 v{V_STS}, v{TB}, 11, v{V_STS}')
    a.e(f's_lshl_b32 s{S_T2}, s{S_U2}, 11')
    a.e(f'v_add_u32 v{V_STS}, s{S_T2}, v{V_STS}')
    a.e(f'v_lshlrev_b32 v{V_STST}, 4, v{T2}')
    a.e(f's_lshl_b32 s{S_T4}, s{S_CB}, 9')
    a.e(f's_add_u32 s{S_T2}, s{S_T2}, s{S_T4}')
    a.e(f's_lshl_b32 s{S_T4}, s{S_CH}, 3')
    a.e(f's_add_u32 s{S_T2}, s{S_T2}, s{S_T4}')
    a.e(f'v_add_u32 v{V_STST}, s{S_T2}, v{V_STST}')
    a.e(f's_lshl_b32 s{S_T3}, s{S_CB}, 1')
    a.e(f's_add_u32 s{S_T3}, s{S_T3}, s{S_CH}')
    a.e(f'v_lshlrev_b32 v{V_STB}, 4, v{T0}')
    a.e(f'v_lshl_add_u32 v{V_STB}, v{T1}, 6, v{V_STB}')
    a.e(f's_lshl_b32 s{S_T2}, s{S_U1}, 11')
    a.e(f'v_add_u32 v{V_STB}, s{S_T2}, v{V_STB}')
    a.e(f'v_lshrrev_b32 v{V_TST}, 4, v{T2}')
    a.e(f'v_lshlrev_b32 v{V_TST}, 14, v{V_TST}')
    a.e(f'v_lshl_add_u32 v{V_TST}, v{TB}, 8, v{V_TST}')
    a.e(f'v_lshl_add_u32 v{V_TST}, v{T0}, 4, v{V_TST}')
    a.e(f's_lshl_b32 s{S_T2}, s{S_U2}, 14')
    a.e(f's_lshl_b32 s{S_T4}, s{S_T3}, 10')
    a.e(f's_add_u32 s{S_T2}, s{S_T2}, s{S_T4}')
    a.e(f'v_add_u32 v{V_TST}, s{S_T2}, v{V_TST}')
    a.e(f's_lshl_b32 s{S_T2}, s{S_G}, 9')
    a.e(f's_add_u32 s{S_T2}, s{S_T2}, {hex(LF_OFF)}')
    a.e(f's_lshl_b32 s{S_T3}, s{S_W}, 7')
    a.e(f's_add_u32 s{S_T3}, s{S_T3}, s{S_T2}')
    a.e(f's_lshl_b32 s{S_T4}, s{S_R}, 2')
    a.e(f's_add_u32 s{S_T4}, s{S_T4}, s{S_T3}')
    a.e(f'v_mov_b32 v{V_FOWN}, s{S_T4}')
    a.e(f'v_and_b32 v{V_X+1}, 7, v{V_LANE}')
    a.e(f'v_lshlrev_b32 v{V_X+1}, 2, v{V_X+1}')
    a.e(f'v_bfe_u32 v{V_X+2}, v{V_LANE}, 3, 1')
    a.e(f'v_lshl_add_u32 v{V_X+1}, v{V_X+2}, 7, v{V_X+1}')
    a.e(f's_lshl_b32 s{S_T4}, s{S_RB2}, 1')
    a.e(f's_add_u32 s{S_T4}, s{S_T4}, s{S_RH}')
    a.e(f's_lshl_b32 s{S_T4}, s{S_T4}, 5')
    a.e(f's_lshl_b32 s{S_T5}, s{S_CH}, 8')
    a.e(f's_add_u32 s{S_T4}, s{S_T4}, s{S_T5}')
    a.e(f's_add_u32 s{S_T4}, s{S_T4}, s{S_T2}')
    a.e(f'v_add_u32 v{V_FSB}, s{S_T4}, v{V_X+1}')
    a.e(f's_lshl_b32 s{S_T4}, s{S_CB2}, 7')
    a.e(f's_add_u32 s{S_T4}, s{S_T4}, {hex(KVF_OFF)}')
    a.e(f'v_lshlrev_b32 v{V_FKV}, 2, v{T2}')
    a.e(f'v_add_u32 v{V_FKV}, s{S_T4}, v{V_FKV}')
    a.e(f'v_bfe_u32 v{V_X+1}, v{V_LANE}, 2, 2')
    a.e(f'v_lshrrev_b32 v{V_X+2}, 4, v{V_LANE}')
    a.e(f'v_lshl_add_u32 v{V_X+3}, v{V_X+2}, 2, v{V_X+1}')
    a.e(f'v_and_b32 v{V_X+4}, 3, v{V_LANE}')
    a.e(f'v_lshlrev_b32 v{V_X+4}, 3, v{V_X+4}')
    a.e(f'v_bfe_u32 v{V_X+5}, v{V_X+3}, 1, 2')
    a.e(f'v_lshl_add_u32 v{V_T128}, v{V_X+5}, 5, v{V_X+4}')
    a.e(f'v_lshl_add_u32 v{V_T128}, v{V_X+3}, 7, v{V_T128}')
    a.e(f'v_bfe_u32 v{V_X+5}, v{V_X+3}, 2, 1')
    a.e(f'v_lshl_add_u32 v{V_T64}, v{V_X+5}, 5, v{V_X+4}')
    a.e(f'v_lshl_add_u32 v{V_T64}, v{V_X+3}, 6, v{V_T64}')
    a.e(f'v_mul_u32_u24 v{V_T224}, 224, v{V_X+3}')
    a.e(f'v_add_u32 v{V_T224}, v{V_T224}, v{V_X+4}')
    a.e(f'v_lshrrev_b32 v{V_X+3}, 1, v{V_X+2}')
    a.e(f'v_lshl_add_u32 v{V_X+3}, v{V_X+3}, 2, v{V_X+1}')
    a.e(f'v_and_b32 v{V_X+5}, 1, v{V_X+2}')
    a.e(f's_lshl_b32 s{S_T4}, s{S_CH}, 1')
    a.e(f'v_add_u32 v{V_X+5}, s{S_T4}, v{V_X+5}')
    a.e(f'v_and_b32 v{V_X+1}, 2, v{V_X+1}')
    a.e(f'v_xor_b32 v{V_X+5}, v{V_X+5}, v{V_X+1}')
    a.e(f'v_lshl_add_u32 v{V_TN}, v{V_X+5}, 5, v{V_X+4}')
    a.e(f'v_lshl_add_u32 v{V_TN}, v{V_X+3}, 7, v{V_TN}')
    a.e(f'v_bfe_u32 v{V_TA}, v{V_LANE}, 4, 1')
    a.e(f's_lshl_b32 s{S_T4}, s{S_RH}, 1')
    a.e(f'v_add_u32 v{V_TA}, s{S_T4}, v{V_TA}')
    a.e(f'v_lshlrev_b32 v{V_TA}, 12, v{V_TA}')
    a.e(f'v_lshl_add_u32 v{V_TA}, v{TB}, 8, v{V_TA}')
    a.e(f'v_lshl_add_u32 v{V_TA}, v{T0}, 4, v{V_TA}')
    if AREG: a.e(f'v_add_u32 v{V_TA}, {hex(AREG)}, v{V_TA}')
    c1 = -2.0 * 0.7978845608028654 * 1.4426950408889634
    c2 = c1 * 0.044715
    for s, v in [(S_C1, c1), (S_C2, c2), (S_C2 + 1, c2), (S_ONE2, 1.0), (S_ONE2 + 1, 1.0),
                 (S_LOG2E, 1.4426950408889634), (S_EPS6, 1e-6), (S_L2E2, 1.4426950408889634), (S_L2E2 + 1, 1.4426950408889634),
                 (S_E62, 1e-6), (S_E62 + 1, 1e-6)]:
        if opt.dbgout >= 0 and s in (S_E62, S_E62 + 1): continue
        a.e(f's_mov_b32 s{s}, {hex(f2u(v))}')
    a.e(f's_mov_b32 s{S_L}, 0')
    a.e(f's_mov_b32 s{S_LOFF}, 0')
    a.e(f's_mov_b32 s{S_EP}, 1')
    a.e(f's_mov_b32 s{S_MODE}, 1')
    a.e(f's_mov_b32 s{S_COLD}, 1')
    a.e(f's_lshl_b32 s{S_GH}, s{S_G}, 1')
    a.e(f's_add_u32 s{S_GH}, s{S_GH}, 1')
    a.e(f's_lshl_b32 s{S_GH}, s{S_GH}, 14')

    if WARM0[0]:
        assert evq[0][2] == 'W0'; evq.pop(0)
        a.e('s_barrier')
    LOOP = 'LAYER_LOOP'
    a.label(LOOP)
    slabs = build_slabs(0)

    def run_layer():
        def bar(ev):
            exp = evq.pop(0)
            assert exp[1:] == ev or (exp[1] == 'X' and ev[0] == 'X' and exp[2] == ev[1]), (exp, ev)
            a.e('s_barrier')
        def soff(reg, base, extra=0, gh=False):
            if gh: a.e(f's_add_u32 s{reg}, s{S_GH}, {hex(base + extra)}')
            else: a.e(f's_mov_b32 s{reg}, {hex(base + extra)}')
        def done(p):
            if opt.stop == (1, p):
                a.e(f's_cmp_eq_u32 s{S_L}, 1')
                a.e('s_cbranch_scc1 L_END_COMPUTE')
            return opt.stop == (0, p)
        def ep(k):
            a.e(f's_add_u32 s{S_T5}, s{S_EP}, {k}')
            return f's{S_T5}'

        a.c('=== P1KV')
        WR1 = 96; D1 = 116; ONES = 124; D2 = V_PQ
        for i in range(4): a.e(f'v_mov_b32 v{ONES+i}, 0x3f803f80')
        l0 = a.newlabel('KVL0'); ljoin = a.newlabel('KVJ')
        a.e(f's_cmp_eq_u32 s{S_L}, 0')
        a.e(f's_cbranch_scc1 {l0}')
        saved_ev = list(evq)
        emit_poll(a, V_FSB, f's{S_EP}', opt=opt)
        for j in range(opt.D_kv): p1_load(j)
        stamp()
        a.fstamp('P1KV')
        def kv_issue(j, t):
            if t == 1:
                if j + opt.D_kv < 16:
                    p1_load(j + opt.D_kv)
                elif j + opt.D_kv == 16:
                    soff(S_T0, ST_OFF)
                    a.vmem(f'buffer_load_dwordx4 v[{D1}:{D1+3}], v{V_STB}, {WS}, s{S_T0} offen sc1', 'st')
                    a.vmem(f'buffer_load_dwordx4 v[{D1+4}:{D1+7}], v{V_STB}, {WS}, s{S_T0} offen offset:512 sc1', 'st')
                    a.vmem(f'buffer_load_dwordx4 v[{D2}:{D2+3}], v{V_STB}, {WS}, s{S_T0} offen offset:256 sc1', 'st')
                    a.vmem(f'buffer_load_dwordx4 v[{D2+4}:{D2+7}], v{V_STB}, {WS}, s{S_T0} offen offset:768 sc1', 'st')
        emit_gemm16(a, bar, 'P1KV', slabs['P1KV'], 4, '128',
                    acc_of=lambda r, t: V_ACC + (r * 4 + t) * 4, a_of=lambda r, j: V_A + (r * 16 + j) * 4,
                    a_wait=lambda j: a.count_vm(('A', j)), a_issue=kv_issue, wr=WR1, S=5, normal=True)
        a.e(f's_branch {ljoin}')
        a.label(l0)
        evq[:] = saved_ev
        a.vm = []
        fs[0] = 0
        cnt_[0] = 0
        a.fstamp('P1KV')
        tm[0] -= 1 if opt.timing else 0
        stamp()
        VLA = V_X
        a.e(f'v_and_b32 v{T0}, 15, v{V_LANE}')
        a.e(f'v_lshrrev_b32 v{T1}, 4, v{V_LANE}')
        a.e(f'v_xor_b32 v{T1}, v{T1}, v{T0}')
        a.e(f'v_lshlrev_b32 v{T1}, 4, v{T1}')
        a.e(f's_lshl_b32 s{S_T0}, s{S_W}, 5')
        a.e(f'v_add_u32 v{T0}, s{S_T0}, v{T0}')
        a.e(f'v_lshlrev_b32 v{T0}, 8, v{T0}')
        for j in range(4):
            a.e(f'v_xor_b32 v{VLA+j}, {64*j}, v{T1}')
            a.e(f'v_add_u32 v{VLA+j}, v{VLA+j}, v{T0}')
        def kv_lds(j):
            c = j // 4
            return [f'ds_read_b128 v[{V_A+(r*16+j)*4}:{V_A+(r*16+j)*4+3}], v{VLA + j % 4} offset:{AREG + (c & 1) * 32768 + r * 4096}' for r in range(2)]
        def kv_extra(j):
            for r in range(2):
                x = f'v[{V_A+(r*16+j)*4}:{V_A+(r*16+j)*4+3}]'
                c1_ = '0' if j == 0 else f'v[{D1+4*r}:{D1+4*r+3}]'
                c2_ = '0' if j == 0 else f'v[{D2+4*r}:{D2+4*r+3}]'
                a.e(f'v_mfma_f32_16x16x32_bf16 v[{D1+4*r}:{D1+4*r+3}], v[{ONES}:{ONES+3}], {x}, {c1_}')
                a.e(f'v_mfma_f32_16x16x32_bf16 v[{D2+4*r}:{D2+4*r+3}], {x}, {x}, {c2_}')
        emit_gemm16(a, bar, 'P1KV', slabs['P1KV'], 4, '128',
                    acc_of=lambda r, t: V_ACC + (r * 4 + t) * 4, a_of=lambda r, j: V_A + (r * 16 + j) * 4,
                    a_wait=lambda j: None, a_issue=lambda j, t: None, wr=WR1, S=5, normal=True, extra=kv_extra, a_lds=kv_lds)
        a.label(ljoin)
        stamp()
        a.wait_vm_all()
        SUM = [(V_X, V_X + 1), (V_X + 2, V_X + 3)]
        l1 = a.newlabel('S1'); le = a.newlabel('SE')
        a.e(f's_cmp_eq_u32 s{S_L}, 0')
        a.e(f's_cbranch_scc0 {l1}')
        a.e(f'v_and_b32 v{T0}, 31, v{V_LANE}')
        a.e(f'v_lshlrev_b32 v{T0}, 7, v{T0}')
        a.e(f'v_lshrrev_b32 v{T1}, 5, v{V_LANE}')
        a.e(f'v_lshl_add_u32 v{T0}, v{T1}, 3, v{T0}')
        a.e(f's_lshl_b32 s{S_T0}, s{S_RH}, 12')
        a.e(f's_lshl_b32 s{S_T1}, s{S_CH}, 6')
        a.e(f's_add_u32 s{S_T0}, s{S_T0}, s{S_T1}')
        if AREG: a.e(f's_add_u32 s{S_T0}, s{S_T0}, {hex(AREG)}')
        a.e(f'v_add_u32 v{T0}, s{S_T0}, v{T0}')
        for j in range(4):
            a.e(f'ds_read_b64 v[{V_RES+4*j}:{V_RES+4*j+1}], v{T0} offset:{16*j}')
        a.e('s_waitcnt lgkmcnt(0)')
        for j in range(4):
            b = V_RES + 4 * j
            a.e(f'v_and_b32 v{b+3}, 0xffff0000, v{b+1}')
            a.e(f'v_lshlrev_b32 v{b+2}, 16, v{b+1}')
            a.e(f'v_and_b32 v{b+1}, 0xffff0000, v{b}')
            a.e(f'v_lshlrev_b32 v{b}, 16, v{b}')
        a.e(f'v_and_b32 v{T0}, 3, v{V_LANE}')
        a.e(f'v_bfe_u32 v{T1}, v{V_LANE}, 2, 2')
        a.e(f'v_lshrrev_b32 v{T2}, 4, v{V_LANE}')
        for r in range(2):
            s_, ss_ = SUM[r]
            a.e(f'v_mov_b32 v{s_}, v{D1+4*r}')
            a.e(f'v_mov_b32 v{ss_}, v{D2+4*r}')
            for i in range(1, 4):
                a.e(f'v_cmp_eq_u32 vcc, {i}, v{T0}')
                a.e('s_nop 1')
                a.e(f'v_cndmask_b32 v{ss_}, v{ss_}, v{D2+4*r+i}, vcc')
            a.e(f'v_cmp_eq_u32 vcc, v{T1}, v{T2}')
            a.e('s_nop 1')
            a.e(f'v_cndmask_b32 v{ss_}, 0, v{ss_}, vcc')
        emit_xreduce(a, [SUM[0][1], SUM[1][1]], [T0, T1])
        a.e(f's_branch {le}')
        a.label(l1)
        for r, raw in enumerate([D1, D2]):
            emit_sum_partials(a, raw, 8)
            a.e(f'v_mov_b32 v{SUM[r][0]}, v{raw}')
            a.e(f'v_mov_b32 v{SUM[r][1]}, v{raw+1}')
        emit_xreduce(a, [SUM[0][0], SUM[0][1], SUM[1][0], SUM[1][1]], [WR1, WR1 + 1, WR1 + 2, WR1 + 3])
        a.label(le)
        CSR = 120
        a.e(f'v_and_b32 v{T0}, 15, v{V_LANE}')
        a.e(f'v_lshlrev_b32 v{T0}, 2, v{T0}')
        a.e(f'v_add_u32 v{T0}, {hex(CSC)}, v{T0}')
        a.e(f'v_and_b32 v{T1}, 0x30, v{V_LANE}')
        for t in range(4):
            a.e(f'ds_read_b32 v{CSR+t}, v{T0} offset:{64*t}')
        KEEP = [(V_PQ + 0, V_PQ + 2), (V_PQ + 4, V_PQ + 6)]
        for r in range(2):
            emit_stats_from_sums(a, SUM[r][0], SUM[r][1], KEEP[r][0], KEEP[r][1], WR1)
        AI = [WR1, WR1 + 8]; BI = [WR1 + 4, WR1 + 12]
        for r in range(2):
            for i in range(4):
                a.e(f'ds_bpermute_b32 v{AI[r]+i}, v{T1}, v{KEEP[r][0]} offset:{4*i}')
                a.e(f'ds_bpermute_b32 v{BI[r]+i}, v{T1}, v{KEEP[r][1]} offset:{4*i}')
        a.e('s_waitcnt vmcnt(0) lgkmcnt(0)'); a.vm = []
        CSE = WR1 + 16
        for t in range(4): a.e(f'v_mov_b32 v{CSE+2*t}, v{CSR+t}')
        for r in range(2):
            for t in range(4):
                for i in (0, 2):
                    d = V_ACC + (r * 4 + t) * 4 + i
                    a.e(pk('mul', d, vp(d), vp(AI[r] + i)))
            for t in range(4):
                for i in (0, 2):
                    d = V_ACC + (r * 4 + t) * 4 + i
                    a.e(pk('fma', d, vp(BI[r] + i), vp(CSE + 2 * t), vp(d), mods=' op_sel_hi:[1,0,1]'))
        regs = [V_ACC + (r * 4 + t) * 4 + i for r in range(2) for t in range(2) for i in range(4)]
        emit_phi(a, regs, WR1)
        for t in range(4):
            b0 = V_ACC + t * 4; b1 = V_ACC + (4 + t) * 4
            a.e(f'v_cvt_pk_bf16_f32 v{b0}, v{b0}, v{b0+1}')
            a.e(f'v_cvt_pk_bf16_f32 v{b0+1}, v{b0+2}, v{b0+3}')
            a.e(f'v_cvt_pk_bf16_f32 v{b0+2}, v{b1}, v{b1+1}')
            a.e(f'v_cvt_pk_bf16_f32 v{b0+3}, v{b1+2}, v{b1+3}')
        a.e('s_nop 1')
        KVD = V_ACC + 16
        for h in range(2):
            a.e(f'v_mfma_f32_16x16x32_bf16 v[{KVD+4*h}:{KVD+4*h+3}], v[{V_ACC+4*h}:{V_ACC+4*h+3}], v[{V_ACC+8+4*h}:{V_ACC+8+4*h+3}], 0')
            a.e(f'v_mfma_f32_16x16x32_bf16 v[{KVD+8+4*h}:{KVD+8+4*h+3}], v[{V_ACC+4*h}:{V_ACC+4*h+3}], v[{ONES}:{ONES+3}], 0')
        a.e(f's_lshl_b32 s{S_T0}, s{S_W}, 11')
        a.e(f's_add_u32 s{S_T0}, s{S_T0}, {hex(SCR)}')
        a.e(f'v_lshlrev_b32 v{T0}, 4, v{V_LANE}')
        a.e(f'v_add_u32 v{T0}, s{S_T0}, v{T0}')
        a.e(f's_lshl_b32 s{S_T0}, s{S_W}, 7')
        a.e(f's_add_u32 s{S_T0}, s{S_T0}, {hex(SCR + 8192)}')
        a.e(f'v_add_u32 v{T2}, s{S_T0}, v{T1}')
        a.e('s_nop 4')
        a.e(f'ds_write_b128 v{T0}, v[{KVD}:{KVD+3}]')
        a.e(f'ds_write_b128 v{T0}, v[{KVD+4}:{KVD+7}] offset:1024')
        set_exec(a, 0x00010001)
        a.e(f'ds_write_b128 v{T2}, v[{KVD+8}:{KVD+11}]')
        a.e(f'ds_write_b128 v{T2}, v[{KVD+12}:{KVD+15}] offset:64')
        a.e('s_mov_b64 exec, -1')
        a.e('s_waitcnt lgkmcnt(0)')
        bar(('X', 'X1'))
        sk = a.newlabel('KVST')
        a.e(f's_cmp_lt_u32 s{S_W}, 2')
        a.e(f's_cbranch_scc0 {sk}')
        if opt.kv_atomic:
            a.e(f's_lshl_b32 s{S_T0}, s{S_W}, 10')
            a.e(f's_add_u32 s{S_T0}, s{S_T0}, {hex(SCR)}')
            a.e(f'v_lshlrev_b32 v{T0}, 2, v{V_LANE}')
            a.e(f'v_add_u32 v{T2}, s{S_T0}, v{T0}')
            a.e(f's_lshl_b32 s{S_T0}, s{S_W}, 6')
            a.e(f's_add_u32 s{S_T0}, s{S_T0}, {hex(SCR + 8192)}')
            a.e(f'v_add_u32 v{V_X}, s{S_T0}, v{T0}')
            KB = V_ACC
            for ww in range(4):
                for i in range(4):
                    a.e(f'ds_read_b32 v{KB+4*ww+i}, v{T2} offset:{ww*2048+256*i}')
                if ww == 2: a.e('s_waitcnt lgkmcnt(4)')
            for ww in range(4):
                a.e(f'ds_read_b32 v{KB+16+ww}, v{V_X} offset:{ww*128}')
            a.e(f's_mul_i32 s{S_T0}, s{S_CB2}, {KVREC}')
            a.e(f's_mul_i32 s{S_T1}, s{S_L}, {16*KVREC}')
            a.e(f's_add_u32 s{S_T0}, s{S_T0}, s{S_T1}')
            a.e(f's_add_u32 s{S_T0}, s{S_T0}, {hex(KVA_OFF)}')
            a.e(f's_lshl_b32 s{S_T1}, s{S_W}, 10')
            a.e(f's_add_u32 s{S_T1}, s{S_T1}, s{S_T0}')
            a.e(f's_lshl_b32 s{S_T2}, s{S_W}, 6')
            a.e(f's_add_u32 s{S_T2}, s{S_T2}, s{S_T0}')
            a.e(f's_add_u32 s{S_T2}, s{S_T2}, 2048')
            a.e('s_waitcnt lgkmcnt(0)')
            for i in (0, 2):
                a.e(pk('add', KB + i, vp(KB + i), vp(KB + 4 + i)))
                a.e(pk('add', KB + 8 + i, vp(KB + 8 + i), vp(KB + 12 + i)))
                a.e(pk('add', KB + i, vp(KB + i), vp(KB + 8 + i)))
            a.e(pk('add', KB + 16, vp(KB + 16), vp(KB + 18)))
            a.e(f'v_add_f32 v{KB+16}, v{KB+16}, v{KB+17}')
            for i in range(4):
                a.e(f'buffer_atomic_add_f32 v{KB+i}, v{T0}, {WS}, s{S_T1} offen offset:{256*i}')
            a.e('s_mov_b64 exec, 0xffff')
            a.e(f'buffer_atomic_add_f32 v{KB+16}, v{T0}, {WS}, s{S_T2} offen')
            a.e('s_mov_b64 exec, -1')
        else:
            a.e(f's_lshl_b32 s{S_T0}, s{S_W}, 10')
            a.e(f's_add_u32 s{S_T0}, s{S_T0}, {hex(SCR)}')
            a.e(f'v_lshlrev_b32 v{T0}, 4, v{V_LANE}')
            a.e(f'v_add_u32 v{T2}, s{S_T0}, v{T0}')
            a.e(f's_lshl_b32 s{S_T0}, s{S_W}, 6')
            a.e(f's_add_u32 s{S_T0}, s{S_T0}, {hex(SCR + 8192)}')
            a.e(f'v_add_u32 v{V_X}, s{S_T0}, v{T1}')
            KB = V_ACC
            for ww in range(4):
                a.e(f'ds_read_b128 v[{KB+4*ww}:{KB+4*ww+3}], v{T2} offset:{ww*2048}')
                a.e(f'ds_read_b128 v[{KB+16+4*ww}:{KB+16+4*ww+3}], v{V_X} offset:{ww*128}')
            a.e(f's_lshl_b32 s{S_T0}, s{S_CB2}, 4')
            a.e(f's_lshl_b32 s{S_T1}, s{S_G}, 1')
            a.e(f's_add_u32 s{S_T0}, s{S_T0}, s{S_T1}')
            a.e(f's_add_u32 s{S_T0}, s{S_T0}, s{S_RB2}')
            a.e(f's_mul_i32 s{S_T0}, s{S_T0}, {KVREC}')
            a.e(f's_add_u32 s{S_T0}, s{S_T0}, s{S_LOFF}')
            a.e(f's_add_u32 s{S_T0}, s{S_T0}, {hex(KVP_OFF)}')
            a.e(f's_lshl_b32 s{S_T1}, s{S_W}, 10')
            a.e(f's_add_u32 s{S_T1}, s{S_T1}, s{S_T0}')
            a.e(f's_lshl_b32 s{S_T2}, s{S_W}, 6')
            a.e(f's_add_u32 s{S_T2}, s{S_T2}, s{S_T0}')
            a.e(f's_add_u32 s{S_T2}, s{S_T2}, 2048')
            a.e('s_waitcnt lgkmcnt(0)')
            for base in (KB, KB + 16):
                for i in range(0, 4, 2):
                    a.e(pk('add', base + i, vp(base + i), vp(base + 4 + i)))
                    a.e(pk('add', base + 8 + i, vp(base + 8 + i), vp(base + 12 + i)))
                    a.e(pk('add', base + i, vp(base + i), vp(base + 8 + i)))
            a.e(f'buffer_store_dwordx4 v[{KB}:{KB+3}], v{T0}, {WS}, s{S_T1} offen sc1')
            set_exec(a, 0x00010001)
            a.e(f'buffer_store_dwordx4 v[{KB+16}:{KB+19}], v{T1}, {WS}, s{S_T2} offen sc1')
            a.e('s_mov_b64 exec, -1')
        a.e(f's_lshl_b32 s{S_T0}, s{S_L}, 11')
        a.e(f's_lshl_b32 s{S_T1}, s{S_CB2}, 7')
        a.e(f's_add_u32 s{S_T0}, s{S_T0}, s{S_T1}')
        a.e(f's_lshl_b32 s{S_T1}, s{S_W}, 6')
        a.e(f's_add_u32 s{S_T0}, s{S_T0}, s{S_T1}')
        a.e(f's_lshl_b32 s{S_T1}, s{S_G}, 3')
        a.e(f's_add_u32 s{S_T0}, s{S_T0}, s{S_T1}')
        a.e(f's_lshl_b32 s{S_T1}, s{S_RB2}, 2')
        a.e(f's_add_u32 s{S_T0}, s{S_T0}, s{S_T1}')
        a.e(f's_add_u32 s{S_T0}, s{S_T0}, {hex(KVF_OFF)}')
        a.e(f'v_mov_b32 v{V_X+4}, s{S_T0}')
        a.label(sk)
        a.vm = []
        stamp()
        if done('P1KV'): return True

        a.c('=== P1Q')
        QCS = V_ACC + 16
        a.e(f'v_and_b32 v{T1}, 0x30, v{V_LANE}')
        a.e(f'v_add_u32 v{T1}, {hex(CSC + 256)}, v{T1}')
        a.e(f'ds_read_b128 v[{QCS}:{QCS+3}], v{T1}')
        a.e(f'ds_read_b128 v[{QCS+4}:{QCS+7}], v{T1} offset:64')
        a.e('s_waitcnt lgkmcnt(0)')
        QAB = [(V_ACC + 24, V_ACC + 26), (V_ACC + 28, V_ACC + 30)]
        for r in range(2):
            a.e(f'v_mov_b32 v{QAB[r][0]}, v{KEEP[r][0]}')
            a.e(f'v_mov_b32 v{QAB[r][1]}, v{KEEP[r][1]}')
        def q_issue(j, t):
            if j == opt.kvflag_at and t == 1:
                fk = a.newlabel('KVFL')
                a.e(f's_cmp_lt_u32 s{S_W}, 2')
                a.e(f's_cbranch_scc0 {fk}')
                thr_value(a, S_THR, 1, xcc=True)
                a.e(f'v_mov_b32 v{V_X+5}, s{S_THR}')
                a.e('s_waitcnt vmcnt(0)')
                a.e('s_mov_b64 exec, 1')
                a.e(f'buffer_store_dword v{V_X+5}, v{V_X+4}, {WS}, 0 offen sc1')
                a.e('s_mov_b64 exec, -1')
                a.label(fk)
        emit_gemm16(a, bar, 'P1Q', slabs['P1Q'], 2, '64',
                    acc_of=lambda r, t: V_ACC + (r * 2 + t) * 4, a_of=lambda r, j: V_A + (r * 16 + j) * 4,
                    a_wait=lambda j: None, a_issue=q_issue, wr=96, S=8)
        for r in range(2):
            for t in range(2):
                emit_lnfold(a, V_ACC + (r * 2 + t) * 4, QCS + 4 * t, QAB[r][0], QAB[r][1], 4)
        emit_phi(a, [V_ACC + i for i in range(16)], 96)
        for r in range(2):
            for h in range(2):
                emit_pack(a, V_PQ + (r * 2 + h) * 2, V_ACC + (r * 2 + h) * 4, 4)
        stamp()
        sk = a.newlabel('MODE')
        a.e(f's_cmp_eq_u32 s{S_L}, 0')
        a.e(f's_cbranch_scc0 {sk}')
        a.e(f'v_and_b32 v{T1}, 31, v{V_LANE}')
        a.e(f'v_lshlrev_b32 v{T1}, 2, v{T1}')
        a.e(f's_lshl_b32 s{S_T0}, s{S_G}, 7')
        a.e(f's_add_u32 s{S_T0}, s{S_T0}, {hex(XID_OFF)}')
        emit_poll(a, T1, 0, soff=f's{S_T0}', opt=opt)
        a.e(f'v_and_b32 v{T2}, 7, v{T2}')
        a.e(f'v_cmp_eq_u32 vcc, s{S_XCC}, v{T2}')
        a.e('s_nop 1')
        a.e('s_cmp_eq_u64 vcc, -1')
        a.e(f's_cselect_b32 s{S_MODE}, 0, 1')
        if opt.force_safe: a.e(f's_mov_b32 s{S_MODE}, 1')
        a.label(sk)
        a.e(f's_lshl_b32 s{S_T0}, s{S_L}, 11')
        emit_poll(a, V_FKV, 1, soff=f's{S_T0}', opt=opt)
        stamp()
        RB = V_A + 64
        if opt.kv_atomic:
            a.e(f's_mul_i32 s{S_T0}, s{S_CB2}, {KVREC}')
            a.e(f's_mul_i32 s{S_T1}, s{S_L}, {16*KVREC}')
            a.e(f's_add_u32 s{S_T0}, s{S_T0}, s{S_T1}')
            a.e(f's_add_u32 s{S_T0}, s{S_T0}, {hex(KVA_OFF)}')
            a.e(f'v_lshlrev_b32 v{T0}, 4, v{V_LANE}')
            a.e(f'v_and_b32 v{T1}, 0x30, v{V_LANE}')
            a.vmem(f'buffer_load_dwordx4 v[{RB}:{RB+3}], v{T0}, {WS}, s{S_T0} offen sc1', 'kp')
            a.vmem(f'buffer_load_dwordx4 v[{RB+4}:{RB+7}], v{T0}, {WS}, s{S_T0} offen offset:1024 sc1', 'kp')
            a.vmem(f'buffer_load_dwordx4 v[{RB+8}:{RB+11}], v{T1}, {WS}, s{S_T0} offen offset:2048 sc1', 'kp')
            a.vmem(f'buffer_load_dwordx4 v[{RB+12}:{RB+15}], v{T1}, {WS}, s{S_T0} offen offset:2112 sc1', 'kp')
            a.wait_vm_all()
        else:
            a.e(f's_lshl_b32 s{S_T0}, s{S_CB2}, 4')
            a.e(f's_lshl_b32 s{S_T1}, s{S_W}, 2')
            a.e(f's_add_u32 s{S_T0}, s{S_T0}, s{S_T1}')
            a.e(f's_mul_i32 s{S_T0}, s{S_T0}, {KVREC}')
            a.e(f's_add_u32 s{S_T0}, s{S_T0}, s{S_LOFF}')
            a.e(f's_add_u32 s{S_T0}, s{S_T0}, {hex(KVP_OFF)}')
            a.e(f'v_lshlrev_b32 v{T0}, 4, v{V_LANE}')
            a.e(f'v_and_b32 v{T1}, 0x30, v{V_LANE}')
            PB = V_A
            for s4 in range(4):
                b = PB + 16 * s4
                a.vmem(f'buffer_load_dwordx4 v[{b}:{b+3}], v{T0}, {WS}, s{S_T0} offen sc1', 'kp')
                a.vmem(f'buffer_load_dwordx4 v[{b+4}:{b+7}], v{T0}, {WS}, s{S_T0} offen offset:1024 sc1', 'kp')
                a.vmem(f'buffer_load_dwordx4 v[{b+8}:{b+11}], v{T1}, {WS}, s{S_T0} offen offset:2048 sc1', 'kp')
                a.vmem(f'buffer_load_dwordx4 v[{b+12}:{b+15}], v{T1}, {WS}, s{S_T0} offen offset:2112 sc1', 'kp')
                if s4 < 3: a.e(f's_add_u32 s{S_T0}, s{S_T0}, {KVREC}')
            a.e(f's_lshl_b32 s{S_T0}, s{S_W}, 11')
            a.e(f's_add_u32 s{S_T0}, s{S_T0}, {hex(SCR)}')
            a.e(f'v_add_u32 v{T0}, s{S_T0}, v{T0}')
            a.e(f's_lshl_b32 s{S_T0}, s{S_W}, 7')
            a.e(f's_add_u32 s{S_T0}, s{S_T0}, {hex(SCR + 8192)}')
            a.e(f'v_add_u32 v{T2}, s{S_T0}, v{T1}')
            a.wait_vm_all()
            for i in range(0, 16, 2):
                a.e(pk('add', PB + i, vp(PB + i), vp(PB + 16 + i)))
                a.e(pk('add', PB + 32 + i, vp(PB + 32 + i), vp(PB + 48 + i)))
            for i in range(0, 16, 2):
                a.e(pk('add', PB + i, vp(PB + i), vp(PB + 32 + i)))
            a.e(f'ds_write_b128 v{T0}, v[{PB}:{PB+3}]')
            a.e(f'ds_write_b128 v{T0}, v[{PB+4}:{PB+7}] offset:1024')
            set_exec(a, 0x00010001)
            a.e(f'ds_write_b128 v{T2}, v[{PB+8}:{PB+11}]')
            a.e(f'ds_write_b128 v{T2}, v[{PB+12}:{PB+15}] offset:64')
            a.e('s_mov_b64 exec, -1')
            a.e(f'v_lshlrev_b32 v{T0}, 4, v{V_LANE}')
            a.e(f'v_add_u32 v{T0}, {hex(SCR)}, v{T0}')
            a.e(f'v_add_u32 v{T2}, {hex(SCR + 8192)}, v{T1}')
            a.e('s_waitcnt lgkmcnt(0)')
            bar(('X', 'X2'))
            for ww in range(4):
                b = RB + 16 * ww
                a.e(f'ds_read_b128 v[{b}:{b+3}], v{T0} offset:{ww*2048}')
                a.e(f'ds_read_b128 v[{b+4}:{b+7}], v{T0} offset:{ww*2048+1024}')
                a.e(f'ds_read_b128 v[{b+8}:{b+11}], v{T2} offset:{ww*128}')
                a.e(f'ds_read_b128 v[{b+12}:{b+15}], v{T2} offset:{ww*128+64}')
                if ww == 2: a.e('s_waitcnt lgkmcnt(8)')
            a.e('s_waitcnt lgkmcnt(0)')
            for i in range(0, 16, 2):
                a.e(pk('add', RB + i, vp(RB + i), vp(RB + 16 + i)))
                a.e(pk('add', RB + 32 + i, vp(RB + 32 + i), vp(RB + 48 + i)))
            for i in range(0, 16, 2):
                a.e(pk('add', RB + i, vp(RB + i), vp(RB + 32 + i)))
        OPB = V_ACC + 16
        emit_pack(a, OPB, RB, 16)
        a.e('s_nop 1')
        NUM = V_A; DEN = V_A + 16
        for r in range(2):
            for h in range(2):
                pq = V_PQ + (r * 2 + h) * 2
                n_ = NUM + (r * 2 + h) * 4; d_ = DEN + (r * 2 + h) * 4
                a.e(f'v_mfma_f32_16x16x16_bf16 v[{n_}:{n_+3}], v[{OPB+2*h}:{OPB+2*h+1}], v[{pq}:{pq+1}], 0')
                a.e(f'v_mfma_f32_16x16x16_bf16 v[{d_}:{d_+3}], v[{OPB+4+2*h}:{OPB+4+2*h+1}], v[{pq}:{pq+1}], 0')
        a.e(f's_lshl_b32 s{S_T0}, s{S_CB2}, 10')
        a.e(f's_add_u32 s{S_T0}, s{S_T0}, s{S_GH}')
        a.e(f's_add_u32 s{S_T1}, s{S_T0}, 0x4000')
        a.e('s_nop 4')
        for k in range(4): a.e(f'v_add_f32 v{DEN+4*k}, s{S_EPS6}, v{DEN+4*k}')
        for k in range(4): a.e(f'v_rcp_f32 v{DEN+4*k}, v{DEN+4*k}')
        a.e('s_nop 0')
        for k in range(4):
            for i in range(4): a.e(f'v_mul_f32 v{NUM+4*k+i}, v{NUM+4*k+i}, v{DEN+4*k}')
        OPK = V_A + 32
        emit_pack(a, OPK, NUM, 16)
        emit_mode_stores(a, [f'buffer_store_dwordx4 v[{OPK}:{OPK+3}], v{V_AB}, {WS}, s{S_T0} offen',
                             f'buffer_store_dwordx4 v[{OPK+4}:{OPK+7}], v{V_AB}, {WS}, s{S_T1} offen'], cold=True)
        emit_signal(a, ep(1))
        stamp()
        if done('P1Q'): return True

        ACC = V_ACC; WR = 80; TMP = V_A
        def small_gemm(phase, tail=None):
            a.fstamp(phase)
            emit_gemm32(a, bar, phase, slabs[phase], ACC, WR, tail=tail)
        def tile_store(pkb, base, gh=False, cold=False):
            soff(S_T0, base, gh=gh)
            emit_mode_stores(a, [f'buffer_store_dwordx4 v[{pkb}:{pkb+3}], v{V_TST}, {WS}, s{S_T0} offen',
                                 f'buffer_store_dwordx4 v[{pkb+4}:{pkb+7}], v{V_TST}, {WS}, s{S_T0} offen offset:512'], cold=cold)

        a.c('=== P3')
        stamp()
        small_gemm('P3')
        stamp()
        for i in range(0, 16, 2): a.e(pk('add', V_RES + i, vp(V_RES + i), vp(ACC + i)))
        emit_pack32(a, TMP, V_RES)
        tile_store(TMP, A1_OFF, cold=True)
        soff(S_T1, ST_OFF)
        emit_stats_partial32(a, V_RES, TMP + 8, f's{S_T1}', cold=True)
        emit_signal(a, ep(2))
        stamp()
        if done('P3'): return True

        a.c('=== P4')
        CS4 = TMP + 16; RAW = TMP + 32
        a.e(f'v_lshrrev_b32 v{T1}, 5, v{V_LANE}')
        a.e(f'v_lshlrev_b32 v{T1}, 4, v{T1}')
        a.e(f's_lshl_b32 s{S_T1}, s{S_CH}, 7')
        a.e(f's_add_u32 s{S_T1}, s{S_T1}, {hex(CSC + 384)}')
        a.e(f'v_add_u32 v{T1}, s{S_T1}, v{T1}')
        for j in range(4):
            a.e(f'ds_read_b128 v[{CS4+4*j}:{CS4+4*j+3}], v{T1} offset:{32*j}')
        a.e('s_waitcnt lgkmcnt(0)')
        stamp()
        def p4_tail():
            soff(S_T0, ST_OFF)
            for k in range(4):
                a.vmem(f'buffer_load_dwordx4 v[{RAW+4*k}:{RAW+4*k+3}], v{V_STS}, {WS}, s{S_T0} offen offset:{512*k} sc1', 'st')
        small_gemm('P4', tail=p4_tail)
        stamp()
        a.wait_vm_all()
        emit_sum_partials(a, RAW, 16)
        emit_xreduce(a, [RAW, RAW + 1], [RAW + 2, RAW + 3], over16=False)
        emit_stats_from_sums(a, RAW, RAW + 1, RAW + 4, RAW + 6, RAW + 8, double=True, keep=(V_MEAN, V_RS))
        emit_lnfold(a, ACC, CS4, RAW + 4, RAW + 6, 16)
        emit_gelu(a, ACC, 16, TMP + 48, V_PQ)
        emit_pack32(a, TMP, ACC)
        tile_store(TMP, A0_OFF, gh=True)
        gl = a.newlabel('GH'); gu = a.newlabel('GH'); gd = a.newlabel('GH')
        a.e(f's_cmp_eq_u32 s{S_RB}, 3')
        a.e(f's_cbranch_scc0 {gu}')
        a.e(f's_cmp_eq_u32 s{S_RH}, 1')
        a.e(f's_cbranch_scc0 {gd}')
        a.e(f's_bitcmp1_b32 s{S_CB}, 1')
        a.e(f's_cbranch_scc1 {gd}')
        a.e(f's_cmp_eq_u32 s{S_G}, 7')
        a.e(f's_cbranch_scc1 {gd}')
        a.e(f's_add_u32 s{S_T1}, s{S_G}, 1')
        a.e(f's_mul_i32 s{S_T2}, s{S_T1}, {18*16384}')
        a.e(f's_lshl_b32 s{S_T3}, s{S_T1}, 8')
        set_exec(a, 0xc0000000)
        a.e(f's_branch {gl}')
        a.label(gu)
        a.e(f's_cmp_eq_u32 s{S_RB}, 0')
        a.e(f's_cbranch_scc0 {gd}')
        a.e(f's_cmp_eq_u32 s{S_RH}, 0')
        a.e(f's_cbranch_scc0 {gd}')
        a.e(f's_bitcmp1_b32 s{S_CB}, 1')
        a.e(f's_cbranch_scc0 {gd}')
        a.e(f's_cmp_eq_u32 s{S_G}, 0')
        a.e(f's_cbranch_scc1 {gd}')
        a.e(f's_sub_u32 s{S_T1}, s{S_G}, 1')
        a.e(f's_mul_i32 s{S_T2}, s{S_T1}, {18*16384}')
        a.e(f's_add_u32 s{S_T2}, s{S_T2}, {17*16384}')
        a.e(f's_lshl_b32 s{S_T3}, s{S_T1}, 8')
        a.e(f's_add_u32 s{S_T3}, s{S_T3}, 128')
        set_exec(a, 0x00000003)
        a.label(gl)
        a.e(f's_lshl_b32 s{S_T0}, s{S_CB}, 1')
        a.e(f's_add_u32 s{S_T0}, s{S_T0}, s{S_CH}')
        a.e(f's_lshl_b32 s{S_T0}, s{S_T0}, 10')
        a.e(f's_add_u32 s{S_T2}, s{S_T2}, s{S_T0}')
        a.e(f'v_and_b32 v{T0}, 0x3fff, v{V_TST}')
        a.e(f'v_and_b32 v{T0}, 0x3ff, v{T0}')
        a.e(f'buffer_store_dwordx4 v[{TMP}:{TMP+3}], v{T0}, {WS}, s{S_T2} offen sc1')
        a.e(f'buffer_store_dwordx4 v[{TMP+4}:{TMP+7}], v{T0}, {WS}, s{S_T2} offen offset:512 sc1')
        a.e('s_mov_b64 exec, -1')
        a.e(f's_and_b32 s{S_T0}, s{S_CB}, 1')
        a.e(f's_lshr_b32 s{S_T1}, s{S_CB}, 2')
        a.e(f's_lshl_b32 s{S_T1}, s{S_T1}, 1')
        a.e(f's_add_u32 s{S_T0}, s{S_T0}, s{S_T1}')
        a.e(f's_lshl_b32 s{S_T0}, s{S_T0}, 1')
        a.e(f's_add_u32 s{S_T0}, s{S_T0}, s{S_CH}')
        a.e(f's_lshl_b32 s{S_T0}, s{S_T0}, 2')
        a.e(f's_add_u32 s{S_T3}, s{S_T3}, s{S_T0}')
        a.e(f's_lshl_b32 s{S_T0}, s{S_L}, 11')
        a.e(f's_add_u32 s{S_T3}, s{S_T3}, s{S_T0}')
        a.e(f's_add_u32 s{S_T3}, s{S_T3}, {hex(HF_OFF)}')
        thr_value(a, S_THR, ep(3), xcc=True)
        a.e(f'v_mov_b32 v{T0}, s{S_T3}')
        a.e(f'v_mov_b32 v{T1}, s{S_THR}')
        a.e('s_waitcnt vmcnt(0)')
        a.e('s_mov_b64 exec, 1')
        a.e(f'buffer_store_dword v{T1}, v{T0}, {WS}, 0 offen sc1')
        a.e('s_mov_b64 exec, -1')
        a.label(gd)
        emit_signal(a, ep(3))
        stamp()
        if done('P4'): return True

        a.c('=== P5')
        stamp()
        small_gemm('P5')
        stamp()
        a.e(f'v_mul_f32 v{TMP+10}, v{V_MEAN}, v{V_RS}')
        a.e(f'v_sub_f32 v{TMP+10}, 0, v{TMP+10}')
        a.e(f'v_mov_b32 v{TMP+8}, v{V_RS}')
        for i in range(0, 16, 2):
            a.e(pk('fma', ACC + i, vp(V_RES + i), vp(TMP + 8), vp(ACC + i), mods=' op_sel_hi:[1,0,1]'))
        for i in range(0, 16, 2):
            a.e(pk('add', ACC + i, vp(ACC + i), vp(TMP + 10), mods=' op_sel_hi:[1,0]'))
        emit_pack32(a, TMP, ACC)
        tile_store(TMP, A1_OFF)
        soff(S_T1, ST_OFF)
        emit_stats_partial32(a, ACC, TMP + 12, f's{S_T1}')
        for i in range(0, 16, 2): a.e(pk('add', V_RES + i, vp(V_RES + i), vp(ACC + i)))
        emit_signal(a, ep(4))
        stamp()
        if done('P5'): return True

        a.c('=== P6')
        CS6 = V_ACC; ACC6 = 192; WR6 = 96
        a.e(f'v_and_b32 v{T1}, 0x30, v{V_LANE}')
        a.e(f'v_add_u32 v{T1}, {hex(CSC + 640)}, v{T1}')
        for t in range(7):
            a.e(f'ds_read_b128 v[{CS6+4*t}:{CS6+4*t+3}], v{T1} offset:{64*t}')
        a.e('s_waitcnt lgkmcnt(0)')
        emit_poll(a, V_FSB, ep(4), opt=opt)
        stamp()
        def p6_load(j):
            a.e(f's_lshl_b32 s{S_T0}, s{S_RB2}, {13 if opt.rot else 31}')
            if not opt.rot: a.e(f's_mov_b32 s{S_T0}, 0')
            a.e(f's_xor_b32 s{S_T0}, s{S_T0}, {hex((j // 4) * 4096)}')
            a.e(f's_add_u32 s{S_T0}, s{S_T0}, {hex(A1_OFF)}')
            a.e(f's_add_u32 s{S_T1}, s{S_T0}, 0x4000')
            for r in range(2):
                d = V_A + ((j % 8) * 2 + r) * 4
                a.vmem(f'buffer_load_dwordx4 v[{d}:{d+3}], v{V_AB}, {WS}, s{S_T0 if r == 0 else S_T1} offen offset:{(j%4)*1024} sc1', ('A', j))
        RAW6 = [V_PQ, 248]
        def p6_issue(j, t):
            if t == 1:
                if j + opt.D_p6 < 16:
                    p6_load(j + opt.D_p6)
                elif j + opt.D_p6 == 16:
                    soff(S_T0, ST_OFF)
                    for r in range(2):
                        a.vmem(f'buffer_load_dwordx4 v[{RAW6[r]}:{RAW6[r]+3}], v{V_STB}, {WS}, s{S_T0} offen offset:{256*r} sc1', 'st')
                        a.vmem(f'buffer_load_dwordx4 v[{RAW6[r]+4}:{RAW6[r]+7}], v{V_STB}, {WS}, s{S_T0} offen offset:{256*r+512} sc1', 'st')
        a.fstamp('P6')
        for j in range(opt.D_p6): p6_load(j)
        emit_gemm16(a, bar, 'P6', slabs['P6'], 7, '224',
                    acc_of=lambda r, t: ACC6 + (r * 7 + t) * 4, a_of=lambda r, j: V_A + ((j % 8) * 2 + r) * 4,
                    a_wait=lambda j: a.count_vm(('A', j)), a_issue=p6_issue, wr=WR6, S=8)
        stamp()
        a.wait_vm_all()
        for r in range(2): emit_sum_partials(a, RAW6[r], 8)
        emit_xreduce(a, [RAW6[0], RAW6[0] + 1, RAW6[1], RAW6[1] + 1], [V_X, V_X + 1, V_X + 2, V_X + 3])
        AB6 = [(92, 94), (RAW6[1] + 4, RAW6[1] + 6)]
        for r in range(2):
            emit_stats_from_sums(a, RAW6[r], RAW6[r] + 1, AB6[r][0], AB6[r][1], V_X)
        a.e(f's_lshl_b32 s{S_T0}, s{S_G}, 4')
        a.e(f's_lshl_b32 s{S_T1}, s{S_RB2}, 3')
        a.e(f's_add_u32 s{S_T0}, s{S_T0}, s{S_T1}')
        a.e(f's_lshl_b32 s{S_T1}, s{S_W}, 1')
        a.e(f's_add_u32 s{S_T0}, s{S_T0}, s{S_T1}')
        a.e(f's_mul_i32 s{S_T0}, s{S_T0}, 57344')
        a.e(f's_lshr_b32 s{S_T1}, s{S_CB2}, 1')
        a.e(f's_mul_i32 s{S_T1}, s{S_T1}, 7168')
        a.e(f's_add_u32 s{S_T0}, s{S_T0}, s{S_T1}')
        a.e(f's_add_u32 s{S_T0}, s{S_T0}, {hex(G_OFF)}')
        a.e(f's_and_b32 s{S_T1}, s{S_CB2}, 1')
        a.e(f's_mul_i32 s{S_U0}, s{S_T1}, 3072')
        a.e(f's_add_u32 s{S_U0}, s{S_U0}, s{S_T0}')
        a.e(f's_add_u32 s{S_U1}, s{S_U0}, 57344')
        a.e(f's_lshl_b32 s{S_T1}, s{S_T1}, 3')
        a.e(f's_add_u32 s{S_U2}, s{S_T0}, s{S_T1}')
        a.e(f's_add_u32 s{S_U2}, s{S_U2}, 6144')
        a.e(f's_add_u32 s{S_U3}, s{S_U2}, 57344')
        a.e(f'v_lshlrev_b32 v{V_X+4}, 4, v{V_LANE}')
        for r in range(2):
            emit_lnfold(a, ACC6 + r * 28, CS6, AB6[r][0], AB6[r][1], 28)
            emit_gelu(a, ACC6 + r * 28, 28, V_A, V_PQ + 4)
            pkb = V_A + 16 + r * 16
            emit_pack(a, pkb, ACC6 + r * 28, 28)
            st = [f'buffer_store_dwordx4 v[{pkb+4*j}:{pkb+4*j+3}], v{V_X+4}, {WS}, s{S_U0+r} offen offset:{1024*j}' for j in range(3)]
            st.append(f'buffer_store_dwordx2 v[{pkb+12}:{pkb+13}], v{V_X+4}, {WS}, s{S_U2+r} offen')
            emit_mode_stores(a, st, cold=bool(opt.g_cold))
        emit_signal(a, ep(5))
        stamp()
        if done('P6'): return True

        a.c('=== P7')
        if opt.p7_self:
            VG, VF = V_A + 100, V_A + 101
            a.e(f's_lshl_b32 s{S_T0}, s{S_G}, 4'); a.e(f's_lshl_b32 s{S_T1}, s{S_RB}, 2'); a.e(f's_add_u32 s{S_T0}, s{S_T0}, s{S_T1}')
            a.e(f's_add_u32 s{S_T0}, s{S_T0}, s{S_W}'); a.e(f's_mul_i32 s{S_T0}, s{S_T0}, 57344')
            a.e(f'v_lshlrev_b32 v{VG}, 4, v{V_LANE}'); a.e(f'v_add_u32 v{VG}, s{S_T0}, v{VG}')
            for p_ in range(8):
                a.e(f's_and_b32 s{S_P7+p_}, s{S_RB}, {3 if opt.rot else 0}'); a.e(f's_lshl_b32 s{S_P7+p_}, s{S_P7+p_}, 1')
                a.e(f's_xor_b32 s{S_P7+p_}, s{S_P7+p_}, {p_}'); a.e(f's_mul_i32 s{S_P7+p_}, s{S_P7+p_}, 7168')
            a.e(f's_lshl_b32 s{S_T2}, s{S_G}, 9'); a.e(f's_add_u32 s{S_T2}, s{S_T2}, {hex(LF_OFF)}')
            a.e(f's_and_b32 s{S_T3}, s{S_RB}, 1'); a.e(f's_lshl_b32 s{S_T3}, s{S_T3}, 1'); a.e(f's_add_u32 s{S_T3}, s{S_T3}, s{S_RH}')
            a.e(f's_lshl_b32 s{S_T3}, s{S_T3}, 7'); a.e(f's_add_u32 s{S_T3}, s{S_T3}, s{S_T2}')
            a.e(f's_lshr_b32 s{S_T4}, s{S_RB}, 1'); a.e(f's_lshl_b32 s{S_T4}, s{S_T4}, 6'); a.e(f's_add_u32 s{S_T3}, s{S_T3}, s{S_T4}')
            a.e(f'v_and_b32 v{VF}, 15, v{V_LANE}'); a.e(f'v_lshlrev_b32 v{VF}, 2, v{VF}'); a.e(f'v_add_u32 v{VF}, s{S_T3}, v{VF}')
            a.e(f's_lshl_b32 s{S_T3}, s{S_R}, 2'); a.e(f's_add_u32 s{S_T3}, s{S_T3}, s{S_T2}')
            a.e(f'v_and_b32 v{T1}, 3, v{V_LANE}'); a.e(f'v_lshlrev_b32 v{T1}, 7, v{T1}'); a.e(f'v_add_u32 v{T1}, s{S_T3}, v{T1}')
            a.e(f'v_cmp_lt_u32 vcc, 15, v{V_LANE}'); a.e('s_nop 1'); a.e(f'v_cndmask_b32 v{VF}, v{VF}, v{T1}, vcc')
            emit_poll(a, VF, ep(5), opt=opt)
            stamp()
            def pieces7(c):
                state = {'last': None}
                def mk(k):
                    def f():
                        if k == 0: a.e(f's_add_u32 m0, s{S_W4K}, {hex(AREG + (c % 4) * 16384)}')
                        p_, i_ = divmod(4 * c + k, 7)
                        const = G_OFF + (i_ - k) * 1024
                        if state['last'] != (p_, const):
                            a.e(f's_add_u32 s{S_T0}, s{S_P7+p_}, {hex(const & 0xffffffff)}'); state['last'] = (p_, const)
                        a.vmem(f'buffer_load_dwordx4 v{VG}, {WS}, s{S_T0} offen offset:{k*1024} sc1 lds', ('A', c))
                    return f
                return [mk(k) for k in range(4)]
            emit_gemm32(a, bar, 'P7', slabs['P7'], ACC, WR, a_pieces=pieces7)
        else:
            stamp()
            small_gemm('P7')
        stamp()
        for i in range(0, 16, 2): a.e(pk('add', V_RES + i, vp(V_RES + i), vp(ACC + i)))
        emit_pack32(a, TMP, V_RES)
        return False

    stopped = run_layer()
    if not stopped:
        fin = a.newlabel('FIN'); TMP = V_A
        a.e(f's_cmp_eq_u32 s{S_L}, 1')
        a.e(f's_cbranch_scc1 {fin}')
        a.e(f's_mov_b32 s{S_T0}, {hex(A2_OFF)}')
        emit_mode_stores(a, [f'buffer_store_dwordx4 v[{TMP}:{TMP+3}], v{V_TST}, {WS}, s{S_T0} offen',
                             f'buffer_store_dwordx4 v[{TMP+4}:{TMP+7}], v{V_TST}, {WS}, s{S_T0} offen offset:512'], cold=True)
        a.e(f's_mov_b32 s{S_T1}, {hex(ST_OFF)}')
        emit_stats_partial32(a, V_RES, TMP + 8, f's{S_T1}')
        a.e(f's_add_u32 s{S_EP}, s{S_EP}, 6')
        emit_signal(a, f's{S_EP}')
        if opt.timing:
            dump([tmreg(i) for i in range(tm[0])])
        a.e(f's_mov_b32 s{S_L}, 1')
        a.e(f's_mov_b32 s{S_LOFF}, {hex(KVP_L)}')
        a.e(f's_mov_b32 s{S_COLD}, s{S_MODE}')
        for i in range(3): a.e(f's_mov_b32 s{S_PA+i}, s{S_WS+i}')
        a.e(f's_mov_b32 s{S_PA+3}, 0x20000')
        a.e(f'v_mov_b32 v{V_P1}, v{V_AB}')
        for c in range(4):
            a.e(f's_xor_b32 s{S_RK+c}, s{S_ROTK}, {c}')
            a.e(f's_lshl_b32 s{S_RK+c}, s{S_RK+c}, 12')
            a.e(f's_add_u32 s{S_RK+c}, s{S_RK+c}, {hex(A2_OFF)}')
        a.e(f's_mov_b32 s{S_ASTR}, 1024')
        a.e(f's_branch {LOOP}')
        a.label(fin)
        emit_pack(a, TMP, V_RES, 16)
        OS = f's[{S_OUT}:{S_OUT+3}]'
        for j in range(4):
            a.e(f'buffer_store_dwordx2 v[{TMP+2*j}:{TMP+2*j+1}], v{V_XRM}, {OS}, 0 offen offset:{16*j}')
    a.label('L_END_COMPUTE')
    nn = a.newlabel('NON')
    a.e(f's_or_b32 s{S_T0}, s2, s{S_W}')
    a.e(f's_cmp_eq_u32 s{S_T0}, 0')
    a.e(f's_cbranch_scc0 {nn}')
    a.e(f's_add_u32 s{S_T0}, s{S_V}, 1')
    a.e(f'v_mov_b32 v{V_T0}, s{S_T0}')
    a.e(f'v_mov_b32 v{V_T1}, {hex(NONCE_OFF)}')
    a.e('s_mov_b64 exec, 1')
    a.e(f'buffer_store_dword v{V_T0}, v{V_T1}, {WS}, 0 offen')
    a.e('s_mov_b64 exec, -1')
    a.label(nn)
    stamp()
    if opt.timing: dump([tmreg(i) for i in range(tm[0])] + ([85] if False else []))
    if opt.fine: dump([freg(i) for i in range(fs[0])])
    if opt.wall:
        a.e('s_waitcnt vmcnt(0)')
        a.e('s_memrealtime s[82:83]'); a.e('s_memtime s[80:81]'); a.e('s_waitcnt lgkmcnt(0)')
        dump([84, 82, 85, 80])
    a.e('s_waitcnt vmcnt(0)')
    a.e('s_endpgm')
    return evq


def hstamp(a, opt, slot):
    if not (opt.dbgout >= 0 and opt.fine): return
    sk = a.newlabel('HS')
    a.e('s_memtime s[98:99]'); a.e('s_waitcnt lgkmcnt(0)')
    a.e(f's_cmp_eq_u32 s2, {opt.dbgwg}'); a.e(f's_cbranch_scc0 {sk}')
    a.e('s_sub_u32 s98, s98, s96')
    a.e('v_mov_b32 v254, s98'); a.e(f'v_mov_b32 v253, {4*slot}')
    a.e('global_store_dword v253, v254, s[86:87]')
    a.label(sk)
    a.vm.append('hs')

def gen_loader(a, opt, events):
    VN, VKV, VQ, VW3, VKVn, VQn = 8, 12, 16, 20, 28, 32
    VT0, VT1, VT2, VT3 = 1, 2, 3, 4
    a.c('--- loader setup')
    if opt.prio_l: a.e(f's_setprio {opt.prio_l}')
    def srd(s, p, size):
        a.e(f's_mov_b32 s{s}, s{p}'); a.e(f's_mov_b32 s{s+1}, s{p+1}')
        a.e(f's_mov_b32 s{s+2}, {hex(size)}'); a.e(f's_mov_b32 s{s+3}, 0x20000')
    srd(S_WQKV, S_PTR + 2, 512 * 1536 * 2)
    srd(S_WO, S_PTR + 4, 512 * 512 * 2)
    srd(S_W1, S_PTR + 8, 512 * 512 * 2)
    srd(S_W2, S_PTR + 10, 512 * 512 * 2)
    srd(S_W3, S_PTR + 12, 512 * 1792 * 2)
    srd(S_W4, S_PTR + 14, 1792 * 512 * 2)
    CBS, CBK, CB6, CB7 = 64, 68, 72, 76
    a.e(f's_lshl_b32 s{S_T1}, s{S_RB2}, 1')
    a.e(f's_add_u32 s{S_T1}, s{S_T1}, s{S_CB2}')
    a.e(f's_and_b32 s{S_T1}, s{S_T1}, {3 if opt.rot else 0}')
    for c in range(4):
        a.e(f's_xor_b32 s{CBK+c}, s{S_T1}, {c}')
        a.e(f's_mul_i32 s{CBK+c}, s{CBK+c}, {128*3072}')
    def late_tables():
        rm = 3 if opt.rot else 0
        for c in range(4):
            a.e(f's_and_b32 s{CBS+c}, s{S_RB}, {rm}')
            a.e(f's_xor_b32 s{CBS+c}, s{CBS+c}, {c}')
            a.e(f's_lshl_b32 s{CBS+c}, s{CBS+c}, 17')
            a.e(f's_lshl_b32 s{CB6+c}, s{S_RB2}, 1')
            a.e(f's_and_b32 s{CB6+c}, s{CB6+c}, {rm}')
            a.e(f's_xor_b32 s{CB6+c}, s{CB6+c}, {c}')
            a.e(f's_mul_i32 s{CB6+c}, s{CB6+c}, {128*3584}')
        for p_ in range(8):
            a.e(f's_and_b32 s{CB7+p_}, s{S_RB}, {rm}')
            a.e(f's_lshl_b32 s{CB7+p_}, s{CB7+p_}, 1')
            a.e(f's_xor_b32 s{CB7+p_}, s{CB7+p_}, {p_}')
            a.e(f's_mul_i32 s{CB7+p_}, s{CB7+p_}, {224*1024}')

    def cs_issue():
        a.c('cs pieces')
        c1 = a.newlabel('CS'); c2 = a.newlabel('CS'); c3 = a.newlabel('CS')
        a.e(f's_min_u32 s{92}, s2, 239')
        a.e(f's_lshr_b32 s{93}, s{92}, 2')
        a.e(f's_and_b32 s{94}, s{92}, 3')
        a.e(f's_cmp_lt_u32 s{93}, 24')
        a.e(f's_cbranch_scc0 {c1}')
        for i in range(3): a.e(f's_mov_b32 s{S_CSRD+i}, s{S_WQKV+i}')
        a.e(f's_mov_b32 s{S_T0}, 3072')
        a.e(f's_lshl_b32 s{S_T1}, s{93}, 7')
        a.e(f's_branch {c3}')
        a.label(c1)
        a.e(f's_cmp_lt_u32 s{93}, 32')
        a.e(f's_cbranch_scc0 {c2}')
        for i in range(3): a.e(f's_mov_b32 s{S_CSRD+i}, s{S_W1+i}')
        a.e(f's_mov_b32 s{S_T0}, 1024')
        a.e(f's_sub_u32 s{S_T1}, s{93}, 24')
        a.e(f's_lshl_b32 s{S_T1}, s{S_T1}, 7')
        a.e(f's_branch {c3}')
        a.label(c2)
        for i in range(3): a.e(f's_mov_b32 s{S_CSRD+i}, s{S_W3+i}')
        a.e(f's_mov_b32 s{S_T0}, 3584')
        a.e(f's_sub_u32 s{S_T1}, s{93}, 32')
        a.e(f's_lshl_b32 s{S_T1}, s{S_T1}, 7')
        a.label(c3)
        a.e(f's_mov_b32 s{S_CSRD+3}, 0x20000')
        a.e(f'v_lshrrev_b32 v{VT1}, 3, v{V_LANE}')
        a.e(f'v_mul_lo_u32 v{VT1}, v{VT1}, s{S_T0}')
        a.e(f'v_and_b32 v{VT2}, 7, v{V_LANE}')
        a.e(f'v_lshl_add_u32 v{VT1}, v{VT2}, 4, v{VT1}')
        a.e(f'v_add_u32 v{VT1}, s{S_T1}, v{VT1}')
        a.e(f's_lshl_b32 s{S_T1}, s{94}, 7')
        a.e(f's_mul_i32 s{S_T1}, s{S_T1}, s{S_T0}')
        a.e(f's_lshl_b32 s{S_T0}, s{S_T0}, 3')
        a.e(f's_mov_b32 m0, {hex(CSL)}')
        for p in range(16):
            a.e('s_nop 0')
            a.vmem(f'buffer_load_dwordx4 v{VT1}, s[{S_CSRD}:{S_CSRD+3}], s{S_T1} offen lds', 'cs')
            if p < 15:
                a.e('s_add_u32 m0, m0, 1024')
                a.e(f's_add_u32 s{S_T1}, s{S_T1}, s{S_T0}')
    dg = [0]
    def dstamp():
        if opt.startdiag:
            a.e(f's_memtime s[{84+2*dg[0]}:{85+2*dg[0]}]') if False else None
            a.e('s_memtime s[98:99]'); a.e('s_waitcnt lgkmcnt(0)')
            a.e('s_sub_u32 s98, s98, s100')
            a.e(f'v_mov_b32 v{100+dg[0]}, s98'); dg[0] += 1
    dstamp()
    cs_issue()
    a.e(f'v_lshrrev_b32 v{VT0}, 3, v{V_LANE}')
    a.e(f'v_bfe_u32 v{VT1}, v{VT0}, 1, 2')
    a.e(f'v_lshlrev_b32 v{VT1}, 1, v{VT1}')
    a.e(f'v_and_b32 v{VT2}, 7, v{V_LANE}')
    a.e(f'v_xor_b32 v{VT2}, v{VT2}, v{VT1}')
    a.e(f'v_and_b32 v{VT1}, 3, v{VT2}')
    a.e(f'v_lshlrev_b32 v{VT3}, 4, v{VT1}')
    a.e(f'v_lshrrev_b32 v{VT1}, 2, v{VT2}')
    a.e(f'v_lshl_add_u32 v{VT3}, v{VT1}, 10, v{VT3}')
    a.e(f's_lshl_b32 s{S_T0}, s{S_CB2}, 6')
    a.e(f's_add_u32 s{S_T1}, s{S_T0}, 1024')
    a.e(f'v_add_u32 v{VT3}, s{S_T1}, v{VT3}')
    a.e(f'v_lshrrev_b32 v{VT1}, 2, v{VT0}')
    a.e(f'v_lshlrev_b32 v{VT1}, 3, v{VT1}')
    a.e(f'v_and_b32 v{VT2}, 3, v{VT0}')
    a.e(f'v_add_u32 v{VT1}, v{VT1}, v{VT2}')
    a.e(f'v_mul_u32_u24 v{VT1}, 3072, v{VT1}')
    a.e(f'v_add_u32 v{VT1}, v{VT1}, v{VT3}')
    for p in range(4):
        off = (16 * (p & 1) + 4 * (p >> 1)) * 3072 - p * 1024
        a.e(f'v_add_u32 v{VKVn+p}, {hex(off & 0xffffffff)}, v{VT1}')
    a.e(f'v_mul_u32_u24 v{VKV}, 3072, v{VT0}')
    a.e(f'v_add_u32 v{VKV}, v{VKV}, v{VT3}')
    for j in range(1, 4): a.e(f'v_add_u32 v{VKV+j}, {hex(j*(8*3072-1024))}, v{VKV}')

    layers = sorted(set(e[0] for e in events))
    slabs = {L: build_slabs(L) for L in layers}
    stream = []
    needed = set((e[0], e[2], e[3]) for e in events if e[1] == 'B')
    for L in layers:
        for p in PHASES:
            for ci, ch in enumerate(slabs[L][p]):
                if (L, p, ci) in needed: stream += ch
    released = set()
    log = []; cur = ['start']
    opt._log = log
    st = {'issued': 0}
    win = [opt.window0]
    def overlaps_unreleased(s, idx):
        for k in range(idx):
            o = stream[k]
            if (o.layer, o.phase, o.chunk) in released: continue
            if o.addr < s.addr + s.size and s.addr < o.addr + o.size: return True
        return False
    def emit_slab(s):
        kind = s.kind; tag = (s.layer, s.phase, s.chunk)
        if kind in opt.dbg_skip.split(','): return
        if kind in ('WO', 'W1', 'W2', 'W4'):
            srd_ = {'WO': S_WO, 'W1': S_W1, 'W2': S_W2, 'W4': S_W4}[kind]; vb = VN; rs = 1024
        elif kind == 'KV': srd_, vb, rs = S_WQKV, (VKVn if s.layer == 0 else VKV), 3072
        elif kind == 'Q': srd_, vb, rs = S_WQKV, (VQn if s.layer == 0 else VQ), 3072
        else: srd_, vb, rs = S_W3, VW3, 3584
        R4 = f's[{srd_}:{srd_+3}]'
        def grp(addr, srow, ps, v0):
            a.e(f's_mov_b32 m0, {hex(addr)}')
            if kind == 'W4':
                p_, rr_ = divmod(srow, 224); tb_ = CB7 + p_
            else:
                c_, rr_ = divmod(srow, 128); tb_ = {'KV': CBK, 'Q': CBK, 'W3': CB6}.get(kind, CBS) + c_
            a.e(f's_add_u32 s{S_T0}, s{tb_}, {hex(rr_*rs)}')
            for k, p in enumerate(ps):
                a.vmem(f'buffer_load_dwordx4 v{vb+p}, {R4}, s{S_T0} offen offset:{k*1024} {"nt " if opt.w_nt else ""}lds', tag)
        if kind == 'W3':
            grp(s.addr, s.srow, [0, 1, 2, 3], 0); grp(s.addr + 4096, s.srow, [4, 5, 6], 0)
        elif kind == 'W4' and s.srow2 != s.srow + 16:
            grp(s.addr, s.srow, [0, 1], 0); grp(s.addr + 2048, s.srow2, [0, 1], 0)
        else:
            grp(s.addr, s.srow, [0, 1, 2, 3], 0)
        if len(a.vm) > win[0]:
            a.e(f's_waitcnt vmcnt({win[0]})')
            a.vm = a.vm[len(a.vm) - win[0]:]
    plan = {}
    opt._plan = plan
    free = [56, 56]
    def need_slots(s): return (4, 3) if s.kind == 'W3' else (2, 2)
    def park_policy(key):
        if not opt.park: return
        name = key.split('.', 1)[1] if key[0] in '01' else None
        if name is None: return
        L = int(key[0])
        if name in opt.park_w3:
            cand = [s for s in stream[st['issued']:] if s.layer == L and s.phase == 'P6' and s.chunk >= 1]; cap = opt.park_w3[name]
        elif name in opt.park_caps:
            cand = [s for s in stream[st['issued']:] if s.layer == L and s.phase == 'P7' and s.chunk >= 6]; cap = opt.park_caps[name]
        else:
            return
        for s in cand:
            if getattr(s, 'parked', False): continue
            n0, n1 = need_slots(s)
            if cap <= 0 or free[0] < n0 or free[1] < n1: break
            s.parked = True; free[0] -= n0; free[1] -= n1; cap -= 1
            plan.setdefault(key, []).append(('park', s))
    def issue(cap, must=None):
        n = 0; nu = 0
        while st['issued'] < len(stream):
            s = stream[st['issued']]
            forced = must is not None and any((o.layer, o.phase, o.chunk) == must for o in stream[st['issued']:])
            pk_ = getattr(s, 'parked', False)
            if not forced and not pk_ and n + s.npieces > cap: break
            if not forced and pk_ and (nu >= opt.unpark_max or must is not None): break
            if overlaps_unreleased(s, st['issued']):
                assert not forced, ('deadlock', must, s.layer, s.phase, s.chunk)
                break
            if pk_:
                plan.setdefault(cur[0], []).append(('unpark', s)); nu += 1
                n0, n1 = need_slots(s); free[0] += n0; free[1] += n1
                st['issued'] += 1
                log.append((cur[0], s.layer, s.phase + '*', s.chunk, forced))
                continue
            emit_slab(s); st['issued'] += 1; n += s.npieces
            log.append((cur[0], s.layer, s.phase, s.chunk, forced))
    if WARM0[0]:
        a.e('s_barrier')
        events = events[1:]
    hstamp(a, opt, 8)
    issue(32)
    hstamp(a, opt, 9)
    dstamp()
    def nonce_setup():
        a.e('s_waitcnt lgkmcnt(0)')
        a.e(f's_mul_i32 s{S_B}, s{S_V}, 0x9e3779b1')
        a.e(f's_add_u32 s{S_B}, s{S_B}, 0x7f4a7c15')
        a.e(f's_and_b32 s{S_B}, s{S_B}, 0xffffff00')
    def late_setup():
        if not opt.cs_late: nonce_setup()
        a.e(f's_lshl_b32 s{S_T0}, s{S_G}, 7')
        a.e(f's_lshl_b32 s{S_T1}, s{S_R}, 2')
        a.e(f's_add_u32 s{S_T0}, s{S_T0}, s{S_T1}')
        a.e(f's_add_u32 s{S_T0}, s{S_T0}, {hex(XID_OFF)}')
        a.e(f'v_mov_b32 v{VT1}, s{S_T0}')
        a.e(f's_add_u32 s{S_T1}, s{S_B}, s{S_XCC}')
        a.e(f'v_mov_b32 v{VT0}, s{S_T1}')
        a.e('s_mov_b64 exec, 1')
        a.vmem(f'buffer_store_dword v{VT0}, v{VT1}, {WS}, 0 offen sc1', 'xid')
        a.e('s_mov_b64 exec, -1')
        late_tables()
        a.c('W lane offsets')
        a.e(f'v_lshrrev_b32 v{VT0}, 3, v{V_LANE}')
        a.e(f'v_bfe_u32 v{VT1}, v{VT0}, 1, 1')
        a.e(f'v_lshlrev_b32 v{VT1}, 2, v{VT1}')
        a.e(f'v_and_b32 v{VT2}, 7, v{V_LANE}')
        a.e(f'v_xor_b32 v{VT2}, v{VT2}, v{VT1}')
        a.e(f'v_lshlrev_b32 v{VN}, 10, v{VT0}')
        a.e(f'v_lshl_add_u32 v{VN}, v{VT2}, 4, v{VN}')
        a.e(f's_lshl_b32 s{S_T0}, s{S_CB}, 7')
        a.e(f'v_add_u32 v{VN}, s{S_T0}, v{VN}')
        for j in range(1, 4): a.e(f'v_add_u32 v{VN+j}, {hex(j*(8192-1024))}, v{VN}')
        a.e(f'v_lshrrev_b32 v{VT0}, 2, v{V_LANE}')
        a.e(f'v_bfe_u32 v{VT1}, v{VT0}, 2, 1')
        a.e(f'v_lshlrev_b32 v{VT1}, 1, v{VT1}')
        a.e(f'v_and_b32 v{VT2}, 3, v{V_LANE}')
        a.e(f'v_xor_b32 v{VT2}, v{VT2}, v{VT1}')
        a.e(f'v_lshlrev_b32 v{VT3}, 4, v{VT2}')
        a.e(f's_lshl_b32 s{S_T0}, s{S_CB2}, 6')
        a.e(f'v_add_u32 v{VT3}, s{S_T0}, v{VT3}')
        a.e(f'v_mul_u32_u24 v{VQ}, 3072, v{VT0}')
        a.e(f'v_add_u32 v{VQ}, v{VQ}, v{VT3}')
        for j in range(1, 4): a.e(f'v_add_u32 v{VQ+j}, {hex(j*(16*3072-1024))}, v{VQ}')
        a.e(f'v_lshrrev_b32 v{VT1}, 2, v{VT0}')
        a.e(f'v_lshlrev_b32 v{VT1}, 3, v{VT1}')
        a.e(f'v_and_b32 v{VT2}, 3, v{VT0}')
        a.e(f'v_add_u32 v{VT1}, v{VT1}, v{VT2}')
        a.e(f'v_mul_u32_u24 v{VT1}, 3072, v{VT1}')
        a.e(f'v_add_u32 v{VT1}, v{VT1}, v{VT3}')
        for p in range(4):
            off = (4 * (p & 1) + 32 * (p >> 1)) * 3072 - p * 1024
            a.e(f'v_add_u32 v{VQn+p}, {hex(off & 0xffffffff)}, v{VT1}')
        a.e(f's_mul_i32 s{S_T0}, s{S_CB2}, 224')
        M14 = (1 << 20) // 14 + 1
        a.e(f's_mov_b32 s{S_T1}, {hex(M14)}')
        for p in range(7):
            a.e(f'v_add_u32 v{VT0}, {64*p}, v{V_LANE}')
            a.e(f'v_mul_lo_u32 v{VT1}, v{VT0}, s{S_T1}')
            a.e(f'v_lshrrev_b32 v{VT1}, 20, v{VT1}')
            a.e(f'v_mul_u32_u24 v{VT2}, 14, v{VT1}')
            a.e(f'v_sub_u32 v{VT2}, v{VT0}, v{VT2}')
            a.e(f'v_mul_u32_u24 v{VW3+p}, 3584, v{VT1}')
            a.e(f'v_lshl_add_u32 v{VW3+p}, v{VT2}, 4, v{VW3+p}')
            a.e(f'v_add_u32 v{VW3+p}, s{S_T0}, v{VW3+p}')
            if p % 4: a.e(f'v_subrev_u32 v{VW3+p}, {(p%4)*1024}, v{VW3+p}')
        for u in range(448): assert (u * M14) >> 20 == u // 14

    def cs_part1():
        a.wait_vm('cs')
        a.e(f'v_bfe_u32 v{VT0}, v{V_LANE}, 2, 2')
        a.e(f'v_lshrrev_b32 v{VT1}, 4, v{V_LANE}')
        a.e(f'v_lshl_add_u32 v{VT0}, v{VT1}, 2, v{VT0}')
        a.e(f'v_lshlrev_b32 v{VT0}, 7, v{VT0}')
        a.e(f'v_and_b32 v{VT2}, 3, v{V_LANE}')
        a.e(f'v_lshl_add_u32 v{VT0}, v{VT2}, 3, v{VT0}')
        a.e(f'v_add_u32 v{VT0}, {hex(CSL)}, v{VT0}')
        for i in range(4): a.e(f'v_mov_b32 v{40+i}, 0x3f803f80')
        for j in range(4):
            for t in range(4):
                a.e(f'ds_read_b64_tr_b16 v[{64+4*t}:{65+4*t}], v{VT0} offset:{j*4096+t*32}')
                a.e(f'ds_read_b64_tr_b16 v[{66+4*t}:{67+4*t}], v{VT0} offset:{j*4096+t*32+2048}')
            a.e('s_waitcnt lgkmcnt(0)')
            for t in range(4):
                c = '0' if j == 0 else f'v[{44+4*t}:{47+4*t}]'
                a.e(f'v_mfma_f32_16x16x32_bf16 v[{44+4*t}:{47+4*t}], v[{64+4*t}:{67+4*t}], v[40:43], {c}')
        a.e(f's_mul_i32 s{S_T0}, s{94}, 15360')
        a.e(f's_lshl_b32 s{S_T1}, s{93}, 8')
        a.e(f's_add_u32 s{S_T0}, s{S_T0}, s{S_T1}')
        a.e(f's_add_u32 s{S_T0}, s{S_T0}, {hex(CSP_OFF)}')
        a.e(f'v_lshlrev_b32 v{VT1}, 4, v{VT1}')
        a.e('s_nop 7')
        set_exec(a, 0x00010001)
        for t in range(4):
            a.vmem(f'buffer_store_dwordx4 v[{44+4*t}:{47+4*t}], v{VT1}, {WS}, s{S_T0} offen offset:{64*t} sc1', 'csst')
        a.e('s_mov_b64 exec, -1')
        if opt.kv_atomic:
            zl = a.newlabel('ZK')
            a.e(f's_lshr_b32 s{S_T0}, s2, 3')
            a.e(f's_mul_i32 s{S_T0}, s{S_T0}, {KVREC}')
            a.e(f's_add_u32 s{S_T0}, s{S_T0}, {hex(KVA_OFF)}')
            a.e(f's_and_b32 s{S_T1}, s2, 0x87')
            a.e(f's_cmp_eq_u32 s{S_T1}, 0')
            a.e(f's_cselect_b32 s{S_T1}, 0, 0x80000000')
            for i in range(4): a.e(f'v_mov_b32 v{60+i}, 0')
            a.e(f'v_lshlrev_b32 v{VT0}, 4, v{V_LANE}')
            a.e(f'v_or_b32 v{VT0}, s{S_T1}, v{VT0}')
            for l_ in range(2):
                a.vmem(f'buffer_store_dwordx4 v[60:63], v{VT0}, {WS}, s{S_T0} offen sc1', 'csst')
                a.vmem(f'buffer_store_dwordx4 v[60:63], v{VT0}, {WS}, s{S_T0} offen offset:1024 sc1', 'csst')
                a.e('s_mov_b64 exec, 0xff')
                a.vmem(f'buffer_store_dwordx4 v[60:63], v{VT0}, {WS}, s{S_T0} offen offset:2048 sc1', 'csst')
                a.e('s_mov_b64 exec, -1')
                if l_ == 0: a.e(f's_add_u32 s{S_T0}, s{S_T0}, {16*KVREC}')
    def cs_part2():
        a.e(f's_lshl_b32 s{S_T0}, s2, 7')
        a.e(f's_add_u32 s{S_T0}, s{S_T0}, {hex(CSF_OFF)}')
        a.e(f'v_mov_b32 v{VT1}, s{S_T0}')
        a.e(f's_add_u32 s{S_T1}, s{S_B}, 8')
        a.e(f'v_mov_b32 v{VT0}, s{S_T1}')
        a.wait_vm('csst')
        a.e('s_mov_b64 exec, 1')
        a.vmem(f'buffer_store_dword v{VT0}, v{VT1}, {WS}, 0 offen sc1', 'csf')
        a.e('s_mov_b64 exec, -1')
    def cs_fill():
        L_ = a.newlabel('CPOLL'); D_ = a.newlabel('CPOLLD')
        a.e(f'v_min_u32 v{VT0}, 27, v{V_LANE}')
        a.e(f'v_lshrrev_b32 v{VT2}, 2, v{VT0}')
        a.e(f's_lshr_b32 s{S_T0}, s{S_CB2}, 1')
        a.e(f'v_lshlrev_b32 v{VT1}, 3, v{VT2}')
        a.e(f'v_add_u32 v{VT1}, s{S_T0}, v{VT1}')
        a.e(f's_add_u32 s{S_T0}, s{S_CB}, 24')
        a.e(f'v_mov_b32 v{VT3}, s{S_T0}')
        a.e(f'v_cmp_eq_u32 vcc, 3, v{VT2}')
        a.e('s_nop 1')
        a.e(f'v_cndmask_b32 v{VT1}, v{VT1}, v{VT3}, vcc')
        a.e(f's_mul_i32 s{S_T0}, s{S_CB2}, 112')
        a.e(f's_lshr_b32 s{S_T0}, s{S_T0}, 6')
        a.e(f's_add_u32 s{S_T0}, s{S_T0}, {32 - 4}')
        a.e(f'v_add_u32 v{VT3}, s{S_T0}, v{VT2}')
        a.e(f'v_min_u32 v{VT3}, 59, v{VT3}')
        a.e(f'v_cmp_lt_u32 vcc, 3, v{VT2}')
        a.e('s_nop 1')
        a.e(f'v_cndmask_b32 v{VT1}, v{VT1}, v{VT3}, vcc')
        a.e(f'v_and_b32 v{VT0}, 3, v{VT0}')
        a.e(f'v_lshl_add_u32 v{VT1}, v{VT1}, 2, v{VT0}')
        if opt.kv_atomic:
            a.e(f's_lshl_b32 s{S_T0}, s{S_CB2}, 3')
            a.e(f'v_mov_b32 v{VT3}, s{S_T0}')
            a.e(f'v_cmp_lt_u32 vcc, 27, v{V_LANE}')
            a.e('s_nop 1')
            a.e(f'v_cndmask_b32 v{VT1}, v{VT1}, v{VT3}, vcc')
        a.e(f'v_lshlrev_b32 v{VT1}, 7, v{VT1}')
        a.e(f's_mov_b32 s{S_T0}, {hex(CSF_OFF)}')
        a.e(f's_add_u32 s{S_T1}, s{S_B}, 8')
        a.e(f's_mov_b32 s{95}, {opt.spin}')
        a.label(L_)
        a.e(f'buffer_load_dword v40, v{VT1}, {WS}, s{S_T0} offen sc1')
        a.e('s_waitcnt vmcnt(0)')
        a.e(f'v_subrev_u32 v40, s{S_T1}, v40')
        a.e('v_cmp_gt_u32 vcc, 0x80, v40')
        a.e(f's_sub_u32 s{95}, s{95}, 1')
        a.e(f's_cbranch_scc1 {D_}')
        a.e('s_cmp_eq_u64 vcc, -1')
        a.e(f's_cbranch_scc0 {L_}')
        a.label(D_)
        a.vm = []
        def colof(dst, gofs):
            a.e(f'v_add_u32 v{VT0}, {gofs}, v{V_LANE}')
            a.e(f'v_lshlrev_b32 v{VT2}, 2, v{VT0}')
            a.e(f's_lshl_b32 s{S_T0}, s{S_CB2}, 5')
            a.e(f's_mul_i32 s{S_T1}, s{S_CB2}, 112')
            a.e(f's_add_u32 s{S_T1}, s{S_T1}, {2048 - 160}')
            a.e(f'v_add_u32 v{dst}, s{S_T1}, v{VT2}')
            for lim, addc, useb in [(40, 1536 - 96, 'cb'), (24, -64, 'hp'), (16, 1024 - 32, 'hp'), (8, 512, 'hp')]:
                if useb == 'cb':
                    a.e(f's_lshl_b32 s{S_T1}, s{S_CB}, 6')
                    a.e(f's_add_u32 s{S_T1}, s{S_T1}, {addc}')
                else:
                    a.e(f's_add_u32 s{S_T1}, s{S_T0}, {hex(addc & 0xffffffff)}')
                a.e(f'v_add_u32 v{VT3}, s{S_T1}, v{VT2}')
                a.e(f'v_cmp_gt_u32 vcc, {lim}, v{VT0}')
                a.e('s_nop 1')
                a.e(f'v_cndmask_b32 v{dst}, v{dst}, v{VT3}, vcc')
            a.e(f'v_lshlrev_b32 v{dst}, 2, v{dst}')
        colof(36, 0); colof(37, 64)
        a.e(f's_mov_b32 s{S_T0}, {hex(CSP_OFF)}')
        for kq in range(4):
            a.e(f'buffer_load_dwordx4 v[{40+4*kq}:{43+4*kq}], v36, {WS}, s{S_T0} offen sc1')
            a.e('s_mov_b64 exec, 0xf')
            a.e(f'buffer_load_dwordx4 v[{56+4*kq}:{59+4*kq}], v37, {WS}, s{S_T0} offen sc1')
            a.e('s_mov_b64 exec, -1')
            if kq < 3: a.e(f's_add_u32 s{S_T0}, s{S_T0}, 15360')
        a.e(f'v_lshlrev_b32 v{VT0}, 4, v{V_LANE}')
        a.e(f'v_add_u32 v{VT0}, {hex(CSC)}, v{VT0}')
        a.e('s_waitcnt vmcnt(0)')
        for b in (40, 56):
            for i in (0, 2):
                a.e(pk('add', b + i, vp(b + i), vp(b + 4 + i)))
                a.e(pk('add', b + 8 + i, vp(b + 8 + i), vp(b + 12 + i)))
                a.e(pk('add', b + i, vp(b + i), vp(b + 8 + i)))
        a.e(f'ds_write_b128 v{VT0}, v[40:43]')
        a.e('s_mov_b64 exec, 0xf')
        a.e(f'ds_write_b128 v{VT0}, v[56:59] offset:1024')
        a.e('s_mov_b64 exec, -1')
        a.e('s_waitcnt lgkmcnt(0)')

    if not opt.cs_late: cs_part1()
    chunks_of = {}
    for s in stream: chunks_of.setdefault((s.layer, s.phase), set()).add(s.chunk)
    nb = 0
    for ev in events:
        L, kind, p, ci = ev
        if kind == 'B':
            cur[0] = f'pre {L}.{p}.B{ci}'
            issue(0, must=(L, p, ci))
            cur[0] = f'{L}.{p}.B{ci}'
            if nb < 5: dstamp()
            a.wait_vm((L, p, ci))
            if nb == 0: hstamp(a, opt, 10)
            if nb == 1: hstamp(a, opt, 11)
            if nb < 5: dstamp()
            a.e('s_barrier')
            nb += 1
            if ci >= 2: released.add((L, p, ci - 2))
            if ci == 0:
                for (l2, p2), cs_ in chunks_of.items():
                    if p2 in NOE and (l2, PHASES.index(p2)) < (L, PHASES.index(p)):
                        for c in cs_: released.add((l2, p2, c))
            if opt.cs_late and nb <= 4:
                if nb == 1:
                    issue(16)
                    cs_part1()
                    nonce_setup()
                elif nb == 2:
                    issue(16)
                    cs_part2()
                    late_setup()
                elif nb == 3:
                    pass
                elif nb == 4:
                    cs_fill()
                    win[0] = opt.window
            elif nb == 1:
                issue(32)
                late_setup()
                cs_part2()
            elif nb == 3:
                cs_fill()
                win[0] = opt.window
            elif nb in (2, 4):
                pass
            else:
                issue(opt.caps.get(f'{p}.B{ci}', opt.caps.get(f'{p}.B*', 0)))
                park_policy(cur[0])
        elif kind == 'E':
            cur[0] = f'{L}.{p}.E'
            a.e('s_barrier')
            for c in chunks_of[(L, p)]: released.add((L, p, c))
            issue(opt.caps.get(f'{p}.E', 0))
            park_policy(cur[0])
        else:
            cur[0] = f'{L}.{p}'
            a.e('s_barrier')
            issue(opt.caps.get(p, 0))
            park_policy(cur[0])
    if opt.startdiag:
        a.e(f's_lshl_b32 s{S_T0}, s2, 8')
        a.e(f's_add_u32 s{S_T0}, s{S_T0}, {hex(TM_OFF + 128)}')
        for i in range(dg[0]):
            a.e(f'v_mov_b32 v99, {4*i}')
            a.e(f'buffer_store_dword v{100+i}, v99, {WS}, s{S_T0} offen')
    a.e('s_waitcnt vmcnt(0)')
    a.e('s_endpgm')


def gen_toucher(a, opt, events):
    a.c('--- A loader / toucher')
    if opt.prio_a: a.e(f's_setprio {opt.prio_a}')
    mats = {'WO': (S_PTR + 4, 512 * 512 * 2), 'W1': (S_PTR + 8, 512 * 512 * 2),
            'W2': (S_PTR + 10, 512 * 512 * 2), 'W3': (S_PTR + 12, 512 * 1792 * 2), 'W4': (S_PTR + 14, 1792 * 512 * 2)}
    srds = {}
    for i, (k, (p, size)) in enumerate(mats.items()):
        s = 40 + 4 * i
        a.e(f's_mov_b32 s{s}, s{p}'); a.e(f's_mov_b32 s{s+1}, s{p+1}')
        a.e(f's_mov_b32 s{s+2}, {hex(size)}'); a.e(f's_mov_b32 s{s+3}, 0x20000')
        srds[k] = s
    T0s, T1s, T2s, T3s, T4s, T5s = 33, 34, 35, 36, 37, 38
    THR, SPIN = 60, 61
    RA, P7T = 64, 68
    U0, U1, U2, U3, U4 = 76, 77, 78, 79, 80
    VAS, VAG, VFS, VFB, VFH, VAH = 3, 4, 5, 6, 7, 8
    X0, X1, X2, X3 = 24, 25, 26, 27
    X0W = 31
    e = a.e
    VXK = 40
    e(f'v_lshrrev_b32 v2, 4, v{V_LANE}')
    e(f'v_and_b32 v3, 15, v{V_LANE}')
    for k in range(4):
        e(f'v_add_u32 v{VXK+k}, {4*k}, v2'); e(f'v_xor_b32 v{VXK+k}, v{VXK+k}, v3'); e(f'v_lshlrev_b32 v{VXK+k}, 4, v{VXK+k}')
        e(f'v_lshl_add_u32 v{VXK+k}, v2, 10, v{VXK+k}')
    e(f's_lshl_b32 s33, s{S_G}, 8'); e(f's_lshl_b32 s34, s{S_RB2}, 7'); e('s_add_u32 s33, s33, s34'); e('s_lshl_b32 s82, s33, 10')
    e(f's_lshl_b32 s83, s{S_RB2}, 1'); e(f's_add_u32 s83, s83, s{S_CB2}'); e(f's_and_b32 s83, s83, {3 if opt.rot else 0}')
    e(f's_lshr_b32 s81, s{S_CB2}, 2'); e(f's_lshl_b32 s81, s81, {13 if opt.rot else 31}')
    if not opt.rot: e('s_mov_b32 s81, 0')
    def x_chunk(c, half=None):
        e(f's_xor_b32 s33, s83, {c}'); e('s_lshl_b32 s33, s33, 8'); e('s_add_u32 s33, s33, s82')
        if half == 1:
            e('s_add_u32 s34, s81, 16384'); e('s_and_b32 s34, s34, 0x7fff')
        else:
            e('s_mov_b32 s34, s81')
        n = 8 if half is None else 4
        e(f's_mov_b32 s36, {n}')
        lp = a.newlabel('XC'); a.label(lp)
        for k in range(4):
            e(f's_add_u32 m0, s34, {hex(AREG + (c & 1) * 32768)}')
            e('s_lshl_b32 s35, s34, 2'); e('s_add_u32 s35, s35, s33')
            e(f'buffer_load_dwordx4 v{VXK + k}, s[{S_X}:{S_X+3}], s35 offen lds')
            e('s_add_u32 s34, s34, 1024')
        e('s_and_b32 s34, s34, 0x7fff')
        e('s_sub_u32 s36, s36, 1'); e('s_cmp_lg_u32 s36, 0'); e(f's_cbranch_scc1 {lp}')
        a.vm += [('X', c)] * (4 * n)
        assert len(a.vm) <= 63
    def x_tile():
        e(f'v_lshrrev_b32 v2, 3, v{V_LANE}'); e('v_lshlrev_b32 v2, 10, v2')
        e(f'v_and_b32 v30, 7, v{V_LANE}'); e('v_lshl_add_u32 v2, v30, 4, v2')
        e(f's_lshl_b32 s33, s{S_G}, 8'); e(f's_lshl_b32 s34, s{S_RB}, 6'); e('s_add_u32 s33, s33, s34'); e('s_lshl_b32 s33, s33, 10')
        e(f's_lshl_b32 s34, s{S_CB}, 7'); e('s_add_u32 s33, s33, s34')
        for p_ in range(8):
            e(f's_mov_b32 m0, {hex(AREG + p_ * 1024)}')
            if p_: e('s_add_u32 s33, s33, 8192')
            else: e('s_nop 0')
            a.vmem(f'buffer_load_dwordx4 v2, s[{S_X}:{S_X+3}], s33 offen lds', 'x')
    if WARM0[0]:
        e('s_barrier')
        events = events[1:]
    hstamp(a, opt, 12)
    x_chunk(0); x_chunk(1, 0)
    hstamp(a, opt, 13)
    e(f'v_lshlrev_b32 v1, 7, v{V_LANE}')
    e(f'v_lshlrev_b32 v{X0}, 4, v{V_LANE}')
    e(f'v_lshlrev_b32 v{X0W}, 4, v{V_LANE}')
    e(f's_lshl_b32 s{T0s}, s{S_G}, 4'); e(f's_lshl_b32 s{T1s}, s{S_RB}, 2'); e(f's_add_u32 s{T0s}, s{T0s}, s{T1s}')
    e(f's_lshl_b32 s{T1s}, s{T0s}, 14'); e(f'v_add_u32 v{VAS}, s{T1s}, v{X0}')
    e(f's_mul_i32 s{T1s}, s{T0s}, 57344'); e(f'v_add_u32 v{VAG}, s{T1s}, v{X0}')
    rmask = 3 if opt.rot else 0
    for c in range(4):
        e(f's_and_b32 s{RA+c}, s{S_RB}, {rmask}'); e(f's_xor_b32 s{RA+c}, s{RA+c}, {c}'); e(f's_lshl_b32 s{RA+c}, s{RA+c}, 12')
    for p_ in range(8):
        e(f's_and_b32 s{P7T+p_}, s{S_RB}, {rmask}'); e(f's_lshl_b32 s{P7T+p_}, s{P7T+p_}, 1')
        e(f's_xor_b32 s{P7T+p_}, s{P7T+p_}, {p_}'); e(f's_mul_i32 s{P7T+p_}, s{P7T+p_}, 7168')
    e(f'v_and_b32 v{X1}, 15, v{V_LANE}')
    e(f'v_and_b32 v{X2}, 0x30, v{V_LANE}')
    e(f's_mul_i32 s{T3s}, s{S_G}, 18')
    e(f's_lshl_b32 s{T4s}, s{S_G}, 8')
    for c in range(4):
        e(f's_lshr_b32 s{T5s}, s{RA+c}, 12')
        e(f's_lshr_b32 s{U3}, s{T5s}, 1'); e(f's_add_u32 s{U3}, s{U3}, 1'); e(f's_sub_u32 s{U4}, 0, s{U3}')
        e(f's_bitcmp1_b32 s{T5s}, 0'); e(f's_cselect_b32 s{U3}, s{U3}, s{U4}')
        e(f's_lshl_b32 s{T2s}, s{S_RB}, 6'); e(f's_add_u32 s{T2s}, s{T2s}, s{U3}'); e(f's_add_u32 s{T2s}, s{T2s}, 16')
        for w in range(4):
            r = VAH + 4 * c + w
            e(f's_add_u32 s{T5s}, s{T2s}, {16 * w}')
            e(f'v_add_u32 v{r}, s{T5s}, v{X1}')
            e(f'v_lshrrev_b32 v{X3}, 4, v{r}'); e(f'v_add_u32 v{X3}, s{T3s}, v{X3}'); e(f'v_lshlrev_b32 v{X3}, 14, v{X3}')
            e(f'v_and_b32 v28, 15, v{r}'); e(f'v_add_u32 v28, v{X2}, v28'); e(f'v_lshl_add_u32 v{X3}, v28, 4, v{X3}')
            e(f'v_add_u32 v28, s{T4s}, v{r}'); e('v_subrev_u32 v28, 16, v28')
            e('v_cmp_gt_u32 vcc, 0x800, v28')
            e(f'v_mov_b32 v{r}, 0x80000000'); e('s_nop 0')
            e(f'v_cndmask_b32 v{r}, v{r}, v{X3}, vcc')
    e(f's_lshl_b32 s{T2s}, s{S_G}, 9'); e(f's_add_u32 s{T2s}, s{T2s}, {hex(LF_OFF)}')
    e(f'v_bfe_u32 v{X1}, v{V_LANE}, 3, 2'); e(f'v_lshlrev_b32 v{X1}, 7, v{X1}')
    e(f'v_and_b32 v{X2}, 7, v{V_LANE}'); e(f'v_lshl_add_u32 v{X1}, v{X2}, 2, v{X1}')
    e(f's_lshl_b32 s{T3s}, s{S_RB}, 5'); e(f's_add_u32 s{T3s}, s{T3s}, s{T2s}')
    e(f'v_add_u32 v{VFS}, s{T3s}, v{X1}')
    e(f's_and_b32 s{T3s}, s{S_RB}, 1'); e(f's_lshl_b32 s{T3s}, s{T3s}, 8'); e(f's_add_u32 s{T3s}, s{T3s}, s{T2s}')
    e(f's_lshr_b32 s{T4s}, s{S_RB}, 1'); e(f's_lshl_b32 s{T4s}, s{T4s}, 6'); e(f's_add_u32 s{T3s}, s{T3s}, s{T4s}')
    e(f'v_bfe_u32 v{X2}, v{V_LANE}, 4, 1'); e(f'v_lshlrev_b32 v{X2}, 7, v{X2}')
    e(f'v_and_b32 v{X3}, 15, v{V_LANE}'); e(f'v_lshl_add_u32 v{X2}, v{X3}, 2, v{X2}')
    e(f'v_add_u32 v{VFB}, s{T3s}, v{X2}')
    e(f's_lshl_b32 s{T3s}, s{S_R}, 2'); e(f's_add_u32 s{T3s}, s{T3s}, s{T2s}')
    e(f'v_and_b32 v{X2}, 3, v{V_LANE}'); e(f'v_lshlrev_b32 v{X2}, 7, v{X2}'); e(f'v_add_u32 v{X2}, s{T3s}, v{X2}')
    e(f'v_cmp_lt_u32 vcc, 31, v{V_LANE}'); e('s_nop 1')
    e(f'v_cndmask_b32 v{VFB}, v{VFB}, v{X2}, vcc')
    def build_fh(L):
        la = a.newlabel('FH'); lb = a.newlabel('FH')
        e(f's_lshl_b32 s{T2s}, s{S_G}, 9'); e(f's_add_u32 s{T2s}, s{T2s}, {hex(LF_OFF)}')
        e(f's_lshl_b32 s{T3s}, s{S_RB}, 5'); e(f's_add_u32 s{T3s}, s{T3s}, s{T2s}')
        e(f's_sub_u32 s{U1}, s{T3s}, 32'); e(f's_add_u32 s{U1}, s{U1}, 256'); e(f's_mov_b32 s{U3}, 128')
        e(f's_add_u32 s{U2}, s{T3s}, 32'); e(f's_mov_b32 s{U4}, 128')
        e(f's_lshl_b32 s{T4s}, s{S_G}, 8'); e(f's_add_u32 s{T4s}, s{T4s}, {hex(HF_OFF + L * 2048)}')
        e(f's_cmp_eq_u32 s{S_RB}, 0'); e(f's_cbranch_scc0 {la}')
        e(f's_mov_b32 s{U1}, s{T3s}')
        e(f's_cmp_eq_u32 s{S_G}, 0'); e(f's_cbranch_scc1 {la}')
        e(f's_mov_b32 s{U1}, s{T4s}'); e(f's_mov_b32 s{U3}, 0')
        a.label(la)
        e(f's_cmp_eq_u32 s{S_RB}, 3'); e(f's_cbranch_scc0 {lb}')
        e(f's_mov_b32 s{U2}, s{T3s}')
        e(f's_cmp_eq_u32 s{S_G}, 7'); e(f's_cbranch_scc1 {lb}')
        e(f's_add_u32 s{U2}, s{T4s}, 128'); e(f's_mov_b32 s{U4}, 0')
        a.label(lb)
        e(f'v_bfe_u32 v{X1}, v{V_LANE}, 3, 1'); e(f'v_and_b32 v{X2}, 7, v{V_LANE}'); e(f'v_lshlrev_b32 v{X2}, 2, v{X2}')
        for base_s, mul_s, sel in ((U1, U3, 2), (U2, U4, 3)):
            e(f'v_mul_u32_u24 v{X3}, s{mul_s}, v{X1}'); e(f'v_add_u32 v{X3}, v{X3}, v{X2}'); e(f'v_add_u32 v{X3}, s{base_s}, v{X3}')
            e(f'v_lshrrev_b32 v28, 4, v{V_LANE}'); e(f'v_cmp_eq_u32 vcc, {sel}, v28'); e('s_nop 1')
            e(f'v_cndmask_b32 v{VFH}, v{VFH if sel == 3 else VFS}, v{X3}, vcc')
    e('s_waitcnt lgkmcnt(0)')
    e(f's_mul_i32 s{S_B}, s{S_V}, 0x9e3779b1'); e(f's_add_u32 s{S_B}, s{S_B}, 0x7f4a7c15'); e(f's_and_b32 s{S_B}, s{S_B}, 0xffffff00')

    def poll(v, epoch):
        L_ = a.newlabel('AP'); D_ = a.newlabel('APD')
        e(f's_add_u32 s{THR}, s{S_B}, {8*epoch}'); e(f's_mov_b32 s{SPIN}, {opt.spin}')
        a.label(L_)
        e(f'buffer_load_dword v30, v{v}, {WS}, 0 offen sc1'); e('s_waitcnt vmcnt(0)')
        e(f'v_subrev_u32 v30, s{THR}, v30'); e('v_cmp_gt_u32 vcc, 0x80, v30')
        e(f's_sub_u32 s{SPIN}, s{SPIN}, 1'); e(f's_cbranch_scc1 {D_}')
        e('s_cmp_eq_u64 vcc, -1')
        if opt.poll_sleep:
            e(f's_cbranch_scc1 {D_}'); e(f's_sleep {opt.poll_sleep}'); e(f's_branch {L_}')
        else:
            e(f's_cbranch_scc0 {L_}')
        a.label(D_); a.vm = []
    def a_chunk(phase, c):
        for w in range(4):
            e(f's_mov_b32 m0, {hex(AREG + (c % 4) * 16384 + w * 4096)}')
            if phase == 'P7':
                last = None
                for k in range(4):
                    p_, i_ = divmod(4 * c + k, 7)
                    const = G_OFF + w * 57344 + (i_ - k) * 1024
                    if last != (p_, const):
                        e(f's_add_u32 s{T0s}, s{P7T+p_}, {hex(const & 0xffffffff)}'); last = (p_, const)
                    a.vmem(f'buffer_load_dwordx4 v{VAG}, {WS}, s{T0s} offen offset:{k*1024} sc1 lds', ('A', phase, c))
            else:
                if phase == 'P5':
                    va = VAH + 4 * c + w; e(f's_add_u32 s{T0s}, s{RA+c}, {hex(A0_OFF)}' if A0_OFF else f's_mov_b32 s{T0s}, s{RA+c}')
                elif phase == 'P3':
                    va = VAS; e(f's_add_u32 s{T0s}, s{RA+c}, s{U0}'); e(f's_add_u32 s{T0s}, s{T0s}, {hex(A0_OFF + w * 16384)}')
                else:
                    va = VAS; e(f's_add_u32 s{T0s}, s{RA+c}, {hex(A1_OFF + w * 16384)}')
                for k in range(4):
                    a.vmem(f'buffer_load_dwordx4 v{va}, {WS}, s{T0s} offen offset:{k*1024} sc1 lds', ('A', phase, c))
    e(f's_lshl_b32 s{U0}, s{S_G}, 1'); e(f's_add_u32 s{U0}, s{U0}, 1'); e(f's_lshl_b32 s{U0}, s{U0}, 14')

    dummy = [0]
    def wide(srd_s, soff_s):
        d = 64 + 4 * (dummy[0] % 40); dummy[0] += 1
        fl = 'sc1' if srd_s == WS else opt.touch_flags
        a.vmem(f'buffer_load_dwordx4 v[{d}:{d+3}], v{X0W}, {srd_s}, s{soff_s} offen {fl}', 'T')
    def mall_touch():
        for k in ['WO', 'W2', 'W4']:
            size = mats[k][1]; per = size // 256
            s = srds[k]
            e(f's_mul_i32 s{T0s}, s2, {per}')
            for i in range(per // 1024):
                if i: e(f's_add_u32 s{T0s}, s{T0s}, 1024')
                wide(f's[{s}:{s+3}]', T0s)
    def g_touch():
        e(f's_mul_i32 s{T0s}, s{S_G}, {16 * 57344}'); e(f's_mul_i32 s{T1s}, s{S_R}, 28672')
        e(f's_add_u32 s{T0s}, s{T0s}, s{T1s}'); e(f's_add_u32 s{T0s}, s{T0s}, {hex(G_OFF)}')
        for i in range(28):
            if i: e(f's_add_u32 s{T0s}, s{T0s}, 1024')
            wide(WS, T0s)
    def key(sx):
        k, p, c = sx.split(',')
        return (0, k, p, None if c == '-' else int(c))
    EPO = {'P3': 1, 'P4': 2, 'P5': 3, 'P7': 5}
    if opt.p7_self: del EPO['P7']
    nxt = 0
    for ev in events:
        L, kind, p, ci = ev
        if kind == 'B' and p in EPO:
            nch = NCH[p]
            if ci == 0:
                if p == 'P5': build_fh(L)
                poll({'P3': VFB, 'P4': VFS, 'P5': VFH, 'P7': VFB}[p], 1 + 6 * L + EPO[p])
                a_chunk(p, 0); a_chunk(p, 1); nxt = 2
            a.wait_vm(('A', p, ci))
            e('s_barrier')
            while nxt < nch and (nxt <= ci + 2 or nxt <= 3) and nxt <= ci + 2 + (1 if ci == 0 and False else 0):
                a_chunk(p, nxt); nxt += 1
        elif L == 0 and kind == 'B' and p == 'P1KV':
            a.wait_vm(('X', ci))
            if ci == 0: hstamp(a, opt, 14)
            if ci == 2: hstamp(a, opt, 15)
            e('s_barrier')
            if ci == 0: x_chunk(1, 1)
            if 1 <= ci <= 2: x_chunk(ci + 1)
            if ci == 3: x_tile()
        else:
            if ev == (0, 'E', 'P1KV', None): a.wait_vm('x')
            e('s_barrier')
        if opt.touch and opt.touch_at and ev == key(opt.touch_at): mall_touch()
        if opt.gtouch_at and ev == key(opt.gtouch_at) and not (opt.gtouch_parker and opt.park): g_touch()
    e('s_waitcnt vmcnt(0)')
    e('s_endpgm')


def gen_parker(a, opt, events, h):
    e = a.e
    a.c(f'--- parker {h}')
    plan = opt._plan
    W3S, W4S, CB6, CB7 = 40, 44, 64, 68
    QS = 48
    e(f's_mov_b32 s{QS}, s{S_PTR+2}'); e(f's_mov_b32 s{QS+1}, s{S_PTR+3}'); e(f's_mov_b32 s{QS+2}, {hex(512*1536*2)}'); e(f's_mov_b32 s{QS+3}, 0x20000')
    for s_, p_, size in ((W3S, S_PTR + 12, 512 * 1792 * 2), (W4S, S_PTR + 14, 1792 * 512 * 2)):
        e(f's_mov_b32 s{s_}, s{p_}'); e(f's_mov_b32 s{s_+1}, s{p_+1}'); e(f's_mov_b32 s{s_+2}, {hex(size)}'); e(f's_mov_b32 s{s_+3}, 0x20000')
    e(f'v_lshlrev_b32 v1, 4, v{V_LANE}')
    if WARM0[0]:
        e(f's_mul_i32 s33, s{S_R}, 49152')
        if h: e('s_add_u32 s33, s33, 24576')
        k_ = 0
        if h == 0:
            e(f's_lshl_b32 s34, s{S_G}, 18'); e(f's_lshl_b32 s35, s{S_R}, 13'); e('s_add_u32 s34, s34, s35')
            for i in range(8):
                a.vmem(f'buffer_load_dwordx4 v[{16+4*k_}:{19+4*k_}], v1, s[{S_X}:{S_X+3}], s34 offen', 'T'); k_ += 1
                e('s_add_u32 s34, s34, 1024')
        for i in range(24):
            a.vmem(f'buffer_load_dwordx4 v[{16+4*k_}:{19+4*k_}], v1, s[{QS}:{QS+3}], s33 offen', 'T'); k_ += 1
            e('s_add_u32 s33, s33, 1024')
    rm = 3 if opt.rot else 0
    for c in range(4):
        e(f's_lshl_b32 s{CB6+c}, s{S_RB2}, 1'); e(f's_and_b32 s{CB6+c}, s{CB6+c}, {rm}'); e(f's_xor_b32 s{CB6+c}, s{CB6+c}, {c}')
        e(f's_mul_i32 s{CB6+c}, s{CB6+c}, {128*3584}')
    for p_ in range(8):
        e(f's_and_b32 s{CB7+p_}, s{S_RB}, {rm}'); e(f's_lshl_b32 s{CB7+p_}, s{CB7+p_}, 1'); e(f's_xor_b32 s{CB7+p_}, s{CB7+p_}, {p_}')
        e(f's_mul_i32 s{CB7+p_}, s{CB7+p_}, {224*1024}')
    VN, VW, VL, X0, X1, X2 = 2, 4, 8, 11, 12, 13
    e(f'v_lshrrev_b32 v{X0}, 3, v{V_LANE}'); e(f'v_bfe_u32 v{X1}, v{X0}, 1, 1'); e(f'v_lshlrev_b32 v{X1}, 2, v{X1}')
    e(f'v_and_b32 v{X2}, 7, v{V_LANE}'); e(f'v_xor_b32 v{X2}, v{X2}, v{X1}')
    e(f'v_lshlrev_b32 v{VN}, 10, v{X0}'); e(f'v_lshl_add_u32 v{VN}, v{X2}, 4, v{VN}')
    e(f's_lshl_b32 s33, s{S_CB}, 7'); e(f'v_add_u32 v{VN}, s33, v{VN}'); e(f'v_add_u32 v{VN+1}, {hex(8192-1024)}, v{VN}')
    ps = [0, 1, 2, 3] if h == 0 else [4, 5, 6]
    M14 = (1 << 20) // 14 + 1
    e(f's_mul_i32 s33, s{S_CB2}, 224'); e(f's_mov_b32 s34, {hex(M14)}')
    for k, p_ in enumerate(ps):
        e(f'v_add_u32 v{X0}, {64*p_}, v{V_LANE}'); e(f'v_mul_lo_u32 v{X1}, v{X0}, s34'); e(f'v_lshrrev_b32 v{X1}, 20, v{X1}')
        e(f'v_mul_u32_u24 v{X2}, 14, v{X1}'); e(f'v_sub_u32 v{X2}, v{X0}, v{X2}')
        e(f'v_mul_u32_u24 v{VW+k}, 3584, v{X1}'); e(f'v_lshl_add_u32 v{VW+k}, v{X2}, 4, v{VW+k}'); e(f'v_add_u32 v{VW+k}, s33, v{VW+k}')
    e(f'v_lshlrev_b32 v{VL}, 4, v{V_LANE}'); e(f'v_add_u32 v{VL+1}, 0x10000, v{VL}'); e(f'v_add_u32 v{VL+2}, 0x20000, v{VL}')
    def wide(base_expr_emit, n):
        base_expr_emit()
        for i in range(n):
            if i: e('s_add_u32 s33, s33, 1024')
            a.vmem(f'buffer_load_dwordx4 v[{240+4*(i%4)}:{243+4*(i%4)}], v{VL}, {WS}, s33 offen sc1', 'T')
    def touch_a0():
        wide(lambda: (e(f's_mul_i32 s33, s{S_G}, {18*16384}'), e(f's_mul_i32 s34, s{S_R}, 9216'), e('s_add_u32 s33, s33, s34'), e(f's_add_u32 s33, s33, {hex(A0_OFF)}') if A0_OFF else None), 9)
    def touch_lin(off, per_group):
        wide(lambda: (e(f's_mul_i32 s33, s{S_G}, {per_group}'), e(f's_mul_i32 s34, s{S_R}, {per_group // 32}'), e('s_add_u32 s33, s33, s34'), e(f's_add_u32 s33, s33, {hex(off)}')), per_group // 32 // 1024)
    if WARM0[0]:
        a.wait_vm_all()
        e('s_barrier')
        events = events[1:]
    def tkey(sx):
        k, p, c = sx.split(',')
        return (0, k, p, None if c == '-' else int(c))
    slots = list(range(56))
    held = {}
    pending = set()
    def do(actions):
        for act, s_ in actions:
            if act == 'park':
                if s_.kind == 'W3':
                    c_, rr_ = divmod(s_.srow, 128)
                    e(f's_add_u32 s33, s{CB6+c_}, {hex(rr_*3584)}')
                    regs = []
                    for k, p_ in enumerate(ps):
                        sl = slots.pop(0); regs.append((sl, p_))
                        a.vmem(f'buffer_load_dwordx4 v[{16+4*sl}:{19+4*sl}], v{VW+k}, s[{W3S}:{W3S+3}], s33 offen', id(s_))
                else:
                    srow = s_.srow if h == 0 else s_.srow2
                    p_, rr_ = divmod(srow, 224)
                    e(f's_add_u32 s33, s{CB7+p_}, {hex(rr_*1024)}')
                    regs = []
                    for k in range(2):
                        sl = slots.pop(0); regs.append((sl, 2 * h + k))
                        a.vmem(f'buffer_load_dwordx4 v[{16+4*sl}:{19+4*sl}], v{VN+k}, s[{W4S}:{W4S+3}], s33 offen offset:{k*1024}', id(s_))
                held[id(s_)] = regs
            else:
                a.wait_vm(id(s_))
                for sl, p_ in held.pop(id(s_)):
                    ad = s_.addr + p_ * 1024
                    e(f'ds_write_b128 v{VL + (ad >> 16)}, v[{16+4*sl}:{19+4*sl}] offset:{ad & 0xffff}')
                    slots.append(sl)
                pending.add((s_.layer, s_.phase, s_.chunk))
    for ev in events:
        L, kind, p, ci = ev
        if kind == 'B':
            do(plan.get(f'pre {L}.{p}.B{ci}', []))
            if (L, p, ci) in pending:
                e('s_waitcnt lgkmcnt(0)'); pending.clear()
            e('s_barrier')
            acts = plan.get(f'{L}.{p}.B{ci}', [])
        elif kind == 'E':
            e('s_barrier'); acts = plan.get(f'{L}.{p}.E', [])
        else:
            e('s_barrier'); acts = plan.get(f'{L}.{p}', [])
        do([x for x in acts if x[0] == 'unpark'])
        do([x for x in acts if x[0] == 'park'])
        if opt.pretouch and h == 1 and ev == tkey(opt.a2touch_at): touch_lin(A2_OFF, 262144)
        if opt.gtouch_parker and opt.gtouch_at and ev == tkey(opt.gtouch_at):
            wide(lambda: (e(f's_mul_i32 s33, s{S_G}, {16*57344}'), e(f's_mul_i32 s34, s{S_R}, 28672'), e('s_add_u32 s33, s33, s34'),
                          e(f's_add_u32 s33, s33, {hex(G_OFF + h * 14336)}')), 14)
        if opt.pretouch and ev == tkey(opt.a01touch_at):
            if h == 0:
                touch_a0(); touch_lin(ST_OFF, 32768)
            else:
                touch_lin(A1_OFF, 262144)
    e('s_waitcnt vmcnt(0) lgkmcnt(0)')
    e('s_endpgm')


def generate(opt):
    ATOMIC[0] = opt.kv_atomic
    if opt.dbgout >= 0: opt.phi_clamp = 0
    WARM0[0] = 1 if (opt.warm0 and opt.park) else 0
    events = build_events(opt.stop)
    a = Asm(); a.opt = opt
    hdr = open(os.path.join(os.path.dirname(os.path.abspath(__file__)), 'header.txt')).read()
    out = [hdr.rstrip('\n')]
    out.append(f'; @launch grid=(256,1,1) block=({64*(8 if opt.park else 6)},1,1) lds={LDS_TOTAL}')
    out += ['.amdgcn_target "amdgcn-amd-amdhsa--gfx950"', '.text', f'.globl {KNAME}', '.p2align 8',
            f'.type {KNAME},@function', f'{KNAME}:']
    a.e('s_cmp_ge_u32 s2, 256')
    a.e('s_cbranch_scc1 L_EXIT')
    if opt.startdiag: a.e('s_memtime s[100:101]')
    if opt.dbgout >= 0 and opt.fine: a.e('s_memtime s[96:97]')
    if opt.wall:
        a.e('s_memrealtime s[18:19]') if False else None
    a.e(f's_load_dwordx16 s[{S_PTR}:{S_PTR+15}], s[0:1], 0')
    a.e(f's_load_dwordx4 s[{S_PTR+16}:{S_PTR+19}], s[0:1], 64')
    a.e(f's_load_dwordx2 s[{S_PTR+20}:{S_PTR+21}], s[0:1], 80')
    a.e('v_lshrrev_b32 v1, 6, v0')
    a.e('s_nop 0')
    if opt.prefetch_code:
        a.e('s_getpc_b64 s[34:35]')
        a.label('L_PC')
        a.e(f's_sub_u32 s34, s34, (L_PC - {KNAME})')
        a.e('s_subb_u32 s35, s35, 0')
        a.e('s_lshr_b32 s36, s2, 3')
        a.e('s_mul_i32 s36, s36, 2560')
        a.e('v_lshlrev_b32 v2, 7, v0')
        a.e('v_add_u32 v2, s36, v2')
        a.e(f's_mov_b32 s36, (L_CODE_END - {KNAME} - 4)')
        a.e('v_min_u32 v2, s36, v2')
        a.e('v_and_b32 v2, -4, v2')
        a.e('v_cmp_gt_u32 vcc, 20, v0')
        a.e('s_and_saveexec_b64 s[36:37], vcc')
        a.e('s_cbranch_execz L_NOPF')
        a.e('global_load_dword v255, v2, s[34:35]')
        a.label('L_NOPF')
        a.e('s_mov_b64 exec, s[36:37]')
    a.e(f'v_readfirstlane_b32 s{S_W}, v1')
    a.e(f'v_and_b32 v{V_LANE}, 63, v0')
    a.e(f's_getreg_b32 s{S_XCC}, hwreg(HW_REG_XCC_ID)')
    a.e(f's_and_b32 s{S_XCC}, s{S_XCC}, 7')
    a.e(f's_and_b32 s{S_G}, s2, 7')
    a.e(f's_lshr_b32 s{S_R}, s2, 3')
    a.e(f's_lshr_b32 s{S_RB}, s{S_R}, 3')
    a.e(f's_and_b32 s{S_CB}, s{S_R}, 7')
    a.e(f's_lshr_b32 s{S_RB2}, s{S_R}, 4')
    a.e(f's_and_b32 s{S_CB2}, s{S_R}, 15')
    a.e('s_waitcnt lgkmcnt(0)')
    if opt.ws_base:
        a.e(f's_add_u32 s{S_PTR+20}, s{S_PTR+20}, {hex(opt.ws_base)}')
        a.e(f's_addc_u32 s{S_PTR+21}, s{S_PTR+21}, 0')
    a.e(f's_add_u32 s34, s{S_PTR+20}, {hex(NONCE_OFF)}')
    a.e(f's_addc_u32 s35, s{S_PTR+21}, 0')
    a.e(f's_load_dword s{S_V}, s[34:35], 0')
    def srd(s, p, size):
        a.e(f's_mov_b32 s{s}, s{p}'); a.e(f's_mov_b32 s{s+1}, s{p+1}')
        a.e(f's_mov_b32 s{s+2}, {hex(size)}'); a.e(f's_mov_b32 s{s+3}, 0x20000')
    if opt.dbgout >= 0:
        a.e(f's_mov_b32 s86, s{S_PTR+18}'); a.e(f's_mov_b32 s87, s{S_PTR+19}')
    srd(S_WS, S_PTR + 20, WS_USED)
    srd(S_X, S_PTR + 0, 2048 * 512 * 2)
    srd(S_OUT, S_PTR + 16, 2048 * 512 * 2)
    a.e(f's_cmp_lt_u32 s{S_W}, 4')
    a.e('s_cbranch_scc1 L_COMPUTE')
    if opt.park:
        for wv in (6, 7):
            a.e(f's_cmp_eq_u32 s{S_W}, {wv}')
            a.e(f's_cbranch_scc0 L_NOTP{wv}')
            a.e('s_getpc_b64 s[34:35]')
            a.label(f'L_PCP{wv}')
            a.e(f's_add_u32 s34, s34, (L_PARKER{wv} - L_PCP{wv})')
            a.e('s_addc_u32 s35, s35, 0')
            a.e('s_setpc_b64 s[34:35]')
            a.label(f'L_NOTP{wv}')
    a.e(f's_cmp_eq_u32 s{S_W}, 5')
    a.e('s_cbranch_scc0 L_GOLOADER')
    a.e('s_getpc_b64 s[34:35]')
    a.label('L_PC3')
    a.e('s_add_u32 s34, s34, (L_TOUCHER - L_PC3)')
    a.e('s_addc_u32 s35, s35, 0')
    a.e('s_setpc_b64 s[34:35]')
    a.label('L_GOLOADER')
    a.e('s_getpc_b64 s[34:35]')
    a.label('L_PC2')
    a.e('s_add_u32 s34, s34, (L_LOADER - L_PC2)')
    a.e('s_addc_u32 s35, s35, 0')
    a.e('s_setpc_b64 s[34:35]')
    a.label('L_EXIT')
    a.e('s_endpgm')
    a.label('L_COMPUTE')
    a.vm = []
    if opt.stop is not None and opt.stop[0] == 0: cev = events
    else: cev = [e for e in build_events(None) if e[0] == 0]
    rest = gen_compute(a, opt, cev)
    assert not rest, rest
    a.label('L_LOADER')
    a.vm = []
    a.fstamp = lambda p: None
    gen_loader(a, opt, events)
    a.label('L_TOUCHER')
    a.vm = []
    gen_toucher(a, opt, events)
    if opt.park:
        for wv in (6, 7):
            a.label(f'L_PARKER{wv}')
            a.vm = []
            gen_parker(a, opt, events, wv - 6)
    a.label('L_CODE_END')
    out.append(a.text())
    out += ['.section .rodata,"a"', '.p2align 6', f'.amdhsa_kernel {KNAME}',
            '  .amdhsa_next_free_vgpr 256', '  .amdhsa_next_free_sgpr 102', '  .amdhsa_accum_offset 256',
            '  .amdhsa_group_segment_fixed_size 0', '  .amdhsa_kernarg_size 88', '  .amdhsa_user_sgpr_count 2',
            '  .amdhsa_user_sgpr_kernarg_segment_ptr 1', '  .amdhsa_system_sgpr_workgroup_id_x 1', '.end_amdhsa_kernel']
    return '\n'.join(out) + '\n'


if __name__ == '__main__':
    import argparse
    ap = argparse.ArgumentParser()
    ap.add_argument('-o', default='interleave_layers__linear_attn_block__mixer_s_mlp__prompt.s')
    ap.add_argument('--stop', default=None)
    ap.add_argument('--timing', action='store_true')
    ap.add_argument('--safe', action='store_true')
    ap.add_argument('--set', action='append', default=[])
    ap.add_argument('--fine', default=None)
    args = ap.parse_args()
    opt = Opt()
    if args.stop:
        l, p = args.stop.split(','); opt.stop = (int(l), p)
    opt.timing = args.timing; opt.force_safe = args.safe; opt.fine = args.fine
    opt.caps = dict(Opt.caps); opt.park_w3 = dict(Opt.park_w3); opt.park_caps = dict(Opt.park_caps)
    for kv in args.set:
        k, v = kv.split('=')
        if k.startswith('pk3:'): opt.park_w3[k[4:]] = int(v)
        elif k.startswith('pk4:'): opt.park_caps[k[4:]] = int(v)
        elif '.' in k or k in ('X1', 'X2'): opt.caps[k] = int(v)
        else:
            try: setattr(opt, k, int(v))
            except ValueError: setattr(opt, k, v.replace(':', ','))
    open(args.o, 'w').write(generate(opt))
    print('written', args.o)
    if os.environ.get('SCHED'):
        import itertools
        for k, g in itertools.groupby(opt._log, key=lambda x: x[0]):
            g = list(g); d = {}
            for x in g: d[(x[1], x[2], x[3])] = d.get((x[1], x[2], x[3]), 0) + 1
            print(k, ' '.join(f'{a_}.{b_}.c{c_}x{n_}' for (a_, b_, c_), n_ in d.items()), 'FORCED' if any(x[4] for x in g) else '')
```

```python
import sys, os, struct

KNAME = 'interleave_layers__linear_attn_block__mixer_s_mlp__prompt_kernel'

class Opt:
    stop = None
    timing = False
    fine = None
    force_safe = False
    window = 40
    window0 = 60
    caps = {'P1KV.E': 64, 'P1Q.B0': 16, 'P1Q.B1': 16, 'P1Q.E': 32,
            'P3.B0': 0, 'P3.B1': 32, 'P3.B2': 16, 'P3.B3': 16,
            'P4.B1': 32, 'P4.B2': 16, 'P4.B3': 16,
            'P5.B1': 35, 'P5.B2': 14, 'P5.B3': 21,
            'P6.B0': 28, 'P6.B1': 16, 'P6.B2': 16, 'P6.B3': 16, 'P6.E': 64,
            'P7.B*': 16, 'P7.E': 64}
    cap0 = 0
    touch = True
    dbg_w_same = 0
    w_nt = 0
    g_cold = 0
    touch_at = 'B,P1Q,0'
    rot = 1
    prio_c = 0
    prio_a = 0
    prio_l = 0
    phi_clamp = 1
    warm0 = 0
    cs_late = 0
    poll_sleep = 0
    dbgout = -1
    dbgwg = 100
    pretouch = 1
    a2touch_at = 'B,P6,3'
    a01touch_at = 'B,P1KV,2'
    gtouch_parker = 1
    park = 1
    park_w3 = {'P1KV.E': 2, 'X1': 2, 'P1Q.E': 8}
    park_caps = {'P6.B1': 0, 'P6.B2': 0, 'P6.B3': 0, 'P6.E': 0}
    unpark_max = 6
    kv_atomic = 1
    wall = 0
    p7_self = 1
    dbg_skip = ''
    ws_base = 0
    late_a = 0
    kvflag_at = 5
    up3 = 1
    startdiag = 0
    gtouch_at = 'B,P5,2'
    dbg_a_same = 0
    touch_flags = ''
    spin = 1 << 17
    prefetch_code = True
    D_kv = 4
    D_p6 = 4

MB = 1 << 20
A0_OFF = 0
A1_OFF = 0x280000
A2_OFF = 0x480000
G_OFF = 0x680000
ST_OFF = 0xD80000
KVP_OFF = 0xDC0000
KVP_L = 0x88000
KVA_OFF = 0xED0000
LSTRIDE = 0x780000
FL_OFF = 0xF00000
LF_OFF = FL_OFF
KVF_OFF = FL_OFF + 4096
HF_OFF = FL_OFF + 8192
XID_OFF = FL_OFF + 29696
NONCE_OFF = FL_OFF + 30720
TM_OFF = FL_OFF + 32768
CSP_OFF = FL_OFF + 32768 + 65536
CSF_OFF = CSP_OFF + 65536
WS_USED = CSF_OFF + 32768
KVREC = 2176

LDS_TOTAL = 163840
AREG = 0
SCR = 49152
CSL = None
WRING = 65536
RING = 93952
PHI = 53248
CSL = WRING + 28672
CSC = WRING + RING
assert CSC + 1088 <= LDS_TOTAL

EPS = 1e-5

def f2u(x):
    return struct.unpack('<I', struct.pack('<f', x))[0]

class Asm:
    def __init__(self):
        self.lines = []; self.nlabel = 0; self.vm = []
        self.fstamp = lambda p: None
    def e(self, s): self.lines.append('  ' + s)
    def c(self, s): self.lines.append('  ; ' + s)
    def label(self, name): self.lines.append(name + ':')
    def newlabel(self, base='L'):
        self.nlabel += 1
        return f'{base}_{self.nlabel}'
    def vmem(self, s, tag=None):
        self.e(s); self.vm.append(tag)
    def count_vm(self, tag):
        if tag not in self.vm: return None
        idx = max(i for i, t in enumerate(self.vm) if t == tag)
        n = len(self.vm) - 1 - idx
        assert n <= 63, n
        self.vm = self.vm[idx + 1:]
        return n
    def wait_vm(self, tag):
        n = self.count_vm(tag)
        if n is not None: self.e(f's_waitcnt vmcnt({n})')
    def wait_vm_all(self):
        self.e('s_waitcnt vmcnt(0)'); self.vm = []
    def text(self): return '\n'.join(self.lines)

def set_exec(a, lo, hi=None):
    a.e(f's_mov_b32 exec_lo, {hex(lo)}')
    a.e(f's_mov_b32 exec_hi, {hex(lo if hi is None else hi)}')

S_V = 3
S_WS = 4; S_X = 8; S_OUT = 12; S_PA = 16
S_G, S_R, S_W, S_RB, S_CB, S_RB2, S_CB2 = 20, 21, 22, 23, 24, 25, 26
S_MODE, S_L, S_LOFF, S_EP, S_B, S_XCC = 27, 28, 29, 30, 31, 32
S_T0, S_T1, S_T2, S_T3, S_T4, S_T5 = 33, 34, 35, 36, 37, 38
S_SPIN, S_THR = 39, 40
S_AOFF, S_AOFF2, S_ASTR = 41, 42, 43
S_C1, S_C2, S_ONE2 = 44, 46, 48
S_LOG2E, S_EPS6 = 50, 51
S_W4K = 52
S_RH, S_CH = 53, 54
S_U0, S_U1, S_U2, S_U3, S_U4 = 55, 56, 57, 58, 59
S_COLD = 62
S_GH = 63
S_RA = 86
S_RK = 90
S_P7 = 94
S_ROTK = 45
S_L2E2, S_E62 = 88, 86
S_PTR = 64
S_WQKV, S_WO, S_W1, S_W2, S_W3, S_W4 = 40, 44, 48, 52, 56, 60
S_CSRD = 88

V_LANE = 0
V_AS, V_AB, V_AG, V_P1 = 1, 2, 3, 4
V_AH = 5
V_STS, V_STB, V_STST, V_XRM, V_TST = 9, 10, 11, 12, 13
V_FSB, V_FBS, V_FSS, V_FH, V_FOWN, V_FKV = 14, 15, 16, 17, 18, 19
V_T128, V_T64, V_T224, V_TN, V_TA = 20, 21, 22, 23, 24
V_T0, V_T1, V_T2 = 25, 26, 27
V_TB = 28
V_RES = 32
V_MEAN, V_RS = 48, 49
V_X = 50
V_PQ = 56
V_ACC = 64
V_A = 128

PHASES = ['P1KV', 'P1Q', 'P3', 'P4', 'P5', 'P6', 'P7']
NCH = {'P1KV': 4, 'P1Q': 2, 'P3': 4, 'P4': 4, 'P5': 4, 'P6': 4, 'P7': 14}

ATOMIC = [1]
WARM0 = [1]
NOE = ('P3', 'P4', 'P5')

class Slab:
    def __init__(self, layer, phase, chunk, kind, size, srow, npieces, srow2=None):
        self.layer, self.phase, self.chunk, self.kind = layer, phase, chunk, kind
        self.size, self.srow, self.npieces, self.srow2 = size, srow, npieces, srow2
        self.addr = None

def w4_tile_seq():
    seq = []
    for c in range(8):
        for i in [0, 1, 2, 3, 4, 5, 7, 8, 9, 10, 11, 12, 6, 13]:
            seq.append(14 * c + i)
    return seq

def build_slabs(layer):
    ph = {}
    def simple(phase, kind, nchunk, per, size, rows, np_):
        ph[phase] = [[Slab(layer, phase, c, kind, size, (c * per + j) * rows, np_) for j in range(per)] for c in range(nchunk)]
    simple('P1KV', 'KV', 4, 4, 4096, 32, 4)
    simple('P1Q', 'Q', 2, 4, 4096, 64, 4)
    simple('P3', 'WO', 4, 4, 4096, 32, 4)
    simple('P4', 'W1', 4, 4, 4096, 32, 4)
    simple('P5', 'W2', 4, 4, 4096, 32, 4)
    simple('P6', 'W3', 4, 4, 7168, 32, 7)
    seq = w4_tile_seq()
    ph['P7'] = [[Slab(layer, 'P7', c, 'W4', 4096, seq[2 * (c * 4 + j)] * 16, 4, srow2=seq[2 * (c * 4 + j) + 1] * 16)
                 for j in range(4)] for c in range(14)]
    pos = PHI
    for p in PHASES:
        for ch in ph[p]:
            for s in ch:
                if pos + s.size > RING: pos = 0
                s.addr = WRING + pos
                pos += s.size
    assert pos == PHI, pos
    return ph

def build_events(stop):
    ev = [(0, 'X', 'W0', None)] if WARM0[0] else []
    for L in range(2):
        for p in PHASES:
            for c in range(NCH[p]): ev.append((L, 'B', p, c))
            if p not in NOE: ev.append((L, 'E', p, None))
            if p == 'P1KV': ev.append((L, 'X', 'X1', None))
            if p == 'P1Q' and not ATOMIC[0]: ev.append((L, 'X', 'X2', None))
            if stop == (L, p): return ev
    return ev

WS = f's[{S_WS}:{S_WS+3}]'

def thr_value(a, dst, epoch, xcc=False):
    if isinstance(epoch, int):
        a.e(f's_add_u32 s{dst}, s{S_B}, {8*epoch}')
    else:
        a.e(f's_lshl_b32 s{dst}, {epoch}, 3')
        a.e(f's_add_u32 s{dst}, s{dst}, s{S_B}')
    if xcc: a.e(f's_add_u32 s{dst}, s{dst}, s{S_XCC}')

def emit_poll(a, vaddr, epoch, soff='0', opt=Opt, x4=False, tbase=None):
    L = a.newlabel('POLL'); D = a.newlabel('POLLD')
    thr_value(a, S_THR, epoch)
    a.e(f's_mov_b32 s{S_SPIN}, {opt.spin}')
    a.label(L)
    if x4:
        T = tbase
        a.e(f'buffer_load_dwordx4 v[{T}:{T+3}], v{vaddr}, {WS}, {soff} offen sc1')
        a.e('s_waitcnt vmcnt(0)')
        for i in range(4): a.e(f'v_subrev_u32 v{T+i}, s{S_THR}, v{T+i}')
        a.e(f'v_max_u32 v{T}, v{T}, v{T+1}')
        a.e(f'v_max_u32 v{T+2}, v{T+2}, v{T+3}')
        a.e(f'v_max_u32 v{V_T0}, v{T}, v{T+2}')
    else:
        a.e(f'buffer_load_dword v{V_T2}, v{vaddr}, {WS}, {soff} offen sc1')
        a.e('s_waitcnt vmcnt(0)')
        a.e(f'v_subrev_u32 v{V_T0}, s{S_THR}, v{V_T2}')
    a.vm = []
    a.e(f'v_cmp_gt_u32 vcc, 0x80, v{V_T0}')
    a.e(f's_sub_u32 s{S_SPIN}, s{S_SPIN}, 1')
    a.e(f's_cbranch_scc1 {D}')
    a.e('s_cmp_eq_u64 vcc, -1')
    if opt.poll_sleep:
        a.e(f's_cbranch_scc1 {D}')
        a.e(f's_sleep {opt.poll_sleep}')
        a.e(f's_branch {L}')
    else:
        a.e(f's_cbranch_scc0 {L}')
    a.label(D)

def emit_mode_stores(a, stores, cold=False):
    F = a.newlabel('STF'); D = a.newlabel('STD')
    if getattr(a, 'opt', None) is not None and a.opt.pretouch and a.opt.park: cold = False
    a.e(f's_cmp_eq_u32 s{S_COLD if cold else S_MODE}, 0')
    a.e(f's_cbranch_scc1 {F}')
    for s in stores: a.e(s + ' sc1')
    a.e(f's_branch {D}')
    a.label(F)
    for s in stores: a.e(s)
    a.label(D)
    for s in stores: a.vm.append('st')

def emit_signal(a, epoch):
    thr_value(a, S_THR, epoch, xcc=True)
    a.e(f'v_mov_b32 v{V_T0}, s{S_THR}')
    a.wait_vm_all()
    a.e('s_mov_b64 exec, 1')
    emit_mode_stores(a, [f'buffer_store_dword v{V_T0}, v{V_FOWN}, {WS}, 0 offen'])
    a.e('s_mov_b64 exec, -1')

def emit_xreduce(a, regs, tmp, over16=True):
    for r, t in zip(regs, tmp): a.e(f'v_mov_b32 v{t}, v{r}')
    a.e('s_nop 1')
    for r, t in zip(regs, tmp): a.e(f'v_permlane32_swap_b32 v{r}, v{t}')
    a.e('s_nop 0')
    for r, t in zip(regs, tmp): a.e(f'v_add_f32 v{r}, v{r}, v{t}')
    if over16:
        for r, t in zip(regs, tmp): a.e(f'v_mov_b32 v{t}, v{r}')
        a.e('s_nop 1')
        for r, t in zip(regs, tmp): a.e(f'v_permlane16_swap_b32 v{r}, v{t}')
        a.e('s_nop 0')
        for r, t in zip(regs, tmp): a.e(f'v_add_f32 v{r}, v{r}, v{t}')

def pk(op, d, x, y, z=None, mods=''):
    s = f'v_pk_{op}_f32 v[{d}:{d+1}], {x}, {y}'
    if z is not None: s += f', {z}'
    return s + mods
def vp(r): return f'v[{r}:{r+1}]'

def emit_stats_partial32(a, vals, t0, st_soff, cold=False):
    s, q = t0, t0 + 2
    a.e(pk('add', s, vp(vals), vp(vals + 2)))
    a.e(pk('mul', q, vp(vals), vp(vals)))
    a.e(pk('fma', q, vp(vals + 2), vp(vals + 2), vp(q)))
    for i in range(4, 16, 2):
        a.e(pk('add', s, vp(s), vp(vals + i)))
        a.e(pk('fma', q, vp(vals + i), vp(vals + i), vp(q)))
    a.e(f'v_add_f32 v{t0}, v{s}, v{s+1}')
    a.e(f'v_add_f32 v{t0+1}, v{q}, v{q+1}')
    emit_xreduce(a, [t0, t0 + 1], [t0 + 4, t0 + 5], over16=False)
    set_exec(a, 0xffffffff, 0)
    emit_mode_stores(a, [f'buffer_store_dwordx2 v[{t0}:{t0+1}], v{V_STST}, {WS}, {st_soff} offen'], cold=cold)
    a.e('s_mov_b64 exec, -1')

def emit_stats_from_sums(a, s, ss, out_a, out_b, tmp, double=False, keep=None):
    mean, var = s, ss
    a.e(f'v_mul_f32 v{mean}, {hex(f2u(1.0/512))}, v{s}')
    a.e(f'v_mul_f32 v{var}, {hex(f2u(1.0/512))}, v{ss}')
    a.e(f'v_fma_f32 v{var}, -v{mean}, v{mean}, v{var}')
    a.e(f'v_max_f32 v{var}, 0, v{var}')
    a.e(f'v_add_f32 v{tmp}, {hex(f2u(EPS))}, v{var}')
    a.e(f'v_rsq_f32 v{tmp}, v{tmp}')
    a.e('s_nop 0')
    if double:
        a.e(f'v_mul_f32 v{tmp+1}, v{tmp}, v{tmp}')
        a.e(f'v_mul_f32 v{tmp+1}, v{tmp+1}, v{var}')
        a.e(f'v_add_f32 v{tmp+1}, {hex(f2u(EPS))}, v{tmp+1}')
        a.e(f'v_rsq_f32 v{tmp+1}, v{tmp+1}')
        a.e('s_nop 0')
        a.e(f'v_mul_f32 v{out_a}, v{tmp}, v{tmp+1}')
    else:
        a.e(f'v_mov_b32 v{out_a}, v{tmp}')
    if keep:
        a.e(f'v_mov_b32 v{keep[0]}, v{mean}')
        a.e(f'v_mov_b32 v{keep[1]}, v{tmp}')
    a.e(f'v_mul_f32 v{out_b}, v{out_a}, v{mean}')
    a.e(f'v_sub_f32 v{out_b}, 0, v{out_b}')

def emit_sum_partials(a, raw, n):
    k = n
    step = 2
    regs = [raw + i for i in range(0, n, 2)]
    while len(regs) > 1:
        nxt = []
        for i in range(0, len(regs), 2):
            a.e(pk('add', regs[i], vp(regs[i]), vp(regs[i + 1])))
            nxt.append(regs[i])
        regs = nxt

def emit_lnfold(a, acc, cs, av, bv, n):
    for i in range(0, n, 2):
        a.e(pk('mul', acc + i, vp(acc + i), vp(av), mods=' op_sel_hi:[1,0]'))
    for i in range(0, n, 2):
        a.e(pk('fma', acc + i, vp(cs + i), vp(bv), vp(acc + i), mods=' op_sel_hi:[1,0,1]'))

def emit_gelu(a, x, n, tmp, c1reg):
    blk = 16
    a.e(f'v_mov_b32 v{c1reg}, s{S_C1}')
    for b0 in range(0, n, blk):
        m = min(blk, n - b0); t = tmp
        for i in range(0, m, 2): a.e(pk('mul', t + i, vp(x + b0 + i), vp(x + b0 + i)))
        for i in range(0, m, 2): a.e(pk('fma', t + i, vp(t + i), f's[{S_C2}:{S_C2+1}]', vp(c1reg), mods=' op_sel_hi:[1,1,0]'))
        for i in range(0, m, 2): a.e(pk('mul', t + i, vp(t + i), vp(x + b0 + i)))
        for i in range(m): a.e(f'v_exp_f32 v{t+i}, v{t+i}')
        for i in range(0, m, 2): a.e(pk('add', t + i, vp(t + i), f's[{S_ONE2}:{S_ONE2+1}]'))
        for i in range(m): a.e(f'v_rcp_f32 v{t+i}, v{t+i}')
        for i in range(0, m, 2): a.e(pk('mul', x + b0 + i, vp(x + b0 + i), vp(t + i)))

def emit_phi(a, regs, tmp):
    if a.opt.phi_clamp and all(regs[i + 1] == regs[i] + 1 and regs[i] % 2 == 0 for i in range(0, len(regs), 2)) and tmp % 2 == 0:
        for i in range(0, len(regs), 2): a.e(pk('mul', tmp + i, vp(regs[i]), f's[{S_L2E2}:{S_L2E2+1}]'))
        for i, r in enumerate(regs): a.e(f'v_exp_f32_e64 v{tmp+i}, v{tmp+i} clamp')
        for i, r in enumerate(regs): a.e(f'v_max_f32 v{r}, 0, v{r}')
        for i in range(0, len(regs), 2): a.e(pk('add', tmp + i, vp(tmp + i), f's[{S_E62}:{S_E62+1}]'))
        for i in range(0, len(regs), 2): a.e(pk('add', regs[i], vp(regs[i]), vp(tmp + i)))
        return
    for i, r in enumerate(regs): a.e(f'v_min_f32 v{tmp+i}, 0, v{r}')
    for i, r in enumerate(regs): a.e(f'v_mul_f32 v{tmp+i}, s{S_LOG2E}, v{tmp+i}')
    for i, r in enumerate(regs): a.e(f'v_exp_f32 v{tmp+i}, v{tmp+i}')
    for i, r in enumerate(regs): a.e(f'v_max_f32 v{r}, 0, v{r}')
    for i, r in enumerate(regs): a.e(f'v_add_f32 v{r}, v{r}, v{tmp+i}')
    for i, r in enumerate(regs): a.e(f'v_add_f32 v{r}, s{S_EPS6}, v{r}')

def emit_pack(a, dst, src, n):
    for i in range(0, n, 2): a.e(f'v_cvt_pk_bf16_f32 v{dst+i//2}, v{src+i}, v{src+i+1}')

def emit_pack32(a, dst, src):
    for k, j in enumerate([0, 2, 1, 3]):
        a.e(f'v_cvt_pk_bf16_f32 v{dst+2*k}, v{src+4*j}, v{src+4*j+1}')
        a.e(f'v_cvt_pk_bf16_f32 v{dst+2*k+1}, v{src+4*j+2}, v{src+4*j+3}')

class TrBase:
    def __init__(self, a, lane_reg, nt):
        self.a, self.lane_reg, self.nt, self.cur = a, lane_reg, nt, None
    def off(self, addr, span):
        if self.cur is None or addr < self.cur or addr + span - self.cur > 65535:
            self.cur = addr
            for t in range(self.nt):
                if t == 0:
                    self.a.e(f'v_add_u32 v{V_TB}, {hex(addr)}, v{self.lane_reg}')
                else:
                    self.a.e(f'v_xor_b32 v{V_TB+t}, {t << 5}, v{self.lane_reg}')
                    self.a.e(f'v_add_u32 v{V_TB+t}, {hex(addr)}, v{V_TB+t}')
        return addr - self.cur

def emit_gemm16(a, bar, phase, chunks, CT, kind, acc_of, a_of, a_wait, a_issue, wr, S, normal=False, extra=None, a_lds=None):
    R, LA = 2, 4
    ks = []
    for ci, ch in enumerate(chunks):
        first = True
        for s in ch:
            ks.append((ci, s.addr, first)); first = False
            if kind == '64': ks.append((ci, s.addr + 2048, False))
    KS = len(ks)
    if kind == '128':
        trb = TrBase(a, V_T128, 4); second = 2048; span = 4096; tb = lambda t: V_TB + t; timm = lambda t: 0
    elif kind == '64':
        trb = TrBase(a, V_T64, 2); second = 1024; span = 2048; tb = lambda t: V_TB + t; timm = lambda t: 0
    else:
        trb = TrBase(a, V_T224, 1); second = 3584; span = 7168; tb = lambda t: V_TB; timm = lambda t: 32 * t
    total = KS * CT
    def slot(n): return wr + 4 * (n % S)
    def pre_issue(n):
        j, t = divmod(n, CT)
        ci, addr, first = ks[j]
        if t == 0 and first:
            a.fstamp(phase); bar(('B', phase, ci)); a.fstamp(phase)
        imm = trb.off(addr, span) if t == 0 else addr - trb.cur
        return imm + timm(t), t
    def rd(n, half, info):
        imm, t = info
        a.e(f'ds_read_b64_tr_b16 v[{slot(n)+2*half}:{slot(n)+2*half+1}], v{tb(t)} offset:{imm + (second if half else 0)}')
    def mfma(m, r):
        j, t = divmod(m, CT)
        d = acc_of(r, t); c = '0' if j == 0 else f'v[{d}:{d+3}]'
        w = f'v[{slot(m)}:{slot(m)+3}]'; x = f'v[{a_of(r,j)}:{a_of(r,j)+3}]'
        a.e(f'v_mfma_f32_16x16x32_bf16 v[{d}:{d+3}], ' + (f'{x}, {w}' if normal else f'{w}, {x}') + f', {c}')
    lq = []
    def need(tags):
        idx = max((i for i, g in enumerate(lq) if g in tags), default=None)
        if idx is None: return None
        n_ = len(lq) - 1 - idx
        del lq[:idx + 1]
        assert n_ <= 15
        return n_
    def pre2(n):
        info = pre_issue(n)
        j, t = divmod(n, CT)
        if a_lds and t == 0:
            for s_ in a_lds(j):
                a.e(s_); lq.append(('A', j))
        return info
    def rd2(n, half, info):
        rd(n, half, info); lq.append(('W', n))
    for n in range(min(LA, total)):
        info = pre2(n); rd2(n, 0, info); rd2(n, 1, info)
    for n in range(total):
        j, t = divmod(n, CT)
        lg = need({('W', n), ('A', j)})
        vmn = a_wait(j) if t == 0 else None
        if t == 0 and j in (0, 1): a.fstamp(phase)
        parts = ([f'vmcnt({vmn})'] if vmn is not None else []) + ([f'lgkmcnt({lg})'] if lg is not None else [])
        if parts: a.e('s_waitcnt ' + ' '.join(parts))
        nx = n + LA; info = None
        mfma(n, 0)
        if nx < total:
            info = pre2(nx); rd2(nx, 0, info)
        mfma(n, 1)
        if nx < total: rd2(nx, 1, info)
        a_issue(j, t)
        if extra and t == CT - 1: extra(j)
    a.fstamp(phase); bar(('E', phase, None)); a.fstamp(phase)
    a.e('s_nop 7')

def emit_gemm32(a, bar, phase, chunks, acc, wr, tail=None, a_pieces=None):
    LA, S = 4, 5
    nch = len(chunks)
    total = nch * 8
    trb = TrBase(a, V_TN, 1)
    def slot(n): return wr + 8 * (n % S)
    def reads(n):
        c, rem = divmod(n, 8); ksl, s = divmod(rem, 2)
        out = []
        if rem == 0:
            if a_pieces: a.wait_vm(('A', c))
            a.fstamp(phase); bar(('B', phase, c)); a.fstamp(phase)
        sl = chunks[c][ksl]
        imm = trb.off(sl.addr, 4096)
        out.append(f'ds_read_b128 v[{slot(n)}:{slot(n)+3}], v{V_TA} offset:{(c % 4) * 16384 + ksl * 1024 + s * 512}')
        out.append(f'ds_read_b64_tr_b16 v[{slot(n)+4}:{slot(n)+5}], v{V_TB} offset:{imm + s * 1024}')
        out.append(f'ds_read_b64_tr_b16 v[{slot(n)+6}:{slot(n)+7}], v{V_TB} offset:{imm + s * 1024 + 2048}')
        return out
    queue = []; nxt = 2; passed = 0
    if a_pieces:
        for c in (0, 1):
            for t in a_pieces(c): t()
    for n in range(LA):
        for s in reads(n): a.e(s)
    for n in range(total):
        lg = 3 * (min(n - 1 + LA, total - 1) - n)
        a.e(f's_waitcnt lgkmcnt({lg})')
        c = '0' if n == 0 else f'v[{acc}:{acc+15}]'
        a.e(f'v_mfma_f32_32x32x16_bf16 v[{acc}:{acc+15}], v[{slot(n)+4}:{slot(n)+7}], v[{slot(n)}:{slot(n)+3}], {c}')
        nx = n + LA
        if nx < total:
            if nx % 8 == 0: passed = nx // 8
            for s in reads(nx): a.e(s)
        if a_pieces:
            while nxt < nch and (nxt <= passed + 2 or nxt <= 3) and len(queue) < 4:
                queue += list(a_pieces(nxt)); nxt += 1
            if queue: queue.pop(0)()
        if tail and n == max(total - 24, 0): tail()
    a.fstamp(phase)
    if phase not in NOE:
        bar(('E', phase, None))
    a.fstamp(phase)
    a.e('s_nop 7'); a.e('s_nop 3')


def gen_compute(a, opt, events):
    evq = list(events)
    tm = [0]
    def tmreg(i):
        assert i < 22, i
        return 64 + i
    def dump(regs):
        sk = a.newlabel('TMS')
        a.e('s_waitcnt lgkmcnt(0)')
        a.e(f's_cmp_eq_u32 s{S_W}, 0')
        a.e(f's_cbranch_scc0 {sk}')
        if opt.dbgout >= 0 and opt.fine:
            a.e(f's_cmp_eq_u32 s2, {opt.dbgwg}')
            a.e(f's_cbranch_scc0 {sk}')
            for i, r in enumerate(regs):
                a.e(f's_sub_u32 s{S_T0}, s{r}, s85')
                a.e(f'v_mov_b32 v{V_T0}, s{S_T0}')
                a.e(f'v_mov_b32 v{V_T1}, {4*i}')
                a.e(f'global_store_dword v{V_T1}, v{V_T0}, s[86:87]')
        elif opt.dbgout >= 0 and opt.timing:
            a.e(f's_cmp_eq_u32 s2, {opt.dbgwg}')
            a.e(f's_cbranch_scc0 {sk}')
            a.e(f's_cmp_eq_u32 s{S_L}, {opt.dbgout}')
            a.e(f's_cbranch_scc0 {sk}')
            sel = [1, 2, 3, 4, 5, 6, 8, 9, 11, 12, 14, 15, 16, 17, 18, 20]
            for i, k in enumerate(sel):
                if k >= len(regs): continue
                a.e(f's_sub_u32 s{S_T0}, s{regs[k]}, s{regs[0]}')
                a.e(f'v_mov_b32 v{V_T0}, s{S_T0}')
                a.e(f'v_mov_b32 v{V_T1}, {4*i}')
                a.e(f'global_store_dword v{V_T1}, v{V_T0}, s[86:87]')
        else:
            a.e(f's_lshl_b32 s{S_T0}, s2, 8')
            a.e(f's_lshl_b32 s{S_T1}, s{S_L}, 7')
            if opt.timing: a.e(f's_add_u32 s{S_T0}, s{S_T0}, s{S_T1}')
            a.e(f's_add_u32 s{S_T0}, s{S_T0}, {hex(TM_OFF)}')
            for i, r in enumerate(regs):
                a.e(f'v_mov_b32 v{V_T0}, s{r}')
                a.e(f'v_mov_b32 v{V_T1}, {4*i}')
                a.e(f'buffer_store_dword v{V_T0}, v{V_T1}, {WS}, s{S_T0} offen')
        a.label(sk)
        a.e('s_waitcnt vmcnt(0)')
    fs = [0]
    def freg(i): return 64 + 2 * i
    cnt_ = [0]
    def fs_skip(i):
        cnt_[0] += 1
        return cnt_[0] in (2, 4, 5, 6, 8, 10)
    def fstamp(phase):
        if opt.fine == phase and fs[0] < 10 and not (opt.dbgout >= 0 and fs_skip(fs[0])):
            a.e(f's_memtime s[{freg(fs[0])}:{freg(fs[0])+1}]'); fs[0] += 1
    a.fstamp = fstamp
    def stamp():
        if opt.timing:
            a.e('s_memtime s[60:61]')
            a.e('s_waitcnt lgkmcnt(0)')
            a.e(f's_mov_b32 s{tmreg(tm[0])}, s60'); tm[0] += 1

    T0, T1, T2, TB = V_T0, V_T1, V_T2, V_TB
    if opt.wall:
        a.e('s_memrealtime s[60:61]'); a.e('s_waitcnt lgkmcnt(0)'); a.e('s_mov_b32 s84, s60')
        a.e('s_memtime s[60:61]'); a.e('s_waitcnt lgkmcnt(0)'); a.e('s_mov_b32 s85, s60')
    if opt.dbgout >= 0 and opt.fine: a.e('s_mov_b32 s85, s96')
    if opt.prio_c: a.e(f's_setprio {opt.prio_c}')
    a.c('--- compute: early address setup')
    if opt.startdiag:
        a.e('s_memtime s[98:99]'); a.e('s_waitcnt lgkmcnt(0)'); a.e('s_sub_u32 s98, s98, s100'); a.e('s_mov_b32 s85, s98')
    stamp()
    a.e(f's_lshr_b32 s{S_RH}, s{S_W}, 1')
    a.e(f's_and_b32 s{S_CH}, s{S_W}, 1')
    a.e(f's_lshl_b32 s{S_W4K}, s{S_W}, 12')
    a.e(f's_lshl_b32 s{S_U0}, s{S_G}, 4')
    a.e(f's_lshl_b32 s{S_T1}, s{S_RB}, 2')
    a.e(f's_add_u32 s{S_U0}, s{S_U0}, s{S_T1}')
    a.e(f's_lshl_b32 s{S_T1}, s{S_RH}, 1')
    a.e(f's_add_u32 s{S_U2}, s{S_U0}, s{S_T1}')
    a.e(f's_add_u32 s{S_U0}, s{S_U0}, s{S_W}')
    a.e(f's_lshl_b32 s{S_U1}, s{S_G}, 4')
    a.e(f's_lshl_b32 s{S_T2}, s{S_RB2}, 3')
    a.e(f's_add_u32 s{S_U1}, s{S_U1}, s{S_T2}')
    a.e(f's_lshl_b32 s{S_T2}, s{S_W}, 1')
    a.e(f's_add_u32 s{S_U1}, s{S_U1}, s{S_T2}')
    a.e(f'v_and_b32 v{T0}, 15, v{V_LANE}')
    a.e(f'v_and_b32 v{T1}, 0x30, v{V_LANE}')
    a.e(f's_lshl_b32 s{S_ROTK}, s{S_RB2}, 1')
    a.e(f's_add_u32 s{S_ROTK}, s{S_ROTK}, s{S_CB2}')
    a.e(f's_and_b32 s{S_ROTK}, s{S_ROTK}, {3 if opt.rot else 0}')
    a.e(f'v_and_b32 v{T2}, 31, v{V_LANE}')
    a.e(f'v_lshrrev_b32 v{TB}, 5, v{V_LANE}')
    a.e(f'v_lshlrev_b32 v{V_XRM}, 10, v{T2}')
    a.e(f'v_lshl_add_u32 v{V_XRM}, v{TB}, 3, v{V_XRM}')
    a.e(f's_lshl_b32 s{S_T2}, s{S_U2}, 14')
    a.e(f's_lshl_b32 s{S_T3}, s{S_CB}, 7')
    a.e(f's_add_u32 s{S_T2}, s{S_T2}, s{S_T3}')
    a.e(f's_lshl_b32 s{S_T3}, s{S_CH}, 6')
    a.e(f's_add_u32 s{S_T2}, s{S_T2}, s{S_T3}')
    a.e(f'v_add_u32 v{V_XRM}, s{S_T2}, v{V_XRM}')
    PA = f's[{S_PA}:{S_PA+3}]'
    def p1_load(j):
        for r in range(2):
            a.vmem(f'buffer_load_dwordx4 v[{V_A+(r*16+j)*4}:{V_A+(r*16+j)*4+3}], v{V_AB}, {WS}, s{(S_RK if r == 0 else S_P7) + j // 4} offen offset:{(j%4)*1024} sc1', ('A', j))
    a.e('s_waitcnt lgkmcnt(0)')
    a.e(f's_mul_i32 s{S_B}, s{S_V}, 0x9e3779b1')
    a.e(f's_add_u32 s{S_B}, s{S_B}, 0x7f4a7c15')
    a.e(f's_and_b32 s{S_B}, s{S_B}, 0xffffff00')
    a.c('--- compute: address setup')
    a.e(f'v_lshlrev_b32 v{V_X}, 4, v{V_LANE}')
    a.e(f's_lshl_b32 s{S_T2}, s{S_U1}, 14')
    a.e(f'v_add_u32 v{V_AB}, s{S_T2}, v{V_X}')
    a.e(f'v_lshlrev_b32 v{V_STS}, 4, v{T2}')
    a.e(f'v_lshl_add_u32 v{V_STS}, v{TB}, 11, v{V_STS}')
    a.e(f's_lshl_b32 s{S_T2}, s{S_U2}, 11')
    a.e(f'v_add_u32 v{V_STS}, s{S_T2}, v{V_STS}')
    a.e(f'v_lshlrev_b32 v{V_STST}, 4, v{T2}')
    a.e(f's_lshl_b32 s{S_T4}, s{S_CB}, 9')
    a.e(f's_add_u32 s{S_T2}, s{S_T2}, s{S_T4}')
    a.e(f's_lshl_b32 s{S_T4}, s{S_CH}, 3')
    a.e(f's_add_u32 s{S_T2}, s{S_T2}, s{S_T4}')
    a.e(f'v_add_u32 v{V_STST}, s{S_T2}, v{V_STST}')
    a.e(f's_lshl_b32 s{S_T3}, s{S_CB}, 1')
    a.e(f's_add_u32 s{S_T3}, s{S_T3}, s{S_CH}')
    a.e(f'v_lshlrev_b32 v{V_STB}, 4, v{T0}')
    a.e(f'v_lshl_add_u32 v{V_STB}, v{T1}, 6, v{V_STB}')
    a.e(f's_lshl_b32 s{S_T2}, s{S_U1}, 11')
    a.e(f'v_add_u32 v{V_STB}, s{S_T2}, v{V_STB}')
    a.e(f'v_lshrrev_b32 v{V_TST}, 4, v{T2}')
    a.e(f'v_lshlrev_b32 v{V_TST}, 14, v{V_TST}')
    a.e(f'v_lshl_add_u32 v{V_TST}, v{TB}, 8, v{V_TST}')
    a.e(f'v_lshl_add_u32 v{V_TST}, v{T0}, 4, v{V_TST}')
    a.e(f's_lshl_b32 s{S_T2}, s{S_U2}, 14')
    a.e(f's_lshl_b32 s{S_T4}, s{S_T3}, 10')
    a.e(f's_add_u32 s{S_T2}, s{S_T2}, s{S_T4}')
    a.e(f'v_add_u32 v{V_TST}, s{S_T2}, v{V_TST}')
    a.e(f's_lshl_b32 s{S_T2}, s{S_G}, 9')
    a.e(f's_add_u32 s{S_T2}, s{S_T2}, {hex(LF_OFF)}')
    a.e(f's_lshl_b32 s{S_T3}, s{S_W}, 7')
    a.e(f's_add_u32 s{S_T3}, s{S_T3}, s{S_T2}')
    a.e(f's_lshl_b32 s{S_T4}, s{S_R}, 2')
    a.e(f's_add_u32 s{S_T4}, s{S_T4}, s{S_T3}')
    a.e(f'v_mov_b32 v{V_FOWN}, s{S_T4}')
    a.e(f'v_and_b32 v{V_X+1}, 7, v{V_LANE}')
    a.e(f'v_lshlrev_b32 v{V_X+1}, 2, v{V_X+1}')
    a.e(f'v_bfe_u32 v{V_X+2}, v{V_LANE}, 3, 1')
    a.e(f'v_lshl_add_u32 v{V_X+1}, v{V_X+2}, 7, v{V_X+1}')
    a.e(f's_lshl_b32 s{S_T4}, s{S_RB2}, 1')
    a.e(f's_add_u32 s{S_T4}, s{S_T4}, s{S_RH}')
    a.e(f's_lshl_b32 s{S_T4}, s{S_T4}, 5')
    a.e(f's_lshl_b32 s{S_T5}, s{S_CH}, 8')
    a.e(f's_add_u32 s{S_T4}, s{S_T4}, s{S_T5}')
    a.e(f's_add_u32 s{S_T4}, s{S_T4}, s{S_T2}')
    a.e(f'v_add_u32 v{V_FSB}, s{S_T4}, v{V_X+1}')
    a.e(f's_lshl_b32 s{S_T4}, s{S_CB2}, 7')
    a.e(f's_add_u32 s{S_T4}, s{S_T4}, {hex(KVF_OFF)}')
    a.e(f'v_lshlrev_b32 v{V_FKV}, 2, v{T2}')
    a.e(f'v_add_u32 v{V_FKV}, s{S_T4}, v{V_FKV}')
    a.e(f'v_bfe_u32 v{V_X+1}, v{V_LANE}, 2, 2')
    a.e(f'v_lshrrev_b32 v{V_X+2}, 4, v{V_LANE}')
    a.e(f'v_lshl_add_u32 v{V_X+3}, v{V_X+2}, 2, v{V_X+1}')
    a.e(f'v_and_b32 v{V_X+4}, 3, v{V_LANE}')
    a.e(f'v_lshlrev_b32 v{V_X+4}, 3, v{V_X+4}')
    a.e(f'v_bfe_u32 v{V_X+5}, v{V_X+3}, 1, 2')
    a.e(f'v_lshl_add_u32 v{V_T128}, v{V_X+5}, 5, v{V_X+4}')
    a.e(f'v_lshl_add_u32 v{V_T128}, v{V_X+3}, 7, v{V_T128}')
    a.e(f'v_bfe_u32 v{V_X+5}, v{V_X+3}, 2, 1')
    a.e(f'v_lshl_add_u32 v{V_T64}, v{V_X+5}, 5, v{V_X+4}')
    a.e(f'v_lshl_add_u32 v{V_T64}, v{V_X+3}, 6, v{V_T64}')
    a.e(f'v_mul_u32_u24 v{V_T224}, 224, v{V_X+3}')
    a.e(f'v_add_u32 v{V_T224}, v{V_T224}, v{V_X+4}')
    a.e(f'v_lshrrev_b32 v{V_X+3}, 1, v{V_X+2}')
    a.e(f'v_lshl_add_u32 v{V_X+3}, v{V_X+3}, 2, v{V_X+1}')
    a.e(f'v_and_b32 v{V_X+5}, 1, v{V_X+2}')
    a.e(f's_lshl_b32 s{S_T4}, s{S_CH}, 1')
    a.e(f'v_add_u32 v{V_X+5}, s{S_T4}, v{V_X+5}')
    a.e(f'v_and_b32 v{V_X+1}, 2, v{V_X+1}')
    a.e(f'v_xor_b32 v{V_X+5}, v{V_X+5}, v{V_X+1}')
    a.e(f'v_lshl_add_u32 v{V_TN}, v{V_X+5}, 5, v{V_X+4}')
    a.e(f'v_lshl_add_u32 v{V_TN}, v{V_X+3}, 7, v{V_TN}')
    a.e(f'v_bfe_u32 v{V_TA}, v{V_LANE}, 4, 1')
    a.e(f's_lshl_b32 s{S_T4}, s{S_RH}, 1')
    a.e(f'v_add_u32 v{V_TA}, s{S_T4}, v{V_TA}')
    a.e(f'v_lshlrev_b32 v{V_TA}, 12, v{V_TA}')
    a.e(f'v_lshl_add_u32 v{V_TA}, v{TB}, 8, v{V_TA}')
    a.e(f'v_lshl_add_u32 v{V_TA}, v{T0}, 4, v{V_TA}')
    if AREG: a.e(f'v_add_u32 v{V_TA}, {hex(AREG)}, v{V_TA}')
    c1 = -2.0 * 0.7978845608028654 * 1.4426950408889634
    c2 = c1 * 0.044715
    for s, v in [(S_C1, c1), (S_C2, c2), (S_C2 + 1, c2), (S_ONE2, 1.0), (S_ONE2 + 1, 1.0),
                 (S_LOG2E, 1.4426950408889634), (S_EPS6, 1e-6), (S_L2E2, 1.4426950408889634), (S_L2E2 + 1, 1.4426950408889634),
                 (S_E62, 1e-6), (S_E62 + 1, 1e-6)]:
        if opt.dbgout >= 0 and s in (S_E62, S_E62 + 1): continue
        a.e(f's_mov_b32 s{s}, {hex(f2u(v))}')
    a.e(f's_mov_b32 s{S_L}, 0')
    a.e(f's_mov_b32 s{S_LOFF}, 0')
    a.e(f's_mov_b32 s{S_EP}, 1')
    a.e(f's_mov_b32 s{S_MODE}, 1')
    a.e(f's_mov_b32 s{S_COLD}, 1')
    a.e(f's_lshl_b32 s{S_GH}, s{S_G}, 1')
    a.e(f's_add_u32 s{S_GH}, s{S_GH}, 1')
    a.e(f's_lshl_b32 s{S_GH}, s{S_GH}, 14')

    if WARM0[0]:
        assert evq[0][2] == 'W0'; evq.pop(0)
        a.e('s_barrier')
    LOOP = 'LAYER_LOOP'
    a.label(LOOP)
    slabs = build_slabs(0)

    def run_layer():
        def bar(ev):
            exp = evq.pop(0)
            assert exp[1:] == ev or (exp[1] == 'X' and ev[0] == 'X' and exp[2] == ev[1]), (exp, ev)
            a.e('s_barrier')
        def soff(reg, base, extra=0, gh=False):
            if gh: a.e(f's_add_u32 s{reg}, s{S_GH}, {hex(base + extra)}')
            else: a.e(f's_mov_b32 s{reg}, {hex(base + extra)}')
        def done(p):
            if opt.stop == (1, p):
                a.e(f's_cmp_eq_u32 s{S_L}, 1')
                a.e('s_cbranch_scc1 L_END_COMPUTE')
            return opt.stop == (0, p)
        def ep(k):
            a.e(f's_add_u32 s{S_T5}, s{S_EP}, {k}')
            return f's{S_T5}'

        a.c('=== P1KV')
        WR1 = 96; D1 = 116; ONES = 124; D2 = V_PQ
        for i in range(4): a.e(f'v_mov_b32 v{ONES+i}, 0x3f803f80')
        l0 = a.newlabel('KVL0'); ljoin = a.newlabel('KVJ')
        a.e(f's_cmp_eq_u32 s{S_L}, 0')
        a.e(f's_cbranch_scc1 {l0}')
        saved_ev = list(evq)
        emit_poll(a, V_FSB, f's{S_EP}', opt=opt)
        for j in range(opt.D_kv): p1_load(j)
        stamp()
        a.fstamp('P1KV')
        def kv_issue(j, t):
            if t == 1:
                if j + opt.D_kv < 16:
                    p1_load(j + opt.D_kv)
                elif j + opt.D_kv == 16:
                    soff(S_T0, ST_OFF)
                    a.vmem(f'buffer_load_dwordx4 v[{D1}:{D1+3}], v{V_STB}, {WS}, s{S_T0} offen sc1', 'st')
                    a.vmem(f'buffer_load_dwordx4 v[{D1+4}:{D1+7}], v{V_STB}, {WS}, s{S_T0} offen offset:512 sc1', 'st')
                    a.vmem(f'buffer_load_dwordx4 v[{D2}:{D2+3}], v{V_STB}, {WS}, s{S_T0} offen offset:256 sc1', 'st')
                    a.vmem(f'buffer_load_dwordx4 v[{D2+4}:{D2+7}], v{V_STB}, {WS}, s{S_T0} offen offset:768 sc1', 'st')
        emit_gemm16(a, bar, 'P1KV', slabs['P1KV'], 4, '128',
                    acc_of=lambda r, t: V_ACC + (r * 4 + t) * 4, a_of=lambda r, j: V_A + (r * 16 + j) * 4,
                    a_wait=lambda j: a.count_vm(('A', j)), a_issue=kv_issue, wr=WR1, S=5, normal=True)
        a.e(f's_branch {ljoin}')
        a.label(l0)
        evq[:] = saved_ev
        a.vm = []
        fs[0] = 0
        cnt_[0] = 0
        a.fstamp('P1KV')
        tm[0] -= 1 if opt.timing else 0
        stamp()
        VLA = V_X
        a.e(f'v_and_b32 v{T0}, 15, v{V_LANE}')
        a.e(f'v_lshrrev_b32 v{T1}, 4, v{V_LANE}')
        a.e(f'v_xor_b32 v{T1}, v{T1}, v{T0}')
        a.e(f'v_lshlrev_b32 v{T1}, 4, v{T1}')
        a.e(f's_lshl_b32 s{S_T0}, s{S_W}, 5')
        a.e(f'v_add_u32 v{T0}, s{S_T0}, v{T0}')
        a.e(f'v_lshlrev_b32 v{T0}, 8, v{T0}')
        for j in range(4):
            a.e(f'v_xor_b32 v{VLA+j}, {64*j}, v{T1}')
            a.e(f'v_add_u32 v{VLA+j}, v{VLA+j}, v{T0}')
        def kv_lds(j):
            c = j // 4
            return [f'ds_read_b128 v[{V_A+(r*16+j)*4}:{V_A+(r*16+j)*4+3}], v{VLA + j % 4} offset:{AREG + (c & 1) * 32768 + r * 4096}' for r in range(2)]
        def kv_extra(j):
            for r in range(2):
                x = f'v[{V_A+(r*16+j)*4}:{V_A+(r*16+j)*4+3}]'
                c1_ = '0' if j == 0 else f'v[{D1+4*r}:{D1+4*r+3}]'
                c2_ = '0' if j == 0 else f'v[{D2+4*r}:{D2+4*r+3}]'
                a.e(f'v_mfma_f32_16x16x32_bf16 v[{D1+4*r}:{D1+4*r+3}], v[{ONES}:{ONES+3}], {x}, {c1_}')
                a.e(f'v_mfma_f32_16x16x32_bf16 v[{D2+4*r}:{D2+4*r+3}], {x}, {x}, {c2_}')
        emit_gemm16(a, bar, 'P1KV', slabs['P1KV'], 4, '128',
                    acc_of=lambda r, t: V_ACC + (r * 4 + t) * 4, a_of=lambda r, j: V_A + (r * 16 + j) * 4,
                    a_wait=lambda j: None, a_issue=lambda j, t: None, wr=WR1, S=5, normal=True, extra=kv_extra, a_lds=kv_lds)
        a.label(ljoin)
        stamp()
        a.wait_vm_all()
        SUM = [(V_X, V_X + 1), (V_X + 2, V_X + 3)]
        l1 = a.newlabel('S1'); le = a.newlabel('SE')
        a.e(f's_cmp_eq_u32 s{S_L}, 0')
        a.e(f's_cbranch_scc0 {l1}')
        a.e(f'v_and_b32 v{T0}, 31, v{V_LANE}')
        a.e(f'v_lshlrev_b32 v{T0}, 7, v{T0}')
        a.e(f'v_lshrrev_b32 v{T1}, 5, v{V_LANE}')
        a.e(f'v_lshl_add_u32 v{T0}, v{T1}, 3, v{T0}')
        a.e(f's_lshl_b32 s{S_T0}, s{S_RH}, 12')
        a.e(f's_lshl_b32 s{S_T1}, s{S_CH}, 6')
        a.e(f's_add_u32 s{S_T0}, s{S_T0}, s{S_T1}')
        if AREG: a.e(f's_add_u32 s{S_T0}, s{S_T0}, {hex(AREG)}')
        a.e(f'v_add_u32 v{T0}, s{S_T0}, v{T0}')
        for j in range(4):
            a.e(f'ds_read_b64 v[{V_RES+4*j}:{V_RES+4*j+1}], v{T0} offset:{16*j}')
        a.e('s_waitcnt lgkmcnt(0)')
        for j in range(4):
            b = V_RES + 4 * j
            a.e(f'v_and_b32 v{b+3}, 0xffff0000, v{b+1}')
            a.e(f'v_lshlrev_b32 v{b+2}, 16, v{b+1}')
            a.e(f'v_and_b32 v{b+1}, 0xffff0000, v{b}')
            a.e(f'v_lshlrev_b32 v{b}, 16, v{b}')
        a.e(f'v_and_b32 v{T0}, 3, v{V_LANE}')
        a.e(f'v_bfe_u32 v{T1}, v{V_LANE}, 2, 2')
        a.e(f'v_lshrrev_b32 v{T2}, 4, v{V_LANE}')
        for r in range(2):
            s_, ss_ = SUM[r]
            a.e(f'v_mov_b32 v{s_}, v{D1+4*r}')
            a.e(f'v_mov_b32 v{ss_}, v{D2+4*r}')
            for i in range(1, 4):
                a.e(f'v_cmp_eq_u32 vcc, {i}, v{T0}')
                a.e('s_nop 1')
                a.e(f'v_cndmask_b32 v{ss_}, v{ss_}, v{D2+4*r+i}, vcc')
            a.e(f'v_cmp_eq_u32 vcc, v{T1}, v{T2}')
            a.e('s_nop 1')
            a.e(f'v_cndmask_b32 v{ss_}, 0, v{ss_}, vcc')
        emit_xreduce(a, [SUM[0][1], SUM[1][1]], [T0, T1])
        a.e(f's_branch {le}')
        a.label(l1)
        for r, raw in enumerate([D1, D2]):
            emit_sum_partials(a, raw, 8)
            a.e(f'v_mov_b32 v{SUM[r][0]}, v{raw}')
            a.e(f'v_mov_b32 v{SUM[r][1]}, v{raw+1}')
        emit_xreduce(a, [SUM[0][0], SUM[0][1], SUM[1][0], SUM[1][1]], [WR1, WR1 + 1, WR1 + 2, WR1 + 3])
        a.label(le)
        CSR = 120
        a.e(f'v_and_b32 v{T0}, 15, v{V_LANE}')
        a.e(f'v_lshlrev_b32 v{T0}, 2, v{T0}')
        a.e(f'v_add_u32 v{T0}, {hex(CSC)}, v{T0}')
        a.e(f'v_and_b32 v{T1}, 0x30, v{V_LANE}')
        for t in range(4):
            a.e(f'ds_read_b32 v{CSR+t}, v{T0} offset:{64*t}')
        KEEP = [(V_PQ + 0, V_PQ + 2), (V_PQ + 4, V_PQ + 6)]
        for r in range(2):
            emit_stats_from_sums(a, SUM[r][0], SUM[r][1], KEEP[r][0], KEEP[r][1], WR1)
        AI = [WR1, WR1 + 8]; BI = [WR1 + 4, WR1 + 12]
        for r in range(2):
            for i in range(4):
                a.e(f'ds_bpermute_b32 v{AI[r]+i}, v{T1}, v{KEEP[r][0]} offset:{4*i}')
                a.e(f'ds_bpermute_b32 v{BI[r]+i}, v{T1}, v{KEEP[r][1]} offset:{4*i}')
        a.e('s_waitcnt vmcnt(0) lgkmcnt(0)'); a.vm = []
        CSE = WR1 + 16
        for t in range(4): a.e(f'v_mov_b32 v{CSE+2*t}, v{CSR+t}')
        for r in range(2):
            for t in range(4):
                for i in (0, 2):
                    d = V_ACC + (r * 4 + t) * 4 + i
                    a.e(pk('mul', d, vp(d), vp(AI[r] + i)))
            for t in range(4):
                for i in (0, 2):
                    d = V_ACC + (r * 4 + t) * 4 + i
                    a.e(pk('fma', d, vp(BI[r] + i), vp(CSE + 2 * t), vp(d), mods=' op_sel_hi:[1,0,1]'))
        regs = [V_ACC + (r * 4 + t) * 4 + i for r in range(2) for t in range(2) for i in range(4)]
        emit_phi(a, regs, WR1)
        for t in range(4):
            b0 = V_ACC + t * 4; b1 = V_ACC + (4 + t) * 4
            a.e(f'v_cvt_pk_bf16_f32 v{b0}, v{b0}, v{b0+1}')
            a.e(f'v_cvt_pk_bf16_f32 v{b0+1}, v{b0+2}, v{b0+3}')
            a.e(f'v_cvt_pk_bf16_f32 v{b0+2}, v{b1}, v{b1+1}')
            a.e(f'v_cvt_pk_bf16_f32 v{b0+3}, v{b1+2}, v{b1+3}')
        a.e('s_nop 1')
        KVD = V_ACC + 16
        for h in range(2):
            a.e(f'v_mfma_f32_16x16x32_bf16 v[{KVD+4*h}:{KVD+4*h+3}], v[{V_ACC+4*h}:{V_ACC+4*h+3}], v[{V_ACC+8+4*h}:{V_ACC+8+4*h+3}], 0')
            a.e(f'v_mfma_f32_16x16x32_bf16 v[{KVD+8+4*h}:{KVD+8+4*h+3}], v[{V_ACC+4*h}:{V_ACC+4*h+3}], v[{ONES}:{ONES+3}], 0')
        a.e(f's_lshl_b32 s{S_T0}, s{S_W}, 11')
        a.e(f's_add_u32 s{S_T0}, s{S_T0}, {hex(SCR)}')
        a.e(f'v_lshlrev_b32 v{T0}, 4, v{V_LANE}')
        a.e(f'v_add_u32 v{T0}, s{S_T0}, v{T0}')
        a.e(f's_lshl_b32 s{S_T0}, s{S_W}, 7')
        a.e(f's_add_u32 s{S_T0}, s{S_T0}, {hex(SCR + 8192)}')
        a.e(f'v_add_u32 v{T2}, s{S_T0}, v{T1}')
        a.e('s_nop 4')
        a.e(f'ds_write_b128 v{T0}, v[{KVD}:{KVD+3}]')
        a.e(f'ds_write_b128 v{T0}, v[{KVD+4}:{KVD+7}] offset:1024')
        set_exec(a, 0x00010001)
        a.e(f'ds_write_b128 v{T2}, v[{KVD+8}:{KVD+11}]')
        a.e(f'ds_write_b128 v{T2}, v[{KVD+12}:{KVD+15}] offset:64')
        a.e('s_mov_b64 exec, -1')
        a.e('s_waitcnt lgkmcnt(0)')
        bar(('X', 'X1'))
        sk = a.newlabel('KVST')
        a.e(f's_cmp_lt_u32 s{S_W}, 2')
        a.e(f's_cbranch_scc0 {sk}')
        if opt.kv_atomic:
            a.e(f's_lshl_b32 s{S_T0}, s{S_W}, 10')
            a.e(f's_add_u32 s{S_T0}, s{S_T0}, {hex(SCR)}')
            a.e(f'v_lshlrev_b32 v{T0}, 2, v{V_LANE}')
            a.e(f'v_add_u32 v{T2}, s{S_T0}, v{T0}')
            a.e(f's_lshl_b32 s{S_T0}, s{S_W}, 6')
            a.e(f's_add_u32 s{S_T0}, s{S_T0}, {hex(SCR + 8192)}')
            a.e(f'v_add_u32 v{V_X}, s{S_T0}, v{T0}')
            KB = V_ACC
            for ww in range(4):
                for i in range(4):
                    a.e(f'ds_read_b32 v{KB+4*ww+i}, v{T2} offset:{ww*2048+256*i}')
                if ww == 2: a.e('s_waitcnt lgkmcnt(4)')
            for ww in range(4):
                a.e(f'ds_read_b32 v{KB+16+ww}, v{V_X} offset:{ww*128}')
            a.e(f's_mul_i32 s{S_T0}, s{S_CB2}, {KVREC}')
            a.e(f's_mul_i32 s{S_T1}, s{S_L}, {16*KVREC}')
            a.e(f's_add_u32 s{S_T0}, s{S_T0}, s{S_T1}')
            a.e(f's_add_u32 s{S_T0}, s{S_T0}, {hex(KVA_OFF)}')
            a.e(f's_lshl_b32 s{S_T1}, s{S_W}, 10')
            a.e(f's_add_u32 s{S_T1}, s{S_T1}, s{S_T0}')
            a.e(f's_lshl_b32 s{S_T2}, s{S_W}, 6')
            a.e(f's_add_u32 s{S_T2}, s{S_T2}, s{S_T0}')
            a.e(f's_add_u32 s{S_T2}, s{S_T2}, 2048')
            a.e('s_waitcnt lgkmcnt(0)')
            for i in (0, 2):
                a.e(pk('add', KB + i, vp(KB + i), vp(KB + 4 + i)))
                a.e(pk('add', KB + 8 + i, vp(KB + 8 + i), vp(KB + 12 + i)))
                a.e(pk('add', KB + i, vp(KB + i), vp(KB + 8 + i)))
            a.e(pk('add', KB + 16, vp(KB + 16), vp(KB + 18)))
            a.e(f'v_add_f32 v{KB+16}, v{KB+16}, v{KB+17}')
            for i in range(4):
                a.e(f'buffer_atomic_add_f32 v{KB+i}, v{T0}, {WS}, s{S_T1} offen offset:{256*i}')
            a.e('s_mov_b64 exec, 0xffff')
            a.e(f'buffer_atomic_add_f32 v{KB+16}, v{T0}, {WS}, s{S_T2} offen')
            a.e('s_mov_b64 exec, -1')
        else:
            a.e(f's_lshl_b32 s{S_T0}, s{S_W}, 10')
            a.e(f's_add_u32 s{S_T0}, s{S_T0}, {hex(SCR)}')
            a.e(f'v_lshlrev_b32 v{T0}, 4, v{V_LANE}')
            a.e(f'v_add_u32 v{T2}, s{S_T0}, v{T0}')
            a.e(f's_lshl_b32 s{S_T0}, s{S_W}, 6')
            a.e(f's_add_u32 s{S_T0}, s{S_T0}, {hex(SCR + 8192)}')
            a.e(f'v_add_u32 v{V_X}, s{S_T0}, v{T1}')
            KB = V_ACC
            for ww in range(4):
                a.e(f'ds_read_b128 v[{KB+4*ww}:{KB+4*ww+3}], v{T2} offset:{ww*2048}')
                a.e(f'ds_read_b128 v[{KB+16+4*ww}:{KB+16+4*ww+3}], v{V_X} offset:{ww*128}')
            a.e(f's_lshl_b32 s{S_T0}, s{S_CB2}, 4')
            a.e(f's_lshl_b32 s{S_T1}, s{S_G}, 1')
            a.e(f's_add_u32 s{S_T0}, s{S_T0}, s{S_T1}')
            a.e(f's_add_u32 s{S_T0}, s{S_T0}, s{S_RB2}')
            a.e(f's_mul_i32 s{S_T0}, s{S_T0}, {KVREC}')
            a.e(f's_add_u32 s{S_T0}, s{S_T0}, s{S_LOFF}')
            a.e(f's_add_u32 s{S_T0}, s{S_T0}, {hex(KVP_OFF)}')
            a.e(f's_lshl_b32 s{S_T1}, s{S_W}, 10')
            a.e(f's_add_u32 s{S_T1}, s{S_T1}, s{S_T0}')
            a.e(f's_lshl_b32 s{S_T2}, s{S_W}, 6')
            a.e(f's_add_u32 s{S_T2}, s{S_T2}, s{S_T0}')
            a.e(f's_add_u32 s{S_T2}, s{S_T2}, 2048')
            a.e('s_waitcnt lgkmcnt(0)')
            for base in (KB, KB + 16):
                for i in range(0, 4, 2):
                    a.e(pk('add', base + i, vp(base + i), vp(base + 4 + i)))
                    a.e(pk('add', base + 8 + i, vp(base + 8 + i), vp(base + 12 + i)))
                    a.e(pk('add', base + i, vp(base + i), vp(base + 8 + i)))
            a.e(f'buffer_store_dwordx4 v[{KB}:{KB+3}], v{T0}, {WS}, s{S_T1} offen sc1')
            set_exec(a, 0x00010001)
            a.e(f'buffer_store_dwordx4 v[{KB+16}:{KB+19}], v{T1}, {WS}, s{S_T2} offen sc1')
            a.e('s_mov_b64 exec, -1')
        a.e(f's_lshl_b32 s{S_T0}, s{S_L}, 11')
        a.e(f's_lshl_b32 s{S_T1}, s{S_CB2}, 7')
        a.e(f's_add_u32 s{S_T0}, s{S_T0}, s{S_T1}')
        a.e(f's_lshl_b32 s{S_T1}, s{S_W}, 6')
        a.e(f's_add_u32 s{S_T0}, s{S_T0}, s{S_T1}')
        a.e(f's_lshl_b32 s{S_T1}, s{S_G}, 3')
        a.e(f's_add_u32 s{S_T0}, s{S_T0}, s{S_T1}')
        a.e(f's_lshl_b32 s{S_T1}, s{S_RB2}, 2')
        a.e(f's_add_u32 s{S_T0}, s{S_T0}, s{S_T1}')
        a.e(f's_add_u32 s{S_T0}, s{S_T0}, {hex(KVF_OFF)}')
        a.e(f'v_mov_b32 v{V_X+4}, s{S_T0}')
        a.label(sk)
        a.vm = []
        stamp()
        if done('P1KV'): return True

        a.c('=== P1Q')
        QCS = V_ACC + 16
        a.e(f'v_and_b32 v{T1}, 0x30, v{V_LANE}')
        a.e(f'v_add_u32 v{T1}, {hex(CSC + 256)}, v{T1}')
        a.e(f'ds_read_b128 v[{QCS}:{QCS+3}], v{T1}')
        a.e(f'ds_read_b128 v[{QCS+4}:{QCS+7}], v{T1} offset:64')
        a.e('s_waitcnt lgkmcnt(0)')
        QAB = [(V_ACC + 24, V_ACC + 26), (V_ACC + 28, V_ACC + 30)]
        for r in range(2):
            a.e(f'v_mov_b32 v{QAB[r][0]}, v{KEEP[r][0]}')
            a.e(f'v_mov_b32 v{QAB[r][1]}, v{KEEP[r][1]}')
        def q_issue(j, t):
            if j == opt.kvflag_at and t == 1:
                fk = a.newlabel('KVFL')
                a.e(f's_cmp_lt_u32 s{S_W}, 2')
                a.e(f's_cbranch_scc0 {fk}')
                thr_value(a, S_THR, 1, xcc=True)
                a.e(f'v_mov_b32 v{V_X+5}, s{S_THR}')
                a.e('s_waitcnt vmcnt(0)')
                a.e('s_mov_b64 exec, 1')
                a.e(f'buffer_store_dword v{V_X+5}, v{V_X+4}, {WS}, 0 offen sc1')
                a.e('s_mov_b64 exec, -1')
                a.label(fk)
        emit_gemm16(a, bar, 'P1Q', slabs['P1Q'], 2, '64',
                    acc_of=lambda r, t: V_ACC + (r * 2 + t) * 4, a_of=lambda r, j: V_A + (r * 16 + j) * 4,
                    a_wait=lambda j: None, a_issue=q_issue, wr=96, S=8)
        for r in range(2):
            for t in range(2):
                emit_lnfold(a, V_ACC + (r * 2 + t) * 4, QCS + 4 * t, QAB[r][0], QAB[r][1], 4)
        emit_phi(a, [V_ACC + i for i in range(16)], 96)
        for r in range(2):
            for h in range(2):
                emit_pack(a, V_PQ + (r * 2 + h) * 2, V_ACC + (r * 2 + h) * 4, 4)
        stamp()
        sk = a.newlabel('MODE')
        a.e(f's_cmp_eq_u32 s{S_L}, 0')
        a.e(f's_cbranch_scc0 {sk}')
        a.e(f'v_and_b32 v{T1}, 31, v{V_LANE}')
        a.e(f'v_lshlrev_b32 v{T1}, 2, v{T1}')
        a.e(f's_lshl_b32 s{S_T0}, s{S_G}, 7')
        a.e(f's_add_u32 s{S_T0}, s{S_T0}, {hex(XID_OFF)}')
        emit_poll(a, T1, 0, soff=f's{S_T0}', opt=opt)
        a.e(f'v_and_b32 v{T2}, 7, v{T2}')
        a.e(f'v_cmp_eq_u32 vcc, s{S_XCC}, v{T2}')
        a.e('s_nop 1')
        a.e('s_cmp_eq_u64 vcc, -1')
        a.e(f's_cselect_b32 s{S_MODE}, 0, 1')
        if opt.force_safe: a.e(f's_mov_b32 s{S_MODE}, 1')
        a.label(sk)
        a.e(f's_lshl_b32 s{S_T0}, s{S_L}, 11')
        emit_poll(a, V_FKV, 1, soff=f's{S_T0}', opt=opt)
        stamp()
        RB = V_A + 64
        if opt.kv_atomic:
            a.e(f's_mul_i32 s{S_T0}, s{S_CB2}, {KVREC}')
            a.e(f's_mul_i32 s{S_T1}, s{S_L}, {16*KVREC}')
            a.e(f's_add_u32 s{S_T0}, s{S_T0}, s{S_T1}')
            a.e(f's_add_u32 s{S_T0}, s{S_T0}, {hex(KVA_OFF)}')
            a.e(f'v_lshlrev_b32 v{T0}, 4, v{V_LANE}')
            a.e(f'v_and_b32 v{T1}, 0x30, v{V_LANE}')
            a.vmem(f'buffer_load_dwordx4 v[{RB}:{RB+3}], v{T0}, {WS}, s{S_T0} offen sc1', 'kp')
            a.vmem(f'buffer_load_dwordx4 v[{RB+4}:{RB+7}], v{T0}, {WS}, s{S_T0} offen offset:1024 sc1', 'kp')
            a.vmem(f'buffer_load_dwordx4 v[{RB+8}:{RB+11}], v{T1}, {WS}, s{S_T0} offen offset:2048 sc1', 'kp')
            a.vmem(f'buffer_load_dwordx4 v[{RB+12}:{RB+15}], v{T1}, {WS}, s{S_T0} offen offset:2112 sc1', 'kp')
            a.wait_vm_all()
        else:
            a.e(f's_lshl_b32 s{S_T0}, s{S_CB2}, 4')
            a.e(f's_lshl_b32 s{S_T1}, s{S_W}, 2')
            a.e(f's_add_u32 s{S_T0}, s{S_T0}, s{S_T1}')
            a.e(f's_mul_i32 s{S_T0}, s{S_T0}, {KVREC}')
            a.e(f's_add_u32 s{S_T0}, s{S_T0}, s{S_LOFF}')
            a.e(f's_add_u32 s{S_T0}, s{S_T0}, {hex(KVP_OFF)}')
            a.e(f'v_lshlrev_b32 v{T0}, 4, v{V_LANE}')
            a.e(f'v_and_b32 v{T1}, 0x30, v{V_LANE}')
            PB = V_A
            for s4 in range(4):
                b = PB + 16 * s4
                a.vmem(f'buffer_load_dwordx4 v[{b}:{b+3}], v{T0}, {WS}, s{S_T0} offen sc1', 'kp')
                a.vmem(f'buffer_load_dwordx4 v[{b+4}:{b+7}], v{T0}, {WS}, s{S_T0} offen offset:1024 sc1', 'kp')
                a.vmem(f'buffer_load_dwordx4 v[{b+8}:{b+11}], v{T1}, {WS}, s{S_T0} offen offset:2048 sc1', 'kp')
                a.vmem(f'buffer_load_dwordx4 v[{b+12}:{b+15}], v{T1}, {WS}, s{S_T0} offen offset:2112 sc1', 'kp')
                if s4 < 3: a.e(f's_add_u32 s{S_T0}, s{S_T0}, {KVREC}')
            a.e(f's_lshl_b32 s{S_T0}, s{S_W}, 11')
            a.e(f's_add_u32 s{S_T0}, s{S_T0}, {hex(SCR)}')
            a.e(f'v_add_u32 v{T0}, s{S_T0}, v{T0}')
            a.e(f's_lshl_b32 s{S_T0}, s{S_W}, 7')
            a.e(f's_add_u32 s{S_T0}, s{S_T0}, {hex(SCR + 8192)}')
            a.e(f'v_add_u32 v{T2}, s{S_T0}, v{T1}')
            a.wait_vm_all()
            for i in range(0, 16, 2):
                a.e(pk('add', PB + i, vp(PB + i), vp(PB + 16 + i)))
                a.e(pk('add', PB + 32 + i, vp(PB + 32 + i), vp(PB + 48 + i)))
            for i in range(0, 16, 2):
                a.e(pk('add', PB + i, vp(PB + i), vp(PB + 32 + i)))
            a.e(f'ds_write_b128 v{T0}, v[{PB}:{PB+3}]')
            a.e(f'ds_write_b128 v{T0}, v[{PB+4}:{PB+7}] offset:1024')
            set_exec(a, 0x00010001)
            a.e(f'ds_write_b128 v{T2}, v[{PB+8}:{PB+11}]')
            a.e(f'ds_write_b128 v{T2}, v[{PB+12}:{PB+15}] offset:64')
            a.e('s_mov_b64 exec, -1')
            a.e(f'v_lshlrev_b32 v{T0}, 4, v{V_LANE}')
            a.e(f'v_add_u32 v{T0}, {hex(SCR)}, v{T0}')
            a.e(f'v_add_u32 v{T2}, {hex(SCR + 8192)}, v{T1}')
            a.e('s_waitcnt lgkmcnt(0)')
            bar(('X', 'X2'))
            for ww in range(4):
                b = RB + 16 * ww
                a.e(f'ds_read_b128 v[{b}:{b+3}], v{T0} offset:{ww*2048}')
                a.e(f'ds_read_b128 v[{b+4}:{b+7}], v{T0} offset:{ww*2048+1024}')
                a.e(f'ds_read_b128 v[{b+8}:{b+11}], v{T2} offset:{ww*128}')
                a.e(f'ds_read_b128 v[{b+12}:{b+15}], v{T2} offset:{ww*128+64}')
                if ww == 2: a.e('s_waitcnt lgkmcnt(8)')
            a.e('s_waitcnt lgkmcnt(0)')
            for i in range(0, 16, 2):
                a.e(pk('add', RB + i, vp(RB + i), vp(RB + 16 + i)))
                a.e(pk('add', RB + 32 + i, vp(RB + 32 + i), vp(RB + 48 + i)))
            for i in range(0, 16, 2):
                a.e(pk('add', RB + i, vp(RB + i), vp(RB + 32 + i)))
        OPB = V_ACC + 16
        emit_pack(a, OPB, RB, 16)
        a.e('s_nop 1')
        NUM = V_A; DEN = V_A + 16
        for r in range(2):
            for h in range(2):
                pq = V_PQ + (r * 2 + h) * 2
                n_ = NUM + (r * 2 + h) * 4; d_ = DEN + (r * 2 + h) * 4
                a.e(f'v_mfma_f32_16x16x16_bf16 v[{n_}:{n_+3}], v[{OPB+2*h}:{OPB+2*h+1}], v[{pq}:{pq+1}], 0')
                a.e(f'v_mfma_f32_16x16x16_bf16 v[{d_}:{d_+3}], v[{OPB+4+2*h}:{OPB+4+2*h+1}], v[{pq}:{pq+1}], 0')
        a.e(f's_lshl_b32 s{S_T0}, s{S_CB2}, 10')
        a.e(f's_add_u32 s{S_T0}, s{S_T0}, s{S_GH}')
        a.e(f's_add_u32 s{S_T1}, s{S_T0}, 0x4000')
        a.e('s_nop 4')
        for k in range(4): a.e(f'v_add_f32 v{DEN+4*k}, s{S_EPS6}, v{DEN+4*k}')
        for k in range(4): a.e(f'v_rcp_f32 v{DEN+4*k}, v{DEN+4*k}')
        a.e('s_nop 0')
        for k in range(4):
            for i in range(4): a.e(f'v_mul_f32 v{NUM+4*k+i}, v{NUM+4*k+i}, v{DEN+4*k}')
        OPK = V_A + 32
        emit_pack(a, OPK, NUM, 16)
        emit_mode_stores(a, [f'buffer_store_dwordx4 v[{OPK}:{OPK+3}], v{V_AB}, {WS}, s{S_T0} offen',
                             f'buffer_store_dwordx4 v[{OPK+4}:{OPK+7}], v{V_AB}, {WS}, s{S_T1} offen'], cold=True)
        emit_signal(a, ep(1))
        stamp()
        if done('P1Q'): return True

        ACC = V_ACC; WR = 80; TMP = V_A
        def small_gemm(phase, tail=None):
            a.fstamp(phase)
            emit_gemm32(a, bar, phase, slabs[phase], ACC, WR, tail=tail)
        def tile_store(pkb, base, gh=False, cold=False):
            soff(S_T0, base, gh=gh)
            emit_mode_stores(a, [f'buffer_store_dwordx4 v[{pkb}:{pkb+3}], v{V_TST}, {WS}, s{S_T0} offen',
                                 f'buffer_store_dwordx4 v[{pkb+4}:{pkb+7}], v{V_TST}, {WS}, s{S_T0} offen offset:512'], cold=cold)

        a.c('=== P3')
        stamp()
        small_gemm('P3')
        stamp()
        for i in range(0, 16, 2): a.e(pk('add', V_RES + i, vp(V_RES + i), vp(ACC + i)))
        emit_pack32(a, TMP, V_RES)
        tile_store(TMP, A1_OFF, cold=True)
        soff(S_T1, ST_OFF)
        emit_stats_partial32(a, V_RES, TMP + 8, f's{S_T1}', cold=True)
        emit_signal(a, ep(2))
        stamp()
        if done('P3'): return True

        a.c('=== P4')
        CS4 = TMP + 16; RAW = TMP + 32
        a.e(f'v_lshrrev_b32 v{T1}, 5, v{V_LANE}')
        a.e(f'v_lshlrev_b32 v{T1}, 4, v{T1}')
        a.e(f's_lshl_b32 s{S_T1}, s{S_CH}, 7')
        a.e(f's_add_u32 s{S_T1}, s{S_T1}, {hex(CSC + 384)}')
        a.e(f'v_add_u32 v{T1}, s{S_T1}, v{T1}')
        for j in range(4):
            a.e(f'ds_read_b128 v[{CS4+4*j}:{CS4+4*j+3}], v{T1} offset:{32*j}')
        a.e('s_waitcnt lgkmcnt(0)')
        stamp()
        def p4_tail():
            soff(S_T0, ST_OFF)
            for k in range(4):
                a.vmem(f'buffer_load_dwordx4 v[{RAW+4*k}:{RAW+4*k+3}], v{V_STS}, {WS}, s{S_T0} offen offset:{512*k} sc1', 'st')
        small_gemm('P4', tail=p4_tail)
        stamp()
        a.wait_vm_all()
        emit_sum_partials(a, RAW, 16)
        emit_xreduce(a, [RAW, RAW + 1], [RAW + 2, RAW + 3], over16=False)
        emit_stats_from_sums(a, RAW, RAW + 1, RAW + 4, RAW + 6, RAW + 8, double=True, keep=(V_MEAN, V_RS))
        emit_lnfold(a, ACC, CS4, RAW + 4, RAW + 6, 16)
        emit_gelu(a, ACC, 16, TMP + 48, V_PQ)
        emit_pack32(a, TMP, ACC)
        tile_store(TMP, A0_OFF, gh=True)
        gl = a.newlabel('GH'); gu = a.newlabel('GH'); gd = a.newlabel('GH')
        a.e(f's_cmp_eq_u32 s{S_RB}, 3')
        a.e(f's_cbranch_scc0 {gu}')
        a.e(f's_cmp_eq_u32 s{S_RH}, 1')
        a.e(f's_cbranch_scc0 {gd}')
        a.e(f's_bitcmp1_b32 s{S_CB}, 1')
        a.e(f's_cbranch_scc1 {gd}')
        a.e(f's_cmp_eq_u32 s{S_G}, 7')
        a.e(f's_cbranch_scc1 {gd}')
        a.e(f's_add_u32 s{S_T1}, s{S_G}, 1')
        a.e(f's_mul_i32 s{S_T2}, s{S_T1}, {18*16384}')
        a.e(f's_lshl_b32 s{S_T3}, s{S_T1}, 8')
        set_exec(a, 0xc0000000)
        a.e(f's_branch {gl}')
        a.label(gu)
        a.e(f's_cmp_eq_u32 s{S_RB}, 0')
        a.e(f's_cbranch_scc0 {gd}')
        a.e(f's_cmp_eq_u32 s{S_RH}, 0')
        a.e(f's_cbranch_scc0 {gd}')
        a.e(f's_bitcmp1_b32 s{S_CB}, 1')
        a.e(f's_cbranch_scc0 {gd}')
        a.e(f's_cmp_eq_u32 s{S_G}, 0')
        a.e(f's_cbranch_scc1 {gd}')
        a.e(f's_sub_u32 s{S_T1}, s{S_G}, 1')
        a.e(f's_mul_i32 s{S_T2}, s{S_T1}, {18*16384}')
        a.e(f's_add_u32 s{S_T2}, s{S_T2}, {17*16384}')
        a.e(f's_lshl_b32 s{S_T3}, s{S_T1}, 8')
        a.e(f's_add_u32 s{S_T3}, s{S_T3}, 128')
        set_exec(a, 0x00000003)
        a.label(gl)
        a.e(f's_lshl_b32 s{S_T0}, s{S_CB}, 1')
        a.e(f's_add_u32 s{S_T0}, s{S_T0}, s{S_CH}')
        a.e(f's_lshl_b32 s{S_T0}, s{S_T0}, 10')
        a.e(f's_add_u32 s{S_T2}, s{S_T2}, s{S_T0}')
        a.e(f'v_and_b32 v{T0}, 0x3fff, v{V_TST}')
        a.e(f'v_and_b32 v{T0}, 0x3ff, v{T0}')
        a.e(f'buffer_store_dwordx4 v[{TMP}:{TMP+3}], v{T0}, {WS}, s{S_T2} offen sc1')
        a.e(f'buffer_store_dwordx4 v[{TMP+4}:{TMP+7}], v{T0}, {WS}, s{S_T2} offen offset:512 sc1')
        a.e('s_mov_b64 exec, -1')
        a.e(f's_and_b32 s{S_T0}, s{S_CB}, 1')
        a.e(f's_lshr_b32 s{S_T1}, s{S_CB}, 2')
        a.e(f's_lshl_b32 s{S_T1}, s{S_T1}, 1')
        a.e(f's_add_u32 s{S_T0}, s{S_T0}, s{S_T1}')
        a.e(f's_lshl_b32 s{S_T0}, s{S_T0}, 1')
        a.e(f's_add_u32 s{S_T0}, s{S_T0}, s{S_CH}')
        a.e(f's_lshl_b32 s{S_T0}, s{S_T0}, 2')
        a.e(f's_add_u32 s{S_T3}, s{S_T3}, s{S_T0}')
        a.e(f's_lshl_b32 s{S_T0}, s{S_L}, 11')
        a.e(f's_add_u32 s{S_T3}, s{S_T3}, s{S_T0}')
        a.e(f's_add_u32 s{S_T3}, s{S_T3}, {hex(HF_OFF)}')
        thr_value(a, S_THR, ep(3), xcc=True)
        a.e(f'v_mov_b32 v{T0}, s{S_T3}')
        a.e(f'v_mov_b32 v{T1}, s{S_THR}')
        a.e('s_waitcnt vmcnt(0)')
        a.e('s_mov_b64 exec, 1')
        a.e(f'buffer_store_dword v{T1}, v{T0}, {WS}, 0 offen sc1')
        a.e('s_mov_b64 exec, -1')
        a.label(gd)
        emit_signal(a, ep(3))
        stamp()
        if done('P4'): return True

        a.c('=== P5')
        stamp()
        small_gemm('P5')
        stamp()
        a.e(f'v_mul_f32 v{TMP+10}, v{V_MEAN}, v{V_RS}')
        a.e(f'v_sub_f32 v{TMP+10}, 0, v{TMP+10}')
        a.e(f'v_mov_b32 v{TMP+8}, v{V_RS}')
        for i in range(0, 16, 2):
            a.e(pk('fma', ACC + i, vp(V_RES + i), vp(TMP + 8), vp(ACC + i), mods=' op_sel_hi:[1,0,1]'))
        for i in range(0, 16, 2):
            a.e(pk('add', ACC + i, vp(ACC + i), vp(TMP + 10), mods=' op_sel_hi:[1,0]'))
        emit_pack32(a, TMP, ACC)
        tile_store(TMP, A1_OFF)
        soff(S_T1, ST_OFF)
        emit_stats_partial32(a, ACC, TMP + 12, f's{S_T1}')
        for i in range(0, 16, 2): a.e(pk('add', V_RES + i, vp(V_RES + i), vp(ACC + i)))
        emit_signal(a, ep(4))
        stamp()
        if done('P5'): return True

        a.c('=== P6')
        CS6 = V_ACC; ACC6 = 192; WR6 = 96
        a.e(f'v_and_b32 v{T1}, 0x30, v{V_LANE}')
        a.e(f'v_add_u32 v{T1}, {hex(CSC + 640)}, v{T1}')
        for t in range(7):
            a.e(f'ds_read_b128 v[{CS6+4*t}:{CS6+4*t+3}], v{T1} offset:{64*t}')
        a.e('s_waitcnt lgkmcnt(0)')
        for c in range(4):
            a.e(f's_lshl_b32 s{S_P7+c}, s{S_RB2}, {13 if opt.rot else 31}')
            if not opt.rot: a.e(f's_mov_b32 s{S_P7+c}, 0')
            a.e(f's_xor_b32 s{S_P7+c}, s{S_P7+c}, {hex(c * 4096)}')
            a.e(f's_add_u32 s{S_P7+c}, s{S_P7+c}, {hex(A1_OFF)}')
            a.e(f's_add_u32 s{S_P7+4+c}, s{S_P7+c}, 0x4000')
        emit_poll(a, V_FSB, ep(4), opt=opt)
        stamp()
        def p6_load(j):
            for r in range(2):
                d = V_A + ((j % 8) * 2 + r) * 4
                a.vmem(f'buffer_load_dwordx4 v[{d}:{d+3}], v{V_AB}, {WS}, s{S_P7 + 4 * r + j // 4} offen offset:{(j%4)*1024} sc1', ('A', j))
        RAW6 = [V_PQ, 248]
        def p6_issue(j, t):
            if t == 1:
                if j + opt.D_p6 < 16:
                    p6_load(j + opt.D_p6)
                elif j + opt.D_p6 == 16:
                    soff(S_T0, ST_OFF)
                    for r in range(2):
                        a.vmem(f'buffer_load_dwordx4 v[{RAW6[r]}:{RAW6[r]+3}], v{V_STB}, {WS}, s{S_T0} offen offset:{256*r} sc1', 'st')
                        a.vmem(f'buffer_load_dwordx4 v[{RAW6[r]+4}:{RAW6[r]+7}], v{V_STB}, {WS}, s{S_T0} offen offset:{256*r+512} sc1', 'st')
        a.fstamp('P6')
        for j in range(opt.D_p6): p6_load(j)
        emit_gemm16(a, bar, 'P6', slabs['P6'], 7, '224',
                    acc_of=lambda r, t: ACC6 + (r * 7 + t) * 4, a_of=lambda r, j: V_A + ((j % 8) * 2 + r) * 4,
                    a_wait=lambda j: a.count_vm(('A', j)), a_issue=p6_issue, wr=WR6, S=8)
        stamp()
        a.wait_vm_all()
        for r in range(2): emit_sum_partials(a, RAW6[r], 8)
        emit_xreduce(a, [RAW6[0], RAW6[0] + 1, RAW6[1], RAW6[1] + 1], [V_X, V_X + 1, V_X + 2, V_X + 3])
        AB6 = [(92, 94), (RAW6[1] + 4, RAW6[1] + 6)]
        for r in range(2):
            emit_stats_from_sums(a, RAW6[r], RAW6[r] + 1, AB6[r][0], AB6[r][1], V_X)
        a.e(f's_lshl_b32 s{S_T0}, s{S_G}, 4')
        a.e(f's_lshl_b32 s{S_T1}, s{S_RB2}, 3')
        a.e(f's_add_u32 s{S_T0}, s{S_T0}, s{S_T1}')
        a.e(f's_lshl_b32 s{S_T1}, s{S_W}, 1')
        a.e(f's_add_u32 s{S_T0}, s{S_T0}, s{S_T1}')
        a.e(f's_mul_i32 s{S_T0}, s{S_T0}, 57344')
        a.e(f's_lshr_b32 s{S_T1}, s{S_CB2}, 1')
        a.e(f's_mul_i32 s{S_T1}, s{S_T1}, 7168')
        a.e(f's_add_u32 s{S_T0}, s{S_T0}, s{S_T1}')
        a.e(f's_add_u32 s{S_T0}, s{S_T0}, {hex(G_OFF)}')
        a.e(f's_and_b32 s{S_T1}, s{S_CB2}, 1')
        a.e(f's_mul_i32 s{S_U0}, s{S_T1}, 3072')
        a.e(f's_add_u32 s{S_U0}, s{S_U0}, s{S_T0}')
        a.e(f's_add_u32 s{S_U1}, s{S_U0}, 57344')
        a.e(f's_lshl_b32 s{S_T1}, s{S_T1}, 3')
        a.e(f's_add_u32 s{S_U2}, s{S_T0}, s{S_T1}')
        a.e(f's_add_u32 s{S_U2}, s{S_U2}, 6144')
        a.e(f's_add_u32 s{S_U3}, s{S_U2}, 57344')
        a.e(f'v_lshlrev_b32 v{V_X+4}, 4, v{V_LANE}')
        for r in range(2):
            emit_lnfold(a, ACC6 + r * 28, CS6, AB6[r][0], AB6[r][1], 28)
            emit_gelu(a, ACC6 + r * 28, 28, V_A, V_PQ + 4)
            pkb = V_A + 16 + r * 16
            emit_pack(a, pkb, ACC6 + r * 28, 28)
            st = [f'buffer_store_dwordx4 v[{pkb+4*j}:{pkb+4*j+3}], v{V_X+4}, {WS}, s{S_U0+r} offen offset:{1024*j}' for j in range(3)]
            st.append(f'buffer_store_dwordx2 v[{pkb+12}:{pkb+13}], v{V_X+4}, {WS}, s{S_U2+r} offen')
            emit_mode_stores(a, st, cold=bool(opt.g_cold))
        emit_signal(a, ep(5))
        stamp()
        if done('P6'): return True

        a.c('=== P7')
        if opt.p7_self:
            VG, VF = V_A + 100, V_A + 101
            a.e(f's_lshl_b32 s{S_T0}, s{S_G}, 4'); a.e(f's_lshl_b32 s{S_T1}, s{S_RB}, 2'); a.e(f's_add_u32 s{S_T0}, s{S_T0}, s{S_T1}')
            a.e(f's_add_u32 s{S_T0}, s{S_T0}, s{S_W}'); a.e(f's_mul_i32 s{S_T0}, s{S_T0}, 57344')
            a.e(f'v_lshlrev_b32 v{VG}, 4, v{V_LANE}'); a.e(f'v_add_u32 v{VG}, s{S_T0}, v{VG}')
            for p_ in range(8):
                a.e(f's_and_b32 s{S_P7+p_}, s{S_RB}, {3 if opt.rot else 0}'); a.e(f's_lshl_b32 s{S_P7+p_}, s{S_P7+p_}, 1')
                a.e(f's_xor_b32 s{S_P7+p_}, s{S_P7+p_}, {p_}'); a.e(f's_mul_i32 s{S_P7+p_}, s{S_P7+p_}, 7168')
            a.e(f's_lshl_b32 s{S_T2}, s{S_G}, 9'); a.e(f's_add_u32 s{S_T2}, s{S_T2}, {hex(LF_OFF)}')
            a.e(f's_and_b32 s{S_T3}, s{S_RB}, 1'); a.e(f's_lshl_b32 s{S_T3}, s{S_T3}, 1'); a.e(f's_add_u32 s{S_T3}, s{S_T3}, s{S_RH}')
            a.e(f's_lshl_b32 s{S_T3}, s{S_T3}, 7'); a.e(f's_add_u32 s{S_T3}, s{S_T3}, s{S_T2}')
            a.e(f's_lshr_b32 s{S_T4}, s{S_RB}, 1'); a.e(f's_lshl_b32 s{S_T4}, s{S_T4}, 6'); a.e(f's_add_u32 s{S_T3}, s{S_T3}, s{S_T4}')
            a.e(f'v_and_b32 v{VF}, 15, v{V_LANE}'); a.e(f'v_lshlrev_b32 v{VF}, 2, v{VF}'); a.e(f'v_add_u32 v{VF}, s{S_T3}, v{VF}')
            a.e(f's_lshl_b32 s{S_T3}, s{S_R}, 2'); a.e(f's_add_u32 s{S_T3}, s{S_T3}, s{S_T2}')
            a.e(f'v_and_b32 v{T1}, 3, v{V_LANE}'); a.e(f'v_lshlrev_b32 v{T1}, 7, v{T1}'); a.e(f'v_add_u32 v{T1}, s{S_T3}, v{T1}')
            a.e(f'v_cmp_lt_u32 vcc, 15, v{V_LANE}'); a.e('s_nop 1'); a.e(f'v_cndmask_b32 v{VF}, v{VF}, v{T1}, vcc')
            emit_poll(a, VF, ep(5), opt=opt)
            stamp()
            def pieces7(c):
                state = {'last': None}
                def mk(k):
                    def f():
                        if k == 0: a.e(f's_add_u32 m0, s{S_W4K}, {hex(AREG + (c % 4) * 16384)}')
                        p_, i_ = divmod(4 * c + k, 7)
                        const = G_OFF + (i_ - k) * 1024
                        if state['last'] != (p_, const):
                            a.e(f's_add_u32 s{S_T0}, s{S_P7+p_}, {hex(const & 0xffffffff)}'); state['last'] = (p_, const)
                        a.vmem(f'buffer_load_dwordx4 v{VG}, {WS}, s{S_T0} offen offset:{k*1024} sc1 lds', ('A', c))
                    return f
                return [mk(k) for k in range(4)]
            emit_gemm32(a, bar, 'P7', slabs['P7'], ACC, WR, a_pieces=pieces7)
        else:
            stamp()
            small_gemm('P7')
        stamp()
        for i in range(0, 16, 2): a.e(pk('add', V_RES + i, vp(V_RES + i), vp(ACC + i)))
        emit_pack32(a, TMP, V_RES)
        return False

    stopped = run_layer()
    if not stopped:
        fin = a.newlabel('FIN'); TMP = V_A
        a.e(f's_cmp_eq_u32 s{S_L}, 1')
        a.e(f's_cbranch_scc1 {fin}')
        a.e(f's_mov_b32 s{S_T0}, {hex(A2_OFF)}')
        emit_mode_stores(a, [f'buffer_store_dwordx4 v[{TMP}:{TMP+3}], v{V_TST}, {WS}, s{S_T0} offen',
                             f'buffer_store_dwordx4 v[{TMP+4}:{TMP+7}], v{V_TST}, {WS}, s{S_T0} offen offset:512'], cold=True)
        a.e(f's_mov_b32 s{S_T1}, {hex(ST_OFF)}')
        emit_stats_partial32(a, V_RES, TMP + 8, f's{S_T1}')
        a.e(f's_add_u32 s{S_EP}, s{S_EP}, 6')
        emit_signal(a, f's{S_EP}')
        if opt.timing:
            dump([tmreg(i) for i in range(tm[0])])
        a.e(f's_mov_b32 s{S_L}, 1')
        a.e(f's_mov_b32 s{S_LOFF}, {hex(KVP_L)}')
        a.e(f's_mov_b32 s{S_COLD}, s{S_MODE}')
        for c in range(4):
            a.e(f's_xor_b32 s{S_RK+c}, s{S_ROTK}, {c}')
            a.e(f's_lshl_b32 s{S_RK+c}, s{S_RK+c}, 12')
            a.e(f's_add_u32 s{S_RK+c}, s{S_RK+c}, {hex(A2_OFF)}')
            a.e(f's_add_u32 s{S_P7+c}, s{S_RK+c}, 0x4000')
        a.e(f's_branch {LOOP}')
        a.label(fin)
        emit_pack(a, TMP, V_RES, 16)
        OS = f's[{S_OUT}:{S_OUT+3}]'
        for j in range(4):
            a.e(f'buffer_store_dwordx2 v[{TMP+2*j}:{TMP+2*j+1}], v{V_XRM}, {OS}, 0 offen offset:{16*j}')
    a.label('L_END_COMPUTE')
    nn = a.newlabel('NON')
    a.e(f's_or_b32 s{S_T0}, s2, s{S_W}')
    a.e(f's_cmp_eq_u32 s{S_T0}, 0')
    a.e(f's_cbranch_scc0 {nn}')
    a.e(f's_add_u32 s{S_T0}, s{S_V}, 1')
    a.e(f'v_mov_b32 v{V_T0}, s{S_T0}')
    a.e(f'v_mov_b32 v{V_T1}, {hex(NONCE_OFF)}')
    a.e('s_mov_b64 exec, 1')
    a.e(f'buffer_store_dword v{V_T0}, v{V_T1}, {WS}, 0 offen')
    a.e('s_mov_b64 exec, -1')
    a.label(nn)
    stamp()
    if opt.timing: dump([tmreg(i) for i in range(tm[0])] + ([85] if False else []))
    if opt.fine: dump([freg(i) for i in range(fs[0])])
    if opt.wall:
        a.e('s_waitcnt vmcnt(0)')
        a.e('s_memrealtime s[82:83]'); a.e('s_memtime s[80:81]'); a.e('s_waitcnt lgkmcnt(0)')
        dump([84, 82, 85, 80])
    a.e('s_waitcnt vmcnt(0)')
    a.e('s_endpgm')
    return evq


def hstamp(a, opt, slot):
    if not (opt.dbgout >= 0 and opt.fine): return
    sk = a.newlabel('HS')
    a.e('s_memtime s[98:99]'); a.e('s_waitcnt lgkmcnt(0)')
    a.e(f's_cmp_eq_u32 s2, {opt.dbgwg}'); a.e(f's_cbranch_scc0 {sk}')
    a.e('s_sub_u32 s98, s98, s96')
    a.e('v_mov_b32 v254, s98'); a.e(f'v_mov_b32 v253, {4*slot}')
    a.e('global_store_dword v253, v254, s[86:87]')
    a.label(sk)
    a.vm.append('hs')

def gen_loader(a, opt, events):
    VN, VKV, VQ, VW3, VKVn, VQn = 8, 12, 16, 20, 28, 32
    VT0, VT1, VT2, VT3 = 1, 2, 3, 4
    a.c('--- loader setup')
    if opt.prio_l: a.e(f's_setprio {opt.prio_l}')
    def srd(s, p, size):
        a.e(f's_mov_b32 s{s}, s{p}'); a.e(f's_mov_b32 s{s+1}, s{p+1}')
        a.e(f's_mov_b32 s{s+2}, {hex(size)}'); a.e(f's_mov_b32 s{s+3}, 0x20000')
    srd(S_WQKV, S_PTR + 2, 512 * 1536 * 2)
    srd(S_WO, S_PTR + 4, 512 * 512 * 2)
    srd(S_W1, S_PTR + 8, 512 * 512 * 2)
    srd(S_W2, S_PTR + 10, 512 * 512 * 2)
    srd(S_W3, S_PTR + 12, 512 * 1792 * 2)
    srd(S_W4, S_PTR + 14, 1792 * 512 * 2)
    CBS, CBK, CB6, CB7 = 64, 68, 72, 76
    a.e(f's_lshl_b32 s{S_T1}, s{S_RB2}, 1')
    a.e(f's_add_u32 s{S_T1}, s{S_T1}, s{S_CB2}')
    a.e(f's_and_b32 s{S_T1}, s{S_T1}, {3 if opt.rot else 0}')
    for c in range(4):
        a.e(f's_xor_b32 s{CBK+c}, s{S_T1}, {c}')
        a.e(f's_mul_i32 s{CBK+c}, s{CBK+c}, {128*3072}')
    def late_tables():
        rm = 3 if opt.rot else 0
        for c in range(4):
            a.e(f's_and_b32 s{CBS+c}, s{S_RB}, {rm}')
            a.e(f's_xor_b32 s{CBS+c}, s{CBS+c}, {c}')
            a.e(f's_lshl_b32 s{CBS+c}, s{CBS+c}, 17')
            a.e(f's_lshl_b32 s{CB6+c}, s{S_RB2}, 1')
            a.e(f's_and_b32 s{CB6+c}, s{CB6+c}, {rm}')
            a.e(f's_xor_b32 s{CB6+c}, s{CB6+c}, {c}')
            a.e(f's_mul_i32 s{CB6+c}, s{CB6+c}, {128*3584}')
        for p_ in range(8):
            a.e(f's_and_b32 s{CB7+p_}, s{S_RB}, {rm}')
            a.e(f's_lshl_b32 s{CB7+p_}, s{CB7+p_}, 1')
            a.e(f's_xor_b32 s{CB7+p_}, s{CB7+p_}, {p_}')
            a.e(f's_mul_i32 s{CB7+p_}, s{CB7+p_}, {224*1024}')

    def cs_issue():
        a.c('cs pieces')
        c1 = a.newlabel('CS'); c2 = a.newlabel('CS'); c3 = a.newlabel('CS')
        a.e(f's_min_u32 s{92}, s2, 239')
        a.e(f's_lshr_b32 s{93}, s{92}, 2')
        a.e(f's_and_b32 s{94}, s{92}, 3')
        a.e(f's_cmp_lt_u32 s{93}, 24')
        a.e(f's_cbranch_scc0 {c1}')
        for i in range(3): a.e(f's_mov_b32 s{S_CSRD+i}, s{S_WQKV+i}')
        a.e(f's_mov_b32 s{S_T0}, 3072')
        a.e(f's_lshl_b32 s{S_T1}, s{93}, 7')
        a.e(f's_branch {c3}')
        a.label(c1)
        a.e(f's_cmp_lt_u32 s{93}, 32')
        a.e(f's_cbranch_scc0 {c2}')
        for i in range(3): a.e(f's_mov_b32 s{S_CSRD+i}, s{S_W1+i}')
        a.e(f's_mov_b32 s{S_T0}, 1024')
        a.e(f's_sub_u32 s{S_T1}, s{93}, 24')
        a.e(f's_lshl_b32 s{S_T1}, s{S_T1}, 7')
        a.e(f's_branch {c3}')
        a.label(c2)
        for i in range(3): a.e(f's_mov_b32 s{S_CSRD+i}, s{S_W3+i}')
        a.e(f's_mov_b32 s{S_T0}, 3584')
        a.e(f's_sub_u32 s{S_T1}, s{93}, 32')
        a.e(f's_lshl_b32 s{S_T1}, s{S_T1}, 7')
        a.label(c3)
        a.e(f's_mov_b32 s{S_CSRD+3}, 0x20000')
        a.e(f'v_lshrrev_b32 v{VT1}, 3, v{V_LANE}')
        a.e(f'v_mul_lo_u32 v{VT1}, v{VT1}, s{S_T0}')
        a.e(f'v_and_b32 v{VT2}, 7, v{V_LANE}')
        a.e(f'v_lshl_add_u32 v{VT1}, v{VT2}, 4, v{VT1}')
        a.e(f'v_add_u32 v{VT1}, s{S_T1}, v{VT1}')
        a.e(f's_lshl_b32 s{S_T1}, s{94}, 7')
        a.e(f's_mul_i32 s{S_T1}, s{S_T1}, s{S_T0}')
        a.e(f's_lshl_b32 s{S_T0}, s{S_T0}, 3')
        a.e(f's_mov_b32 m0, {hex(CSL)}')
        for p in range(16):
            a.e('s_nop 0')
            a.vmem(f'buffer_load_dwordx4 v{VT1}, s[{S_CSRD}:{S_CSRD+3}], s{S_T1} offen lds', 'cs')
            if p < 15:
                a.e('s_add_u32 m0, m0, 1024')
                a.e(f's_add_u32 s{S_T1}, s{S_T1}, s{S_T0}')
    dg = [0]
    def dstamp():
        if opt.startdiag:
            a.e(f's_memtime s[{84+2*dg[0]}:{85+2*dg[0]}]') if False else None
            a.e('s_memtime s[98:99]'); a.e('s_waitcnt lgkmcnt(0)')
            a.e('s_sub_u32 s98, s98, s100')
            a.e(f'v_mov_b32 v{100+dg[0]}, s98'); dg[0] += 1
    dstamp()
    cs_issue()
    a.e(f'v_lshrrev_b32 v{VT0}, 3, v{V_LANE}')
    a.e(f'v_bfe_u32 v{VT1}, v{VT0}, 1, 2')
    a.e(f'v_lshlrev_b32 v{VT1}, 1, v{VT1}')
    a.e(f'v_and_b32 v{VT2}, 7, v{V_LANE}')
    a.e(f'v_xor_b32 v{VT2}, v{VT2}, v{VT1}')
    a.e(f'v_and_b32 v{VT1}, 3, v{VT2}')
    a.e(f'v_lshlrev_b32 v{VT3}, 4, v{VT1}')
    a.e(f'v_lshrrev_b32 v{VT1}, 2, v{VT2}')
    a.e(f'v_lshl_add_u32 v{VT3}, v{VT1}, 10, v{VT3}')
    a.e(f's_lshl_b32 s{S_T0}, s{S_CB2}, 6')
    a.e(f's_add_u32 s{S_T1}, s{S_T0}, 1024')
    a.e(f'v_add_u32 v{VT3}, s{S_T1}, v{VT3}')
    a.e(f'v_lshrrev_b32 v{VT1}, 2, v{VT0}')
    a.e(f'v_lshlrev_b32 v{VT1}, 3, v{VT1}')
    a.e(f'v_and_b32 v{VT2}, 3, v{VT0}')
    a.e(f'v_add_u32 v{VT1}, v{VT1}, v{VT2}')
    a.e(f'v_mul_u32_u24 v{VT1}, 3072, v{VT1}')
    a.e(f'v_add_u32 v{VT1}, v{VT1}, v{VT3}')
    for p in range(4):
        off = (16 * (p & 1) + 4 * (p >> 1)) * 3072 - p * 1024
        a.e(f'v_add_u32 v{VKVn+p}, {hex(off & 0xffffffff)}, v{VT1}')
    a.e(f'v_mul_u32_u24 v{VKV}, 3072, v{VT0}')
    a.e(f'v_add_u32 v{VKV}, v{VKV}, v{VT3}')
    for j in range(1, 4): a.e(f'v_add_u32 v{VKV+j}, {hex(j*(8*3072-1024))}, v{VKV}')

    layers = sorted(set(e[0] for e in events))
    slabs = {L: build_slabs(L) for L in layers}
    stream = []
    needed = set((e[0], e[2], e[3]) for e in events if e[1] == 'B')
    for L in layers:
        for p in PHASES:
            for ci, ch in enumerate(slabs[L][p]):
                if (L, p, ci) in needed: stream += ch
    released = set()
    log = []; cur = ['start']
    opt._log = log
    st = {'issued': 0}
    win = [opt.window0]
    def overlaps_unreleased(s, idx):
        for k in range(idx):
            o = stream[k]
            if (o.layer, o.phase, o.chunk) in released: continue
            if o.addr < s.addr + s.size and s.addr < o.addr + o.size: return True
        return False
    def emit_slab(s):
        kind = s.kind; tag = (s.layer, s.phase, s.chunk)
        if kind in opt.dbg_skip.split(','): return
        if kind in ('WO', 'W1', 'W2', 'W4'):
            srd_ = {'WO': S_WO, 'W1': S_W1, 'W2': S_W2, 'W4': S_W4}[kind]; vb = VN; rs = 1024
        elif kind == 'KV': srd_, vb, rs = S_WQKV, (VKVn if s.layer == 0 else VKV), 3072
        elif kind == 'Q': srd_, vb, rs = S_WQKV, (VQn if s.layer == 0 else VQ), 3072
        else: srd_, vb, rs = S_W3, VW3, 3584
        R4 = f's[{srd_}:{srd_+3}]'
        def grp(addr, srow, ps, v0):
            a.e(f's_mov_b32 m0, {hex(addr)}')
            if kind == 'W4':
                p_, rr_ = divmod(srow, 224); tb_ = CB7 + p_
            else:
                c_, rr_ = divmod(srow, 128); tb_ = {'KV': CBK, 'Q': CBK, 'W3': CB6}.get(kind, CBS) + c_
            a.e(f's_add_u32 s{S_T0}, s{tb_}, {hex(rr_*rs)}')
            for k, p in enumerate(ps):
                a.vmem(f'buffer_load_dwordx4 v{vb+p}, {R4}, s{S_T0} offen offset:{k*1024} {"nt " if opt.w_nt else ""}lds', tag)
        if kind == 'W3':
            grp(s.addr, s.srow, [0, 1, 2, 3], 0); grp(s.addr + 4096, s.srow, [4, 5, 6], 0)
        elif kind == 'W4' and s.srow2 != s.srow + 16:
            grp(s.addr, s.srow, [0, 1], 0); grp(s.addr + 2048, s.srow2, [0, 1], 0)
        else:
            grp(s.addr, s.srow, [0, 1, 2, 3], 0)
        if len(a.vm) > win[0]:
            a.e(f's_waitcnt vmcnt({win[0]})')
            a.vm = a.vm[len(a.vm) - win[0]:]
    plan = {}
    opt._plan = plan
    free = [56, 56]
    def need_slots(s): return (4, 3) if s.kind == 'W3' else (2, 2)
    def park_policy(key):
        if not opt.park: return
        name = key.split('.', 1)[1] if key[0] in '01' else None
        if name is None: return
        L = int(key[0])
        if name in opt.park_w3:
            cand = [s for s in stream[st['issued']:] if s.layer == L and s.phase == 'P6' and s.chunk >= 1]; cap = opt.park_w3[name]
        elif name in opt.park_caps:
            cand = [s for s in stream[st['issued']:] if s.layer == L and s.phase == 'P7' and s.chunk >= 6]; cap = opt.park_caps[name]
        else:
            return
        for s in cand:
            if getattr(s, 'parked', False): continue
            n0, n1 = need_slots(s)
            if cap <= 0 or free[0] < n0 or free[1] < n1: break
            s.parked = True; free[0] -= n0; free[1] -= n1; cap -= 1
            plan.setdefault(key, []).append(('park', s))
    def issue(cap, must=None):
        n = 0; nu = 0
        while st['issued'] < len(stream):
            s = stream[st['issued']]
            forced = must is not None and any((o.layer, o.phase, o.chunk) == must for o in stream[st['issued']:])
            pk_ = getattr(s, 'parked', False)
            if not forced and not pk_ and n + s.npieces > cap: break
            if not forced and pk_ and (nu >= opt.unpark_max or must is not None): break
            if overlaps_unreleased(s, st['issued']):
                assert not forced, ('deadlock', must, s.layer, s.phase, s.chunk)
                break
            if pk_:
                plan.setdefault(cur[0], []).append(('unpark', s)); nu += 1
                n0, n1 = need_slots(s); free[0] += n0; free[1] += n1
                st['issued'] += 1
                log.append((cur[0], s.layer, s.phase + '*', s.chunk, forced))
                continue
            emit_slab(s); st['issued'] += 1; n += s.npieces
            log.append((cur[0], s.layer, s.phase, s.chunk, forced))
    if WARM0[0]:
        a.e('s_barrier')
        events = events[1:]
    hstamp(a, opt, 8)
    issue(32)
    hstamp(a, opt, 9)
    dstamp()
    def nonce_setup():
        a.e('s_waitcnt lgkmcnt(0)')
        a.e(f's_mul_i32 s{S_B}, s{S_V}, 0x9e3779b1')
        a.e(f's_add_u32 s{S_B}, s{S_B}, 0x7f4a7c15')
        a.e(f's_and_b32 s{S_B}, s{S_B}, 0xffffff00')
    def late_setup():
        if not opt.cs_late: nonce_setup()
        a.e(f's_lshl_b32 s{S_T0}, s{S_G}, 7')
        a.e(f's_lshl_b32 s{S_T1}, s{S_R}, 2')
        a.e(f's_add_u32 s{S_T0}, s{S_T0}, s{S_T1}')
        a.e(f's_add_u32 s{S_T0}, s{S_T0}, {hex(XID_OFF)}')
        a.e(f'v_mov_b32 v{VT1}, s{S_T0}')
        a.e(f's_add_u32 s{S_T1}, s{S_B}, s{S_XCC}')
        a.e(f'v_mov_b32 v{VT0}, s{S_T1}')
        a.e('s_mov_b64 exec, 1')
        a.vmem(f'buffer_store_dword v{VT0}, v{VT1}, {WS}, 0 offen sc1', 'xid')
        a.e('s_mov_b64 exec, -1')
        late_tables()
        a.c('W lane offsets')
        a.e(f'v_lshrrev_b32 v{VT0}, 3, v{V_LANE}')
        a.e(f'v_bfe_u32 v{VT1}, v{VT0}, 1, 1')
        a.e(f'v_lshlrev_b32 v{VT1}, 2, v{VT1}')
        a.e(f'v_and_b32 v{VT2}, 7, v{V_LANE}')
        a.e(f'v_xor_b32 v{VT2}, v{VT2}, v{VT1}')
        a.e(f'v_lshlrev_b32 v{VN}, 10, v{VT0}')
        a.e(f'v_lshl_add_u32 v{VN}, v{VT2}, 4, v{VN}')
        a.e(f's_lshl_b32 s{S_T0}, s{S_CB}, 7')
        a.e(f'v_add_u32 v{VN}, s{S_T0}, v{VN}')
        for j in range(1, 4): a.e(f'v_add_u32 v{VN+j}, {hex(j*(8192-1024))}, v{VN}')
        a.e(f'v_lshrrev_b32 v{VT0}, 2, v{V_LANE}')
        a.e(f'v_bfe_u32 v{VT1}, v{VT0}, 2, 1')
        a.e(f'v_lshlrev_b32 v{VT1}, 1, v{VT1}')
        a.e(f'v_and_b32 v{VT2}, 3, v{V_LANE}')
        a.e(f'v_xor_b32 v{VT2}, v{VT2}, v{VT1}')
        a.e(f'v_lshlrev_b32 v{VT3}, 4, v{VT2}')
        a.e(f's_lshl_b32 s{S_T0}, s{S_CB2}, 6')
        a.e(f'v_add_u32 v{VT3}, s{S_T0}, v{VT3}')
        a.e(f'v_mul_u32_u24 v{VQ}, 3072, v{VT0}')
        a.e(f'v_add_u32 v{VQ}, v{VQ}, v{VT3}')
        for j in range(1, 4): a.e(f'v_add_u32 v{VQ+j}, {hex(j*(16*3072-1024))}, v{VQ}')
        a.e(f'v_lshrrev_b32 v{VT1}, 2, v{VT0}')
        a.e(f'v_lshlrev_b32 v{VT1}, 3, v{VT1}')
        a.e(f'v_and_b32 v{VT2}, 3, v{VT0}')
        a.e(f'v_add_u32 v{VT1}, v{VT1}, v{VT2}')
        a.e(f'v_mul_u32_u24 v{VT1}, 3072, v{VT1}')
        a.e(f'v_add_u32 v{VT1}, v{VT1}, v{VT3}')
        for p in range(4):
            off = (4 * (p & 1) + 32 * (p >> 1)) * 3072 - p * 1024
            a.e(f'v_add_u32 v{VQn+p}, {hex(off & 0xffffffff)}, v{VT1}')
        a.e(f's_mul_i32 s{S_T0}, s{S_CB2}, 224')
        M14 = (1 << 20) // 14 + 1
        a.e(f's_mov_b32 s{S_T1}, {hex(M14)}')
        for p in range(7):
            a.e(f'v_add_u32 v{VT0}, {64*p}, v{V_LANE}')
            a.e(f'v_mul_lo_u32 v{VT1}, v{VT0}, s{S_T1}')
            a.e(f'v_lshrrev_b32 v{VT1}, 20, v{VT1}')
            a.e(f'v_mul_u32_u24 v{VT2}, 14, v{VT1}')
            a.e(f'v_sub_u32 v{VT2}, v{VT0}, v{VT2}')
            a.e(f'v_mul_u32_u24 v{VW3+p}, 3584, v{VT1}')
            a.e(f'v_lshl_add_u32 v{VW3+p}, v{VT2}, 4, v{VW3+p}')
            a.e(f'v_add_u32 v{VW3+p}, s{S_T0}, v{VW3+p}')
            if p % 4: a.e(f'v_subrev_u32 v{VW3+p}, {(p%4)*1024}, v{VW3+p}')
        for u in range(448): assert (u * M14) >> 20 == u // 14

    def cs_part1():
        a.wait_vm('cs')
        a.e(f'v_bfe_u32 v{VT0}, v{V_LANE}, 2, 2')
        a.e(f'v_lshrrev_b32 v{VT1}, 4, v{V_LANE}')
        a.e(f'v_lshl_add_u32 v{VT0}, v{VT1}, 2, v{VT0}')
        a.e(f'v_lshlrev_b32 v{VT0}, 7, v{VT0}')
        a.e(f'v_and_b32 v{VT2}, 3, v{V_LANE}')
        a.e(f'v_lshl_add_u32 v{VT0}, v{VT2}, 3, v{VT0}')
        a.e(f'v_add_u32 v{VT0}, {hex(CSL)}, v{VT0}')
        for i in range(4): a.e(f'v_mov_b32 v{40+i}, 0x3f803f80')
        for j in range(4):
            for t in range(4):
                a.e(f'ds_read_b64_tr_b16 v[{64+4*t}:{65+4*t}], v{VT0} offset:{j*4096+t*32}')
                a.e(f'ds_read_b64_tr_b16 v[{66+4*t}:{67+4*t}], v{VT0} offset:{j*4096+t*32+2048}')
            a.e('s_waitcnt lgkmcnt(0)')
            for t in range(4):
                c = '0' if j == 0 else f'v[{44+4*t}:{47+4*t}]'
                a.e(f'v_mfma_f32_16x16x32_bf16 v[{44+4*t}:{47+4*t}], v[{64+4*t}:{67+4*t}], v[40:43], {c}')
        a.e(f's_mul_i32 s{S_T0}, s{94}, 15360')
        a.e(f's_lshl_b32 s{S_T1}, s{93}, 8')
        a.e(f's_add_u32 s{S_T0}, s{S_T0}, s{S_T1}')
        a.e(f's_add_u32 s{S_T0}, s{S_T0}, {hex(CSP_OFF)}')
        a.e(f'v_lshlrev_b32 v{VT1}, 4, v{VT1}')
        a.e('s_nop 7')
        set_exec(a, 0x00010001)
        for t in range(4):
            a.vmem(f'buffer_store_dwordx4 v[{44+4*t}:{47+4*t}], v{VT1}, {WS}, s{S_T0} offen offset:{64*t} sc1', 'csst')
        a.e('s_mov_b64 exec, -1')
        if opt.kv_atomic:
            zl = a.newlabel('ZK')
            a.e(f's_lshr_b32 s{S_T0}, s2, 3')
            a.e(f's_mul_i32 s{S_T0}, s{S_T0}, {KVREC}')
            a.e(f's_add_u32 s{S_T0}, s{S_T0}, {hex(KVA_OFF)}')
            a.e(f's_and_b32 s{S_T1}, s2, 0x87')
            a.e(f's_cmp_eq_u32 s{S_T1}, 0')
            a.e(f's_cselect_b32 s{S_T1}, 0, 0x80000000')
            for i in range(4): a.e(f'v_mov_b32 v{60+i}, 0')
            a.e(f'v_lshlrev_b32 v{VT0}, 4, v{V_LANE}')
            a.e(f'v_or_b32 v{VT0}, s{S_T1}, v{VT0}')
            for l_ in range(2):
                a.vmem(f'buffer_store_dwordx4 v[60:63], v{VT0}, {WS}, s{S_T0} offen sc1', 'csst')
                a.vmem(f'buffer_store_dwordx4 v[60:63], v{VT0}, {WS}, s{S_T0} offen offset:1024 sc1', 'csst')
                a.e('s_mov_b64 exec, 0xff')
                a.vmem(f'buffer_store_dwordx4 v[60:63], v{VT0}, {WS}, s{S_T0} offen offset:2048 sc1', 'csst')
                a.e('s_mov_b64 exec, -1')
                if l_ == 0: a.e(f's_add_u32 s{S_T0}, s{S_T0}, {16*KVREC}')
    def cs_part2():
        a.e(f's_lshl_b32 s{S_T0}, s2, 7')
        a.e(f's_add_u32 s{S_T0}, s{S_T0}, {hex(CSF_OFF)}')
        a.e(f'v_mov_b32 v{VT1}, s{S_T0}')
        a.e(f's_add_u32 s{S_T1}, s{S_B}, 8')
        a.e(f'v_mov_b32 v{VT0}, s{S_T1}')
        a.wait_vm('csst')
        a.e('s_mov_b64 exec, 1')
        a.vmem(f'buffer_store_dword v{VT0}, v{VT1}, {WS}, 0 offen sc1', 'csf')
        a.e('s_mov_b64 exec, -1')
    def cs_fill():
        L_ = a.newlabel('CPOLL'); D_ = a.newlabel('CPOLLD')
        a.e(f'v_min_u32 v{VT0}, 27, v{V_LANE}')
        a.e(f'v_lshrrev_b32 v{VT2}, 2, v{VT0}')
        a.e(f's_lshr_b32 s{S_T0}, s{S_CB2}, 1')
        a.e(f'v_lshlrev_b32 v{VT1}, 3, v{VT2}')
        a.e(f'v_add_u32 v{VT1}, s{S_T0}, v{VT1}')
        a.e(f's_add_u32 s{S_T0}, s{S_CB}, 24')
        a.e(f'v_mov_b32 v{VT3}, s{S_T0}')
        a.e(f'v_cmp_eq_u32 vcc, 3, v{VT2}')
        a.e('s_nop 1')
        a.e(f'v_cndmask_b32 v{VT1}, v{VT1}, v{VT3}, vcc')
        a.e(f's_mul_i32 s{S_T0}, s{S_CB2}, 112')
        a.e(f's_lshr_b32 s{S_T0}, s{S_T0}, 6')
        a.e(f's_add_u32 s{S_T0}, s{S_T0}, {32 - 4}')
        a.e(f'v_add_u32 v{VT3}, s{S_T0}, v{VT2}')
        a.e(f'v_min_u32 v{VT3}, 59, v{VT3}')
        a.e(f'v_cmp_lt_u32 vcc, 3, v{VT2}')
        a.e('s_nop 1')
        a.e(f'v_cndmask_b32 v{VT1}, v{VT1}, v{VT3}, vcc')
        a.e(f'v_and_b32 v{VT0}, 3, v{VT0}')
        a.e(f'v_lshl_add_u32 v{VT1}, v{VT1}, 2, v{VT0}')
        if opt.kv_atomic:
            a.e(f's_lshl_b32 s{S_T0}, s{S_CB2}, 3')
            a.e(f'v_mov_b32 v{VT3}, s{S_T0}')
            a.e(f'v_cmp_lt_u32 vcc, 27, v{V_LANE}')
            a.e('s_nop 1')
            a.e(f'v_cndmask_b32 v{VT1}, v{VT1}, v{VT3}, vcc')
        a.e(f'v_lshlrev_b32 v{VT1}, 7, v{VT1}')
        a.e(f's_mov_b32 s{S_T0}, {hex(CSF_OFF)}')
        a.e(f's_add_u32 s{S_T1}, s{S_B}, 8')
        a.e(f's_mov_b32 s{95}, {opt.spin}')
        a.label(L_)
        a.e(f'buffer_load_dword v40, v{VT1}, {WS}, s{S_T0} offen sc1')
        a.e('s_waitcnt vmcnt(0)')
        a.e(f'v_subrev_u32 v40, s{S_T1}, v40')
        a.e('v_cmp_gt_u32 vcc, 0x80, v40')
        a.e(f's_sub_u32 s{95}, s{95}, 1')
        a.e(f's_cbranch_scc1 {D_}')
        a.e('s_cmp_eq_u64 vcc, -1')
        a.e(f's_cbranch_scc0 {L_}')
        a.label(D_)
        a.vm = []
        def colof(dst, gofs):
            a.e(f'v_add_u32 v{VT0}, {gofs}, v{V_LANE}')
            a.e(f'v_lshlrev_b32 v{VT2}, 2, v{VT0}')
            a.e(f's_lshl_b32 s{S_T0}, s{S_CB2}, 5')
            a.e(f's_mul_i32 s{S_T1}, s{S_CB2}, 112')
            a.e(f's_add_u32 s{S_T1}, s{S_T1}, {2048 - 160}')
            a.e(f'v_add_u32 v{dst}, s{S_T1}, v{VT2}')
            for lim, addc, useb in [(40, 1536 - 96, 'cb'), (24, -64, 'hp'), (16, 1024 - 32, 'hp'), (8, 512, 'hp')]:
                if useb == 'cb':
                    a.e(f's_lshl_b32 s{S_T1}, s{S_CB}, 6')
                    a.e(f's_add_u32 s{S_T1}, s{S_T1}, {addc}')
                else:
                    a.e(f's_add_u32 s{S_T1}, s{S_T0}, {hex(addc & 0xffffffff)}')
                a.e(f'v_add_u32 v{VT3}, s{S_T1}, v{VT2}')
                a.e(f'v_cmp_gt_u32 vcc, {lim}, v{VT0}')
                a.e('s_nop 1')
                a.e(f'v_cndmask_b32 v{dst}, v{dst}, v{VT3}, vcc')
            a.e(f'v_lshlrev_b32 v{dst}, 2, v{dst}')
        colof(36, 0); colof(37, 64)
        a.e(f's_mov_b32 s{S_T0}, {hex(CSP_OFF)}')
        for kq in range(4):
            a.e(f'buffer_load_dwordx4 v[{40+4*kq}:{43+4*kq}], v36, {WS}, s{S_T0} offen sc1')
            a.e('s_mov_b64 exec, 0xf')
            a.e(f'buffer_load_dwordx4 v[{56+4*kq}:{59+4*kq}], v37, {WS}, s{S_T0} offen sc1')
            a.e('s_mov_b64 exec, -1')
            if kq < 3: a.e(f's_add_u32 s{S_T0}, s{S_T0}, 15360')
        a.e(f'v_lshlrev_b32 v{VT0}, 4, v{V_LANE}')
        a.e(f'v_add_u32 v{VT0}, {hex(CSC)}, v{VT0}')
        a.e('s_waitcnt vmcnt(0)')
        for b in (40, 56):
            for i in (0, 2):
                a.e(pk('add', b + i, vp(b + i), vp(b + 4 + i)))
                a.e(pk('add', b + 8 + i, vp(b + 8 + i), vp(b + 12 + i)))
                a.e(pk('add', b + i, vp(b + i), vp(b + 8 + i)))
        a.e(f'ds_write_b128 v{VT0}, v[40:43]')
        a.e('s_mov_b64 exec, 0xf')
        a.e(f'ds_write_b128 v{VT0}, v[56:59] offset:1024')
        a.e('s_mov_b64 exec, -1')
        a.e('s_waitcnt lgkmcnt(0)')

    if not opt.cs_late: cs_part1()
    chunks_of = {}
    for s in stream: chunks_of.setdefault((s.layer, s.phase), set()).add(s.chunk)
    nb = 0
    for ev in events:
        L, kind, p, ci = ev
        if kind == 'B':
            cur[0] = f'pre {L}.{p}.B{ci}'
            issue(0, must=(L, p, ci))
            cur[0] = f'{L}.{p}.B{ci}'
            if nb < 5: dstamp()
            a.wait_vm((L, p, ci))
            if nb == 0: hstamp(a, opt, 10)
            if nb == 1: hstamp(a, opt, 11)
            if nb < 5: dstamp()
            a.e('s_barrier')
            nb += 1
            if ci >= 2: released.add((L, p, ci - 2))
            if ci == 0:
                for (l2, p2), cs_ in chunks_of.items():
                    if p2 in NOE and (l2, PHASES.index(p2)) < (L, PHASES.index(p)):
                        for c in cs_: released.add((l2, p2, c))
            if opt.cs_late and nb <= 4:
                if nb == 1:
                    issue(16)
                    cs_part1()
                    nonce_setup()
                elif nb == 2:
                    issue(16)
                    cs_part2()
                    late_setup()
                elif nb == 3:
                    pass
                elif nb == 4:
                    cs_fill()
                    win[0] = opt.window
            elif nb == 1:
                issue(32)
                late_setup()
                cs_part2()
            elif nb == 3:
                cs_fill()
                win[0] = opt.window
            elif nb in (2, 4):
                pass
            else:
                issue(opt.caps.get(f'{p}.B{ci}', opt.caps.get(f'{p}.B*', 0)))
                park_policy(cur[0])
        elif kind == 'E':
            cur[0] = f'{L}.{p}.E'
            a.e('s_barrier')
            for c in chunks_of[(L, p)]: released.add((L, p, c))
            issue(opt.caps.get(f'{p}.E', 0))
            park_policy(cur[0])
        else:
            cur[0] = f'{L}.{p}'
            a.e('s_barrier')
            issue(opt.caps.get(p, 0))
            park_policy(cur[0])
    if opt.startdiag:
        a.e(f's_lshl_b32 s{S_T0}, s2, 8')
        a.e(f's_add_u32 s{S_T0}, s{S_T0}, {hex(TM_OFF + 128)}')
        for i in range(dg[0]):
            a.e(f'v_mov_b32 v99, {4*i}')
            a.e(f'buffer_store_dword v{100+i}, v99, {WS}, s{S_T0} offen')
    a.e('s_waitcnt vmcnt(0)')
    a.e('s_endpgm')


def gen_toucher(a, opt, events):
    a.c('--- A loader / toucher')
    if opt.prio_a: a.e(f's_setprio {opt.prio_a}')
    mats = {'WO': (S_PTR + 4, 512 * 512 * 2), 'W1': (S_PTR + 8, 512 * 512 * 2),
            'W2': (S_PTR + 10, 512 * 512 * 2), 'W3': (S_PTR + 12, 512 * 1792 * 2), 'W4': (S_PTR + 14, 1792 * 512 * 2)}
    srds = {}
    for i, (k, (p, size)) in enumerate(mats.items()):
        s = 40 + 4 * i
        a.e(f's_mov_b32 s{s}, s{p}'); a.e(f's_mov_b32 s{s+1}, s{p+1}')
        a.e(f's_mov_b32 s{s+2}, {hex(size)}'); a.e(f's_mov_b32 s{s+3}, 0x20000')
        srds[k] = s
    T0s, T1s, T2s, T3s, T4s, T5s = 33, 34, 35, 36, 37, 38
    THR, SPIN = 60, 61
    RA, P7T = 64, 68
    U0, U1, U2, U3, U4 = 76, 77, 78, 79, 80
    VAS, VAG, VFS, VFB, VFH, VAH = 3, 4, 5, 6, 7, 8
    X0, X1, X2, X3 = 24, 25, 26, 27
    X0W = 31
    e = a.e
    VXK = 40
    e(f'v_lshrrev_b32 v2, 4, v{V_LANE}')
    e(f'v_and_b32 v3, 15, v{V_LANE}')
    for k in range(4):
        e(f'v_add_u32 v{VXK+k}, {4*k}, v2'); e(f'v_xor_b32 v{VXK+k}, v{VXK+k}, v3'); e(f'v_lshlrev_b32 v{VXK+k}, 4, v{VXK+k}')
        e(f'v_lshl_add_u32 v{VXK+k}, v2, 10, v{VXK+k}')
    e(f's_lshl_b32 s33, s{S_G}, 8'); e(f's_lshl_b32 s34, s{S_RB2}, 7'); e('s_add_u32 s33, s33, s34'); e('s_lshl_b32 s82, s33, 10')
    e(f's_lshl_b32 s83, s{S_RB2}, 1'); e(f's_add_u32 s83, s83, s{S_CB2}'); e(f's_and_b32 s83, s83, {3 if opt.rot else 0}')
    e(f's_lshr_b32 s81, s{S_CB2}, 2'); e(f's_lshl_b32 s81, s81, {13 if opt.rot else 31}')
    if not opt.rot: e('s_mov_b32 s81, 0')
    def x_chunk(c, half=None):
        e(f's_xor_b32 s33, s83, {c}'); e('s_lshl_b32 s33, s33, 8'); e('s_add_u32 s33, s33, s82')
        if half == 1:
            e('s_add_u32 s34, s81, 16384'); e('s_and_b32 s34, s34, 0x7fff')
        else:
            e('s_mov_b32 s34, s81')
        n = 8 if half is None else 4
        e(f's_mov_b32 s36, {n}')
        lp = a.newlabel('XC'); a.label(lp)
        for k in range(4):
            e(f's_add_u32 m0, s34, {hex(AREG + (c & 1) * 32768)}')
            e('s_lshl_b32 s35, s34, 2'); e('s_add_u32 s35, s35, s33')
            e(f'buffer_load_dwordx4 v{VXK + k}, s[{S_X}:{S_X+3}], s35 offen lds')
            e('s_add_u32 s34, s34, 1024')
        e('s_and_b32 s34, s34, 0x7fff')
        e('s_sub_u32 s36, s36, 1'); e('s_cmp_lg_u32 s36, 0'); e(f's_cbranch_scc1 {lp}')
        a.vm += [('X', c)] * (4 * n)
        assert len(a.vm) <= 63
    def x_tile():
        e(f'v_lshrrev_b32 v2, 3, v{V_LANE}'); e('v_lshlrev_b32 v2, 10, v2')
        e(f'v_and_b32 v30, 7, v{V_LANE}'); e('v_lshl_add_u32 v2, v30, 4, v2')
        e(f's_lshl_b32 s33, s{S_G}, 8'); e(f's_lshl_b32 s34, s{S_RB}, 6'); e('s_add_u32 s33, s33, s34'); e('s_lshl_b32 s33, s33, 10')
        e(f's_lshl_b32 s34, s{S_CB}, 7'); e('s_add_u32 s33, s33, s34')
        for p_ in range(8):
            e(f's_mov_b32 m0, {hex(AREG + p_ * 1024)}')
            if p_: e('s_add_u32 s33, s33, 8192')
            else: e('s_nop 0')
            a.vmem(f'buffer_load_dwordx4 v2, s[{S_X}:{S_X+3}], s33 offen lds', 'x')
    if WARM0[0]:
        e('s_barrier')
        events = events[1:]
    hstamp(a, opt, 12)
    x_chunk(0); x_chunk(1, 0)
    hstamp(a, opt, 13)
    e(f'v_lshlrev_b32 v1, 7, v{V_LANE}')
    e(f'v_lshlrev_b32 v{X0}, 4, v{V_LANE}')
    e(f'v_lshlrev_b32 v{X0W}, 4, v{V_LANE}')
    e(f's_lshl_b32 s{T0s}, s{S_G}, 4'); e(f's_lshl_b32 s{T1s}, s{S_RB}, 2'); e(f's_add_u32 s{T0s}, s{T0s}, s{T1s}')
    e(f's_lshl_b32 s{T1s}, s{T0s}, 14'); e(f'v_add_u32 v{VAS}, s{T1s}, v{X0}')
    e(f's_mul_i32 s{T1s}, s{T0s}, 57344'); e(f'v_add_u32 v{VAG}, s{T1s}, v{X0}')
    rmask = 3 if opt.rot else 0
    for c in range(4):
        e(f's_and_b32 s{RA+c}, s{S_RB}, {rmask}'); e(f's_xor_b32 s{RA+c}, s{RA+c}, {c}'); e(f's_lshl_b32 s{RA+c}, s{RA+c}, 12')
    for p_ in range(8):
        e(f's_and_b32 s{P7T+p_}, s{S_RB}, {rmask}'); e(f's_lshl_b32 s{P7T+p_}, s{P7T+p_}, 1')
        e(f's_xor_b32 s{P7T+p_}, s{P7T+p_}, {p_}'); e(f's_mul_i32 s{P7T+p_}, s{P7T+p_}, 7168')
    e(f'v_and_b32 v{X1}, 15, v{V_LANE}')
    e(f'v_and_b32 v{X2}, 0x30, v{V_LANE}')
    e(f's_mul_i32 s{T3s}, s{S_G}, 18')
    e(f's_lshl_b32 s{T4s}, s{S_G}, 8')
    for c in range(4):
        e(f's_lshr_b32 s{T5s}, s{RA+c}, 12')
        e(f's_lshr_b32 s{U3}, s{T5s}, 1'); e(f's_add_u32 s{U3}, s{U3}, 1'); e(f's_sub_u32 s{U4}, 0, s{U3}')
        e(f's_bitcmp1_b32 s{T5s}, 0'); e(f's_cselect_b32 s{U3}, s{U3}, s{U4}')
        e(f's_lshl_b32 s{T2s}, s{S_RB}, 6'); e(f's_add_u32 s{T2s}, s{T2s}, s{U3}'); e(f's_add_u32 s{T2s}, s{T2s}, 16')
        for w in range(4):
            r = VAH + 4 * c + w
            e(f's_add_u32 s{T5s}, s{T2s}, {16 * w}')
            e(f'v_add_u32 v{r}, s{T5s}, v{X1}')
            e(f'v_lshrrev_b32 v{X3}, 4, v{r}'); e(f'v_add_u32 v{X3}, s{T3s}, v{X3}'); e(f'v_lshlrev_b32 v{X3}, 14, v{X3}')
            e(f'v_and_b32 v28, 15, v{r}'); e(f'v_add_u32 v28, v{X2}, v28'); e(f'v_lshl_add_u32 v{X3}, v28, 4, v{X3}')
            e(f'v_add_u32 v28, s{T4s}, v{r}'); e('v_subrev_u32 v28, 16, v28')
            e('v_cmp_gt_u32 vcc, 0x800, v28')
            e(f'v_mov_b32 v{r}, 0x80000000'); e('s_nop 0')
            e(f'v_cndmask_b32 v{r}, v{r}, v{X3}, vcc')
    e(f's_lshl_b32 s{T2s}, s{S_G}, 9'); e(f's_add_u32 s{T2s}, s{T2s}, {hex(LF_OFF)}')
    e(f'v_bfe_u32 v{X1}, v{V_LANE}, 3, 2'); e(f'v_lshlrev_b32 v{X1}, 7, v{X1}')
    e(f'v_and_b32 v{X2}, 7, v{V_LANE}'); e(f'v_lshl_add_u32 v{X1}, v{X2}, 2, v{X1}')
    e(f's_lshl_b32 s{T3s}, s{S_RB}, 5'); e(f's_add_u32 s{T3s}, s{T3s}, s{T2s}')
    e(f'v_add_u32 v{VFS}, s{T3s}, v{X1}')
    e(f's_and_b32 s{T3s}, s{S_RB}, 1'); e(f's_lshl_b32 s{T3s}, s{T3s}, 8'); e(f's_add_u32 s{T3s}, s{T3s}, s{T2s}')
    e(f's_lshr_b32 s{T4s}, s{S_RB}, 1'); e(f's_lshl_b32 s{T4s}, s{T4s}, 6'); e(f's_add_u32 s{T3s}, s{T3s}, s{T4s}')
    e(f'v_bfe_u32 v{X2}, v{V_LANE}, 4, 1'); e(f'v_lshlrev_b32 v{X2}, 7, v{X2}')
    e(f'v_and_b32 v{X3}, 15, v{V_LANE}'); e(f'v_lshl_add_u32 v{X2}, v{X3}, 2, v{X2}')
    e(f'v_add_u32 v{VFB}, s{T3s}, v{X2}')
    e(f's_lshl_b32 s{T3s}, s{S_R}, 2'); e(f's_add_u32 s{T3s}, s{T3s}, s{T2s}')
    e(f'v_and_b32 v{X2}, 3, v{V_LANE}'); e(f'v_lshlrev_b32 v{X2}, 7, v{X2}'); e(f'v_add_u32 v{X2}, s{T3s}, v{X2}')
    e(f'v_cmp_lt_u32 vcc, 31, v{V_LANE}'); e('s_nop 1')
    e(f'v_cndmask_b32 v{VFB}, v{VFB}, v{X2}, vcc')
    def build_fh(L):
        la = a.newlabel('FH'); lb = a.newlabel('FH')
        e(f's_lshl_b32 s{T2s}, s{S_G}, 9'); e(f's_add_u32 s{T2s}, s{T2s}, {hex(LF_OFF)}')
        e(f's_lshl_b32 s{T3s}, s{S_RB}, 5'); e(f's_add_u32 s{T3s}, s{T3s}, s{T2s}')
        e(f's_sub_u32 s{U1}, s{T3s}, 32'); e(f's_add_u32 s{U1}, s{U1}, 256'); e(f's_mov_b32 s{U3}, 128')
        e(f's_add_u32 s{U2}, s{T3s}, 32'); e(f's_mov_b32 s{U4}, 128')
        e(f's_lshl_b32 s{T4s}, s{S_G}, 8'); e(f's_add_u32 s{T4s}, s{T4s}, {hex(HF_OFF + L * 2048)}')
        e(f's_cmp_eq_u32 s{S_RB}, 0'); e(f's_cbranch_scc0 {la}')
        e(f's_mov_b32 s{U1}, s{T3s}')
        e(f's_cmp_eq_u32 s{S_G}, 0'); e(f's_cbranch_scc1 {la}')
        e(f's_mov_b32 s{U1}, s{T4s}'); e(f's_mov_b32 s{U3}, 0')
        a.label(la)
        e(f's_cmp_eq_u32 s{S_RB}, 3'); e(f's_cbranch_scc0 {lb}')
        e(f's_mov_b32 s{U2}, s{T3s}')
        e(f's_cmp_eq_u32 s{S_G}, 7'); e(f's_cbranch_scc1 {lb}')
        e(f's_add_u32 s{U2}, s{T4s}, 128'); e(f's_mov_b32 s{U4}, 0')
        a.label(lb)
        e(f'v_bfe_u32 v{X1}, v{V_LANE}, 3, 1'); e(f'v_and_b32 v{X2}, 7, v{V_LANE}'); e(f'v_lshlrev_b32 v{X2}, 2, v{X2}')
        for base_s, mul_s, sel in ((U1, U3, 2), (U2, U4, 3)):
            e(f'v_mul_u32_u24 v{X3}, s{mul_s}, v{X1}'); e(f'v_add_u32 v{X3}, v{X3}, v{X2}'); e(f'v_add_u32 v{X3}, s{base_s}, v{X3}')
            e(f'v_lshrrev_b32 v28, 4, v{V_LANE}'); e(f'v_cmp_eq_u32 vcc, {sel}, v28'); e('s_nop 1')
            e(f'v_cndmask_b32 v{VFH}, v{VFH if sel == 3 else VFS}, v{X3}, vcc')
    e('s_waitcnt lgkmcnt(0)')
    e(f's_mul_i32 s{S_B}, s{S_V}, 0x9e3779b1'); e(f's_add_u32 s{S_B}, s{S_B}, 0x7f4a7c15'); e(f's_and_b32 s{S_B}, s{S_B}, 0xffffff00')

    def poll(v, epoch):
        L_ = a.newlabel('AP'); D_ = a.newlabel('APD')
        e(f's_add_u32 s{THR}, s{S_B}, {8*epoch}'); e(f's_mov_b32 s{SPIN}, {opt.spin}')
        a.label(L_)
        e(f'buffer_load_dword v30, v{v}, {WS}, 0 offen sc1'); e('s_waitcnt vmcnt(0)')
        e(f'v_subrev_u32 v30, s{THR}, v30'); e('v_cmp_gt_u32 vcc, 0x80, v30')
        e(f's_sub_u32 s{SPIN}, s{SPIN}, 1'); e(f's_cbranch_scc1 {D_}')
        e('s_cmp_eq_u64 vcc, -1')
        if opt.poll_sleep:
            e(f's_cbranch_scc1 {D_}'); e(f's_sleep {opt.poll_sleep}'); e(f's_branch {L_}')
        else:
            e(f's_cbranch_scc0 {L_}')
        a.label(D_); a.vm = []
    def a_chunk(phase, c):
        for w in range(4):
            e(f's_mov_b32 m0, {hex(AREG + (c % 4) * 16384 + w * 4096)}')
            if phase == 'P7':
                last = None
                for k in range(4):
                    p_, i_ = divmod(4 * c + k, 7)
                    const = G_OFF + w * 57344 + (i_ - k) * 1024
                    if last != (p_, const):
                        e(f's_add_u32 s{T0s}, s{P7T+p_}, {hex(const & 0xffffffff)}'); last = (p_, const)
                    a.vmem(f'buffer_load_dwordx4 v{VAG}, {WS}, s{T0s} offen offset:{k*1024} sc1 lds', ('A', phase, c))
            else:
                if phase == 'P5':
                    va = VAH + 4 * c + w; e(f's_add_u32 s{T0s}, s{RA+c}, {hex(A0_OFF)}' if A0_OFF else f's_mov_b32 s{T0s}, s{RA+c}')
                elif phase == 'P3':
                    va = VAS; e(f's_add_u32 s{T0s}, s{RA+c}, s{U0}'); e(f's_add_u32 s{T0s}, s{T0s}, {hex(A0_OFF + w * 16384)}')
                else:
                    va = VAS; e(f's_add_u32 s{T0s}, s{RA+c}, {hex(A1_OFF + w * 16384)}')
                for k in range(4):
                    a.vmem(f'buffer_load_dwordx4 v{va}, {WS}, s{T0s} offen offset:{k*1024} sc1 lds', ('A', phase, c))
    e(f's_lshl_b32 s{U0}, s{S_G}, 1'); e(f's_add_u32 s{U0}, s{U0}, 1'); e(f's_lshl_b32 s{U0}, s{U0}, 14')

    dummy = [0]
    def wide(srd_s, soff_s):
        d = 64 + 4 * (dummy[0] % 40); dummy[0] += 1
        fl = 'sc1' if srd_s == WS else opt.touch_flags
        a.vmem(f'buffer_load_dwordx4 v[{d}:{d+3}], v{X0W}, {srd_s}, s{soff_s} offen {fl}', 'T')
    def mall_touch():
        for k in ['WO', 'W2', 'W4']:
            size = mats[k][1]; per = size // 256
            s = srds[k]
            e(f's_mul_i32 s{T0s}, s2, {per}')
            for i in range(per // 1024):
                if i: e(f's_add_u32 s{T0s}, s{T0s}, 1024')
                wide(f's[{s}:{s+3}]', T0s)
    def g_touch():
        e(f's_mul_i32 s{T0s}, s{S_G}, {16 * 57344}'); e(f's_mul_i32 s{T1s}, s{S_R}, 28672')
        e(f's_add_u32 s{T0s}, s{T0s}, s{T1s}'); e(f's_add_u32 s{T0s}, s{T0s}, {hex(G_OFF)}')
        for i in range(28):
            if i: e(f's_add_u32 s{T0s}, s{T0s}, 1024')
            wide(WS, T0s)
    def key(sx):
        k, p, c = sx.split(',')
        return (0, k, p, None if c == '-' else int(c))
    EPO = {'P3': 1, 'P4': 2, 'P5': 3, 'P7': 5}
    if opt.p7_self: del EPO['P7']
    nxt = 0
    for ev in events:
        L, kind, p, ci = ev
        if kind == 'B' and p in EPO:
            nch = NCH[p]
            if ci == 0:
                if p == 'P5': build_fh(L)
                poll({'P3': VFB, 'P4': VFS, 'P5': VFH, 'P7': VFB}[p], 1 + 6 * L + EPO[p])
                a_chunk(p, 0); a_chunk(p, 1); nxt = 2
            a.wait_vm(('A', p, ci))
            e('s_barrier')
            while nxt < nch and (nxt <= ci + 2 or nxt <= 3) and nxt <= ci + 2 + (1 if ci == 0 and False else 0):
                a_chunk(p, nxt); nxt += 1
        elif L == 0 and kind == 'B' and p == 'P1KV':
            a.wait_vm(('X', ci))
            if ci == 0: hstamp(a, opt, 14)
            if ci == 2: hstamp(a, opt, 15)
            e('s_barrier')
            if ci == 0: x_chunk(1, 1)
            if 1 <= ci <= 2: x_chunk(ci + 1)
            if ci == 3: x_tile()
        else:
            if ev == (0, 'E', 'P1KV', None): a.wait_vm('x')
            e('s_barrier')
        if opt.touch and opt.touch_at and ev == key(opt.touch_at): mall_touch()
        if opt.gtouch_at and ev == key(opt.gtouch_at) and not (opt.gtouch_parker and opt.park): g_touch()
    e('s_waitcnt vmcnt(0)')
    e('s_endpgm')


def gen_parker(a, opt, events, h):
    e = a.e
    a.c(f'--- parker {h}')
    plan = opt._plan
    W3S, W4S, CB6, CB7 = 40, 44, 64, 68
    QS = 48
    e(f's_mov_b32 s{QS}, s{S_PTR+2}'); e(f's_mov_b32 s{QS+1}, s{S_PTR+3}'); e(f's_mov_b32 s{QS+2}, {hex(512*1536*2)}'); e(f's_mov_b32 s{QS+3}, 0x20000')
    for s_, p_, size in ((W3S, S_PTR + 12, 512 * 1792 * 2), (W4S, S_PTR + 14, 1792 * 512 * 2)):
        e(f's_mov_b32 s{s_}, s{p_}'); e(f's_mov_b32 s{s_+1}, s{p_+1}'); e(f's_mov_b32 s{s_+2}, {hex(size)}'); e(f's_mov_b32 s{s_+3}, 0x20000')
    e(f'v_lshlrev_b32 v1, 4, v{V_LANE}')
    if WARM0[0]:
        e(f's_mul_i32 s33, s{S_R}, 49152')
        if h: e('s_add_u32 s33, s33, 24576')
        k_ = 0
        if h == 0:
            e(f's_lshl_b32 s34, s{S_G}, 18'); e(f's_lshl_b32 s35, s{S_R}, 13'); e('s_add_u32 s34, s34, s35')
            for i in range(8):
                a.vmem(f'buffer_load_dwordx4 v[{16+4*k_}:{19+4*k_}], v1, s[{S_X}:{S_X+3}], s34 offen', 'T'); k_ += 1
                e('s_add_u32 s34, s34, 1024')
        for i in range(24):
            a.vmem(f'buffer_load_dwordx4 v[{16+4*k_}:{19+4*k_}], v1, s[{QS}:{QS+3}], s33 offen', 'T'); k_ += 1
            e('s_add_u32 s33, s33, 1024')
    rm = 3 if opt.rot else 0
    for c in range(4):
        e(f's_lshl_b32 s{CB6+c}, s{S_RB2}, 1'); e(f's_and_b32 s{CB6+c}, s{CB6+c}, {rm}'); e(f's_xor_b32 s{CB6+c}, s{CB6+c}, {c}')
        e(f's_mul_i32 s{CB6+c}, s{CB6+c}, {128*3584}')
    for p_ in range(8):
        e(f's_and_b32 s{CB7+p_}, s{S_RB}, {rm}'); e(f's_lshl_b32 s{CB7+p_}, s{CB7+p_}, 1'); e(f's_xor_b32 s{CB7+p_}, s{CB7+p_}, {p_}')
        e(f's_mul_i32 s{CB7+p_}, s{CB7+p_}, {224*1024}')
    VN, VW, VL, X0, X1, X2 = 2, 4, 8, 11, 12, 13
    e(f'v_lshrrev_b32 v{X0}, 3, v{V_LANE}'); e(f'v_bfe_u32 v{X1}, v{X0}, 1, 1'); e(f'v_lshlrev_b32 v{X1}, 2, v{X1}')
    e(f'v_and_b32 v{X2}, 7, v{V_LANE}'); e(f'v_xor_b32 v{X2}, v{X2}, v{X1}')
    e(f'v_lshlrev_b32 v{VN}, 10, v{X0}'); e(f'v_lshl_add_u32 v{VN}, v{X2}, 4, v{VN}')
    e(f's_lshl_b32 s33, s{S_CB}, 7'); e(f'v_add_u32 v{VN}, s33, v{VN}'); e(f'v_add_u32 v{VN+1}, {hex(8192-1024)}, v{VN}')
    ps = [0, 1, 2, 3] if h == 0 else [4, 5, 6]
    M14 = (1 << 20) // 14 + 1
    e(f's_mul_i32 s33, s{S_CB2}, 224'); e(f's_mov_b32 s34, {hex(M14)}')
    for k, p_ in enumerate(ps):
        e(f'v_add_u32 v{X0}, {64*p_}, v{V_LANE}'); e(f'v_mul_lo_u32 v{X1}, v{X0}, s34'); e(f'v_lshrrev_b32 v{X1}, 20, v{X1}')
        e(f'v_mul_u32_u24 v{X2}, 14, v{X1}'); e(f'v_sub_u32 v{X2}, v{X0}, v{X2}')
        e(f'v_mul_u32_u24 v{VW+k}, 3584, v{X1}'); e(f'v_lshl_add_u32 v{VW+k}, v{X2}, 4, v{VW+k}'); e(f'v_add_u32 v{VW+k}, s33, v{VW+k}')
    e(f'v_lshlrev_b32 v{VL}, 4, v{V_LANE}'); e(f'v_add_u32 v{VL+1}, 0x10000, v{VL}'); e(f'v_add_u32 v{VL+2}, 0x20000, v{VL}')
    def wide(base_expr_emit, n):
        base_expr_emit()
        for i in range(n):
            if i: e('s_add_u32 s33, s33, 1024')
            a.vmem(f'buffer_load_dwordx4 v[{240+4*(i%4)}:{243+4*(i%4)}], v{VL}, {WS}, s33 offen sc1', 'T')
    def touch_a0():
        wide(lambda: (e(f's_mul_i32 s33, s{S_G}, {18*16384}'), e(f's_mul_i32 s34, s{S_R}, 9216'), e('s_add_u32 s33, s33, s34'), e(f's_add_u32 s33, s33, {hex(A0_OFF)}') if A0_OFF else None), 9)
    def touch_lin(off, per_group):
        wide(lambda: (e(f's_mul_i32 s33, s{S_G}, {per_group}'), e(f's_mul_i32 s34, s{S_R}, {per_group // 32}'), e('s_add_u32 s33, s33, s34'), e(f's_add_u32 s33, s33, {hex(off)}')), per_group // 32 // 1024)
    if WARM0[0]:
        a.wait_vm_all()
        e('s_barrier')
        events = events[1:]
    def tkey(sx):
        k, p, c = sx.split(',')
        return (0, k, p, None if c == '-' else int(c))
    slots = list(range(56))
    held = {}
    pending = set()
    def do(actions):
        for act, s_ in actions:
            if act == 'park':
                if s_.kind == 'W3':
                    c_, rr_ = divmod(s_.srow, 128)
                    e(f's_add_u32 s33, s{CB6+c_}, {hex(rr_*3584)}')
                    regs = []
                    for k, p_ in enumerate(ps):
                        sl = slots.pop(0); regs.append((sl, p_))
                        a.vmem(f'buffer_load_dwordx4 v[{16+4*sl}:{19+4*sl}], v{VW+k}, s[{W3S}:{W3S+3}], s33 offen', id(s_))
                else:
                    srow = s_.srow if h == 0 else s_.srow2
                    p_, rr_ = divmod(srow, 224)
                    e(f's_add_u32 s33, s{CB7+p_}, {hex(rr_*1024)}')
                    regs = []
                    for k in range(2):
                        sl = slots.pop(0); regs.append((sl, 2 * h + k))
                        a.vmem(f'buffer_load_dwordx4 v[{16+4*sl}:{19+4*sl}], v{VN+k}, s[{W4S}:{W4S+3}], s33 offen offset:{k*1024}', id(s_))
                held[id(s_)] = regs
            else:
                a.wait_vm(id(s_))
                for sl, p_ in held.pop(id(s_)):
                    ad = s_.addr + p_ * 1024
                    e(f'ds_write_b128 v{VL + (ad >> 16)}, v[{16+4*sl}:{19+4*sl}] offset:{ad & 0xffff}')
                    slots.append(sl)
                pending.add((s_.layer, s_.phase, s_.chunk))
    for ev in events:
        L, kind, p, ci = ev
        if kind == 'B':
            do(plan.get(f'pre {L}.{p}.B{ci}', []))
            if (L, p, ci) in pending:
                e('s_waitcnt lgkmcnt(0)'); pending.clear()
            e('s_barrier')
            acts = plan.get(f'{L}.{p}.B{ci}', [])
        elif kind == 'E':
            e('s_barrier'); acts = plan.get(f'{L}.{p}.E', [])
        else:
            e('s_barrier'); acts = plan.get(f'{L}.{p}', [])
        do([x for x in acts if x[0] == 'unpark'])
        do([x for x in acts if x[0] == 'park'])
        if opt.pretouch and h == 1 and ev == tkey(opt.a2touch_at): touch_lin(A2_OFF, 262144)
        if opt.gtouch_parker and opt.gtouch_at and ev == tkey(opt.gtouch_at):
            wide(lambda: (e(f's_mul_i32 s33, s{S_G}, {16*57344}'), e(f's_mul_i32 s34, s{S_R}, 28672'), e('s_add_u32 s33, s33, s34'),
                          e(f's_add_u32 s33, s33, {hex(G_OFF + h * 14336)}')), 14)
        if opt.pretouch and ev == tkey(opt.a01touch_at):
            if h == 0:
                touch_a0(); touch_lin(ST_OFF, 32768)
            else:
                touch_lin(A1_OFF, 262144)
    e('s_waitcnt vmcnt(0) lgkmcnt(0)')
    e('s_endpgm')


def generate(opt):
    ATOMIC[0] = opt.kv_atomic
    if opt.dbgout >= 0: opt.phi_clamp = 0
    WARM0[0] = 1 if (opt.warm0 and opt.park) else 0
    events = build_events(opt.stop)
    a = Asm(); a.opt = opt
    hdr = open(os.path.join(os.path.dirname(os.path.abspath(__file__)), 'header.txt')).read()
    out = [hdr.rstrip('\n')]
    out.append(f'; @launch grid=(256,1,1) block=({64*(8 if opt.park else 6)},1,1) lds={LDS_TOTAL}')
    out += ['.amdgcn_target "amdgcn-amd-amdhsa--gfx950"', '.text', f'.globl {KNAME}', '.p2align 8',
            f'.type {KNAME},@function', f'{KNAME}:']
    a.e('s_cmp_ge_u32 s2, 256')
    a.e('s_cbranch_scc1 L_EXIT')
    if opt.startdiag: a.e('s_memtime s[100:101]')
    if opt.dbgout >= 0 and opt.fine: a.e('s_memtime s[96:97]')
    if opt.wall:
        a.e('s_memrealtime s[18:19]') if False else None
    a.e(f's_load_dwordx16 s[{S_PTR}:{S_PTR+15}], s[0:1], 0')
    a.e(f's_load_dwordx4 s[{S_PTR+16}:{S_PTR+19}], s[0:1], 64')
    a.e(f's_load_dwordx2 s[{S_PTR+20}:{S_PTR+21}], s[0:1], 80')
    a.e('v_lshrrev_b32 v1, 6, v0')
    a.e('s_nop 0')
    if opt.prefetch_code:
        a.e('s_getpc_b64 s[34:35]')
        a.label('L_PC')
        a.e(f's_sub_u32 s34, s34, (L_PC - {KNAME})')
        a.e('s_subb_u32 s35, s35, 0')
        a.e('s_lshr_b32 s36, s2, 3')
        a.e('s_mul_i32 s36, s36, 2560')
        a.e('v_lshlrev_b32 v2, 7, v0')
        a.e('v_add_u32 v2, s36, v2')
        a.e(f's_mov_b32 s36, (L_CODE_END - {KNAME} - 4)')
        a.e('v_min_u32 v2, s36, v2')
        a.e('v_and_b32 v2, -4, v2')
        a.e('v_cmp_gt_u32 vcc, 20, v0')
        a.e('s_and_saveexec_b64 s[36:37], vcc')
        a.e('s_cbranch_execz L_NOPF')
        a.e('global_load_dword v255, v2, s[34:35]')
        a.label('L_NOPF')
        a.e('s_mov_b64 exec, s[36:37]')
    a.e(f'v_readfirstlane_b32 s{S_W}, v1')
    a.e(f'v_and_b32 v{V_LANE}, 63, v0')
    a.e(f's_getreg_b32 s{S_XCC}, hwreg(HW_REG_XCC_ID)')
    a.e(f's_and_b32 s{S_XCC}, s{S_XCC}, 7')
    a.e(f's_and_b32 s{S_G}, s2, 7')
    a.e(f's_lshr_b32 s{S_R}, s2, 3')
    a.e(f's_lshr_b32 s{S_RB}, s{S_R}, 3')
    a.e(f's_and_b32 s{S_CB}, s{S_R}, 7')
    a.e(f's_lshr_b32 s{S_RB2}, s{S_R}, 4')
    a.e(f's_and_b32 s{S_CB2}, s{S_R}, 15')
    a.e('s_waitcnt lgkmcnt(0)')
    if opt.ws_base:
        a.e(f's_add_u32 s{S_PTR+20}, s{S_PTR+20}, {hex(opt.ws_base)}')
        a.e(f's_addc_u32 s{S_PTR+21}, s{S_PTR+21}, 0')
    a.e(f's_add_u32 s34, s{S_PTR+20}, {hex(NONCE_OFF)}')
    a.e(f's_addc_u32 s35, s{S_PTR+21}, 0')
    a.e(f's_load_dword s{S_V}, s[34:35], 0')
    def srd(s, p, size):
        a.e(f's_mov_b32 s{s}, s{p}'); a.e(f's_mov_b32 s{s+1}, s{p+1}')
        a.e(f's_mov_b32 s{s+2}, {hex(size)}'); a.e(f's_mov_b32 s{s+3}, 0x20000')
    if opt.dbgout >= 0:
        a.e(f's_mov_b32 s86, s{S_PTR+18}'); a.e(f's_mov_b32 s87, s{S_PTR+19}')
    srd(S_WS, S_PTR + 20, WS_USED)
    srd(S_X, S_PTR + 0, 2048 * 512 * 2)
    srd(S_OUT, S_PTR + 16, 2048 * 512 * 2)
    a.e(f's_cmp_lt_u32 s{S_W}, 4')
    a.e('s_cbranch_scc1 L_COMPUTE')
    if opt.park:
        for wv in (6, 7):
            a.e(f's_cmp_eq_u32 s{S_W}, {wv}')
            a.e(f's_cbranch_scc0 L_NOTP{wv}')
            a.e('s_getpc_b64 s[34:35]')
            a.label(f'L_PCP{wv}')
            a.e(f's_add_u32 s34, s34, (L_PARKER{wv} - L_PCP{wv})')
            a.e('s_addc_u32 s35, s35, 0')
            a.e('s_setpc_b64 s[34:35]')
            a.label(f'L_NOTP{wv}')
    a.e(f's_cmp_eq_u32 s{S_W}, 5')
    a.e('s_cbranch_scc0 L_GOLOADER')
    a.e('s_getpc_b64 s[34:35]')
    a.label('L_PC3')
    a.e('s_add_u32 s34, s34, (L_TOUCHER - L_PC3)')
    a.e('s_addc_u32 s35, s35, 0')
    a.e('s_setpc_b64 s[34:35]')
    a.label('L_GOLOADER')
    a.e('s_getpc_b64 s[34:35]')
    a.label('L_PC2')
    a.e('s_add_u32 s34, s34, (L_LOADER - L_PC2)')
    a.e('s_addc_u32 s35, s35, 0')
    a.e('s_setpc_b64 s[34:35]')
    a.label('L_EXIT')
    a.e('s_endpgm')
    a.label('L_COMPUTE')
    a.vm = []
    if opt.stop is not None and opt.stop[0] == 0: cev = events
    else: cev = [e for e in build_events(None) if e[0] == 0]
    rest = gen_compute(a, opt, cev)
    assert not rest, rest
    a.label('L_LOADER')
    a.vm = []
    a.fstamp = lambda p: None
    gen_loader(a, opt, events)
    a.label('L_TOUCHER')
    a.vm = []
    gen_toucher(a, opt, events)
    if opt.park:
        for wv in (6, 7):
            a.label(f'L_PARKER{wv}')
            a.vm = []
            gen_parker(a, opt, events, wv - 6)
    a.label('L_CODE_END')
    out.append(a.text())
    out += ['.section .rodata,"a"', '.p2align 6', f'.amdhsa_kernel {KNAME}',
            '  .amdhsa_next_free_vgpr 256', '  .amdhsa_next_free_sgpr 102', '  .amdhsa_accum_offset 256',
            '  .amdhsa_group_segment_fixed_size 0', '  .amdhsa_kernarg_size 88', '  .amdhsa_user_sgpr_count 2',
            '  .amdhsa_user_sgpr_kernarg_segment_ptr 1', '  .amdhsa_system_sgpr_workgroup_id_x 1', '.end_amdhsa_kernel']
    return '\n'.join(out) + '\n'


if __name__ == '__main__':
    import argparse
    ap = argparse.ArgumentParser()
    ap.add_argument('-o', default='interleave_layers__linear_attn_block__mixer_s_mlp__prompt.s')
    ap.add_argument('--stop', default=None)
    ap.add_argument('--timing', action='store_true')
    ap.add_argument('--safe', action='store_true')
    ap.add_argument('--set', action='append', default=[])
    ap.add_argument('--fine', default=None)
    args = ap.parse_args()
    opt = Opt()
    if args.stop:
        l, p = args.stop.split(','); opt.stop = (int(l), p)
    opt.timing = args.timing; opt.force_safe = args.safe; opt.fine = args.fine
    opt.caps = dict(Opt.caps); opt.park_w3 = dict(Opt.park_w3); opt.park_caps = dict(Opt.park_caps)
    for kv in args.set:
        k, v = kv.split('=')
        if k.startswith('pk3:'): opt.park_w3[k[4:]] = int(v)
        elif k.startswith('pk4:'): opt.park_caps[k[4:]] = int(v)
        elif '.' in k or k in ('X1', 'X2'): opt.caps[k] = int(v)
        else:
            try: setattr(opt, k, int(v))
            except ValueError: setattr(opt, k, v.replace(':', ','))
    open(args.o, 'w').write(generate(opt))
    print('written', args.o)
    if os.environ.get('SCHED'):
        import itertools
        for k, g in itertools.groupby(opt._log, key=lambda x: x[0]):
            g = list(g); d = {}
            for x in g: d[(x[1], x[2], x[3])] = d.get((x[1], x[2], x[3]), 0) + 1
            print(k, ' '.join(f'{a_}.{b_}.c{c_}x{n_}' for (a_, b_, c_), n_ in d.items()), 'FORCED' if any(x[4] for x in g) else '')
```

```python
import sys, os, struct

KNAME = 'interleave_layers__linear_attn_block__mixer_s_mlp__prompt_kernel'

class Opt:
    stop = None
    timing = False
    fine = None
    force_safe = False
    window = 40
    window0 = 60
    caps = {'P1KV.E': 64, 'P1Q.B0': 16, 'P1Q.B1': 16, 'P1Q.E': 32,
            'P3.B0': 0, 'P3.B1': 32, 'P3.B2': 16, 'P3.B3': 16,
            'P4.B1': 32, 'P4.B2': 16, 'P4.B3': 16,
            'P5.B1': 35, 'P5.B2': 14, 'P5.B3': 21,
            'P6.B0': 28, 'P6.B1': 16, 'P6.B2': 16, 'P6.B3': 16, 'P6.E': 64,
            'P7.B*': 16, 'P7.E': 64}
    cap0 = 0
    touch = True
    dbg_w_same = 0
    w_nt = 0
    g_cold = 0
    touch_at = 'B,P1Q,0'
    rot = 1
    out_lds = 1
    prio_c = 0
    prio_a = 0
    prio_l = 0
    phi_clamp = 1
    warm0 = 0
    cs_late = 0
    poll_sleep = 0
    dbgout = -1
    dbgwg = 100
    pretouch = 1
    a2touch_at = 'B,P6,3'
    a01touch_at = 'B,P1KV,2'
    gtouch_parker = 1
    park = 1
    park_w3 = {'P1KV.E': 2, 'X1': 2, 'P1Q.E': 8}
    park_caps = {'P6.B1': 0, 'P6.B2': 0, 'P6.B3': 0, 'P6.E': 0}
    unpark_max = 6
    kv_atomic = 1
    wall = 0
    p7_self = 1
    dbg_skip = ''
    ws_base = 0
    late_a = 0
    kvflag_at = 5
    up3 = 1
    startdiag = 0
    gtouch_at = 'B,P5,2'
    dbg_a_same = 0
    touch_flags = ''
    spin = 1 << 17
    prefetch_code = True
    D_kv = 4
    D_p6 = 4

MB = 1 << 20
A0_OFF = 0
A1_OFF = 0x280000
A2_OFF = 0x480000
G_OFF = 0x680000
ST_OFF = 0xD80000
KVP_OFF = 0xDC0000
KVP_L = 0x88000
KVA_OFF = 0xED0000
LSTRIDE = 0x780000
FL_OFF = 0xF00000
LF_OFF = FL_OFF
KVF_OFF = FL_OFF + 4096
HF_OFF = FL_OFF + 8192
XID_OFF = FL_OFF + 29696
NONCE_OFF = FL_OFF + 30720
TM_OFF = FL_OFF + 32768
CSP_OFF = FL_OFF + 32768 + 65536
CSF_OFF = CSP_OFF + 65536
WS_USED = CSF_OFF + 32768
KVREC = 2176

LDS_TOTAL = 163840
AREG = 0
SCR = 49152
CSL = None
WRING = 65536
RING = 93952
PHI = 53248
CSL = WRING + 28672
CSC = WRING + RING
assert CSC + 1088 <= LDS_TOTAL

EPS = 1e-5

def f2u(x):
    return struct.unpack('<I', struct.pack('<f', x))[0]

class Asm:
    def __init__(self):
        self.lines = []; self.nlabel = 0; self.vm = []
        self.fstamp = lambda p: None
    def e(self, s): self.lines.append('  ' + s)
    def c(self, s): self.lines.append('  ; ' + s)
    def label(self, name): self.lines.append(name + ':')
    def newlabel(self, base='L'):
        self.nlabel += 1
        return f'{base}_{self.nlabel}'
    def vmem(self, s, tag=None):
        self.e(s); self.vm.append(tag)
    def count_vm(self, tag):
        if tag not in self.vm: return None
        idx = max(i for i, t in enumerate(self.vm) if t == tag)
        n = len(self.vm) - 1 - idx
        assert n <= 63, n
        self.vm = self.vm[idx + 1:]
        return n
    def wait_vm(self, tag):
        n = self.count_vm(tag)
        if n is not None: self.e(f's_waitcnt vmcnt({n})')
    def wait_vm_all(self):
        self.e('s_waitcnt vmcnt(0)'); self.vm = []
    def text(self): return '\n'.join(self.lines)

def set_exec(a, lo, hi=None):
    a.e(f's_mov_b32 exec_lo, {hex(lo)}')
    a.e(f's_mov_b32 exec_hi, {hex(lo if hi is None else hi)}')

S_V = 3
S_WS = 4; S_X = 8; S_OUT = 12; S_PA = 16
S_G, S_R, S_W, S_RB, S_CB, S_RB2, S_CB2 = 20, 21, 22, 23, 24, 25, 26
S_MODE, S_L, S_LOFF, S_EP, S_B, S_XCC = 27, 28, 29, 30, 31, 32
S_T0, S_T1, S_T2, S_T3, S_T4, S_T5 = 33, 34, 35, 36, 37, 38
S_SPIN, S_THR = 39, 40
S_AOFF, S_AOFF2, S_ASTR = 41, 42, 43
S_C1, S_C2, S_ONE2 = 44, 46, 48
S_LOG2E, S_EPS6 = 50, 51
S_W4K = 52
S_RH, S_CH = 53, 54
S_U0, S_U1, S_U2, S_U3, S_U4 = 55, 56, 57, 58, 59
S_COLD = 62
S_GH = 63
S_RA = 86
S_RK = 90
S_P7 = 94
S_ROTK = 45
S_L2E2, S_E62 = 88, 86
S_PTR = 64
S_WQKV, S_WO, S_W1, S_W2, S_W3, S_W4 = 40, 44, 48, 52, 56, 60
S_CSRD = 88

V_LANE = 0
V_AS, V_AB, V_AG, V_P1 = 1, 2, 3, 4
V_AH = 5
V_STS, V_STB, V_STST, V_XRM, V_TST = 9, 10, 11, 12, 13
V_FSB, V_FBS, V_FSS, V_FH, V_FOWN, V_FKV = 14, 15, 16, 17, 18, 19
V_T128, V_T64, V_T224, V_TN, V_TA = 20, 21, 22, 23, 24
V_T0, V_T1, V_T2 = 25, 26, 27
V_TB = 28
V_RES = 32
V_MEAN, V_RS = 48, 49
V_X = 50
V_PQ = 56
V_ACC = 64
V_A = 128

PHASES = ['P1KV', 'P1Q', 'P3', 'P4', 'P5', 'P6', 'P7']
NCH = {'P1KV': 4, 'P1Q': 2, 'P3': 4, 'P4': 4, 'P5': 4, 'P6': 4, 'P7': 14}

ATOMIC = [1]
WARM0 = [1]
NOE = ('P3', 'P4', 'P5')

class Slab:
    def __init__(self, layer, phase, chunk, kind, size, srow, npieces, srow2=None):
        self.layer, self.phase, self.chunk, self.kind = layer, phase, chunk, kind
        self.size, self.srow, self.npieces, self.srow2 = size, srow, npieces, srow2
        self.addr = None

def w4_tile_seq():
    seq = []
    for c in range(8):
        for i in [0, 1, 2, 3, 4, 5, 7, 8, 9, 10, 11, 12, 6, 13]:
            seq.append(14 * c + i)
    return seq

def build_slabs(layer):
    ph = {}
    def simple(phase, kind, nchunk, per, size, rows, np_):
        ph[phase] = [[Slab(layer, phase, c, kind, size, (c * per + j) * rows, np_) for j in range(per)] for c in range(nchunk)]
    simple('P1KV', 'KV', 4, 4, 4096, 32, 4)
    simple('P1Q', 'Q', 2, 4, 4096, 64, 4)
    simple('P3', 'WO', 4, 4, 4096, 32, 4)
    simple('P4', 'W1', 4, 4, 4096, 32, 4)
    simple('P5', 'W2', 4, 4, 4096, 32, 4)
    simple('P6', 'W3', 4, 4, 7168, 32, 7)
    seq = w4_tile_seq()
    ph['P7'] = [[Slab(layer, 'P7', c, 'W4', 4096, seq[2 * (c * 4 + j)] * 16, 4, srow2=seq[2 * (c * 4 + j) + 1] * 16)
                 for j in range(4)] for c in range(14)]
    pos = PHI
    for p in PHASES:
        for ch in ph[p]:
            for s in ch:
                if pos + s.size > RING: pos = 0
                s.addr = WRING + pos
                pos += s.size
    assert pos == PHI, pos
    return ph

def build_events(stop):
    ev = [(0, 'X', 'W0', None)] if WARM0[0] else []
    for L in range(2):
        for p in PHASES:
            for c in range(NCH[p]): ev.append((L, 'B', p, c))
            if p not in NOE: ev.append((L, 'E', p, None))
            if p == 'P1KV': ev.append((L, 'X', 'X1', None))
            if p == 'P1Q' and not ATOMIC[0]: ev.append((L, 'X', 'X2', None))
            if stop == (L, p): return ev
    return ev

WS = f's[{S_WS}:{S_WS+3}]'

def thr_value(a, dst, epoch, xcc=False):
    if isinstance(epoch, int):
        a.e(f's_add_u32 s{dst}, s{S_B}, {8*epoch}')
    else:
        a.e(f's_lshl_b32 s{dst}, {epoch}, 3')
        a.e(f's_add_u32 s{dst}, s{dst}, s{S_B}')
    if xcc: a.e(f's_add_u32 s{dst}, s{dst}, s{S_XCC}')

def emit_poll(a, vaddr, epoch, soff='0', opt=Opt, x4=False, tbase=None):
    L = a.newlabel('POLL'); D = a.newlabel('POLLD')
    thr_value(a, S_THR, epoch)
    a.e(f's_mov_b32 s{S_SPIN}, {opt.spin}')
    a.label(L)
    if x4:
        T = tbase
        a.e(f'buffer_load_dwordx4 v[{T}:{T+3}], v{vaddr}, {WS}, {soff} offen sc1')
        a.e('s_waitcnt vmcnt(0)')
        for i in range(4): a.e(f'v_subrev_u32 v{T+i}, s{S_THR}, v{T+i}')
        a.e(f'v_max_u32 v{T}, v{T}, v{T+1}')
        a.e(f'v_max_u32 v{T+2}, v{T+2}, v{T+3}')
        a.e(f'v_max_u32 v{V_T0}, v{T}, v{T+2}')
    else:
        a.e(f'buffer_load_dword v{V_T2}, v{vaddr}, {WS}, {soff} offen sc1')
        a.e('s_waitcnt vmcnt(0)')
        a.e(f'v_subrev_u32 v{V_T0}, s{S_THR}, v{V_T2}')
    a.vm = []
    a.e(f'v_cmp_gt_u32 vcc, 0x80, v{V_T0}')
    a.e(f's_sub_u32 s{S_SPIN}, s{S_SPIN}, 1')
    a.e(f's_cbranch_scc1 {D}')
    a.e('s_cmp_eq_u64 vcc, -1')
    if opt.poll_sleep:
        a.e(f's_cbranch_scc1 {D}')
        a.e(f's_sleep {opt.poll_sleep}')
        a.e(f's_branch {L}')
    else:
        a.e(f's_cbranch_scc0 {L}')
    a.label(D)

def emit_mode_stores(a, stores, cold=False):
    F = a.newlabel('STF'); D = a.newlabel('STD')
    if getattr(a, 'opt', None) is not None and a.opt.pretouch and a.opt.park: cold = False
    a.e(f's_cmp_eq_u32 s{S_COLD if cold else S_MODE}, 0')
    a.e(f's_cbranch_scc1 {F}')
    for s in stores: a.e(s + ' sc1')
    a.e(f's_branch {D}')
    a.label(F)
    for s in stores: a.e(s)
    a.label(D)
    for s in stores: a.vm.append('st')

def emit_signal(a, epoch):
    thr_value(a, S_THR, epoch, xcc=True)
    a.e(f'v_mov_b32 v{V_T0}, s{S_THR}')
    a.wait_vm_all()
    a.e('s_mov_b64 exec, 1')
    emit_mode_stores(a, [f'buffer_store_dword v{V_T0}, v{V_FOWN}, {WS}, 0 offen'])
    a.e('s_mov_b64 exec, -1')

def emit_xreduce(a, regs, tmp, over16=True):
    for r, t in zip(regs, tmp): a.e(f'v_mov_b32 v{t}, v{r}')
    a.e('s_nop 1')
    for r, t in zip(regs, tmp): a.e(f'v_permlane32_swap_b32 v{r}, v{t}')
    a.e('s_nop 0')
    for r, t in zip(regs, tmp): a.e(f'v_add_f32 v{r}, v{r}, v{t}')
    if over16:
        for r, t in zip(regs, tmp): a.e(f'v_mov_b32 v{t}, v{r}')
        a.e('s_nop 1')
        for r, t in zip(regs, tmp): a.e(f'v_permlane16_swap_b32 v{r}, v{t}')
        a.e('s_nop 0')
        for r, t in zip(regs, tmp): a.e(f'v_add_f32 v{r}, v{r}, v{t}')

def pk(op, d, x, y, z=None, mods=''):
    s = f'v_pk_{op}_f32 v[{d}:{d+1}], {x}, {y}'
    if z is not None: s += f', {z}'
    return s + mods
def vp(r): return f'v[{r}:{r+1}]'

def emit_stats_partial32(a, vals, t0, st_soff, cold=False):
    s, q = t0, t0 + 2
    a.e(pk('add', s, vp(vals), vp(vals + 2)))
    a.e(pk('mul', q, vp(vals), vp(vals)))
    a.e(pk('fma', q, vp(vals + 2), vp(vals + 2), vp(q)))
    for i in range(4, 16, 2):
        a.e(pk('add', s, vp(s), vp(vals + i)))
        a.e(pk('fma', q, vp(vals + i), vp(vals + i), vp(q)))
    a.e(f'v_add_f32 v{t0}, v{s}, v{s+1}')
    a.e(f'v_add_f32 v{t0+1}, v{q}, v{q+1}')
    emit_xreduce(a, [t0, t0 + 1], [t0 + 4, t0 + 5], over16=False)
    set_exec(a, 0xffffffff, 0)
    emit_mode_stores(a, [f'buffer_store_dwordx2 v[{t0}:{t0+1}], v{V_STST}, {WS}, {st_soff} offen'], cold=cold)
    a.e('s_mov_b64 exec, -1')

def emit_stats_from_sums(a, s, ss, out_a, out_b, tmp, double=False, keep=None):
    mean, var = s, ss
    a.e(f'v_mul_f32 v{mean}, {hex(f2u(1.0/512))}, v{s}')
    a.e(f'v_mul_f32 v{var}, {hex(f2u(1.0/512))}, v{ss}')
    a.e(f'v_fma_f32 v{var}, -v{mean}, v{mean}, v{var}')
    a.e(f'v_max_f32 v{var}, 0, v{var}')
    a.e(f'v_add_f32 v{tmp}, {hex(f2u(EPS))}, v{var}')
    a.e(f'v_rsq_f32 v{tmp}, v{tmp}')
    a.e('s_nop 0')
    if double:
        a.e(f'v_mul_f32 v{tmp+1}, v{tmp}, v{tmp}')
        a.e(f'v_mul_f32 v{tmp+1}, v{tmp+1}, v{var}')
        a.e(f'v_add_f32 v{tmp+1}, {hex(f2u(EPS))}, v{tmp+1}')
        a.e(f'v_rsq_f32 v{tmp+1}, v{tmp+1}')
        a.e('s_nop 0')
        a.e(f'v_mul_f32 v{out_a}, v{tmp}, v{tmp+1}')
    else:
        a.e(f'v_mov_b32 v{out_a}, v{tmp}')
    if keep:
        a.e(f'v_mov_b32 v{keep[0]}, v{mean}')
        a.e(f'v_mov_b32 v{keep[1]}, v{tmp}')
    a.e(f'v_mul_f32 v{out_b}, v{out_a}, v{mean}')
    a.e(f'v_sub_f32 v{out_b}, 0, v{out_b}')

def emit_sum_partials(a, raw, n):
    k = n
    step = 2
    regs = [raw + i for i in range(0, n, 2)]
    while len(regs) > 1:
        nxt = []
        for i in range(0, len(regs), 2):
            a.e(pk('add', regs[i], vp(regs[i]), vp(regs[i + 1])))
            nxt.append(regs[i])
        regs = nxt

def emit_lnfold(a, acc, cs, av, bv, n):
    for i in range(0, n, 2):
        a.e(pk('mul', acc + i, vp(acc + i), vp(av), mods=' op_sel_hi:[1,0]'))
    for i in range(0, n, 2):
        a.e(pk('fma', acc + i, vp(cs + i), vp(bv), vp(acc + i), mods=' op_sel_hi:[1,0,1]'))

def emit_gelu(a, x, n, tmp, c1reg):
    blk = 16
    a.e(f'v_mov_b32 v{c1reg}, s{S_C1}')
    for b0 in range(0, n, blk):
        m = min(blk, n - b0); t = tmp
        for i in range(0, m, 2): a.e(pk('mul', t + i, vp(x + b0 + i), vp(x + b0 + i)))
        for i in range(0, m, 2): a.e(pk('fma', t + i, vp(t + i), f's[{S_C2}:{S_C2+1}]', vp(c1reg), mods=' op_sel_hi:[1,1,0]'))
        for i in range(0, m, 2): a.e(pk('mul', t + i, vp(t + i), vp(x + b0 + i)))
        for i in range(m): a.e(f'v_exp_f32 v{t+i}, v{t+i}')
        for i in range(0, m, 2): a.e(pk('add', t + i, vp(t + i), f's[{S_ONE2}:{S_ONE2+1}]'))
        for i in range(m): a.e(f'v_rcp_f32 v{t+i}, v{t+i}')
        for i in range(0, m, 2): a.e(pk('mul', x + b0 + i, vp(x + b0 + i), vp(t + i)))

def emit_phi(a, regs, tmp):
    if a.opt.phi_clamp and all(regs[i + 1] == regs[i] + 1 and regs[i] % 2 == 0 for i in range(0, len(regs), 2)) and tmp % 2 == 0:
        for i in range(0, len(regs), 2): a.e(pk('mul', tmp + i, vp(regs[i]), f's[{S_L2E2}:{S_L2E2+1}]'))
        for i, r in enumerate(regs): a.e(f'v_exp_f32_e64 v{tmp+i}, v{tmp+i} clamp')
        for i, r in enumerate(regs): a.e(f'v_max_f32 v{r}, 0, v{r}')
        for i in range(0, len(regs), 2): a.e(pk('add', tmp + i, vp(tmp + i), f's[{S_E62}:{S_E62+1}]'))
        for i in range(0, len(regs), 2): a.e(pk('add', regs[i], vp(regs[i]), vp(tmp + i)))
        return
    for i, r in enumerate(regs): a.e(f'v_min_f32 v{tmp+i}, 0, v{r}')
    for i, r in enumerate(regs): a.e(f'v_mul_f32 v{tmp+i}, s{S_LOG2E}, v{tmp+i}')
    for i, r in enumerate(regs): a.e(f'v_exp_f32 v{tmp+i}, v{tmp+i}')
    for i, r in enumerate(regs): a.e(f'v_max_f32 v{r}, 0, v{r}')
    for i, r in enumerate(regs): a.e(f'v_add_f32 v{r}, v{r}, v{tmp+i}')
    for i, r in enumerate(regs): a.e(f'v_add_f32 v{r}, s{S_EPS6}, v{r}')

def emit_pack(a, dst, src, n):
    for i in range(0, n, 2): a.e(f'v_cvt_pk_bf16_f32 v{dst+i//2}, v{src+i}, v{src+i+1}')

def emit_pack32(a, dst, src):
    for k, j in enumerate([0, 2, 1, 3]):
        a.e(f'v_cvt_pk_bf16_f32 v{dst+2*k}, v{src+4*j}, v{src+4*j+1}')
        a.e(f'v_cvt_pk_bf16_f32 v{dst+2*k+1}, v{src+4*j+2}, v{src+4*j+3}')

class TrBase:
    def __init__(self, a, lane_reg, nt):
        self.a, self.lane_reg, self.nt, self.cur = a, lane_reg, nt, None
    def off(self, addr, span):
        if self.cur is None or addr < self.cur or addr + span - self.cur > 65535:
            self.cur = addr
            for t in range(self.nt):
                if t == 0:
                    self.a.e(f'v_add_u32 v{V_TB}, {hex(addr)}, v{self.lane_reg}')
                else:
                    self.a.e(f'v_xor_b32 v{V_TB+t}, {t << 5}, v{self.lane_reg}')
                    self.a.e(f'v_add_u32 v{V_TB+t}, {hex(addr)}, v{V_TB+t}')
        return addr - self.cur

def emit_gemm16(a, bar, phase, chunks, CT, kind, acc_of, a_of, a_wait, a_issue, wr, S, normal=False, extra=None, a_lds=None):
    R, LA = 2, 4
    ks = []
    for ci, ch in enumerate(chunks):
        first = True
        for s in ch:
            ks.append((ci, s.addr, first)); first = False
            if kind == '64': ks.append((ci, s.addr + 2048, False))
    KS = len(ks)
    if kind == '128':
        trb = TrBase(a, V_T128, 4); second = 2048; span = 4096; tb = lambda t: V_TB + t; timm = lambda t: 0
    elif kind == '64':
        trb = TrBase(a, V_T64, 2); second = 1024; span = 2048; tb = lambda t: V_TB + t; timm = lambda t: 0
    else:
        trb = TrBase(a, V_T224, 1); second = 3584; span = 7168; tb = lambda t: V_TB; timm = lambda t: 32 * t
    total = KS * CT
    def slot(n): return wr + 4 * (n % S)
    def pre_issue(n):
        j, t = divmod(n, CT)
        ci, addr, first = ks[j]
        if t == 0 and first:
            a.fstamp(phase); bar(('B', phase, ci)); a.fstamp(phase)
        imm = trb.off(addr, span) if t == 0 else addr - trb.cur
        return imm + timm(t), t
    def rd(n, half, info):
        imm, t = info
        a.e(f'ds_read_b64_tr_b16 v[{slot(n)+2*half}:{slot(n)+2*half+1}], v{tb(t)} offset:{imm + (second if half else 0)}')
    def mfma(m, r):
        j, t = divmod(m, CT)
        d = acc_of(r, t); c = '0' if j == 0 else f'v[{d}:{d+3}]'
        w = f'v[{slot(m)}:{slot(m)+3}]'; x = f'v[{a_of(r,j)}:{a_of(r,j)+3}]'
        a.e(f'v_mfma_f32_16x16x32_bf16 v[{d}:{d+3}], ' + (f'{x}, {w}' if normal else f'{w}, {x}') + f', {c}')
    lq = []
    def need(tags):
        idx = max((i for i, g in enumerate(lq) if g in tags), default=None)
        if idx is None: return None
        n_ = len(lq) - 1 - idx
        del lq[:idx + 1]
        assert n_ <= 15
        return n_
    def pre2(n):
        info = pre_issue(n)
        j, t = divmod(n, CT)
        if a_lds and t == 0:
            for s_ in a_lds(j):
                a.e(s_); lq.append(('A', j))
        return info
    def rd2(n, half, info):
        rd(n, half, info); lq.append(('W', n))
    for n in range(min(LA, total)):
        info = pre2(n); rd2(n, 0, info); rd2(n, 1, info)
    for n in range(total):
        j, t = divmod(n, CT)
        lg = need({('W', n), ('A', j)})
        vmn = a_wait(j) if t == 0 else None
        if t == 0 and j in (0, 1): a.fstamp(phase)
        parts = ([f'vmcnt({vmn})'] if vmn is not None else []) + ([f'lgkmcnt({lg})'] if lg is not None else [])
        if parts: a.e('s_waitcnt ' + ' '.join(parts))
        nx = n + LA; info = None
        mfma(n, 0)
        if nx < total:
            info = pre2(nx); rd2(nx, 0, info)
        mfma(n, 1)
        if nx < total: rd2(nx, 1, info)
        a_issue(j, t)
        if extra and t == CT - 1: extra(j)
    a.fstamp(phase); bar(('E', phase, None)); a.fstamp(phase)
    a.e('s_nop 7')

def emit_gemm32(a, bar, phase, chunks, acc, wr, tail=None, a_pieces=None):
    LA, S = 4, 5
    nch = len(chunks)
    total = nch * 8
    trb = TrBase(a, V_TN, 1)
    def slot(n): return wr + 8 * (n % S)
    def reads(n):
        c, rem = divmod(n, 8); ksl, s = divmod(rem, 2)
        out = []
        if rem == 0:
            if a_pieces: a.wait_vm(('A', c))
            a.fstamp(phase); bar(('B', phase, c)); a.fstamp(phase)
        sl = chunks[c][ksl]
        imm = trb.off(sl.addr, 4096)
        out.append(f'ds_read_b128 v[{slot(n)}:{slot(n)+3}], v{V_TA} offset:{(c % 4) * 16384 + ksl * 1024 + s * 512}')
        out.append(f'ds_read_b64_tr_b16 v[{slot(n)+4}:{slot(n)+5}], v{V_TB} offset:{imm + s * 1024}')
        out.append(f'ds_read_b64_tr_b16 v[{slot(n)+6}:{slot(n)+7}], v{V_TB} offset:{imm + s * 1024 + 2048}')
        return out
    queue = []; nxt = 2; passed = 0
    if a_pieces:
        for c in (0, 1):
            for t in a_pieces(c): t()
    for n in range(LA):
        for s in reads(n): a.e(s)
    for n in range(total):
        lg = 3 * (min(n - 1 + LA, total - 1) - n)
        a.e(f's_waitcnt lgkmcnt({lg})')
        c = '0' if n == 0 else f'v[{acc}:{acc+15}]'
        a.e(f'v_mfma_f32_32x32x16_bf16 v[{acc}:{acc+15}], v[{slot(n)+4}:{slot(n)+7}], v[{slot(n)}:{slot(n)+3}], {c}')
        nx = n + LA
        if nx < total:
            if nx % 8 == 0: passed = nx // 8
            for s in reads(nx): a.e(s)
        if a_pieces:
            while nxt < nch and (nxt <= passed + 2 or nxt <= 3) and len(queue) < 4:
                queue += list(a_pieces(nxt)); nxt += 1
            if queue: queue.pop(0)()
        if tail and n == max(total - 24, 0): tail()
    a.fstamp(phase)
    if phase not in NOE:
        bar(('E', phase, None))
    a.fstamp(phase)
    a.e('s_nop 7'); a.e('s_nop 3')


def gen_compute(a, opt, events):
    evq = list(events)
    tm = [0]
    def tmreg(i):
        assert i < 22, i
        return 64 + i
    def dump(regs):
        sk = a.newlabel('TMS')
        a.e('s_waitcnt lgkmcnt(0)')
        a.e(f's_cmp_eq_u32 s{S_W}, 0')
        a.e(f's_cbranch_scc0 {sk}')
        if opt.dbgout >= 0 and opt.fine:
            a.e(f's_cmp_eq_u32 s2, {opt.dbgwg}')
            a.e(f's_cbranch_scc0 {sk}')
            for i, r in enumerate(regs):
                a.e(f's_sub_u32 s{S_T0}, s{r}, s85')
                a.e(f'v_mov_b32 v{V_T0}, s{S_T0}')
                a.e(f'v_mov_b32 v{V_T1}, {4*i}')
                a.e(f'global_store_dword v{V_T1}, v{V_T0}, s[86:87]')
        elif opt.dbgout >= 0 and opt.timing:
            a.e(f's_cmp_eq_u32 s2, {opt.dbgwg}')
            a.e(f's_cbranch_scc0 {sk}')
            a.e(f's_cmp_eq_u32 s{S_L}, {opt.dbgout}')
            a.e(f's_cbranch_scc0 {sk}')
            sel = [1, 2, 3, 4, 5, 6, 8, 9, 11, 12, 14, 15, 16, 17, 18, 20]
            for i, k in enumerate(sel):
                if k >= len(regs): continue
                a.e(f's_sub_u32 s{S_T0}, s{regs[k]}, s{regs[0]}')
                a.e(f'v_mov_b32 v{V_T0}, s{S_T0}')
                a.e(f'v_mov_b32 v{V_T1}, {4*i}')
                a.e(f'global_store_dword v{V_T1}, v{V_T0}, s[86:87]')
        else:
            a.e(f's_lshl_b32 s{S_T0}, s2, 8')
            a.e(f's_lshl_b32 s{S_T1}, s{S_L}, 7')
            if opt.timing: a.e(f's_add_u32 s{S_T0}, s{S_T0}, s{S_T1}')
            a.e(f's_add_u32 s{S_T0}, s{S_T0}, {hex(TM_OFF)}')
            for i, r in enumerate(regs):
                a.e(f'v_mov_b32 v{V_T0}, s{r}')
                a.e(f'v_mov_b32 v{V_T1}, {4*i}')
                a.e(f'buffer_store_dword v{V_T0}, v{V_T1}, {WS}, s{S_T0} offen')
        a.label(sk)
        a.e('s_waitcnt vmcnt(0)')
    fs = [0]
    def freg(i): return 64 + 2 * i
    cnt_ = [0]
    def fs_skip(i):
        cnt_[0] += 1
        return cnt_[0] in (2, 4, 5, 6, 8, 10)
    def fstamp(phase):
        if opt.fine == phase and fs[0] < 10 and not (opt.dbgout >= 0 and fs_skip(fs[0])):
            a.e(f's_memtime s[{freg(fs[0])}:{freg(fs[0])+1}]'); fs[0] += 1
    a.fstamp = fstamp
    def stamp():
        if opt.timing:
            a.e('s_memtime s[60:61]')
            a.e('s_waitcnt lgkmcnt(0)')
            a.e(f's_mov_b32 s{tmreg(tm[0])}, s60'); tm[0] += 1

    T0, T1, T2, TB = V_T0, V_T1, V_T2, V_TB
    if opt.wall:
        a.e('s_memrealtime s[60:61]'); a.e('s_waitcnt lgkmcnt(0)'); a.e('s_mov_b32 s84, s60')
        a.e('s_memtime s[60:61]'); a.e('s_waitcnt lgkmcnt(0)'); a.e('s_mov_b32 s85, s60')
    if opt.dbgout >= 0 and opt.fine: a.e('s_mov_b32 s85, s96')
    if opt.prio_c: a.e(f's_setprio {opt.prio_c}')
    a.c('--- compute: early address setup')
    if opt.startdiag:
        a.e('s_memtime s[98:99]'); a.e('s_waitcnt lgkmcnt(0)'); a.e('s_sub_u32 s98, s98, s100'); a.e('s_mov_b32 s85, s98')
    stamp()
    a.e(f's_lshr_b32 s{S_RH}, s{S_W}, 1')
    a.e(f's_and_b32 s{S_CH}, s{S_W}, 1')
    a.e(f's_lshl_b32 s{S_W4K}, s{S_W}, 12')
    a.e(f's_lshl_b32 s{S_U0}, s{S_G}, 4')
    a.e(f's_lshl_b32 s{S_T1}, s{S_RB}, 2')
    a.e(f's_add_u32 s{S_U0}, s{S_U0}, s{S_T1}')
    a.e(f's_lshl_b32 s{S_T1}, s{S_RH}, 1')
    a.e(f's_add_u32 s{S_U2}, s{S_U0}, s{S_T1}')
    a.e(f's_add_u32 s{S_U0}, s{S_U0}, s{S_W}')
    a.e(f's_lshl_b32 s{S_U1}, s{S_G}, 4')
    a.e(f's_lshl_b32 s{S_T2}, s{S_RB2}, 3')
    a.e(f's_add_u32 s{S_U1}, s{S_U1}, s{S_T2}')
    a.e(f's_lshl_b32 s{S_T2}, s{S_W}, 1')
    a.e(f's_add_u32 s{S_U1}, s{S_U1}, s{S_T2}')
    a.e(f'v_and_b32 v{T0}, 15, v{V_LANE}')
    a.e(f'v_and_b32 v{T1}, 0x30, v{V_LANE}')
    a.e(f's_lshl_b32 s{S_ROTK}, s{S_RB2}, 1')
    a.e(f's_add_u32 s{S_ROTK}, s{S_ROTK}, s{S_CB2}')
    a.e(f's_and_b32 s{S_ROTK}, s{S_ROTK}, {3 if opt.rot else 0}')
    a.e(f'v_and_b32 v{T2}, 31, v{V_LANE}')
    a.e(f'v_lshrrev_b32 v{TB}, 5, v{V_LANE}')
    a.e(f'v_lshlrev_b32 v{V_XRM}, 10, v{T2}')
    a.e(f'v_lshl_add_u32 v{V_XRM}, v{TB}, 3, v{V_XRM}')
    a.e(f's_lshl_b32 s{S_T2}, s{S_U2}, 14')
    a.e(f's_lshl_b32 s{S_T3}, s{S_CB}, 7')
    a.e(f's_add_u32 s{S_T2}, s{S_T2}, s{S_T3}')
    a.e(f's_lshl_b32 s{S_T3}, s{S_CH}, 6')
    a.e(f's_add_u32 s{S_T2}, s{S_T2}, s{S_T3}')
    a.e(f'v_add_u32 v{V_XRM}, s{S_T2}, v{V_XRM}')
    PA = f's[{S_PA}:{S_PA+3}]'
    def p1_load(j):
        for r in range(2):
            a.vmem(f'buffer_load_dwordx4 v[{V_A+(r*16+j)*4}:{V_A+(r*16+j)*4+3}], v{V_AB}, {WS}, s{(S_RK if r == 0 else S_P7) + j // 4} offen offset:{(j%4)*1024} sc1', ('A', j))
    a.e('s_waitcnt lgkmcnt(0)')
    a.e(f's_mul_i32 s{S_B}, s{S_V}, 0x9e3779b1')
    a.e(f's_add_u32 s{S_B}, s{S_B}, 0x7f4a7c15')
    a.e(f's_and_b32 s{S_B}, s{S_B}, 0xffffff00')
    a.c('--- compute: address setup')
    a.e(f'v_lshlrev_b32 v{V_X}, 4, v{V_LANE}')
    a.e(f's_lshl_b32 s{S_T2}, s{S_U1}, 14')
    a.e(f'v_add_u32 v{V_AB}, s{S_T2}, v{V_X}')
    a.e(f'v_lshlrev_b32 v{V_STS}, 4, v{T2}')
    a.e(f'v_lshl_add_u32 v{V_STS}, v{TB}, 11, v{V_STS}')
    a.e(f's_lshl_b32 s{S_T2}, s{S_U2}, 11')
    a.e(f'v_add_u32 v{V_STS}, s{S_T2}, v{V_STS}')
    a.e(f'v_lshlrev_b32 v{V_STST}, 4, v{T2}')
    a.e(f's_lshl_b32 s{S_T4}, s{S_CB}, 9')
    a.e(f's_add_u32 s{S_T2}, s{S_T2}, s{S_T4}')
    a.e(f's_lshl_b32 s{S_T4}, s{S_CH}, 3')
    a.e(f's_add_u32 s{S_T2}, s{S_T2}, s{S_T4}')
    a.e(f'v_add_u32 v{V_STST}, s{S_T2}, v{V_STST}')
    a.e(f's_lshl_b32 s{S_T3}, s{S_CB}, 1')
    a.e(f's_add_u32 s{S_T3}, s{S_T3}, s{S_CH}')
    a.e(f'v_lshlrev_b32 v{V_STB}, 4, v{T0}')
    a.e(f'v_lshl_add_u32 v{V_STB}, v{T1}, 6, v{V_STB}')
    a.e(f's_lshl_b32 s{S_T2}, s{S_U1}, 11')
    a.e(f'v_add_u32 v{V_STB}, s{S_T2}, v{V_STB}')
    a.e(f'v_lshrrev_b32 v{V_TST}, 4, v{T2}')
    a.e(f'v_lshlrev_b32 v{V_TST}, 14, v{V_TST}')
    a.e(f'v_lshl_add_u32 v{V_TST}, v{TB}, 8, v{V_TST}')
    a.e(f'v_lshl_add_u32 v{V_TST}, v{T0}, 4, v{V_TST}')
    a.e(f's_lshl_b32 s{S_T2}, s{S_U2}, 14')
    a.e(f's_lshl_b32 s{S_T4}, s{S_T3}, 10')
    a.e(f's_add_u32 s{S_T2}, s{S_T2}, s{S_T4}')
    a.e(f'v_add_u32 v{V_TST}, s{S_T2}, v{V_TST}')
    a.e(f's_lshl_b32 s{S_T2}, s{S_G}, 9')
    a.e(f's_add_u32 s{S_T2}, s{S_T2}, {hex(LF_OFF)}')
    a.e(f's_lshl_b32 s{S_T3}, s{S_W}, 7')
    a.e(f's_add_u32 s{S_T3}, s{S_T3}, s{S_T2}')
    a.e(f's_lshl_b32 s{S_T4}, s{S_R}, 2')
    a.e(f's_add_u32 s{S_T4}, s{S_T4}, s{S_T3}')
    a.e(f'v_mov_b32 v{V_FOWN}, s{S_T4}')
    a.e(f'v_and_b32 v{V_X+1}, 7, v{V_LANE}')
    a.e(f'v_lshlrev_b32 v{V_X+1}, 2, v{V_X+1}')
    a.e(f'v_bfe_u32 v{V_X+2}, v{V_LANE}, 3, 1')
    a.e(f'v_lshl_add_u32 v{V_X+1}, v{V_X+2}, 7, v{V_X+1}')
    a.e(f's_lshl_b32 s{S_T4}, s{S_RB2}, 1')
    a.e(f's_add_u32 s{S_T4}, s{S_T4}, s{S_RH}')
    a.e(f's_lshl_b32 s{S_T4}, s{S_T4}, 5')
    a.e(f's_lshl_b32 s{S_T5}, s{S_CH}, 8')
    a.e(f's_add_u32 s{S_T4}, s{S_T4}, s{S_T5}')
    a.e(f's_add_u32 s{S_T4}, s{S_T4}, s{S_T2}')
    a.e(f'v_add_u32 v{V_FSB}, s{S_T4}, v{V_X+1}')
    a.e(f's_lshl_b32 s{S_T4}, s{S_CB2}, 7')
    a.e(f's_add_u32 s{S_T4}, s{S_T4}, {hex(KVF_OFF)}')
    a.e(f'v_lshlrev_b32 v{V_FKV}, 2, v{T2}')
    a.e(f'v_add_u32 v{V_FKV}, s{S_T4}, v{V_FKV}')
    a.e(f'v_bfe_u32 v{V_X+1}, v{V_LANE}, 2, 2')
    a.e(f'v_lshrrev_b32 v{V_X+2}, 4, v{V_LANE}')
    a.e(f'v_lshl_add_u32 v{V_X+3}, v{V_X+2}, 2, v{V_X+1}')
    a.e(f'v_and_b32 v{V_X+4}, 3, v{V_LANE}')
    a.e(f'v_lshlrev_b32 v{V_X+4}, 3, v{V_X+4}')
    a.e(f'v_bfe_u32 v{V_X+5}, v{V_X+3}, 1, 2')
    a.e(f'v_lshl_add_u32 v{V_T128}, v{V_X+5}, 5, v{V_X+4}')
    a.e(f'v_lshl_add_u32 v{V_T128}, v{V_X+3}, 7, v{V_T128}')
    a.e(f'v_bfe_u32 v{V_X+5}, v{V_X+3}, 2, 1')
    a.e(f'v_lshl_add_u32 v{V_T64}, v{V_X+5}, 5, v{V_X+4}')
    a.e(f'v_lshl_add_u32 v{V_T64}, v{V_X+3}, 6, v{V_T64}')
    a.e(f'v_mul_u32_u24 v{V_T224}, 224, v{V_X+3}')
    a.e(f'v_add_u32 v{V_T224}, v{V_T224}, v{V_X+4}')
    a.e(f'v_lshrrev_b32 v{V_X+3}, 1, v{V_X+2}')
    a.e(f'v_lshl_add_u32 v{V_X+3}, v{V_X+3}, 2, v{V_X+1}')
    a.e(f'v_and_b32 v{V_X+5}, 1, v{V_X+2}')
    a.e(f's_lshl_b32 s{S_T4}, s{S_CH}, 1')
    a.e(f'v_add_u32 v{V_X+5}, s{S_T4}, v{V_X+5}')
    a.e(f'v_and_b32 v{V_X+1}, 2, v{V_X+1}')
    a.e(f'v_xor_b32 v{V_X+5}, v{V_X+5}, v{V_X+1}')
    a.e(f'v_lshl_add_u32 v{V_TN}, v{V_X+5}, 5, v{V_X+4}')
    a.e(f'v_lshl_add_u32 v{V_TN}, v{V_X+3}, 7, v{V_TN}')
    a.e(f'v_bfe_u32 v{V_TA}, v{V_LANE}, 4, 1')
    a.e(f's_lshl_b32 s{S_T4}, s{S_RH}, 1')
    a.e(f'v_add_u32 v{V_TA}, s{S_T4}, v{V_TA}')
    a.e(f'v_lshlrev_b32 v{V_TA}, 12, v{V_TA}')
    a.e(f'v_lshl_add_u32 v{V_TA}, v{TB}, 8, v{V_TA}')
    a.e(f'v_lshl_add_u32 v{V_TA}, v{T0}, 4, v{V_TA}')
    if AREG: a.e(f'v_add_u32 v{V_TA}, {hex(AREG)}, v{V_TA}')
    c1 = -2.0 * 0.7978845608028654 * 1.4426950408889634
    c2 = c1 * 0.044715
    for s, v in [(S_C1, c1), (S_C2, c2), (S_C2 + 1, c2), (S_ONE2, 1.0), (S_ONE2 + 1, 1.0),
                 (S_LOG2E, 1.4426950408889634), (S_EPS6, 1e-6), (S_L2E2, 1.4426950408889634), (S_L2E2 + 1, 1.4426950408889634),
                 (S_E62, 1e-6), (S_E62 + 1, 1e-6)]:
        if opt.dbgout >= 0 and s in (S_E62, S_E62 + 1): continue
        a.e(f's_mov_b32 s{s}, {hex(f2u(v))}')
    a.e(f's_mov_b32 s{S_L}, 0')
    a.e(f's_mov_b32 s{S_LOFF}, 0')
    a.e(f's_mov_b32 s{S_EP}, 1')
    a.e(f's_mov_b32 s{S_MODE}, 1')
    a.e(f's_mov_b32 s{S_COLD}, 1')
    a.e(f's_lshl_b32 s{S_GH}, s{S_G}, 1')
    a.e(f's_add_u32 s{S_GH}, s{S_GH}, 1')
    a.e(f's_lshl_b32 s{S_GH}, s{S_GH}, 14')

    if WARM0[0]:
        assert evq[0][2] == 'W0'; evq.pop(0)
        a.e('s_barrier')
    LOOP = 'LAYER_LOOP'
    a.label(LOOP)
    slabs = build_slabs(0)

    def run_layer():
        def bar(ev):
            exp = evq.pop(0)
            assert exp[1:] == ev or (exp[1] == 'X' and ev[0] == 'X' and exp[2] == ev[1]), (exp, ev)
            a.e('s_barrier')
        def soff(reg, base, extra=0, gh=False):
            if gh: a.e(f's_add_u32 s{reg}, s{S_GH}, {hex(base + extra)}')
            else: a.e(f's_mov_b32 s{reg}, {hex(base + extra)}')
        def done(p):
            if opt.stop == (1, p):
                a.e(f's_cmp_eq_u32 s{S_L}, 1')
                a.e('s_cbranch_scc1 L_END_COMPUTE')
            return opt.stop == (0, p)
        def ep(k):
            a.e(f's_add_u32 s{S_T5}, s{S_EP}, {k}')
            return f's{S_T5}'

        a.c('=== P1KV')
        WR1 = 96; D1 = 116; ONES = 124; D2 = V_PQ
        for i in range(4): a.e(f'v_mov_b32 v{ONES+i}, 0x3f803f80')
        l0 = a.newlabel('KVL0'); ljoin = a.newlabel('KVJ')
        a.e(f's_cmp_eq_u32 s{S_L}, 0')
        a.e(f's_cbranch_scc1 {l0}')
        saved_ev = list(evq)
        emit_poll(a, V_FSB, f's{S_EP}', opt=opt)
        for j in range(opt.D_kv): p1_load(j)
        stamp()
        a.fstamp('P1KV')
        def kv_issue(j, t):
            if t == 1:
                if j + opt.D_kv < 16:
                    p1_load(j + opt.D_kv)
                elif j + opt.D_kv == 16:
                    soff(S_T0, ST_OFF)
                    a.vmem(f'buffer_load_dwordx4 v[{D1}:{D1+3}], v{V_STB}, {WS}, s{S_T0} offen sc1', 'st')
                    a.vmem(f'buffer_load_dwordx4 v[{D1+4}:{D1+7}], v{V_STB}, {WS}, s{S_T0} offen offset:512 sc1', 'st')
                    a.vmem(f'buffer_load_dwordx4 v[{D2}:{D2+3}], v{V_STB}, {WS}, s{S_T0} offen offset:256 sc1', 'st')
                    a.vmem(f'buffer_load_dwordx4 v[{D2+4}:{D2+7}], v{V_STB}, {WS}, s{S_T0} offen offset:768 sc1', 'st')
        emit_gemm16(a, bar, 'P1KV', slabs['P1KV'], 4, '128',
                    acc_of=lambda r, t: V_ACC + (r * 4 + t) * 4, a_of=lambda r, j: V_A + (r * 16 + j) * 4,
                    a_wait=lambda j: a.count_vm(('A', j)), a_issue=kv_issue, wr=WR1, S=5, normal=True)
        a.e(f's_branch {ljoin}')
        a.label(l0)
        evq[:] = saved_ev
        a.vm = []
        fs[0] = 0
        cnt_[0] = 0
        a.fstamp('P1KV')
        tm[0] -= 1 if opt.timing else 0
        stamp()
        VLA = V_X
        a.e(f'v_and_b32 v{T0}, 15, v{V_LANE}')
        a.e(f'v_lshrrev_b32 v{T1}, 4, v{V_LANE}')
        a.e(f'v_xor_b32 v{T1}, v{T1}, v{T0}')
        a.e(f'v_lshlrev_b32 v{T1}, 4, v{T1}')
        a.e(f's_lshl_b32 s{S_T0}, s{S_W}, 5')
        a.e(f'v_add_u32 v{T0}, s{S_T0}, v{T0}')
        a.e(f'v_lshlrev_b32 v{T0}, 8, v{T0}')
        for j in range(4):
            a.e(f'v_xor_b32 v{VLA+j}, {64*j}, v{T1}')
            a.e(f'v_add_u32 v{VLA+j}, v{VLA+j}, v{T0}')
        def kv_lds(j):
            c = j // 4
            return [f'ds_read_b128 v[{V_A+(r*16+j)*4}:{V_A+(r*16+j)*4+3}], v{VLA + j % 4} offset:{AREG + (c & 1) * 32768 + r * 4096}' for r in range(2)]
        def kv_extra(j):
            for r in range(2):
                x = f'v[{V_A+(r*16+j)*4}:{V_A+(r*16+j)*4+3}]'
                c1_ = '0' if j == 0 else f'v[{D1+4*r}:{D1+4*r+3}]'
                c2_ = '0' if j == 0 else f'v[{D2+4*r}:{D2+4*r+3}]'
                a.e(f'v_mfma_f32_16x16x32_bf16 v[{D1+4*r}:{D1+4*r+3}], v[{ONES}:{ONES+3}], {x}, {c1_}')
                a.e(f'v_mfma_f32_16x16x32_bf16 v[{D2+4*r}:{D2+4*r+3}], {x}, {x}, {c2_}')
        emit_gemm16(a, bar, 'P1KV', slabs['P1KV'], 4, '128',
                    acc_of=lambda r, t: V_ACC + (r * 4 + t) * 4, a_of=lambda r, j: V_A + (r * 16 + j) * 4,
                    a_wait=lambda j: None, a_issue=lambda j, t: None, wr=WR1, S=5, normal=True, extra=kv_extra, a_lds=kv_lds)
        a.label(ljoin)
        stamp()
        a.wait_vm_all()
        SUM = [(V_X, V_X + 1), (V_X + 2, V_X + 3)]
        l1 = a.newlabel('S1'); le = a.newlabel('SE')
        a.e(f's_cmp_eq_u32 s{S_L}, 0')
        a.e(f's_cbranch_scc0 {l1}')
        a.e(f'v_and_b32 v{T0}, 31, v{V_LANE}')
        a.e(f'v_lshlrev_b32 v{T0}, 7, v{T0}')
        a.e(f'v_lshrrev_b32 v{T1}, 5, v{V_LANE}')
        a.e(f'v_lshl_add_u32 v{T0}, v{T1}, 3, v{T0}')
        a.e(f's_lshl_b32 s{S_T0}, s{S_RH}, 12')
        a.e(f's_lshl_b32 s{S_T1}, s{S_CH}, 6')
        a.e(f's_add_u32 s{S_T0}, s{S_T0}, s{S_T1}')
        if AREG: a.e(f's_add_u32 s{S_T0}, s{S_T0}, {hex(AREG)}')
        a.e(f'v_add_u32 v{T0}, s{S_T0}, v{T0}')
        for j in range(4):
            a.e(f'ds_read_b64 v[{V_RES+4*j}:{V_RES+4*j+1}], v{T0} offset:{16*j}')
        a.e('s_waitcnt lgkmcnt(0)')
        for j in range(4):
            b = V_RES + 4 * j
            a.e(f'v_and_b32 v{b+3}, 0xffff0000, v{b+1}')
            a.e(f'v_lshlrev_b32 v{b+2}, 16, v{b+1}')
            a.e(f'v_and_b32 v{b+1}, 0xffff0000, v{b}')
            a.e(f'v_lshlrev_b32 v{b}, 16, v{b}')
        a.e(f'v_and_b32 v{T0}, 3, v{V_LANE}')
        a.e(f'v_bfe_u32 v{T1}, v{V_LANE}, 2, 2')
        a.e(f'v_lshrrev_b32 v{T2}, 4, v{V_LANE}')
        for r in range(2):
            s_, ss_ = SUM[r]
            a.e(f'v_mov_b32 v{s_}, v{D1+4*r}')
            a.e(f'v_mov_b32 v{ss_}, v{D2+4*r}')
            for i in range(1, 4):
                a.e(f'v_cmp_eq_u32 vcc, {i}, v{T0}')
                a.e('s_nop 1')
                a.e(f'v_cndmask_b32 v{ss_}, v{ss_}, v{D2+4*r+i}, vcc')
            a.e(f'v_cmp_eq_u32 vcc, v{T1}, v{T2}')
            a.e('s_nop 1')
            a.e(f'v_cndmask_b32 v{ss_}, 0, v{ss_}, vcc')
        emit_xreduce(a, [SUM[0][1], SUM[1][1]], [T0, T1])
        a.e(f's_branch {le}')
        a.label(l1)
        for r, raw in enumerate([D1, D2]):
            emit_sum_partials(a, raw, 8)
            a.e(f'v_mov_b32 v{SUM[r][0]}, v{raw}')
            a.e(f'v_mov_b32 v{SUM[r][1]}, v{raw+1}')
        emit_xreduce(a, [SUM[0][0], SUM[0][1], SUM[1][0], SUM[1][1]], [WR1, WR1 + 1, WR1 + 2, WR1 + 3])
        a.label(le)
        CSR = 120
        a.e(f'v_and_b32 v{T0}, 15, v{V_LANE}')
        a.e(f'v_lshlrev_b32 v{T0}, 2, v{T0}')
        a.e(f'v_add_u32 v{T0}, {hex(CSC)}, v{T0}')
        a.e(f'v_and_b32 v{T1}, 0x30, v{V_LANE}')
        for t in range(4):
            a.e(f'ds_read_b32 v{CSR+t}, v{T0} offset:{64*t}')
        KEEP = [(V_PQ + 0, V_PQ + 2), (V_PQ + 4, V_PQ + 6)]
        for r in range(2):
            emit_stats_from_sums(a, SUM[r][0], SUM[r][1], KEEP[r][0], KEEP[r][1], WR1)
        AI = [WR1, WR1 + 8]; BI = [WR1 + 4, WR1 + 12]
        for r in range(2):
            for i in range(4):
                a.e(f'ds_bpermute_b32 v{AI[r]+i}, v{T1}, v{KEEP[r][0]} offset:{4*i}')
                a.e(f'ds_bpermute_b32 v{BI[r]+i}, v{T1}, v{KEEP[r][1]} offset:{4*i}')
        a.e('s_waitcnt vmcnt(0) lgkmcnt(0)'); a.vm = []
        CSE = WR1 + 16
        for t in range(4): a.e(f'v_mov_b32 v{CSE+2*t}, v{CSR+t}')
        for r in range(2):
            for t in range(4):
                for i in (0, 2):
                    d = V_ACC + (r * 4 + t) * 4 + i
                    a.e(pk('mul', d, vp(d), vp(AI[r] + i)))
            for t in range(4):
                for i in (0, 2):
                    d = V_ACC + (r * 4 + t) * 4 + i
                    a.e(pk('fma', d, vp(BI[r] + i), vp(CSE + 2 * t), vp(d), mods=' op_sel_hi:[1,0,1]'))
        regs = [V_ACC + (r * 4 + t) * 4 + i for r in range(2) for t in range(2) for i in range(4)]
        emit_phi(a, regs, WR1)
        for t in range(4):
            b0 = V_ACC + t * 4; b1 = V_ACC + (4 + t) * 4
            a.e(f'v_cvt_pk_bf16_f32 v{b0}, v{b0}, v{b0+1}')
            a.e(f'v_cvt_pk_bf16_f32 v{b0+1}, v{b0+2}, v{b0+3}')
            a.e(f'v_cvt_pk_bf16_f32 v{b0+2}, v{b1}, v{b1+1}')
            a.e(f'v_cvt_pk_bf16_f32 v{b0+3}, v{b1+2}, v{b1+3}')
        a.e('s_nop 1')
        KVD = V_ACC + 16
        for h in range(2):
            a.e(f'v_mfma_f32_16x16x32_bf16 v[{KVD+4*h}:{KVD+4*h+3}], v[{V_ACC+4*h}:{V_ACC+4*h+3}], v[{V_ACC+8+4*h}:{V_ACC+8+4*h+3}], 0')
            a.e(f'v_mfma_f32_16x16x32_bf16 v[{KVD+8+4*h}:{KVD+8+4*h+3}], v[{V_ACC+4*h}:{V_ACC+4*h+3}], v[{ONES}:{ONES+3}], 0')
        a.e(f's_lshl_b32 s{S_T0}, s{S_W}, 11')
        a.e(f's_add_u32 s{S_T0}, s{S_T0}, {hex(SCR)}')
        a.e(f'v_lshlrev_b32 v{T0}, 4, v{V_LANE}')
        a.e(f'v_add_u32 v{T0}, s{S_T0}, v{T0}')
        a.e(f's_lshl_b32 s{S_T0}, s{S_W}, 7')
        a.e(f's_add_u32 s{S_T0}, s{S_T0}, {hex(SCR + 8192)}')
        a.e(f'v_add_u32 v{T2}, s{S_T0}, v{T1}')
        a.e('s_nop 4')
        a.e(f'ds_write_b128 v{T0}, v[{KVD}:{KVD+3}]')
        a.e(f'ds_write_b128 v{T0}, v[{KVD+4}:{KVD+7}] offset:1024')
        set_exec(a, 0x00010001)
        a.e(f'ds_write_b128 v{T2}, v[{KVD+8}:{KVD+11}]')
        a.e(f'ds_write_b128 v{T2}, v[{KVD+12}:{KVD+15}] offset:64')
        a.e('s_mov_b64 exec, -1')
        a.e('s_waitcnt lgkmcnt(0)')
        bar(('X', 'X1'))
        sk = a.newlabel('KVST')
        a.e(f's_cmp_lt_u32 s{S_W}, 2')
        a.e(f's_cbranch_scc0 {sk}')
        if opt.kv_atomic:
            a.e(f's_lshl_b32 s{S_T0}, s{S_W}, 10')
            a.e(f's_add_u32 s{S_T0}, s{S_T0}, {hex(SCR)}')
            a.e(f'v_lshlrev_b32 v{T0}, 2, v{V_LANE}')
            a.e(f'v_add_u32 v{T2}, s{S_T0}, v{T0}')
            a.e(f's_lshl_b32 s{S_T0}, s{S_W}, 6')
            a.e(f's_add_u32 s{S_T0}, s{S_T0}, {hex(SCR + 8192)}')
            a.e(f'v_add_u32 v{V_X}, s{S_T0}, v{T0}')
            KB = V_ACC
            for ww in range(4):
                for i in range(4):
                    a.e(f'ds_read_b32 v{KB+4*ww+i}, v{T2} offset:{ww*2048+256*i}')
                if ww == 2: a.e('s_waitcnt lgkmcnt(4)')
            for ww in range(4):
                a.e(f'ds_read_b32 v{KB+16+ww}, v{V_X} offset:{ww*128}')
            a.e(f's_mul_i32 s{S_T0}, s{S_CB2}, {KVREC}')
            a.e(f's_mul_i32 s{S_T1}, s{S_L}, {16*KVREC}')
            a.e(f's_add_u32 s{S_T0}, s{S_T0}, s{S_T1}')
            a.e(f's_add_u32 s{S_T0}, s{S_T0}, {hex(KVA_OFF)}')
            a.e(f's_lshl_b32 s{S_T1}, s{S_W}, 10')
            a.e(f's_add_u32 s{S_T1}, s{S_T1}, s{S_T0}')
            a.e(f's_lshl_b32 s{S_T2}, s{S_W}, 6')
            a.e(f's_add_u32 s{S_T2}, s{S_T2}, s{S_T0}')
            a.e(f's_add_u32 s{S_T2}, s{S_T2}, 2048')
            a.e('s_waitcnt lgkmcnt(0)')
            for i in (0, 2):
                a.e(pk('add', KB + i, vp(KB + i), vp(KB + 4 + i)))
                a.e(pk('add', KB + 8 + i, vp(KB + 8 + i), vp(KB + 12 + i)))
                a.e(pk('add', KB + i, vp(KB + i), vp(KB + 8 + i)))
            a.e(pk('add', KB + 16, vp(KB + 16), vp(KB + 18)))
            a.e(f'v_add_f32 v{KB+16}, v{KB+16}, v{KB+17}')
            for i in range(4):
                a.e(f'buffer_atomic_add_f32 v{KB+i}, v{T0}, {WS}, s{S_T1} offen offset:{256*i}')
            a.e('s_mov_b64 exec, 0xffff')
            a.e(f'buffer_atomic_add_f32 v{KB+16}, v{T0}, {WS}, s{S_T2} offen')
            a.e('s_mov_b64 exec, -1')
        else:
            a.e(f's_lshl_b32 s{S_T0}, s{S_W}, 10')
            a.e(f's_add_u32 s{S_T0}, s{S_T0}, {hex(SCR)}')
            a.e(f'v_lshlrev_b32 v{T0}, 4, v{V_LANE}')
            a.e(f'v_add_u32 v{T2}, s{S_T0}, v{T0}')
            a.e(f's_lshl_b32 s{S_T0}, s{S_W}, 6')
            a.e(f's_add_u32 s{S_T0}, s{S_T0}, {hex(SCR + 8192)}')
            a.e(f'v_add_u32 v{V_X}, s{S_T0}, v{T1}')
            KB = V_ACC
            for ww in range(4):
                a.e(f'ds_read_b128 v[{KB+4*ww}:{KB+4*ww+3}], v{T2} offset:{ww*2048}')
                a.e(f'ds_read_b128 v[{KB+16+4*ww}:{KB+16+4*ww+3}], v{V_X} offset:{ww*128}')
            a.e(f's_lshl_b32 s{S_T0}, s{S_CB2}, 4')
            a.e(f's_lshl_b32 s{S_T1}, s{S_G}, 1')
            a.e(f's_add_u32 s{S_T0}, s{S_T0}, s{S_T1}')
            a.e(f's_add_u32 s{S_T0}, s{S_T0}, s{S_RB2}')
            a.e(f's_mul_i32 s{S_T0}, s{S_T0}, {KVREC}')
            a.e(f's_add_u32 s{S_T0}, s{S_T0}, s{S_LOFF}')
            a.e(f's_add_u32 s{S_T0}, s{S_T0}, {hex(KVP_OFF)}')
            a.e(f's_lshl_b32 s{S_T1}, s{S_W}, 10')
            a.e(f's_add_u32 s{S_T1}, s{S_T1}, s{S_T0}')
            a.e(f's_lshl_b32 s{S_T2}, s{S_W}, 6')
            a.e(f's_add_u32 s{S_T2}, s{S_T2}, s{S_T0}')
            a.e(f's_add_u32 s{S_T2}, s{S_T2}, 2048')
            a.e('s_waitcnt lgkmcnt(0)')
            for base in (KB, KB + 16):
                for i in range(0, 4, 2):
                    a.e(pk('add', base + i, vp(base + i), vp(base + 4 + i)))
                    a.e(pk('add', base + 8 + i, vp(base + 8 + i), vp(base + 12 + i)))
                    a.e(pk('add', base + i, vp(base + i), vp(base + 8 + i)))
            a.e(f'buffer_store_dwordx4 v[{KB}:{KB+3}], v{T0}, {WS}, s{S_T1} offen sc1')
            set_exec(a, 0x00010001)
            a.e(f'buffer_store_dwordx4 v[{KB+16}:{KB+19}], v{T1}, {WS}, s{S_T2} offen sc1')
            a.e('s_mov_b64 exec, -1')
        a.e(f's_lshl_b32 s{S_T0}, s{S_L}, 11')
        a.e(f's_lshl_b32 s{S_T1}, s{S_CB2}, 7')
        a.e(f's_add_u32 s{S_T0}, s{S_T0}, s{S_T1}')
        a.e(f's_lshl_b32 s{S_T1}, s{S_W}, 6')
        a.e(f's_add_u32 s{S_T0}, s{S_T0}, s{S_T1}')
        a.e(f's_lshl_b32 s{S_T1}, s{S_G}, 3')
        a.e(f's_add_u32 s{S_T0}, s{S_T0}, s{S_T1}')
        a.e(f's_lshl_b32 s{S_T1}, s{S_RB2}, 2')
        a.e(f's_add_u32 s{S_T0}, s{S_T0}, s{S_T1}')
        a.e(f's_add_u32 s{S_T0}, s{S_T0}, {hex(KVF_OFF)}')
        a.e(f'v_mov_b32 v{V_X+4}, s{S_T0}')
        a.label(sk)
        a.vm = []
        stamp()
        if done('P1KV'): return True

        a.c('=== P1Q')
        QCS = V_ACC + 16
        a.e(f'v_and_b32 v{T1}, 0x30, v{V_LANE}')
        a.e(f'v_add_u32 v{T1}, {hex(CSC + 256)}, v{T1}')
        a.e(f'ds_read_b128 v[{QCS}:{QCS+3}], v{T1}')
        a.e(f'ds_read_b128 v[{QCS+4}:{QCS+7}], v{T1} offset:64')
        a.e('s_waitcnt lgkmcnt(0)')
        QAB = [(V_ACC + 24, V_ACC + 26), (V_ACC + 28, V_ACC + 30)]
        for r in range(2):
            a.e(f'v_mov_b32 v{QAB[r][0]}, v{KEEP[r][0]}')
            a.e(f'v_mov_b32 v{QAB[r][1]}, v{KEEP[r][1]}')
        def q_issue(j, t):
            if j == opt.kvflag_at and t == 1:
                fk = a.newlabel('KVFL')
                a.e(f's_cmp_lt_u32 s{S_W}, 2')
                a.e(f's_cbranch_scc0 {fk}')
                thr_value(a, S_THR, 1, xcc=True)
                a.e(f'v_mov_b32 v{V_X+5}, s{S_THR}')
                a.e('s_waitcnt vmcnt(0)')
                a.e('s_mov_b64 exec, 1')
                a.e(f'buffer_store_dword v{V_X+5}, v{V_X+4}, {WS}, 0 offen sc1')
                a.e('s_mov_b64 exec, -1')
                a.label(fk)
        emit_gemm16(a, bar, 'P1Q', slabs['P1Q'], 2, '64',
                    acc_of=lambda r, t: V_ACC + (r * 2 + t) * 4, a_of=lambda r, j: V_A + (r * 16 + j) * 4,
                    a_wait=lambda j: None, a_issue=q_issue, wr=96, S=8)
        for r in range(2):
            for t in range(2):
                emit_lnfold(a, V_ACC + (r * 2 + t) * 4, QCS + 4 * t, QAB[r][0], QAB[r][1], 4)
        emit_phi(a, [V_ACC + i for i in range(16)], 96)
        for r in range(2):
            for h in range(2):
                emit_pack(a, V_PQ + (r * 2 + h) * 2, V_ACC + (r * 2 + h) * 4, 4)
        stamp()
        sk = a.newlabel('MODE')
        a.e(f's_cmp_eq_u32 s{S_L}, 0')
        a.e(f's_cbranch_scc0 {sk}')
        a.e(f'v_and_b32 v{T1}, 31, v{V_LANE}')
        a.e(f'v_lshlrev_b32 v{T1}, 2, v{T1}')
        a.e(f's_lshl_b32 s{S_T0}, s{S_G}, 7')
        a.e(f's_add_u32 s{S_T0}, s{S_T0}, {hex(XID_OFF)}')
        emit_poll(a, T1, 0, soff=f's{S_T0}', opt=opt)
        a.e(f'v_and_b32 v{T2}, 7, v{T2}')
        a.e(f'v_cmp_eq_u32 vcc, s{S_XCC}, v{T2}')
        a.e('s_nop 1')
        a.e('s_cmp_eq_u64 vcc, -1')
        a.e(f's_cselect_b32 s{S_MODE}, 0, 1')
        if opt.force_safe: a.e(f's_mov_b32 s{S_MODE}, 1')
        a.label(sk)
        a.e(f's_lshl_b32 s{S_T0}, s{S_L}, 11')
        emit_poll(a, V_FKV, 1, soff=f's{S_T0}', opt=opt)
        stamp()
        RB = V_A + 64
        if opt.kv_atomic:
            a.e(f's_mul_i32 s{S_T0}, s{S_CB2}, {KVREC}')
            a.e(f's_mul_i32 s{S_T1}, s{S_L}, {16*KVREC}')
            a.e(f's_add_u32 s{S_T0}, s{S_T0}, s{S_T1}')
            a.e(f's_add_u32 s{S_T0}, s{S_T0}, {hex(KVA_OFF)}')
            a.e(f'v_lshlrev_b32 v{T0}, 4, v{V_LANE}')
            a.e(f'v_and_b32 v{T1}, 0x30, v{V_LANE}')
            a.vmem(f'buffer_load_dwordx4 v[{RB}:{RB+3}], v{T0}, {WS}, s{S_T0} offen sc1', 'kp')
            a.vmem(f'buffer_load_dwordx4 v[{RB+4}:{RB+7}], v{T0}, {WS}, s{S_T0} offen offset:1024 sc1', 'kp')
            a.vmem(f'buffer_load_dwordx4 v[{RB+8}:{RB+11}], v{T1}, {WS}, s{S_T0} offen offset:2048 sc1', 'kp')
            a.vmem(f'buffer_load_dwordx4 v[{RB+12}:{RB+15}], v{T1}, {WS}, s{S_T0} offen offset:2112 sc1', 'kp')
            a.wait_vm_all()
        else:
            a.e(f's_lshl_b32 s{S_T0}, s{S_CB2}, 4')
            a.e(f's_lshl_b32 s{S_T1}, s{S_W}, 2')
            a.e(f's_add_u32 s{S_T0}, s{S_T0}, s{S_T1}')
            a.e(f's_mul_i32 s{S_T0}, s{S_T0}, {KVREC}')
            a.e(f's_add_u32 s{S_T0}, s{S_T0}, s{S_LOFF}')
            a.e(f's_add_u32 s{S_T0}, s{S_T0}, {hex(KVP_OFF)}')
            a.e(f'v_lshlrev_b32 v{T0}, 4, v{V_LANE}')
            a.e(f'v_and_b32 v{T1}, 0x30, v{V_LANE}')
            PB = V_A
            for s4 in range(4):
                b = PB + 16 * s4
                a.vmem(f'buffer_load_dwordx4 v[{b}:{b+3}], v{T0}, {WS}, s{S_T0} offen sc1', 'kp')
                a.vmem(f'buffer_load_dwordx4 v[{b+4}:{b+7}], v{T0}, {WS}, s{S_T0} offen offset:1024 sc1', 'kp')
                a.vmem(f'buffer_load_dwordx4 v[{b+8}:{b+11}], v{T1}, {WS}, s{S_T0} offen offset:2048 sc1', 'kp')
                a.vmem(f'buffer_load_dwordx4 v[{b+12}:{b+15}], v{T1}, {WS}, s{S_T0} offen offset:2112 sc1', 'kp')
                if s4 < 3: a.e(f's_add_u32 s{S_T0}, s{S_T0}, {KVREC}')
            a.e(f's_lshl_b32 s{S_T0}, s{S_W}, 11')
            a.e(f's_add_u32 s{S_T0}, s{S_T0}, {hex(SCR)}')
            a.e(f'v_add_u32 v{T0}, s{S_T0}, v{T0}')
            a.e(f's_lshl_b32 s{S_T0}, s{S_W}, 7')
            a.e(f's_add_u32 s{S_T0}, s{S_T0}, {hex(SCR + 8192)}')
            a.e(f'v_add_u32 v{T2}, s{S_T0}, v{T1}')
            a.wait_vm_all()
            for i in range(0, 16, 2):
                a.e(pk('add', PB + i, vp(PB + i), vp(PB + 16 + i)))
                a.e(pk('add', PB + 32 + i, vp(PB + 32 + i), vp(PB + 48 + i)))
            for i in range(0, 16, 2):
                a.e(pk('add', PB + i, vp(PB + i), vp(PB + 32 + i)))
            a.e(f'ds_write_b128 v{T0}, v[{PB}:{PB+3}]')
            a.e(f'ds_write_b128 v{T0}, v[{PB+4}:{PB+7}] offset:1024')
            set_exec(a, 0x00010001)
            a.e(f'ds_write_b128 v{T2}, v[{PB+8}:{PB+11}]')
            a.e(f'ds_write_b128 v{T2}, v[{PB+12}:{PB+15}] offset:64')
            a.e('s_mov_b64 exec, -1')
            a.e(f'v_lshlrev_b32 v{T0}, 4, v{V_LANE}')
            a.e(f'v_add_u32 v{T0}, {hex(SCR)}, v{T0}')
            a.e(f'v_add_u32 v{T2}, {hex(SCR + 8192)}, v{T1}')
            a.e('s_waitcnt lgkmcnt(0)')
            bar(('X', 'X2'))
            for ww in range(4):
                b = RB + 16 * ww
                a.e(f'ds_read_b128 v[{b}:{b+3}], v{T0} offset:{ww*2048}')
                a.e(f'ds_read_b128 v[{b+4}:{b+7}], v{T0} offset:{ww*2048+1024}')
                a.e(f'ds_read_b128 v[{b+8}:{b+11}], v{T2} offset:{ww*128}')
                a.e(f'ds_read_b128 v[{b+12}:{b+15}], v{T2} offset:{ww*128+64}')
                if ww == 2: a.e('s_waitcnt lgkmcnt(8)')
            a.e('s_waitcnt lgkmcnt(0)')
            for i in range(0, 16, 2):
                a.e(pk('add', RB + i, vp(RB + i), vp(RB + 16 + i)))
                a.e(pk('add', RB + 32 + i, vp(RB + 32 + i), vp(RB + 48 + i)))
            for i in range(0, 16, 2):
                a.e(pk('add', RB + i, vp(RB + i), vp(RB + 32 + i)))
        OPB = V_ACC + 16
        emit_pack(a, OPB, RB, 16)
        a.e('s_nop 1')
        NUM = V_A; DEN = V_A + 16
        for r in range(2):
            for h in range(2):
                pq = V_PQ + (r * 2 + h) * 2
                n_ = NUM + (r * 2 + h) * 4; d_ = DEN + (r * 2 + h) * 4
                a.e(f'v_mfma_f32_16x16x16_bf16 v[{n_}:{n_+3}], v[{OPB+2*h}:{OPB+2*h+1}], v[{pq}:{pq+1}], 0')
                a.e(f'v_mfma_f32_16x16x16_bf16 v[{d_}:{d_+3}], v[{OPB+4+2*h}:{OPB+4+2*h+1}], v[{pq}:{pq+1}], 0')
        a.e(f's_lshl_b32 s{S_T0}, s{S_CB2}, 10')
        a.e(f's_add_u32 s{S_T0}, s{S_T0}, s{S_GH}')
        a.e(f's_add_u32 s{S_T1}, s{S_T0}, 0x4000')
        a.e('s_nop 4')
        for k in range(4): a.e(f'v_add_f32 v{DEN+4*k}, s{S_EPS6}, v{DEN+4*k}')
        for k in range(4): a.e(f'v_rcp_f32 v{DEN+4*k}, v{DEN+4*k}')
        a.e('s_nop 0')
        for k in range(4):
            for i in range(4): a.e(f'v_mul_f32 v{NUM+4*k+i}, v{NUM+4*k+i}, v{DEN+4*k}')
        OPK = V_A + 32
        emit_pack(a, OPK, NUM, 16)
        emit_mode_stores(a, [f'buffer_store_dwordx4 v[{OPK}:{OPK+3}], v{V_AB}, {WS}, s{S_T0} offen',
                             f'buffer_store_dwordx4 v[{OPK+4}:{OPK+7}], v{V_AB}, {WS}, s{S_T1} offen'], cold=True)
        emit_signal(a, ep(1))
        stamp()
        if done('P1Q'): return True

        ACC = V_ACC; WR = 80; TMP = V_A
        def small_gemm(phase, tail=None):
            a.fstamp(phase)
            emit_gemm32(a, bar, phase, slabs[phase], ACC, WR, tail=tail)
        def tile_store(pkb, base, gh=False, cold=False):
            soff(S_T0, base, gh=gh)
            emit_mode_stores(a, [f'buffer_store_dwordx4 v[{pkb}:{pkb+3}], v{V_TST}, {WS}, s{S_T0} offen',
                                 f'buffer_store_dwordx4 v[{pkb+4}:{pkb+7}], v{V_TST}, {WS}, s{S_T0} offen offset:512'], cold=cold)

        a.c('=== P3')
        stamp()
        small_gemm('P3')
        stamp()
        for i in range(0, 16, 2): a.e(pk('add', V_RES + i, vp(V_RES + i), vp(ACC + i)))
        emit_pack32(a, TMP, V_RES)
        tile_store(TMP, A1_OFF, cold=True)
        soff(S_T1, ST_OFF)
        emit_stats_partial32(a, V_RES, TMP + 8, f's{S_T1}', cold=True)
        emit_signal(a, ep(2))
        stamp()
        if done('P3'): return True

        a.c('=== P4')
        CS4 = TMP + 16; RAW = TMP + 32
        a.e(f'v_lshrrev_b32 v{T1}, 5, v{V_LANE}')
        a.e(f'v_lshlrev_b32 v{T1}, 4, v{T1}')
        a.e(f's_lshl_b32 s{S_T1}, s{S_CH}, 7')
        a.e(f's_add_u32 s{S_T1}, s{S_T1}, {hex(CSC + 384)}')
        a.e(f'v_add_u32 v{T1}, s{S_T1}, v{T1}')
        for j in range(4):
            a.e(f'ds_read_b128 v[{CS4+4*j}:{CS4+4*j+3}], v{T1} offset:{32*j}')
        a.e('s_waitcnt lgkmcnt(0)')
        stamp()
        def p4_tail():
            soff(S_T0, ST_OFF)
            for k in range(4):
                a.vmem(f'buffer_load_dwordx4 v[{RAW+4*k}:{RAW+4*k+3}], v{V_STS}, {WS}, s{S_T0} offen offset:{512*k} sc1', 'st')
        small_gemm('P4', tail=p4_tail)
        stamp()
        a.wait_vm_all()
        emit_sum_partials(a, RAW, 16)
        emit_xreduce(a, [RAW, RAW + 1], [RAW + 2, RAW + 3], over16=False)
        emit_stats_from_sums(a, RAW, RAW + 1, RAW + 4, RAW + 6, RAW + 8, double=True, keep=(V_MEAN, V_RS))
        emit_lnfold(a, ACC, CS4, RAW + 4, RAW + 6, 16)
        emit_gelu(a, ACC, 16, TMP + 48, V_PQ)
        emit_pack32(a, TMP, ACC)
        tile_store(TMP, A0_OFF, gh=True)
        gl = a.newlabel('GH'); gu = a.newlabel('GH'); gd = a.newlabel('GH')
        a.e(f's_cmp_eq_u32 s{S_RB}, 3')
        a.e(f's_cbranch_scc0 {gu}')
        a.e(f's_cmp_eq_u32 s{S_RH}, 1')
        a.e(f's_cbranch_scc0 {gd}')
        a.e(f's_bitcmp1_b32 s{S_CB}, 1')
        a.e(f's_cbranch_scc1 {gd}')
        a.e(f's_cmp_eq_u32 s{S_G}, 7')
        a.e(f's_cbranch_scc1 {gd}')
        a.e(f's_add_u32 s{S_T1}, s{S_G}, 1')
        a.e(f's_mul_i32 s{S_T2}, s{S_T1}, {18*16384}')
        a.e(f's_lshl_b32 s{S_T3}, s{S_T1}, 8')
        set_exec(a, 0xc0000000)
        a.e(f's_branch {gl}')
        a.label(gu)
        a.e(f's_cmp_eq_u32 s{S_RB}, 0')
        a.e(f's_cbranch_scc0 {gd}')
        a.e(f's_cmp_eq_u32 s{S_RH}, 0')
        a.e(f's_cbranch_scc0 {gd}')
        a.e(f's_bitcmp1_b32 s{S_CB}, 1')
        a.e(f's_cbranch_scc0 {gd}')
        a.e(f's_cmp_eq_u32 s{S_G}, 0')
        a.e(f's_cbranch_scc1 {gd}')
        a.e(f's_sub_u32 s{S_T1}, s{S_G}, 1')
        a.e(f's_mul_i32 s{S_T2}, s{S_T1}, {18*16384}')
        a.e(f's_add_u32 s{S_T2}, s{S_T2}, {17*16384}')
        a.e(f's_lshl_b32 s{S_T3}, s{S_T1}, 8')
        a.e(f's_add_u32 s{S_T3}, s{S_T3}, 128')
        set_exec(a, 0x00000003)
        a.label(gl)
        a.e(f's_lshl_b32 s{S_T0}, s{S_CB}, 1')
        a.e(f's_add_u32 s{S_T0}, s{S_T0}, s{S_CH}')
        a.e(f's_lshl_b32 s{S_T0}, s{S_T0}, 10')
        a.e(f's_add_u32 s{S_T2}, s{S_T2}, s{S_T0}')
        a.e(f'v_and_b32 v{T0}, 0x3fff, v{V_TST}')
        a.e(f'v_and_b32 v{T0}, 0x3ff, v{T0}')
        a.e(f'buffer_store_dwordx4 v[{TMP}:{TMP+3}], v{T0}, {WS}, s{S_T2} offen sc1')
        a.e(f'buffer_store_dwordx4 v[{TMP+4}:{TMP+7}], v{T0}, {WS}, s{S_T2} offen offset:512 sc1')
        a.e('s_mov_b64 exec, -1')
        a.e(f's_and_b32 s{S_T0}, s{S_CB}, 1')
        a.e(f's_lshr_b32 s{S_T1}, s{S_CB}, 2')
        a.e(f's_lshl_b32 s{S_T1}, s{S_T1}, 1')
        a.e(f's_add_u32 s{S_T0}, s{S_T0}, s{S_T1}')
        a.e(f's_lshl_b32 s{S_T0}, s{S_T0}, 1')
        a.e(f's_add_u32 s{S_T0}, s{S_T0}, s{S_CH}')
        a.e(f's_lshl_b32 s{S_T0}, s{S_T0}, 2')
        a.e(f's_add_u32 s{S_T3}, s{S_T3}, s{S_T0}')
        a.e(f's_lshl_b32 s{S_T0}, s{S_L}, 11')
        a.e(f's_add_u32 s{S_T3}, s{S_T3}, s{S_T0}')
        a.e(f's_add_u32 s{S_T3}, s{S_T3}, {hex(HF_OFF)}')
        thr_value(a, S_THR, ep(3), xcc=True)
        a.e(f'v_mov_b32 v{T0}, s{S_T3}')
        a.e(f'v_mov_b32 v{T1}, s{S_THR}')
        a.e('s_waitcnt vmcnt(0)')
        a.e('s_mov_b64 exec, 1')
        a.e(f'buffer_store_dword v{T1}, v{T0}, {WS}, 0 offen sc1')
        a.e('s_mov_b64 exec, -1')
        a.label(gd)
        emit_signal(a, ep(3))
        stamp()
        if done('P4'): return True

        a.c('=== P5')
        stamp()
        small_gemm('P5')
        stamp()
        a.e(f'v_mul_f32 v{TMP+10}, v{V_MEAN}, v{V_RS}')
        a.e(f'v_sub_f32 v{TMP+10}, 0, v{TMP+10}')
        a.e(f'v_mov_b32 v{TMP+8}, v{V_RS}')
        for i in range(0, 16, 2):
            a.e(pk('fma', ACC + i, vp(V_RES + i), vp(TMP + 8), vp(ACC + i), mods=' op_sel_hi:[1,0,1]'))
        for i in range(0, 16, 2):
            a.e(pk('add', ACC + i, vp(ACC + i), vp(TMP + 10), mods=' op_sel_hi:[1,0]'))
        emit_pack32(a, TMP, ACC)
        tile_store(TMP, A1_OFF)
        soff(S_T1, ST_OFF)
        emit_stats_partial32(a, ACC, TMP + 12, f's{S_T1}')
        for i in range(0, 16, 2): a.e(pk('add', V_RES + i, vp(V_RES + i), vp(ACC + i)))
        emit_signal(a, ep(4))
        stamp()
        if done('P5'): return True

        a.c('=== P6')
        CS6 = V_ACC; ACC6 = 192; WR6 = 96
        a.e(f'v_and_b32 v{T1}, 0x30, v{V_LANE}')
        a.e(f'v_add_u32 v{T1}, {hex(CSC + 640)}, v{T1}')
        for t in range(7):
            a.e(f'ds_read_b128 v[{CS6+4*t}:{CS6+4*t+3}], v{T1} offset:{64*t}')
        a.e('s_waitcnt lgkmcnt(0)')
        for c in range(4):
            a.e(f's_lshl_b32 s{S_P7+c}, s{S_RB2}, {13 if opt.rot else 31}')
            if not opt.rot: a.e(f's_mov_b32 s{S_P7+c}, 0')
            a.e(f's_xor_b32 s{S_P7+c}, s{S_P7+c}, {hex(c * 4096)}')
            a.e(f's_add_u32 s{S_P7+c}, s{S_P7+c}, {hex(A1_OFF)}')
            a.e(f's_add_u32 s{S_P7+4+c}, s{S_P7+c}, 0x4000')
        emit_poll(a, V_FSB, ep(4), opt=opt)
        stamp()
        def p6_load(j):
            for r in range(2):
                d = V_A + ((j % 8) * 2 + r) * 4
                a.vmem(f'buffer_load_dwordx4 v[{d}:{d+3}], v{V_AB}, {WS}, s{S_P7 + 4 * r + j // 4} offen offset:{(j%4)*1024} sc1', ('A', j))
        RAW6 = [V_PQ, 248]
        def p6_issue(j, t):
            if t == 1:
                if j + opt.D_p6 < 16:
                    p6_load(j + opt.D_p6)
                elif j + opt.D_p6 == 16:
                    soff(S_T0, ST_OFF)
                    for r in range(2):
                        a.vmem(f'buffer_load_dwordx4 v[{RAW6[r]}:{RAW6[r]+3}], v{V_STB}, {WS}, s{S_T0} offen offset:{256*r} sc1', 'st')
                        a.vmem(f'buffer_load_dwordx4 v[{RAW6[r]+4}:{RAW6[r]+7}], v{V_STB}, {WS}, s{S_T0} offen offset:{256*r+512} sc1', 'st')
        a.fstamp('P6')
        for j in range(opt.D_p6): p6_load(j)
        emit_gemm16(a, bar, 'P6', slabs['P6'], 7, '224',
                    acc_of=lambda r, t: ACC6 + (r * 7 + t) * 4, a_of=lambda r, j: V_A + ((j % 8) * 2 + r) * 4,
                    a_wait=lambda j: a.count_vm(('A', j)), a_issue=p6_issue, wr=WR6, S=8)
        stamp()
        a.wait_vm_all()
        for r in range(2): emit_sum_partials(a, RAW6[r], 8)
        emit_xreduce(a, [RAW6[0], RAW6[0] + 1, RAW6[1], RAW6[1] + 1], [V_X, V_X + 1, V_X + 2, V_X + 3])
        AB6 = [(92, 94), (RAW6[1] + 4, RAW6[1] + 6)]
        for r in range(2):
            emit_stats_from_sums(a, RAW6[r], RAW6[r] + 1, AB6[r][0], AB6[r][1], V_X)
        a.e(f's_lshl_b32 s{S_T0}, s{S_G}, 4')
        a.e(f's_lshl_b32 s{S_T1}, s{S_RB2}, 3')
        a.e(f's_add_u32 s{S_T0}, s{S_T0}, s{S_T1}')
        a.e(f's_lshl_b32 s{S_T1}, s{S_W}, 1')
        a.e(f's_add_u32 s{S_T0}, s{S_T0}, s{S_T1}')
        a.e(f's_mul_i32 s{S_T0}, s{S_T0}, 57344')
        a.e(f's_lshr_b32 s{S_T1}, s{S_CB2}, 1')
        a.e(f's_mul_i32 s{S_T1}, s{S_T1}, 7168')
        a.e(f's_add_u32 s{S_T0}, s{S_T0}, s{S_T1}')
        a.e(f's_add_u32 s{S_T0}, s{S_T0}, {hex(G_OFF)}')
        a.e(f's_and_b32 s{S_T1}, s{S_CB2}, 1')
        a.e(f's_mul_i32 s{S_U0}, s{S_T1}, 3072')
        a.e(f's_add_u32 s{S_U0}, s{S_U0}, s{S_T0}')
        a.e(f's_add_u32 s{S_U1}, s{S_U0}, 57344')
        a.e(f's_lshl_b32 s{S_T1}, s{S_T1}, 3')
        a.e(f's_add_u32 s{S_U2}, s{S_T0}, s{S_T1}')
        a.e(f's_add_u32 s{S_U2}, s{S_U2}, 6144')
        a.e(f's_add_u32 s{S_U3}, s{S_U2}, 57344')
        a.e(f'v_lshlrev_b32 v{V_X+4}, 4, v{V_LANE}')
        for r in range(2):
            emit_lnfold(a, ACC6 + r * 28, CS6, AB6[r][0], AB6[r][1], 28)
            emit_gelu(a, ACC6 + r * 28, 28, V_A, V_PQ + 4)
            pkb = V_A + 16 + r * 16
            emit_pack(a, pkb, ACC6 + r * 28, 28)
            st = [f'buffer_store_dwordx4 v[{pkb+4*j}:{pkb+4*j+3}], v{V_X+4}, {WS}, s{S_U0+r} offen offset:{1024*j}' for j in range(3)]
            st.append(f'buffer_store_dwordx2 v[{pkb+12}:{pkb+13}], v{V_X+4}, {WS}, s{S_U2+r} offen')
            emit_mode_stores(a, st, cold=bool(opt.g_cold))
        emit_signal(a, ep(5))
        stamp()
        if done('P6'): return True

        a.c('=== P7')
        if opt.p7_self:
            VG, VF = V_A + 100, V_A + 101
            a.e(f's_lshl_b32 s{S_T0}, s{S_G}, 4'); a.e(f's_lshl_b32 s{S_T1}, s{S_RB}, 2'); a.e(f's_add_u32 s{S_T0}, s{S_T0}, s{S_T1}')
            a.e(f's_add_u32 s{S_T0}, s{S_T0}, s{S_W}'); a.e(f's_mul_i32 s{S_T0}, s{S_T0}, 57344')
            a.e(f'v_lshlrev_b32 v{VG}, 4, v{V_LANE}'); a.e(f'v_add_u32 v{VG}, s{S_T0}, v{VG}')
            for p_ in range(8):
                a.e(f's_and_b32 s{S_P7+p_}, s{S_RB}, {3 if opt.rot else 0}'); a.e(f's_lshl_b32 s{S_P7+p_}, s{S_P7+p_}, 1')
                a.e(f's_xor_b32 s{S_P7+p_}, s{S_P7+p_}, {p_}'); a.e(f's_mul_i32 s{S_P7+p_}, s{S_P7+p_}, 7168')
            a.e(f's_lshl_b32 s{S_T2}, s{S_G}, 9'); a.e(f's_add_u32 s{S_T2}, s{S_T2}, {hex(LF_OFF)}')
            a.e(f's_and_b32 s{S_T3}, s{S_RB}, 1'); a.e(f's_lshl_b32 s{S_T3}, s{S_T3}, 1'); a.e(f's_add_u32 s{S_T3}, s{S_T3}, s{S_RH}')
            a.e(f's_lshl_b32 s{S_T3}, s{S_T3}, 7'); a.e(f's_add_u32 s{S_T3}, s{S_T3}, s{S_T2}')
            a.e(f's_lshr_b32 s{S_T4}, s{S_RB}, 1'); a.e(f's_lshl_b32 s{S_T4}, s{S_T4}, 6'); a.e(f's_add_u32 s{S_T3}, s{S_T3}, s{S_T4}')
            a.e(f'v_and_b32 v{VF}, 15, v{V_LANE}'); a.e(f'v_lshlrev_b32 v{VF}, 2, v{VF}'); a.e(f'v_add_u32 v{VF}, s{S_T3}, v{VF}')
            a.e(f's_lshl_b32 s{S_T3}, s{S_R}, 2'); a.e(f's_add_u32 s{S_T3}, s{S_T3}, s{S_T2}')
            a.e(f'v_and_b32 v{T1}, 3, v{V_LANE}'); a.e(f'v_lshlrev_b32 v{T1}, 7, v{T1}'); a.e(f'v_add_u32 v{T1}, s{S_T3}, v{T1}')
            a.e(f'v_cmp_lt_u32 vcc, 15, v{V_LANE}'); a.e('s_nop 1'); a.e(f'v_cndmask_b32 v{VF}, v{VF}, v{T1}, vcc')
            emit_poll(a, VF, ep(5), opt=opt)
            stamp()
            def pieces7(c):
                state = {'last': None}
                def mk(k):
                    def f():
                        if k == 0: a.e(f's_add_u32 m0, s{S_W4K}, {hex(AREG + (c % 4) * 16384)}')
                        p_, i_ = divmod(4 * c + k, 7)
                        const = G_OFF + (i_ - k) * 1024
                        if state['last'] != (p_, const):
                            a.e(f's_add_u32 s{S_T0}, s{S_P7+p_}, {hex(const & 0xffffffff)}'); state['last'] = (p_, const)
                        a.vmem(f'buffer_load_dwordx4 v{VG}, {WS}, s{S_T0} offen offset:{k*1024} sc1 lds', ('A', c))
                    return f
                return [mk(k) for k in range(4)]
            emit_gemm32(a, bar, 'P7', slabs['P7'], ACC, WR, a_pieces=pieces7)
        else:
            stamp()
            small_gemm('P7')
        stamp()
        for i in range(0, 16, 2): a.e(pk('add', V_RES + i, vp(V_RES + i), vp(ACC + i)))
        emit_pack32(a, TMP, V_RES)
        return False

    stopped = run_layer()
    if not stopped:
        fin = a.newlabel('FIN'); TMP = V_A
        a.e(f's_cmp_eq_u32 s{S_L}, 1')
        a.e(f's_cbranch_scc1 {fin}')
        a.e(f's_mov_b32 s{S_T0}, {hex(A2_OFF)}')
        emit_mode_stores(a, [f'buffer_store_dwordx4 v[{TMP}:{TMP+3}], v{V_TST}, {WS}, s{S_T0} offen',
                             f'buffer_store_dwordx4 v[{TMP+4}:{TMP+7}], v{V_TST}, {WS}, s{S_T0} offen offset:512'], cold=True)
        a.e(f's_mov_b32 s{S_T1}, {hex(ST_OFF)}')
        emit_stats_partial32(a, V_RES, TMP + 8, f's{S_T1}')
        a.e(f's_add_u32 s{S_EP}, s{S_EP}, 6')
        emit_signal(a, f's{S_EP}')
        if opt.timing:
            dump([tmreg(i) for i in range(tm[0])])
        a.e(f's_mov_b32 s{S_L}, 1')
        a.e(f's_mov_b32 s{S_LOFF}, {hex(KVP_L)}')
        a.e(f's_mov_b32 s{S_COLD}, s{S_MODE}')
        for c in range(4):
            a.e(f's_xor_b32 s{S_RK+c}, s{S_ROTK}, {c}')
            a.e(f's_lshl_b32 s{S_RK+c}, s{S_RK+c}, 12')
            a.e(f's_add_u32 s{S_RK+c}, s{S_RK+c}, {hex(A2_OFF)}')
            a.e(f's_add_u32 s{S_P7+c}, s{S_RK+c}, 0x4000')
        a.e(f's_branch {LOOP}')
        a.label(fin)
        emit_pack(a, TMP, V_RES, 16)
        OS = f's[{S_OUT}:{S_OUT+3}]'
        if opt.out_lds and opt.stop is None:
            a.e(f'v_and_b32 v{V_T0}, 31, v{V_LANE}')
            a.e(f'v_lshlrev_b32 v{V_T0}, 7, v{V_T0}')
            a.e(f'v_lshrrev_b32 v{V_T1}, 5, v{V_LANE}')
            a.e(f'v_lshl_add_u32 v{V_T0}, v{V_T1}, 3, v{V_T0}')
            a.e(f's_lshl_b32 s{S_T0}, s{S_RH}, 12')
            a.e(f's_lshl_b32 s{S_T1}, s{S_CH}, 6')
            a.e(f's_add_u32 s{S_T0}, s{S_T0}, s{S_T1}')
            a.e(f'v_add_u32 v{V_T0}, s{S_T0}, v{V_T0}')
            for j in range(4):
                a.e(f'ds_write_b64 v{V_T0}, v[{TMP+2*j}:{TMP+2*j+1}] offset:{AREG + 16*j}')
            a.e(f'v_lshrrev_b32 v{V_T1}, 3, v{V_LANE}')
            a.e(f'v_and_b32 v{V_T2}, 7, v{V_LANE}')
            a.e(f'v_lshlrev_b32 v{V_X}, 7, v{V_T1}')
            a.e(f'v_lshl_add_u32 v{V_X}, v{V_T2}, 4, v{V_X}')
            a.e(f's_lshl_b32 s{S_T0}, s{S_W}, 11')
            a.e(f'v_add_u32 v{V_X}, s{S_T0}, v{V_X}')
            a.e(f'v_lshlrev_b32 v{V_X+1}, 10, v{V_T1}')
            a.e(f'v_lshl_add_u32 v{V_X+1}, v{V_T2}, 4, v{V_X+1}')
            a.e(f's_lshl_b32 s{S_T0}, s{S_G}, 8'); a.e(f's_lshl_b32 s{S_T1}, s{S_RB}, 6'); a.e(f's_add_u32 s{S_T0}, s{S_T0}, s{S_T1}')
            a.e(f's_lshl_b32 s{S_T1}, s{S_W}, 4'); a.e(f's_add_u32 s{S_T0}, s{S_T0}, s{S_T1}'); a.e(f's_lshl_b32 s{S_T0}, s{S_T0}, 10')
            a.e(f's_lshl_b32 s{S_T1}, s{S_CB}, 7'); a.e(f's_add_u32 s{S_T0}, s{S_T0}, s{S_T1}')
            a.e(f's_add_u32 s{S_T1}, s{S_T0}, 8192')
            a.e('s_waitcnt lgkmcnt(0)')
            a.e('s_barrier')
            a.e(f'ds_read_b128 v[{TMP+8}:{TMP+11}], v{V_X} offset:{AREG}')
            a.e(f'ds_read_b128 v[{TMP+12}:{TMP+15}], v{V_X} offset:{AREG + 1024}')
            a.e('s_waitcnt lgkmcnt(1)')
            a.e(f'buffer_store_dwordx4 v[{TMP+8}:{TMP+11}], v{V_X+1}, {OS}, s{S_T0} offen')
            a.e('s_waitcnt lgkmcnt(0)')
            a.e(f'buffer_store_dwordx4 v[{TMP+12}:{TMP+15}], v{V_X+1}, {OS}, s{S_T1} offen')
        else:
            for j in range(4):
                a.e(f'buffer_store_dwordx2 v[{TMP+2*j}:{TMP+2*j+1}], v{V_XRM}, {OS}, 0 offen offset:{16*j}')
    a.label('L_END_COMPUTE')
    nn = a.newlabel('NON')
    a.e(f's_or_b32 s{S_T0}, s2, s{S_W}')
    a.e(f's_cmp_eq_u32 s{S_T0}, 0')
    a.e(f's_cbranch_scc0 {nn}')
    a.e(f's_add_u32 s{S_T0}, s{S_V}, 1')
    a.e(f'v_mov_b32 v{V_T0}, s{S_T0}')
    a.e(f'v_mov_b32 v{V_T1}, {hex(NONCE_OFF)}')
    a.e('s_mov_b64 exec, 1')
    a.e(f'buffer_store_dword v{V_T0}, v{V_T1}, {WS}, 0 offen')
    a.e('s_mov_b64 exec, -1')
    a.label(nn)
    stamp()
    if opt.timing: dump([tmreg(i) for i in range(tm[0])] + ([85] if False else []))
    if opt.fine: dump([freg(i) for i in range(fs[0])])
    if opt.wall:
        a.e('s_waitcnt vmcnt(0)')
        a.e('s_memrealtime s[82:83]'); a.e('s_memtime s[80:81]'); a.e('s_waitcnt lgkmcnt(0)')
        dump([84, 82, 85, 80])
    a.e('s_waitcnt vmcnt(0)')
    a.e('s_endpgm')
    return evq


def hstamp(a, opt, slot):
    if not (opt.dbgout >= 0 and opt.fine): return
    sk = a.newlabel('HS')
    a.e('s_memtime s[98:99]'); a.e('s_waitcnt lgkmcnt(0)')
    a.e(f's_cmp_eq_u32 s2, {opt.dbgwg}'); a.e(f's_cbranch_scc0 {sk}')
    a.e('s_sub_u32 s98, s98, s96')
    a.e('v_mov_b32 v254, s98'); a.e(f'v_mov_b32 v253, {4*slot}')
    a.e('global_store_dword v253, v254, s[86:87]')
    a.label(sk)
    a.vm.append('hs')

def gen_loader(a, opt, events):
    VN, VKV, VQ, VW3, VKVn, VQn = 8, 12, 16, 20, 28, 32
    VT0, VT1, VT2, VT3 = 1, 2, 3, 4
    a.c('--- loader setup')
    if opt.prio_l: a.e(f's_setprio {opt.prio_l}')
    def srd(s, p, size):
        a.e(f's_mov_b32 s{s}, s{p}'); a.e(f's_mov_b32 s{s+1}, s{p+1}')
        a.e(f's_mov_b32 s{s+2}, {hex(size)}'); a.e(f's_mov_b32 s{s+3}, 0x20000')
    srd(S_WQKV, S_PTR + 2, 512 * 1536 * 2)
    srd(S_WO, S_PTR + 4, 512 * 512 * 2)
    srd(S_W1, S_PTR + 8, 512 * 512 * 2)
    srd(S_W2, S_PTR + 10, 512 * 512 * 2)
    srd(S_W3, S_PTR + 12, 512 * 1792 * 2)
    srd(S_W4, S_PTR + 14, 1792 * 512 * 2)
    CBS, CBK, CB6, CB7 = 64, 68, 72, 76
    a.e(f's_lshl_b32 s{S_T1}, s{S_RB2}, 1')
    a.e(f's_add_u32 s{S_T1}, s{S_T1}, s{S_CB2}')
    a.e(f's_and_b32 s{S_T1}, s{S_T1}, {3 if opt.rot else 0}')
    for c in range(4):
        a.e(f's_xor_b32 s{CBK+c}, s{S_T1}, {c}')
        a.e(f's_mul_i32 s{CBK+c}, s{CBK+c}, {128*3072}')
    def late_tables():
        rm = 3 if opt.rot else 0
        for c in range(4):
            a.e(f's_and_b32 s{CBS+c}, s{S_RB}, {rm}')
            a.e(f's_xor_b32 s{CBS+c}, s{CBS+c}, {c}')
            a.e(f's_lshl_b32 s{CBS+c}, s{CBS+c}, 17')
            a.e(f's_lshl_b32 s{CB6+c}, s{S_RB2}, 1')
            a.e(f's_and_b32 s{CB6+c}, s{CB6+c}, {rm}')
            a.e(f's_xor_b32 s{CB6+c}, s{CB6+c}, {c}')
            a.e(f's_mul_i32 s{CB6+c}, s{CB6+c}, {128*3584}')
        for p_ in range(8):
            a.e(f's_and_b32 s{CB7+p_}, s{S_RB}, {rm}')
            a.e(f's_lshl_b32 s{CB7+p_}, s{CB7+p_}, 1')
            a.e(f's_xor_b32 s{CB7+p_}, s{CB7+p_}, {p_}')
            a.e(f's_mul_i32 s{CB7+p_}, s{CB7+p_}, {224*1024}')

    def cs_issue():
        a.c('cs pieces')
        c1 = a.newlabel('CS'); c2 = a.newlabel('CS'); c3 = a.newlabel('CS')
        a.e(f's_min_u32 s{92}, s2, 239')
        a.e(f's_lshr_b32 s{93}, s{92}, 2')
        a.e(f's_and_b32 s{94}, s{92}, 3')
        a.e(f's_cmp_lt_u32 s{93}, 24')
        a.e(f's_cbranch_scc0 {c1}')
        for i in range(3): a.e(f's_mov_b32 s{S_CSRD+i}, s{S_WQKV+i}')
        a.e(f's_mov_b32 s{S_T0}, 3072')
        a.e(f's_lshl_b32 s{S_T1}, s{93}, 7')
        a.e(f's_branch {c3}')
        a.label(c1)
        a.e(f's_cmp_lt_u32 s{93}, 32')
        a.e(f's_cbranch_scc0 {c2}')
        for i in range(3): a.e(f's_mov_b32 s{S_CSRD+i}, s{S_W1+i}')
        a.e(f's_mov_b32 s{S_T0}, 1024')
        a.e(f's_sub_u32 s{S_T1}, s{93}, 24')
        a.e(f's_lshl_b32 s{S_T1}, s{S_T1}, 7')
        a.e(f's_branch {c3}')
        a.label(c2)
        for i in range(3): a.e(f's_mov_b32 s{S_CSRD+i}, s{S_W3+i}')
        a.e(f's_mov_b32 s{S_T0}, 3584')
        a.e(f's_sub_u32 s{S_T1}, s{93}, 32')
        a.e(f's_lshl_b32 s{S_T1}, s{S_T1}, 7')
        a.label(c3)
        a.e(f's_mov_b32 s{S_CSRD+3}, 0x20000')
        a.e(f'v_lshrrev_b32 v{VT1}, 3, v{V_LANE}')
        a.e(f'v_mul_lo_u32 v{VT1}, v{VT1}, s{S_T0}')
        a.e(f'v_and_b32 v{VT2}, 7, v{V_LANE}')
        a.e(f'v_lshl_add_u32 v{VT1}, v{VT2}, 4, v{VT1}')
        a.e(f'v_add_u32 v{VT1}, s{S_T1}, v{VT1}')
        a.e(f's_lshl_b32 s{S_T1}, s{94}, 7')
        a.e(f's_mul_i32 s{S_T1}, s{S_T1}, s{S_T0}')
        a.e(f's_lshl_b32 s{S_T0}, s{S_T0}, 3')
        a.e(f's_mov_b32 m0, {hex(CSL)}')
        for p in range(16):
            a.e('s_nop 0')
            a.vmem(f'buffer_load_dwordx4 v{VT1}, s[{S_CSRD}:{S_CSRD+3}], s{S_T1} offen lds', 'cs')
            if p < 15:
                a.e('s_add_u32 m0, m0, 1024')
                a.e(f's_add_u32 s{S_T1}, s{S_T1}, s{S_T0}')
    dg = [0]
    def dstamp():
        if opt.startdiag:
            a.e(f's_memtime s[{84+2*dg[0]}:{85+2*dg[0]}]') if False else None
            a.e('s_memtime s[98:99]'); a.e('s_waitcnt lgkmcnt(0)')
            a.e('s_sub_u32 s98, s98, s100')
            a.e(f'v_mov_b32 v{100+dg[0]}, s98'); dg[0] += 1
    dstamp()
    cs_issue()
    a.e(f'v_lshrrev_b32 v{VT0}, 3, v{V_LANE}')
    a.e(f'v_bfe_u32 v{VT1}, v{VT0}, 1, 2')
    a.e(f'v_lshlrev_b32 v{VT1}, 1, v{VT1}')
    a.e(f'v_and_b32 v{VT2}, 7, v{V_LANE}')
    a.e(f'v_xor_b32 v{VT2}, v{VT2}, v{VT1}')
    a.e(f'v_and_b32 v{VT1}, 3, v{VT2}')
    a.e(f'v_lshlrev_b32 v{VT3}, 4, v{VT1}')
    a.e(f'v_lshrrev_b32 v{VT1}, 2, v{VT2}')
    a.e(f'v_lshl_add_u32 v{VT3}, v{VT1}, 10, v{VT3}')
    a.e(f's_lshl_b32 s{S_T0}, s{S_CB2}, 6')
    a.e(f's_add_u32 s{S_T1}, s{S_T0}, 1024')
    a.e(f'v_add_u32 v{VT3}, s{S_T1}, v{VT3}')
    a.e(f'v_lshrrev_b32 v{VT1}, 2, v{VT0}')
    a.e(f'v_lshlrev_b32 v{VT1}, 3, v{VT1}')
    a.e(f'v_and_b32 v{VT2}, 3, v{VT0}')
    a.e(f'v_add_u32 v{VT1}, v{VT1}, v{VT2}')
    a.e(f'v_mul_u32_u24 v{VT1}, 3072, v{VT1}')
    a.e(f'v_add_u32 v{VT1}, v{VT1}, v{VT3}')
    for p in range(4):
        off = (16 * (p & 1) + 4 * (p >> 1)) * 3072 - p * 1024
        a.e(f'v_add_u32 v{VKVn+p}, {hex(off & 0xffffffff)}, v{VT1}')
    a.e(f'v_mul_u32_u24 v{VKV}, 3072, v{VT0}')
    a.e(f'v_add_u32 v{VKV}, v{VKV}, v{VT3}')
    for j in range(1, 4): a.e(f'v_add_u32 v{VKV+j}, {hex(j*(8*3072-1024))}, v{VKV}')

    layers = sorted(set(e[0] for e in events))
    slabs = {L: build_slabs(L) for L in layers}
    stream = []
    needed = set((e[0], e[2], e[3]) for e in events if e[1] == 'B')
    for L in layers:
        for p in PHASES:
            for ci, ch in enumerate(slabs[L][p]):
                if (L, p, ci) in needed: stream += ch
    released = set()
    log = []; cur = ['start']
    opt._log = log
    st = {'issued': 0}
    win = [opt.window0]
    def overlaps_unreleased(s, idx):
        for k in range(idx):
            o = stream[k]
            if (o.layer, o.phase, o.chunk) in released: continue
            if o.addr < s.addr + s.size and s.addr < o.addr + o.size: return True
        return False
    def emit_slab(s):
        kind = s.kind; tag = (s.layer, s.phase, s.chunk)
        if kind in opt.dbg_skip.split(','): return
        if kind in ('WO', 'W1', 'W2', 'W4'):
            srd_ = {'WO': S_WO, 'W1': S_W1, 'W2': S_W2, 'W4': S_W4}[kind]; vb = VN; rs = 1024
        elif kind == 'KV': srd_, vb, rs = S_WQKV, (VKVn if s.layer == 0 else VKV), 3072
        elif kind == 'Q': srd_, vb, rs = S_WQKV, (VQn if s.layer == 0 else VQ), 3072
        else: srd_, vb, rs = S_W3, VW3, 3584
        R4 = f's[{srd_}:{srd_+3}]'
        def grp(addr, srow, ps, v0):
            a.e(f's_mov_b32 m0, {hex(addr)}')
            if kind == 'W4':
                p_, rr_ = divmod(srow, 224); tb_ = CB7 + p_
            else:
                c_, rr_ = divmod(srow, 128); tb_ = {'KV': CBK, 'Q': CBK, 'W3': CB6}.get(kind, CBS) + c_
            a.e(f's_add_u32 s{S_T0}, s{tb_}, {hex(rr_*rs)}')
            for k, p in enumerate(ps):
                a.vmem(f'buffer_load_dwordx4 v{vb+p}, {R4}, s{S_T0} offen offset:{k*1024} {"nt " if opt.w_nt else ""}lds', tag)
        if kind == 'W3':
            grp(s.addr, s.srow, [0, 1, 2, 3], 0); grp(s.addr + 4096, s.srow, [4, 5, 6], 0)
        elif kind == 'W4' and s.srow2 != s.srow + 16:
            grp(s.addr, s.srow, [0, 1], 0); grp(s.addr + 2048, s.srow2, [0, 1], 0)
        else:
            grp(s.addr, s.srow, [0, 1, 2, 3], 0)
        if len(a.vm) > win[0]:
            a.e(f's_waitcnt vmcnt({win[0]})')
            a.vm = a.vm[len(a.vm) - win[0]:]
    plan = {}
    opt._plan = plan
    free = [56, 56]
    def need_slots(s): return (4, 3) if s.kind == 'W3' else (2, 2)
    def park_policy(key):
        if not opt.park: return
        name = key.split('.', 1)[1] if key[0] in '01' else None
        if name is None: return
        L = int(key[0])
        if name in opt.park_w3:
            cand = [s for s in stream[st['issued']:] if s.layer == L and s.phase == 'P6' and s.chunk >= 1]; cap = opt.park_w3[name]
        elif name in opt.park_caps:
            cand = [s for s in stream[st['issued']:] if s.layer == L and s.phase == 'P7' and s.chunk >= 6]; cap = opt.park_caps[name]
        else:
            return
        for s in cand:
            if getattr(s, 'parked', False): continue
            n0, n1 = need_slots(s)
            if cap <= 0 or free[0] < n0 or free[1] < n1: break
            s.parked = True; free[0] -= n0; free[1] -= n1; cap -= 1
            plan.setdefault(key, []).append(('park', s))
    def issue(cap, must=None):
        n = 0; nu = 0
        while st['issued'] < len(stream):
            s = stream[st['issued']]
            forced = must is not None and any((o.layer, o.phase, o.chunk) == must for o in stream[st['issued']:])
            pk_ = getattr(s, 'parked', False)
            if not forced and not pk_ and n + s.npieces > cap: break
            if not forced and pk_ and (nu >= opt.unpark_max or must is not None): break
            if overlaps_unreleased(s, st['issued']):
                assert not forced, ('deadlock', must, s.layer, s.phase, s.chunk)
                break
            if pk_:
                plan.setdefault(cur[0], []).append(('unpark', s)); nu += 1
                n0, n1 = need_slots(s); free[0] += n0; free[1] += n1
                st['issued'] += 1
                log.append((cur[0], s.layer, s.phase + '*', s.chunk, forced))
                continue
            emit_slab(s); st['issued'] += 1; n += s.npieces
            log.append((cur[0], s.layer, s.phase, s.chunk, forced))
    if WARM0[0]:
        a.e('s_barrier')
        events = events[1:]
    hstamp(a, opt, 8)
    issue(32)
    hstamp(a, opt, 9)
    dstamp()
    def nonce_setup():
        a.e('s_waitcnt lgkmcnt(0)')
        a.e(f's_mul_i32 s{S_B}, s{S_V}, 0x9e3779b1')
        a.e(f's_add_u32 s{S_B}, s{S_B}, 0x7f4a7c15')
        a.e(f's_and_b32 s{S_B}, s{S_B}, 0xffffff00')
    def late_setup():
        if not opt.cs_late: nonce_setup()
        a.e(f's_lshl_b32 s{S_T0}, s{S_G}, 7')
        a.e(f's_lshl_b32 s{S_T1}, s{S_R}, 2')
        a.e(f's_add_u32 s{S_T0}, s{S_T0}, s{S_T1}')
        a.e(f's_add_u32 s{S_T0}, s{S_T0}, {hex(XID_OFF)}')
        a.e(f'v_mov_b32 v{VT1}, s{S_T0}')
        a.e(f's_add_u32 s{S_T1}, s{S_B}, s{S_XCC}')
        a.e(f'v_mov_b32 v{VT0}, s{S_T1}')
        a.e('s_mov_b64 exec, 1')
        a.vmem(f'buffer_store_dword v{VT0}, v{VT1}, {WS}, 0 offen sc1', 'xid')
        a.e('s_mov_b64 exec, -1')
        late_tables()
        a.c('W lane offsets')
        a.e(f'v_lshrrev_b32 v{VT0}, 3, v{V_LANE}')
        a.e(f'v_bfe_u32 v{VT1}, v{VT0}, 1, 1')
        a.e(f'v_lshlrev_b32 v{VT1}, 2, v{VT1}')
        a.e(f'v_and_b32 v{VT2}, 7, v{V_LANE}')
        a.e(f'v_xor_b32 v{VT2}, v{VT2}, v{VT1}')
        a.e(f'v_lshlrev_b32 v{VN}, 10, v{VT0}')
        a.e(f'v_lshl_add_u32 v{VN}, v{VT2}, 4, v{VN}')
        a.e(f's_lshl_b32 s{S_T0}, s{S_CB}, 7')
        a.e(f'v_add_u32 v{VN}, s{S_T0}, v{VN}')
        for j in range(1, 4): a.e(f'v_add_u32 v{VN+j}, {hex(j*(8192-1024))}, v{VN}')
        a.e(f'v_lshrrev_b32 v{VT0}, 2, v{V_LANE}')
        a.e(f'v_bfe_u32 v{VT1}, v{VT0}, 2, 1')
        a.e(f'v_lshlrev_b32 v{VT1}, 1, v{VT1}')
        a.e(f'v_and_b32 v{VT2}, 3, v{V_LANE}')
        a.e(f'v_xor_b32 v{VT2}, v{VT2}, v{VT1}')
        a.e(f'v_lshlrev_b32 v{VT3}, 4, v{VT2}')
        a.e(f's_lshl_b32 s{S_T0}, s{S_CB2}, 6')
        a.e(f'v_add_u32 v{VT3}, s{S_T0}, v{VT3}')
        a.e(f'v_mul_u32_u24 v{VQ}, 3072, v{VT0}')
        a.e(f'v_add_u32 v{VQ}, v{VQ}, v{VT3}')
        for j in range(1, 4): a.e(f'v_add_u32 v{VQ+j}, {hex(j*(16*3072-1024))}, v{VQ}')
        a.e(f'v_lshrrev_b32 v{VT1}, 2, v{VT0}')
        a.e(f'v_lshlrev_b32 v{VT1}, 3, v{VT1}')
        a.e(f'v_and_b32 v{VT2}, 3, v{VT0}')
        a.e(f'v_add_u32 v{VT1}, v{VT1}, v{VT2}')
        a.e(f'v_mul_u32_u24 v{VT1}, 3072, v{VT1}')
        a.e(f'v_add_u32 v{VT1}, v{VT1}, v{VT3}')
        for p in range(4):
            off = (4 * (p & 1) + 32 * (p >> 1)) * 3072 - p * 1024
            a.e(f'v_add_u32 v{VQn+p}, {hex(off & 0xffffffff)}, v{VT1}')
        a.e(f's_mul_i32 s{S_T0}, s{S_CB2}, 224')
        M14 = (1 << 20) // 14 + 1
        a.e(f's_mov_b32 s{S_T1}, {hex(M14)}')
        for p in range(7):
            a.e(f'v_add_u32 v{VT0}, {64*p}, v{V_LANE}')
            a.e(f'v_mul_lo_u32 v{VT1}, v{VT0}, s{S_T1}')
            a.e(f'v_lshrrev_b32 v{VT1}, 20, v{VT1}')
            a.e(f'v_mul_u32_u24 v{VT2}, 14, v{VT1}')
            a.e(f'v_sub_u32 v{VT2}, v{VT0}, v{VT2}')
            a.e(f'v_mul_u32_u24 v{VW3+p}, 3584, v{VT1}')
            a.e(f'v_lshl_add_u32 v{VW3+p}, v{VT2}, 4, v{VW3+p}')
            a.e(f'v_add_u32 v{VW3+p}, s{S_T0}, v{VW3+p}')
            if p % 4: a.e(f'v_subrev_u32 v{VW3+p}, {(p%4)*1024}, v{VW3+p}')
        for u in range(448): assert (u * M14) >> 20 == u // 14

    def cs_part1():
        a.wait_vm('cs')
        a.e(f'v_bfe_u32 v{VT0}, v{V_LANE}, 2, 2')
        a.e(f'v_lshrrev_b32 v{VT1}, 4, v{V_LANE}')
        a.e(f'v_lshl_add_u32 v{VT0}, v{VT1}, 2, v{VT0}')
        a.e(f'v_lshlrev_b32 v{VT0}, 7, v{VT0}')
        a.e(f'v_and_b32 v{VT2}, 3, v{V_LANE}')
        a.e(f'v_lshl_add_u32 v{VT0}, v{VT2}, 3, v{VT0}')
        a.e(f'v_add_u32 v{VT0}, {hex(CSL)}, v{VT0}')
        for i in range(4): a.e(f'v_mov_b32 v{40+i}, 0x3f803f80')
        for j in range(4):
            for t in range(4):
                a.e(f'ds_read_b64_tr_b16 v[{64+4*t}:{65+4*t}], v{VT0} offset:{j*4096+t*32}')
                a.e(f'ds_read_b64_tr_b16 v[{66+4*t}:{67+4*t}], v{VT0} offset:{j*4096+t*32+2048}')
            a.e('s_waitcnt lgkmcnt(0)')
            for t in range(4):
                c = '0' if j == 0 else f'v[{44+4*t}:{47+4*t}]'
                a.e(f'v_mfma_f32_16x16x32_bf16 v[{44+4*t}:{47+4*t}], v[{64+4*t}:{67+4*t}], v[40:43], {c}')
        a.e(f's_mul_i32 s{S_T0}, s{94}, 15360')
        a.e(f's_lshl_b32 s{S_T1}, s{93}, 8')
        a.e(f's_add_u32 s{S_T0}, s{S_T0}, s{S_T1}')
        a.e(f's_add_u32 s{S_T0}, s{S_T0}, {hex(CSP_OFF)}')
        a.e(f'v_lshlrev_b32 v{VT1}, 4, v{VT1}')
        a.e('s_nop 7')
        set_exec(a, 0x00010001)
        for t in range(4):
            a.vmem(f'buffer_store_dwordx4 v[{44+4*t}:{47+4*t}], v{VT1}, {WS}, s{S_T0} offen offset:{64*t} sc1', 'csst')
        a.e('s_mov_b64 exec, -1')
        if opt.kv_atomic:
            zl = a.newlabel('ZK')
            a.e(f's_lshr_b32 s{S_T0}, s2, 3')
            a.e(f's_mul_i32 s{S_T0}, s{S_T0}, {KVREC}')
            a.e(f's_add_u32 s{S_T0}, s{S_T0}, {hex(KVA_OFF)}')
            a.e(f's_and_b32 s{S_T1}, s2, 0x87')
            a.e(f's_cmp_eq_u32 s{S_T1}, 0')
            a.e(f's_cselect_b32 s{S_T1}, 0, 0x80000000')
            for i in range(4): a.e(f'v_mov_b32 v{60+i}, 0')
            a.e(f'v_lshlrev_b32 v{VT0}, 4, v{V_LANE}')
            a.e(f'v_or_b32 v{VT0}, s{S_T1}, v{VT0}')
            for l_ in range(2):
                a.vmem(f'buffer_store_dwordx4 v[60:63], v{VT0}, {WS}, s{S_T0} offen sc1', 'csst')
                a.vmem(f'buffer_store_dwordx4 v[60:63], v{VT0}, {WS}, s{S_T0} offen offset:1024 sc1', 'csst')
                a.e('s_mov_b64 exec, 0xff')
                a.vmem(f'buffer_store_dwordx4 v[60:63], v{VT0}, {WS}, s{S_T0} offen offset:2048 sc1', 'csst')
                a.e('s_mov_b64 exec, -1')
                if l_ == 0: a.e(f's_add_u32 s{S_T0}, s{S_T0}, {16*KVREC}')
    def cs_part2():
        a.e(f's_lshl_b32 s{S_T0}, s2, 7')
        a.e(f's_add_u32 s{S_T0}, s{S_T0}, {hex(CSF_OFF)}')
        a.e(f'v_mov_b32 v{VT1}, s{S_T0}')
        a.e(f's_add_u32 s{S_T1}, s{S_B}, 8')
        a.e(f'v_mov_b32 v{VT0}, s{S_T1}')
        a.wait_vm('csst')
        a.e('s_mov_b64 exec, 1')
        a.vmem(f'buffer_store_dword v{VT0}, v{VT1}, {WS}, 0 offen sc1', 'csf')
        a.e('s_mov_b64 exec, -1')
    def cs_fill():
        L_ = a.newlabel('CPOLL'); D_ = a.newlabel('CPOLLD')
        a.e(f'v_min_u32 v{VT0}, 27, v{V_LANE}')
        a.e(f'v_lshrrev_b32 v{VT2}, 2, v{VT0}')
        a.e(f's_lshr_b32 s{S_T0}, s{S_CB2}, 1')
        a.e(f'v_lshlrev_b32 v{VT1}, 3, v{VT2}')
        a.e(f'v_add_u32 v{VT1}, s{S_T0}, v{VT1}')
        a.e(f's_add_u32 s{S_T0}, s{S_CB}, 24')
        a.e(f'v_mov_b32 v{VT3}, s{S_T0}')
        a.e(f'v_cmp_eq_u32 vcc, 3, v{VT2}')
        a.e('s_nop 1')
        a.e(f'v_cndmask_b32 v{VT1}, v{VT1}, v{VT3}, vcc')
        a.e(f's_mul_i32 s{S_T0}, s{S_CB2}, 112')
        a.e(f's_lshr_b32 s{S_T0}, s{S_T0}, 6')
        a.e(f's_add_u32 s{S_T0}, s{S_T0}, {32 - 4}')
        a.e(f'v_add_u32 v{VT3}, s{S_T0}, v{VT2}')
        a.e(f'v_min_u32 v{VT3}, 59, v{VT3}')
        a.e(f'v_cmp_lt_u32 vcc, 3, v{VT2}')
        a.e('s_nop 1')
        a.e(f'v_cndmask_b32 v{VT1}, v{VT1}, v{VT3}, vcc')
        a.e(f'v_and_b32 v{VT0}, 3, v{VT0}')
        a.e(f'v_lshl_add_u32 v{VT1}, v{VT1}, 2, v{VT0}')
        if opt.kv_atomic:
            a.e(f's_lshl_b32 s{S_T0}, s{S_CB2}, 3')
            a.e(f'v_mov_b32 v{VT3}, s{S_T0}')
            a.e(f'v_cmp_lt_u32 vcc, 27, v{V_LANE}')
            a.e('s_nop 1')
            a.e(f'v_cndmask_b32 v{VT1}, v{VT1}, v{VT3}, vcc')
        a.e(f'v_lshlrev_b32 v{VT1}, 7, v{VT1}')
        a.e(f's_mov_b32 s{S_T0}, {hex(CSF_OFF)}')
        a.e(f's_add_u32 s{S_T1}, s{S_B}, 8')
        a.e(f's_mov_b32 s{95}, {opt.spin}')
        a.label(L_)
        a.e(f'buffer_load_dword v40, v{VT1}, {WS}, s{S_T0} offen sc1')
        a.e('s_waitcnt vmcnt(0)')
        a.e(f'v_subrev_u32 v40, s{S_T1}, v40')
        a.e('v_cmp_gt_u32 vcc, 0x80, v40')
        a.e(f's_sub_u32 s{95}, s{95}, 1')
        a.e(f's_cbranch_scc1 {D_}')
        a.e('s_cmp_eq_u64 vcc, -1')
        a.e(f's_cbranch_scc0 {L_}')
        a.label(D_)
        a.vm = []
        def colof(dst, gofs):
            a.e(f'v_add_u32 v{VT0}, {gofs}, v{V_LANE}')
            a.e(f'v_lshlrev_b32 v{VT2}, 2, v{VT0}')
            a.e(f's_lshl_b32 s{S_T0}, s{S_CB2}, 5')
            a.e(f's_mul_i32 s{S_T1}, s{S_CB2}, 112')
            a.e(f's_add_u32 s{S_T1}, s{S_T1}, {2048 - 160}')
            a.e(f'v_add_u32 v{dst}, s{S_T1}, v{VT2}')
            for lim, addc, useb in [(40, 1536 - 96, 'cb'), (24, -64, 'hp'), (16, 1024 - 32, 'hp'), (8, 512, 'hp')]:
                if useb == 'cb':
                    a.e(f's_lshl_b32 s{S_T1}, s{S_CB}, 6')
                    a.e(f's_add_u32 s{S_T1}, s{S_T1}, {addc}')
                else:
                    a.e(f's_add_u32 s{S_T1}, s{S_T0}, {hex(addc & 0xffffffff)}')
                a.e(f'v_add_u32 v{VT3}, s{S_T1}, v{VT2}')
                a.e(f'v_cmp_gt_u32 vcc, {lim}, v{VT0}')
                a.e('s_nop 1')
                a.e(f'v_cndmask_b32 v{dst}, v{dst}, v{VT3}, vcc')
            a.e(f'v_lshlrev_b32 v{dst}, 2, v{dst}')
        colof(36, 0); colof(37, 64)
        a.e(f's_mov_b32 s{S_T0}, {hex(CSP_OFF)}')
        for kq in range(4):
            a.e(f'buffer_load_dwordx4 v[{40+4*kq}:{43+4*kq}], v36, {WS}, s{S_T0} offen sc1')
            a.e('s_mov_b64 exec, 0xf')
            a.e(f'buffer_load_dwordx4 v[{56+4*kq}:{59+4*kq}], v37, {WS}, s{S_T0} offen sc1')
            a.e('s_mov_b64 exec, -1')
            if kq < 3: a.e(f's_add_u32 s{S_T0}, s{S_T0}, 15360')
        a.e(f'v_lshlrev_b32 v{VT0}, 4, v{V_LANE}')
        a.e(f'v_add_u32 v{VT0}, {hex(CSC)}, v{VT0}')
        a.e('s_waitcnt vmcnt(0)')
        for b in (40, 56):
            for i in (0, 2):
                a.e(pk('add', b + i, vp(b + i), vp(b + 4 + i)))
                a.e(pk('add', b + 8 + i, vp(b + 8 + i), vp(b + 12 + i)))
                a.e(pk('add', b + i, vp(b + i), vp(b + 8 + i)))
        a.e(f'ds_write_b128 v{VT0}, v[40:43]')
        a.e('s_mov_b64 exec, 0xf')
        a.e(f'ds_write_b128 v{VT0}, v[56:59] offset:1024')
        a.e('s_mov_b64 exec, -1')
        a.e('s_waitcnt lgkmcnt(0)')

    if not opt.cs_late: cs_part1()
    chunks_of = {}
    for s in stream: chunks_of.setdefault((s.layer, s.phase), set()).add(s.chunk)
    nb = 0
    for ev in events:
        L, kind, p, ci = ev
        if kind == 'B':
            cur[0] = f'pre {L}.{p}.B{ci}'
            issue(0, must=(L, p, ci))
            cur[0] = f'{L}.{p}.B{ci}'
            if nb < 5: dstamp()
            a.wait_vm((L, p, ci))
            if nb == 0: hstamp(a, opt, 10)
            if nb == 1: hstamp(a, opt, 11)
            if nb < 5: dstamp()
            a.e('s_barrier')
            nb += 1
            if ci >= 2: released.add((L, p, ci - 2))
            if ci == 0:
                for (l2, p2), cs_ in chunks_of.items():
                    if p2 in NOE and (l2, PHASES.index(p2)) < (L, PHASES.index(p)):
                        for c in cs_: released.add((l2, p2, c))
            if opt.cs_late and nb <= 4:
                if nb == 1:
                    issue(16)
                    cs_part1()
                    nonce_setup()
                elif nb == 2:
                    issue(16)
                    cs_part2()
                    late_setup()
                elif nb == 3:
                    pass
                elif nb == 4:
                    cs_fill()
                    win[0] = opt.window
            elif nb == 1:
                issue(32)
                late_setup()
                cs_part2()
            elif nb == 3:
                cs_fill()
                win[0] = opt.window
            elif nb in (2, 4):
                pass
            else:
                issue(opt.caps.get(f'{p}.B{ci}', opt.caps.get(f'{p}.B*', 0)))
                park_policy(cur[0])
        elif kind == 'E':
            cur[0] = f'{L}.{p}.E'
            a.e('s_barrier')
            for c in chunks_of[(L, p)]: released.add((L, p, c))
            issue(opt.caps.get(f'{p}.E', 0))
            park_policy(cur[0])
        else:
            cur[0] = f'{L}.{p}'
            a.e('s_barrier')
            issue(opt.caps.get(p, 0))
            park_policy(cur[0])
    if opt.startdiag:
        a.e(f's_lshl_b32 s{S_T0}, s2, 8')
        a.e(f's_add_u32 s{S_T0}, s{S_T0}, {hex(TM_OFF + 128)}')
        for i in range(dg[0]):
            a.e(f'v_mov_b32 v99, {4*i}')
            a.e(f'buffer_store_dword v{100+i}, v99, {WS}, s{S_T0} offen')
    a.e('s_waitcnt vmcnt(0)')
    a.e('s_endpgm')


def gen_toucher(a, opt, events):
    a.c('--- A loader / toucher')
    if opt.prio_a: a.e(f's_setprio {opt.prio_a}')
    mats = {'WO': (S_PTR + 4, 512 * 512 * 2), 'W1': (S_PTR + 8, 512 * 512 * 2),
            'W2': (S_PTR + 10, 512 * 512 * 2), 'W3': (S_PTR + 12, 512 * 1792 * 2), 'W4': (S_PTR + 14, 1792 * 512 * 2)}
    srds = {}
    for i, (k, (p, size)) in enumerate(mats.items()):
        s = 40 + 4 * i
        a.e(f's_mov_b32 s{s}, s{p}'); a.e(f's_mov_b32 s{s+1}, s{p+1}')
        a.e(f's_mov_b32 s{s+2}, {hex(size)}'); a.e(f's_mov_b32 s{s+3}, 0x20000')
        srds[k] = s
    T0s, T1s, T2s, T3s, T4s, T5s = 33, 34, 35, 36, 37, 38
    THR, SPIN = 60, 61
    RA, P7T = 64, 68
    U0, U1, U2, U3, U4 = 76, 77, 78, 79, 80
    VAS, VAG, VFS, VFB, VFH, VAH = 3, 4, 5, 6, 7, 8
    X0, X1, X2, X3 = 24, 25, 26, 27
    X0W = 31
    e = a.e
    VXK = 40
    e(f'v_lshrrev_b32 v2, 4, v{V_LANE}')
    e(f'v_and_b32 v3, 15, v{V_LANE}')
    for k in range(4):
        e(f'v_add_u32 v{VXK+k}, {4*k}, v2'); e(f'v_xor_b32 v{VXK+k}, v{VXK+k}, v3'); e(f'v_lshlrev_b32 v{VXK+k}, 4, v{VXK+k}')
        e(f'v_lshl_add_u32 v{VXK+k}, v2, 10, v{VXK+k}')
    e(f's_lshl_b32 s33, s{S_G}, 8'); e(f's_lshl_b32 s34, s{S_RB2}, 7'); e('s_add_u32 s33, s33, s34'); e('s_lshl_b32 s82, s33, 10')
    e(f's_lshl_b32 s83, s{S_RB2}, 1'); e(f's_add_u32 s83, s83, s{S_CB2}'); e(f's_and_b32 s83, s83, {3 if opt.rot else 0}')
    e(f's_lshr_b32 s81, s{S_CB2}, 2'); e(f's_lshl_b32 s81, s81, {13 if opt.rot else 31}')
    if not opt.rot: e('s_mov_b32 s81, 0')
    def x_chunk(c, half=None):
        e(f's_xor_b32 s33, s83, {c}'); e('s_lshl_b32 s33, s33, 8'); e('s_add_u32 s33, s33, s82')
        if half == 1:
            e('s_add_u32 s34, s81, 16384'); e('s_and_b32 s34, s34, 0x7fff')
        else:
            e('s_mov_b32 s34, s81')
        n = 8 if half is None else 4
        e(f's_mov_b32 s36, {n}')
        lp = a.newlabel('XC'); a.label(lp)
        for k in range(4):
            e(f's_add_u32 m0, s34, {hex(AREG + (c & 1) * 32768)}')
            e('s_lshl_b32 s35, s34, 2'); e('s_add_u32 s35, s35, s33')
            e(f'buffer_load_dwordx4 v{VXK + k}, s[{S_X}:{S_X+3}], s35 offen lds')
            e('s_add_u32 s34, s34, 1024')
        e('s_and_b32 s34, s34, 0x7fff')
        e('s_sub_u32 s36, s36, 1'); e('s_cmp_lg_u32 s36, 0'); e(f's_cbranch_scc1 {lp}')
        a.vm += [('X', c)] * (4 * n)
        assert len(a.vm) <= 63
    def x_tile():
        e(f'v_lshrrev_b32 v2, 3, v{V_LANE}'); e('v_lshlrev_b32 v2, 10, v2')
        e(f'v_and_b32 v30, 7, v{V_LANE}'); e('v_lshl_add_u32 v2, v30, 4, v2')
        e(f's_lshl_b32 s33, s{S_G}, 8'); e(f's_lshl_b32 s34, s{S_RB}, 6'); e('s_add_u32 s33, s33, s34'); e('s_lshl_b32 s33, s33, 10')
        e(f's_lshl_b32 s34, s{S_CB}, 7'); e('s_add_u32 s33, s33, s34')
        for p_ in range(8):
            e(f's_mov_b32 m0, {hex(AREG + p_ * 1024)}')
            if p_: e('s_add_u32 s33, s33, 8192')
            else: e('s_nop 0')
            a.vmem(f'buffer_load_dwordx4 v2, s[{S_X}:{S_X+3}], s33 offen lds', 'x')
    if WARM0[0]:
        e('s_barrier')
        events = events[1:]
    hstamp(a, opt, 12)
    x_chunk(0); x_chunk(1, 0)
    hstamp(a, opt, 13)
    e(f'v_lshlrev_b32 v1, 7, v{V_LANE}')
    e(f'v_lshlrev_b32 v{X0}, 4, v{V_LANE}')
    e(f'v_lshlrev_b32 v{X0W}, 4, v{V_LANE}')
    e(f's_lshl_b32 s{T0s}, s{S_G}, 4'); e(f's_lshl_b32 s{T1s}, s{S_RB}, 2'); e(f's_add_u32 s{T0s}, s{T0s}, s{T1s}')
    e(f's_lshl_b32 s{T1s}, s{T0s}, 14'); e(f'v_add_u32 v{VAS}, s{T1s}, v{X0}')
    e(f's_mul_i32 s{T1s}, s{T0s}, 57344'); e(f'v_add_u32 v{VAG}, s{T1s}, v{X0}')
    rmask = 3 if opt.rot else 0
    for c in range(4):
        e(f's_and_b32 s{RA+c}, s{S_RB}, {rmask}'); e(f's_xor_b32 s{RA+c}, s{RA+c}, {c}'); e(f's_lshl_b32 s{RA+c}, s{RA+c}, 12')
    for p_ in range(8):
        e(f's_and_b32 s{P7T+p_}, s{S_RB}, {rmask}'); e(f's_lshl_b32 s{P7T+p_}, s{P7T+p_}, 1')
        e(f's_xor_b32 s{P7T+p_}, s{P7T+p_}, {p_}'); e(f's_mul_i32 s{P7T+p_}, s{P7T+p_}, 7168')
    e(f'v_and_b32 v{X1}, 15, v{V_LANE}')
    e(f'v_and_b32 v{X2}, 0x30, v{V_LANE}')
    e(f's_mul_i32 s{T3s}, s{S_G}, 18')
    e(f's_lshl_b32 s{T4s}, s{S_G}, 8')
    for c in range(4):
        e(f's_lshr_b32 s{T5s}, s{RA+c}, 12')
        e(f's_lshr_b32 s{U3}, s{T5s}, 1'); e(f's_add_u32 s{U3}, s{U3}, 1'); e(f's_sub_u32 s{U4}, 0, s{U3}')
        e(f's_bitcmp1_b32 s{T5s}, 0'); e(f's_cselect_b32 s{U3}, s{U3}, s{U4}')
        e(f's_lshl_b32 s{T2s}, s{S_RB}, 6'); e(f's_add_u32 s{T2s}, s{T2s}, s{U3}'); e(f's_add_u32 s{T2s}, s{T2s}, 16')
        for w in range(4):
            r = VAH + 4 * c + w
            e(f's_add_u32 s{T5s}, s{T2s}, {16 * w}')
            e(f'v_add_u32 v{r}, s{T5s}, v{X1}')
            e(f'v_lshrrev_b32 v{X3}, 4, v{r}'); e(f'v_add_u32 v{X3}, s{T3s}, v{X3}'); e(f'v_lshlrev_b32 v{X3}, 14, v{X3}')
            e(f'v_and_b32 v28, 15, v{r}'); e(f'v_add_u32 v28, v{X2}, v28'); e(f'v_lshl_add_u32 v{X3}, v28, 4, v{X3}')
            e(f'v_add_u32 v28, s{T4s}, v{r}'); e('v_subrev_u32 v28, 16, v28')
            e('v_cmp_gt_u32 vcc, 0x800, v28')
            e(f'v_mov_b32 v{r}, 0x80000000'); e('s_nop 0')
            e(f'v_cndmask_b32 v{r}, v{r}, v{X3}, vcc')
    e(f's_lshl_b32 s{T2s}, s{S_G}, 9'); e(f's_add_u32 s{T2s}, s{T2s}, {hex(LF_OFF)}')
    e(f'v_bfe_u32 v{X1}, v{V_LANE}, 3, 2'); e(f'v_lshlrev_b32 v{X1}, 7, v{X1}')
    e(f'v_and_b32 v{X2}, 7, v{V_LANE}'); e(f'v_lshl_add_u32 v{X1}, v{X2}, 2, v{X1}')
    e(f's_lshl_b32 s{T3s}, s{S_RB}, 5'); e(f's_add_u32 s{T3s}, s{T3s}, s{T2s}')
    e(f'v_add_u32 v{VFS}, s{T3s}, v{X1}')
    e(f's_and_b32 s{T3s}, s{S_RB}, 1'); e(f's_lshl_b32 s{T3s}, s{T3s}, 8'); e(f's_add_u32 s{T3s}, s{T3s}, s{T2s}')
    e(f's_lshr_b32 s{T4s}, s{S_RB}, 1'); e(f's_lshl_b32 s{T4s}, s{T4s}, 6'); e(f's_add_u32 s{T3s}, s{T3s}, s{T4s}')
    e(f'v_bfe_u32 v{X2}, v{V_LANE}, 4, 1'); e(f'v_lshlrev_b32 v{X2}, 7, v{X2}')
    e(f'v_and_b32 v{X3}, 15, v{V_LANE}'); e(f'v_lshl_add_u32 v{X2}, v{X3}, 2, v{X2}')
    e(f'v_add_u32 v{VFB}, s{T3s}, v{X2}')
    e(f's_lshl_b32 s{T3s}, s{S_R}, 2'); e(f's_add_u32 s{T3s}, s{T3s}, s{T2s}')
    e(f'v_and_b32 v{X2}, 3, v{V_LANE}'); e(f'v_lshlrev_b32 v{X2}, 7, v{X2}'); e(f'v_add_u32 v{X2}, s{T3s}, v{X2}')
    e(f'v_cmp_lt_u32 vcc, 31, v{V_LANE}'); e('s_nop 1')
    e(f'v_cndmask_b32 v{VFB}, v{VFB}, v{X2}, vcc')
    def build_fh(L):
        la = a.newlabel('FH'); lb = a.newlabel('FH')
        e(f's_lshl_b32 s{T2s}, s{S_G}, 9'); e(f's_add_u32 s{T2s}, s{T2s}, {hex(LF_OFF)}')
        e(f's_lshl_b32 s{T3s}, s{S_RB}, 5'); e(f's_add_u32 s{T3s}, s{T3s}, s{T2s}')
        e(f's_sub_u32 s{U1}, s{T3s}, 32'); e(f's_add_u32 s{U1}, s{U1}, 256'); e(f's_mov_b32 s{U3}, 128')
        e(f's_add_u32 s{U2}, s{T3s}, 32'); e(f's_mov_b32 s{U4}, 128')
        e(f's_lshl_b32 s{T4s}, s{S_G}, 8'); e(f's_add_u32 s{T4s}, s{T4s}, {hex(HF_OFF + L * 2048)}')
        e(f's_cmp_eq_u32 s{S_RB}, 0'); e(f's_cbranch_scc0 {la}')
        e(f's_mov_b32 s{U1}, s{T3s}')
        e(f's_cmp_eq_u32 s{S_G}, 0'); e(f's_cbranch_scc1 {la}')
        e(f's_mov_b32 s{U1}, s{T4s}'); e(f's_mov_b32 s{U3}, 0')
        a.label(la)
        e(f's_cmp_eq_u32 s{S_RB}, 3'); e(f's_cbranch_scc0 {lb}')
        e(f's_mov_b32 s{U2}, s{T3s}')
        e(f's_cmp_eq_u32 s{S_G}, 7'); e(f's_cbranch_scc1 {lb}')
        e(f's_add_u32 s{U2}, s{T4s}, 128'); e(f's_mov_b32 s{U4}, 0')
        a.label(lb)
        e(f'v_bfe_u32 v{X1}, v{V_LANE}, 3, 1'); e(f'v_and_b32 v{X2}, 7, v{V_LANE}'); e(f'v_lshlrev_b32 v{X2}, 2, v{X2}')
        for base_s, mul_s, sel in ((U1, U3, 2), (U2, U4, 3)):
            e(f'v_mul_u32_u24 v{X3}, s{mul_s}, v{X1}'); e(f'v_add_u32 v{X3}, v{X3}, v{X2}'); e(f'v_add_u32 v{X3}, s{base_s}, v{X3}')
            e(f'v_lshrrev_b32 v28, 4, v{V_LANE}'); e(f'v_cmp_eq_u32 vcc, {sel}, v28'); e('s_nop 1')
            e(f'v_cndmask_b32 v{VFH}, v{VFH if sel == 3 else VFS}, v{X3}, vcc')
    e('s_waitcnt lgkmcnt(0)')
    e(f's_mul_i32 s{S_B}, s{S_V}, 0x9e3779b1'); e(f's_add_u32 s{S_B}, s{S_B}, 0x7f4a7c15'); e(f's_and_b32 s{S_B}, s{S_B}, 0xffffff00')

    def poll(v, epoch):
        L_ = a.newlabel('AP'); D_ = a.newlabel('APD')
        e(f's_add_u32 s{THR}, s{S_B}, {8*epoch}'); e(f's_mov_b32 s{SPIN}, {opt.spin}')
        a.label(L_)
        e(f'buffer_load_dword v30, v{v}, {WS}, 0 offen sc1'); e('s_waitcnt vmcnt(0)')
        e(f'v_subrev_u32 v30, s{THR}, v30'); e('v_cmp_gt_u32 vcc, 0x80, v30')
        e(f's_sub_u32 s{SPIN}, s{SPIN}, 1'); e(f's_cbranch_scc1 {D_}')
        e('s_cmp_eq_u64 vcc, -1')
        if opt.poll_sleep:
            e(f's_cbranch_scc1 {D_}'); e(f's_sleep {opt.poll_sleep}'); e(f's_branch {L_}')
        else:
            e(f's_cbranch_scc0 {L_}')
        a.label(D_); a.vm = []
    def a_chunk(phase, c):
        for w in range(4):
            e(f's_mov_b32 m0, {hex(AREG + (c % 4) * 16384 + w * 4096)}')
            if phase == 'P7':
                last = None
                for k in range(4):
                    p_, i_ = divmod(4 * c + k, 7)
                    const = G_OFF + w * 57344 + (i_ - k) * 1024
                    if last != (p_, const):
                        e(f's_add_u32 s{T0s}, s{P7T+p_}, {hex(const & 0xffffffff)}'); last = (p_, const)
                    a.vmem(f'buffer_load_dwordx4 v{VAG}, {WS}, s{T0s} offen offset:{k*1024} sc1 lds', ('A', phase, c))
            else:
                if phase == 'P5':
                    va = VAH + 4 * c + w; e(f's_add_u32 s{T0s}, s{RA+c}, {hex(A0_OFF)}' if A0_OFF else f's_mov_b32 s{T0s}, s{RA+c}')
                elif phase == 'P3':
                    va = VAS; e(f's_add_u32 s{T0s}, s{RA+c}, s{U0}'); e(f's_add_u32 s{T0s}, s{T0s}, {hex(A0_OFF + w * 16384)}')
                else:
                    va = VAS; e(f's_add_u32 s{T0s}, s{RA+c}, {hex(A1_OFF + w * 16384)}')
                for k in range(4):
                    a.vmem(f'buffer_load_dwordx4 v{va}, {WS}, s{T0s} offen offset:{k*1024} sc1 lds', ('A', phase, c))
    e(f's_lshl_b32 s{U0}, s{S_G}, 1'); e(f's_add_u32 s{U0}, s{U0}, 1'); e(f's_lshl_b32 s{U0}, s{U0}, 14')

    dummy = [0]
    def wide(srd_s, soff_s):
        d = 64 + 4 * (dummy[0] % 40); dummy[0] += 1
        fl = 'sc1' if srd_s == WS else opt.touch_flags
        a.vmem(f'buffer_load_dwordx4 v[{d}:{d+3}], v{X0W}, {srd_s}, s{soff_s} offen {fl}', 'T')
    def mall_touch():
        for k in ['WO', 'W2', 'W4']:
            size = mats[k][1]; per = size // 256
            s = srds[k]
            e(f's_mul_i32 s{T0s}, s2, {per}')
            for i in range(per // 1024):
                if i: e(f's_add_u32 s{T0s}, s{T0s}, 1024')
                wide(f's[{s}:{s+3}]', T0s)
    def g_touch():
        e(f's_mul_i32 s{T0s}, s{S_G}, {16 * 57344}'); e(f's_mul_i32 s{T1s}, s{S_R}, 28672')
        e(f's_add_u32 s{T0s}, s{T0s}, s{T1s}'); e(f's_add_u32 s{T0s}, s{T0s}, {hex(G_OFF)}')
        for i in range(28):
            if i: e(f's_add_u32 s{T0s}, s{T0s}, 1024')
            wide(WS, T0s)
    def key(sx):
        k, p, c = sx.split(',')
        return (0, k, p, None if c == '-' else int(c))
    EPO = {'P3': 1, 'P4': 2, 'P5': 3, 'P7': 5}
    if opt.p7_self: del EPO['P7']
    nxt = 0
    for ev in events:
        L, kind, p, ci = ev
        if kind == 'B' and p in EPO:
            nch = NCH[p]
            if ci == 0:
                if p == 'P5': build_fh(L)
                poll({'P3': VFB, 'P4': VFS, 'P5': VFH, 'P7': VFB}[p], 1 + 6 * L + EPO[p])
                a_chunk(p, 0); a_chunk(p, 1); nxt = 2
            a.wait_vm(('A', p, ci))
            e('s_barrier')
            while nxt < nch and (nxt <= ci + 2 or nxt <= 3) and nxt <= ci + 2 + (1 if ci == 0 and False else 0):
                a_chunk(p, nxt); nxt += 1
        elif L == 0 and kind == 'B' and p == 'P1KV':
            a.wait_vm(('X', ci))
            if ci == 0: hstamp(a, opt, 14)
            if ci == 2: hstamp(a, opt, 15)
            e('s_barrier')
            if ci == 0: x_chunk(1, 1)
            if 1 <= ci <= 2: x_chunk(ci + 1)
            if ci == 3: x_tile()
        else:
            if ev == (0, 'E', 'P1KV', None): a.wait_vm('x')
            e('s_barrier')
        if opt.touch and opt.touch_at and ev == key(opt.touch_at): mall_touch()
        if opt.gtouch_at and ev == key(opt.gtouch_at) and not (opt.gtouch_parker and opt.park): g_touch()
    e('s_waitcnt vmcnt(0)')
    e('s_endpgm')


def gen_parker(a, opt, events, h):
    e = a.e
    a.c(f'--- parker {h}')
    plan = opt._plan
    W3S, W4S, CB6, CB7 = 40, 44, 64, 68
    QS = 48
    e(f's_mov_b32 s{QS}, s{S_PTR+2}'); e(f's_mov_b32 s{QS+1}, s{S_PTR+3}'); e(f's_mov_b32 s{QS+2}, {hex(512*1536*2)}'); e(f's_mov_b32 s{QS+3}, 0x20000')
    for s_, p_, size in ((W3S, S_PTR + 12, 512 * 1792 * 2), (W4S, S_PTR + 14, 1792 * 512 * 2)):
        e(f's_mov_b32 s{s_}, s{p_}'); e(f's_mov_b32 s{s_+1}, s{p_+1}'); e(f's_mov_b32 s{s_+2}, {hex(size)}'); e(f's_mov_b32 s{s_+3}, 0x20000')
    e(f'v_lshlrev_b32 v1, 4, v{V_LANE}')
    if WARM0[0]:
        e(f's_mul_i32 s33, s{S_R}, 49152')
        if h: e('s_add_u32 s33, s33, 24576')
        k_ = 0
        if h == 0:
            e(f's_lshl_b32 s34, s{S_G}, 18'); e(f's_lshl_b32 s35, s{S_R}, 13'); e('s_add_u32 s34, s34, s35')
            for i in range(8):
                a.vmem(f'buffer_load_dwordx4 v[{16+4*k_}:{19+4*k_}], v1, s[{S_X}:{S_X+3}], s34 offen', 'T'); k_ += 1
                e('s_add_u32 s34, s34, 1024')
        for i in range(24):
            a.vmem(f'buffer_load_dwordx4 v[{16+4*k_}:{19+4*k_}], v1, s[{QS}:{QS+3}], s33 offen', 'T'); k_ += 1
            e('s_add_u32 s33, s33, 1024')
    rm = 3 if opt.rot else 0
    for c in range(4):
        e(f's_lshl_b32 s{CB6+c}, s{S_RB2}, 1'); e(f's_and_b32 s{CB6+c}, s{CB6+c}, {rm}'); e(f's_xor_b32 s{CB6+c}, s{CB6+c}, {c}')
        e(f's_mul_i32 s{CB6+c}, s{CB6+c}, {128*3584}')
    for p_ in range(8):
        e(f's_and_b32 s{CB7+p_}, s{S_RB}, {rm}'); e(f's_lshl_b32 s{CB7+p_}, s{CB7+p_}, 1'); e(f's_xor_b32 s{CB7+p_}, s{CB7+p_}, {p_}')
        e(f's_mul_i32 s{CB7+p_}, s{CB7+p_}, {224*1024}')
    VN, VW, VL, X0, X1, X2 = 2, 4, 8, 11, 12, 13
    e(f'v_lshrrev_b32 v{X0}, 3, v{V_LANE}'); e(f'v_bfe_u32 v{X1}, v{X0}, 1, 1'); e(f'v_lshlrev_b32 v{X1}, 2, v{X1}')
    e(f'v_and_b32 v{X2}, 7, v{V_LANE}'); e(f'v_xor_b32 v{X2}, v{X2}, v{X1}')
    e(f'v_lshlrev_b32 v{VN}, 10, v{X0}'); e(f'v_lshl_add_u32 v{VN}, v{X2}, 4, v{VN}')
    e(f's_lshl_b32 s33, s{S_CB}, 7'); e(f'v_add_u32 v{VN}, s33, v{VN}'); e(f'v_add_u32 v{VN+1}, {hex(8192-1024)}, v{VN}')
    ps = [0, 1, 2, 3] if h == 0 else [4, 5, 6]
    M14 = (1 << 20) // 14 + 1
    e(f's_mul_i32 s33, s{S_CB2}, 224'); e(f's_mov_b32 s34, {hex(M14)}')
    for k, p_ in enumerate(ps):
        e(f'v_add_u32 v{X0}, {64*p_}, v{V_LANE}'); e(f'v_mul_lo_u32 v{X1}, v{X0}, s34'); e(f'v_lshrrev_b32 v{X1}, 20, v{X1}')
        e(f'v_mul_u32_u24 v{X2}, 14, v{X1}'); e(f'v_sub_u32 v{X2}, v{X0}, v{X2}')
        e(f'v_mul_u32_u24 v{VW+k}, 3584, v{X1}'); e(f'v_lshl_add_u32 v{VW+k}, v{X2}, 4, v{VW+k}'); e(f'v_add_u32 v{VW+k}, s33, v{VW+k}')
    e(f'v_lshlrev_b32 v{VL}, 4, v{V_LANE}'); e(f'v_add_u32 v{VL+1}, 0x10000, v{VL}'); e(f'v_add_u32 v{VL+2}, 0x20000, v{VL}')
    def wide(base_expr_emit, n):
        base_expr_emit()
        for i in range(n):
            if i: e('s_add_u32 s33, s33, 1024')
            a.vmem(f'buffer_load_dwordx4 v[{240+4*(i%4)}:{243+4*(i%4)}], v{VL}, {WS}, s33 offen sc1', 'T')
    def touch_a0():
        wide(lambda: (e(f's_mul_i32 s33, s{S_G}, {18*16384}'), e(f's_mul_i32 s34, s{S_R}, 9216'), e('s_add_u32 s33, s33, s34'), e(f's_add_u32 s33, s33, {hex(A0_OFF)}') if A0_OFF else None), 9)
    def touch_lin(off, per_group):
        wide(lambda: (e(f's_mul_i32 s33, s{S_G}, {per_group}'), e(f's_mul_i32 s34, s{S_R}, {per_group // 32}'), e('s_add_u32 s33, s33, s34'), e(f's_add_u32 s33, s33, {hex(off)}')), per_group // 32 // 1024)
    if WARM0[0]:
        a.wait_vm_all()
        e('s_barrier')
        events = events[1:]
    def tkey(sx):
        k, p, c = sx.split(',')
        return (0, k, p, None if c == '-' else int(c))
    slots = list(range(56))
    held = {}
    pending = set()
    def do(actions):
        for act, s_ in actions:
            if act == 'park':
                if s_.kind == 'W3':
                    c_, rr_ = divmod(s_.srow, 128)
                    e(f's_add_u32 s33, s{CB6+c_}, {hex(rr_*3584)}')
                    regs = []
                    for k, p_ in enumerate(ps):
                        sl = slots.pop(0); regs.append((sl, p_))
                        a.vmem(f'buffer_load_dwordx4 v[{16+4*sl}:{19+4*sl}], v{VW+k}, s[{W3S}:{W3S+3}], s33 offen', id(s_))
                else:
                    srow = s_.srow if h == 0 else s_.srow2
                    p_, rr_ = divmod(srow, 224)
                    e(f's_add_u32 s33, s{CB7+p_}, {hex(rr_*1024)}')
                    regs = []
                    for k in range(2):
                        sl = slots.pop(0); regs.append((sl, 2 * h + k))
                        a.vmem(f'buffer_load_dwordx4 v[{16+4*sl}:{19+4*sl}], v{VN+k}, s[{W4S}:{W4S+3}], s33 offen offset:{k*1024}', id(s_))
                held[id(s_)] = regs
            else:
                a.wait_vm(id(s_))
                for sl, p_ in held.pop(id(s_)):
                    ad = s_.addr + p_ * 1024
                    e(f'ds_write_b128 v{VL + (ad >> 16)}, v[{16+4*sl}:{19+4*sl}] offset:{ad & 0xffff}')
                    slots.append(sl)
                pending.add((s_.layer, s_.phase, s_.chunk))
    for ev in events:
        L, kind, p, ci = ev
        if kind == 'B':
            do(plan.get(f'pre {L}.{p}.B{ci}', []))
            if (L, p, ci) in pending:
                e('s_waitcnt lgkmcnt(0)'); pending.clear()
            e('s_barrier')
            acts = plan.get(f'{L}.{p}.B{ci}', [])
        elif kind == 'E':
            e('s_barrier'); acts = plan.get(f'{L}.{p}.E', [])
        else:
            e('s_barrier'); acts = plan.get(f'{L}.{p}', [])
        do([x for x in acts if x[0] == 'unpark'])
        do([x for x in acts if x[0] == 'park'])
        if opt.pretouch and h == 1 and ev == tkey(opt.a2touch_at): touch_lin(A2_OFF, 262144)
        if opt.gtouch_parker and opt.gtouch_at and ev == tkey(opt.gtouch_at):
            wide(lambda: (e(f's_mul_i32 s33, s{S_G}, {16*57344}'), e(f's_mul_i32 s34, s{S_R}, 28672'), e('s_add_u32 s33, s33, s34'),
                          e(f's_add_u32 s33, s33, {hex(G_OFF + h * 14336)}')), 14)
        if opt.pretouch and ev == tkey(opt.a01touch_at):
            if h == 0:
                touch_a0(); touch_lin(ST_OFF, 32768)
            else:
                touch_lin(A1_OFF, 262144)
    e('s_waitcnt vmcnt(0) lgkmcnt(0)')
    e('s_endpgm')


def generate(opt):
    ATOMIC[0] = opt.kv_atomic
    if opt.dbgout >= 0: opt.phi_clamp = 0
    WARM0[0] = 1 if (opt.warm0 and opt.park) else 0
    events = build_events(opt.stop)
    a = Asm(); a.opt = opt
    hdr = open(os.path.join(os.path.dirname(os.path.abspath(__file__)), 'header.txt')).read()
    out = [hdr.rstrip('\n')]
    out.append(f'; @launch grid=(256,1,1) block=({64*(8 if opt.park else 6)},1,1) lds={LDS_TOTAL}')
    out += ['.amdgcn_target "amdgcn-amd-amdhsa--gfx950"', '.text', f'.globl {KNAME}', '.p2align 8',
            f'.type {KNAME},@function', f'{KNAME}:']
    a.e('s_cmp_ge_u32 s2, 256')
    a.e('s_cbranch_scc1 L_EXIT')
    if opt.startdiag: a.e('s_memtime s[100:101]')
    if opt.dbgout >= 0 and opt.fine: a.e('s_memtime s[96:97]')
    if opt.wall:
        a.e('s_memrealtime s[18:19]') if False else None
    a.e(f's_load_dwordx16 s[{S_PTR}:{S_PTR+15}], s[0:1], 0')
    a.e(f's_load_dwordx4 s[{S_PTR+16}:{S_PTR+19}], s[0:1], 64')
    a.e(f's_load_dwordx2 s[{S_PTR+20}:{S_PTR+21}], s[0:1], 80')
    a.e('v_lshrrev_b32 v1, 6, v0')
    a.e('s_nop 0')
    if opt.prefetch_code:
        a.e('s_getpc_b64 s[34:35]')
        a.label('L_PC')
        a.e(f's_sub_u32 s34, s34, (L_PC - {KNAME})')
        a.e('s_subb_u32 s35, s35, 0')
        a.e('s_lshr_b32 s36, s2, 3')
        a.e('s_mul_i32 s36, s36, 2560')
        a.e('v_lshlrev_b32 v2, 7, v0')
        a.e('v_add_u32 v2, s36, v2')
        a.e(f's_mov_b32 s36, (L_CODE_END - {KNAME} - 4)')
        a.e('v_min_u32 v2, s36, v2')
        a.e('v_and_b32 v2, -4, v2')
        a.e('v_cmp_gt_u32 vcc, 20, v0')
        a.e('s_and_saveexec_b64 s[36:37], vcc')
        a.e('s_cbranch_execz L_NOPF')
        a.e('global_load_dword v255, v2, s[34:35]')
        a.label('L_NOPF')
        a.e('s_mov_b64 exec, s[36:37]')
    a.e(f'v_readfirstlane_b32 s{S_W}, v1')
    a.e(f'v_and_b32 v{V_LANE}, 63, v0')
    a.e(f's_getreg_b32 s{S_XCC}, hwreg(HW_REG_XCC_ID)')
    a.e(f's_and_b32 s{S_XCC}, s{S_XCC}, 7')
    a.e(f's_and_b32 s{S_G}, s2, 7')
    a.e(f's_lshr_b32 s{S_R}, s2, 3')
    a.e(f's_lshr_b32 s{S_RB}, s{S_R}, 3')
    a.e(f's_and_b32 s{S_CB}, s{S_R}, 7')
    a.e(f's_lshr_b32 s{S_RB2}, s{S_R}, 4')
    a.e(f's_and_b32 s{S_CB2}, s{S_R}, 15')
    a.e('s_waitcnt lgkmcnt(0)')
    if opt.ws_base:
        a.e(f's_add_u32 s{S_PTR+20}, s{S_PTR+20}, {hex(opt.ws_base)}')
        a.e(f's_addc_u32 s{S_PTR+21}, s{S_PTR+21}, 0')
    a.e(f's_add_u32 s34, s{S_PTR+20}, {hex(NONCE_OFF)}')
    a.e(f's_addc_u32 s35, s{S_PTR+21}, 0')
    a.e(f's_load_dword s{S_V}, s[34:35], 0')
    def srd(s, p, size):
        a.e(f's_mov_b32 s{s}, s{p}'); a.e(f's_mov_b32 s{s+1}, s{p+1}')
        a.e(f's_mov_b32 s{s+2}, {hex(size)}'); a.e(f's_mov_b32 s{s+3}, 0x20000')
    if opt.dbgout >= 0:
        a.e(f's_mov_b32 s86, s{S_PTR+18}'); a.e(f's_mov_b32 s87, s{S_PTR+19}')
    srd(S_WS, S_PTR + 20, WS_USED)
    srd(S_X, S_PTR + 0, 2048 * 512 * 2)
    srd(S_OUT, S_PTR + 16, 2048 * 512 * 2)
    a.e(f's_cmp_lt_u32 s{S_W}, 4')
    a.e('s_cbranch_scc1 L_COMPUTE')
    if opt.park:
        for wv in (6, 7):
            a.e(f's_cmp_eq_u32 s{S_W}, {wv}')
            a.e(f's_cbranch_scc0 L_NOTP{wv}')
            a.e('s_getpc_b64 s[34:35]')
            a.label(f'L_PCP{wv}')
            a.e(f's_add_u32 s34, s34, (L_PARKER{wv} - L_PCP{wv})')
            a.e('s_addc_u32 s35, s35, 0')
            a.e('s_setpc_b64 s[34:35]')
            a.label(f'L_NOTP{wv}')
    a.e(f's_cmp_eq_u32 s{S_W}, 5')
    a.e('s_cbranch_scc0 L_GOLOADER')
    a.e('s_getpc_b64 s[34:35]')
    a.label('L_PC3')
    a.e('s_add_u32 s34, s34, (L_TOUCHER - L_PC3)')
    a.e('s_addc_u32 s35, s35, 0')
    a.e('s_setpc_b64 s[34:35]')
    a.label('L_GOLOADER')
    a.e('s_getpc_b64 s[34:35]')
    a.label('L_PC2')
    a.e('s_add_u32 s34, s34, (L_LOADER - L_PC2)')
    a.e('s_addc_u32 s35, s35, 0')
    a.e('s_setpc_b64 s[34:35]')
    a.label('L_EXIT')
    a.e('s_endpgm')
    a.label('L_COMPUTE')
    a.vm = []
    if opt.stop is not None and opt.stop[0] == 0: cev = events
    else: cev = [e for e in build_events(None) if e[0] == 0]
    rest = gen_compute(a, opt, cev)
    assert not rest, rest
    a.label('L_LOADER')
    a.vm = []
    a.fstamp = lambda p: None
    gen_loader(a, opt, events)
    a.label('L_TOUCHER')
    a.vm = []
    gen_toucher(a, opt, events)
    if opt.park:
        for wv in (6, 7):
            a.label(f'L_PARKER{wv}')
            a.vm = []
            gen_parker(a, opt, events, wv - 6)
    a.label('L_CODE_END')
    out.append(a.text())
    out += ['.section .rodata,"a"', '.p2align 6', f'.amdhsa_kernel {KNAME}',
            '  .amdhsa_next_free_vgpr 256', '  .amdhsa_next_free_sgpr 102', '  .amdhsa_accum_offset 256',
            '  .amdhsa_group_segment_fixed_size 0', '  .amdhsa_kernarg_size 88', '  .amdhsa_user_sgpr_count 2',
            '  .amdhsa_user_sgpr_kernarg_segment_ptr 1', '  .amdhsa_system_sgpr_workgroup_id_x 1', '.end_amdhsa_kernel']
    return '\n'.join(out) + '\n'


if __name__ == '__main__':
    import argparse
    ap = argparse.ArgumentParser()
    ap.add_argument('-o', default='interleave_layers__linear_attn_block__mixer_s_mlp__prompt.s')
    ap.add_argument('--stop', default=None)
    ap.add_argument('--timing', action='store_true')
    ap.add_argument('--safe', action='store_true')
    ap.add_argument('--set', action='append', default=[])
    ap.add_argument('--fine', default=None)
    args = ap.parse_args()
    opt = Opt()
    if args.stop:
        l, p = args.stop.split(','); opt.stop = (int(l), p)
    opt.timing = args.timing; opt.force_safe = args.safe; opt.fine = args.fine
    opt.caps = dict(Opt.caps); opt.park_w3 = dict(Opt.park_w3); opt.park_caps = dict(Opt.park_caps)
    for kv in args.set:
        k, v = kv.split('=')
        if k.startswith('pk3:'): opt.park_w3[k[4:]] = int(v)
        elif k.startswith('pk4:'): opt.park_caps[k[4:]] = int(v)
        elif '.' in k or k in ('X1', 'X2'): opt.caps[k] = int(v)
        else:
            try: setattr(opt, k, int(v))
            except ValueError: setattr(opt, k, v.replace(':', ','))
    open(args.o, 'w').write(generate(opt))
    print('written', args.o)
    if os.environ.get('SCHED'):
        import itertools
        for k, g in itertools.groupby(opt._log, key=lambda x: x[0]):
            g = list(g); d = {}
            for x in g: d[(x[1], x[2], x[3])] = d.get((x[1], x[2], x[3]), 0) + 1
            print(k, ' '.join(f'{a_}.{b_}.c{c_}x{n_}' for (a_, b_, c_), n_ in d.items()), 'FORCED' if any(x[4] for x in g) else '')
```

```python
import sys, os, struct

KNAME = 'interleave_layers__linear_attn_block__mixer_s_mlp__prompt_kernel'

class Opt:
    stop = None
    timing = False
    fine = None
    force_safe = False
    window = 40
    window0 = 60
    caps = {'P1KV.E': 64, 'P1Q.B0': 16, 'P1Q.B1': 16, 'P1Q.E': 32,
            'P3.B0': 0, 'P3.B1': 32, 'P3.B2': 16, 'P3.B3': 16,
            'P4.B1': 32, 'P4.B2': 16, 'P4.B3': 16,
            'P5.B1': 35, 'P5.B2': 14, 'P5.B3': 21,
            'P6.B0': 28, 'P6.B1': 16, 'P6.B2': 16, 'P6.B3': 16, 'P6.E': 64,
            'P7.B*': 16, 'P7.E': 64}
    cap0 = 0
    touch = True
    dbg_w_same = 0
    w_nt = 0
    g_cold = 0
    touch_at = 'B,P1Q,0'
    rot = 1
    out_lds = 0
    early_rel = 0
    prio_c = 0
    prio_a = 0
    prio_l = 0
    phi_clamp = 1
    warm0 = 0
    cs_late = 0
    poll_sleep = 0
    dbgout = -1
    dbgwg = 100
    pretouch = 1
    a2touch_at = 'B,P6,3'
    a01touch_at = 'B,P1KV,2'
    gtouch_parker = 1
    park = 1
    park_w3 = {'P1KV.E': 2, 'X1': 2, 'P1Q.E': 8}
    park_caps = {'P6.B1': 0, 'P6.B2': 0, 'P6.B3': 0, 'P6.E': 0}
    unpark_max = 6
    kv_atomic = 1
    wall = 0
    p7_self = 1
    dbg_skip = ''
    ws_base = 0
    late_a = 0
    kvflag_at = 5
    up3 = 1
    startdiag = 0
    gtouch_at = 'B,P5,2'
    dbg_a_same = 0
    touch_flags = ''
    spin = 1 << 17
    prefetch_code = True
    D_kv = 4
    D_p6 = 4

MB = 1 << 20
A0_OFF = 0
A1_OFF = 0x280000
A2_OFF = 0x480000
G_OFF = 0x680000
ST_OFF = 0xD80000
KVP_OFF = 0xDC0000
KVP_L = 0x88000
KVA_OFF = 0xED0000
LSTRIDE = 0x780000
FL_OFF = 0xF00000
LF_OFF = FL_OFF
KVF_OFF = FL_OFF + 4096
HF_OFF = FL_OFF + 8192
XID_OFF = FL_OFF + 29696
NONCE_OFF = FL_OFF + 30720
TM_OFF = FL_OFF + 32768
CSP_OFF = FL_OFF + 32768 + 65536
CSF_OFF = CSP_OFF + 65536
WS_USED = CSF_OFF + 32768
KVREC = 2176

LDS_TOTAL = 163840
AREG = 0
SCR = 49152
CSL = None
WRING = 65536
RING = 93952
PHI = 53248
CSL = WRING + 28672
CSC = WRING + RING
assert CSC + 1088 <= LDS_TOTAL

EPS = 1e-5

def f2u(x):
    return struct.unpack('<I', struct.pack('<f', x))[0]

class Asm:
    def __init__(self):
        self.lines = []; self.nlabel = 0; self.vm = []
        self.fstamp = lambda p: None
    def e(self, s): self.lines.append('  ' + s)
    def c(self, s): self.lines.append('  ; ' + s)
    def label(self, name): self.lines.append(name + ':')
    def newlabel(self, base='L'):
        self.nlabel += 1
        return f'{base}_{self.nlabel}'
    def vmem(self, s, tag=None):
        self.e(s); self.vm.append(tag)
    def count_vm(self, tag):
        if tag not in self.vm: return None
        idx = max(i for i, t in enumerate(self.vm) if t == tag)
        n = len(self.vm) - 1 - idx
        assert n <= 63, n
        self.vm = self.vm[idx + 1:]
        return n
    def wait_vm(self, tag):
        n = self.count_vm(tag)
        if n is not None: self.e(f's_waitcnt vmcnt({n})')
    def wait_vm_all(self):
        self.e('s_waitcnt vmcnt(0)'); self.vm = []
    def text(self): return '\n'.join(self.lines)

def set_exec(a, lo, hi=None):
    a.e(f's_mov_b32 exec_lo, {hex(lo)}')
    a.e(f's_mov_b32 exec_hi, {hex(lo if hi is None else hi)}')

S_V = 3
S_WS = 4; S_X = 8; S_OUT = 12; S_PA = 16
S_G, S_R, S_W, S_RB, S_CB, S_RB2, S_CB2 = 20, 21, 22, 23, 24, 25, 26
S_MODE, S_L, S_LOFF, S_EP, S_B, S_XCC = 27, 28, 29, 30, 31, 32
S_T0, S_T1, S_T2, S_T3, S_T4, S_T5 = 33, 34, 35, 36, 37, 38
S_SPIN, S_THR = 39, 40
S_AOFF, S_AOFF2, S_ASTR = 41, 42, 43
S_C1, S_C2, S_ONE2 = 44, 46, 48
S_LOG2E, S_EPS6 = 50, 51
S_W4K = 52
S_RH, S_CH = 53, 54
S_U0, S_U1, S_U2, S_U3, S_U4 = 55, 56, 57, 58, 59
S_COLD = 62
S_GH = 63
S_RA = 86
S_RK = 90
S_P7 = 94
S_ROTK = 45
S_L2E2, S_E62 = 88, 86
S_PTR = 64
S_WQKV, S_WO, S_W1, S_W2, S_W3, S_W4 = 40, 44, 48, 52, 56, 60
S_CSRD = 88

V_LANE = 0
V_AS, V_AB, V_AG, V_P1 = 1, 2, 3, 4
V_AH = 5
V_STS, V_STB, V_STST, V_XRM, V_TST = 9, 10, 11, 12, 13
V_FSB, V_FBS, V_FSS, V_FH, V_FOWN, V_FKV = 14, 15, 16, 17, 18, 19
V_T128, V_T64, V_T224, V_TN, V_TA = 20, 21, 22, 23, 24
V_T0, V_T1, V_T2 = 25, 26, 27
V_TB = 28
V_RES = 32
V_MEAN, V_RS = 48, 49
V_X = 50
V_PQ = 56
V_ACC = 64
V_A = 128

PHASES = ['P1KV', 'P1Q', 'P3', 'P4', 'P5', 'P6', 'P7']
NCH = {'P1KV': 4, 'P1Q': 2, 'P3': 4, 'P4': 4, 'P5': 4, 'P6': 4, 'P7': 14}

ATOMIC = [1]
EARLY = [1]
WARM0 = [1]
NOE = ('P3', 'P4', 'P5')

class Slab:
    def __init__(self, layer, phase, chunk, kind, size, srow, npieces, srow2=None):
        self.layer, self.phase, self.chunk, self.kind = layer, phase, chunk, kind
        self.size, self.srow, self.npieces, self.srow2 = size, srow, npieces, srow2
        self.addr = None

def w4_tile_seq():
    seq = []
    for c in range(8):
        for i in [0, 1, 2, 3, 4, 5, 7, 8, 9, 10, 11, 12, 6, 13]:
            seq.append(14 * c + i)
    return seq

def build_slabs(layer):
    ph = {}
    def simple(phase, kind, nchunk, per, size, rows, np_):
        ph[phase] = [[Slab(layer, phase, c, kind, size, (c * per + j) * rows, np_) for j in range(per)] for c in range(nchunk)]
    simple('P1KV', 'KV', 4, 4, 4096, 32, 4)
    simple('P1Q', 'Q', 2, 4, 4096, 64, 4)
    simple('P3', 'WO', 4, 4, 4096, 32, 4)
    simple('P4', 'W1', 4, 4, 4096, 32, 4)
    simple('P5', 'W2', 4, 4, 4096, 32, 4)
    simple('P6', 'W3', 4, 4, 7168, 32, 7)
    seq = w4_tile_seq()
    ph['P7'] = [[Slab(layer, 'P7', c, 'W4', 4096, seq[2 * (c * 4 + j)] * 16, 4, srow2=seq[2 * (c * 4 + j) + 1] * 16)
                 for j in range(4)] for c in range(14)]
    pos = PHI
    for p in PHASES:
        for ch in ph[p]:
            for s in ch:
                if pos + s.size > RING: pos = 0
                s.addr = WRING + pos
                pos += s.size
    assert pos == PHI, pos
    return ph

def build_events(stop):
    ev = [(0, 'X', 'W0', None)] if WARM0[0] else []
    for L in range(2):
        for p in PHASES:
            for c in range(NCH[p]):
                ev.append((L, 'B', p, c))
                if EARLY[0] and L == 0 and p == 'P1KV' and c < 2: ev.append((L, 'R', p, c))
            if p not in NOE: ev.append((L, 'E', p, None))
            if p == 'P1KV': ev.append((L, 'X', 'X1', None))
            if p == 'P1Q' and not ATOMIC[0]: ev.append((L, 'X', 'X2', None))
            if stop == (L, p): return ev
    return ev

WS = f's[{S_WS}:{S_WS+3}]'

def thr_value(a, dst, epoch, xcc=False):
    if isinstance(epoch, int):
        a.e(f's_add_u32 s{dst}, s{S_B}, {8*epoch}')
    else:
        a.e(f's_lshl_b32 s{dst}, {epoch}, 3')
        a.e(f's_add_u32 s{dst}, s{dst}, s{S_B}')
    if xcc: a.e(f's_add_u32 s{dst}, s{dst}, s{S_XCC}')

def emit_poll(a, vaddr, epoch, soff='0', opt=Opt, x4=False, tbase=None):
    L = a.newlabel('POLL'); D = a.newlabel('POLLD')
    thr_value(a, S_THR, epoch)
    a.e(f's_mov_b32 s{S_SPIN}, {opt.spin}')
    a.label(L)
    if x4:
        T = tbase
        a.e(f'buffer_load_dwordx4 v[{T}:{T+3}], v{vaddr}, {WS}, {soff} offen sc1')
        a.e('s_waitcnt vmcnt(0)')
        for i in range(4): a.e(f'v_subrev_u32 v{T+i}, s{S_THR}, v{T+i}')
        a.e(f'v_max_u32 v{T}, v{T}, v{T+1}')
        a.e(f'v_max_u32 v{T+2}, v{T+2}, v{T+3}')
        a.e(f'v_max_u32 v{V_T0}, v{T}, v{T+2}')
    else:
        a.e(f'buffer_load_dword v{V_T2}, v{vaddr}, {WS}, {soff} offen sc1')
        a.e('s_waitcnt vmcnt(0)')
        a.e(f'v_subrev_u32 v{V_T0}, s{S_THR}, v{V_T2}')
    a.vm = []
    a.e(f'v_cmp_gt_u32 vcc, 0x80, v{V_T0}')
    a.e(f's_sub_u32 s{S_SPIN}, s{S_SPIN}, 1')
    a.e(f's_cbranch_scc1 {D}')
    a.e('s_cmp_eq_u64 vcc, -1')
    if opt.poll_sleep:
        a.e(f's_cbranch_scc1 {D}')
        a.e(f's_sleep {opt.poll_sleep}')
        a.e(f's_branch {L}')
    else:
        a.e(f's_cbranch_scc0 {L}')
    a.label(D)

def emit_mode_stores(a, stores, cold=False):
    F = a.newlabel('STF'); D = a.newlabel('STD')
    if getattr(a, 'opt', None) is not None and a.opt.pretouch and a.opt.park: cold = False
    a.e(f's_cmp_eq_u32 s{S_COLD if cold else S_MODE}, 0')
    a.e(f's_cbranch_scc1 {F}')
    for s in stores: a.e(s + ' sc1')
    a.e(f's_branch {D}')
    a.label(F)
    for s in stores: a.e(s)
    a.label(D)
    for s in stores: a.vm.append('st')

def emit_signal(a, epoch):
    thr_value(a, S_THR, epoch, xcc=True)
    a.e(f'v_mov_b32 v{V_T0}, s{S_THR}')
    a.wait_vm_all()
    a.e('s_mov_b64 exec, 1')
    emit_mode_stores(a, [f'buffer_store_dword v{V_T0}, v{V_FOWN}, {WS}, 0 offen'])
    a.e('s_mov_b64 exec, -1')

def emit_xreduce(a, regs, tmp, over16=True):
    for r, t in zip(regs, tmp): a.e(f'v_mov_b32 v{t}, v{r}')
    a.e('s_nop 1')
    for r, t in zip(regs, tmp): a.e(f'v_permlane32_swap_b32 v{r}, v{t}')
    a.e('s_nop 0')
    for r, t in zip(regs, tmp): a.e(f'v_add_f32 v{r}, v{r}, v{t}')
    if over16:
        for r, t in zip(regs, tmp): a.e(f'v_mov_b32 v{t}, v{r}')
        a.e('s_nop 1')
        for r, t in zip(regs, tmp): a.e(f'v_permlane16_swap_b32 v{r}, v{t}')
        a.e('s_nop 0')
        for r, t in zip(regs, tmp): a.e(f'v_add_f32 v{r}, v{r}, v{t}')

def pk(op, d, x, y, z=None, mods=''):
    s = f'v_pk_{op}_f32 v[{d}:{d+1}], {x}, {y}'
    if z is not None: s += f', {z}'
    return s + mods
def vp(r): return f'v[{r}:{r+1}]'

def emit_stats_partial32(a, vals, t0, st_soff, cold=False):
    s, q = t0, t0 + 2
    a.e(pk('add', s, vp(vals), vp(vals + 2)))
    a.e(pk('mul', q, vp(vals), vp(vals)))
    a.e(pk('fma', q, vp(vals + 2), vp(vals + 2), vp(q)))
    for i in range(4, 16, 2):
        a.e(pk('add', s, vp(s), vp(vals + i)))
        a.e(pk('fma', q, vp(vals + i), vp(vals + i), vp(q)))
    a.e(f'v_add_f32 v{t0}, v{s}, v{s+1}')
    a.e(f'v_add_f32 v{t0+1}, v{q}, v{q+1}')
    emit_xreduce(a, [t0, t0 + 1], [t0 + 4, t0 + 5], over16=False)
    set_exec(a, 0xffffffff, 0)
    emit_mode_stores(a, [f'buffer_store_dwordx2 v[{t0}:{t0+1}], v{V_STST}, {WS}, {st_soff} offen'], cold=cold)
    a.e('s_mov_b64 exec, -1')

def emit_stats_from_sums(a, s, ss, out_a, out_b, tmp, double=False, keep=None):
    mean, var = s, ss
    a.e(f'v_mul_f32 v{mean}, {hex(f2u(1.0/512))}, v{s}')
    a.e(f'v_mul_f32 v{var}, {hex(f2u(1.0/512))}, v{ss}')
    a.e(f'v_fma_f32 v{var}, -v{mean}, v{mean}, v{var}')
    a.e(f'v_max_f32 v{var}, 0, v{var}')
    a.e(f'v_add_f32 v{tmp}, {hex(f2u(EPS))}, v{var}')
    a.e(f'v_rsq_f32 v{tmp}, v{tmp}')
    a.e('s_nop 0')
    if double:
        a.e(f'v_mul_f32 v{tmp+1}, v{tmp}, v{tmp}')
        a.e(f'v_mul_f32 v{tmp+1}, v{tmp+1}, v{var}')
        a.e(f'v_add_f32 v{tmp+1}, {hex(f2u(EPS))}, v{tmp+1}')
        a.e(f'v_rsq_f32 v{tmp+1}, v{tmp+1}')
        a.e('s_nop 0')
        a.e(f'v_mul_f32 v{out_a}, v{tmp}, v{tmp+1}')
    else:
        a.e(f'v_mov_b32 v{out_a}, v{tmp}')
    if keep:
        a.e(f'v_mov_b32 v{keep[0]}, v{mean}')
        a.e(f'v_mov_b32 v{keep[1]}, v{tmp}')
    a.e(f'v_mul_f32 v{out_b}, v{out_a}, v{mean}')
    a.e(f'v_sub_f32 v{out_b}, 0, v{out_b}')

def emit_sum_partials(a, raw, n):
    k = n
    step = 2
    regs = [raw + i for i in range(0, n, 2)]
    while len(regs) > 1:
        nxt = []
        for i in range(0, len(regs), 2):
            a.e(pk('add', regs[i], vp(regs[i]), vp(regs[i + 1])))
            nxt.append(regs[i])
        regs = nxt

def emit_lnfold(a, acc, cs, av, bv, n):
    for i in range(0, n, 2):
        a.e(pk('mul', acc + i, vp(acc + i), vp(av), mods=' op_sel_hi:[1,0]'))
    for i in range(0, n, 2):
        a.e(pk('fma', acc + i, vp(cs + i), vp(bv), vp(acc + i), mods=' op_sel_hi:[1,0,1]'))

def emit_gelu(a, x, n, tmp, c1reg):
    blk = 16
    a.e(f'v_mov_b32 v{c1reg}, s{S_C1}')
    for b0 in range(0, n, blk):
        m = min(blk, n - b0); t = tmp
        for i in range(0, m, 2): a.e(pk('mul', t + i, vp(x + b0 + i), vp(x + b0 + i)))
        for i in range(0, m, 2): a.e(pk('fma', t + i, vp(t + i), f's[{S_C2}:{S_C2+1}]', vp(c1reg), mods=' op_sel_hi:[1,1,0]'))
        for i in range(0, m, 2): a.e(pk('mul', t + i, vp(t + i), vp(x + b0 + i)))
        for i in range(m): a.e(f'v_exp_f32 v{t+i}, v{t+i}')
        for i in range(0, m, 2): a.e(pk('add', t + i, vp(t + i), f's[{S_ONE2}:{S_ONE2+1}]'))
        for i in range(m): a.e(f'v_rcp_f32 v{t+i}, v{t+i}')
        for i in range(0, m, 2): a.e(pk('mul', x + b0 + i, vp(x + b0 + i), vp(t + i)))

def emit_phi(a, regs, tmp):
    if a.opt.phi_clamp and all(regs[i + 1] == regs[i] + 1 and regs[i] % 2 == 0 for i in range(0, len(regs), 2)) and tmp % 2 == 0:
        for i in range(0, len(regs), 2): a.e(pk('mul', tmp + i, vp(regs[i]), f's[{S_L2E2}:{S_L2E2+1}]'))
        for i, r in enumerate(regs): a.e(f'v_exp_f32_e64 v{tmp+i}, v{tmp+i} clamp')
        for i, r in enumerate(regs): a.e(f'v_max_f32 v{r}, 0, v{r}')
        for i in range(0, len(regs), 2): a.e(pk('add', tmp + i, vp(tmp + i), f's[{S_E62}:{S_E62+1}]'))
        for i in range(0, len(regs), 2): a.e(pk('add', regs[i], vp(regs[i]), vp(tmp + i)))
        return
    for i, r in enumerate(regs): a.e(f'v_min_f32 v{tmp+i}, 0, v{r}')
    for i, r in enumerate(regs): a.e(f'v_mul_f32 v{tmp+i}, s{S_LOG2E}, v{tmp+i}')
    for i, r in enumerate(regs): a.e(f'v_exp_f32 v{tmp+i}, v{tmp+i}')
    for i, r in enumerate(regs): a.e(f'v_max_f32 v{r}, 0, v{r}')
    for i, r in enumerate(regs): a.e(f'v_add_f32 v{r}, v{r}, v{tmp+i}')
    for i, r in enumerate(regs): a.e(f'v_add_f32 v{r}, s{S_EPS6}, v{r}')

def emit_pack(a, dst, src, n):
    for i in range(0, n, 2): a.e(f'v_cvt_pk_bf16_f32 v{dst+i//2}, v{src+i}, v{src+i+1}')

def emit_pack32(a, dst, src):
    for k, j in enumerate([0, 2, 1, 3]):
        a.e(f'v_cvt_pk_bf16_f32 v{dst+2*k}, v{src+4*j}, v{src+4*j+1}')
        a.e(f'v_cvt_pk_bf16_f32 v{dst+2*k+1}, v{src+4*j+2}, v{src+4*j+3}')

class TrBase:
    def __init__(self, a, lane_reg, nt):
        self.a, self.lane_reg, self.nt, self.cur = a, lane_reg, nt, None
    def off(self, addr, span):
        if self.cur is None or addr < self.cur or addr + span - self.cur > 65535:
            self.cur = addr
            for t in range(self.nt):
                if t == 0:
                    self.a.e(f'v_add_u32 v{V_TB}, {hex(addr)}, v{self.lane_reg}')
                else:
                    self.a.e(f'v_xor_b32 v{V_TB+t}, {t << 5}, v{self.lane_reg}')
                    self.a.e(f'v_add_u32 v{V_TB+t}, {hex(addr)}, v{V_TB+t}')
        return addr - self.cur

def emit_gemm16(a, bar, phase, chunks, CT, kind, acc_of, a_of, a_wait, a_issue, wr, S, normal=False, extra=None, a_lds=None):
    R, LA = 2, 4
    ks = []
    for ci, ch in enumerate(chunks):
        first = True
        for s in ch:
            ks.append((ci, s.addr, first)); first = False
            if kind == '64': ks.append((ci, s.addr + 2048, False))
    KS = len(ks)
    if kind == '128':
        trb = TrBase(a, V_T128, 4); second = 2048; span = 4096; tb = lambda t: V_TB + t; timm = lambda t: 0
    elif kind == '64':
        trb = TrBase(a, V_T64, 2); second = 1024; span = 2048; tb = lambda t: V_TB + t; timm = lambda t: 0
    else:
        trb = TrBase(a, V_T224, 1); second = 3584; span = 7168; tb = lambda t: V_TB; timm = lambda t: 32 * t
    total = KS * CT
    def slot(n): return wr + 4 * (n % S)
    def pre_issue(n):
        j, t = divmod(n, CT)
        ci, addr, first = ks[j]
        if t == 0 and first:
            a.fstamp(phase); bar(('B', phase, ci)); a.fstamp(phase)
        imm = trb.off(addr, span) if t == 0 else addr - trb.cur
        return imm + timm(t), t
    def rd(n, half, info):
        imm, t = info
        a.e(f'ds_read_b64_tr_b16 v[{slot(n)+2*half}:{slot(n)+2*half+1}], v{tb(t)} offset:{imm + (second if half else 0)}')
    def mfma(m, r):
        j, t = divmod(m, CT)
        d = acc_of(r, t); c = '0' if j == 0 else f'v[{d}:{d+3}]'
        w = f'v[{slot(m)}:{slot(m)+3}]'; x = f'v[{a_of(r,j)}:{a_of(r,j)+3}]'
        a.e(f'v_mfma_f32_16x16x32_bf16 v[{d}:{d+3}], ' + (f'{x}, {w}' if normal else f'{w}, {x}') + f', {c}')
    lq = []
    def need(tags):
        idx = max((i for i, g in enumerate(lq) if g in tags), default=None)
        if idx is None: return None
        n_ = len(lq) - 1 - idx
        del lq[:idx + 1]
        assert n_ <= 15
        return n_
    def pre2(n):
        info = pre_issue(n)
        j, t = divmod(n, CT)
        if a_lds and t == 0:
            ci, addr_, first = ks[j]
            if EARLY[0] and ci < 2:
                if first:
                    for jj in range(j, j + 4):
                        for s_ in a_lds(jj): a.e(s_)
                    a.e('s_waitcnt lgkmcnt(0)'); lq.clear()
                    bar(('R', phase, ci))
            else:
                for s_ in a_lds(j):
                    a.e(s_); lq.append(('A', j))
        return info
    def rd2(n, half, info):
        rd(n, half, info); lq.append(('W', n))
    for n in range(min(LA, total)):
        info = pre2(n); rd2(n, 0, info); rd2(n, 1, info)
    for n in range(total):
        j, t = divmod(n, CT)
        lg = need({('W', n), ('A', j)})
        vmn = a_wait(j) if t == 0 else None
        if t == 0 and j in (0, 1): a.fstamp(phase)
        parts = ([f'vmcnt({vmn})'] if vmn is not None else []) + ([f'lgkmcnt({lg})'] if lg is not None else [])
        if parts: a.e('s_waitcnt ' + ' '.join(parts))
        nx = n + LA; info = None
        mfma(n, 0)
        if nx < total:
            info = pre2(nx); rd2(nx, 0, info)
        mfma(n, 1)
        if nx < total: rd2(nx, 1, info)
        a_issue(j, t)
        if extra and t == CT - 1: extra(j)
    a.fstamp(phase); bar(('E', phase, None)); a.fstamp(phase)
    a.e('s_nop 7')

def emit_gemm32(a, bar, phase, chunks, acc, wr, tail=None, a_pieces=None):
    LA, S = 4, 5
    nch = len(chunks)
    total = nch * 8
    trb = TrBase(a, V_TN, 1)
    def slot(n): return wr + 8 * (n % S)
    def reads(n):
        c, rem = divmod(n, 8); ksl, s = divmod(rem, 2)
        out = []
        if rem == 0:
            if a_pieces: a.wait_vm(('A', c))
            a.fstamp(phase); bar(('B', phase, c)); a.fstamp(phase)
        sl = chunks[c][ksl]
        imm = trb.off(sl.addr, 4096)
        out.append(f'ds_read_b128 v[{slot(n)}:{slot(n)+3}], v{V_TA} offset:{(c % 4) * 16384 + ksl * 1024 + s * 512}')
        out.append(f'ds_read_b64_tr_b16 v[{slot(n)+4}:{slot(n)+5}], v{V_TB} offset:{imm + s * 1024}')
        out.append(f'ds_read_b64_tr_b16 v[{slot(n)+6}:{slot(n)+7}], v{V_TB} offset:{imm + s * 1024 + 2048}')
        return out
    queue = []; nxt = 2; passed = 0
    if a_pieces:
        for c in (0, 1):
            for t in a_pieces(c): t()
    for n in range(LA):
        for s in reads(n): a.e(s)
    for n in range(total):
        lg = 3 * (min(n - 1 + LA, total - 1) - n)
        a.e(f's_waitcnt lgkmcnt({lg})')
        c = '0' if n == 0 else f'v[{acc}:{acc+15}]'
        a.e(f'v_mfma_f32_32x32x16_bf16 v[{acc}:{acc+15}], v[{slot(n)+4}:{slot(n)+7}], v[{slot(n)}:{slot(n)+3}], {c}')
        nx = n + LA
        if nx < total:
            if nx % 8 == 0: passed = nx // 8
            for s in reads(nx): a.e(s)
        if a_pieces:
            while nxt < nch and (nxt <= passed + 2 or nxt <= 3) and len(queue) < 4:
                queue += list(a_pieces(nxt)); nxt += 1
            if queue: queue.pop(0)()
        if tail and n == max(total - 24, 0): tail()
    a.fstamp(phase)
    if phase not in NOE:
        bar(('E', phase, None))
    a.fstamp(phase)
    a.e('s_nop 7'); a.e('s_nop 3')


def gen_compute(a, opt, events):
    evq = list(events)
    tm = [0]
    def tmreg(i):
        assert i < 22, i
        return 64 + i
    def dump(regs):
        sk = a.newlabel('TMS')
        a.e('s_waitcnt lgkmcnt(0)')
        a.e(f's_cmp_eq_u32 s{S_W}, 0')
        a.e(f's_cbranch_scc0 {sk}')
        if opt.dbgout >= 0 and opt.fine:
            a.e(f's_cmp_eq_u32 s2, {opt.dbgwg}')
            a.e(f's_cbranch_scc0 {sk}')
            for i, r in enumerate(regs):
                a.e(f's_sub_u32 s{S_T0}, s{r}, s85')
                a.e(f'v_mov_b32 v{V_T0}, s{S_T0}')
                a.e(f'v_mov_b32 v{V_T1}, {4*i}')
                a.e(f'global_store_dword v{V_T1}, v{V_T0}, s[86:87]')
        elif opt.dbgout >= 0 and opt.timing:
            a.e(f's_cmp_eq_u32 s2, {opt.dbgwg}')
            a.e(f's_cbranch_scc0 {sk}')
            a.e(f's_cmp_eq_u32 s{S_L}, {opt.dbgout}')
            a.e(f's_cbranch_scc0 {sk}')
            sel = [1, 2, 3, 4, 5, 6, 8, 9, 11, 12, 14, 15, 16, 17, 18, 20]
            for i, k in enumerate(sel):
                if k >= len(regs): continue
                a.e(f's_sub_u32 s{S_T0}, s{regs[k]}, s{regs[0]}')
                a.e(f'v_mov_b32 v{V_T0}, s{S_T0}')
                a.e(f'v_mov_b32 v{V_T1}, {4*i}')
                a.e(f'global_store_dword v{V_T1}, v{V_T0}, s[86:87]')
        else:
            a.e(f's_lshl_b32 s{S_T0}, s2, 8')
            a.e(f's_lshl_b32 s{S_T1}, s{S_L}, 7')
            if opt.timing: a.e(f's_add_u32 s{S_T0}, s{S_T0}, s{S_T1}')
            a.e(f's_add_u32 s{S_T0}, s{S_T0}, {hex(TM_OFF)}')
            for i, r in enumerate(regs):
                a.e(f'v_mov_b32 v{V_T0}, s{r}')
                a.e(f'v_mov_b32 v{V_T1}, {4*i}')
                a.e(f'buffer_store_dword v{V_T0}, v{V_T1}, {WS}, s{S_T0} offen')
        a.label(sk)
        a.e('s_waitcnt vmcnt(0)')
    fs = [0]
    def freg(i): return 64 + 2 * i
    cnt_ = [0]
    def fs_skip(i):
        cnt_[0] += 1
        return cnt_[0] in (2, 4, 5, 6, 8, 10)
    def fstamp(phase):
        if opt.fine == phase and fs[0] < 10 and not (opt.dbgout >= 0 and fs_skip(fs[0])):
            a.e(f's_memtime s[{freg(fs[0])}:{freg(fs[0])+1}]'); fs[0] += 1
    a.fstamp = fstamp
    def stamp():
        if opt.timing:
            a.e('s_memtime s[60:61]')
            a.e('s_waitcnt lgkmcnt(0)')
            a.e(f's_mov_b32 s{tmreg(tm[0])}, s60'); tm[0] += 1

    T0, T1, T2, TB = V_T0, V_T1, V_T2, V_TB
    if opt.wall:
        a.e('s_memrealtime s[60:61]'); a.e('s_waitcnt lgkmcnt(0)'); a.e('s_mov_b32 s84, s60')
        a.e('s_memtime s[60:61]'); a.e('s_waitcnt lgkmcnt(0)'); a.e('s_mov_b32 s85, s60')
    if opt.dbgout >= 0 and opt.fine: a.e('s_mov_b32 s85, s96')
    if opt.prio_c: a.e(f's_setprio {opt.prio_c}')
    a.c('--- compute: early address setup')
    if opt.startdiag:
        a.e('s_memtime s[98:99]'); a.e('s_waitcnt lgkmcnt(0)'); a.e('s_sub_u32 s98, s98, s100'); a.e('s_mov_b32 s85, s98')
    stamp()
    a.e(f's_lshr_b32 s{S_RH}, s{S_W}, 1')
    a.e(f's_and_b32 s{S_CH}, s{S_W}, 1')
    a.e(f's_lshl_b32 s{S_W4K}, s{S_W}, 12')
    a.e(f's_lshl_b32 s{S_U0}, s{S_G}, 4')
    a.e(f's_lshl_b32 s{S_T1}, s{S_RB}, 2')
    a.e(f's_add_u32 s{S_U0}, s{S_U0}, s{S_T1}')
    a.e(f's_lshl_b32 s{S_T1}, s{S_RH}, 1')
    a.e(f's_add_u32 s{S_U2}, s{S_U0}, s{S_T1}')
    a.e(f's_add_u32 s{S_U0}, s{S_U0}, s{S_W}')
    a.e(f's_lshl_b32 s{S_U1}, s{S_G}, 4')
    a.e(f's_lshl_b32 s{S_T2}, s{S_RB2}, 3')
    a.e(f's_add_u32 s{S_U1}, s{S_U1}, s{S_T2}')
    a.e(f's_lshl_b32 s{S_T2}, s{S_W}, 1')
    a.e(f's_add_u32 s{S_U1}, s{S_U1}, s{S_T2}')
    a.e(f'v_and_b32 v{T0}, 15, v{V_LANE}')
    a.e(f'v_and_b32 v{T1}, 0x30, v{V_LANE}')
    a.e(f's_lshl_b32 s{S_ROTK}, s{S_RB2}, 1')
    a.e(f's_add_u32 s{S_ROTK}, s{S_ROTK}, s{S_CB2}')
    a.e(f's_and_b32 s{S_ROTK}, s{S_ROTK}, {3 if opt.rot else 0}')
    a.e(f'v_and_b32 v{T2}, 31, v{V_LANE}')
    a.e(f'v_lshrrev_b32 v{TB}, 5, v{V_LANE}')
    a.e(f'v_lshlrev_b32 v{V_XRM}, 10, v{T2}')
    a.e(f'v_lshl_add_u32 v{V_XRM}, v{TB}, 3, v{V_XRM}')
    a.e(f's_lshl_b32 s{S_T2}, s{S_U2}, 14')
    a.e(f's_lshl_b32 s{S_T3}, s{S_CB}, 7')
    a.e(f's_add_u32 s{S_T2}, s{S_T2}, s{S_T3}')
    a.e(f's_lshl_b32 s{S_T3}, s{S_CH}, 6')
    a.e(f's_add_u32 s{S_T2}, s{S_T2}, s{S_T3}')
    a.e(f'v_add_u32 v{V_XRM}, s{S_T2}, v{V_XRM}')
    PA = f's[{S_PA}:{S_PA+3}]'
    def p1_load(j):
        for r in range(2):
            a.vmem(f'buffer_load_dwordx4 v[{V_A+(r*16+j)*4}:{V_A+(r*16+j)*4+3}], v{V_AB}, {WS}, s{(S_RK if r == 0 else S_P7) + j // 4} offen offset:{(j%4)*1024} sc1', ('A', j))
    a.e('s_waitcnt lgkmcnt(0)')
    a.e(f's_mul_i32 s{S_B}, s{S_V}, 0x9e3779b1')
    a.e(f's_add_u32 s{S_B}, s{S_B}, 0x7f4a7c15')
    a.e(f's_and_b32 s{S_B}, s{S_B}, 0xffffff00')
    a.c('--- compute: address setup')
    a.e(f'v_lshlrev_b32 v{V_X}, 4, v{V_LANE}')
    a.e(f's_lshl_b32 s{S_T2}, s{S_U1}, 14')
    a.e(f'v_add_u32 v{V_AB}, s{S_T2}, v{V_X}')
    a.e(f'v_lshlrev_b32 v{V_STS}, 4, v{T2}')
    a.e(f'v_lshl_add_u32 v{V_STS}, v{TB}, 11, v{V_STS}')
    a.e(f's_lshl_b32 s{S_T2}, s{S_U2}, 11')
    a.e(f'v_add_u32 v{V_STS}, s{S_T2}, v{V_STS}')
    a.e(f'v_lshlrev_b32 v{V_STST}, 4, v{T2}')
    a.e(f's_lshl_b32 s{S_T4}, s{S_CB}, 9')
    a.e(f's_add_u32 s{S_T2}, s{S_T2}, s{S_T4}')
    a.e(f's_lshl_b32 s{S_T4}, s{S_CH}, 3')
    a.e(f's_add_u32 s{S_T2}, s{S_T2}, s{S_T4}')
    a.e(f'v_add_u32 v{V_STST}, s{S_T2}, v{V_STST}')
    a.e(f's_lshl_b32 s{S_T3}, s{S_CB}, 1')
    a.e(f's_add_u32 s{S_T3}, s{S_T3}, s{S_CH}')
    a.e(f'v_lshlrev_b32 v{V_STB}, 4, v{T0}')
    a.e(f'v_lshl_add_u32 v{V_STB}, v{T1}, 6, v{V_STB}')
    a.e(f's_lshl_b32 s{S_T2}, s{S_U1}, 11')
    a.e(f'v_add_u32 v{V_STB}, s{S_T2}, v{V_STB}')
    a.e(f'v_lshrrev_b32 v{V_TST}, 4, v{T2}')
    a.e(f'v_lshlrev_b32 v{V_TST}, 14, v{V_TST}')
    a.e(f'v_lshl_add_u32 v{V_TST}, v{TB}, 8, v{V_TST}')
    a.e(f'v_lshl_add_u32 v{V_TST}, v{T0}, 4, v{V_TST}')
    a.e(f's_lshl_b32 s{S_T2}, s{S_U2}, 14')
    a.e(f's_lshl_b32 s{S_T4}, s{S_T3}, 10')
    a.e(f's_add_u32 s{S_T2}, s{S_T2}, s{S_T4}')
    a.e(f'v_add_u32 v{V_TST}, s{S_T2}, v{V_TST}')
    a.e(f's_lshl_b32 s{S_T2}, s{S_G}, 9')
    a.e(f's_add_u32 s{S_T2}, s{S_T2}, {hex(LF_OFF)}')
    a.e(f's_lshl_b32 s{S_T3}, s{S_W}, 7')
    a.e(f's_add_u32 s{S_T3}, s{S_T3}, s{S_T2}')
    a.e(f's_lshl_b32 s{S_T4}, s{S_R}, 2')
    a.e(f's_add_u32 s{S_T4}, s{S_T4}, s{S_T3}')
    a.e(f'v_mov_b32 v{V_FOWN}, s{S_T4}')
    a.e(f'v_and_b32 v{V_X+1}, 7, v{V_LANE}')
    a.e(f'v_lshlrev_b32 v{V_X+1}, 2, v{V_X+1}')
    a.e(f'v_bfe_u32 v{V_X+2}, v{V_LANE}, 3, 1')
    a.e(f'v_lshl_add_u32 v{V_X+1}, v{V_X+2}, 7, v{V_X+1}')
    a.e(f's_lshl_b32 s{S_T4}, s{S_RB2}, 1')
    a.e(f's_add_u32 s{S_T4}, s{S_T4}, s{S_RH}')
    a.e(f's_lshl_b32 s{S_T4}, s{S_T4}, 5')
    a.e(f's_lshl_b32 s{S_T5}, s{S_CH}, 8')
    a.e(f's_add_u32 s{S_T4}, s{S_T4}, s{S_T5}')
    a.e(f's_add_u32 s{S_T4}, s{S_T4}, s{S_T2}')
    a.e(f'v_add_u32 v{V_FSB}, s{S_T4}, v{V_X+1}')
    a.e(f's_lshl_b32 s{S_T4}, s{S_CB2}, 7')
    a.e(f's_add_u32 s{S_T4}, s{S_T4}, {hex(KVF_OFF)}')
    a.e(f'v_lshlrev_b32 v{V_FKV}, 2, v{T2}')
    a.e(f'v_add_u32 v{V_FKV}, s{S_T4}, v{V_FKV}')
    a.e(f'v_bfe_u32 v{V_X+1}, v{V_LANE}, 2, 2')
    a.e(f'v_lshrrev_b32 v{V_X+2}, 4, v{V_LANE}')
    a.e(f'v_lshl_add_u32 v{V_X+3}, v{V_X+2}, 2, v{V_X+1}')
    a.e(f'v_and_b32 v{V_X+4}, 3, v{V_LANE}')
    a.e(f'v_lshlrev_b32 v{V_X+4}, 3, v{V_X+4}')
    a.e(f'v_bfe_u32 v{V_X+5}, v{V_X+3}, 1, 2')
    a.e(f'v_lshl_add_u32 v{V_T128}, v{V_X+5}, 5, v{V_X+4}')
    a.e(f'v_lshl_add_u32 v{V_T128}, v{V_X+3}, 7, v{V_T128}')
    a.e(f'v_bfe_u32 v{V_X+5}, v{V_X+3}, 2, 1')
    a.e(f'v_lshl_add_u32 v{V_T64}, v{V_X+5}, 5, v{V_X+4}')
    a.e(f'v_lshl_add_u32 v{V_T64}, v{V_X+3}, 6, v{V_T64}')
    a.e(f'v_mul_u32_u24 v{V_T224}, 224, v{V_X+3}')
    a.e(f'v_add_u32 v{V_T224}, v{V_T224}, v{V_X+4}')
    a.e(f'v_lshrrev_b32 v{V_X+3}, 1, v{V_X+2}')
    a.e(f'v_lshl_add_u32 v{V_X+3}, v{V_X+3}, 2, v{V_X+1}')
    a.e(f'v_and_b32 v{V_X+5}, 1, v{V_X+2}')
    a.e(f's_lshl_b32 s{S_T4}, s{S_CH}, 1')
    a.e(f'v_add_u32 v{V_X+5}, s{S_T4}, v{V_X+5}')
    a.e(f'v_and_b32 v{V_X+1}, 2, v{V_X+1}')
    a.e(f'v_xor_b32 v{V_X+5}, v{V_X+5}, v{V_X+1}')
    a.e(f'v_lshl_add_u32 v{V_TN}, v{V_X+5}, 5, v{V_X+4}')
    a.e(f'v_lshl_add_u32 v{V_TN}, v{V_X+3}, 7, v{V_TN}')
    a.e(f'v_bfe_u32 v{V_TA}, v{V_LANE}, 4, 1')
    a.e(f's_lshl_b32 s{S_T4}, s{S_RH}, 1')
    a.e(f'v_add_u32 v{V_TA}, s{S_T4}, v{V_TA}')
    a.e(f'v_lshlrev_b32 v{V_TA}, 12, v{V_TA}')
    a.e(f'v_lshl_add_u32 v{V_TA}, v{TB}, 8, v{V_TA}')
    a.e(f'v_lshl_add_u32 v{V_TA}, v{T0}, 4, v{V_TA}')
    if AREG: a.e(f'v_add_u32 v{V_TA}, {hex(AREG)}, v{V_TA}')
    c1 = -2.0 * 0.7978845608028654 * 1.4426950408889634
    c2 = c1 * 0.044715
    for s, v in [(S_C1, c1), (S_C2, c2), (S_C2 + 1, c2), (S_ONE2, 1.0), (S_ONE2 + 1, 1.0),
                 (S_LOG2E, 1.4426950408889634), (S_EPS6, 1e-6), (S_L2E2, 1.4426950408889634), (S_L2E2 + 1, 1.4426950408889634),
                 (S_E62, 1e-6), (S_E62 + 1, 1e-6)]:
        if opt.dbgout >= 0 and s in (S_E62, S_E62 + 1): continue
        a.e(f's_mov_b32 s{s}, {hex(f2u(v))}')
    a.e(f's_mov_b32 s{S_L}, 0')
    a.e(f's_mov_b32 s{S_LOFF}, 0')
    a.e(f's_mov_b32 s{S_EP}, 1')
    a.e(f's_mov_b32 s{S_MODE}, 1')
    a.e(f's_mov_b32 s{S_COLD}, 1')
    a.e(f's_lshl_b32 s{S_GH}, s{S_G}, 1')
    a.e(f's_add_u32 s{S_GH}, s{S_GH}, 1')
    a.e(f's_lshl_b32 s{S_GH}, s{S_GH}, 14')

    if WARM0[0]:
        assert evq[0][2] == 'W0'; evq.pop(0)
        a.e('s_barrier')
    LOOP = 'LAYER_LOOP'
    a.label(LOOP)
    slabs = build_slabs(0)

    def run_layer():
        def bar(ev):
            exp = evq.pop(0)
            assert exp[1:] == ev or (exp[1] == 'X' and ev[0] == 'X' and exp[2] == ev[1]), (exp, ev)
            a.e('s_barrier')
        def soff(reg, base, extra=0, gh=False):
            if gh: a.e(f's_add_u32 s{reg}, s{S_GH}, {hex(base + extra)}')
            else: a.e(f's_mov_b32 s{reg}, {hex(base + extra)}')
        def done(p):
            if opt.stop == (1, p):
                a.e(f's_cmp_eq_u32 s{S_L}, 1')
                a.e('s_cbranch_scc1 L_END_COMPUTE')
            return opt.stop == (0, p)
        def ep(k):
            a.e(f's_add_u32 s{S_T5}, s{S_EP}, {k}')
            return f's{S_T5}'

        a.c('=== P1KV')
        WR1 = 96; D1 = 116; ONES = 124; D2 = V_PQ
        for i in range(4): a.e(f'v_mov_b32 v{ONES+i}, 0x3f803f80')
        l0 = a.newlabel('KVL0'); ljoin = a.newlabel('KVJ')
        a.e(f's_cmp_eq_u32 s{S_L}, 0')
        a.e(f's_cbranch_scc1 {l0}')
        saved_ev = list(evq)
        evq[:] = [x for x in evq if x[1] != 'R']
        emit_poll(a, V_FSB, f's{S_EP}', opt=opt)
        for j in range(opt.D_kv): p1_load(j)
        stamp()
        a.fstamp('P1KV')
        def kv_issue(j, t):
            if t == 1:
                if j + opt.D_kv < 16:
                    p1_load(j + opt.D_kv)
                elif j + opt.D_kv == 16:
                    soff(S_T0, ST_OFF)
                    a.vmem(f'buffer_load_dwordx4 v[{D1}:{D1+3}], v{V_STB}, {WS}, s{S_T0} offen sc1', 'st')
                    a.vmem(f'buffer_load_dwordx4 v[{D1+4}:{D1+7}], v{V_STB}, {WS}, s{S_T0} offen offset:512 sc1', 'st')
                    a.vmem(f'buffer_load_dwordx4 v[{D2}:{D2+3}], v{V_STB}, {WS}, s{S_T0} offen offset:256 sc1', 'st')
                    a.vmem(f'buffer_load_dwordx4 v[{D2+4}:{D2+7}], v{V_STB}, {WS}, s{S_T0} offen offset:768 sc1', 'st')
        emit_gemm16(a, bar, 'P1KV', slabs['P1KV'], 4, '128',
                    acc_of=lambda r, t: V_ACC + (r * 4 + t) * 4, a_of=lambda r, j: V_A + (r * 16 + j) * 4,
                    a_wait=lambda j: a.count_vm(('A', j)), a_issue=kv_issue, wr=WR1, S=5, normal=True)
        a.e(f's_branch {ljoin}')
        a.label(l0)
        evq[:] = saved_ev
        a.vm = []
        fs[0] = 0
        cnt_[0] = 0
        a.fstamp('P1KV')
        tm[0] -= 1 if opt.timing else 0
        stamp()
        VLA = V_X
        a.e(f'v_and_b32 v{T0}, 15, v{V_LANE}')
        a.e(f'v_lshrrev_b32 v{T1}, 4, v{V_LANE}')
        a.e(f'v_xor_b32 v{T1}, v{T1}, v{T0}')
        a.e(f'v_lshlrev_b32 v{T1}, 4, v{T1}')
        a.e(f's_lshl_b32 s{S_T0}, s{S_W}, 5')
        a.e(f'v_add_u32 v{T0}, s{S_T0}, v{T0}')
        a.e(f'v_lshlrev_b32 v{T0}, 8, v{T0}')
        for j in range(4):
            a.e(f'v_xor_b32 v{VLA+j}, {64*j}, v{T1}')
            a.e(f'v_add_u32 v{VLA+j}, v{VLA+j}, v{T0}')
        def kv_lds(j):
            c = j // 4
            return [f'ds_read_b128 v[{V_A+(r*16+j)*4}:{V_A+(r*16+j)*4+3}], v{VLA + j % 4} offset:{AREG + (c & 1) * 32768 + r * 4096}' for r in range(2)]
        def kv_extra(j):
            for r in range(2):
                x = f'v[{V_A+(r*16+j)*4}:{V_A+(r*16+j)*4+3}]'
                c1_ = '0' if j == 0 else f'v[{D1+4*r}:{D1+4*r+3}]'
                c2_ = '0' if j == 0 else f'v[{D2+4*r}:{D2+4*r+3}]'
                a.e(f'v_mfma_f32_16x16x32_bf16 v[{D1+4*r}:{D1+4*r+3}], v[{ONES}:{ONES+3}], {x}, {c1_}')
                a.e(f'v_mfma_f32_16x16x32_bf16 v[{D2+4*r}:{D2+4*r+3}], {x}, {x}, {c2_}')
        emit_gemm16(a, bar, 'P1KV', slabs['P1KV'], 4, '128',
                    acc_of=lambda r, t: V_ACC + (r * 4 + t) * 4, a_of=lambda r, j: V_A + (r * 16 + j) * 4,
                    a_wait=lambda j: None, a_issue=lambda j, t: None, wr=WR1, S=5, normal=True, extra=kv_extra, a_lds=kv_lds)
        a.label(ljoin)
        stamp()
        a.wait_vm_all()
        SUM = [(V_X, V_X + 1), (V_X + 2, V_X + 3)]
        l1 = a.newlabel('S1'); le = a.newlabel('SE')
        a.e(f's_cmp_eq_u32 s{S_L}, 0')
        a.e(f's_cbranch_scc0 {l1}')
        a.e(f'v_and_b32 v{T0}, 31, v{V_LANE}')
        a.e(f'v_lshlrev_b32 v{T0}, 7, v{T0}')
        a.e(f'v_lshrrev_b32 v{T1}, 5, v{V_LANE}')
        a.e(f'v_lshl_add_u32 v{T0}, v{T1}, 3, v{T0}')
        a.e(f's_lshl_b32 s{S_T0}, s{S_RH}, 12')
        a.e(f's_lshl_b32 s{S_T1}, s{S_CH}, 6')
        a.e(f's_add_u32 s{S_T0}, s{S_T0}, s{S_T1}')
        if AREG: a.e(f's_add_u32 s{S_T0}, s{S_T0}, {hex(AREG)}')
        a.e(f'v_add_u32 v{T0}, s{S_T0}, v{T0}')
        for j in range(4):
            a.e(f'ds_read_b64 v[{V_RES+4*j}:{V_RES+4*j+1}], v{T0} offset:{16*j}')
        a.e('s_waitcnt lgkmcnt(0)')
        for j in range(4):
            b = V_RES + 4 * j
            a.e(f'v_and_b32 v{b+3}, 0xffff0000, v{b+1}')
            a.e(f'v_lshlrev_b32 v{b+2}, 16, v{b+1}')
            a.e(f'v_and_b32 v{b+1}, 0xffff0000, v{b}')
            a.e(f'v_lshlrev_b32 v{b}, 16, v{b}')
        a.e(f'v_and_b32 v{T0}, 3, v{V_LANE}')
        a.e(f'v_bfe_u32 v{T1}, v{V_LANE}, 2, 2')
        a.e(f'v_lshrrev_b32 v{T2}, 4, v{V_LANE}')
        for r in range(2):
            s_, ss_ = SUM[r]
            a.e(f'v_mov_b32 v{s_}, v{D1+4*r}')
            a.e(f'v_mov_b32 v{ss_}, v{D2+4*r}')
            for i in range(1, 4):
                a.e(f'v_cmp_eq_u32 vcc, {i}, v{T0}')
                a.e('s_nop 1')
                a.e(f'v_cndmask_b32 v{ss_}, v{ss_}, v{D2+4*r+i}, vcc')
            a.e(f'v_cmp_eq_u32 vcc, v{T1}, v{T2}')
            a.e('s_nop 1')
            a.e(f'v_cndmask_b32 v{ss_}, 0, v{ss_}, vcc')
        emit_xreduce(a, [SUM[0][1], SUM[1][1]], [T0, T1])
        a.e(f's_branch {le}')
        a.label(l1)
        for r, raw in enumerate([D1, D2]):
            emit_sum_partials(a, raw, 8)
            a.e(f'v_mov_b32 v{SUM[r][0]}, v{raw}')
            a.e(f'v_mov_b32 v{SUM[r][1]}, v{raw+1}')
        emit_xreduce(a, [SUM[0][0], SUM[0][1], SUM[1][0], SUM[1][1]], [WR1, WR1 + 1, WR1 + 2, WR1 + 3])
        a.label(le)
        CSR = 120
        a.e(f'v_and_b32 v{T0}, 15, v{V_LANE}')
        a.e(f'v_lshlrev_b32 v{T0}, 2, v{T0}')
        a.e(f'v_add_u32 v{T0}, {hex(CSC)}, v{T0}')
        a.e(f'v_and_b32 v{T1}, 0x30, v{V_LANE}')
        for t in range(4):
            a.e(f'ds_read_b32 v{CSR+t}, v{T0} offset:{64*t}')
        KEEP = [(V_PQ + 0, V_PQ + 2), (V_PQ + 4, V_PQ + 6)]
        for r in range(2):
            emit_stats_from_sums(a, SUM[r][0], SUM[r][1], KEEP[r][0], KEEP[r][1], WR1)
        AI = [WR1, WR1 + 8]; BI = [WR1 + 4, WR1 + 12]
        for r in range(2):
            for i in range(4):
                a.e(f'ds_bpermute_b32 v{AI[r]+i}, v{T1}, v{KEEP[r][0]} offset:{4*i}')
                a.e(f'ds_bpermute_b32 v{BI[r]+i}, v{T1}, v{KEEP[r][1]} offset:{4*i}')
        a.e('s_waitcnt vmcnt(0) lgkmcnt(0)'); a.vm = []
        CSE = WR1 + 16
        for t in range(4): a.e(f'v_mov_b32 v{CSE+2*t}, v{CSR+t}')
        for r in range(2):
            for t in range(4):
                for i in (0, 2):
                    d = V_ACC + (r * 4 + t) * 4 + i
                    a.e(pk('mul', d, vp(d), vp(AI[r] + i)))
            for t in range(4):
                for i in (0, 2):
                    d = V_ACC + (r * 4 + t) * 4 + i
                    a.e(pk('fma', d, vp(BI[r] + i), vp(CSE + 2 * t), vp(d), mods=' op_sel_hi:[1,0,1]'))
        regs = [V_ACC + (r * 4 + t) * 4 + i for r in range(2) for t in range(2) for i in range(4)]
        emit_phi(a, regs, WR1)
        for t in range(4):
            b0 = V_ACC + t * 4; b1 = V_ACC + (4 + t) * 4
            a.e(f'v_cvt_pk_bf16_f32 v{b0}, v{b0}, v{b0+1}')
            a.e(f'v_cvt_pk_bf16_f32 v{b0+1}, v{b0+2}, v{b0+3}')
            a.e(f'v_cvt_pk_bf16_f32 v{b0+2}, v{b1}, v{b1+1}')
            a.e(f'v_cvt_pk_bf16_f32 v{b0+3}, v{b1+2}, v{b1+3}')
        a.e('s_nop 1')
        KVD = V_ACC + 16
        for h in range(2):
            a.e(f'v_mfma_f32_16x16x32_bf16 v[{KVD+4*h}:{KVD+4*h+3}], v[{V_ACC+4*h}:{V_ACC+4*h+3}], v[{V_ACC+8+4*h}:{V_ACC+8+4*h+3}], 0')
            a.e(f'v_mfma_f32_16x16x32_bf16 v[{KVD+8+4*h}:{KVD+8+4*h+3}], v[{V_ACC+4*h}:{V_ACC+4*h+3}], v[{ONES}:{ONES+3}], 0')
        a.e(f's_lshl_b32 s{S_T0}, s{S_W}, 11')
        a.e(f's_add_u32 s{S_T0}, s{S_T0}, {hex(SCR)}')
        a.e(f'v_lshlrev_b32 v{T0}, 4, v{V_LANE}')
        a.e(f'v_add_u32 v{T0}, s{S_T0}, v{T0}')
        a.e(f's_lshl_b32 s{S_T0}, s{S_W}, 7')
        a.e(f's_add_u32 s{S_T0}, s{S_T0}, {hex(SCR + 8192)}')
        a.e(f'v_add_u32 v{T2}, s{S_T0}, v{T1}')
        a.e('s_nop 4')
        a.e(f'ds_write_b128 v{T0}, v[{KVD}:{KVD+3}]')
        a.e(f'ds_write_b128 v{T0}, v[{KVD+4}:{KVD+7}] offset:1024')
        set_exec(a, 0x00010001)
        a.e(f'ds_write_b128 v{T2}, v[{KVD+8}:{KVD+11}]')
        a.e(f'ds_write_b128 v{T2}, v[{KVD+12}:{KVD+15}] offset:64')
        a.e('s_mov_b64 exec, -1')
        a.e('s_waitcnt lgkmcnt(0)')
        bar(('X', 'X1'))
        sk = a.newlabel('KVST')
        a.e(f's_cmp_lt_u32 s{S_W}, 2')
        a.e(f's_cbranch_scc0 {sk}')
        if opt.kv_atomic:
            a.e(f's_lshl_b32 s{S_T0}, s{S_W}, 10')
            a.e(f's_add_u32 s{S_T0}, s{S_T0}, {hex(SCR)}')
            a.e(f'v_lshlrev_b32 v{T0}, 2, v{V_LANE}')
            a.e(f'v_add_u32 v{T2}, s{S_T0}, v{T0}')
            a.e(f's_lshl_b32 s{S_T0}, s{S_W}, 6')
            a.e(f's_add_u32 s{S_T0}, s{S_T0}, {hex(SCR + 8192)}')
            a.e(f'v_add_u32 v{V_X}, s{S_T0}, v{T0}')
            KB = V_ACC
            for ww in range(4):
                for i in range(4):
                    a.e(f'ds_read_b32 v{KB+4*ww+i}, v{T2} offset:{ww*2048+256*i}')
                if ww == 2: a.e('s_waitcnt lgkmcnt(4)')
            for ww in range(4):
                a.e(f'ds_read_b32 v{KB+16+ww}, v{V_X} offset:{ww*128}')
            a.e(f's_mul_i32 s{S_T0}, s{S_CB2}, {KVREC}')
            a.e(f's_mul_i32 s{S_T1}, s{S_L}, {16*KVREC}')
            a.e(f's_add_u32 s{S_T0}, s{S_T0}, s{S_T1}')
            a.e(f's_add_u32 s{S_T0}, s{S_T0}, {hex(KVA_OFF)}')
            a.e(f's_lshl_b32 s{S_T1}, s{S_W}, 10')
            a.e(f's_add_u32 s{S_T1}, s{S_T1}, s{S_T0}')
            a.e(f's_lshl_b32 s{S_T2}, s{S_W}, 6')
            a.e(f's_add_u32 s{S_T2}, s{S_T2}, s{S_T0}')
            a.e(f's_add_u32 s{S_T2}, s{S_T2}, 2048')
            a.e('s_waitcnt lgkmcnt(0)')
            for i in (0, 2):
                a.e(pk('add', KB + i, vp(KB + i), vp(KB + 4 + i)))
                a.e(pk('add', KB + 8 + i, vp(KB + 8 + i), vp(KB + 12 + i)))
                a.e(pk('add', KB + i, vp(KB + i), vp(KB + 8 + i)))
            a.e(pk('add', KB + 16, vp(KB + 16), vp(KB + 18)))
            a.e(f'v_add_f32 v{KB+16}, v{KB+16}, v{KB+17}')
            for i in range(4):
                a.e(f'buffer_atomic_add_f32 v{KB+i}, v{T0}, {WS}, s{S_T1} offen offset:{256*i}')
            a.e('s_mov_b64 exec, 0xffff')
            a.e(f'buffer_atomic_add_f32 v{KB+16}, v{T0}, {WS}, s{S_T2} offen')
            a.e('s_mov_b64 exec, -1')
        else:
            a.e(f's_lshl_b32 s{S_T0}, s{S_W}, 10')
            a.e(f's_add_u32 s{S_T0}, s{S_T0}, {hex(SCR)}')
            a.e(f'v_lshlrev_b32 v{T0}, 4, v{V_LANE}')
            a.e(f'v_add_u32 v{T2}, s{S_T0}, v{T0}')
            a.e(f's_lshl_b32 s{S_T0}, s{S_W}, 6')
            a.e(f's_add_u32 s{S_T0}, s{S_T0}, {hex(SCR + 8192)}')
            a.e(f'v_add_u32 v{V_X}, s{S_T0}, v{T1}')
            KB = V_ACC
            for ww in range(4):
                a.e(f'ds_read_b128 v[{KB+4*ww}:{KB+4*ww+3}], v{T2} offset:{ww*2048}')
                a.e(f'ds_read_b128 v[{KB+16+4*ww}:{KB+16+4*ww+3}], v{V_X} offset:{ww*128}')
            a.e(f's_lshl_b32 s{S_T0}, s{S_CB2}, 4')
            a.e(f's_lshl_b32 s{S_T1}, s{S_G}, 1')
            a.e(f's_add_u32 s{S_T0}, s{S_T0}, s{S_T1}')
            a.e(f's_add_u32 s{S_T0}, s{S_T0}, s{S_RB2}')
            a.e(f's_mul_i32 s{S_T0}, s{S_T0}, {KVREC}')
            a.e(f's_add_u32 s{S_T0}, s{S_T0}, s{S_LOFF}')
            a.e(f's_add_u32 s{S_T0}, s{S_T0}, {hex(KVP_OFF)}')
            a.e(f's_lshl_b32 s{S_T1}, s{S_W}, 10')
            a.e(f's_add_u32 s{S_T1}, s{S_T1}, s{S_T0}')
            a.e(f's_lshl_b32 s{S_T2}, s{S_W}, 6')
            a.e(f's_add_u32 s{S_T2}, s{S_T2}, s{S_T0}')
            a.e(f's_add_u32 s{S_T2}, s{S_T2}, 2048')
            a.e('s_waitcnt lgkmcnt(0)')
            for base in (KB, KB + 16):
                for i in range(0, 4, 2):
                    a.e(pk('add', base + i, vp(base + i), vp(base + 4 + i)))
                    a.e(pk('add', base + 8 + i, vp(base + 8 + i), vp(base + 12 + i)))
                    a.e(pk('add', base + i, vp(base + i), vp(base + 8 + i)))
            a.e(f'buffer_store_dwordx4 v[{KB}:{KB+3}], v{T0}, {WS}, s{S_T1} offen sc1')
            set_exec(a, 0x00010001)
            a.e(f'buffer_store_dwordx4 v[{KB+16}:{KB+19}], v{T1}, {WS}, s{S_T2} offen sc1')
            a.e('s_mov_b64 exec, -1')
        a.e(f's_lshl_b32 s{S_T0}, s{S_L}, 11')
        a.e(f's_lshl_b32 s{S_T1}, s{S_CB2}, 7')
        a.e(f's_add_u32 s{S_T0}, s{S_T0}, s{S_T1}')
        a.e(f's_lshl_b32 s{S_T1}, s{S_W}, 6')
        a.e(f's_add_u32 s{S_T0}, s{S_T0}, s{S_T1}')
        a.e(f's_lshl_b32 s{S_T1}, s{S_G}, 3')
        a.e(f's_add_u32 s{S_T0}, s{S_T0}, s{S_T1}')
        a.e(f's_lshl_b32 s{S_T1}, s{S_RB2}, 2')
        a.e(f's_add_u32 s{S_T0}, s{S_T0}, s{S_T1}')
        a.e(f's_add_u32 s{S_T0}, s{S_T0}, {hex(KVF_OFF)}')
        a.e(f'v_mov_b32 v{V_X+4}, s{S_T0}')
        a.label(sk)
        a.vm = []
        stamp()
        if done('P1KV'): return True

        a.c('=== P1Q')
        QCS = V_ACC + 16
        a.e(f'v_and_b32 v{T1}, 0x30, v{V_LANE}')
        a.e(f'v_add_u32 v{T1}, {hex(CSC + 256)}, v{T1}')
        a.e(f'ds_read_b128 v[{QCS}:{QCS+3}], v{T1}')
        a.e(f'ds_read_b128 v[{QCS+4}:{QCS+7}], v{T1} offset:64')
        a.e('s_waitcnt lgkmcnt(0)')
        QAB = [(V_ACC + 24, V_ACC + 26), (V_ACC + 28, V_ACC + 30)]
        for r in range(2):
            a.e(f'v_mov_b32 v{QAB[r][0]}, v{KEEP[r][0]}')
            a.e(f'v_mov_b32 v{QAB[r][1]}, v{KEEP[r][1]}')
        def q_issue(j, t):
            if j == opt.kvflag_at and t == 1:
                fk = a.newlabel('KVFL')
                a.e(f's_cmp_lt_u32 s{S_W}, 2')
                a.e(f's_cbranch_scc0 {fk}')
                thr_value(a, S_THR, 1, xcc=True)
                a.e(f'v_mov_b32 v{V_X+5}, s{S_THR}')
                a.e('s_waitcnt vmcnt(0)')
                a.e('s_mov_b64 exec, 1')
                a.e(f'buffer_store_dword v{V_X+5}, v{V_X+4}, {WS}, 0 offen sc1')
                a.e('s_mov_b64 exec, -1')
                a.label(fk)
        emit_gemm16(a, bar, 'P1Q', slabs['P1Q'], 2, '64',
                    acc_of=lambda r, t: V_ACC + (r * 2 + t) * 4, a_of=lambda r, j: V_A + (r * 16 + j) * 4,
                    a_wait=lambda j: None, a_issue=q_issue, wr=96, S=8)
        for r in range(2):
            for t in range(2):
                emit_lnfold(a, V_ACC + (r * 2 + t) * 4, QCS + 4 * t, QAB[r][0], QAB[r][1], 4)
        emit_phi(a, [V_ACC + i for i in range(16)], 96)
        for r in range(2):
            for h in range(2):
                emit_pack(a, V_PQ + (r * 2 + h) * 2, V_ACC + (r * 2 + h) * 4, 4)
        stamp()
        sk = a.newlabel('MODE')
        a.e(f's_cmp_eq_u32 s{S_L}, 0')
        a.e(f's_cbranch_scc0 {sk}')
        a.e(f'v_and_b32 v{T1}, 31, v{V_LANE}')
        a.e(f'v_lshlrev_b32 v{T1}, 2, v{T1}')
        a.e(f's_lshl_b32 s{S_T0}, s{S_G}, 7')
        a.e(f's_add_u32 s{S_T0}, s{S_T0}, {hex(XID_OFF)}')
        emit_poll(a, T1, 0, soff=f's{S_T0}', opt=opt)
        a.e(f'v_and_b32 v{T2}, 7, v{T2}')
        a.e(f'v_cmp_eq_u32 vcc, s{S_XCC}, v{T2}')
        a.e('s_nop 1')
        a.e('s_cmp_eq_u64 vcc, -1')
        a.e(f's_cselect_b32 s{S_MODE}, 0, 1')
        if opt.force_safe: a.e(f's_mov_b32 s{S_MODE}, 1')
        a.label(sk)
        a.e(f's_lshl_b32 s{S_T0}, s{S_L}, 11')
        emit_poll(a, V_FKV, 1, soff=f's{S_T0}', opt=opt)
        stamp()
        RB = V_A + 64
        if opt.kv_atomic:
            a.e(f's_mul_i32 s{S_T0}, s{S_CB2}, {KVREC}')
            a.e(f's_mul_i32 s{S_T1}, s{S_L}, {16*KVREC}')
            a.e(f's_add_u32 s{S_T0}, s{S_T0}, s{S_T1}')
            a.e(f's_add_u32 s{S_T0}, s{S_T0}, {hex(KVA_OFF)}')
            a.e(f'v_lshlrev_b32 v{T0}, 4, v{V_LANE}')
            a.e(f'v_and_b32 v{T1}, 0x30, v{V_LANE}')
            a.vmem(f'buffer_load_dwordx4 v[{RB}:{RB+3}], v{T0}, {WS}, s{S_T0} offen sc1', 'kp')
            a.vmem(f'buffer_load_dwordx4 v[{RB+4}:{RB+7}], v{T0}, {WS}, s{S_T0} offen offset:1024 sc1', 'kp')
            a.vmem(f'buffer_load_dwordx4 v[{RB+8}:{RB+11}], v{T1}, {WS}, s{S_T0} offen offset:2048 sc1', 'kp')
            a.vmem(f'buffer_load_dwordx4 v[{RB+12}:{RB+15}], v{T1}, {WS}, s{S_T0} offen offset:2112 sc1', 'kp')
            a.wait_vm_all()
        else:
            a.e(f's_lshl_b32 s{S_T0}, s{S_CB2}, 4')
            a.e(f's_lshl_b32 s{S_T1}, s{S_W}, 2')
            a.e(f's_add_u32 s{S_T0}, s{S_T0}, s{S_T1}')
            a.e(f's_mul_i32 s{S_T0}, s{S_T0}, {KVREC}')
            a.e(f's_add_u32 s{S_T0}, s{S_T0}, s{S_LOFF}')
            a.e(f's_add_u32 s{S_T0}, s{S_T0}, {hex(KVP_OFF)}')
            a.e(f'v_lshlrev_b32 v{T0}, 4, v{V_LANE}')
            a.e(f'v_and_b32 v{T1}, 0x30, v{V_LANE}')
            PB = V_A
            for s4 in range(4):
                b = PB + 16 * s4
                a.vmem(f'buffer_load_dwordx4 v[{b}:{b+3}], v{T0}, {WS}, s{S_T0} offen sc1', 'kp')
                a.vmem(f'buffer_load_dwordx4 v[{b+4}:{b+7}], v{T0}, {WS}, s{S_T0} offen offset:1024 sc1', 'kp')
                a.vmem(f'buffer_load_dwordx4 v[{b+8}:{b+11}], v{T1}, {WS}, s{S_T0} offen offset:2048 sc1', 'kp')
                a.vmem(f'buffer_load_dwordx4 v[{b+12}:{b+15}], v{T1}, {WS}, s{S_T0} offen offset:2112 sc1', 'kp')
                if s4 < 3: a.e(f's_add_u32 s{S_T0}, s{S_T0}, {KVREC}')
            a.e(f's_lshl_b32 s{S_T0}, s{S_W}, 11')
            a.e(f's_add_u32 s{S_T0}, s{S_T0}, {hex(SCR)}')
            a.e(f'v_add_u32 v{T0}, s{S_T0}, v{T0}')
            a.e(f's_lshl_b32 s{S_T0}, s{S_W}, 7')
            a.e(f's_add_u32 s{S_T0}, s{S_T0}, {hex(SCR + 8192)}')
            a.e(f'v_add_u32 v{T2}, s{S_T0}, v{T1}')
            a.wait_vm_all()
            for i in range(0, 16, 2):
                a.e(pk('add', PB + i, vp(PB + i), vp(PB + 16 + i)))
                a.e(pk('add', PB + 32 + i, vp(PB + 32 + i), vp(PB + 48 + i)))
            for i in range(0, 16, 2):
                a.e(pk('add', PB + i, vp(PB + i), vp(PB + 32 + i)))
            a.e(f'ds_write_b128 v{T0}, v[{PB}:{PB+3}]')
            a.e(f'ds_write_b128 v{T0}, v[{PB+4}:{PB+7}] offset:1024')
            set_exec(a, 0x00010001)
            a.e(f'ds_write_b128 v{T2}, v[{PB+8}:{PB+11}]')
            a.e(f'ds_write_b128 v{T2}, v[{PB+12}:{PB+15}] offset:64')
            a.e('s_mov_b64 exec, -1')
            a.e(f'v_lshlrev_b32 v{T0}, 4, v{V_LANE}')
            a.e(f'v_add_u32 v{T0}, {hex(SCR)}, v{T0}')
            a.e(f'v_add_u32 v{T2}, {hex(SCR + 8192)}, v{T1}')
            a.e('s_waitcnt lgkmcnt(0)')
            bar(('X', 'X2'))
            for ww in range(4):
                b = RB + 16 * ww
                a.e(f'ds_read_b128 v[{b}:{b+3}], v{T0} offset:{ww*2048}')
                a.e(f'ds_read_b128 v[{b+4}:{b+7}], v{T0} offset:{ww*2048+1024}')
                a.e(f'ds_read_b128 v[{b+8}:{b+11}], v{T2} offset:{ww*128}')
                a.e(f'ds_read_b128 v[{b+12}:{b+15}], v{T2} offset:{ww*128+64}')
                if ww == 2: a.e('s_waitcnt lgkmcnt(8)')
            a.e('s_waitcnt lgkmcnt(0)')
            for i in range(0, 16, 2):
                a.e(pk('add', RB + i, vp(RB + i), vp(RB + 16 + i)))
                a.e(pk('add', RB + 32 + i, vp(RB + 32 + i), vp(RB + 48 + i)))
            for i in range(0, 16, 2):
                a.e(pk('add', RB + i, vp(RB + i), vp(RB + 32 + i)))
        OPB = V_ACC + 16
        emit_pack(a, OPB, RB, 16)
        a.e('s_nop 1')
        NUM = V_A; DEN = V_A + 16
        for r in range(2):
            for h in range(2):
                pq = V_PQ + (r * 2 + h) * 2
                n_ = NUM + (r * 2 + h) * 4; d_ = DEN + (r * 2 + h) * 4
                a.e(f'v_mfma_f32_16x16x16_bf16 v[{n_}:{n_+3}], v[{OPB+2*h}:{OPB+2*h+1}], v[{pq}:{pq+1}], 0')
                a.e(f'v_mfma_f32_16x16x16_bf16 v[{d_}:{d_+3}], v[{OPB+4+2*h}:{OPB+4+2*h+1}], v[{pq}:{pq+1}], 0')
        a.e(f's_lshl_b32 s{S_T0}, s{S_CB2}, 10')
        a.e(f's_add_u32 s{S_T0}, s{S_T0}, s{S_GH}')
        a.e(f's_add_u32 s{S_T1}, s{S_T0}, 0x4000')
        a.e('s_nop 4')
        for k in range(4): a.e(f'v_add_f32 v{DEN+4*k}, s{S_EPS6}, v{DEN+4*k}')
        for k in range(4): a.e(f'v_rcp_f32 v{DEN+4*k}, v{DEN+4*k}')
        a.e('s_nop 0')
        for k in range(4):
            for i in range(4): a.e(f'v_mul_f32 v{NUM+4*k+i}, v{NUM+4*k+i}, v{DEN+4*k}')
        OPK = V_A + 32
        emit_pack(a, OPK, NUM, 16)
        emit_mode_stores(a, [f'buffer_store_dwordx4 v[{OPK}:{OPK+3}], v{V_AB}, {WS}, s{S_T0} offen',
                             f'buffer_store_dwordx4 v[{OPK+4}:{OPK+7}], v{V_AB}, {WS}, s{S_T1} offen'], cold=True)
        emit_signal(a, ep(1))
        stamp()
        if done('P1Q'): return True

        ACC = V_ACC; WR = 80; TMP = V_A
        def small_gemm(phase, tail=None):
            a.fstamp(phase)
            emit_gemm32(a, bar, phase, slabs[phase], ACC, WR, tail=tail)
        def tile_store(pkb, base, gh=False, cold=False):
            soff(S_T0, base, gh=gh)
            emit_mode_stores(a, [f'buffer_store_dwordx4 v[{pkb}:{pkb+3}], v{V_TST}, {WS}, s{S_T0} offen',
                                 f'buffer_store_dwordx4 v[{pkb+4}:{pkb+7}], v{V_TST}, {WS}, s{S_T0} offen offset:512'], cold=cold)

        a.c('=== P3')
        stamp()
        small_gemm('P3')
        stamp()
        for i in range(0, 16, 2): a.e(pk('add', V_RES + i, vp(V_RES + i), vp(ACC + i)))
        emit_pack32(a, TMP, V_RES)
        tile_store(TMP, A1_OFF, cold=True)
        soff(S_T1, ST_OFF)
        emit_stats_partial32(a, V_RES, TMP + 8, f's{S_T1}', cold=True)
        emit_signal(a, ep(2))
        stamp()
        if done('P3'): return True

        a.c('=== P4')
        CS4 = TMP + 16; RAW = TMP + 32
        a.e(f'v_lshrrev_b32 v{T1}, 5, v{V_LANE}')
        a.e(f'v_lshlrev_b32 v{T1}, 4, v{T1}')
        a.e(f's_lshl_b32 s{S_T1}, s{S_CH}, 7')
        a.e(f's_add_u32 s{S_T1}, s{S_T1}, {hex(CSC + 384)}')
        a.e(f'v_add_u32 v{T1}, s{S_T1}, v{T1}')
        for j in range(4):
            a.e(f'ds_read_b128 v[{CS4+4*j}:{CS4+4*j+3}], v{T1} offset:{32*j}')
        a.e('s_waitcnt lgkmcnt(0)')
        stamp()
        def p4_tail():
            soff(S_T0, ST_OFF)
            for k in range(4):
                a.vmem(f'buffer_load_dwordx4 v[{RAW+4*k}:{RAW+4*k+3}], v{V_STS}, {WS}, s{S_T0} offen offset:{512*k} sc1', 'st')
        small_gemm('P4', tail=p4_tail)
        stamp()
        a.wait_vm_all()
        emit_sum_partials(a, RAW, 16)
        emit_xreduce(a, [RAW, RAW + 1], [RAW + 2, RAW + 3], over16=False)
        emit_stats_from_sums(a, RAW, RAW + 1, RAW + 4, RAW + 6, RAW + 8, double=True, keep=(V_MEAN, V_RS))
        emit_lnfold(a, ACC, CS4, RAW + 4, RAW + 6, 16)
        emit_gelu(a, ACC, 16, TMP + 48, V_PQ)
        emit_pack32(a, TMP, ACC)
        tile_store(TMP, A0_OFF, gh=True)
        gl = a.newlabel('GH'); gu = a.newlabel('GH'); gd = a.newlabel('GH')
        a.e(f's_cmp_eq_u32 s{S_RB}, 3')
        a.e(f's_cbranch_scc0 {gu}')
        a.e(f's_cmp_eq_u32 s{S_RH}, 1')
        a.e(f's_cbranch_scc0 {gd}')
        a.e(f's_bitcmp1_b32 s{S_CB}, 1')
        a.e(f's_cbranch_scc1 {gd}')
        a.e(f's_cmp_eq_u32 s{S_G}, 7')
        a.e(f's_cbranch_scc1 {gd}')
        a.e(f's_add_u32 s{S_T1}, s{S_G}, 1')
        a.e(f's_mul_i32 s{S_T2}, s{S_T1}, {18*16384}')
        a.e(f's_lshl_b32 s{S_T3}, s{S_T1}, 8')
        set_exec(a, 0xc0000000)
        a.e(f's_branch {gl}')
        a.label(gu)
        a.e(f's_cmp_eq_u32 s{S_RB}, 0')
        a.e(f's_cbranch_scc0 {gd}')
        a.e(f's_cmp_eq_u32 s{S_RH}, 0')
        a.e(f's_cbranch_scc0 {gd}')
        a.e(f's_bitcmp1_b32 s{S_CB}, 1')
        a.e(f's_cbranch_scc0 {gd}')
        a.e(f's_cmp_eq_u32 s{S_G}, 0')
        a.e(f's_cbranch_scc1 {gd}')
        a.e(f's_sub_u32 s{S_T1}, s{S_G}, 1')
        a.e(f's_mul_i32 s{S_T2}, s{S_T1}, {18*16384}')
        a.e(f's_add_u32 s{S_T2}, s{S_T2}, {17*16384}')
        a.e(f's_lshl_b32 s{S_T3}, s{S_T1}, 8')
        a.e(f's_add_u32 s{S_T3}, s{S_T3}, 128')
        set_exec(a, 0x00000003)
        a.label(gl)
        a.e(f's_lshl_b32 s{S_T0}, s{S_CB}, 1')
        a.e(f's_add_u32 s{S_T0}, s{S_T0}, s{S_CH}')
        a.e(f's_lshl_b32 s{S_T0}, s{S_T0}, 10')
        a.e(f's_add_u32 s{S_T2}, s{S_T2}, s{S_T0}')
        a.e(f'v_and_b32 v{T0}, 0x3fff, v{V_TST}')
        a.e(f'v_and_b32 v{T0}, 0x3ff, v{T0}')
        a.e(f'buffer_store_dwordx4 v[{TMP}:{TMP+3}], v{T0}, {WS}, s{S_T2} offen sc1')
        a.e(f'buffer_store_dwordx4 v[{TMP+4}:{TMP+7}], v{T0}, {WS}, s{S_T2} offen offset:512 sc1')
        a.e('s_mov_b64 exec, -1')
        a.e(f's_and_b32 s{S_T0}, s{S_CB}, 1')
        a.e(f's_lshr_b32 s{S_T1}, s{S_CB}, 2')
        a.e(f's_lshl_b32 s{S_T1}, s{S_T1}, 1')
        a.e(f's_add_u32 s{S_T0}, s{S_T0}, s{S_T1}')
        a.e(f's_lshl_b32 s{S_T0}, s{S_T0}, 1')
        a.e(f's_add_u32 s{S_T0}, s{S_T0}, s{S_CH}')
        a.e(f's_lshl_b32 s{S_T0}, s{S_T0}, 2')
        a.e(f's_add_u32 s{S_T3}, s{S_T3}, s{S_T0}')
        a.e(f's_lshl_b32 s{S_T0}, s{S_L}, 11')
        a.e(f's_add_u32 s{S_T3}, s{S_T3}, s{S_T0}')
        a.e(f's_add_u32 s{S_T3}, s{S_T3}, {hex(HF_OFF)}')
        thr_value(a, S_THR, ep(3), xcc=True)
        a.e(f'v_mov_b32 v{T0}, s{S_T3}')
        a.e(f'v_mov_b32 v{T1}, s{S_THR}')
        a.e('s_waitcnt vmcnt(0)')
        a.e('s_mov_b64 exec, 1')
        a.e(f'buffer_store_dword v{T1}, v{T0}, {WS}, 0 offen sc1')
        a.e('s_mov_b64 exec, -1')
        a.label(gd)
        emit_signal(a, ep(3))
        stamp()
        if done('P4'): return True

        a.c('=== P5')
        stamp()
        small_gemm('P5')
        stamp()
        a.e(f'v_mul_f32 v{TMP+10}, v{V_MEAN}, v{V_RS}')
        a.e(f'v_sub_f32 v{TMP+10}, 0, v{TMP+10}')
        a.e(f'v_mov_b32 v{TMP+8}, v{V_RS}')
        for i in range(0, 16, 2):
            a.e(pk('fma', ACC + i, vp(V_RES + i), vp(TMP + 8), vp(ACC + i), mods=' op_sel_hi:[1,0,1]'))
        for i in range(0, 16, 2):
            a.e(pk('add', ACC + i, vp(ACC + i), vp(TMP + 10), mods=' op_sel_hi:[1,0]'))
        emit_pack32(a, TMP, ACC)
        tile_store(TMP, A1_OFF)
        soff(S_T1, ST_OFF)
        emit_stats_partial32(a, ACC, TMP + 12, f's{S_T1}')
        for i in range(0, 16, 2): a.e(pk('add', V_RES + i, vp(V_RES + i), vp(ACC + i)))
        emit_signal(a, ep(4))
        stamp()
        if done('P5'): return True

        a.c('=== P6')
        CS6 = V_ACC; ACC6 = 192; WR6 = 96
        a.e(f'v_and_b32 v{T1}, 0x30, v{V_LANE}')
        a.e(f'v_add_u32 v{T1}, {hex(CSC + 640)}, v{T1}')
        for t in range(7):
            a.e(f'ds_read_b128 v[{CS6+4*t}:{CS6+4*t+3}], v{T1} offset:{64*t}')
        a.e('s_waitcnt lgkmcnt(0)')
        for c in range(4):
            a.e(f's_lshl_b32 s{S_P7+c}, s{S_RB2}, {13 if opt.rot else 31}')
            if not opt.rot: a.e(f's_mov_b32 s{S_P7+c}, 0')
            a.e(f's_xor_b32 s{S_P7+c}, s{S_P7+c}, {hex(c * 4096)}')
            a.e(f's_add_u32 s{S_P7+c}, s{S_P7+c}, {hex(A1_OFF)}')
            a.e(f's_add_u32 s{S_P7+4+c}, s{S_P7+c}, 0x4000')
        emit_poll(a, V_FSB, ep(4), opt=opt)
        stamp()
        def p6_load(j):
            for r in range(2):
                d = V_A + ((j % 8) * 2 + r) * 4
                a.vmem(f'buffer_load_dwordx4 v[{d}:{d+3}], v{V_AB}, {WS}, s{S_P7 + 4 * r + j // 4} offen offset:{(j%4)*1024} sc1', ('A', j))
        RAW6 = [V_PQ, 248]
        def p6_issue(j, t):
            if t == 1:
                if j + opt.D_p6 < 16:
                    p6_load(j + opt.D_p6)
                elif j + opt.D_p6 == 16:
                    soff(S_T0, ST_OFF)
                    for r in range(2):
                        a.vmem(f'buffer_load_dwordx4 v[{RAW6[r]}:{RAW6[r]+3}], v{V_STB}, {WS}, s{S_T0} offen offset:{256*r} sc1', 'st')
                        a.vmem(f'buffer_load_dwordx4 v[{RAW6[r]+4}:{RAW6[r]+7}], v{V_STB}, {WS}, s{S_T0} offen offset:{256*r+512} sc1', 'st')
        a.fstamp('P6')
        for j in range(opt.D_p6): p6_load(j)
        emit_gemm16(a, bar, 'P6', slabs['P6'], 7, '224',
                    acc_of=lambda r, t: ACC6 + (r * 7 + t) * 4, a_of=lambda r, j: V_A + ((j % 8) * 2 + r) * 4,
                    a_wait=lambda j: a.count_vm(('A', j)), a_issue=p6_issue, wr=WR6, S=8)
        stamp()
        a.wait_vm_all()
        for r in range(2): emit_sum_partials(a, RAW6[r], 8)
        emit_xreduce(a, [RAW6[0], RAW6[0] + 1, RAW6[1], RAW6[1] + 1], [V_X, V_X + 1, V_X + 2, V_X + 3])
        AB6 = [(92, 94), (RAW6[1] + 4, RAW6[1] + 6)]
        for r in range(2):
            emit_stats_from_sums(a, RAW6[r], RAW6[r] + 1, AB6[r][0], AB6[r][1], V_X)
        a.e(f's_lshl_b32 s{S_T0}, s{S_G}, 4')
        a.e(f's_lshl_b32 s{S_T1}, s{S_RB2}, 3')
        a.e(f's_add_u32 s{S_T0}, s{S_T0}, s{S_T1}')
        a.e(f's_lshl_b32 s{S_T1}, s{S_W}, 1')
        a.e(f's_add_u32 s{S_T0}, s{S_T0}, s{S_T1}')
        a.e(f's_mul_i32 s{S_T0}, s{S_T0}, 57344')
        a.e(f's_lshr_b32 s{S_T1}, s{S_CB2}, 1')
        a.e(f's_mul_i32 s{S_T1}, s{S_T1}, 7168')
        a.e(f's_add_u32 s{S_T0}, s{S_T0}, s{S_T1}')
        a.e(f's_add_u32 s{S_T0}, s{S_T0}, {hex(G_OFF)}')
        a.e(f's_and_b32 s{S_T1}, s{S_CB2}, 1')
        a.e(f's_mul_i32 s{S_U0}, s{S_T1}, 3072')
        a.e(f's_add_u32 s{S_U0}, s{S_U0}, s{S_T0}')
        a.e(f's_add_u32 s{S_U1}, s{S_U0}, 57344')
        a.e(f's_lshl_b32 s{S_T1}, s{S_T1}, 3')
        a.e(f's_add_u32 s{S_U2}, s{S_T0}, s{S_T1}')
        a.e(f's_add_u32 s{S_U2}, s{S_U2}, 6144')
        a.e(f's_add_u32 s{S_U3}, s{S_U2}, 57344')
        a.e(f'v_lshlrev_b32 v{V_X+4}, 4, v{V_LANE}')
        for r in range(2):
            emit_lnfold(a, ACC6 + r * 28, CS6, AB6[r][0], AB6[r][1], 28)
            emit_gelu(a, ACC6 + r * 28, 28, V_A, V_PQ + 4)
            pkb = V_A + 16 + r * 16
            emit_pack(a, pkb, ACC6 + r * 28, 28)
            st = [f'buffer_store_dwordx4 v[{pkb+4*j}:{pkb+4*j+3}], v{V_X+4}, {WS}, s{S_U0+r} offen offset:{1024*j}' for j in range(3)]
            st.append(f'buffer_store_dwordx2 v[{pkb+12}:{pkb+13}], v{V_X+4}, {WS}, s{S_U2+r} offen')
            emit_mode_stores(a, st, cold=bool(opt.g_cold))
        emit_signal(a, ep(5))
        stamp()
        if done('P6'): return True

        a.c('=== P7')
        if opt.p7_self:
            VG, VF = V_A + 100, V_A + 101
            a.e(f's_lshl_b32 s{S_T0}, s{S_G}, 4'); a.e(f's_lshl_b32 s{S_T1}, s{S_RB}, 2'); a.e(f's_add_u32 s{S_T0}, s{S_T0}, s{S_T1}')
            a.e(f's_add_u32 s{S_T0}, s{S_T0}, s{S_W}'); a.e(f's_mul_i32 s{S_T0}, s{S_T0}, 57344')
            a.e(f'v_lshlrev_b32 v{VG}, 4, v{V_LANE}'); a.e(f'v_add_u32 v{VG}, s{S_T0}, v{VG}')
            for p_ in range(8):
                a.e(f's_and_b32 s{S_P7+p_}, s{S_RB}, {3 if opt.rot else 0}'); a.e(f's_lshl_b32 s{S_P7+p_}, s{S_P7+p_}, 1')
                a.e(f's_xor_b32 s{S_P7+p_}, s{S_P7+p_}, {p_}'); a.e(f's_mul_i32 s{S_P7+p_}, s{S_P7+p_}, 7168')
            a.e(f's_lshl_b32 s{S_T2}, s{S_G}, 9'); a.e(f's_add_u32 s{S_T2}, s{S_T2}, {hex(LF_OFF)}')
            a.e(f's_and_b32 s{S_T3}, s{S_RB}, 1'); a.e(f's_lshl_b32 s{S_T3}, s{S_T3}, 1'); a.e(f's_add_u32 s{S_T3}, s{S_T3}, s{S_RH}')
            a.e(f's_lshl_b32 s{S_T3}, s{S_T3}, 7'); a.e(f's_add_u32 s{S_T3}, s{S_T3}, s{S_T2}')
            a.e(f's_lshr_b32 s{S_T4}, s{S_RB}, 1'); a.e(f's_lshl_b32 s{S_T4}, s{S_T4}, 6'); a.e(f's_add_u32 s{S_T3}, s{S_T3}, s{S_T4}')
            a.e(f'v_and_b32 v{VF}, 15, v{V_LANE}'); a.e(f'v_lshlrev_b32 v{VF}, 2, v{VF}'); a.e(f'v_add_u32 v{VF}, s{S_T3}, v{VF}')
            a.e(f's_lshl_b32 s{S_T3}, s{S_R}, 2'); a.e(f's_add_u32 s{S_T3}, s{S_T3}, s{S_T2}')
            a.e(f'v_and_b32 v{T1}, 3, v{V_LANE}'); a.e(f'v_lshlrev_b32 v{T1}, 7, v{T1}'); a.e(f'v_add_u32 v{T1}, s{S_T3}, v{T1}')
            a.e(f'v_cmp_lt_u32 vcc, 15, v{V_LANE}'); a.e('s_nop 1'); a.e(f'v_cndmask_b32 v{VF}, v{VF}, v{T1}, vcc')
            emit_poll(a, VF, ep(5), opt=opt)
            stamp()
            def pieces7(c):
                state = {'last': None}
                def mk(k):
                    def f():
                        if k == 0: a.e(f's_add_u32 m0, s{S_W4K}, {hex(AREG + (c % 4) * 16384)}')
                        p_, i_ = divmod(4 * c + k, 7)
                        const = G_OFF + (i_ - k) * 1024
                        if state['last'] != (p_, const):
                            a.e(f's_add_u32 s{S_T0}, s{S_P7+p_}, {hex(const & 0xffffffff)}'); state['last'] = (p_, const)
                        a.vmem(f'buffer_load_dwordx4 v{VG}, {WS}, s{S_T0} offen offset:{k*1024} sc1 lds', ('A', c))
                    return f
                return [mk(k) for k in range(4)]
            emit_gemm32(a, bar, 'P7', slabs['P7'], ACC, WR, a_pieces=pieces7)
        else:
            stamp()
            small_gemm('P7')
        stamp()
        for i in range(0, 16, 2): a.e(pk('add', V_RES + i, vp(V_RES + i), vp(ACC + i)))
        emit_pack32(a, TMP, V_RES)
        return False

    stopped = run_layer()
    if not stopped:
        fin = a.newlabel('FIN'); TMP = V_A
        a.e(f's_cmp_eq_u32 s{S_L}, 1')
        a.e(f's_cbranch_scc1 {fin}')
        a.e(f's_mov_b32 s{S_T0}, {hex(A2_OFF)}')
        emit_mode_stores(a, [f'buffer_store_dwordx4 v[{TMP}:{TMP+3}], v{V_TST}, {WS}, s{S_T0} offen',
                             f'buffer_store_dwordx4 v[{TMP+4}:{TMP+7}], v{V_TST}, {WS}, s{S_T0} offen offset:512'], cold=True)
        a.e(f's_mov_b32 s{S_T1}, {hex(ST_OFF)}')
        emit_stats_partial32(a, V_RES, TMP + 8, f's{S_T1}')
        a.e(f's_add_u32 s{S_EP}, s{S_EP}, 6')
        emit_signal(a, f's{S_EP}')
        if opt.timing:
            dump([tmreg(i) for i in range(tm[0])])
        a.e(f's_mov_b32 s{S_L}, 1')
        a.e(f's_mov_b32 s{S_LOFF}, {hex(KVP_L)}')
        a.e(f's_mov_b32 s{S_COLD}, s{S_MODE}')
        for c in range(4):
            a.e(f's_xor_b32 s{S_RK+c}, s{S_ROTK}, {c}')
            a.e(f's_lshl_b32 s{S_RK+c}, s{S_RK+c}, 12')
            a.e(f's_add_u32 s{S_RK+c}, s{S_RK+c}, {hex(A2_OFF)}')
            a.e(f's_add_u32 s{S_P7+c}, s{S_RK+c}, 0x4000')
        a.e(f's_branch {LOOP}')
        a.label(fin)
        emit_pack(a, TMP, V_RES, 16)
        OS = f's[{S_OUT}:{S_OUT+3}]'
        if opt.out_lds and opt.stop is None:
            a.e(f'v_and_b32 v{V_T0}, 31, v{V_LANE}')
            a.e(f'v_lshlrev_b32 v{V_T0}, 7, v{V_T0}')
            a.e(f'v_lshrrev_b32 v{V_T1}, 5, v{V_LANE}')
            a.e(f'v_lshl_add_u32 v{V_T0}, v{V_T1}, 3, v{V_T0}')
            a.e(f's_lshl_b32 s{S_T0}, s{S_RH}, 12')
            a.e(f's_lshl_b32 s{S_T1}, s{S_CH}, 6')
            a.e(f's_add_u32 s{S_T0}, s{S_T0}, s{S_T1}')
            a.e(f'v_add_u32 v{V_T0}, s{S_T0}, v{V_T0}')
            for j in range(4):
                a.e(f'ds_write_b64 v{V_T0}, v[{TMP+2*j}:{TMP+2*j+1}] offset:{AREG + 16*j}')
            a.e(f'v_lshrrev_b32 v{V_T1}, 3, v{V_LANE}')
            a.e(f'v_and_b32 v{V_T2}, 7, v{V_LANE}')
            a.e(f'v_lshlrev_b32 v{V_X}, 7, v{V_T1}')
            a.e(f'v_lshl_add_u32 v{V_X}, v{V_T2}, 4, v{V_X}')
            a.e(f's_lshl_b32 s{S_T0}, s{S_W}, 11')
            a.e(f'v_add_u32 v{V_X}, s{S_T0}, v{V_X}')
            a.e(f'v_lshlrev_b32 v{V_X+1}, 10, v{V_T1}')
            a.e(f'v_lshl_add_u32 v{V_X+1}, v{V_T2}, 4, v{V_X+1}')
            a.e(f's_lshl_b32 s{S_T0}, s{S_G}, 8'); a.e(f's_lshl_b32 s{S_T1}, s{S_RB}, 6'); a.e(f's_add_u32 s{S_T0}, s{S_T0}, s{S_T1}')
            a.e(f's_lshl_b32 s{S_T1}, s{S_W}, 4'); a.e(f's_add_u32 s{S_T0}, s{S_T0}, s{S_T1}'); a.e(f's_lshl_b32 s{S_T0}, s{S_T0}, 10')
            a.e(f's_lshl_b32 s{S_T1}, s{S_CB}, 7'); a.e(f's_add_u32 s{S_T0}, s{S_T0}, s{S_T1}')
            a.e(f's_add_u32 s{S_T1}, s{S_T0}, 8192')
            a.e('s_waitcnt lgkmcnt(0)')
            a.e('s_barrier')
            a.e(f'ds_read_b128 v[{TMP+8}:{TMP+11}], v{V_X} offset:{AREG}')
            a.e(f'ds_read_b128 v[{TMP+12}:{TMP+15}], v{V_X} offset:{AREG + 1024}')
            a.e('s_waitcnt lgkmcnt(1)')
            a.e(f'buffer_store_dwordx4 v[{TMP+8}:{TMP+11}], v{V_X+1}, {OS}, s{S_T0} offen')
            a.e('s_waitcnt lgkmcnt(0)')
            a.e(f'buffer_store_dwordx4 v[{TMP+12}:{TMP+15}], v{V_X+1}, {OS}, s{S_T1} offen')
        else:
            for j in range(4):
                a.e(f'buffer_store_dwordx2 v[{TMP+2*j}:{TMP+2*j+1}], v{V_XRM}, {OS}, 0 offen offset:{16*j}')
    a.label('L_END_COMPUTE')
    nn = a.newlabel('NON')
    a.e(f's_or_b32 s{S_T0}, s2, s{S_W}')
    a.e(f's_cmp_eq_u32 s{S_T0}, 0')
    a.e(f's_cbranch_scc0 {nn}')
    a.e(f's_add_u32 s{S_T0}, s{S_V}, 1')
    a.e(f'v_mov_b32 v{V_T0}, s{S_T0}')
    a.e(f'v_mov_b32 v{V_T1}, {hex(NONCE_OFF)}')
    a.e('s_mov_b64 exec, 1')
    a.e(f'buffer_store_dword v{V_T0}, v{V_T1}, {WS}, 0 offen')
    a.e('s_mov_b64 exec, -1')
    a.label(nn)
    stamp()
    if opt.timing: dump([tmreg(i) for i in range(tm[0])] + ([85] if False else []))
    if opt.fine: dump([freg(i) for i in range(fs[0])])
    if opt.wall:
        a.e('s_waitcnt vmcnt(0)')
        a.e('s_memrealtime s[82:83]'); a.e('s_memtime s[80:81]'); a.e('s_waitcnt lgkmcnt(0)')
        dump([84, 82, 85, 80])
    a.e('s_waitcnt vmcnt(0)')
    a.e('s_endpgm')
    return evq


def hstamp(a, opt, slot):
    if not (opt.dbgout >= 0 and opt.fine): return
    sk = a.newlabel('HS')
    a.e('s_memtime s[98:99]'); a.e('s_waitcnt lgkmcnt(0)')
    a.e(f's_cmp_eq_u32 s2, {opt.dbgwg}'); a.e(f's_cbranch_scc0 {sk}')
    a.e('s_sub_u32 s98, s98, s96')
    a.e('v_mov_b32 v254, s98'); a.e(f'v_mov_b32 v253, {4*slot}')
    a.e('global_store_dword v253, v254, s[86:87]')
    a.label(sk)
    a.vm.append('hs')

def gen_loader(a, opt, events):
    VN, VKV, VQ, VW3, VKVn, VQn = 8, 12, 16, 20, 28, 32
    VT0, VT1, VT2, VT3 = 1, 2, 3, 4
    a.c('--- loader setup')
    if opt.prio_l: a.e(f's_setprio {opt.prio_l}')
    def srd(s, p, size):
        a.e(f's_mov_b32 s{s}, s{p}'); a.e(f's_mov_b32 s{s+1}, s{p+1}')
        a.e(f's_mov_b32 s{s+2}, {hex(size)}'); a.e(f's_mov_b32 s{s+3}, 0x20000')
    srd(S_WQKV, S_PTR + 2, 512 * 1536 * 2)
    srd(S_WO, S_PTR + 4, 512 * 512 * 2)
    srd(S_W1, S_PTR + 8, 512 * 512 * 2)
    srd(S_W2, S_PTR + 10, 512 * 512 * 2)
    srd(S_W3, S_PTR + 12, 512 * 1792 * 2)
    srd(S_W4, S_PTR + 14, 1792 * 512 * 2)
    CBS, CBK, CB6, CB7 = 64, 68, 72, 76
    a.e(f's_lshl_b32 s{S_T1}, s{S_RB2}, 1')
    a.e(f's_add_u32 s{S_T1}, s{S_T1}, s{S_CB2}')
    a.e(f's_and_b32 s{S_T1}, s{S_T1}, {3 if opt.rot else 0}')
    for c in range(4):
        a.e(f's_xor_b32 s{CBK+c}, s{S_T1}, {c}')
        a.e(f's_mul_i32 s{CBK+c}, s{CBK+c}, {128*3072}')
    def late_tables():
        rm = 3 if opt.rot else 0
        for c in range(4):
            a.e(f's_and_b32 s{CBS+c}, s{S_RB}, {rm}')
            a.e(f's_xor_b32 s{CBS+c}, s{CBS+c}, {c}')
            a.e(f's_lshl_b32 s{CBS+c}, s{CBS+c}, 17')
            a.e(f's_lshl_b32 s{CB6+c}, s{S_RB2}, 1')
            a.e(f's_and_b32 s{CB6+c}, s{CB6+c}, {rm}')
            a.e(f's_xor_b32 s{CB6+c}, s{CB6+c}, {c}')
            a.e(f's_mul_i32 s{CB6+c}, s{CB6+c}, {128*3584}')
        for p_ in range(8):
            a.e(f's_and_b32 s{CB7+p_}, s{S_RB}, {rm}')
            a.e(f's_lshl_b32 s{CB7+p_}, s{CB7+p_}, 1')
            a.e(f's_xor_b32 s{CB7+p_}, s{CB7+p_}, {p_}')
            a.e(f's_mul_i32 s{CB7+p_}, s{CB7+p_}, {224*1024}')

    def cs_issue():
        a.c('cs pieces')
        c1 = a.newlabel('CS'); c2 = a.newlabel('CS'); c3 = a.newlabel('CS')
        a.e(f's_min_u32 s{92}, s2, 239')
        a.e(f's_lshr_b32 s{93}, s{92}, 2')
        a.e(f's_and_b32 s{94}, s{92}, 3')
        a.e(f's_cmp_lt_u32 s{93}, 24')
        a.e(f's_cbranch_scc0 {c1}')
        for i in range(3): a.e(f's_mov_b32 s{S_CSRD+i}, s{S_WQKV+i}')
        a.e(f's_mov_b32 s{S_T0}, 3072')
        a.e(f's_lshl_b32 s{S_T1}, s{93}, 7')
        a.e(f's_branch {c3}')
        a.label(c1)
        a.e(f's_cmp_lt_u32 s{93}, 32')
        a.e(f's_cbranch_scc0 {c2}')
        for i in range(3): a.e(f's_mov_b32 s{S_CSRD+i}, s{S_W1+i}')
        a.e(f's_mov_b32 s{S_T0}, 1024')
        a.e(f's_sub_u32 s{S_T1}, s{93}, 24')
        a.e(f's_lshl_b32 s{S_T1}, s{S_T1}, 7')
        a.e(f's_branch {c3}')
        a.label(c2)
        for i in range(3): a.e(f's_mov_b32 s{S_CSRD+i}, s{S_W3+i}')
        a.e(f's_mov_b32 s{S_T0}, 3584')
        a.e(f's_sub_u32 s{S_T1}, s{93}, 32')
        a.e(f's_lshl_b32 s{S_T1}, s{S_T1}, 7')
        a.label(c3)
        a.e(f's_mov_b32 s{S_CSRD+3}, 0x20000')
        a.e(f'v_lshrrev_b32 v{VT1}, 3, v{V_LANE}')
        a.e(f'v_mul_lo_u32 v{VT1}, v{VT1}, s{S_T0}')
        a.e(f'v_and_b32 v{VT2}, 7, v{V_LANE}')
        a.e(f'v_lshl_add_u32 v{VT1}, v{VT2}, 4, v{VT1}')
        a.e(f'v_add_u32 v{VT1}, s{S_T1}, v{VT1}')
        a.e(f's_lshl_b32 s{S_T1}, s{94}, 7')
        a.e(f's_mul_i32 s{S_T1}, s{S_T1}, s{S_T0}')
        a.e(f's_lshl_b32 s{S_T0}, s{S_T0}, 3')
        a.e(f's_mov_b32 m0, {hex(CSL)}')
        for p in range(16):
            a.e('s_nop 0')
            a.vmem(f'buffer_load_dwordx4 v{VT1}, s[{S_CSRD}:{S_CSRD+3}], s{S_T1} offen lds', 'cs')
            if p < 15:
                a.e('s_add_u32 m0, m0, 1024')
                a.e(f's_add_u32 s{S_T1}, s{S_T1}, s{S_T0}')
    dg = [0]
    def dstamp():
        if opt.startdiag:
            a.e(f's_memtime s[{84+2*dg[0]}:{85+2*dg[0]}]') if False else None
            a.e('s_memtime s[98:99]'); a.e('s_waitcnt lgkmcnt(0)')
            a.e('s_sub_u32 s98, s98, s100')
            a.e(f'v_mov_b32 v{100+dg[0]}, s98'); dg[0] += 1
    dstamp()
    cs_issue()
    a.e(f'v_lshrrev_b32 v{VT0}, 3, v{V_LANE}')
    a.e(f'v_bfe_u32 v{VT1}, v{VT0}, 1, 2')
    a.e(f'v_lshlrev_b32 v{VT1}, 1, v{VT1}')
    a.e(f'v_and_b32 v{VT2}, 7, v{V_LANE}')
    a.e(f'v_xor_b32 v{VT2}, v{VT2}, v{VT1}')
    a.e(f'v_and_b32 v{VT1}, 3, v{VT2}')
    a.e(f'v_lshlrev_b32 v{VT3}, 4, v{VT1}')
    a.e(f'v_lshrrev_b32 v{VT1}, 2, v{VT2}')
    a.e(f'v_lshl_add_u32 v{VT3}, v{VT1}, 10, v{VT3}')
    a.e(f's_lshl_b32 s{S_T0}, s{S_CB2}, 6')
    a.e(f's_add_u32 s{S_T1}, s{S_T0}, 1024')
    a.e(f'v_add_u32 v{VT3}, s{S_T1}, v{VT3}')
    a.e(f'v_lshrrev_b32 v{VT1}, 2, v{VT0}')
    a.e(f'v_lshlrev_b32 v{VT1}, 3, v{VT1}')
    a.e(f'v_and_b32 v{VT2}, 3, v{VT0}')
    a.e(f'v_add_u32 v{VT1}, v{VT1}, v{VT2}')
    a.e(f'v_mul_u32_u24 v{VT1}, 3072, v{VT1}')
    a.e(f'v_add_u32 v{VT1}, v{VT1}, v{VT3}')
    for p in range(4):
        off = (16 * (p & 1) + 4 * (p >> 1)) * 3072 - p * 1024
        a.e(f'v_add_u32 v{VKVn+p}, {hex(off & 0xffffffff)}, v{VT1}')
    a.e(f'v_mul_u32_u24 v{VKV}, 3072, v{VT0}')
    a.e(f'v_add_u32 v{VKV}, v{VKV}, v{VT3}')
    for j in range(1, 4): a.e(f'v_add_u32 v{VKV+j}, {hex(j*(8*3072-1024))}, v{VKV}')

    layers = sorted(set(e[0] for e in events))
    slabs = {L: build_slabs(L) for L in layers}
    stream = []
    needed = set((e[0], e[2], e[3]) for e in events if e[1] == 'B')
    for L in layers:
        for p in PHASES:
            for ci, ch in enumerate(slabs[L][p]):
                if (L, p, ci) in needed: stream += ch
    released = set()
    log = []; cur = ['start']
    opt._log = log
    st = {'issued': 0}
    win = [opt.window0]
    def overlaps_unreleased(s, idx):
        for k in range(idx):
            o = stream[k]
            if (o.layer, o.phase, o.chunk) in released: continue
            if o.addr < s.addr + s.size and s.addr < o.addr + o.size: return True
        return False
    def emit_slab(s):
        kind = s.kind; tag = (s.layer, s.phase, s.chunk)
        if kind in opt.dbg_skip.split(','): return
        if kind in ('WO', 'W1', 'W2', 'W4'):
            srd_ = {'WO': S_WO, 'W1': S_W1, 'W2': S_W2, 'W4': S_W4}[kind]; vb = VN; rs = 1024
        elif kind == 'KV': srd_, vb, rs = S_WQKV, (VKVn if s.layer == 0 else VKV), 3072
        elif kind == 'Q': srd_, vb, rs = S_WQKV, (VQn if s.layer == 0 else VQ), 3072
        else: srd_, vb, rs = S_W3, VW3, 3584
        R4 = f's[{srd_}:{srd_+3}]'
        def grp(addr, srow, ps, v0):
            a.e(f's_mov_b32 m0, {hex(addr)}')
            if kind == 'W4':
                p_, rr_ = divmod(srow, 224); tb_ = CB7 + p_
            else:
                c_, rr_ = divmod(srow, 128); tb_ = {'KV': CBK, 'Q': CBK, 'W3': CB6}.get(kind, CBS) + c_
            a.e(f's_add_u32 s{S_T0}, s{tb_}, {hex(rr_*rs)}')
            for k, p in enumerate(ps):
                a.vmem(f'buffer_load_dwordx4 v{vb+p}, {R4}, s{S_T0} offen offset:{k*1024} {"nt " if opt.w_nt else ""}lds', tag)
        if kind == 'W3':
            grp(s.addr, s.srow, [0, 1, 2, 3], 0); grp(s.addr + 4096, s.srow, [4, 5, 6], 0)
        elif kind == 'W4' and s.srow2 != s.srow + 16:
            grp(s.addr, s.srow, [0, 1], 0); grp(s.addr + 2048, s.srow2, [0, 1], 0)
        else:
            grp(s.addr, s.srow, [0, 1, 2, 3], 0)
        if len(a.vm) > win[0]:
            a.e(f's_waitcnt vmcnt({win[0]})')
            a.vm = a.vm[len(a.vm) - win[0]:]
    plan = {}
    opt._plan = plan
    free = [56, 56]
    def need_slots(s): return (4, 3) if s.kind == 'W3' else (2, 2)
    def park_policy(key):
        if not opt.park: return
        name = key.split('.', 1)[1] if key[0] in '01' else None
        if name is None: return
        L = int(key[0])
        if name in opt.park_w3:
            cand = [s for s in stream[st['issued']:] if s.layer == L and s.phase == 'P6' and s.chunk >= 1]; cap = opt.park_w3[name]
        elif name in opt.park_caps:
            cand = [s for s in stream[st['issued']:] if s.layer == L and s.phase == 'P7' and s.chunk >= 6]; cap = opt.park_caps[name]
        else:
            return
        for s in cand:
            if getattr(s, 'parked', False): continue
            n0, n1 = need_slots(s)
            if cap <= 0 or free[0] < n0 or free[1] < n1: break
            s.parked = True; free[0] -= n0; free[1] -= n1; cap -= 1
            plan.setdefault(key, []).append(('park', s))
    def issue(cap, must=None):
        n = 0; nu = 0
        while st['issued'] < len(stream):
            s = stream[st['issued']]
            forced = must is not None and any((o.layer, o.phase, o.chunk) == must for o in stream[st['issued']:])
            pk_ = getattr(s, 'parked', False)
            if not forced and not pk_ and n + s.npieces > cap: break
            if not forced and pk_ and (nu >= opt.unpark_max or must is not None): break
            if overlaps_unreleased(s, st['issued']):
                assert not forced, ('deadlock', must, s.layer, s.phase, s.chunk)
                break
            if pk_:
                plan.setdefault(cur[0], []).append(('unpark', s)); nu += 1
                n0, n1 = need_slots(s); free[0] += n0; free[1] += n1
                st['issued'] += 1
                log.append((cur[0], s.layer, s.phase + '*', s.chunk, forced))
                continue
            emit_slab(s); st['issued'] += 1; n += s.npieces
            log.append((cur[0], s.layer, s.phase, s.chunk, forced))
    if WARM0[0]:
        a.e('s_barrier')
        events = events[1:]
    hstamp(a, opt, 8)
    issue(32)
    hstamp(a, opt, 9)
    dstamp()
    def nonce_setup():
        a.e('s_waitcnt lgkmcnt(0)')
        a.e(f's_mul_i32 s{S_B}, s{S_V}, 0x9e3779b1')
        a.e(f's_add_u32 s{S_B}, s{S_B}, 0x7f4a7c15')
        a.e(f's_and_b32 s{S_B}, s{S_B}, 0xffffff00')
    def late_setup():
        if not opt.cs_late: nonce_setup()
        a.e(f's_lshl_b32 s{S_T0}, s{S_G}, 7')
        a.e(f's_lshl_b32 s{S_T1}, s{S_R}, 2')
        a.e(f's_add_u32 s{S_T0}, s{S_T0}, s{S_T1}')
        a.e(f's_add_u32 s{S_T0}, s{S_T0}, {hex(XID_OFF)}')
        a.e(f'v_mov_b32 v{VT1}, s{S_T0}')
        a.e(f's_add_u32 s{S_T1}, s{S_B}, s{S_XCC}')
        a.e(f'v_mov_b32 v{VT0}, s{S_T1}')
        a.e('s_mov_b64 exec, 1')
        a.vmem(f'buffer_store_dword v{VT0}, v{VT1}, {WS}, 0 offen sc1', 'xid')
        a.e('s_mov_b64 exec, -1')
        late_tables()
        a.c('W lane offsets')
        a.e(f'v_lshrrev_b32 v{VT0}, 3, v{V_LANE}')
        a.e(f'v_bfe_u32 v{VT1}, v{VT0}, 1, 1')
        a.e(f'v_lshlrev_b32 v{VT1}, 2, v{VT1}')
        a.e(f'v_and_b32 v{VT2}, 7, v{V_LANE}')
        a.e(f'v_xor_b32 v{VT2}, v{VT2}, v{VT1}')
        a.e(f'v_lshlrev_b32 v{VN}, 10, v{VT0}')
        a.e(f'v_lshl_add_u32 v{VN}, v{VT2}, 4, v{VN}')
        a.e(f's_lshl_b32 s{S_T0}, s{S_CB}, 7')
        a.e(f'v_add_u32 v{VN}, s{S_T0}, v{VN}')
        for j in range(1, 4): a.e(f'v_add_u32 v{VN+j}, {hex(j*(8192-1024))}, v{VN}')
        a.e(f'v_lshrrev_b32 v{VT0}, 2, v{V_LANE}')
        a.e(f'v_bfe_u32 v{VT1}, v{VT0}, 2, 1')
        a.e(f'v_lshlrev_b32 v{VT1}, 1, v{VT1}')
        a.e(f'v_and_b32 v{VT2}, 3, v{V_LANE}')
        a.e(f'v_xor_b32 v{VT2}, v{VT2}, v{VT1}')
        a.e(f'v_lshlrev_b32 v{VT3}, 4, v{VT2}')
        a.e(f's_lshl_b32 s{S_T0}, s{S_CB2}, 6')
        a.e(f'v_add_u32 v{VT3}, s{S_T0}, v{VT3}')
        a.e(f'v_mul_u32_u24 v{VQ}, 3072, v{VT0}')
        a.e(f'v_add_u32 v{VQ}, v{VQ}, v{VT3}')
        for j in range(1, 4): a.e(f'v_add_u32 v{VQ+j}, {hex(j*(16*3072-1024))}, v{VQ}')
        a.e(f'v_lshrrev_b32 v{VT1}, 2, v{VT0}')
        a.e(f'v_lshlrev_b32 v{VT1}, 3, v{VT1}')
        a.e(f'v_and_b32 v{VT2}, 3, v{VT0}')
        a.e(f'v_add_u32 v{VT1}, v{VT1}, v{VT2}')
        a.e(f'v_mul_u32_u24 v{VT1}, 3072, v{VT1}')
        a.e(f'v_add_u32 v{VT1}, v{VT1}, v{VT3}')
        for p in range(4):
            off = (4 * (p & 1) + 32 * (p >> 1)) * 3072 - p * 1024
            a.e(f'v_add_u32 v{VQn+p}, {hex(off & 0xffffffff)}, v{VT1}')
        a.e(f's_mul_i32 s{S_T0}, s{S_CB2}, 224')
        M14 = (1 << 20) // 14 + 1
        a.e(f's_mov_b32 s{S_T1}, {hex(M14)}')
        for p in range(7):
            a.e(f'v_add_u32 v{VT0}, {64*p}, v{V_LANE}')
            a.e(f'v_mul_lo_u32 v{VT1}, v{VT0}, s{S_T1}')
            a.e(f'v_lshrrev_b32 v{VT1}, 20, v{VT1}')
            a.e(f'v_mul_u32_u24 v{VT2}, 14, v{VT1}')
            a.e(f'v_sub_u32 v{VT2}, v{VT0}, v{VT2}')
            a.e(f'v_mul_u32_u24 v{VW3+p}, 3584, v{VT1}')
            a.e(f'v_lshl_add_u32 v{VW3+p}, v{VT2}, 4, v{VW3+p}')
            a.e(f'v_add_u32 v{VW3+p}, s{S_T0}, v{VW3+p}')
            if p % 4: a.e(f'v_subrev_u32 v{VW3+p}, {(p%4)*1024}, v{VW3+p}')
        for u in range(448): assert (u * M14) >> 20 == u // 14

    def cs_part1():
        a.wait_vm('cs')
        a.e(f'v_bfe_u32 v{VT0}, v{V_LANE}, 2, 2')
        a.e(f'v_lshrrev_b32 v{VT1}, 4, v{V_LANE}')
        a.e(f'v_lshl_add_u32 v{VT0}, v{VT1}, 2, v{VT0}')
        a.e(f'v_lshlrev_b32 v{VT0}, 7, v{VT0}')
        a.e(f'v_and_b32 v{VT2}, 3, v{V_LANE}')
        a.e(f'v_lshl_add_u32 v{VT0}, v{VT2}, 3, v{VT0}')
        a.e(f'v_add_u32 v{VT0}, {hex(CSL)}, v{VT0}')
        for i in range(4): a.e(f'v_mov_b32 v{40+i}, 0x3f803f80')
        for j in range(4):
            for t in range(4):
                a.e(f'ds_read_b64_tr_b16 v[{64+4*t}:{65+4*t}], v{VT0} offset:{j*4096+t*32}')
                a.e(f'ds_read_b64_tr_b16 v[{66+4*t}:{67+4*t}], v{VT0} offset:{j*4096+t*32+2048}')
            a.e('s_waitcnt lgkmcnt(0)')
            for t in range(4):
                c = '0' if j == 0 else f'v[{44+4*t}:{47+4*t}]'
                a.e(f'v_mfma_f32_16x16x32_bf16 v[{44+4*t}:{47+4*t}], v[{64+4*t}:{67+4*t}], v[40:43], {c}')
        a.e(f's_mul_i32 s{S_T0}, s{94}, 15360')
        a.e(f's_lshl_b32 s{S_T1}, s{93}, 8')
        a.e(f's_add_u32 s{S_T0}, s{S_T0}, s{S_T1}')
        a.e(f's_add_u32 s{S_T0}, s{S_T0}, {hex(CSP_OFF)}')
        a.e(f'v_lshlrev_b32 v{VT1}, 4, v{VT1}')
        a.e('s_nop 7')
        set_exec(a, 0x00010001)
        for t in range(4):
            a.vmem(f'buffer_store_dwordx4 v[{44+4*t}:{47+4*t}], v{VT1}, {WS}, s{S_T0} offen offset:{64*t} sc1', 'csst')
        a.e('s_mov_b64 exec, -1')
        if opt.kv_atomic:
            zl = a.newlabel('ZK')
            a.e(f's_lshr_b32 s{S_T0}, s2, 3')
            a.e(f's_mul_i32 s{S_T0}, s{S_T0}, {KVREC}')
            a.e(f's_add_u32 s{S_T0}, s{S_T0}, {hex(KVA_OFF)}')
            a.e(f's_and_b32 s{S_T1}, s2, 0x87')
            a.e(f's_cmp_eq_u32 s{S_T1}, 0')
            a.e(f's_cselect_b32 s{S_T1}, 0, 0x80000000')
            for i in range(4): a.e(f'v_mov_b32 v{60+i}, 0')
            a.e(f'v_lshlrev_b32 v{VT0}, 4, v{V_LANE}')
            a.e(f'v_or_b32 v{VT0}, s{S_T1}, v{VT0}')
            for l_ in range(2):
                a.vmem(f'buffer_store_dwordx4 v[60:63], v{VT0}, {WS}, s{S_T0} offen sc1', 'csst')
                a.vmem(f'buffer_store_dwordx4 v[60:63], v{VT0}, {WS}, s{S_T0} offen offset:1024 sc1', 'csst')
                a.e('s_mov_b64 exec, 0xff')
                a.vmem(f'buffer_store_dwordx4 v[60:63], v{VT0}, {WS}, s{S_T0} offen offset:2048 sc1', 'csst')
                a.e('s_mov_b64 exec, -1')
                if l_ == 0: a.e(f's_add_u32 s{S_T0}, s{S_T0}, {16*KVREC}')
    def cs_part2():
        a.e(f's_lshl_b32 s{S_T0}, s2, 7')
        a.e(f's_add_u32 s{S_T0}, s{S_T0}, {hex(CSF_OFF)}')
        a.e(f'v_mov_b32 v{VT1}, s{S_T0}')
        a.e(f's_add_u32 s{S_T1}, s{S_B}, 8')
        a.e(f'v_mov_b32 v{VT0}, s{S_T1}')
        a.wait_vm('csst')
        a.e('s_mov_b64 exec, 1')
        a.vmem(f'buffer_store_dword v{VT0}, v{VT1}, {WS}, 0 offen sc1', 'csf')
        a.e('s_mov_b64 exec, -1')
    def cs_fill():
        L_ = a.newlabel('CPOLL'); D_ = a.newlabel('CPOLLD')
        a.e(f'v_min_u32 v{VT0}, 27, v{V_LANE}')
        a.e(f'v_lshrrev_b32 v{VT2}, 2, v{VT0}')
        a.e(f's_lshr_b32 s{S_T0}, s{S_CB2}, 1')
        a.e(f'v_lshlrev_b32 v{VT1}, 3, v{VT2}')
        a.e(f'v_add_u32 v{VT1}, s{S_T0}, v{VT1}')
        a.e(f's_add_u32 s{S_T0}, s{S_CB}, 24')
        a.e(f'v_mov_b32 v{VT3}, s{S_T0}')
        a.e(f'v_cmp_eq_u32 vcc, 3, v{VT2}')
        a.e('s_nop 1')
        a.e(f'v_cndmask_b32 v{VT1}, v{VT1}, v{VT3}, vcc')
        a.e(f's_mul_i32 s{S_T0}, s{S_CB2}, 112')
        a.e(f's_lshr_b32 s{S_T0}, s{S_T0}, 6')
        a.e(f's_add_u32 s{S_T0}, s{S_T0}, {32 - 4}')
        a.e(f'v_add_u32 v{VT3}, s{S_T0}, v{VT2}')
        a.e(f'v_min_u32 v{VT3}, 59, v{VT3}')
        a.e(f'v_cmp_lt_u32 vcc, 3, v{VT2}')
        a.e('s_nop 1')
        a.e(f'v_cndmask_b32 v{VT1}, v{VT1}, v{VT3}, vcc')
        a.e(f'v_and_b32 v{VT0}, 3, v{VT0}')
        a.e(f'v_lshl_add_u32 v{VT1}, v{VT1}, 2, v{VT0}')
        if opt.kv_atomic:
            a.e(f's_lshl_b32 s{S_T0}, s{S_CB2}, 3')
            a.e(f'v_mov_b32 v{VT3}, s{S_T0}')
            a.e(f'v_cmp_lt_u32 vcc, 27, v{V_LANE}')
            a.e('s_nop 1')
            a.e(f'v_cndmask_b32 v{VT1}, v{VT1}, v{VT3}, vcc')
        a.e(f'v_lshlrev_b32 v{VT1}, 7, v{VT1}')
        a.e(f's_mov_b32 s{S_T0}, {hex(CSF_OFF)}')
        a.e(f's_add_u32 s{S_T1}, s{S_B}, 8')
        a.e(f's_mov_b32 s{95}, {opt.spin}')
        a.label(L_)
        a.e(f'buffer_load_dword v40, v{VT1}, {WS}, s{S_T0} offen sc1')
        a.e('s_waitcnt vmcnt(0)')
        a.e(f'v_subrev_u32 v40, s{S_T1}, v40')
        a.e('v_cmp_gt_u32 vcc, 0x80, v40')
        a.e(f's_sub_u32 s{95}, s{95}, 1')
        a.e(f's_cbranch_scc1 {D_}')
        a.e('s_cmp_eq_u64 vcc, -1')
        a.e(f's_cbranch_scc0 {L_}')
        a.label(D_)
        a.vm = []
        def colof(dst, gofs):
            a.e(f'v_add_u32 v{VT0}, {gofs}, v{V_LANE}')
            a.e(f'v_lshlrev_b32 v{VT2}, 2, v{VT0}')
            a.e(f's_lshl_b32 s{S_T0}, s{S_CB2}, 5')
            a.e(f's_mul_i32 s{S_T1}, s{S_CB2}, 112')
            a.e(f's_add_u32 s{S_T1}, s{S_T1}, {2048 - 160}')
            a.e(f'v_add_u32 v{dst}, s{S_T1}, v{VT2}')
            for lim, addc, useb in [(40, 1536 - 96, 'cb'), (24, -64, 'hp'), (16, 1024 - 32, 'hp'), (8, 512, 'hp')]:
                if useb == 'cb':
                    a.e(f's_lshl_b32 s{S_T1}, s{S_CB}, 6')
                    a.e(f's_add_u32 s{S_T1}, s{S_T1}, {addc}')
                else:
                    a.e(f's_add_u32 s{S_T1}, s{S_T0}, {hex(addc & 0xffffffff)}')
                a.e(f'v_add_u32 v{VT3}, s{S_T1}, v{VT2}')
                a.e(f'v_cmp_gt_u32 vcc, {lim}, v{VT0}')
                a.e('s_nop 1')
                a.e(f'v_cndmask_b32 v{dst}, v{dst}, v{VT3}, vcc')
            a.e(f'v_lshlrev_b32 v{dst}, 2, v{dst}')
        colof(36, 0); colof(37, 64)
        a.e(f's_mov_b32 s{S_T0}, {hex(CSP_OFF)}')
        for kq in range(4):
            a.e(f'buffer_load_dwordx4 v[{40+4*kq}:{43+4*kq}], v36, {WS}, s{S_T0} offen sc1')
            a.e('s_mov_b64 exec, 0xf')
            a.e(f'buffer_load_dwordx4 v[{56+4*kq}:{59+4*kq}], v37, {WS}, s{S_T0} offen sc1')
            a.e('s_mov_b64 exec, -1')
            if kq < 3: a.e(f's_add_u32 s{S_T0}, s{S_T0}, 15360')
        a.e(f'v_lshlrev_b32 v{VT0}, 4, v{V_LANE}')
        a.e(f'v_add_u32 v{VT0}, {hex(CSC)}, v{VT0}')
        a.e('s_waitcnt vmcnt(0)')
        for b in (40, 56):
            for i in (0, 2):
                a.e(pk('add', b + i, vp(b + i), vp(b + 4 + i)))
                a.e(pk('add', b + 8 + i, vp(b + 8 + i), vp(b + 12 + i)))
                a.e(pk('add', b + i, vp(b + i), vp(b + 8 + i)))
        a.e(f'ds_write_b128 v{VT0}, v[40:43]')
        a.e('s_mov_b64 exec, 0xf')
        a.e(f'ds_write_b128 v{VT0}, v[56:59] offset:1024')
        a.e('s_mov_b64 exec, -1')
        a.e('s_waitcnt lgkmcnt(0)')

    if not opt.cs_late: cs_part1()
    chunks_of = {}
    for s in stream: chunks_of.setdefault((s.layer, s.phase), set()).add(s.chunk)
    nb = 0
    for ev in events:
        L, kind, p, ci = ev
        if kind == 'B':
            cur[0] = f'pre {L}.{p}.B{ci}'
            issue(0, must=(L, p, ci))
            cur[0] = f'{L}.{p}.B{ci}'
            if nb < 5: dstamp()
            a.wait_vm((L, p, ci))
            if nb == 0: hstamp(a, opt, 10)
            if nb == 1: hstamp(a, opt, 11)
            if nb < 5: dstamp()
            a.e('s_barrier')
            nb += 1
            if ci >= 2: released.add((L, p, ci - 2))
            if ci == 0:
                for (l2, p2), cs_ in chunks_of.items():
                    if p2 in NOE and (l2, PHASES.index(p2)) < (L, PHASES.index(p)):
                        for c in cs_: released.add((l2, p2, c))
            if opt.cs_late and nb <= 4:
                if nb == 1:
                    issue(16)
                    cs_part1()
                    nonce_setup()
                elif nb == 2:
                    issue(16)
                    cs_part2()
                    late_setup()
                elif nb == 3:
                    pass
                elif nb == 4:
                    cs_fill()
                    win[0] = opt.window
            elif nb == 1:
                issue(32)
                late_setup()
                cs_part2()
            elif nb == 3:
                cs_fill()
                win[0] = opt.window
            elif nb in (2, 4):
                pass
            else:
                issue(opt.caps.get(f'{p}.B{ci}', opt.caps.get(f'{p}.B*', 0)))
                park_policy(cur[0])
        elif kind == 'R':
            a.e('s_barrier')
        elif kind == 'E':
            cur[0] = f'{L}.{p}.E'
            a.e('s_barrier')
            for c in chunks_of[(L, p)]: released.add((L, p, c))
            issue(opt.caps.get(f'{p}.E', 0))
            park_policy(cur[0])
        else:
            cur[0] = f'{L}.{p}'
            a.e('s_barrier')
            issue(opt.caps.get(p, 0))
            park_policy(cur[0])
    if opt.startdiag:
        a.e(f's_lshl_b32 s{S_T0}, s2, 8')
        a.e(f's_add_u32 s{S_T0}, s{S_T0}, {hex(TM_OFF + 128)}')
        for i in range(dg[0]):
            a.e(f'v_mov_b32 v99, {4*i}')
            a.e(f'buffer_store_dword v{100+i}, v99, {WS}, s{S_T0} offen')
    a.e('s_waitcnt vmcnt(0)')
    a.e('s_endpgm')


def gen_toucher(a, opt, events):
    a.c('--- A loader / toucher')
    if opt.prio_a: a.e(f's_setprio {opt.prio_a}')
    mats = {'WO': (S_PTR + 4, 512 * 512 * 2), 'W1': (S_PTR + 8, 512 * 512 * 2),
            'W2': (S_PTR + 10, 512 * 512 * 2), 'W3': (S_PTR + 12, 512 * 1792 * 2), 'W4': (S_PTR + 14, 1792 * 512 * 2)}
    srds = {}
    for i, (k, (p, size)) in enumerate(mats.items()):
        s = 40 + 4 * i
        a.e(f's_mov_b32 s{s}, s{p}'); a.e(f's_mov_b32 s{s+1}, s{p+1}')
        a.e(f's_mov_b32 s{s+2}, {hex(size)}'); a.e(f's_mov_b32 s{s+3}, 0x20000')
        srds[k] = s
    T0s, T1s, T2s, T3s, T4s, T5s = 33, 34, 35, 36, 37, 38
    THR, SPIN = 60, 61
    RA, P7T = 64, 68
    U0, U1, U2, U3, U4 = 76, 77, 78, 79, 80
    VAS, VAG, VFS, VFB, VFH, VAH = 3, 4, 5, 6, 7, 8
    X0, X1, X2, X3 = 24, 25, 26, 27
    X0W = 31
    e = a.e
    VXK = 40
    e(f'v_lshrrev_b32 v2, 4, v{V_LANE}')
    e(f'v_and_b32 v3, 15, v{V_LANE}')
    for k in range(4):
        e(f'v_add_u32 v{VXK+k}, {4*k}, v2'); e(f'v_xor_b32 v{VXK+k}, v{VXK+k}, v3'); e(f'v_lshlrev_b32 v{VXK+k}, 4, v{VXK+k}')
        e(f'v_lshl_add_u32 v{VXK+k}, v2, 10, v{VXK+k}')
    e(f's_lshl_b32 s33, s{S_G}, 8'); e(f's_lshl_b32 s34, s{S_RB2}, 7'); e('s_add_u32 s33, s33, s34'); e('s_lshl_b32 s82, s33, 10')
    e(f's_lshl_b32 s83, s{S_RB2}, 1'); e(f's_add_u32 s83, s83, s{S_CB2}'); e(f's_and_b32 s83, s83, {3 if opt.rot else 0}')
    e(f's_lshr_b32 s81, s{S_CB2}, 2'); e(f's_lshl_b32 s81, s81, {13 if opt.rot else 31}')
    if not opt.rot: e('s_mov_b32 s81, 0')
    def x_chunk(c, half=None):
        e(f's_xor_b32 s33, s83, {c}'); e('s_lshl_b32 s33, s33, 8'); e('s_add_u32 s33, s33, s82')
        if half == 1:
            e('s_add_u32 s34, s81, 16384'); e('s_and_b32 s34, s34, 0x7fff')
        else:
            e('s_mov_b32 s34, s81')
        n = 8 if half is None else 4
        if len(a.vm) + 4 * n > 62:
            keep = 62 - 4 * n
            e(f's_waitcnt vmcnt({keep})'); a.vm = a.vm[-keep:] if keep else []
        e(f's_mov_b32 s36, {n}')
        lp = a.newlabel('XC'); a.label(lp)
        for k in range(4):
            e(f's_add_u32 m0, s34, {hex(AREG + (c & 1) * 32768)}')
            e('s_lshl_b32 s35, s34, 2'); e('s_add_u32 s35, s35, s33')
            e(f'buffer_load_dwordx4 v{VXK + k}, s[{S_X}:{S_X+3}], s35 offen lds')
            e('s_add_u32 s34, s34, 1024')
        e('s_and_b32 s34, s34, 0x7fff')
        e('s_sub_u32 s36, s36, 1'); e('s_cmp_lg_u32 s36, 0'); e(f's_cbranch_scc1 {lp}')
        a.vm += [('X', c)] * (4 * n)
        assert len(a.vm) <= 63
    def x_tile():
        e(f'v_lshrrev_b32 v2, 3, v{V_LANE}'); e('v_lshlrev_b32 v2, 10, v2')
        e(f'v_and_b32 v30, 7, v{V_LANE}'); e('v_lshl_add_u32 v2, v30, 4, v2')
        e(f's_lshl_b32 s33, s{S_G}, 8'); e(f's_lshl_b32 s34, s{S_RB}, 6'); e('s_add_u32 s33, s33, s34'); e('s_lshl_b32 s33, s33, 10')
        e(f's_lshl_b32 s34, s{S_CB}, 7'); e('s_add_u32 s33, s33, s34')
        for p_ in range(8):
            e(f's_mov_b32 m0, {hex(AREG + p_ * 1024)}')
            if p_: e('s_add_u32 s33, s33, 8192')
            else: e('s_nop 0')
            a.vmem(f'buffer_load_dwordx4 v2, s[{S_X}:{S_X+3}], s33 offen lds', 'x')
    if WARM0[0]:
        e('s_barrier')
        events = events[1:]
    hstamp(a, opt, 12)
    x_chunk(0); x_chunk(1, 0)
    hstamp(a, opt, 13)
    e(f'v_lshlrev_b32 v1, 7, v{V_LANE}')
    e(f'v_lshlrev_b32 v{X0}, 4, v{V_LANE}')
    e(f'v_lshlrev_b32 v{X0W}, 4, v{V_LANE}')
    e(f's_lshl_b32 s{T0s}, s{S_G}, 4'); e(f's_lshl_b32 s{T1s}, s{S_RB}, 2'); e(f's_add_u32 s{T0s}, s{T0s}, s{T1s}')
    e(f's_lshl_b32 s{T1s}, s{T0s}, 14'); e(f'v_add_u32 v{VAS}, s{T1s}, v{X0}')
    e(f's_mul_i32 s{T1s}, s{T0s}, 57344'); e(f'v_add_u32 v{VAG}, s{T1s}, v{X0}')
    rmask = 3 if opt.rot else 0
    for c in range(4):
        e(f's_and_b32 s{RA+c}, s{S_RB}, {rmask}'); e(f's_xor_b32 s{RA+c}, s{RA+c}, {c}'); e(f's_lshl_b32 s{RA+c}, s{RA+c}, 12')
    for p_ in range(8):
        e(f's_and_b32 s{P7T+p_}, s{S_RB}, {rmask}'); e(f's_lshl_b32 s{P7T+p_}, s{P7T+p_}, 1')
        e(f's_xor_b32 s{P7T+p_}, s{P7T+p_}, {p_}'); e(f's_mul_i32 s{P7T+p_}, s{P7T+p_}, 7168')
    e(f'v_and_b32 v{X1}, 15, v{V_LANE}')
    e(f'v_and_b32 v{X2}, 0x30, v{V_LANE}')
    e(f's_mul_i32 s{T3s}, s{S_G}, 18')
    e(f's_lshl_b32 s{T4s}, s{S_G}, 8')
    for c in range(4):
        e(f's_lshr_b32 s{T5s}, s{RA+c}, 12')
        e(f's_lshr_b32 s{U3}, s{T5s}, 1'); e(f's_add_u32 s{U3}, s{U3}, 1'); e(f's_sub_u32 s{U4}, 0, s{U3}')
        e(f's_bitcmp1_b32 s{T5s}, 0'); e(f's_cselect_b32 s{U3}, s{U3}, s{U4}')
        e(f's_lshl_b32 s{T2s}, s{S_RB}, 6'); e(f's_add_u32 s{T2s}, s{T2s}, s{U3}'); e(f's_add_u32 s{T2s}, s{T2s}, 16')
        for w in range(4):
            r = VAH + 4 * c + w
            e(f's_add_u32 s{T5s}, s{T2s}, {16 * w}')
            e(f'v_add_u32 v{r}, s{T5s}, v{X1}')
            e(f'v_lshrrev_b32 v{X3}, 4, v{r}'); e(f'v_add_u32 v{X3}, s{T3s}, v{X3}'); e(f'v_lshlrev_b32 v{X3}, 14, v{X3}')
            e(f'v_and_b32 v28, 15, v{r}'); e(f'v_add_u32 v28, v{X2}, v28'); e(f'v_lshl_add_u32 v{X3}, v28, 4, v{X3}')
            e(f'v_add_u32 v28, s{T4s}, v{r}'); e('v_subrev_u32 v28, 16, v28')
            e('v_cmp_gt_u32 vcc, 0x800, v28')
            e(f'v_mov_b32 v{r}, 0x80000000'); e('s_nop 0')
            e(f'v_cndmask_b32 v{r}, v{r}, v{X3}, vcc')
    e(f's_lshl_b32 s{T2s}, s{S_G}, 9'); e(f's_add_u32 s{T2s}, s{T2s}, {hex(LF_OFF)}')
    e(f'v_bfe_u32 v{X1}, v{V_LANE}, 3, 2'); e(f'v_lshlrev_b32 v{X1}, 7, v{X1}')
    e(f'v_and_b32 v{X2}, 7, v{V_LANE}'); e(f'v_lshl_add_u32 v{X1}, v{X2}, 2, v{X1}')
    e(f's_lshl_b32 s{T3s}, s{S_RB}, 5'); e(f's_add_u32 s{T3s}, s{T3s}, s{T2s}')
    e(f'v_add_u32 v{VFS}, s{T3s}, v{X1}')
    e(f's_and_b32 s{T3s}, s{S_RB}, 1'); e(f's_lshl_b32 s{T3s}, s{T3s}, 8'); e(f's_add_u32 s{T3s}, s{T3s}, s{T2s}')
    e(f's_lshr_b32 s{T4s}, s{S_RB}, 1'); e(f's_lshl_b32 s{T4s}, s{T4s}, 6'); e(f's_add_u32 s{T3s}, s{T3s}, s{T4s}')
    e(f'v_bfe_u32 v{X2}, v{V_LANE}, 4, 1'); e(f'v_lshlrev_b32 v{X2}, 7, v{X2}')
    e(f'v_and_b32 v{X3}, 15, v{V_LANE}'); e(f'v_lshl_add_u32 v{X2}, v{X3}, 2, v{X2}')
    e(f'v_add_u32 v{VFB}, s{T3s}, v{X2}')
    e(f's_lshl_b32 s{T3s}, s{S_R}, 2'); e(f's_add_u32 s{T3s}, s{T3s}, s{T2s}')
    e(f'v_and_b32 v{X2}, 3, v{V_LANE}'); e(f'v_lshlrev_b32 v{X2}, 7, v{X2}'); e(f'v_add_u32 v{X2}, s{T3s}, v{X2}')
    e(f'v_cmp_lt_u32 vcc, 31, v{V_LANE}'); e('s_nop 1')
    e(f'v_cndmask_b32 v{VFB}, v{VFB}, v{X2}, vcc')
    def build_fh(L):
        la = a.newlabel('FH'); lb = a.newlabel('FH')
        e(f's_lshl_b32 s{T2s}, s{S_G}, 9'); e(f's_add_u32 s{T2s}, s{T2s}, {hex(LF_OFF)}')
        e(f's_lshl_b32 s{T3s}, s{S_RB}, 5'); e(f's_add_u32 s{T3s}, s{T3s}, s{T2s}')
        e(f's_sub_u32 s{U1}, s{T3s}, 32'); e(f's_add_u32 s{U1}, s{U1}, 256'); e(f's_mov_b32 s{U3}, 128')
        e(f's_add_u32 s{U2}, s{T3s}, 32'); e(f's_mov_b32 s{U4}, 128')
        e(f's_lshl_b32 s{T4s}, s{S_G}, 8'); e(f's_add_u32 s{T4s}, s{T4s}, {hex(HF_OFF + L * 2048)}')
        e(f's_cmp_eq_u32 s{S_RB}, 0'); e(f's_cbranch_scc0 {la}')
        e(f's_mov_b32 s{U1}, s{T3s}')
        e(f's_cmp_eq_u32 s{S_G}, 0'); e(f's_cbranch_scc1 {la}')
        e(f's_mov_b32 s{U1}, s{T4s}'); e(f's_mov_b32 s{U3}, 0')
        a.label(la)
        e(f's_cmp_eq_u32 s{S_RB}, 3'); e(f's_cbranch_scc0 {lb}')
        e(f's_mov_b32 s{U2}, s{T3s}')
        e(f's_cmp_eq_u32 s{S_G}, 7'); e(f's_cbranch_scc1 {lb}')
        e(f's_add_u32 s{U2}, s{T4s}, 128'); e(f's_mov_b32 s{U4}, 0')
        a.label(lb)
        e(f'v_bfe_u32 v{X1}, v{V_LANE}, 3, 1'); e(f'v_and_b32 v{X2}, 7, v{V_LANE}'); e(f'v_lshlrev_b32 v{X2}, 2, v{X2}')
        for base_s, mul_s, sel in ((U1, U3, 2), (U2, U4, 3)):
            e(f'v_mul_u32_u24 v{X3}, s{mul_s}, v{X1}'); e(f'v_add_u32 v{X3}, v{X3}, v{X2}'); e(f'v_add_u32 v{X3}, s{base_s}, v{X3}')
            e(f'v_lshrrev_b32 v28, 4, v{V_LANE}'); e(f'v_cmp_eq_u32 vcc, {sel}, v28'); e('s_nop 1')
            e(f'v_cndmask_b32 v{VFH}, v{VFH if sel == 3 else VFS}, v{X3}, vcc')
    e('s_waitcnt lgkmcnt(0)')
    e(f's_mul_i32 s{S_B}, s{S_V}, 0x9e3779b1'); e(f's_add_u32 s{S_B}, s{S_B}, 0x7f4a7c15'); e(f's_and_b32 s{S_B}, s{S_B}, 0xffffff00')

    def poll(v, epoch):
        L_ = a.newlabel('AP'); D_ = a.newlabel('APD')
        e(f's_add_u32 s{THR}, s{S_B}, {8*epoch}'); e(f's_mov_b32 s{SPIN}, {opt.spin}')
        a.label(L_)
        e(f'buffer_load_dword v30, v{v}, {WS}, 0 offen sc1'); e('s_waitcnt vmcnt(0)')
        e(f'v_subrev_u32 v30, s{THR}, v30'); e('v_cmp_gt_u32 vcc, 0x80, v30')
        e(f's_sub_u32 s{SPIN}, s{SPIN}, 1'); e(f's_cbranch_scc1 {D_}')
        e('s_cmp_eq_u64 vcc, -1')
        if opt.poll_sleep:
            e(f's_cbranch_scc1 {D_}'); e(f's_sleep {opt.poll_sleep}'); e(f's_branch {L_}')
        else:
            e(f's_cbranch_scc0 {L_}')
        a.label(D_); a.vm = []
    def a_chunk(phase, c):
        for w in range(4):
            e(f's_mov_b32 m0, {hex(AREG + (c % 4) * 16384 + w * 4096)}')
            if phase == 'P7':
                last = None
                for k in range(4):
                    p_, i_ = divmod(4 * c + k, 7)
                    const = G_OFF + w * 57344 + (i_ - k) * 1024
                    if last != (p_, const):
                        e(f's_add_u32 s{T0s}, s{P7T+p_}, {hex(const & 0xffffffff)}'); last = (p_, const)
                    a.vmem(f'buffer_load_dwordx4 v{VAG}, {WS}, s{T0s} offen offset:{k*1024} sc1 lds', ('A', phase, c))
            else:
                if phase == 'P5':
                    va = VAH + 4 * c + w; e(f's_add_u32 s{T0s}, s{RA+c}, {hex(A0_OFF)}' if A0_OFF else f's_mov_b32 s{T0s}, s{RA+c}')
                elif phase == 'P3':
                    va = VAS; e(f's_add_u32 s{T0s}, s{RA+c}, s{U0}'); e(f's_add_u32 s{T0s}, s{T0s}, {hex(A0_OFF + w * 16384)}')
                else:
                    va = VAS; e(f's_add_u32 s{T0s}, s{RA+c}, {hex(A1_OFF + w * 16384)}')
                for k in range(4):
                    a.vmem(f'buffer_load_dwordx4 v{va}, {WS}, s{T0s} offen offset:{k*1024} sc1 lds', ('A', phase, c))
    e(f's_lshl_b32 s{U0}, s{S_G}, 1'); e(f's_add_u32 s{U0}, s{U0}, 1'); e(f's_lshl_b32 s{U0}, s{U0}, 14')

    dummy = [0]
    def wide(srd_s, soff_s):
        d = 64 + 4 * (dummy[0] % 40); dummy[0] += 1
        fl = 'sc1' if srd_s == WS else opt.touch_flags
        a.vmem(f'buffer_load_dwordx4 v[{d}:{d+3}], v{X0W}, {srd_s}, s{soff_s} offen {fl}', 'T')
    def mall_touch():
        for k in ['WO', 'W2', 'W4']:
            size = mats[k][1]; per = size // 256
            s = srds[k]
            e(f's_mul_i32 s{T0s}, s2, {per}')
            for i in range(per // 1024):
                if i: e(f's_add_u32 s{T0s}, s{T0s}, 1024')
                wide(f's[{s}:{s+3}]', T0s)
    def g_touch():
        e(f's_mul_i32 s{T0s}, s{S_G}, {16 * 57344}'); e(f's_mul_i32 s{T1s}, s{S_R}, 28672')
        e(f's_add_u32 s{T0s}, s{T0s}, s{T1s}'); e(f's_add_u32 s{T0s}, s{T0s}, {hex(G_OFF)}')
        for i in range(28):
            if i: e(f's_add_u32 s{T0s}, s{T0s}, 1024')
            wide(WS, T0s)
    def key(sx):
        k, p, c = sx.split(',')
        return (0, k, p, None if c == '-' else int(c))
    EPO = {'P3': 1, 'P4': 2, 'P5': 3, 'P7': 5}
    if opt.p7_self: del EPO['P7']
    nxt = 0
    for ev in events:
        L, kind, p, ci = ev
        if kind == 'B' and p in EPO:
            nch = NCH[p]
            if ci == 0:
                if p == 'P5': build_fh(L)
                poll({'P3': VFB, 'P4': VFS, 'P5': VFH, 'P7': VFB}[p], 1 + 6 * L + EPO[p])
                a_chunk(p, 0); a_chunk(p, 1); nxt = 2
            a.wait_vm(('A', p, ci))
            e('s_barrier')
            while nxt < nch and (nxt <= ci + 2 or nxt <= 3) and nxt <= ci + 2 + (1 if ci == 0 and False else 0):
                a_chunk(p, nxt); nxt += 1
        elif L == 0 and kind == 'B' and p == 'P1KV':
            a.wait_vm(('X', ci))
            if ci == 0: hstamp(a, opt, 14)
            if ci == 2: hstamp(a, opt, 15)
            e('s_barrier')
            if ci == 0: x_chunk(1, 1)
            if not EARLY[0] and 1 <= ci <= 2: x_chunk(ci + 1)
            if ci == 3: x_tile()
        elif kind == 'R':
            e('s_barrier')
            x_chunk(ci + 2)
        else:
            if ev == (0, 'E', 'P1KV', None): a.wait_vm('x')
            e('s_barrier')
        if opt.touch and opt.touch_at and ev == key(opt.touch_at): mall_touch()
        if opt.gtouch_at and ev == key(opt.gtouch_at) and not (opt.gtouch_parker and opt.park): g_touch()
    e('s_waitcnt vmcnt(0)')
    e('s_endpgm')


def gen_parker(a, opt, events, h):
    e = a.e
    a.c(f'--- parker {h}')
    plan = opt._plan
    W3S, W4S, CB6, CB7 = 40, 44, 64, 68
    QS = 48
    e(f's_mov_b32 s{QS}, s{S_PTR+2}'); e(f's_mov_b32 s{QS+1}, s{S_PTR+3}'); e(f's_mov_b32 s{QS+2}, {hex(512*1536*2)}'); e(f's_mov_b32 s{QS+3}, 0x20000')
    for s_, p_, size in ((W3S, S_PTR + 12, 512 * 1792 * 2), (W4S, S_PTR + 14, 1792 * 512 * 2)):
        e(f's_mov_b32 s{s_}, s{p_}'); e(f's_mov_b32 s{s_+1}, s{p_+1}'); e(f's_mov_b32 s{s_+2}, {hex(size)}'); e(f's_mov_b32 s{s_+3}, 0x20000')
    e(f'v_lshlrev_b32 v1, 4, v{V_LANE}')
    if WARM0[0]:
        e(f's_mul_i32 s33, s{S_R}, 49152')
        if h: e('s_add_u32 s33, s33, 24576')
        k_ = 0
        if h == 0:
            e(f's_lshl_b32 s34, s{S_G}, 18'); e(f's_lshl_b32 s35, s{S_R}, 13'); e('s_add_u32 s34, s34, s35')
            for i in range(8):
                a.vmem(f'buffer_load_dwordx4 v[{16+4*k_}:{19+4*k_}], v1, s[{S_X}:{S_X+3}], s34 offen', 'T'); k_ += 1
                e('s_add_u32 s34, s34, 1024')
        for i in range(24):
            a.vmem(f'buffer_load_dwordx4 v[{16+4*k_}:{19+4*k_}], v1, s[{QS}:{QS+3}], s33 offen', 'T'); k_ += 1
            e('s_add_u32 s33, s33, 1024')
    rm = 3 if opt.rot else 0
    for c in range(4):
        e(f's_lshl_b32 s{CB6+c}, s{S_RB2}, 1'); e(f's_and_b32 s{CB6+c}, s{CB6+c}, {rm}'); e(f's_xor_b32 s{CB6+c}, s{CB6+c}, {c}')
        e(f's_mul_i32 s{CB6+c}, s{CB6+c}, {128*3584}')
    for p_ in range(8):
        e(f's_and_b32 s{CB7+p_}, s{S_RB}, {rm}'); e(f's_lshl_b32 s{CB7+p_}, s{CB7+p_}, 1'); e(f's_xor_b32 s{CB7+p_}, s{CB7+p_}, {p_}')
        e(f's_mul_i32 s{CB7+p_}, s{CB7+p_}, {224*1024}')
    VN, VW, VL, X0, X1, X2 = 2, 4, 8, 11, 12, 13
    e(f'v_lshrrev_b32 v{X0}, 3, v{V_LANE}'); e(f'v_bfe_u32 v{X1}, v{X0}, 1, 1'); e(f'v_lshlrev_b32 v{X1}, 2, v{X1}')
    e(f'v_and_b32 v{X2}, 7, v{V_LANE}'); e(f'v_xor_b32 v{X2}, v{X2}, v{X1}')
    e(f'v_lshlrev_b32 v{VN}, 10, v{X0}'); e(f'v_lshl_add_u32 v{VN}, v{X2}, 4, v{VN}')
    e(f's_lshl_b32 s33, s{S_CB}, 7'); e(f'v_add_u32 v{VN}, s33, v{VN}'); e(f'v_add_u32 v{VN+1}, {hex(8192-1024)}, v{VN}')
    ps = [0, 1, 2, 3] if h == 0 else [4, 5, 6]
    M14 = (1 << 20) // 14 + 1
    e(f's_mul_i32 s33, s{S_CB2}, 224'); e(f's_mov_b32 s34, {hex(M14)}')
    for k, p_ in enumerate(ps):
        e(f'v_add_u32 v{X0}, {64*p_}, v{V_LANE}'); e(f'v_mul_lo_u32 v{X1}, v{X0}, s34'); e(f'v_lshrrev_b32 v{X1}, 20, v{X1}')
        e(f'v_mul_u32_u24 v{X2}, 14, v{X1}'); e(f'v_sub_u32 v{X2}, v{X0}, v{X2}')
        e(f'v_mul_u32_u24 v{VW+k}, 3584, v{X1}'); e(f'v_lshl_add_u32 v{VW+k}, v{X2}, 4, v{VW+k}'); e(f'v_add_u32 v{VW+k}, s33, v{VW+k}')
    e(f'v_lshlrev_b32 v{VL}, 4, v{V_LANE}'); e(f'v_add_u32 v{VL+1}, 0x10000, v{VL}'); e(f'v_add_u32 v{VL+2}, 0x20000, v{VL}')
    def wide(base_expr_emit, n):
        base_expr_emit()
        for i in range(n):
            if i: e('s_add_u32 s33, s33, 1024')
            a.vmem(f'buffer_load_dwordx4 v[{240+4*(i%4)}:{243+4*(i%4)}], v{VL}, {WS}, s33 offen sc1', 'T')
    def touch_a0():
        wide(lambda: (e(f's_mul_i32 s33, s{S_G}, {18*16384}'), e(f's_mul_i32 s34, s{S_R}, 9216'), e('s_add_u32 s33, s33, s34'), e(f's_add_u32 s33, s33, {hex(A0_OFF)}') if A0_OFF else None), 9)
    def touch_lin(off, per_group):
        wide(lambda: (e(f's_mul_i32 s33, s{S_G}, {per_group}'), e(f's_mul_i32 s34, s{S_R}, {per_group // 32}'), e('s_add_u32 s33, s33, s34'), e(f's_add_u32 s33, s33, {hex(off)}')), per_group // 32 // 1024)
    if WARM0[0]:
        a.wait_vm_all()
        e('s_barrier')
        events = events[1:]
    def tkey(sx):
        k, p, c = sx.split(',')
        return (0, k, p, None if c == '-' else int(c))
    slots = list(range(56))
    held = {}
    pending = set()
    def do(actions):
        for act, s_ in actions:
            if act == 'park':
                if s_.kind == 'W3':
                    c_, rr_ = divmod(s_.srow, 128)
                    e(f's_add_u32 s33, s{CB6+c_}, {hex(rr_*3584)}')
                    regs = []
                    for k, p_ in enumerate(ps):
                        sl = slots.pop(0); regs.append((sl, p_))
                        a.vmem(f'buffer_load_dwordx4 v[{16+4*sl}:{19+4*sl}], v{VW+k}, s[{W3S}:{W3S+3}], s33 offen', id(s_))
                else:
                    srow = s_.srow if h == 0 else s_.srow2
                    p_, rr_ = divmod(srow, 224)
                    e(f's_add_u32 s33, s{CB7+p_}, {hex(rr_*1024)}')
                    regs = []
                    for k in range(2):
                        sl = slots.pop(0); regs.append((sl, 2 * h + k))
                        a.vmem(f'buffer_load_dwordx4 v[{16+4*sl}:{19+4*sl}], v{VN+k}, s[{W4S}:{W4S+3}], s33 offen offset:{k*1024}', id(s_))
                held[id(s_)] = regs
            else:
                a.wait_vm(id(s_))
                for sl, p_ in held.pop(id(s_)):
                    ad = s_.addr + p_ * 1024
                    e(f'ds_write_b128 v{VL + (ad >> 16)}, v[{16+4*sl}:{19+4*sl}] offset:{ad & 0xffff}')
                    slots.append(sl)
                pending.add((s_.layer, s_.phase, s_.chunk))
    for ev in events:
        L, kind, p, ci = ev
        if kind == 'B':
            do(plan.get(f'pre {L}.{p}.B{ci}', []))
            if (L, p, ci) in pending:
                e('s_waitcnt lgkmcnt(0)'); pending.clear()
            e('s_barrier')
            acts = plan.get(f'{L}.{p}.B{ci}', [])
        elif kind == 'R':
            e('s_barrier'); acts = []
        elif kind == 'E':
            e('s_barrier'); acts = plan.get(f'{L}.{p}.E', [])
        else:
            e('s_barrier'); acts = plan.get(f'{L}.{p}', [])
        do([x for x in acts if x[0] == 'unpark'])
        do([x for x in acts if x[0] == 'park'])
        if opt.pretouch and h == 1 and ev == tkey(opt.a2touch_at): touch_lin(A2_OFF, 262144)
        if opt.gtouch_parker and opt.gtouch_at and ev == tkey(opt.gtouch_at):
            wide(lambda: (e(f's_mul_i32 s33, s{S_G}, {16*57344}'), e(f's_mul_i32 s34, s{S_R}, 28672'), e('s_add_u32 s33, s33, s34'),
                          e(f's_add_u32 s33, s33, {hex(G_OFF + h * 14336)}')), 14)
        if opt.pretouch and ev == tkey(opt.a01touch_at):
            if h == 0:
                touch_a0(); touch_lin(ST_OFF, 32768)
            else:
                touch_lin(A1_OFF, 262144)
    e('s_waitcnt vmcnt(0) lgkmcnt(0)')
    e('s_endpgm')


def generate(opt):
    ATOMIC[0] = opt.kv_atomic
    EARLY[0] = opt.early_rel
    if opt.dbgout >= 0: opt.phi_clamp = 0
    WARM0[0] = 1 if (opt.warm0 and opt.park) else 0
    events = build_events(opt.stop)
    a = Asm(); a.opt = opt
    hdr = open(os.path.join(os.path.dirname(os.path.abspath(__file__)), 'header.txt')).read()
    out = [hdr.rstrip('\n')]
    out.append(f'; @launch grid=(256,1,1) block=({64*(8 if opt.park else 6)},1,1) lds={LDS_TOTAL}')
    out += ['.amdgcn_target "amdgcn-amd-amdhsa--gfx950"', '.text', f'.globl {KNAME}', '.p2align 8',
            f'.type {KNAME},@function', f'{KNAME}:']
    a.e('s_cmp_ge_u32 s2, 256')
    a.e('s_cbranch_scc1 L_EXIT')
    if opt.startdiag: a.e('s_memtime s[100:101]')
    if opt.dbgout >= 0 and opt.fine: a.e('s_memtime s[96:97]')
    if opt.wall:
        a.e('s_memrealtime s[18:19]') if False else None
    a.e(f's_load_dwordx16 s[{S_PTR}:{S_PTR+15}], s[0:1], 0')
    a.e(f's_load_dwordx4 s[{S_PTR+16}:{S_PTR+19}], s[0:1], 64')
    a.e(f's_load_dwordx2 s[{S_PTR+20}:{S_PTR+21}], s[0:1], 80')
    a.e('v_lshrrev_b32 v1, 6, v0')
    a.e('s_nop 0')
    if opt.prefetch_code:
        a.e('s_getpc_b64 s[34:35]')
        a.label('L_PC')
        a.e(f's_sub_u32 s34, s34, (L_PC - {KNAME})')
        a.e('s_subb_u32 s35, s35, 0')
        a.e('s_lshr_b32 s36, s2, 3')
        a.e('s_mul_i32 s36, s36, 2560')
        a.e('v_lshlrev_b32 v2, 7, v0')
        a.e('v_add_u32 v2, s36, v2')
        a.e(f's_mov_b32 s36, (L_CODE_END - {KNAME} - 4)')
        a.e('v_min_u32 v2, s36, v2')
        a.e('v_and_b32 v2, -4, v2')
        a.e('v_cmp_gt_u32 vcc, 20, v0')
        a.e('s_and_saveexec_b64 s[36:37], vcc')
        a.e('s_cbranch_execz L_NOPF')
        a.e('global_load_dword v255, v2, s[34:35]')
        a.label('L_NOPF')
        a.e('s_mov_b64 exec, s[36:37]')
    a.e(f'v_readfirstlane_b32 s{S_W}, v1')
    a.e(f'v_and_b32 v{V_LANE}, 63, v0')
    a.e(f's_getreg_b32 s{S_XCC}, hwreg(HW_REG_XCC_ID)')
    a.e(f's_and_b32 s{S_XCC}, s{S_XCC}, 7')
    a.e(f's_and_b32 s{S_G}, s2, 7')
    a.e(f's_lshr_b32 s{S_R}, s2, 3')
    a.e(f's_lshr_b32 s{S_RB}, s{S_R}, 3')
    a.e(f's_and_b32 s{S_CB}, s{S_R}, 7')
    a.e(f's_lshr_b32 s{S_RB2}, s{S_R}, 4')
    a.e(f's_and_b32 s{S_CB2}, s{S_R}, 15')
    a.e('s_waitcnt lgkmcnt(0)')
    if opt.ws_base:
        a.e(f's_add_u32 s{S_PTR+20}, s{S_PTR+20}, {hex(opt.ws_base)}')
        a.e(f's_addc_u32 s{S_PTR+21}, s{S_PTR+21}, 0')
    a.e(f's_add_u32 s34, s{S_PTR+20}, {hex(NONCE_OFF)}')
    a.e(f's_addc_u32 s35, s{S_PTR+21}, 0')
    a.e(f's_load_dword s{S_V}, s[34:35], 0')
    def srd(s, p, size):
        a.e(f's_mov_b32 s{s}, s{p}'); a.e(f's_mov_b32 s{s+1}, s{p+1}')
        a.e(f's_mov_b32 s{s+2}, {hex(size)}'); a.e(f's_mov_b32 s{s+3}, 0x20000')
    if opt.dbgout >= 0:
        a.e(f's_mov_b32 s86, s{S_PTR+18}'); a.e(f's_mov_b32 s87, s{S_PTR+19}')
    srd(S_WS, S_PTR + 20, WS_USED)
    srd(S_X, S_PTR + 0, 2048 * 512 * 2)
    srd(S_OUT, S_PTR + 16, 2048 * 512 * 2)
    a.e(f's_cmp_lt_u32 s{S_W}, 4')
    a.e('s_cbranch_scc1 L_COMPUTE')
    if opt.park:
        for wv in (6, 7):
            a.e(f's_cmp_eq_u32 s{S_W}, {wv}')
            a.e(f's_cbranch_scc0 L_NOTP{wv}')
            a.e('s_getpc_b64 s[34:35]')
            a.label(f'L_PCP{wv}')
            a.e(f's_add_u32 s34, s34, (L_PARKER{wv} - L_PCP{wv})')
            a.e('s_addc_u32 s35, s35, 0')
            a.e('s_setpc_b64 s[34:35]')
            a.label(f'L_NOTP{wv}')
    a.e(f's_cmp_eq_u32 s{S_W}, 5')
    a.e('s_cbranch_scc0 L_GOLOADER')
    a.e('s_getpc_b64 s[34:35]')
    a.label('L_PC3')
    a.e('s_add_u32 s34, s34, (L_TOUCHER - L_PC3)')
    a.e('s_addc_u32 s35, s35, 0')
    a.e('s_setpc_b64 s[34:35]')
    a.label('L_GOLOADER')
    a.e('s_getpc_b64 s[34:35]')
    a.label('L_PC2')
    a.e('s_add_u32 s34, s34, (L_LOADER - L_PC2)')
    a.e('s_addc_u32 s35, s35, 0')
    a.e('s_setpc_b64 s[34:35]')
    a.label('L_EXIT')
    a.e('s_endpgm')
    a.label('L_COMPUTE')
    a.vm = []
    if opt.stop is not None and opt.stop[0] == 0: cev = events
    else: cev = [e for e in build_events(None) if e[0] == 0]
    rest = gen_compute(a, opt, cev)
    assert not rest, rest
    a.label('L_LOADER')
    a.vm = []
    a.fstamp = lambda p: None
    gen_loader(a, opt, events)
    a.label('L_TOUCHER')
    a.vm = []
    gen_toucher(a, opt, events)
    if opt.park:
        for wv in (6, 7):
            a.label(f'L_PARKER{wv}')
            a.vm = []
            gen_parker(a, opt, events, wv - 6)
    a.label('L_CODE_END')
    out.append(a.text())
    out += ['.section .rodata,"a"', '.p2align 6', f'.amdhsa_kernel {KNAME}',
            '  .amdhsa_next_free_vgpr 256', '  .amdhsa_next_free_sgpr 102', '  .amdhsa_accum_offset 256',
            '  .amdhsa_group_segment_fixed_size 0', '  .amdhsa_kernarg_size 88', '  .amdhsa_user_sgpr_count 2',
            '  .amdhsa_user_sgpr_kernarg_segment_ptr 1', '  .amdhsa_system_sgpr_workgroup_id_x 1', '.end_amdhsa_kernel']
    return '\n'.join(out) + '\n'


if __name__ == '__main__':
    import argparse
    ap = argparse.ArgumentParser()
    ap.add_argument('-o', default='interleave_layers__linear_attn_block__mixer_s_mlp__prompt.s')
    ap.add_argument('--stop', default=None)
    ap.add_argument('--timing', action='store_true')
    ap.add_argument('--safe', action='store_true')
    ap.add_argument('--set', action='append', default=[])
    ap.add_argument('--fine', default=None)
    args = ap.parse_args()
    opt = Opt()
    if args.stop:
        l, p = args.stop.split(','); opt.stop = (int(l), p)
    opt.timing = args.timing; opt.force_safe = args.safe; opt.fine = args.fine
    opt.caps = dict(Opt.caps); opt.park_w3 = dict(Opt.park_w3); opt.park_caps = dict(Opt.park_caps)
    for kv in args.set:
        k, v = kv.split('=')
        if k.startswith('pk3:'): opt.park_w3[k[4:]] = int(v)
        elif k.startswith('pk4:'): opt.park_caps[k[4:]] = int(v)
        elif '.' in k or k in ('X1', 'X2'): opt.caps[k] = int(v)
        else:
            try: setattr(opt, k, int(v))
            except ValueError: setattr(opt, k, v.replace(':', ','))
    open(args.o, 'w').write(generate(opt))
    print('written', args.o)
    if os.environ.get('SCHED'):
        import itertools
        for k, g in itertools.groupby(opt._log, key=lambda x: x[0]):
            g = list(g); d = {}
            for x in g: d[(x[1], x[2], x[3])] = d.get((x[1], x[2], x[3]), 0) + 1
            print(k, ' '.join(f'{a_}.{b_}.c{c_}x{n_}' for (a_, b_, c_), n_ in d.items()), 'FORCED' if any(x[4] for x in g) else '')
```

```python
import sys, os, struct

KNAME = 'interleave_layers__linear_attn_block__mixer_s_mlp__prompt_kernel'

class Opt:
    stop = None
    timing = False
    fine = None
    force_safe = False
    window = 40
    window0 = 60
    caps = {'P1KV.E': 64, 'P1Q.B0': 16, 'P1Q.B1': 16, 'P1Q.E': 32,
            'P3.B0': 0, 'P3.B1': 32, 'P3.B2': 16, 'P3.B3': 16,
            'P4.B1': 32, 'P4.B2': 16, 'P4.B3': 16,
            'P5.B1': 35, 'P5.B2': 14, 'P5.B3': 21,
            'P6.B0': 28, 'P6.B1': 16, 'P6.B2': 16, 'P6.B3': 16, 'P6.E': 64,
            'P7.B*': 16, 'P7.E': 64}
    cap0 = 0
    touch = True
    dbg_w_same = 0
    w_nt = 0
    g_cold = 0
    touch_at = 'B,P1Q,0'
    rot = 1
    out_lds = 0
    early_rel = 0
    kv_by_parker = 1
    kvflag_ev = 'E,P1Q,-'
    prio_c = 0
    prio_a = 0
    prio_l = 0
    phi_clamp = 1
    warm0 = 0
    cs_late = 0
    poll_sleep = 0
    dbgout = -1
    dbgwg = 100
    pretouch = 1
    a2touch_at = 'B,P6,3'
    a01touch_at = 'B,P1KV,2'
    gtouch_parker = 1
    park = 1
    park_w3 = {'P1KV.E': 2, 'X1': 2, 'P1Q.E': 8}
    park_caps = {'P6.B1': 0, 'P6.B2': 0, 'P6.B3': 0, 'P6.E': 0}
    unpark_max = 6
    kv_atomic = 1
    wall = 0
    p7_self = 1
    dbg_skip = ''
    ws_base = 0
    late_a = 0
    kvflag_at = 5
    up3 = 1
    startdiag = 0
    gtouch_at = 'B,P5,2'
    dbg_a_same = 0
    touch_flags = ''
    spin = 1 << 17
    prefetch_code = True
    D_kv = 4
    D_p6 = 4

MB = 1 << 20
A0_OFF = 0
A1_OFF = 0x280000
A2_OFF = 0x480000
G_OFF = 0x680000
ST_OFF = 0xD80000
KVP_OFF = 0xDC0000
KVP_L = 0x88000
KVA_OFF = 0xED0000
LSTRIDE = 0x780000
FL_OFF = 0xF00000
LF_OFF = FL_OFF
KVF_OFF = FL_OFF + 4096
HF_OFF = FL_OFF + 8192
XID_OFF = FL_OFF + 29696
NONCE_OFF = FL_OFF + 30720
TM_OFF = FL_OFF + 32768
CSP_OFF = FL_OFF + 32768 + 65536
CSF_OFF = CSP_OFF + 65536
WS_USED = CSF_OFF + 32768
KVREC = 2176

LDS_TOTAL = 163840
AREG = 0
SCR = 49152
CSL = None
WRING = 65536
RING = 93952
PHI = 53248
CSL = WRING + 28672
CSC = WRING + RING
assert CSC + 1088 <= LDS_TOTAL

EPS = 1e-5

def f2u(x):
    return struct.unpack('<I', struct.pack('<f', x))[0]

class Asm:
    def __init__(self):
        self.lines = []; self.nlabel = 0; self.vm = []
        self.fstamp = lambda p: None
    def e(self, s): self.lines.append('  ' + s)
    def c(self, s): self.lines.append('  ; ' + s)
    def label(self, name): self.lines.append(name + ':')
    def newlabel(self, base='L'):
        self.nlabel += 1
        return f'{base}_{self.nlabel}'
    def vmem(self, s, tag=None):
        self.e(s); self.vm.append(tag)
    def count_vm(self, tag):
        if tag not in self.vm: return None
        idx = max(i for i, t in enumerate(self.vm) if t == tag)
        n = len(self.vm) - 1 - idx
        assert n <= 63, n
        self.vm = self.vm[idx + 1:]
        return n
    def wait_vm(self, tag):
        n = self.count_vm(tag)
        if n is not None: self.e(f's_waitcnt vmcnt({n})')
    def wait_vm_all(self):
        self.e('s_waitcnt vmcnt(0)'); self.vm = []
    def text(self): return '\n'.join(self.lines)

def set_exec(a, lo, hi=None):
    a.e(f's_mov_b32 exec_lo, {hex(lo)}')
    a.e(f's_mov_b32 exec_hi, {hex(lo if hi is None else hi)}')

S_V = 3
S_WS = 4; S_X = 8; S_OUT = 12; S_PA = 16
S_G, S_R, S_W, S_RB, S_CB, S_RB2, S_CB2 = 20, 21, 22, 23, 24, 25, 26
S_MODE, S_L, S_LOFF, S_EP, S_B, S_XCC = 27, 28, 29, 30, 31, 32
S_T0, S_T1, S_T2, S_T3, S_T4, S_T5 = 33, 34, 35, 36, 37, 38
S_SPIN, S_THR = 39, 40
S_AOFF, S_AOFF2, S_ASTR = 41, 42, 43
S_C1, S_C2, S_ONE2 = 44, 46, 48
S_LOG2E, S_EPS6 = 50, 51
S_W4K = 52
S_RH, S_CH = 53, 54
S_U0, S_U1, S_U2, S_U3, S_U4 = 55, 56, 57, 58, 59
S_COLD = 62
S_GH = 63
S_RA = 86
S_RK = 90
S_P7 = 94
S_ROTK = 45
S_L2E2, S_E62 = 88, 86
S_PTR = 64
S_WQKV, S_WO, S_W1, S_W2, S_W3, S_W4 = 40, 44, 48, 52, 56, 60
S_CSRD = 88

V_LANE = 0
V_AS, V_AB, V_AG, V_P1 = 1, 2, 3, 4
V_AH = 5
V_STS, V_STB, V_STST, V_XRM, V_TST = 9, 10, 11, 12, 13
V_FSB, V_FBS, V_FSS, V_FH, V_FOWN, V_FKV = 14, 15, 16, 17, 18, 19
V_T128, V_T64, V_T224, V_TN, V_TA = 20, 21, 22, 23, 24
V_T0, V_T1, V_T2 = 25, 26, 27
V_TB = 28
V_RES = 32
V_MEAN, V_RS = 48, 49
V_X = 50
V_PQ = 56
V_ACC = 64
V_A = 128

PHASES = ['P1KV', 'P1Q', 'P3', 'P4', 'P5', 'P6', 'P7']
NCH = {'P1KV': 4, 'P1Q': 2, 'P3': 4, 'P4': 4, 'P5': 4, 'P6': 4, 'P7': 14}

ATOMIC = [1]
EARLY = [1]
WARM0 = [1]
NOE = ('P3', 'P4', 'P5')

class Slab:
    def __init__(self, layer, phase, chunk, kind, size, srow, npieces, srow2=None):
        self.layer, self.phase, self.chunk, self.kind = layer, phase, chunk, kind
        self.size, self.srow, self.npieces, self.srow2 = size, srow, npieces, srow2
        self.addr = None

def w4_tile_seq():
    seq = []
    for c in range(8):
        for i in [0, 1, 2, 3, 4, 5, 7, 8, 9, 10, 11, 12, 6, 13]:
            seq.append(14 * c + i)
    return seq

def build_slabs(layer):
    ph = {}
    def simple(phase, kind, nchunk, per, size, rows, np_):
        ph[phase] = [[Slab(layer, phase, c, kind, size, (c * per + j) * rows, np_) for j in range(per)] for c in range(nchunk)]
    simple('P1KV', 'KV', 4, 4, 4096, 32, 4)
    simple('P1Q', 'Q', 2, 4, 4096, 64, 4)
    simple('P3', 'WO', 4, 4, 4096, 32, 4)
    simple('P4', 'W1', 4, 4, 4096, 32, 4)
    simple('P5', 'W2', 4, 4, 4096, 32, 4)
    simple('P6', 'W3', 4, 4, 7168, 32, 7)
    seq = w4_tile_seq()
    ph['P7'] = [[Slab(layer, 'P7', c, 'W4', 4096, seq[2 * (c * 4 + j)] * 16, 4, srow2=seq[2 * (c * 4 + j) + 1] * 16)
                 for j in range(4)] for c in range(14)]
    pos = PHI
    for p in PHASES:
        for ch in ph[p]:
            for s in ch:
                if pos + s.size > RING: pos = 0
                s.addr = WRING + pos
                pos += s.size
    assert pos == PHI, pos
    return ph

def build_events(stop):
    ev = [(0, 'X', 'W0', None)] if WARM0[0] else []
    for L in range(2):
        for p in PHASES:
            for c in range(NCH[p]):
                ev.append((L, 'B', p, c))
                if EARLY[0] and L == 0 and p == 'P1KV' and c < 2: ev.append((L, 'R', p, c))
            if p not in NOE: ev.append((L, 'E', p, None))
            if p == 'P1KV': ev.append((L, 'X', 'X1', None))
            if p == 'P1Q' and not ATOMIC[0]: ev.append((L, 'X', 'X2', None))
            if stop == (L, p): return ev
    return ev

WS = f's[{S_WS}:{S_WS+3}]'

def thr_value(a, dst, epoch, xcc=False):
    if isinstance(epoch, int):
        a.e(f's_add_u32 s{dst}, s{S_B}, {8*epoch}')
    else:
        a.e(f's_lshl_b32 s{dst}, {epoch}, 3')
        a.e(f's_add_u32 s{dst}, s{dst}, s{S_B}')
    if xcc: a.e(f's_add_u32 s{dst}, s{dst}, s{S_XCC}')

def emit_poll(a, vaddr, epoch, soff='0', opt=Opt, x4=False, tbase=None):
    L = a.newlabel('POLL'); D = a.newlabel('POLLD')
    thr_value(a, S_THR, epoch)
    a.e(f's_mov_b32 s{S_SPIN}, {opt.spin}')
    a.label(L)
    if x4:
        T = tbase
        a.e(f'buffer_load_dwordx4 v[{T}:{T+3}], v{vaddr}, {WS}, {soff} offen sc1')
        a.e('s_waitcnt vmcnt(0)')
        for i in range(4): a.e(f'v_subrev_u32 v{T+i}, s{S_THR}, v{T+i}')
        a.e(f'v_max_u32 v{T}, v{T}, v{T+1}')
        a.e(f'v_max_u32 v{T+2}, v{T+2}, v{T+3}')
        a.e(f'v_max_u32 v{V_T0}, v{T}, v{T+2}')
    else:
        a.e(f'buffer_load_dword v{V_T2}, v{vaddr}, {WS}, {soff} offen sc1')
        a.e('s_waitcnt vmcnt(0)')
        a.e(f'v_subrev_u32 v{V_T0}, s{S_THR}, v{V_T2}')
    a.vm = []
    a.e(f'v_cmp_gt_u32 vcc, 0x80, v{V_T0}')
    a.e(f's_sub_u32 s{S_SPIN}, s{S_SPIN}, 1')
    a.e(f's_cbranch_scc1 {D}')
    a.e('s_cmp_eq_u64 vcc, -1')
    if opt.poll_sleep:
        a.e(f's_cbranch_scc1 {D}')
        a.e(f's_sleep {opt.poll_sleep}')
        a.e(f's_branch {L}')
    else:
        a.e(f's_cbranch_scc0 {L}')
    a.label(D)

def emit_mode_stores(a, stores, cold=False):
    F = a.newlabel('STF'); D = a.newlabel('STD')
    if getattr(a, 'opt', None) is not None and a.opt.pretouch and a.opt.park: cold = False
    a.e(f's_cmp_eq_u32 s{S_COLD if cold else S_MODE}, 0')
    a.e(f's_cbranch_scc1 {F}')
    for s in stores: a.e(s + ' sc1')
    a.e(f's_branch {D}')
    a.label(F)
    for s in stores: a.e(s)
    a.label(D)
    for s in stores: a.vm.append('st')

def emit_signal(a, epoch):
    thr_value(a, S_THR, epoch, xcc=True)
    a.e(f'v_mov_b32 v{V_T0}, s{S_THR}')
    a.wait_vm_all()
    a.e('s_mov_b64 exec, 1')
    emit_mode_stores(a, [f'buffer_store_dword v{V_T0}, v{V_FOWN}, {WS}, 0 offen'])
    a.e('s_mov_b64 exec, -1')

def emit_xreduce(a, regs, tmp, over16=True):
    for r, t in zip(regs, tmp): a.e(f'v_mov_b32 v{t}, v{r}')
    a.e('s_nop 1')
    for r, t in zip(regs, tmp): a.e(f'v_permlane32_swap_b32 v{r}, v{t}')
    a.e('s_nop 0')
    for r, t in zip(regs, tmp): a.e(f'v_add_f32 v{r}, v{r}, v{t}')
    if over16:
        for r, t in zip(regs, tmp): a.e(f'v_mov_b32 v{t}, v{r}')
        a.e('s_nop 1')
        for r, t in zip(regs, tmp): a.e(f'v_permlane16_swap_b32 v{r}, v{t}')
        a.e('s_nop 0')
        for r, t in zip(regs, tmp): a.e(f'v_add_f32 v{r}, v{r}, v{t}')

def pk(op, d, x, y, z=None, mods=''):
    s = f'v_pk_{op}_f32 v[{d}:{d+1}], {x}, {y}'
    if z is not None: s += f', {z}'
    return s + mods
def vp(r): return f'v[{r}:{r+1}]'

def emit_stats_partial32(a, vals, t0, st_soff, cold=False):
    s, q = t0, t0 + 2
    a.e(pk('add', s, vp(vals), vp(vals + 2)))
    a.e(pk('mul', q, vp(vals), vp(vals)))
    a.e(pk('fma', q, vp(vals + 2), vp(vals + 2), vp(q)))
    for i in range(4, 16, 2):
        a.e(pk('add', s, vp(s), vp(vals + i)))
        a.e(pk('fma', q, vp(vals + i), vp(vals + i), vp(q)))
    a.e(f'v_add_f32 v{t0}, v{s}, v{s+1}')
    a.e(f'v_add_f32 v{t0+1}, v{q}, v{q+1}')
    emit_xreduce(a, [t0, t0 + 1], [t0 + 4, t0 + 5], over16=False)
    set_exec(a, 0xffffffff, 0)
    emit_mode_stores(a, [f'buffer_store_dwordx2 v[{t0}:{t0+1}], v{V_STST}, {WS}, {st_soff} offen'], cold=cold)
    a.e('s_mov_b64 exec, -1')

def emit_stats_from_sums(a, s, ss, out_a, out_b, tmp, double=False, keep=None):
    mean, var = s, ss
    a.e(f'v_mul_f32 v{mean}, {hex(f2u(1.0/512))}, v{s}')
    a.e(f'v_mul_f32 v{var}, {hex(f2u(1.0/512))}, v{ss}')
    a.e(f'v_fma_f32 v{var}, -v{mean}, v{mean}, v{var}')
    a.e(f'v_max_f32 v{var}, 0, v{var}')
    a.e(f'v_add_f32 v{tmp}, {hex(f2u(EPS))}, v{var}')
    a.e(f'v_rsq_f32 v{tmp}, v{tmp}')
    a.e('s_nop 0')
    if double:
        a.e(f'v_mul_f32 v{tmp+1}, v{tmp}, v{tmp}')
        a.e(f'v_mul_f32 v{tmp+1}, v{tmp+1}, v{var}')
        a.e(f'v_add_f32 v{tmp+1}, {hex(f2u(EPS))}, v{tmp+1}')
        a.e(f'v_rsq_f32 v{tmp+1}, v{tmp+1}')
        a.e('s_nop 0')
        a.e(f'v_mul_f32 v{out_a}, v{tmp}, v{tmp+1}')
    else:
        a.e(f'v_mov_b32 v{out_a}, v{tmp}')
    if keep:
        a.e(f'v_mov_b32 v{keep[0]}, v{mean}')
        a.e(f'v_mov_b32 v{keep[1]}, v{tmp}')
    a.e(f'v_mul_f32 v{out_b}, v{out_a}, v{mean}')
    a.e(f'v_sub_f32 v{out_b}, 0, v{out_b}')

def emit_sum_partials(a, raw, n):
    k = n
    step = 2
    regs = [raw + i for i in range(0, n, 2)]
    while len(regs) > 1:
        nxt = []
        for i in range(0, len(regs), 2):
            a.e(pk('add', regs[i], vp(regs[i]), vp(regs[i + 1])))
            nxt.append(regs[i])
        regs = nxt

def emit_lnfold(a, acc, cs, av, bv, n):
    for i in range(0, n, 2):
        a.e(pk('mul', acc + i, vp(acc + i), vp(av), mods=' op_sel_hi:[1,0]'))
    for i in range(0, n, 2):
        a.e(pk('fma', acc + i, vp(cs + i), vp(bv), vp(acc + i), mods=' op_sel_hi:[1,0,1]'))

def emit_gelu(a, x, n, tmp, c1reg):
    blk = 16
    a.e(f'v_mov_b32 v{c1reg}, s{S_C1}')
    for b0 in range(0, n, blk):
        m = min(blk, n - b0); t = tmp
        for i in range(0, m, 2): a.e(pk('mul', t + i, vp(x + b0 + i), vp(x + b0 + i)))
        for i in range(0, m, 2): a.e(pk('fma', t + i, vp(t + i), f's[{S_C2}:{S_C2+1}]', vp(c1reg), mods=' op_sel_hi:[1,1,0]'))
        for i in range(0, m, 2): a.e(pk('mul', t + i, vp(t + i), vp(x + b0 + i)))
        for i in range(m): a.e(f'v_exp_f32 v{t+i}, v{t+i}')
        for i in range(0, m, 2): a.e(pk('add', t + i, vp(t + i), f's[{S_ONE2}:{S_ONE2+1}]'))
        for i in range(m): a.e(f'v_rcp_f32 v{t+i}, v{t+i}')
        for i in range(0, m, 2): a.e(pk('mul', x + b0 + i, vp(x + b0 + i), vp(t + i)))

def emit_phi(a, regs, tmp):
    if a.opt.phi_clamp and all(regs[i + 1] == regs[i] + 1 and regs[i] % 2 == 0 for i in range(0, len(regs), 2)) and tmp % 2 == 0:
        for i in range(0, len(regs), 2): a.e(pk('mul', tmp + i, vp(regs[i]), f's[{S_L2E2}:{S_L2E2+1}]'))
        for i, r in enumerate(regs): a.e(f'v_exp_f32_e64 v{tmp+i}, v{tmp+i} clamp')
        for i, r in enumerate(regs): a.e(f'v_max_f32 v{r}, 0, v{r}')
        for i in range(0, len(regs), 2): a.e(pk('add', tmp + i, vp(tmp + i), f's[{S_E62}:{S_E62+1}]'))
        for i in range(0, len(regs), 2): a.e(pk('add', regs[i], vp(regs[i]), vp(tmp + i)))
        return
    for i, r in enumerate(regs): a.e(f'v_min_f32 v{tmp+i}, 0, v{r}')
    for i, r in enumerate(regs): a.e(f'v_mul_f32 v{tmp+i}, s{S_LOG2E}, v{tmp+i}')
    for i, r in enumerate(regs): a.e(f'v_exp_f32 v{tmp+i}, v{tmp+i}')
    for i, r in enumerate(regs): a.e(f'v_max_f32 v{r}, 0, v{r}')
    for i, r in enumerate(regs): a.e(f'v_add_f32 v{r}, v{r}, v{tmp+i}')
    for i, r in enumerate(regs): a.e(f'v_add_f32 v{r}, s{S_EPS6}, v{r}')

def emit_pack(a, dst, src, n):
    for i in range(0, n, 2): a.e(f'v_cvt_pk_bf16_f32 v{dst+i//2}, v{src+i}, v{src+i+1}')

def emit_pack32(a, dst, src):
    for k, j in enumerate([0, 2, 1, 3]):
        a.e(f'v_cvt_pk_bf16_f32 v{dst+2*k}, v{src+4*j}, v{src+4*j+1}')
        a.e(f'v_cvt_pk_bf16_f32 v{dst+2*k+1}, v{src+4*j+2}, v{src+4*j+3}')

class TrBase:
    def __init__(self, a, lane_reg, nt):
        self.a, self.lane_reg, self.nt, self.cur = a, lane_reg, nt, None
    def off(self, addr, span):
        if self.cur is None or addr < self.cur or addr + span - self.cur > 65535:
            self.cur = addr
            for t in range(self.nt):
                if t == 0:
                    self.a.e(f'v_add_u32 v{V_TB}, {hex(addr)}, v{self.lane_reg}')
                else:
                    self.a.e(f'v_xor_b32 v{V_TB+t}, {t << 5}, v{self.lane_reg}')
                    self.a.e(f'v_add_u32 v{V_TB+t}, {hex(addr)}, v{V_TB+t}')
        return addr - self.cur

def emit_gemm16(a, bar, phase, chunks, CT, kind, acc_of, a_of, a_wait, a_issue, wr, S, normal=False, extra=None, a_lds=None):
    R, LA = 2, 4
    ks = []
    for ci, ch in enumerate(chunks):
        first = True
        for s in ch:
            ks.append((ci, s.addr, first)); first = False
            if kind == '64': ks.append((ci, s.addr + 2048, False))
    KS = len(ks)
    if kind == '128':
        trb = TrBase(a, V_T128, 4); second = 2048; span = 4096; tb = lambda t: V_TB + t; timm = lambda t: 0
    elif kind == '64':
        trb = TrBase(a, V_T64, 2); second = 1024; span = 2048; tb = lambda t: V_TB + t; timm = lambda t: 0
    else:
        trb = TrBase(a, V_T224, 1); second = 3584; span = 7168; tb = lambda t: V_TB; timm = lambda t: 32 * t
    total = KS * CT
    def slot(n): return wr + 4 * (n % S)
    def pre_issue(n):
        j, t = divmod(n, CT)
        ci, addr, first = ks[j]
        if t == 0 and first:
            a.fstamp(phase); bar(('B', phase, ci)); a.fstamp(phase)
        imm = trb.off(addr, span) if t == 0 else addr - trb.cur
        return imm + timm(t), t
    def rd(n, half, info):
        imm, t = info
        a.e(f'ds_read_b64_tr_b16 v[{slot(n)+2*half}:{slot(n)+2*half+1}], v{tb(t)} offset:{imm + (second if half else 0)}')
    def mfma(m, r):
        j, t = divmod(m, CT)
        d = acc_of(r, t); c = '0' if j == 0 else f'v[{d}:{d+3}]'
        w = f'v[{slot(m)}:{slot(m)+3}]'; x = f'v[{a_of(r,j)}:{a_of(r,j)+3}]'
        a.e(f'v_mfma_f32_16x16x32_bf16 v[{d}:{d+3}], ' + (f'{x}, {w}' if normal else f'{w}, {x}') + f', {c}')
    lq = []
    def need(tags):
        idx = max((i for i, g in enumerate(lq) if g in tags), default=None)
        if idx is None: return None
        n_ = len(lq) - 1 - idx
        del lq[:idx + 1]
        assert n_ <= 15
        return n_
    def pre2(n):
        info = pre_issue(n)
        j, t = divmod(n, CT)
        if a_lds and t == 0:
            ci, addr_, first = ks[j]
            if EARLY[0] and ci < 2:
                if first:
                    for jj in range(j, j + 4):
                        for s_ in a_lds(jj): a.e(s_)
                    a.e('s_waitcnt lgkmcnt(0)'); lq.clear()
                    bar(('R', phase, ci))
            else:
                for s_ in a_lds(j):
                    a.e(s_); lq.append(('A', j))
        return info
    def rd2(n, half, info):
        rd(n, half, info); lq.append(('W', n))
    for n in range(min(LA, total)):
        info = pre2(n); rd2(n, 0, info); rd2(n, 1, info)
    for n in range(total):
        j, t = divmod(n, CT)
        lg = need({('W', n), ('A', j)})
        vmn = a_wait(j) if t == 0 else None
        if t == 0 and j in (0, 1): a.fstamp(phase)
        parts = ([f'vmcnt({vmn})'] if vmn is not None else []) + ([f'lgkmcnt({lg})'] if lg is not None else [])
        if parts: a.e('s_waitcnt ' + ' '.join(parts))
        nx = n + LA; info = None
        mfma(n, 0)
        if nx < total:
            info = pre2(nx); rd2(nx, 0, info)
        mfma(n, 1)
        if nx < total: rd2(nx, 1, info)
        a_issue(j, t)
        if extra and t == CT - 1: extra(j)
    a.fstamp(phase); bar(('E', phase, None)); a.fstamp(phase)
    a.e('s_nop 7')

def emit_gemm32(a, bar, phase, chunks, acc, wr, tail=None, a_pieces=None):
    LA, S = 4, 5
    nch = len(chunks)
    total = nch * 8
    trb = TrBase(a, V_TN, 1)
    def slot(n): return wr + 8 * (n % S)
    def reads(n):
        c, rem = divmod(n, 8); ksl, s = divmod(rem, 2)
        out = []
        if rem == 0:
            if a_pieces: a.wait_vm(('A', c))
            a.fstamp(phase); bar(('B', phase, c)); a.fstamp(phase)
        sl = chunks[c][ksl]
        imm = trb.off(sl.addr, 4096)
        out.append(f'ds_read_b128 v[{slot(n)}:{slot(n)+3}], v{V_TA} offset:{(c % 4) * 16384 + ksl * 1024 + s * 512}')
        out.append(f'ds_read_b64_tr_b16 v[{slot(n)+4}:{slot(n)+5}], v{V_TB} offset:{imm + s * 1024}')
        out.append(f'ds_read_b64_tr_b16 v[{slot(n)+6}:{slot(n)+7}], v{V_TB} offset:{imm + s * 1024 + 2048}')
        return out
    queue = []; nxt = 2; passed = 0
    if a_pieces:
        for c in (0, 1):
            for t in a_pieces(c): t()
    for n in range(LA):
        for s in reads(n): a.e(s)
    for n in range(total):
        lg = 3 * (min(n - 1 + LA, total - 1) - n)
        a.e(f's_waitcnt lgkmcnt({lg})')
        c = '0' if n == 0 else f'v[{acc}:{acc+15}]'
        a.e(f'v_mfma_f32_32x32x16_bf16 v[{acc}:{acc+15}], v[{slot(n)+4}:{slot(n)+7}], v[{slot(n)}:{slot(n)+3}], {c}')
        nx = n + LA
        if nx < total:
            if nx % 8 == 0: passed = nx // 8
            for s in reads(nx): a.e(s)
        if a_pieces:
            while nxt < nch and (nxt <= passed + 2 or nxt <= 3) and len(queue) < 4:
                queue += list(a_pieces(nxt)); nxt += 1
            if queue: queue.pop(0)()
        if tail and n == max(total - 24, 0): tail()
    a.fstamp(phase)
    if phase not in NOE:
        bar(('E', phase, None))
    a.fstamp(phase)
    a.e('s_nop 7'); a.e('s_nop 3')


def gen_compute(a, opt, events):
    evq = list(events)
    tm = [0]
    def tmreg(i):
        assert i < 22, i
        return 64 + i
    def dump(regs):
        sk = a.newlabel('TMS')
        a.e('s_waitcnt lgkmcnt(0)')
        a.e(f's_cmp_eq_u32 s{S_W}, 0')
        a.e(f's_cbranch_scc0 {sk}')
        if opt.dbgout >= 0 and opt.fine:
            a.e(f's_cmp_eq_u32 s2, {opt.dbgwg}')
            a.e(f's_cbranch_scc0 {sk}')
            for i, r in enumerate(regs):
                a.e(f's_sub_u32 s{S_T0}, s{r}, s85')
                a.e(f'v_mov_b32 v{V_T0}, s{S_T0}')
                a.e(f'v_mov_b32 v{V_T1}, {4*i}')
                a.e(f'global_store_dword v{V_T1}, v{V_T0}, s[86:87]')
        elif opt.dbgout >= 0 and opt.timing:
            a.e(f's_cmp_eq_u32 s2, {opt.dbgwg}')
            a.e(f's_cbranch_scc0 {sk}')
            a.e(f's_cmp_eq_u32 s{S_L}, {opt.dbgout}')
            a.e(f's_cbranch_scc0 {sk}')
            sel = [1, 2, 3, 4, 5, 6, 8, 9, 11, 12, 14, 15, 16, 17, 18, 20]
            for i, k in enumerate(sel):
                if k >= len(regs): continue
                a.e(f's_sub_u32 s{S_T0}, s{regs[k]}, s{regs[0]}')
                a.e(f'v_mov_b32 v{V_T0}, s{S_T0}')
                a.e(f'v_mov_b32 v{V_T1}, {4*i}')
                a.e(f'global_store_dword v{V_T1}, v{V_T0}, s[86:87]')
        else:
            a.e(f's_lshl_b32 s{S_T0}, s2, 8')
            a.e(f's_lshl_b32 s{S_T1}, s{S_L}, 7')
            if opt.timing: a.e(f's_add_u32 s{S_T0}, s{S_T0}, s{S_T1}')
            a.e(f's_add_u32 s{S_T0}, s{S_T0}, {hex(TM_OFF)}')
            for i, r in enumerate(regs):
                a.e(f'v_mov_b32 v{V_T0}, s{r}')
                a.e(f'v_mov_b32 v{V_T1}, {4*i}')
                a.e(f'buffer_store_dword v{V_T0}, v{V_T1}, {WS}, s{S_T0} offen')
        a.label(sk)
        a.e('s_waitcnt vmcnt(0)')
    fs = [0]
    def freg(i): return 64 + 2 * i
    cnt_ = [0]
    def fs_skip(i):
        cnt_[0] += 1
        return cnt_[0] in (2, 4, 5, 6, 8, 10)
    def fstamp(phase):
        if opt.fine == phase and fs[0] < 10 and not (opt.dbgout >= 0 and fs_skip(fs[0])):
            a.e(f's_memtime s[{freg(fs[0])}:{freg(fs[0])+1}]'); fs[0] += 1
    a.fstamp = fstamp
    def stamp():
        if opt.timing:
            a.e('s_memtime s[60:61]')
            a.e('s_waitcnt lgkmcnt(0)')
            a.e(f's_mov_b32 s{tmreg(tm[0])}, s60'); tm[0] += 1

    T0, T1, T2, TB = V_T0, V_T1, V_T2, V_TB
    if opt.wall:
        a.e('s_memrealtime s[60:61]'); a.e('s_waitcnt lgkmcnt(0)'); a.e('s_mov_b32 s84, s60')
        a.e('s_memtime s[60:61]'); a.e('s_waitcnt lgkmcnt(0)'); a.e('s_mov_b32 s85, s60')
    if opt.dbgout >= 0 and opt.fine: a.e('s_mov_b32 s85, s96')
    if opt.prio_c: a.e(f's_setprio {opt.prio_c}')
    a.c('--- compute: early address setup')
    if opt.startdiag:
        a.e('s_memtime s[98:99]'); a.e('s_waitcnt lgkmcnt(0)'); a.e('s_sub_u32 s98, s98, s100'); a.e('s_mov_b32 s85, s98')
    stamp()
    a.e(f's_lshr_b32 s{S_RH}, s{S_W}, 1')
    a.e(f's_and_b32 s{S_CH}, s{S_W}, 1')
    a.e(f's_lshl_b32 s{S_W4K}, s{S_W}, 12')
    a.e(f's_lshl_b32 s{S_U0}, s{S_G}, 4')
    a.e(f's_lshl_b32 s{S_T1}, s{S_RB}, 2')
    a.e(f's_add_u32 s{S_U0}, s{S_U0}, s{S_T1}')
    a.e(f's_lshl_b32 s{S_T1}, s{S_RH}, 1')
    a.e(f's_add_u32 s{S_U2}, s{S_U0}, s{S_T1}')
    a.e(f's_add_u32 s{S_U0}, s{S_U0}, s{S_W}')
    a.e(f's_lshl_b32 s{S_U1}, s{S_G}, 4')
    a.e(f's_lshl_b32 s{S_T2}, s{S_RB2}, 3')
    a.e(f's_add_u32 s{S_U1}, s{S_U1}, s{S_T2}')
    a.e(f's_lshl_b32 s{S_T2}, s{S_W}, 1')
    a.e(f's_add_u32 s{S_U1}, s{S_U1}, s{S_T2}')
    a.e(f'v_and_b32 v{T0}, 15, v{V_LANE}')
    a.e(f'v_and_b32 v{T1}, 0x30, v{V_LANE}')
    a.e(f's_lshl_b32 s{S_ROTK}, s{S_RB2}, 1')
    a.e(f's_add_u32 s{S_ROTK}, s{S_ROTK}, s{S_CB2}')
    a.e(f's_and_b32 s{S_ROTK}, s{S_ROTK}, {3 if opt.rot else 0}')
    a.e(f'v_and_b32 v{T2}, 31, v{V_LANE}')
    a.e(f'v_lshrrev_b32 v{TB}, 5, v{V_LANE}')
    a.e(f'v_lshlrev_b32 v{V_XRM}, 10, v{T2}')
    a.e(f'v_lshl_add_u32 v{V_XRM}, v{TB}, 3, v{V_XRM}')
    a.e(f's_lshl_b32 s{S_T2}, s{S_U2}, 14')
    a.e(f's_lshl_b32 s{S_T3}, s{S_CB}, 7')
    a.e(f's_add_u32 s{S_T2}, s{S_T2}, s{S_T3}')
    a.e(f's_lshl_b32 s{S_T3}, s{S_CH}, 6')
    a.e(f's_add_u32 s{S_T2}, s{S_T2}, s{S_T3}')
    a.e(f'v_add_u32 v{V_XRM}, s{S_T2}, v{V_XRM}')
    PA = f's[{S_PA}:{S_PA+3}]'
    def p1_load(j):
        for r in range(2):
            a.vmem(f'buffer_load_dwordx4 v[{V_A+(r*16+j)*4}:{V_A+(r*16+j)*4+3}], v{V_AB}, {WS}, s{(S_RK if r == 0 else S_P7) + j // 4} offen offset:{(j%4)*1024} sc1', ('A', j))
    a.e('s_waitcnt lgkmcnt(0)')
    a.e(f's_mul_i32 s{S_B}, s{S_V}, 0x9e3779b1')
    a.e(f's_add_u32 s{S_B}, s{S_B}, 0x7f4a7c15')
    a.e(f's_and_b32 s{S_B}, s{S_B}, 0xffffff00')
    a.c('--- compute: address setup')
    a.e(f'v_lshlrev_b32 v{V_X}, 4, v{V_LANE}')
    a.e(f's_lshl_b32 s{S_T2}, s{S_U1}, 14')
    a.e(f'v_add_u32 v{V_AB}, s{S_T2}, v{V_X}')
    a.e(f'v_lshlrev_b32 v{V_STS}, 4, v{T2}')
    a.e(f'v_lshl_add_u32 v{V_STS}, v{TB}, 11, v{V_STS}')
    a.e(f's_lshl_b32 s{S_T2}, s{S_U2}, 11')
    a.e(f'v_add_u32 v{V_STS}, s{S_T2}, v{V_STS}')
    a.e(f'v_lshlrev_b32 v{V_STST}, 4, v{T2}')
    a.e(f's_lshl_b32 s{S_T4}, s{S_CB}, 9')
    a.e(f's_add_u32 s{S_T2}, s{S_T2}, s{S_T4}')
    a.e(f's_lshl_b32 s{S_T4}, s{S_CH}, 3')
    a.e(f's_add_u32 s{S_T2}, s{S_T2}, s{S_T4}')
    a.e(f'v_add_u32 v{V_STST}, s{S_T2}, v{V_STST}')
    a.e(f's_lshl_b32 s{S_T3}, s{S_CB}, 1')
    a.e(f's_add_u32 s{S_T3}, s{S_T3}, s{S_CH}')
    a.e(f'v_lshlrev_b32 v{V_STB}, 4, v{T0}')
    a.e(f'v_lshl_add_u32 v{V_STB}, v{T1}, 6, v{V_STB}')
    a.e(f's_lshl_b32 s{S_T2}, s{S_U1}, 11')
    a.e(f'v_add_u32 v{V_STB}, s{S_T2}, v{V_STB}')
    a.e(f'v_lshrrev_b32 v{V_TST}, 4, v{T2}')
    a.e(f'v_lshlrev_b32 v{V_TST}, 14, v{V_TST}')
    a.e(f'v_lshl_add_u32 v{V_TST}, v{TB}, 8, v{V_TST}')
    a.e(f'v_lshl_add_u32 v{V_TST}, v{T0}, 4, v{V_TST}')
    a.e(f's_lshl_b32 s{S_T2}, s{S_U2}, 14')
    a.e(f's_lshl_b32 s{S_T4}, s{S_T3}, 10')
    a.e(f's_add_u32 s{S_T2}, s{S_T2}, s{S_T4}')
    a.e(f'v_add_u32 v{V_TST}, s{S_T2}, v{V_TST}')
    a.e(f's_lshl_b32 s{S_T2}, s{S_G}, 9')
    a.e(f's_add_u32 s{S_T2}, s{S_T2}, {hex(LF_OFF)}')
    a.e(f's_lshl_b32 s{S_T3}, s{S_W}, 7')
    a.e(f's_add_u32 s{S_T3}, s{S_T3}, s{S_T2}')
    a.e(f's_lshl_b32 s{S_T4}, s{S_R}, 2')
    a.e(f's_add_u32 s{S_T4}, s{S_T4}, s{S_T3}')
    a.e(f'v_mov_b32 v{V_FOWN}, s{S_T4}')
    a.e(f'v_and_b32 v{V_X+1}, 7, v{V_LANE}')
    a.e(f'v_lshlrev_b32 v{V_X+1}, 2, v{V_X+1}')
    a.e(f'v_bfe_u32 v{V_X+2}, v{V_LANE}, 3, 1')
    a.e(f'v_lshl_add_u32 v{V_X+1}, v{V_X+2}, 7, v{V_X+1}')
    a.e(f's_lshl_b32 s{S_T4}, s{S_RB2}, 1')
    a.e(f's_add_u32 s{S_T4}, s{S_T4}, s{S_RH}')
    a.e(f's_lshl_b32 s{S_T4}, s{S_T4}, 5')
    a.e(f's_lshl_b32 s{S_T5}, s{S_CH}, 8')
    a.e(f's_add_u32 s{S_T4}, s{S_T4}, s{S_T5}')
    a.e(f's_add_u32 s{S_T4}, s{S_T4}, s{S_T2}')
    a.e(f'v_add_u32 v{V_FSB}, s{S_T4}, v{V_X+1}')
    a.e(f's_lshl_b32 s{S_T4}, s{S_CB2}, 7')
    a.e(f's_add_u32 s{S_T4}, s{S_T4}, {hex(KVF_OFF)}')
    a.e(f'v_lshlrev_b32 v{V_FKV}, 2, v{T2}')
    a.e(f'v_add_u32 v{V_FKV}, s{S_T4}, v{V_FKV}')
    a.e(f'v_bfe_u32 v{V_X+1}, v{V_LANE}, 2, 2')
    a.e(f'v_lshrrev_b32 v{V_X+2}, 4, v{V_LANE}')
    a.e(f'v_lshl_add_u32 v{V_X+3}, v{V_X+2}, 2, v{V_X+1}')
    a.e(f'v_and_b32 v{V_X+4}, 3, v{V_LANE}')
    a.e(f'v_lshlrev_b32 v{V_X+4}, 3, v{V_X+4}')
    a.e(f'v_bfe_u32 v{V_X+5}, v{V_X+3}, 1, 2')
    a.e(f'v_lshl_add_u32 v{V_T128}, v{V_X+5}, 5, v{V_X+4}')
    a.e(f'v_lshl_add_u32 v{V_T128}, v{V_X+3}, 7, v{V_T128}')
    a.e(f'v_bfe_u32 v{V_X+5}, v{V_X+3}, 2, 1')
    a.e(f'v_lshl_add_u32 v{V_T64}, v{V_X+5}, 5, v{V_X+4}')
    a.e(f'v_lshl_add_u32 v{V_T64}, v{V_X+3}, 6, v{V_T64}')
    a.e(f'v_mul_u32_u24 v{V_T224}, 224, v{V_X+3}')
    a.e(f'v_add_u32 v{V_T224}, v{V_T224}, v{V_X+4}')
    a.e(f'v_lshrrev_b32 v{V_X+3}, 1, v{V_X+2}')
    a.e(f'v_lshl_add_u32 v{V_X+3}, v{V_X+3}, 2, v{V_X+1}')
    a.e(f'v_and_b32 v{V_X+5}, 1, v{V_X+2}')
    a.e(f's_lshl_b32 s{S_T4}, s{S_CH}, 1')
    a.e(f'v_add_u32 v{V_X+5}, s{S_T4}, v{V_X+5}')
    a.e(f'v_and_b32 v{V_X+1}, 2, v{V_X+1}')
    a.e(f'v_xor_b32 v{V_X+5}, v{V_X+5}, v{V_X+1}')
    a.e(f'v_lshl_add_u32 v{V_TN}, v{V_X+5}, 5, v{V_X+4}')
    a.e(f'v_lshl_add_u32 v{V_TN}, v{V_X+3}, 7, v{V_TN}')
    a.e(f'v_bfe_u32 v{V_TA}, v{V_LANE}, 4, 1')
    a.e(f's_lshl_b32 s{S_T4}, s{S_RH}, 1')
    a.e(f'v_add_u32 v{V_TA}, s{S_T4}, v{V_TA}')
    a.e(f'v_lshlrev_b32 v{V_TA}, 12, v{V_TA}')
    a.e(f'v_lshl_add_u32 v{V_TA}, v{TB}, 8, v{V_TA}')
    a.e(f'v_lshl_add_u32 v{V_TA}, v{T0}, 4, v{V_TA}')
    if AREG: a.e(f'v_add_u32 v{V_TA}, {hex(AREG)}, v{V_TA}')
    c1 = -2.0 * 0.7978845608028654 * 1.4426950408889634
    c2 = c1 * 0.044715
    for s, v in [(S_C1, c1), (S_C2, c2), (S_C2 + 1, c2), (S_ONE2, 1.0), (S_ONE2 + 1, 1.0),
                 (S_LOG2E, 1.4426950408889634), (S_EPS6, 1e-6), (S_L2E2, 1.4426950408889634), (S_L2E2 + 1, 1.4426950408889634),
                 (S_E62, 1e-6), (S_E62 + 1, 1e-6)]:
        if opt.dbgout >= 0 and s in (S_E62, S_E62 + 1): continue
        a.e(f's_mov_b32 s{s}, {hex(f2u(v))}')
    a.e(f's_mov_b32 s{S_L}, 0')
    a.e(f's_mov_b32 s{S_LOFF}, 0')
    a.e(f's_mov_b32 s{S_EP}, 1')
    a.e(f's_mov_b32 s{S_MODE}, 1')
    a.e(f's_mov_b32 s{S_COLD}, 1')
    a.e(f's_lshl_b32 s{S_GH}, s{S_G}, 1')
    a.e(f's_add_u32 s{S_GH}, s{S_GH}, 1')
    a.e(f's_lshl_b32 s{S_GH}, s{S_GH}, 14')

    if WARM0[0]:
        assert evq[0][2] == 'W0'; evq.pop(0)
        a.e('s_barrier')
    LOOP = 'LAYER_LOOP'
    a.label(LOOP)
    slabs = build_slabs(0)

    def run_layer():
        def bar(ev):
            exp = evq.pop(0)
            assert exp[1:] == ev or (exp[1] == 'X' and ev[0] == 'X' and exp[2] == ev[1]), (exp, ev)
            a.e('s_barrier')
        def soff(reg, base, extra=0, gh=False):
            if gh: a.e(f's_add_u32 s{reg}, s{S_GH}, {hex(base + extra)}')
            else: a.e(f's_mov_b32 s{reg}, {hex(base + extra)}')
        def done(p):
            if opt.stop == (1, p):
                a.e(f's_cmp_eq_u32 s{S_L}, 1')
                a.e('s_cbranch_scc1 L_END_COMPUTE')
            return opt.stop == (0, p)
        def ep(k):
            a.e(f's_add_u32 s{S_T5}, s{S_EP}, {k}')
            return f's{S_T5}'

        a.c('=== P1KV')
        WR1 = 96; D1 = 116; ONES = 124; D2 = V_PQ
        for i in range(4): a.e(f'v_mov_b32 v{ONES+i}, 0x3f803f80')
        l0 = a.newlabel('KVL0'); ljoin = a.newlabel('KVJ')
        a.e(f's_cmp_eq_u32 s{S_L}, 0')
        a.e(f's_cbranch_scc1 {l0}')
        saved_ev = list(evq)
        evq[:] = [x for x in evq if x[1] != 'R']
        emit_poll(a, V_FSB, f's{S_EP}', opt=opt)
        for j in range(opt.D_kv): p1_load(j)
        stamp()
        a.fstamp('P1KV')
        def kv_issue(j, t):
            if t == 1:
                if j + opt.D_kv < 16:
                    p1_load(j + opt.D_kv)
                elif j + opt.D_kv == 16:
                    soff(S_T0, ST_OFF)
                    a.vmem(f'buffer_load_dwordx4 v[{D1}:{D1+3}], v{V_STB}, {WS}, s{S_T0} offen sc1', 'st')
                    a.vmem(f'buffer_load_dwordx4 v[{D1+4}:{D1+7}], v{V_STB}, {WS}, s{S_T0} offen offset:512 sc1', 'st')
                    a.vmem(f'buffer_load_dwordx4 v[{D2}:{D2+3}], v{V_STB}, {WS}, s{S_T0} offen offset:256 sc1', 'st')
                    a.vmem(f'buffer_load_dwordx4 v[{D2+4}:{D2+7}], v{V_STB}, {WS}, s{S_T0} offen offset:768 sc1', 'st')
        emit_gemm16(a, bar, 'P1KV', slabs['P1KV'], 4, '128',
                    acc_of=lambda r, t: V_ACC + (r * 4 + t) * 4, a_of=lambda r, j: V_A + (r * 16 + j) * 4,
                    a_wait=lambda j: a.count_vm(('A', j)), a_issue=kv_issue, wr=WR1, S=5, normal=True)
        a.e(f's_branch {ljoin}')
        a.label(l0)
        evq[:] = saved_ev
        a.vm = []
        fs[0] = 0
        cnt_[0] = 0
        a.fstamp('P1KV')
        tm[0] -= 1 if opt.timing else 0
        stamp()
        VLA = V_X
        a.e(f'v_and_b32 v{T0}, 15, v{V_LANE}')
        a.e(f'v_lshrrev_b32 v{T1}, 4, v{V_LANE}')
        a.e(f'v_xor_b32 v{T1}, v{T1}, v{T0}')
        a.e(f'v_lshlrev_b32 v{T1}, 4, v{T1}')
        a.e(f's_lshl_b32 s{S_T0}, s{S_W}, 5')
        a.e(f'v_add_u32 v{T0}, s{S_T0}, v{T0}')
        a.e(f'v_lshlrev_b32 v{T0}, 8, v{T0}')
        for j in range(4):
            a.e(f'v_xor_b32 v{VLA+j}, {64*j}, v{T1}')
            a.e(f'v_add_u32 v{VLA+j}, v{VLA+j}, v{T0}')
        def kv_lds(j):
            c = j // 4
            return [f'ds_read_b128 v[{V_A+(r*16+j)*4}:{V_A+(r*16+j)*4+3}], v{VLA + j % 4} offset:{AREG + (c & 1) * 32768 + r * 4096}' for r in range(2)]
        def kv_extra(j):
            for r in range(2):
                x = f'v[{V_A+(r*16+j)*4}:{V_A+(r*16+j)*4+3}]'
                c1_ = '0' if j == 0 else f'v[{D1+4*r}:{D1+4*r+3}]'
                c2_ = '0' if j == 0 else f'v[{D2+4*r}:{D2+4*r+3}]'
                a.e(f'v_mfma_f32_16x16x32_bf16 v[{D1+4*r}:{D1+4*r+3}], v[{ONES}:{ONES+3}], {x}, {c1_}')
                a.e(f'v_mfma_f32_16x16x32_bf16 v[{D2+4*r}:{D2+4*r+3}], {x}, {x}, {c2_}')
        emit_gemm16(a, bar, 'P1KV', slabs['P1KV'], 4, '128',
                    acc_of=lambda r, t: V_ACC + (r * 4 + t) * 4, a_of=lambda r, j: V_A + (r * 16 + j) * 4,
                    a_wait=lambda j: None, a_issue=lambda j, t: None, wr=WR1, S=5, normal=True, extra=kv_extra, a_lds=kv_lds)
        a.label(ljoin)
        stamp()
        a.wait_vm_all()
        SUM = [(V_X, V_X + 1), (V_X + 2, V_X + 3)]
        l1 = a.newlabel('S1'); le = a.newlabel('SE')
        a.e(f's_cmp_eq_u32 s{S_L}, 0')
        a.e(f's_cbranch_scc0 {l1}')
        a.e(f'v_and_b32 v{T0}, 31, v{V_LANE}')
        a.e(f'v_lshlrev_b32 v{T0}, 7, v{T0}')
        a.e(f'v_lshrrev_b32 v{T1}, 5, v{V_LANE}')
        a.e(f'v_lshl_add_u32 v{T0}, v{T1}, 3, v{T0}')
        a.e(f's_lshl_b32 s{S_T0}, s{S_RH}, 12')
        a.e(f's_lshl_b32 s{S_T1}, s{S_CH}, 6')
        a.e(f's_add_u32 s{S_T0}, s{S_T0}, s{S_T1}')
        if AREG: a.e(f's_add_u32 s{S_T0}, s{S_T0}, {hex(AREG)}')
        a.e(f'v_add_u32 v{T0}, s{S_T0}, v{T0}')
        for j in range(4):
            a.e(f'ds_read_b64 v[{V_RES+4*j}:{V_RES+4*j+1}], v{T0} offset:{16*j}')
        a.e('s_waitcnt lgkmcnt(0)')
        for j in range(4):
            b = V_RES + 4 * j
            a.e(f'v_and_b32 v{b+3}, 0xffff0000, v{b+1}')
            a.e(f'v_lshlrev_b32 v{b+2}, 16, v{b+1}')
            a.e(f'v_and_b32 v{b+1}, 0xffff0000, v{b}')
            a.e(f'v_lshlrev_b32 v{b}, 16, v{b}')
        a.e(f'v_and_b32 v{T0}, 3, v{V_LANE}')
        a.e(f'v_bfe_u32 v{T1}, v{V_LANE}, 2, 2')
        a.e(f'v_lshrrev_b32 v{T2}, 4, v{V_LANE}')
        for r in range(2):
            s_, ss_ = SUM[r]
            a.e(f'v_mov_b32 v{s_}, v{D1+4*r}')
            a.e(f'v_mov_b32 v{ss_}, v{D2+4*r}')
            for i in range(1, 4):
                a.e(f'v_cmp_eq_u32 vcc, {i}, v{T0}')
                a.e('s_nop 1')
                a.e(f'v_cndmask_b32 v{ss_}, v{ss_}, v{D2+4*r+i}, vcc')
            a.e(f'v_cmp_eq_u32 vcc, v{T1}, v{T2}')
            a.e('s_nop 1')
            a.e(f'v_cndmask_b32 v{ss_}, 0, v{ss_}, vcc')
        emit_xreduce(a, [SUM[0][1], SUM[1][1]], [T0, T1])
        a.e(f's_branch {le}')
        a.label(l1)
        for r, raw in enumerate([D1, D2]):
            emit_sum_partials(a, raw, 8)
            a.e(f'v_mov_b32 v{SUM[r][0]}, v{raw}')
            a.e(f'v_mov_b32 v{SUM[r][1]}, v{raw+1}')
        emit_xreduce(a, [SUM[0][0], SUM[0][1], SUM[1][0], SUM[1][1]], [WR1, WR1 + 1, WR1 + 2, WR1 + 3])
        a.label(le)
        CSR = 120
        a.e(f'v_and_b32 v{T0}, 15, v{V_LANE}')
        a.e(f'v_lshlrev_b32 v{T0}, 2, v{T0}')
        a.e(f'v_add_u32 v{T0}, {hex(CSC)}, v{T0}')
        a.e(f'v_and_b32 v{T1}, 0x30, v{V_LANE}')
        for t in range(4):
            a.e(f'ds_read_b32 v{CSR+t}, v{T0} offset:{64*t}')
        KEEP = [(V_PQ + 0, V_PQ + 2), (V_PQ + 4, V_PQ + 6)]
        for r in range(2):
            emit_stats_from_sums(a, SUM[r][0], SUM[r][1], KEEP[r][0], KEEP[r][1], WR1)
        AI = [WR1, WR1 + 8]; BI = [WR1 + 4, WR1 + 12]
        for r in range(2):
            for i in range(4):
                a.e(f'ds_bpermute_b32 v{AI[r]+i}, v{T1}, v{KEEP[r][0]} offset:{4*i}')
                a.e(f'ds_bpermute_b32 v{BI[r]+i}, v{T1}, v{KEEP[r][1]} offset:{4*i}')
        a.e('s_waitcnt vmcnt(0) lgkmcnt(0)'); a.vm = []
        CSE = WR1 + 16
        for t in range(4): a.e(f'v_mov_b32 v{CSE+2*t}, v{CSR+t}')
        for r in range(2):
            for t in range(4):
                for i in (0, 2):
                    d = V_ACC + (r * 4 + t) * 4 + i
                    a.e(pk('mul', d, vp(d), vp(AI[r] + i)))
            for t in range(4):
                for i in (0, 2):
                    d = V_ACC + (r * 4 + t) * 4 + i
                    a.e(pk('fma', d, vp(BI[r] + i), vp(CSE + 2 * t), vp(d), mods=' op_sel_hi:[1,0,1]'))
        regs = [V_ACC + (r * 4 + t) * 4 + i for r in range(2) for t in range(2) for i in range(4)]
        emit_phi(a, regs, WR1)
        for t in range(4):
            b0 = V_ACC + t * 4; b1 = V_ACC + (4 + t) * 4
            a.e(f'v_cvt_pk_bf16_f32 v{b0}, v{b0}, v{b0+1}')
            a.e(f'v_cvt_pk_bf16_f32 v{b0+1}, v{b0+2}, v{b0+3}')
            a.e(f'v_cvt_pk_bf16_f32 v{b0+2}, v{b1}, v{b1+1}')
            a.e(f'v_cvt_pk_bf16_f32 v{b0+3}, v{b1+2}, v{b1+3}')
        a.e('s_nop 1')
        KVD = V_ACC + 16
        for h in range(2):
            a.e(f'v_mfma_f32_16x16x32_bf16 v[{KVD+4*h}:{KVD+4*h+3}], v[{V_ACC+4*h}:{V_ACC+4*h+3}], v[{V_ACC+8+4*h}:{V_ACC+8+4*h+3}], 0')
            a.e(f'v_mfma_f32_16x16x32_bf16 v[{KVD+8+4*h}:{KVD+8+4*h+3}], v[{V_ACC+4*h}:{V_ACC+4*h+3}], v[{ONES}:{ONES+3}], 0')
        a.e(f's_lshl_b32 s{S_T0}, s{S_W}, 11')
        a.e(f's_add_u32 s{S_T0}, s{S_T0}, {hex(SCR)}')
        a.e(f'v_lshlrev_b32 v{T0}, 4, v{V_LANE}')
        a.e(f'v_add_u32 v{T0}, s{S_T0}, v{T0}')
        a.e(f's_lshl_b32 s{S_T0}, s{S_W}, 7')
        a.e(f's_add_u32 s{S_T0}, s{S_T0}, {hex(SCR + 8192)}')
        a.e(f'v_add_u32 v{T2}, s{S_T0}, v{T1}')
        a.e('s_nop 4')
        a.e(f'ds_write_b128 v{T0}, v[{KVD}:{KVD+3}]')
        a.e(f'ds_write_b128 v{T0}, v[{KVD+4}:{KVD+7}] offset:1024')
        set_exec(a, 0x00010001)
        a.e(f'ds_write_b128 v{T2}, v[{KVD+8}:{KVD+11}]')
        a.e(f'ds_write_b128 v{T2}, v[{KVD+12}:{KVD+15}] offset:64')
        a.e('s_mov_b64 exec, -1')
        a.e('s_waitcnt lgkmcnt(0)')
        bar(('X', 'X1'))
        sk = a.newlabel('KVST')
        byp = opt.kv_by_parker and opt.park and opt.kv_atomic
        if byp: a.e(f's_branch {sk}')
        a.e(f's_cmp_lt_u32 s{S_W}, 2')
        a.e(f's_cbranch_scc0 {sk}')
        if opt.kv_atomic:
            a.e(f's_lshl_b32 s{S_T0}, s{S_W}, 10')
            a.e(f's_add_u32 s{S_T0}, s{S_T0}, {hex(SCR)}')
            a.e(f'v_lshlrev_b32 v{T0}, 2, v{V_LANE}')
            a.e(f'v_add_u32 v{T2}, s{S_T0}, v{T0}')
            a.e(f's_lshl_b32 s{S_T0}, s{S_W}, 6')
            a.e(f's_add_u32 s{S_T0}, s{S_T0}, {hex(SCR + 8192)}')
            a.e(f'v_add_u32 v{V_X}, s{S_T0}, v{T0}')
            KB = V_ACC
            for ww in range(4):
                for i in range(4):
                    a.e(f'ds_read_b32 v{KB+4*ww+i}, v{T2} offset:{ww*2048+256*i}')
                if ww == 2: a.e('s_waitcnt lgkmcnt(4)')
            for ww in range(4):
                a.e(f'ds_read_b32 v{KB+16+ww}, v{V_X} offset:{ww*128}')
            a.e(f's_mul_i32 s{S_T0}, s{S_CB2}, {KVREC}')
            a.e(f's_mul_i32 s{S_T1}, s{S_L}, {16*KVREC}')
            a.e(f's_add_u32 s{S_T0}, s{S_T0}, s{S_T1}')
            a.e(f's_add_u32 s{S_T0}, s{S_T0}, {hex(KVA_OFF)}')
            a.e(f's_lshl_b32 s{S_T1}, s{S_W}, 10')
            a.e(f's_add_u32 s{S_T1}, s{S_T1}, s{S_T0}')
            a.e(f's_lshl_b32 s{S_T2}, s{S_W}, 6')
            a.e(f's_add_u32 s{S_T2}, s{S_T2}, s{S_T0}')
            a.e(f's_add_u32 s{S_T2}, s{S_T2}, 2048')
            a.e('s_waitcnt lgkmcnt(0)')
            for i in (0, 2):
                a.e(pk('add', KB + i, vp(KB + i), vp(KB + 4 + i)))
                a.e(pk('add', KB + 8 + i, vp(KB + 8 + i), vp(KB + 12 + i)))
                a.e(pk('add', KB + i, vp(KB + i), vp(KB + 8 + i)))
            a.e(pk('add', KB + 16, vp(KB + 16), vp(KB + 18)))
            a.e(f'v_add_f32 v{KB+16}, v{KB+16}, v{KB+17}')
            for i in range(4):
                a.e(f'buffer_atomic_add_f32 v{KB+i}, v{T0}, {WS}, s{S_T1} offen offset:{256*i}')
            a.e('s_mov_b64 exec, 0xffff')
            a.e(f'buffer_atomic_add_f32 v{KB+16}, v{T0}, {WS}, s{S_T2} offen')
            a.e('s_mov_b64 exec, -1')
        else:
            a.e(f's_lshl_b32 s{S_T0}, s{S_W}, 10')
            a.e(f's_add_u32 s{S_T0}, s{S_T0}, {hex(SCR)}')
            a.e(f'v_lshlrev_b32 v{T0}, 4, v{V_LANE}')
            a.e(f'v_add_u32 v{T2}, s{S_T0}, v{T0}')
            a.e(f's_lshl_b32 s{S_T0}, s{S_W}, 6')
            a.e(f's_add_u32 s{S_T0}, s{S_T0}, {hex(SCR + 8192)}')
            a.e(f'v_add_u32 v{V_X}, s{S_T0}, v{T1}')
            KB = V_ACC
            for ww in range(4):
                a.e(f'ds_read_b128 v[{KB+4*ww}:{KB+4*ww+3}], v{T2} offset:{ww*2048}')
                a.e(f'ds_read_b128 v[{KB+16+4*ww}:{KB+16+4*ww+3}], v{V_X} offset:{ww*128}')
            a.e(f's_lshl_b32 s{S_T0}, s{S_CB2}, 4')
            a.e(f's_lshl_b32 s{S_T1}, s{S_G}, 1')
            a.e(f's_add_u32 s{S_T0}, s{S_T0}, s{S_T1}')
            a.e(f's_add_u32 s{S_T0}, s{S_T0}, s{S_RB2}')
            a.e(f's_mul_i32 s{S_T0}, s{S_T0}, {KVREC}')
            a.e(f's_add_u32 s{S_T0}, s{S_T0}, s{S_LOFF}')
            a.e(f's_add_u32 s{S_T0}, s{S_T0}, {hex(KVP_OFF)}')
            a.e(f's_lshl_b32 s{S_T1}, s{S_W}, 10')
            a.e(f's_add_u32 s{S_T1}, s{S_T1}, s{S_T0}')
            a.e(f's_lshl_b32 s{S_T2}, s{S_W}, 6')
            a.e(f's_add_u32 s{S_T2}, s{S_T2}, s{S_T0}')
            a.e(f's_add_u32 s{S_T2}, s{S_T2}, 2048')
            a.e('s_waitcnt lgkmcnt(0)')
            for base in (KB, KB + 16):
                for i in range(0, 4, 2):
                    a.e(pk('add', base + i, vp(base + i), vp(base + 4 + i)))
                    a.e(pk('add', base + 8 + i, vp(base + 8 + i), vp(base + 12 + i)))
                    a.e(pk('add', base + i, vp(base + i), vp(base + 8 + i)))
            a.e(f'buffer_store_dwordx4 v[{KB}:{KB+3}], v{T0}, {WS}, s{S_T1} offen sc1')
            set_exec(a, 0x00010001)
            a.e(f'buffer_store_dwordx4 v[{KB+16}:{KB+19}], v{T1}, {WS}, s{S_T2} offen sc1')
            a.e('s_mov_b64 exec, -1')
        a.e(f's_lshl_b32 s{S_T0}, s{S_L}, 11')
        a.e(f's_lshl_b32 s{S_T1}, s{S_CB2}, 7')
        a.e(f's_add_u32 s{S_T0}, s{S_T0}, s{S_T1}')
        a.e(f's_lshl_b32 s{S_T1}, s{S_W}, 6')
        a.e(f's_add_u32 s{S_T0}, s{S_T0}, s{S_T1}')
        a.e(f's_lshl_b32 s{S_T1}, s{S_G}, 3')
        a.e(f's_add_u32 s{S_T0}, s{S_T0}, s{S_T1}')
        a.e(f's_lshl_b32 s{S_T1}, s{S_RB2}, 2')
        a.e(f's_add_u32 s{S_T0}, s{S_T0}, s{S_T1}')
        a.e(f's_add_u32 s{S_T0}, s{S_T0}, {hex(KVF_OFF)}')
        a.e(f'v_mov_b32 v{V_X+4}, s{S_T0}')
        a.label(sk)
        a.vm = []
        stamp()
        if done('P1KV'): return True

        a.c('=== P1Q')
        QCS = V_ACC + 16
        a.e(f'v_and_b32 v{T1}, 0x30, v{V_LANE}')
        a.e(f'v_add_u32 v{T1}, {hex(CSC + 256)}, v{T1}')
        a.e(f'ds_read_b128 v[{QCS}:{QCS+3}], v{T1}')
        a.e(f'ds_read_b128 v[{QCS+4}:{QCS+7}], v{T1} offset:64')
        a.e('s_waitcnt lgkmcnt(0)')
        QAB = [(V_ACC + 24, V_ACC + 26), (V_ACC + 28, V_ACC + 30)]
        for r in range(2):
            a.e(f'v_mov_b32 v{QAB[r][0]}, v{KEEP[r][0]}')
            a.e(f'v_mov_b32 v{QAB[r][1]}, v{KEEP[r][1]}')
        def q_issue(j, t):
            if j == opt.kvflag_at and t == 1 and not byp:
                fk = a.newlabel('KVFL')
                a.e(f's_cmp_lt_u32 s{S_W}, 2')
                a.e(f's_cbranch_scc0 {fk}')
                thr_value(a, S_THR, 1, xcc=True)
                a.e(f'v_mov_b32 v{V_X+5}, s{S_THR}')
                a.e('s_waitcnt vmcnt(0)')
                a.e('s_mov_b64 exec, 1')
                a.e(f'buffer_store_dword v{V_X+5}, v{V_X+4}, {WS}, 0 offen sc1')
                a.e('s_mov_b64 exec, -1')
                a.label(fk)
        emit_gemm16(a, bar, 'P1Q', slabs['P1Q'], 2, '64',
                    acc_of=lambda r, t: V_ACC + (r * 2 + t) * 4, a_of=lambda r, j: V_A + (r * 16 + j) * 4,
                    a_wait=lambda j: None, a_issue=q_issue, wr=96, S=8)
        for r in range(2):
            for t in range(2):
                emit_lnfold(a, V_ACC + (r * 2 + t) * 4, QCS + 4 * t, QAB[r][0], QAB[r][1], 4)
        emit_phi(a, [V_ACC + i for i in range(16)], 96)
        for r in range(2):
            for h in range(2):
                emit_pack(a, V_PQ + (r * 2 + h) * 2, V_ACC + (r * 2 + h) * 4, 4)
        stamp()
        sk = a.newlabel('MODE')
        a.e(f's_cmp_eq_u32 s{S_L}, 0')
        a.e(f's_cbranch_scc0 {sk}')
        a.e(f'v_and_b32 v{T1}, 31, v{V_LANE}')
        a.e(f'v_lshlrev_b32 v{T1}, 2, v{T1}')
        a.e(f's_lshl_b32 s{S_T0}, s{S_G}, 7')
        a.e(f's_add_u32 s{S_T0}, s{S_T0}, {hex(XID_OFF)}')
        emit_poll(a, T1, 0, soff=f's{S_T0}', opt=opt)
        a.e(f'v_and_b32 v{T2}, 7, v{T2}')
        a.e(f'v_cmp_eq_u32 vcc, s{S_XCC}, v{T2}')
        a.e('s_nop 1')
        a.e('s_cmp_eq_u64 vcc, -1')
        a.e(f's_cselect_b32 s{S_MODE}, 0, 1')
        if opt.force_safe: a.e(f's_mov_b32 s{S_MODE}, 1')
        a.label(sk)
        a.e(f's_lshl_b32 s{S_T0}, s{S_L}, 11')
        emit_poll(a, V_FKV, 1, soff=f's{S_T0}', opt=opt)
        stamp()
        RB = V_A + 64
        if opt.kv_atomic:
            a.e(f's_mul_i32 s{S_T0}, s{S_CB2}, {KVREC}')
            a.e(f's_mul_i32 s{S_T1}, s{S_L}, {16*KVREC}')
            a.e(f's_add_u32 s{S_T0}, s{S_T0}, s{S_T1}')
            a.e(f's_add_u32 s{S_T0}, s{S_T0}, {hex(KVA_OFF)}')
            a.e(f'v_lshlrev_b32 v{T0}, 4, v{V_LANE}')
            a.e(f'v_and_b32 v{T1}, 0x30, v{V_LANE}')
            a.vmem(f'buffer_load_dwordx4 v[{RB}:{RB+3}], v{T0}, {WS}, s{S_T0} offen sc1', 'kp')
            a.vmem(f'buffer_load_dwordx4 v[{RB+4}:{RB+7}], v{T0}, {WS}, s{S_T0} offen offset:1024 sc1', 'kp')
            a.vmem(f'buffer_load_dwordx4 v[{RB+8}:{RB+11}], v{T1}, {WS}, s{S_T0} offen offset:2048 sc1', 'kp')
            a.vmem(f'buffer_load_dwordx4 v[{RB+12}:{RB+15}], v{T1}, {WS}, s{S_T0} offen offset:2112 sc1', 'kp')
            a.wait_vm_all()
        else:
            a.e(f's_lshl_b32 s{S_T0}, s{S_CB2}, 4')
            a.e(f's_lshl_b32 s{S_T1}, s{S_W}, 2')
            a.e(f's_add_u32 s{S_T0}, s{S_T0}, s{S_T1}')
            a.e(f's_mul_i32 s{S_T0}, s{S_T0}, {KVREC}')
            a.e(f's_add_u32 s{S_T0}, s{S_T0}, s{S_LOFF}')
            a.e(f's_add_u32 s{S_T0}, s{S_T0}, {hex(KVP_OFF)}')
            a.e(f'v_lshlrev_b32 v{T0}, 4, v{V_LANE}')
            a.e(f'v_and_b32 v{T1}, 0x30, v{V_LANE}')
            PB = V_A
            for s4 in range(4):
                b = PB + 16 * s4
                a.vmem(f'buffer_load_dwordx4 v[{b}:{b+3}], v{T0}, {WS}, s{S_T0} offen sc1', 'kp')
                a.vmem(f'buffer_load_dwordx4 v[{b+4}:{b+7}], v{T0}, {WS}, s{S_T0} offen offset:1024 sc1', 'kp')
                a.vmem(f'buffer_load_dwordx4 v[{b+8}:{b+11}], v{T1}, {WS}, s{S_T0} offen offset:2048 sc1', 'kp')
                a.vmem(f'buffer_load_dwordx4 v[{b+12}:{b+15}], v{T1}, {WS}, s{S_T0} offen offset:2112 sc1', 'kp')
                if s4 < 3: a.e(f's_add_u32 s{S_T0}, s{S_T0}, {KVREC}')
            a.e(f's_lshl_b32 s{S_T0}, s{S_W}, 11')
            a.e(f's_add_u32 s{S_T0}, s{S_T0}, {hex(SCR)}')
            a.e(f'v_add_u32 v{T0}, s{S_T0}, v{T0}')
            a.e(f's_lshl_b32 s{S_T0}, s{S_W}, 7')
            a.e(f's_add_u32 s{S_T0}, s{S_T0}, {hex(SCR + 8192)}')
            a.e(f'v_add_u32 v{T2}, s{S_T0}, v{T1}')
            a.wait_vm_all()
            for i in range(0, 16, 2):
                a.e(pk('add', PB + i, vp(PB + i), vp(PB + 16 + i)))
                a.e(pk('add', PB + 32 + i, vp(PB + 32 + i), vp(PB + 48 + i)))
            for i in range(0, 16, 2):
                a.e(pk('add', PB + i, vp(PB + i), vp(PB + 32 + i)))
            a.e(f'ds_write_b128 v{T0}, v[{PB}:{PB+3}]')
            a.e(f'ds_write_b128 v{T0}, v[{PB+4}:{PB+7}] offset:1024')
            set_exec(a, 0x00010001)
            a.e(f'ds_write_b128 v{T2}, v[{PB+8}:{PB+11}]')
            a.e(f'ds_write_b128 v{T2}, v[{PB+12}:{PB+15}] offset:64')
            a.e('s_mov_b64 exec, -1')
            a.e(f'v_lshlrev_b32 v{T0}, 4, v{V_LANE}')
            a.e(f'v_add_u32 v{T0}, {hex(SCR)}, v{T0}')
            a.e(f'v_add_u32 v{T2}, {hex(SCR + 8192)}, v{T1}')
            a.e('s_waitcnt lgkmcnt(0)')
            bar(('X', 'X2'))
            for ww in range(4):
                b = RB + 16 * ww
                a.e(f'ds_read_b128 v[{b}:{b+3}], v{T0} offset:{ww*2048}')
                a.e(f'ds_read_b128 v[{b+4}:{b+7}], v{T0} offset:{ww*2048+1024}')
                a.e(f'ds_read_b128 v[{b+8}:{b+11}], v{T2} offset:{ww*128}')
                a.e(f'ds_read_b128 v[{b+12}:{b+15}], v{T2} offset:{ww*128+64}')
                if ww == 2: a.e('s_waitcnt lgkmcnt(8)')
            a.e('s_waitcnt lgkmcnt(0)')
            for i in range(0, 16, 2):
                a.e(pk('add', RB + i, vp(RB + i), vp(RB + 16 + i)))
                a.e(pk('add', RB + 32 + i, vp(RB + 32 + i), vp(RB + 48 + i)))
            for i in range(0, 16, 2):
                a.e(pk('add', RB + i, vp(RB + i), vp(RB + 32 + i)))
        OPB = V_ACC + 16
        emit_pack(a, OPB, RB, 16)
        a.e('s_nop 1')
        NUM = V_A; DEN = V_A + 16
        for r in range(2):
            for h in range(2):
                pq = V_PQ + (r * 2 + h) * 2
                n_ = NUM + (r * 2 + h) * 4; d_ = DEN + (r * 2 + h) * 4
                a.e(f'v_mfma_f32_16x16x16_bf16 v[{n_}:{n_+3}], v[{OPB+2*h}:{OPB+2*h+1}], v[{pq}:{pq+1}], 0')
                a.e(f'v_mfma_f32_16x16x16_bf16 v[{d_}:{d_+3}], v[{OPB+4+2*h}:{OPB+4+2*h+1}], v[{pq}:{pq+1}], 0')
        a.e(f's_lshl_b32 s{S_T0}, s{S_CB2}, 10')
        a.e(f's_add_u32 s{S_T0}, s{S_T0}, s{S_GH}')
        a.e(f's_add_u32 s{S_T1}, s{S_T0}, 0x4000')
        a.e('s_nop 4')
        for k in range(4): a.e(f'v_add_f32 v{DEN+4*k}, s{S_EPS6}, v{DEN+4*k}')
        for k in range(4): a.e(f'v_rcp_f32 v{DEN+4*k}, v{DEN+4*k}')
        a.e('s_nop 0')
        for k in range(4):
            for i in range(4): a.e(f'v_mul_f32 v{NUM+4*k+i}, v{NUM+4*k+i}, v{DEN+4*k}')
        OPK = V_A + 32
        emit_pack(a, OPK, NUM, 16)
        emit_mode_stores(a, [f'buffer_store_dwordx4 v[{OPK}:{OPK+3}], v{V_AB}, {WS}, s{S_T0} offen',
                             f'buffer_store_dwordx4 v[{OPK+4}:{OPK+7}], v{V_AB}, {WS}, s{S_T1} offen'], cold=True)
        emit_signal(a, ep(1))
        stamp()
        if done('P1Q'): return True

        ACC = V_ACC; WR = 80; TMP = V_A
        def small_gemm(phase, tail=None):
            a.fstamp(phase)
            emit_gemm32(a, bar, phase, slabs[phase], ACC, WR, tail=tail)
        def tile_store(pkb, base, gh=False, cold=False):
            soff(S_T0, base, gh=gh)
            emit_mode_stores(a, [f'buffer_store_dwordx4 v[{pkb}:{pkb+3}], v{V_TST}, {WS}, s{S_T0} offen',
                                 f'buffer_store_dwordx4 v[{pkb+4}:{pkb+7}], v{V_TST}, {WS}, s{S_T0} offen offset:512'], cold=cold)

        a.c('=== P3')
        stamp()
        small_gemm('P3')
        stamp()
        for i in range(0, 16, 2): a.e(pk('add', V_RES + i, vp(V_RES + i), vp(ACC + i)))
        emit_pack32(a, TMP, V_RES)
        tile_store(TMP, A1_OFF, cold=True)
        soff(S_T1, ST_OFF)
        emit_stats_partial32(a, V_RES, TMP + 8, f's{S_T1}', cold=True)
        emit_signal(a, ep(2))
        stamp()
        if done('P3'): return True

        a.c('=== P4')
        CS4 = TMP + 16; RAW = TMP + 32
        a.e(f'v_lshrrev_b32 v{T1}, 5, v{V_LANE}')
        a.e(f'v_lshlrev_b32 v{T1}, 4, v{T1}')
        a.e(f's_lshl_b32 s{S_T1}, s{S_CH}, 7')
        a.e(f's_add_u32 s{S_T1}, s{S_T1}, {hex(CSC + 384)}')
        a.e(f'v_add_u32 v{T1}, s{S_T1}, v{T1}')
        for j in range(4):
            a.e(f'ds_read_b128 v[{CS4+4*j}:{CS4+4*j+3}], v{T1} offset:{32*j}')
        a.e('s_waitcnt lgkmcnt(0)')
        stamp()
        def p4_tail():
            soff(S_T0, ST_OFF)
            for k in range(4):
                a.vmem(f'buffer_load_dwordx4 v[{RAW+4*k}:{RAW+4*k+3}], v{V_STS}, {WS}, s{S_T0} offen offset:{512*k} sc1', 'st')
        small_gemm('P4', tail=p4_tail)
        stamp()
        a.wait_vm_all()
        emit_sum_partials(a, RAW, 16)
        emit_xreduce(a, [RAW, RAW + 1], [RAW + 2, RAW + 3], over16=False)
        emit_stats_from_sums(a, RAW, RAW + 1, RAW + 4, RAW + 6, RAW + 8, double=True, keep=(V_MEAN, V_RS))
        emit_lnfold(a, ACC, CS4, RAW + 4, RAW + 6, 16)
        emit_gelu(a, ACC, 16, TMP + 48, V_PQ)
        emit_pack32(a, TMP, ACC)
        tile_store(TMP, A0_OFF, gh=True)
        gl = a.newlabel('GH'); gu = a.newlabel('GH'); gd = a.newlabel('GH')
        a.e(f's_cmp_eq_u32 s{S_RB}, 3')
        a.e(f's_cbranch_scc0 {gu}')
        a.e(f's_cmp_eq_u32 s{S_RH}, 1')
        a.e(f's_cbranch_scc0 {gd}')
        a.e(f's_bitcmp1_b32 s{S_CB}, 1')
        a.e(f's_cbranch_scc1 {gd}')
        a.e(f's_cmp_eq_u32 s{S_G}, 7')
        a.e(f's_cbranch_scc1 {gd}')
        a.e(f's_add_u32 s{S_T1}, s{S_G}, 1')
        a.e(f's_mul_i32 s{S_T2}, s{S_T1}, {18*16384}')
        a.e(f's_lshl_b32 s{S_T3}, s{S_T1}, 8')
        set_exec(a, 0xc0000000)
        a.e(f's_branch {gl}')
        a.label(gu)
        a.e(f's_cmp_eq_u32 s{S_RB}, 0')
        a.e(f's_cbranch_scc0 {gd}')
        a.e(f's_cmp_eq_u32 s{S_RH}, 0')
        a.e(f's_cbranch_scc0 {gd}')
        a.e(f's_bitcmp1_b32 s{S_CB}, 1')
        a.e(f's_cbranch_scc0 {gd}')
        a.e(f's_cmp_eq_u32 s{S_G}, 0')
        a.e(f's_cbranch_scc1 {gd}')
        a.e(f's_sub_u32 s{S_T1}, s{S_G}, 1')
        a.e(f's_mul_i32 s{S_T2}, s{S_T1}, {18*16384}')
        a.e(f's_add_u32 s{S_T2}, s{S_T2}, {17*16384}')
        a.e(f's_lshl_b32 s{S_T3}, s{S_T1}, 8')
        a.e(f's_add_u32 s{S_T3}, s{S_T3}, 128')
        set_exec(a, 0x00000003)
        a.label(gl)
        a.e(f's_lshl_b32 s{S_T0}, s{S_CB}, 1')
        a.e(f's_add_u32 s{S_T0}, s{S_T0}, s{S_CH}')
        a.e(f's_lshl_b32 s{S_T0}, s{S_T0}, 10')
        a.e(f's_add_u32 s{S_T2}, s{S_T2}, s{S_T0}')
        a.e(f'v_and_b32 v{T0}, 0x3fff, v{V_TST}')
        a.e(f'v_and_b32 v{T0}, 0x3ff, v{T0}')
        a.e(f'buffer_store_dwordx4 v[{TMP}:{TMP+3}], v{T0}, {WS}, s{S_T2} offen sc1')
        a.e(f'buffer_store_dwordx4 v[{TMP+4}:{TMP+7}], v{T0}, {WS}, s{S_T2} offen offset:512 sc1')
        a.e('s_mov_b64 exec, -1')
        a.e(f's_and_b32 s{S_T0}, s{S_CB}, 1')
        a.e(f's_lshr_b32 s{S_T1}, s{S_CB}, 2')
        a.e(f's_lshl_b32 s{S_T1}, s{S_T1}, 1')
        a.e(f's_add_u32 s{S_T0}, s{S_T0}, s{S_T1}')
        a.e(f's_lshl_b32 s{S_T0}, s{S_T0}, 1')
        a.e(f's_add_u32 s{S_T0}, s{S_T0}, s{S_CH}')
        a.e(f's_lshl_b32 s{S_T0}, s{S_T0}, 2')
        a.e(f's_add_u32 s{S_T3}, s{S_T3}, s{S_T0}')
        a.e(f's_lshl_b32 s{S_T0}, s{S_L}, 11')
        a.e(f's_add_u32 s{S_T3}, s{S_T3}, s{S_T0}')
        a.e(f's_add_u32 s{S_T3}, s{S_T3}, {hex(HF_OFF)}')
        thr_value(a, S_THR, ep(3), xcc=True)
        a.e(f'v_mov_b32 v{T0}, s{S_T3}')
        a.e(f'v_mov_b32 v{T1}, s{S_THR}')
        a.e('s_waitcnt vmcnt(0)')
        a.e('s_mov_b64 exec, 1')
        a.e(f'buffer_store_dword v{T1}, v{T0}, {WS}, 0 offen sc1')
        a.e('s_mov_b64 exec, -1')
        a.label(gd)
        emit_signal(a, ep(3))
        stamp()
        if done('P4'): return True

        a.c('=== P5')
        stamp()
        small_gemm('P5')
        stamp()
        a.e(f'v_mul_f32 v{TMP+10}, v{V_MEAN}, v{V_RS}')
        a.e(f'v_sub_f32 v{TMP+10}, 0, v{TMP+10}')
        a.e(f'v_mov_b32 v{TMP+8}, v{V_RS}')
        for i in range(0, 16, 2):
            a.e(pk('fma', ACC + i, vp(V_RES + i), vp(TMP + 8), vp(ACC + i), mods=' op_sel_hi:[1,0,1]'))
        for i in range(0, 16, 2):
            a.e(pk('add', ACC + i, vp(ACC + i), vp(TMP + 10), mods=' op_sel_hi:[1,0]'))
        emit_pack32(a, TMP, ACC)
        tile_store(TMP, A1_OFF)
        soff(S_T1, ST_OFF)
        emit_stats_partial32(a, ACC, TMP + 12, f's{S_T1}')
        for i in range(0, 16, 2): a.e(pk('add', V_RES + i, vp(V_RES + i), vp(ACC + i)))
        emit_signal(a, ep(4))
        stamp()
        if done('P5'): return True

        a.c('=== P6')
        CS6 = V_ACC; ACC6 = 192; WR6 = 96
        a.e(f'v_and_b32 v{T1}, 0x30, v{V_LANE}')
        a.e(f'v_add_u32 v{T1}, {hex(CSC + 640)}, v{T1}')
        for t in range(7):
            a.e(f'ds_read_b128 v[{CS6+4*t}:{CS6+4*t+3}], v{T1} offset:{64*t}')
        a.e('s_waitcnt lgkmcnt(0)')
        for c in range(4):
            a.e(f's_lshl_b32 s{S_P7+c}, s{S_RB2}, {13 if opt.rot else 31}')
            if not opt.rot: a.e(f's_mov_b32 s{S_P7+c}, 0')
            a.e(f's_xor_b32 s{S_P7+c}, s{S_P7+c}, {hex(c * 4096)}')
            a.e(f's_add_u32 s{S_P7+c}, s{S_P7+c}, {hex(A1_OFF)}')
            a.e(f's_add_u32 s{S_P7+4+c}, s{S_P7+c}, 0x4000')
        emit_poll(a, V_FSB, ep(4), opt=opt)
        stamp()
        def p6_load(j):
            for r in range(2):
                d = V_A + ((j % 8) * 2 + r) * 4
                a.vmem(f'buffer_load_dwordx4 v[{d}:{d+3}], v{V_AB}, {WS}, s{S_P7 + 4 * r + j // 4} offen offset:{(j%4)*1024} sc1', ('A', j))
        RAW6 = [V_PQ, 248]
        def p6_issue(j, t):
            if t == 1:
                if j + opt.D_p6 < 16:
                    p6_load(j + opt.D_p6)
                elif j + opt.D_p6 == 16:
                    soff(S_T0, ST_OFF)
                    for r in range(2):
                        a.vmem(f'buffer_load_dwordx4 v[{RAW6[r]}:{RAW6[r]+3}], v{V_STB}, {WS}, s{S_T0} offen offset:{256*r} sc1', 'st')
                        a.vmem(f'buffer_load_dwordx4 v[{RAW6[r]+4}:{RAW6[r]+7}], v{V_STB}, {WS}, s{S_T0} offen offset:{256*r+512} sc1', 'st')
        a.fstamp('P6')
        for j in range(opt.D_p6): p6_load(j)
        emit_gemm16(a, bar, 'P6', slabs['P6'], 7, '224',
                    acc_of=lambda r, t: ACC6 + (r * 7 + t) * 4, a_of=lambda r, j: V_A + ((j % 8) * 2 + r) * 4,
                    a_wait=lambda j: a.count_vm(('A', j)), a_issue=p6_issue, wr=WR6, S=8)
        stamp()
        a.wait_vm_all()
        for r in range(2): emit_sum_partials(a, RAW6[r], 8)
        emit_xreduce(a, [RAW6[0], RAW6[0] + 1, RAW6[1], RAW6[1] + 1], [V_X, V_X + 1, V_X + 2, V_X + 3])
        AB6 = [(92, 94), (RAW6[1] + 4, RAW6[1] + 6)]
        for r in range(2):
            emit_stats_from_sums(a, RAW6[r], RAW6[r] + 1, AB6[r][0], AB6[r][1], V_X)
        a.e(f's_lshl_b32 s{S_T0}, s{S_G}, 4')
        a.e(f's_lshl_b32 s{S_T1}, s{S_RB2}, 3')
        a.e(f's_add_u32 s{S_T0}, s{S_T0}, s{S_T1}')
        a.e(f's_lshl_b32 s{S_T1}, s{S_W}, 1')
        a.e(f's_add_u32 s{S_T0}, s{S_T0}, s{S_T1}')
        a.e(f's_mul_i32 s{S_T0}, s{S_T0}, 57344')
        a.e(f's_lshr_b32 s{S_T1}, s{S_CB2}, 1')
        a.e(f's_mul_i32 s{S_T1}, s{S_T1}, 7168')
        a.e(f's_add_u32 s{S_T0}, s{S_T0}, s{S_T1}')
        a.e(f's_add_u32 s{S_T0}, s{S_T0}, {hex(G_OFF)}')
        a.e(f's_and_b32 s{S_T1}, s{S_CB2}, 1')
        a.e(f's_mul_i32 s{S_U0}, s{S_T1}, 3072')
        a.e(f's_add_u32 s{S_U0}, s{S_U0}, s{S_T0}')
        a.e(f's_add_u32 s{S_U1}, s{S_U0}, 57344')
        a.e(f's_lshl_b32 s{S_T1}, s{S_T1}, 3')
        a.e(f's_add_u32 s{S_U2}, s{S_T0}, s{S_T1}')
        a.e(f's_add_u32 s{S_U2}, s{S_U2}, 6144')
        a.e(f's_add_u32 s{S_U3}, s{S_U2}, 57344')
        a.e(f'v_lshlrev_b32 v{V_X+4}, 4, v{V_LANE}')
        for r in range(2):
            emit_lnfold(a, ACC6 + r * 28, CS6, AB6[r][0], AB6[r][1], 28)
            emit_gelu(a, ACC6 + r * 28, 28, V_A, V_PQ + 4)
            pkb = V_A + 16 + r * 16
            emit_pack(a, pkb, ACC6 + r * 28, 28)
            st = [f'buffer_store_dwordx4 v[{pkb+4*j}:{pkb+4*j+3}], v{V_X+4}, {WS}, s{S_U0+r} offen offset:{1024*j}' for j in range(3)]
            st.append(f'buffer_store_dwordx2 v[{pkb+12}:{pkb+13}], v{V_X+4}, {WS}, s{S_U2+r} offen')
            emit_mode_stores(a, st, cold=bool(opt.g_cold))
        emit_signal(a, ep(5))
        stamp()
        if done('P6'): return True

        a.c('=== P7')
        if opt.p7_self:
            VG, VF = V_A + 100, V_A + 101
            a.e(f's_lshl_b32 s{S_T0}, s{S_G}, 4'); a.e(f's_lshl_b32 s{S_T1}, s{S_RB}, 2'); a.e(f's_add_u32 s{S_T0}, s{S_T0}, s{S_T1}')
            a.e(f's_add_u32 s{S_T0}, s{S_T0}, s{S_W}'); a.e(f's_mul_i32 s{S_T0}, s{S_T0}, 57344')
            a.e(f'v_lshlrev_b32 v{VG}, 4, v{V_LANE}'); a.e(f'v_add_u32 v{VG}, s{S_T0}, v{VG}')
            for p_ in range(8):
                a.e(f's_and_b32 s{S_P7+p_}, s{S_RB}, {3 if opt.rot else 0}'); a.e(f's_lshl_b32 s{S_P7+p_}, s{S_P7+p_}, 1')
                a.e(f's_xor_b32 s{S_P7+p_}, s{S_P7+p_}, {p_}'); a.e(f's_mul_i32 s{S_P7+p_}, s{S_P7+p_}, 7168')
            a.e(f's_lshl_b32 s{S_T2}, s{S_G}, 9'); a.e(f's_add_u32 s{S_T2}, s{S_T2}, {hex(LF_OFF)}')
            a.e(f's_and_b32 s{S_T3}, s{S_RB}, 1'); a.e(f's_lshl_b32 s{S_T3}, s{S_T3}, 1'); a.e(f's_add_u32 s{S_T3}, s{S_T3}, s{S_RH}')
            a.e(f's_lshl_b32 s{S_T3}, s{S_T3}, 7'); a.e(f's_add_u32 s{S_T3}, s{S_T3}, s{S_T2}')
            a.e(f's_lshr_b32 s{S_T4}, s{S_RB}, 1'); a.e(f's_lshl_b32 s{S_T4}, s{S_T4}, 6'); a.e(f's_add_u32 s{S_T3}, s{S_T3}, s{S_T4}')
            a.e(f'v_and_b32 v{VF}, 15, v{V_LANE}'); a.e(f'v_lshlrev_b32 v{VF}, 2, v{VF}'); a.e(f'v_add_u32 v{VF}, s{S_T3}, v{VF}')
            a.e(f's_lshl_b32 s{S_T3}, s{S_R}, 2'); a.e(f's_add_u32 s{S_T3}, s{S_T3}, s{S_T2}')
            a.e(f'v_and_b32 v{T1}, 3, v{V_LANE}'); a.e(f'v_lshlrev_b32 v{T1}, 7, v{T1}'); a.e(f'v_add_u32 v{T1}, s{S_T3}, v{T1}')
            a.e(f'v_cmp_lt_u32 vcc, 15, v{V_LANE}'); a.e('s_nop 1'); a.e(f'v_cndmask_b32 v{VF}, v{VF}, v{T1}, vcc')
            emit_poll(a, VF, ep(5), opt=opt)
            stamp()
            def pieces7(c):
                state = {'last': None}
                def mk(k):
                    def f():
                        if k == 0: a.e(f's_add_u32 m0, s{S_W4K}, {hex(AREG + (c % 4) * 16384)}')
                        p_, i_ = divmod(4 * c + k, 7)
                        const = G_OFF + (i_ - k) * 1024
                        if state['last'] != (p_, const):
                            a.e(f's_add_u32 s{S_T0}, s{S_P7+p_}, {hex(const & 0xffffffff)}'); state['last'] = (p_, const)
                        a.vmem(f'buffer_load_dwordx4 v{VG}, {WS}, s{S_T0} offen offset:{k*1024} sc1 lds', ('A', c))
                    return f
                return [mk(k) for k in range(4)]
            emit_gemm32(a, bar, 'P7', slabs['P7'], ACC, WR, a_pieces=pieces7)
        else:
            stamp()
            small_gemm('P7')
        stamp()
        for i in range(0, 16, 2): a.e(pk('add', V_RES + i, vp(V_RES + i), vp(ACC + i)))
        emit_pack32(a, TMP, V_RES)
        return False

    stopped = run_layer()
    if not stopped:
        fin = a.newlabel('FIN'); TMP = V_A
        a.e(f's_cmp_eq_u32 s{S_L}, 1')
        a.e(f's_cbranch_scc1 {fin}')
        a.e(f's_mov_b32 s{S_T0}, {hex(A2_OFF)}')
        emit_mode_stores(a, [f'buffer_store_dwordx4 v[{TMP}:{TMP+3}], v{V_TST}, {WS}, s{S_T0} offen',
                             f'buffer_store_dwordx4 v[{TMP+4}:{TMP+7}], v{V_TST}, {WS}, s{S_T0} offen offset:512'], cold=True)
        a.e(f's_mov_b32 s{S_T1}, {hex(ST_OFF)}')
        emit_stats_partial32(a, V_RES, TMP + 8, f's{S_T1}')
        a.e(f's_add_u32 s{S_EP}, s{S_EP}, 6')
        emit_signal(a, f's{S_EP}')
        if opt.timing:
            dump([tmreg(i) for i in range(tm[0])])
        a.e(f's_mov_b32 s{S_L}, 1')
        a.e(f's_mov_b32 s{S_LOFF}, {hex(KVP_L)}')
        a.e(f's_mov_b32 s{S_COLD}, s{S_MODE}')
        for c in range(4):
            a.e(f's_xor_b32 s{S_RK+c}, s{S_ROTK}, {c}')
            a.e(f's_lshl_b32 s{S_RK+c}, s{S_RK+c}, 12')
            a.e(f's_add_u32 s{S_RK+c}, s{S_RK+c}, {hex(A2_OFF)}')
            a.e(f's_add_u32 s{S_P7+c}, s{S_RK+c}, 0x4000')
        a.e(f's_branch {LOOP}')
        a.label(fin)
        emit_pack(a, TMP, V_RES, 16)
        OS = f's[{S_OUT}:{S_OUT+3}]'
        if opt.out_lds and opt.stop is None:
            a.e(f'v_and_b32 v{V_T0}, 31, v{V_LANE}')
            a.e(f'v_lshlrev_b32 v{V_T0}, 7, v{V_T0}')
            a.e(f'v_lshrrev_b32 v{V_T1}, 5, v{V_LANE}')
            a.e(f'v_lshl_add_u32 v{V_T0}, v{V_T1}, 3, v{V_T0}')
            a.e(f's_lshl_b32 s{S_T0}, s{S_RH}, 12')
            a.e(f's_lshl_b32 s{S_T1}, s{S_CH}, 6')
            a.e(f's_add_u32 s{S_T0}, s{S_T0}, s{S_T1}')
            a.e(f'v_add_u32 v{V_T0}, s{S_T0}, v{V_T0}')
            for j in range(4):
                a.e(f'ds_write_b64 v{V_T0}, v[{TMP+2*j}:{TMP+2*j+1}] offset:{AREG + 16*j}')
            a.e(f'v_lshrrev_b32 v{V_T1}, 3, v{V_LANE}')
            a.e(f'v_and_b32 v{V_T2}, 7, v{V_LANE}')
            a.e(f'v_lshlrev_b32 v{V_X}, 7, v{V_T1}')
            a.e(f'v_lshl_add_u32 v{V_X}, v{V_T2}, 4, v{V_X}')
            a.e(f's_lshl_b32 s{S_T0}, s{S_W}, 11')
            a.e(f'v_add_u32 v{V_X}, s{S_T0}, v{V_X}')
            a.e(f'v_lshlrev_b32 v{V_X+1}, 10, v{V_T1}')
            a.e(f'v_lshl_add_u32 v{V_X+1}, v{V_T2}, 4, v{V_X+1}')
            a.e(f's_lshl_b32 s{S_T0}, s{S_G}, 8'); a.e(f's_lshl_b32 s{S_T1}, s{S_RB}, 6'); a.e(f's_add_u32 s{S_T0}, s{S_T0}, s{S_T1}')
            a.e(f's_lshl_b32 s{S_T1}, s{S_W}, 4'); a.e(f's_add_u32 s{S_T0}, s{S_T0}, s{S_T1}'); a.e(f's_lshl_b32 s{S_T0}, s{S_T0}, 10')
            a.e(f's_lshl_b32 s{S_T1}, s{S_CB}, 7'); a.e(f's_add_u32 s{S_T0}, s{S_T0}, s{S_T1}')
            a.e(f's_add_u32 s{S_T1}, s{S_T0}, 8192')
            a.e('s_waitcnt lgkmcnt(0)')
            a.e('s_barrier')
            a.e(f'ds_read_b128 v[{TMP+8}:{TMP+11}], v{V_X} offset:{AREG}')
            a.e(f'ds_read_b128 v[{TMP+12}:{TMP+15}], v{V_X} offset:{AREG + 1024}')
            a.e('s_waitcnt lgkmcnt(1)')
            a.e(f'buffer_store_dwordx4 v[{TMP+8}:{TMP+11}], v{V_X+1}, {OS}, s{S_T0} offen')
            a.e('s_waitcnt lgkmcnt(0)')
            a.e(f'buffer_store_dwordx4 v[{TMP+12}:{TMP+15}], v{V_X+1}, {OS}, s{S_T1} offen')
        else:
            for j in range(4):
                a.e(f'buffer_store_dwordx2 v[{TMP+2*j}:{TMP+2*j+1}], v{V_XRM}, {OS}, 0 offen offset:{16*j}')
    a.label('L_END_COMPUTE')
    nn = a.newlabel('NON')
    a.e(f's_or_b32 s{S_T0}, s2, s{S_W}')
    a.e(f's_cmp_eq_u32 s{S_T0}, 0')
    a.e(f's_cbranch_scc0 {nn}')
    a.e(f's_add_u32 s{S_T0}, s{S_V}, 1')
    a.e(f'v_mov_b32 v{V_T0}, s{S_T0}')
    a.e(f'v_mov_b32 v{V_T1}, {hex(NONCE_OFF)}')
    a.e('s_mov_b64 exec, 1')
    a.e(f'buffer_store_dword v{V_T0}, v{V_T1}, {WS}, 0 offen')
    a.e('s_mov_b64 exec, -1')
    a.label(nn)
    stamp()
    if opt.timing: dump([tmreg(i) for i in range(tm[0])] + ([85] if False else []))
    if opt.fine: dump([freg(i) for i in range(fs[0])])
    if opt.wall:
        a.e('s_waitcnt vmcnt(0)')
        a.e('s_memrealtime s[82:83]'); a.e('s_memtime s[80:81]'); a.e('s_waitcnt lgkmcnt(0)')
        dump([84, 82, 85, 80])
    a.e('s_waitcnt vmcnt(0)')
    a.e('s_endpgm')
    return evq


def hstamp(a, opt, slot):
    if not (opt.dbgout >= 0 and opt.fine): return
    sk = a.newlabel('HS')
    a.e('s_memtime s[98:99]'); a.e('s_waitcnt lgkmcnt(0)')
    a.e(f's_cmp_eq_u32 s2, {opt.dbgwg}'); a.e(f's_cbranch_scc0 {sk}')
    a.e('s_sub_u32 s98, s98, s96')
    a.e('v_mov_b32 v254, s98'); a.e(f'v_mov_b32 v253, {4*slot}')
    a.e('global_store_dword v253, v254, s[86:87]')
    a.label(sk)
    a.vm.append('hs')

def gen_loader(a, opt, events):
    VN, VKV, VQ, VW3, VKVn, VQn = 8, 12, 16, 20, 28, 32
    VT0, VT1, VT2, VT3 = 1, 2, 3, 4
    a.c('--- loader setup')
    if opt.prio_l: a.e(f's_setprio {opt.prio_l}')
    def srd(s, p, size):
        a.e(f's_mov_b32 s{s}, s{p}'); a.e(f's_mov_b32 s{s+1}, s{p+1}')
        a.e(f's_mov_b32 s{s+2}, {hex(size)}'); a.e(f's_mov_b32 s{s+3}, 0x20000')
    srd(S_WQKV, S_PTR + 2, 512 * 1536 * 2)
    srd(S_WO, S_PTR + 4, 512 * 512 * 2)
    srd(S_W1, S_PTR + 8, 512 * 512 * 2)
    srd(S_W2, S_PTR + 10, 512 * 512 * 2)
    srd(S_W3, S_PTR + 12, 512 * 1792 * 2)
    srd(S_W4, S_PTR + 14, 1792 * 512 * 2)
    CBS, CBK, CB6, CB7 = 64, 68, 72, 76
    a.e(f's_lshl_b32 s{S_T1}, s{S_RB2}, 1')
    a.e(f's_add_u32 s{S_T1}, s{S_T1}, s{S_CB2}')
    a.e(f's_and_b32 s{S_T1}, s{S_T1}, {3 if opt.rot else 0}')
    for c in range(4):
        a.e(f's_xor_b32 s{CBK+c}, s{S_T1}, {c}')
        a.e(f's_mul_i32 s{CBK+c}, s{CBK+c}, {128*3072}')
    def late_tables():
        rm = 3 if opt.rot else 0
        for c in range(4):
            a.e(f's_and_b32 s{CBS+c}, s{S_RB}, {rm}')
            a.e(f's_xor_b32 s{CBS+c}, s{CBS+c}, {c}')
            a.e(f's_lshl_b32 s{CBS+c}, s{CBS+c}, 17')
            a.e(f's_lshl_b32 s{CB6+c}, s{S_RB2}, 1')
            a.e(f's_and_b32 s{CB6+c}, s{CB6+c}, {rm}')
            a.e(f's_xor_b32 s{CB6+c}, s{CB6+c}, {c}')
            a.e(f's_mul_i32 s{CB6+c}, s{CB6+c}, {128*3584}')
        for p_ in range(8):
            a.e(f's_and_b32 s{CB7+p_}, s{S_RB}, {rm}')
            a.e(f's_lshl_b32 s{CB7+p_}, s{CB7+p_}, 1')
            a.e(f's_xor_b32 s{CB7+p_}, s{CB7+p_}, {p_}')
            a.e(f's_mul_i32 s{CB7+p_}, s{CB7+p_}, {224*1024}')

    def cs_issue():
        a.c('cs pieces')
        c1 = a.newlabel('CS'); c2 = a.newlabel('CS'); c3 = a.newlabel('CS')
        a.e(f's_min_u32 s{92}, s2, 239')
        a.e(f's_lshr_b32 s{93}, s{92}, 2')
        a.e(f's_and_b32 s{94}, s{92}, 3')
        a.e(f's_cmp_lt_u32 s{93}, 24')
        a.e(f's_cbranch_scc0 {c1}')
        for i in range(3): a.e(f's_mov_b32 s{S_CSRD+i}, s{S_WQKV+i}')
        a.e(f's_mov_b32 s{S_T0}, 3072')
        a.e(f's_lshl_b32 s{S_T1}, s{93}, 7')
        a.e(f's_branch {c3}')
        a.label(c1)
        a.e(f's_cmp_lt_u32 s{93}, 32')
        a.e(f's_cbranch_scc0 {c2}')
        for i in range(3): a.e(f's_mov_b32 s{S_CSRD+i}, s{S_W1+i}')
        a.e(f's_mov_b32 s{S_T0}, 1024')
        a.e(f's_sub_u32 s{S_T1}, s{93}, 24')
        a.e(f's_lshl_b32 s{S_T1}, s{S_T1}, 7')
        a.e(f's_branch {c3}')
        a.label(c2)
        for i in range(3): a.e(f's_mov_b32 s{S_CSRD+i}, s{S_W3+i}')
        a.e(f's_mov_b32 s{S_T0}, 3584')
        a.e(f's_sub_u32 s{S_T1}, s{93}, 32')
        a.e(f's_lshl_b32 s{S_T1}, s{S_T1}, 7')
        a.label(c3)
        a.e(f's_mov_b32 s{S_CSRD+3}, 0x20000')
        a.e(f'v_lshrrev_b32 v{VT1}, 3, v{V_LANE}')
        a.e(f'v_mul_lo_u32 v{VT1}, v{VT1}, s{S_T0}')
        a.e(f'v_and_b32 v{VT2}, 7, v{V_LANE}')
        a.e(f'v_lshl_add_u32 v{VT1}, v{VT2}, 4, v{VT1}')
        a.e(f'v_add_u32 v{VT1}, s{S_T1}, v{VT1}')
        a.e(f's_lshl_b32 s{S_T1}, s{94}, 7')
        a.e(f's_mul_i32 s{S_T1}, s{S_T1}, s{S_T0}')
        a.e(f's_lshl_b32 s{S_T0}, s{S_T0}, 3')
        a.e(f's_mov_b32 m0, {hex(CSL)}')
        for p in range(16):
            a.e('s_nop 0')
            a.vmem(f'buffer_load_dwordx4 v{VT1}, s[{S_CSRD}:{S_CSRD+3}], s{S_T1} offen lds', 'cs')
            if p < 15:
                a.e('s_add_u32 m0, m0, 1024')
                a.e(f's_add_u32 s{S_T1}, s{S_T1}, s{S_T0}')
    dg = [0]
    def dstamp():
        if opt.startdiag:
            a.e(f's_memtime s[{84+2*dg[0]}:{85+2*dg[0]}]') if False else None
            a.e('s_memtime s[98:99]'); a.e('s_waitcnt lgkmcnt(0)')
            a.e('s_sub_u32 s98, s98, s100')
            a.e(f'v_mov_b32 v{100+dg[0]}, s98'); dg[0] += 1
    dstamp()
    cs_issue()
    a.e(f'v_lshrrev_b32 v{VT0}, 3, v{V_LANE}')
    a.e(f'v_bfe_u32 v{VT1}, v{VT0}, 1, 2')
    a.e(f'v_lshlrev_b32 v{VT1}, 1, v{VT1}')
    a.e(f'v_and_b32 v{VT2}, 7, v{V_LANE}')
    a.e(f'v_xor_b32 v{VT2}, v{VT2}, v{VT1}')
    a.e(f'v_and_b32 v{VT1}, 3, v{VT2}')
    a.e(f'v_lshlrev_b32 v{VT3}, 4, v{VT1}')
    a.e(f'v_lshrrev_b32 v{VT1}, 2, v{VT2}')
    a.e(f'v_lshl_add_u32 v{VT3}, v{VT1}, 10, v{VT3}')
    a.e(f's_lshl_b32 s{S_T0}, s{S_CB2}, 6')
    a.e(f's_add_u32 s{S_T1}, s{S_T0}, 1024')
    a.e(f'v_add_u32 v{VT3}, s{S_T1}, v{VT3}')
    a.e(f'v_lshrrev_b32 v{VT1}, 2, v{VT0}')
    a.e(f'v_lshlrev_b32 v{VT1}, 3, v{VT1}')
    a.e(f'v_and_b32 v{VT2}, 3, v{VT0}')
    a.e(f'v_add_u32 v{VT1}, v{VT1}, v{VT2}')
    a.e(f'v_mul_u32_u24 v{VT1}, 3072, v{VT1}')
    a.e(f'v_add_u32 v{VT1}, v{VT1}, v{VT3}')
    for p in range(4):
        off = (16 * (p & 1) + 4 * (p >> 1)) * 3072 - p * 1024
        a.e(f'v_add_u32 v{VKVn+p}, {hex(off & 0xffffffff)}, v{VT1}')
    a.e(f'v_mul_u32_u24 v{VKV}, 3072, v{VT0}')
    a.e(f'v_add_u32 v{VKV}, v{VKV}, v{VT3}')
    for j in range(1, 4): a.e(f'v_add_u32 v{VKV+j}, {hex(j*(8*3072-1024))}, v{VKV}')

    layers = sorted(set(e[0] for e in events))
    slabs = {L: build_slabs(L) for L in layers}
    stream = []
    needed = set((e[0], e[2], e[3]) for e in events if e[1] == 'B')
    for L in layers:
        for p in PHASES:
            for ci, ch in enumerate(slabs[L][p]):
                if (L, p, ci) in needed: stream += ch
    released = set()
    log = []; cur = ['start']
    opt._log = log
    st = {'issued': 0}
    win = [opt.window0]
    def overlaps_unreleased(s, idx):
        for k in range(idx):
            o = stream[k]
            if (o.layer, o.phase, o.chunk) in released: continue
            if o.addr < s.addr + s.size and s.addr < o.addr + o.size: return True
        return False
    def emit_slab(s):
        kind = s.kind; tag = (s.layer, s.phase, s.chunk)
        if kind in opt.dbg_skip.split(','): return
        if kind in ('WO', 'W1', 'W2', 'W4'):
            srd_ = {'WO': S_WO, 'W1': S_W1, 'W2': S_W2, 'W4': S_W4}[kind]; vb = VN; rs = 1024
        elif kind == 'KV': srd_, vb, rs = S_WQKV, (VKVn if s.layer == 0 else VKV), 3072
        elif kind == 'Q': srd_, vb, rs = S_WQKV, (VQn if s.layer == 0 else VQ), 3072
        else: srd_, vb, rs = S_W3, VW3, 3584
        R4 = f's[{srd_}:{srd_+3}]'
        def grp(addr, srow, ps, v0):
            a.e(f's_mov_b32 m0, {hex(addr)}')
            if kind == 'W4':
                p_, rr_ = divmod(srow, 224); tb_ = CB7 + p_
            else:
                c_, rr_ = divmod(srow, 128); tb_ = {'KV': CBK, 'Q': CBK, 'W3': CB6}.get(kind, CBS) + c_
            a.e(f's_add_u32 s{S_T0}, s{tb_}, {hex(rr_*rs)}')
            for k, p in enumerate(ps):
                a.vmem(f'buffer_load_dwordx4 v{vb+p}, {R4}, s{S_T0} offen offset:{k*1024} {"nt " if opt.w_nt else ""}lds', tag)
        if kind == 'W3':
            grp(s.addr, s.srow, [0, 1, 2, 3], 0); grp(s.addr + 4096, s.srow, [4, 5, 6], 0)
        elif kind == 'W4' and s.srow2 != s.srow + 16:
            grp(s.addr, s.srow, [0, 1], 0); grp(s.addr + 2048, s.srow2, [0, 1], 0)
        else:
            grp(s.addr, s.srow, [0, 1, 2, 3], 0)
        if len(a.vm) > win[0]:
            a.e(f's_waitcnt vmcnt({win[0]})')
            a.vm = a.vm[len(a.vm) - win[0]:]
    plan = {}
    opt._plan = plan
    free = [50, 50]
    def need_slots(s): return (4, 3) if s.kind == 'W3' else (2, 2)
    def park_policy(key):
        if not opt.park: return
        name = key.split('.', 1)[1] if key[0] in '01' else None
        if name is None: return
        L = int(key[0])
        if name in opt.park_w3:
            cand = [s for s in stream[st['issued']:] if s.layer == L and s.phase == 'P6' and s.chunk >= 1]; cap = opt.park_w3[name]
        elif name in opt.park_caps:
            cand = [s for s in stream[st['issued']:] if s.layer == L and s.phase == 'P7' and s.chunk >= 6]; cap = opt.park_caps[name]
        else:
            return
        for s in cand:
            if getattr(s, 'parked', False): continue
            n0, n1 = need_slots(s)
            if cap <= 0 or free[0] < n0 or free[1] < n1: break
            s.parked = True; free[0] -= n0; free[1] -= n1; cap -= 1
            plan.setdefault(key, []).append(('park', s))
    def issue(cap, must=None):
        n = 0; nu = 0
        while st['issued'] < len(stream):
            s = stream[st['issued']]
            forced = must is not None and any((o.layer, o.phase, o.chunk) == must for o in stream[st['issued']:])
            pk_ = getattr(s, 'parked', False)
            if not forced and not pk_ and n + s.npieces > cap: break
            if not forced and pk_ and (nu >= opt.unpark_max or must is not None): break
            if overlaps_unreleased(s, st['issued']):
                assert not forced, ('deadlock', must, s.layer, s.phase, s.chunk)
                break
            if pk_:
                plan.setdefault(cur[0], []).append(('unpark', s)); nu += 1
                n0, n1 = need_slots(s); free[0] += n0; free[1] += n1
                st['issued'] += 1
                log.append((cur[0], s.layer, s.phase + '*', s.chunk, forced))
                continue
            emit_slab(s); st['issued'] += 1; n += s.npieces
            log.append((cur[0], s.layer, s.phase, s.chunk, forced))
    if WARM0[0]:
        a.e('s_barrier')
        events = events[1:]
    hstamp(a, opt, 8)
    issue(32)
    hstamp(a, opt, 9)
    dstamp()
    def nonce_setup():
        a.e('s_waitcnt lgkmcnt(0)')
        a.e(f's_mul_i32 s{S_B}, s{S_V}, 0x9e3779b1')
        a.e(f's_add_u32 s{S_B}, s{S_B}, 0x7f4a7c15')
        a.e(f's_and_b32 s{S_B}, s{S_B}, 0xffffff00')
    def late_setup():
        if not opt.cs_late: nonce_setup()
        a.e(f's_lshl_b32 s{S_T0}, s{S_G}, 7')
        a.e(f's_lshl_b32 s{S_T1}, s{S_R}, 2')
        a.e(f's_add_u32 s{S_T0}, s{S_T0}, s{S_T1}')
        a.e(f's_add_u32 s{S_T0}, s{S_T0}, {hex(XID_OFF)}')
        a.e(f'v_mov_b32 v{VT1}, s{S_T0}')
        a.e(f's_add_u32 s{S_T1}, s{S_B}, s{S_XCC}')
        a.e(f'v_mov_b32 v{VT0}, s{S_T1}')
        a.e('s_mov_b64 exec, 1')
        a.vmem(f'buffer_store_dword v{VT0}, v{VT1}, {WS}, 0 offen sc1', 'xid')
        a.e('s_mov_b64 exec, -1')
        late_tables()
        a.c('W lane offsets')
        a.e(f'v_lshrrev_b32 v{VT0}, 3, v{V_LANE}')
        a.e(f'v_bfe_u32 v{VT1}, v{VT0}, 1, 1')
        a.e(f'v_lshlrev_b32 v{VT1}, 2, v{VT1}')
        a.e(f'v_and_b32 v{VT2}, 7, v{V_LANE}')
        a.e(f'v_xor_b32 v{VT2}, v{VT2}, v{VT1}')
        a.e(f'v_lshlrev_b32 v{VN}, 10, v{VT0}')
        a.e(f'v_lshl_add_u32 v{VN}, v{VT2}, 4, v{VN}')
        a.e(f's_lshl_b32 s{S_T0}, s{S_CB}, 7')
        a.e(f'v_add_u32 v{VN}, s{S_T0}, v{VN}')
        for j in range(1, 4): a.e(f'v_add_u32 v{VN+j}, {hex(j*(8192-1024))}, v{VN}')
        a.e(f'v_lshrrev_b32 v{VT0}, 2, v{V_LANE}')
        a.e(f'v_bfe_u32 v{VT1}, v{VT0}, 2, 1')
        a.e(f'v_lshlrev_b32 v{VT1}, 1, v{VT1}')
        a.e(f'v_and_b32 v{VT2}, 3, v{V_LANE}')
        a.e(f'v_xor_b32 v{VT2}, v{VT2}, v{VT1}')
        a.e(f'v_lshlrev_b32 v{VT3}, 4, v{VT2}')
        a.e(f's_lshl_b32 s{S_T0}, s{S_CB2}, 6')
        a.e(f'v_add_u32 v{VT3}, s{S_T0}, v{VT3}')
        a.e(f'v_mul_u32_u24 v{VQ}, 3072, v{VT0}')
        a.e(f'v_add_u32 v{VQ}, v{VQ}, v{VT3}')
        for j in range(1, 4): a.e(f'v_add_u32 v{VQ+j}, {hex(j*(16*3072-1024))}, v{VQ}')
        a.e(f'v_lshrrev_b32 v{VT1}, 2, v{VT0}')
        a.e(f'v_lshlrev_b32 v{VT1}, 3, v{VT1}')
        a.e(f'v_and_b32 v{VT2}, 3, v{VT0}')
        a.e(f'v_add_u32 v{VT1}, v{VT1}, v{VT2}')
        a.e(f'v_mul_u32_u24 v{VT1}, 3072, v{VT1}')
        a.e(f'v_add_u32 v{VT1}, v{VT1}, v{VT3}')
        for p in range(4):
            off = (4 * (p & 1) + 32 * (p >> 1)) * 3072 - p * 1024
            a.e(f'v_add_u32 v{VQn+p}, {hex(off & 0xffffffff)}, v{VT1}')
        a.e(f's_mul_i32 s{S_T0}, s{S_CB2}, 224')
        M14 = (1 << 20) // 14 + 1
        a.e(f's_mov_b32 s{S_T1}, {hex(M14)}')
        for p in range(7):
            a.e(f'v_add_u32 v{VT0}, {64*p}, v{V_LANE}')
            a.e(f'v_mul_lo_u32 v{VT1}, v{VT0}, s{S_T1}')
            a.e(f'v_lshrrev_b32 v{VT1}, 20, v{VT1}')
            a.e(f'v_mul_u32_u24 v{VT2}, 14, v{VT1}')
            a.e(f'v_sub_u32 v{VT2}, v{VT0}, v{VT2}')
            a.e(f'v_mul_u32_u24 v{VW3+p}, 3584, v{VT1}')
            a.e(f'v_lshl_add_u32 v{VW3+p}, v{VT2}, 4, v{VW3+p}')
            a.e(f'v_add_u32 v{VW3+p}, s{S_T0}, v{VW3+p}')
            if p % 4: a.e(f'v_subrev_u32 v{VW3+p}, {(p%4)*1024}, v{VW3+p}')
        for u in range(448): assert (u * M14) >> 20 == u // 14

    def cs_part1():
        a.wait_vm('cs')
        a.e(f'v_bfe_u32 v{VT0}, v{V_LANE}, 2, 2')
        a.e(f'v_lshrrev_b32 v{VT1}, 4, v{V_LANE}')
        a.e(f'v_lshl_add_u32 v{VT0}, v{VT1}, 2, v{VT0}')
        a.e(f'v_lshlrev_b32 v{VT0}, 7, v{VT0}')
        a.e(f'v_and_b32 v{VT2}, 3, v{V_LANE}')
        a.e(f'v_lshl_add_u32 v{VT0}, v{VT2}, 3, v{VT0}')
        a.e(f'v_add_u32 v{VT0}, {hex(CSL)}, v{VT0}')
        for i in range(4): a.e(f'v_mov_b32 v{40+i}, 0x3f803f80')
        for j in range(4):
            for t in range(4):
                a.e(f'ds_read_b64_tr_b16 v[{64+4*t}:{65+4*t}], v{VT0} offset:{j*4096+t*32}')
                a.e(f'ds_read_b64_tr_b16 v[{66+4*t}:{67+4*t}], v{VT0} offset:{j*4096+t*32+2048}')
            a.e('s_waitcnt lgkmcnt(0)')
            for t in range(4):
                c = '0' if j == 0 else f'v[{44+4*t}:{47+4*t}]'
                a.e(f'v_mfma_f32_16x16x32_bf16 v[{44+4*t}:{47+4*t}], v[{64+4*t}:{67+4*t}], v[40:43], {c}')
        a.e(f's_mul_i32 s{S_T0}, s{94}, 15360')
        a.e(f's_lshl_b32 s{S_T1}, s{93}, 8')
        a.e(f's_add_u32 s{S_T0}, s{S_T0}, s{S_T1}')
        a.e(f's_add_u32 s{S_T0}, s{S_T0}, {hex(CSP_OFF)}')
        a.e(f'v_lshlrev_b32 v{VT1}, 4, v{VT1}')
        a.e('s_nop 7')
        set_exec(a, 0x00010001)
        for t in range(4):
            a.vmem(f'buffer_store_dwordx4 v[{44+4*t}:{47+4*t}], v{VT1}, {WS}, s{S_T0} offen offset:{64*t} sc1', 'csst')
        a.e('s_mov_b64 exec, -1')
        if opt.kv_atomic:
            zl = a.newlabel('ZK')
            a.e(f's_lshr_b32 s{S_T0}, s2, 3')
            a.e(f's_mul_i32 s{S_T0}, s{S_T0}, {KVREC}')
            a.e(f's_add_u32 s{S_T0}, s{S_T0}, {hex(KVA_OFF)}')
            a.e(f's_and_b32 s{S_T1}, s2, 0x87')
            a.e(f's_cmp_eq_u32 s{S_T1}, 0')
            a.e(f's_cselect_b32 s{S_T1}, 0, 0x80000000')
            for i in range(4): a.e(f'v_mov_b32 v{60+i}, 0')
            a.e(f'v_lshlrev_b32 v{VT0}, 4, v{V_LANE}')
            a.e(f'v_or_b32 v{VT0}, s{S_T1}, v{VT0}')
            for l_ in range(2):
                a.vmem(f'buffer_store_dwordx4 v[60:63], v{VT0}, {WS}, s{S_T0} offen sc1', 'csst')
                a.vmem(f'buffer_store_dwordx4 v[60:63], v{VT0}, {WS}, s{S_T0} offen offset:1024 sc1', 'csst')
                a.e('s_mov_b64 exec, 0xff')
                a.vmem(f'buffer_store_dwordx4 v[60:63], v{VT0}, {WS}, s{S_T0} offen offset:2048 sc1', 'csst')
                a.e('s_mov_b64 exec, -1')
                if l_ == 0: a.e(f's_add_u32 s{S_T0}, s{S_T0}, {16*KVREC}')
    def cs_part2():
        a.e(f's_lshl_b32 s{S_T0}, s2, 7')
        a.e(f's_add_u32 s{S_T0}, s{S_T0}, {hex(CSF_OFF)}')
        a.e(f'v_mov_b32 v{VT1}, s{S_T0}')
        a.e(f's_add_u32 s{S_T1}, s{S_B}, 8')
        a.e(f'v_mov_b32 v{VT0}, s{S_T1}')
        a.wait_vm('csst')
        a.e('s_mov_b64 exec, 1')
        a.vmem(f'buffer_store_dword v{VT0}, v{VT1}, {WS}, 0 offen sc1', 'csf')
        a.e('s_mov_b64 exec, -1')
    def cs_fill():
        L_ = a.newlabel('CPOLL'); D_ = a.newlabel('CPOLLD')
        a.e(f'v_min_u32 v{VT0}, 27, v{V_LANE}')
        a.e(f'v_lshrrev_b32 v{VT2}, 2, v{VT0}')
        a.e(f's_lshr_b32 s{S_T0}, s{S_CB2}, 1')
        a.e(f'v_lshlrev_b32 v{VT1}, 3, v{VT2}')
        a.e(f'v_add_u32 v{VT1}, s{S_T0}, v{VT1}')
        a.e(f's_add_u32 s{S_T0}, s{S_CB}, 24')
        a.e(f'v_mov_b32 v{VT3}, s{S_T0}')
        a.e(f'v_cmp_eq_u32 vcc, 3, v{VT2}')
        a.e('s_nop 1')
        a.e(f'v_cndmask_b32 v{VT1}, v{VT1}, v{VT3}, vcc')
        a.e(f's_mul_i32 s{S_T0}, s{S_CB2}, 112')
        a.e(f's_lshr_b32 s{S_T0}, s{S_T0}, 6')
        a.e(f's_add_u32 s{S_T0}, s{S_T0}, {32 - 4}')
        a.e(f'v_add_u32 v{VT3}, s{S_T0}, v{VT2}')
        a.e(f'v_min_u32 v{VT3}, 59, v{VT3}')
        a.e(f'v_cmp_lt_u32 vcc, 3, v{VT2}')
        a.e('s_nop 1')
        a.e(f'v_cndmask_b32 v{VT1}, v{VT1}, v{VT3}, vcc')
        a.e(f'v_and_b32 v{VT0}, 3, v{VT0}')
        a.e(f'v_lshl_add_u32 v{VT1}, v{VT1}, 2, v{VT0}')
        if opt.kv_atomic:
            a.e(f's_lshl_b32 s{S_T0}, s{S_CB2}, 3')
            a.e(f'v_mov_b32 v{VT3}, s{S_T0}')
            a.e(f'v_cmp_lt_u32 vcc, 27, v{V_LANE}')
            a.e('s_nop 1')
            a.e(f'v_cndmask_b32 v{VT1}, v{VT1}, v{VT3}, vcc')
        a.e(f'v_lshlrev_b32 v{VT1}, 7, v{VT1}')
        a.e(f's_mov_b32 s{S_T0}, {hex(CSF_OFF)}')
        a.e(f's_add_u32 s{S_T1}, s{S_B}, 8')
        a.e(f's_mov_b32 s{95}, {opt.spin}')
        a.label(L_)
        a.e(f'buffer_load_dword v40, v{VT1}, {WS}, s{S_T0} offen sc1')
        a.e('s_waitcnt vmcnt(0)')
        a.e(f'v_subrev_u32 v40, s{S_T1}, v40')
        a.e('v_cmp_gt_u32 vcc, 0x80, v40')
        a.e(f's_sub_u32 s{95}, s{95}, 1')
        a.e(f's_cbranch_scc1 {D_}')
        a.e('s_cmp_eq_u64 vcc, -1')
        a.e(f's_cbranch_scc0 {L_}')
        a.label(D_)
        a.vm = []
        def colof(dst, gofs):
            a.e(f'v_add_u32 v{VT0}, {gofs}, v{V_LANE}')
            a.e(f'v_lshlrev_b32 v{VT2}, 2, v{VT0}')
            a.e(f's_lshl_b32 s{S_T0}, s{S_CB2}, 5')
            a.e(f's_mul_i32 s{S_T1}, s{S_CB2}, 112')
            a.e(f's_add_u32 s{S_T1}, s{S_T1}, {2048 - 160}')
            a.e(f'v_add_u32 v{dst}, s{S_T1}, v{VT2}')
            for lim, addc, useb in [(40, 1536 - 96, 'cb'), (24, -64, 'hp'), (16, 1024 - 32, 'hp'), (8, 512, 'hp')]:
                if useb == 'cb':
                    a.e(f's_lshl_b32 s{S_T1}, s{S_CB}, 6')
                    a.e(f's_add_u32 s{S_T1}, s{S_T1}, {addc}')
                else:
                    a.e(f's_add_u32 s{S_T1}, s{S_T0}, {hex(addc & 0xffffffff)}')
                a.e(f'v_add_u32 v{VT3}, s{S_T1}, v{VT2}')
                a.e(f'v_cmp_gt_u32 vcc, {lim}, v{VT0}')
                a.e('s_nop 1')
                a.e(f'v_cndmask_b32 v{dst}, v{dst}, v{VT3}, vcc')
            a.e(f'v_lshlrev_b32 v{dst}, 2, v{dst}')
        colof(36, 0); colof(37, 64)
        a.e(f's_mov_b32 s{S_T0}, {hex(CSP_OFF)}')
        for kq in range(4):
            a.e(f'buffer_load_dwordx4 v[{40+4*kq}:{43+4*kq}], v36, {WS}, s{S_T0} offen sc1')
            a.e('s_mov_b64 exec, 0xf')
            a.e(f'buffer_load_dwordx4 v[{56+4*kq}:{59+4*kq}], v37, {WS}, s{S_T0} offen sc1')
            a.e('s_mov_b64 exec, -1')
            if kq < 3: a.e(f's_add_u32 s{S_T0}, s{S_T0}, 15360')
        a.e(f'v_lshlrev_b32 v{VT0}, 4, v{V_LANE}')
        a.e(f'v_add_u32 v{VT0}, {hex(CSC)}, v{VT0}')
        a.e('s_waitcnt vmcnt(0)')
        for b in (40, 56):
            for i in (0, 2):
                a.e(pk('add', b + i, vp(b + i), vp(b + 4 + i)))
                a.e(pk('add', b + 8 + i, vp(b + 8 + i), vp(b + 12 + i)))
                a.e(pk('add', b + i, vp(b + i), vp(b + 8 + i)))
        a.e(f'ds_write_b128 v{VT0}, v[40:43]')
        a.e('s_mov_b64 exec, 0xf')
        a.e(f'ds_write_b128 v{VT0}, v[56:59] offset:1024')
        a.e('s_mov_b64 exec, -1')
        a.e('s_waitcnt lgkmcnt(0)')

    if not opt.cs_late: cs_part1()
    chunks_of = {}
    for s in stream: chunks_of.setdefault((s.layer, s.phase), set()).add(s.chunk)
    nb = 0
    for ev in events:
        L, kind, p, ci = ev
        if kind == 'B':
            cur[0] = f'pre {L}.{p}.B{ci}'
            issue(0, must=(L, p, ci))
            cur[0] = f'{L}.{p}.B{ci}'
            if nb < 5: dstamp()
            a.wait_vm((L, p, ci))
            if nb == 0: hstamp(a, opt, 10)
            if nb == 1: hstamp(a, opt, 11)
            if nb < 5: dstamp()
            a.e('s_barrier')
            nb += 1
            if ci >= 2: released.add((L, p, ci - 2))
            if ci == 0:
                for (l2, p2), cs_ in chunks_of.items():
                    if p2 in NOE and (l2, PHASES.index(p2)) < (L, PHASES.index(p)):
                        for c in cs_: released.add((l2, p2, c))
            if opt.cs_late and nb <= 4:
                if nb == 1:
                    issue(16)
                    cs_part1()
                    nonce_setup()
                elif nb == 2:
                    issue(16)
                    cs_part2()
                    late_setup()
                elif nb == 3:
                    pass
                elif nb == 4:
                    cs_fill()
                    win[0] = opt.window
            elif nb == 1:
                issue(32)
                late_setup()
                cs_part2()
            elif nb == 3:
                cs_fill()
                win[0] = opt.window
            elif nb in (2, 4):
                pass
            else:
                issue(opt.caps.get(f'{p}.B{ci}', opt.caps.get(f'{p}.B*', 0)))
                park_policy(cur[0])
        elif kind == 'R':
            a.e('s_barrier')
        elif kind == 'E':
            cur[0] = f'{L}.{p}.E'
            a.e('s_barrier')
            for c in chunks_of[(L, p)]: released.add((L, p, c))
            issue(opt.caps.get(f'{p}.E', 0))
            park_policy(cur[0])
        else:
            cur[0] = f'{L}.{p}'
            a.e('s_barrier')
            issue(opt.caps.get(p, 0))
            park_policy(cur[0])
    if opt.startdiag:
        a.e(f's_lshl_b32 s{S_T0}, s2, 8')
        a.e(f's_add_u32 s{S_T0}, s{S_T0}, {hex(TM_OFF + 128)}')
        for i in range(dg[0]):
            a.e(f'v_mov_b32 v99, {4*i}')
            a.e(f'buffer_store_dword v{100+i}, v99, {WS}, s{S_T0} offen')
    a.e('s_waitcnt vmcnt(0)')
    a.e('s_endpgm')


def gen_toucher(a, opt, events):
    a.c('--- A loader / toucher')
    if opt.prio_a: a.e(f's_setprio {opt.prio_a}')
    mats = {'WO': (S_PTR + 4, 512 * 512 * 2), 'W1': (S_PTR + 8, 512 * 512 * 2),
            'W2': (S_PTR + 10, 512 * 512 * 2), 'W3': (S_PTR + 12, 512 * 1792 * 2), 'W4': (S_PTR + 14, 1792 * 512 * 2)}
    srds = {}
    for i, (k, (p, size)) in enumerate(mats.items()):
        s = 40 + 4 * i
        a.e(f's_mov_b32 s{s}, s{p}'); a.e(f's_mov_b32 s{s+1}, s{p+1}')
        a.e(f's_mov_b32 s{s+2}, {hex(size)}'); a.e(f's_mov_b32 s{s+3}, 0x20000')
        srds[k] = s
    T0s, T1s, T2s, T3s, T4s, T5s = 33, 34, 35, 36, 37, 38
    THR, SPIN = 60, 61
    RA, P7T = 64, 68
    U0, U1, U2, U3, U4 = 76, 77, 78, 79, 80
    VAS, VAG, VFS, VFB, VFH, VAH = 3, 4, 5, 6, 7, 8
    X0, X1, X2, X3 = 24, 25, 26, 27
    X0W = 31
    e = a.e
    VXK = 40
    e(f'v_lshrrev_b32 v2, 4, v{V_LANE}')
    e(f'v_and_b32 v3, 15, v{V_LANE}')
    for k in range(4):
        e(f'v_add_u32 v{VXK+k}, {4*k}, v2'); e(f'v_xor_b32 v{VXK+k}, v{VXK+k}, v3'); e(f'v_lshlrev_b32 v{VXK+k}, 4, v{VXK+k}')
        e(f'v_lshl_add_u32 v{VXK+k}, v2, 10, v{VXK+k}')
    e(f's_lshl_b32 s33, s{S_G}, 8'); e(f's_lshl_b32 s34, s{S_RB2}, 7'); e('s_add_u32 s33, s33, s34'); e('s_lshl_b32 s82, s33, 10')
    e(f's_lshl_b32 s83, s{S_RB2}, 1'); e(f's_add_u32 s83, s83, s{S_CB2}'); e(f's_and_b32 s83, s83, {3 if opt.rot else 0}')
    e(f's_lshr_b32 s81, s{S_CB2}, 2'); e(f's_lshl_b32 s81, s81, {13 if opt.rot else 31}')
    if not opt.rot: e('s_mov_b32 s81, 0')
    def x_chunk(c, half=None):
        e(f's_xor_b32 s33, s83, {c}'); e('s_lshl_b32 s33, s33, 8'); e('s_add_u32 s33, s33, s82')
        if half == 1:
            e('s_add_u32 s34, s81, 16384'); e('s_and_b32 s34, s34, 0x7fff')
        else:
            e('s_mov_b32 s34, s81')
        n = 8 if half is None else 4
        if len(a.vm) + 4 * n > 62:
            keep = 62 - 4 * n
            e(f's_waitcnt vmcnt({keep})'); a.vm = a.vm[-keep:] if keep else []
        e(f's_mov_b32 s36, {n}')
        lp = a.newlabel('XC'); a.label(lp)
        for k in range(4):
            e(f's_add_u32 m0, s34, {hex(AREG + (c & 1) * 32768)}')
            e('s_lshl_b32 s35, s34, 2'); e('s_add_u32 s35, s35, s33')
            e(f'buffer_load_dwordx4 v{VXK + k}, s[{S_X}:{S_X+3}], s35 offen lds')
            e('s_add_u32 s34, s34, 1024')
        e('s_and_b32 s34, s34, 0x7fff')
        e('s_sub_u32 s36, s36, 1'); e('s_cmp_lg_u32 s36, 0'); e(f's_cbranch_scc1 {lp}')
        a.vm += [('X', c)] * (4 * n)
        assert len(a.vm) <= 63
    def x_tile():
        e(f'v_lshrrev_b32 v2, 3, v{V_LANE}'); e('v_lshlrev_b32 v2, 10, v2')
        e(f'v_and_b32 v30, 7, v{V_LANE}'); e('v_lshl_add_u32 v2, v30, 4, v2')
        e(f's_lshl_b32 s33, s{S_G}, 8'); e(f's_lshl_b32 s34, s{S_RB}, 6'); e('s_add_u32 s33, s33, s34'); e('s_lshl_b32 s33, s33, 10')
        e(f's_lshl_b32 s34, s{S_CB}, 7'); e('s_add_u32 s33, s33, s34')
        for p_ in range(8):
            e(f's_mov_b32 m0, {hex(AREG + p_ * 1024)}')
            if p_: e('s_add_u32 s33, s33, 8192')
            else: e('s_nop 0')
            a.vmem(f'buffer_load_dwordx4 v2, s[{S_X}:{S_X+3}], s33 offen lds', 'x')
    if WARM0[0]:
        e('s_barrier')
        events = events[1:]
    hstamp(a, opt, 12)
    x_chunk(0); x_chunk(1, 0)
    hstamp(a, opt, 13)
    e(f'v_lshlrev_b32 v1, 7, v{V_LANE}')
    e(f'v_lshlrev_b32 v{X0}, 4, v{V_LANE}')
    e(f'v_lshlrev_b32 v{X0W}, 4, v{V_LANE}')
    e(f's_lshl_b32 s{T0s}, s{S_G}, 4'); e(f's_lshl_b32 s{T1s}, s{S_RB}, 2'); e(f's_add_u32 s{T0s}, s{T0s}, s{T1s}')
    e(f's_lshl_b32 s{T1s}, s{T0s}, 14'); e(f'v_add_u32 v{VAS}, s{T1s}, v{X0}')
    e(f's_mul_i32 s{T1s}, s{T0s}, 57344'); e(f'v_add_u32 v{VAG}, s{T1s}, v{X0}')
    rmask = 3 if opt.rot else 0
    for c in range(4):
        e(f's_and_b32 s{RA+c}, s{S_RB}, {rmask}'); e(f's_xor_b32 s{RA+c}, s{RA+c}, {c}'); e(f's_lshl_b32 s{RA+c}, s{RA+c}, 12')
    for p_ in range(8):
        e(f's_and_b32 s{P7T+p_}, s{S_RB}, {rmask}'); e(f's_lshl_b32 s{P7T+p_}, s{P7T+p_}, 1')
        e(f's_xor_b32 s{P7T+p_}, s{P7T+p_}, {p_}'); e(f's_mul_i32 s{P7T+p_}, s{P7T+p_}, 7168')
    e(f'v_and_b32 v{X1}, 15, v{V_LANE}')
    e(f'v_and_b32 v{X2}, 0x30, v{V_LANE}')
    e(f's_mul_i32 s{T3s}, s{S_G}, 18')
    e(f's_lshl_b32 s{T4s}, s{S_G}, 8')
    for c in range(4):
        e(f's_lshr_b32 s{T5s}, s{RA+c}, 12')
        e(f's_lshr_b32 s{U3}, s{T5s}, 1'); e(f's_add_u32 s{U3}, s{U3}, 1'); e(f's_sub_u32 s{U4}, 0, s{U3}')
        e(f's_bitcmp1_b32 s{T5s}, 0'); e(f's_cselect_b32 s{U3}, s{U3}, s{U4}')
        e(f's_lshl_b32 s{T2s}, s{S_RB}, 6'); e(f's_add_u32 s{T2s}, s{T2s}, s{U3}'); e(f's_add_u32 s{T2s}, s{T2s}, 16')
        for w in range(4):
            r = VAH + 4 * c + w
            e(f's_add_u32 s{T5s}, s{T2s}, {16 * w}')
            e(f'v_add_u32 v{r}, s{T5s}, v{X1}')
            e(f'v_lshrrev_b32 v{X3}, 4, v{r}'); e(f'v_add_u32 v{X3}, s{T3s}, v{X3}'); e(f'v_lshlrev_b32 v{X3}, 14, v{X3}')
            e(f'v_and_b32 v28, 15, v{r}'); e(f'v_add_u32 v28, v{X2}, v28'); e(f'v_lshl_add_u32 v{X3}, v28, 4, v{X3}')
            e(f'v_add_u32 v28, s{T4s}, v{r}'); e('v_subrev_u32 v28, 16, v28')
            e('v_cmp_gt_u32 vcc, 0x800, v28')
            e(f'v_mov_b32 v{r}, 0x80000000'); e('s_nop 0')
            e(f'v_cndmask_b32 v{r}, v{r}, v{X3}, vcc')
    e(f's_lshl_b32 s{T2s}, s{S_G}, 9'); e(f's_add_u32 s{T2s}, s{T2s}, {hex(LF_OFF)}')
    e(f'v_bfe_u32 v{X1}, v{V_LANE}, 3, 2'); e(f'v_lshlrev_b32 v{X1}, 7, v{X1}')
    e(f'v_and_b32 v{X2}, 7, v{V_LANE}'); e(f'v_lshl_add_u32 v{X1}, v{X2}, 2, v{X1}')
    e(f's_lshl_b32 s{T3s}, s{S_RB}, 5'); e(f's_add_u32 s{T3s}, s{T3s}, s{T2s}')
    e(f'v_add_u32 v{VFS}, s{T3s}, v{X1}')
    e(f's_and_b32 s{T3s}, s{S_RB}, 1'); e(f's_lshl_b32 s{T3s}, s{T3s}, 8'); e(f's_add_u32 s{T3s}, s{T3s}, s{T2s}')
    e(f's_lshr_b32 s{T4s}, s{S_RB}, 1'); e(f's_lshl_b32 s{T4s}, s{T4s}, 6'); e(f's_add_u32 s{T3s}, s{T3s}, s{T4s}')
    e(f'v_bfe_u32 v{X2}, v{V_LANE}, 4, 1'); e(f'v_lshlrev_b32 v{X2}, 7, v{X2}')
    e(f'v_and_b32 v{X3}, 15, v{V_LANE}'); e(f'v_lshl_add_u32 v{X2}, v{X3}, 2, v{X2}')
    e(f'v_add_u32 v{VFB}, s{T3s}, v{X2}')
    e(f's_lshl_b32 s{T3s}, s{S_R}, 2'); e(f's_add_u32 s{T3s}, s{T3s}, s{T2s}')
    e(f'v_and_b32 v{X2}, 3, v{V_LANE}'); e(f'v_lshlrev_b32 v{X2}, 7, v{X2}'); e(f'v_add_u32 v{X2}, s{T3s}, v{X2}')
    e(f'v_cmp_lt_u32 vcc, 31, v{V_LANE}'); e('s_nop 1')
    e(f'v_cndmask_b32 v{VFB}, v{VFB}, v{X2}, vcc')
    def build_fh(L):
        la = a.newlabel('FH'); lb = a.newlabel('FH')
        e(f's_lshl_b32 s{T2s}, s{S_G}, 9'); e(f's_add_u32 s{T2s}, s{T2s}, {hex(LF_OFF)}')
        e(f's_lshl_b32 s{T3s}, s{S_RB}, 5'); e(f's_add_u32 s{T3s}, s{T3s}, s{T2s}')
        e(f's_sub_u32 s{U1}, s{T3s}, 32'); e(f's_add_u32 s{U1}, s{U1}, 256'); e(f's_mov_b32 s{U3}, 128')
        e(f's_add_u32 s{U2}, s{T3s}, 32'); e(f's_mov_b32 s{U4}, 128')
        e(f's_lshl_b32 s{T4s}, s{S_G}, 8'); e(f's_add_u32 s{T4s}, s{T4s}, {hex(HF_OFF + L * 2048)}')
        e(f's_cmp_eq_u32 s{S_RB}, 0'); e(f's_cbranch_scc0 {la}')
        e(f's_mov_b32 s{U1}, s{T3s}')
        e(f's_cmp_eq_u32 s{S_G}, 0'); e(f's_cbranch_scc1 {la}')
        e(f's_mov_b32 s{U1}, s{T4s}'); e(f's_mov_b32 s{U3}, 0')
        a.label(la)
        e(f's_cmp_eq_u32 s{S_RB}, 3'); e(f's_cbranch_scc0 {lb}')
        e(f's_mov_b32 s{U2}, s{T3s}')
        e(f's_cmp_eq_u32 s{S_G}, 7'); e(f's_cbranch_scc1 {lb}')
        e(f's_add_u32 s{U2}, s{T4s}, 128'); e(f's_mov_b32 s{U4}, 0')
        a.label(lb)
        e(f'v_bfe_u32 v{X1}, v{V_LANE}, 3, 1'); e(f'v_and_b32 v{X2}, 7, v{V_LANE}'); e(f'v_lshlrev_b32 v{X2}, 2, v{X2}')
        for base_s, mul_s, sel in ((U1, U3, 2), (U2, U4, 3)):
            e(f'v_mul_u32_u24 v{X3}, s{mul_s}, v{X1}'); e(f'v_add_u32 v{X3}, v{X3}, v{X2}'); e(f'v_add_u32 v{X3}, s{base_s}, v{X3}')
            e(f'v_lshrrev_b32 v28, 4, v{V_LANE}'); e(f'v_cmp_eq_u32 vcc, {sel}, v28'); e('s_nop 1')
            e(f'v_cndmask_b32 v{VFH}, v{VFH if sel == 3 else VFS}, v{X3}, vcc')
    e('s_waitcnt lgkmcnt(0)')
    e(f's_mul_i32 s{S_B}, s{S_V}, 0x9e3779b1'); e(f's_add_u32 s{S_B}, s{S_B}, 0x7f4a7c15'); e(f's_and_b32 s{S_B}, s{S_B}, 0xffffff00')

    def poll(v, epoch):
        L_ = a.newlabel('AP'); D_ = a.newlabel('APD')
        e(f's_add_u32 s{THR}, s{S_B}, {8*epoch}'); e(f's_mov_b32 s{SPIN}, {opt.spin}')
        a.label(L_)
        e(f'buffer_load_dword v30, v{v}, {WS}, 0 offen sc1'); e('s_waitcnt vmcnt(0)')
        e(f'v_subrev_u32 v30, s{THR}, v30'); e('v_cmp_gt_u32 vcc, 0x80, v30')
        e(f's_sub_u32 s{SPIN}, s{SPIN}, 1'); e(f's_cbranch_scc1 {D_}')
        e('s_cmp_eq_u64 vcc, -1')
        if opt.poll_sleep:
            e(f's_cbranch_scc1 {D_}'); e(f's_sleep {opt.poll_sleep}'); e(f's_branch {L_}')
        else:
            e(f's_cbranch_scc0 {L_}')
        a.label(D_); a.vm = []
    def a_chunk(phase, c):
        for w in range(4):
            e(f's_mov_b32 m0, {hex(AREG + (c % 4) * 16384 + w * 4096)}')
            if phase == 'P7':
                last = None
                for k in range(4):
                    p_, i_ = divmod(4 * c + k, 7)
                    const = G_OFF + w * 57344 + (i_ - k) * 1024
                    if last != (p_, const):
                        e(f's_add_u32 s{T0s}, s{P7T+p_}, {hex(const & 0xffffffff)}'); last = (p_, const)
                    a.vmem(f'buffer_load_dwordx4 v{VAG}, {WS}, s{T0s} offen offset:{k*1024} sc1 lds', ('A', phase, c))
            else:
                if phase == 'P5':
                    va = VAH + 4 * c + w; e(f's_add_u32 s{T0s}, s{RA+c}, {hex(A0_OFF)}' if A0_OFF else f's_mov_b32 s{T0s}, s{RA+c}')
                elif phase == 'P3':
                    va = VAS; e(f's_add_u32 s{T0s}, s{RA+c}, s{U0}'); e(f's_add_u32 s{T0s}, s{T0s}, {hex(A0_OFF + w * 16384)}')
                else:
                    va = VAS; e(f's_add_u32 s{T0s}, s{RA+c}, {hex(A1_OFF + w * 16384)}')
                for k in range(4):
                    a.vmem(f'buffer_load_dwordx4 v{va}, {WS}, s{T0s} offen offset:{k*1024} sc1 lds', ('A', phase, c))
    e(f's_lshl_b32 s{U0}, s{S_G}, 1'); e(f's_add_u32 s{U0}, s{U0}, 1'); e(f's_lshl_b32 s{U0}, s{U0}, 14')

    dummy = [0]
    def wide(srd_s, soff_s):
        d = 64 + 4 * (dummy[0] % 40); dummy[0] += 1
        fl = 'sc1' if srd_s == WS else opt.touch_flags
        a.vmem(f'buffer_load_dwordx4 v[{d}:{d+3}], v{X0W}, {srd_s}, s{soff_s} offen {fl}', 'T')
    def mall_touch():
        for k in ['WO', 'W2', 'W4']:
            size = mats[k][1]; per = size // 256
            s = srds[k]
            e(f's_mul_i32 s{T0s}, s2, {per}')
            for i in range(per // 1024):
                if i: e(f's_add_u32 s{T0s}, s{T0s}, 1024')
                wide(f's[{s}:{s+3}]', T0s)
    def g_touch():
        e(f's_mul_i32 s{T0s}, s{S_G}, {16 * 57344}'); e(f's_mul_i32 s{T1s}, s{S_R}, 28672')
        e(f's_add_u32 s{T0s}, s{T0s}, s{T1s}'); e(f's_add_u32 s{T0s}, s{T0s}, {hex(G_OFF)}')
        for i in range(28):
            if i: e(f's_add_u32 s{T0s}, s{T0s}, 1024')
            wide(WS, T0s)
    def key(sx):
        k, p, c = sx.split(',')
        return (0, k, p, None if c == '-' else int(c))
    EPO = {'P3': 1, 'P4': 2, 'P5': 3, 'P7': 5}
    if opt.p7_self: del EPO['P7']
    nxt = 0
    for ev in events:
        L, kind, p, ci = ev
        if kind == 'B' and p in EPO:
            nch = NCH[p]
            if ci == 0:
                if p == 'P5': build_fh(L)
                poll({'P3': VFB, 'P4': VFS, 'P5': VFH, 'P7': VFB}[p], 1 + 6 * L + EPO[p])
                a_chunk(p, 0); a_chunk(p, 1); nxt = 2
            a.wait_vm(('A', p, ci))
            e('s_barrier')
            while nxt < nch and (nxt <= ci + 2 or nxt <= 3) and nxt <= ci + 2 + (1 if ci == 0 and False else 0):
                a_chunk(p, nxt); nxt += 1
        elif L == 0 and kind == 'B' and p == 'P1KV':
            a.wait_vm(('X', ci))
            if ci == 0: hstamp(a, opt, 14)
            if ci == 2: hstamp(a, opt, 15)
            e('s_barrier')
            if ci == 0: x_chunk(1, 1)
            if not EARLY[0] and 1 <= ci <= 2: x_chunk(ci + 1)
            if ci == 3: x_tile()
        elif kind == 'R':
            e('s_barrier')
            x_chunk(ci + 2)
        else:
            if ev == (0, 'E', 'P1KV', None): a.wait_vm('x')
            e('s_barrier')
        if opt.touch and opt.touch_at and ev == key(opt.touch_at): mall_touch()
        if opt.gtouch_at and ev == key(opt.gtouch_at) and not (opt.gtouch_parker and opt.park): g_touch()
    e('s_waitcnt vmcnt(0)')
    e('s_endpgm')


def gen_parker(a, opt, events, h):
    e = a.e
    a.c(f'--- parker {h}')
    plan = opt._plan
    W3S, W4S, CB6, CB7 = 40, 44, 64, 68
    QS = 48
    e(f's_mov_b32 s{QS}, s{S_PTR+2}'); e(f's_mov_b32 s{QS+1}, s{S_PTR+3}'); e(f's_mov_b32 s{QS+2}, {hex(512*1536*2)}'); e(f's_mov_b32 s{QS+3}, 0x20000')
    for s_, p_, size in ((W3S, S_PTR + 12, 512 * 1792 * 2), (W4S, S_PTR + 14, 1792 * 512 * 2)):
        e(f's_mov_b32 s{s_}, s{p_}'); e(f's_mov_b32 s{s_+1}, s{p_+1}'); e(f's_mov_b32 s{s_+2}, {hex(size)}'); e(f's_mov_b32 s{s_+3}, 0x20000')
    e(f'v_lshlrev_b32 v1, 4, v{V_LANE}')
    if WARM0[0]:
        e(f's_mul_i32 s33, s{S_R}, 49152')
        if h: e('s_add_u32 s33, s33, 24576')
        k_ = 0
        if h == 0:
            e(f's_lshl_b32 s34, s{S_G}, 18'); e(f's_lshl_b32 s35, s{S_R}, 13'); e('s_add_u32 s34, s34, s35')
            for i in range(8):
                a.vmem(f'buffer_load_dwordx4 v[{16+4*k_}:{19+4*k_}], v1, s[{S_X}:{S_X+3}], s34 offen', 'T'); k_ += 1
                e('s_add_u32 s34, s34, 1024')
        for i in range(24):
            a.vmem(f'buffer_load_dwordx4 v[{16+4*k_}:{19+4*k_}], v1, s[{QS}:{QS+3}], s33 offen', 'T'); k_ += 1
            e('s_add_u32 s33, s33, 1024')
    rm = 3 if opt.rot else 0
    for c in range(4):
        e(f's_lshl_b32 s{CB6+c}, s{S_RB2}, 1'); e(f's_and_b32 s{CB6+c}, s{CB6+c}, {rm}'); e(f's_xor_b32 s{CB6+c}, s{CB6+c}, {c}')
        e(f's_mul_i32 s{CB6+c}, s{CB6+c}, {128*3584}')
    for p_ in range(8):
        e(f's_and_b32 s{CB7+p_}, s{S_RB}, {rm}'); e(f's_lshl_b32 s{CB7+p_}, s{CB7+p_}, 1'); e(f's_xor_b32 s{CB7+p_}, s{CB7+p_}, {p_}')
        e(f's_mul_i32 s{CB7+p_}, s{CB7+p_}, {224*1024}')
    VN, VW, VL, X0, X1, X2 = 2, 4, 8, 11, 12, 13
    e(f'v_lshrrev_b32 v{X0}, 3, v{V_LANE}'); e(f'v_bfe_u32 v{X1}, v{X0}, 1, 1'); e(f'v_lshlrev_b32 v{X1}, 2, v{X1}')
    e(f'v_and_b32 v{X2}, 7, v{V_LANE}'); e(f'v_xor_b32 v{X2}, v{X2}, v{X1}')
    e(f'v_lshlrev_b32 v{VN}, 10, v{X0}'); e(f'v_lshl_add_u32 v{VN}, v{X2}, 4, v{VN}')
    e(f's_lshl_b32 s33, s{S_CB}, 7'); e(f'v_add_u32 v{VN}, s33, v{VN}'); e(f'v_add_u32 v{VN+1}, {hex(8192-1024)}, v{VN}')
    ps = [0, 1, 2, 3] if h == 0 else [4, 5, 6]
    M14 = (1 << 20) // 14 + 1
    e(f's_mul_i32 s33, s{S_CB2}, 224'); e(f's_mov_b32 s34, {hex(M14)}')
    for k, p_ in enumerate(ps):
        e(f'v_add_u32 v{X0}, {64*p_}, v{V_LANE}'); e(f'v_mul_lo_u32 v{X1}, v{X0}, s34'); e(f'v_lshrrev_b32 v{X1}, 20, v{X1}')
        e(f'v_mul_u32_u24 v{X2}, 14, v{X1}'); e(f'v_sub_u32 v{X2}, v{X0}, v{X2}')
        e(f'v_mul_u32_u24 v{VW+k}, 3584, v{X1}'); e(f'v_lshl_add_u32 v{VW+k}, v{X2}, 4, v{VW+k}'); e(f'v_add_u32 v{VW+k}, s33, v{VW+k}')
    e(f'v_lshlrev_b32 v{VL}, 4, v{V_LANE}'); e(f'v_add_u32 v{VL+1}, 0x10000, v{VL}'); e(f'v_add_u32 v{VL+2}, 0x20000, v{VL}')
    def wide(base_expr_emit, n):
        base_expr_emit()
        for i in range(n):
            if i: e('s_add_u32 s33, s33, 1024')
            a.vmem(f'buffer_load_dwordx4 v[{240+4*(i%4)}:{243+4*(i%4)}], v{VL}, {WS}, s33 offen sc1', 'T')
    def touch_a0():
        wide(lambda: (e(f's_mul_i32 s33, s{S_G}, {18*16384}'), e(f's_mul_i32 s34, s{S_R}, 9216'), e('s_add_u32 s33, s33, s34'), e(f's_add_u32 s33, s33, {hex(A0_OFF)}') if A0_OFF else None), 9)
    def touch_lin(off, per_group):
        wide(lambda: (e(f's_mul_i32 s33, s{S_G}, {per_group}'), e(f's_mul_i32 s34, s{S_R}, {per_group // 32}'), e('s_add_u32 s33, s33, s34'), e(f's_add_u32 s33, s33, {hex(off)}')), per_group // 32 // 1024)
    if WARM0[0]:
        a.wait_vm_all()
        e('s_barrier')
        events = events[1:]
    e('s_waitcnt lgkmcnt(0)')
    e(f's_mul_i32 s{S_B}, s{S_V}, 0x9e3779b1'); e(f's_add_u32 s{S_B}, s{S_B}, 0x7f4a7c15'); e(f's_and_b32 s{S_B}, s{S_B}, 0xffffff00')
    def kv_publish(L):
        K = 216
        e(f'v_lshlrev_b32 v{X0}, 2, v{V_LANE}')
        e(f'v_add_u32 v{X1}, {hex(SCR + h * 1024)}, v{X0}')
        e(f'v_add_u32 v{X2}, {hex(SCR + 8192 + h * 64)}, v{X0}')
        for ww in range(4):
            for i in range(4):
                e(f'ds_read_b32 v{K+4*ww+i}, v{X1} offset:{ww*2048+256*i}')
            if ww == 2: e('s_waitcnt lgkmcnt(4)')
        for ww in range(4):
            e(f'ds_read_b32 v{K+16+ww}, v{X2} offset:{ww*128}')
        e(f's_mul_i32 s33, s{S_CB2}, {KVREC}')
        e(f's_add_u32 s33, s33, {hex(KVA_OFF + L * 16 * KVREC)}')
        e(f's_add_u32 s34, s33, {h * 1024}')
        e(f's_add_u32 s35, s33, {2048 + h * 64}')
        e('s_waitcnt lgkmcnt(0)')
        for i in (0, 2):
            e(pk('add', K + i, vp(K + i), vp(K + 4 + i)))
            e(pk('add', K + 8 + i, vp(K + 8 + i), vp(K + 12 + i)))
            e(pk('add', K + i, vp(K + i), vp(K + 8 + i)))
        e(pk('add', K + 16, vp(K + 16), vp(K + 18)))
        e(f'v_add_f32 v{K+16}, v{K+16}, v{K+17}')
        for i in range(4):
            a.vmem(f'buffer_atomic_add_f32 v{K+i}, v{X0}, {WS}, s34 offen offset:{256*i}', 'kva')
        e('s_mov_b64 exec, 0xffff')
        a.vmem(f'buffer_atomic_add_f32 v{K+16}, v{X0}, {WS}, s35 offen', 'kva')
        e('s_mov_b64 exec, -1')
    def kv_flag(L):
        e(f's_lshl_b32 s33, s{S_CB2}, 7'); e(f's_lshl_b32 s34, s{S_G}, 3'); e('s_add_u32 s33, s33, s34')
        e(f's_lshl_b32 s34, s{S_RB2}, 2'); e('s_add_u32 s33, s33, s34'); e(f's_add_u32 s33, s33, {hex(KVF_OFF + L * 2048 + h * 64)}')
        e(f'v_mov_b32 v{X1}, s33')
        e(f's_add_u32 s34, s{S_B}, 8'); e(f's_add_u32 s34, s34, s{S_XCC}'); e(f'v_mov_b32 v{X2}, s34')
        a.wait_vm('kva')
        e('s_mov_b64 exec, 1')
        a.vmem(f'buffer_store_dword v{X2}, v{X1}, {WS}, 0 offen sc1', 'kvf')
        e('s_mov_b64 exec, -1')
    def tkey(sx):
        k, p, c = sx.split(',')
        return (0, k, p, None if c == '-' else int(c))
    slots = list(range(50))
    held = {}
    pending = set()
    def do(actions):
        for act, s_ in actions:
            if act == 'park':
                if s_.kind == 'W3':
                    c_, rr_ = divmod(s_.srow, 128)
                    e(f's_add_u32 s33, s{CB6+c_}, {hex(rr_*3584)}')
                    regs = []
                    for k, p_ in enumerate(ps):
                        sl = slots.pop(0); regs.append((sl, p_))
                        a.vmem(f'buffer_load_dwordx4 v[{16+4*sl}:{19+4*sl}], v{VW+k}, s[{W3S}:{W3S+3}], s33 offen', id(s_))
                else:
                    srow = s_.srow if h == 0 else s_.srow2
                    p_, rr_ = divmod(srow, 224)
                    e(f's_add_u32 s33, s{CB7+p_}, {hex(rr_*1024)}')
                    regs = []
                    for k in range(2):
                        sl = slots.pop(0); regs.append((sl, 2 * h + k))
                        a.vmem(f'buffer_load_dwordx4 v[{16+4*sl}:{19+4*sl}], v{VN+k}, s[{W4S}:{W4S+3}], s33 offen offset:{k*1024}', id(s_))
                held[id(s_)] = regs
            else:
                a.wait_vm(id(s_))
                for sl, p_ in held.pop(id(s_)):
                    ad = s_.addr + p_ * 1024
                    e(f'ds_write_b128 v{VL + (ad >> 16)}, v[{16+4*sl}:{19+4*sl}] offset:{ad & 0xffff}')
                    slots.append(sl)
                pending.add((s_.layer, s_.phase, s_.chunk))
    for ev in events:
        L, kind, p, ci = ev
        if kind == 'B':
            do(plan.get(f'pre {L}.{p}.B{ci}', []))
            if (L, p, ci) in pending:
                e('s_waitcnt lgkmcnt(0)'); pending.clear()
            e('s_barrier')
            acts = plan.get(f'{L}.{p}.B{ci}', [])
        elif kind == 'R':
            e('s_barrier'); acts = []
        elif kind == 'E':
            e('s_barrier'); acts = plan.get(f'{L}.{p}.E', [])
        else:
            e('s_barrier'); acts = plan.get(f'{L}.{p}', [])
        if kind == 'X' and p == 'X1' and opt.kv_by_parker and opt.kv_atomic:
            kv_publish(L)
        if ev[1:] == tkey(opt.kvflag_ev)[1:] and opt.kv_by_parker and opt.kv_atomic:
            kv_flag(L)
        do([x for x in acts if x[0] == 'unpark'])
        do([x for x in acts if x[0] == 'park'])
        if opt.pretouch and h == 1 and ev == tkey(opt.a2touch_at): touch_lin(A2_OFF, 262144)
        if opt.gtouch_parker and opt.gtouch_at and ev == tkey(opt.gtouch_at):
            wide(lambda: (e(f's_mul_i32 s33, s{S_G}, {16*57344}'), e(f's_mul_i32 s34, s{S_R}, 28672'), e('s_add_u32 s33, s33, s34'),
                          e(f's_add_u32 s33, s33, {hex(G_OFF + h * 14336)}')), 14)
        if opt.pretouch and ev == tkey(opt.a01touch_at):
            if h == 0:
                touch_a0(); touch_lin(ST_OFF, 32768)
            else:
                touch_lin(A1_OFF, 262144)
    e('s_waitcnt vmcnt(0) lgkmcnt(0)')
    e('s_endpgm')


def generate(opt):
    ATOMIC[0] = opt.kv_atomic
    EARLY[0] = opt.early_rel
    if opt.dbgout >= 0: opt.phi_clamp = 0
    WARM0[0] = 1 if (opt.warm0 and opt.park) else 0
    events = build_events(opt.stop)
    a = Asm(); a.opt = opt
    hdr = open(os.path.join(os.path.dirname(os.path.abspath(__file__)), 'header.txt')).read()
    out = [hdr.rstrip('\n')]
    out.append(f'; @launch grid=(256,1,1) block=({64*(8 if opt.park else 6)},1,1) lds={LDS_TOTAL}')
    out += ['.amdgcn_target "amdgcn-amd-amdhsa--gfx950"', '.text', f'.globl {KNAME}', '.p2align 8',
            f'.type {KNAME},@function', f'{KNAME}:']
    a.e('s_cmp_ge_u32 s2, 256')
    a.e('s_cbranch_scc1 L_EXIT')
    if opt.startdiag: a.e('s_memtime s[100:101]')
    if opt.dbgout >= 0 and opt.fine: a.e('s_memtime s[96:97]')
    if opt.wall:
        a.e('s_memrealtime s[18:19]') if False else None
    a.e(f's_load_dwordx16 s[{S_PTR}:{S_PTR+15}], s[0:1], 0')
    a.e(f's_load_dwordx4 s[{S_PTR+16}:{S_PTR+19}], s[0:1], 64')
    a.e(f's_load_dwordx2 s[{S_PTR+20}:{S_PTR+21}], s[0:1], 80')
    a.e('v_lshrrev_b32 v1, 6, v0')
    a.e('s_nop 0')
    if opt.prefetch_code:
        a.e('s_getpc_b64 s[34:35]')
        a.label('L_PC')
        a.e(f's_sub_u32 s34, s34, (L_PC - {KNAME})')
        a.e('s_subb_u32 s35, s35, 0')
        a.e('s_lshr_b32 s36, s2, 3')
        a.e('s_mul_i32 s36, s36, 2560')
        a.e('v_lshlrev_b32 v2, 7, v0')
        a.e('v_add_u32 v2, s36, v2')
        a.e(f's_mov_b32 s36, (L_CODE_END - {KNAME} - 4)')
        a.e('v_min_u32 v2, s36, v2')
        a.e('v_and_b32 v2, -4, v2')
        a.e('v_cmp_gt_u32 vcc, 20, v0')
        a.e('s_and_saveexec_b64 s[36:37], vcc')
        a.e('s_cbranch_execz L_NOPF')
        a.e('global_load_dword v255, v2, s[34:35]')
        a.label('L_NOPF')
        a.e('s_mov_b64 exec, s[36:37]')
    a.e(f'v_readfirstlane_b32 s{S_W}, v1')
    a.e(f'v_and_b32 v{V_LANE}, 63, v0')
    a.e(f's_getreg_b32 s{S_XCC}, hwreg(HW_REG_XCC_ID)')
    a.e(f's_and_b32 s{S_XCC}, s{S_XCC}, 7')
    a.e(f's_and_b32 s{S_G}, s2, 7')
    a.e(f's_lshr_b32 s{S_R}, s2, 3')
    a.e(f's_lshr_b32 s{S_RB}, s{S_R}, 3')
    a.e(f's_and_b32 s{S_CB}, s{S_R}, 7')
    a.e(f's_lshr_b32 s{S_RB2}, s{S_R}, 4')
    a.e(f's_and_b32 s{S_CB2}, s{S_R}, 15')
    a.e('s_waitcnt lgkmcnt(0)')
    if opt.ws_base:
        a.e(f's_add_u32 s{S_PTR+20}, s{S_PTR+20}, {hex(opt.ws_base)}')
        a.e(f's_addc_u32 s{S_PTR+21}, s{S_PTR+21}, 0')
    a.e(f's_add_u32 s34, s{S_PTR+20}, {hex(NONCE_OFF)}')
    a.e(f's_addc_u32 s35, s{S_PTR+21}, 0')
    a.e(f's_load_dword s{S_V}, s[34:35], 0')
    def srd(s, p, size):
        a.e(f's_mov_b32 s{s}, s{p}'); a.e(f's_mov_b32 s{s+1}, s{p+1}')
        a.e(f's_mov_b32 s{s+2}, {hex(size)}'); a.e(f's_mov_b32 s{s+3}, 0x20000')
    if opt.dbgout >= 0:
        a.e(f's_mov_b32 s86, s{S_PTR+18}'); a.e(f's_mov_b32 s87, s{S_PTR+19}')
    srd(S_WS, S_PTR + 20, WS_USED)
    srd(S_X, S_PTR + 0, 2048 * 512 * 2)
    srd(S_OUT, S_PTR + 16, 2048 * 512 * 2)
    a.e(f's_cmp_lt_u32 s{S_W}, 4')
    a.e('s_cbranch_scc1 L_COMPUTE')
    if opt.park:
        for wv in (6, 7):
            a.e(f's_cmp_eq_u32 s{S_W}, {wv}')
            a.e(f's_cbranch_scc0 L_NOTP{wv}')
            a.e('s_getpc_b64 s[34:35]')
            a.label(f'L_PCP{wv}')
            a.e(f's_add_u32 s34, s34, (L_PARKER{wv} - L_PCP{wv})')
            a.e('s_addc_u32 s35, s35, 0')
            a.e('s_setpc_b64 s[34:35]')
            a.label(f'L_NOTP{wv}')
    a.e(f's_cmp_eq_u32 s{S_W}, 5')
    a.e('s_cbranch_scc0 L_GOLOADER')
    a.e('s_getpc_b64 s[34:35]')
    a.label('L_PC3')
    a.e('s_add_u32 s34, s34, (L_TOUCHER - L_PC3)')
    a.e('s_addc_u32 s35, s35, 0')
    a.e('s_setpc_b64 s[34:35]')
    a.label('L_GOLOADER')
    a.e('s_getpc_b64 s[34:35]')
    a.label('L_PC2')
    a.e('s_add_u32 s34, s34, (L_LOADER - L_PC2)')
    a.e('s_addc_u32 s35, s35, 0')
    a.e('s_setpc_b64 s[34:35]')
    a.label('L_EXIT')
    a.e('s_endpgm')
    a.label('L_COMPUTE')
    a.vm = []
    if opt.stop is not None and opt.stop[0] == 0: cev = events
    else: cev = [e for e in build_events(None) if e[0] == 0]
    rest = gen_compute(a, opt, cev)
    assert not rest, rest
    a.label('L_LOADER')
    a.vm = []
    a.fstamp = lambda p: None
    gen_loader(a, opt, events)
    a.label('L_TOUCHER')
    a.vm = []
    gen_toucher(a, opt, events)
    if opt.park:
        for wv in (6, 7):
            a.label(f'L_PARKER{wv}')
            a.vm = []
            gen_parker(a, opt, events, wv - 6)
    a.label('L_CODE_END')
    out.append(a.text())
    out += ['.section .rodata,"a"', '.p2align 6', f'.amdhsa_kernel {KNAME}',
            '  .amdhsa_next_free_vgpr 256', '  .amdhsa_next_free_sgpr 102', '  .amdhsa_accum_offset 256',
            '  .amdhsa_group_segment_fixed_size 0', '  .amdhsa_kernarg_size 88', '  .amdhsa_user_sgpr_count 2',
            '  .amdhsa_user_sgpr_kernarg_segment_ptr 1', '  .amdhsa_system_sgpr_workgroup_id_x 1', '.end_amdhsa_kernel']
    return '\n'.join(out) + '\n'


if __name__ == '__main__':
    import argparse
    ap = argparse.ArgumentParser()
    ap.add_argument('-o', default='interleave_layers__linear_attn_block__mixer_s_mlp__prompt.s')
    ap.add_argument('--stop', default=None)
    ap.add_argument('--timing', action='store_true')
    ap.add_argument('--safe', action='store_true')
    ap.add_argument('--set', action='append', default=[])
    ap.add_argument('--fine', default=None)
    args = ap.parse_args()
    opt = Opt()
    if args.stop:
        l, p = args.stop.split(','); opt.stop = (int(l), p)
    opt.timing = args.timing; opt.force_safe = args.safe; opt.fine = args.fine
    opt.caps = dict(Opt.caps); opt.park_w3 = dict(Opt.park_w3); opt.park_caps = dict(Opt.park_caps)
    for kv in args.set:
        k, v = kv.split('=')
        if k.startswith('pk3:'): opt.park_w3[k[4:]] = int(v)
        elif k.startswith('pk4:'): opt.park_caps[k[4:]] = int(v)
        elif '.' in k or k in ('X1', 'X2'): opt.caps[k] = int(v)
        else:
            try: setattr(opt, k, int(v))
            except ValueError: setattr(opt, k, v.replace(':', ','))
    open(args.o, 'w').write(generate(opt))
    print('written', args.o)
    if os.environ.get('SCHED'):
        import itertools
        for k, g in itertools.groupby(opt._log, key=lambda x: x[0]):
            g = list(g); d = {}
            for x in g: d[(x[1], x[2], x[3])] = d.get((x[1], x[2], x[3]), 0) + 1
            print(k, ' '.join(f'{a_}.{b_}.c{c_}x{n_}' for (a_, b_, c_), n_ in d.items()), 'FORCED' if any(x[4] for x in g) else '')
```

```python
import sys, os, struct

KNAME = 'interleave_layers__linear_attn_block__mixer_s_mlp__prompt_kernel'

class Opt:
    stop = None
    timing = False
    fine = None
    force_safe = False
    window = 40
    window0 = 60
    caps = {'P1KV.E': 64, 'P1Q.B0': 16, 'P1Q.B1': 16, 'P1Q.E': 32,
            'P3.B0': 0, 'P3.B1': 32, 'P3.B2': 16, 'P3.B3': 16,
            'P4.B1': 32, 'P4.B2': 16, 'P4.B3': 16,
            'P5.B1': 35, 'P5.B2': 14, 'P5.B3': 21,
            'P6.B0': 28, 'P6.B1': 16, 'P6.B2': 16, 'P6.B3': 16, 'P6.E': 64,
            'P7.B*': 16, 'P7.E': 64}
    cap0 = 0
    touch = True
    dbg_w_same = 0
    w_nt = 0
    g_cold = 0
    touch_at = 'B,P1Q,0'
    rot = 1
    out_lds = 0
    early_rel = 0
    stats_srv = 1
    kv_by_parker = 1
    kvflag_ev = 'B,P1Q,1'
    prio_c = 0
    prio_a = 0
    prio_l = 0
    phi_clamp = 1
    warm0 = 0
    cs_late = 0
    poll_sleep = 0
    dbgout = -1
    dbgwg = 100
    pretouch = 1
    a2touch_at = 'B,P6,3'
    a01touch_at = 'B,P1KV,2'
    gtouch_parker = 1
    park = 1
    park_w3 = {'P1KV.E': 2, 'X1': 2, 'P1Q.E': 8}
    park_caps = {'P6.B1': 0, 'P6.B2': 0, 'P6.B3': 0, 'P6.E': 0}
    unpark_max = 6
    kv_atomic = 1
    wall = 0
    p7_self = 1
    dbg_skip = ''
    ws_base = 0
    late_a = 0
    kvflag_at = 5
    up3 = 1
    startdiag = 0
    gtouch_at = 'B,P5,2'
    dbg_a_same = 0
    touch_flags = ''
    spin = 1 << 17
    prefetch_code = True
    D_kv = 4
    D_p6 = 4

MB = 1 << 20
A0_OFF = 0
A1_OFF = 0x280000
A2_OFF = 0x480000
G_OFF = 0x680000
ST_OFF = 0xD80000
KVP_OFF = 0xDC0000
KVP_L = 0x88000
KVA_OFF = 0xED0000
LSTRIDE = 0x780000
FL_OFF = 0xF00000
LF_OFF = FL_OFF
KVF_OFF = FL_OFF + 4096
HF_OFF = FL_OFF + 8192
XID_OFF = FL_OFF + 29696
NONCE_OFF = FL_OFF + 30720
TM_OFF = FL_OFF + 32768
CSP_OFF = FL_OFF + 32768 + 65536
CSF_OFF = CSP_OFF + 65536
WS_USED = CSF_OFF + 32768
KVREC = 2176

LDS_TOTAL = 163840
AREG = 0
SCR = 49152
CSL = None
WRING = 65536
RING = 93952
PHI = 53248
CSL = WRING + 28672
CSC = WRING + RING
STC = CSC + 1088
STA, STB_, ST4 = 0, 512, 1024
assert STC % 16 == 0 and STC + 2048 <= LDS_TOTAL

EPS = 1e-5

def f2u(x):
    return struct.unpack('<I', struct.pack('<f', x))[0]

class Asm:
    def __init__(self):
        self.lines = []; self.nlabel = 0; self.vm = []
        self.fstamp = lambda p: None
    def e(self, s): self.lines.append('  ' + s)
    def c(self, s): self.lines.append('  ; ' + s)
    def label(self, name): self.lines.append(name + ':')
    def newlabel(self, base='L'):
        self.nlabel += 1
        return f'{base}_{self.nlabel}'
    def vmem(self, s, tag=None):
        self.e(s); self.vm.append(tag)
    def count_vm(self, tag):
        if tag not in self.vm: return None
        idx = max(i for i, t in enumerate(self.vm) if t == tag)
        n = len(self.vm) - 1 - idx
        assert n <= 63, n
        self.vm = self.vm[idx + 1:]
        return n
    def wait_vm(self, tag):
        n = self.count_vm(tag)
        if n is not None: self.e(f's_waitcnt vmcnt({n})')
    def wait_vm_all(self):
        self.e('s_waitcnt vmcnt(0)'); self.vm = []
    def text(self): return '\n'.join(self.lines)

def set_exec(a, lo, hi=None):
    a.e(f's_mov_b32 exec_lo, {hex(lo)}')
    a.e(f's_mov_b32 exec_hi, {hex(lo if hi is None else hi)}')

S_V = 3
S_WS = 4; S_X = 8; S_OUT = 12; S_PA = 16
S_G, S_R, S_W, S_RB, S_CB, S_RB2, S_CB2 = 20, 21, 22, 23, 24, 25, 26
S_MODE, S_L, S_LOFF, S_EP, S_B, S_XCC = 27, 28, 29, 30, 31, 32
S_T0, S_T1, S_T2, S_T3, S_T4, S_T5 = 33, 34, 35, 36, 37, 38
S_SPIN, S_THR = 39, 40
S_AOFF, S_AOFF2, S_ASTR = 41, 42, 43
S_C1, S_C2, S_ONE2 = 44, 46, 48
S_LOG2E, S_EPS6 = 50, 51
S_W4K = 52
S_RH, S_CH = 53, 54
S_U0, S_U1, S_U2, S_U3, S_U4 = 55, 56, 57, 58, 59
S_COLD = 62
S_GH = 63
S_RA = 86
S_RK = 90
S_P7 = 94
S_ROTK = 45
S_L2E2, S_E62 = 88, 86
S_PTR = 64
S_WQKV, S_WO, S_W1, S_W2, S_W3, S_W4 = 40, 44, 48, 52, 56, 60
S_CSRD = 88

V_LANE = 0
V_AS, V_AB, V_AG, V_P1 = 1, 2, 3, 4
V_AH = 5
V_STS, V_STB, V_STST, V_XRM, V_TST = 9, 10, 11, 12, 13
V_FSB, V_FBS, V_FSS, V_FH, V_FOWN, V_FKV = 14, 15, 16, 17, 18, 19
V_T128, V_T64, V_T224, V_TN, V_TA = 20, 21, 22, 23, 24
V_T0, V_T1, V_T2 = 25, 26, 27
V_TB = 28
V_RES = 32
V_MEAN, V_RS = 48, 49
V_X = 50
V_PQ = 56
V_ACC = 64
V_A = 128

PHASES = ['P1KV', 'P1Q', 'P3', 'P4', 'P5', 'P6', 'P7']
NCH = {'P1KV': 4, 'P1Q': 2, 'P3': 4, 'P4': 4, 'P5': 4, 'P6': 4, 'P7': 14}

ATOMIC = [1]
EARLY = [1]
WARM0 = [1]
NOE = ('P3', 'P4', 'P5')

class Slab:
    def __init__(self, layer, phase, chunk, kind, size, srow, npieces, srow2=None):
        self.layer, self.phase, self.chunk, self.kind = layer, phase, chunk, kind
        self.size, self.srow, self.npieces, self.srow2 = size, srow, npieces, srow2
        self.addr = None

def w4_tile_seq():
    seq = []
    for c in range(8):
        for i in [0, 1, 2, 3, 4, 5, 7, 8, 9, 10, 11, 12, 6, 13]:
            seq.append(14 * c + i)
    return seq

def build_slabs(layer):
    ph = {}
    def simple(phase, kind, nchunk, per, size, rows, np_):
        ph[phase] = [[Slab(layer, phase, c, kind, size, (c * per + j) * rows, np_) for j in range(per)] for c in range(nchunk)]
    simple('P1KV', 'KV', 4, 4, 4096, 32, 4)
    simple('P1Q', 'Q', 2, 4, 4096, 64, 4)
    simple('P3', 'WO', 4, 4, 4096, 32, 4)
    simple('P4', 'W1', 4, 4, 4096, 32, 4)
    simple('P5', 'W2', 4, 4, 4096, 32, 4)
    simple('P6', 'W3', 4, 4, 7168, 32, 7)
    seq = w4_tile_seq()
    ph['P7'] = [[Slab(layer, 'P7', c, 'W4', 4096, seq[2 * (c * 4 + j)] * 16, 4, srow2=seq[2 * (c * 4 + j) + 1] * 16)
                 for j in range(4)] for c in range(14)]
    pos = PHI
    for p in PHASES:
        for ch in ph[p]:
            for s in ch:
                if pos + s.size > RING: pos = 0
                s.addr = WRING + pos
                pos += s.size
    assert pos == PHI, pos
    return ph

def build_events(stop):
    ev = [(0, 'X', 'W0', None)] if WARM0[0] else []
    for L in range(2):
        for p in PHASES:
            for c in range(NCH[p]):
                ev.append((L, 'B', p, c))
                if EARLY[0] and L == 0 and p == 'P1KV' and c < 2: ev.append((L, 'R', p, c))
            if p not in NOE: ev.append((L, 'E', p, None))
            if p == 'P1KV': ev.append((L, 'X', 'X1', None))
            if p == 'P1Q' and not ATOMIC[0]: ev.append((L, 'X', 'X2', None))
            if stop == (L, p): return ev
    return ev

WS = f's[{S_WS}:{S_WS+3}]'

def thr_value(a, dst, epoch, xcc=False):
    if isinstance(epoch, int):
        a.e(f's_add_u32 s{dst}, s{S_B}, {8*epoch}')
    else:
        a.e(f's_lshl_b32 s{dst}, {epoch}, 3')
        a.e(f's_add_u32 s{dst}, s{dst}, s{S_B}')
    if xcc: a.e(f's_add_u32 s{dst}, s{dst}, s{S_XCC}')

def emit_poll(a, vaddr, epoch, soff='0', opt=Opt, x4=False, tbase=None):
    L = a.newlabel('POLL'); D = a.newlabel('POLLD')
    thr_value(a, S_THR, epoch)
    a.e(f's_mov_b32 s{S_SPIN}, {opt.spin}')
    a.label(L)
    if x4:
        T = tbase
        a.e(f'buffer_load_dwordx4 v[{T}:{T+3}], v{vaddr}, {WS}, {soff} offen sc1')
        a.e('s_waitcnt vmcnt(0)')
        for i in range(4): a.e(f'v_subrev_u32 v{T+i}, s{S_THR}, v{T+i}')
        a.e(f'v_max_u32 v{T}, v{T}, v{T+1}')
        a.e(f'v_max_u32 v{T+2}, v{T+2}, v{T+3}')
        a.e(f'v_max_u32 v{V_T0}, v{T}, v{T+2}')
    else:
        a.e(f'buffer_load_dword v{V_T2}, v{vaddr}, {WS}, {soff} offen sc1')
        a.e('s_waitcnt vmcnt(0)')
        a.e(f'v_subrev_u32 v{V_T0}, s{S_THR}, v{V_T2}')
    a.vm = []
    a.e(f'v_cmp_gt_u32 vcc, 0x80, v{V_T0}')
    a.e(f's_sub_u32 s{S_SPIN}, s{S_SPIN}, 1')
    a.e(f's_cbranch_scc1 {D}')
    a.e('s_cmp_eq_u64 vcc, -1')
    if opt.poll_sleep:
        a.e(f's_cbranch_scc1 {D}')
        a.e(f's_sleep {opt.poll_sleep}')
        a.e(f's_branch {L}')
    else:
        a.e(f's_cbranch_scc0 {L}')
    a.label(D)

def emit_mode_stores(a, stores, cold=False):
    F = a.newlabel('STF'); D = a.newlabel('STD')
    if getattr(a, 'opt', None) is not None and a.opt.pretouch and a.opt.park: cold = False
    a.e(f's_cmp_eq_u32 s{S_COLD if cold else S_MODE}, 0')
    a.e(f's_cbranch_scc1 {F}')
    for s in stores: a.e(s + ' sc1')
    a.e(f's_branch {D}')
    a.label(F)
    for s in stores: a.e(s)
    a.label(D)
    for s in stores: a.vm.append('st')

def emit_signal(a, epoch):
    thr_value(a, S_THR, epoch, xcc=True)
    a.e(f'v_mov_b32 v{V_T0}, s{S_THR}')
    a.wait_vm_all()
    a.e('s_mov_b64 exec, 1')
    emit_mode_stores(a, [f'buffer_store_dword v{V_T0}, v{V_FOWN}, {WS}, 0 offen'])
    a.e('s_mov_b64 exec, -1')

def emit_xreduce(a, regs, tmp, over16=True):
    for r, t in zip(regs, tmp): a.e(f'v_mov_b32 v{t}, v{r}')
    a.e('s_nop 1')
    for r, t in zip(regs, tmp): a.e(f'v_permlane32_swap_b32 v{r}, v{t}')
    a.e('s_nop 0')
    for r, t in zip(regs, tmp): a.e(f'v_add_f32 v{r}, v{r}, v{t}')
    if over16:
        for r, t in zip(regs, tmp): a.e(f'v_mov_b32 v{t}, v{r}')
        a.e('s_nop 1')
        for r, t in zip(regs, tmp): a.e(f'v_permlane16_swap_b32 v{r}, v{t}')
        a.e('s_nop 0')
        for r, t in zip(regs, tmp): a.e(f'v_add_f32 v{r}, v{r}, v{t}')

def pk(op, d, x, y, z=None, mods=''):
    s = f'v_pk_{op}_f32 v[{d}:{d+1}], {x}, {y}'
    if z is not None: s += f', {z}'
    return s + mods
def vp(r): return f'v[{r}:{r+1}]'

def emit_stats_partial32(a, vals, t0, st_soff, cold=False):
    s, q = t0, t0 + 2
    a.e(pk('add', s, vp(vals), vp(vals + 2)))
    a.e(pk('mul', q, vp(vals), vp(vals)))
    a.e(pk('fma', q, vp(vals + 2), vp(vals + 2), vp(q)))
    for i in range(4, 16, 2):
        a.e(pk('add', s, vp(s), vp(vals + i)))
        a.e(pk('fma', q, vp(vals + i), vp(vals + i), vp(q)))
    a.e(f'v_add_f32 v{t0}, v{s}, v{s+1}')
    a.e(f'v_add_f32 v{t0+1}, v{q}, v{q+1}')
    emit_xreduce(a, [t0, t0 + 1], [t0 + 4, t0 + 5], over16=False)
    set_exec(a, 0xffffffff, 0)
    emit_mode_stores(a, [f'buffer_store_dwordx2 v[{t0}:{t0+1}], v{V_STST}, {WS}, {st_soff} offen'], cold=cold)
    a.e('s_mov_b64 exec, -1')

def emit_stats_from_sums(a, s, ss, out_a, out_b, tmp, double=False, keep=None):
    mean, var = s, ss
    a.e(f'v_mul_f32 v{mean}, {hex(f2u(1.0/512))}, v{s}')
    a.e(f'v_mul_f32 v{var}, {hex(f2u(1.0/512))}, v{ss}')
    a.e(f'v_fma_f32 v{var}, -v{mean}, v{mean}, v{var}')
    a.e(f'v_max_f32 v{var}, 0, v{var}')
    a.e(f'v_add_f32 v{tmp}, {hex(f2u(EPS))}, v{var}')
    a.e(f'v_rsq_f32 v{tmp}, v{tmp}')
    a.e('s_nop 0')
    if double:
        a.e(f'v_mul_f32 v{tmp+1}, v{tmp}, v{tmp}')
        a.e(f'v_mul_f32 v{tmp+1}, v{tmp+1}, v{var}')
        a.e(f'v_add_f32 v{tmp+1}, {hex(f2u(EPS))}, v{tmp+1}')
        a.e(f'v_rsq_f32 v{tmp+1}, v{tmp+1}')
        a.e('s_nop 0')
        a.e(f'v_mul_f32 v{out_a}, v{tmp}, v{tmp+1}')
    else:
        a.e(f'v_mov_b32 v{out_a}, v{tmp}')
    if keep:
        a.e(f'v_mov_b32 v{keep[0]}, v{mean}')
        a.e(f'v_mov_b32 v{keep[1]}, v{tmp}')
    a.e(f'v_mul_f32 v{out_b}, v{out_a}, v{mean}')
    a.e(f'v_sub_f32 v{out_b}, 0, v{out_b}')

def emit_sum_partials(a, raw, n):
    k = n
    step = 2
    regs = [raw + i for i in range(0, n, 2)]
    while len(regs) > 1:
        nxt = []
        for i in range(0, len(regs), 2):
            a.e(pk('add', regs[i], vp(regs[i]), vp(regs[i + 1])))
            nxt.append(regs[i])
        regs = nxt

def emit_lnfold(a, acc, cs, av, bv, n):
    for i in range(0, n, 2):
        a.e(pk('mul', acc + i, vp(acc + i), vp(av), mods=' op_sel_hi:[1,0]'))
    for i in range(0, n, 2):
        a.e(pk('fma', acc + i, vp(cs + i), vp(bv), vp(acc + i), mods=' op_sel_hi:[1,0,1]'))

def emit_gelu(a, x, n, tmp, c1reg):
    blk = 16
    a.e(f'v_mov_b32 v{c1reg}, s{S_C1}')
    for b0 in range(0, n, blk):
        m = min(blk, n - b0); t = tmp
        for i in range(0, m, 2): a.e(pk('mul', t + i, vp(x + b0 + i), vp(x + b0 + i)))
        for i in range(0, m, 2): a.e(pk('fma', t + i, vp(t + i), f's[{S_C2}:{S_C2+1}]', vp(c1reg), mods=' op_sel_hi:[1,1,0]'))
        for i in range(0, m, 2): a.e(pk('mul', t + i, vp(t + i), vp(x + b0 + i)))
        for i in range(m): a.e(f'v_exp_f32 v{t+i}, v{t+i}')
        for i in range(0, m, 2): a.e(pk('add', t + i, vp(t + i), f's[{S_ONE2}:{S_ONE2+1}]'))
        for i in range(m): a.e(f'v_rcp_f32 v{t+i}, v{t+i}')
        for i in range(0, m, 2): a.e(pk('mul', x + b0 + i, vp(x + b0 + i), vp(t + i)))

def emit_phi(a, regs, tmp):
    if a.opt.phi_clamp and all(regs[i + 1] == regs[i] + 1 and regs[i] % 2 == 0 for i in range(0, len(regs), 2)) and tmp % 2 == 0:
        for i in range(0, len(regs), 2): a.e(pk('mul', tmp + i, vp(regs[i]), f's[{S_L2E2}:{S_L2E2+1}]'))
        for i, r in enumerate(regs): a.e(f'v_exp_f32_e64 v{tmp+i}, v{tmp+i} clamp')
        for i, r in enumerate(regs): a.e(f'v_max_f32 v{r}, 0, v{r}')
        for i in range(0, len(regs), 2): a.e(pk('add', tmp + i, vp(tmp + i), f's[{S_E62}:{S_E62+1}]'))
        for i in range(0, len(regs), 2): a.e(pk('add', regs[i], vp(regs[i]), vp(tmp + i)))
        return
    for i, r in enumerate(regs): a.e(f'v_min_f32 v{tmp+i}, 0, v{r}')
    for i, r in enumerate(regs): a.e(f'v_mul_f32 v{tmp+i}, s{S_LOG2E}, v{tmp+i}')
    for i, r in enumerate(regs): a.e(f'v_exp_f32 v{tmp+i}, v{tmp+i}')
    for i, r in enumerate(regs): a.e(f'v_max_f32 v{r}, 0, v{r}')
    for i, r in enumerate(regs): a.e(f'v_add_f32 v{r}, v{r}, v{tmp+i}')
    for i, r in enumerate(regs): a.e(f'v_add_f32 v{r}, s{S_EPS6}, v{r}')

def emit_pack(a, dst, src, n):
    for i in range(0, n, 2): a.e(f'v_cvt_pk_bf16_f32 v{dst+i//2}, v{src+i}, v{src+i+1}')

def emit_pack32(a, dst, src):
    for k, j in enumerate([0, 2, 1, 3]):
        a.e(f'v_cvt_pk_bf16_f32 v{dst+2*k}, v{src+4*j}, v{src+4*j+1}')
        a.e(f'v_cvt_pk_bf16_f32 v{dst+2*k+1}, v{src+4*j+2}, v{src+4*j+3}')

class TrBase:
    def __init__(self, a, lane_reg, nt):
        self.a, self.lane_reg, self.nt, self.cur = a, lane_reg, nt, None
    def off(self, addr, span):
        if self.cur is None or addr < self.cur or addr + span - self.cur > 65535:
            self.cur = addr
            for t in range(self.nt):
                if t == 0:
                    self.a.e(f'v_add_u32 v{V_TB}, {hex(addr)}, v{self.lane_reg}')
                else:
                    self.a.e(f'v_xor_b32 v{V_TB+t}, {t << 5}, v{self.lane_reg}')
                    self.a.e(f'v_add_u32 v{V_TB+t}, {hex(addr)}, v{V_TB+t}')
        return addr - self.cur

def emit_gemm16(a, bar, phase, chunks, CT, kind, acc_of, a_of, a_wait, a_issue, wr, S, normal=False, extra=None, a_lds=None):
    R, LA = 2, 4
    ks = []
    for ci, ch in enumerate(chunks):
        first = True
        for s in ch:
            ks.append((ci, s.addr, first)); first = False
            if kind == '64': ks.append((ci, s.addr + 2048, False))
    KS = len(ks)
    if kind == '128':
        trb = TrBase(a, V_T128, 4); second = 2048; span = 4096; tb = lambda t: V_TB + t; timm = lambda t: 0
    elif kind == '64':
        trb = TrBase(a, V_T64, 2); second = 1024; span = 2048; tb = lambda t: V_TB + t; timm = lambda t: 0
    else:
        trb = TrBase(a, V_T224, 1); second = 3584; span = 7168; tb = lambda t: V_TB; timm = lambda t: 32 * t
    total = KS * CT
    def slot(n): return wr + 4 * (n % S)
    def pre_issue(n):
        j, t = divmod(n, CT)
        ci, addr, first = ks[j]
        if t == 0 and first:
            a.fstamp(phase); bar(('B', phase, ci)); a.fstamp(phase)
        imm = trb.off(addr, span) if t == 0 else addr - trb.cur
        return imm + timm(t), t
    def rd(n, half, info):
        imm, t = info
        a.e(f'ds_read_b64_tr_b16 v[{slot(n)+2*half}:{slot(n)+2*half+1}], v{tb(t)} offset:{imm + (second if half else 0)}')
    def mfma(m, r):
        j, t = divmod(m, CT)
        d = acc_of(r, t); c = '0' if j == 0 else f'v[{d}:{d+3}]'
        w = f'v[{slot(m)}:{slot(m)+3}]'; x = f'v[{a_of(r,j)}:{a_of(r,j)+3}]'
        a.e(f'v_mfma_f32_16x16x32_bf16 v[{d}:{d+3}], ' + (f'{x}, {w}' if normal else f'{w}, {x}') + f', {c}')
    lq = []
    def need(tags):
        idx = max((i for i, g in enumerate(lq) if g in tags), default=None)
        if idx is None: return None
        n_ = len(lq) - 1 - idx
        del lq[:idx + 1]
        assert n_ <= 15
        return n_
    def pre2(n):
        info = pre_issue(n)
        j, t = divmod(n, CT)
        if a_lds and t == 0:
            ci, addr_, first = ks[j]
            if EARLY[0] and ci < 2:
                if first:
                    for jj in range(j, j + 4):
                        for s_ in a_lds(jj): a.e(s_)
                    a.e('s_waitcnt lgkmcnt(0)'); lq.clear()
                    bar(('R', phase, ci))
            else:
                for s_ in a_lds(j):
                    a.e(s_); lq.append(('A', j))
        return info
    def rd2(n, half, info):
        rd(n, half, info); lq.append(('W', n))
    for n in range(min(LA, total)):
        info = pre2(n); rd2(n, 0, info); rd2(n, 1, info)
    for n in range(total):
        j, t = divmod(n, CT)
        lg = need({('W', n), ('A', j)})
        vmn = a_wait(j) if t == 0 else None
        if t == 0 and j in (0, 1): a.fstamp(phase)
        parts = ([f'vmcnt({vmn})'] if vmn is not None else []) + ([f'lgkmcnt({lg})'] if lg is not None else [])
        if parts: a.e('s_waitcnt ' + ' '.join(parts))
        nx = n + LA; info = None
        mfma(n, 0)
        if nx < total:
            info = pre2(nx); rd2(nx, 0, info)
        mfma(n, 1)
        if nx < total: rd2(nx, 1, info)
        a_issue(j, t)
        if extra and t == CT - 1: extra(j)
    a.fstamp(phase); bar(('E', phase, None)); a.fstamp(phase)
    a.e('s_nop 7')

def emit_gemm32(a, bar, phase, chunks, acc, wr, tail=None, a_pieces=None):
    LA, S = 4, 5
    nch = len(chunks)
    total = nch * 8
    trb = TrBase(a, V_TN, 1)
    def slot(n): return wr + 8 * (n % S)
    def reads(n):
        c, rem = divmod(n, 8); ksl, s = divmod(rem, 2)
        out = []
        if rem == 0:
            if a_pieces: a.wait_vm(('A', c))
            a.fstamp(phase); bar(('B', phase, c)); a.fstamp(phase)
        sl = chunks[c][ksl]
        imm = trb.off(sl.addr, 4096)
        out.append(f'ds_read_b128 v[{slot(n)}:{slot(n)+3}], v{V_TA} offset:{(c % 4) * 16384 + ksl * 1024 + s * 512}')
        out.append(f'ds_read_b64_tr_b16 v[{slot(n)+4}:{slot(n)+5}], v{V_TB} offset:{imm + s * 1024}')
        out.append(f'ds_read_b64_tr_b16 v[{slot(n)+6}:{slot(n)+7}], v{V_TB} offset:{imm + s * 1024 + 2048}')
        return out
    queue = []; nxt = 2; passed = 0
    if a_pieces:
        for c in (0, 1):
            for t in a_pieces(c): t()
    for n in range(LA):
        for s in reads(n): a.e(s)
    for n in range(total):
        lg = 3 * (min(n - 1 + LA, total - 1) - n)
        a.e(f's_waitcnt lgkmcnt({lg})')
        c = '0' if n == 0 else f'v[{acc}:{acc+15}]'
        a.e(f'v_mfma_f32_32x32x16_bf16 v[{acc}:{acc+15}], v[{slot(n)+4}:{slot(n)+7}], v[{slot(n)}:{slot(n)+3}], {c}')
        nx = n + LA
        if nx < total:
            if nx % 8 == 0: passed = nx // 8
            for s in reads(nx): a.e(s)
        if a_pieces:
            while nxt < nch and (nxt <= passed + 2 or nxt <= 3) and len(queue) < 4:
                queue += list(a_pieces(nxt)); nxt += 1
            if queue: queue.pop(0)()
        if tail and n == max(total - 24, 0): tail()
    a.fstamp(phase)
    if phase not in NOE:
        bar(('E', phase, None))
    a.fstamp(phase)
    a.e('s_nop 7'); a.e('s_nop 3')


def gen_compute(a, opt, events):
    evq = list(events)
    tm = [0]
    def tmreg(i):
        assert i < 22, i
        return 64 + i
    def dump(regs):
        sk = a.newlabel('TMS')
        a.e('s_waitcnt lgkmcnt(0)')
        a.e(f's_cmp_eq_u32 s{S_W}, 0')
        a.e(f's_cbranch_scc0 {sk}')
        if opt.dbgout >= 0 and opt.fine:
            a.e(f's_cmp_eq_u32 s2, {opt.dbgwg}')
            a.e(f's_cbranch_scc0 {sk}')
            for i, r in enumerate(regs):
                a.e(f's_sub_u32 s{S_T0}, s{r}, s85')
                a.e(f'v_mov_b32 v{V_T0}, s{S_T0}')
                a.e(f'v_mov_b32 v{V_T1}, {4*i}')
                a.e(f'global_store_dword v{V_T1}, v{V_T0}, s[86:87]')
        elif opt.dbgout >= 0 and opt.timing:
            a.e(f's_cmp_eq_u32 s2, {opt.dbgwg}')
            a.e(f's_cbranch_scc0 {sk}')
            a.e(f's_cmp_eq_u32 s{S_L}, {opt.dbgout}')
            a.e(f's_cbranch_scc0 {sk}')
            sel = [1, 2, 3, 4, 5, 6, 8, 9, 11, 12, 14, 15, 16, 17, 18, 20]
            for i, k in enumerate(sel):
                if k >= len(regs): continue
                a.e(f's_sub_u32 s{S_T0}, s{regs[k]}, s{regs[0]}')
                a.e(f'v_mov_b32 v{V_T0}, s{S_T0}')
                a.e(f'v_mov_b32 v{V_T1}, {4*i}')
                a.e(f'global_store_dword v{V_T1}, v{V_T0}, s[86:87]')
        else:
            a.e(f's_lshl_b32 s{S_T0}, s2, 8')
            a.e(f's_lshl_b32 s{S_T1}, s{S_L}, 7')
            if opt.timing: a.e(f's_add_u32 s{S_T0}, s{S_T0}, s{S_T1}')
            a.e(f's_add_u32 s{S_T0}, s{S_T0}, {hex(TM_OFF)}')
            for i, r in enumerate(regs):
                a.e(f'v_mov_b32 v{V_T0}, s{r}')
                a.e(f'v_mov_b32 v{V_T1}, {4*i}')
                a.e(f'buffer_store_dword v{V_T0}, v{V_T1}, {WS}, s{S_T0} offen')
        a.label(sk)
        a.e('s_waitcnt vmcnt(0)')
    fs = [0]
    def freg(i): return 64 + 2 * i
    cnt_ = [0]
    def fs_skip(i):
        cnt_[0] += 1
        return cnt_[0] in (2, 4, 5, 6, 8, 10)
    def fstamp(phase):
        if opt.fine == phase and fs[0] < 10 and not (opt.dbgout >= 0 and fs_skip(fs[0])):
            a.e(f's_memtime s[{freg(fs[0])}:{freg(fs[0])+1}]'); fs[0] += 1
    a.fstamp = fstamp
    def stamp():
        if opt.timing:
            a.e('s_memtime s[60:61]')
            a.e('s_waitcnt lgkmcnt(0)')
            a.e(f's_mov_b32 s{tmreg(tm[0])}, s60'); tm[0] += 1

    T0, T1, T2, TB = V_T0, V_T1, V_T2, V_TB
    if opt.wall:
        a.e('s_memrealtime s[60:61]'); a.e('s_waitcnt lgkmcnt(0)'); a.e('s_mov_b32 s84, s60')
        a.e('s_memtime s[60:61]'); a.e('s_waitcnt lgkmcnt(0)'); a.e('s_mov_b32 s85, s60')
    if opt.dbgout >= 0 and opt.fine: a.e('s_mov_b32 s85, s96')
    if opt.prio_c: a.e(f's_setprio {opt.prio_c}')
    a.c('--- compute: early address setup')
    if opt.startdiag:
        a.e('s_memtime s[98:99]'); a.e('s_waitcnt lgkmcnt(0)'); a.e('s_sub_u32 s98, s98, s100'); a.e('s_mov_b32 s85, s98')
    stamp()
    a.e(f's_lshr_b32 s{S_RH}, s{S_W}, 1')
    a.e(f's_and_b32 s{S_CH}, s{S_W}, 1')
    a.e(f's_lshl_b32 s{S_W4K}, s{S_W}, 12')
    a.e(f's_lshl_b32 s{S_U0}, s{S_G}, 4')
    a.e(f's_lshl_b32 s{S_T1}, s{S_RB}, 2')
    a.e(f's_add_u32 s{S_U0}, s{S_U0}, s{S_T1}')
    a.e(f's_lshl_b32 s{S_T1}, s{S_RH}, 1')
    a.e(f's_add_u32 s{S_U2}, s{S_U0}, s{S_T1}')
    a.e(f's_add_u32 s{S_U0}, s{S_U0}, s{S_W}')
    a.e(f's_lshl_b32 s{S_U1}, s{S_G}, 4')
    a.e(f's_lshl_b32 s{S_T2}, s{S_RB2}, 3')
    a.e(f's_add_u32 s{S_U1}, s{S_U1}, s{S_T2}')
    a.e(f's_lshl_b32 s{S_T2}, s{S_W}, 1')
    a.e(f's_add_u32 s{S_U1}, s{S_U1}, s{S_T2}')
    a.e(f'v_and_b32 v{T0}, 15, v{V_LANE}')
    a.e(f'v_and_b32 v{T1}, 0x30, v{V_LANE}')
    a.e(f's_lshl_b32 s{S_ROTK}, s{S_RB2}, 1')
    a.e(f's_add_u32 s{S_ROTK}, s{S_ROTK}, s{S_CB2}')
    a.e(f's_and_b32 s{S_ROTK}, s{S_ROTK}, {3 if opt.rot else 0}')
    a.e(f'v_and_b32 v{T2}, 31, v{V_LANE}')
    a.e(f'v_lshrrev_b32 v{TB}, 5, v{V_LANE}')
    a.e(f'v_lshlrev_b32 v{V_XRM}, 10, v{T2}')
    a.e(f'v_lshl_add_u32 v{V_XRM}, v{TB}, 3, v{V_XRM}')
    a.e(f's_lshl_b32 s{S_T2}, s{S_U2}, 14')
    a.e(f's_lshl_b32 s{S_T3}, s{S_CB}, 7')
    a.e(f's_add_u32 s{S_T2}, s{S_T2}, s{S_T3}')
    a.e(f's_lshl_b32 s{S_T3}, s{S_CH}, 6')
    a.e(f's_add_u32 s{S_T2}, s{S_T2}, s{S_T3}')
    a.e(f'v_add_u32 v{V_XRM}, s{S_T2}, v{V_XRM}')
    PA = f's[{S_PA}:{S_PA+3}]'
    def p1_load(j):
        for r in range(2):
            a.vmem(f'buffer_load_dwordx4 v[{V_A+(r*16+j)*4}:{V_A+(r*16+j)*4+3}], v{V_AB}, {WS}, s{(S_RK if r == 0 else S_P7) + j // 4} offen offset:{(j%4)*1024} sc1', ('A', j))
    a.e('s_waitcnt lgkmcnt(0)')
    a.e(f's_mul_i32 s{S_B}, s{S_V}, 0x9e3779b1')
    a.e(f's_add_u32 s{S_B}, s{S_B}, 0x7f4a7c15')
    a.e(f's_and_b32 s{S_B}, s{S_B}, 0xffffff00')
    a.c('--- compute: address setup')
    a.e(f'v_lshlrev_b32 v{V_X}, 4, v{V_LANE}')
    a.e(f's_lshl_b32 s{S_T2}, s{S_U1}, 14')
    a.e(f'v_add_u32 v{V_AB}, s{S_T2}, v{V_X}')
    a.e(f'v_lshlrev_b32 v{V_STS}, 4, v{T2}')
    a.e(f'v_lshl_add_u32 v{V_STS}, v{TB}, 11, v{V_STS}')
    a.e(f's_lshl_b32 s{S_T2}, s{S_U2}, 11')
    a.e(f'v_add_u32 v{V_STS}, s{S_T2}, v{V_STS}')
    a.e(f'v_lshlrev_b32 v{V_STST}, 4, v{T2}')
    a.e(f's_lshl_b32 s{S_T4}, s{S_CB}, 9')
    a.e(f's_add_u32 s{S_T2}, s{S_T2}, s{S_T4}')
    a.e(f's_lshl_b32 s{S_T4}, s{S_CH}, 3')
    a.e(f's_add_u32 s{S_T2}, s{S_T2}, s{S_T4}')
    a.e(f'v_add_u32 v{V_STST}, s{S_T2}, v{V_STST}')
    a.e(f's_lshl_b32 s{S_T3}, s{S_CB}, 1')
    a.e(f's_add_u32 s{S_T3}, s{S_T3}, s{S_CH}')
    a.e(f'v_lshlrev_b32 v{V_STB}, 4, v{T0}')
    a.e(f'v_lshl_add_u32 v{V_STB}, v{T1}, 6, v{V_STB}')
    a.e(f's_lshl_b32 s{S_T2}, s{S_U1}, 11')
    a.e(f'v_add_u32 v{V_STB}, s{S_T2}, v{V_STB}')
    a.e(f'v_lshrrev_b32 v{V_TST}, 4, v{T2}')
    a.e(f'v_lshlrev_b32 v{V_TST}, 14, v{V_TST}')
    a.e(f'v_lshl_add_u32 v{V_TST}, v{TB}, 8, v{V_TST}')
    a.e(f'v_lshl_add_u32 v{V_TST}, v{T0}, 4, v{V_TST}')
    a.e(f's_lshl_b32 s{S_T2}, s{S_U2}, 14')
    a.e(f's_lshl_b32 s{S_T4}, s{S_T3}, 10')
    a.e(f's_add_u32 s{S_T2}, s{S_T2}, s{S_T4}')
    a.e(f'v_add_u32 v{V_TST}, s{S_T2}, v{V_TST}')
    a.e(f's_lshl_b32 s{S_T2}, s{S_G}, 9')
    a.e(f's_add_u32 s{S_T2}, s{S_T2}, {hex(LF_OFF)}')
    a.e(f's_lshl_b32 s{S_T3}, s{S_W}, 7')
    a.e(f's_add_u32 s{S_T3}, s{S_T3}, s{S_T2}')
    a.e(f's_lshl_b32 s{S_T4}, s{S_R}, 2')
    a.e(f's_add_u32 s{S_T4}, s{S_T4}, s{S_T3}')
    a.e(f'v_mov_b32 v{V_FOWN}, s{S_T4}')
    a.e(f'v_and_b32 v{V_X+1}, 7, v{V_LANE}')
    a.e(f'v_lshlrev_b32 v{V_X+1}, 2, v{V_X+1}')
    a.e(f'v_bfe_u32 v{V_X+2}, v{V_LANE}, 3, 1')
    a.e(f'v_lshl_add_u32 v{V_X+1}, v{V_X+2}, 7, v{V_X+1}')
    a.e(f's_lshl_b32 s{S_T4}, s{S_RB2}, 1')
    a.e(f's_add_u32 s{S_T4}, s{S_T4}, s{S_RH}')
    a.e(f's_lshl_b32 s{S_T4}, s{S_T4}, 5')
    a.e(f's_lshl_b32 s{S_T5}, s{S_CH}, 8')
    a.e(f's_add_u32 s{S_T4}, s{S_T4}, s{S_T5}')
    a.e(f's_add_u32 s{S_T4}, s{S_T4}, s{S_T2}')
    a.e(f'v_add_u32 v{V_FSB}, s{S_T4}, v{V_X+1}')
    a.e(f's_lshl_b32 s{S_T4}, s{S_CB2}, 7')
    a.e(f's_add_u32 s{S_T4}, s{S_T4}, {hex(KVF_OFF)}')
    a.e(f'v_lshlrev_b32 v{V_FKV}, 2, v{T2}')
    a.e(f'v_add_u32 v{V_FKV}, s{S_T4}, v{V_FKV}')
    a.e(f'v_bfe_u32 v{V_X+1}, v{V_LANE}, 2, 2')
    a.e(f'v_lshrrev_b32 v{V_X+2}, 4, v{V_LANE}')
    a.e(f'v_lshl_add_u32 v{V_X+3}, v{V_X+2}, 2, v{V_X+1}')
    a.e(f'v_and_b32 v{V_X+4}, 3, v{V_LANE}')
    a.e(f'v_lshlrev_b32 v{V_X+4}, 3, v{V_X+4}')
    a.e(f'v_bfe_u32 v{V_X+5}, v{V_X+3}, 1, 2')
    a.e(f'v_lshl_add_u32 v{V_T128}, v{V_X+5}, 5, v{V_X+4}')
    a.e(f'v_lshl_add_u32 v{V_T128}, v{V_X+3}, 7, v{V_T128}')
    a.e(f'v_bfe_u32 v{V_X+5}, v{V_X+3}, 2, 1')
    a.e(f'v_lshl_add_u32 v{V_T64}, v{V_X+5}, 5, v{V_X+4}')
    a.e(f'v_lshl_add_u32 v{V_T64}, v{V_X+3}, 6, v{V_T64}')
    a.e(f'v_mul_u32_u24 v{V_T224}, 224, v{V_X+3}')
    a.e(f'v_add_u32 v{V_T224}, v{V_T224}, v{V_X+4}')
    a.e(f'v_lshrrev_b32 v{V_X+3}, 1, v{V_X+2}')
    a.e(f'v_lshl_add_u32 v{V_X+3}, v{V_X+3}, 2, v{V_X+1}')
    a.e(f'v_and_b32 v{V_X+5}, 1, v{V_X+2}')
    a.e(f's_lshl_b32 s{S_T4}, s{S_CH}, 1')
    a.e(f'v_add_u32 v{V_X+5}, s{S_T4}, v{V_X+5}')
    a.e(f'v_and_b32 v{V_X+1}, 2, v{V_X+1}')
    a.e(f'v_xor_b32 v{V_X+5}, v{V_X+5}, v{V_X+1}')
    a.e(f'v_lshl_add_u32 v{V_TN}, v{V_X+5}, 5, v{V_X+4}')
    a.e(f'v_lshl_add_u32 v{V_TN}, v{V_X+3}, 7, v{V_TN}')
    a.e(f'v_bfe_u32 v{V_TA}, v{V_LANE}, 4, 1')
    a.e(f's_lshl_b32 s{S_T4}, s{S_RH}, 1')
    a.e(f'v_add_u32 v{V_TA}, s{S_T4}, v{V_TA}')
    a.e(f'v_lshlrev_b32 v{V_TA}, 12, v{V_TA}')
    a.e(f'v_lshl_add_u32 v{V_TA}, v{TB}, 8, v{V_TA}')
    a.e(f'v_lshl_add_u32 v{V_TA}, v{T0}, 4, v{V_TA}')
    if AREG: a.e(f'v_add_u32 v{V_TA}, {hex(AREG)}, v{V_TA}')
    c1 = -2.0 * 0.7978845608028654 * 1.4426950408889634
    c2 = c1 * 0.044715
    for s, v in [(S_C1, c1), (S_C2, c2), (S_C2 + 1, c2), (S_ONE2, 1.0), (S_ONE2 + 1, 1.0),
                 (S_LOG2E, 1.4426950408889634), (S_EPS6, 1e-6), (S_L2E2, 1.4426950408889634), (S_L2E2 + 1, 1.4426950408889634),
                 (S_E62, 1e-6), (S_E62 + 1, 1e-6)]:
        if opt.dbgout >= 0 and s in (S_E62, S_E62 + 1): continue
        a.e(f's_mov_b32 s{s}, {hex(f2u(v))}')
    a.e(f's_mov_b32 s{S_L}, 0')
    a.e(f's_mov_b32 s{S_LOFF}, 0')
    a.e(f's_mov_b32 s{S_EP}, 1')
    a.e(f's_mov_b32 s{S_MODE}, 1')
    a.e(f's_mov_b32 s{S_COLD}, 1')
    a.e(f's_lshl_b32 s{S_GH}, s{S_G}, 1')
    a.e(f's_add_u32 s{S_GH}, s{S_GH}, 1')
    a.e(f's_lshl_b32 s{S_GH}, s{S_GH}, 14')

    if WARM0[0]:
        assert evq[0][2] == 'W0'; evq.pop(0)
        a.e('s_barrier')
    LOOP = 'LAYER_LOOP'
    a.label(LOOP)
    slabs = build_slabs(0)

    def run_layer():
        def bar(ev):
            exp = evq.pop(0)
            assert exp[1:] == ev or (exp[1] == 'X' and ev[0] == 'X' and exp[2] == ev[1]), (exp, ev)
            a.e('s_barrier')
        def soff(reg, base, extra=0, gh=False):
            if gh: a.e(f's_add_u32 s{reg}, s{S_GH}, {hex(base + extra)}')
            else: a.e(f's_mov_b32 s{reg}, {hex(base + extra)}')
        def done(p):
            if opt.stop == (1, p):
                a.e(f's_cmp_eq_u32 s{S_L}, 1')
                a.e('s_cbranch_scc1 L_END_COMPUTE')
            return opt.stop == (0, p)
        def ep(k):
            a.e(f's_add_u32 s{S_T5}, s{S_EP}, {k}')
            return f's{S_T5}'

        a.c('=== P1KV')
        WR1 = 96; D1 = 116; ONES = 124; D2 = V_PQ
        srv = opt.stats_srv and opt.park
        for i in range(4): a.e(f'v_mov_b32 v{ONES+i}, 0x3f803f80')
        l0 = a.newlabel('KVL0'); ljoin = a.newlabel('KVJ')
        a.e(f's_cmp_eq_u32 s{S_L}, 0')
        a.e(f's_cbranch_scc1 {l0}')
        saved_ev = list(evq)
        evq[:] = [x for x in evq if x[1] != 'R']
        emit_poll(a, V_FSB, f's{S_EP}', opt=opt)
        for j in range(opt.D_kv): p1_load(j)
        stamp()
        a.fstamp('P1KV')
        def kv_issue(j, t):
            if t == 1:
                if j + opt.D_kv < 16:
                    p1_load(j + opt.D_kv)
                elif j + opt.D_kv == 16 and not srv:
                    soff(S_T0, ST_OFF)
                    a.vmem(f'buffer_load_dwordx4 v[{D1}:{D1+3}], v{V_STB}, {WS}, s{S_T0} offen sc1', 'st')
                    a.vmem(f'buffer_load_dwordx4 v[{D1+4}:{D1+7}], v{V_STB}, {WS}, s{S_T0} offen offset:512 sc1', 'st')
                    a.vmem(f'buffer_load_dwordx4 v[{D2}:{D2+3}], v{V_STB}, {WS}, s{S_T0} offen offset:256 sc1', 'st')
                    a.vmem(f'buffer_load_dwordx4 v[{D2+4}:{D2+7}], v{V_STB}, {WS}, s{S_T0} offen offset:768 sc1', 'st')
        emit_gemm16(a, bar, 'P1KV', slabs['P1KV'], 4, '128',
                    acc_of=lambda r, t: V_ACC + (r * 4 + t) * 4, a_of=lambda r, j: V_A + (r * 16 + j) * 4,
                    a_wait=lambda j: a.count_vm(('A', j)), a_issue=kv_issue, wr=WR1, S=5, normal=True)
        a.e(f's_branch {ljoin}')
        a.label(l0)
        evq[:] = saved_ev
        a.vm = []
        fs[0] = 0
        cnt_[0] = 0
        a.fstamp('P1KV')
        tm[0] -= 1 if opt.timing else 0
        stamp()
        VLA = V_X
        a.e(f'v_and_b32 v{T0}, 15, v{V_LANE}')
        a.e(f'v_lshrrev_b32 v{T1}, 4, v{V_LANE}')
        a.e(f'v_xor_b32 v{T1}, v{T1}, v{T0}')
        a.e(f'v_lshlrev_b32 v{T1}, 4, v{T1}')
        a.e(f's_lshl_b32 s{S_T0}, s{S_W}, 5')
        a.e(f'v_add_u32 v{T0}, s{S_T0}, v{T0}')
        a.e(f'v_lshlrev_b32 v{T0}, 8, v{T0}')
        for j in range(4):
            a.e(f'v_xor_b32 v{VLA+j}, {64*j}, v{T1}')
            a.e(f'v_add_u32 v{VLA+j}, v{VLA+j}, v{T0}')
        def kv_lds(j):
            c = j // 4
            return [f'ds_read_b128 v[{V_A+(r*16+j)*4}:{V_A+(r*16+j)*4+3}], v{VLA + j % 4} offset:{AREG + (c & 1) * 32768 + r * 4096}' for r in range(2)]
        def kv_extra(j):
            for r in range(2):
                x = f'v[{V_A+(r*16+j)*4}:{V_A+(r*16+j)*4+3}]'
                c1_ = '0' if j == 0 else f'v[{D1+4*r}:{D1+4*r+3}]'
                c2_ = '0' if j == 0 else f'v[{D2+4*r}:{D2+4*r+3}]'
                a.e(f'v_mfma_f32_16x16x32_bf16 v[{D1+4*r}:{D1+4*r+3}], v[{ONES}:{ONES+3}], {x}, {c1_}')
                a.e(f'v_mfma_f32_16x16x32_bf16 v[{D2+4*r}:{D2+4*r+3}], {x}, {x}, {c2_}')
        emit_gemm16(a, bar, 'P1KV', slabs['P1KV'], 4, '128',
                    acc_of=lambda r, t: V_ACC + (r * 4 + t) * 4, a_of=lambda r, j: V_A + (r * 16 + j) * 4,
                    a_wait=lambda j: None, a_issue=lambda j, t: None, wr=WR1, S=5, normal=True, extra=kv_extra, a_lds=kv_lds)
        a.label(ljoin)
        stamp()
        a.wait_vm_all()
        SUM = [(V_X, V_X + 1), (V_X + 2, V_X + 3)]
        l1 = a.newlabel('S1'); le = a.newlabel('SE')
        a.e(f's_cmp_eq_u32 s{S_L}, 0')
        a.e(f's_cbranch_scc0 {l1}')
        a.e(f'v_and_b32 v{T0}, 31, v{V_LANE}')
        a.e(f'v_lshlrev_b32 v{T0}, 7, v{T0}')
        a.e(f'v_lshrrev_b32 v{T1}, 5, v{V_LANE}')
        a.e(f'v_lshl_add_u32 v{T0}, v{T1}, 3, v{T0}')
        a.e(f's_lshl_b32 s{S_T0}, s{S_RH}, 12')
        a.e(f's_lshl_b32 s{S_T1}, s{S_CH}, 6')
        a.e(f's_add_u32 s{S_T0}, s{S_T0}, s{S_T1}')
        if AREG: a.e(f's_add_u32 s{S_T0}, s{S_T0}, {hex(AREG)}')
        a.e(f'v_add_u32 v{T0}, s{S_T0}, v{T0}')
        for j in range(4):
            a.e(f'ds_read_b64 v[{V_RES+4*j}:{V_RES+4*j+1}], v{T0} offset:{16*j}')
        a.e('s_waitcnt lgkmcnt(0)')
        for j in range(4):
            b = V_RES + 4 * j
            a.e(f'v_and_b32 v{b+3}, 0xffff0000, v{b+1}')
            a.e(f'v_lshlrev_b32 v{b+2}, 16, v{b+1}')
            a.e(f'v_and_b32 v{b+1}, 0xffff0000, v{b}')
            a.e(f'v_lshlrev_b32 v{b}, 16, v{b}')
        a.e(f'v_and_b32 v{T0}, 3, v{V_LANE}')
        a.e(f'v_bfe_u32 v{T1}, v{V_LANE}, 2, 2')
        a.e(f'v_lshrrev_b32 v{T2}, 4, v{V_LANE}')
        for r in range(2):
            s_, ss_ = SUM[r]
            a.e(f'v_mov_b32 v{s_}, v{D1+4*r}')
            a.e(f'v_mov_b32 v{ss_}, v{D2+4*r}')
            for i in range(1, 4):
                a.e(f'v_cmp_eq_u32 vcc, {i}, v{T0}')
                a.e('s_nop 1')
                a.e(f'v_cndmask_b32 v{ss_}, v{ss_}, v{D2+4*r+i}, vcc')
            a.e(f'v_cmp_eq_u32 vcc, v{T1}, v{T2}')
            a.e('s_nop 1')
            a.e(f'v_cndmask_b32 v{ss_}, 0, v{ss_}, vcc')
        emit_xreduce(a, [SUM[0][1], SUM[1][1]], [T0, T1])
        KEEP = [(V_PQ + 0, V_PQ + 2), (V_PQ + 4, V_PQ + 6)]
        AI = [WR1, WR1 + 8]; BI = [WR1 + 4, WR1 + 12]
        CSR = 120
        if srv:
            for r in range(2):
                emit_stats_from_sums(a, SUM[r][0], SUM[r][1], KEEP[r][0], KEEP[r][1], WR1)
            a.e(f'v_and_b32 v{T0}, 15, v{V_LANE}')
            a.e(f'v_lshlrev_b32 v{T0}, 2, v{T0}')
            a.e(f's_lshl_b32 s{S_T0}, s{S_W}, 7')
            a.e(f'v_add_u32 v{T0}, s{S_T0}, v{T0}')
            a.e(f'v_add_u32 v{T0}, {hex(STC)}, v{T0}')
            a.e('s_mov_b64 exec, 0xffff')
            for r in range(2):
                a.e(f'ds_write_b32 v{T0}, v{KEEP[r][0]} offset:{STA + 64*r}')
                a.e(f'ds_write_b32 v{T0}, v{KEEP[r][1]} offset:{STB_ + 64*r}')
            a.e('s_mov_b64 exec, -1')
            a.label(l1)
            a.e(f'v_and_b32 v{T1}, 0x30, v{V_LANE}')
            a.e(f's_lshl_b32 s{S_T0}, s{S_W}, 7')
            a.e(f's_add_u32 s{S_T0}, s{S_T0}, {hex(STC)}')
            a.e(f'v_add_u32 v{T2}, s{S_T0}, v{T1}')
            a.e(f'v_and_b32 v{T0}, 15, v{V_LANE}')
            a.e(f'v_lshlrev_b32 v{T0}, 2, v{T0}')
            a.e(f'v_add_u32 v{V_X}, s{S_T0}, v{T0}')
            for r in range(2):
                a.e(f'ds_read_b128 v[{AI[r]}:{AI[r]+3}], v{T2} offset:{STA + 64*r}')
                a.e(f'ds_read_b128 v[{BI[r]}:{BI[r]+3}], v{T2} offset:{STB_ + 64*r}')
                a.e(f'ds_read_b32 v{KEEP[r][0]}, v{V_X} offset:{STA + 64*r}')
                a.e(f'ds_read_b32 v{KEEP[r][1]}, v{V_X} offset:{STB_ + 64*r}')
            a.e(f'v_add_u32 v{T0}, {hex(CSC)}, v{T0}')
            for t in range(4):
                a.e(f'ds_read_b32 v{CSR+t}, v{T0} offset:{64*t}')
            a.e('s_waitcnt lgkmcnt(0)')
        else:
            a.e(f's_branch {le}')
            a.label(l1)
            for r, raw in enumerate([D1, D2]):
                emit_sum_partials(a, raw, 8)
                a.e(f'v_mov_b32 v{SUM[r][0]}, v{raw}')
                a.e(f'v_mov_b32 v{SUM[r][1]}, v{raw+1}')
            emit_xreduce(a, [SUM[0][0], SUM[0][1], SUM[1][0], SUM[1][1]], [WR1, WR1 + 1, WR1 + 2, WR1 + 3])
            a.label(le)
            a.e(f'v_and_b32 v{T0}, 15, v{V_LANE}')
            a.e(f'v_lshlrev_b32 v{T0}, 2, v{T0}')
            a.e(f'v_add_u32 v{T0}, {hex(CSC)}, v{T0}')
            a.e(f'v_and_b32 v{T1}, 0x30, v{V_LANE}')
            for t in range(4):
                a.e(f'ds_read_b32 v{CSR+t}, v{T0} offset:{64*t}')
            for r in range(2):
                emit_stats_from_sums(a, SUM[r][0], SUM[r][1], KEEP[r][0], KEEP[r][1], WR1)
            for r in range(2):
                for i in range(4):
                    a.e(f'ds_bpermute_b32 v{AI[r]+i}, v{T1}, v{KEEP[r][0]} offset:{4*i}')
                    a.e(f'ds_bpermute_b32 v{BI[r]+i}, v{T1}, v{KEEP[r][1]} offset:{4*i}')
            a.e('s_waitcnt vmcnt(0) lgkmcnt(0)'); a.vm = []
        CSE = WR1 + 16
        for t in range(4): a.e(f'v_mov_b32 v{CSE+2*t}, v{CSR+t}')
        for r in range(2):
            for t in range(4):
                for i in (0, 2):
                    d = V_ACC + (r * 4 + t) * 4 + i
                    a.e(pk('mul', d, vp(d), vp(AI[r] + i)))
            for t in range(4):
                for i in (0, 2):
                    d = V_ACC + (r * 4 + t) * 4 + i
                    a.e(pk('fma', d, vp(BI[r] + i), vp(CSE + 2 * t), vp(d), mods=' op_sel_hi:[1,0,1]'))
        regs = [V_ACC + (r * 4 + t) * 4 + i for r in range(2) for t in range(2) for i in range(4)]
        emit_phi(a, regs, WR1)
        for t in range(4):
            b0 = V_ACC + t * 4; b1 = V_ACC + (4 + t) * 4
            a.e(f'v_cvt_pk_bf16_f32 v{b0}, v{b0}, v{b0+1}')
            a.e(f'v_cvt_pk_bf16_f32 v{b0+1}, v{b0+2}, v{b0+3}')
            a.e(f'v_cvt_pk_bf16_f32 v{b0+2}, v{b1}, v{b1+1}')
            a.e(f'v_cvt_pk_bf16_f32 v{b0+3}, v{b1+2}, v{b1+3}')
        a.e('s_nop 1')
        KVD = V_ACC + 16
        for h in range(2):
            a.e(f'v_mfma_f32_16x16x32_bf16 v[{KVD+4*h}:{KVD+4*h+3}], v[{V_ACC+4*h}:{V_ACC+4*h+3}], v[{V_ACC+8+4*h}:{V_ACC+8+4*h+3}], 0')
            a.e(f'v_mfma_f32_16x16x32_bf16 v[{KVD+8+4*h}:{KVD+8+4*h+3}], v[{V_ACC+4*h}:{V_ACC+4*h+3}], v[{ONES}:{ONES+3}], 0')
        a.e(f's_lshl_b32 s{S_T0}, s{S_W}, 11')
        a.e(f's_add_u32 s{S_T0}, s{S_T0}, {hex(SCR)}')
        a.e(f'v_lshlrev_b32 v{T0}, 4, v{V_LANE}')
        a.e(f'v_add_u32 v{T0}, s{S_T0}, v{T0}')
        a.e(f's_lshl_b32 s{S_T0}, s{S_W}, 7')
        a.e(f's_add_u32 s{S_T0}, s{S_T0}, {hex(SCR + 8192)}')
        a.e(f'v_add_u32 v{T2}, s{S_T0}, v{T1}')
        a.e('s_nop 4')
        a.e(f'ds_write_b128 v{T0}, v[{KVD}:{KVD+3}]')
        a.e(f'ds_write_b128 v{T0}, v[{KVD+4}:{KVD+7}] offset:1024')
        set_exec(a, 0x00010001)
        a.e(f'ds_write_b128 v{T2}, v[{KVD+8}:{KVD+11}]')
        a.e(f'ds_write_b128 v{T2}, v[{KVD+12}:{KVD+15}] offset:64')
        a.e('s_mov_b64 exec, -1')
        a.e('s_waitcnt lgkmcnt(0)')
        bar(('X', 'X1'))
        sk = a.newlabel('KVST')
        byp = opt.kv_by_parker and opt.park and opt.kv_atomic
        if byp: a.e(f's_branch {sk}')
        a.e(f's_cmp_lt_u32 s{S_W}, 2')
        a.e(f's_cbranch_scc0 {sk}')
        if opt.kv_atomic:
            a.e(f's_lshl_b32 s{S_T0}, s{S_W}, 10')
            a.e(f's_add_u32 s{S_T0}, s{S_T0}, {hex(SCR)}')
            a.e(f'v_lshlrev_b32 v{T0}, 2, v{V_LANE}')
            a.e(f'v_add_u32 v{T2}, s{S_T0}, v{T0}')
            a.e(f's_lshl_b32 s{S_T0}, s{S_W}, 6')
            a.e(f's_add_u32 s{S_T0}, s{S_T0}, {hex(SCR + 8192)}')
            a.e(f'v_add_u32 v{V_X}, s{S_T0}, v{T0}')
            KB = V_ACC
            for ww in range(4):
                for i in range(4):
                    a.e(f'ds_read_b32 v{KB+4*ww+i}, v{T2} offset:{ww*2048+256*i}')
                if ww == 2: a.e('s_waitcnt lgkmcnt(4)')
            for ww in range(4):
                a.e(f'ds_read_b32 v{KB+16+ww}, v{V_X} offset:{ww*128}')
            a.e(f's_mul_i32 s{S_T0}, s{S_CB2}, {KVREC}')
            a.e(f's_mul_i32 s{S_T1}, s{S_L}, {16*KVREC}')
            a.e(f's_add_u32 s{S_T0}, s{S_T0}, s{S_T1}')
            a.e(f's_add_u32 s{S_T0}, s{S_T0}, {hex(KVA_OFF)}')
            a.e(f's_lshl_b32 s{S_T1}, s{S_W}, 10')
            a.e(f's_add_u32 s{S_T1}, s{S_T1}, s{S_T0}')
            a.e(f's_lshl_b32 s{S_T2}, s{S_W}, 6')
            a.e(f's_add_u32 s{S_T2}, s{S_T2}, s{S_T0}')
            a.e(f's_add_u32 s{S_T2}, s{S_T2}, 2048')
            a.e('s_waitcnt lgkmcnt(0)')
            for i in (0, 2):
                a.e(pk('add', KB + i, vp(KB + i), vp(KB + 4 + i)))
                a.e(pk('add', KB + 8 + i, vp(KB + 8 + i), vp(KB + 12 + i)))
                a.e(pk('add', KB + i, vp(KB + i), vp(KB + 8 + i)))
            a.e(pk('add', KB + 16, vp(KB + 16), vp(KB + 18)))
            a.e(f'v_add_f32 v{KB+16}, v{KB+16}, v{KB+17}')
            for i in range(4):
                a.e(f'buffer_atomic_add_f32 v{KB+i}, v{T0}, {WS}, s{S_T1} offen offset:{256*i}')
            a.e('s_mov_b64 exec, 0xffff')
            a.e(f'buffer_atomic_add_f32 v{KB+16}, v{T0}, {WS}, s{S_T2} offen')
            a.e('s_mov_b64 exec, -1')
        else:
            a.e(f's_lshl_b32 s{S_T0}, s{S_W}, 10')
            a.e(f's_add_u32 s{S_T0}, s{S_T0}, {hex(SCR)}')
            a.e(f'v_lshlrev_b32 v{T0}, 4, v{V_LANE}')
            a.e(f'v_add_u32 v{T2}, s{S_T0}, v{T0}')
            a.e(f's_lshl_b32 s{S_T0}, s{S_W}, 6')
            a.e(f's_add_u32 s{S_T0}, s{S_T0}, {hex(SCR + 8192)}')
            a.e(f'v_add_u32 v{V_X}, s{S_T0}, v{T1}')
            KB = V_ACC
            for ww in range(4):
                a.e(f'ds_read_b128 v[{KB+4*ww}:{KB+4*ww+3}], v{T2} offset:{ww*2048}')
                a.e(f'ds_read_b128 v[{KB+16+4*ww}:{KB+16+4*ww+3}], v{V_X} offset:{ww*128}')
            a.e(f's_lshl_b32 s{S_T0}, s{S_CB2}, 4')
            a.e(f's_lshl_b32 s{S_T1}, s{S_G}, 1')
            a.e(f's_add_u32 s{S_T0}, s{S_T0}, s{S_T1}')
            a.e(f's_add_u32 s{S_T0}, s{S_T0}, s{S_RB2}')
            a.e(f's_mul_i32 s{S_T0}, s{S_T0}, {KVREC}')
            a.e(f's_add_u32 s{S_T0}, s{S_T0}, s{S_LOFF}')
            a.e(f's_add_u32 s{S_T0}, s{S_T0}, {hex(KVP_OFF)}')
            a.e(f's_lshl_b32 s{S_T1}, s{S_W}, 10')
            a.e(f's_add_u32 s{S_T1}, s{S_T1}, s{S_T0}')
            a.e(f's_lshl_b32 s{S_T2}, s{S_W}, 6')
            a.e(f's_add_u32 s{S_T2}, s{S_T2}, s{S_T0}')
            a.e(f's_add_u32 s{S_T2}, s{S_T2}, 2048')
            a.e('s_waitcnt lgkmcnt(0)')
            for base in (KB, KB + 16):
                for i in range(0, 4, 2):
                    a.e(pk('add', base + i, vp(base + i), vp(base + 4 + i)))
                    a.e(pk('add', base + 8 + i, vp(base + 8 + i), vp(base + 12 + i)))
                    a.e(pk('add', base + i, vp(base + i), vp(base + 8 + i)))
            a.e(f'buffer_store_dwordx4 v[{KB}:{KB+3}], v{T0}, {WS}, s{S_T1} offen sc1')
            set_exec(a, 0x00010001)
            a.e(f'buffer_store_dwordx4 v[{KB+16}:{KB+19}], v{T1}, {WS}, s{S_T2} offen sc1')
            a.e('s_mov_b64 exec, -1')
        a.e(f's_lshl_b32 s{S_T0}, s{S_L}, 11')
        a.e(f's_lshl_b32 s{S_T1}, s{S_CB2}, 7')
        a.e(f's_add_u32 s{S_T0}, s{S_T0}, s{S_T1}')
        a.e(f's_lshl_b32 s{S_T1}, s{S_W}, 6')
        a.e(f's_add_u32 s{S_T0}, s{S_T0}, s{S_T1}')
        a.e(f's_lshl_b32 s{S_T1}, s{S_G}, 3')
        a.e(f's_add_u32 s{S_T0}, s{S_T0}, s{S_T1}')
        a.e(f's_lshl_b32 s{S_T1}, s{S_RB2}, 2')
        a.e(f's_add_u32 s{S_T0}, s{S_T0}, s{S_T1}')
        a.e(f's_add_u32 s{S_T0}, s{S_T0}, {hex(KVF_OFF)}')
        a.e(f'v_mov_b32 v{V_X+4}, s{S_T0}')
        a.label(sk)
        a.vm = []
        stamp()
        if done('P1KV'): return True

        a.c('=== P1Q')
        QCS = V_ACC + 16
        a.e(f'v_and_b32 v{T1}, 0x30, v{V_LANE}')
        a.e(f'v_add_u32 v{T1}, {hex(CSC + 256)}, v{T1}')
        a.e(f'ds_read_b128 v[{QCS}:{QCS+3}], v{T1}')
        a.e(f'ds_read_b128 v[{QCS+4}:{QCS+7}], v{T1} offset:64')
        a.e('s_waitcnt lgkmcnt(0)')
        QAB = [(V_ACC + 24, V_ACC + 26), (V_ACC + 28, V_ACC + 30)]
        for r in range(2):
            a.e(f'v_mov_b32 v{QAB[r][0]}, v{KEEP[r][0]}')
            a.e(f'v_mov_b32 v{QAB[r][1]}, v{KEEP[r][1]}')
        def q_issue(j, t):
            if j == opt.kvflag_at and t == 1 and not byp:
                fk = a.newlabel('KVFL')
                a.e(f's_cmp_lt_u32 s{S_W}, 2')
                a.e(f's_cbranch_scc0 {fk}')
                thr_value(a, S_THR, 1, xcc=True)
                a.e(f'v_mov_b32 v{V_X+5}, s{S_THR}')
                a.e('s_waitcnt vmcnt(0)')
                a.e('s_mov_b64 exec, 1')
                a.e(f'buffer_store_dword v{V_X+5}, v{V_X+4}, {WS}, 0 offen sc1')
                a.e('s_mov_b64 exec, -1')
                a.label(fk)
        emit_gemm16(a, bar, 'P1Q', slabs['P1Q'], 2, '64',
                    acc_of=lambda r, t: V_ACC + (r * 2 + t) * 4, a_of=lambda r, j: V_A + (r * 16 + j) * 4,
                    a_wait=lambda j: None, a_issue=q_issue, wr=96, S=8)
        for r in range(2):
            for t in range(2):
                emit_lnfold(a, V_ACC + (r * 2 + t) * 4, QCS + 4 * t, QAB[r][0], QAB[r][1], 4)
        emit_phi(a, [V_ACC + i for i in range(16)], 96)
        for r in range(2):
            for h in range(2):
                emit_pack(a, V_PQ + (r * 2 + h) * 2, V_ACC + (r * 2 + h) * 4, 4)
        stamp()
        sk = a.newlabel('MODE')
        a.e(f's_cmp_eq_u32 s{S_L}, 0')
        a.e(f's_cbranch_scc0 {sk}')
        a.e(f'v_and_b32 v{T1}, 31, v{V_LANE}')
        a.e(f'v_lshlrev_b32 v{T1}, 2, v{T1}')
        a.e(f's_lshl_b32 s{S_T0}, s{S_G}, 7')
        a.e(f's_add_u32 s{S_T0}, s{S_T0}, {hex(XID_OFF)}')
        emit_poll(a, T1, 0, soff=f's{S_T0}', opt=opt)
        a.e(f'v_and_b32 v{T2}, 7, v{T2}')
        a.e(f'v_cmp_eq_u32 vcc, s{S_XCC}, v{T2}')
        a.e('s_nop 1')
        a.e('s_cmp_eq_u64 vcc, -1')
        a.e(f's_cselect_b32 s{S_MODE}, 0, 1')
        if opt.force_safe: a.e(f's_mov_b32 s{S_MODE}, 1')
        a.label(sk)
        a.e(f's_lshl_b32 s{S_T0}, s{S_L}, 11')
        emit_poll(a, V_FKV, 1, soff=f's{S_T0}', opt=opt)
        stamp()
        RB = V_A + 64
        if opt.kv_atomic:
            a.e(f's_mul_i32 s{S_T0}, s{S_CB2}, {KVREC}')
            a.e(f's_mul_i32 s{S_T1}, s{S_L}, {16*KVREC}')
            a.e(f's_add_u32 s{S_T0}, s{S_T0}, s{S_T1}')
            a.e(f's_add_u32 s{S_T0}, s{S_T0}, {hex(KVA_OFF)}')
            a.e(f'v_lshlrev_b32 v{T0}, 4, v{V_LANE}')
            a.e(f'v_and_b32 v{T1}, 0x30, v{V_LANE}')
            a.vmem(f'buffer_load_dwordx4 v[{RB}:{RB+3}], v{T0}, {WS}, s{S_T0} offen sc1', 'kp')
            a.vmem(f'buffer_load_dwordx4 v[{RB+4}:{RB+7}], v{T0}, {WS}, s{S_T0} offen offset:1024 sc1', 'kp')
            a.vmem(f'buffer_load_dwordx4 v[{RB+8}:{RB+11}], v{T1}, {WS}, s{S_T0} offen offset:2048 sc1', 'kp')
            a.vmem(f'buffer_load_dwordx4 v[{RB+12}:{RB+15}], v{T1}, {WS}, s{S_T0} offen offset:2112 sc1', 'kp')
            a.wait_vm_all()
        else:
            a.e(f's_lshl_b32 s{S_T0}, s{S_CB2}, 4')
            a.e(f's_lshl_b32 s{S_T1}, s{S_W}, 2')
            a.e(f's_add_u32 s{S_T0}, s{S_T0}, s{S_T1}')
            a.e(f's_mul_i32 s{S_T0}, s{S_T0}, {KVREC}')
            a.e(f's_add_u32 s{S_T0}, s{S_T0}, s{S_LOFF}')
            a.e(f's_add_u32 s{S_T0}, s{S_T0}, {hex(KVP_OFF)}')
            a.e(f'v_lshlrev_b32 v{T0}, 4, v{V_LANE}')
            a.e(f'v_and_b32 v{T1}, 0x30, v{V_LANE}')
            PB = V_A
            for s4 in range(4):
                b = PB + 16 * s4
                a.vmem(f'buffer_load_dwordx4 v[{b}:{b+3}], v{T0}, {WS}, s{S_T0} offen sc1', 'kp')
                a.vmem(f'buffer_load_dwordx4 v[{b+4}:{b+7}], v{T0}, {WS}, s{S_T0} offen offset:1024 sc1', 'kp')
                a.vmem(f'buffer_load_dwordx4 v[{b+8}:{b+11}], v{T1}, {WS}, s{S_T0} offen offset:2048 sc1', 'kp')
                a.vmem(f'buffer_load_dwordx4 v[{b+12}:{b+15}], v{T1}, {WS}, s{S_T0} offen offset:2112 sc1', 'kp')
                if s4 < 3: a.e(f's_add_u32 s{S_T0}, s{S_T0}, {KVREC}')
            a.e(f's_lshl_b32 s{S_T0}, s{S_W}, 11')
            a.e(f's_add_u32 s{S_T0}, s{S_T0}, {hex(SCR)}')
            a.e(f'v_add_u32 v{T0}, s{S_T0}, v{T0}')
            a.e(f's_lshl_b32 s{S_T0}, s{S_W}, 7')
            a.e(f's_add_u32 s{S_T0}, s{S_T0}, {hex(SCR + 8192)}')
            a.e(f'v_add_u32 v{T2}, s{S_T0}, v{T1}')
            a.wait_vm_all()
            for i in range(0, 16, 2):
                a.e(pk('add', PB + i, vp(PB + i), vp(PB + 16 + i)))
                a.e(pk('add', PB + 32 + i, vp(PB + 32 + i), vp(PB + 48 + i)))
            for i in range(0, 16, 2):
                a.e(pk('add', PB + i, vp(PB + i), vp(PB + 32 + i)))
            a.e(f'ds_write_b128 v{T0}, v[{PB}:{PB+3}]')
            a.e(f'ds_write_b128 v{T0}, v[{PB+4}:{PB+7}] offset:1024')
            set_exec(a, 0x00010001)
            a.e(f'ds_write_b128 v{T2}, v[{PB+8}:{PB+11}]')
            a.e(f'ds_write_b128 v{T2}, v[{PB+12}:{PB+15}] offset:64')
            a.e('s_mov_b64 exec, -1')
            a.e(f'v_lshlrev_b32 v{T0}, 4, v{V_LANE}')
            a.e(f'v_add_u32 v{T0}, {hex(SCR)}, v{T0}')
            a.e(f'v_add_u32 v{T2}, {hex(SCR + 8192)}, v{T1}')
            a.e('s_waitcnt lgkmcnt(0)')
            bar(('X', 'X2'))
            for ww in range(4):
                b = RB + 16 * ww
                a.e(f'ds_read_b128 v[{b}:{b+3}], v{T0} offset:{ww*2048}')
                a.e(f'ds_read_b128 v[{b+4}:{b+7}], v{T0} offset:{ww*2048+1024}')
                a.e(f'ds_read_b128 v[{b+8}:{b+11}], v{T2} offset:{ww*128}')
                a.e(f'ds_read_b128 v[{b+12}:{b+15}], v{T2} offset:{ww*128+64}')
                if ww == 2: a.e('s_waitcnt lgkmcnt(8)')
            a.e('s_waitcnt lgkmcnt(0)')
            for i in range(0, 16, 2):
                a.e(pk('add', RB + i, vp(RB + i), vp(RB + 16 + i)))
                a.e(pk('add', RB + 32 + i, vp(RB + 32 + i), vp(RB + 48 + i)))
            for i in range(0, 16, 2):
                a.e(pk('add', RB + i, vp(RB + i), vp(RB + 32 + i)))
        OPB = V_ACC + 16
        emit_pack(a, OPB, RB, 16)
        a.e('s_nop 1')
        NUM = V_A; DEN = V_A + 16
        for r in range(2):
            for h in range(2):
                pq = V_PQ + (r * 2 + h) * 2
                n_ = NUM + (r * 2 + h) * 4; d_ = DEN + (r * 2 + h) * 4
                a.e(f'v_mfma_f32_16x16x16_bf16 v[{n_}:{n_+3}], v[{OPB+2*h}:{OPB+2*h+1}], v[{pq}:{pq+1}], 0')
                a.e(f'v_mfma_f32_16x16x16_bf16 v[{d_}:{d_+3}], v[{OPB+4+2*h}:{OPB+4+2*h+1}], v[{pq}:{pq+1}], 0')
        a.e(f's_lshl_b32 s{S_T0}, s{S_CB2}, 10')
        a.e(f's_add_u32 s{S_T0}, s{S_T0}, s{S_GH}')
        a.e(f's_add_u32 s{S_T1}, s{S_T0}, 0x4000')
        a.e('s_nop 4')
        for k in range(4): a.e(f'v_add_f32 v{DEN+4*k}, s{S_EPS6}, v{DEN+4*k}')
        for k in range(4): a.e(f'v_rcp_f32 v{DEN+4*k}, v{DEN+4*k}')
        a.e('s_nop 0')
        for k in range(4):
            for i in range(4): a.e(f'v_mul_f32 v{NUM+4*k+i}, v{NUM+4*k+i}, v{DEN+4*k}')
        OPK = V_A + 32
        emit_pack(a, OPK, NUM, 16)
        emit_mode_stores(a, [f'buffer_store_dwordx4 v[{OPK}:{OPK+3}], v{V_AB}, {WS}, s{S_T0} offen',
                             f'buffer_store_dwordx4 v[{OPK+4}:{OPK+7}], v{V_AB}, {WS}, s{S_T1} offen'], cold=True)
        emit_signal(a, ep(1))
        stamp()
        if done('P1Q'): return True

        ACC = V_ACC; WR = 80; TMP = V_A
        def small_gemm(phase, tail=None):
            a.fstamp(phase)
            emit_gemm32(a, bar, phase, slabs[phase], ACC, WR, tail=tail)
        def tile_store(pkb, base, gh=False, cold=False):
            soff(S_T0, base, gh=gh)
            emit_mode_stores(a, [f'buffer_store_dwordx4 v[{pkb}:{pkb+3}], v{V_TST}, {WS}, s{S_T0} offen',
                                 f'buffer_store_dwordx4 v[{pkb+4}:{pkb+7}], v{V_TST}, {WS}, s{S_T0} offen offset:512'], cold=cold)

        a.c('=== P3')
        stamp()
        small_gemm('P3')
        stamp()
        for i in range(0, 16, 2): a.e(pk('add', V_RES + i, vp(V_RES + i), vp(ACC + i)))
        emit_pack32(a, TMP, V_RES)
        tile_store(TMP, A1_OFF, cold=True)
        soff(S_T1, ST_OFF)
        emit_stats_partial32(a, V_RES, TMP + 8, f's{S_T1}', cold=True)
        emit_signal(a, ep(2))
        stamp()
        if done('P3'): return True

        a.c('=== P4')
        CS4 = TMP + 16; RAW = TMP + 32
        a.e(f'v_lshrrev_b32 v{T1}, 5, v{V_LANE}')
        a.e(f'v_lshlrev_b32 v{T1}, 4, v{T1}')
        a.e(f's_lshl_b32 s{S_T1}, s{S_CH}, 7')
        a.e(f's_add_u32 s{S_T1}, s{S_T1}, {hex(CSC + 384)}')
        a.e(f'v_add_u32 v{T1}, s{S_T1}, v{T1}')
        for j in range(4):
            a.e(f'ds_read_b128 v[{CS4+4*j}:{CS4+4*j+3}], v{T1} offset:{32*j}')
        a.e('s_waitcnt lgkmcnt(0)')
        stamp()
        srv = opt.stats_srv and opt.park
        def p4_tail():
            soff(S_T0, ST_OFF)
            for k in range(4):
                a.vmem(f'buffer_load_dwordx4 v[{RAW+4*k}:{RAW+4*k+3}], v{V_STS}, {WS}, s{S_T0} offen offset:{512*k} sc1', 'st')
        small_gemm('P4', tail=None if srv else p4_tail)
        stamp()
        if srv:
            a.e(f'v_and_b32 v{T0}, 31, v{V_LANE}')
            a.e(f'v_lshlrev_b32 v{T0}, 4, v{T0}')
            a.e(f's_lshl_b32 s{S_T0}, s{S_RH}, 9')
            a.e(f's_add_u32 s{S_T0}, s{S_T0}, {hex(STC)}')
            a.e(f'v_add_u32 v{T0}, s{S_T0}, v{T0}')
            a.e(f'ds_read_b128 v[{RAW}:{RAW+3}], v{T0} offset:{ST4}')
            a.e('s_waitcnt lgkmcnt(0)')
            a.e(f'v_mov_b32 v{RAW+4}, v{RAW}'); a.e(f'v_mov_b32 v{RAW+6}, v{RAW+1}')
            a.e(f'v_mov_b32 v{V_MEAN}, v{RAW+2}'); a.e(f'v_mov_b32 v{V_RS}, v{RAW+3}')
        else:
            a.wait_vm_all()
            emit_sum_partials(a, RAW, 16)
            emit_xreduce(a, [RAW, RAW + 1], [RAW + 2, RAW + 3], over16=False)
            emit_stats_from_sums(a, RAW, RAW + 1, RAW + 4, RAW + 6, RAW + 8, double=True, keep=(V_MEAN, V_RS))
        emit_lnfold(a, ACC, CS4, RAW + 4, RAW + 6, 16)
        emit_gelu(a, ACC, 16, TMP + 48, V_PQ)
        emit_pack32(a, TMP, ACC)
        tile_store(TMP, A0_OFF, gh=True)
        gl = a.newlabel('GH'); gu = a.newlabel('GH'); gd = a.newlabel('GH')
        a.e(f's_cmp_eq_u32 s{S_RB}, 3')
        a.e(f's_cbranch_scc0 {gu}')
        a.e(f's_cmp_eq_u32 s{S_RH}, 1')
        a.e(f's_cbranch_scc0 {gd}')
        a.e(f's_bitcmp1_b32 s{S_CB}, 1')
        a.e(f's_cbranch_scc1 {gd}')
        a.e(f's_cmp_eq_u32 s{S_G}, 7')
        a.e(f's_cbranch_scc1 {gd}')
        a.e(f's_add_u32 s{S_T1}, s{S_G}, 1')
        a.e(f's_mul_i32 s{S_T2}, s{S_T1}, {18*16384}')
        a.e(f's_lshl_b32 s{S_T3}, s{S_T1}, 8')
        set_exec(a, 0xc0000000)
        a.e(f's_branch {gl}')
        a.label(gu)
        a.e(f's_cmp_eq_u32 s{S_RB}, 0')
        a.e(f's_cbranch_scc0 {gd}')
        a.e(f's_cmp_eq_u32 s{S_RH}, 0')
        a.e(f's_cbranch_scc0 {gd}')
        a.e(f's_bitcmp1_b32 s{S_CB}, 1')
        a.e(f's_cbranch_scc0 {gd}')
        a.e(f's_cmp_eq_u32 s{S_G}, 0')
        a.e(f's_cbranch_scc1 {gd}')
        a.e(f's_sub_u32 s{S_T1}, s{S_G}, 1')
        a.e(f's_mul_i32 s{S_T2}, s{S_T1}, {18*16384}')
        a.e(f's_add_u32 s{S_T2}, s{S_T2}, {17*16384}')
        a.e(f's_lshl_b32 s{S_T3}, s{S_T1}, 8')
        a.e(f's_add_u32 s{S_T3}, s{S_T3}, 128')
        set_exec(a, 0x00000003)
        a.label(gl)
        a.e(f's_lshl_b32 s{S_T0}, s{S_CB}, 1')
        a.e(f's_add_u32 s{S_T0}, s{S_T0}, s{S_CH}')
        a.e(f's_lshl_b32 s{S_T0}, s{S_T0}, 10')
        a.e(f's_add_u32 s{S_T2}, s{S_T2}, s{S_T0}')
        a.e(f'v_and_b32 v{T0}, 0x3fff, v{V_TST}')
        a.e(f'v_and_b32 v{T0}, 0x3ff, v{T0}')
        a.e(f'buffer_store_dwordx4 v[{TMP}:{TMP+3}], v{T0}, {WS}, s{S_T2} offen sc1')
        a.e(f'buffer_store_dwordx4 v[{TMP+4}:{TMP+7}], v{T0}, {WS}, s{S_T2} offen offset:512 sc1')
        a.e('s_mov_b64 exec, -1')
        a.e(f's_and_b32 s{S_T0}, s{S_CB}, 1')
        a.e(f's_lshr_b32 s{S_T1}, s{S_CB}, 2')
        a.e(f's_lshl_b32 s{S_T1}, s{S_T1}, 1')
        a.e(f's_add_u32 s{S_T0}, s{S_T0}, s{S_T1}')
        a.e(f's_lshl_b32 s{S_T0}, s{S_T0}, 1')
        a.e(f's_add_u32 s{S_T0}, s{S_T0}, s{S_CH}')
        a.e(f's_lshl_b32 s{S_T0}, s{S_T0}, 2')
        a.e(f's_add_u32 s{S_T3}, s{S_T3}, s{S_T0}')
        a.e(f's_lshl_b32 s{S_T0}, s{S_L}, 11')
        a.e(f's_add_u32 s{S_T3}, s{S_T3}, s{S_T0}')
        a.e(f's_add_u32 s{S_T3}, s{S_T3}, {hex(HF_OFF)}')
        thr_value(a, S_THR, ep(3), xcc=True)
        a.e(f'v_mov_b32 v{T0}, s{S_T3}')
        a.e(f'v_mov_b32 v{T1}, s{S_THR}')
        a.e('s_waitcnt vmcnt(0)')
        a.e('s_mov_b64 exec, 1')
        a.e(f'buffer_store_dword v{T1}, v{T0}, {WS}, 0 offen sc1')
        a.e('s_mov_b64 exec, -1')
        a.label(gd)
        emit_signal(a, ep(3))
        stamp()
        if done('P4'): return True

        a.c('=== P5')
        stamp()
        small_gemm('P5')
        stamp()
        a.e(f'v_mul_f32 v{TMP+10}, v{V_MEAN}, v{V_RS}')
        a.e(f'v_sub_f32 v{TMP+10}, 0, v{TMP+10}')
        a.e(f'v_mov_b32 v{TMP+8}, v{V_RS}')
        for i in range(0, 16, 2):
            a.e(pk('fma', ACC + i, vp(V_RES + i), vp(TMP + 8), vp(ACC + i), mods=' op_sel_hi:[1,0,1]'))
        for i in range(0, 16, 2):
            a.e(pk('add', ACC + i, vp(ACC + i), vp(TMP + 10), mods=' op_sel_hi:[1,0]'))
        emit_pack32(a, TMP, ACC)
        tile_store(TMP, A1_OFF)
        soff(S_T1, ST_OFF)
        emit_stats_partial32(a, ACC, TMP + 12, f's{S_T1}')
        for i in range(0, 16, 2): a.e(pk('add', V_RES + i, vp(V_RES + i), vp(ACC + i)))
        emit_signal(a, ep(4))
        stamp()
        if done('P5'): return True

        a.c('=== P6')
        CS6 = V_ACC; ACC6 = 192; WR6 = 96
        a.e(f'v_and_b32 v{T1}, 0x30, v{V_LANE}')
        a.e(f'v_add_u32 v{T1}, {hex(CSC + 640)}, v{T1}')
        for t in range(7):
            a.e(f'ds_read_b128 v[{CS6+4*t}:{CS6+4*t+3}], v{T1} offset:{64*t}')
        a.e('s_waitcnt lgkmcnt(0)')
        for c in range(4):
            a.e(f's_lshl_b32 s{S_P7+c}, s{S_RB2}, {13 if opt.rot else 31}')
            if not opt.rot: a.e(f's_mov_b32 s{S_P7+c}, 0')
            a.e(f's_xor_b32 s{S_P7+c}, s{S_P7+c}, {hex(c * 4096)}')
            a.e(f's_add_u32 s{S_P7+c}, s{S_P7+c}, {hex(A1_OFF)}')
            a.e(f's_add_u32 s{S_P7+4+c}, s{S_P7+c}, 0x4000')
        emit_poll(a, V_FSB, ep(4), opt=opt)
        stamp()
        def p6_load(j):
            for r in range(2):
                d = V_A + ((j % 8) * 2 + r) * 4
                a.vmem(f'buffer_load_dwordx4 v[{d}:{d+3}], v{V_AB}, {WS}, s{S_P7 + 4 * r + j // 4} offen offset:{(j%4)*1024} sc1', ('A', j))
        RAW6 = [V_PQ, 248]
        def p6_issue(j, t):
            if t == 1:
                if j + opt.D_p6 < 16:
                    p6_load(j + opt.D_p6)
                elif j + opt.D_p6 == 16 and not (opt.stats_srv and opt.park):
                    soff(S_T0, ST_OFF)
                    for r in range(2):
                        a.vmem(f'buffer_load_dwordx4 v[{RAW6[r]}:{RAW6[r]+3}], v{V_STB}, {WS}, s{S_T0} offen offset:{256*r} sc1', 'st')
                        a.vmem(f'buffer_load_dwordx4 v[{RAW6[r]+4}:{RAW6[r]+7}], v{V_STB}, {WS}, s{S_T0} offen offset:{256*r+512} sc1', 'st')
        a.fstamp('P6')
        for j in range(opt.D_p6): p6_load(j)
        emit_gemm16(a, bar, 'P6', slabs['P6'], 7, '224',
                    acc_of=lambda r, t: ACC6 + (r * 7 + t) * 4, a_of=lambda r, j: V_A + ((j % 8) * 2 + r) * 4,
                    a_wait=lambda j: a.count_vm(('A', j)), a_issue=p6_issue, wr=WR6, S=8)
        stamp()
        a.wait_vm_all()
        AB6 = [(92, 94), (RAW6[1] + 4, RAW6[1] + 6)]
        if opt.stats_srv and opt.park:
            a.e(f'v_and_b32 v{T0}, 15, v{V_LANE}')
            a.e(f'v_lshlrev_b32 v{T0}, 2, v{T0}')
            a.e(f's_lshl_b32 s{S_T0}, s{S_W}, 7')
            a.e(f's_add_u32 s{S_T0}, s{S_T0}, {hex(STC)}')
            a.e(f'v_add_u32 v{T0}, s{S_T0}, v{T0}')
            for r in range(2):
                a.e(f'ds_read_b32 v{AB6[r][0]}, v{T0} offset:{STA + 64*r}')
                a.e(f'ds_read_b32 v{AB6[r][1]}, v{T0} offset:{STB_ + 64*r}')
            a.e('s_waitcnt lgkmcnt(0)')
        else:
            for r in range(2): emit_sum_partials(a, RAW6[r], 8)
            emit_xreduce(a, [RAW6[0], RAW6[0] + 1, RAW6[1], RAW6[1] + 1], [V_X, V_X + 1, V_X + 2, V_X + 3])
            for r in range(2):
                emit_stats_from_sums(a, RAW6[r], RAW6[r] + 1, AB6[r][0], AB6[r][1], V_X)
        a.e(f's_lshl_b32 s{S_T0}, s{S_G}, 4')
        a.e(f's_lshl_b32 s{S_T1}, s{S_RB2}, 3')
        a.e(f's_add_u32 s{S_T0}, s{S_T0}, s{S_T1}')
        a.e(f's_lshl_b32 s{S_T1}, s{S_W}, 1')
        a.e(f's_add_u32 s{S_T0}, s{S_T0}, s{S_T1}')
        a.e(f's_mul_i32 s{S_T0}, s{S_T0}, 57344')
        a.e(f's_lshr_b32 s{S_T1}, s{S_CB2}, 1')
        a.e(f's_mul_i32 s{S_T1}, s{S_T1}, 7168')
        a.e(f's_add_u32 s{S_T0}, s{S_T0}, s{S_T1}')
        a.e(f's_add_u32 s{S_T0}, s{S_T0}, {hex(G_OFF)}')
        a.e(f's_and_b32 s{S_T1}, s{S_CB2}, 1')
        a.e(f's_mul_i32 s{S_U0}, s{S_T1}, 3072')
        a.e(f's_add_u32 s{S_U0}, s{S_U0}, s{S_T0}')
        a.e(f's_add_u32 s{S_U1}, s{S_U0}, 57344')
        a.e(f's_lshl_b32 s{S_T1}, s{S_T1}, 3')
        a.e(f's_add_u32 s{S_U2}, s{S_T0}, s{S_T1}')
        a.e(f's_add_u32 s{S_U2}, s{S_U2}, 6144')
        a.e(f's_add_u32 s{S_U3}, s{S_U2}, 57344')
        a.e(f'v_lshlrev_b32 v{V_X+4}, 4, v{V_LANE}')
        for r in range(2):
            emit_lnfold(a, ACC6 + r * 28, CS6, AB6[r][0], AB6[r][1], 28)
            emit_gelu(a, ACC6 + r * 28, 28, V_A, V_PQ + 4)
            pkb = V_A + 16 + r * 16
            emit_pack(a, pkb, ACC6 + r * 28, 28)
            st = [f'buffer_store_dwordx4 v[{pkb+4*j}:{pkb+4*j+3}], v{V_X+4}, {WS}, s{S_U0+r} offen offset:{1024*j}' for j in range(3)]
            st.append(f'buffer_store_dwordx2 v[{pkb+12}:{pkb+13}], v{V_X+4}, {WS}, s{S_U2+r} offen')
            emit_mode_stores(a, st, cold=bool(opt.g_cold))
        emit_signal(a, ep(5))
        stamp()
        if done('P6'): return True

        a.c('=== P7')
        if opt.p7_self:
            VG, VF = V_A + 100, V_A + 101
            a.e(f's_lshl_b32 s{S_T0}, s{S_G}, 4'); a.e(f's_lshl_b32 s{S_T1}, s{S_RB}, 2'); a.e(f's_add_u32 s{S_T0}, s{S_T0}, s{S_T1}')
            a.e(f's_add_u32 s{S_T0}, s{S_T0}, s{S_W}'); a.e(f's_mul_i32 s{S_T0}, s{S_T0}, 57344')
            a.e(f'v_lshlrev_b32 v{VG}, 4, v{V_LANE}'); a.e(f'v_add_u32 v{VG}, s{S_T0}, v{VG}')
            for p_ in range(8):
                a.e(f's_and_b32 s{S_P7+p_}, s{S_RB}, {3 if opt.rot else 0}'); a.e(f's_lshl_b32 s{S_P7+p_}, s{S_P7+p_}, 1')
                a.e(f's_xor_b32 s{S_P7+p_}, s{S_P7+p_}, {p_}'); a.e(f's_mul_i32 s{S_P7+p_}, s{S_P7+p_}, 7168')
            a.e(f's_lshl_b32 s{S_T2}, s{S_G}, 9'); a.e(f's_add_u32 s{S_T2}, s{S_T2}, {hex(LF_OFF)}')
            a.e(f's_and_b32 s{S_T3}, s{S_RB}, 1'); a.e(f's_lshl_b32 s{S_T3}, s{S_T3}, 1'); a.e(f's_add_u32 s{S_T3}, s{S_T3}, s{S_RH}')
            a.e(f's_lshl_b32 s{S_T3}, s{S_T3}, 7'); a.e(f's_add_u32 s{S_T3}, s{S_T3}, s{S_T2}')
            a.e(f's_lshr_b32 s{S_T4}, s{S_RB}, 1'); a.e(f's_lshl_b32 s{S_T4}, s{S_T4}, 6'); a.e(f's_add_u32 s{S_T3}, s{S_T3}, s{S_T4}')
            a.e(f'v_and_b32 v{VF}, 15, v{V_LANE}'); a.e(f'v_lshlrev_b32 v{VF}, 2, v{VF}'); a.e(f'v_add_u32 v{VF}, s{S_T3}, v{VF}')
            a.e(f's_lshl_b32 s{S_T3}, s{S_R}, 2'); a.e(f's_add_u32 s{S_T3}, s{S_T3}, s{S_T2}')
            a.e(f'v_and_b32 v{T1}, 3, v{V_LANE}'); a.e(f'v_lshlrev_b32 v{T1}, 7, v{T1}'); a.e(f'v_add_u32 v{T1}, s{S_T3}, v{T1}')
            a.e(f'v_cmp_lt_u32 vcc, 15, v{V_LANE}'); a.e('s_nop 1'); a.e(f'v_cndmask_b32 v{VF}, v{VF}, v{T1}, vcc')
            emit_poll(a, VF, ep(5), opt=opt)
            stamp()
            def pieces7(c):
                state = {'last': None}
                def mk(k):
                    def f():
                        if k == 0: a.e(f's_add_u32 m0, s{S_W4K}, {hex(AREG + (c % 4) * 16384)}')
                        p_, i_ = divmod(4 * c + k, 7)
                        const = G_OFF + (i_ - k) * 1024
                        if state['last'] != (p_, const):
                            a.e(f's_add_u32 s{S_T0}, s{S_P7+p_}, {hex(const & 0xffffffff)}'); state['last'] = (p_, const)
                        a.vmem(f'buffer_load_dwordx4 v{VG}, {WS}, s{S_T0} offen offset:{k*1024} sc1 lds', ('A', c))
                    return f
                return [mk(k) for k in range(4)]
            emit_gemm32(a, bar, 'P7', slabs['P7'], ACC, WR, a_pieces=pieces7)
        else:
            stamp()
            small_gemm('P7')
        stamp()
        for i in range(0, 16, 2): a.e(pk('add', V_RES + i, vp(V_RES + i), vp(ACC + i)))
        emit_pack32(a, TMP, V_RES)
        return False

    stopped = run_layer()
    if not stopped:
        fin = a.newlabel('FIN'); TMP = V_A
        a.e(f's_cmp_eq_u32 s{S_L}, 1')
        a.e(f's_cbranch_scc1 {fin}')
        a.e(f's_mov_b32 s{S_T0}, {hex(A2_OFF)}')
        emit_mode_stores(a, [f'buffer_store_dwordx4 v[{TMP}:{TMP+3}], v{V_TST}, {WS}, s{S_T0} offen',
                             f'buffer_store_dwordx4 v[{TMP+4}:{TMP+7}], v{V_TST}, {WS}, s{S_T0} offen offset:512'], cold=True)
        a.e(f's_mov_b32 s{S_T1}, {hex(ST_OFF)}')
        emit_stats_partial32(a, V_RES, TMP + 8, f's{S_T1}')
        a.e(f's_add_u32 s{S_EP}, s{S_EP}, 6')
        emit_signal(a, f's{S_EP}')
        if opt.timing:
            dump([tmreg(i) for i in range(tm[0])])
        a.e(f's_mov_b32 s{S_L}, 1')
        a.e(f's_mov_b32 s{S_LOFF}, {hex(KVP_L)}')
        a.e(f's_mov_b32 s{S_COLD}, s{S_MODE}')
        for c in range(4):
            a.e(f's_xor_b32 s{S_RK+c}, s{S_ROTK}, {c}')
            a.e(f's_lshl_b32 s{S_RK+c}, s{S_RK+c}, 12')
            a.e(f's_add_u32 s{S_RK+c}, s{S_RK+c}, {hex(A2_OFF)}')
            a.e(f's_add_u32 s{S_P7+c}, s{S_RK+c}, 0x4000')
        a.e(f's_branch {LOOP}')
        a.label(fin)
        emit_pack(a, TMP, V_RES, 16)
        OS = f's[{S_OUT}:{S_OUT+3}]'
        if opt.out_lds and opt.stop is None:
            a.e(f'v_and_b32 v{V_T0}, 31, v{V_LANE}')
            a.e(f'v_lshlrev_b32 v{V_T0}, 7, v{V_T0}')
            a.e(f'v_lshrrev_b32 v{V_T1}, 5, v{V_LANE}')
            a.e(f'v_lshl_add_u32 v{V_T0}, v{V_T1}, 3, v{V_T0}')
            a.e(f's_lshl_b32 s{S_T0}, s{S_RH}, 12')
            a.e(f's_lshl_b32 s{S_T1}, s{S_CH}, 6')
            a.e(f's_add_u32 s{S_T0}, s{S_T0}, s{S_T1}')
            a.e(f'v_add_u32 v{V_T0}, s{S_T0}, v{V_T0}')
            for j in range(4):
                a.e(f'ds_write_b64 v{V_T0}, v[{TMP+2*j}:{TMP+2*j+1}] offset:{AREG + 16*j}')
            a.e(f'v_lshrrev_b32 v{V_T1}, 3, v{V_LANE}')
            a.e(f'v_and_b32 v{V_T2}, 7, v{V_LANE}')
            a.e(f'v_lshlrev_b32 v{V_X}, 7, v{V_T1}')
            a.e(f'v_lshl_add_u32 v{V_X}, v{V_T2}, 4, v{V_X}')
            a.e(f's_lshl_b32 s{S_T0}, s{S_W}, 11')
            a.e(f'v_add_u32 v{V_X}, s{S_T0}, v{V_X}')
            a.e(f'v_lshlrev_b32 v{V_X+1}, 10, v{V_T1}')
            a.e(f'v_lshl_add_u32 v{V_X+1}, v{V_T2}, 4, v{V_X+1}')
            a.e(f's_lshl_b32 s{S_T0}, s{S_G}, 8'); a.e(f's_lshl_b32 s{S_T1}, s{S_RB}, 6'); a.e(f's_add_u32 s{S_T0}, s{S_T0}, s{S_T1}')
            a.e(f's_lshl_b32 s{S_T1}, s{S_W}, 4'); a.e(f's_add_u32 s{S_T0}, s{S_T0}, s{S_T1}'); a.e(f's_lshl_b32 s{S_T0}, s{S_T0}, 10')
            a.e(f's_lshl_b32 s{S_T1}, s{S_CB}, 7'); a.e(f's_add_u32 s{S_T0}, s{S_T0}, s{S_T1}')
            a.e(f's_add_u32 s{S_T1}, s{S_T0}, 8192')
            a.e('s_waitcnt lgkmcnt(0)')
            a.e('s_barrier')
            a.e(f'ds_read_b128 v[{TMP+8}:{TMP+11}], v{V_X} offset:{AREG}')
            a.e(f'ds_read_b128 v[{TMP+12}:{TMP+15}], v{V_X} offset:{AREG + 1024}')
            a.e('s_waitcnt lgkmcnt(1)')
            a.e(f'buffer_store_dwordx4 v[{TMP+8}:{TMP+11}], v{V_X+1}, {OS}, s{S_T0} offen')
            a.e('s_waitcnt lgkmcnt(0)')
            a.e(f'buffer_store_dwordx4 v[{TMP+12}:{TMP+15}], v{V_X+1}, {OS}, s{S_T1} offen')
        else:
            for j in range(4):
                a.e(f'buffer_store_dwordx2 v[{TMP+2*j}:{TMP+2*j+1}], v{V_XRM}, {OS}, 0 offen offset:{16*j}')
    a.label('L_END_COMPUTE')
    nn = a.newlabel('NON')
    a.e(f's_or_b32 s{S_T0}, s2, s{S_W}')
    a.e(f's_cmp_eq_u32 s{S_T0}, 0')
    a.e(f's_cbranch_scc0 {nn}')
    a.e(f's_add_u32 s{S_T0}, s{S_V}, 1')
    a.e(f'v_mov_b32 v{V_T0}, s{S_T0}')
    a.e(f'v_mov_b32 v{V_T1}, {hex(NONCE_OFF)}')
    a.e('s_mov_b64 exec, 1')
    a.e(f'buffer_store_dword v{V_T0}, v{V_T1}, {WS}, 0 offen')
    a.e('s_mov_b64 exec, -1')
    a.label(nn)
    stamp()
    if opt.timing: dump([tmreg(i) for i in range(tm[0])] + ([85] if False else []))
    if opt.fine: dump([freg(i) for i in range(fs[0])])
    if opt.wall:
        a.e('s_waitcnt vmcnt(0)')
        a.e('s_memrealtime s[82:83]'); a.e('s_memtime s[80:81]'); a.e('s_waitcnt lgkmcnt(0)')
        dump([84, 82, 85, 80])
    a.e('s_waitcnt vmcnt(0)')
    a.e('s_endpgm')
    return evq


def hstamp(a, opt, slot):
    if not (opt.dbgout >= 0 and opt.fine): return
    sk = a.newlabel('HS')
    a.e('s_memtime s[98:99]'); a.e('s_waitcnt lgkmcnt(0)')
    a.e(f's_cmp_eq_u32 s2, {opt.dbgwg}'); a.e(f's_cbranch_scc0 {sk}')
    a.e('s_sub_u32 s98, s98, s96')
    a.e('v_mov_b32 v254, s98'); a.e(f'v_mov_b32 v253, {4*slot}')
    a.e('global_store_dword v253, v254, s[86:87]')
    a.label(sk)
    a.vm.append('hs')

def gen_loader(a, opt, events):
    VN, VKV, VQ, VW3, VKVn, VQn = 8, 12, 16, 20, 28, 32
    VT0, VT1, VT2, VT3 = 1, 2, 3, 4
    a.c('--- loader setup')
    if opt.prio_l: a.e(f's_setprio {opt.prio_l}')
    def srd(s, p, size):
        a.e(f's_mov_b32 s{s}, s{p}'); a.e(f's_mov_b32 s{s+1}, s{p+1}')
        a.e(f's_mov_b32 s{s+2}, {hex(size)}'); a.e(f's_mov_b32 s{s+3}, 0x20000')
    srd(S_WQKV, S_PTR + 2, 512 * 1536 * 2)
    srd(S_WO, S_PTR + 4, 512 * 512 * 2)
    srd(S_W1, S_PTR + 8, 512 * 512 * 2)
    srd(S_W2, S_PTR + 10, 512 * 512 * 2)
    srd(S_W3, S_PTR + 12, 512 * 1792 * 2)
    srd(S_W4, S_PTR + 14, 1792 * 512 * 2)
    CBS, CBK, CB6, CB7 = 64, 68, 72, 76
    a.e(f's_lshl_b32 s{S_T1}, s{S_RB2}, 1')
    a.e(f's_add_u32 s{S_T1}, s{S_T1}, s{S_CB2}')
    a.e(f's_and_b32 s{S_T1}, s{S_T1}, {3 if opt.rot else 0}')
    for c in range(4):
        a.e(f's_xor_b32 s{CBK+c}, s{S_T1}, {c}')
        a.e(f's_mul_i32 s{CBK+c}, s{CBK+c}, {128*3072}')
    def late_tables():
        rm = 3 if opt.rot else 0
        for c in range(4):
            a.e(f's_and_b32 s{CBS+c}, s{S_RB}, {rm}')
            a.e(f's_xor_b32 s{CBS+c}, s{CBS+c}, {c}')
            a.e(f's_lshl_b32 s{CBS+c}, s{CBS+c}, 17')
            a.e(f's_lshl_b32 s{CB6+c}, s{S_RB2}, 1')
            a.e(f's_and_b32 s{CB6+c}, s{CB6+c}, {rm}')
            a.e(f's_xor_b32 s{CB6+c}, s{CB6+c}, {c}')
            a.e(f's_mul_i32 s{CB6+c}, s{CB6+c}, {128*3584}')
        for p_ in range(8):
            a.e(f's_and_b32 s{CB7+p_}, s{S_RB}, {rm}')
            a.e(f's_lshl_b32 s{CB7+p_}, s{CB7+p_}, 1')
            a.e(f's_xor_b32 s{CB7+p_}, s{CB7+p_}, {p_}')
            a.e(f's_mul_i32 s{CB7+p_}, s{CB7+p_}, {224*1024}')

    def cs_issue():
        a.c('cs pieces')
        c1 = a.newlabel('CS'); c2 = a.newlabel('CS'); c3 = a.newlabel('CS')
        a.e(f's_min_u32 s{92}, s2, 239')
        a.e(f's_lshr_b32 s{93}, s{92}, 2')
        a.e(f's_and_b32 s{94}, s{92}, 3')
        a.e(f's_cmp_lt_u32 s{93}, 24')
        a.e(f's_cbranch_scc0 {c1}')
        for i in range(3): a.e(f's_mov_b32 s{S_CSRD+i}, s{S_WQKV+i}')
        a.e(f's_mov_b32 s{S_T0}, 3072')
        a.e(f's_lshl_b32 s{S_T1}, s{93}, 7')
        a.e(f's_branch {c3}')
        a.label(c1)
        a.e(f's_cmp_lt_u32 s{93}, 32')
        a.e(f's_cbranch_scc0 {c2}')
        for i in range(3): a.e(f's_mov_b32 s{S_CSRD+i}, s{S_W1+i}')
        a.e(f's_mov_b32 s{S_T0}, 1024')
        a.e(f's_sub_u32 s{S_T1}, s{93}, 24')
        a.e(f's_lshl_b32 s{S_T1}, s{S_T1}, 7')
        a.e(f's_branch {c3}')
        a.label(c2)
        for i in range(3): a.e(f's_mov_b32 s{S_CSRD+i}, s{S_W3+i}')
        a.e(f's_mov_b32 s{S_T0}, 3584')
        a.e(f's_sub_u32 s{S_T1}, s{93}, 32')
        a.e(f's_lshl_b32 s{S_T1}, s{S_T1}, 7')
        a.label(c3)
        a.e(f's_mov_b32 s{S_CSRD+3}, 0x20000')
        a.e(f'v_lshrrev_b32 v{VT1}, 3, v{V_LANE}')
        a.e(f'v_mul_lo_u32 v{VT1}, v{VT1}, s{S_T0}')
        a.e(f'v_and_b32 v{VT2}, 7, v{V_LANE}')
        a.e(f'v_lshl_add_u32 v{VT1}, v{VT2}, 4, v{VT1}')
        a.e(f'v_add_u32 v{VT1}, s{S_T1}, v{VT1}')
        a.e(f's_lshl_b32 s{S_T1}, s{94}, 7')
        a.e(f's_mul_i32 s{S_T1}, s{S_T1}, s{S_T0}')
        a.e(f's_lshl_b32 s{S_T0}, s{S_T0}, 3')
        a.e(f's_mov_b32 m0, {hex(CSL)}')
        for p in range(16):
            a.e('s_nop 0')
            a.vmem(f'buffer_load_dwordx4 v{VT1}, s[{S_CSRD}:{S_CSRD+3}], s{S_T1} offen lds', 'cs')
            if p < 15:
                a.e('s_add_u32 m0, m0, 1024')
                a.e(f's_add_u32 s{S_T1}, s{S_T1}, s{S_T0}')
    dg = [0]
    def dstamp():
        if opt.startdiag:
            a.e(f's_memtime s[{84+2*dg[0]}:{85+2*dg[0]}]') if False else None
            a.e('s_memtime s[98:99]'); a.e('s_waitcnt lgkmcnt(0)')
            a.e('s_sub_u32 s98, s98, s100')
            a.e(f'v_mov_b32 v{100+dg[0]}, s98'); dg[0] += 1
    dstamp()
    cs_issue()
    a.e(f'v_lshrrev_b32 v{VT0}, 3, v{V_LANE}')
    a.e(f'v_bfe_u32 v{VT1}, v{VT0}, 1, 2')
    a.e(f'v_lshlrev_b32 v{VT1}, 1, v{VT1}')
    a.e(f'v_and_b32 v{VT2}, 7, v{V_LANE}')
    a.e(f'v_xor_b32 v{VT2}, v{VT2}, v{VT1}')
    a.e(f'v_and_b32 v{VT1}, 3, v{VT2}')
    a.e(f'v_lshlrev_b32 v{VT3}, 4, v{VT1}')
    a.e(f'v_lshrrev_b32 v{VT1}, 2, v{VT2}')
    a.e(f'v_lshl_add_u32 v{VT3}, v{VT1}, 10, v{VT3}')
    a.e(f's_lshl_b32 s{S_T0}, s{S_CB2}, 6')
    a.e(f's_add_u32 s{S_T1}, s{S_T0}, 1024')
    a.e(f'v_add_u32 v{VT3}, s{S_T1}, v{VT3}')
    a.e(f'v_lshrrev_b32 v{VT1}, 2, v{VT0}')
    a.e(f'v_lshlrev_b32 v{VT1}, 3, v{VT1}')
    a.e(f'v_and_b32 v{VT2}, 3, v{VT0}')
    a.e(f'v_add_u32 v{VT1}, v{VT1}, v{VT2}')
    a.e(f'v_mul_u32_u24 v{VT1}, 3072, v{VT1}')
    a.e(f'v_add_u32 v{VT1}, v{VT1}, v{VT3}')
    for p in range(4):
        off = (16 * (p & 1) + 4 * (p >> 1)) * 3072 - p * 1024
        a.e(f'v_add_u32 v{VKVn+p}, {hex(off & 0xffffffff)}, v{VT1}')
    a.e(f'v_mul_u32_u24 v{VKV}, 3072, v{VT0}')
    a.e(f'v_add_u32 v{VKV}, v{VKV}, v{VT3}')
    for j in range(1, 4): a.e(f'v_add_u32 v{VKV+j}, {hex(j*(8*3072-1024))}, v{VKV}')

    layers = sorted(set(e[0] for e in events))
    slabs = {L: build_slabs(L) for L in layers}
    stream = []
    needed = set((e[0], e[2], e[3]) for e in events if e[1] == 'B')
    for L in layers:
        for p in PHASES:
            for ci, ch in enumerate(slabs[L][p]):
                if (L, p, ci) in needed: stream += ch
    released = set()
    log = []; cur = ['start']
    opt._log = log
    st = {'issued': 0}
    win = [opt.window0]
    def overlaps_unreleased(s, idx):
        for k in range(idx):
            o = stream[k]
            if (o.layer, o.phase, o.chunk) in released: continue
            if o.addr < s.addr + s.size and s.addr < o.addr + o.size: return True
        return False
    def emit_slab(s):
        kind = s.kind; tag = (s.layer, s.phase, s.chunk)
        if kind in opt.dbg_skip.split(','): return
        if kind in ('WO', 'W1', 'W2', 'W4'):
            srd_ = {'WO': S_WO, 'W1': S_W1, 'W2': S_W2, 'W4': S_W4}[kind]; vb = VN; rs = 1024
        elif kind == 'KV': srd_, vb, rs = S_WQKV, (VKVn if s.layer == 0 else VKV), 3072
        elif kind == 'Q': srd_, vb, rs = S_WQKV, (VQn if s.layer == 0 else VQ), 3072
        else: srd_, vb, rs = S_W3, VW3, 3584
        R4 = f's[{srd_}:{srd_+3}]'
        def grp(addr, srow, ps, v0):
            a.e(f's_mov_b32 m0, {hex(addr)}')
            if kind == 'W4':
                p_, rr_ = divmod(srow, 224); tb_ = CB7 + p_
            else:
                c_, rr_ = divmod(srow, 128); tb_ = {'KV': CBK, 'Q': CBK, 'W3': CB6}.get(kind, CBS) + c_
            a.e(f's_add_u32 s{S_T0}, s{tb_}, {hex(rr_*rs)}')
            for k, p in enumerate(ps):
                a.vmem(f'buffer_load_dwordx4 v{vb+p}, {R4}, s{S_T0} offen offset:{k*1024} {"nt " if opt.w_nt else ""}lds', tag)
        if kind == 'W3':
            grp(s.addr, s.srow, [0, 1, 2, 3], 0); grp(s.addr + 4096, s.srow, [4, 5, 6], 0)
        elif kind == 'W4' and s.srow2 != s.srow + 16:
            grp(s.addr, s.srow, [0, 1], 0); grp(s.addr + 2048, s.srow2, [0, 1], 0)
        else:
            grp(s.addr, s.srow, [0, 1, 2, 3], 0)
        if len(a.vm) > win[0]:
            a.e(f's_waitcnt vmcnt({win[0]})')
            a.vm = a.vm[len(a.vm) - win[0]:]
    plan = {}
    opt._plan = plan
    free = [50, 42 if opt.stats_srv else 50]
    def need_slots(s): return (4, 3) if s.kind == 'W3' else (2, 2)
    def park_policy(key):
        if not opt.park: return
        name = key.split('.', 1)[1] if key[0] in '01' else None
        if name is None: return
        L = int(key[0])
        if name in opt.park_w3:
            cand = [s for s in stream[st['issued']:] if s.layer == L and s.phase == 'P6' and s.chunk >= 1]; cap = opt.park_w3[name]
        elif name in opt.park_caps:
            cand = [s for s in stream[st['issued']:] if s.layer == L and s.phase == 'P7' and s.chunk >= 6]; cap = opt.park_caps[name]
        else:
            return
        for s in cand:
            if getattr(s, 'parked', False): continue
            n0, n1 = need_slots(s)
            if cap <= 0 or free[0] < n0 or free[1] < n1: break
            s.parked = True; free[0] -= n0; free[1] -= n1; cap -= 1
            plan.setdefault(key, []).append(('park', s))
    def issue(cap, must=None):
        n = 0; nu = 0
        while st['issued'] < len(stream):
            s = stream[st['issued']]
            forced = must is not None and any((o.layer, o.phase, o.chunk) == must for o in stream[st['issued']:])
            pk_ = getattr(s, 'parked', False)
            if not forced and not pk_ and n + s.npieces > cap: break
            if not forced and pk_ and (nu >= opt.unpark_max or must is not None): break
            if overlaps_unreleased(s, st['issued']):
                assert not forced, ('deadlock', must, s.layer, s.phase, s.chunk)
                break
            if pk_:
                plan.setdefault(cur[0], []).append(('unpark', s)); nu += 1
                n0, n1 = need_slots(s); free[0] += n0; free[1] += n1
                st['issued'] += 1
                log.append((cur[0], s.layer, s.phase + '*', s.chunk, forced))
                continue
            emit_slab(s); st['issued'] += 1; n += s.npieces
            log.append((cur[0], s.layer, s.phase, s.chunk, forced))
    if WARM0[0]:
        a.e('s_barrier')
        events = events[1:]
    hstamp(a, opt, 8)
    issue(32)
    hstamp(a, opt, 9)
    dstamp()
    def nonce_setup():
        a.e('s_waitcnt lgkmcnt(0)')
        a.e(f's_mul_i32 s{S_B}, s{S_V}, 0x9e3779b1')
        a.e(f's_add_u32 s{S_B}, s{S_B}, 0x7f4a7c15')
        a.e(f's_and_b32 s{S_B}, s{S_B}, 0xffffff00')
    def late_setup():
        if not opt.cs_late: nonce_setup()
        a.e(f's_lshl_b32 s{S_T0}, s{S_G}, 7')
        a.e(f's_lshl_b32 s{S_T1}, s{S_R}, 2')
        a.e(f's_add_u32 s{S_T0}, s{S_T0}, s{S_T1}')
        a.e(f's_add_u32 s{S_T0}, s{S_T0}, {hex(XID_OFF)}')
        a.e(f'v_mov_b32 v{VT1}, s{S_T0}')
        a.e(f's_add_u32 s{S_T1}, s{S_B}, s{S_XCC}')
        a.e(f'v_mov_b32 v{VT0}, s{S_T1}')
        a.e('s_mov_b64 exec, 1')
        a.vmem(f'buffer_store_dword v{VT0}, v{VT1}, {WS}, 0 offen sc1', 'xid')
        a.e('s_mov_b64 exec, -1')
        late_tables()
        a.c('W lane offsets')
        a.e(f'v_lshrrev_b32 v{VT0}, 3, v{V_LANE}')
        a.e(f'v_bfe_u32 v{VT1}, v{VT0}, 1, 1')
        a.e(f'v_lshlrev_b32 v{VT1}, 2, v{VT1}')
        a.e(f'v_and_b32 v{VT2}, 7, v{V_LANE}')
        a.e(f'v_xor_b32 v{VT2}, v{VT2}, v{VT1}')
        a.e(f'v_lshlrev_b32 v{VN}, 10, v{VT0}')
        a.e(f'v_lshl_add_u32 v{VN}, v{VT2}, 4, v{VN}')
        a.e(f's_lshl_b32 s{S_T0}, s{S_CB}, 7')
        a.e(f'v_add_u32 v{VN}, s{S_T0}, v{VN}')
        for j in range(1, 4): a.e(f'v_add_u32 v{VN+j}, {hex(j*(8192-1024))}, v{VN}')
        a.e(f'v_lshrrev_b32 v{VT0}, 2, v{V_LANE}')
        a.e(f'v_bfe_u32 v{VT1}, v{VT0}, 2, 1')
        a.e(f'v_lshlrev_b32 v{VT1}, 1, v{VT1}')
        a.e(f'v_and_b32 v{VT2}, 3, v{V_LANE}')
        a.e(f'v_xor_b32 v{VT2}, v{VT2}, v{VT1}')
        a.e(f'v_lshlrev_b32 v{VT3}, 4, v{VT2}')
        a.e(f's_lshl_b32 s{S_T0}, s{S_CB2}, 6')
        a.e(f'v_add_u32 v{VT3}, s{S_T0}, v{VT3}')
        a.e(f'v_mul_u32_u24 v{VQ}, 3072, v{VT0}')
        a.e(f'v_add_u32 v{VQ}, v{VQ}, v{VT3}')
        for j in range(1, 4): a.e(f'v_add_u32 v{VQ+j}, {hex(j*(16*3072-1024))}, v{VQ}')
        a.e(f'v_lshrrev_b32 v{VT1}, 2, v{VT0}')
        a.e(f'v_lshlrev_b32 v{VT1}, 3, v{VT1}')
        a.e(f'v_and_b32 v{VT2}, 3, v{VT0}')
        a.e(f'v_add_u32 v{VT1}, v{VT1}, v{VT2}')
        a.e(f'v_mul_u32_u24 v{VT1}, 3072, v{VT1}')
        a.e(f'v_add_u32 v{VT1}, v{VT1}, v{VT3}')
        for p in range(4):
            off = (4 * (p & 1) + 32 * (p >> 1)) * 3072 - p * 1024
            a.e(f'v_add_u32 v{VQn+p}, {hex(off & 0xffffffff)}, v{VT1}')
        a.e(f's_mul_i32 s{S_T0}, s{S_CB2}, 224')
        M14 = (1 << 20) // 14 + 1
        a.e(f's_mov_b32 s{S_T1}, {hex(M14)}')
        for p in range(7):
            a.e(f'v_add_u32 v{VT0}, {64*p}, v{V_LANE}')
            a.e(f'v_mul_lo_u32 v{VT1}, v{VT0}, s{S_T1}')
            a.e(f'v_lshrrev_b32 v{VT1}, 20, v{VT1}')
            a.e(f'v_mul_u32_u24 v{VT2}, 14, v{VT1}')
            a.e(f'v_sub_u32 v{VT2}, v{VT0}, v{VT2}')
            a.e(f'v_mul_u32_u24 v{VW3+p}, 3584, v{VT1}')
            a.e(f'v_lshl_add_u32 v{VW3+p}, v{VT2}, 4, v{VW3+p}')
            a.e(f'v_add_u32 v{VW3+p}, s{S_T0}, v{VW3+p}')
            if p % 4: a.e(f'v_subrev_u32 v{VW3+p}, {(p%4)*1024}, v{VW3+p}')
        for u in range(448): assert (u * M14) >> 20 == u // 14

    def cs_part1():
        a.wait_vm('cs')
        a.e(f'v_bfe_u32 v{VT0}, v{V_LANE}, 2, 2')
        a.e(f'v_lshrrev_b32 v{VT1}, 4, v{V_LANE}')
        a.e(f'v_lshl_add_u32 v{VT0}, v{VT1}, 2, v{VT0}')
        a.e(f'v_lshlrev_b32 v{VT0}, 7, v{VT0}')
        a.e(f'v_and_b32 v{VT2}, 3, v{V_LANE}')
        a.e(f'v_lshl_add_u32 v{VT0}, v{VT2}, 3, v{VT0}')
        a.e(f'v_add_u32 v{VT0}, {hex(CSL)}, v{VT0}')
        for i in range(4): a.e(f'v_mov_b32 v{40+i}, 0x3f803f80')
        for j in range(4):
            for t in range(4):
                a.e(f'ds_read_b64_tr_b16 v[{64+4*t}:{65+4*t}], v{VT0} offset:{j*4096+t*32}')
                a.e(f'ds_read_b64_tr_b16 v[{66+4*t}:{67+4*t}], v{VT0} offset:{j*4096+t*32+2048}')
            a.e('s_waitcnt lgkmcnt(0)')
            for t in range(4):
                c = '0' if j == 0 else f'v[{44+4*t}:{47+4*t}]'
                a.e(f'v_mfma_f32_16x16x32_bf16 v[{44+4*t}:{47+4*t}], v[{64+4*t}:{67+4*t}], v[40:43], {c}')
        a.e(f's_mul_i32 s{S_T0}, s{94}, 15360')
        a.e(f's_lshl_b32 s{S_T1}, s{93}, 8')
        a.e(f's_add_u32 s{S_T0}, s{S_T0}, s{S_T1}')
        a.e(f's_add_u32 s{S_T0}, s{S_T0}, {hex(CSP_OFF)}')
        a.e(f'v_lshlrev_b32 v{VT1}, 4, v{VT1}')
        a.e('s_nop 7')
        set_exec(a, 0x00010001)
        for t in range(4):
            a.vmem(f'buffer_store_dwordx4 v[{44+4*t}:{47+4*t}], v{VT1}, {WS}, s{S_T0} offen offset:{64*t} sc1', 'csst')
        a.e('s_mov_b64 exec, -1')
        if opt.kv_atomic:
            zl = a.newlabel('ZK')
            a.e(f's_lshr_b32 s{S_T0}, s2, 3')
            a.e(f's_mul_i32 s{S_T0}, s{S_T0}, {KVREC}')
            a.e(f's_add_u32 s{S_T0}, s{S_T0}, {hex(KVA_OFF)}')
            a.e(f's_and_b32 s{S_T1}, s2, 0x87')
            a.e(f's_cmp_eq_u32 s{S_T1}, 0')
            a.e(f's_cselect_b32 s{S_T1}, 0, 0x80000000')
            for i in range(4): a.e(f'v_mov_b32 v{60+i}, 0')
            a.e(f'v_lshlrev_b32 v{VT0}, 4, v{V_LANE}')
            a.e(f'v_or_b32 v{VT0}, s{S_T1}, v{VT0}')
            for l_ in range(2):
                a.vmem(f'buffer_store_dwordx4 v[60:63], v{VT0}, {WS}, s{S_T0} offen sc1', 'csst')
                a.vmem(f'buffer_store_dwordx4 v[60:63], v{VT0}, {WS}, s{S_T0} offen offset:1024 sc1', 'csst')
                a.e('s_mov_b64 exec, 0xff')
                a.vmem(f'buffer_store_dwordx4 v[60:63], v{VT0}, {WS}, s{S_T0} offen offset:2048 sc1', 'csst')
                a.e('s_mov_b64 exec, -1')
                if l_ == 0: a.e(f's_add_u32 s{S_T0}, s{S_T0}, {16*KVREC}')
    def cs_part2():
        a.e(f's_lshl_b32 s{S_T0}, s2, 7')
        a.e(f's_add_u32 s{S_T0}, s{S_T0}, {hex(CSF_OFF)}')
        a.e(f'v_mov_b32 v{VT1}, s{S_T0}')
        a.e(f's_add_u32 s{S_T1}, s{S_B}, 8')
        a.e(f'v_mov_b32 v{VT0}, s{S_T1}')
        a.wait_vm('csst')
        a.e('s_mov_b64 exec, 1')
        a.vmem(f'buffer_store_dword v{VT0}, v{VT1}, {WS}, 0 offen sc1', 'csf')
        a.e('s_mov_b64 exec, -1')
    def cs_fill():
        L_ = a.newlabel('CPOLL'); D_ = a.newlabel('CPOLLD')
        a.e(f'v_min_u32 v{VT0}, 27, v{V_LANE}')
        a.e(f'v_lshrrev_b32 v{VT2}, 2, v{VT0}')
        a.e(f's_lshr_b32 s{S_T0}, s{S_CB2}, 1')
        a.e(f'v_lshlrev_b32 v{VT1}, 3, v{VT2}')
        a.e(f'v_add_u32 v{VT1}, s{S_T0}, v{VT1}')
        a.e(f's_add_u32 s{S_T0}, s{S_CB}, 24')
        a.e(f'v_mov_b32 v{VT3}, s{S_T0}')
        a.e(f'v_cmp_eq_u32 vcc, 3, v{VT2}')
        a.e('s_nop 1')
        a.e(f'v_cndmask_b32 v{VT1}, v{VT1}, v{VT3}, vcc')
        a.e(f's_mul_i32 s{S_T0}, s{S_CB2}, 112')
        a.e(f's_lshr_b32 s{S_T0}, s{S_T0}, 6')
        a.e(f's_add_u32 s{S_T0}, s{S_T0}, {32 - 4}')
        a.e(f'v_add_u32 v{VT3}, s{S_T0}, v{VT2}')
        a.e(f'v_min_u32 v{VT3}, 59, v{VT3}')
        a.e(f'v_cmp_lt_u32 vcc, 3, v{VT2}')
        a.e('s_nop 1')
        a.e(f'v_cndmask_b32 v{VT1}, v{VT1}, v{VT3}, vcc')
        a.e(f'v_and_b32 v{VT0}, 3, v{VT0}')
        a.e(f'v_lshl_add_u32 v{VT1}, v{VT1}, 2, v{VT0}')
        if opt.kv_atomic:
            a.e(f's_lshl_b32 s{S_T0}, s{S_CB2}, 3')
            a.e(f'v_mov_b32 v{VT3}, s{S_T0}')
            a.e(f'v_cmp_lt_u32 vcc, 27, v{V_LANE}')
            a.e('s_nop 1')
            a.e(f'v_cndmask_b32 v{VT1}, v{VT1}, v{VT3}, vcc')
        a.e(f'v_lshlrev_b32 v{VT1}, 7, v{VT1}')
        a.e(f's_mov_b32 s{S_T0}, {hex(CSF_OFF)}')
        a.e(f's_add_u32 s{S_T1}, s{S_B}, 8')
        a.e(f's_mov_b32 s{95}, {opt.spin}')
        a.label(L_)
        a.e(f'buffer_load_dword v40, v{VT1}, {WS}, s{S_T0} offen sc1')
        a.e('s_waitcnt vmcnt(0)')
        a.e(f'v_subrev_u32 v40, s{S_T1}, v40')
        a.e('v_cmp_gt_u32 vcc, 0x80, v40')
        a.e(f's_sub_u32 s{95}, s{95}, 1')
        a.e(f's_cbranch_scc1 {D_}')
        a.e('s_cmp_eq_u64 vcc, -1')
        a.e(f's_cbranch_scc0 {L_}')
        a.label(D_)
        a.vm = []
        def colof(dst, gofs):
            a.e(f'v_add_u32 v{VT0}, {gofs}, v{V_LANE}')
            a.e(f'v_lshlrev_b32 v{VT2}, 2, v{VT0}')
            a.e(f's_lshl_b32 s{S_T0}, s{S_CB2}, 5')
            a.e(f's_mul_i32 s{S_T1}, s{S_CB2}, 112')
            a.e(f's_add_u32 s{S_T1}, s{S_T1}, {2048 - 160}')
            a.e(f'v_add_u32 v{dst}, s{S_T1}, v{VT2}')
            for lim, addc, useb in [(40, 1536 - 96, 'cb'), (24, -64, 'hp'), (16, 1024 - 32, 'hp'), (8, 512, 'hp')]:
                if useb == 'cb':
                    a.e(f's_lshl_b32 s{S_T1}, s{S_CB}, 6')
                    a.e(f's_add_u32 s{S_T1}, s{S_T1}, {addc}')
                else:
                    a.e(f's_add_u32 s{S_T1}, s{S_T0}, {hex(addc & 0xffffffff)}')
                a.e(f'v_add_u32 v{VT3}, s{S_T1}, v{VT2}')
                a.e(f'v_cmp_gt_u32 vcc, {lim}, v{VT0}')
                a.e('s_nop 1')
                a.e(f'v_cndmask_b32 v{dst}, v{dst}, v{VT3}, vcc')
            a.e(f'v_lshlrev_b32 v{dst}, 2, v{dst}')
        colof(36, 0); colof(37, 64)
        a.e(f's_mov_b32 s{S_T0}, {hex(CSP_OFF)}')
        for kq in range(4):
            a.e(f'buffer_load_dwordx4 v[{40+4*kq}:{43+4*kq}], v36, {WS}, s{S_T0} offen sc1')
            a.e('s_mov_b64 exec, 0xf')
            a.e(f'buffer_load_dwordx4 v[{56+4*kq}:{59+4*kq}], v37, {WS}, s{S_T0} offen sc1')
            a.e('s_mov_b64 exec, -1')
            if kq < 3: a.e(f's_add_u32 s{S_T0}, s{S_T0}, 15360')
        a.e(f'v_lshlrev_b32 v{VT0}, 4, v{V_LANE}')
        a.e(f'v_add_u32 v{VT0}, {hex(CSC)}, v{VT0}')
        a.e('s_waitcnt vmcnt(0)')
        for b in (40, 56):
            for i in (0, 2):
                a.e(pk('add', b + i, vp(b + i), vp(b + 4 + i)))
                a.e(pk('add', b + 8 + i, vp(b + 8 + i), vp(b + 12 + i)))
                a.e(pk('add', b + i, vp(b + i), vp(b + 8 + i)))
        a.e(f'ds_write_b128 v{VT0}, v[40:43]')
        a.e('s_mov_b64 exec, 0xf')
        a.e(f'ds_write_b128 v{VT0}, v[56:59] offset:1024')
        a.e('s_mov_b64 exec, -1')
        a.e('s_waitcnt lgkmcnt(0)')

    if not opt.cs_late: cs_part1()
    chunks_of = {}
    for s in stream: chunks_of.setdefault((s.layer, s.phase), set()).add(s.chunk)
    nb = 0
    for ev in events:
        L, kind, p, ci = ev
        if kind == 'B':
            cur[0] = f'pre {L}.{p}.B{ci}'
            issue(0, must=(L, p, ci))
            cur[0] = f'{L}.{p}.B{ci}'
            if nb < 5: dstamp()
            a.wait_vm((L, p, ci))
            if nb == 0: hstamp(a, opt, 10)
            if nb == 1: hstamp(a, opt, 11)
            if nb < 5: dstamp()
            a.e('s_barrier')
            nb += 1
            if ci >= 2: released.add((L, p, ci - 2))
            if ci == 0:
                for (l2, p2), cs_ in chunks_of.items():
                    if p2 in NOE and (l2, PHASES.index(p2)) < (L, PHASES.index(p)):
                        for c in cs_: released.add((l2, p2, c))
            if opt.cs_late and nb <= 4:
                if nb == 1:
                    issue(16)
                    cs_part1()
                    nonce_setup()
                elif nb == 2:
                    issue(16)
                    cs_part2()
                    late_setup()
                elif nb == 3:
                    pass
                elif nb == 4:
                    cs_fill()
                    win[0] = opt.window
            elif nb == 1:
                issue(32)
                late_setup()
                cs_part2()
            elif nb == 3:
                cs_fill()
                win[0] = opt.window
            elif nb in (2, 4):
                pass
            else:
                issue(opt.caps.get(f'{p}.B{ci}', opt.caps.get(f'{p}.B*', 0)))
                park_policy(cur[0])
        elif kind == 'R':
            a.e('s_barrier')
        elif kind == 'E':
            cur[0] = f'{L}.{p}.E'
            a.e('s_barrier')
            for c in chunks_of[(L, p)]: released.add((L, p, c))
            issue(opt.caps.get(f'{p}.E', 0))
            park_policy(cur[0])
        else:
            cur[0] = f'{L}.{p}'
            a.e('s_barrier')
            issue(opt.caps.get(p, 0))
            park_policy(cur[0])
    if opt.startdiag:
        a.e(f's_lshl_b32 s{S_T0}, s2, 8')
        a.e(f's_add_u32 s{S_T0}, s{S_T0}, {hex(TM_OFF + 128)}')
        for i in range(dg[0]):
            a.e(f'v_mov_b32 v99, {4*i}')
            a.e(f'buffer_store_dword v{100+i}, v99, {WS}, s{S_T0} offen')
    a.e('s_waitcnt vmcnt(0)')
    a.e('s_endpgm')


def gen_toucher(a, opt, events):
    a.c('--- A loader / toucher')
    if opt.prio_a: a.e(f's_setprio {opt.prio_a}')
    mats = {'WO': (S_PTR + 4, 512 * 512 * 2), 'W1': (S_PTR + 8, 512 * 512 * 2),
            'W2': (S_PTR + 10, 512 * 512 * 2), 'W3': (S_PTR + 12, 512 * 1792 * 2), 'W4': (S_PTR + 14, 1792 * 512 * 2)}
    srds = {}
    for i, (k, (p, size)) in enumerate(mats.items()):
        s = 40 + 4 * i
        a.e(f's_mov_b32 s{s}, s{p}'); a.e(f's_mov_b32 s{s+1}, s{p+1}')
        a.e(f's_mov_b32 s{s+2}, {hex(size)}'); a.e(f's_mov_b32 s{s+3}, 0x20000')
        srds[k] = s
    T0s, T1s, T2s, T3s, T4s, T5s = 33, 34, 35, 36, 37, 38
    THR, SPIN = 60, 61
    RA, P7T = 64, 68
    U0, U1, U2, U3, U4 = 76, 77, 78, 79, 80
    VAS, VAG, VFS, VFB, VFH, VAH = 3, 4, 5, 6, 7, 8
    X0, X1, X2, X3 = 24, 25, 26, 27
    X0W = 31
    e = a.e
    VXK = 40
    e(f'v_lshrrev_b32 v2, 4, v{V_LANE}')
    e(f'v_and_b32 v3, 15, v{V_LANE}')
    for k in range(4):
        e(f'v_add_u32 v{VXK+k}, {4*k}, v2'); e(f'v_xor_b32 v{VXK+k}, v{VXK+k}, v3'); e(f'v_lshlrev_b32 v{VXK+k}, 4, v{VXK+k}')
        e(f'v_lshl_add_u32 v{VXK+k}, v2, 10, v{VXK+k}')
    e(f's_lshl_b32 s33, s{S_G}, 8'); e(f's_lshl_b32 s34, s{S_RB2}, 7'); e('s_add_u32 s33, s33, s34'); e('s_lshl_b32 s82, s33, 10')
    e(f's_lshl_b32 s83, s{S_RB2}, 1'); e(f's_add_u32 s83, s83, s{S_CB2}'); e(f's_and_b32 s83, s83, {3 if opt.rot else 0}')
    e(f's_lshr_b32 s81, s{S_CB2}, 2'); e(f's_lshl_b32 s81, s81, {13 if opt.rot else 31}')
    if not opt.rot: e('s_mov_b32 s81, 0')
    def x_chunk(c, half=None):
        e(f's_xor_b32 s33, s83, {c}'); e('s_lshl_b32 s33, s33, 8'); e('s_add_u32 s33, s33, s82')
        if half == 1:
            e('s_add_u32 s34, s81, 16384'); e('s_and_b32 s34, s34, 0x7fff')
        else:
            e('s_mov_b32 s34, s81')
        n = 8 if half is None else 4
        if len(a.vm) + 4 * n > 62:
            keep = 62 - 4 * n
            e(f's_waitcnt vmcnt({keep})'); a.vm = a.vm[-keep:] if keep else []
        e(f's_mov_b32 s36, {n}')
        lp = a.newlabel('XC'); a.label(lp)
        for k in range(4):
            e(f's_add_u32 m0, s34, {hex(AREG + (c & 1) * 32768)}')
            e('s_lshl_b32 s35, s34, 2'); e('s_add_u32 s35, s35, s33')
            e(f'buffer_load_dwordx4 v{VXK + k}, s[{S_X}:{S_X+3}], s35 offen lds')
            e('s_add_u32 s34, s34, 1024')
        e('s_and_b32 s34, s34, 0x7fff')
        e('s_sub_u32 s36, s36, 1'); e('s_cmp_lg_u32 s36, 0'); e(f's_cbranch_scc1 {lp}')
        a.vm += [('X', c)] * (4 * n)
        assert len(a.vm) <= 63
    def x_tile():
        e(f'v_lshrrev_b32 v2, 3, v{V_LANE}'); e('v_lshlrev_b32 v2, 10, v2')
        e(f'v_and_b32 v30, 7, v{V_LANE}'); e('v_lshl_add_u32 v2, v30, 4, v2')
        e(f's_lshl_b32 s33, s{S_G}, 8'); e(f's_lshl_b32 s34, s{S_RB}, 6'); e('s_add_u32 s33, s33, s34'); e('s_lshl_b32 s33, s33, 10')
        e(f's_lshl_b32 s34, s{S_CB}, 7'); e('s_add_u32 s33, s33, s34')
        for p_ in range(8):
            e(f's_mov_b32 m0, {hex(AREG + p_ * 1024)}')
            if p_: e('s_add_u32 s33, s33, 8192')
            else: e('s_nop 0')
            a.vmem(f'buffer_load_dwordx4 v2, s[{S_X}:{S_X+3}], s33 offen lds', 'x')
    if WARM0[0]:
        e('s_barrier')
        events = events[1:]
    hstamp(a, opt, 12)
    x_chunk(0); x_chunk(1, 0)
    hstamp(a, opt, 13)
    e(f'v_lshlrev_b32 v1, 7, v{V_LANE}')
    e(f'v_lshlrev_b32 v{X0}, 4, v{V_LANE}')
    e(f'v_lshlrev_b32 v{X0W}, 4, v{V_LANE}')
    e(f's_lshl_b32 s{T0s}, s{S_G}, 4'); e(f's_lshl_b32 s{T1s}, s{S_RB}, 2'); e(f's_add_u32 s{T0s}, s{T0s}, s{T1s}')
    e(f's_lshl_b32 s{T1s}, s{T0s}, 14'); e(f'v_add_u32 v{VAS}, s{T1s}, v{X0}')
    e(f's_mul_i32 s{T1s}, s{T0s}, 57344'); e(f'v_add_u32 v{VAG}, s{T1s}, v{X0}')
    rmask = 3 if opt.rot else 0
    for c in range(4):
        e(f's_and_b32 s{RA+c}, s{S_RB}, {rmask}'); e(f's_xor_b32 s{RA+c}, s{RA+c}, {c}'); e(f's_lshl_b32 s{RA+c}, s{RA+c}, 12')
    for p_ in range(8):
        e(f's_and_b32 s{P7T+p_}, s{S_RB}, {rmask}'); e(f's_lshl_b32 s{P7T+p_}, s{P7T+p_}, 1')
        e(f's_xor_b32 s{P7T+p_}, s{P7T+p_}, {p_}'); e(f's_mul_i32 s{P7T+p_}, s{P7T+p_}, 7168')
    e(f'v_and_b32 v{X1}, 15, v{V_LANE}')
    e(f'v_and_b32 v{X2}, 0x30, v{V_LANE}')
    e(f's_mul_i32 s{T3s}, s{S_G}, 18')
    e(f's_lshl_b32 s{T4s}, s{S_G}, 8')
    for c in range(4):
        e(f's_lshr_b32 s{T5s}, s{RA+c}, 12')
        e(f's_lshr_b32 s{U3}, s{T5s}, 1'); e(f's_add_u32 s{U3}, s{U3}, 1'); e(f's_sub_u32 s{U4}, 0, s{U3}')
        e(f's_bitcmp1_b32 s{T5s}, 0'); e(f's_cselect_b32 s{U3}, s{U3}, s{U4}')
        e(f's_lshl_b32 s{T2s}, s{S_RB}, 6'); e(f's_add_u32 s{T2s}, s{T2s}, s{U3}'); e(f's_add_u32 s{T2s}, s{T2s}, 16')
        for w in range(4):
            r = VAH + 4 * c + w
            e(f's_add_u32 s{T5s}, s{T2s}, {16 * w}')
            e(f'v_add_u32 v{r}, s{T5s}, v{X1}')
            e(f'v_lshrrev_b32 v{X3}, 4, v{r}'); e(f'v_add_u32 v{X3}, s{T3s}, v{X3}'); e(f'v_lshlrev_b32 v{X3}, 14, v{X3}')
            e(f'v_and_b32 v28, 15, v{r}'); e(f'v_add_u32 v28, v{X2}, v28'); e(f'v_lshl_add_u32 v{X3}, v28, 4, v{X3}')
            e(f'v_add_u32 v28, s{T4s}, v{r}'); e('v_subrev_u32 v28, 16, v28')
            e('v_cmp_gt_u32 vcc, 0x800, v28')
            e(f'v_mov_b32 v{r}, 0x80000000'); e('s_nop 0')
            e(f'v_cndmask_b32 v{r}, v{r}, v{X3}, vcc')
    e(f's_lshl_b32 s{T2s}, s{S_G}, 9'); e(f's_add_u32 s{T2s}, s{T2s}, {hex(LF_OFF)}')
    e(f'v_bfe_u32 v{X1}, v{V_LANE}, 3, 2'); e(f'v_lshlrev_b32 v{X1}, 7, v{X1}')
    e(f'v_and_b32 v{X2}, 7, v{V_LANE}'); e(f'v_lshl_add_u32 v{X1}, v{X2}, 2, v{X1}')
    e(f's_lshl_b32 s{T3s}, s{S_RB}, 5'); e(f's_add_u32 s{T3s}, s{T3s}, s{T2s}')
    e(f'v_add_u32 v{VFS}, s{T3s}, v{X1}')
    e(f's_and_b32 s{T3s}, s{S_RB}, 1'); e(f's_lshl_b32 s{T3s}, s{T3s}, 8'); e(f's_add_u32 s{T3s}, s{T3s}, s{T2s}')
    e(f's_lshr_b32 s{T4s}, s{S_RB}, 1'); e(f's_lshl_b32 s{T4s}, s{T4s}, 6'); e(f's_add_u32 s{T3s}, s{T3s}, s{T4s}')
    e(f'v_bfe_u32 v{X2}, v{V_LANE}, 4, 1'); e(f'v_lshlrev_b32 v{X2}, 7, v{X2}')
    e(f'v_and_b32 v{X3}, 15, v{V_LANE}'); e(f'v_lshl_add_u32 v{X2}, v{X3}, 2, v{X2}')
    e(f'v_add_u32 v{VFB}, s{T3s}, v{X2}')
    e(f's_lshl_b32 s{T3s}, s{S_R}, 2'); e(f's_add_u32 s{T3s}, s{T3s}, s{T2s}')
    e(f'v_and_b32 v{X2}, 3, v{V_LANE}'); e(f'v_lshlrev_b32 v{X2}, 7, v{X2}'); e(f'v_add_u32 v{X2}, s{T3s}, v{X2}')
    e(f'v_cmp_lt_u32 vcc, 31, v{V_LANE}'); e('s_nop 1')
    e(f'v_cndmask_b32 v{VFB}, v{VFB}, v{X2}, vcc')
    def build_fh(L):
        la = a.newlabel('FH'); lb = a.newlabel('FH')
        e(f's_lshl_b32 s{T2s}, s{S_G}, 9'); e(f's_add_u32 s{T2s}, s{T2s}, {hex(LF_OFF)}')
        e(f's_lshl_b32 s{T3s}, s{S_RB}, 5'); e(f's_add_u32 s{T3s}, s{T3s}, s{T2s}')
        e(f's_sub_u32 s{U1}, s{T3s}, 32'); e(f's_add_u32 s{U1}, s{U1}, 256'); e(f's_mov_b32 s{U3}, 128')
        e(f's_add_u32 s{U2}, s{T3s}, 32'); e(f's_mov_b32 s{U4}, 128')
        e(f's_lshl_b32 s{T4s}, s{S_G}, 8'); e(f's_add_u32 s{T4s}, s{T4s}, {hex(HF_OFF + L * 2048)}')
        e(f's_cmp_eq_u32 s{S_RB}, 0'); e(f's_cbranch_scc0 {la}')
        e(f's_mov_b32 s{U1}, s{T3s}')
        e(f's_cmp_eq_u32 s{S_G}, 0'); e(f's_cbranch_scc1 {la}')
        e(f's_mov_b32 s{U1}, s{T4s}'); e(f's_mov_b32 s{U3}, 0')
        a.label(la)
        e(f's_cmp_eq_u32 s{S_RB}, 3'); e(f's_cbranch_scc0 {lb}')
        e(f's_mov_b32 s{U2}, s{T3s}')
        e(f's_cmp_eq_u32 s{S_G}, 7'); e(f's_cbranch_scc1 {lb}')
        e(f's_add_u32 s{U2}, s{T4s}, 128'); e(f's_mov_b32 s{U4}, 0')
        a.label(lb)
        e(f'v_bfe_u32 v{X1}, v{V_LANE}, 3, 1'); e(f'v_and_b32 v{X2}, 7, v{V_LANE}'); e(f'v_lshlrev_b32 v{X2}, 2, v{X2}')
        for base_s, mul_s, sel in ((U1, U3, 2), (U2, U4, 3)):
            e(f'v_mul_u32_u24 v{X3}, s{mul_s}, v{X1}'); e(f'v_add_u32 v{X3}, v{X3}, v{X2}'); e(f'v_add_u32 v{X3}, s{base_s}, v{X3}')
            e(f'v_lshrrev_b32 v28, 4, v{V_LANE}'); e(f'v_cmp_eq_u32 vcc, {sel}, v28'); e('s_nop 1')
            e(f'v_cndmask_b32 v{VFH}, v{VFH if sel == 3 else VFS}, v{X3}, vcc')
    e('s_waitcnt lgkmcnt(0)')
    e(f's_mul_i32 s{S_B}, s{S_V}, 0x9e3779b1'); e(f's_add_u32 s{S_B}, s{S_B}, 0x7f4a7c15'); e(f's_and_b32 s{S_B}, s{S_B}, 0xffffff00')

    def poll(v, epoch):
        L_ = a.newlabel('AP'); D_ = a.newlabel('APD')
        e(f's_add_u32 s{THR}, s{S_B}, {8*epoch}'); e(f's_mov_b32 s{SPIN}, {opt.spin}')
        a.label(L_)
        e(f'buffer_load_dword v30, v{v}, {WS}, 0 offen sc1'); e('s_waitcnt vmcnt(0)')
        e(f'v_subrev_u32 v30, s{THR}, v30'); e('v_cmp_gt_u32 vcc, 0x80, v30')
        e(f's_sub_u32 s{SPIN}, s{SPIN}, 1'); e(f's_cbranch_scc1 {D_}')
        e('s_cmp_eq_u64 vcc, -1')
        if opt.poll_sleep:
            e(f's_cbranch_scc1 {D_}'); e(f's_sleep {opt.poll_sleep}'); e(f's_branch {L_}')
        else:
            e(f's_cbranch_scc0 {L_}')
        a.label(D_); a.vm = []
    def a_chunk(phase, c):
        for w in range(4):
            e(f's_mov_b32 m0, {hex(AREG + (c % 4) * 16384 + w * 4096)}')
            if phase == 'P7':
                last = None
                for k in range(4):
                    p_, i_ = divmod(4 * c + k, 7)
                    const = G_OFF + w * 57344 + (i_ - k) * 1024
                    if last != (p_, const):
                        e(f's_add_u32 s{T0s}, s{P7T+p_}, {hex(const & 0xffffffff)}'); last = (p_, const)
                    a.vmem(f'buffer_load_dwordx4 v{VAG}, {WS}, s{T0s} offen offset:{k*1024} sc1 lds', ('A', phase, c))
            else:
                if phase == 'P5':
                    va = VAH + 4 * c + w; e(f's_add_u32 s{T0s}, s{RA+c}, {hex(A0_OFF)}' if A0_OFF else f's_mov_b32 s{T0s}, s{RA+c}')
                elif phase == 'P3':
                    va = VAS; e(f's_add_u32 s{T0s}, s{RA+c}, s{U0}'); e(f's_add_u32 s{T0s}, s{T0s}, {hex(A0_OFF + w * 16384)}')
                else:
                    va = VAS; e(f's_add_u32 s{T0s}, s{RA+c}, {hex(A1_OFF + w * 16384)}')
                for k in range(4):
                    a.vmem(f'buffer_load_dwordx4 v{va}, {WS}, s{T0s} offen offset:{k*1024} sc1 lds', ('A', phase, c))
    e(f's_lshl_b32 s{U0}, s{S_G}, 1'); e(f's_add_u32 s{U0}, s{U0}, 1'); e(f's_lshl_b32 s{U0}, s{U0}, 14')

    dummy = [0]
    def wide(srd_s, soff_s):
        d = 64 + 4 * (dummy[0] % 40); dummy[0] += 1
        fl = 'sc1' if srd_s == WS else opt.touch_flags
        a.vmem(f'buffer_load_dwordx4 v[{d}:{d+3}], v{X0W}, {srd_s}, s{soff_s} offen {fl}', 'T')
    def mall_touch():
        for k in ['WO', 'W2', 'W4']:
            size = mats[k][1]; per = size // 256
            s = srds[k]
            e(f's_mul_i32 s{T0s}, s2, {per}')
            for i in range(per // 1024):
                if i: e(f's_add_u32 s{T0s}, s{T0s}, 1024')
                wide(f's[{s}:{s+3}]', T0s)
    def g_touch():
        e(f's_mul_i32 s{T0s}, s{S_G}, {16 * 57344}'); e(f's_mul_i32 s{T1s}, s{S_R}, 28672')
        e(f's_add_u32 s{T0s}, s{T0s}, s{T1s}'); e(f's_add_u32 s{T0s}, s{T0s}, {hex(G_OFF)}')
        for i in range(28):
            if i: e(f's_add_u32 s{T0s}, s{T0s}, 1024')
            wide(WS, T0s)
    def key(sx):
        k, p, c = sx.split(',')
        return (0, k, p, None if c == '-' else int(c))
    EPO = {'P3': 1, 'P4': 2, 'P5': 3, 'P7': 5}
    if opt.p7_self: del EPO['P7']
    nxt = 0
    for ev in events:
        L, kind, p, ci = ev
        if kind == 'B' and p in EPO:
            nch = NCH[p]
            if ci == 0:
                if p == 'P5': build_fh(L)
                poll({'P3': VFB, 'P4': VFS, 'P5': VFH, 'P7': VFB}[p], 1 + 6 * L + EPO[p])
                a_chunk(p, 0); a_chunk(p, 1); nxt = 2
            a.wait_vm(('A', p, ci))
            e('s_barrier')
            while nxt < nch and (nxt <= ci + 2 or nxt <= 3) and nxt <= ci + 2 + (1 if ci == 0 and False else 0):
                a_chunk(p, nxt); nxt += 1
        elif L == 0 and kind == 'B' and p == 'P1KV':
            a.wait_vm(('X', ci))
            if ci == 0: hstamp(a, opt, 14)
            if ci == 2: hstamp(a, opt, 15)
            e('s_barrier')
            if ci == 0: x_chunk(1, 1)
            if not EARLY[0] and 1 <= ci <= 2: x_chunk(ci + 1)
            if ci == 3: x_tile()
        elif kind == 'R':
            e('s_barrier')
            x_chunk(ci + 2)
        else:
            if ev == (0, 'E', 'P1KV', None): a.wait_vm('x')
            e('s_barrier')
        if opt.touch and opt.touch_at and ev == key(opt.touch_at): mall_touch()
        if opt.gtouch_at and ev == key(opt.gtouch_at) and not (opt.gtouch_parker and opt.park): g_touch()
    e('s_waitcnt vmcnt(0)')
    e('s_endpgm')


def gen_parker(a, opt, events, h):
    e = a.e
    a.c(f'--- parker {h}')
    plan = opt._plan
    W3S, W4S, CB6, CB7 = 40, 44, 64, 68
    QS = 48
    e(f's_mov_b32 s{QS}, s{S_PTR+2}'); e(f's_mov_b32 s{QS+1}, s{S_PTR+3}'); e(f's_mov_b32 s{QS+2}, {hex(512*1536*2)}'); e(f's_mov_b32 s{QS+3}, 0x20000')
    for s_, p_, size in ((W3S, S_PTR + 12, 512 * 1792 * 2), (W4S, S_PTR + 14, 1792 * 512 * 2)):
        e(f's_mov_b32 s{s_}, s{p_}'); e(f's_mov_b32 s{s_+1}, s{p_+1}'); e(f's_mov_b32 s{s_+2}, {hex(size)}'); e(f's_mov_b32 s{s_+3}, 0x20000')
    e(f'v_lshlrev_b32 v1, 4, v{V_LANE}')
    if WARM0[0]:
        e(f's_mul_i32 s33, s{S_R}, 49152')
        if h: e('s_add_u32 s33, s33, 24576')
        k_ = 0
        if h == 0:
            e(f's_lshl_b32 s34, s{S_G}, 18'); e(f's_lshl_b32 s35, s{S_R}, 13'); e('s_add_u32 s34, s34, s35')
            for i in range(8):
                a.vmem(f'buffer_load_dwordx4 v[{16+4*k_}:{19+4*k_}], v1, s[{S_X}:{S_X+3}], s34 offen', 'T'); k_ += 1
                e('s_add_u32 s34, s34, 1024')
        for i in range(24):
            a.vmem(f'buffer_load_dwordx4 v[{16+4*k_}:{19+4*k_}], v1, s[{QS}:{QS+3}], s33 offen', 'T'); k_ += 1
            e('s_add_u32 s33, s33, 1024')
    rm = 3 if opt.rot else 0
    for c in range(4):
        e(f's_lshl_b32 s{CB6+c}, s{S_RB2}, 1'); e(f's_and_b32 s{CB6+c}, s{CB6+c}, {rm}'); e(f's_xor_b32 s{CB6+c}, s{CB6+c}, {c}')
        e(f's_mul_i32 s{CB6+c}, s{CB6+c}, {128*3584}')
    for p_ in range(8):
        e(f's_and_b32 s{CB7+p_}, s{S_RB}, {rm}'); e(f's_lshl_b32 s{CB7+p_}, s{CB7+p_}, 1'); e(f's_xor_b32 s{CB7+p_}, s{CB7+p_}, {p_}')
        e(f's_mul_i32 s{CB7+p_}, s{CB7+p_}, {224*1024}')
    VN, VW, VL, X0, X1, X2 = 2, 4, 8, 11, 12, 13
    e(f'v_lshrrev_b32 v{X0}, 3, v{V_LANE}'); e(f'v_bfe_u32 v{X1}, v{X0}, 1, 1'); e(f'v_lshlrev_b32 v{X1}, 2, v{X1}')
    e(f'v_and_b32 v{X2}, 7, v{V_LANE}'); e(f'v_xor_b32 v{X2}, v{X2}, v{X1}')
    e(f'v_lshlrev_b32 v{VN}, 10, v{X0}'); e(f'v_lshl_add_u32 v{VN}, v{X2}, 4, v{VN}')
    e(f's_lshl_b32 s33, s{S_CB}, 7'); e(f'v_add_u32 v{VN}, s33, v{VN}'); e(f'v_add_u32 v{VN+1}, {hex(8192-1024)}, v{VN}')
    ps = [0, 1, 2, 3] if h == 0 else [4, 5, 6]
    M14 = (1 << 20) // 14 + 1
    e(f's_mul_i32 s33, s{S_CB2}, 224'); e(f's_mov_b32 s34, {hex(M14)}')
    for k, p_ in enumerate(ps):
        e(f'v_add_u32 v{X0}, {64*p_}, v{V_LANE}'); e(f'v_mul_lo_u32 v{X1}, v{X0}, s34'); e(f'v_lshrrev_b32 v{X1}, 20, v{X1}')
        e(f'v_mul_u32_u24 v{X2}, 14, v{X1}'); e(f'v_sub_u32 v{X2}, v{X0}, v{X2}')
        e(f'v_mul_u32_u24 v{VW+k}, 3584, v{X1}'); e(f'v_lshl_add_u32 v{VW+k}, v{X2}, 4, v{VW+k}'); e(f'v_add_u32 v{VW+k}, s33, v{VW+k}')
    e(f'v_lshlrev_b32 v{VL}, 4, v{V_LANE}'); e(f'v_add_u32 v{VL+1}, 0x10000, v{VL}'); e(f'v_add_u32 v{VL+2}, 0x20000, v{VL}')
    def wide(base_expr_emit, n):
        base_expr_emit()
        for i in range(n):
            if i: e('s_add_u32 s33, s33, 1024')
            a.vmem(f'buffer_load_dwordx4 v[{240+4*(i%4)}:{243+4*(i%4)}], v{VL}, {WS}, s33 offen sc1', 'T')
    def touch_a0():
        wide(lambda: (e(f's_mul_i32 s33, s{S_G}, {18*16384}'), e(f's_mul_i32 s34, s{S_R}, 9216'), e('s_add_u32 s33, s33, s34'), e(f's_add_u32 s33, s33, {hex(A0_OFF)}') if A0_OFF else None), 9)
    def touch_lin(off, per_group):
        wide(lambda: (e(f's_mul_i32 s33, s{S_G}, {per_group}'), e(f's_mul_i32 s34, s{S_R}, {per_group // 32}'), e('s_add_u32 s33, s33, s34'), e(f's_add_u32 s33, s33, {hex(off)}')), per_group // 32 // 1024)
    if WARM0[0]:
        a.wait_vm_all()
        e('s_barrier')
        events = events[1:]
    e('s_waitcnt lgkmcnt(0)')
    e(f's_mul_i32 s{S_B}, s{S_V}, 0x9e3779b1'); e(f's_add_u32 s{S_B}, s{S_B}, 0x7f4a7c15'); e(f's_and_b32 s{S_B}, s{S_B}, 0xffffff00')
    def kv_publish(L):
        K = 216
        e(f'v_lshlrev_b32 v{X0}, 2, v{V_LANE}')
        e(f'v_add_u32 v{X1}, {hex(SCR + h * 1024)}, v{X0}')
        e(f'v_add_u32 v{X2}, {hex(SCR + 8192 + h * 64)}, v{X0}')
        for ww in range(4):
            for i in range(4):
                e(f'ds_read_b32 v{K+4*ww+i}, v{X1} offset:{ww*2048+256*i}')
            if ww == 2: e('s_waitcnt lgkmcnt(4)')
        for ww in range(4):
            e(f'ds_read_b32 v{K+16+ww}, v{X2} offset:{ww*128}')
        e(f's_mul_i32 s33, s{S_CB2}, {KVREC}')
        e(f's_add_u32 s33, s33, {hex(KVA_OFF + L * 16 * KVREC)}')
        e(f's_add_u32 s34, s33, {h * 1024}')
        e(f's_add_u32 s35, s33, {2048 + h * 64}')
        e('s_waitcnt lgkmcnt(0)')
        for i in (0, 2):
            e(pk('add', K + i, vp(K + i), vp(K + 4 + i)))
            e(pk('add', K + 8 + i, vp(K + 8 + i), vp(K + 12 + i)))
            e(pk('add', K + i, vp(K + i), vp(K + 8 + i)))
        e(pk('add', K + 16, vp(K + 16), vp(K + 18)))
        e(f'v_add_f32 v{K+16}, v{K+16}, v{K+17}')
        for i in range(4):
            a.vmem(f'buffer_atomic_add_f32 v{K+i}, v{X0}, {WS}, s34 offen offset:{256*i}', 'kva')
        e('s_mov_b64 exec, 0xffff')
        a.vmem(f'buffer_atomic_add_f32 v{K+16}, v{X0}, {WS}, s35 offen', 'kva')
        e('s_mov_b64 exec, -1')
    def kv_flag(L):
        e(f's_lshl_b32 s33, s{S_CB2}, 7'); e(f's_lshl_b32 s34, s{S_G}, 3'); e('s_add_u32 s33, s33, s34')
        e(f's_lshl_b32 s34, s{S_RB2}, 2'); e('s_add_u32 s33, s33, s34'); e(f's_add_u32 s33, s33, {hex(KVF_OFF + L * 2048 + h * 64)}')
        e(f'v_mov_b32 v{X1}, s33')
        e(f's_add_u32 s34, s{S_B}, 8'); e(f's_add_u32 s34, s34, s{S_XCC}'); e(f'v_mov_b32 v{X2}, s34')
        a.wait_vm('kva')
        e('s_mov_b64 exec, 1')
        a.vmem(f'buffer_store_dword v{X2}, v{X1}, {WS}, 0 offen sc1', 'kvf')
        e('s_mov_b64 exec, -1')
    RW = 184
    def stats_load(kind_, half):
        e(f'v_lshrrev_b32 v{X0}, 5, v{V_LANE}'); e(f'v_lshlrev_b32 v{X0}, 12, v{X0}')
        e(f'v_and_b32 v{X1}, 31, v{V_LANE}'); e(f'v_lshl_add_u32 v{X0}, v{X1}, 4, v{X0}')
        e(f's_lshl_b32 s33, s{S_G}, 15')
        e(f's_lshl_b32 s34, s{S_RB2}, 14' if kind_ == 'big' else f's_lshl_b32 s34, s{S_RB}, 13')
        e('s_add_u32 s33, s33, s34'); e(f's_add_u32 s33, s33, {hex(ST_OFF + 8192 * half)}')
        for k in range(8):
            a.vmem(f'buffer_load_dwordx4 v[{RW+4*k}:{RW+4*k+3}], v{X0}, {WS}, s33 offen offset:{512*k} sc1', 'sv')
    def stats_finish(kind_, half):
        a.wait_vm('sv')
        emit_sum_partials(a, RW, 32)
        if kind_ == 'big':
            emit_stats_from_sums(a, RW, RW + 1, RW + 4, RW + 6, RW + 8)
            e(f'v_lshlrev_b32 v{X1}, 2, v{V_LANE}'); e(f'v_add_u32 v{X1}, {hex(STC)}, v{X1}')
            e(f'ds_write_b32 v{X1}, v{RW+4} offset:{STA + 256*half}')
            e(f'ds_write_b32 v{X1}, v{RW+6} offset:{STB_ + 256*half}')
        else:
            emit_stats_from_sums(a, RW, RW + 1, RW + 4, RW + 5, RW + 8, double=True, keep=(RW + 6, RW + 7))
            e(f'v_lshlrev_b32 v{X1}, 4, v{V_LANE}'); e(f'v_add_u32 v{X1}, {hex(STC)}, v{X1}')
            e(f'ds_write_b128 v{X1}, v[{RW+4}:{RW+7}] offset:{ST4}')
        e('s_waitcnt lgkmcnt(0)')
    def tkey(sx):
        k, p, c = sx.split(',')
        return (0, k, p, None if c == '-' else int(c))
    slots = list(range(50 if (h == 0 or not opt.stats_srv) else 42))
    held = {}
    pending = set()
    def do(actions):
        for act, s_ in actions:
            if act == 'park':
                if s_.kind == 'W3':
                    c_, rr_ = divmod(s_.srow, 128)
                    e(f's_add_u32 s33, s{CB6+c_}, {hex(rr_*3584)}')
                    regs = []
                    for k, p_ in enumerate(ps):
                        sl = slots.pop(0); regs.append((sl, p_))
                        a.vmem(f'buffer_load_dwordx4 v[{16+4*sl}:{19+4*sl}], v{VW+k}, s[{W3S}:{W3S+3}], s33 offen', id(s_))
                else:
                    srow = s_.srow if h == 0 else s_.srow2
                    p_, rr_ = divmod(srow, 224)
                    e(f's_add_u32 s33, s{CB7+p_}, {hex(rr_*1024)}')
                    regs = []
                    for k in range(2):
                        sl = slots.pop(0); regs.append((sl, 2 * h + k))
                        a.vmem(f'buffer_load_dwordx4 v[{16+4*sl}:{19+4*sl}], v{VN+k}, s[{W4S}:{W4S+3}], s33 offen offset:{k*1024}', id(s_))
                held[id(s_)] = regs
            else:
                a.wait_vm(id(s_))
                for sl, p_ in held.pop(id(s_)):
                    ad = s_.addr + p_ * 1024
                    e(f'ds_write_b128 v{VL + (ad >> 16)}, v[{16+4*sl}:{19+4*sl}] offset:{ad & 0xffff}')
                    slots.append(sl)
                pending.add((s_.layer, s_.phase, s_.chunk))
    for ev in events:
        L, kind, p, ci = ev
        if kind == 'B':
            do(plan.get(f'pre {L}.{p}.B{ci}', []))
            if (L, p, ci) in pending:
                e('s_waitcnt lgkmcnt(0)'); pending.clear()
            e('s_barrier')
            acts = plan.get(f'{L}.{p}.B{ci}', [])
        elif kind == 'R':
            e('s_barrier'); acts = []
        elif kind == 'E':
            e('s_barrier'); acts = plan.get(f'{L}.{p}.E', [])
        else:
            e('s_barrier'); acts = plan.get(f'{L}.{p}', [])
        if opt.stats_srv and h == 1 and kind == 'B':
            if p == 'P4':
                if ci == 0: stats_load('small', 0)
                if ci == 2: stats_finish('small', 0)
            if p == 'P6' or (p == 'P1KV' and L == 1):
                if ci == 0: stats_load('big', 0)
                if ci == 1: stats_finish('big', 0); stats_load('big', 1)
                if ci == 2: stats_finish('big', 1)
        if kind == 'X' and p == 'X1' and opt.kv_by_parker and opt.kv_atomic:
            kv_publish(L)
        if ev[1:] == tkey(opt.kvflag_ev)[1:] and opt.kv_by_parker and opt.kv_atomic:
            kv_flag(L)
        do([x for x in acts if x[0] == 'unpark'])
        do([x for x in acts if x[0] == 'park'])
        if opt.pretouch and h == 1 and ev == tkey(opt.a2touch_at): touch_lin(A2_OFF, 262144)
        if opt.gtouch_parker and opt.gtouch_at and ev == tkey(opt.gtouch_at):
            wide(lambda: (e(f's_mul_i32 s33, s{S_G}, {16*57344}'), e(f's_mul_i32 s34, s{S_R}, 28672'), e('s_add_u32 s33, s33, s34'),
                          e(f's_add_u32 s33, s33, {hex(G_OFF + h * 14336)}')), 14)
        if opt.pretouch and ev == tkey(opt.a01touch_at):
            if h == 0:
                touch_a0(); touch_lin(ST_OFF, 32768)
            else:
                touch_lin(A1_OFF, 262144)
    e('s_waitcnt vmcnt(0) lgkmcnt(0)')
    e('s_endpgm')


def generate(opt):
    ATOMIC[0] = opt.kv_atomic
    EARLY[0] = opt.early_rel
    if opt.dbgout >= 0: opt.phi_clamp = 0
    WARM0[0] = 1 if (opt.warm0 and opt.park) else 0
    events = build_events(opt.stop)
    a = Asm(); a.opt = opt
    hdr = open(os.path.join(os.path.dirname(os.path.abspath(__file__)), 'header.txt')).read()
    out = [hdr.rstrip('\n')]
    out.append(f'; @launch grid=(256,1,1) block=({64*(8 if opt.park else 6)},1,1) lds={LDS_TOTAL}')
    out += ['.amdgcn_target "amdgcn-amd-amdhsa--gfx950"', '.text', f'.globl {KNAME}', '.p2align 8',
            f'.type {KNAME},@function', f'{KNAME}:']
    a.e('s_cmp_ge_u32 s2, 256')
    a.e('s_cbranch_scc1 L_EXIT')
    if opt.startdiag: a.e('s_memtime s[100:101]')
    if opt.dbgout >= 0 and opt.fine: a.e('s_memtime s[96:97]')
    if opt.wall:
        a.e('s_memrealtime s[18:19]') if False else None
    a.e(f's_load_dwordx16 s[{S_PTR}:{S_PTR+15}], s[0:1], 0')
    a.e(f's_load_dwordx4 s[{S_PTR+16}:{S_PTR+19}], s[0:1], 64')
    a.e(f's_load_dwordx2 s[{S_PTR+20}:{S_PTR+21}], s[0:1], 80')
    a.e('v_lshrrev_b32 v1, 6, v0')
    a.e('s_nop 0')
    if opt.prefetch_code:
        a.e('s_getpc_b64 s[34:35]')
        a.label('L_PC')
        a.e(f's_sub_u32 s34, s34, (L_PC - {KNAME})')
        a.e('s_subb_u32 s35, s35, 0')
        a.e('s_lshr_b32 s36, s2, 3')
        a.e('s_mul_i32 s36, s36, 2560')
        a.e('v_lshlrev_b32 v2, 7, v0')
        a.e('v_add_u32 v2, s36, v2')
        a.e(f's_mov_b32 s36, (L_CODE_END - {KNAME} - 4)')
        a.e('v_min_u32 v2, s36, v2')
        a.e('v_and_b32 v2, -4, v2')
        a.e('v_cmp_gt_u32 vcc, 20, v0')
        a.e('s_and_saveexec_b64 s[36:37], vcc')
        a.e('s_cbranch_execz L_NOPF')
        a.e('global_load_dword v255, v2, s[34:35]')
        a.label('L_NOPF')
        a.e('s_mov_b64 exec, s[36:37]')
    a.e(f'v_readfirstlane_b32 s{S_W}, v1')
    a.e(f'v_and_b32 v{V_LANE}, 63, v0')
    a.e(f's_getreg_b32 s{S_XCC}, hwreg(HW_REG_XCC_ID)')
    a.e(f's_and_b32 s{S_XCC}, s{S_XCC}, 7')
    a.e(f's_and_b32 s{S_G}, s2, 7')
    a.e(f's_lshr_b32 s{S_R}, s2, 3')
    a.e(f's_lshr_b32 s{S_RB}, s{S_R}, 3')
    a.e(f's_and_b32 s{S_CB}, s{S_R}, 7')
    a.e(f's_lshr_b32 s{S_RB2}, s{S_R}, 4')
    a.e(f's_and_b32 s{S_CB2}, s{S_R}, 15')
    a.e('s_waitcnt lgkmcnt(0)')
    if opt.ws_base:
        a.e(f's_add_u32 s{S_PTR+20}, s{S_PTR+20}, {hex(opt.ws_base)}')
        a.e(f's_addc_u32 s{S_PTR+21}, s{S_PTR+21}, 0')
    a.e(f's_add_u32 s34, s{S_PTR+20}, {hex(NONCE_OFF)}')
    a.e(f's_addc_u32 s35, s{S_PTR+21}, 0')
    a.e(f's_load_dword s{S_V}, s[34:35], 0')
    def srd(s, p, size):
        a.e(f's_mov_b32 s{s}, s{p}'); a.e(f's_mov_b32 s{s+1}, s{p+1}')
        a.e(f's_mov_b32 s{s+2}, {hex(size)}'); a.e(f's_mov_b32 s{s+3}, 0x20000')
    if opt.dbgout >= 0:
        a.e(f's_mov_b32 s86, s{S_PTR+18}'); a.e(f's_mov_b32 s87, s{S_PTR+19}')
    srd(S_WS, S_PTR + 20, WS_USED)
    srd(S_X, S_PTR + 0, 2048 * 512 * 2)
    srd(S_OUT, S_PTR + 16, 2048 * 512 * 2)
    a.e(f's_cmp_lt_u32 s{S_W}, 4')
    a.e('s_cbranch_scc1 L_COMPUTE')
    if opt.park:
        for wv in (6, 7):
            a.e(f's_cmp_eq_u32 s{S_W}, {wv}')
            a.e(f's_cbranch_scc0 L_NOTP{wv}')
            a.e('s_getpc_b64 s[34:35]')
            a.label(f'L_PCP{wv}')
            a.e(f's_add_u32 s34, s34, (L_PARKER{wv} - L_PCP{wv})')
            a.e('s_addc_u32 s35, s35, 0')
            a.e('s_setpc_b64 s[34:35]')
            a.label(f'L_NOTP{wv}')
    a.e(f's_cmp_eq_u32 s{S_W}, 5')
    a.e('s_cbranch_scc0 L_GOLOADER')
    a.e('s_getpc_b64 s[34:35]')
    a.label('L_PC3')
    a.e('s_add_u32 s34, s34, (L_TOUCHER - L_PC3)')
    a.e('s_addc_u32 s35, s35, 0')
    a.e('s_setpc_b64 s[34:35]')
    a.label('L_GOLOADER')
    a.e('s_getpc_b64 s[34:35]')
    a.label('L_PC2')
    a.e('s_add_u32 s34, s34, (L_LOADER - L_PC2)')
    a.e('s_addc_u32 s35, s35, 0')
    a.e('s_setpc_b64 s[34:35]')
    a.label('L_EXIT')
    a.e('s_endpgm')
    a.label('L_COMPUTE')
    a.vm = []
    if opt.stop is not None and opt.stop[0] == 0: cev = events
    else: cev = [e for e in build_events(None) if e[0] == 0]
    rest = gen_compute(a, opt, cev)
    assert not rest, rest
    a.label('L_LOADER')
    a.vm = []
    a.fstamp = lambda p: None
    gen_loader(a, opt, events)
    a.label('L_TOUCHER')
    a.vm = []
    gen_toucher(a, opt, events)
    if opt.park:
        for wv in (6, 7):
            a.label(f'L_PARKER{wv}')
            a.vm = []
            gen_parker(a, opt, events, wv - 6)
    a.label('L_CODE_END')
    out.append(a.text())
    out += ['.section .rodata,"a"', '.p2align 6', f'.amdhsa_kernel {KNAME}',
            '  .amdhsa_next_free_vgpr 256', '  .amdhsa_next_free_sgpr 102', '  .amdhsa_accum_offset 256',
            '  .amdhsa_group_segment_fixed_size 0', '  .amdhsa_kernarg_size 88', '  .amdhsa_user_sgpr_count 2',
            '  .amdhsa_user_sgpr_kernarg_segment_ptr 1', '  .amdhsa_system_sgpr_workgroup_id_x 1', '.end_amdhsa_kernel']
    return '\n'.join(out) + '\n'


if __name__ == '__main__':
    import argparse
    ap = argparse.ArgumentParser()
    ap.add_argument('-o', default='interleave_layers__linear_attn_block__mixer_s_mlp__prompt.s')
    ap.add_argument('--stop', default=None)
    ap.add_argument('--timing', action='store_true')
    ap.add_argument('--safe', action='store_true')
    ap.add_argument('--set', action='append', default=[])
    ap.add_argument('--fine', default=None)
    args = ap.parse_args()
    opt = Opt()
    if args.stop:
        l, p = args.stop.split(','); opt.stop = (int(l), p)
    opt.timing = args.timing; opt.force_safe = args.safe; opt.fine = args.fine
    opt.caps = dict(Opt.caps); opt.park_w3 = dict(Opt.park_w3); opt.park_caps = dict(Opt.park_caps)
    for kv in args.set:
        k, v = kv.split('=')
        if k.startswith('pk3:'): opt.park_w3[k[4:]] = int(v)
        elif k.startswith('pk4:'): opt.park_caps[k[4:]] = int(v)
        elif '.' in k or k in ('X1', 'X2'): opt.caps[k] = int(v)
        else:
            try: setattr(opt, k, int(v))
            except ValueError: setattr(opt, k, v.replace(':', ','))
    open(args.o, 'w').write(generate(opt))
    print('written', args.o)
    if os.environ.get('SCHED'):
        import itertools
        for k, g in itertools.groupby(opt._log, key=lambda x: x[0]):
            g = list(g); d = {}
            for x in g: d[(x[1], x[2], x[3])] = d.get((x[1], x[2], x[3]), 0) + 1
            print(k, ' '.join(f'{a_}.{b_}.c{c_}x{n_}' for (a_, b_, c_), n_ in d.items()), 'FORCED' if any(x[4] for x in g) else '')
```

```python
import sys, os, struct

KNAME = 'interleave_layers__linear_attn_block__mixer_s_mlp__prompt_kernel'

class Opt:
    stop = None
    timing = False
    fine = None
    force_safe = False
    window = 40
    window0 = 60
    caps = {'P1KV.E': 64, 'P1Q.B0': 16, 'P1Q.B1': 16, 'P1Q.E': 32,
            'P3.B0': 0, 'P3.B1': 32, 'P3.B2': 16, 'P3.B3': 16,
            'P4.B1': 32, 'P4.B2': 16, 'P4.B3': 16,
            'P5.B1': 35, 'P5.B2': 14, 'P5.B3': 21,
            'P6.B0': 28, 'P6.B1': 16, 'P6.B2': 16, 'P6.B3': 16, 'P6.E': 64,
            'P7.B*': 16, 'P7.E': 64}
    cap0 = 0
    touch = True
    dbg_w_same = 0
    w_nt = 0
    g_cold = 0
    touch_at = 'B,P1Q,0'
    rot = 1
    out_lds = 0
    early_rel = 0
    fill_at = 3
    stats_srv = 0
    kv_by_parker = 1
    kvflag_ev = 'B,P1Q,1'
    prio_c = 0
    prio_a = 0
    prio_l = 0
    phi_clamp = 1
    warm0 = 0
    cs_late = 0
    poll_sleep = 0
    dbgout = -1
    dbgwg = 100
    pretouch = 1
    a2touch_at = 'B,P6,3'
    a01touch_at = 'B,P1KV,2'
    gtouch_parker = 1
    park = 1
    park_w3 = {'P1KV.E': 2, 'X1': 2, 'P1Q.E': 8}
    park_caps = {'P6.B1': 0, 'P6.B2': 0, 'P6.B3': 0, 'P6.E': 0}
    unpark_max = 6
    kv_atomic = 1
    wall = 0
    p7_self = 1
    dbg_skip = ''
    ws_base = 0
    late_a = 0
    kvflag_at = 5
    up3 = 1
    startdiag = 0
    gtouch_at = 'B,P5,2'
    dbg_a_same = 0
    touch_flags = ''
    spin = 1 << 17
    prefetch_code = True
    D_kv = 4
    D_p6 = 4

MB = 1 << 20
A0_OFF = 0
A1_OFF = 0x280000
A2_OFF = 0x480000
G_OFF = 0x680000
ST_OFF = 0xD80000
KVP_OFF = 0xDC0000
KVP_L = 0x88000
KVA_OFF = 0xED0000
LSTRIDE = 0x780000
FL_OFF = 0xF00000
LF_OFF = FL_OFF
KVF_OFF = FL_OFF + 4096
HF_OFF = FL_OFF + 8192
XID_OFF = FL_OFF + 29696
NONCE_OFF = FL_OFF + 30720
TM_OFF = FL_OFF + 32768
CSP_OFF = FL_OFF + 32768 + 65536
CSF_OFF = CSP_OFF + 65536
WS_USED = CSF_OFF + 32768
KVREC = 2176

LDS_TOTAL = 163840
AREG = 0
SCR = 49152
CSL = None
WRING = 65536
RING = 93952
PHI = 53248
CSL = WRING + 28672
CSC = WRING + RING
STC = CSC + 1088
STA, STB_, ST4 = 0, 512, 1024
assert STC % 16 == 0 and STC + 2048 <= LDS_TOTAL

EPS = 1e-5

def f2u(x):
    return struct.unpack('<I', struct.pack('<f', x))[0]

class Asm:
    def __init__(self):
        self.lines = []; self.nlabel = 0; self.vm = []
        self.fstamp = lambda p: None
    def e(self, s): self.lines.append('  ' + s)
    def c(self, s): self.lines.append('  ; ' + s)
    def label(self, name): self.lines.append(name + ':')
    def newlabel(self, base='L'):
        self.nlabel += 1
        return f'{base}_{self.nlabel}'
    def vmem(self, s, tag=None):
        self.e(s); self.vm.append(tag)
    def count_vm(self, tag):
        if tag not in self.vm: return None
        idx = max(i for i, t in enumerate(self.vm) if t == tag)
        n = len(self.vm) - 1 - idx
        assert n <= 63, n
        self.vm = self.vm[idx + 1:]
        return n
    def wait_vm(self, tag):
        n = self.count_vm(tag)
        if n is not None: self.e(f's_waitcnt vmcnt({n})')
    def wait_vm_all(self):
        self.e('s_waitcnt vmcnt(0)'); self.vm = []
    def text(self): return '\n'.join(self.lines)

def set_exec(a, lo, hi=None):
    a.e(f's_mov_b32 exec_lo, {hex(lo)}')
    a.e(f's_mov_b32 exec_hi, {hex(lo if hi is None else hi)}')

S_V = 3
S_WS = 4; S_X = 8; S_OUT = 12; S_PA = 16
S_G, S_R, S_W, S_RB, S_CB, S_RB2, S_CB2 = 20, 21, 22, 23, 24, 25, 26
S_MODE, S_L, S_LOFF, S_EP, S_B, S_XCC = 27, 28, 29, 30, 31, 32
S_T0, S_T1, S_T2, S_T3, S_T4, S_T5 = 33, 34, 35, 36, 37, 38
S_SPIN, S_THR = 39, 40
S_AOFF, S_AOFF2, S_ASTR = 41, 42, 43
S_C1, S_C2, S_ONE2 = 44, 46, 48
S_LOG2E, S_EPS6 = 50, 51
S_W4K = 52
S_RH, S_CH = 53, 54
S_U0, S_U1, S_U2, S_U3, S_U4 = 55, 56, 57, 58, 59
S_COLD = 62
S_GH = 63
S_RA = 86
S_RK = 90
S_P7 = 94
S_ROTK = 45
S_L2E2, S_E62 = 88, 86
S_PTR = 64
S_WQKV, S_WO, S_W1, S_W2, S_W3, S_W4 = 40, 44, 48, 52, 56, 60
S_CSRD = 88

V_LANE = 0
V_AS, V_AB, V_AG, V_P1 = 1, 2, 3, 4
V_AH = 5
V_STS, V_STB, V_STST, V_XRM, V_TST = 9, 10, 11, 12, 13
V_FSB, V_FBS, V_FSS, V_FH, V_FOWN, V_FKV = 14, 15, 16, 17, 18, 19
V_T128, V_T64, V_T224, V_TN, V_TA = 20, 21, 22, 23, 24
V_T0, V_T1, V_T2 = 25, 26, 27
V_TB = 28
V_RES = 32
V_MEAN, V_RS = 48, 49
V_X = 50
V_PQ = 56
V_ACC = 64
V_A = 128

PHASES = ['P1KV', 'P1Q', 'P3', 'P4', 'P5', 'P6', 'P7']
NCH = {'P1KV': 4, 'P1Q': 2, 'P3': 4, 'P4': 4, 'P5': 4, 'P6': 4, 'P7': 14}

ATOMIC = [1]
EARLY = [1]
WARM0 = [1]
NOE = ('P3', 'P4', 'P5')

class Slab:
    def __init__(self, layer, phase, chunk, kind, size, srow, npieces, srow2=None):
        self.layer, self.phase, self.chunk, self.kind = layer, phase, chunk, kind
        self.size, self.srow, self.npieces, self.srow2 = size, srow, npieces, srow2
        self.addr = None

def w4_tile_seq():
    seq = []
    for c in range(8):
        for i in [0, 1, 2, 3, 4, 5, 7, 8, 9, 10, 11, 12, 6, 13]:
            seq.append(14 * c + i)
    return seq

def build_slabs(layer):
    ph = {}
    def simple(phase, kind, nchunk, per, size, rows, np_):
        ph[phase] = [[Slab(layer, phase, c, kind, size, (c * per + j) * rows, np_) for j in range(per)] for c in range(nchunk)]
    simple('P1KV', 'KV', 4, 4, 4096, 32, 4)
    simple('P1Q', 'Q', 2, 4, 4096, 64, 4)
    simple('P3', 'WO', 4, 4, 4096, 32, 4)
    simple('P4', 'W1', 4, 4, 4096, 32, 4)
    simple('P5', 'W2', 4, 4, 4096, 32, 4)
    simple('P6', 'W3', 4, 4, 7168, 32, 7)
    seq = w4_tile_seq()
    ph['P7'] = [[Slab(layer, 'P7', c, 'W4', 4096, seq[2 * (c * 4 + j)] * 16, 4, srow2=seq[2 * (c * 4 + j) + 1] * 16)
                 for j in range(4)] for c in range(14)]
    pos = PHI
    for p in PHASES:
        for ch in ph[p]:
            for s in ch:
                if pos + s.size > RING: pos = 0
                s.addr = WRING + pos
                pos += s.size
    assert pos == PHI, pos
    return ph

def build_events(stop):
    ev = [(0, 'X', 'W0', None)] if WARM0[0] else []
    for L in range(2):
        for p in PHASES:
            for c in range(NCH[p]):
                ev.append((L, 'B', p, c))
                if EARLY[0] and L == 0 and p == 'P1KV' and c < 2: ev.append((L, 'R', p, c))
            if p not in NOE: ev.append((L, 'E', p, None))
            if p == 'P1KV': ev.append((L, 'X', 'X1', None))
            if p == 'P1Q' and not ATOMIC[0]: ev.append((L, 'X', 'X2', None))
            if stop == (L, p): return ev
    return ev

WS = f's[{S_WS}:{S_WS+3}]'

def thr_value(a, dst, epoch, xcc=False):
    if isinstance(epoch, int):
        a.e(f's_add_u32 s{dst}, s{S_B}, {8*epoch}')
    else:
        a.e(f's_lshl_b32 s{dst}, {epoch}, 3')
        a.e(f's_add_u32 s{dst}, s{dst}, s{S_B}')
    if xcc: a.e(f's_add_u32 s{dst}, s{dst}, s{S_XCC}')

def emit_poll(a, vaddr, epoch, soff='0', opt=Opt, x4=False, tbase=None):
    L = a.newlabel('POLL'); D = a.newlabel('POLLD')
    thr_value(a, S_THR, epoch)
    a.e(f's_mov_b32 s{S_SPIN}, {opt.spin}')
    a.label(L)
    if x4:
        T = tbase
        a.e(f'buffer_load_dwordx4 v[{T}:{T+3}], v{vaddr}, {WS}, {soff} offen sc1')
        a.e('s_waitcnt vmcnt(0)')
        for i in range(4): a.e(f'v_subrev_u32 v{T+i}, s{S_THR}, v{T+i}')
        a.e(f'v_max_u32 v{T}, v{T}, v{T+1}')
        a.e(f'v_max_u32 v{T+2}, v{T+2}, v{T+3}')
        a.e(f'v_max_u32 v{V_T0}, v{T}, v{T+2}')
    else:
        a.e(f'buffer_load_dword v{V_T2}, v{vaddr}, {WS}, {soff} offen sc1')
        a.e('s_waitcnt vmcnt(0)')
        a.e(f'v_subrev_u32 v{V_T0}, s{S_THR}, v{V_T2}')
    a.vm = []
    a.e(f'v_cmp_gt_u32 vcc, 0x80, v{V_T0}')
    a.e(f's_sub_u32 s{S_SPIN}, s{S_SPIN}, 1')
    a.e(f's_cbranch_scc1 {D}')
    a.e('s_cmp_eq_u64 vcc, -1')
    if opt.poll_sleep:
        a.e(f's_cbranch_scc1 {D}')
        a.e(f's_sleep {opt.poll_sleep}')
        a.e(f's_branch {L}')
    else:
        a.e(f's_cbranch_scc0 {L}')
    a.label(D)

def emit_mode_stores(a, stores, cold=False):
    F = a.newlabel('STF'); D = a.newlabel('STD')
    if getattr(a, 'opt', None) is not None and a.opt.pretouch and a.opt.park: cold = False
    a.e(f's_cmp_eq_u32 s{S_COLD if cold else S_MODE}, 0')
    a.e(f's_cbranch_scc1 {F}')
    for s in stores: a.e(s + ' sc1')
    a.e(f's_branch {D}')
    a.label(F)
    for s in stores: a.e(s)
    a.label(D)
    for s in stores: a.vm.append('st')

def emit_signal(a, epoch):
    thr_value(a, S_THR, epoch, xcc=True)
    a.e(f'v_mov_b32 v{V_T0}, s{S_THR}')
    a.wait_vm_all()
    a.e('s_mov_b64 exec, 1')
    emit_mode_stores(a, [f'buffer_store_dword v{V_T0}, v{V_FOWN}, {WS}, 0 offen'])
    a.e('s_mov_b64 exec, -1')

def emit_xreduce(a, regs, tmp, over16=True):
    for r, t in zip(regs, tmp): a.e(f'v_mov_b32 v{t}, v{r}')
    a.e('s_nop 1')
    for r, t in zip(regs, tmp): a.e(f'v_permlane32_swap_b32 v{r}, v{t}')
    a.e('s_nop 0')
    for r, t in zip(regs, tmp): a.e(f'v_add_f32 v{r}, v{r}, v{t}')
    if over16:
        for r, t in zip(regs, tmp): a.e(f'v_mov_b32 v{t}, v{r}')
        a.e('s_nop 1')
        for r, t in zip(regs, tmp): a.e(f'v_permlane16_swap_b32 v{r}, v{t}')
        a.e('s_nop 0')
        for r, t in zip(regs, tmp): a.e(f'v_add_f32 v{r}, v{r}, v{t}')

def pk(op, d, x, y, z=None, mods=''):
    s = f'v_pk_{op}_f32 v[{d}:{d+1}], {x}, {y}'
    if z is not None: s += f', {z}'
    return s + mods
def vp(r): return f'v[{r}:{r+1}]'

def emit_stats_partial32(a, vals, t0, st_soff, cold=False):
    s, q = t0, t0 + 2
    a.e(pk('add', s, vp(vals), vp(vals + 2)))
    a.e(pk('mul', q, vp(vals), vp(vals)))
    a.e(pk('fma', q, vp(vals + 2), vp(vals + 2), vp(q)))
    for i in range(4, 16, 2):
        a.e(pk('add', s, vp(s), vp(vals + i)))
        a.e(pk('fma', q, vp(vals + i), vp(vals + i), vp(q)))
    a.e(f'v_add_f32 v{t0}, v{s}, v{s+1}')
    a.e(f'v_add_f32 v{t0+1}, v{q}, v{q+1}')
    emit_xreduce(a, [t0, t0 + 1], [t0 + 4, t0 + 5], over16=False)
    set_exec(a, 0xffffffff, 0)
    emit_mode_stores(a, [f'buffer_store_dwordx2 v[{t0}:{t0+1}], v{V_STST}, {WS}, {st_soff} offen'], cold=cold)
    a.e('s_mov_b64 exec, -1')

def emit_stats_from_sums(a, s, ss, out_a, out_b, tmp, double=False, keep=None):
    mean, var = s, ss
    a.e(f'v_mul_f32 v{mean}, {hex(f2u(1.0/512))}, v{s}')
    a.e(f'v_mul_f32 v{var}, {hex(f2u(1.0/512))}, v{ss}')
    a.e(f'v_fma_f32 v{var}, -v{mean}, v{mean}, v{var}')
    a.e(f'v_max_f32 v{var}, 0, v{var}')
    a.e(f'v_add_f32 v{tmp}, {hex(f2u(EPS))}, v{var}')
    a.e(f'v_rsq_f32 v{tmp}, v{tmp}')
    a.e('s_nop 0')
    if double:
        a.e(f'v_mul_f32 v{tmp+1}, v{tmp}, v{tmp}')
        a.e(f'v_mul_f32 v{tmp+1}, v{tmp+1}, v{var}')
        a.e(f'v_add_f32 v{tmp+1}, {hex(f2u(EPS))}, v{tmp+1}')
        a.e(f'v_rsq_f32 v{tmp+1}, v{tmp+1}')
        a.e('s_nop 0')
        a.e(f'v_mul_f32 v{out_a}, v{tmp}, v{tmp+1}')
    else:
        a.e(f'v_mov_b32 v{out_a}, v{tmp}')
    if keep:
        a.e(f'v_mov_b32 v{keep[0]}, v{mean}')
        a.e(f'v_mov_b32 v{keep[1]}, v{tmp}')
    a.e(f'v_mul_f32 v{out_b}, v{out_a}, v{mean}')
    a.e(f'v_sub_f32 v{out_b}, 0, v{out_b}')

def emit_sum_partials(a, raw, n):
    k = n
    step = 2
    regs = [raw + i for i in range(0, n, 2)]
    while len(regs) > 1:
        nxt = []
        for i in range(0, len(regs), 2):
            a.e(pk('add', regs[i], vp(regs[i]), vp(regs[i + 1])))
            nxt.append(regs[i])
        regs = nxt

def emit_lnfold(a, acc, cs, av, bv, n):
    for i in range(0, n, 2):
        a.e(pk('mul', acc + i, vp(acc + i), vp(av), mods=' op_sel_hi:[1,0]'))
    for i in range(0, n, 2):
        a.e(pk('fma', acc + i, vp(cs + i), vp(bv), vp(acc + i), mods=' op_sel_hi:[1,0,1]'))

def emit_gelu(a, x, n, tmp, c1reg):
    blk = 16
    a.e(f'v_mov_b32 v{c1reg}, s{S_C1}')
    for b0 in range(0, n, blk):
        m = min(blk, n - b0); t = tmp
        for i in range(0, m, 2): a.e(pk('mul', t + i, vp(x + b0 + i), vp(x + b0 + i)))
        for i in range(0, m, 2): a.e(pk('fma', t + i, vp(t + i), f's[{S_C2}:{S_C2+1}]', vp(c1reg), mods=' op_sel_hi:[1,1,0]'))
        for i in range(0, m, 2): a.e(pk('mul', t + i, vp(t + i), vp(x + b0 + i)))
        for i in range(m): a.e(f'v_exp_f32 v{t+i}, v{t+i}')
        for i in range(0, m, 2): a.e(pk('add', t + i, vp(t + i), f's[{S_ONE2}:{S_ONE2+1}]'))
        for i in range(m): a.e(f'v_rcp_f32 v{t+i}, v{t+i}')
        for i in range(0, m, 2): a.e(pk('mul', x + b0 + i, vp(x + b0 + i), vp(t + i)))

def emit_phi(a, regs, tmp):
    if a.opt.phi_clamp and all(regs[i + 1] == regs[i] + 1 and regs[i] % 2 == 0 for i in range(0, len(regs), 2)) and tmp % 2 == 0:
        for i in range(0, len(regs), 2): a.e(pk('mul', tmp + i, vp(regs[i]), f's[{S_L2E2}:{S_L2E2+1}]'))
        for i, r in enumerate(regs): a.e(f'v_exp_f32_e64 v{tmp+i}, v{tmp+i} clamp')
        for i, r in enumerate(regs): a.e(f'v_max_f32 v{r}, 0, v{r}')
        for i in range(0, len(regs), 2): a.e(pk('add', tmp + i, vp(tmp + i), f's[{S_E62}:{S_E62+1}]'))
        for i in range(0, len(regs), 2): a.e(pk('add', regs[i], vp(regs[i]), vp(tmp + i)))
        return
    for i, r in enumerate(regs): a.e(f'v_min_f32 v{tmp+i}, 0, v{r}')
    for i, r in enumerate(regs): a.e(f'v_mul_f32 v{tmp+i}, s{S_LOG2E}, v{tmp+i}')
    for i, r in enumerate(regs): a.e(f'v_exp_f32 v{tmp+i}, v{tmp+i}')
    for i, r in enumerate(regs): a.e(f'v_max_f32 v{r}, 0, v{r}')
    for i, r in enumerate(regs): a.e(f'v_add_f32 v{r}, v{r}, v{tmp+i}')
    for i, r in enumerate(regs): a.e(f'v_add_f32 v{r}, s{S_EPS6}, v{r}')

def emit_pack(a, dst, src, n):
    for i in range(0, n, 2): a.e(f'v_cvt_pk_bf16_f32 v{dst+i//2}, v{src+i}, v{src+i+1}')

def emit_pack32(a, dst, src):
    for k, j in enumerate([0, 2, 1, 3]):
        a.e(f'v_cvt_pk_bf16_f32 v{dst+2*k}, v{src+4*j}, v{src+4*j+1}')
        a.e(f'v_cvt_pk_bf16_f32 v{dst+2*k+1}, v{src+4*j+2}, v{src+4*j+3}')

class TrBase:
    def __init__(self, a, lane_reg, nt):
        self.a, self.lane_reg, self.nt, self.cur = a, lane_reg, nt, None
    def off(self, addr, span):
        if self.cur is None or addr < self.cur or addr + span - self.cur > 65535:
            self.cur = addr
            for t in range(self.nt):
                if t == 0:
                    self.a.e(f'v_add_u32 v{V_TB}, {hex(addr)}, v{self.lane_reg}')
                else:
                    self.a.e(f'v_xor_b32 v{V_TB+t}, {t << 5}, v{self.lane_reg}')
                    self.a.e(f'v_add_u32 v{V_TB+t}, {hex(addr)}, v{V_TB+t}')
        return addr - self.cur

def emit_gemm16(a, bar, phase, chunks, CT, kind, acc_of, a_of, a_wait, a_issue, wr, S, normal=False, extra=None, a_lds=None):
    R, LA = 2, 4
    ks = []
    for ci, ch in enumerate(chunks):
        first = True
        for s in ch:
            ks.append((ci, s.addr, first)); first = False
            if kind == '64': ks.append((ci, s.addr + 2048, False))
    KS = len(ks)
    if kind == '128':
        trb = TrBase(a, V_T128, 4); second = 2048; span = 4096; tb = lambda t: V_TB + t; timm = lambda t: 0
    elif kind == '64':
        trb = TrBase(a, V_T64, 2); second = 1024; span = 2048; tb = lambda t: V_TB + t; timm = lambda t: 0
    else:
        trb = TrBase(a, V_T224, 1); second = 3584; span = 7168; tb = lambda t: V_TB; timm = lambda t: 32 * t
    total = KS * CT
    def slot(n): return wr + 4 * (n % S)
    def pre_issue(n):
        j, t = divmod(n, CT)
        ci, addr, first = ks[j]
        if t == 0 and first:
            a.fstamp(phase); bar(('B', phase, ci)); a.fstamp(phase)
        imm = trb.off(addr, span) if t == 0 else addr - trb.cur
        return imm + timm(t), t
    def rd(n, half, info):
        imm, t = info
        a.e(f'ds_read_b64_tr_b16 v[{slot(n)+2*half}:{slot(n)+2*half+1}], v{tb(t)} offset:{imm + (second if half else 0)}')
    def mfma(m, r):
        j, t = divmod(m, CT)
        d = acc_of(r, t); c = '0' if j == 0 else f'v[{d}:{d+3}]'
        w = f'v[{slot(m)}:{slot(m)+3}]'; x = f'v[{a_of(r,j)}:{a_of(r,j)+3}]'
        a.e(f'v_mfma_f32_16x16x32_bf16 v[{d}:{d+3}], ' + (f'{x}, {w}' if normal else f'{w}, {x}') + f', {c}')
    lq = []
    def need(tags):
        idx = max((i for i, g in enumerate(lq) if g in tags), default=None)
        if idx is None: return None
        n_ = len(lq) - 1 - idx
        del lq[:idx + 1]
        assert n_ <= 15
        return n_
    def pre2(n):
        info = pre_issue(n)
        j, t = divmod(n, CT)
        if a_lds and t == 0:
            ci, addr_, first = ks[j]
            if EARLY[0] and ci < 2:
                if first:
                    for jj in range(j, j + 4):
                        for s_ in a_lds(jj): a.e(s_)
                    a.e('s_waitcnt lgkmcnt(0)'); lq.clear()
                    bar(('R', phase, ci))
            else:
                for s_ in a_lds(j):
                    a.e(s_); lq.append(('A', j))
        return info
    def rd2(n, half, info):
        rd(n, half, info); lq.append(('W', n))
    for n in range(min(LA, total)):
        info = pre2(n); rd2(n, 0, info); rd2(n, 1, info)
    for n in range(total):
        j, t = divmod(n, CT)
        lg = need({('W', n), ('A', j)})
        vmn = a_wait(j) if t == 0 else None
        if t == 0 and j in (0, 1): a.fstamp(phase)
        parts = ([f'vmcnt({vmn})'] if vmn is not None else []) + ([f'lgkmcnt({lg})'] if lg is not None else [])
        if parts: a.e('s_waitcnt ' + ' '.join(parts))
        nx = n + LA; info = None
        mfma(n, 0)
        if nx < total:
            info = pre2(nx); rd2(nx, 0, info)
        mfma(n, 1)
        if nx < total: rd2(nx, 1, info)
        a_issue(j, t)
        if extra and t == CT - 1: extra(j)
    a.fstamp(phase); bar(('E', phase, None)); a.fstamp(phase)
    a.e('s_nop 7')

def emit_gemm32(a, bar, phase, chunks, acc, wr, tail=None, a_pieces=None):
    LA, S = 4, 5
    nch = len(chunks)
    total = nch * 8
    trb = TrBase(a, V_TN, 1)
    def slot(n): return wr + 8 * (n % S)
    def reads(n):
        c, rem = divmod(n, 8); ksl, s = divmod(rem, 2)
        out = []
        if rem == 0:
            if a_pieces: a.wait_vm(('A', c))
            a.fstamp(phase); bar(('B', phase, c)); a.fstamp(phase)
        sl = chunks[c][ksl]
        imm = trb.off(sl.addr, 4096)
        out.append(f'ds_read_b128 v[{slot(n)}:{slot(n)+3}], v{V_TA} offset:{(c % 4) * 16384 + ksl * 1024 + s * 512}')
        out.append(f'ds_read_b64_tr_b16 v[{slot(n)+4}:{slot(n)+5}], v{V_TB} offset:{imm + s * 1024}')
        out.append(f'ds_read_b64_tr_b16 v[{slot(n)+6}:{slot(n)+7}], v{V_TB} offset:{imm + s * 1024 + 2048}')
        return out
    queue = []; nxt = 2; passed = 0
    if a_pieces:
        for c in (0, 1):
            for t in a_pieces(c): t()
    for n in range(LA):
        for s in reads(n): a.e(s)
    for n in range(total):
        lg = 3 * (min(n - 1 + LA, total - 1) - n)
        a.e(f's_waitcnt lgkmcnt({lg})')
        c = '0' if n == 0 else f'v[{acc}:{acc+15}]'
        a.e(f'v_mfma_f32_32x32x16_bf16 v[{acc}:{acc+15}], v[{slot(n)+4}:{slot(n)+7}], v[{slot(n)}:{slot(n)+3}], {c}')
        nx = n + LA
        if nx < total:
            if nx % 8 == 0: passed = nx // 8
            for s in reads(nx): a.e(s)
        if a_pieces:
            while nxt < nch and (nxt <= passed + 2 or nxt <= 3) and len(queue) < 4:
                queue += list(a_pieces(nxt)); nxt += 1
            if queue: queue.pop(0)()
        if tail and n == max(total - 24, 0): tail()
    a.fstamp(phase)
    if phase not in NOE:
        bar(('E', phase, None))
    a.fstamp(phase)
    a.e('s_nop 7'); a.e('s_nop 3')


def gen_compute(a, opt, events):
    evq = list(events)
    tm = [0]
    def tmreg(i):
        assert i < 22, i
        return 64 + i
    def dump(regs):
        sk = a.newlabel('TMS')
        a.e('s_waitcnt lgkmcnt(0)')
        a.e(f's_cmp_eq_u32 s{S_W}, 0')
        a.e(f's_cbranch_scc0 {sk}')
        if opt.dbgout >= 0 and opt.fine:
            a.e(f's_cmp_eq_u32 s2, {opt.dbgwg}')
            a.e(f's_cbranch_scc0 {sk}')
            for i, r in enumerate(regs):
                a.e(f's_sub_u32 s{S_T0}, s{r}, s85')
                a.e(f'v_mov_b32 v{V_T0}, s{S_T0}')
                a.e(f'v_mov_b32 v{V_T1}, {4*i}')
                a.e(f'global_store_dword v{V_T1}, v{V_T0}, s[86:87]')
        elif opt.dbgout >= 0 and opt.timing:
            a.e(f's_cmp_eq_u32 s2, {opt.dbgwg}')
            a.e(f's_cbranch_scc0 {sk}')
            a.e(f's_cmp_eq_u32 s{S_L}, {opt.dbgout}')
            a.e(f's_cbranch_scc0 {sk}')
            sel = [1, 2, 3, 4, 5, 6, 8, 9, 11, 12, 14, 15, 16, 17, 18, 20]
            for i, k in enumerate(sel):
                if k >= len(regs): continue
                a.e(f's_sub_u32 s{S_T0}, s{regs[k]}, s{regs[0]}')
                a.e(f'v_mov_b32 v{V_T0}, s{S_T0}')
                a.e(f'v_mov_b32 v{V_T1}, {4*i}')
                a.e(f'global_store_dword v{V_T1}, v{V_T0}, s[86:87]')
        else:
            a.e(f's_lshl_b32 s{S_T0}, s2, 8')
            a.e(f's_lshl_b32 s{S_T1}, s{S_L}, 7')
            if opt.timing: a.e(f's_add_u32 s{S_T0}, s{S_T0}, s{S_T1}')
            a.e(f's_add_u32 s{S_T0}, s{S_T0}, {hex(TM_OFF)}')
            for i, r in enumerate(regs):
                a.e(f'v_mov_b32 v{V_T0}, s{r}')
                a.e(f'v_mov_b32 v{V_T1}, {4*i}')
                a.e(f'buffer_store_dword v{V_T0}, v{V_T1}, {WS}, s{S_T0} offen')
        a.label(sk)
        a.e('s_waitcnt vmcnt(0)')
    fs = [0]
    def freg(i): return 64 + 2 * i
    cnt_ = [0]
    def fs_skip(i):
        cnt_[0] += 1
        return cnt_[0] in (2, 4, 5, 6, 8, 10)
    def fstamp(phase):
        if opt.fine == phase and fs[0] < 10 and not (opt.dbgout >= 0 and fs_skip(fs[0])):
            a.e(f's_memtime s[{freg(fs[0])}:{freg(fs[0])+1}]'); fs[0] += 1
    a.fstamp = fstamp
    def stamp():
        if opt.timing:
            a.e('s_memtime s[60:61]')
            a.e('s_waitcnt lgkmcnt(0)')
            a.e(f's_mov_b32 s{tmreg(tm[0])}, s60'); tm[0] += 1

    T0, T1, T2, TB = V_T0, V_T1, V_T2, V_TB
    if opt.wall:
        a.e('s_memrealtime s[60:61]'); a.e('s_waitcnt lgkmcnt(0)'); a.e('s_mov_b32 s84, s60')
        a.e('s_memtime s[60:61]'); a.e('s_waitcnt lgkmcnt(0)'); a.e('s_mov_b32 s85, s60')
    if opt.dbgout >= 0 and opt.fine: a.e('s_mov_b32 s85, s96')
    if opt.prio_c: a.e(f's_setprio {opt.prio_c}')
    a.c('--- compute: early address setup')
    if opt.startdiag:
        a.e('s_memtime s[98:99]'); a.e('s_waitcnt lgkmcnt(0)'); a.e('s_sub_u32 s98, s98, s100'); a.e('s_mov_b32 s85, s98')
    stamp()
    a.e(f's_lshr_b32 s{S_RH}, s{S_W}, 1')
    a.e(f's_and_b32 s{S_CH}, s{S_W}, 1')
    a.e(f's_lshl_b32 s{S_W4K}, s{S_W}, 12')
    a.e(f's_lshl_b32 s{S_U0}, s{S_G}, 4')
    a.e(f's_lshl_b32 s{S_T1}, s{S_RB}, 2')
    a.e(f's_add_u32 s{S_U0}, s{S_U0}, s{S_T1}')
    a.e(f's_lshl_b32 s{S_T1}, s{S_RH}, 1')
    a.e(f's_add_u32 s{S_U2}, s{S_U0}, s{S_T1}')
    a.e(f's_add_u32 s{S_U0}, s{S_U0}, s{S_W}')
    a.e(f's_lshl_b32 s{S_U1}, s{S_G}, 4')
    a.e(f's_lshl_b32 s{S_T2}, s{S_RB2}, 3')
    a.e(f's_add_u32 s{S_U1}, s{S_U1}, s{S_T2}')
    a.e(f's_lshl_b32 s{S_T2}, s{S_W}, 1')
    a.e(f's_add_u32 s{S_U1}, s{S_U1}, s{S_T2}')
    a.e(f'v_and_b32 v{T0}, 15, v{V_LANE}')
    a.e(f'v_and_b32 v{T1}, 0x30, v{V_LANE}')
    a.e(f's_lshl_b32 s{S_ROTK}, s{S_RB2}, 1')
    a.e(f's_add_u32 s{S_ROTK}, s{S_ROTK}, s{S_CB2}')
    a.e(f's_and_b32 s{S_ROTK}, s{S_ROTK}, {3 if opt.rot else 0}')
    a.e(f'v_and_b32 v{T2}, 31, v{V_LANE}')
    a.e(f'v_lshrrev_b32 v{TB}, 5, v{V_LANE}')
    a.e(f'v_lshlrev_b32 v{V_XRM}, 10, v{T2}')
    a.e(f'v_lshl_add_u32 v{V_XRM}, v{TB}, 3, v{V_XRM}')
    a.e(f's_lshl_b32 s{S_T2}, s{S_U2}, 14')
    a.e(f's_lshl_b32 s{S_T3}, s{S_CB}, 7')
    a.e(f's_add_u32 s{S_T2}, s{S_T2}, s{S_T3}')
    a.e(f's_lshl_b32 s{S_T3}, s{S_CH}, 6')
    a.e(f's_add_u32 s{S_T2}, s{S_T2}, s{S_T3}')
    a.e(f'v_add_u32 v{V_XRM}, s{S_T2}, v{V_XRM}')
    PA = f's[{S_PA}:{S_PA+3}]'
    def p1_load(j):
        for r in range(2):
            a.vmem(f'buffer_load_dwordx4 v[{V_A+(r*16+j)*4}:{V_A+(r*16+j)*4+3}], v{V_AB}, {WS}, s{(S_RK if r == 0 else S_P7) + j // 4} offen offset:{(j%4)*1024} sc1', ('A', j))
    a.e('s_waitcnt lgkmcnt(0)')
    a.e(f's_mul_i32 s{S_B}, s{S_V}, 0x9e3779b1')
    a.e(f's_add_u32 s{S_B}, s{S_B}, 0x7f4a7c15')
    a.e(f's_and_b32 s{S_B}, s{S_B}, 0xffffff00')
    a.c('--- compute: address setup')
    a.e(f'v_lshlrev_b32 v{V_X}, 4, v{V_LANE}')
    a.e(f's_lshl_b32 s{S_T2}, s{S_U1}, 14')
    a.e(f'v_add_u32 v{V_AB}, s{S_T2}, v{V_X}')
    a.e(f'v_lshlrev_b32 v{V_STS}, 4, v{T2}')
    a.e(f'v_lshl_add_u32 v{V_STS}, v{TB}, 11, v{V_STS}')
    a.e(f's_lshl_b32 s{S_T2}, s{S_U2}, 11')
    a.e(f'v_add_u32 v{V_STS}, s{S_T2}, v{V_STS}')
    a.e(f'v_lshlrev_b32 v{V_STST}, 4, v{T2}')
    a.e(f's_lshl_b32 s{S_T4}, s{S_CB}, 9')
    a.e(f's_add_u32 s{S_T2}, s{S_T2}, s{S_T4}')
    a.e(f's_lshl_b32 s{S_T4}, s{S_CH}, 3')
    a.e(f's_add_u32 s{S_T2}, s{S_T2}, s{S_T4}')
    a.e(f'v_add_u32 v{V_STST}, s{S_T2}, v{V_STST}')
    a.e(f's_lshl_b32 s{S_T3}, s{S_CB}, 1')
    a.e(f's_add_u32 s{S_T3}, s{S_T3}, s{S_CH}')
    a.e(f'v_lshlrev_b32 v{V_STB}, 4, v{T0}')
    a.e(f'v_lshl_add_u32 v{V_STB}, v{T1}, 6, v{V_STB}')
    a.e(f's_lshl_b32 s{S_T2}, s{S_U1}, 11')
    a.e(f'v_add_u32 v{V_STB}, s{S_T2}, v{V_STB}')
    a.e(f'v_lshrrev_b32 v{V_TST}, 4, v{T2}')
    a.e(f'v_lshlrev_b32 v{V_TST}, 14, v{V_TST}')
    a.e(f'v_lshl_add_u32 v{V_TST}, v{TB}, 8, v{V_TST}')
    a.e(f'v_lshl_add_u32 v{V_TST}, v{T0}, 4, v{V_TST}')
    a.e(f's_lshl_b32 s{S_T2}, s{S_U2}, 14')
    a.e(f's_lshl_b32 s{S_T4}, s{S_T3}, 10')
    a.e(f's_add_u32 s{S_T2}, s{S_T2}, s{S_T4}')
    a.e(f'v_add_u32 v{V_TST}, s{S_T2}, v{V_TST}')
    a.e(f's_lshl_b32 s{S_T2}, s{S_G}, 9')
    a.e(f's_add_u32 s{S_T2}, s{S_T2}, {hex(LF_OFF)}')
    a.e(f's_lshl_b32 s{S_T3}, s{S_W}, 7')
    a.e(f's_add_u32 s{S_T3}, s{S_T3}, s{S_T2}')
    a.e(f's_lshl_b32 s{S_T4}, s{S_R}, 2')
    a.e(f's_add_u32 s{S_T4}, s{S_T4}, s{S_T3}')
    a.e(f'v_mov_b32 v{V_FOWN}, s{S_T4}')
    a.e(f'v_and_b32 v{V_X+1}, 7, v{V_LANE}')
    a.e(f'v_lshlrev_b32 v{V_X+1}, 2, v{V_X+1}')
    a.e(f'v_bfe_u32 v{V_X+2}, v{V_LANE}, 3, 1')
    a.e(f'v_lshl_add_u32 v{V_X+1}, v{V_X+2}, 7, v{V_X+1}')
    a.e(f's_lshl_b32 s{S_T4}, s{S_RB2}, 1')
    a.e(f's_add_u32 s{S_T4}, s{S_T4}, s{S_RH}')
    a.e(f's_lshl_b32 s{S_T4}, s{S_T4}, 5')
    a.e(f's_lshl_b32 s{S_T5}, s{S_CH}, 8')
    a.e(f's_add_u32 s{S_T4}, s{S_T4}, s{S_T5}')
    a.e(f's_add_u32 s{S_T4}, s{S_T4}, s{S_T2}')
    a.e(f'v_add_u32 v{V_FSB}, s{S_T4}, v{V_X+1}')
    a.e(f's_lshl_b32 s{S_T4}, s{S_CB2}, 7')
    a.e(f's_add_u32 s{S_T4}, s{S_T4}, {hex(KVF_OFF)}')
    a.e(f'v_lshlrev_b32 v{V_FKV}, 2, v{T2}')
    a.e(f'v_add_u32 v{V_FKV}, s{S_T4}, v{V_FKV}')
    a.e(f'v_bfe_u32 v{V_X+1}, v{V_LANE}, 2, 2')
    a.e(f'v_lshrrev_b32 v{V_X+2}, 4, v{V_LANE}')
    a.e(f'v_lshl_add_u32 v{V_X+3}, v{V_X+2}, 2, v{V_X+1}')
    a.e(f'v_and_b32 v{V_X+4}, 3, v{V_LANE}')
    a.e(f'v_lshlrev_b32 v{V_X+4}, 3, v{V_X+4}')
    a.e(f'v_bfe_u32 v{V_X+5}, v{V_X+3}, 1, 2')
    a.e(f'v_lshl_add_u32 v{V_T128}, v{V_X+5}, 5, v{V_X+4}')
    a.e(f'v_lshl_add_u32 v{V_T128}, v{V_X+3}, 7, v{V_T128}')
    a.e(f'v_bfe_u32 v{V_X+5}, v{V_X+3}, 2, 1')
    a.e(f'v_lshl_add_u32 v{V_T64}, v{V_X+5}, 5, v{V_X+4}')
    a.e(f'v_lshl_add_u32 v{V_T64}, v{V_X+3}, 6, v{V_T64}')
    a.e(f'v_mul_u32_u24 v{V_T224}, 224, v{V_X+3}')
    a.e(f'v_add_u32 v{V_T224}, v{V_T224}, v{V_X+4}')
    a.e(f'v_lshrrev_b32 v{V_X+3}, 1, v{V_X+2}')
    a.e(f'v_lshl_add_u32 v{V_X+3}, v{V_X+3}, 2, v{V_X+1}')
    a.e(f'v_and_b32 v{V_X+5}, 1, v{V_X+2}')
    a.e(f's_lshl_b32 s{S_T4}, s{S_CH}, 1')
    a.e(f'v_add_u32 v{V_X+5}, s{S_T4}, v{V_X+5}')
    a.e(f'v_and_b32 v{V_X+1}, 2, v{V_X+1}')
    a.e(f'v_xor_b32 v{V_X+5}, v{V_X+5}, v{V_X+1}')
    a.e(f'v_lshl_add_u32 v{V_TN}, v{V_X+5}, 5, v{V_X+4}')
    a.e(f'v_lshl_add_u32 v{V_TN}, v{V_X+3}, 7, v{V_TN}')
    a.e(f'v_bfe_u32 v{V_TA}, v{V_LANE}, 4, 1')
    a.e(f's_lshl_b32 s{S_T4}, s{S_RH}, 1')
    a.e(f'v_add_u32 v{V_TA}, s{S_T4}, v{V_TA}')
    a.e(f'v_lshlrev_b32 v{V_TA}, 12, v{V_TA}')
    a.e(f'v_lshl_add_u32 v{V_TA}, v{TB}, 8, v{V_TA}')
    a.e(f'v_lshl_add_u32 v{V_TA}, v{T0}, 4, v{V_TA}')
    if AREG: a.e(f'v_add_u32 v{V_TA}, {hex(AREG)}, v{V_TA}')
    c1 = -2.0 * 0.7978845608028654 * 1.4426950408889634
    c2 = c1 * 0.044715
    for s, v in [(S_C1, c1), (S_C2, c2), (S_C2 + 1, c2), (S_ONE2, 1.0), (S_ONE2 + 1, 1.0),
                 (S_LOG2E, 1.4426950408889634), (S_EPS6, 1e-6), (S_L2E2, 1.4426950408889634), (S_L2E2 + 1, 1.4426950408889634),
                 (S_E62, 1e-6), (S_E62 + 1, 1e-6)]:
        if opt.dbgout >= 0 and s in (S_E62, S_E62 + 1): continue
        a.e(f's_mov_b32 s{s}, {hex(f2u(v))}')
    a.e(f's_mov_b32 s{S_L}, 0')
    a.e(f's_mov_b32 s{S_LOFF}, 0')
    a.e(f's_mov_b32 s{S_EP}, 1')
    a.e(f's_mov_b32 s{S_MODE}, 1')
    a.e(f's_mov_b32 s{S_COLD}, 1')
    a.e(f's_lshl_b32 s{S_GH}, s{S_G}, 1')
    a.e(f's_add_u32 s{S_GH}, s{S_GH}, 1')
    a.e(f's_lshl_b32 s{S_GH}, s{S_GH}, 14')

    if WARM0[0]:
        assert evq[0][2] == 'W0'; evq.pop(0)
        a.e('s_barrier')
    LOOP = 'LAYER_LOOP'
    a.label(LOOP)
    slabs = build_slabs(0)

    def run_layer():
        def bar(ev):
            exp = evq.pop(0)
            assert exp[1:] == ev or (exp[1] == 'X' and ev[0] == 'X' and exp[2] == ev[1]), (exp, ev)
            a.e('s_barrier')
        def soff(reg, base, extra=0, gh=False):
            if gh: a.e(f's_add_u32 s{reg}, s{S_GH}, {hex(base + extra)}')
            else: a.e(f's_mov_b32 s{reg}, {hex(base + extra)}')
        def done(p):
            if opt.stop == (1, p):
                a.e(f's_cmp_eq_u32 s{S_L}, 1')
                a.e('s_cbranch_scc1 L_END_COMPUTE')
            return opt.stop == (0, p)
        def ep(k):
            a.e(f's_add_u32 s{S_T5}, s{S_EP}, {k}')
            return f's{S_T5}'

        a.c('=== P1KV')
        WR1 = 96; D1 = 116; ONES = 124; D2 = V_PQ
        srv = opt.stats_srv and opt.park
        for i in range(4): a.e(f'v_mov_b32 v{ONES+i}, 0x3f803f80')
        l0 = a.newlabel('KVL0'); ljoin = a.newlabel('KVJ')
        a.e(f's_cmp_eq_u32 s{S_L}, 0')
        a.e(f's_cbranch_scc1 {l0}')
        saved_ev = list(evq)
        evq[:] = [x for x in evq if x[1] != 'R']
        emit_poll(a, V_FSB, f's{S_EP}', opt=opt)
        for j in range(opt.D_kv): p1_load(j)
        stamp()
        a.fstamp('P1KV')
        def kv_issue(j, t):
            if t == 1:
                if j + opt.D_kv < 16:
                    p1_load(j + opt.D_kv)
                elif j + opt.D_kv == 16 and not srv:
                    soff(S_T0, ST_OFF)
                    a.vmem(f'buffer_load_dwordx4 v[{D1}:{D1+3}], v{V_STB}, {WS}, s{S_T0} offen sc1', 'st')
                    a.vmem(f'buffer_load_dwordx4 v[{D1+4}:{D1+7}], v{V_STB}, {WS}, s{S_T0} offen offset:512 sc1', 'st')
                    a.vmem(f'buffer_load_dwordx4 v[{D2}:{D2+3}], v{V_STB}, {WS}, s{S_T0} offen offset:256 sc1', 'st')
                    a.vmem(f'buffer_load_dwordx4 v[{D2+4}:{D2+7}], v{V_STB}, {WS}, s{S_T0} offen offset:768 sc1', 'st')
        emit_gemm16(a, bar, 'P1KV', slabs['P1KV'], 4, '128',
                    acc_of=lambda r, t: V_ACC + (r * 4 + t) * 4, a_of=lambda r, j: V_A + (r * 16 + j) * 4,
                    a_wait=lambda j: a.count_vm(('A', j)), a_issue=kv_issue, wr=WR1, S=5, normal=True)
        a.e(f's_branch {ljoin}')
        a.label(l0)
        evq[:] = saved_ev
        a.vm = []
        fs[0] = 0
        cnt_[0] = 0
        a.fstamp('P1KV')
        tm[0] -= 1 if opt.timing else 0
        stamp()
        VLA = V_X
        a.e(f'v_and_b32 v{T0}, 15, v{V_LANE}')
        a.e(f'v_lshrrev_b32 v{T1}, 4, v{V_LANE}')
        a.e(f'v_xor_b32 v{T1}, v{T1}, v{T0}')
        a.e(f'v_lshlrev_b32 v{T1}, 4, v{T1}')
        a.e(f's_lshl_b32 s{S_T0}, s{S_W}, 5')
        a.e(f'v_add_u32 v{T0}, s{S_T0}, v{T0}')
        a.e(f'v_lshlrev_b32 v{T0}, 8, v{T0}')
        for j in range(4):
            a.e(f'v_xor_b32 v{VLA+j}, {64*j}, v{T1}')
            a.e(f'v_add_u32 v{VLA+j}, v{VLA+j}, v{T0}')
        def kv_lds(j):
            c = j // 4
            return [f'ds_read_b128 v[{V_A+(r*16+j)*4}:{V_A+(r*16+j)*4+3}], v{VLA + j % 4} offset:{AREG + (c & 1) * 32768 + r * 4096}' for r in range(2)]
        def kv_extra(j):
            for r in range(2):
                x = f'v[{V_A+(r*16+j)*4}:{V_A+(r*16+j)*4+3}]'
                c1_ = '0' if j == 0 else f'v[{D1+4*r}:{D1+4*r+3}]'
                c2_ = '0' if j == 0 else f'v[{D2+4*r}:{D2+4*r+3}]'
                a.e(f'v_mfma_f32_16x16x32_bf16 v[{D1+4*r}:{D1+4*r+3}], v[{ONES}:{ONES+3}], {x}, {c1_}')
                a.e(f'v_mfma_f32_16x16x32_bf16 v[{D2+4*r}:{D2+4*r+3}], {x}, {x}, {c2_}')
        emit_gemm16(a, bar, 'P1KV', slabs['P1KV'], 4, '128',
                    acc_of=lambda r, t: V_ACC + (r * 4 + t) * 4, a_of=lambda r, j: V_A + (r * 16 + j) * 4,
                    a_wait=lambda j: None, a_issue=lambda j, t: None, wr=WR1, S=5, normal=True, extra=kv_extra, a_lds=kv_lds)
        a.label(ljoin)
        stamp()
        a.wait_vm_all()
        SUM = [(V_X, V_X + 1), (V_X + 2, V_X + 3)]
        l1 = a.newlabel('S1'); le = a.newlabel('SE')
        a.e(f's_cmp_eq_u32 s{S_L}, 0')
        a.e(f's_cbranch_scc0 {l1}')
        a.e(f'v_and_b32 v{T0}, 31, v{V_LANE}')
        a.e(f'v_lshlrev_b32 v{T0}, 7, v{T0}')
        a.e(f'v_lshrrev_b32 v{T1}, 5, v{V_LANE}')
        a.e(f'v_lshl_add_u32 v{T0}, v{T1}, 3, v{T0}')
        a.e(f's_lshl_b32 s{S_T0}, s{S_RH}, 12')
        a.e(f's_lshl_b32 s{S_T1}, s{S_CH}, 6')
        a.e(f's_add_u32 s{S_T0}, s{S_T0}, s{S_T1}')
        if AREG: a.e(f's_add_u32 s{S_T0}, s{S_T0}, {hex(AREG)}')
        a.e(f'v_add_u32 v{T0}, s{S_T0}, v{T0}')
        for j in range(4):
            a.e(f'ds_read_b64 v[{V_RES+4*j}:{V_RES+4*j+1}], v{T0} offset:{16*j}')
        a.e('s_waitcnt lgkmcnt(0)')
        for j in range(4):
            b = V_RES + 4 * j
            a.e(f'v_and_b32 v{b+3}, 0xffff0000, v{b+1}')
            a.e(f'v_lshlrev_b32 v{b+2}, 16, v{b+1}')
            a.e(f'v_and_b32 v{b+1}, 0xffff0000, v{b}')
            a.e(f'v_lshlrev_b32 v{b}, 16, v{b}')
        a.e(f'v_and_b32 v{T0}, 3, v{V_LANE}')
        a.e(f'v_bfe_u32 v{T1}, v{V_LANE}, 2, 2')
        a.e(f'v_lshrrev_b32 v{T2}, 4, v{V_LANE}')
        for r in range(2):
            s_, ss_ = SUM[r]
            a.e(f'v_mov_b32 v{s_}, v{D1+4*r}')
            a.e(f'v_mov_b32 v{ss_}, v{D2+4*r}')
            for i in range(1, 4):
                a.e(f'v_cmp_eq_u32 vcc, {i}, v{T0}')
                a.e('s_nop 1')
                a.e(f'v_cndmask_b32 v{ss_}, v{ss_}, v{D2+4*r+i}, vcc')
            a.e(f'v_cmp_eq_u32 vcc, v{T1}, v{T2}')
            a.e('s_nop 1')
            a.e(f'v_cndmask_b32 v{ss_}, 0, v{ss_}, vcc')
        emit_xreduce(a, [SUM[0][1], SUM[1][1]], [T0, T1])
        KEEP = [(V_PQ + 0, V_PQ + 2), (V_PQ + 4, V_PQ + 6)]
        AI = [WR1, WR1 + 8]; BI = [WR1 + 4, WR1 + 12]
        CSR = 120
        if srv:
            for r in range(2):
                emit_stats_from_sums(a, SUM[r][0], SUM[r][1], KEEP[r][0], KEEP[r][1], WR1)
            a.e(f'v_and_b32 v{T0}, 15, v{V_LANE}')
            a.e(f'v_lshlrev_b32 v{T0}, 2, v{T0}')
            a.e(f's_lshl_b32 s{S_T0}, s{S_W}, 7')
            a.e(f'v_add_u32 v{T0}, s{S_T0}, v{T0}')
            a.e(f'v_add_u32 v{T0}, {hex(STC)}, v{T0}')
            a.e('s_mov_b64 exec, 0xffff')
            for r in range(2):
                a.e(f'ds_write_b32 v{T0}, v{KEEP[r][0]} offset:{STA + 64*r}')
                a.e(f'ds_write_b32 v{T0}, v{KEEP[r][1]} offset:{STB_ + 64*r}')
            a.e('s_mov_b64 exec, -1')
            a.label(l1)
            a.e(f'v_and_b32 v{T1}, 0x30, v{V_LANE}')
            a.e(f's_lshl_b32 s{S_T0}, s{S_W}, 7')
            a.e(f's_add_u32 s{S_T0}, s{S_T0}, {hex(STC)}')
            a.e(f'v_add_u32 v{T2}, s{S_T0}, v{T1}')
            a.e(f'v_and_b32 v{T0}, 15, v{V_LANE}')
            a.e(f'v_lshlrev_b32 v{T0}, 2, v{T0}')
            a.e(f'v_add_u32 v{V_X}, s{S_T0}, v{T0}')
            for r in range(2):
                a.e(f'ds_read_b128 v[{AI[r]}:{AI[r]+3}], v{T2} offset:{STA + 64*r}')
                a.e(f'ds_read_b128 v[{BI[r]}:{BI[r]+3}], v{T2} offset:{STB_ + 64*r}')
                a.e(f'ds_read_b32 v{KEEP[r][0]}, v{V_X} offset:{STA + 64*r}')
                a.e(f'ds_read_b32 v{KEEP[r][1]}, v{V_X} offset:{STB_ + 64*r}')
            a.e(f'v_add_u32 v{T0}, {hex(CSC)}, v{T0}')
            for t in range(4):
                a.e(f'ds_read_b32 v{CSR+t}, v{T0} offset:{64*t}')
            a.e('s_waitcnt lgkmcnt(0)')
        else:
            a.e(f's_branch {le}')
            a.label(l1)
            for r, raw in enumerate([D1, D2]):
                emit_sum_partials(a, raw, 8)
                a.e(f'v_mov_b32 v{SUM[r][0]}, v{raw}')
                a.e(f'v_mov_b32 v{SUM[r][1]}, v{raw+1}')
            emit_xreduce(a, [SUM[0][0], SUM[0][1], SUM[1][0], SUM[1][1]], [WR1, WR1 + 1, WR1 + 2, WR1 + 3])
            a.label(le)
            a.e(f'v_and_b32 v{T0}, 15, v{V_LANE}')
            a.e(f'v_lshlrev_b32 v{T0}, 2, v{T0}')
            a.e(f'v_add_u32 v{T0}, {hex(CSC)}, v{T0}')
            a.e(f'v_and_b32 v{T1}, 0x30, v{V_LANE}')
            for t in range(4):
                a.e(f'ds_read_b32 v{CSR+t}, v{T0} offset:{64*t}')
            for r in range(2):
                emit_stats_from_sums(a, SUM[r][0], SUM[r][1], KEEP[r][0], KEEP[r][1], WR1)
            for r in range(2):
                for i in range(4):
                    a.e(f'ds_bpermute_b32 v{AI[r]+i}, v{T1}, v{KEEP[r][0]} offset:{4*i}')
                    a.e(f'ds_bpermute_b32 v{BI[r]+i}, v{T1}, v{KEEP[r][1]} offset:{4*i}')
            a.e('s_waitcnt vmcnt(0) lgkmcnt(0)'); a.vm = []
        CSE = WR1 + 16
        for t in range(4): a.e(f'v_mov_b32 v{CSE+2*t}, v{CSR+t}')
        for r in range(2):
            for t in range(4):
                for i in (0, 2):
                    d = V_ACC + (r * 4 + t) * 4 + i
                    a.e(pk('mul', d, vp(d), vp(AI[r] + i)))
            for t in range(4):
                for i in (0, 2):
                    d = V_ACC + (r * 4 + t) * 4 + i
                    a.e(pk('fma', d, vp(BI[r] + i), vp(CSE + 2 * t), vp(d), mods=' op_sel_hi:[1,0,1]'))
        regs = [V_ACC + (r * 4 + t) * 4 + i for r in range(2) for t in range(2) for i in range(4)]
        emit_phi(a, regs, WR1)
        for t in range(4):
            b0 = V_ACC + t * 4; b1 = V_ACC + (4 + t) * 4
            a.e(f'v_cvt_pk_bf16_f32 v{b0}, v{b0}, v{b0+1}')
            a.e(f'v_cvt_pk_bf16_f32 v{b0+1}, v{b0+2}, v{b0+3}')
            a.e(f'v_cvt_pk_bf16_f32 v{b0+2}, v{b1}, v{b1+1}')
            a.e(f'v_cvt_pk_bf16_f32 v{b0+3}, v{b1+2}, v{b1+3}')
        a.e('s_nop 1')
        KVD = V_ACC + 16
        for h in range(2):
            a.e(f'v_mfma_f32_16x16x32_bf16 v[{KVD+4*h}:{KVD+4*h+3}], v[{V_ACC+4*h}:{V_ACC+4*h+3}], v[{V_ACC+8+4*h}:{V_ACC+8+4*h+3}], 0')
            a.e(f'v_mfma_f32_16x16x32_bf16 v[{KVD+8+4*h}:{KVD+8+4*h+3}], v[{V_ACC+4*h}:{V_ACC+4*h+3}], v[{ONES}:{ONES+3}], 0')
        a.e(f's_lshl_b32 s{S_T0}, s{S_W}, 11')
        a.e(f's_add_u32 s{S_T0}, s{S_T0}, {hex(SCR)}')
        a.e(f'v_lshlrev_b32 v{T0}, 4, v{V_LANE}')
        a.e(f'v_add_u32 v{T0}, s{S_T0}, v{T0}')
        a.e(f's_lshl_b32 s{S_T0}, s{S_W}, 7')
        a.e(f's_add_u32 s{S_T0}, s{S_T0}, {hex(SCR + 8192)}')
        a.e(f'v_add_u32 v{T2}, s{S_T0}, v{T1}')
        a.e('s_nop 4')
        a.e(f'ds_write_b128 v{T0}, v[{KVD}:{KVD+3}]')
        a.e(f'ds_write_b128 v{T0}, v[{KVD+4}:{KVD+7}] offset:1024')
        set_exec(a, 0x00010001)
        a.e(f'ds_write_b128 v{T2}, v[{KVD+8}:{KVD+11}]')
        a.e(f'ds_write_b128 v{T2}, v[{KVD+12}:{KVD+15}] offset:64')
        a.e('s_mov_b64 exec, -1')
        a.e('s_waitcnt lgkmcnt(0)')
        bar(('X', 'X1'))
        sk = a.newlabel('KVST')
        byp = opt.kv_by_parker and opt.park and opt.kv_atomic
        if byp: a.e(f's_branch {sk}')
        a.e(f's_cmp_lt_u32 s{S_W}, 2')
        a.e(f's_cbranch_scc0 {sk}')
        if opt.kv_atomic:
            a.e(f's_lshl_b32 s{S_T0}, s{S_W}, 10')
            a.e(f's_add_u32 s{S_T0}, s{S_T0}, {hex(SCR)}')
            a.e(f'v_lshlrev_b32 v{T0}, 2, v{V_LANE}')
            a.e(f'v_add_u32 v{T2}, s{S_T0}, v{T0}')
            a.e(f's_lshl_b32 s{S_T0}, s{S_W}, 6')
            a.e(f's_add_u32 s{S_T0}, s{S_T0}, {hex(SCR + 8192)}')
            a.e(f'v_add_u32 v{V_X}, s{S_T0}, v{T0}')
            KB = V_ACC
            for ww in range(4):
                for i in range(4):
                    a.e(f'ds_read_b32 v{KB+4*ww+i}, v{T2} offset:{ww*2048+256*i}')
                if ww == 2: a.e('s_waitcnt lgkmcnt(4)')
            for ww in range(4):
                a.e(f'ds_read_b32 v{KB+16+ww}, v{V_X} offset:{ww*128}')
            a.e(f's_mul_i32 s{S_T0}, s{S_CB2}, {KVREC}')
            a.e(f's_mul_i32 s{S_T1}, s{S_L}, {16*KVREC}')
            a.e(f's_add_u32 s{S_T0}, s{S_T0}, s{S_T1}')
            a.e(f's_add_u32 s{S_T0}, s{S_T0}, {hex(KVA_OFF)}')
            a.e(f's_lshl_b32 s{S_T1}, s{S_W}, 10')
            a.e(f's_add_u32 s{S_T1}, s{S_T1}, s{S_T0}')
            a.e(f's_lshl_b32 s{S_T2}, s{S_W}, 6')
            a.e(f's_add_u32 s{S_T2}, s{S_T2}, s{S_T0}')
            a.e(f's_add_u32 s{S_T2}, s{S_T2}, 2048')
            a.e('s_waitcnt lgkmcnt(0)')
            for i in (0, 2):
                a.e(pk('add', KB + i, vp(KB + i), vp(KB + 4 + i)))
                a.e(pk('add', KB + 8 + i, vp(KB + 8 + i), vp(KB + 12 + i)))
                a.e(pk('add', KB + i, vp(KB + i), vp(KB + 8 + i)))
            a.e(pk('add', KB + 16, vp(KB + 16), vp(KB + 18)))
            a.e(f'v_add_f32 v{KB+16}, v{KB+16}, v{KB+17}')
            for i in range(4):
                a.e(f'buffer_atomic_add_f32 v{KB+i}, v{T0}, {WS}, s{S_T1} offen offset:{256*i}')
            a.e('s_mov_b64 exec, 0xffff')
            a.e(f'buffer_atomic_add_f32 v{KB+16}, v{T0}, {WS}, s{S_T2} offen')
            a.e('s_mov_b64 exec, -1')
        else:
            a.e(f's_lshl_b32 s{S_T0}, s{S_W}, 10')
            a.e(f's_add_u32 s{S_T0}, s{S_T0}, {hex(SCR)}')
            a.e(f'v_lshlrev_b32 v{T0}, 4, v{V_LANE}')
            a.e(f'v_add_u32 v{T2}, s{S_T0}, v{T0}')
            a.e(f's_lshl_b32 s{S_T0}, s{S_W}, 6')
            a.e(f's_add_u32 s{S_T0}, s{S_T0}, {hex(SCR + 8192)}')
            a.e(f'v_add_u32 v{V_X}, s{S_T0}, v{T1}')
            KB = V_ACC
            for ww in range(4):
                a.e(f'ds_read_b128 v[{KB+4*ww}:{KB+4*ww+3}], v{T2} offset:{ww*2048}')
                a.e(f'ds_read_b128 v[{KB+16+4*ww}:{KB+16+4*ww+3}], v{V_X} offset:{ww*128}')
            a.e(f's_lshl_b32 s{S_T0}, s{S_CB2}, 4')
            a.e(f's_lshl_b32 s{S_T1}, s{S_G}, 1')
            a.e(f's_add_u32 s{S_T0}, s{S_T0}, s{S_T1}')
            a.e(f's_add_u32 s{S_T0}, s{S_T0}, s{S_RB2}')
            a.e(f's_mul_i32 s{S_T0}, s{S_T0}, {KVREC}')
            a.e(f's_add_u32 s{S_T0}, s{S_T0}, s{S_LOFF}')
            a.e(f's_add_u32 s{S_T0}, s{S_T0}, {hex(KVP_OFF)}')
            a.e(f's_lshl_b32 s{S_T1}, s{S_W}, 10')
            a.e(f's_add_u32 s{S_T1}, s{S_T1}, s{S_T0}')
            a.e(f's_lshl_b32 s{S_T2}, s{S_W}, 6')
            a.e(f's_add_u32 s{S_T2}, s{S_T2}, s{S_T0}')
            a.e(f's_add_u32 s{S_T2}, s{S_T2}, 2048')
            a.e('s_waitcnt lgkmcnt(0)')
            for base in (KB, KB + 16):
                for i in range(0, 4, 2):
                    a.e(pk('add', base + i, vp(base + i), vp(base + 4 + i)))
                    a.e(pk('add', base + 8 + i, vp(base + 8 + i), vp(base + 12 + i)))
                    a.e(pk('add', base + i, vp(base + i), vp(base + 8 + i)))
            a.e(f'buffer_store_dwordx4 v[{KB}:{KB+3}], v{T0}, {WS}, s{S_T1} offen sc1')
            set_exec(a, 0x00010001)
            a.e(f'buffer_store_dwordx4 v[{KB+16}:{KB+19}], v{T1}, {WS}, s{S_T2} offen sc1')
            a.e('s_mov_b64 exec, -1')
        a.e(f's_lshl_b32 s{S_T0}, s{S_L}, 11')
        a.e(f's_lshl_b32 s{S_T1}, s{S_CB2}, 7')
        a.e(f's_add_u32 s{S_T0}, s{S_T0}, s{S_T1}')
        a.e(f's_lshl_b32 s{S_T1}, s{S_W}, 6')
        a.e(f's_add_u32 s{S_T0}, s{S_T0}, s{S_T1}')
        a.e(f's_lshl_b32 s{S_T1}, s{S_G}, 3')
        a.e(f's_add_u32 s{S_T0}, s{S_T0}, s{S_T1}')
        a.e(f's_lshl_b32 s{S_T1}, s{S_RB2}, 2')
        a.e(f's_add_u32 s{S_T0}, s{S_T0}, s{S_T1}')
        a.e(f's_add_u32 s{S_T0}, s{S_T0}, {hex(KVF_OFF)}')
        a.e(f'v_mov_b32 v{V_X+4}, s{S_T0}')
        a.label(sk)
        a.vm = []
        stamp()
        if done('P1KV'): return True

        a.c('=== P1Q')
        QCS = V_ACC + 16
        a.e(f'v_and_b32 v{T1}, 0x30, v{V_LANE}')
        a.e(f'v_add_u32 v{T1}, {hex(CSC + 256)}, v{T1}')
        a.e(f'ds_read_b128 v[{QCS}:{QCS+3}], v{T1}')
        a.e(f'ds_read_b128 v[{QCS+4}:{QCS+7}], v{T1} offset:64')
        a.e('s_waitcnt lgkmcnt(0)')
        QAB = [(V_ACC + 24, V_ACC + 26), (V_ACC + 28, V_ACC + 30)]
        for r in range(2):
            a.e(f'v_mov_b32 v{QAB[r][0]}, v{KEEP[r][0]}')
            a.e(f'v_mov_b32 v{QAB[r][1]}, v{KEEP[r][1]}')
        def q_issue(j, t):
            if j == opt.kvflag_at and t == 1 and not byp:
                fk = a.newlabel('KVFL')
                a.e(f's_cmp_lt_u32 s{S_W}, 2')
                a.e(f's_cbranch_scc0 {fk}')
                thr_value(a, S_THR, 1, xcc=True)
                a.e(f'v_mov_b32 v{V_X+5}, s{S_THR}')
                a.e('s_waitcnt vmcnt(0)')
                a.e('s_mov_b64 exec, 1')
                a.e(f'buffer_store_dword v{V_X+5}, v{V_X+4}, {WS}, 0 offen sc1')
                a.e('s_mov_b64 exec, -1')
                a.label(fk)
        emit_gemm16(a, bar, 'P1Q', slabs['P1Q'], 2, '64',
                    acc_of=lambda r, t: V_ACC + (r * 2 + t) * 4, a_of=lambda r, j: V_A + (r * 16 + j) * 4,
                    a_wait=lambda j: None, a_issue=q_issue, wr=96, S=8)
        for r in range(2):
            for t in range(2):
                emit_lnfold(a, V_ACC + (r * 2 + t) * 4, QCS + 4 * t, QAB[r][0], QAB[r][1], 4)
        emit_phi(a, [V_ACC + i for i in range(16)], 96)
        for r in range(2):
            for h in range(2):
                emit_pack(a, V_PQ + (r * 2 + h) * 2, V_ACC + (r * 2 + h) * 4, 4)
        stamp()
        sk = a.newlabel('MODE')
        a.e(f's_cmp_eq_u32 s{S_L}, 0')
        a.e(f's_cbranch_scc0 {sk}')
        a.e(f'v_and_b32 v{T1}, 31, v{V_LANE}')
        a.e(f'v_lshlrev_b32 v{T1}, 2, v{T1}')
        a.e(f's_lshl_b32 s{S_T0}, s{S_G}, 7')
        a.e(f's_add_u32 s{S_T0}, s{S_T0}, {hex(XID_OFF)}')
        emit_poll(a, T1, 0, soff=f's{S_T0}', opt=opt)
        a.e(f'v_and_b32 v{T2}, 7, v{T2}')
        a.e(f'v_cmp_eq_u32 vcc, s{S_XCC}, v{T2}')
        a.e('s_nop 1')
        a.e('s_cmp_eq_u64 vcc, -1')
        a.e(f's_cselect_b32 s{S_MODE}, 0, 1')
        if opt.force_safe: a.e(f's_mov_b32 s{S_MODE}, 1')
        a.label(sk)
        a.e(f's_lshl_b32 s{S_T0}, s{S_L}, 11')
        emit_poll(a, V_FKV, 1, soff=f's{S_T0}', opt=opt)
        stamp()
        RB = V_A + 64
        if opt.kv_atomic:
            a.e(f's_mul_i32 s{S_T0}, s{S_CB2}, {KVREC}')
            a.e(f's_mul_i32 s{S_T1}, s{S_L}, {16*KVREC}')
            a.e(f's_add_u32 s{S_T0}, s{S_T0}, s{S_T1}')
            a.e(f's_add_u32 s{S_T0}, s{S_T0}, {hex(KVA_OFF)}')
            a.e(f'v_lshlrev_b32 v{T0}, 4, v{V_LANE}')
            a.e(f'v_and_b32 v{T1}, 0x30, v{V_LANE}')
            a.vmem(f'buffer_load_dwordx4 v[{RB}:{RB+3}], v{T0}, {WS}, s{S_T0} offen sc1', 'kp')
            a.vmem(f'buffer_load_dwordx4 v[{RB+4}:{RB+7}], v{T0}, {WS}, s{S_T0} offen offset:1024 sc1', 'kp')
            a.vmem(f'buffer_load_dwordx4 v[{RB+8}:{RB+11}], v{T1}, {WS}, s{S_T0} offen offset:2048 sc1', 'kp')
            a.vmem(f'buffer_load_dwordx4 v[{RB+12}:{RB+15}], v{T1}, {WS}, s{S_T0} offen offset:2112 sc1', 'kp')
            a.wait_vm_all()
        else:
            a.e(f's_lshl_b32 s{S_T0}, s{S_CB2}, 4')
            a.e(f's_lshl_b32 s{S_T1}, s{S_W}, 2')
            a.e(f's_add_u32 s{S_T0}, s{S_T0}, s{S_T1}')
            a.e(f's_mul_i32 s{S_T0}, s{S_T0}, {KVREC}')
            a.e(f's_add_u32 s{S_T0}, s{S_T0}, s{S_LOFF}')
            a.e(f's_add_u32 s{S_T0}, s{S_T0}, {hex(KVP_OFF)}')
            a.e(f'v_lshlrev_b32 v{T0}, 4, v{V_LANE}')
            a.e(f'v_and_b32 v{T1}, 0x30, v{V_LANE}')
            PB = V_A
            for s4 in range(4):
                b = PB + 16 * s4
                a.vmem(f'buffer_load_dwordx4 v[{b}:{b+3}], v{T0}, {WS}, s{S_T0} offen sc1', 'kp')
                a.vmem(f'buffer_load_dwordx4 v[{b+4}:{b+7}], v{T0}, {WS}, s{S_T0} offen offset:1024 sc1', 'kp')
                a.vmem(f'buffer_load_dwordx4 v[{b+8}:{b+11}], v{T1}, {WS}, s{S_T0} offen offset:2048 sc1', 'kp')
                a.vmem(f'buffer_load_dwordx4 v[{b+12}:{b+15}], v{T1}, {WS}, s{S_T0} offen offset:2112 sc1', 'kp')
                if s4 < 3: a.e(f's_add_u32 s{S_T0}, s{S_T0}, {KVREC}')
            a.e(f's_lshl_b32 s{S_T0}, s{S_W}, 11')
            a.e(f's_add_u32 s{S_T0}, s{S_T0}, {hex(SCR)}')
            a.e(f'v_add_u32 v{T0}, s{S_T0}, v{T0}')
            a.e(f's_lshl_b32 s{S_T0}, s{S_W}, 7')
            a.e(f's_add_u32 s{S_T0}, s{S_T0}, {hex(SCR + 8192)}')
            a.e(f'v_add_u32 v{T2}, s{S_T0}, v{T1}')
            a.wait_vm_all()
            for i in range(0, 16, 2):
                a.e(pk('add', PB + i, vp(PB + i), vp(PB + 16 + i)))
                a.e(pk('add', PB + 32 + i, vp(PB + 32 + i), vp(PB + 48 + i)))
            for i in range(0, 16, 2):
                a.e(pk('add', PB + i, vp(PB + i), vp(PB + 32 + i)))
            a.e(f'ds_write_b128 v{T0}, v[{PB}:{PB+3}]')
            a.e(f'ds_write_b128 v{T0}, v[{PB+4}:{PB+7}] offset:1024')
            set_exec(a, 0x00010001)
            a.e(f'ds_write_b128 v{T2}, v[{PB+8}:{PB+11}]')
            a.e(f'ds_write_b128 v{T2}, v[{PB+12}:{PB+15}] offset:64')
            a.e('s_mov_b64 exec, -1')
            a.e(f'v_lshlrev_b32 v{T0}, 4, v{V_LANE}')
            a.e(f'v_add_u32 v{T0}, {hex(SCR)}, v{T0}')
            a.e(f'v_add_u32 v{T2}, {hex(SCR + 8192)}, v{T1}')
            a.e('s_waitcnt lgkmcnt(0)')
            bar(('X', 'X2'))
            for ww in range(4):
                b = RB + 16 * ww
                a.e(f'ds_read_b128 v[{b}:{b+3}], v{T0} offset:{ww*2048}')
                a.e(f'ds_read_b128 v[{b+4}:{b+7}], v{T0} offset:{ww*2048+1024}')
                a.e(f'ds_read_b128 v[{b+8}:{b+11}], v{T2} offset:{ww*128}')
                a.e(f'ds_read_b128 v[{b+12}:{b+15}], v{T2} offset:{ww*128+64}')
                if ww == 2: a.e('s_waitcnt lgkmcnt(8)')
            a.e('s_waitcnt lgkmcnt(0)')
            for i in range(0, 16, 2):
                a.e(pk('add', RB + i, vp(RB + i), vp(RB + 16 + i)))
                a.e(pk('add', RB + 32 + i, vp(RB + 32 + i), vp(RB + 48 + i)))
            for i in range(0, 16, 2):
                a.e(pk('add', RB + i, vp(RB + i), vp(RB + 32 + i)))
        OPB = V_ACC + 16
        emit_pack(a, OPB, RB, 16)
        a.e('s_nop 1')
        NUM = V_A; DEN = V_A + 16
        for r in range(2):
            for h in range(2):
                pq = V_PQ + (r * 2 + h) * 2
                n_ = NUM + (r * 2 + h) * 4; d_ = DEN + (r * 2 + h) * 4
                a.e(f'v_mfma_f32_16x16x16_bf16 v[{n_}:{n_+3}], v[{OPB+2*h}:{OPB+2*h+1}], v[{pq}:{pq+1}], 0')
                a.e(f'v_mfma_f32_16x16x16_bf16 v[{d_}:{d_+3}], v[{OPB+4+2*h}:{OPB+4+2*h+1}], v[{pq}:{pq+1}], 0')
        a.e(f's_lshl_b32 s{S_T0}, s{S_CB2}, 10')
        a.e(f's_add_u32 s{S_T0}, s{S_T0}, s{S_GH}')
        a.e(f's_add_u32 s{S_T1}, s{S_T0}, 0x4000')
        a.e('s_nop 4')
        for k in range(4): a.e(f'v_add_f32 v{DEN+4*k}, s{S_EPS6}, v{DEN+4*k}')
        for k in range(4): a.e(f'v_rcp_f32 v{DEN+4*k}, v{DEN+4*k}')
        a.e('s_nop 0')
        for k in range(4):
            for i in range(4): a.e(f'v_mul_f32 v{NUM+4*k+i}, v{NUM+4*k+i}, v{DEN+4*k}')
        OPK = V_A + 32
        emit_pack(a, OPK, NUM, 16)
        emit_mode_stores(a, [f'buffer_store_dwordx4 v[{OPK}:{OPK+3}], v{V_AB}, {WS}, s{S_T0} offen',
                             f'buffer_store_dwordx4 v[{OPK+4}:{OPK+7}], v{V_AB}, {WS}, s{S_T1} offen'], cold=True)
        emit_signal(a, ep(1))
        stamp()
        if done('P1Q'): return True

        ACC = V_ACC; WR = 80; TMP = V_A
        def small_gemm(phase, tail=None):
            a.fstamp(phase)
            emit_gemm32(a, bar, phase, slabs[phase], ACC, WR, tail=tail)
        def tile_store(pkb, base, gh=False, cold=False):
            soff(S_T0, base, gh=gh)
            emit_mode_stores(a, [f'buffer_store_dwordx4 v[{pkb}:{pkb+3}], v{V_TST}, {WS}, s{S_T0} offen',
                                 f'buffer_store_dwordx4 v[{pkb+4}:{pkb+7}], v{V_TST}, {WS}, s{S_T0} offen offset:512'], cold=cold)

        a.c('=== P3')
        stamp()
        small_gemm('P3')
        stamp()
        for i in range(0, 16, 2): a.e(pk('add', V_RES + i, vp(V_RES + i), vp(ACC + i)))
        emit_pack32(a, TMP, V_RES)
        tile_store(TMP, A1_OFF, cold=True)
        soff(S_T1, ST_OFF)
        emit_stats_partial32(a, V_RES, TMP + 8, f's{S_T1}', cold=True)
        emit_signal(a, ep(2))
        stamp()
        if done('P3'): return True

        a.c('=== P4')
        CS4 = TMP + 16; RAW = TMP + 32
        a.e(f'v_lshrrev_b32 v{T1}, 5, v{V_LANE}')
        a.e(f'v_lshlrev_b32 v{T1}, 4, v{T1}')
        a.e(f's_lshl_b32 s{S_T1}, s{S_CH}, 7')
        a.e(f's_add_u32 s{S_T1}, s{S_T1}, {hex(CSC + 384)}')
        a.e(f'v_add_u32 v{T1}, s{S_T1}, v{T1}')
        for j in range(4):
            a.e(f'ds_read_b128 v[{CS4+4*j}:{CS4+4*j+3}], v{T1} offset:{32*j}')
        a.e('s_waitcnt lgkmcnt(0)')
        stamp()
        srv = opt.stats_srv and opt.park
        def p4_tail():
            soff(S_T0, ST_OFF)
            for k in range(4):
                a.vmem(f'buffer_load_dwordx4 v[{RAW+4*k}:{RAW+4*k+3}], v{V_STS}, {WS}, s{S_T0} offen offset:{512*k} sc1', 'st')
        small_gemm('P4', tail=None if srv else p4_tail)
        stamp()
        if srv:
            a.e(f'v_and_b32 v{T0}, 31, v{V_LANE}')
            a.e(f'v_lshlrev_b32 v{T0}, 4, v{T0}')
            a.e(f's_lshl_b32 s{S_T0}, s{S_RH}, 9')
            a.e(f's_add_u32 s{S_T0}, s{S_T0}, {hex(STC)}')
            a.e(f'v_add_u32 v{T0}, s{S_T0}, v{T0}')
            a.e(f'ds_read_b128 v[{RAW}:{RAW+3}], v{T0} offset:{ST4}')
            a.e('s_waitcnt lgkmcnt(0)')
            a.e(f'v_mov_b32 v{RAW+4}, v{RAW}'); a.e(f'v_mov_b32 v{RAW+6}, v{RAW+1}')
            a.e(f'v_mov_b32 v{V_MEAN}, v{RAW+2}'); a.e(f'v_mov_b32 v{V_RS}, v{RAW+3}')
        else:
            a.wait_vm_all()
            emit_sum_partials(a, RAW, 16)
            emit_xreduce(a, [RAW, RAW + 1], [RAW + 2, RAW + 3], over16=False)
            emit_stats_from_sums(a, RAW, RAW + 1, RAW + 4, RAW + 6, RAW + 8, double=True, keep=(V_MEAN, V_RS))
        emit_lnfold(a, ACC, CS4, RAW + 4, RAW + 6, 16)
        emit_gelu(a, ACC, 16, TMP + 48, V_PQ)
        emit_pack32(a, TMP, ACC)
        tile_store(TMP, A0_OFF, gh=True)
        gl = a.newlabel('GH'); gu = a.newlabel('GH'); gd = a.newlabel('GH')
        a.e(f's_cmp_eq_u32 s{S_RB}, 3')
        a.e(f's_cbranch_scc0 {gu}')
        a.e(f's_cmp_eq_u32 s{S_RH}, 1')
        a.e(f's_cbranch_scc0 {gd}')
        a.e(f's_bitcmp1_b32 s{S_CB}, 1')
        a.e(f's_cbranch_scc1 {gd}')
        a.e(f's_cmp_eq_u32 s{S_G}, 7')
        a.e(f's_cbranch_scc1 {gd}')
        a.e(f's_add_u32 s{S_T1}, s{S_G}, 1')
        a.e(f's_mul_i32 s{S_T2}, s{S_T1}, {18*16384}')
        a.e(f's_lshl_b32 s{S_T3}, s{S_T1}, 8')
        set_exec(a, 0xc0000000)
        a.e(f's_branch {gl}')
        a.label(gu)
        a.e(f's_cmp_eq_u32 s{S_RB}, 0')
        a.e(f's_cbranch_scc0 {gd}')
        a.e(f's_cmp_eq_u32 s{S_RH}, 0')
        a.e(f's_cbranch_scc0 {gd}')
        a.e(f's_bitcmp1_b32 s{S_CB}, 1')
        a.e(f's_cbranch_scc0 {gd}')
        a.e(f's_cmp_eq_u32 s{S_G}, 0')
        a.e(f's_cbranch_scc1 {gd}')
        a.e(f's_sub_u32 s{S_T1}, s{S_G}, 1')
        a.e(f's_mul_i32 s{S_T2}, s{S_T1}, {18*16384}')
        a.e(f's_add_u32 s{S_T2}, s{S_T2}, {17*16384}')
        a.e(f's_lshl_b32 s{S_T3}, s{S_T1}, 8')
        a.e(f's_add_u32 s{S_T3}, s{S_T3}, 128')
        set_exec(a, 0x00000003)
        a.label(gl)
        a.e(f's_lshl_b32 s{S_T0}, s{S_CB}, 1')
        a.e(f's_add_u32 s{S_T0}, s{S_T0}, s{S_CH}')
        a.e(f's_lshl_b32 s{S_T0}, s{S_T0}, 10')
        a.e(f's_add_u32 s{S_T2}, s{S_T2}, s{S_T0}')
        a.e(f'v_and_b32 v{T0}, 0x3fff, v{V_TST}')
        a.e(f'v_and_b32 v{T0}, 0x3ff, v{T0}')
        a.e(f'buffer_store_dwordx4 v[{TMP}:{TMP+3}], v{T0}, {WS}, s{S_T2} offen sc1')
        a.e(f'buffer_store_dwordx4 v[{TMP+4}:{TMP+7}], v{T0}, {WS}, s{S_T2} offen offset:512 sc1')
        a.e('s_mov_b64 exec, -1')
        a.e(f's_and_b32 s{S_T0}, s{S_CB}, 1')
        a.e(f's_lshr_b32 s{S_T1}, s{S_CB}, 2')
        a.e(f's_lshl_b32 s{S_T1}, s{S_T1}, 1')
        a.e(f's_add_u32 s{S_T0}, s{S_T0}, s{S_T1}')
        a.e(f's_lshl_b32 s{S_T0}, s{S_T0}, 1')
        a.e(f's_add_u32 s{S_T0}, s{S_T0}, s{S_CH}')
        a.e(f's_lshl_b32 s{S_T0}, s{S_T0}, 2')
        a.e(f's_add_u32 s{S_T3}, s{S_T3}, s{S_T0}')
        a.e(f's_lshl_b32 s{S_T0}, s{S_L}, 11')
        a.e(f's_add_u32 s{S_T3}, s{S_T3}, s{S_T0}')
        a.e(f's_add_u32 s{S_T3}, s{S_T3}, {hex(HF_OFF)}')
        thr_value(a, S_THR, ep(3), xcc=True)
        a.e(f'v_mov_b32 v{T0}, s{S_T3}')
        a.e(f'v_mov_b32 v{T1}, s{S_THR}')
        a.e('s_waitcnt vmcnt(0)')
        a.e('s_mov_b64 exec, 1')
        a.e(f'buffer_store_dword v{T1}, v{T0}, {WS}, 0 offen sc1')
        a.e('s_mov_b64 exec, -1')
        a.label(gd)
        emit_signal(a, ep(3))
        stamp()
        if done('P4'): return True

        a.c('=== P5')
        stamp()
        small_gemm('P5')
        stamp()
        a.e(f'v_mul_f32 v{TMP+10}, v{V_MEAN}, v{V_RS}')
        a.e(f'v_sub_f32 v{TMP+10}, 0, v{TMP+10}')
        a.e(f'v_mov_b32 v{TMP+8}, v{V_RS}')
        for i in range(0, 16, 2):
            a.e(pk('fma', ACC + i, vp(V_RES + i), vp(TMP + 8), vp(ACC + i), mods=' op_sel_hi:[1,0,1]'))
        for i in range(0, 16, 2):
            a.e(pk('add', ACC + i, vp(ACC + i), vp(TMP + 10), mods=' op_sel_hi:[1,0]'))
        emit_pack32(a, TMP, ACC)
        tile_store(TMP, A1_OFF)
        soff(S_T1, ST_OFF)
        emit_stats_partial32(a, ACC, TMP + 12, f's{S_T1}')
        for i in range(0, 16, 2): a.e(pk('add', V_RES + i, vp(V_RES + i), vp(ACC + i)))
        emit_signal(a, ep(4))
        stamp()
        if done('P5'): return True

        a.c('=== P6')
        CS6 = V_ACC; ACC6 = 192; WR6 = 96
        a.e(f'v_and_b32 v{T1}, 0x30, v{V_LANE}')
        a.e(f'v_add_u32 v{T1}, {hex(CSC + 640)}, v{T1}')
        for t in range(7):
            a.e(f'ds_read_b128 v[{CS6+4*t}:{CS6+4*t+3}], v{T1} offset:{64*t}')
        a.e('s_waitcnt lgkmcnt(0)')
        for c in range(4):
            a.e(f's_lshl_b32 s{S_P7+c}, s{S_RB2}, {13 if opt.rot else 31}')
            if not opt.rot: a.e(f's_mov_b32 s{S_P7+c}, 0')
            a.e(f's_xor_b32 s{S_P7+c}, s{S_P7+c}, {hex(c * 4096)}')
            a.e(f's_add_u32 s{S_P7+c}, s{S_P7+c}, {hex(A1_OFF)}')
            a.e(f's_add_u32 s{S_P7+4+c}, s{S_P7+c}, 0x4000')
        emit_poll(a, V_FSB, ep(4), opt=opt)
        stamp()
        def p6_load(j):
            for r in range(2):
                d = V_A + ((j % 8) * 2 + r) * 4
                a.vmem(f'buffer_load_dwordx4 v[{d}:{d+3}], v{V_AB}, {WS}, s{S_P7 + 4 * r + j // 4} offen offset:{(j%4)*1024} sc1', ('A', j))
        RAW6 = [V_PQ, 248]
        def p6_issue(j, t):
            if t == 1:
                if j + opt.D_p6 < 16:
                    p6_load(j + opt.D_p6)
                elif j + opt.D_p6 == 16 and not (opt.stats_srv and opt.park):
                    soff(S_T0, ST_OFF)
                    for r in range(2):
                        a.vmem(f'buffer_load_dwordx4 v[{RAW6[r]}:{RAW6[r]+3}], v{V_STB}, {WS}, s{S_T0} offen offset:{256*r} sc1', 'st')
                        a.vmem(f'buffer_load_dwordx4 v[{RAW6[r]+4}:{RAW6[r]+7}], v{V_STB}, {WS}, s{S_T0} offen offset:{256*r+512} sc1', 'st')
        a.fstamp('P6')
        for j in range(opt.D_p6): p6_load(j)
        emit_gemm16(a, bar, 'P6', slabs['P6'], 7, '224',
                    acc_of=lambda r, t: ACC6 + (r * 7 + t) * 4, a_of=lambda r, j: V_A + ((j % 8) * 2 + r) * 4,
                    a_wait=lambda j: a.count_vm(('A', j)), a_issue=p6_issue, wr=WR6, S=8)
        stamp()
        a.wait_vm_all()
        AB6 = [(92, 94), (RAW6[1] + 4, RAW6[1] + 6)]
        if opt.stats_srv and opt.park:
            a.e(f'v_and_b32 v{T0}, 15, v{V_LANE}')
            a.e(f'v_lshlrev_b32 v{T0}, 2, v{T0}')
            a.e(f's_lshl_b32 s{S_T0}, s{S_W}, 7')
            a.e(f's_add_u32 s{S_T0}, s{S_T0}, {hex(STC)}')
            a.e(f'v_add_u32 v{T0}, s{S_T0}, v{T0}')
            for r in range(2):
                a.e(f'ds_read_b32 v{AB6[r][0]}, v{T0} offset:{STA + 64*r}')
                a.e(f'ds_read_b32 v{AB6[r][1]}, v{T0} offset:{STB_ + 64*r}')
            a.e('s_waitcnt lgkmcnt(0)')
        else:
            for r in range(2): emit_sum_partials(a, RAW6[r], 8)
            emit_xreduce(a, [RAW6[0], RAW6[0] + 1, RAW6[1], RAW6[1] + 1], [V_X, V_X + 1, V_X + 2, V_X + 3])
            for r in range(2):
                emit_stats_from_sums(a, RAW6[r], RAW6[r] + 1, AB6[r][0], AB6[r][1], V_X)
        a.e(f's_lshl_b32 s{S_T0}, s{S_G}, 4')
        a.e(f's_lshl_b32 s{S_T1}, s{S_RB2}, 3')
        a.e(f's_add_u32 s{S_T0}, s{S_T0}, s{S_T1}')
        a.e(f's_lshl_b32 s{S_T1}, s{S_W}, 1')
        a.e(f's_add_u32 s{S_T0}, s{S_T0}, s{S_T1}')
        a.e(f's_mul_i32 s{S_T0}, s{S_T0}, 57344')
        a.e(f's_lshr_b32 s{S_T1}, s{S_CB2}, 1')
        a.e(f's_mul_i32 s{S_T1}, s{S_T1}, 7168')
        a.e(f's_add_u32 s{S_T0}, s{S_T0}, s{S_T1}')
        a.e(f's_add_u32 s{S_T0}, s{S_T0}, {hex(G_OFF)}')
        a.e(f's_and_b32 s{S_T1}, s{S_CB2}, 1')
        a.e(f's_mul_i32 s{S_U0}, s{S_T1}, 3072')
        a.e(f's_add_u32 s{S_U0}, s{S_U0}, s{S_T0}')
        a.e(f's_add_u32 s{S_U1}, s{S_U0}, 57344')
        a.e(f's_lshl_b32 s{S_T1}, s{S_T1}, 3')
        a.e(f's_add_u32 s{S_U2}, s{S_T0}, s{S_T1}')
        a.e(f's_add_u32 s{S_U2}, s{S_U2}, 6144')
        a.e(f's_add_u32 s{S_U3}, s{S_U2}, 57344')
        a.e(f'v_lshlrev_b32 v{V_X+4}, 4, v{V_LANE}')
        for r in range(2):
            emit_lnfold(a, ACC6 + r * 28, CS6, AB6[r][0], AB6[r][1], 28)
            emit_gelu(a, ACC6 + r * 28, 28, V_A, V_PQ + 4)
            pkb = V_A + 16 + r * 16
            emit_pack(a, pkb, ACC6 + r * 28, 28)
            st = [f'buffer_store_dwordx4 v[{pkb+4*j}:{pkb+4*j+3}], v{V_X+4}, {WS}, s{S_U0+r} offen offset:{1024*j}' for j in range(3)]
            st.append(f'buffer_store_dwordx2 v[{pkb+12}:{pkb+13}], v{V_X+4}, {WS}, s{S_U2+r} offen')
            emit_mode_stores(a, st, cold=bool(opt.g_cold))
        emit_signal(a, ep(5))
        stamp()
        if done('P6'): return True

        a.c('=== P7')
        if opt.p7_self:
            VG, VF = V_A + 100, V_A + 101
            a.e(f's_lshl_b32 s{S_T0}, s{S_G}, 4'); a.e(f's_lshl_b32 s{S_T1}, s{S_RB}, 2'); a.e(f's_add_u32 s{S_T0}, s{S_T0}, s{S_T1}')
            a.e(f's_add_u32 s{S_T0}, s{S_T0}, s{S_W}'); a.e(f's_mul_i32 s{S_T0}, s{S_T0}, 57344')
            a.e(f'v_lshlrev_b32 v{VG}, 4, v{V_LANE}'); a.e(f'v_add_u32 v{VG}, s{S_T0}, v{VG}')
            for p_ in range(8):
                a.e(f's_and_b32 s{S_P7+p_}, s{S_RB}, {3 if opt.rot else 0}'); a.e(f's_lshl_b32 s{S_P7+p_}, s{S_P7+p_}, 1')
                a.e(f's_xor_b32 s{S_P7+p_}, s{S_P7+p_}, {p_}'); a.e(f's_mul_i32 s{S_P7+p_}, s{S_P7+p_}, 7168')
            a.e(f's_lshl_b32 s{S_T2}, s{S_G}, 9'); a.e(f's_add_u32 s{S_T2}, s{S_T2}, {hex(LF_OFF)}')
            a.e(f's_and_b32 s{S_T3}, s{S_RB}, 1'); a.e(f's_lshl_b32 s{S_T3}, s{S_T3}, 1'); a.e(f's_add_u32 s{S_T3}, s{S_T3}, s{S_RH}')
            a.e(f's_lshl_b32 s{S_T3}, s{S_T3}, 7'); a.e(f's_add_u32 s{S_T3}, s{S_T3}, s{S_T2}')
            a.e(f's_lshr_b32 s{S_T4}, s{S_RB}, 1'); a.e(f's_lshl_b32 s{S_T4}, s{S_T4}, 6'); a.e(f's_add_u32 s{S_T3}, s{S_T3}, s{S_T4}')
            a.e(f'v_and_b32 v{VF}, 15, v{V_LANE}'); a.e(f'v_lshlrev_b32 v{VF}, 2, v{VF}'); a.e(f'v_add_u32 v{VF}, s{S_T3}, v{VF}')
            a.e(f's_lshl_b32 s{S_T3}, s{S_R}, 2'); a.e(f's_add_u32 s{S_T3}, s{S_T3}, s{S_T2}')
            a.e(f'v_and_b32 v{T1}, 3, v{V_LANE}'); a.e(f'v_lshlrev_b32 v{T1}, 7, v{T1}'); a.e(f'v_add_u32 v{T1}, s{S_T3}, v{T1}')
            a.e(f'v_cmp_lt_u32 vcc, 15, v{V_LANE}'); a.e('s_nop 1'); a.e(f'v_cndmask_b32 v{VF}, v{VF}, v{T1}, vcc')
            emit_poll(a, VF, ep(5), opt=opt)
            stamp()
            def pieces7(c):
                state = {'last': None}
                def mk(k):
                    def f():
                        if k == 0: a.e(f's_add_u32 m0, s{S_W4K}, {hex(AREG + (c % 4) * 16384)}')
                        p_, i_ = divmod(4 * c + k, 7)
                        const = G_OFF + (i_ - k) * 1024
                        if state['last'] != (p_, const):
                            a.e(f's_add_u32 s{S_T0}, s{S_P7+p_}, {hex(const & 0xffffffff)}'); state['last'] = (p_, const)
                        a.vmem(f'buffer_load_dwordx4 v{VG}, {WS}, s{S_T0} offen offset:{k*1024} sc1 lds', ('A', c))
                    return f
                return [mk(k) for k in range(4)]
            emit_gemm32(a, bar, 'P7', slabs['P7'], ACC, WR, a_pieces=pieces7)
        else:
            stamp()
            small_gemm('P7')
        stamp()
        for i in range(0, 16, 2): a.e(pk('add', V_RES + i, vp(V_RES + i), vp(ACC + i)))
        emit_pack32(a, TMP, V_RES)
        return False

    stopped = run_layer()
    if not stopped:
        fin = a.newlabel('FIN'); TMP = V_A
        a.e(f's_cmp_eq_u32 s{S_L}, 1')
        a.e(f's_cbranch_scc1 {fin}')
        a.e(f's_mov_b32 s{S_T0}, {hex(A2_OFF)}')
        emit_mode_stores(a, [f'buffer_store_dwordx4 v[{TMP}:{TMP+3}], v{V_TST}, {WS}, s{S_T0} offen',
                             f'buffer_store_dwordx4 v[{TMP+4}:{TMP+7}], v{V_TST}, {WS}, s{S_T0} offen offset:512'], cold=True)
        a.e(f's_mov_b32 s{S_T1}, {hex(ST_OFF)}')
        emit_stats_partial32(a, V_RES, TMP + 8, f's{S_T1}')
        a.e(f's_add_u32 s{S_EP}, s{S_EP}, 6')
        emit_signal(a, f's{S_EP}')
        if opt.timing:
            dump([tmreg(i) for i in range(tm[0])])
        a.e(f's_mov_b32 s{S_L}, 1')
        a.e(f's_mov_b32 s{S_LOFF}, {hex(KVP_L)}')
        a.e(f's_mov_b32 s{S_COLD}, s{S_MODE}')
        for c in range(4):
            a.e(f's_xor_b32 s{S_RK+c}, s{S_ROTK}, {c}')
            a.e(f's_lshl_b32 s{S_RK+c}, s{S_RK+c}, 12')
            a.e(f's_add_u32 s{S_RK+c}, s{S_RK+c}, {hex(A2_OFF)}')
            a.e(f's_add_u32 s{S_P7+c}, s{S_RK+c}, 0x4000')
        a.e(f's_branch {LOOP}')
        a.label(fin)
        emit_pack(a, TMP, V_RES, 16)
        OS = f's[{S_OUT}:{S_OUT+3}]'
        if opt.out_lds and opt.stop is None:
            a.e(f'v_and_b32 v{V_T0}, 31, v{V_LANE}')
            a.e(f'v_lshlrev_b32 v{V_T0}, 7, v{V_T0}')
            a.e(f'v_lshrrev_b32 v{V_T1}, 5, v{V_LANE}')
            a.e(f'v_lshl_add_u32 v{V_T0}, v{V_T1}, 3, v{V_T0}')
            a.e(f's_lshl_b32 s{S_T0}, s{S_RH}, 12')
            a.e(f's_lshl_b32 s{S_T1}, s{S_CH}, 6')
            a.e(f's_add_u32 s{S_T0}, s{S_T0}, s{S_T1}')
            a.e(f'v_add_u32 v{V_T0}, s{S_T0}, v{V_T0}')
            for j in range(4):
                a.e(f'ds_write_b64 v{V_T0}, v[{TMP+2*j}:{TMP+2*j+1}] offset:{AREG + 16*j}')
            a.e(f'v_lshrrev_b32 v{V_T1}, 3, v{V_LANE}')
            a.e(f'v_and_b32 v{V_T2}, 7, v{V_LANE}')
            a.e(f'v_lshlrev_b32 v{V_X}, 7, v{V_T1}')
            a.e(f'v_lshl_add_u32 v{V_X}, v{V_T2}, 4, v{V_X}')
            a.e(f's_lshl_b32 s{S_T0}, s{S_W}, 11')
            a.e(f'v_add_u32 v{V_X}, s{S_T0}, v{V_X}')
            a.e(f'v_lshlrev_b32 v{V_X+1}, 10, v{V_T1}')
            a.e(f'v_lshl_add_u32 v{V_X+1}, v{V_T2}, 4, v{V_X+1}')
            a.e(f's_lshl_b32 s{S_T0}, s{S_G}, 8'); a.e(f's_lshl_b32 s{S_T1}, s{S_RB}, 6'); a.e(f's_add_u32 s{S_T0}, s{S_T0}, s{S_T1}')
            a.e(f's_lshl_b32 s{S_T1}, s{S_W}, 4'); a.e(f's_add_u32 s{S_T0}, s{S_T0}, s{S_T1}'); a.e(f's_lshl_b32 s{S_T0}, s{S_T0}, 10')
            a.e(f's_lshl_b32 s{S_T1}, s{S_CB}, 7'); a.e(f's_add_u32 s{S_T0}, s{S_T0}, s{S_T1}')
            a.e(f's_add_u32 s{S_T1}, s{S_T0}, 8192')
            a.e('s_waitcnt lgkmcnt(0)')
            a.e('s_barrier')
            a.e(f'ds_read_b128 v[{TMP+8}:{TMP+11}], v{V_X} offset:{AREG}')
            a.e(f'ds_read_b128 v[{TMP+12}:{TMP+15}], v{V_X} offset:{AREG + 1024}')
            a.e('s_waitcnt lgkmcnt(1)')
            a.e(f'buffer_store_dwordx4 v[{TMP+8}:{TMP+11}], v{V_X+1}, {OS}, s{S_T0} offen')
            a.e('s_waitcnt lgkmcnt(0)')
            a.e(f'buffer_store_dwordx4 v[{TMP+12}:{TMP+15}], v{V_X+1}, {OS}, s{S_T1} offen')
        else:
            for j in range(4):
                a.e(f'buffer_store_dwordx2 v[{TMP+2*j}:{TMP+2*j+1}], v{V_XRM}, {OS}, 0 offen offset:{16*j}')
    a.label('L_END_COMPUTE')
    nn = a.newlabel('NON')
    a.e(f's_or_b32 s{S_T0}, s2, s{S_W}')
    a.e(f's_cmp_eq_u32 s{S_T0}, 0')
    a.e(f's_cbranch_scc0 {nn}')
    a.e(f's_add_u32 s{S_T0}, s{S_V}, 1')
    a.e(f'v_mov_b32 v{V_T0}, s{S_T0}')
    a.e(f'v_mov_b32 v{V_T1}, {hex(NONCE_OFF)}')
    a.e('s_mov_b64 exec, 1')
    a.e(f'buffer_store_dword v{V_T0}, v{V_T1}, {WS}, 0 offen')
    a.e('s_mov_b64 exec, -1')
    a.label(nn)
    stamp()
    if opt.timing: dump([tmreg(i) for i in range(tm[0])] + ([85] if False else []))
    if opt.fine: dump([freg(i) for i in range(fs[0])])
    if opt.wall:
        a.e('s_waitcnt vmcnt(0)')
        a.e('s_memrealtime s[82:83]'); a.e('s_memtime s[80:81]'); a.e('s_waitcnt lgkmcnt(0)')
        dump([84, 82, 85, 80])
    a.e('s_waitcnt vmcnt(0)')
    a.e('s_endpgm')
    return evq


def hstamp(a, opt, slot):
    if not (opt.dbgout >= 0 and opt.fine): return
    sk = a.newlabel('HS')
    a.e('s_memtime s[98:99]'); a.e('s_waitcnt lgkmcnt(0)')
    a.e(f's_cmp_eq_u32 s2, {opt.dbgwg}'); a.e(f's_cbranch_scc0 {sk}')
    a.e('s_sub_u32 s98, s98, s96')
    a.e('v_mov_b32 v254, s98'); a.e(f'v_mov_b32 v253, {4*slot}')
    a.e('global_store_dword v253, v254, s[86:87]')
    a.label(sk)
    a.vm.append('hs')

def gen_loader(a, opt, events):
    VN, VKV, VQ, VW3, VKVn, VQn = 8, 12, 16, 20, 28, 32
    VT0, VT1, VT2, VT3 = 1, 2, 3, 4
    a.c('--- loader setup')
    if opt.prio_l: a.e(f's_setprio {opt.prio_l}')
    def srd(s, p, size):
        a.e(f's_mov_b32 s{s}, s{p}'); a.e(f's_mov_b32 s{s+1}, s{p+1}')
        a.e(f's_mov_b32 s{s+2}, {hex(size)}'); a.e(f's_mov_b32 s{s+3}, 0x20000')
    srd(S_WQKV, S_PTR + 2, 512 * 1536 * 2)
    srd(S_WO, S_PTR + 4, 512 * 512 * 2)
    srd(S_W1, S_PTR + 8, 512 * 512 * 2)
    srd(S_W2, S_PTR + 10, 512 * 512 * 2)
    srd(S_W3, S_PTR + 12, 512 * 1792 * 2)
    srd(S_W4, S_PTR + 14, 1792 * 512 * 2)
    CBS, CBK, CB6, CB7 = 64, 68, 72, 76
    a.e(f's_lshl_b32 s{S_T1}, s{S_RB2}, 1')
    a.e(f's_add_u32 s{S_T1}, s{S_T1}, s{S_CB2}')
    a.e(f's_and_b32 s{S_T1}, s{S_T1}, {3 if opt.rot else 0}')
    for c in range(4):
        a.e(f's_xor_b32 s{CBK+c}, s{S_T1}, {c}')
        a.e(f's_mul_i32 s{CBK+c}, s{CBK+c}, {128*3072}')
    def late_tables():
        rm = 3 if opt.rot else 0
        for c in range(4):
            a.e(f's_and_b32 s{CBS+c}, s{S_RB}, {rm}')
            a.e(f's_xor_b32 s{CBS+c}, s{CBS+c}, {c}')
            a.e(f's_lshl_b32 s{CBS+c}, s{CBS+c}, 17')
            a.e(f's_lshl_b32 s{CB6+c}, s{S_RB2}, 1')
            a.e(f's_and_b32 s{CB6+c}, s{CB6+c}, {rm}')
            a.e(f's_xor_b32 s{CB6+c}, s{CB6+c}, {c}')
            a.e(f's_mul_i32 s{CB6+c}, s{CB6+c}, {128*3584}')
        for p_ in range(8):
            a.e(f's_and_b32 s{CB7+p_}, s{S_RB}, {rm}')
            a.e(f's_lshl_b32 s{CB7+p_}, s{CB7+p_}, 1')
            a.e(f's_xor_b32 s{CB7+p_}, s{CB7+p_}, {p_}')
            a.e(f's_mul_i32 s{CB7+p_}, s{CB7+p_}, {224*1024}')

    def cs_issue():
        a.c('cs pieces')
        c1 = a.newlabel('CS'); c2 = a.newlabel('CS'); c3 = a.newlabel('CS')
        a.e(f's_min_u32 s{92}, s2, 239')
        a.e(f's_lshr_b32 s{93}, s{92}, 2')
        a.e(f's_and_b32 s{94}, s{92}, 3')
        a.e(f's_cmp_lt_u32 s{93}, 24')
        a.e(f's_cbranch_scc0 {c1}')
        for i in range(3): a.e(f's_mov_b32 s{S_CSRD+i}, s{S_WQKV+i}')
        a.e(f's_mov_b32 s{S_T0}, 3072')
        a.e(f's_lshl_b32 s{S_T1}, s{93}, 7')
        a.e(f's_branch {c3}')
        a.label(c1)
        a.e(f's_cmp_lt_u32 s{93}, 32')
        a.e(f's_cbranch_scc0 {c2}')
        for i in range(3): a.e(f's_mov_b32 s{S_CSRD+i}, s{S_W1+i}')
        a.e(f's_mov_b32 s{S_T0}, 1024')
        a.e(f's_sub_u32 s{S_T1}, s{93}, 24')
        a.e(f's_lshl_b32 s{S_T1}, s{S_T1}, 7')
        a.e(f's_branch {c3}')
        a.label(c2)
        for i in range(3): a.e(f's_mov_b32 s{S_CSRD+i}, s{S_W3+i}')
        a.e(f's_mov_b32 s{S_T0}, 3584')
        a.e(f's_sub_u32 s{S_T1}, s{93}, 32')
        a.e(f's_lshl_b32 s{S_T1}, s{S_T1}, 7')
        a.label(c3)
        a.e(f's_mov_b32 s{S_CSRD+3}, 0x20000')
        a.e(f'v_lshrrev_b32 v{VT1}, 3, v{V_LANE}')
        a.e(f'v_mul_lo_u32 v{VT1}, v{VT1}, s{S_T0}')
        a.e(f'v_and_b32 v{VT2}, 7, v{V_LANE}')
        a.e(f'v_lshl_add_u32 v{VT1}, v{VT2}, 4, v{VT1}')
        a.e(f'v_add_u32 v{VT1}, s{S_T1}, v{VT1}')
        a.e(f's_lshl_b32 s{S_T1}, s{94}, 7')
        a.e(f's_mul_i32 s{S_T1}, s{S_T1}, s{S_T0}')
        a.e(f's_lshl_b32 s{S_T0}, s{S_T0}, 3')
        a.e(f's_mov_b32 m0, {hex(CSL)}')
        for p in range(16):
            a.e('s_nop 0')
            a.vmem(f'buffer_load_dwordx4 v{VT1}, s[{S_CSRD}:{S_CSRD+3}], s{S_T1} offen lds', 'cs')
            if p < 15:
                a.e('s_add_u32 m0, m0, 1024')
                a.e(f's_add_u32 s{S_T1}, s{S_T1}, s{S_T0}')
    dg = [0]
    def dstamp():
        if opt.startdiag:
            a.e(f's_memtime s[{84+2*dg[0]}:{85+2*dg[0]}]') if False else None
            a.e('s_memtime s[98:99]'); a.e('s_waitcnt lgkmcnt(0)')
            a.e('s_sub_u32 s98, s98, s100')
            a.e(f'v_mov_b32 v{100+dg[0]}, s98'); dg[0] += 1
    dstamp()
    cs_issue()
    a.e(f'v_lshrrev_b32 v{VT0}, 3, v{V_LANE}')
    a.e(f'v_bfe_u32 v{VT1}, v{VT0}, 1, 2')
    a.e(f'v_lshlrev_b32 v{VT1}, 1, v{VT1}')
    a.e(f'v_and_b32 v{VT2}, 7, v{V_LANE}')
    a.e(f'v_xor_b32 v{VT2}, v{VT2}, v{VT1}')
    a.e(f'v_and_b32 v{VT1}, 3, v{VT2}')
    a.e(f'v_lshlrev_b32 v{VT3}, 4, v{VT1}')
    a.e(f'v_lshrrev_b32 v{VT1}, 2, v{VT2}')
    a.e(f'v_lshl_add_u32 v{VT3}, v{VT1}, 10, v{VT3}')
    a.e(f's_lshl_b32 s{S_T0}, s{S_CB2}, 6')
    a.e(f's_add_u32 s{S_T1}, s{S_T0}, 1024')
    a.e(f'v_add_u32 v{VT3}, s{S_T1}, v{VT3}')
    a.e(f'v_lshrrev_b32 v{VT1}, 2, v{VT0}')
    a.e(f'v_lshlrev_b32 v{VT1}, 3, v{VT1}')
    a.e(f'v_and_b32 v{VT2}, 3, v{VT0}')
    a.e(f'v_add_u32 v{VT1}, v{VT1}, v{VT2}')
    a.e(f'v_mul_u32_u24 v{VT1}, 3072, v{VT1}')
    a.e(f'v_add_u32 v{VT1}, v{VT1}, v{VT3}')
    for p in range(4):
        off = (16 * (p & 1) + 4 * (p >> 1)) * 3072 - p * 1024
        a.e(f'v_add_u32 v{VKVn+p}, {hex(off & 0xffffffff)}, v{VT1}')
    a.e(f'v_mul_u32_u24 v{VKV}, 3072, v{VT0}')
    a.e(f'v_add_u32 v{VKV}, v{VKV}, v{VT3}')
    for j in range(1, 4): a.e(f'v_add_u32 v{VKV+j}, {hex(j*(8*3072-1024))}, v{VKV}')

    layers = sorted(set(e[0] for e in events))
    slabs = {L: build_slabs(L) for L in layers}
    stream = []
    needed = set((e[0], e[2], e[3]) for e in events if e[1] == 'B')
    for L in layers:
        for p in PHASES:
            for ci, ch in enumerate(slabs[L][p]):
                if (L, p, ci) in needed: stream += ch
    released = set()
    log = []; cur = ['start']
    opt._log = log
    st = {'issued': 0}
    win = [opt.window0]
    def overlaps_unreleased(s, idx):
        for k in range(idx):
            o = stream[k]
            if (o.layer, o.phase, o.chunk) in released: continue
            if o.addr < s.addr + s.size and s.addr < o.addr + o.size: return True
        return False
    def emit_slab(s):
        kind = s.kind; tag = (s.layer, s.phase, s.chunk)
        if kind in opt.dbg_skip.split(','): return
        if kind in ('WO', 'W1', 'W2', 'W4'):
            srd_ = {'WO': S_WO, 'W1': S_W1, 'W2': S_W2, 'W4': S_W4}[kind]; vb = VN; rs = 1024
        elif kind == 'KV': srd_, vb, rs = S_WQKV, (VKVn if s.layer == 0 else VKV), 3072
        elif kind == 'Q': srd_, vb, rs = S_WQKV, (VQn if s.layer == 0 else VQ), 3072
        else: srd_, vb, rs = S_W3, VW3, 3584
        R4 = f's[{srd_}:{srd_+3}]'
        def grp(addr, srow, ps, v0):
            a.e(f's_mov_b32 m0, {hex(addr)}')
            if kind == 'W4':
                p_, rr_ = divmod(srow, 224); tb_ = CB7 + p_
            else:
                c_, rr_ = divmod(srow, 128); tb_ = {'KV': CBK, 'Q': CBK, 'W3': CB6}.get(kind, CBS) + c_
            a.e(f's_add_u32 s{S_T0}, s{tb_}, {hex(rr_*rs)}')
            for k, p in enumerate(ps):
                a.vmem(f'buffer_load_dwordx4 v{vb+p}, {R4}, s{S_T0} offen offset:{k*1024} {"nt " if opt.w_nt else ""}lds', tag)
        if kind == 'W3':
            grp(s.addr, s.srow, [0, 1, 2, 3], 0); grp(s.addr + 4096, s.srow, [4, 5, 6], 0)
        elif kind == 'W4' and s.srow2 != s.srow + 16:
            grp(s.addr, s.srow, [0, 1], 0); grp(s.addr + 2048, s.srow2, [0, 1], 0)
        else:
            grp(s.addr, s.srow, [0, 1, 2, 3], 0)
        if len(a.vm) > win[0]:
            a.e(f's_waitcnt vmcnt({win[0]})')
            a.vm = a.vm[len(a.vm) - win[0]:]
    plan = {}
    opt._plan = plan
    free = [50, 42 if opt.stats_srv else 50]
    def need_slots(s): return (4, 3) if s.kind == 'W3' else (2, 2)
    def park_policy(key):
        if not opt.park: return
        name = key.split('.', 1)[1] if key[0] in '01' else None
        if name is None: return
        L = int(key[0])
        if name in opt.park_w3:
            cand = [s for s in stream[st['issued']:] if s.layer == L and s.phase == 'P6' and s.chunk >= 1]; cap = opt.park_w3[name]
        elif name in opt.park_caps:
            cand = [s for s in stream[st['issued']:] if s.layer == L and s.phase == 'P7' and s.chunk >= 6]; cap = opt.park_caps[name]
        else:
            return
        for s in cand:
            if getattr(s, 'parked', False): continue
            n0, n1 = need_slots(s)
            if cap <= 0 or free[0] < n0 or free[1] < n1: break
            s.parked = True; free[0] -= n0; free[1] -= n1; cap -= 1
            plan.setdefault(key, []).append(('park', s))
    def issue(cap, must=None):
        n = 0; nu = 0
        while st['issued'] < len(stream):
            s = stream[st['issued']]
            forced = must is not None and any((o.layer, o.phase, o.chunk) == must for o in stream[st['issued']:])
            pk_ = getattr(s, 'parked', False)
            if not forced and not pk_ and n + s.npieces > cap: break
            if not forced and pk_ and (nu >= opt.unpark_max or must is not None): break
            if overlaps_unreleased(s, st['issued']):
                assert not forced, ('deadlock', must, s.layer, s.phase, s.chunk)
                break
            if pk_:
                plan.setdefault(cur[0], []).append(('unpark', s)); nu += 1
                n0, n1 = need_slots(s); free[0] += n0; free[1] += n1
                st['issued'] += 1
                log.append((cur[0], s.layer, s.phase + '*', s.chunk, forced))
                continue
            emit_slab(s); st['issued'] += 1; n += s.npieces
            log.append((cur[0], s.layer, s.phase, s.chunk, forced))
    if WARM0[0]:
        a.e('s_barrier')
        events = events[1:]
    hstamp(a, opt, 8)
    issue(32)
    hstamp(a, opt, 9)
    dstamp()
    def nonce_setup():
        a.e('s_waitcnt lgkmcnt(0)')
        a.e(f's_mul_i32 s{S_B}, s{S_V}, 0x9e3779b1')
        a.e(f's_add_u32 s{S_B}, s{S_B}, 0x7f4a7c15')
        a.e(f's_and_b32 s{S_B}, s{S_B}, 0xffffff00')
    def late_setup():
        if not opt.cs_late: nonce_setup()
        a.e(f's_lshl_b32 s{S_T0}, s{S_G}, 7')
        a.e(f's_lshl_b32 s{S_T1}, s{S_R}, 2')
        a.e(f's_add_u32 s{S_T0}, s{S_T0}, s{S_T1}')
        a.e(f's_add_u32 s{S_T0}, s{S_T0}, {hex(XID_OFF)}')
        a.e(f'v_mov_b32 v{VT1}, s{S_T0}')
        a.e(f's_add_u32 s{S_T1}, s{S_B}, s{S_XCC}')
        a.e(f'v_mov_b32 v{VT0}, s{S_T1}')
        a.e('s_mov_b64 exec, 1')
        a.vmem(f'buffer_store_dword v{VT0}, v{VT1}, {WS}, 0 offen sc1', 'xid')
        a.e('s_mov_b64 exec, -1')
        late_tables()
        a.c('W lane offsets')
        a.e(f'v_lshrrev_b32 v{VT0}, 3, v{V_LANE}')
        a.e(f'v_bfe_u32 v{VT1}, v{VT0}, 1, 1')
        a.e(f'v_lshlrev_b32 v{VT1}, 2, v{VT1}')
        a.e(f'v_and_b32 v{VT2}, 7, v{V_LANE}')
        a.e(f'v_xor_b32 v{VT2}, v{VT2}, v{VT1}')
        a.e(f'v_lshlrev_b32 v{VN}, 10, v{VT0}')
        a.e(f'v_lshl_add_u32 v{VN}, v{VT2}, 4, v{VN}')
        a.e(f's_lshl_b32 s{S_T0}, s{S_CB}, 7')
        a.e(f'v_add_u32 v{VN}, s{S_T0}, v{VN}')
        for j in range(1, 4): a.e(f'v_add_u32 v{VN+j}, {hex(j*(8192-1024))}, v{VN}')
        a.e(f'v_lshrrev_b32 v{VT0}, 2, v{V_LANE}')
        a.e(f'v_bfe_u32 v{VT1}, v{VT0}, 2, 1')
        a.e(f'v_lshlrev_b32 v{VT1}, 1, v{VT1}')
        a.e(f'v_and_b32 v{VT2}, 3, v{V_LANE}')
        a.e(f'v_xor_b32 v{VT2}, v{VT2}, v{VT1}')
        a.e(f'v_lshlrev_b32 v{VT3}, 4, v{VT2}')
        a.e(f's_lshl_b32 s{S_T0}, s{S_CB2}, 6')
        a.e(f'v_add_u32 v{VT3}, s{S_T0}, v{VT3}')
        a.e(f'v_mul_u32_u24 v{VQ}, 3072, v{VT0}')
        a.e(f'v_add_u32 v{VQ}, v{VQ}, v{VT3}')
        for j in range(1, 4): a.e(f'v_add_u32 v{VQ+j}, {hex(j*(16*3072-1024))}, v{VQ}')
        a.e(f'v_lshrrev_b32 v{VT1}, 2, v{VT0}')
        a.e(f'v_lshlrev_b32 v{VT1}, 3, v{VT1}')
        a.e(f'v_and_b32 v{VT2}, 3, v{VT0}')
        a.e(f'v_add_u32 v{VT1}, v{VT1}, v{VT2}')
        a.e(f'v_mul_u32_u24 v{VT1}, 3072, v{VT1}')
        a.e(f'v_add_u32 v{VT1}, v{VT1}, v{VT3}')
        for p in range(4):
            off = (4 * (p & 1) + 32 * (p >> 1)) * 3072 - p * 1024
            a.e(f'v_add_u32 v{VQn+p}, {hex(off & 0xffffffff)}, v{VT1}')
        a.e(f's_mul_i32 s{S_T0}, s{S_CB2}, 224')
        M14 = (1 << 20) // 14 + 1
        a.e(f's_mov_b32 s{S_T1}, {hex(M14)}')
        for p in range(7):
            a.e(f'v_add_u32 v{VT0}, {64*p}, v{V_LANE}')
            a.e(f'v_mul_lo_u32 v{VT1}, v{VT0}, s{S_T1}')
            a.e(f'v_lshrrev_b32 v{VT1}, 20, v{VT1}')
            a.e(f'v_mul_u32_u24 v{VT2}, 14, v{VT1}')
            a.e(f'v_sub_u32 v{VT2}, v{VT0}, v{VT2}')
            a.e(f'v_mul_u32_u24 v{VW3+p}, 3584, v{VT1}')
            a.e(f'v_lshl_add_u32 v{VW3+p}, v{VT2}, 4, v{VW3+p}')
            a.e(f'v_add_u32 v{VW3+p}, s{S_T0}, v{VW3+p}')
            if p % 4: a.e(f'v_subrev_u32 v{VW3+p}, {(p%4)*1024}, v{VW3+p}')
        for u in range(448): assert (u * M14) >> 20 == u // 14

    def cs_part1():
        a.wait_vm('cs')
        a.e(f'v_bfe_u32 v{VT0}, v{V_LANE}, 2, 2')
        a.e(f'v_lshrrev_b32 v{VT1}, 4, v{V_LANE}')
        a.e(f'v_lshl_add_u32 v{VT0}, v{VT1}, 2, v{VT0}')
        a.e(f'v_lshlrev_b32 v{VT0}, 7, v{VT0}')
        a.e(f'v_and_b32 v{VT2}, 3, v{V_LANE}')
        a.e(f'v_lshl_add_u32 v{VT0}, v{VT2}, 3, v{VT0}')
        a.e(f'v_add_u32 v{VT0}, {hex(CSL)}, v{VT0}')
        for i in range(4): a.e(f'v_mov_b32 v{40+i}, 0x3f803f80')
        for j in range(4):
            for t in range(4):
                a.e(f'ds_read_b64_tr_b16 v[{64+4*t}:{65+4*t}], v{VT0} offset:{j*4096+t*32}')
                a.e(f'ds_read_b64_tr_b16 v[{66+4*t}:{67+4*t}], v{VT0} offset:{j*4096+t*32+2048}')
            a.e('s_waitcnt lgkmcnt(0)')
            for t in range(4):
                c = '0' if j == 0 else f'v[{44+4*t}:{47+4*t}]'
                a.e(f'v_mfma_f32_16x16x32_bf16 v[{44+4*t}:{47+4*t}], v[{64+4*t}:{67+4*t}], v[40:43], {c}')
        a.e(f's_mul_i32 s{S_T0}, s{94}, 15360')
        a.e(f's_lshl_b32 s{S_T1}, s{93}, 8')
        a.e(f's_add_u32 s{S_T0}, s{S_T0}, s{S_T1}')
        a.e(f's_add_u32 s{S_T0}, s{S_T0}, {hex(CSP_OFF)}')
        a.e(f'v_lshlrev_b32 v{VT1}, 4, v{VT1}')
        a.e('s_nop 7')
        set_exec(a, 0x00010001)
        for t in range(4):
            a.vmem(f'buffer_store_dwordx4 v[{44+4*t}:{47+4*t}], v{VT1}, {WS}, s{S_T0} offen offset:{64*t} sc1', 'csst')
        a.e('s_mov_b64 exec, -1')
        if opt.kv_atomic:
            zl = a.newlabel('ZK')
            a.e(f's_lshr_b32 s{S_T0}, s2, 3')
            a.e(f's_mul_i32 s{S_T0}, s{S_T0}, {KVREC}')
            a.e(f's_add_u32 s{S_T0}, s{S_T0}, {hex(KVA_OFF)}')
            a.e(f's_and_b32 s{S_T1}, s2, 0x87')
            a.e(f's_cmp_eq_u32 s{S_T1}, 0')
            a.e(f's_cselect_b32 s{S_T1}, 0, 0x80000000')
            for i in range(4): a.e(f'v_mov_b32 v{60+i}, 0')
            a.e(f'v_lshlrev_b32 v{VT0}, 4, v{V_LANE}')
            a.e(f'v_or_b32 v{VT0}, s{S_T1}, v{VT0}')
            for l_ in range(2):
                a.vmem(f'buffer_store_dwordx4 v[60:63], v{VT0}, {WS}, s{S_T0} offen sc1', 'csst')
                a.vmem(f'buffer_store_dwordx4 v[60:63], v{VT0}, {WS}, s{S_T0} offen offset:1024 sc1', 'csst')
                a.e('s_mov_b64 exec, 0xff')
                a.vmem(f'buffer_store_dwordx4 v[60:63], v{VT0}, {WS}, s{S_T0} offen offset:2048 sc1', 'csst')
                a.e('s_mov_b64 exec, -1')
                if l_ == 0: a.e(f's_add_u32 s{S_T0}, s{S_T0}, {16*KVREC}')
    def cs_part2():
        a.e(f's_lshl_b32 s{S_T0}, s2, 7')
        a.e(f's_add_u32 s{S_T0}, s{S_T0}, {hex(CSF_OFF)}')
        a.e(f'v_mov_b32 v{VT1}, s{S_T0}')
        a.e(f's_add_u32 s{S_T1}, s{S_B}, 8')
        a.e(f'v_mov_b32 v{VT0}, s{S_T1}')
        a.wait_vm('csst')
        a.e('s_mov_b64 exec, 1')
        a.vmem(f'buffer_store_dword v{VT0}, v{VT1}, {WS}, 0 offen sc1', 'csf')
        a.e('s_mov_b64 exec, -1')
    def cs_fill():
        L_ = a.newlabel('CPOLL'); D_ = a.newlabel('CPOLLD')
        a.e(f'v_min_u32 v{VT0}, 27, v{V_LANE}')
        a.e(f'v_lshrrev_b32 v{VT2}, 2, v{VT0}')
        a.e(f's_lshr_b32 s{S_T0}, s{S_CB2}, 1')
        a.e(f'v_lshlrev_b32 v{VT1}, 3, v{VT2}')
        a.e(f'v_add_u32 v{VT1}, s{S_T0}, v{VT1}')
        a.e(f's_add_u32 s{S_T0}, s{S_CB}, 24')
        a.e(f'v_mov_b32 v{VT3}, s{S_T0}')
        a.e(f'v_cmp_eq_u32 vcc, 3, v{VT2}')
        a.e('s_nop 1')
        a.e(f'v_cndmask_b32 v{VT1}, v{VT1}, v{VT3}, vcc')
        a.e(f's_mul_i32 s{S_T0}, s{S_CB2}, 112')
        a.e(f's_lshr_b32 s{S_T0}, s{S_T0}, 6')
        a.e(f's_add_u32 s{S_T0}, s{S_T0}, {32 - 4}')
        a.e(f'v_add_u32 v{VT3}, s{S_T0}, v{VT2}')
        a.e(f'v_min_u32 v{VT3}, 59, v{VT3}')
        a.e(f'v_cmp_lt_u32 vcc, 3, v{VT2}')
        a.e('s_nop 1')
        a.e(f'v_cndmask_b32 v{VT1}, v{VT1}, v{VT3}, vcc')
        a.e(f'v_and_b32 v{VT0}, 3, v{VT0}')
        a.e(f'v_lshl_add_u32 v{VT1}, v{VT1}, 2, v{VT0}')
        if opt.kv_atomic:
            a.e(f's_lshl_b32 s{S_T0}, s{S_CB2}, 3')
            a.e(f'v_mov_b32 v{VT3}, s{S_T0}')
            a.e(f'v_cmp_lt_u32 vcc, 27, v{V_LANE}')
            a.e('s_nop 1')
            a.e(f'v_cndmask_b32 v{VT1}, v{VT1}, v{VT3}, vcc')
        a.e(f'v_lshlrev_b32 v{VT1}, 7, v{VT1}')
        a.e(f's_mov_b32 s{S_T0}, {hex(CSF_OFF)}')
        a.e(f's_add_u32 s{S_T1}, s{S_B}, 8')
        a.e(f's_mov_b32 s{95}, {opt.spin}')
        a.label(L_)
        a.e(f'buffer_load_dword v40, v{VT1}, {WS}, s{S_T0} offen sc1')
        a.e('s_waitcnt vmcnt(0)')
        a.e(f'v_subrev_u32 v40, s{S_T1}, v40')
        a.e('v_cmp_gt_u32 vcc, 0x80, v40')
        a.e(f's_sub_u32 s{95}, s{95}, 1')
        a.e(f's_cbranch_scc1 {D_}')
        a.e('s_cmp_eq_u64 vcc, -1')
        a.e(f's_cbranch_scc0 {L_}')
        a.label(D_)
        a.vm = []
        def colof(dst, gofs):
            a.e(f'v_add_u32 v{VT0}, {gofs}, v{V_LANE}')
            a.e(f'v_lshlrev_b32 v{VT2}, 2, v{VT0}')
            a.e(f's_lshl_b32 s{S_T0}, s{S_CB2}, 5')
            a.e(f's_mul_i32 s{S_T1}, s{S_CB2}, 112')
            a.e(f's_add_u32 s{S_T1}, s{S_T1}, {2048 - 160}')
            a.e(f'v_add_u32 v{dst}, s{S_T1}, v{VT2}')
            for lim, addc, useb in [(40, 1536 - 96, 'cb'), (24, -64, 'hp'), (16, 1024 - 32, 'hp'), (8, 512, 'hp')]:
                if useb == 'cb':
                    a.e(f's_lshl_b32 s{S_T1}, s{S_CB}, 6')
                    a.e(f's_add_u32 s{S_T1}, s{S_T1}, {addc}')
                else:
                    a.e(f's_add_u32 s{S_T1}, s{S_T0}, {hex(addc & 0xffffffff)}')
                a.e(f'v_add_u32 v{VT3}, s{S_T1}, v{VT2}')
                a.e(f'v_cmp_gt_u32 vcc, {lim}, v{VT0}')
                a.e('s_nop 1')
                a.e(f'v_cndmask_b32 v{dst}, v{dst}, v{VT3}, vcc')
            a.e(f'v_lshlrev_b32 v{dst}, 2, v{dst}')
        colof(36, 0); colof(37, 64)
        a.e(f's_mov_b32 s{S_T0}, {hex(CSP_OFF)}')
        for kq in range(4):
            a.e(f'buffer_load_dwordx4 v[{40+4*kq}:{43+4*kq}], v36, {WS}, s{S_T0} offen sc1')
            a.e('s_mov_b64 exec, 0xf')
            a.e(f'buffer_load_dwordx4 v[{56+4*kq}:{59+4*kq}], v37, {WS}, s{S_T0} offen sc1')
            a.e('s_mov_b64 exec, -1')
            if kq < 3: a.e(f's_add_u32 s{S_T0}, s{S_T0}, 15360')
        a.e(f'v_lshlrev_b32 v{VT0}, 4, v{V_LANE}')
        a.e(f'v_add_u32 v{VT0}, {hex(CSC)}, v{VT0}')
        a.e('s_waitcnt vmcnt(0)')
        for b in (40, 56):
            for i in (0, 2):
                a.e(pk('add', b + i, vp(b + i), vp(b + 4 + i)))
                a.e(pk('add', b + 8 + i, vp(b + 8 + i), vp(b + 12 + i)))
                a.e(pk('add', b + i, vp(b + i), vp(b + 8 + i)))
        a.e(f'ds_write_b128 v{VT0}, v[40:43]')
        a.e('s_mov_b64 exec, 0xf')
        a.e(f'ds_write_b128 v{VT0}, v[56:59] offset:1024')
        a.e('s_mov_b64 exec, -1')
        a.e('s_waitcnt lgkmcnt(0)')

    if not opt.cs_late: cs_part1()
    chunks_of = {}
    for s in stream: chunks_of.setdefault((s.layer, s.phase), set()).add(s.chunk)
    nb = 0
    for ev in events:
        L, kind, p, ci = ev
        if kind == 'B':
            cur[0] = f'pre {L}.{p}.B{ci}'
            issue(0, must=(L, p, ci))
            cur[0] = f'{L}.{p}.B{ci}'
            if nb < 5: dstamp()
            a.wait_vm((L, p, ci))
            if nb == 0: hstamp(a, opt, 10)
            if nb == 1: hstamp(a, opt, 11)
            if nb < 5: dstamp()
            a.e('s_barrier')
            nb += 1
            if ci >= 2: released.add((L, p, ci - 2))
            if ci == 0:
                for (l2, p2), cs_ in chunks_of.items():
                    if p2 in NOE and (l2, PHASES.index(p2)) < (L, PHASES.index(p)):
                        for c in cs_: released.add((l2, p2, c))
            if opt.cs_late and nb <= 4:
                if nb == 1:
                    issue(16)
                    cs_part1()
                    nonce_setup()
                elif nb == 2:
                    issue(16)
                    cs_part2()
                    late_setup()
                elif nb == 3:
                    pass
                elif nb == 4:
                    cs_fill()
                    win[0] = opt.window
            elif nb == 1:
                issue(32)
                late_setup()
                cs_part2()
            elif nb == opt.fill_at:
                cs_fill()
                win[0] = opt.window
            elif nb in (2, 3, 4):
                pass
            else:
                issue(opt.caps.get(f'{p}.B{ci}', opt.caps.get(f'{p}.B*', 0)))
                park_policy(cur[0])
        elif kind == 'R':
            a.e('s_barrier')
        elif kind == 'E':
            cur[0] = f'{L}.{p}.E'
            a.e('s_barrier')
            for c in chunks_of[(L, p)]: released.add((L, p, c))
            issue(opt.caps.get(f'{p}.E', 0))
            park_policy(cur[0])
        else:
            cur[0] = f'{L}.{p}'
            a.e('s_barrier')
            issue(opt.caps.get(p, 0))
            park_policy(cur[0])
    if opt.startdiag:
        a.e(f's_lshl_b32 s{S_T0}, s2, 8')
        a.e(f's_add_u32 s{S_T0}, s{S_T0}, {hex(TM_OFF + 128)}')
        for i in range(dg[0]):
            a.e(f'v_mov_b32 v99, {4*i}')
            a.e(f'buffer_store_dword v{100+i}, v99, {WS}, s{S_T0} offen')
    a.e('s_waitcnt vmcnt(0)')
    a.e('s_endpgm')


def gen_toucher(a, opt, events):
    a.c('--- A loader / toucher')
    if opt.prio_a: a.e(f's_setprio {opt.prio_a}')
    mats = {'WO': (S_PTR + 4, 512 * 512 * 2), 'W1': (S_PTR + 8, 512 * 512 * 2),
            'W2': (S_PTR + 10, 512 * 512 * 2), 'W3': (S_PTR + 12, 512 * 1792 * 2), 'W4': (S_PTR + 14, 1792 * 512 * 2)}
    srds = {}
    for i, (k, (p, size)) in enumerate(mats.items()):
        s = 40 + 4 * i
        a.e(f's_mov_b32 s{s}, s{p}'); a.e(f's_mov_b32 s{s+1}, s{p+1}')
        a.e(f's_mov_b32 s{s+2}, {hex(size)}'); a.e(f's_mov_b32 s{s+3}, 0x20000')
        srds[k] = s
    T0s, T1s, T2s, T3s, T4s, T5s = 33, 34, 35, 36, 37, 38
    THR, SPIN = 60, 61
    RA, P7T = 64, 68
    U0, U1, U2, U3, U4 = 76, 77, 78, 79, 80
    VAS, VAG, VFS, VFB, VFH, VAH = 3, 4, 5, 6, 7, 8
    X0, X1, X2, X3 = 24, 25, 26, 27
    X0W = 31
    e = a.e
    VXK = 40
    e(f'v_lshrrev_b32 v2, 4, v{V_LANE}')
    e(f'v_and_b32 v3, 15, v{V_LANE}')
    for k in range(4):
        e(f'v_add_u32 v{VXK+k}, {4*k}, v2'); e(f'v_xor_b32 v{VXK+k}, v{VXK+k}, v3'); e(f'v_lshlrev_b32 v{VXK+k}, 4, v{VXK+k}')
        e(f'v_lshl_add_u32 v{VXK+k}, v2, 10, v{VXK+k}')
    e(f's_lshl_b32 s33, s{S_G}, 8'); e(f's_lshl_b32 s34, s{S_RB2}, 7'); e('s_add_u32 s33, s33, s34'); e('s_lshl_b32 s82, s33, 10')
    e(f's_lshl_b32 s83, s{S_RB2}, 1'); e(f's_add_u32 s83, s83, s{S_CB2}'); e(f's_and_b32 s83, s83, {3 if opt.rot else 0}')
    e(f's_lshr_b32 s81, s{S_CB2}, 2'); e(f's_lshl_b32 s81, s81, {13 if opt.rot else 31}')
    if not opt.rot: e('s_mov_b32 s81, 0')
    def x_chunk(c, half=None):
        e(f's_xor_b32 s33, s83, {c}'); e('s_lshl_b32 s33, s33, 8'); e('s_add_u32 s33, s33, s82')
        if half == 1:
            e('s_add_u32 s34, s81, 16384'); e('s_and_b32 s34, s34, 0x7fff')
        else:
            e('s_mov_b32 s34, s81')
        n = 8 if half is None else 4
        if len(a.vm) + 4 * n > 62:
            keep = 62 - 4 * n
            e(f's_waitcnt vmcnt({keep})'); a.vm = a.vm[-keep:] if keep else []
        e(f's_mov_b32 s36, {n}')
        lp = a.newlabel('XC'); a.label(lp)
        for k in range(4):
            e(f's_add_u32 m0, s34, {hex(AREG + (c & 1) * 32768)}')
            e('s_lshl_b32 s35, s34, 2'); e('s_add_u32 s35, s35, s33')
            e(f'buffer_load_dwordx4 v{VXK + k}, s[{S_X}:{S_X+3}], s35 offen lds')
            e('s_add_u32 s34, s34, 1024')
        e('s_and_b32 s34, s34, 0x7fff')
        e('s_sub_u32 s36, s36, 1'); e('s_cmp_lg_u32 s36, 0'); e(f's_cbranch_scc1 {lp}')
        a.vm += [('X', c)] * (4 * n)
        assert len(a.vm) <= 63
    def x_tile():
        e(f'v_lshrrev_b32 v2, 3, v{V_LANE}'); e('v_lshlrev_b32 v2, 10, v2')
        e(f'v_and_b32 v30, 7, v{V_LANE}'); e('v_lshl_add_u32 v2, v30, 4, v2')
        e(f's_lshl_b32 s33, s{S_G}, 8'); e(f's_lshl_b32 s34, s{S_RB}, 6'); e('s_add_u32 s33, s33, s34'); e('s_lshl_b32 s33, s33, 10')
        e(f's_lshl_b32 s34, s{S_CB}, 7'); e('s_add_u32 s33, s33, s34')
        for p_ in range(8):
            e(f's_mov_b32 m0, {hex(AREG + p_ * 1024)}')
            if p_: e('s_add_u32 s33, s33, 8192')
            else: e('s_nop 0')
            a.vmem(f'buffer_load_dwordx4 v2, s[{S_X}:{S_X+3}], s33 offen lds', 'x')
    if WARM0[0]:
        e('s_barrier')
        events = events[1:]
    hstamp(a, opt, 12)
    x_chunk(0); x_chunk(1, 0)
    hstamp(a, opt, 13)
    e(f'v_lshlrev_b32 v1, 7, v{V_LANE}')
    e(f'v_lshlrev_b32 v{X0}, 4, v{V_LANE}')
    e(f'v_lshlrev_b32 v{X0W}, 4, v{V_LANE}')
    e(f's_lshl_b32 s{T0s}, s{S_G}, 4'); e(f's_lshl_b32 s{T1s}, s{S_RB}, 2'); e(f's_add_u32 s{T0s}, s{T0s}, s{T1s}')
    e(f's_lshl_b32 s{T1s}, s{T0s}, 14'); e(f'v_add_u32 v{VAS}, s{T1s}, v{X0}')
    e(f's_mul_i32 s{T1s}, s{T0s}, 57344'); e(f'v_add_u32 v{VAG}, s{T1s}, v{X0}')
    rmask = 3 if opt.rot else 0
    for c in range(4):
        e(f's_and_b32 s{RA+c}, s{S_RB}, {rmask}'); e(f's_xor_b32 s{RA+c}, s{RA+c}, {c}'); e(f's_lshl_b32 s{RA+c}, s{RA+c}, 12')
    for p_ in range(8):
        e(f's_and_b32 s{P7T+p_}, s{S_RB}, {rmask}'); e(f's_lshl_b32 s{P7T+p_}, s{P7T+p_}, 1')
        e(f's_xor_b32 s{P7T+p_}, s{P7T+p_}, {p_}'); e(f's_mul_i32 s{P7T+p_}, s{P7T+p_}, 7168')
    e(f'v_and_b32 v{X1}, 15, v{V_LANE}')
    e(f'v_and_b32 v{X2}, 0x30, v{V_LANE}')
    e(f's_mul_i32 s{T3s}, s{S_G}, 18')
    e(f's_lshl_b32 s{T4s}, s{S_G}, 8')
    for c in range(4):
        e(f's_lshr_b32 s{T5s}, s{RA+c}, 12')
        e(f's_lshr_b32 s{U3}, s{T5s}, 1'); e(f's_add_u32 s{U3}, s{U3}, 1'); e(f's_sub_u32 s{U4}, 0, s{U3}')
        e(f's_bitcmp1_b32 s{T5s}, 0'); e(f's_cselect_b32 s{U3}, s{U3}, s{U4}')
        e(f's_lshl_b32 s{T2s}, s{S_RB}, 6'); e(f's_add_u32 s{T2s}, s{T2s}, s{U3}'); e(f's_add_u32 s{T2s}, s{T2s}, 16')
        for w in range(4):
            r = VAH + 4 * c + w
            e(f's_add_u32 s{T5s}, s{T2s}, {16 * w}')
            e(f'v_add_u32 v{r}, s{T5s}, v{X1}')
            e(f'v_lshrrev_b32 v{X3}, 4, v{r}'); e(f'v_add_u32 v{X3}, s{T3s}, v{X3}'); e(f'v_lshlrev_b32 v{X3}, 14, v{X3}')
            e(f'v_and_b32 v28, 15, v{r}'); e(f'v_add_u32 v28, v{X2}, v28'); e(f'v_lshl_add_u32 v{X3}, v28, 4, v{X3}')
            e(f'v_add_u32 v28, s{T4s}, v{r}'); e('v_subrev_u32 v28, 16, v28')
            e('v_cmp_gt_u32 vcc, 0x800, v28')
            e(f'v_mov_b32 v{r}, 0x80000000'); e('s_nop 0')
            e(f'v_cndmask_b32 v{r}, v{r}, v{X3}, vcc')
    e(f's_lshl_b32 s{T2s}, s{S_G}, 9'); e(f's_add_u32 s{T2s}, s{T2s}, {hex(LF_OFF)}')
    e(f'v_bfe_u32 v{X1}, v{V_LANE}, 3, 2'); e(f'v_lshlrev_b32 v{X1}, 7, v{X1}')
    e(f'v_and_b32 v{X2}, 7, v{V_LANE}'); e(f'v_lshl_add_u32 v{X1}, v{X2}, 2, v{X1}')
    e(f's_lshl_b32 s{T3s}, s{S_RB}, 5'); e(f's_add_u32 s{T3s}, s{T3s}, s{T2s}')
    e(f'v_add_u32 v{VFS}, s{T3s}, v{X1}')
    e(f's_and_b32 s{T3s}, s{S_RB}, 1'); e(f's_lshl_b32 s{T3s}, s{T3s}, 8'); e(f's_add_u32 s{T3s}, s{T3s}, s{T2s}')
    e(f's_lshr_b32 s{T4s}, s{S_RB}, 1'); e(f's_lshl_b32 s{T4s}, s{T4s}, 6'); e(f's_add_u32 s{T3s}, s{T3s}, s{T4s}')
    e(f'v_bfe_u32 v{X2}, v{V_LANE}, 4, 1'); e(f'v_lshlrev_b32 v{X2}, 7, v{X2}')
    e(f'v_and_b32 v{X3}, 15, v{V_LANE}'); e(f'v_lshl_add_u32 v{X2}, v{X3}, 2, v{X2}')
    e(f'v_add_u32 v{VFB}, s{T3s}, v{X2}')
    e(f's_lshl_b32 s{T3s}, s{S_R}, 2'); e(f's_add_u32 s{T3s}, s{T3s}, s{T2s}')
    e(f'v_and_b32 v{X2}, 3, v{V_LANE}'); e(f'v_lshlrev_b32 v{X2}, 7, v{X2}'); e(f'v_add_u32 v{X2}, s{T3s}, v{X2}')
    e(f'v_cmp_lt_u32 vcc, 31, v{V_LANE}'); e('s_nop 1')
    e(f'v_cndmask_b32 v{VFB}, v{VFB}, v{X2}, vcc')
    def build_fh(L):
        la = a.newlabel('FH'); lb = a.newlabel('FH')
        e(f's_lshl_b32 s{T2s}, s{S_G}, 9'); e(f's_add_u32 s{T2s}, s{T2s}, {hex(LF_OFF)}')
        e(f's_lshl_b32 s{T3s}, s{S_RB}, 5'); e(f's_add_u32 s{T3s}, s{T3s}, s{T2s}')
        e(f's_sub_u32 s{U1}, s{T3s}, 32'); e(f's_add_u32 s{U1}, s{U1}, 256'); e(f's_mov_b32 s{U3}, 128')
        e(f's_add_u32 s{U2}, s{T3s}, 32'); e(f's_mov_b32 s{U4}, 128')
        e(f's_lshl_b32 s{T4s}, s{S_G}, 8'); e(f's_add_u32 s{T4s}, s{T4s}, {hex(HF_OFF + L * 2048)}')
        e(f's_cmp_eq_u32 s{S_RB}, 0'); e(f's_cbranch_scc0 {la}')
        e(f's_mov_b32 s{U1}, s{T3s}')
        e(f's_cmp_eq_u32 s{S_G}, 0'); e(f's_cbranch_scc1 {la}')
        e(f's_mov_b32 s{U1}, s{T4s}'); e(f's_mov_b32 s{U3}, 0')
        a.label(la)
        e(f's_cmp_eq_u32 s{S_RB}, 3'); e(f's_cbranch_scc0 {lb}')
        e(f's_mov_b32 s{U2}, s{T3s}')
        e(f's_cmp_eq_u32 s{S_G}, 7'); e(f's_cbranch_scc1 {lb}')
        e(f's_add_u32 s{U2}, s{T4s}, 128'); e(f's_mov_b32 s{U4}, 0')
        a.label(lb)
        e(f'v_bfe_u32 v{X1}, v{V_LANE}, 3, 1'); e(f'v_and_b32 v{X2}, 7, v{V_LANE}'); e(f'v_lshlrev_b32 v{X2}, 2, v{X2}')
        for base_s, mul_s, sel in ((U1, U3, 2), (U2, U4, 3)):
            e(f'v_mul_u32_u24 v{X3}, s{mul_s}, v{X1}'); e(f'v_add_u32 v{X3}, v{X3}, v{X2}'); e(f'v_add_u32 v{X3}, s{base_s}, v{X3}')
            e(f'v_lshrrev_b32 v28, 4, v{V_LANE}'); e(f'v_cmp_eq_u32 vcc, {sel}, v28'); e('s_nop 1')
            e(f'v_cndmask_b32 v{VFH}, v{VFH if sel == 3 else VFS}, v{X3}, vcc')
    e('s_waitcnt lgkmcnt(0)')
    e(f's_mul_i32 s{S_B}, s{S_V}, 0x9e3779b1'); e(f's_add_u32 s{S_B}, s{S_B}, 0x7f4a7c15'); e(f's_and_b32 s{S_B}, s{S_B}, 0xffffff00')

    def poll(v, epoch):
        L_ = a.newlabel('AP'); D_ = a.newlabel('APD')
        e(f's_add_u32 s{THR}, s{S_B}, {8*epoch}'); e(f's_mov_b32 s{SPIN}, {opt.spin}')
        a.label(L_)
        e(f'buffer_load_dword v30, v{v}, {WS}, 0 offen sc1'); e('s_waitcnt vmcnt(0)')
        e(f'v_subrev_u32 v30, s{THR}, v30'); e('v_cmp_gt_u32 vcc, 0x80, v30')
        e(f's_sub_u32 s{SPIN}, s{SPIN}, 1'); e(f's_cbranch_scc1 {D_}')
        e('s_cmp_eq_u64 vcc, -1')
        if opt.poll_sleep:
            e(f's_cbranch_scc1 {D_}'); e(f's_sleep {opt.poll_sleep}'); e(f's_branch {L_}')
        else:
            e(f's_cbranch_scc0 {L_}')
        a.label(D_); a.vm = []
    def a_chunk(phase, c):
        for w in range(4):
            e(f's_mov_b32 m0, {hex(AREG + (c % 4) * 16384 + w * 4096)}')
            if phase == 'P7':
                last = None
                for k in range(4):
                    p_, i_ = divmod(4 * c + k, 7)
                    const = G_OFF + w * 57344 + (i_ - k) * 1024
                    if last != (p_, const):
                        e(f's_add_u32 s{T0s}, s{P7T+p_}, {hex(const & 0xffffffff)}'); last = (p_, const)
                    a.vmem(f'buffer_load_dwordx4 v{VAG}, {WS}, s{T0s} offen offset:{k*1024} sc1 lds', ('A', phase, c))
            else:
                if phase == 'P5':
                    va = VAH + 4 * c + w; e(f's_add_u32 s{T0s}, s{RA+c}, {hex(A0_OFF)}' if A0_OFF else f's_mov_b32 s{T0s}, s{RA+c}')
                elif phase == 'P3':
                    va = VAS; e(f's_add_u32 s{T0s}, s{RA+c}, s{U0}'); e(f's_add_u32 s{T0s}, s{T0s}, {hex(A0_OFF + w * 16384)}')
                else:
                    va = VAS; e(f's_add_u32 s{T0s}, s{RA+c}, {hex(A1_OFF + w * 16384)}')
                for k in range(4):
                    a.vmem(f'buffer_load_dwordx4 v{va}, {WS}, s{T0s} offen offset:{k*1024} sc1 lds', ('A', phase, c))
    e(f's_lshl_b32 s{U0}, s{S_G}, 1'); e(f's_add_u32 s{U0}, s{U0}, 1'); e(f's_lshl_b32 s{U0}, s{U0}, 14')

    dummy = [0]
    def wide(srd_s, soff_s):
        d = 64 + 4 * (dummy[0] % 40); dummy[0] += 1
        fl = 'sc1' if srd_s == WS else opt.touch_flags
        a.vmem(f'buffer_load_dwordx4 v[{d}:{d+3}], v{X0W}, {srd_s}, s{soff_s} offen {fl}', 'T')
    def mall_touch():
        for k in ['WO', 'W2', 'W4']:
            size = mats[k][1]; per = size // 256
            s = srds[k]
            e(f's_mul_i32 s{T0s}, s2, {per}')
            for i in range(per // 1024):
                if i: e(f's_add_u32 s{T0s}, s{T0s}, 1024')
                wide(f's[{s}:{s+3}]', T0s)
    def g_touch():
        e(f's_mul_i32 s{T0s}, s{S_G}, {16 * 57344}'); e(f's_mul_i32 s{T1s}, s{S_R}, 28672')
        e(f's_add_u32 s{T0s}, s{T0s}, s{T1s}'); e(f's_add_u32 s{T0s}, s{T0s}, {hex(G_OFF)}')
        for i in range(28):
            if i: e(f's_add_u32 s{T0s}, s{T0s}, 1024')
            wide(WS, T0s)
    def key(sx):
        k, p, c = sx.split(',')
        return (0, k, p, None if c == '-' else int(c))
    EPO = {'P3': 1, 'P4': 2, 'P5': 3, 'P7': 5}
    if opt.p7_self: del EPO['P7']
    nxt = 0
    for ev in events:
        L, kind, p, ci = ev
        if kind == 'B' and p in EPO:
            nch = NCH[p]
            if ci == 0:
                poll({'P3': VFB, 'P4': VFS, 'P5': VFH, 'P7': VFB}[p], 1 + 6 * L + EPO[p])
                a_chunk(p, 0); a_chunk(p, 1); nxt = 2
            a.wait_vm(('A', p, ci))
            e('s_barrier')
            if p == 'P3' and ci == 3: build_fh(L)
            while nxt < nch and (nxt <= ci + 2 or nxt <= 3) and nxt <= ci + 2 + (1 if ci == 0 and False else 0):
                a_chunk(p, nxt); nxt += 1
        elif L == 0 and kind == 'B' and p == 'P1KV':
            a.wait_vm(('X', ci))
            if ci == 0: hstamp(a, opt, 14)
            if ci == 2: hstamp(a, opt, 15)
            e('s_barrier')
            if ci == 0: x_chunk(1, 1)
            if not EARLY[0] and 1 <= ci <= 2: x_chunk(ci + 1)
            if ci == 3: x_tile()
        elif kind == 'R':
            e('s_barrier')
            x_chunk(ci + 2)
        else:
            if ev == (0, 'E', 'P1KV', None): a.wait_vm('x')
            e('s_barrier')
        if opt.touch and opt.touch_at and ev == key(opt.touch_at): mall_touch()
        if opt.gtouch_at and ev == key(opt.gtouch_at) and not (opt.gtouch_parker and opt.park): g_touch()
    e('s_waitcnt vmcnt(0)')
    e('s_endpgm')


def gen_parker(a, opt, events, h):
    e = a.e
    a.c(f'--- parker {h}')
    plan = opt._plan
    W3S, W4S, CB6, CB7 = 40, 44, 64, 68
    QS = 48
    e(f's_mov_b32 s{QS}, s{S_PTR+2}'); e(f's_mov_b32 s{QS+1}, s{S_PTR+3}'); e(f's_mov_b32 s{QS+2}, {hex(512*1536*2)}'); e(f's_mov_b32 s{QS+3}, 0x20000')
    for s_, p_, size in ((W3S, S_PTR + 12, 512 * 1792 * 2), (W4S, S_PTR + 14, 1792 * 512 * 2)):
        e(f's_mov_b32 s{s_}, s{p_}'); e(f's_mov_b32 s{s_+1}, s{p_+1}'); e(f's_mov_b32 s{s_+2}, {hex(size)}'); e(f's_mov_b32 s{s_+3}, 0x20000')
    e(f'v_lshlrev_b32 v1, 4, v{V_LANE}')
    if WARM0[0]:
        e(f's_mul_i32 s33, s{S_R}, 49152')
        if h: e('s_add_u32 s33, s33, 24576')
        k_ = 0
        if h == 0:
            e(f's_lshl_b32 s34, s{S_G}, 18'); e(f's_lshl_b32 s35, s{S_R}, 13'); e('s_add_u32 s34, s34, s35')
            for i in range(8):
                a.vmem(f'buffer_load_dwordx4 v[{16+4*k_}:{19+4*k_}], v1, s[{S_X}:{S_X+3}], s34 offen', 'T'); k_ += 1
                e('s_add_u32 s34, s34, 1024')
        for i in range(24):
            a.vmem(f'buffer_load_dwordx4 v[{16+4*k_}:{19+4*k_}], v1, s[{QS}:{QS+3}], s33 offen', 'T'); k_ += 1
            e('s_add_u32 s33, s33, 1024')
    rm = 3 if opt.rot else 0
    for c in range(4):
        e(f's_lshl_b32 s{CB6+c}, s{S_RB2}, 1'); e(f's_and_b32 s{CB6+c}, s{CB6+c}, {rm}'); e(f's_xor_b32 s{CB6+c}, s{CB6+c}, {c}')
        e(f's_mul_i32 s{CB6+c}, s{CB6+c}, {128*3584}')
    for p_ in range(8):
        e(f's_and_b32 s{CB7+p_}, s{S_RB}, {rm}'); e(f's_lshl_b32 s{CB7+p_}, s{CB7+p_}, 1'); e(f's_xor_b32 s{CB7+p_}, s{CB7+p_}, {p_}')
        e(f's_mul_i32 s{CB7+p_}, s{CB7+p_}, {224*1024}')
    VN, VW, VL, X0, X1, X2 = 2, 4, 8, 11, 12, 13
    e(f'v_lshrrev_b32 v{X0}, 3, v{V_LANE}'); e(f'v_bfe_u32 v{X1}, v{X0}, 1, 1'); e(f'v_lshlrev_b32 v{X1}, 2, v{X1}')
    e(f'v_and_b32 v{X2}, 7, v{V_LANE}'); e(f'v_xor_b32 v{X2}, v{X2}, v{X1}')
    e(f'v_lshlrev_b32 v{VN}, 10, v{X0}'); e(f'v_lshl_add_u32 v{VN}, v{X2}, 4, v{VN}')
    e(f's_lshl_b32 s33, s{S_CB}, 7'); e(f'v_add_u32 v{VN}, s33, v{VN}'); e(f'v_add_u32 v{VN+1}, {hex(8192-1024)}, v{VN}')
    ps = [0, 1, 2, 3] if h == 0 else [4, 5, 6]
    M14 = (1 << 20) // 14 + 1
    e(f's_mul_i32 s33, s{S_CB2}, 224'); e(f's_mov_b32 s34, {hex(M14)}')
    for k, p_ in enumerate(ps):
        e(f'v_add_u32 v{X0}, {64*p_}, v{V_LANE}'); e(f'v_mul_lo_u32 v{X1}, v{X0}, s34'); e(f'v_lshrrev_b32 v{X1}, 20, v{X1}')
        e(f'v_mul_u32_u24 v{X2}, 14, v{X1}'); e(f'v_sub_u32 v{X2}, v{X0}, v{X2}')
        e(f'v_mul_u32_u24 v{VW+k}, 3584, v{X1}'); e(f'v_lshl_add_u32 v{VW+k}, v{X2}, 4, v{VW+k}'); e(f'v_add_u32 v{VW+k}, s33, v{VW+k}')
    e(f'v_lshlrev_b32 v{VL}, 4, v{V_LANE}'); e(f'v_add_u32 v{VL+1}, 0x10000, v{VL}'); e(f'v_add_u32 v{VL+2}, 0x20000, v{VL}')
    def wide(base_expr_emit, n):
        base_expr_emit()
        for i in range(n):
            if i: e('s_add_u32 s33, s33, 1024')
            a.vmem(f'buffer_load_dwordx4 v[{240+4*(i%4)}:{243+4*(i%4)}], v{VL}, {WS}, s33 offen sc1', 'T')
    def touch_a0():
        wide(lambda: (e(f's_mul_i32 s33, s{S_G}, {18*16384}'), e(f's_mul_i32 s34, s{S_R}, 9216'), e('s_add_u32 s33, s33, s34'), e(f's_add_u32 s33, s33, {hex(A0_OFF)}') if A0_OFF else None), 9)
    def touch_lin(off, per_group):
        wide(lambda: (e(f's_mul_i32 s33, s{S_G}, {per_group}'), e(f's_mul_i32 s34, s{S_R}, {per_group // 32}'), e('s_add_u32 s33, s33, s34'), e(f's_add_u32 s33, s33, {hex(off)}')), per_group // 32 // 1024)
    if WARM0[0]:
        a.wait_vm_all()
        e('s_barrier')
        events = events[1:]
    e('s_waitcnt lgkmcnt(0)')
    e(f's_mul_i32 s{S_B}, s{S_V}, 0x9e3779b1'); e(f's_add_u32 s{S_B}, s{S_B}, 0x7f4a7c15'); e(f's_and_b32 s{S_B}, s{S_B}, 0xffffff00')
    def kv_publish(L):
        K = 216
        e(f'v_lshlrev_b32 v{X0}, 2, v{V_LANE}')
        e(f'v_add_u32 v{X1}, {hex(SCR + h * 1024)}, v{X0}')
        e(f'v_add_u32 v{X2}, {hex(SCR + 8192 + h * 64)}, v{X0}')
        for ww in range(4):
            for i in range(4):
                e(f'ds_read_b32 v{K+4*ww+i}, v{X1} offset:{ww*2048+256*i}')
            if ww == 2: e('s_waitcnt lgkmcnt(4)')
        for ww in range(4):
            e(f'ds_read_b32 v{K+16+ww}, v{X2} offset:{ww*128}')
        e(f's_mul_i32 s33, s{S_CB2}, {KVREC}')
        e(f's_add_u32 s33, s33, {hex(KVA_OFF + L * 16 * KVREC)}')
        e(f's_add_u32 s34, s33, {h * 1024}')
        e(f's_add_u32 s35, s33, {2048 + h * 64}')
        e('s_waitcnt lgkmcnt(0)')
        for i in (0, 2):
            e(pk('add', K + i, vp(K + i), vp(K + 4 + i)))
            e(pk('add', K + 8 + i, vp(K + 8 + i), vp(K + 12 + i)))
            e(pk('add', K + i, vp(K + i), vp(K + 8 + i)))
        e(pk('add', K + 16, vp(K + 16), vp(K + 18)))
        e(f'v_add_f32 v{K+16}, v{K+16}, v{K+17}')
        for i in range(4):
            a.vmem(f'buffer_atomic_add_f32 v{K+i}, v{X0}, {WS}, s34 offen offset:{256*i}', 'kva')
        e('s_mov_b64 exec, 0xffff')
        a.vmem(f'buffer_atomic_add_f32 v{K+16}, v{X0}, {WS}, s35 offen', 'kva')
        e('s_mov_b64 exec, -1')
    def kv_flag(L):
        e(f's_lshl_b32 s33, s{S_CB2}, 7'); e(f's_lshl_b32 s34, s{S_G}, 3'); e('s_add_u32 s33, s33, s34')
        e(f's_lshl_b32 s34, s{S_RB2}, 2'); e('s_add_u32 s33, s33, s34'); e(f's_add_u32 s33, s33, {hex(KVF_OFF + L * 2048 + h * 64)}')
        e(f'v_mov_b32 v{X1}, s33')
        e(f's_add_u32 s34, s{S_B}, 8'); e(f's_add_u32 s34, s34, s{S_XCC}'); e(f'v_mov_b32 v{X2}, s34')
        a.wait_vm('kva')
        e('s_mov_b64 exec, 1')
        a.vmem(f'buffer_store_dword v{X2}, v{X1}, {WS}, 0 offen sc1', 'kvf')
        e('s_mov_b64 exec, -1')
    RW = 184
    def stats_load(kind_, half):
        e(f'v_lshrrev_b32 v{X0}, 5, v{V_LANE}'); e(f'v_lshlrev_b32 v{X0}, 12, v{X0}')
        e(f'v_and_b32 v{X1}, 31, v{V_LANE}'); e(f'v_lshl_add_u32 v{X0}, v{X1}, 4, v{X0}')
        e(f's_lshl_b32 s33, s{S_G}, 15')
        e(f's_lshl_b32 s34, s{S_RB2}, 14' if kind_ == 'big' else f's_lshl_b32 s34, s{S_RB}, 13')
        e('s_add_u32 s33, s33, s34'); e(f's_add_u32 s33, s33, {hex(ST_OFF + 8192 * half)}')
        for k in range(8):
            a.vmem(f'buffer_load_dwordx4 v[{RW+4*k}:{RW+4*k+3}], v{X0}, {WS}, s33 offen offset:{512*k} sc1', 'sv')
    def stats_finish(kind_, half):
        a.wait_vm('sv')
        emit_sum_partials(a, RW, 32)
        if kind_ == 'big':
            emit_stats_from_sums(a, RW, RW + 1, RW + 4, RW + 6, RW + 8)
            e(f'v_lshlrev_b32 v{X1}, 2, v{V_LANE}'); e(f'v_add_u32 v{X1}, {hex(STC)}, v{X1}')
            e(f'ds_write_b32 v{X1}, v{RW+4} offset:{STA + 256*half}')
            e(f'ds_write_b32 v{X1}, v{RW+6} offset:{STB_ + 256*half}')
        else:
            emit_stats_from_sums(a, RW, RW + 1, RW + 4, RW + 5, RW + 8, double=True, keep=(RW + 6, RW + 7))
            e(f'v_lshlrev_b32 v{X1}, 4, v{V_LANE}'); e(f'v_add_u32 v{X1}, {hex(STC)}, v{X1}')
            e(f'ds_write_b128 v{X1}, v[{RW+4}:{RW+7}] offset:{ST4}')
        e('s_waitcnt lgkmcnt(0)')
    def tkey(sx):
        k, p, c = sx.split(',')
        return (0, k, p, None if c == '-' else int(c))
    slots = list(range(50 if (h == 0 or not opt.stats_srv) else 42))
    held = {}
    pending = set()
    def do(actions):
        for act, s_ in actions:
            if act == 'park':
                if s_.kind == 'W3':
                    c_, rr_ = divmod(s_.srow, 128)
                    e(f's_add_u32 s33, s{CB6+c_}, {hex(rr_*3584)}')
                    regs = []
                    for k, p_ in enumerate(ps):
                        sl = slots.pop(0); regs.append((sl, p_))
                        a.vmem(f'buffer_load_dwordx4 v[{16+4*sl}:{19+4*sl}], v{VW+k}, s[{W3S}:{W3S+3}], s33 offen', id(s_))
                else:
                    srow = s_.srow if h == 0 else s_.srow2
                    p_, rr_ = divmod(srow, 224)
                    e(f's_add_u32 s33, s{CB7+p_}, {hex(rr_*1024)}')
                    regs = []
                    for k in range(2):
                        sl = slots.pop(0); regs.append((sl, 2 * h + k))
                        a.vmem(f'buffer_load_dwordx4 v[{16+4*sl}:{19+4*sl}], v{VN+k}, s[{W4S}:{W4S+3}], s33 offen offset:{k*1024}', id(s_))
                held[id(s_)] = regs
            else:
                a.wait_vm(id(s_))
                for sl, p_ in held.pop(id(s_)):
                    ad = s_.addr + p_ * 1024
                    e(f'ds_write_b128 v{VL + (ad >> 16)}, v[{16+4*sl}:{19+4*sl}] offset:{ad & 0xffff}')
                    slots.append(sl)
                pending.add((s_.layer, s_.phase, s_.chunk))
    for ev in events:
        L, kind, p, ci = ev
        if kind == 'B':
            do(plan.get(f'pre {L}.{p}.B{ci}', []))
            if (L, p, ci) in pending:
                e('s_waitcnt lgkmcnt(0)'); pending.clear()
            e('s_barrier')
            acts = plan.get(f'{L}.{p}.B{ci}', [])
        elif kind == 'R':
            e('s_barrier'); acts = []
        elif kind == 'E':
            e('s_barrier'); acts = plan.get(f'{L}.{p}.E', [])
        else:
            e('s_barrier'); acts = plan.get(f'{L}.{p}', [])
        if opt.stats_srv and h == 1 and kind == 'B':
            if p == 'P4':
                if ci == 0: stats_load('small', 0)
                if ci == 2: stats_finish('small', 0)
            if p == 'P6' or (p == 'P1KV' and L == 1):
                if ci == 0: stats_load('big', 0)
                if ci == 1: stats_finish('big', 0); stats_load('big', 1)
                if ci == 2: stats_finish('big', 1)
        if kind == 'X' and p == 'X1' and opt.kv_by_parker and opt.kv_atomic:
            kv_publish(L)
        if ev[1:] == tkey(opt.kvflag_ev)[1:] and opt.kv_by_parker and opt.kv_atomic:
            kv_flag(L)
        do([x for x in acts if x[0] == 'unpark'])
        do([x for x in acts if x[0] == 'park'])
        if opt.pretouch and h == 1 and ev == tkey(opt.a2touch_at): touch_lin(A2_OFF, 262144)
        if opt.gtouch_parker and opt.gtouch_at and ev == tkey(opt.gtouch_at):
            wide(lambda: (e(f's_mul_i32 s33, s{S_G}, {16*57344}'), e(f's_mul_i32 s34, s{S_R}, 28672'), e('s_add_u32 s33, s33, s34'),
                          e(f's_add_u32 s33, s33, {hex(G_OFF + h * 14336)}')), 14)
        if opt.pretouch and ev == tkey(opt.a01touch_at):
            if h == 0:
                touch_a0(); touch_lin(ST_OFF, 32768)
            else:
                touch_lin(A1_OFF, 262144)
    e('s_waitcnt vmcnt(0) lgkmcnt(0)')
    e('s_endpgm')


def generate(opt):
    ATOMIC[0] = opt.kv_atomic
    EARLY[0] = opt.early_rel
    if opt.dbgout >= 0: opt.phi_clamp = 0
    WARM0[0] = 1 if (opt.warm0 and opt.park) else 0
    events = build_events(opt.stop)
    a = Asm(); a.opt = opt
    hdr = open(os.path.join(os.path.dirname(os.path.abspath(__file__)), 'header.txt')).read()
    out = [hdr.rstrip('\n')]
    out.append(f'; @launch grid=(256,1,1) block=({64*(8 if opt.park else 6)},1,1) lds={LDS_TOTAL}')
    out += ['.amdgcn_target "amdgcn-amd-amdhsa--gfx950"', '.text', f'.globl {KNAME}', '.p2align 8',
            f'.type {KNAME},@function', f'{KNAME}:']
    a.e('s_cmp_ge_u32 s2, 256')
    a.e('s_cbranch_scc1 L_EXIT')
    if opt.startdiag: a.e('s_memtime s[100:101]')
    if opt.dbgout >= 0 and opt.fine: a.e('s_memtime s[96:97]')
    if opt.wall:
        a.e('s_memrealtime s[18:19]') if False else None
    a.e(f's_load_dwordx16 s[{S_PTR}:{S_PTR+15}], s[0:1], 0')
    a.e(f's_load_dwordx4 s[{S_PTR+16}:{S_PTR+19}], s[0:1], 64')
    a.e(f's_load_dwordx2 s[{S_PTR+20}:{S_PTR+21}], s[0:1], 80')
    a.e('v_lshrrev_b32 v1, 6, v0')
    a.e('s_nop 0')
    if opt.prefetch_code:
        a.e('s_getpc_b64 s[34:35]')
        a.label('L_PC')
        a.e(f's_sub_u32 s34, s34, (L_PC - {KNAME})')
        a.e('s_subb_u32 s35, s35, 0')
        a.e('s_lshr_b32 s36, s2, 3')
        a.e('s_mul_i32 s36, s36, 2560')
        a.e('v_lshlrev_b32 v2, 7, v0')
        a.e('v_add_u32 v2, s36, v2')
        a.e(f's_mov_b32 s36, (L_CODE_END - {KNAME} - 4)')
        a.e('v_min_u32 v2, s36, v2')
        a.e('v_and_b32 v2, -4, v2')
        a.e('v_cmp_gt_u32 vcc, 20, v0')
        a.e('s_and_saveexec_b64 s[36:37], vcc')
        a.e('s_cbranch_execz L_NOPF')
        a.e('global_load_dword v255, v2, s[34:35]')
        a.label('L_NOPF')
        a.e('s_mov_b64 exec, s[36:37]')
    a.e(f'v_readfirstlane_b32 s{S_W}, v1')
    a.e(f'v_and_b32 v{V_LANE}, 63, v0')
    a.e(f's_getreg_b32 s{S_XCC}, hwreg(HW_REG_XCC_ID)')
    a.e(f's_and_b32 s{S_XCC}, s{S_XCC}, 7')
    a.e(f's_and_b32 s{S_G}, s2, 7')
    a.e(f's_lshr_b32 s{S_R}, s2, 3')
    a.e(f's_lshr_b32 s{S_RB}, s{S_R}, 3')
    a.e(f's_and_b32 s{S_CB}, s{S_R}, 7')
    a.e(f's_lshr_b32 s{S_RB2}, s{S_R}, 4')
    a.e(f's_and_b32 s{S_CB2}, s{S_R}, 15')
    a.e('s_waitcnt lgkmcnt(0)')
    if opt.ws_base:
        a.e(f's_add_u32 s{S_PTR+20}, s{S_PTR+20}, {hex(opt.ws_base)}')
        a.e(f's_addc_u32 s{S_PTR+21}, s{S_PTR+21}, 0')
    a.e(f's_add_u32 s34, s{S_PTR+20}, {hex(NONCE_OFF)}')
    a.e(f's_addc_u32 s35, s{S_PTR+21}, 0')
    a.e(f's_load_dword s{S_V}, s[34:35], 0')
    def srd(s, p, size):
        a.e(f's_mov_b32 s{s}, s{p}'); a.e(f's_mov_b32 s{s+1}, s{p+1}')
        a.e(f's_mov_b32 s{s+2}, {hex(size)}'); a.e(f's_mov_b32 s{s+3}, 0x20000')
    if opt.dbgout >= 0:
        a.e(f's_mov_b32 s86, s{S_PTR+18}'); a.e(f's_mov_b32 s87, s{S_PTR+19}')
    srd(S_WS, S_PTR + 20, WS_USED)
    srd(S_X, S_PTR + 0, 2048 * 512 * 2)
    srd(S_OUT, S_PTR + 16, 2048 * 512 * 2)
    a.e(f's_cmp_lt_u32 s{S_W}, 4')
    a.e('s_cbranch_scc1 L_COMPUTE')
    if opt.park:
        for wv in (6, 7):
            a.e(f's_cmp_eq_u32 s{S_W}, {wv}')
            a.e(f's_cbranch_scc0 L_NOTP{wv}')
            a.e('s_getpc_b64 s[34:35]')
            a.label(f'L_PCP{wv}')
            a.e(f's_add_u32 s34, s34, (L_PARKER{wv} - L_PCP{wv})')
            a.e('s_addc_u32 s35, s35, 0')
            a.e('s_setpc_b64 s[34:35]')
            a.label(f'L_NOTP{wv}')
    a.e(f's_cmp_eq_u32 s{S_W}, 5')
    a.e('s_cbranch_scc0 L_GOLOADER')
    a.e('s_getpc_b64 s[34:35]')
    a.label('L_PC3')
    a.e('s_add_u32 s34, s34, (L_TOUCHER - L_PC3)')
    a.e('s_addc_u32 s35, s35, 0')
    a.e('s_setpc_b64 s[34:35]')
    a.label('L_GOLOADER')
    a.e('s_getpc_b64 s[34:35]')
    a.label('L_PC2')
    a.e('s_add_u32 s34, s34, (L_LOADER - L_PC2)')
    a.e('s_addc_u32 s35, s35, 0')
    a.e('s_setpc_b64 s[34:35]')
    a.label('L_EXIT')
    a.e('s_endpgm')
    a.label('L_COMPUTE')
    a.vm = []
    if opt.stop is not None and opt.stop[0] == 0: cev = events
    else: cev = [e for e in build_events(None) if e[0] == 0]
    rest = gen_compute(a, opt, cev)
    assert not rest, rest
    a.label('L_LOADER')
    a.vm = []
    a.fstamp = lambda p: None
    gen_loader(a, opt, events)
    a.label('L_TOUCHER')
    a.vm = []
    gen_toucher(a, opt, events)
    if opt.park:
        for wv in (6, 7):
            a.label(f'L_PARKER{wv}')
            a.vm = []
            gen_parker(a, opt, events, wv - 6)
    a.label('L_CODE_END')
    out.append(a.text())
    out += ['.section .rodata,"a"', '.p2align 6', f'.amdhsa_kernel {KNAME}',
            '  .amdhsa_next_free_vgpr 256', '  .amdhsa_next_free_sgpr 102', '  .amdhsa_accum_offset 256',
            '  .amdhsa_group_segment_fixed_size 0', '  .amdhsa_kernarg_size 88', '  .amdhsa_user_sgpr_count 2',
            '  .amdhsa_user_sgpr_kernarg_segment_ptr 1', '  .amdhsa_system_sgpr_workgroup_id_x 1', '.end_amdhsa_kernel']
    return '\n'.join(out) + '\n'


if __name__ == '__main__':
    import argparse
    ap = argparse.ArgumentParser()
    ap.add_argument('-o', default='interleave_layers__linear_attn_block__mixer_s_mlp__prompt.s')
    ap.add_argument('--stop', default=None)
    ap.add_argument('--timing', action='store_true')
    ap.add_argument('--safe', action='store_true')
    ap.add_argument('--set', action='append', default=[])
    ap.add_argument('--fine', default=None)
    args = ap.parse_args()
    opt = Opt()
    if args.stop:
        l, p = args.stop.split(','); opt.stop = (int(l), p)
    opt.timing = args.timing; opt.force_safe = args.safe; opt.fine = args.fine
    opt.caps = dict(Opt.caps); opt.park_w3 = dict(Opt.park_w3); opt.park_caps = dict(Opt.park_caps)
    for kv in args.set:
        k, v = kv.split('=')
        if k.startswith('pk3:'): opt.park_w3[k[4:]] = int(v)
        elif k.startswith('pk4:'): opt.park_caps[k[4:]] = int(v)
        elif '.' in k or k in ('X1', 'X2'): opt.caps[k] = int(v)
        else:
            try: setattr(opt, k, int(v))
            except ValueError: setattr(opt, k, v.replace(':', ','))
    open(args.o, 'w').write(generate(opt))
    print('written', args.o)
    if os.environ.get('SCHED'):
        import itertools
        for k, g in itertools.groupby(opt._log, key=lambda x: x[0]):
            g = list(g); d = {}
            for x in g: d[(x[1], x[2], x[3])] = d.get((x[1], x[2], x[3]), 0) + 1
            print(k, ' '.join(f'{a_}.{b_}.c{c_}x{n_}' for (a_, b_, c_), n_ in d.items()), 'FORCED' if any(x[4] for x in g) else '')
```
